```python
import torch

def _softmax(x, axis=-1):
    return torch.softmax(x, dim=axis)
def _gelu(x):
    return torch.nn.functional.gelu(x, approximate="tanh")
def _silu(x):
    return torch.nn.functional.silu(x)
def _sigmoid(x):
    return torch.sigmoid(x)
def _layernorm(x, axis=-1, eps=1e-5):
    m = x.mean(dim=axis, keepdim=True)
    v = x.var(dim=axis, keepdim=True, unbiased=False)
    return (x - m) / torch.sqrt(v + eps)
def _scatter_add(tgt, idx, src, axis=0):
    return tgt.clone().index_add_(axis, idx, src)
def _segment_sum(src, seg, n):
    out = torch.zeros((n,) + src.shape[1:], dtype=src.dtype)
    return out.index_add_(0, seg, src)
def _pad(x, pw):
    flat = tuple(v for pair in reversed(pw) for v in pair)
    return torch.nn.functional.pad(x, flat)

kernel_name = 'interleave_layers__ssm_conv_h3__swiglu_ffn__prompt'

def setup_inputs():

    _w = (lambda a: (lambda t: t.to(torch.bfloat16) if t.is_floating_point() else t)(torch.as_tensor(a)))
    def _A_setup():
        B, S, D = 1, 2048, 512
        ks = 4
        return {
            "q": _w((lambda *s: torch.randn(*s, dtype=torch.bfloat16) * 0.05)(B, S, D)),
            "k": _w((lambda *s: torch.randn(*s, dtype=torch.bfloat16) * 1.6)(B, S, D)),
            "v": _w((lambda *s: torch.randn(*s, dtype=torch.bfloat16) * 1.6)(B, S, D)),
            "shift_k": _w((lambda *s: torch.randn(*s, dtype=torch.bfloat16) * 1.6)(D, ks) * 0.5),
            "ssm_k": _w((lambda *s: torch.randn(*s, dtype=torch.bfloat16) * 1.6)(D, S) * (1.0 / S ** 0.5)),
            "ssm_D": _w((lambda *s: torch.randn(*s, dtype=torch.bfloat16) * 1.6)(D)),
        }
    _A_in = _A_setup()

    def _B_setup():
        B, S, D, F = 1, 2048, 512, 1792
        return {
            "x": _w((lambda *s: torch.randn(*s, dtype=torch.bfloat16) * 0.05)(B, S, D)),
            "w_gate": _w((lambda *s: torch.randn(*s, dtype=torch.bfloat16) * 0.2)(D, F)),
            "w_up": _w((lambda *s: torch.randn(*s, dtype=torch.bfloat16) * 0.2)(D, F)),
            "w_down": _w((lambda *s: torch.randn(*s, dtype=torch.bfloat16) * 0.2)(F, D)),
        }
    _B_in = _B_setup()

    return {
        "A_q": _A_in["q"],
        "A_k": _A_in["k"],
        "A_v": _A_in["v"],
        "A_shift_k": _A_in["shift_k"],
        "A_ssm_k": _A_in["ssm_k"],
        "A_ssm_D": _A_in["ssm_D"],
        "B_x": _B_in["x"],
        "B_w_gate": _B_in["w_gate"],
        "B_w_up": _B_in["w_up"],
        "B_w_down": _B_in["w_down"],
    }

def reference(A_q, A_k, A_v, A_shift_k, A_ssm_k, A_ssm_D, B_x, B_w_gate, B_w_up, B_w_down):
    def _A_ref(q, k, v, shift_k, ssm_k, ssm_D):
        B, S, D = q.shape
        ks = shift_k.shape[-1]
        k_pad = _pad(k, ((0, 0), (ks - 1, 0), (0, 0)))
        k_shift = torch.zeros_like(k)
        for t in range(ks):
            k_shift = k_shift + k_pad[:, t:t + S, :] * shift_k[:, ks - 1 - t][None, None, :]
        kv = k_shift * v
        L = 2 * S
        kv_pad = _pad(kv, ((0, 0), (0, S), (0, 0)))
        kf_pad = _pad(ssm_k, ((0, 0), (0, S)))
        kv_f = (lambda x, axes=(-2,-1): torch.fft.rfft2(x.float(), dim=axes))(kv_pad[:, None, :, :], axes=(1, 2))
        kf_f = (lambda x, axes=(-2,-1): torch.fft.rfft2(x.float(), dim=axes))(kf_pad[:, None, :], axes=(1, 2))
        kf_f = (lambda x, *d: x.permute(*d))(kf_f, 1, 2, 0)
        y_f = kv_f * kf_f[None, :, :, :]
        y = (lambda x, s, axes=(-2,-1): torch.fft.irfft2(x, s=s, dim=axes).to(torch.bfloat16))(y_f, (1, L), axes=(1, 2))[:, 0, :S, :]
        y = y + kv * ssm_D[None, None, :]
        return q * y

    def _B_ref(x, w_gate, w_up, w_down):
        g = _silu(x @ w_gate)
        u = x @ w_up
        return (g * u) @ w_down

    x = A_q
    x = x + _A_ref(_layernorm(x, axis=-1), A_k, A_v, A_shift_k, A_ssm_k, A_ssm_D)
    x = x + _B_ref(_layernorm(x, axis=-1), B_w_gate, B_w_up, B_w_down)
    x = x + _A_ref(_layernorm(x, axis=-1), A_k, A_v, A_shift_k, A_ssm_k, A_ssm_D)
    x = x + _B_ref(_layernorm(x, axis=-1), B_w_gate, B_w_up, B_w_down)
    return x
```

```python
import re

def v(n, c=1): return f"v{n}" if c == 1 else f"v[{n}:{n+c-1}]"
def a(n, c=1): return f"a{n}" if c == 1 else f"a[{n}:{n+c-1}]"
def s(n, c=1): return f"s{n}" if c == 1 else f"s[{n}:{n+c-1}]"

_reg = re.compile(r'^-?(?:abs\()?([vas])(?:(\d+)|\[(\d+):(\d+)\])\)?$')
def regs(op):
    op = op.strip()
    if op == 'vcc': return {('s', 106), ('s', 107)}
    if op == 'exec': return {('s', 126), ('s', 127)}
    if op == 'm0': return {('s', 124)}
    m = _reg.match(op)
    if not m: return set()
    k = m.group(1)
    if m.group(2) is not None: return {(k, int(m.group(2)))}
    return {(k, i) for i in range(int(m.group(3)), int(m.group(4)) + 1)}

TRANS = ('v_exp_f32', 'v_log_f32', 'v_rcp_f32', 'v_rsq_f32', 'v_sqrt_f32', 'v_sin_f32', 'v_cos_f32')

class I:
    __slots__ = ('text', 'op', 'cls', 'dst', 'src', 'srcc', 'wide', 'raw', 'ab')
    def __init__(self, text):
        self.text = text
        t = text.split(';')[0].strip()
        self.raw = t
        self.dst = set(); self.src = set(); self.srcc = set(); self.ab = set(); self.wide = False
        if not t or t.endswith(':') or t.startswith('.'):
            self.op = ''; self.cls = 'label' if t.endswith(':') else 'dir'; return
        parts = t.split(None, 1)
        op = parts[0]; self.op = op
        rest = parts[1] if len(parts) > 1 else ''
        ops = [x.strip() for x in rest.split(',')] if rest else []
        mods = ''
        if ops:
            last = ops[-1].split(None, 1)
            ops[-1] = last[0]; mods = last[1] if len(last) > 1 else ''
            joined = []
            for o in ops: joined.append(o)
            ops = joined
        R = [regs(o.split()[0]) if o else set() for o in ops]
        U = lambda l: set().union(*l) if l else set()
        if op.startswith('v_mfma'):
            self.cls = 'mfma8' if '32x32x16' in op else 'mfma4'
            self.dst = R[0]; self.ab = R[1] | R[2]; self.srcc = R[3]; self.src = self.ab | self.srcc
        elif op.startswith('v_cmp'):
            self.cls = 'valu'; self.dst = R[0]; self.src = U(R[1:])
        elif op.startswith('v_readlane') or op.startswith('v_readfirstlane'):
            self.cls = 'readlane'; self.dst = R[0]; self.src = U(R[1:])
        elif op.startswith('v_permlane'):
            self.cls = 'perml'; self.dst = R[0] | R[1]; self.src = R[0] | R[1]
        elif op.startswith('v_'):
            base = op.replace('_e32', '').replace('_e64', '').replace('_dpp', '').replace('_sdwa', '')
            self.cls = 'trans' if base in TRANS else ('dot' if base.startswith('v_dot') else 'valu')
            if 'row_' in t or 'quad_perm' in t or 'wave_' in t: self.cls = 'dpp'
            self.dst = R[0]; self.src = U(R[1:])
            if base in ('v_fmac_f32', 'v_dot2c_f32_bf16', 'v_writelane_b32') or self.cls == 'dpp': self.src |= R[0]
            if base.startswith('v_cndmask') and len(ops) == 3: self.src |= regs('vcc')
            if base in ('v_add_co_u32', 'v_addc_co_u32', 'v_sub_co_u32'): self.dst = R[0] | R[1]; self.src = U(R[2:])
            if self.cls == 'dot' and len(R) == 4: self.srcc = R[3]; self.ab = R[1] | R[2]
        elif op.startswith('buffer_load') or op.startswith('global_load'):
            if ' lds' in (' ' + mods) or 'load_lds' in op:
                self.cls = 'dma'; self.src = U(R) | regs('m0')
            else:
                self.cls = 'vmem_ld'; self.dst = R[0]; self.src = U(R[1:])
        elif op.startswith('buffer_store') or op.startswith('global_store') or op.startswith('buffer_atomic'):
            self.cls = 'vmem_st'; self.src = U(R)
            self.wide = 'x3' in op or 'x4' in op
            self.ab = R[0] if op.startswith('buffer') else R[1]
        elif op in ('buffer_wbl2', 'buffer_inv'):
            self.cls = 'vmem_st'
        elif op.startswith('ds_read') or op.startswith('ds_bpermute') or op.startswith('ds_swizzle'):
            self.cls = 'ds_rd'; self.dst = R[0]; self.src = U(R[1:])
        elif op.startswith('ds_write'):
            self.cls = 'ds_wr'; self.src = U(R)
        elif op.startswith('s_load') or op.startswith('s_memtime') or op.startswith('s_memrealtime'):
            self.cls = 'smem'; self.dst = R[0]; self.src = U(R[1:])
        elif op.startswith('s_nop'):
            self.cls = 'nop'
        elif op.startswith('s_cmp') or op.startswith('s_cbranch') or op.startswith('s_branch') or op in ('s_waitcnt', 's_barrier', 's_endpgm', 's_sleep', 's_setprio') or op.startswith('s_bitcmp'):
            self.cls = 'sctl'; self.src = U(R)
        elif op.startswith('s_'):
            self.cls = 'salu'; self.dst = R[0]; self.src = U(R[1:])
            if 'saveexec' in op: self.dst |= regs('exec')
        else:
            raise ValueError('unknown op ' + text)
    def states(self):
        if self.cls in ('label', 'dir'): return 0
        if self.cls == 'nop': return int(self.raw.split()[1], 0) + 1
        return 1

VALU = ('valu', 'trans', 'dot', 'dpp', 'perml', 'readlane')
def vonly(x): return {r for r in x if r[0] in 'va'}
def sonly(x): return {r for r in x if r[0] == 's'}

def need(p, c):
    n = 0
    pv = vonly(p.dst)
    if p.cls in VALU:
        if c.cls in ('mfma4', 'mfma8') and pv & c.src: n = max(n, 2)
        if c.cls == 'dpp' and pv & c.src: n = max(n, 2)
        if c.cls == 'perml' and pv & c.src: n = max(n, 2)
        if c.cls == 'readlane' and pv & c.src: n = max(n, 1)
        ps = sonly(p.dst)
        if ps:
            if c.cls in VALU and ps & c.src: n = max(n, 4 if c.cls == 'readlane' or c.op.startswith('v_writelane') else 2)
            if c.cls in ('vmem_ld', 'vmem_st', 'dma') and ps & c.src: n = max(n, 5)
    if p.cls == 'trans' and c.cls not in ('label', 'dir', 'nop', 'sctl', 'salu') and pv & c.src: n = max(n, 1)
    if p.cls == 'dot' and c.cls not in ('label', 'dir', 'nop', 'sctl', 'salu'):
        if c.op == p.op:
            if pv & c.ab: n = max(n, 3)
        elif pv & (c.src | c.dst): n = max(n, 3)
    if p.cls in ('mfma4', 'mfma8'):
        big = p.cls == 'mfma8'
        if c.cls in ('mfma4', 'mfma8'):
            if pv & c.ab: n = max(n, 12 if big else 8)
            if pv & c.srcc and not (c.srcc == p.dst and c.cls == p.cls): n = max(n, 10 if big else 6)
            if pv & c.dst and not pv & c.srcc: n = max(n, 10 if big else 6)
        elif c.cls in VALU or c.cls in ('vmem_ld', 'vmem_st', 'dma', 'ds_rd', 'ds_wr'):
            if pv & (c.src | c.dst): n = max(n, 12 if big else 8)
            if c.cls in VALU and vonly(p.srcc) & c.dst: n = max(n, 7 if big else 3)
    if p.cls == 'salu' and ('s', 124) in p.dst and c.cls == 'dma': n = max(n, 1)
    if p.cls == 'vmem_st' and p.wide and p.ab & c.dst: n = max(n, 2 if c.cls in VALU else 1)
    return n

class K:
    def __init__(self):
        self.ins = []
        self.vm = 0; self.vm_done = 0
        self.lg = 0; self.lg_done = 0
        self.nlabel = 0
        self.nops_added = 0
        self.pend = {}
    def raw(self, text):
        i = I(text)
        if i.cls not in ('label', 'dir'):
            dist = 0; req = 0
            for p in reversed(self.ins[-40:]):
                if dist >= 12: break
                r = need(p, i) if p.cls not in ('label', 'dir', 'nop') else 0
                if r > dist: req = max(req, r - dist)
                dist += p.states()
            while req > 0:
                k = min(req, 16)
                self.ins.append(I(f"s_nop {k-1}")); self.nops_added += k; req -= k
        for r in (i.src | i.dst):
            t = self.pend.get(r)
            if t is not None:
                done = self.vm_done if t[0] == 'vm' else self.lg_done
                if t[1] > done: raise RuntimeError(f"register {r} used before its load completed: {text}")
                del self.pend[r]
        self.ins.append(i)
        tok = None
        if i.cls in ('vmem_ld', 'vmem_st', 'dma'): self.vm += 1; tok = ('vm', self.vm)
        if i.cls in ('ds_rd', 'ds_wr'): self.lg += 1; tok = ('lg', self.lg)
        if i.cls in ('vmem_ld', 'ds_rd'):
            for r in i.dst: self.pend[r] = tok
        return tok
    def __call__(self, text):
        r = None
        for line in text.strip().split('\n'):
            line = line.strip()
            if line: r = self.raw(line)
        return r
    def wait(self, *toks):
        nv = max([t[1] for t in toks if t and t[0] == 'vm'], default=0)
        nl = max([t[1] for t in toks if t and t[0] == 'lg'], default=0)
        parts = []
        if nv > self.vm_done:
            c = self.vm - nv
            c = min(c, 63); parts.append(f"vmcnt({c})"); self.vm_done = self.vm - c
        if nl > self.lg_done:
            c = self.lg - nl
            c = min(c, 15); parts.append(f"lgkmcnt({c})"); self.lg_done = self.lg - c
        if parts: self.raw("s_waitcnt " + " ".join(parts))
    def wait_vm0(self):
        self.raw("s_waitcnt vmcnt(0)"); self.vm_done = self.vm
    def wait_lg0(self):
        self.raw("s_waitcnt lgkmcnt(0)"); self.lg_done = self.lg
    def wait_all(self):
        self.raw("s_waitcnt vmcnt(0) lgkmcnt(0)"); self.vm_done = self.vm; self.lg_done = self.lg
    def label(self, name=None):
        if name is None:
            self.nlabel += 1; name = f"L{self.nlabel}"
        return name
    def place(self, name): self.raw(name + ':')
    def text(self):
        out = []
        for i in self.ins:
            out.append(i.text if i.cls == 'label' else '    ' + i.text)
        return "\n".join(out) + "\n"
```

```python
import sys, os
sys.path.insert(0, os.path.dirname(os.path.abspath(__file__)))
from dsl import *

NAME = 'interleave_layers__ssm_conv_h3__swiglu_ffn__prompt'

WS_XCCF = 0x1000
WS_KVF  = 0x10000
WS_AF   = 0x11000
WS_HF   = 0x15000
WS_FF   = 0x19000
WS_YF   = 0x20000
WS_KVT  = 0x100000
WS_F    = WS_KVT
WS_YP   = 0x300000
WS_A    = 0x500000
WS_H    = 0x700000
WS_DBG  = 0xE00000
WS_SIZE = 0x1000000
H_X, H_HALF, H_RB = 917504, 458752, 114688

LDS_SIZE = 163840
SCR   = 114688
L_K   = SCR
L_V   = L_K + 9216
L_H   = L_V + 8192
H_CP  = 4096 + 64 + 64
assert H_CP % 128 == 0
H_E   = lambda ch: L_H + ch * (2 * H_CP + 0) + 64
H_O   = lambda ch: L_H + ch * (2 * H_CP + 0) + H_CP + 64 + 64
L_U   = L_H + 4 * H_CP + 128
U_S   = 4608
assert L_U + 2 * U_S <= LDS_SIZE, (L_U + 2 * U_S)
L_CRED = SCR
assert L_CRED + 32768 <= L_U
L_YT  = SCR
L_WD  = SCR
L_RED = SCR

sX, sJ, sW, sN, sEXP, sSPIN, sXCC = 4, 5, 6, 7, 8, 9, 10
sMODE = 11
sT = [12, 13, 14, 15, 16, 17, 18, 19, 20, 21, 22, 23]
sC1, sCL = 24, 26
sD = 28
sSH, sDP = 32, 34
RK, RV, RH, RQ, RG, RU, RD, RO, RW, RS = 44, 48, 52, 56, 60, 64, 68, 72, 76, 80
sK4 = 83
def k4(i): return '0' if i == 0 else s(sK4 + i)
sST = 92

vL, vL16, vL0, vNON, vPT, vST = 1, 2, 3, 4, 5, 15
vA0, vA1, vA2, vA3, vA4, vA5, vA6 = 6, 7, 8, 9, 10, 11, 12
ACC = [16, 72]
WF = 128
AR = 184
YS = [232, 236]
XS = [240, 248]

def flist(c):
    if c < 4: return [4*c + e for e in range(4)] + [16 + 4*c + e for e in range(4)]
    q = c - 4; X = [44, 46, 54][q]
    return [32 + 4*q + e for e in range(4)] + [48 + 2*q, 49 + 2*q, X, X + 1]

class Gen:
    def __init__(self, opt):
        self.o = opt
        self.k = K()
        self.tail = []
        self.nst = 0
        self.stamps = []

    def stamp(self, name):
        if not self.o.get('stamps'): return
        k = self.k
        k(f"s_memrealtime {s(sST,2)}"); k.wait_lg0()
        k(f"v_writelane_b32 {v(vST)}, {s(sST)}, {self.nst}")
        self.stamps.append(name); self.nst += 1

    def srd(self, base, size):
        self.k(f"s_mov_b32 {s(base+2)}, {size}\ns_mov_b32 {s(base+3)}, 0x20000")

    def poll_issue(self, vaddr, soff, vt=vPT):
        return (self.k(f"buffer_load_dword {v(vt)}, {v(vaddr)}, {s(RW,4)}, {soff} offen sc1"), vaddr, soff, vt)

    def poll_check(self, h, local=True):
        k = self.k; tok, vaddr, soff, vt = h
        slow, back = k.label(), k.label()
        k.wait(tok)
        k(f"v_cmp_ne_u32 vcc, {s(sEXP if local else sN)}, {v(vt)}")
        k(f"s_cbranch_vccnz {slow}")
        k.place(back)
        ok = k.label()
        t = [f"{slow}:",
             f"buffer_load_dword {v(vt)}, {v(vaddr)}, {s(RW,4)}, {soff} offen sc1",
             "s_waitcnt vmcnt(0)",
             f"v_cmp_ne_u32 vcc, {s(sN)}, {v(vt)}",
             f"s_cbranch_vccz {ok}",
             f"s_sub_u32 {s(sSPIN)}, {s(sSPIN)}, 1",
             f"s_cbranch_scc0 {slow}",
             "s_branch L_END",
             f"{ok}:"]
        if local:
            t += [f"s_cmp_eq_u32 {s(sMODE)}, 0", f"s_cbranch_scc1 {back}", "buffer_inv sc1", "s_waitcnt vmcnt(0)"]
        t += [f"s_branch {back}"]
        self.tail.append(t)

    def poll(self, vaddr, soff, local=True):
        self.poll_check(self.poll_issue(vaddr, soff), local)

    def publish(self, tok, soff, local=True):
        k = self.k
        k.wait(tok)
        if not local:
            return k(f"buffer_store_dword {v(vNON)}, {v(vL0)}, {s(RW,4)}, {soff} offen sc1")
        slow, back = k.label(), k.label()
        k(f"s_cmp_lg_u32 {s(sMODE)}, 0")
        k(f"s_cbranch_scc1 {slow}")
        r = k(f"buffer_store_dword {v(vNON)}, {v(vL0)}, {s(RW,4)}, {soff} offen")
        k.place(back)
        self.tail.append([f"{slow}:", "s_waitcnt vmcnt(0)", "buffer_wbl2 sc1", "s_waitcnt vmcnt(0)",
                          f"buffer_store_dword {v(vNON)}, {v(vL0)}, {s(RW,4)}, {soff} offen sc1", f"s_branch {back}"])
        return r

    def dma(self, vaddr, srd, soff, m0, extra=''):
        k = self.k
        k(m0)
        return k(f"buffer_load_dwordx4 {v(vaddr)}, {s(srd,4)}, {soff} offen {extra} lds".replace('  ', ' '))

    def prologue(self):
        k = self.k; T = sT
        k("s_cmp_ge_u32 s2, 256\ns_cbranch_scc1 L_END")
        for r, off in ((RK, 8), (RV, 16), (RW, 96), (RH, 32), (RS, 24), (RQ, 0), (RG, 56), (RU, 64), (RD, 72), (RO, 80)):
            k(f"s_load_dwordx2 {s(r,2)}, s[0:1], {off}")
        k(f"s_load_dwordx2 {s(sDP,2)}, s[0:1], 40")
        k(f"""s_and_b32 {s(sX)}, s2, 7
              s_lshr_b32 {s(sJ)}, s2, 3
              v_lshrrev_b32 v5, 6, v0
              v_and_b32 {v(vL)}, 63, v0
              v_readfirstlane_b32 {s(sW)}, v5
              v_lshlrev_b32 {v(vL16)}, 4, {v(vL)}""")
        for r, size in ((RK, 2097152), (RV, 2097152), (RW, WS_SIZE), (RH, 2097152), (RS, 4096), (RQ, 2097152),
                        (RG, 1835008), (RU, 1835008), (RD, 1835008), (RO, 2097152)):
            self.srd(r, size)
        if self.o.get('stamps'): k(f"v_mov_b32 {v(vST)}, 0")
        k(f"""v_lshrrev_b32 v16, 3, {v(vL)}
              v_and_b32 v17, 7, {v(vL)}
              v_and_b32 v18, 2, v16
              v_xor_b32 v17, v17, v18
              s_and_b32 {s(T[0])}, {s(sW)}, 1
              s_lshl_b32 {s(T[0])}, {s(T[0])}, 2
              v_xor_b32 v17, {s(T[0])}, v17
              v_lshlrev_b32 v17, 4, v17
              v_lshl_add_u32 v17, v16, 10, v17
              s_lshl_b32 {s(T[0])}, {s(sJ)}, 16
              s_lshl_b32 {s(T[1])}, {s(sW)}, 14
              s_lshl_b32 {s(T[2])}, {s(sX)}, 7
              s_add_u32 {s(T[0])}, {s(T[0])}, {s(T[1])}
              s_add_u32 {s(T[0])}, {s(T[0])}, {s(T[2])}
              v_add_u32 v17, {s(T[0])}, v17
              v_xor_b32 v18, 64, v17
              v_subrev_u32 v18, 8192, v18
              s_lshl_b32 {s(T[1])}, {s(sW)}, 11
              s_add_u32 {s(T[2])}, {s(T[1])}, {L_K + 1024}
              s_add_u32 {s(T[3])}, {s(T[1])}, {L_V}
              s_movk_i32 {s(T[4])}, 8192""")
        k.wait_lg0()
        self.stamp('start')
        k(f"s_load_dword {s(sN)}, {s(RW,2)}, 0")
        self.dma(17, RK, '0', f"s_mov_b32 m0, {s(T[2])}")
        self.dma(17, RV, '0', f"s_mov_b32 m0, {s(T[3])}")
        self.dma(17, RK, s(T[4]), f"s_add_u32 m0, {s(T[2])}, 1024")
        tok = self.dma(17, RV, s(T[4]), f"s_add_u32 m0, {s(T[3])}, 1024")
        skip = k.label()
        k(f"s_cmp_lg_u32 {s(sW)}, 0\ns_cbranch_scc1 {skip}")
        k(f"s_mov_b32 m0, {L_K}")
        k.raw(f"s_nop 0")
        k.ins.append(I(f"buffer_load_dwordx4 v18, {s(RK,4)}, 0 offen lds"))
        k.place(skip)
        self.kv_tok = tok
        k(f"""v_and_b32 v19, 15, {v(vL)}
              s_lshl_b32 {s(T[0])}, {s(sX)}, 6
              s_lshl_b32 {s(T[1])}, {s(sW)}, 4
              s_add_u32 {s(T[0])}, {s(T[0])}, {s(T[1])}
              v_add_u32 v19, {s(T[0])}, v19
              v_lshlrev_b32 v20, 3, v19""")
        self.sh_tok = k(f"buffer_load_dwordx2 v[22:23], v20, {s(RS,4)}, 0 offen")
        k(f"""s_lshl_b32 {s(T[0])}, {s(sX)}, 6
              s_lshl_b32 {s(T[1])}, {s(sJ)}, 1
              s_add_u32 {s(T[0])}, {s(T[0])}, {s(T[1])}
              s_lshl_b32 {s(T[5])}, {s(T[0])}, 1
              s_lshl_b32 {s(T[0])}, {s(T[0])}, 12
              v_lshlrev_b32 v21, 4, v0""")
        k(f"s_load_dword {s(sD)}, {s(sDP,2)}, {s(T[5])}")
        k(f"s_add_u32 {s(T[1])}, {s(T[0])}, 4096")
        k(f"buffer_load_dwordx4 v[24:27], v21, {s(RH,4)}, {s(T[0])} offen")
        k(f"buffer_load_dwordx4 v[32:35], v21, {s(RH,4)}, {s(T[1])} offen")
        k(f"buffer_load_dwordx4 v[28:31], v21, {s(RH,4)}, {s(T[0])} offen offset:2")
        self.h_tok = k(f"buffer_load_dwordx4 v[36:39], v21, {s(RH,4)}, {s(T[1])} offen offset:2")
        k(f"""s_lshl_b32 {s(T[0])}, {s(sX)}, 8
              s_lshl_b32 {s(T[1])}, {s(sJ)}, 3
              s_add_u32 {s(T[0])}, {s(T[0])}, {s(T[1])}
              s_add_u32 {s(T[0])}, {s(T[0])}, {s(sW)}
              s_lshl_b32 {s(T[0])}, {s(T[0])}, 10
              s_add_u32 {s(T[1])}, {s(T[0])}, 4096""")
        k(f"buffer_load_dwordx4 v[224:227], {v(vL16)}, {s(RQ,4)}, {s(T[0])} offen")
        self.q_tok = k(f"buffer_load_dwordx4 v[228:231], {v(vL16)}, {s(RQ,4)}, {s(T[1])} offen")
        k(f"""s_mov_b32 {s(sC1)}, 1.0
              s_mov_b32 {s(sC1+1)}, 1.0
              s_mov_b32 {s(sCL)}, 0xbfb8aa3b
              s_mov_b32 {s(sCL+1)}, 0xbfb8aa3b
              s_mov_b32 {s(sSPIN)}, {self.o.get('spin', 400000)}
              s_getreg_b32 {s(sXCC)}, hwreg(HW_REG_XCC_ID, 0, 4)
              v_cmp_eq_u32 vcc, 0, {v(vL)}
              v_mov_b32 v5, 0x80000000""")
        for i in range(1, 8): k(f"s_movk_i32 {s(sK4+i)}, {4096*i}")
        k(f"v_cndmask_b32 {v(vL0)}, v5, 0, vcc")
        k.wait_lg0()
        k(f"""s_mul_i32 {s(sN)}, {s(sN)}, 1664525
              s_add_u32 {s(sN)}, {s(sN)}, 1013904223
              s_xor_b32 {s(T[0])}, {s(sN)}, {s(sXCC)}
              v_mov_b32 {v(vNON)}, {s(sN)}
              v_mov_b32 v5, {s(T[0])}
              s_lshl_b32 {s(T[1])}, {s(sX)}, 5
              s_add_u32 {s(T[1])}, {s(T[1])}, {s(sJ)}
              s_lshl_b32 {s(T[1])}, {s(T[1])}, 7
              s_add_u32 {s(T[1])}, {s(T[1])}, {WS_XCCF}""")
        k(f"buffer_store_dword v5, {v(vL0)}, {s(RW,4)}, {s(T[1])} offen sc1")
        k(f"""s_lshr_b32 {s(sD+2)}, {s(sD)}, 16
              s_and_b32 {s(sD+3)}, {s(sD)}, 0xffff0000
              s_lshl_b32 {s(sD+1)}, {s(sD)}, 16
              s_and_b32 {s(sD)}, {s(sD)}, 0xffff""")

    def w1_addr(self, vb):
        k = self.k; T = sT
        k(f"s_mul_i32 {s(T[0])}, {s(sJ)}, 112\ns_movk_i32 {s(T[1])}, 9363\ns_movk_i32 {s(T[2])}, {3584 - 7*16}")
        for i in range(7):
            k(f"""v_add_u32 v5, {64*i}, {v(vL)}
                  v_mul_u32_u24 {v(vb+i)}, {s(T[1])}, v5
                  v_lshrrev_b32 {v(vb+i)}, 16, {v(vb+i)}
                  v_mul_u32_u24 {v(vb+i)}, {s(T[2])}, {v(vb+i)}
                  v_lshl_add_u32 {v(vb+i)}, v5, 4, {v(vb+i)}
                  v_add_u32 {v(vb+i)}, {s(T[0])}, {v(vb+i)}""")
        k(f"s_mul_i32 {s(T[10])}, {s(sW)}, {2*229376}\ns_mul_i32 {s(T[11])}, {s(sW)}, {2*14336}")

    def w1_dma(self, vb, items):
        k = self.k; T = sT; tok = None
        for n in items:
            ck, mat, i = n // 14, (n % 14) // 7, n % 7
            if ck == 0: so = s(T[10])
            else:
                k(f"s_add_u32 {s(T[9])}, {s(T[10])}, 229376"); so = s(T[9])
            tok = self.dma(vb + i, RU if mat else RG, so, f"s_add_u32 m0, {s(T[11])}, {ck*14336 + mat*7168 + i*1024}")
        return tok

    def w1_relayout(self, R):
        k = self.k; T = sT
        k(f"""v_lshrrev_b32 v5, 4, {v(vL)}
              v_bfe_u32 {v(vA0)}, {v(vL)}, 2, 2
              v_lshl_add_u32 {v(vA0)}, v5, 3, {v(vA0)}
              v_mul_u32_u24 {v(vA0)}, 112, {v(vA0)}
              v_add_u32 {v(vA0)}, {s(T[11])}, {v(vA0)}
              v_and_b32 {v(vA2)}, 3, {v(vL)}
              v_bfe_u32 {v(vA3)}, {v(vL)}, 1, 1
              v_mul_u32_u24 {v(vA3)}, 7168, {v(vA3)}
              v_and_b32 {v(vA4)}, 1, {v(vL)}
              v_lshl_add_u32 {v(vA3)}, {v(vA4)}, 3, {v(vA3)}
              v_add_u32 {v(vA1)}, {v(vA0)}, {v(vA3)}
              v_lshl_add_u32 {v(vA0)}, {v(vA2)}, 3, {v(vA0)}
              v_add_u32 {v(vA2)}, {s(T[11])}, {v(vL16)}
              v_bfe_u32 {v(vA3)}, {v(vL)}, 1, 2
              v_lshlrev_b32 {v(vA3)}, 2, {v(vA3)}
              v_bfe_u32 {v(vA5)}, {v(vL)}, 3, 1
              v_lshl_add_u32 {v(vA3)}, {v(vA5)}, 1, {v(vA3)}
              v_add_u32 {v(vA3)}, {v(vA3)}, {v(vA4)}
              v_lshl_add_u32 {v(vA3)}, v5, 4, {v(vA3)}
              v_lshlrev_b32 {v(vA3)}, 4, {v(vA3)}
              v_add_u32 {v(vA3)}, {s(T[11])}, {v(vA3)}""")
        for ck in range(2):
            for sl in range(2):
                for Tt in range(7):
                    for hf in range(2):
                        d = R + ck*56 + (sl*7 + Tt)*4 + 2*hf
                        o = ck*14336 + (32*sl + 4*hf)*112
                        if Tt < 6: k(f"ds_read_b64_tr_b16 {v(d,2)}, {v(vA0)} offset:{o + (Tt&1)*7168 + 32*(Tt>>1)}")
                        else: k(f"ds_read_b64_tr_b16 {v(d,2)}, {v(vA1)} offset:{o + 96}")
        k.wait_lg0()
        for ck in range(2):
            for n in range(14):
                k(f"ds_write_b128 {v(vA3 if n % 7 == 6 else vA2)}, {v(R + ck*56 + n*4, 4)} offset:{ck*14336 + n*1024}")
        k.wait_lg0()

    def wd_load(self, vb):
        k = self.k; T = sT
        k(f"""v_lshrrev_b32 v5, 3, {v(vL)}
              v_and_b32 {v(vA0)}, 3, v5
              v_lshlrev_b32 {v(vA0)}, 3, {v(vA0)}
              v_cmp_gt_u32 vcc, 4, v5
              v_and_b32 {v(vA1)}, 7, {v(vL)}
              v_lshlrev_b32 {v(vA1)}, 4, {v(vA1)}
              s_and_b32 {s(T[0])}, {s(sJ)}, 7
              s_lshl_b32 {s(T[0])}, {s(T[0])}, 7
              v_add_u32 {v(vA1)}, {s(T[0])}, {v(vA1)}""")
        for c in range(7):
            fl = flist(c)
            lo = sum(fl[e] << (8*e) for e in range(4)); hi = sum(fl[4+e] << (8*e) for e in range(4))
            k(f"""v_mov_b32 {v(vA2)}, {lo}
                  v_mov_b32 {v(vA3)}, {hi}
                  v_cndmask_b32 {v(vA2)}, {v(vA3)}, {v(vA2)}, vcc
                  v_bfe_u32 {v(vA2)}, {v(vA2)}, {v(vA0)}, 8
                  v_lshl_add_u32 {v(vb+c)}, {v(vA2)}, 10, {v(vA1)}""")
        k(f"""v_lshrrev_b32 v5, 5, {v(vL)}
              v_lshlrev_b32 {v(vA0)}, 10, v5
              v_bfe_u32 v5, {v(vL)}, 2, 2
              v_lshl_add_u32 {v(vA0)}, v5, 7, {v(vA0)}
              v_bfe_u32 v5, {v(vL)}, 4, 1
              v_lshl_add_u32 {v(vA0)}, v5, 5, {v(vA0)}
              v_and_b32 v5, 3, {v(vL)}
              v_lshl_add_u32 {v(vA0)}, v5, 3, {v(vA0)}
              s_mul_i32 {s(T[1])}, {s(sW)}, 12288
              s_add_u32 {s(T[1])}, {s(T[1])}, {L_WD}
              v_add_u32 {v(vA0)}, {s(T[1])}, {v(vA0)}
              s_mul_i32 {s(T[2])}, {s(sW)}, {8*57344}""")
        toks = {}
        def issue(n):
            if n % 7 == 0 and n: k(f"s_add_u32 {s(T[2])}, {s(T[2])}, 57344")
            toks[n] = self.dma(vb + n % 7, RD, s(T[2]), f"s_add_u32 m0, {s(T[1])}, {(n % 12)*1024}")
        for n in range(12): issue(n)
        for u in range(28):
            k.wait(toks[2*u+1])
            last = None
            for nt in range(2):
                for hf in range(2):
                    last = k(f"ds_read_b64_tr_b16 {a((2*u+nt)*4 + 2*hf, 2)}, {v(vA0)} offset:{(u % 6)*2048 + hf*512 + nt*64}")
            if 2*u + 12 < 56:
                k.wait(last)
                issue(2*u + 12); issue(2*u + 13)
        k.wait_lg0()

    def phase0(self):
        k = self.k; T = sT
        k(f"""v_lshrrev_b32 v5, 4, {v(vL)}
              v_bfe_u32 v40, {v(vL)}, 2, 2
              v_lshl_add_u32 v41, v5, 4, v40
              v_lshlrev_b32 v41, 7, v41
              v_bfe_u32 v42, {v(vL)}, 1, 1
              s_lshl_b32 {s(T[0])}, {s(sW)}, 1
              v_add_u32 v42, {s(T[0])}, v42
              v_and_b32 v40, 2, v40
              v_xor_b32 v42, v42, v40
              v_and_b32 v40, 1, v5
              v_lshlrev_b32 v40, 2, v40
              v_xor_b32 v42, v42, v40
              v_lshl_add_u32 v41, v42, 4, v41
              v_and_b32 v40, 1, {v(vL)}
              v_lshl_add_u32 v41, v40, 3, v41
              v_add_u32 v41, {L_K}, v41
              v_xor_b32 v42, 64, v41""")
        k(f"""v_lshlrev_b32 v43, 12, v19
              v_lshl_add_u32 v43, v5, 5, v43
              s_lshl_b32 {s(T[6])}, {s(sJ)}, 7
              s_add_u32 {s(T[6])}, {s(T[6])}, {WS_KVT}""")
        k(f"""v_and_b32 v44, 31, {v(vL)}
              v_lshlrev_b32 v44, 7, v44
              s_lshl_b32 {s(T[7])}, {s(sX)}, 12
              s_add_u32 {s(T[7])}, {s(T[7])}, {WS_XCCF}""")
        k.wait(self.sh_tok)
        k("s_barrier")
        self.stamp('kv_in')
        xh = k(f"buffer_load_dword v45, v44, {s(RW,4)}, {s(T[7])} offen sc1")
        KR, VR = 48, 60
        k(f"ds_read_b64_tr_b16 {v(KR,2)}, v42 offset:512")
        for i in range(4): k(f"ds_read_b64_tr_b16 {v(KR+2+2*i,2)}, v41 offset:{1024 + 512*i}")
        for i in range(4): lastv = k(f"ds_read_b64_tr_b16 {v(VR+2*i,2)}, v41 offset:{L_V - L_K + 512*i}")
        k("v_alignbit_b32 v46, v22, v22, 16\nv_alignbit_b32 v47, v23, v23, 16")
        k.wait(('lg', lastv[1] - 4))
        KS = 70
        for aa in range(-1, 8): k(f"v_alignbit_b32 {v(KS+1+aa)}, {v(KR+2+aa)}, {v(KR+1+aa)}, 16")
        O = 80
        for aa in range(8):
            k(f"v_dot2_f32_bf16 {v(O+2*aa)}, {v(KS+aa)}, v47, 0")
            k(f"v_dot2_f32_bf16 {v(O+2*aa+1)}, {v(KR+1+aa)}, v47, 0")
        for aa in range(8):
            k(f"v_dot2_f32_bf16 {v(O+2*aa)}, {v(KS+1+aa)}, v46, {v(O+2*aa)}")
            k(f"v_dot2_f32_bf16 {v(O+2*aa+1)}, {v(KR+2+aa)}, v46, {v(O+2*aa+1)}")
        k.wait(lastv)
        VU = 96
        for aa in range(8):
            k(f"v_lshlrev_b32 {v(VU+2*aa)}, 16, {v(VR+aa)}")
            k(f"v_and_b32 {v(VU+2*aa+1)}, 0xffff0000, {v(VR+aa)}")
        for aa in range(8): k(f"v_pk_mul_f32 {v(O+2*aa,2)}, {v(O+2*aa,2)}, {v(VU+2*aa,2)}")
        P = 112
        for g in range(2):
            for e in range(4): k(f"v_cvt_pk_bf16_f32 {v(P+4*g+e)}, {v(O+8*g+7-2*e)}, {v(O+8*g+6-2*e)}")
            st = k(f"buffer_store_dwordx4 {v(P+4*g,4)}, v43, {s(RW,4)}, {s(T[6])} offen offset:{16*g}")
        slow, back = k.label(), k.label()
        k.wait(xh)
        k(f"""s_xor_b32 {s(T[0])}, {s(sN)}, {s(sXCC)}
              s_mov_b32 {s(sMODE)}, 0
              s_mov_b32 {s(sEXP)}, {s(sN)}
              v_cmp_ne_u32 vcc, {s(T[0])}, v45
              s_cbranch_vccnz {slow}""")
        k.place(back)
        done = k.label()
        self.tail.append([f"{slow}:",
            f"buffer_load_dword v45, v44, {s(RW,4)}, {s(T[7])} offen sc1", "s_waitcnt vmcnt(0)",
            f"v_xor_b32 v46, {s(sN)}, v45", "v_cmp_lt_u32 vcc, 15, v46", f"s_cbranch_vccz {done}",
            f"s_sub_u32 {s(sSPIN)}, {s(sSPIN)}, 1", f"s_cbranch_scc0 {slow}", "s_branch L_END",
            f"{done}:", f"v_cmp_ne_u32 vcc, {s(T[0])}, v45", f"s_cbranch_vccz {back}",
            f"s_mov_b32 {s(sMODE)}, 1", f"s_not_b32 {s(sEXP)}, {s(sN)}", f"s_branch {back}"])
        k(f"""s_lshl_b32 {s(T[0])}, {s(sX)}, 9
              s_lshl_b32 {s(T[1])}, {s(sW)}, 7
              s_lshl_b32 {s(T[2])}, {s(sJ)}, 2
              s_add_u32 {s(T[1])}, {s(T[1])}, {s(T[2])}
              s_add_u32 {s(T[0])}, {s(T[0])}, {WS_KVF}
              s_add_u32 {s(T[1])}, {s(T[1])}, {s(T[0])}""")
        self.publish(st, s(T[1]))
        self.stamp('kv_pub')

    TA = 128
    def toeplitz(self):
        k = self.k; T = sT
        k.wait(self.h_tok)
        for ch in range(2):
            k(f"ds_write_b128 v21, {v(24+8*ch,4)} offset:{H_E(ch) - SCR}".replace('v21', 'v40')) if False else None
        k(f"v_add_u32 v40, {SCR}, v21")
        for ch in range(2):
            k(f"ds_write_b128 v40, {v(24+8*ch,4)} offset:{H_E(ch) - SCR}")
            k(f"ds_write_b128 v40, {v(28+8*ch,4)} offset:{H_O(ch) - SCR}")
        skip = k.label()
        k(f"s_cmp_lg_u32 {s(sW)}, 0\ns_cbranch_scc1 {skip}")
        pre = (k.lg, k.lg_done)
        k(f"""v_readfirstlane_b32 {s(T[0])}, v24
              v_readfirstlane_b32 {s(T[1])}, v32
              v_and_b32 v41, 7, {v(vL)}
              v_cmp_eq_u32 vcc, 7, v41
              v_lshlrev_b32 v41, 2, v41
              v_add_u32 v41, {SCR}, v41
              s_lshl_b32 {s(T[0])}, {s(T[0])}, 16
              s_lshl_b32 {s(T[1])}, {s(T[1])}, 16
              v_mov_b32 v42, 0
              v_mov_b32 v43, 0
              v_mov_b32 v46, {s(T[0])}
              v_mov_b32 v47, {s(T[1])}
              v_cndmask_b32 v46, v42, v46, vcc
              v_cndmask_b32 v47, v42, v47, vcc
              ds_write_b32 v41, v42 offset:{H_E(0) - 32 - SCR}
              ds_write_b32 v41, v42 offset:{H_E(1) - 32 - SCR}
              ds_write_b32 v41, v46 offset:{H_O(0) - 32 - SCR}
              ds_write_b32 v41, v47 offset:{H_O(1) - 32 - SCR}
              v_lshlrev_b32 v41, 3, {v(vL)}
              v_add_u32 v41, {L_U}, v41
              ds_write_b64 v41, v[42:43]
              ds_write_b64 v41, v[42:43] offset:{U_S}""")
        k.place(skip)
        k.wait_lg0()
        k("s_barrier")
        k(f"""v_and_b32 v40, 15, {v(vL)}
              v_lshrrev_b32 v41, 4, {v(vL)}
              v_lshlrev_b32 v41, 3, v41
              v_sub_u32 v40, v40, v41
              v_add_u32 v40, 9, v40
              v_and_b32 v41, 1, v40
              v_sub_u32 v40, v40, v41
              v_lshlrev_b32 v40, 1, v40
              v_mul_u32_u24 v41, {H_O(0) - H_E(0)}, v41
              v_add_u32 v40, v40, v41
              s_lshr_b32 {s(T[0])}, {s(sW)}, 1
              s_mul_i32 {s(T[0])}, {s(T[0])}, {H_E(1) - H_E(0)}
              s_and_b32 {s(T[1])}, {s(sW)}, 1
              s_lshl_b32 {s(T[1])}, {s(T[1])}, 8
              s_add_u32 {s(T[0])}, {s(T[0])}, {s(T[1])}
              s_add_u32 {s(T[0])}, {s(T[0])}, {H_E(0)}
              v_add_u32 v40, {s(T[0])}, v40""")
        for p in range(8):
            for rr in range(4):
                d = (rr*8 + p)*4
                k(f"ds_read2_b32 {a(d,2)}, v40 offset0:{16*rr} offset1:{16*rr+1}")
                k(f"ds_read2_b32 {a(d+2,2)}, v40 offset0:{16*rr+2} offset1:{16*rr+3}")
            if p < 7: k("v_add_u32 v40, 512, v40")
        k.wait_lg0()

    def conv(self):
        k = self.k; T = sT
        k(f"""v_and_b32 v44, 31, {v(vL)}
              v_lshlrev_b32 v44, 2, v44
              s_lshl_b32 {s(T[0])}, {s(sX)}, 9
              s_lshr_b32 {s(T[1])}, {s(sJ)}, 3
              s_lshl_b32 {s(T[1])}, {s(T[1])}, 7
              s_add_u32 {s(T[0])}, {s(T[0])}, {s(T[1])}
              s_add_u32 {s(T[7])}, {s(T[0])}, {WS_KVF}
              s_lshl_b32 {s(T[0])}, {s(sX)}, 18
              s_lshl_b32 {s(T[1])}, {s(sJ)}, 13
              s_lshl_b32 {s(T[2])}, {s(sW)}, 11
              s_add_u32 {s(T[0])}, {s(T[0])}, {s(T[1])}
              s_add_u32 {s(T[0])}, {s(T[0])}, {s(T[2])}
              s_add_u32 {s(T[3])}, {s(T[0])}, {WS_KVT}
              s_lshr_b32 {s(T[0])}, {s(sW)}, 1
              s_mul_i32 {s(T[4])}, {s(T[0])}, {U_S}
              s_add_u32 {s(T[4])}, {s(T[4])}, {L_U + 512}
              s_and_b32 {s(T[1])}, {s(sW)}, 1
              s_lshl_b32 {s(T[2])}, {s(T[1])}, 11
              s_add_u32 {s(T[5])}, {s(T[4])}, {s(T[2])}
              v_and_b32 v40, 15, {v(vL)}
              v_lshrrev_b32 v41, 4, {v(vL)}
              v_lshlrev_b32 v42, 5, v40
              v_lshl_add_u32 v42, v41, 4, v42
              s_lshl_b32 {s(T[1])}, {s(T[1])}, 8
              s_sub_u32 {s(T[4])}, {s(T[4])}, {s(T[1])}
              s_sub_u32 {s(T[4])}, {s(T[4])}, 224
              v_add_u32 v42, {s(T[4])}, v42""")
        self.poll(44, s(T[7]))
        self.stamp('kv_seen')
        k(f"s_mov_b32 m0, {s(T[5])}")
        k(f"buffer_load_dwordx4 {v(vL16)}, {s(RW,4)}, {s(T[3])} offen sc1 lds")
        tok = k(f"buffer_load_dwordx4 {v(vL16)}, {s(RW,4)}, {s(T[3])} offen offset:1024 sc1 lds")
        self.after_kv_issue()
        k(f"""v_lshlrev_b32 v43, 5, v40
              v_lshrrev_b32 v45, 1, v41
              v_lshl_add_u32 v43, v45, 4, v43
              v_and_b32 v45, 1, v41
              v_xor_b32 v45, 1, v45
              v_lshl_add_u32 v43, v45, 3, v43
              s_lshl_b32 {s(T[0])}, {s(sW)}, 10
              s_add_u32 {s(T[0])}, {s(T[0])}, {L_U + 512}
              v_add_u32 v43, {s(T[0])}, v43
              s_lshl_b32 {s(T[0])}, {s(sW)}, 13
              s_add_u32 {s(T[0])}, {s(T[0])}, {L_CRED}
              v_add_u32 v46, {s(T[0])}, {v(vL16)}
              s_lshl_b32 {s(T[0])}, {s(sW)}, 11
              s_add_u32 {s(T[0])}, {s(T[0])}, {L_CRED}
              v_add_u32 v47, {s(T[0])}, {v(vL16)}
              v_lshlrev_b32 v45, 6, v40
              v_lshl_add_u32 v45, v41, 4, v45
              s_lshl_b32 {s(T[0])}, {s(sX)}, 5
              s_add_u32 {s(T[8])}, {s(T[0])}, {s(sJ)}
              s_lshl_b32 {s(T[0])}, {s(T[8])}, 13
              s_lshl_b32 {s(T[1])}, {s(sW)}, 11
              s_add_u32 {s(T[0])}, {s(T[0])}, {s(T[1])}
              s_add_u32 {s(T[6])}, {s(T[0])}, {WS_YP}""")
        k.wait(tok)
        k("s_barrier")
        self.stamp('u_in')
        B, C = 48, 80
        bt = {}
        def rdB(rr, q): bt[(rr, q)] = k(f"ds_read_b128 {v(B+4*q,4)}, v42 offset:{512*q + 64*(3-rr)}")
        for q in range(8): rdB(0, q)
        for rr in range(4):
            for q in range(8):
                k.wait(bt[(rr, q)])
                for p in range(8 - q):
                    c = C + 4*(p+q)
                    src = '0' if (rr == 0 and q == 0) else v(c, 4)
                    k(f"v_mfma_f32_16x16x32_bf16 {v(c,4)}, {a((rr*8+p)*4,4)}, {v(B+4*q,4)}, {src}")
                if rr < 3: rdB(rr+1, q)
        self.stamp('conv_mfma')
        KV = 112
        for tt in range(2):
            for ch in range(2): k(f"ds_read_b64 {v(KV+4*tt+2*ch,2)}, v43 offset:{512*tt + ch*U_S}")
        for c in range(8): k(f"ds_write_b128 v46, {v(C+4*c,4)} offset:{1024*c}")
        k.wait_lg0()
        k("s_barrier")
        P = 128
        for tt in range(2):
            for w in range(4): lastp = k(f"ds_read_b128 {v(P+16*tt+4*w,4)}, v47 offset:{8192*w + 1024*tt}")
        for tt in range(2):
            k.wait(('lg', lastp[1] - 4*(1-tt)))
            b = P + 16*tt
            for ch in range(2):
                for e in (0, 2): k(f"v_pk_add_f32 {v(b+8*ch+e,2)}, {v(b+8*ch+e,2)}, {v(b+8*ch+4+e,2)}")
            for ch in range(2):
                for e in range(4):
                    k(f"v_dot2_f32_bf16 {v(b+8*ch+e)}, {v(KV+4*tt+2*ch+(1-(e>>1)))}, {s(sD+2*ch+(1-(e&1)))}, {v(b+8*ch+e)}")
            for e in range(4): k(f"v_cvt_pk_bf16_f32 {v(b+4+e)}, {v(b+e)}, {v(b+8+e)}")
            st = k(f"buffer_store_dwordx4 {v(b+4,4)}, v45, {s(RW,4)}, {s(T[6])} offen offset:{1024*tt} sc1")
        yfs = self.o.get('yfs', 32)
        k(f"""s_lshl_b32 {s(T[0])}, {s(sW)}, 8
              s_add_u32 {s(T[0])}, {s(T[0])}, {s(T[8])}
              s_mul_i32 {s(T[0])}, {s(T[0])}, {yfs}
              s_add_u32 {s(T[0])}, {s(T[0])}, {WS_YF}""")
        self.stamp('y_st')
        self.publish(st, s(T[0]), local=False)
        self.stamp('y_pub')

    def after_kv_issue(self): pass

    def stats(self, rows, out):
        k = self.k
        t0 = 200
        for i, x in enumerate(rows):
            b = t0 + 6*i
            k(f"v_pk_add_f32 {v(b,2)}, {v(x,2)}, {v(x+2,2)}")
            k(f"v_pk_mul_f32 {v(b+2,2)}, {v(x,2)}, {v(x,2)}")
            k(f"v_pk_add_f32 {v(b+4,2)}, {v(x+4,2)}, {v(x+6,2)}")
            for e in (2, 4, 6): k(f"v_pk_fma_f32 {v(b+2,2)}, {v(x+e,2)}, {v(x+e,2)}, {v(b+2,2)}")
            k(f"v_pk_add_f32 {v(b,2)}, {v(b,2)}, {v(b+4,2)}")
        for i in range(len(rows)):
            b = t0 + 6*i
            k(f"v_add_f32 {v(b)}, {v(b)}, {v(b+1)}\nv_add_f32 {v(b+2)}, {v(b+2)}, {v(b+3)}")
        for ctl in ("row_ror:8 row_mask:0xf", "row_ror:4 row_mask:0xf", "row_ror:2 row_mask:0xf", "row_ror:1 row_mask:0xf",
                    "row_bcast:15 row_mask:0xa", "row_bcast:31 row_mask:0xc"):
            for i in range(len(rows)):
                for e in (0, 2):
                    r = t0 + 6*i + e
                    k(f"v_add_f32_dpp {v(r)}, {v(r)}, {v(r)} {ctl} bank_mask:0xf")
        for i in range(len(rows)):
            b = t0 + 6*i
            k(f"v_mul_f32 {v(b)}, 0x3b000000, {v(b)}")
            k(f"v_mul_f32 {v(b+2)}, 0x3b000000, {v(b+2)}")
        for i in range(len(rows)):
            b = t0 + 6*i
            k(f"v_fma_f32 {v(b+2)}, -{v(b)}, {v(b)}, {v(b+2)}")
        for i in range(len(rows)):
            b = t0 + 6*i
            k(f"v_max_f32 {v(b+2)}, 0, {v(b+2)}")
            k(f"v_add_f32 {v(b+2)}, 0x3727c5ac, {v(b+2)}")
            k(f"v_rsq_f32 {v(b+2)}, {v(b+2)}")
        for i in range(len(rows)):
            b = t0 + 6*i
            k(f"v_mul_f32_e64 {v(b)}, -{v(b)}, {v(b+2)}")
        for i in range(len(rows)):
            b = t0 + 6*i
            k(f"v_readlane_b32 {s(out[i])}, {v(b+2)}, 63")
            k(f"v_readlane_b32 {s(out[i]+2)}, {v(b)}, 63")
        for i in range(len(rows)):
            k(f"s_mov_b32 {s(out[i]+1)}, {s(out[i])}\ns_mov_b32 {s(out[i]+3)}, {s(out[i]+2)}")

    def unpack(self, dst, src):
        k = self.k
        for e in range(4):
            k(f"v_lshlrev_b32 {v(dst+2*e)}, 16, {v(src+e)}")
            k(f"v_and_b32 {v(dst+2*e+1)}, 0xffff0000, {v(src+e)}")

    def affine(self, dst, x, sp):
        k = self.k
        k(f"v_mov_b32 v198, {s(sp+2)}\nv_mov_b32 v199, {s(sp+2)}")
        for e in (0, 2, 4, 6): k(f"v_pk_fma_f32 {v(dst+e,2)}, {v(x+e,2)}, {s(sp,2)}, v[198:199]")

    def row_addr(self):
        k = self.k; T = sT
        k(f"""s_lshl_b32 {s(T[0])}, {s(sJ)}, 2
              s_add_u32 {s(T[0])}, {s(T[0])}, {s(sW)}
              s_lshr_b32 {s(T[1])}, {s(T[0])}, 5
              s_lshl_b32 {s(T[1])}, {s(T[1])}, 15
              s_bfe_u32 {s(T[2])}, {s(T[0])}, 0x10004
              s_lshl_b32 {s(T[2])}, {s(T[2])}, 10
              s_and_b32 {s(T[3])}, {s(T[0])}, 15
              s_lshl_b32 {s(T[3])}, {s(T[3])}, 4
              s_add_u32 {s(T[1])}, {s(T[1])}, {s(T[2])}
              s_add_u32 {s(T[1])}, {s(T[1])}, {s(T[3])}
              s_lshl_b32 {s(T[2])}, {s(sX)}, 18
              s_add_u32 {s(T[1])}, {s(T[1])}, {s(T[2])}
              s_add_u32 {s(T[1])}, {s(T[1])}, {WS_A}
              v_lshrrev_b32 v5, 2, {v(vL)}
              v_lshlrev_b32 v5, 11, v5
              v_and_b32 {v(vA6)}, 3, {v(vL)}
              v_lshl_add_u32 {v(vA6)}, {v(vA6)}, 8, v5
              v_add_u32 {v(vA6)}, {s(T[1])}, {v(vA6)}""")

    def flag_off(self, dst, base, layer, half, idx_sreg):
        k = self.k
        k(f"""s_lshl_b32 {s(dst)}, {s(sX)}, 8
              s_add_u32 {s(dst)}, {s(dst)}, {s(idx_sreg)}
              s_lshl_b32 {s(dst)}, {s(dst)}, 2
              s_add_u32 {s(dst)}, {s(dst)}, {base + layer*0x2000 + half*0x200}""")

    def gate_and_norm(self, halves, nrm, layer):
        k = self.k; T = sT
        YU = 160
        for h in halves:
            self.unpack(YU + 8*h, YS[h])
            for e in (0, 2, 4, 6): k(f"v_pk_fma_f32 {v(XS[h]+e,2)}, {v(nrm[h]+e,2)}, {v(YU+8*h+e,2)}, {v(XS[h]+e,2)}")
        sp = [36, 40]
        self.stats([XS[h] for h in halves], [sp[h] for h in halves])
        for h in halves:
            self.affine(nrm[h], XS[h], sp[h])
            for e in range(4): k(f"v_cvt_pk_bf16_f32 {v(YU+8*h+e)}, {v(nrm[h]+2*e)}, {v(nrm[h]+2*e+1)}")
            k(f"s_mov_b32 {s(T[4])}, {h*0x20000}")
            st = k(f"buffer_store_dwordx4 {v(YU+8*h,4)}, {v(vA6)}, {s(RW,4)}, {s(T[4])} offen")
            k(f"s_lshl_b32 {s(T[0])}, {s(sJ)}, 2\ns_add_u32 {s(T[0])}, {s(T[0])}, {s(sW)}")
            if layer == 1:
                for e in range(4): k(f"v_cvt_pk_bf16_f32 {v(YU+8*h+4+e)}, {v(XS[h]+2*e)}, {v(XS[h]+2*e+1)}")
                k(f"""s_lshl_b32 {s(T[1])}, {s(sX)}, 8
                      s_add_u32 {s(T[1])}, {s(T[1])}, {s(T[0])}
                      s_lshl_b32 {s(T[1])}, {s(T[1])}, 10
                      s_add_u32 {s(T[1])}, {s(T[1])}, {WS_F + h*0x20000}""")
                st = k(f"buffer_store_dwordx4 {v(YU+8*h+4,4)}, {v(vL16)}, {s(RW,4)}, {s(T[1])} offen")
            self.flag_off(T[5+h], WS_AF, layer, h, T[0])
            self.pending_pub = getattr(self, 'pending_pub', []) + [(st, T[5+h])]
        for st, so in self.pending_pub: self.publish(st, s(so))
        self.pending_pub = []

    def q_stats(self):
        k = self.k
        k.wait(self.q_tok)
        for h in range(2): self.unpack(XS[h], 224 + 4*h)
        self.stats(XS, [36, 40])
        self.N0 = [208+0, 216]
        self.N0 = [184, 192-0]
        self.N0 = [176, 184]
        for h in range(2): self.affine(self.N0[h], XS[h], [36, 40][h])

    def y_in(self):
        k = self.k; T = sT
        yfs = self.o.get('yfs', 32)
        k(f"""v_mul_u32_u24 v44, {yfs}, v0
              s_lshr_b32 {s(T[0])}, {s(sX)}, 1
              s_mul_i32 {s(T[0])}, {s(T[0])}, {256*yfs}
              s_add_u32 {s(T[7])}, {s(T[0])}, {WS_YF}
              v_lshlrev_b32 v45, 13, v0
              s_lshl_b32 {s(T[0])}, {s(sX)}, 10
              s_lshl_b32 {s(T[1])}, {s(sJ)}, 5
              s_add_u32 {s(T[0])}, {s(T[0])}, {s(T[1])}
              s_add_u32 {s(T[6])}, {s(T[0])}, {WS_YP}
              v_lshlrev_b32 v46, 2, v0
              v_add_u32 v46, {L_YT}, v46
              s_lshl_b32 {s(T[0])}, {s(sW)}, 10
              s_add_u32 {s(T[0])}, {s(T[0])}, {L_YT}
              v_add_u32 v47, {s(T[0])}, {v(vL16)}""")
        self.row_addr()
        self.poll(44, s(T[7]), local=False)
        self.stamp('y_seen')
        t0 = k(f"buffer_load_dwordx4 v[48:51], v45, {s(RW,4)}, {s(T[6])} offen sc1")
        t1 = k(f"buffer_load_dwordx4 v[52:55], v45, {s(RW,4)}, {s(T[6])} offen offset:16 sc1")
        skip = k.label()
        k(f"s_or_b32 {s(T[0])}, s2, {s(sW)}\ns_cmp_lg_u32 {s(T[0])}, 0\ns_cbranch_scc1 {skip}")
        k.wait(t1)
        k.ins.append(I(f"buffer_store_dword {v(vNON)}, {v(vL0)}, {s(RW,4)}, 0 offen sc1"))
        k.ins.append(I("s_waitcnt vmcnt(0)"))
        k.place(skip)
        k.vm_done = t0[1] - 1
        k("s_barrier")
        k.wait(t0)
        for e in range(4): k(f"ds_write_b32 v46, {v(48+e)} offset:{1024*e}")
        k.wait(t1)
        for e in range(4): k(f"ds_write_b32 v46, {v(52+e)} offset:{1024*(4+e)}")
        k.wait_lg0()
        k("s_barrier")
        for h in range(2): k(f"ds_read_b128 {v(YS[h],4)}, v47 offset:{4096*h}")
        k.wait_lg0()
        self.stamp('y_in')

    def epilogue1(self, B, stores_v):
        pk = self.o.get('pk', 1)
        t = 224
        L = []
        def grp(g, u, n, outs):
            if pk:
                for e in range(0, n, 2): L.append(f"v_pk_mul_f32 {v(t+e,2)}, {v(g+e,2)}, {s(sCL,2)}")
            else:
                for e in range(n): L.append(f"v_mul_f32 {v(t+e)}, {s(sCL)}, {v(g+e)}")
            for e in range(n): L.append(f"v_exp_f32 {v(t+e)}, {v(t+e)}")
            if pk:
                for e in range(0, n, 2): L.append(f"v_pk_mul_f32 {v(u+e,2)}, {v(g+e,2)}, {v(u+e,2)}")
                for e in range(0, n, 2): L.append(f"v_pk_add_f32 {v(t+e,2)}, {v(t+e,2)}, {s(sC1,2)}")
            else:
                for e in range(n): L.append(f"v_mul_f32 {v(u+e)}, {v(g+e)}, {v(u+e)}")
                for e in range(n): L.append(f"v_add_f32 {v(t+e)}, 1.0, {v(t+e)}")
            for e in range(n): L.append(f"v_rcp_f32 {v(t+e)}, {v(t+e)}")
            if pk:
                for e in range(0, n, 2): L.append(f"v_pk_mul_f32 {v(u+e,2)}, {v(u+e,2)}, {v(t+e,2)}")
            else:
                for e in range(n): L.append(f"v_mul_f32 {v(u+e)}, {v(u+e)}, {v(t+e)}")
            for e in range(0, n, 2): L.append(f"v_cvt_pk_bf16_f32 {v(outs[e//2])}, {v(u+e)}, {v(u+e+1)}")
        vm, vt, off = stores_v
        grp(B, B+4, 4, [B, B+1])
        grp(B+8, B+12, 4, [B+2, B+3])
        L.append(f"buffer_store_dwordx4 {v(B,4)}, {v(vm)}, {s(RW,4)}, 0 offen offset:{off}")
        grp(B+16, B+20, 4, [B+8, B+9])
        grp(B+24, B+26, 2, [B+10])
        Z, C, A_ = t+4, t+5, t+6
        L += [f"v_mov_b32 {v(C)}, {v(B+8)}", f"v_mov_b32 {v(A_)}, {v(B+9)}", f"v_mov_b32 {v(Z)}, {v(B+10)}",
              f"v_mov_b32 {v(B+11)}, {v(B+10)}",
              f"v_permlane32_swap_b32 {v(A_)}, {v(B+11)}", f"v_permlane32_swap_b32 {v(C)}, {v(Z)}",
              f"v_permlane16_swap_b32 {v(Z)}, {v(B+11)}",
              f"buffer_store_dwordx4 {v(B+8,4)}, {v(vt)}, {s(RW,4)}, 0 offen offset:{off}"]
        return L

    def h_store_addr(self, half):
        k = self.k; T = sT
        k(f"""s_mul_i32 {s(T[0])}, {s(sX)}, {H_X}
              s_mul_i32 {s(T[1])}, {s(sW)}, {H_RB}
              s_mul_i32 {s(T[2])}, {s(sJ)}, 3584
              s_add_u32 {s(T[0])}, {s(T[0])}, {s(T[1])}
              s_add_u32 {s(T[0])}, {s(T[0])}, {s(T[2])}
              s_add_u32 {s(T[0])}, {s(T[0])}, {WS_H + half*H_HALF}
              v_lshrrev_b32 v5, 4, {v(vL)}
              v_lshlrev_b32 v5, 9, v5
              v_and_b32 {v(vA2)}, 15, {v(vL)}
              v_lshl_add_u32 {v(vA2)}, {v(vA2)}, 4, v5
              v_add_u32 {v(vA2)}, {s(T[0])}, {v(vA2)}
              v_cmp_gt_u32 vcc, 48, {v(vL)}
              v_add_u32 {v(vA3)}, 2048, {v(vA2)}
              v_mov_b32 v5, 0x80000000
              v_cndmask_b32 {v(vA3)}, v5, {v(vA3)}, vcc""")

    def gemm1(self, layer):
        k = self.k; T = sT
        RING = self.o.get('ring', 5); LA = RING - 1
        k(f"""v_add_u32 {v(vA1)}, 57344, {v(vL16)}
              s_lshl_b32 {s(T[0])}, {s(sX)}, 18
              s_lshl_b32 {s(T[1])}, {s(sW)}, 15
              s_add_u32 {s(T[0])}, {s(T[0])}, {s(T[1])}
              s_add_u32 {s(T[0])}, {s(T[0])}, {WS_A}
              v_add_u32 {v(vA4)}, {s(T[0])}, {v(vL16)}
              v_add_u32 {v(vA5)}, 0x20000, {v(vA4)}
              v_and_b32 v13, 31, {v(vL)}
              v_lshlrev_b32 v13, 2, v13
              s_lshl_b32 {s(T[0])}, {s(sW)}, 5""")
        self.flag_off(T[7], WS_AF, layer, 0, T[0])
        k(f"s_add_u32 {s(T[8])}, {s(T[7])}, 0x200")
        self.h_store_addr(0)
        wt, at = {}, {}
        def rdW(gs, Tt):
            st = gs % 16
            base, o = (vL16, st*7168) if st < 8 else (vA1, (st-8)*7168)
            wt[(gs, Tt)] = k(f"ds_read_b128 {v(WF + 28*(gs&1) + 4*Tt, 4)}, {v(base)} offset:{o + 1024*Tt}")
        def ldA(gs, mt):
            st = gs % 16
            at[(gs, mt)] = k(f"buffer_load_dwordx4 {v(AR + 8*(gs % RING) + 4*mt, 4)}, {v(vA4 if gs < 16 else vA5)}, {s(RW,4)}, {k4(st>>1)} offen offset:{((st&1)*2+mt)*1024} sc1")
        for Tt in range(7): rdW(0, Tt)
        self.poll(13, s(T[7]))
        self.stamp(f'a_seen{layer}')
        for gs in range(LA):
            for mt in range(2): ldA(gs, mt)
        hA = None
        for gs in range(32):
            ps, st = divmod(gs, 16)
            slots = [[] for _ in range(14)]
            if gs + 1 < 32:
                for Tt in range(7): slots[Tt].append(('W', gs+1, Tt))
            if gs + LA < 32:
                slots[7].append(('A', gs+LA, 0)); slots[9].append(('A', gs+LA, 1))
            if gs == 16 - LA - 4: slots[11].append(('PI',))
            if gs == 16 - LA - 1: slots[12].append(('PC',))
            if gs == 16:
                epi = self.epilogue1(ACC[0], (vA2, vA3, 0)) + self.epilogue1(ACC[0] + 28, (vA2, vA3, 256))
                cost = lambda x: 2 if ('exp' in x or 'rcp' in x) else 1
                total = sum(cost(x) for x in epi); nsteps = self.o.get('epi_steps', 14)
                self.epi_q = list(epi); self.epi_rate = total / nsteps; self.epi_done = 0
            if gs >= 16 and self.epi_q:
                budget = self.epi_rate * (gs - 15) - self.epi_done
                for i in list(range(1 if gs == 16 else 0, 14)):
                    cap = 2 - len(slots[i]) - (1 if i == 13 else 0)
                    if gs == 16 and i < 5: continue
                    while self.epi_q and budget > 0 and cap > 0:
                        x = self.epi_q.pop(0); c = cost(x)
                        slots[i].append(('X', x)); cap -= c; budget -= c; self.epi_done += c
            k.wait(at[(gs, 1)], wt[(gs, 6)])
            for i in range(14):
                Tt, mt = divmod(i, 2)
                d = ACC[ps] + 28*mt + 4*Tt
                k(f"v_mfma_f32_16x16x32_bf16 {v(d,4)}, {v(WF + 28*(gs&1) + 4*Tt, 4)}, {v(AR + 8*(gs % RING) + 4*mt, 4)}, {'0' if st == 0 else v(d,4)}")
                for it in slots[i]:
                    if it[0] == 'W': rdW(it[1], it[2])
                    elif it[0] == 'A': ldA(it[1], it[2])
                    elif it[0] == 'PI': ph = self.poll_issue(13, s(T[8]))
                    elif it[0] == 'PC': self.poll_check(ph)
                    elif it[0] == 'X':
                        r = k(it[1])
                        if 'store' in it[1]: hA = r
            if gs == 15: self.stamp(f'g1a{layer}')
        for x in self.epi_q:
            r = k(x)
            if 'store' in x: hA = r
        self.stamp(f'g1b{layer}')
        k(f"s_lshl_b32 {s(T[0])}, {s(sW)}, 5\ns_add_u32 {s(T[0])}, {s(T[0])}, {s(sJ)}")
        self.flag_off(T[7], WS_HF, layer, 0, T[0])
        k(f"s_add_u32 {s(T[8])}, {s(T[7])}, 0x200")
        self.publish(hA, s(T[7]))
        self.g2_addr(layer)
        k(f"v_add_u32 {v(vA2)}, {H_HALF}, {v(vA2)}\nv_add_u32 {v(vA3)}, {H_HALF}, {v(vA3)}")
        self.poll(13, s(T[9]))
        self.stamp(f'hA_seen{layer}')
        self.ht = {}
        for u in range(28): self.ldH(0, u)
        for x in self.epilogue1(ACC[1], (vA2, vA3, 0)) + self.epilogue1(ACC[1] + 28, (vA2, vA3, 256)):
            r = k(x)
            if 'store' in x: hB = r
        self.stamp(f'epiB{layer}')
        self.publish(hB, s(T[8]))
        self.stamp(f'hB_pub{layer}')

    def hreg(self, half, u):
        if half == 0: return (16 + 4*u) if u < 14 else (128 + 4*(u-14))
        return (72 + 4*u) if u < 14 else (16 + 4*(u-14))
    def ldH(self, half, u):
        k = self.k
        self.ht[(half, u)] = k(f"buffer_load_dwordx4 {v(self.hreg(half,u),4)}, {v(vA4 if half == 0 else vA5)}, {s(RW,4)}, {k4(u>>2)} offen offset:{(u&3)*1024} sc1")

    def g2_addr(self, layer):
        k = self.k; T = sT
        k(f"""s_mul_i32 {s(T[0])}, {s(sX)}, {H_X}
              s_lshr_b32 {s(T[3])}, {s(sJ)}, 3
              s_mul_i32 {s(T[1])}, {s(T[3])}, {H_RB}
              s_mul_i32 {s(T[2])}, {s(sW)}, 28672
              s_add_u32 {s(T[0])}, {s(T[0])}, {s(T[1])}
              s_add_u32 {s(T[0])}, {s(T[0])}, {s(T[2])}
              s_add_u32 {s(T[0])}, {s(T[0])}, {WS_H}
              v_add_u32 {v(vA4)}, {s(T[0])}, {v(vL16)}
              v_add_u32 {v(vA5)}, {H_HALF}, {v(vA4)}
              v_and_b32 v13, 7, {v(vL)}
              v_lshlrev_b32 v13, 2, v13
              s_lshl_b32 {s(T[0])}, {s(T[3])}, 5
              s_lshl_b32 {s(T[1])}, {s(sW)}, 3
              s_add_u32 {s(T[0])}, {s(T[0])}, {s(T[1])}""")
        self.flag_off(T[9], WS_HF, layer, 0, T[0])
        k(f"s_add_u32 {s(T[10])}, {s(T[9])}, 0x200")

    def gemm2(self, layer):
        k = self.k; T = sT
        AC2 = [184, 128]
        k(f"""v_and_b32 v5, 31, {v(vL)}
              v_mul_u32_u24 {v(vA0)}, 272, v5
              v_lshrrev_b32 v5, 5, {v(vL)}
              v_lshl_add_u32 {v(vA0)}, v5, 4, {v(vA0)}
              s_mul_i32 {s(T[0])}, {s(sW)}, 8704
              s_add_u32 {s(T[0])}, {s(T[0])}, {L_RED}
              v_add_u32 {v(vA0)}, {s(T[0])}, {v(vA0)}
              v_lshrrev_b32 v5, 3, {v(vL)}
              v_mul_u32_u24 {v(vA1)}, 272, v5
              v_and_b32 v14, 7, {v(vL)}
              v_lshl_add_u32 {v(vA1)}, v14, 5, {v(vA1)}
              s_mul_i32 {s(T[0])}, {s(sW)}, {8*272}
              s_add_u32 {s(T[0])}, {s(T[0])}, {L_RED}
              v_add_u32 {v(vA1)}, {s(T[0])}, {v(vA1)}
              s_lshr_b32 {s(T[3])}, {s(sJ)}, 3
              s_lshl_b32 {s(T[0])}, {s(T[3])}, 5
              s_lshl_b32 {s(T[1])}, {s(sW)}, 3
              s_add_u32 {s(T[0])}, {s(T[0])}, {s(T[1])}
              s_and_b32 {s(T[4])}, {s(sJ)}, 7
              s_add_u32 {s(T[5])}, {s(T[0])}, {s(T[4])}
              s_lshl_b32 {s(T[4])}, {s(T[4])}, 7
              s_lshl_b32 {s(T[1])}, {s(sX)}, 18
              s_add_u32 {s(T[4])}, {s(T[4])}, {s(T[1])}
              v_add_u32 v5, {s(T[0])}, v5
              v_lshlrev_b32 v14, 4, v14
              v_add_u32 v14, {s(T[4])}, v14
              v_lshl_add_u32 {v(vA2)}, v5, 10, v14""")
        if layer == 0:
            self.flag_off(T[6], WS_FF, 0, 0, T[5])
            k(f"s_add_u32 {s(T[7])}, {s(T[6])}, 0x200")
        else:
            k(f"""v_lshrrev_b32 {v(vA3)}, 2, v5
                  v_and_b32 v5, 3, v5
                  v_lshl_add_u32 v5, {v(vA3)}, 3, v5
                  v_lshl_add_u32 {v(vA3)}, v5, 10, v14""")
        k(f"s_mov_b32 {s(T[0])}, {WS_F}\ns_mov_b32 {s(T[1])}, {WS_F + 0x20000}")
        X3 = [216, 220]
        def mf(half, u, nt):
            d = AC2[half] + 16*nt
            k(f"v_mfma_f32_32x32x16_bf16 {v(d,16)}, {a((2*u+nt)*4,4)}, {v(self.hreg(half,u),4)}, {'0' if u == 0 else v(d,16)}")
        def red_write(half):
            return [f"ds_write_b128 {v(vA0)}, {v(AC2[half] + 16*nt + 4*i, 4)} offset:{128*nt + 32*i}" for nt in range(2) for i in range(4)]
        def red_read(P):
            return [f"ds_read_b128 {v(P + 8*w + 4*hf, 4)}, {v(vA1)} offset:{8704*w + 16*hf}" for w in range(4) for hf in range(2)]
        def red_sum(P, half):
            L = []
            for e in (0, 2, 4, 6): L.append(f"v_pk_add_f32 {v(P+e,2)}, {v(P+e,2)}, {v(P+8+e,2)}")
            for e in (0, 2, 4, 6): L.append(f"v_pk_add_f32 {v(P+16+e,2)}, {v(P+16+e,2)}, {v(P+24+e,2)}")
            if layer == 1:
                for e in range(4):
                    L.append(f"v_lshlrev_b32 {v(P+8+2*e)}, 16, {v(X3[half]+e)}")
                    L.append(f"v_and_b32 {v(P+9+2*e)}, 0xffff0000, {v(X3[half]+e)}")
                for e in (0, 2, 4, 6): L.append(f"v_pk_add_f32 {v(P+e,2)}, {v(P+e,2)}, {v(P+8+e,2)}")
            for e in (0, 2, 4, 6): L.append(f"v_pk_add_f32 {v(P+e,2)}, {v(P+e,2)}, {v(P+16+e,2)}")
            for e in range(4): L.append(f"v_cvt_pk_bf16_f32 {v(P+8+e)}, {v(P+2*e)}, {v(P+2*e+1)}")
            if layer == 0: L.append(f"buffer_store_dwordx4 {v(P+8,4)}, {v(vA2)}, {s(RW,4)}, {s(T[half])} offen")
            else: L.append(f"buffer_store_dwordx4 {v(P+8,4)}, {v(vA3)}, {s(RO,4)}, {k4(half)} offen")
            return L
        xt = {}
        if layer == 1:
            xt[0] = k(f"buffer_load_dwordx4 {v(X3[0],4)}, {v(vA2)}, {s(RW,4)}, {s(T[0])} offen sc1")
        PIu, PCu = self.o.get('g2_pi', 12), self.o.get('g2_pc', 19)
        for u in range(28):
            k.wait(self.ht[(0, u)])
            for nt in range(2): mf(0, u, nt)
            if u == PIu: ph = self.poll_issue(13, s(T[10]))
            if u == PCu:
                self.poll_check(ph)
                self.stamp(f'hB_seen{layer}')
                nxt = 0
            if u >= PCu:
                n = -(-28 // (28 - PCu))
                for _ in range(n):
                    if nxt < 28 and (nxt < 14 or nxt - 14 <= u): self.ldH(1, nxt); nxt += 1
        while nxt < 28: self.ldH(1, nxt); nxt += 1
        if layer == 1:
            xt[1] = k(f"buffer_load_dwordx4 {v(X3[1],4)}, {v(vA2)}, {s(RW,4)}, {s(T[1])} offen sc1")
            if self.o.get('wbl2', 1):
                skip = k.label()
                k(f"s_or_b32 {s(T[2])}, {s(sJ)}, {s(sW)}\ns_cmp_lg_u32 {s(T[2])}, 0\ns_cbranch_scc1 {skip}")
                k.ins.append(I("buffer_wbl2 sc1"))
                k.place(skip)
                self.wb_extra = True
        self.stamp(f'g2a{layer}')
        q = [('nop',)] * 4 + [('I', x) for x in red_write(0)] + [('nop',)]*4 + [('BAR',)] + [('I', x) for x in red_read(184)] + [('nop',)]*4 + [('WL',)] + [('I', x) for x in red_sum(184, 0)]
        fA = None
        per = 2
        for u in range(28):
            tok = self.ht[(1, u)]
            k.wait(tok)
            for nt in range(2):
                mf(1, u, nt)
                for _ in range(per):
                    if not q: break
                    it = q.pop(0)
                    if it[0] == 'I':
                        r = k(it[1])
                        if 'store' in it[1]: fA = r
                    elif it[0] == 'BAR': k.wait_lg0(); k("s_barrier")
                    elif it[0] == 'WL':
                        k.wait_lg0()
                        if layer == 1: self.wait_relaxed(xt[0])
            if layer == 0 and fA and not q and u >= 24 and fA != 'done':
                self.publish(fA, s(T[6])); fA = 'done'
        assert not q
        if layer == 0 and fA != 'done': self.publish(fA, s(T[6]))
        self.stamp(f'g2b{layer}')
        k("s_barrier")
        for x in red_write(1): k(x)
        k.wait_lg0(); k("s_barrier")
        for x in red_read(16): k(x)
        k.wait_lg0()
        if layer == 1: self.wait_relaxed(xt[1])
        for x in red_sum(16, 1): fB = k(x)
        if layer == 0: self.publish(fB, s(T[7]))
        self.stamp(f'fB_pub{layer}')

    def wait_relaxed(self, tok): self.k.wait(tok)

    def rowop2(self):
        k = self.k; T = sT
        k(f"""v_and_b32 v13, 7, {v(vL)}
              v_lshlrev_b32 v13, 2, v13
              s_lshr_b32 {s(T[0])}, {s(sJ)}, 1
              s_lshl_b32 {s(T[0])}, {s(T[0])}, 3""")
        self.flag_off(T[8], WS_FF, 0, 0, T[0])
        k(f"""s_add_u32 {s(T[9])}, {s(T[8])}, 0x200
              s_lshl_b32 {s(T[0])}, {s(sJ)}, 2
              s_add_u32 {s(T[0])}, {s(T[0])}, {s(sW)}
              s_lshl_b32 {s(T[1])}, {s(sX)}, 8
              s_add_u32 {s(T[0])}, {s(T[0])}, {s(T[1])}
              s_lshl_b32 {s(T[0])}, {s(T[0])}, 10
              s_add_u32 {s(T[10])}, {s(T[0])}, {WS_F}
              s_add_u32 {s(T[11])}, {s(T[10])}, 0x20000""")
        for h in range(2):
            self.poll(13, s(T[8+h]))
            self.stamp(f'f_seen{h}')
            t = k(f"buffer_load_dwordx4 v[48:51], {v(vL16)}, {s(RW,4)}, {s(T[10+h])} offen sc1")
            k.wait(t)
            self.unpack(56, 48)
            for e in (0, 2, 4, 6): k(f"v_pk_add_f32 {v(XS[h]+e,2)}, {v(XS[h]+e,2)}, {v(56+e,2)}")
            self.stats([XS[h]], [36])
            self.affine(64, XS[h], 36)
            self.gate_and_norm([h], {h: 64}, 1)
            self.stamp(f'row2_{h}')

    def build(self):
        k = self.k; o = self.o
        self.prologue()
        self.w1_addr(120)
        self.phase0()
        self.toeplitz()
        self.q_stats()
        self.stamp('toep')
        toks = []
        self.after_kv_issue = lambda: toks.append(self.w1_dma(120, range(28)))
        self.conv()
        self.y_in()
        self.gate_and_norm([0, 1], self.N0, 0)
        self.stamp('a_pub')
        k("s_barrier")
        self.wd_load(120)
        self.stamp('wd')
        k.wait(toks[0])
        self.w1_relayout(16)
        k("s_barrier")
        self.stamp('w1')
        for layer in range(2):
            self.gemm1(layer)
            self.gemm2(layer)
            if layer == 0: self.rowop2()
        if o.get('stamps'):
            self.stamp('end')
            T = sT
            k(f"""s_lshl_b32 {s(T[0])}, s2, 2
                  s_add_u32 {s(T[0])}, {s(T[0])}, {s(sW)}
                  s_lshl_b32 {s(T[0])}, {s(T[0])}, 8
                  s_add_u32 {s(T[0])}, {s(T[0])}, {WS_DBG}
                  v_lshlrev_b32 v5, 2, {v(vL)}
                  buffer_store_dword {v(vST)}, v5, {s(RW,4)}, {s(T[0])} offen""")
        k.place("L_END")
        k("s_endpgm")
        body = k.text()
        for t in self.tail:
            body += "".join((x + "\n") if x.endswith(':') else ("    " + x + "\n") for x in t)
        return body

def file_text(opt):
    g = Gen(opt)
    body = g.build()
    ref = open(os.path.join(os.path.dirname(os.path.abspath(__file__)), '..', 'cdna_kernels', NAME + '.s.ref')).read()
    head = ref[:ref.index('; Override launch geometry')]
    txt = head + f"""; @launch grid=(256,1,1) block=(256,1,1) lds={LDS_SIZE}
.amdgcn_target "amdgcn-amd-amdhsa--gfx950"
.text
.globl {NAME}_kernel
.p2align 8
.type {NAME}_kernel,@function
{NAME}_kernel:
{body}.section .rodata,"a"
.p2align 6
.amdhsa_kernel {NAME}_kernel
  .amdhsa_next_free_vgpr 512
  .amdhsa_next_free_sgpr 102
  .amdhsa_accum_offset 256
  .amdhsa_group_segment_fixed_size 0
  .amdhsa_kernarg_size 104
  .amdhsa_user_sgpr_count 2
  .amdhsa_user_sgpr_kernarg_segment_ptr 1
  .amdhsa_system_sgpr_workgroup_id_x 1
.end_amdhsa_kernel
"""
    return txt, g

if __name__ == '__main__':
    import json
    opt = {}
    out = None
    for x in sys.argv[1:]:
        if '=' in x:
            kk, vv = x.split('='); opt[kk] = int(vv, 0)
        else: out = x
    txt, g = file_text(opt)
    open(out, 'w').write(txt)
    json.dump(g.stamps, open(out + '.stamps.json', 'w'))
    print('instructions', len(g.k.ins), 'nops added', g.k.nops_added, 'stamps', len(g.stamps))
```

```python
import re

def v(n, c=1): return f"v{n}" if c == 1 else f"v[{n}:{n+c-1}]"
def a(n, c=1): return f"a{n}" if c == 1 else f"a[{n}:{n+c-1}]"
def s(n, c=1): return f"s{n}" if c == 1 else f"s[{n}:{n+c-1}]"

_reg = re.compile(r'^-?(?:abs\()?([vas])(?:(\d+)|\[(\d+):(\d+)\])\)?$')
def regs(op):
    op = op.strip()
    if op == 'vcc': return {('s', 106), ('s', 107)}
    if op == 'exec': return {('s', 126), ('s', 127)}
    if op == 'm0': return {('s', 124)}
    m = _reg.match(op)
    if not m: return set()
    k = m.group(1)
    if m.group(2) is not None: return {(k, int(m.group(2)))}
    return {(k, i) for i in range(int(m.group(3)), int(m.group(4)) + 1)}

TRANS = ('v_exp_f32', 'v_log_f32', 'v_rcp_f32', 'v_rsq_f32', 'v_sqrt_f32', 'v_sin_f32', 'v_cos_f32')

class I:
    __slots__ = ('text', 'op', 'cls', 'dst', 'src', 'srcc', 'wide', 'raw', 'ab')
    def __init__(self, text):
        self.text = text
        t = text.split(';')[0].strip()
        self.raw = t
        self.dst = set(); self.src = set(); self.srcc = set(); self.ab = set(); self.wide = False
        if not t or t.endswith(':') or t.startswith('.'):
            self.op = ''; self.cls = 'label' if t.endswith(':') else 'dir'; return
        parts = t.split(None, 1)
        op = parts[0]; self.op = op
        rest = parts[1] if len(parts) > 1 else ''
        ops = [x.strip() for x in rest.split(',')] if rest else []
        mods = ''
        if ops:
            last = ops[-1].split(None, 1)
            ops[-1] = last[0]; mods = last[1] if len(last) > 1 else ''
            joined = []
            for o in ops: joined.append(o)
            ops = joined
        R = [regs(o.split()[0]) if o else set() for o in ops]
        U = lambda l: set().union(*l) if l else set()
        if op.startswith('v_mfma'):
            self.cls = 'mfma8' if '32x32x16' in op else 'mfma4'
            self.dst = R[0]; self.ab = R[1] | R[2]; self.srcc = R[3]; self.src = self.ab | self.srcc
        elif op.startswith('v_cmp'):
            self.cls = 'valu'; self.dst = R[0]; self.src = U(R[1:])
        elif op.startswith('v_readlane') or op.startswith('v_readfirstlane'):
            self.cls = 'readlane'; self.dst = R[0]; self.src = U(R[1:])
        elif op.startswith('v_permlane'):
            self.cls = 'perml'; self.dst = R[0] | R[1]; self.src = R[0] | R[1]
        elif op.startswith('v_'):
            base = op.replace('_e32', '').replace('_e64', '').replace('_dpp', '').replace('_sdwa', '')
            self.cls = 'trans' if base in TRANS else ('dot' if base.startswith('v_dot') else 'valu')
            if 'row_' in t or 'quad_perm' in t or 'wave_' in t: self.cls = 'dpp'
            self.dst = R[0]; self.src = U(R[1:])
            if base in ('v_fmac_f32', 'v_dot2c_f32_bf16', 'v_writelane_b32') or self.cls == 'dpp': self.src |= R[0]
            if base.startswith('v_cndmask') and len(ops) == 3: self.src |= regs('vcc')
            if base in ('v_add_co_u32', 'v_addc_co_u32', 'v_sub_co_u32'): self.dst = R[0] | R[1]; self.src = U(R[2:])
            if self.cls == 'dot' and len(R) == 4: self.srcc = R[3]; self.ab = R[1] | R[2]
        elif op.startswith('buffer_load') or op.startswith('global_load'):
            if ' lds' in (' ' + mods) or 'load_lds' in op:
                self.cls = 'dma'; self.src = U(R) | regs('m0')
            else:
                self.cls = 'vmem_ld'; self.dst = R[0]; self.src = U(R[1:])
        elif op.startswith('buffer_store') or op.startswith('global_store') or op.startswith('buffer_atomic'):
            self.cls = 'vmem_st'; self.src = U(R)
            self.wide = 'x3' in op or 'x4' in op
            self.ab = R[0] if op.startswith('buffer') else R[1]
        elif op in ('buffer_wbl2', 'buffer_inv'):
            self.cls = 'vmem_st'
        elif op.startswith('ds_read') or op.startswith('ds_bpermute') or op.startswith('ds_swizzle'):
            self.cls = 'ds_rd'; self.dst = R[0]; self.src = U(R[1:])
        elif op.startswith('ds_write'):
            self.cls = 'ds_wr'; self.src = U(R)
        elif op.startswith('s_load') or op.startswith('s_memtime') or op.startswith('s_memrealtime'):
            self.cls = 'smem'; self.dst = R[0]; self.src = U(R[1:])
        elif op.startswith('s_nop'):
            self.cls = 'nop'
        elif op.startswith('s_cmp') or op.startswith('s_cbranch') or op.startswith('s_branch') or op in ('s_waitcnt', 's_barrier', 's_endpgm', 's_sleep', 's_setprio') or op.startswith('s_bitcmp'):
            self.cls = 'sctl'; self.src = U(R)
        elif op.startswith('s_'):
            self.cls = 'salu'; self.dst = R[0]; self.src = U(R[1:])
            if 'saveexec' in op: self.dst |= regs('exec')
        else:
            raise ValueError('unknown op ' + text)
    def states(self):
        if self.cls in ('label', 'dir'): return 0
        if self.cls == 'nop': return int(self.raw.split()[1], 0) + 1
        return 1

VALU = ('valu', 'trans', 'dot', 'dpp', 'perml', 'readlane')
def vonly(x): return {r for r in x if r[0] in 'va'}
def sonly(x): return {r for r in x if r[0] == 's'}

def need(p, c):
    n = 0
    pv = vonly(p.dst)
    if p.cls in VALU:
        if c.cls in ('mfma4', 'mfma8') and pv & c.src: n = max(n, 2)
        if c.cls == 'dpp' and pv & c.src: n = max(n, 2)
        if c.cls == 'perml' and pv & c.src: n = max(n, 2)
        if c.cls == 'readlane' and pv & c.src: n = max(n, 1)
        ps = sonly(p.dst)
        if ps:
            if c.cls in VALU and ps & c.src: n = max(n, 4 if c.cls == 'readlane' or c.op.startswith('v_writelane') else 2)
            if c.cls in ('vmem_ld', 'vmem_st', 'dma') and ps & c.src: n = max(n, 5)
    if p.cls == 'trans' and c.cls not in ('label', 'dir', 'nop', 'sctl', 'salu') and pv & c.src: n = max(n, 1)
    if p.cls == 'dot' and c.cls not in ('label', 'dir', 'nop', 'sctl', 'salu'):
        if c.op == p.op:
            if pv & c.ab: n = max(n, 3)
        elif pv & (c.src | c.dst): n = max(n, 3)
    if p.cls in ('mfma4', 'mfma8'):
        big = p.cls == 'mfma8'
        if c.cls in ('mfma4', 'mfma8'):
            if pv & c.ab: n = max(n, 12 if big else 8)
            if pv & c.srcc and not (c.srcc == p.dst and c.cls == p.cls): n = max(n, 10 if big else 6)
            if pv & c.dst and not pv & c.srcc: n = max(n, 10 if big else 6)
        elif c.cls in VALU or c.cls in ('vmem_ld', 'vmem_st', 'dma', 'ds_rd', 'ds_wr'):
            if pv & (c.src | c.dst): n = max(n, 12 if big else 8)
            if c.cls in VALU and vonly(p.srcc) & c.dst: n = max(n, 7 if big else 3)
    if p.cls == 'salu' and ('s', 124) in p.dst and c.cls == 'dma': n = max(n, 1)
    if p.cls == 'vmem_st' and p.wide and p.ab & c.dst: n = max(n, 2 if c.cls in VALU else 1)
    return n

class K:
    def __init__(self):
        self.ins = []
        self.vm = 0; self.vm_done = 0
        self.lg = 0; self.lg_done = 0
        self.nlabel = 0
        self.nops_added = 0
        self.pend = {}
    def pad_needed(self, i):
        dist = 0; req = 0
        for p in reversed(self.ins[-40:]):
            if dist >= 12: break
            r = need(p, i) if p.cls not in ('label', 'dir', 'nop') else 0
            if r > dist: req = max(req, r - dist)
            dist += p.states()
        return req
    def pending(self, i):
        for r in (i.src | i.dst):
            t = self.pend.get(r)
            if t is not None and t[1] > (self.vm_done if t[0] == 'vm' else self.lg_done): return True
        return False
    def raw(self, text):
        i = I(text)
        if i.cls not in ('label', 'dir'):
            req = self.pad_needed(i)
            while req > 0:
                k = min(req, 16)
                self.ins.append(I(f"s_nop {k-1}")); self.nops_added += k; req -= k
        for r in (i.src | i.dst):
            t = self.pend.get(r)
            if t is not None:
                done = self.vm_done if t[0] == 'vm' else self.lg_done
                if t[1] > done: raise RuntimeError(f"register {r} used before its load completed: {text}")
                del self.pend[r]
        self.ins.append(i)
        tok = None
        if i.cls in ('vmem_ld', 'vmem_st', 'dma'): self.vm += 1; tok = ('vm', self.vm)
        if i.cls in ('ds_rd', 'ds_wr'): self.lg += 1; tok = ('lg', self.lg)
        if i.cls in ('vmem_ld', 'ds_rd'):
            for r in i.dst: self.pend[r] = tok
        return tok
    def __call__(self, text):
        r = None
        for line in text.strip().split('\n'):
            line = line.strip()
            if line: r = self.raw(line)
        return r
    def wait(self, *toks):
        nv = max([t[1] for t in toks if t and t[0] == 'vm'], default=0)
        nl = max([t[1] for t in toks if t and t[0] == 'lg'], default=0)
        parts = []
        if nv > self.vm_done:
            c = self.vm - nv
            c = min(c, 63); parts.append(f"vmcnt({c})"); self.vm_done = self.vm - c
        if nl > self.lg_done:
            c = self.lg - nl
            c = min(c, 15); parts.append(f"lgkmcnt({c})"); self.lg_done = self.lg - c
        if parts: self.raw("s_waitcnt " + " ".join(parts))
    def wait_vm0(self):
        self.raw("s_waitcnt vmcnt(0)"); self.vm_done = self.vm
    def wait_lg0(self):
        self.raw("s_waitcnt lgkmcnt(0)"); self.lg_done = self.lg
    def wait_all(self):
        self.raw("s_waitcnt vmcnt(0) lgkmcnt(0)"); self.vm_done = self.vm; self.lg_done = self.lg
    def label(self, name=None):
        if name is None:
            self.nlabel += 1; name = f"L{self.nlabel}"
        return name
    def place(self, name): self.raw(name + ':')
    def text(self):
        out = []
        for i in self.ins:
            out.append(i.text if i.cls == 'label' else '    ' + i.text)
        return "\n".join(out) + "\n"


class Item:
    def __init__(self, text=None, fn=None, cost=None, at=0, tag=None):
        self.text = text; self.fn = fn; self.at = at; self.tag = tag
        self.i = I(text) if text else None
        self.cost = cost if cost is not None else (2 if self.i is not None and self.i.cls == 'trans' else 1)
        self.tok = None
    def mem(self): return self.i is not None and self.i.cls in ('vmem_ld', 'vmem_st', 'dma', 'ds_rd', 'ds_wr')

def _dep(a_, b_):
    if a_.i is None or b_.i is None: return True
    x, y = a_.i, b_.i
    if x.dst & (y.src | y.dst) or x.src & y.dst: return True
    if a_.mem() and b_.mem(): return True
    scc = lambda z: z.cls in ('salu', 'sctl')
    if scc(x) and scc(y): return True
    return False

class Queue:
    def __init__(self, k, items, look=10):
        self.k = k; self.q = list(items); self.look = look
    def __len__(self): return len(self.q)
    def cost(self): return sum(x.cost for x in self.q)
    def emit(self, it):
        self.q.remove(it)
        if it.fn: it.tok = it.fn()
        else: it.tok = self.k(it.text)
        return it
    def fill(self, cap, now=1 << 30):
        while self.q and (cap > 0 or self.q[0].cost == 0):
            pick = None
            for n, it in enumerate(self.q[:self.look]):
                if any(_dep(p, it) for p in self.q[:n]):
                    if it.i is None: break
                    continue
                if it.at > now or it.cost > cap:
                    if it.i is None: break
                    continue
                if it.i is not None and (self.k.pad_needed(it.i) or self.k.pending(it.i)): continue
                if pick is None or (it.cost == cap and pick.cost < cap): pick = it
                if it.i is None: break
            if pick is None: break
            self.emit(pick); cap -= pick.cost
        return cap
    def drain(self):
        while self.q:
            n0 = len(self.q)
            self.fill(3)
            if len(self.q) == n0: self.emit(self.q[0])
```

```python
import sys, os
sys.path.insert(0, os.path.dirname(os.path.abspath(__file__)))
from dsl import *

NAME = 'interleave_layers__ssm_conv_h3__swiglu_ffn__prompt'

WS_XCCF = 0x1000
WS_KVF  = 0x10000
WS_AF   = 0x11000
WS_HF   = 0x19000
WS_FF   = 0x21000
WS_YF   = 0x30000
WS_KVT  = 0x100000
WS_F    = WS_KVT
WS_YP   = 0x300000
WS_A    = 0x500000
WS_H    = 0x700000
WS_DBG  = 0xE00000
WS_SIZE = 0x1000000
H_X, H_HALF, H_RB = 917504, 458752, 114688

LDS_SIZE = 163840
SCR   = 114688
L_K   = SCR
L_V   = L_K + 9216
L_H   = L_V + 8192
H_CP  = 4096 + 128
H_E   = lambda ch: L_H + ch * 2 * H_CP + 64
H_O   = lambda ch: L_H + ch * 2 * H_CP + H_CP + 128
L_U   = L_H + 4 * H_CP + 128
U_S   = 4608
assert L_U + 2 * U_S <= LDS_SIZE
L_CRED = SCR
assert L_CRED + 32768 <= L_U
L_YT  = L_U
L_WD  = SCR
L_RED = SCR

sX, sJ, sW, sN, sEXP, sSPIN, sXCC, sMODE = 4, 5, 6, 7, 8, 9, 10, 11
T = list(range(12, 24))
sC2 = 24
sHALF = 26
sW1S, sW1L = 27, 3
sD = 28
sDP = 34
RK, RV, RH, RQ, RG, RU, RD, RO, RW, RS = 44, 48, 52, 56, 60, 64, 68, 72, 76, 80
sK4 = 83
def k4(i): return '0' if i == 0 else s(sK4 + i)
sHH = 91
sAFp, sAFs, sHFp, sHFs, sFFp, sFFs = 94, 95, 96, 97, 98, 99
sFR = [100, 101]
sST = (32, 92)

vL, vL16, vL0, vNON, vPT = 1, 2, 3, 4, 5
vAld, vHld = [6, 7], [8, 9]
vHm, vHt, vAst, vF2, vO, vRw, vRr, vP31, vP7, vW1 = 10, 11, 12, 13, 14, 15, 16, 17, 18, 19
vST = (20, 21)
ACC = [22, 78]
WF, AR, TMP = 134, 190, 222
YS, XS = [232, 236], [240, 248]
LOG2E = 1.4426950408889634

def f32(x):
    import struct
    return '0x%08x' % struct.unpack('<I', struct.pack('<f', x))[0]

def flist(c):
    if c < 4: return [4*c + e for e in range(4)] + [16 + 4*c + e for e in range(4)]
    q = c - 4; X = [44, 46, 54][q]
    return [32 + 4*q + e for e in range(4)] + [48 + 2*q, 49 + 2*q, X, X + 1]

class Gen:
    def __init__(self, opt):
        self.o = opt
        self.k = K()
        self.tail = []
        self.stamps = []
        self.w1_next = 0
        self.w1_tok = {}

    def stamp(self, name):
        if not self.o.get('stamps'): return
        only = self.o.get('only')
        if only and name not in only: return
        k = self.k; n = len(self.stamps)
        k(f"s_memrealtime {s(sST[0],2)}\ns_memtime {s(sST[1],2)}"); k.wait_lg0()
        k(f"v_writelane_b32 {v(vST[0])}, {s(sST[0])}, {n}\nv_writelane_b32 {v(vST[1])}, {s(sST[1])}, {n}")
        self.stamps.append(name)

    def srd(self, base, size):
        self.k(f"s_mov_b32 {s(base+2)}, {size}\ns_mov_b32 {s(base+3)}, 0x20000")

    def poll_issue(self, vaddr, soff, off=0, vt=vPT):
        txt = f"buffer_load_dword {v(vt)}, {v(vaddr)}, {s(RW,4)}, {soff} offen offset:{off} sc1"
        return (self.k(txt), txt, vt)

    def poll_steps(self, get, local=True):
        k = self.k
        slow, back, ok = k.label(), k.label(), k.label()
        def s1(): k.wait(get()[0])
        def s2(): k(f"v_cmp_ne_u32 vcc, {s(sEXP if local else sN)}, {v(get()[2])}")
        def s3():
            k(f"s_cbranch_vccnz {slow}"); k.place(back)
            _, txt, vt = get()
            t = [f"{slow}:", txt, "s_waitcnt vmcnt(0)", f"v_cmp_ne_u32 vcc, {s(sN)}, {v(vt)}", f"s_cbranch_vccz {ok}",
                 f"s_sub_u32 {s(sSPIN)}, {s(sSPIN)}, 1", f"s_cbranch_scc0 {slow}", "s_branch L_END", f"{ok}:"]
            if local: t += [f"s_cmp_eq_u32 {s(sMODE)}, 0", f"s_cbranch_scc1 {back}", "buffer_inv sc1", "s_waitcnt vmcnt(0)"]
            self.tail.append(t + [f"s_branch {back}"])
        return [s1, s2, s3]

    def poll_check(self, h, local=True):
        for f in self.poll_steps(lambda: h, local): f()
    def poll(self, vaddr, soff, off=0, local=True):
        self.poll_check(self.poll_issue(vaddr, soff, off), local)
    def poll_items(self, vaddr, soff, off, at_issue, at_check):
        box = []
        it = [Item(fn=lambda: box.append(self.poll_issue(vaddr, soff, off)), at=at_issue)]
        return it + [Item(fn=f, at=at_check) for f in self.poll_steps(lambda: box[0])]

    def flag_store(self, soff, off=0, local=True):
        k = self.k
        txt = f"buffer_store_dword {v(vNON)}, {v(vL0)}, {s(RW,4)}, {soff} offen offset:{off}"
        if not local: return k(txt + " sc1")
        slow, back = k.label(), k.label()
        k(f"s_cmp_lg_u32 {s(sMODE)}, 0\ns_cbranch_scc1 {slow}")
        r = k(txt); k.place(back)
        self.tail.append([f"{slow}:", "s_waitcnt vmcnt(0)", "buffer_wbl2 sc1", "s_waitcnt vmcnt(0)", txt + " sc1", f"s_branch {back}"])
        return r
    def publish(self, tok, soff, off=0, local=True):
        self.k.wait(tok)
        return self.flag_store(soff, off, local)
    def publish_items(self, get, soff, off, at):
        return [Item(fn=lambda: self.k.wait(get()), at=at), Item(fn=lambda: self.flag_store(soff, off), cost=2, at=at)]

    def dma(self, vaddr, srd, soff, m0, extra=''):
        self.k(m0)
        return self.k(f"buffer_load_dwordx4 {v(vaddr)}, {s(srd,4)}, {soff} offen {extra} lds".replace('  ', ' '))

    def prologue(self):
        k = self.k
        k("s_cmp_ge_u32 s2, 256\ns_cbranch_scc1 L_END")
        for r, off in ((RK, 8), (RV, 16), (RW, 96), (RH, 32), (RS, 24), (RQ, 0), (RG, 56), (RU, 64), (RD, 72), (RO, 80)):
            k(f"s_load_dwordx2 {s(r,2)}, s[0:1], {off}")
        k(f"s_load_dwordx2 {s(sDP,2)}, s[0:1], 40")
        k(f"""s_and_b32 {s(sX)}, s2, 7
              s_lshr_b32 {s(sJ)}, s2, 3
              v_lshrrev_b32 v5, 6, v0
              v_and_b32 {v(vL)}, 63, v0
              v_readfirstlane_b32 {s(sW)}, v5
              v_lshlrev_b32 {v(vL16)}, 4, {v(vL)}""")
        for r, size in ((RK, 2097152), (RV, 2097152), (RW, WS_SIZE), (RH, 2097152), (RS, 4096)): self.srd(r, size)
        if self.o.get('stamps'): k(f"v_mov_b32 {v(vST[0])}, 0\nv_mov_b32 {v(vST[1])}, 0")
        k(f"""v_lshrrev_b32 v24, 3, {v(vL)}
              v_and_b32 v25, 7, {v(vL)}
              v_and_b32 v26, 2, v24
              v_xor_b32 v25, v25, v26
              s_and_b32 {s(T[0])}, {s(sW)}, 1
              s_lshl_b32 {s(T[0])}, {s(T[0])}, 2
              v_xor_b32 v25, {s(T[0])}, v25
              v_lshlrev_b32 v25, 4, v25
              v_lshl_add_u32 v25, v24, 10, v25
              s_lshl_b32 {s(T[0])}, {s(sJ)}, 16
              s_lshl_b32 {s(T[1])}, {s(sW)}, 14
              s_lshl_b32 {s(T[2])}, {s(sX)}, 7
              s_add_u32 {s(T[0])}, {s(T[0])}, {s(T[1])}
              s_add_u32 {s(T[0])}, {s(T[0])}, {s(T[2])}
              v_add_u32 v25, {s(T[0])}, v25
              v_xor_b32 v26, 64, v25
              v_subrev_u32 v26, 8192, v26
              s_lshl_b32 {s(T[1])}, {s(sW)}, 11
              s_add_u32 {s(T[2])}, {s(T[1])}, {L_K + 1024}
              s_add_u32 {s(T[3])}, {s(T[1])}, {L_V}
              s_movk_i32 {s(T[4])}, 8192
              v_and_b32 v27, 15, {v(vL)}
              s_lshl_b32 {s(T[0])}, {s(sX)}, 6
              s_lshl_b32 {s(T[1])}, {s(sW)}, 4
              s_add_u32 {s(T[1])}, {s(T[0])}, {s(T[1])}
              v_add_u32 v27, {s(T[1])}, v27
              v_lshlrev_b32 v28, 3, v27
              s_lshl_b32 {s(T[1])}, {s(sJ)}, 1
              s_add_u32 {s(T[0])}, {s(T[0])}, {s(T[1])}
              s_lshl_b32 {s(T[5])}, {s(T[0])}, 1
              s_lshl_b32 {s(T[6])}, {s(T[0])}, 12
              s_add_u32 {s(T[7])}, {s(T[6])}, 4096
              v_lshlrev_b32 v29, 4, v0""")
        k.wait_lg0()
        self.stamp('start')
        k(f"s_load_dword {s(sN)}, {s(RW,2)}, 0")
        k(f"s_load_dword {s(sD)}, {s(sDP,2)}, {s(T[5])}")
        self.dma(25, RK, '0', f"s_mov_b32 m0, {s(T[2])}")
        self.dma(25, RV, '0', f"s_mov_b32 m0, {s(T[3])}")
        self.dma(25, RK, s(T[4]), f"s_add_u32 m0, {s(T[2])}, 1024")
        self.dma(25, RV, s(T[4]), f"s_add_u32 m0, {s(T[3])}, 1024")
        skip = k.label()
        k(f"s_cmp_lg_u32 {s(sW)}, 0\ns_cbranch_scc1 {skip}\ns_mov_b32 m0, {L_K}\ns_nop 0")
        k.ins.append(I(f"buffer_load_dwordx4 v26, {s(RK,4)}, 0 offen lds"))
        k.place(skip)
        self.sh_tok = k(f"buffer_load_dwordx2 v[30:31], v28, {s(RS,4)}, 0 offen")
        k(f"buffer_load_dwordx4 v[32:35], v29, {s(RH,4)}, {s(T[6])} offen")
        k(f"buffer_load_dwordx4 v[40:43], v29, {s(RH,4)}, {s(T[7])} offen")
        k(f"buffer_load_dwordx4 v[36:39], v29, {s(RH,4)}, {s(T[6])} offen offset:2")
        self.h_tok = k(f"buffer_load_dwordx4 v[44:47], v29, {s(RH,4)}, {s(T[7])} offen offset:2")
        k(f"""s_getreg_b32 {s(sXCC)}, hwreg(HW_REG_XCC_ID, 0, 4)
              v_cmp_eq_u32 vcc, 0, {v(vL)}
              v_mov_b32 v5, 0x80000000
              s_lshl_b32 {s(T[1])}, {s(sX)}, 5
              s_add_u32 {s(T[1])}, {s(T[1])}, {s(sJ)}
              s_lshl_b32 {s(T[1])}, {s(T[1])}, 7
              s_add_u32 {s(T[1])}, {s(T[1])}, {WS_XCCF}
              v_cndmask_b32 {v(vL0)}, v5, 0, vcc""")
        k.wait_lg0()
        k(f"""s_mul_i32 {s(sN)}, {s(sN)}, 1664525
              s_add_u32 {s(sN)}, {s(sN)}, 1013904223
              s_xor_b32 {s(T[0])}, {s(sN)}, {s(sXCC)}
              v_mov_b32 v5, {s(T[0])}
              v_mov_b32 {v(vNON)}, {s(sN)}""")
        k(f"buffer_store_dword v5, {v(vL0)}, {s(RW,4)}, {s(T[1])} offen sc1")
        self.code_prefetch()
        for r, size in ((RQ, 2097152), (RG, 1835008), (RU, 1835008), (RD, 1835008), (RO, 2097152)): self.srd(r, size)
        k(f"""s_lshr_b32 {s(sD+2)}, {s(sD)}, 16
              s_and_b32 {s(sD+3)}, {s(sD)}, 0xffff0000
              s_lshl_b32 {s(sD+1)}, {s(sD)}, 16
              s_and_b32 {s(sD)}, {s(sD)}, 0xffff
              s_mov_b32 {s(sC2)}, {f32(LOG2E*LOG2E)}
              s_mov_b32 {s(sC2+1)}, {f32(LOG2E*LOG2E)}
              s_mov_b32 {s(sSPIN)}, {self.o.get('spin', 400000)}
              s_mov_b32 {s(sHALF)}, 0x20000
              s_mov_b32 {s(sHH)}, {H_HALF}""")
        for i in range(1, 8): k(f"s_movk_i32 {s(sK4+i)}, {4096*i}")

    def code_prefetch(self):
        if not self.o.get('cpf', 1): return
        k = self.k
        k(f"s_getpc_b64 {s(T[2],2)}")
        k.place("L_PC")
        k(f"""s_mul_i32 {s(T[4])}, {s(sJ)}, ((L_LAST-L_PC+4095)/4096)*128
              v_min_u32 v5, (L_LAST-L_PC+4095)/4096-1, v0
              v_lshl_add_u32 v5, v5, 7, {s(T[4])}
              v_min_u32 v5, L_LAST-L_PC-4, v5
              global_load_dword v231, v5, {s(T[2],2)}""")

    def q_load(self):
        k = self.k
        k(f"""s_lshl_b32 {s(T[0])}, {s(sX)}, 8
              s_lshl_b32 {s(T[1])}, {s(sJ)}, 3
              s_add_u32 {s(T[0])}, {s(T[0])}, {s(T[1])}
              s_add_u32 {s(T[0])}, {s(T[0])}, {s(sW)}
              s_lshl_b32 {s(T[0])}, {s(T[0])}, 10
              s_add_u32 {s(T[1])}, {s(T[0])}, 4096""")
        k(f"buffer_load_dwordx4 v[222:225], {v(vL16)}, {s(RQ,4)}, {s(T[0])} offen")
        self.q_tok = k(f"buffer_load_dwordx4 v[226:229], {v(vL16)}, {s(RQ,4)}, {s(T[1])} offen")

    def persistent(self):
        k = self.k
        k(f"""s_lshl_b32 {s(T[0])}, {s(sJ)}, 2
              s_add_u32 {s(T[0])}, {s(T[0])}, {s(sW)}
              s_lshl_b32 {s(T[8])}, {s(sX)}, 18
              s_lshl_b32 {s(T[9])}, {s(sX)}, 12
              s_lshr_b32 {s(T[10])}, {s(sJ)}, 3
              s_and_b32 {s(T[11])}, {s(sJ)}, 7
              s_lshl_b32 {s(T[1])}, {s(T[0])}, 2
              s_add_u32 {s(T[1])}, {s(T[1])}, {s(T[9])}
              s_add_u32 {s(sAFs)}, {s(T[1])}, {WS_AF}
              s_lshl_b32 {s(T[1])}, {s(sW)}, 7
              s_add_u32 {s(T[1])}, {s(T[1])}, {s(T[9])}
              s_add_u32 {s(sAFp)}, {s(T[1])}, {WS_AF}
              s_lshl_b32 {s(T[2])}, {s(sJ)}, 2
              s_add_u32 {s(T[1])}, {s(T[1])}, {s(T[2])}
              s_add_u32 {s(sHFs)}, {s(T[1])}, {WS_HF}
              s_lshl_b32 {s(T[1])}, {s(T[10])}, 7
              s_lshl_b32 {s(T[2])}, {s(sW)}, 5
              s_add_u32 {s(T[1])}, {s(T[1])}, {s(T[2])}
              s_add_u32 {s(T[1])}, {s(T[1])}, {s(T[9])}
              s_add_u32 {s(sHFp)}, {s(T[1])}, {WS_HF}
              s_lshl_b32 {s(T[2])}, {s(T[11])}, 2
              s_add_u32 {s(T[1])}, {s(T[1])}, {s(T[2])}
              s_add_u32 {s(sFFs)}, {s(T[1])}, {WS_FF}
              s_lshr_b32 {s(T[1])}, {s(sJ)}, 1
              s_lshl_b32 {s(T[1])}, {s(T[1])}, 5
              s_add_u32 {s(T[1])}, {s(T[1])}, {s(T[9])}
              s_add_u32 {s(sFFp)}, {s(T[1])}, {WS_FF}
              s_lshl_b32 {s(T[1])}, {s(T[0])}, 10
              s_add_u32 {s(T[1])}, {s(T[1])}, {s(T[8])}
              s_add_u32 {s(sFR[0])}, {s(T[1])}, {WS_F}
              s_add_u32 {s(sFR[1])}, {s(T[1])}, {WS_F + 0x20000}
              s_lshr_b32 {s(T[1])}, {s(T[0])}, 5
              s_lshl_b32 {s(T[1])}, {s(T[1])}, 15
              s_bfe_u32 {s(T[2])}, {s(T[0])}, 0x10004
              s_lshl_b32 {s(T[2])}, {s(T[2])}, 10
              s_and_b32 {s(T[3])}, {s(T[0])}, 15
              s_lshl_b32 {s(T[3])}, {s(T[3])}, 4
              s_add_u32 {s(T[1])}, {s(T[1])}, {s(T[2])}
              s_add_u32 {s(T[1])}, {s(T[1])}, {s(T[3])}
              s_add_u32 {s(T[1])}, {s(T[1])}, {s(T[8])}
              s_add_u32 {s(T[1])}, {s(T[1])}, {WS_A}
              v_lshrrev_b32 v5, 2, {v(vL)}
              v_lshlrev_b32 v5, 11, v5
              v_and_b32 {v(vAst)}, 3, {v(vL)}
              v_lshl_add_u32 {v(vAst)}, {v(vAst)}, 8, v5
              v_add_u32 {v(vAst)}, {s(T[1])}, {v(vAst)}
              s_lshl_b32 {s(T[1])}, {s(sW)}, 15
              s_add_u32 {s(T[1])}, {s(T[1])}, {s(T[8])}
              s_add_u32 {s(T[1])}, {s(T[1])}, {WS_A}
              v_add_u32 {v(vAld[0])}, {s(T[1])}, {v(vL16)}
              v_add_u32 {v(vAld[1])}, 0x20000, {v(vAld[0])}
              v_add_u32 {v(vW1)}, 57344, {v(vL16)}
              v_and_b32 {v(vP31)}, 31, {v(vL)}
              v_lshlrev_b32 {v(vP31)}, 2, {v(vP31)}
              v_and_b32 {v(vP7)}, 7, {v(vL)}
              v_lshlrev_b32 {v(vP7)}, 2, {v(vP7)}
              v_lshrrev_b32 v5, 4, {v(vL)}
              v_and_b32 v23, 15, {v(vL)}
              v_lshlrev_b32 v22, 9, v5
              v_lshl_add_u32 v22, v23, 4, v22
              s_mul_i32 {s(T[4])}, {s(sX)}, {H_X}
              s_add_u32 {s(T[4])}, {s(T[4])}, {WS_H}
              s_mul_i32 {s(T[1])}, {s(sW)}, {H_RB}
              s_mul_i32 {s(T[2])}, {s(sJ)}, 3584
              s_add_u32 {s(T[1])}, {s(T[1])}, {s(T[2])}
              s_add_u32 {s(T[1])}, {s(T[1])}, {s(T[4])}
              v_add_u32 {v(vHm)}, {s(T[1])}, v22
              s_mul_i32 {s(T[1])}, {s(T[10])}, {H_RB}
              s_mul_i32 {s(T[2])}, {s(sW)}, 28672
              s_add_u32 {s(T[1])}, {s(T[1])}, {s(T[2])}
              s_add_u32 {s(T[1])}, {s(T[1])}, {s(T[4])}
              v_add_u32 {v(vHld[0])}, {s(T[1])}, v22
              v_add_u32 {v(vHld[1])}, {H_HALF}, {v(vHld[0])}
              v_cmp_gt_u32 vcc, 48, {v(vL)}
              v_add_u32 {v(vHt)}, 2048, {v(vHm)}
              v_mov_b32 v22, 0x80000000
              v_mul_u32_u24 {v(vRw)}, 272, v23
              v_cndmask_b32 {v(vHt)}, v22, {v(vHt)}, vcc
              v_lshl_add_u32 {v(vRw)}, v5, 4, {v(vRw)}
              s_mul_i32 {s(T[1])}, {s(sW)}, 8704
              s_add_u32 {s(T[1])}, {s(T[1])}, {L_RED}
              v_add_u32 {v(vRw)}, {s(T[1])}, {v(vRw)}
              v_lshrrev_b32 v5, 3, {v(vL)}
              v_mul_u32_u24 {v(vRr)}, 272, v5
              v_lshl_add_u32 {v(vRr)}, {v(vP7)}, 3, {v(vRr)}
              s_mul_i32 {s(T[1])}, {s(sW)}, {8*272}
              s_add_u32 {s(T[1])}, {s(T[1])}, {L_RED}
              v_add_u32 {v(vRr)}, {s(T[1])}, {v(vRr)}
              s_lshl_b32 {s(T[1])}, {s(T[10])}, 5
              s_lshl_b32 {s(T[2])}, {s(sW)}, 3
              s_add_u32 {s(T[1])}, {s(T[1])}, {s(T[2])}
              v_add_u32 v5, {s(T[1])}, v5
              s_lshl_b32 {s(T[2])}, {s(T[11])}, 7
              s_add_u32 {s(T[2])}, {s(T[2])}, {s(T[8])}
              v_lshl_add_u32 v22, {v(vP7)}, 2, {s(T[2])}
              v_lshl_add_u32 {v(vF2)}, v5, 10, v22
              v_add_u32 {v(vF2)}, {WS_F}, {v(vF2)}
              v_lshrrev_b32 v23, 2, v5
              v_and_b32 v5, 3, v5
              v_lshl_add_u32 v5, v23, 3, v5
              v_lshl_add_u32 {v(vO)}, v5, 10, v22""")

    W1V = 212
    def w1_addr(self):
        k = self.k; vb = self.W1V
        k(f"s_mul_i32 {s(T[0])}, {s(sJ)}, 112\ns_movk_i32 {s(T[1])}, 9363\ns_movk_i32 {s(T[2])}, {3584 - 7*16}")
        for i in range(7):
            k(f"""v_add_u32 v5, {64*i}, {v(vL)}
                  v_mul_u32_u24 {v(vb+i)}, {s(T[1])}, v5
                  v_lshrrev_b32 {v(vb+i)}, 16, {v(vb+i)}
                  v_mul_u32_u24 {v(vb+i)}, {s(T[2])}, {v(vb+i)}
                  v_lshl_add_u32 {v(vb+i)}, v5, 4, {v(vb+i)}
                  v_add_u32 {v(vb+i)}, {s(T[0])}, {v(vb+i)}""")
        k(f"s_mul_i32 {s(sW1S)}, {s(sW)}, 229376\ns_mul_i32 {s(sW1L)}, {s(sW)}, 14336")

    def w1_dma_text(self, n):
        ck, mat, i = n // 14, (n % 14) // 7, n % 7
        L = []
        if n == 14: L.append(f"s_add_u32 {s(sW1S)}, {s(sW1S)}, {4*229376}")
        L.append(f"s_add_u32 m0, {s(sW1L)}, {ck*57344 + mat*7168 + i*1024}")
        L.append(f"buffer_load_dwordx4 {v(self.W1V+i)}, {s(RU if mat else RG,4)}, {s(sW1S)} offen lds")
        return L
    def w1_dma(self, cnt):
        for _ in range(cnt):
            if self.w1_next >= 28: return
            n = self.w1_next; self.w1_next += 1
            for x in self.w1_dma_text(n): self.w1_tok[n] = self.k(x)

    RL = 200
    def w1_relayout_addr(self):
        k = self.k; r = self.RL
        k(f"""v_lshrrev_b32 v5, 4, {v(vL)}
              v_bfe_u32 {v(r)}, {v(vL)}, 2, 2
              v_lshl_add_u32 {v(r)}, v5, 3, {v(r)}
              v_mul_u32_u24 {v(r)}, 112, {v(r)}
              v_add_u32 {v(r)}, {s(sW1L)}, {v(r)}
              v_and_b32 {v(r+2)}, 3, {v(vL)}
              v_bfe_u32 {v(r+3)}, {v(vL)}, 1, 1
              v_mul_u32_u24 {v(r+3)}, 7168, {v(r+3)}
              v_and_b32 v22, 1, {v(vL)}
              v_lshl_add_u32 {v(r+3)}, v22, 3, {v(r+3)}
              v_add_u32 {v(r+1)}, {v(r)}, {v(r+3)}
              v_lshl_add_u32 {v(r)}, {v(r+2)}, 3, {v(r)}
              v_add_u32 {v(r+2)}, {s(sW1L)}, {v(vL16)}
              v_bfe_u32 {v(r+3)}, {v(vL)}, 1, 2
              v_lshlrev_b32 {v(r+3)}, 2, {v(r+3)}
              v_bfe_u32 v23, {v(vL)}, 3, 1
              v_lshl_add_u32 {v(r+3)}, v23, 1, {v(r+3)}
              v_add_u32 {v(r+3)}, {v(r+3)}, v22
              v_lshl_add_u32 {v(r+3)}, v5, 4, {v(r+3)}
              v_lshlrev_b32 {v(r+3)}, 4, {v(r+3)}
              v_add_u32 {v(r+3)}, {s(sW1L)}, {v(r+3)}""")
    def w1_relayout(self, ck, R):
        k = self.k; r = self.RL
        k.wait(self.w1_tok[14*ck + 13])
        if ck == 1:
            for i in range(4): k(f"v_add_u32 {v(r+i)}, 57344, {v(r+i)}")
        for sl in range(2):
            for Tt in range(7):
                for hf in range(2):
                    d = R + (sl*7 + Tt)*4 + 2*hf
                    o = (32*sl + 4*hf)*112
                    if Tt < 6: k(f"ds_read_b64_tr_b16 {v(d,2)}, {v(r)} offset:{o + (Tt&1)*7168 + 32*(Tt>>1)}")
                    else: k(f"ds_read_b64_tr_b16 {v(d,2)}, {v(r+1)} offset:{o + 96}")
        k.wait_lg0()
        for n in range(14): k(f"ds_write_b128 {v(r+3 if n % 7 == 6 else r+2)}, {v(R + n*4, 4)} offset:{n*1024}")

    WDV = ACC[1] + 32
    def wd_addr(self):
        k = self.k; vb = self.WDV
        k(f"""v_lshrrev_b32 v5, 3, {v(vL)}
              v_and_b32 v22, 3, v5
              v_lshlrev_b32 v22, 3, v22
              v_cmp_gt_u32 vcc, 4, v5
              v_and_b32 v5, 2, v5
              v_and_b32 v23, 7, {v(vL)}
              v_xor_b32 v23, v23, v5
              v_lshlrev_b32 v23, 4, v23
              s_and_b32 {s(T[0])}, {s(sJ)}, 7
              s_lshl_b32 {s(T[0])}, {s(T[0])}, 7
              v_add_u32 v23, {s(T[0])}, v23""")
        for c in range(7):
            fl = flist(c)
            lo = sum(fl[e] << (8*e) for e in range(4)); hi = sum(fl[4+e] << (8*e) for e in range(4))
            ev, od = (vb + c, vb + 7 + c) if c % 2 == 0 else (vb + 7 + c, vb + c)
            k(f"""v_mov_b32 {v(ev)}, {lo}
                  v_mov_b32 {v(od)}, {hi}
                  v_cndmask_b32 {v(ev)}, {v(od)}, {v(ev)}, vcc
                  v_bfe_u32 {v(ev)}, {v(ev)}, v22, 8
                  v_lshl_add_u32 {v(ev)}, {v(ev)}, 10, v23
                  v_xor_b32 {v(od)}, 64, {v(ev)}""")
        r = vb + 14
        k(f"""v_lshrrev_b32 v5, 4, {v(vL)}
              v_lshlrev_b32 {v(r)}, 10, v5
              v_bfe_u32 v22, {v(vL)}, 2, 2
              v_lshl_add_u32 {v(r)}, v22, 7, {v(r)}
              v_and_b32 v5, 1, v5
              v_lshrrev_b32 v22, 1, v22
              v_lshl_add_u32 v5, v5, 1, v22
              v_lshl_add_u32 {v(r)}, v5, 5, {v(r)}
              v_and_b32 v5, 3, {v(vL)}
              v_lshl_add_u32 {v(r)}, v5, 3, {v(r)}
              s_mul_i32 {s(T[10])}, {s(sW)}, 12288
              s_add_u32 {s(T[10])}, {s(T[10])}, {L_WD}
              v_add_u32 {v(r)}, {s(T[10])}, {v(r)}
              v_xor_b32 {v(r+1)}, 32, {v(r)}
              v_xor_b32 {v(r+2)}, 64, {v(r)}
              v_xor_b32 {v(r+3)}, 96, {v(r)}
              s_mul_i32 {s(T[11])}, {s(sW)}, {8*57344}""")
    def wd_items(self):
        k = self.k; vb = self.WDV; L = []; dm = {}; rd = {}
        def issue(U):
            for g in range(4):
                n = 4*U + g
                if n % 7 == 0 and n: L.append(Item(f"s_add_u32 {s(T[11])}, {s(T[11])}, 57344"))
                L.append(Item(f"s_add_u32 m0, {s(T[10])}, {(U % 3)*4096 + g*1024}"))
                dm[n] = Item(f"buffer_load_dwordx4 {v(vb + n % 14)}, {s(RD,4)}, {s(T[11])} offen lds"); L.append(dm[n])
        issue(0); issue(1)
        for U in range(14):
            if U + 2 < 14:
                if U >= 1: L.append(Item(fn=lambda U=U: k.wait(rd[U-1].tok)))
                issue(U + 2)
            L.append(Item(fn=lambda U=U: k.wait(dm[4*U+3].tok)))
            for nt in range(4):
                for hf in range(2):
                    rd[U] = Item(f"ds_read_b64_tr_b16 {a((4*U+nt)*4 + 2*hf, 2)}, {v(vb+14+nt)} offset:{(U % 3)*4096 + hf*512}")
                    L.append(rd[U])
        return L

    def phase0(self):
        k = self.k
        k(f"""v_lshrrev_b32 v5, 4, {v(vL)}
              v_bfe_u32 v48, {v(vL)}, 2, 2
              v_lshl_add_u32 v49, v5, 4, v48
              v_lshlrev_b32 v49, 7, v49
              v_bfe_u32 v50, {v(vL)}, 1, 1
              s_lshl_b32 {s(T[0])}, {s(sW)}, 1
              v_add_u32 v50, {s(T[0])}, v50
              v_and_b32 v48, 2, v48
              v_xor_b32 v50, v50, v48
              v_and_b32 v48, 1, v5
              v_lshlrev_b32 v48, 2, v48
              v_xor_b32 v50, v50, v48
              v_lshl_add_u32 v49, v50, 4, v49
              v_and_b32 v48, 1, {v(vL)}
              v_lshl_add_u32 v49, v48, 3, v49
              v_add_u32 v49, {L_K}, v49
              v_xor_b32 v50, 64, v49
              v_lshlrev_b32 v51, 12, v27
              v_lshl_add_u32 v51, v5, 5, v51
              s_lshl_b32 {s(T[6])}, {s(sJ)}, 7
              s_add_u32 {s(T[6])}, {s(T[6])}, {WS_KVT}
              v_lshlrev_b32 v52, 5, {v(vP31)}
              s_lshl_b32 {s(T[7])}, {s(sX)}, 12
              s_add_u32 {s(T[7])}, {s(T[7])}, {WS_XCCF}
              s_lshl_b32 {s(T[0])}, {s(sX)}, 9
              s_lshl_b32 {s(T[1])}, {s(sW)}, 7
              s_lshl_b32 {s(T[2])}, {s(sJ)}, 2
              s_add_u32 {s(T[1])}, {s(T[1])}, {s(T[2])}
              s_add_u32 {s(T[0])}, {s(T[0])}, {WS_KVF}
              s_add_u32 {s(T[5])}, {s(T[1])}, {s(T[0])}
              s_xor_b32 {s(T[0])}, {s(sN)}, {s(sXCC)}
              s_mov_b32 {s(sMODE)}, 0
              s_mov_b32 {s(sEXP)}, {s(sN)}""")
        k.wait(self.sh_tok)
        k("s_barrier")
        self.stamp('kv_in')
        xh = k(f"buffer_load_dword v53, v52, {s(RW,4)}, {s(T[7])} offen sc1")
        KR, VR, KS, O, VU, P = 56, 68, 78, 88, 104, 120
        k(f"ds_read_b64_tr_b16 {v(KR,2)}, v50 offset:512")
        for i in range(4): k(f"ds_read_b64_tr_b16 {v(KR+2+2*i,2)}, v49 offset:{1024 + 512*i}")
        for i in range(4): lastv = k(f"ds_read_b64_tr_b16 {v(VR+2*i,2)}, v49 offset:{L_V - L_K + 512*i}")
        k("v_alignbit_b32 v54, v30, v30, 16\nv_alignbit_b32 v55, v31, v31, 16")
        k.wait(('lg', lastv[1] - 4))
        for aa in range(-1, 8): k(f"v_alignbit_b32 {v(KS+1+aa)}, {v(KR+2+aa)}, {v(KR+1+aa)}, 16")
        for aa in range(8):
            k(f"v_dot2_f32_bf16 {v(O+2*aa)}, {v(KS+aa)}, v55, 0")
            k(f"v_dot2_f32_bf16 {v(O+2*aa+1)}, {v(KR+1+aa)}, v55, 0")
        for aa in range(8):
            k(f"v_dot2_f32_bf16 {v(O+2*aa)}, {v(KS+1+aa)}, v54, {v(O+2*aa)}")
            k(f"v_dot2_f32_bf16 {v(O+2*aa+1)}, {v(KR+2+aa)}, v54, {v(O+2*aa+1)}")
        k.wait(lastv)
        for g in range(2):
            for aa in range(4*g, 4*g+4):
                k(f"v_lshlrev_b32 {v(VU+2*aa)}, 16, {v(VR+aa)}")
                k(f"v_and_b32 {v(VU+2*aa+1)}, 0xffff0000, {v(VR+aa)}")
            for aa in range(4*g, 4*g+4): k(f"v_pk_mul_f32 {v(O+2*aa,2)}, {v(O+2*aa,2)}, {v(VU+2*aa,2)}")
            for e in range(4): k(f"v_cvt_pk_bf16_f32 {v(P+4*g+e)}, {v(O+8*g+7-2*e)}, {v(O+8*g+6-2*e)}")
            st = k(f"buffer_store_dwordx4 {v(P+4*g,4)}, v51, {s(RW,4)}, {s(T[6])} offen offset:{16*g}")
        self.stamp('kv_st')
        self.toeplitz_write()
        slow, back, done = k.label(), k.label(), k.label()
        k.wait(xh)
        k(f"v_cmp_ne_u32 vcc, {s(T[0])}, v53\ns_cbranch_vccnz {slow}")
        k.place(back)
        self.tail.append([f"{slow}:",
            f"buffer_load_dword v53, v52, {s(RW,4)}, {s(T[7])} offen sc1", "s_waitcnt vmcnt(0)",
            f"v_xor_b32 v54, {s(sN)}, v53", "v_cmp_lt_u32 vcc, 15, v54", f"s_cbranch_vccz {done}",
            f"s_sub_u32 {s(sSPIN)}, {s(sSPIN)}, 1", f"s_cbranch_scc0 {slow}", "s_branch L_END",
            f"{done}:", f"v_cmp_ne_u32 vcc, {s(T[0])}, v53", f"s_cbranch_vccz {back}",
            f"s_mov_b32 {s(sMODE)}, 1", f"s_not_b32 {s(sEXP)}, {s(sN)}", f"s_branch {back}"])
        self.publish(st, s(T[5]))
        self.stamp('kv_pub')

    def toeplitz_write(self):
        k = self.k
        k.wait(self.h_tok)
        k(f"v_add_u32 v48, {SCR}, v29")
        for ch in range(2):
            k(f"ds_write_b128 v48, {v(32+8*ch,4)} offset:{H_E(ch) - SCR}")
            k(f"ds_write_b128 v48, {v(36+8*ch,4)} offset:{H_O(ch) - SCR}")
        skip = k.label()
        k(f"s_cmp_lg_u32 {s(sW)}, 0\ns_cbranch_scc1 {skip}")
        k(f"""v_readfirstlane_b32 {s(T[1])}, v32
              v_readfirstlane_b32 {s(T[2])}, v40
              v_cmp_eq_u32 vcc, 28, {v(vP7)}
              v_add_u32 v49, {SCR}, {v(vP7)}
              s_lshl_b32 {s(T[1])}, {s(T[1])}, 16
              s_lshl_b32 {s(T[2])}, {s(T[2])}, 16
              v_mov_b32 v50, 0
              v_mov_b32 v51, 0
              v_mov_b32 v54, {s(T[1])}
              v_mov_b32 v55, {s(T[2])}
              v_cndmask_b32 v54, v50, v54, vcc
              v_cndmask_b32 v55, v50, v55, vcc
              ds_write_b32 v49, v50 offset:{H_E(0) - 32 - SCR}
              ds_write_b32 v49, v50 offset:{H_E(1) - 32 - SCR}
              ds_write_b32 v49, v54 offset:{H_O(0) - 32 - SCR}
              ds_write_b32 v49, v55 offset:{H_O(1) - 32 - SCR}
              v_lshlrev_b32 v49, 3, {v(vL)}
              v_add_u32 v49, {L_U}, v49
              ds_write_b64 v49, v[50:51]
              ds_write_b64 v49, v[50:51] offset:{U_S}""")
        k.place(skip)

    def toeplitz_read(self):
        k = self.k
        k(f"""v_and_b32 v48, 15, {v(vL)}
              v_lshrrev_b32 v49, 4, {v(vL)}
              v_lshlrev_b32 v49, 3, v49
              v_sub_u32 v48, v48, v49
              v_add_u32 v48, 9, v48
              v_and_b32 v49, 1, v48
              v_sub_u32 v48, v48, v49
              v_lshlrev_b32 v48, 1, v48
              v_mul_u32_u24 v49, {H_O(0) - H_E(0)}, v49
              v_add_u32 v48, v48, v49
              s_lshr_b32 {s(T[0])}, {s(sW)}, 1
              s_mul_i32 {s(T[0])}, {s(T[0])}, {H_E(1) - H_E(0)}
              s_and_b32 {s(T[1])}, {s(sW)}, 1
              s_lshl_b32 {s(T[1])}, {s(T[1])}, 8
              s_add_u32 {s(T[0])}, {s(T[0])}, {s(T[1])}
              s_add_u32 {s(T[0])}, {s(T[0])}, {H_E(0)}
              v_add_u32 v56, {s(T[0])}, v48""")
        for p in range(1, 8): k(f"v_add_u32 {v(56+p)}, {512*p}, v56")
        k.wait_lg0()
        k("s_barrier")
        self.toep = []
        for rr in range(4):
            for p in range(8):
                d = (rr*8 + p)*4
                self.toep.append(f"ds_read2_b32 {a(d,2)}, {v(56+p)} offset0:{16*rr} offset1:{16*rr+1}")
                self.toep.append(f"ds_read2_b32 {a(d+2,2)}, {v(56+p)} offset0:{16*rr+2} offset1:{16*rr+3}")
        n0 = self.o.get('toep0', 64)
        for x in self.toep[:n0]: k(x)
        self.toep = self.toep[n0:]

    def conv(self):
        k = self.k; o = self.o
        k(f"""s_lshl_b32 {s(T[0])}, {s(sX)}, 9
              s_lshr_b32 {s(T[1])}, {s(sJ)}, 3
              s_lshl_b32 {s(T[1])}, {s(T[1])}, 7
              s_add_u32 {s(T[0])}, {s(T[0])}, {s(T[1])}
              s_add_u32 {s(T[7])}, {s(T[0])}, {WS_KVF}
              s_lshl_b32 {s(T[0])}, {s(sX)}, 18
              s_lshl_b32 {s(T[1])}, {s(sJ)}, 13
              s_lshl_b32 {s(T[2])}, {s(sW)}, 11
              s_add_u32 {s(T[0])}, {s(T[0])}, {s(T[1])}
              s_add_u32 {s(T[0])}, {s(T[0])}, {s(T[2])}
              s_add_u32 {s(T[3])}, {s(T[0])}, {WS_KVT}
              s_lshr_b32 {s(T[0])}, {s(sW)}, 1
              s_mul_i32 {s(T[4])}, {s(T[0])}, {U_S}
              s_add_u32 {s(T[4])}, {s(T[4])}, {L_U + 512}
              s_and_b32 {s(T[1])}, {s(sW)}, 1
              s_lshl_b32 {s(T[2])}, {s(T[1])}, 11
              s_add_u32 {s(T[5])}, {s(T[4])}, {s(T[2])}
              v_and_b32 v24, 15, {v(vL)}
              v_lshrrev_b32 v25, 4, {v(vL)}
              v_lshlrev_b32 v26, 5, v24
              v_lshl_add_u32 v26, v25, 4, v26
              s_lshl_b32 {s(T[1])}, {s(T[1])}, 8
              s_sub_u32 {s(T[4])}, {s(T[4])}, {s(T[1])}
              s_sub_u32 {s(T[4])}, {s(T[4])}, 224
              v_add_u32 v26, {s(T[4])}, v26
              v_lshlrev_b32 v27, 5, v24
              v_lshrrev_b32 v29, 1, v25
              v_lshl_add_u32 v27, v29, 4, v27
              v_and_b32 v29, 1, v25
              v_xor_b32 v29, 1, v29
              v_lshl_add_u32 v27, v29, 3, v27
              s_lshl_b32 {s(T[0])}, {s(sW)}, 10
              s_add_u32 {s(T[0])}, {s(T[0])}, {L_U + 512}
              v_add_u32 v27, {s(T[0])}, v27
              s_lshl_b32 {s(T[0])}, {s(sW)}, 13
              s_add_u32 {s(T[0])}, {s(T[0])}, {L_CRED}
              v_add_u32 v30, {s(T[0])}, {v(vL16)}
              s_lshl_b32 {s(T[0])}, {s(sW)}, 11
              s_add_u32 {s(T[0])}, {s(T[0])}, {L_CRED}
              v_add_u32 v31, {s(T[0])}, {v(vL16)}
              v_lshlrev_b32 v29, 6, v24
              v_lshl_add_u32 v29, v25, 4, v29
              s_lshl_b32 {s(T[0])}, {s(sX)}, 5
              s_add_u32 {s(T[8])}, {s(T[0])}, {s(sJ)}
              s_lshl_b32 {s(T[0])}, {s(T[8])}, 13
              s_lshl_b32 {s(T[1])}, {s(sW)}, 11
              s_add_u32 {s(T[0])}, {s(T[0])}, {s(T[1])}
              s_add_u32 {s(T[6])}, {s(T[0])}, {WS_YP}
              s_lshl_b32 {s(T[0])}, {s(sW)}, 8
              s_add_u32 {s(T[0])}, {s(T[0])}, {s(T[8])}
              s_mul_i32 {s(T[0])}, {s(T[0])}, {o.get('yfs', 32)}
              s_add_u32 {s(T[9])}, {s(T[0])}, {WS_YF}""")
        self.stamp('toep')
        self.poll(vP31, s(T[7]))
        self.stamp('kv_seen')
        k(f"s_mov_b32 m0, {s(T[5])}")
        k(f"buffer_load_dwordx4 {v(vL16)}, {s(RW,4)}, {s(T[3])} offen sc1 lds")
        tok = k(f"buffer_load_dwordx4 {v(vL16)}, {s(RW,4)}, {s(T[3])} offen offset:1024 sc1 lds")
        self.w1_dma(o.get('n2a', 2))
        for x in self.toep: k(x)
        k.wait(tok); k.wait_lg0()
        k("s_barrier")
        self.stamp('u_in')
        B, C = 64, 96
        bt = {}
        def rdB(rr, q): bt[(rr, q)] = k(f"ds_read_b128 {v(B+4*q,4)}, v26 offset:{512*q + 64*(3-rr)}")
        for q in range(8): rdB(0, q)
        n2 = o.get('n2', 10); cnt = 0; gap = 120 // max(n2, 1)
        for rr in range(4):
            for q in range(8):
                k.wait(bt[(rr, q)])
                for p in range(8 - q):
                    c = C + 4*(p+q)
                    src = '0' if (rr == 0 and q == 0) else v(c, 4)
                    k(f"v_mfma_f32_16x16x32_bf16 {v(c,4)}, {a((rr*8+p)*4,4)}, {v(B+4*q,4)}, {src}")
                    cnt += 1
                    if n2 and cnt >= gap and p < 7 - q: self.w1_dma(1); n2 -= 1; cnt = 0
                if rr < 3: rdB(rr+1, q)
        self.stamp('conv_mfma')
        KV, P = 32, 128
        for tt in range(2):
            for ch in range(2): k(f"ds_read_b64 {v(KV+4*tt+2*ch,2)}, v27 offset:{512*tt + ch*U_S}")
        for c in range(8): k(f"ds_write_b128 v30, {v(C+4*c,4)} offset:{1024*c}")
        k.wait_lg0()
        k("s_barrier")
        for tt in range(2):
            for w in range(4): lastp = k(f"ds_read_b128 {v(P+16*tt+4*w,4)}, v31 offset:{8192*w + 1024*tt}")
        for tt in range(2):
            k.wait(('lg', lastp[1] - 4*(1-tt)))
            b = P + 16*tt
            for ch in range(2):
                for e in (0, 2): k(f"v_pk_add_f32 {v(b+8*ch+e,2)}, {v(b+8*ch+e,2)}, {v(b+8*ch+4+e,2)}")
            for ch in range(2):
                for e in range(4):
                    k(f"v_dot2_f32_bf16 {v(b+8*ch+e)}, {v(KV+4*tt+2*ch+(1-(e>>1)))}, {s(sD+2*ch+(1-(e&1)))}, {v(b+8*ch+e)}")
            for e in range(4): k(f"v_cvt_pk_bf16_f32 {v(b+4+e)}, {v(b+e)}, {v(b+8+e)}")
            st = k(f"buffer_store_dwordx4 {v(b+4,4)}, v29, {s(RW,4)}, {s(T[6])} offen offset:{1024*tt} sc1")
        self.stamp('y_st')
        self.q_stats()
        self.publish(st, s(T[9]), local=False)
        self.stamp('y_pub')

    def stats(self, rows, out, t0, scale=None):
        L = []; n = len(rows)
        for i, x in enumerate(rows):
            b = t0 + 6*i
            L += [f"v_pk_add_f32 {v(b,2)}, {v(x,2)}, {v(x+2,2)}", f"v_pk_mul_f32 {v(b+2,2)}, {v(x,2)}, {v(x,2)}",
                  f"v_pk_add_f32 {v(b+4,2)}, {v(x+4,2)}, {v(x+6,2)}"]
            L += [f"v_pk_fma_f32 {v(b+2,2)}, {v(x+e,2)}, {v(x+e,2)}, {v(b+2,2)}" for e in (2, 4, 6)]
            L += [f"v_pk_add_f32 {v(b,2)}, {v(b,2)}, {v(b+4,2)}", f"v_add_f32 {v(b+2)}, {v(b+2)}, {v(b+3)}", f"v_add_f32 {v(b)}, {v(b)}, {v(b+1)}"]
        for ctl in ("row_ror:8 row_mask:0xf", "row_ror:4 row_mask:0xf", "row_ror:2 row_mask:0xf", "row_ror:1 row_mask:0xf",
                    "row_bcast:15 row_mask:0xa", "row_bcast:31 row_mask:0xc"):
            for i in range(n):
                for e in (2, 0):
                    r = t0 + 6*i + e
                    L.append(f"v_add_f32_dpp {v(r)}, {v(r)}, {v(r)} {ctl} bank_mask:0xf")
        for i in range(n):
            b = t0 + 6*i
            L += [f"v_mul_f32 {v(b)}, 0x3b000000, {v(b)}", f"v_mul_f32 {v(b+2)}, 0x3b000000, {v(b+2)}",
                  f"v_fma_f32 {v(b+2)}, -{v(b)}, {v(b)}, {v(b+2)}", f"v_max_f32 {v(b+2)}, 0, {v(b+2)}",
                  f"v_add_f32 {v(b+2)}, 0x3727c5ac, {v(b+2)}", f"v_rsq_f32 {v(b+2)}, {v(b+2)}"]
            if scale: L.append(f"v_mul_f32 {v(b+2)}, {f32(scale)}, {v(b+2)}")
            L += [f"v_mul_f32_e64 {v(b)}, -{v(b)}, {v(b+2)}", f"v_readlane_b32 {s(out[i])}, {v(b+2)}, 63",
                  f"v_readlane_b32 {s(out[i]+2)}, {v(b)}, 63", f"s_mov_b32 {s(out[i]+1)}, {s(out[i])}",
                  f"v_mov_b32 {v(b+4)}, {s(out[i]+2)}", f"v_mov_b32 {v(b+5)}, {s(out[i]+2)}"]
        return L
    def unpack(self, dst, src):
        L = []
        for e in range(4): L += [f"v_lshlrev_b32 {v(dst+2*e)}, 16, {v(src+e)}", f"v_and_b32 {v(dst+2*e+1)}, 0xffff0000, {v(src+e)}"]
        return L
    def affine(self, dst, x, sp, vb):
        return [f"v_pk_fma_f32 {v(dst+e,2)}, {v(x+e,2)}, {s(sp,2)}, {v(vb,2)}" for e in (0, 2, 4, 6)]
    def run(self, L, look=12):
        its = [Item(x) for x in L]
        Queue(self.k, its, look).drain()
        return its

    def gate_norm(self, halves, nrm, layer, R):
        L = []; sp = [36, 40]
        t0 = R + 16*len(halves)
        for i, h in enumerate(halves):
            L += self.unpack(R + 16*i, YS[h])
            L += [f"v_pk_fma_f32 {v(XS[h]+e,2)}, {v(nrm[h]+e,2)}, {v(R+16*i+e,2)}, {v(XS[h]+e,2)}" for e in (0, 2, 4, 6)]
        L += self.stats([XS[h] for h in halves], sp[:len(halves)], t0, LOG2E)
        for i, h in enumerate(halves):
            b = R + 16*i
            L += self.affine(b, XS[h], sp[i], t0 + 6*i + 4)
            L += [f"v_cvt_pk_bf16_f32 {v(b+8+e)}, {v(b+2*e)}, {v(b+2*e+1)}" for e in range(4)]
            L.append(f"buffer_store_dwordx4 {v(b+8,4)}, {v(vAst)}, {s(RW,4)}, {s(sHALF) if h else 0} offen")
            if layer == 1:
                L += [f"v_cvt_pk_bf16_f32 {v(b+12+e)}, {v(XS[h]+2*e)}, {v(XS[h]+2*e+1)}" for e in range(4)]
                L.append(f"buffer_store_dwordx4 {v(b+12,4)}, {v(vL16)}, {s(RW,4)}, {s(sFR[h])} offen")
        return L

    N0 = [40, 48]
    def q_stats(self):
        k = self.k
        k.wait(self.q_tok)
        L = []
        for h in range(2): L += self.unpack(XS[h], 222 + 4*h)
        L += self.stats(XS, [36, 40], 176)
        for h in range(2): L += self.affine(self.N0[h], XS[h], [36, 40][h], 176 + 6*h + 4)
        self.run(L)

    def y_in(self):
        k = self.k; o = self.o
        yfs = o.get('yfs', 32)
        k(f"""v_mul_u32_u24 v24, {yfs}, v0
              s_lshr_b32 {s(T[0])}, {s(sX)}, 1
              s_mul_i32 {s(T[0])}, {s(T[0])}, {256*yfs}
              s_add_u32 {s(T[7])}, {s(T[0])}, {WS_YF}
              v_lshlrev_b32 v25, 13, v0
              s_lshl_b32 {s(T[0])}, {s(sX)}, 10
              s_lshl_b32 {s(T[1])}, {s(sJ)}, 5
              s_add_u32 {s(T[0])}, {s(T[0])}, {s(T[1])}
              s_add_u32 {s(T[6])}, {s(T[0])}, {WS_YP}
              v_lshlrev_b32 v26, 2, v0
              v_add_u32 v26, {L_YT}, v26
              s_lshl_b32 {s(T[0])}, {s(sW)}, 10
              s_add_u32 {s(T[0])}, {s(T[0])}, {L_YT}
              v_add_u32 v27, {s(T[0])}, {v(vL16)}""")
        self.w1_dma(o.get('n3', 6))
        self.w1_relayout_addr()
        self.wd_addr()
        if self.w1_next >= 14 + o.get('n3', 6): self.w1_relayout(0, 134); self.rl0 = True
        else: self.rl0 = False
        self.stamp('rl0')
        self.poll(24, s(T[7]), local=False)
        self.stamp('y_seen')
        t0 = k(f"buffer_load_dwordx4 v[32:35], v25, {s(RW,4)}, {s(T[6])} offen sc1")
        t1 = k(f"buffer_load_dwordx4 v[36:39], v25, {s(RW,4)}, {s(T[6])} offen offset:16 sc1")
        self.w1_dma(o.get('n4', 4))
        k("s_barrier")
        k.wait(t0)
        for e in range(4): k(f"ds_write_b32 v26, {v(32+e)} offset:{1024*e}")
        k.wait(t1)
        for e in range(4): k(f"ds_write_b32 v26, {v(36+e)} offset:{1024*(4+e)}")
        k.wait_lg0()
        k("s_barrier")
        for h in range(2): k(f"ds_read_b128 {v(YS[h],4)}, v27 offset:{4096*h}")
        k.wait_lg0()
        self.stamp('y_in')
        its = self.run(self.gate_norm([0, 1], self.N0, 0, 56))
        sts = [x.tok for x in its if 'store' in x.text]
        self.stamp('a_st')
        self.publish(sts[0], s(sAFs), 0)
        self.publish(sts[1], s(sAFs), 512)
        k(f"s_or_b32 {s(T[0])}, s2, {s(sW)}\ns_cmp_eq_u32 {s(T[0])}, 0\ns_cselect_b32 {s(T[0])}, 0, 0x80000000")
        k(f"buffer_store_dword {v(vNON)}, {v(vL0)}, {s(RW,4)}, {s(T[0])} offen sc1")
        self.stamp('a_pub')
        self.w1_dma(28)
        if not self.rl0: self.w1_relayout(0, 134)
        self.w1_relayout(1, 134)
        k.wait_lg0()
        k("s_barrier")
        self.stamp('w1')

    def epilogue1(self, B, half, off, pk):
        L = []; so = s(sHH) if half else '0'
        def grp(g, u, n, outs, t):
            for e in range(n): L.append(f"v_exp_f32_e64 {v(t+e)}, -{v(g+e)}")
            if pk:
                for e in range(0, n, 2): L.append(f"v_pk_mul_f32 {v(u+e,2)}, {v(g+e,2)}, {v(u+e,2)}")
                for e in range(0, n, 2): L.append(f"v_pk_fma_f32 {v(t+e,2)}, {v(t+e,2)}, {s(sC2,2)}, {s(sC2,2)}")
            else:
                for e in range(n): L.append(f"v_mul_f32 {v(u+e)}, {v(g+e)}, {v(u+e)}")
                for e in range(n): L.append(f"v_fma_f32 {v(t+e)}, {v(t+e)}, {s(sC2)}, {s(sC2)}")
            for e in range(n): L.append(f"v_rcp_f32 {v(t+e)}, {v(t+e)}")
            if pk:
                for e in range(0, n, 2): L.append(f"v_pk_mul_f32 {v(u+e,2)}, {v(u+e,2)}, {v(t+e,2)}")
            else:
                for e in range(n): L.append(f"v_mul_f32 {v(u+e)}, {v(u+e)}, {v(t+e)}")
            for e in range(0, n, 2): L.append(f"v_cvt_pk_bf16_f32 {v(outs[e//2])}, {v(u+e)}, {v(u+e+1)}")
        grp(B, B+4, 4, [B, B+1], TMP)
        grp(B+8, B+12, 4, [B+2, B+3], TMP+4)
        L.append(f"buffer_store_dwordx4 {v(B,4)}, {v(vHm)}, {s(RW,4)}, {so} offen offset:{off}")
        grp(B+16, B+20, 4, [B+8, B+9], TMP)
        grp(B+24, B+26, 2, [B+10], TMP+4)
        Z, C, A_ = B+4, B+5, B+6
        L += [f"v_mov_b32 {v(C)}, {v(B+8)}", f"v_mov_b32 {v(A_)}, {v(B+9)}", f"v_mov_b32 {v(Z)}, {v(B+10)}",
              f"v_permlane32_swap_b32 {v(A_)}, {v(B+11)}", f"v_permlane32_swap_b32 {v(C)}, {v(Z)}",
              f"v_permlane16_swap_b32 {v(Z)}, {v(B+11)}",
              f"buffer_store_dwordx4 {v(B+8,4)}, {v(vHt)}, {s(RW,4)}, {so} offen offset:{off}"]
        return L

    def a_plan(self, layer):
        ring = [AR + 8*i for i in range(4)]
        reg = {}
        if layer == 0 and self.o.get('deep', 1):
            pool = ring + [ACC[1] + 8*i for i in range(4)]
            order = [4, 5, 6, 7, 0, 1, 2, 3]
            for gs in range(12): reg[gs] = pool[order[gs % 8]]
            for gs in range(12, 32): reg[gs] = ring[gs % 4]
        else:
            for gs in range(32): reg[gs] = ring[gs % 4]
        issue = {}
        for gs in range(32):
            prev = [p for p in range(gs) if reg[p] == reg[gs]]
            issue[gs] = prev[-1] + 1 if prev else -1
        return reg, issue

    def gemm1_start(self, layer):
        k = self.k
        self.wt, self.at = {}, {}
        self.areg, self.aiss = self.a_plan(layer)
        for Tt in range(7): self.rdW(0, Tt)
    def rdW(self, gs, Tt):
        st = gs % 16
        base, o = (vL16, st*7168) if st < 8 else (vW1, (st-8)*7168)
        self.wt[(gs, Tt)] = self.k(f"ds_read_b128 {v(WF + 28*(gs&1) + 4*Tt, 4)}, {v(base)} offset:{o + 1024*Tt}")
    def ldA(self, gs, mt):
        st = gs % 16
        self.at[(gs, mt)] = self.k(f"buffer_load_dwordx4 {v(self.areg[gs] + 4*mt, 4)}, {v(vAld[gs // 16])}, {s(RW,4)}, {k4(st>>1)} offen offset:{((st&1)*2+mt)*1024} sc1")

    def gemm1(self, layer):
        k = self.k; o = self.o
        lo = 1024*layer
        self.poll(vP31, s(sAFp), lo)
        self.stamp(f'a_seen{layer}')
        todo = sorted(range(32), key=lambda g: g)
        nxtA = 0
        while self.aiss[nxtA] < 0:
            for mt in range(2): self.ldA(nxtA, mt)
            nxtA += 1
        firstB = min(self.aiss[g] for g in range(16, 32))
        queues = []
        if layer == 0:
            queues.append(Queue(k, self.poll_items(vP31, s(sAFp), lo + 512, 14*2, 14*(firstB - 2))))
            wdq = Queue(k, self.wd_items()); queues.append(wdq)
            burst = None
        else:
            box = []
            s0 = o.get('rowb_at', 3)
            its = self.poll_items(vP7, s(sFFp), 512, 14*(s0 - 3), 14*(s0 - 2) + 7)
            fld = Item(f"buffer_load_dwordx4 {v(ACC[1],4)}, {v(vL16)}, {s(RW,4)}, {s(sFR[1])} offen sc1"); its.append(fld)
            queues.append(Queue(k, its))
            burst = s0
        epi = None
        for gs in range(32):
            ps, st = divmod(gs, 16)
            if gs == burst:
                queues[0].drain(); k.wait(fld.tok)
                self.stamp('rowB_go')
                sts = self.rowop(1, ACC[1])
                self.stamp('rowB')
                queues = [Queue(k, self.publish_items(lambda: sts, s(sAFs), lo + 512, 14*(gs + 2))
                                + self.poll_items(vP31, s(sAFp), lo + 512, 14*(firstB - 4), 14*(firstB - 1) - 4))]
            if gs == firstB: queues[0].drain()
            if gs == 16:
                for q in queues: q.drain()
                epi = [Item(x, at=14*16 + 4) for x in self.epilogue1(ACC[0], 0, 0, 0) + self.epilogue1(ACC[0] + 28, 0, 256, 0)]
                last = epi[-1]
                queues = [Queue(k, epi, 14), Queue(k, [])]
                pub = False
            if epi and not pub and not len(queues[0]):
                queues[1].q += self.publish_items(lambda: last.tok, s(sHFs), lo, 14*(gs + 1)); pub = True
            fixed = [[] for _ in range(14)]
            if gs + 1 < 32:
                for Tt in range(7): fixed[2*(Tt // 2)].append(('W', gs+1, Tt))
            slot = 6
            while nxtA < 32 and self.aiss[nxtA] <= gs and slot <= 10:
                fixed[slot].append(('A', nxtA, 0)); fixed[slot+2].append(('A', nxtA, 1)); nxtA += 1; slot += 4
            k.wait(self.at[(gs, 1)], self.wt[(gs, 6)])
            for i in range(14):
                Tt, mt = divmod(i, 2)
                d = ACC[ps] + 28*mt + 4*Tt
                k(f"v_mfma_f32_16x16x32_bf16 {v(d,4)}, {v(WF + 28*(gs&1) + 4*Tt, 4)}, {v(self.areg[gs] + 4*mt, 4)}, {'0' if st == 0 else v(d,4)}")
                for it in fixed[i]:
                    if it[0] == 'W': self.rdW(it[1], it[2])
                    else: self.ldA(it[1], it[2])
                cap = 2 - len(fixed[i]) - (1 if i == 13 else 0)
                for q in queues: cap = q.fill(cap, 14*gs + i)
            if gs == 15: self.stamp(f'g1a{layer}')
        print('layer', layer, 'left after G1B:', [q.cost() for q in queues], 'published' if pub else 'not published')
        queues[0].drain()
        if not pub: queues[1].q += self.publish_items(lambda: last.tok, s(sHFs), lo, 0)
        queues[1].drain()
        self.stamp(f'g1b{layer}')
        self.ht = {}
        ph = self.poll_issue(vP7, s(sHFp), lo)
        epi = [Item(x) for x in self.epilogue1(ACC[1], 1, 0, 1) + self.epilogue1(ACC[1] + 28, 1, 256, 1)]
        q = Queue(k, epi, 12)
        total = q.cost()
        lead = o.get('epi_lead', 70); nld = o.get('epi_ld', 8)
        while total - q.cost() < lead:
            if q.fill(3) == 3: q.emit(q.q[0])
        self.poll_check(ph)
        self.stamp(f'hA_seen{layer}')
        self.nxtH = 0
        marks = [lead + (total - lead)*i // nld for i in range(nld)]
        while len(q):
            while marks and total - q.cost() >= marks[0]: marks.pop(0); self.ldH(0)
            if q.fill(3) == 3: q.emit(q.q[0])
        self.hB_tok = epi[-1].tok
        self.stamp(f'epiB{layer}')

    def hreg(self, n):
        if n < 14: return ACC[0] + 4*n
        if n < 28: return WF + 4*(n - 14)
        if n < 42: return ACC[1] + 4*(n - 28)
        return ACC[0] + 4*(n - 42)
    def ldH(self, _=0):
        n = self.nxtH; self.nxtH += 1
        half, r = divmod(n, 28); U, mt = divmod(r, 2)
        self.ht[n] = self.k(f"buffer_load_dwordx4 {v(self.hreg(n),4)}, {v(vHld[half])}, {s(RW,4)}, {k4(U>>1)} offen offset:{(U&1)*2048 + mt*256} sc1")

    def red_write(self, A2):
        return [f"ds_write_b128 {v(vRw)}, {v(A2 + 16*mt + 4*nt, 4)} offset:{4352*mt + 64*nt}" for mt in range(2) for nt in range(4)]
    def red_read(self, P):
        return [f"ds_read_b128 {v(P + 8*w + 4*hf, 4)}, {v(vRr)} offset:{8704*w + 16*hf}" for w in range(4) for hf in range(2)]
    def red_sum(self, P, half, layer, X3, pk):
        L = []
        def add(d, x, y):
            if pk: L.extend(f"v_pk_add_f32 {v(d+e,2)}, {v(x+e,2)}, {v(y+e,2)}" for e in (0, 2, 4, 6))
            else: L.extend(f"v_add_f32 {v(d+e)}, {v(x+e)}, {v(y+e)}" for e in range(8))
        add(P, P, P+8); add(P+16, P+16, P+24)
        if layer == 1:
            L += self.unpack(P+8, X3); add(P, P, P+8)
        add(P, P, P+16)
        L += [f"v_cvt_pk_bf16_f32 {v(P+8+e)}, {v(P+2*e)}, {v(P+2*e+1)}" for e in range(4)]
        if layer == 0: L.append(f"buffer_store_dwordx4 {v(P+8,4)}, {v(vF2)}, {s(RW,4)}, {s(sHALF) if half else 0} offen")
        else: L.append(f"buffer_store_dwordx4 {v(P+8,4)}, {v(vO)}, {s(RO,4)}, {k4(half)} offen{self.o.get('ost', '')}")
        return L

    def gemm2(self, layer):
        k = self.k; o = self.o
        lo = 1024*layer
        AC2 = [AR, WF]
        X3 = [TMP, TMP + 4]
        LA = o.get('g2la', 8)
        FR = WF + 32
        qs = [Queue(k, self.publish_items(lambda: self.hB_tok, s(sHFs), lo + 512, o.get('hb_pub', 20))
                    + self.poll_items(vP7, s(sHFp), lo + 512, o.get('hb_pi', 56), o.get('hb_pc', 84)))]
        xt = {}
        for gU in range(28):
            half, U = divmod(gU, 14)
            if gU == 14:
                self.stamp(f'g2a{layer}')
                L = [Item(x, at=8*14 + 4) for x in self.red_write(AC2[0])]
                L += [Item(fn=lambda: k.wait_lg0(), at=8*16), Item(fn=lambda: k("s_barrier"))]
                L += [Item(x) for x in self.red_read(AR)]
                L += [Item(fn=lambda: k.wait_lg0(), at=8*19)]
                if layer == 1: L += [Item(fn=lambda: k.wait(xt[0]))]
                L += [Item(x) for x in self.red_sum(AR, 0, layer, X3[0], 0)]
                fA = L[-1]
                if layer == 0:
                    L += self.publish_items(lambda: fA.tok, s(sFFs), 0, o.get('fa_pub', 8*25))
                qs = [Queue(k, L)]
            k.wait(self.ht[2*gU + 1])
            for i in range(8):
                mt, nt = divmod(i, 4)
                d = AC2[half] + 16*mt + 4*nt
                k(f"v_mfma_f32_16x16x32_bf16 {v(d,4)}, {a((4*U+nt)*4,4)}, {v(self.hreg(2*gU + mt),4)}, {'0' if U == 0 else v(d,4)}")
                cap = 2 - (1 if i == 7 else 0)
                lim = 2*gU + LA + 2 if (half or not len(qs[0])) else min(28, 2*gU + LA + 2)
                if i in (0, 2, 4, 6) and self.nxtH < min(56, lim) and (self.nxtH < 42 or self.nxtH - 42 < 2*gU):
                    self.ldH(); cap -= 1
                    if layer == 1 and self.nxtH in (28, 56):
                        h = self.nxtH // 28 - 1
                        xt[h] = k(f"buffer_load_dwordx4 {v(X3[h],4)}, {v(vF2)}, {s(RW,4)}, {s(sHALF) if h else 0} offen sc1"); cap -= 1
                        if h == 1 and o.get('wbl2', 1): self.writeback()
                for q in qs: cap = q.fill(cap, 8*gU + i)
            if gU == 13:
                qs[0].drain()
                while self.nxtH < 28 + LA: self.ldH()
        print('layer', layer, 'left after G2B:', qs[0].cost())
        qs[0].drain()
        self.stamp(f'g2b{layer}')
        if layer == 0:
            ph = self.poll_issue(vP7, s(sFFp), 0)
        k("s_barrier")
        for x in self.red_write(AC2[1]): k(x)
        if layer == 0:
            self.poll_check(ph)
            self.stamp('fA_seen')
            fld = k(f"buffer_load_dwordx4 {v(ACC[1],4)}, {v(vL16)}, {s(RW,4)}, {s(sFR[0])} offen sc1")
        k.wait_lg0(); k("s_barrier")
        for x in self.red_read(ACC[0]): k(x)
        k.wait_lg0()
        if layer == 1: k.wait(xt[1])
        fB = self.run(self.red_sum(ACC[0], 1, layer, X3[1], 1))[-1].tok
        self.stamp(f'fB_st{layer}')
        if layer == 0:
            self.gemm1_start(1)
            k.wait(fld)
            sts = self.rowop(0, ACC[1], lambda: self.publish(fB, s(sFFs), 512))
            self.stamp('rowA')
            self.publish(sts, s(sAFs), 1024)
            self.stamp('aA_pub')

    def writeback(self):
        k = self.k
        a_, b_ = k.label(), k.label()
        k(f"s_or_b32 {s(T[2])}, {s(sJ)}, {s(sW)}\ns_cmp_lg_u32 {s(T[2])}, 0\ns_cbranch_scc1 {a_}")
        k("buffer_wbl2 sc1")
        k(f"s_branch {b_}"); k.place(a_)
        k.ins.append(I(f"buffer_load_dword {v(vPT)}, {v(vL0)}, {s(RW,4)}, 0 offen"))
        k.place(b_)

    def rowop(self, h, R, mid=None):
        L = self.unpack(R + 8, R)
        L += [f"v_pk_add_f32 {v(XS[h]+e,2)}, {v(XS[h]+e,2)}, {v(R+8+e,2)}" for e in (0, 2, 4, 6)]
        L += self.stats([XS[h]], [36], R + 16)
        L += self.affine(R + 8, XS[h], 36, R + 20)
        self.run(L)
        if mid: mid()
        its = self.run(self.gate_norm([h], {h: R + 8}, 1, R + 24))
        return [x.tok for x in its if 'store' in x.text][-1]

    def build(self):
        k = self.k; o = self.o
        self.prologue()
        self.persistent()
        self.w1_addr()
        self.w1_dma(o.get('n0', 0))
        self.phase0()
        self.q_load()
        self.w1_dma(o.get('n1', 2))
        self.toeplitz_read()
        self.conv()
        self.y_in()
        self.gemm1_start(0)
        for layer in range(2):
            self.gemm1(layer)
            self.gemm2(layer)
        if o.get('stamps'):
            self.stamp('end')
            k(f"""s_lshl_b32 {s(T[0])}, s2, 2
                  s_add_u32 {s(T[0])}, {s(T[0])}, {s(sW)}
                  s_lshl_b32 {s(T[0])}, {s(T[0])}, 8
                  s_add_u32 {s(T[0])}, {s(T[0])}, {WS_DBG}
                  v_lshrrev_b32 v5, 2, {v(vL16)}
                  buffer_store_dword {v(vST[0])}, v5, {s(RW,4)}, {s(T[0])} offen
                  s_add_u32 {s(T[0])}, {s(T[0])}, 0x40000
                  buffer_store_dword {v(vST[1])}, v5, {s(RW,4)}, {s(T[0])} offen""")
        k.place("L_END")
        k("s_endpgm")
        body = k.text()
        for t in self.tail:
            body += "".join((x + "\n") if x.endswith(':') else ("    " + x + "\n") for x in t)
        body += "L_LAST:\n"
        return body

def file_text(opt):
    g = Gen(opt)
    body = g.build()
    ref = open(os.path.join(os.path.dirname(os.path.abspath(__file__)), '..', 'cdna_kernels', NAME + '.s.ref')).read()
    head = ref[:ref.index('; Override launch geometry')]
    txt = head + f"""; @launch grid=(256,1,1) block=(256,1,1) lds={LDS_SIZE}
.amdgcn_target "amdgcn-amd-amdhsa--gfx950"
.text
.globl {NAME}_kernel
.p2align 8
.type {NAME}_kernel,@function
{NAME}_kernel:
{body}.section .rodata,"a"
.p2align 6
.amdhsa_kernel {NAME}_kernel
  .amdhsa_next_free_vgpr 512
  .amdhsa_next_free_sgpr 102
  .amdhsa_accum_offset 256
  .amdhsa_group_segment_fixed_size 0
  .amdhsa_kernarg_size 104
  .amdhsa_user_sgpr_count 2
  .amdhsa_user_sgpr_kernarg_segment_ptr 1
  .amdhsa_system_sgpr_workgroup_id_x 1
.end_amdhsa_kernel
"""
    return txt, g

if __name__ == '__main__':
    import json
    opt = {}; out = None
    for x in sys.argv[1:]:
        if '=' in x:
            kk, vv = x.split('=')
            opt[kk] = vv.split(',') if kk == 'only' else (' ' + vv.replace('+', ' ') if kk == 'ost' else int(vv, 0))
        else: out = x
    txt, g = file_text(opt)
    open(out, 'w').write(txt)
    json.dump(g.stamps, open(out + '.stamps.json', 'w'))
    print('instructions', len(g.k.ins), 'nops added', g.k.nops_added, 'stamps', len(g.stamps))
```

```python
import sys, os
sys.path.insert(0, os.path.dirname(os.path.abspath(__file__)))
from dsl import *

NAME = 'interleave_layers__ssm_conv_h3__swiglu_ffn__prompt'

WS_XCCF = 0x1000
WS_KVF  = 0x10000
WS_AF   = 0x11000
WS_HF   = 0x19000
WS_FF   = 0x21000
WS_YF   = 0x30000
WS_JF   = 0x50000
WS_KVT  = 0x100000
WS_F    = WS_KVT
WS_YP   = 0x300000
WS_A    = 0x500000
WS_H    = 0x700000
WS_WDT  = 0xE00000
WS_DBG  = 0x1000000
WS_SIZE = 0x1100000
H_X, H_HALF, H_RB = 917504, 458752, 114688

LDS_SIZE = 163840
SCR   = 114688
L_K   = SCR
L_V   = L_K + 9216
L_H   = L_V + 8192
H_CP  = 4096 + 128
H_E   = lambda ch: L_H + ch * 2 * H_CP + 64
H_O   = lambda ch: L_H + ch * 2 * H_CP + H_CP + 128
L_U   = L_H + 4 * H_CP + 128
U_S   = 4608
assert L_U + 2 * U_S <= LDS_SIZE
L_CRED = SCR
assert L_CRED + 32768 <= L_U
L_YT  = L_U
L_JOB = 114688 - 16384
L_RED = SCR

sX, sJ, sW, sN, sEXP, sSPIN, sXCC, sMODE = 4, 5, 6, 7, 8, 9, 10, 11
T = list(range(12, 24))
sC2 = 24
sHALF = 26
sW1S, sW1L = 27, 3
sD = 28
sDP = 34
RK, RV, RH, RQ, RG, RU, RD, RO, RW, RS = 44, 48, 52, 56, 60, 64, 68, 72, 76, 80
sK4 = 83
def k4(i): return '0' if i == 0 else s(sK4 + i)
sHH = 91
sAFp, sAFs, sHFp, sHFs, sFFp, sFFs = 94, 95, 96, 97, 98, 99
sFR = [100, 101]
sST = (32, 92)
sKVFp, sKVs, sUm0, sYst, sYFs, sYFp, sYld, sJF, sJL, sJFp = 44, 45, 46, 47, 48, 49, 50, 51, 52, 53

vL, vL16, vL0, vNON, vPT = 1, 2, 3, 4, 5
vAld, vHld = [6, 7], [8, 9]
vHm, vHt, vAst, vF2, vO, vRw, vRr, vP31, vP7, vW1 = 10, 11, 12, 13, 14, 15, 16, 17, 18, 19
vST = (20, 21)
vWd = [230, 231]
ACC = [22, 78]
WF, AR, TMP = 134, 190, 222
YS, XS = [232, 236], [240, 248]
LOG2E = 1.4426950408889634

def f32(x):
    import struct
    return '0x%08x' % struct.unpack('<I', struct.pack('<f', x))[0]

def flist(c):
    if c < 4: return [4*c + e for e in range(4)] + [16 + 4*c + e for e in range(4)]
    q = c - 4; X = [44, 46, 54][q]
    return [32 + 4*q + e for e in range(4)] + [48 + 2*q, 49 + 2*q, X, X + 1]

class Gen:
    def __init__(self, opt):
        self.o = opt
        self.k = K()
        self.tail = []
        self.stamps = []
        self.w1_next = 0
        self.w1_tok = {}

    def stamp(self, name):
        dg = self.o.get('diag')
        if dg and name in dg:
            k = self.k
            k(f"s_memrealtime {s(sST[0],2)}"); k.wait_lg0()
            k(f"v_mov_b32 {v(vST[dg.index(name)])}, {s(sST[0])}")
        if not self.o.get('stamps'): return
        only = self.o.get('only')
        if only and name not in only: return
        k = self.k; n = len(self.stamps)
        k(f"s_memrealtime {s(sST[0],2)}\ns_memtime {s(sST[1],2)}"); k.wait_lg0()
        k(f"v_writelane_b32 {v(vST[0])}, {s(sST[0])}, {n}\nv_writelane_b32 {v(vST[1])}, {s(sST[1])}, {n}")
        self.stamps.append(name)

    def srd(self, base, size):
        self.k(f"s_mov_b32 {s(base+2)}, {size}\ns_mov_b32 {s(base+3)}, 0x20000")

    def poll_issue(self, vaddr, soff, off=0, vt=vPT):
        txt = f"buffer_load_dword {v(vt)}, {v(vaddr)}, {s(RW,4)}, {soff} offen offset:{off} sc1"
        return (self.k(txt), txt, vt)

    def poll_steps(self, get, local=True):
        k = self.k
        slow, back, ok = k.label(), k.label(), k.label()
        def s1(): k.wait(get()[0])
        def s2(): k(f"v_cmp_ne_u32 vcc, {s(sEXP if local else sN)}, {v(get()[2])}")
        def s3():
            k(f"s_cbranch_vccnz {slow}"); k.place(back)
            _, txt, vt = get()
            t = [f"{slow}:", txt, "s_waitcnt vmcnt(0)", f"v_cmp_ne_u32 vcc, {s(sN)}, {v(vt)}", f"s_cbranch_vccz {ok}",
                 f"s_sub_u32 {s(sSPIN)}, {s(sSPIN)}, 1", f"s_cbranch_scc0 {slow}", "s_branch L_END", f"{ok}:"]
            if local: t += [f"s_cmp_eq_u32 {s(sMODE)}, 0", f"s_cbranch_scc1 {back}", "buffer_inv sc1", "s_waitcnt vmcnt(0)"]
            self.tail.append(t + [f"s_branch {back}"])
        return [s1, s2, s3]

    def poll_check(self, h, local=True):
        for f in self.poll_steps(lambda: h, local): f()
    def poll(self, vaddr, soff, off=0, local=True):
        self.poll_check(self.poll_issue(vaddr, soff, off), local)
    def poll_items(self, vaddr, soff, off, at_issue, at_check):
        box = []
        it = [Item(fn=lambda: box.append(self.poll_issue(vaddr, soff, off)), at=at_issue)]
        return it + [Item(fn=f, at=at_check) for f in self.poll_steps(lambda: box[0])]

    def flag_store(self, soff, off=0, local=True):
        k = self.k
        txt = f"buffer_store_dword {v(vNON)}, {v(vL0)}, {s(RW,4)}, {soff} offen offset:{off}"
        if not local: return k(txt + " sc1")
        slow, back = k.label(), k.label()
        k(f"s_cmp_lg_u32 {s(sMODE)}, 0\ns_cbranch_scc1 {slow}")
        r = k(txt); k.place(back)
        self.tail.append([f"{slow}:", "s_waitcnt vmcnt(0)", "buffer_wbl2 sc1", "s_waitcnt vmcnt(0)", txt + " sc1", f"s_branch {back}"])
        return r
    def publish(self, tok, soff, off=0, local=True):
        self.k.wait(tok)
        return self.flag_store(soff, off, local)
    def publish_items(self, get, soff, off, at):
        return [Item(fn=lambda: self.k.wait(get()), at=at), Item(fn=lambda: self.flag_store(soff, off), cost=2, at=at)]

    def dma(self, vaddr, srd, soff, m0, extra=''):
        self.k(m0)
        return self.k(f"buffer_load_dwordx4 {v(vaddr)}, {s(srd,4)}, {soff} offen {extra} lds".replace('  ', ' '))

    def prologue(self):
        k = self.k
        k("s_cmp_ge_u32 s2, 256\ns_cbranch_scc1 L_END")
        if self.o.get('stamps'): k(f"v_mov_b32 {v(vST[0])}, 0\nv_mov_b32 {v(vST[1])}, 0")
        self.stamp('entry')
        k(f"s_lshr_b32 {s(sJ)}, s2, 3")
        self.code_prefetch()
        for r, off in ((RK, 8), (RV, 16), (RW, 96), (RH, 32), (RS, 24), (RQ, 0), (RG, 56), (RU, 64), (RD, 72), (RO, 80)):
            k(f"s_load_dwordx2 {s(r,2)}, s[0:1], {off}")
        k(f"s_load_dwordx2 {s(sDP,2)}, s[0:1], 40")
        k(f"""s_and_b32 {s(sX)}, s2, 7
              v_lshrrev_b32 v5, 6, v0
              v_and_b32 {v(vL)}, 63, v0
              v_readfirstlane_b32 {s(sW)}, v5
              v_lshlrev_b32 {v(vL16)}, 4, {v(vL)}""")
        for r, size in ((RK, 2097152), (RV, 2097152), (RW, WS_SIZE), (RH, 2097152), (RS, 4096)): self.srd(r, size)

        k(f"""v_lshrrev_b32 v24, 3, {v(vL)}
              v_and_b32 v25, 7, {v(vL)}
              v_and_b32 v26, 2, v24
              v_xor_b32 v25, v25, v26
              s_and_b32 {s(T[0])}, {s(sW)}, 1
              s_lshl_b32 {s(T[0])}, {s(T[0])}, 2
              v_xor_b32 v25, {s(T[0])}, v25
              v_lshlrev_b32 v25, 4, v25
              v_lshl_add_u32 v25, v24, 10, v25
              s_lshl_b32 {s(T[0])}, {s(sJ)}, 16
              s_lshl_b32 {s(T[1])}, {s(sW)}, 14
              s_lshl_b32 {s(T[2])}, {s(sX)}, 7
              s_add_u32 {s(T[0])}, {s(T[0])}, {s(T[1])}
              s_add_u32 {s(T[0])}, {s(T[0])}, {s(T[2])}
              v_add_u32 v25, {s(T[0])}, v25
              v_xor_b32 v26, 64, v25
              v_subrev_u32 v26, 8192, v26
              s_lshl_b32 {s(T[1])}, {s(sW)}, 11
              s_add_u32 {s(T[2])}, {s(T[1])}, {L_K + 1024}
              s_add_u32 {s(T[3])}, {s(T[1])}, {L_V}
              s_movk_i32 {s(T[4])}, 8192
              v_and_b32 v27, 15, {v(vL)}
              s_lshl_b32 {s(T[0])}, {s(sX)}, 6
              s_lshl_b32 {s(T[1])}, {s(sW)}, 4
              s_add_u32 {s(T[1])}, {s(T[0])}, {s(T[1])}
              v_add_u32 v27, {s(T[1])}, v27
              v_lshlrev_b32 v28, 3, v27
              s_lshl_b32 {s(T[1])}, {s(sJ)}, 1
              s_add_u32 {s(T[0])}, {s(T[0])}, {s(T[1])}
              s_lshl_b32 {s(T[5])}, {s(T[0])}, 1
              s_lshl_b32 {s(T[6])}, {s(T[0])}, 12
              s_add_u32 {s(T[7])}, {s(T[6])}, 4096
              v_lshlrev_b32 v29, 4, v0""")
        k.wait_lg0()
        self.stamp('start')
        k(f"s_load_dword {s(sN)}, {s(RW,2)}, 0")
        k(f"s_load_dword {s(sD)}, {s(sDP,2)}, {s(T[5])}")
        self.dma(25, RK, '0', f"s_mov_b32 m0, {s(T[2])}")
        self.dma(25, RV, '0', f"s_mov_b32 m0, {s(T[3])}")
        self.dma(25, RK, s(T[4]), f"s_add_u32 m0, {s(T[2])}, 1024")
        self.dma(25, RV, s(T[4]), f"s_add_u32 m0, {s(T[3])}, 1024")
        skip = k.label()
        k(f"s_cmp_lg_u32 {s(sW)}, 0\ns_cbranch_scc1 {skip}\ns_mov_b32 m0, {L_K}\ns_nop 0")
        k.ins.append(I(f"buffer_load_dwordx4 v26, {s(RK,4)}, 0 offen lds"))
        k.place(skip)
        self.sh_tok = k(f"buffer_load_dwordx2 v[30:31], v28, {s(RS,4)}, 0 offen")
        k(f"buffer_load_dwordx4 v[32:35], v29, {s(RH,4)}, {s(T[6])} offen")
        k(f"buffer_load_dwordx4 v[40:43], v29, {s(RH,4)}, {s(T[7])} offen")
        k(f"buffer_load_dwordx4 v[36:39], v29, {s(RH,4)}, {s(T[6])} offen offset:2")
        self.h_tok = k(f"buffer_load_dwordx4 v[44:47], v29, {s(RH,4)}, {s(T[7])} offen offset:2")
        k(f"""s_getreg_b32 {s(sXCC)}, hwreg(HW_REG_XCC_ID, 0, 4)
              v_cmp_eq_u32 vcc, 0, {v(vL)}
              v_mov_b32 v5, 0x80000000
              s_lshl_b32 {s(T[1])}, {s(sX)}, 5
              s_add_u32 {s(T[1])}, {s(T[1])}, {s(sJ)}
              s_lshl_b32 {s(T[1])}, {s(T[1])}, 7
              s_add_u32 {s(T[1])}, {s(T[1])}, {WS_XCCF}
              v_cndmask_b32 {v(vL0)}, v5, 0, vcc""")
        k.wait_lg0()
        k(f"""s_mul_i32 {s(sN)}, {s(sN)}, 1664525
              s_add_u32 {s(sN)}, {s(sN)}, 1013904223
              s_xor_b32 {s(T[0])}, {s(sN)}, {s(sXCC)}
              v_mov_b32 v5, {s(T[0])}
              v_mov_b32 {v(vNON)}, {s(sN)}""")
        k(f"buffer_store_dword v5, {v(vL0)}, {s(RW,4)}, {s(T[1])} offen sc1")
        for r, size in ((RQ, 2097152), (RG, 1835008), (RU, 1835008), (RD, 1835008), (RO, 2097152)): self.srd(r, size)
        k(f"""s_lshr_b32 {s(sD+2)}, {s(sD)}, 16
              s_and_b32 {s(sD+3)}, {s(sD)}, 0xffff0000
              s_lshl_b32 {s(sD+1)}, {s(sD)}, 16
              s_and_b32 {s(sD)}, {s(sD)}, 0xffff
              s_mov_b32 {s(sC2)}, {f32(LOG2E*LOG2E)}
              s_mov_b32 {s(sC2+1)}, {f32(LOG2E*LOG2E)}
              s_mov_b32 {s(sSPIN)}, {self.o.get('spin', 400000)}
              s_mov_b32 {s(sHALF)}, 0x20000
              s_mov_b32 {s(sHH)}, {H_HALF}
              v_and_b32 {v(vP31)}, 31, {v(vL)}
              v_lshlrev_b32 {v(vP31)}, 2, {v(vP31)}
              v_and_b32 {v(vP7)}, 7, {v(vL)}
              v_lshlrev_b32 {v(vP7)}, 2, {v(vP7)}""")
        for i in range(1, 8): k(f"s_movk_i32 {s(sK4+i)}, {4096*i}")

    def code_prefetch(self):
        if not self.o.get('cpf', 1): return
        k = self.k
        k(f"s_getpc_b64 {s(T[2],2)}")
        k.place("L_PC")
        k(f"""s_mul_i32 {s(T[4])}, {s(sJ)}, ((L_LAST-L_PC+4095)/4096)*128
              v_min_u32 v5, (L_LAST-L_PC+4095)/4096-1, v0
              v_lshl_add_u32 v5, v5, 7, {s(T[4])}
              v_min_u32 v5, L_LAST-L_PC-4, v5
              global_load_dword v219, v5, {s(T[2],2)}""")

    def tlb_touch(self):
        if not self.o.get('tlb', 1): return
        k = self.k
        k(f"v_and_b32 v5, 15, {v(vL)}\nv_lshlrev_b32 v5, 20, v5")
        k(f"buffer_load_dword v220, v5, {s(RW,4)}, 0 offen offset:512")
        k(f"buffer_load_dword v221, v5, {s(RO,4)}, 0 offen")
        k(f"buffer_load_dword v196, v5, {s(RG,4)}, 0 offen")
        k(f"buffer_load_dword v197, v5, {s(RU,4)}, 0 offen")
        k(f"buffer_load_dword v198, v5, {s(RQ,4)}, 0 offen")

    def q_load(self):
        k = self.k
        k(f"""s_lshl_b32 {s(T[0])}, {s(sX)}, 8
              s_lshl_b32 {s(T[1])}, {s(sJ)}, 3
              s_add_u32 {s(T[0])}, {s(T[0])}, {s(T[1])}
              s_add_u32 {s(T[0])}, {s(T[0])}, {s(sW)}
              s_lshl_b32 {s(T[0])}, {s(T[0])}, 10
              s_add_u32 {s(T[1])}, {s(T[0])}, 4096""")
        k(f"buffer_load_dwordx4 v[204:207], {v(vL16)}, {s(RQ,4)}, {s(T[0])} offen")
        self.q_tok = k(f"buffer_load_dwordx4 v[208:211], {v(vL16)}, {s(RQ,4)}, {s(T[1])} offen")

    def persistent(self):
        k = self.k
        k(f"""s_lshl_b32 {s(T[0])}, {s(sJ)}, 2
              s_add_u32 {s(T[0])}, {s(T[0])}, {s(sW)}
              s_lshl_b32 {s(T[8])}, {s(sX)}, 18
              s_lshl_b32 {s(T[9])}, {s(sX)}, 12
              s_lshr_b32 {s(T[10])}, {s(sJ)}, 3
              s_and_b32 {s(T[11])}, {s(sJ)}, 7
              s_lshl_b32 {s(T[1])}, {s(T[0])}, 2
              s_add_u32 {s(T[1])}, {s(T[1])}, {s(T[9])}
              s_add_u32 {s(sAFs)}, {s(T[1])}, {WS_AF}
              s_lshl_b32 {s(T[1])}, {s(sW)}, 7
              s_add_u32 {s(T[1])}, {s(T[1])}, {s(T[9])}
              s_add_u32 {s(sAFp)}, {s(T[1])}, {WS_AF}
              s_lshl_b32 {s(T[2])}, {s(sJ)}, 2
              s_add_u32 {s(T[1])}, {s(T[1])}, {s(T[2])}
              s_add_u32 {s(sHFs)}, {s(T[1])}, {WS_HF}
              s_lshl_b32 {s(T[1])}, {s(T[10])}, 7
              s_lshl_b32 {s(T[2])}, {s(sW)}, 5
              s_add_u32 {s(T[1])}, {s(T[1])}, {s(T[2])}
              s_add_u32 {s(T[1])}, {s(T[1])}, {s(T[9])}
              s_add_u32 {s(sHFp)}, {s(T[1])}, {WS_HF}
              s_lshl_b32 {s(T[2])}, {s(T[11])}, 2
              s_add_u32 {s(T[1])}, {s(T[1])}, {s(T[2])}
              s_add_u32 {s(sFFs)}, {s(T[1])}, {WS_FF}
              s_lshr_b32 {s(T[1])}, {s(sJ)}, 1
              s_lshl_b32 {s(T[1])}, {s(T[1])}, 5
              s_add_u32 {s(T[1])}, {s(T[1])}, {s(T[9])}
              s_add_u32 {s(sFFp)}, {s(T[1])}, {WS_FF}
              s_lshl_b32 {s(T[1])}, {s(T[0])}, 10
              s_add_u32 {s(T[1])}, {s(T[1])}, {s(T[8])}
              s_add_u32 {s(sFR[0])}, {s(T[1])}, {WS_F}
              s_add_u32 {s(sFR[1])}, {s(T[1])}, {WS_F + 0x20000}
              s_lshr_b32 {s(T[1])}, {s(T[0])}, 5
              s_lshl_b32 {s(T[1])}, {s(T[1])}, 15
              s_bfe_u32 {s(T[2])}, {s(T[0])}, 0x10004
              s_lshl_b32 {s(T[2])}, {s(T[2])}, 10
              s_and_b32 {s(T[3])}, {s(T[0])}, 15
              s_lshl_b32 {s(T[3])}, {s(T[3])}, 4
              s_add_u32 {s(T[1])}, {s(T[1])}, {s(T[2])}
              s_add_u32 {s(T[1])}, {s(T[1])}, {s(T[3])}
              s_add_u32 {s(T[1])}, {s(T[1])}, {s(T[8])}
              s_add_u32 {s(T[1])}, {s(T[1])}, {WS_A}
              v_lshrrev_b32 v5, 2, {v(vL)}
              v_lshlrev_b32 v5, 11, v5
              v_and_b32 {v(vAst)}, 3, {v(vL)}
              v_lshl_add_u32 {v(vAst)}, {v(vAst)}, 8, v5
              v_add_u32 {v(vAst)}, {s(T[1])}, {v(vAst)}
              s_lshl_b32 {s(T[1])}, {s(sW)}, 15
              s_add_u32 {s(T[1])}, {s(T[1])}, {s(T[8])}
              s_add_u32 {s(T[1])}, {s(T[1])}, {WS_A}
              v_add_u32 {v(vAld[0])}, {s(T[1])}, {v(vL16)}
              v_add_u32 {v(vAld[1])}, 0x20000, {v(vAld[0])}
              v_add_u32 {v(vW1)}, 57344, {v(vL16)}
              v_lshrrev_b32 v5, 4, {v(vL)}
              v_and_b32 v23, 15, {v(vL)}
              v_lshlrev_b32 v22, 9, v5
              v_lshl_add_u32 v22, v23, 4, v22
              s_mul_i32 {s(T[4])}, {s(sX)}, {H_X}
              s_add_u32 {s(T[4])}, {s(T[4])}, {WS_H}
              s_mul_i32 {s(T[1])}, {s(sW)}, {H_RB}
              s_mul_i32 {s(T[2])}, {s(sJ)}, 3584
              s_add_u32 {s(T[1])}, {s(T[1])}, {s(T[2])}
              s_add_u32 {s(T[1])}, {s(T[1])}, {s(T[4])}
              v_add_u32 {v(vHm)}, {s(T[1])}, v22
              s_mul_i32 {s(T[1])}, {s(T[10])}, {H_RB}
              s_mul_i32 {s(T[2])}, {s(sW)}, 28672
              s_add_u32 {s(T[1])}, {s(T[1])}, {s(T[2])}
              s_add_u32 {s(T[1])}, {s(T[1])}, {s(T[4])}
              v_add_u32 {v(vHld[0])}, {s(T[1])}, v22
              v_add_u32 {v(vHld[1])}, {H_HALF}, {v(vHld[0])}
              v_cmp_gt_u32 vcc, 48, {v(vL)}
              v_add_u32 {v(vHt)}, 2048, {v(vHm)}
              v_mov_b32 v22, 0x80000000
              v_mul_u32_u24 {v(vRw)}, 272, v23
              v_cndmask_b32 {v(vHt)}, v22, {v(vHt)}, vcc
              v_lshl_add_u32 {v(vRw)}, v5, 4, {v(vRw)}
              s_mul_i32 {s(T[1])}, {s(sW)}, 8704
              s_add_u32 {s(T[1])}, {s(T[1])}, {L_RED}
              v_add_u32 {v(vRw)}, {s(T[1])}, {v(vRw)}
              v_lshrrev_b32 v5, 3, {v(vL)}
              v_mul_u32_u24 {v(vRr)}, 272, v5
              v_lshl_add_u32 {v(vRr)}, {v(vP7)}, 3, {v(vRr)}
              s_mul_i32 {s(T[1])}, {s(sW)}, {8*272}
              s_add_u32 {s(T[1])}, {s(T[1])}, {L_RED}
              v_add_u32 {v(vRr)}, {s(T[1])}, {v(vRr)}
              s_lshl_b32 {s(T[1])}, {s(T[10])}, 5
              s_lshl_b32 {s(T[2])}, {s(sW)}, 3
              s_add_u32 {s(T[1])}, {s(T[1])}, {s(T[2])}
              v_add_u32 v5, {s(T[1])}, v5
              s_lshl_b32 {s(T[2])}, {s(T[11])}, 7
              s_add_u32 {s(T[2])}, {s(T[2])}, {s(T[8])}
              v_lshl_add_u32 v22, {v(vP7)}, 2, {s(T[2])}
              v_lshl_add_u32 {v(vF2)}, v5, 10, v22
              v_add_u32 {v(vF2)}, {WS_F}, {v(vF2)}
              v_lshrrev_b32 v23, 2, v5
              v_and_b32 v5, 3, v5
              v_lshl_add_u32 v5, v23, 3, v5
              v_lshl_add_u32 {v(vO)}, v5, 10, v22""")

    W1V = 212
    def w1_addr(self):
        k = self.k; vb = self.W1V
        k(f"s_mul_i32 {s(T[0])}, {s(sJ)}, 112\ns_movk_i32 {s(T[1])}, 9363\ns_movk_i32 {s(T[2])}, {3584 - 7*16}")
        for i in range(7):
            k(f"""v_add_u32 v5, {64*i}, {v(vL)}
                  v_mul_u32_u24 {v(vb+i)}, {s(T[1])}, v5
                  v_lshrrev_b32 {v(vb+i)}, 16, {v(vb+i)}
                  v_mul_u32_u24 {v(vb+i)}, {s(T[2])}, {v(vb+i)}
                  v_lshl_add_u32 {v(vb+i)}, v5, 4, {v(vb+i)}
                  v_add_u32 {v(vb+i)}, {s(T[0])}, {v(vb+i)}""")
        k(f"s_mul_i32 {s(sW1S)}, {s(sW)}, 229376\ns_mul_i32 {s(sW1L)}, {s(sW)}, 14336")

    def w1_dma_text(self, n):
        ck, mat, i = n // 14, (n % 14) // 7, n % 7
        L = []
        if n == 14: L.append(f"s_add_u32 {s(sW1S)}, {s(sW1S)}, {4*229376}")
        L.append(f"s_add_u32 m0, {s(sW1L)}, {ck*57344 + mat*7168 + i*1024}")
        L.append(f"buffer_load_dwordx4 {v(self.W1V+i)}, {s(RU if mat else RG,4)}, {s(sW1S)} offen lds")
        return L
    def w1_dma(self, cnt):
        for _ in range(cnt):
            if self.w1_next >= 28: return
            n = self.w1_next; self.w1_next += 1
            for x in self.w1_dma_text(n): self.w1_tok[n] = self.k(x)

    RL = 222
    def w1_relayout_addr(self):
        k = self.k; r = self.RL
        k(f"""v_lshrrev_b32 v5, 4, {v(vL)}
              v_bfe_u32 {v(r)}, {v(vL)}, 2, 2
              v_lshl_add_u32 {v(r)}, v5, 3, {v(r)}
              v_mul_u32_u24 {v(r)}, 112, {v(r)}
              v_add_u32 {v(r)}, {s(sW1L)}, {v(r)}
              v_and_b32 {v(r+2)}, 3, {v(vL)}
              v_bfe_u32 {v(r+3)}, {v(vL)}, 1, 1
              v_mul_u32_u24 {v(r+3)}, 7168, {v(r+3)}
              v_and_b32 v22, 1, {v(vL)}
              v_lshl_add_u32 {v(r+3)}, v22, 3, {v(r+3)}
              v_add_u32 {v(r+1)}, {v(r)}, {v(r+3)}
              v_lshl_add_u32 {v(r)}, {v(r+2)}, 3, {v(r)}
              v_add_u32 {v(r+2)}, {s(sW1L)}, {v(vL16)}
              v_bfe_u32 {v(r+3)}, {v(vL)}, 1, 2
              v_lshlrev_b32 {v(r+3)}, 2, {v(r+3)}
              v_bfe_u32 v23, {v(vL)}, 3, 1
              v_lshl_add_u32 {v(r+3)}, v23, 1, {v(r+3)}
              v_add_u32 {v(r+3)}, {v(r+3)}, v22
              v_lshl_add_u32 {v(r+3)}, v5, 4, {v(r+3)}
              v_lshlrev_b32 {v(r+3)}, 4, {v(r+3)}
              v_add_u32 {v(r+3)}, {s(sW1L)}, {v(r+3)}""")
    def w1_relayout_items(self, ck, vtemp=False):
        k = self.k; r = self.RL
        R, a = (ACC[1], v) if vtemp else (128, globals()['a'])
        L = [Item(fn=lambda: k.wait(self.w1_tok[14*ck + 13]))]
        if ck == 1: L += [Item(f"v_add_u32 {v(r+i)}, 57344, {v(r+i)}") for i in range(4)]
        for sl in range(2):
            for Tt in range(7):
                for hf in range(2):
                    d = R + (sl*7 + Tt)*4 + 2*hf
                    o = (32*sl + 4*hf)*112
                    if Tt < 6: L.append(Item(f"ds_read_b64_tr_b16 {a(d,2)}, {v(r)} offset:{o + (Tt&1)*7168 + 32*(Tt>>1)}"))
                    else: L.append(Item(f"ds_read_b64_tr_b16 {a(d,2)}, {v(r+1)} offset:{o + 96}"))
        last = L[-1]
        L.append(Item(fn=lambda: k.wait(last.tok)))
        for n in range(14): L.append(Item(f"ds_write_b128 {v(r+3 if n % 7 == 6 else r+2)}, {a(R + n*4, 4)} offset:{n*1024}"))
        return L
    def w1_relayout(self, ck): Queue(self.k, self.w1_relayout_items(ck)).drain()

    JV = 190
    def wd_job_addr(self):
        k = self.k; r = self.JV
        k(f"""s_lshl_b32 {s(T[0])}, s2, 1
              s_lshr_b32 {s(T[1])}, {s(sW)}, 1
              s_add_u32 {s(T[0])}, {s(T[0])}, {s(T[1])}
              s_mul_i32 {s(T[1])}, {s(T[0])}, 4682
              s_lshr_b32 {s(T[1])}, {s(T[1])}, 16
              s_mul_i32 {s(T[2])}, {s(T[1])}, 14
              s_sub_u32 {s(T[2])}, {s(T[0])}, {s(T[2])}
              s_and_b32 {s(T[3])}, {s(T[1])}, 3
              s_lshr_b32 {s(T[1])}, {s(T[1])}, 2
              s_lshl_b32 {s(T[1])}, {s(T[1])}, 7
              s_mul_i32 {s(T[3])}, {s(T[3])}, {8*57344}
              s_add_u32 {s(T[1])}, {s(T[1])}, {s(T[3])}
              s_cmp_lt_u32 s2, 224
              s_cselect_b32 {s(T[3])}, {s(sW)}, 0
              s_bitcmp1_b32 {s(T[3])}, 0
              s_cselect_b32 {s(T[3])}, 0, 0x80000000
              s_lshl_b32 {s(T[4])}, {s(T[0])}, 6
              s_add_u32 {s(T[4])}, {s(T[4])}, {WS_JF}
              s_lshr_b32 {s(sJF)}, {s(T[3])}, 1
              s_or_b32 {s(sJF)}, {s(sJF)}, {s(T[4])}
              s_lshl_b32 {s(T[0])}, {s(T[0])}, 12
              s_add_u32 {s(T[0])}, {s(T[0])}, {WS_WDT}
              s_or_b32 {s(T[0])}, {s(T[0])}, {s(T[3])}
              s_or_b32 {s(T[1])}, {s(T[1])}, {s(T[3])}
              v_add_u32 {v(r+5)}, {s(T[0])}, {v(vL16)}
              v_lshrrev_b32 v5, 3, {v(vL)}
              v_and_b32 v22, 3, v5
              v_lshlrev_b32 v22, 3, v22
              v_cmp_gt_u32 vcc, 4, v5
              v_lshl_add_u32 v23, {v(vP7)}, 2, {s(T[1])}
              s_lshl_b32 {s(T[2])}, {s(T[2])}, 2""")
        for g in range(4):
            k(f"""s_add_u32 {s(T[0])}, {s(T[2])}, {g}
                  s_mul_i32 {s(T[1])}, {s(T[0])}, 9363
                  s_lshr_b32 {s(T[1])}, {s(T[1])}, 16
                  s_mul_i32 {s(T[3])}, {s(T[1])}, 7
                  s_sub_u32 {s(T[0])}, {s(T[0])}, {s(T[3])}
                  s_mul_i32 {s(T[1])}, {s(T[1])}, 56
                  s_mul_i32 {s(T[3])}, {s(T[0])}, 0x04040404
                  s_add_u32 {s(T[4])}, {s(T[3])}, 0x13121110
                  s_add_u32 {s(T[3])}, {s(T[3])}, 0x03020100
                  s_cmp_ge_u32 {s(T[0])}, 4
                  s_cselect_b32 {s(T[3])}, {s(T[4])}, {s(T[3])}
                  s_cselect_b32 {s(T[4])}, {sum(x << (8*e) for e, x in enumerate(flist(4)[4:]))}, {s(T[4])}
                  s_cmp_eq_u32 {s(T[0])}, 5
                  s_cselect_b32 {s(T[4])}, {sum(x << (8*e) for e, x in enumerate(flist(5)[4:]))}, {s(T[4])}
                  s_cmp_eq_u32 {s(T[0])}, 6
                  s_cselect_b32 {s(T[4])}, {sum(x << (8*e) for e, x in enumerate(flist(6)[4:]))}, {s(T[4])}
                  v_mov_b32 v5, {s(T[3])}
                  v_mov_b32 {v(r+g)}, {s(T[4])}
                  v_cndmask_b32 v5, {v(r+g)}, v5, vcc
                  v_bfe_u32 v5, v5, v22, 8
                  v_add_u32 v5, {s(T[1])}, v5
                  v_lshl_add_u32 {v(r+g)}, v5, 10, v23""")
        k(f"""s_lshl_b32 {s(sJL)}, {s(sW)}, 12
              s_add_u32 {s(sJL)}, {s(sJL)}, {L_JOB}
              v_lshrrev_b32 v5, 4, {v(vL)}
              v_lshlrev_b32 {v(r+4)}, 10, v5
              v_bfe_u32 v5, {v(vL)}, 2, 2
              v_lshl_add_u32 {v(r+4)}, v5, 7, {v(r+4)}
              v_and_b32 v5, 3, {v(vL)}
              v_lshl_add_u32 {v(r+4)}, v5, 3, {v(r+4)}
              v_add_u32 {v(r+4)}, {s(sJL)}, {v(r+4)}""")
    def wd_job_issue(self):
        for g in range(4): self.job_tok = self.dma(self.JV+g, RD, '0', f"s_add_u32 m0, {s(sJL)}, {1024*g}")
    def wd_job_finish(self):
        k = self.k; r = self.JV
        k.wait(self.job_tok)
        t = {}
        for nt in range(4):
            for hf in range(2): t[nt] = k(f"ds_read_b64_tr_b16 {a(128 + 4*nt + 2*hf, 2)}, {v(r+4)} offset:{hf*512 + nt*32}")
        for nt in range(4):
            k.wait(t[nt])
            self.job_st = k(f"buffer_store_dwordx4 {a(128 + 4*nt, 4)}, {v(r+5)}, {s(RW,4)}, 0 offen offset:{1024*nt} sc1")
    WDV = 226
    def wd_addr(self):
        self.k(f"""s_and_b32 {s(T[0])}, {s(sJ)}, 7
                   s_lshl_b32 {s(T[0])}, {s(T[0])}, 2
                   s_add_u32 {s(T[0])}, {s(T[0])}, {s(sW)}
                   s_mul_i32 {s(sJFp)}, {s(T[0])}, {14*64}
                   s_add_u32 {s(sJFp)}, {s(sJFp)}, {WS_JF}
                   s_mul_i32 {s(T[0])}, {s(T[0])}, {14*4096}
                   s_add_u32 {s(T[0])}, {s(T[0])}, {WS_WDT}
                   v_add_u32 {v(vWd[0])}, {s(T[0])}, {v(vL16)}
                   v_add_u32 {v(vWd[1])}, 32768, {v(vWd[0])}
                   v_min_u32 v226, 13, {v(vL)}
                   v_lshlrev_b32 v226, 6, v226
                   s_lshr_b32 {s(T[1])}, {s(sJ)}, 3
                   s_mul_i32 {s(T[1])}, {s(T[1])}, {112*128}
                   s_add_u32 {s(T[0])}, {s(T[0])}, {s(T[1])}
                   v_min_u32 v227, 55, {v(vL)}
                   v_lshl_add_u32 v227, v227, 7, {s(T[0])}""")
    def wd_touch_text(self, i):
        return f"buffer_load_dword {v(228+i)}, v227, {s(RW,4)}, {k4(i)} offen offset:{3072*i} sc1"
    def wd_text(self, n):
        U, nt = divmod(n, 4)
        return f"buffer_load_dwordx4 {a(4*n, 4)}, {v(vWd[U >> 3])}, {s(RW,4)}, {k4(U & 7)} offen offset:{1024*nt}{self.o.get('wdm', ' sc1')}"

    def phase0(self):
        k = self.k
        k(f"""v_lshrrev_b32 v5, 4, {v(vL)}
              v_bfe_u32 v48, {v(vL)}, 2, 2
              v_lshl_add_u32 v49, v5, 4, v48
              v_lshlrev_b32 v49, 7, v49
              v_bfe_u32 v50, {v(vL)}, 1, 1
              s_lshl_b32 {s(T[0])}, {s(sW)}, 1
              v_add_u32 v50, {s(T[0])}, v50
              v_and_b32 v48, 2, v48
              v_xor_b32 v50, v50, v48
              v_and_b32 v48, 1, v5
              v_lshlrev_b32 v48, 2, v48
              v_xor_b32 v50, v50, v48
              v_lshl_add_u32 v49, v50, 4, v49
              v_and_b32 v48, 1, {v(vL)}
              v_lshl_add_u32 v49, v48, 3, v49
              v_add_u32 v49, {L_K}, v49
              v_xor_b32 v50, 64, v49
              v_lshlrev_b32 v51, 12, v27
              v_lshl_add_u32 v51, v5, 5, v51
              s_lshl_b32 {s(T[6])}, {s(sJ)}, 7
              s_add_u32 {s(T[6])}, {s(T[6])}, {WS_KVT}
              v_lshlrev_b32 v52, 5, {v(vP31)}
              s_lshl_b32 {s(T[7])}, {s(sX)}, 12
              s_add_u32 {s(T[7])}, {s(T[7])}, {WS_XCCF}
              s_lshl_b32 {s(T[0])}, {s(sX)}, 9
              s_lshl_b32 {s(T[1])}, {s(sW)}, 7
              s_lshl_b32 {s(T[2])}, {s(sJ)}, 2
              s_add_u32 {s(T[1])}, {s(T[1])}, {s(T[2])}
              s_add_u32 {s(T[0])}, {s(T[0])}, {WS_KVF}
              s_add_u32 {s(T[5])}, {s(T[1])}, {s(T[0])}
              s_xor_b32 {s(T[0])}, {s(sN)}, {s(sXCC)}
              s_mov_b32 {s(sMODE)}, 0
              s_mov_b32 {s(sEXP)}, {s(sN)}""")
        k.wait(self.sh_tok)
        k("s_barrier")
        self.stamp('kv_in')
        xh = k(f"buffer_load_dword v53, v52, {s(RW,4)}, {s(T[7])} offen sc1")
        KR, VR, KS, O, VU, P = 56, 68, 78, 88, 104, 120
        k(f"ds_read_b64_tr_b16 {v(KR,2)}, v50 offset:512")
        for i in range(4): k(f"ds_read_b64_tr_b16 {v(KR+2+2*i,2)}, v49 offset:{1024 + 512*i}")
        for i in range(4): lastv = k(f"ds_read_b64_tr_b16 {v(VR+2*i,2)}, v49 offset:{L_V - L_K + 512*i}")
        k("v_alignbit_b32 v54, v30, v30, 16\nv_alignbit_b32 v55, v31, v31, 16")
        k.wait(('lg', lastv[1] - 4))
        for aa in range(-1, 8): k(f"v_alignbit_b32 {v(KS+1+aa)}, {v(KR+2+aa)}, {v(KR+1+aa)}, 16")
        for aa in range(8):
            k(f"v_dot2_f32_bf16 {v(O+2*aa)}, {v(KS+aa)}, v55, 0")
            k(f"v_dot2_f32_bf16 {v(O+2*aa+1)}, {v(KR+1+aa)}, v55, 0")
        for aa in range(8):
            k(f"v_dot2_f32_bf16 {v(O+2*aa)}, {v(KS+1+aa)}, v54, {v(O+2*aa)}")
            k(f"v_dot2_f32_bf16 {v(O+2*aa+1)}, {v(KR+2+aa)}, v54, {v(O+2*aa+1)}")
        k.wait(lastv)
        for g in range(2):
            for aa in range(4*g, 4*g+4):
                k(f"v_lshlrev_b32 {v(VU+2*aa)}, 16, {v(VR+aa)}")
                k(f"v_and_b32 {v(VU+2*aa+1)}, 0xffff0000, {v(VR+aa)}")
            for aa in range(4*g, 4*g+4): k(f"v_pk_mul_f32 {v(O+2*aa,2)}, {v(O+2*aa,2)}, {v(VU+2*aa,2)}")
            for e in range(4): k(f"v_cvt_pk_bf16_f32 {v(P+4*g+e)}, {v(O+8*g+7-2*e)}, {v(O+8*g+6-2*e)}")
            st = k(f"buffer_store_dwordx4 {v(P+4*g,4)}, v51, {s(RW,4)}, {s(T[6])} offen offset:{16*g}")
        self.stamp('kv_st')
        self.toeplitz_write()
        slow, back, done = k.label(), k.label(), k.label()
        k.wait(xh)
        k(f"v_cmp_ne_u32 vcc, {s(T[0])}, v53\ns_cbranch_vccnz {slow}")
        k.place(back)
        self.tail.append([f"{slow}:",
            f"buffer_load_dword v53, v52, {s(RW,4)}, {s(T[7])} offen sc1", "s_waitcnt vmcnt(0)",
            f"v_xor_b32 v54, {s(sN)}, v53", "v_cmp_lt_u32 vcc, 15, v54", f"s_cbranch_vccz {done}",
            f"s_sub_u32 {s(sSPIN)}, {s(sSPIN)}, 1", f"s_cbranch_scc0 {slow}", "s_branch L_END",
            f"{done}:", f"v_cmp_ne_u32 vcc, {s(T[0])}, v53", f"s_cbranch_vccz {back}",
            f"s_mov_b32 {s(sMODE)}, 1", f"s_not_b32 {s(sEXP)}, {s(sN)}", f"s_branch {back}"])
        self.publish(st, s(T[5]))
        self.stamp('kv_pub')

    def toeplitz_write(self):
        k = self.k
        k.wait(self.h_tok)
        k(f"v_add_u32 v48, {SCR}, v29")
        for ch in range(2):
            k(f"ds_write_b128 v48, {v(32+8*ch,4)} offset:{H_E(ch) - SCR}")
            k(f"ds_write_b128 v48, {v(36+8*ch,4)} offset:{H_O(ch) - SCR}")
        skip = k.label()
        k(f"s_cmp_lg_u32 {s(sW)}, 0\ns_cbranch_scc1 {skip}")
        k(f"""v_readfirstlane_b32 {s(T[1])}, v32
              v_readfirstlane_b32 {s(T[2])}, v40
              v_cmp_eq_u32 vcc, 28, {v(vP7)}
              v_add_u32 v49, {SCR}, {v(vP7)}
              s_lshl_b32 {s(T[1])}, {s(T[1])}, 16
              s_lshl_b32 {s(T[2])}, {s(T[2])}, 16
              v_mov_b32 v50, 0
              v_mov_b32 v51, 0
              v_mov_b32 v54, {s(T[1])}
              v_mov_b32 v55, {s(T[2])}
              v_cndmask_b32 v54, v50, v54, vcc
              v_cndmask_b32 v55, v50, v55, vcc
              ds_write_b32 v49, v50 offset:{H_E(0) - 32 - SCR}
              ds_write_b32 v49, v50 offset:{H_E(1) - 32 - SCR}
              ds_write_b32 v49, v54 offset:{H_O(0) - 32 - SCR}
              ds_write_b32 v49, v55 offset:{H_O(1) - 32 - SCR}
              v_lshlrev_b32 v49, 3, {v(vL)}
              v_add_u32 v49, {L_U}, v49
              ds_write_b64 v49, v[50:51]
              ds_write_b64 v49, v[50:51] offset:{U_S}""")
        k.place(skip)

    def front_addr(self):
        k = self.k; o = self.o; yfs = o.get('yfs', 32)
        k(f"""v_and_b32 v24, 15, {v(vL)}
              v_lshrrev_b32 v25, 4, {v(vL)}
              v_lshlrev_b32 v5, 3, v25
              v_sub_u32 v26, v24, v5
              v_add_u32 v26, 9, v26
              v_and_b32 v5, 1, v26
              v_sub_u32 v26, v26, v5
              v_lshlrev_b32 v26, 1, v26
              v_mul_u32_u24 v5, {H_O(0) - H_E(0)}, v5
              v_add_u32 v26, v26, v5
              s_lshr_b32 {s(T[0])}, {s(sW)}, 1
              s_mul_i32 {s(T[2])}, {s(T[0])}, {H_E(1) - H_E(0)}
              s_and_b32 {s(T[1])}, {s(sW)}, 1
              s_lshl_b32 {s(T[3])}, {s(T[1])}, 8
              s_add_u32 {s(T[2])}, {s(T[2])}, {s(T[3])}
              s_add_u32 {s(T[2])}, {s(T[2])}, {H_E(0)}
              v_add_u32 v152, {s(T[2])}, v26
              s_mul_i32 {s(T[4])}, {s(T[0])}, {U_S}
              s_add_u32 {s(T[4])}, {s(T[4])}, {L_U + 512}
              s_lshl_b32 {s(T[2])}, {s(T[1])}, 11
              s_add_u32 {s(sUm0)}, {s(T[4])}, {s(T[2])}
              s_sub_u32 {s(T[4])}, {s(T[4])}, {s(T[3])}
              s_sub_u32 {s(T[4])}, {s(T[4])}, 224
              v_lshlrev_b32 v140, 5, v24
              v_lshl_add_u32 v140, v25, 4, v140
              v_add_u32 v140, {s(T[4])}, v140
              s_lshl_b32 {s(T[0])}, {s(sX)}, 9
              s_lshr_b32 {s(T[1])}, {s(sJ)}, 3
              s_lshl_b32 {s(T[1])}, {s(T[1])}, 7
              s_add_u32 {s(T[0])}, {s(T[0])}, {s(T[1])}
              s_add_u32 {s(sKVFp)}, {s(T[0])}, {WS_KVF}
              s_lshl_b32 {s(T[0])}, {s(sX)}, 18
              s_lshl_b32 {s(T[1])}, {s(sJ)}, 13
              s_lshl_b32 {s(T[2])}, {s(sW)}, 11
              s_add_u32 {s(T[0])}, {s(T[0])}, {s(T[1])}
              s_add_u32 {s(T[0])}, {s(T[0])}, {s(T[2])}
              s_add_u32 {s(sKVs)}, {s(T[0])}, {WS_KVT}
              s_add_u32 {s(sYst)}, {s(T[0])}, {WS_YP}
              v_lshlrev_b32 v141, 5, v24
              v_lshrrev_b32 v5, 1, v25
              v_lshl_add_u32 v141, v5, 4, v141
              v_and_b32 v5, 1, v25
              v_xor_b32 v5, 1, v5
              v_lshl_add_u32 v141, v5, 3, v141
              s_lshl_b32 {s(T[0])}, {s(sW)}, 10
              s_add_u32 {s(T[1])}, {s(T[0])}, {L_U + 512}
              v_add_u32 v141, {s(T[1])}, v141
              s_add_u32 {s(T[1])}, {s(T[0])}, {L_YT}
              v_add_u32 v151, {s(T[1])}, {v(vL16)}
              s_lshl_b32 {s(T[0])}, {s(sW)}, 13
              s_add_u32 {s(T[0])}, {s(T[0])}, {L_CRED}
              v_add_u32 v142, {s(T[0])}, {v(vL16)}
              s_add_u32 {s(T[0])}, {s(T[2])}, {L_CRED}
              v_add_u32 v143, {s(T[0])}, {v(vL16)}
              v_lshlrev_b32 v144, 6, v24
              v_lshl_add_u32 v144, v25, 4, v144
              s_lshl_b32 {s(T[0])}, {s(sX)}, 5
              s_add_u32 {s(T[0])}, {s(T[0])}, {s(sJ)}
              s_lshl_b32 {s(T[1])}, {s(sW)}, 8
              s_add_u32 {s(T[0])}, {s(T[0])}, {s(T[1])}
              s_mul_i32 {s(T[0])}, {s(T[0])}, {yfs}
              s_add_u32 {s(sYFs)}, {s(T[0])}, {WS_YF}
              v_mul_u32_u24 v148, {yfs}, v0
              s_lshr_b32 {s(T[0])}, {s(sX)}, 1
              s_mul_i32 {s(T[0])}, {s(T[0])}, {256*yfs}
              s_add_u32 {s(sYFp)}, {s(T[0])}, {WS_YF}
              v_lshlrev_b32 v149, 13, v0
              s_lshl_b32 {s(T[0])}, {s(sX)}, 10
              s_lshl_b32 {s(T[1])}, {s(sJ)}, 5
              s_add_u32 {s(T[0])}, {s(T[0])}, {s(T[1])}
              s_add_u32 {s(sYld)}, {s(T[0])}, {WS_YP}
              v_lshlrev_b32 v150, 2, v0
              v_add_u32 v150, {L_YT}, v150""")
        for p in range(1, 8): k(f"v_add_u32 {v(152+p)}, {512*p}, v152")

    def conv(self):
        k = self.k; o = self.o
        toep = []
        for rr in range(4):
            for p in range(8):
                d = (rr*8 + p)*4
                toep.append(f"ds_read2_b32 {a(d,2)}, {v(152+p)} offset0:{16*rr} offset1:{16*rr+1}")
                toep.append(f"ds_read2_b32 {a(d+2,2)}, {v(152+p)} offset0:{16*rr+2} offset1:{16*rr+3}")
        k.wait_lg0()
        k("s_barrier")
        n0 = o.get('toep0', 16)
        tt = {}
        for n in range(n0): tt[n] = k(toep[n])
        ph = self.poll_issue(vP31, s(sKVFp))
        self.stamp('toep')
        self.poll_check(ph)
        self.stamp('kv_seen')
        k(f"s_mov_b32 m0, {s(sUm0)}")
        k(f"buffer_load_dwordx4 {v(vL16)}, {s(RW,4)}, {s(sKVs)} offen sc1 lds")
        tok = k(f"buffer_load_dwordx4 {v(vL16)}, {s(RW,4)}, {s(sKVs)} offen offset:1024 sc1 lds")
        n1 = o.get('toep1', 32)
        for n in range(n0, n1): tt[n] = k(toep[n])
        k.wait(tok)
        k("s_barrier")
        self.stamp('u_in')
        B, C = 64, 96
        bt = {}
        def rdB(rr, q): bt[(rr, q)] = k(f"ds_read_b128 {v(B+4*q,4)}, v140 offset:{512*q + 64*(3-rr)}")
        for q in range(8): rdB(0, q)
        self.wd_job_issue()
        self.q_load()
        self.tlb_touch()
        tq = Queue(k, [Item(x) for x in toep[n1:]]); tits = list(tq.q)
        n2 = o.get('n2', 8)
        dq = []
        for i in range(n2):
            if self.w1_next >= 28: break
            n = self.w1_next; self.w1_next += 1
            for x in self.w1_dma_text(n): dq.append(Item(x, at=4 + i*(o.get('n2span', 124) // n2), tag=n))
        dits = list(dq); dq = Queue(k, dq)
        m = 0
        for rr in range(4):
            need = [tt[n] for n in range(16*rr, 16*rr + 16) if n in tt]
            while any(x.tok is None for x in tits[:max(0, 16*rr + 16 - n1)]): tq.emit(tq.q[0])
            need += [x.tok for x in tits[:max(0, 16*rr + 16 - n1)]]
            for q in range(8):
                k.wait(bt[(rr, q)], *(need if q == 0 else []))
                for p in range(8 - q):
                    c = C + 4*(p+q)
                    src = '0' if (rr == 0 and q == 0) else v(c, 4)
                    k(f"v_mfma_f32_16x16x32_bf16 {v(c,4)}, {a((rr*8+p)*4,4)}, {v(B+4*q,4)}, {src}")
                    m += 1
                    if p < 7 - q:
                        cap = dq.fill(2, m)
                        tq.fill(min(cap, 1))
                if rr < 3: rdB(rr+1, q)
        dq.drain()
        for x in dits: self.w1_tok[x.tag] = x.tok
        self.stamp('conv_mfma')
        KV, P = 32, 160
        for t2 in range(2):
            for ch in range(2): k(f"ds_read_b64 {v(KV+4*t2+2*ch,2)}, v141 offset:{512*t2 + ch*U_S}")
        for c in range(8): k(f"ds_write_b128 v142, {v(C+4*c,4)} offset:{1024*c}")
        k.wait_lg0()
        k("s_barrier")
        for t2 in range(2):
            for w in range(4): lastp = k(f"ds_read_b128 {v(P+16*t2+4*w,4)}, v143 offset:{8192*w + 1024*t2}")
        for t2 in range(2):
            k.wait(('lg', lastp[1] - 4*(1-t2)))
            b = P + 16*t2
            L = []
            for ch in range(2):
                for e in (0, 2): L.append(f"v_pk_add_f32 {v(b+8*ch+e,2)}, {v(b+8*ch+e,2)}, {v(b+8*ch+4+e,2)}")
            for e in range(4):
                for ch in range(2):
                    L.append(f"v_dot2_f32_bf16 {v(b+8*ch+e)}, {v(KV+4*t2+2*ch+(1-(e>>1)))}, {s(sD+2*ch+(1-(e&1)))}, {v(b+8*ch+e)}")
            for e in range(4): L.append(f"v_cvt_pk_bf16_f32 {v(b+4+e)}, {v(b+e)}, {v(b+8+e)}")
            L.append(f"buffer_store_dwordx4 {v(b+4,4)}, v144, {s(RW,4)}, {s(sYst)} offen offset:{1024*t2} sc1")
            st = self.run(L)[-1].tok
        self.stamp('y_st')
        self.wd_job_finish()
        self.q_stats()
        self.publish(st, s(sYFs), local=False)
        self.stamp('y_pub')
        self.publish(self.job_st, s(sJF), local=False)
        k("s_barrier")

    def stats(self, rows, out, t0, scale=None):
        L = []; n = len(rows)
        for i, x in enumerate(rows):
            b = t0 + 6*i
            L += [f"v_pk_add_f32 {v(b,2)}, {v(x,2)}, {v(x+2,2)}", f"v_pk_mul_f32 {v(b+2,2)}, {v(x,2)}, {v(x,2)}",
                  f"v_pk_add_f32 {v(b+4,2)}, {v(x+4,2)}, {v(x+6,2)}"]
            L += [f"v_pk_fma_f32 {v(b+2,2)}, {v(x+e,2)}, {v(x+e,2)}, {v(b+2,2)}" for e in (2, 4, 6)]
            L += [f"v_pk_add_f32 {v(b,2)}, {v(b,2)}, {v(b+4,2)}", f"v_add_f32 {v(b+2)}, {v(b+2)}, {v(b+3)}", f"v_add_f32 {v(b)}, {v(b)}, {v(b+1)}"]
        for ctl in ("row_ror:8 row_mask:0xf", "row_ror:4 row_mask:0xf", "row_ror:2 row_mask:0xf", "row_ror:1 row_mask:0xf",
                    "row_bcast:15 row_mask:0xa", "row_bcast:31 row_mask:0xc"):
            for i in range(n):
                for e in (2, 0):
                    r = t0 + 6*i + e
                    L.append(f"v_add_f32_dpp {v(r)}, {v(r)}, {v(r)} {ctl} bank_mask:0xf")
        for i in range(n):
            b = t0 + 6*i
            L += [f"v_mul_f32 {v(b)}, 0x3b000000, {v(b)}", f"v_mul_f32 {v(b+2)}, 0x3b000000, {v(b+2)}",
                  f"v_fma_f32 {v(b+2)}, -{v(b)}, {v(b)}, {v(b+2)}", f"v_max_f32 {v(b+2)}, 0, {v(b+2)}",
                  f"v_add_f32 {v(b+2)}, 0x3727c5ac, {v(b+2)}", f"v_rsq_f32 {v(b+2)}, {v(b+2)}"]
            if scale: L.append(f"v_mul_f32 {v(b+2)}, {f32(scale)}, {v(b+2)}")
            L += [f"v_mul_f32_e64 {v(b)}, -{v(b)}, {v(b+2)}", f"v_readlane_b32 {s(out[i])}, {v(b+2)}, 63",
                  f"v_readlane_b32 {s(out[i]+2)}, {v(b)}, 63", f"s_mov_b32 {s(out[i]+1)}, {s(out[i])}",
                  f"v_mov_b32 {v(b+4)}, {s(out[i]+2)}", f"v_mov_b32 {v(b+5)}, {s(out[i]+2)}"]
        return L
    def unpack(self, dst, src):
        L = []
        for e in range(4): L += [f"v_lshlrev_b32 {v(dst+2*e)}, 16, {v(src+e)}", f"v_and_b32 {v(dst+2*e+1)}, 0xffff0000, {v(src+e)}"]
        return L
    def affine(self, dst, x, sp, vb):
        return [f"v_pk_fma_f32 {v(dst+e,2)}, {v(x+e,2)}, {s(sp,2)}, {v(vb,2)}" for e in (0, 2, 4, 6)]
    def run(self, L, look=12):
        its = [Item(x) for x in L]
        Queue(self.k, its, look).drain()
        return its

    def gate_norm(self, halves, nrm, layer, R):
        L = []; sp = [36, 40]
        t0 = R + 16*len(halves)
        for i, h in enumerate(halves):
            L += self.unpack(R + 16*i, YS[h])
            L += [f"v_pk_fma_f32 {v(XS[h]+e,2)}, {v(nrm[h]+e,2)}, {v(R+16*i+e,2)}, {v(XS[h]+e,2)}" for e in (0, 2, 4, 6)]
        L += self.stats([XS[h] for h in halves], sp[:len(halves)], t0, LOG2E)
        for i, h in enumerate(halves):
            b = R + 16*i
            L += self.affine(b, XS[h], sp[i], t0 + 6*i + 4)
            L += [f"v_cvt_pk_bf16_f32 {v(b+8+e)}, {v(b+2*e)}, {v(b+2*e+1)}" for e in range(4)]
            L.append(f"buffer_store_dwordx4 {v(b+8,4)}, {v(vAst)}, {s(RW,4)}, {s(sHALF) if h else 0} offen")
            if layer == 1:
                L += [f"v_cvt_pk_bf16_f32 {v(b+12+e)}, {v(XS[h]+2*e)}, {v(XS[h]+2*e+1)}" for e in range(4)]
                L.append(f"buffer_store_dwordx4 {v(b+12,4)}, {v(vL16)}, {s(RW,4)}, {s(sFR[h])} offen")
        return L

    N0 = [40, 48]
    def q_stats(self):
        k = self.k
        k.wait(self.q_tok)
        L = []
        for h in range(2): L += self.unpack(XS[h], 204 + 4*h)
        L += self.stats(XS, [36, 40], 128)
        for h in range(2): L += self.affine(self.N0[h], XS[h], [36, 40][h], 128 + 6*h + 4)
        self.run(L)

    def y_in(self):
        k = self.k; o = self.o
        done0 = self.w1_next >= 14
        self.w1_dma(o.get('n3', 6))
        self.persistent()
        self.w1_relayout_addr()
        self.wd_addr()
        if done0: self.w1_relayout(0)
        self.stamp('rl0')
        self.poll(148, s(sYFp), local=False)
        self.stamp('y_seen')
        t0 = k(f"buffer_load_dwordx4 v[32:35], v149, {s(RW,4)}, {s(sYld)} offen sc1")
        t1 = k(f"buffer_load_dwordx4 v[36:39], v149, {s(RW,4)}, {s(sYld)} offen offset:16 sc1")
        self.w1_dma(o.get('n4', 5))
        if not done0 and self.w1_next >= 14: self.w1_relayout(0); done0 = True
        k.wait(t0)
        for e in range(4): k(f"ds_write_b32 v150, {v(32+e)} offset:{1024*e}")
        k.wait(t1)
        for e in range(4): k(f"ds_write_b32 v150, {v(36+e)} offset:{1024*(4+e)}")
        k.wait_lg0()
        k("s_barrier")
        for h in range(2): k(f"ds_read_b128 {v(YS[h],4)}, v151 offset:{4096*h}")
        k.wait_lg0()
        self.stamp('y_in')
        its = self.run(self.gate_norm([0, 1], self.N0, 0, 56))
        sts = [x.tok for x in its if 'store' in x.text]
        self.stamp('a_st')
        if done0: self.gemm1_start(0)
        self.publish(sts[0], s(sAFs), 0)
        self.publish(sts[1], s(sAFs), 512)
        k(f"s_or_b32 {s(T[0])}, s2, {s(sW)}\ns_cmp_eq_u32 {s(T[0])}, 0\ns_cselect_b32 {s(T[0])}, 0, 0x40000000")
        k(f"buffer_store_dword {v(vNON)}, {v(vL0)}, {s(RW,4)}, {s(T[0])} offen sc1")
        self.stamp('a_pub')
        self.w1_dma(o.get('n5', 28))
        self.rl1_done = bool(o.get('rl1_front', 0))
        if not done0: self.w1_relayout(0)
        if self.rl1_done:
            self.w1_relayout(1); k.wait_lg0(); k("s_barrier")
        if not done0: self.gemm1_start(0)

    def epilogue1(self, B, half, off, pk):
        L = []; so = s(sHH) if half else '0'
        def grp(g, u, n, outs, t):
            for e in range(n): L.append(f"v_exp_f32_e64 {v(t+e)}, -{v(g+e)}")
            if pk:
                for e in range(0, n, 2): L.append(f"v_pk_mul_f32 {v(u+e,2)}, {v(g+e,2)}, {v(u+e,2)}")
                for e in range(0, n, 2): L.append(f"v_pk_fma_f32 {v(t+e,2)}, {v(t+e,2)}, {s(sC2,2)}, {s(sC2,2)}")
            else:
                for e in range(n): L.append(f"v_mul_f32 {v(u+e)}, {v(g+e)}, {v(u+e)}")
                for e in range(n): L.append(f"v_fma_f32 {v(t+e)}, {v(t+e)}, {s(sC2)}, {s(sC2)}")
            for e in range(n): L.append(f"v_rcp_f32 {v(t+e)}, {v(t+e)}")
            if pk:
                for e in range(0, n, 2): L.append(f"v_pk_mul_f32 {v(u+e,2)}, {v(u+e,2)}, {v(t+e,2)}")
            else:
                for e in range(n): L.append(f"v_mul_f32 {v(u+e)}, {v(u+e)}, {v(t+e)}")
            for e in range(0, n, 2): L.append(f"v_cvt_pk_bf16_f32 {v(outs[e//2])}, {v(u+e)}, {v(u+e+1)}")
        grp(B, B+4, 4, [B, B+1], TMP)
        grp(B+8, B+12, 4, [B+2, B+3], TMP+4)
        L.append(f"buffer_store_dwordx4 {v(B,4)}, {v(vHm)}, {s(RW,4)}, {so} offen offset:{off}")
        grp(B+16, B+20, 4, [B+8, B+9], TMP)
        grp(B+24, B+26, 2, [B+10], TMP+4)
        Z, C, A_ = B+4, B+5, B+6
        L += [f"v_mov_b32 {v(C)}, {v(B+8)}", f"v_mov_b32 {v(A_)}, {v(B+9)}", f"v_mov_b32 {v(Z)}, {v(B+10)}",
              f"v_permlane32_swap_b32 {v(A_)}, {v(B+11)}", f"v_permlane32_swap_b32 {v(C)}, {v(Z)}",
              f"v_permlane16_swap_b32 {v(Z)}, {v(B+11)}",
              f"buffer_store_dwordx4 {v(B+8,4)}, {v(vHt)}, {s(RW,4)}, {so} offen offset:{off}"]
        return L

    def a_plan(self, layer):
        n = self.o.get('ring0', 8) if layer == 0 else self.o.get('ring1', 4)
        ring = ([('v', AR + 8*i) for i in range(4)] + [('a', 224 + 8*i) for i in range(4)])[:n]
        reg = {gs: ring[gs % n] for gs in range(32)}
        issue = {}
        for gs in range(32):
            prev = [p for p in range(gs) if reg[p] == reg[gs]]
            issue[gs] = prev[-1] + 1 if prev else -1
        return reg, issue

    def gemm1_start(self, layer):
        k = self.k
        self.wt, self.at = {}, {}
        self.areg, self.aiss = self.a_plan(layer)
        for Tt in range(7): self.rdW(0, Tt)
    def rdW(self, gs, Tt):
        st = gs % 16
        base, o = (vL16, st*7168) if st < 8 else (vW1, (st-8)*7168)
        self.wt[(gs, Tt)] = self.k(f"ds_read_b128 {v(WF + 28*(gs&1) + 4*Tt, 4)}, {v(base)} offset:{o + 1024*Tt}")
    def afrag(self, gs, mt):
        kind, b = self.areg[gs]
        return (v if kind == 'v' else a)(b + 4*mt, 4)
    def ldA(self, gs, mt):
        st = gs % 16
        self.at[(gs, mt)] = self.k(f"buffer_load_dwordx4 {self.afrag(gs, mt)}, {v(vAld[gs // 16])}, {s(RW,4)}, {k4(st>>1)} offen offset:{((st&1)*2+mt)*1024} sc1")

    def gemm1(self, layer):
        k = self.k; o = self.o
        lo = 1024*layer
        self.poll(vP31, s(sAFp), lo)
        self.stamp(f'a_seen{layer}')
        todo = sorted(range(32), key=lambda g: g)
        nxtA = 0
        while self.aiss[nxtA] < 0 and nxtA < o.get('a_init', 5):
            for mt in range(2): self.ldA(nxtA, mt)
            nxtA += 1
        if layer == 0: self.w1_dma(28)
        firstB = max(min(self.aiss[g] for g in range(16, 32)), o.get('firstB', 0) if layer else 0)
        queues = []
        if layer == 0:
            queues.append(Queue(k, self.poll_items(vP31, s(sAFp), lo + 512, 14*2, 14*(firstB - 2))))
            rl = self.w1_relayout_items(1, True) if not self.rl1_done else []
            for x in rl: x.at = 14*o.get('rl1_at', 1)
            rlq = Queue(k, rl); queues.append(rlq)
            t0 = o.get('wd_t0', 2); t1 = o.get('wd_t1', 31)
            wd = [Item(self.wd_text(n), at=int(14*(t0 + (t1 - t0)*n/56))) for n in range(o.get('wd_n', 56))]
            box = []
            pj = [Item(fn=lambda: box.append(self.poll_issue(226, s(sJFp), 0, 229)))] + [Item(fn=f, at=14*t0 - 6) for f in self.poll_steps(lambda: box[0], False)]
            wdq = Queue(k, pj + wd, 1); queues.append(wdq)
            burst = None
        else:
            box = []
            s0 = o.get('rowb_at', 3)
            its = self.poll_items(vP7, s(sFFp), 512, 14*(s0 - 3), 14*(s0 - 2) + 7)
            fld = Item(f"buffer_load_dwordx4 {v(ACC[1],4)}, {v(vL16)}, {s(RW,4)}, {s(sFR[1])} offen sc1"); its.append(fld)
            queues.append(Queue(k, its))
            burst = s0
        epi = None
        for gs in range(32):
            ps, st = divmod(gs, 16)
            if gs == burst:
                queues[0].drain(); k.wait(fld.tok)
                self.stamp('rowB_go')
                sts = self.rowop(1, ACC[1])
                self.stamp('rowB')
                queues = [Queue(k, self.publish_items(lambda: sts, s(sAFs), lo + 512, 14*(gs + 2))
                                + self.poll_items(vP31, s(sAFp), lo + 512, 14*(firstB - 4), 14*(firstB - 1) - 4))]
            if gs == firstB: queues[0].drain()
            if layer == 0 and gs == 7 and not self.rl1_done:
                print('relayout left at step 7:', rlq.cost())
                rlq.drain(); k.wait_lg0(); k("s_barrier")
            if gs == 16:
                for q in queues[:2]: q.drain()
                epi = [Item(x, at=14*16 + 4) for x in self.epilogue1(ACC[0], 0, 0, 0) + self.epilogue1(ACC[0] + 28, 0, 256, 0)]
                last = epi[-1]
                queues = [Queue(k, epi, 14), Queue(k, [])]
                if layer == 0: queues = [queues[0], queues[1], wdq]
                pub = False
            if epi and not pub and not len(queues[0]):
                queues[1].q += self.publish_items(lambda: last.tok, s(sHFs), lo, 14*(gs + 1)); pub = True
            fixed = [[] for _ in range(14)]
            if gs + 1 < 32:
                for Tt in range(7): fixed[2*(Tt // 2)].append(('W', gs+1, Tt))
            slot = 6
            while nxtA < 32 and self.aiss[nxtA] <= gs and slot <= 10 and (nxtA < 16 or gs >= firstB):
                fixed[slot].append(('A', nxtA, 0)); fixed[slot+2].append(('A', nxtA, 1)); nxtA += 1; slot += 4
            k.wait(self.at[(gs, 1)], self.wt[(gs, 6)])
            for i in range(14):
                Tt, mt = divmod(i, 2)
                d = ACC[ps] + 28*mt + 4*Tt
                k(f"v_mfma_f32_16x16x32_bf16 {v(d,4)}, {v(WF + 28*(gs&1) + 4*Tt, 4)}, {self.afrag(gs, mt)}, {'0' if st == 0 else v(d,4)}")
                for it in fixed[i]:
                    if it[0] == 'W': self.rdW(it[1], it[2])
                    else: self.ldA(it[1], it[2])
                cap = 2 - len(fixed[i]) - (1 if i == 13 else 0)
                for q in (queues[::-1] if ps else queues): cap = q.fill(cap, 14*gs + i)
            if gs == 15: self.stamp(f'g1a{layer}')
        print('layer', layer, 'left after G1B:', [q.cost() for q in queues], 'published' if pub else 'not published')
        queues[0].drain()
        if not pub: queues[1].q += self.publish_items(lambda: last.tok, s(sHFs), lo, 0)
        queues[1].drain()
        if layer == 0: wdq.drain(); self.wd_last = wd[-1].tok
        self.stamp(f'g1b{layer}')
        self.ht = {}
        ph = self.poll_issue(vP7, s(sHFp), lo)
        epi = [Item(x) for x in self.epilogue1(ACC[1], 1, 0, 1) + self.epilogue1(ACC[1] + 28, 1, 256, 1)]
        q = Queue(k, epi, 12)
        total = q.cost()
        lead = o.get('epi_lead', 70); nld = o.get('epi_ld', 8)
        while total - q.cost() < lead:
            if q.fill(3) == 3: q.emit(q.q[0])
        self.poll_check(ph)
        self.stamp(f'hA_seen{layer}')
        self.nxtH = 0
        marks = [lead + (total - lead)*i // nld for i in range(nld)]
        while len(q):
            while marks and total - q.cost() >= marks[0]: marks.pop(0); self.ldH(0)
            if q.fill(3) == 3: q.emit(q.q[0])
        self.hB_tok = epi[-1].tok
        self.stamp(f'epiB{layer}')

    def hreg(self, n):
        if n < 14: return ACC[0] + 4*n
        if n < 28: return WF + 4*(n - 14)
        if n < 42: return ACC[1] + 4*(n - 28)
        return ACC[0] + 4*(n - 42)
    def ldH(self, _=0):
        n = self.nxtH; self.nxtH += 1
        half, r = divmod(n, 28); U, mt = divmod(r, 2)
        self.ht[n] = self.k(f"buffer_load_dwordx4 {v(self.hreg(n),4)}, {v(vHld[half])}, {s(RW,4)}, {k4(U>>1)} offen offset:{(U&1)*2048 + mt*256} sc1")

    def red_write(self, A2):
        return [f"ds_write_b128 {v(vRw)}, {v(A2 + 16*mt + 4*nt, 4)} offset:{4352*mt + 64*nt}" for mt in range(2) for nt in range(4)]
    def red_read(self, P):
        return [f"ds_read_b128 {v(P + 8*w + 4*hf, 4)}, {v(vRr)} offset:{8704*w + 16*hf}" for w in range(4) for hf in range(2)]
    def red_sum(self, P, half, layer, X3, pk):
        L = []
        def add(d, x, y):
            if pk: L.extend(f"v_pk_add_f32 {v(d+e,2)}, {v(x+e,2)}, {v(y+e,2)}" for e in (0, 2, 4, 6))
            else: L.extend(f"v_add_f32 {v(d+e)}, {v(x+e)}, {v(y+e)}" for e in range(8))
        add(P, P, P+8); add(P+16, P+16, P+24)
        if layer == 1:
            L += self.unpack(P+8, X3); add(P, P, P+8)
        add(P, P, P+16)
        L += [f"v_cvt_pk_bf16_f32 {v(P+8+e)}, {v(P+2*e)}, {v(P+2*e+1)}" for e in range(4)]
        if layer == 0: L.append(f"buffer_store_dwordx4 {v(P+8,4)}, {v(vF2)}, {s(RW,4)}, {s(sHALF) if half else 0} offen")
        else: L.append(f"buffer_store_dwordx4 {v(P+8,4)}, {v(vO)}, {s(RO,4)}, {k4(half)} offen{self.o.get('ost', '')}")
        return L

    def gemm2(self, layer):
        k = self.k; o = self.o
        lo = 1024*layer
        AC2 = [AR, WF]
        X3 = [TMP, TMP + 4]
        LA = o.get('g2la', 8)
        FR = WF + 32
        qs = [Queue(k, self.publish_items(lambda: self.hB_tok, s(sHFs), lo + 512, o.get('hb_pub', 20))
                    + self.poll_items(vP7, s(sHFp), lo + 512, o.get('hb_pi', 56), o.get('hb_pc', 84)))]
        xt = {}
        if layer == 0: k.wait(self.wd_last)
        for gU in range(28):
            half, U = divmod(gU, 14)
            if gU == 14:
                self.stamp(f'g2a{layer}')
                L = [Item(x, at=8*14 + 4) for x in self.red_write(AC2[0])]
                L += [Item(fn=lambda: k.wait_lg0(), at=8*16), Item(fn=lambda: k("s_barrier"))]
                L += [Item(x) for x in self.red_read(AR)]
                L += [Item(fn=lambda: k.wait_lg0(), at=8*19)]
                if layer == 1: L += [Item(fn=lambda: k.wait(xt[0]))]
                L += [Item(x) for x in self.red_sum(AR, 0, layer, X3[0], 0)]
                fA = L[-1]
                if layer == 0:
                    L += self.publish_items(lambda: fA.tok, s(sFFs), 0, o.get('fa_pub', 8*25))
                qs = [Queue(k, L)]
            k.wait(self.ht[2*gU + 1])
            for i in range(8):
                mt, nt = divmod(i, 4)
                d = AC2[half] + 16*mt + 4*nt
                k(f"v_mfma_f32_16x16x32_bf16 {v(d,4)}, {a((4*U+nt)*4,4)}, {v(self.hreg(2*gU + mt),4)}, {'0' if U == 0 else v(d,4)}")
                cap = 2 - (1 if i == 7 else 0)
                lim = 2*gU + LA + 2 if (half or not len(qs[0])) else min(28, 2*gU + LA + 2)
                if i in (0, 2, 4, 6) and self.nxtH < min(56, lim) and (self.nxtH < 42 or self.nxtH - 42 < 2*gU):
                    self.ldH(); cap -= 1
                    if layer == 1 and self.nxtH in (28, 56):
                        h = self.nxtH // 28 - 1
                        xt[h] = k(f"buffer_load_dwordx4 {v(X3[h],4)}, {v(vF2)}, {s(RW,4)}, {s(sHALF) if h else 0} offen sc1"); cap -= 1
                        if h == 1 and o.get('wbl2', 1): self.writeback()
                for q in qs: cap = q.fill(cap, 8*gU + i)
            if gU == 13:
                qs[0].drain()
                while self.nxtH < 28 + LA: self.ldH()
        print('layer', layer, 'left after G2B:', qs[0].cost())
        qs[0].drain()
        self.stamp(f'g2b{layer}')
        if layer == 0:
            ph = self.poll_issue(vP7, s(sFFp), 0)
        k("s_barrier")
        for x in self.red_write(AC2[1]): k(x)
        if layer == 0:
            self.poll_check(ph)
            self.stamp('fA_seen')
            fld = k(f"buffer_load_dwordx4 {v(ACC[1],4)}, {v(vL16)}, {s(RW,4)}, {s(sFR[0])} offen sc1")
        k.wait_lg0(); k("s_barrier")
        for x in self.red_read(ACC[0]): k(x)
        k.wait_lg0()
        if layer == 1: k.wait(xt[1])
        fB = self.run(self.red_sum(ACC[0], 1, layer, X3[1], 1))[-1].tok
        self.stamp(f'fB_st{layer}')
        if layer == 0:
            self.gemm1_start(1)
            k.wait(fld)
            sts = self.rowop(0, ACC[1], lambda: self.publish(fB, s(sFFs), 512))
            self.stamp('rowA')
            self.publish(sts, s(sAFs), 1024)
            self.stamp('aA_pub')

    def writeback(self):
        k = self.k
        a_, b_ = k.label(), k.label()
        k(f"s_or_b32 {s(T[2])}, {s(sJ)}, {s(sW)}\ns_cmp_lg_u32 {s(T[2])}, 0\ns_cbranch_scc1 {a_}")
        k("buffer_wbl2 sc1")
        k(f"s_branch {b_}"); k.place(a_)
        k.ins.append(I(f"buffer_load_dword {v(vPT)}, {v(vL0)}, {s(RW,4)}, 0 offen"))
        k.place(b_)

    def rowop(self, h, R, mid=None):
        L = self.unpack(R + 8, R)
        L += [f"v_pk_add_f32 {v(XS[h]+e,2)}, {v(XS[h]+e,2)}, {v(R+8+e,2)}" for e in (0, 2, 4, 6)]
        L += self.stats([XS[h]], [36], R + 16)
        L += self.affine(R + 8, XS[h], 36, R + 20)
        self.run(L)
        if mid: mid()
        its = self.run(self.gate_norm([h], {h: R + 8}, 1, R + 24))
        return [x.tok for x in its if 'store' in x.text][-1]

    def build(self):
        k = self.k; o = self.o
        self.prologue()
        self.w1_addr()
        self.w1_dma(o.get('n0', 0))
        self.front_addr()
        self.wd_job_addr()
        self.phase0()
        self.w1_dma(o.get('n1', 1))
        self.conv()
        self.y_in()
        for layer in range(2):
            self.gemm1(layer)
            self.gemm2(layer)
        if o.get('stamps'):
            self.stamp('end')
            k(f"""s_lshl_b32 {s(T[0])}, s2, 2
                  s_add_u32 {s(T[0])}, {s(T[0])}, {s(sW)}
                  s_lshl_b32 {s(T[0])}, {s(T[0])}, 8
                  s_add_u32 {s(T[0])}, {s(T[0])}, {WS_DBG}
                  v_lshrrev_b32 v5, 2, {v(vL16)}
                  buffer_store_dword {v(vST[0])}, v5, {s(RW,4)}, {s(T[0])} offen
                  s_add_u32 {s(T[0])}, {s(T[0])}, 0x40000
                  buffer_store_dword {v(vST[1])}, v5, {s(RW,4)}, {s(T[0])} offen""")
        if o.get('diag'):
            self.stamp('end')
            k(f"""v_sub_u32 v5, {v(vST[1])}, {v(vST[0])}
                  s_nop 1
                  v_readfirstlane_b32 {s(T[0])}, v5
                  s_mul_i32 {s(T[0])}, {s(T[0])}, 8
                  s_memrealtime {s(T[2],2)}
                  s_waitcnt lgkmcnt(0)""")
            k.place("L_DIAG")
            k(f"""s_memrealtime {s(T[4],2)}
                  s_waitcnt lgkmcnt(0)
                  s_sub_u32 {s(T[4])}, {s(T[4])}, {s(T[2])}
                  s_cmp_lt_u32 {s(T[4])}, {s(T[0])}
                  s_cbranch_scc1 L_DIAG""")
        k.place("L_END")
        k("s_endpgm")
        body = k.text()
        for t in self.tail:
            body += "".join((x + "\n") if x.endswith(':') else ("    " + x + "\n") for x in t)
        body += "L_LAST:\n"
        return body

def file_text(opt):
    g = Gen(opt)
    body = g.build()
    ref = open(os.path.join(os.path.dirname(os.path.abspath(__file__)), '..', 'cdna_kernels', NAME + '.s.ref')).read()
    head = ref[:ref.index('; Override launch geometry')]
    txt = head + f"""; @launch grid=(256,1,1) block=(256,1,1) lds={LDS_SIZE}
.amdgcn_target "amdgcn-amd-amdhsa--gfx950"
.text
.globl {NAME}_kernel
.p2align 8
.type {NAME}_kernel,@function
{NAME}_kernel:
{body}.section .rodata,"a"
.p2align 6
.amdhsa_kernel {NAME}_kernel
  .amdhsa_next_free_vgpr 512
  .amdhsa_next_free_sgpr 102
  .amdhsa_accum_offset 256
  .amdhsa_group_segment_fixed_size 0
  .amdhsa_kernarg_size 104
  .amdhsa_user_sgpr_count 2
  .amdhsa_user_sgpr_kernarg_segment_ptr 1
  .amdhsa_system_sgpr_workgroup_id_x 1
.end_amdhsa_kernel
"""
    return txt, g

if __name__ == '__main__':
    import json
    opt = {}; out = None
    for x in sys.argv[1:]:
        if '=' in x:
            kk, vv = x.split('=')
            opt[kk] = vv.split(',') if kk in ('only', 'diag') else (' ' + vv.replace('+', ' ') if kk in ('ost', 'wdm') else int(vv, 0))
        else: out = x
    txt, g = file_text(opt)
    open(out, 'w').write(txt)
    json.dump(g.stamps, open(out + '.stamps.json', 'w'))
    print('instructions', len(g.k.ins), 'nops added', g.k.nops_added, 'stamps', len(g.stamps))
```

```python
import sys, os
sys.path.insert(0, os.path.dirname(os.path.abspath(__file__)))
from dsl import *

NAME = 'interleave_layers__ssm_conv_h3__swiglu_ffn__prompt'

WS_XCCF = 0x1000
WS_KVF  = 0x10000
WS_AF   = 0x11000
WS_HF   = 0x19000
WS_FF   = 0x21000
WS_YF   = 0x30000
WS_JF   = 0x50000
WS_KVT  = 0x100000
WS_F    = WS_KVT
WS_YP   = 0x300000
WS_A    = 0x500000
WS_H    = 0x700000
WS_WDT  = 0xE00000
WS_DBG  = 0x1000000
WS_SIZE = 0x1100000
H_X, H_HALF, H_RB = 917504, 458752, 114688

LDS_SIZE = 163840
SCR   = 114688
L_K   = SCR
L_V   = L_K + 9216
L_H   = L_V + 8192
H_CP  = 4096 + 128
H_E   = lambda ch: L_H + ch * 2 * H_CP + 64
H_O   = lambda ch: L_H + ch * 2 * H_CP + H_CP + 128
L_U   = L_H + 4 * H_CP + 128
U_S   = 4608
assert L_U + 2 * U_S <= LDS_SIZE
L_CRED = SCR
assert L_CRED + 32768 <= L_U
L_YT  = L_U
L_JOB = 114688 - 16384
L_RED = SCR

sX, sJ, sW, sN, sEXP, sSPIN, sXCC, sMODE = 4, 5, 6, 7, 8, 9, 10, 11
T = list(range(12, 24))
sC2 = 24
sHALF = 26
sW1S, sW1L = 27, 3
sD = 28
sDP = 34
RK, RV, RH, RQ, RG, RU, RD, RO, RW, RS = 44, 48, 52, 56, 60, 64, 68, 72, 76, 80
sK4 = 83
def k4(i): return '0' if i == 0 else s(sK4 + i)
sHH = 91
sAFp, sAFs, sHFp, sHFs, sFFp, sFFs = 94, 95, 96, 97, 98, 99
sFR = [100, 101]
sST = (32, 92)
sKVFp, sKVs, sUm0, sYst, sYFs, sYFp, sYld, sJF, sJL, sJFp = 44, 45, 46, 47, 48, 49, 50, 51, 52, 53

vL, vL16, vL0, vNON, vPT = 1, 2, 3, 4, 5
vAld, vHld = [6, 7], [8, 9]
vHm, vHt, vAst, vF2, vO, vRw, vRr, vP31, vP7, vW1 = 10, 11, 12, 13, 14, 15, 16, 17, 18, 19
vST = (20, 21)
vWd = [230, 231]
ACC = [22, 78]
WF, AR, TMP = 134, 190, 222
YS, XS = [232, 236], [240, 248]
LOG2E = 1.4426950408889634

def f32(x):
    import struct
    return '0x%08x' % struct.unpack('<I', struct.pack('<f', x))[0]

def flist(c):
    if c < 4: return [4*c + e for e in range(4)] + [16 + 4*c + e for e in range(4)]
    q = c - 4; X = [44, 46, 54][q]
    return [32 + 4*q + e for e in range(4)] + [48 + 2*q, 49 + 2*q, X, X + 1]

class Gen:
    def __init__(self, opt):
        self.o = opt
        self.k = K()
        self.tail = []
        self.stamps = []
        self.w1_next = 0
        self.late = False
        self.w1_tok = {}

    def stamp(self, name):
        dg = self.o.get('diag')
        if dg and name in dg:
            k = self.k
            k(f"s_memrealtime {s(sST[0],2)}"); k.wait_lg0()
            k(f"v_mov_b32 {v(vST[dg.index(name)])}, {s(sST[0])}")
        if not self.o.get('stamps'): return
        only = self.o.get('only')
        if only and name not in only: return
        k = self.k; n = len(self.stamps)
        k(f"s_memrealtime {s(sST[0],2)}\ns_memtime {s(sST[1],2)}"); k.wait_lg0()
        k(f"v_writelane_b32 {v(vST[0])}, {s(sST[0])}, {n}\nv_writelane_b32 {v(vST[1])}, {s(sST[1])}, {n}")
        self.stamps.append(name)

    def srd(self, base, size):
        self.k(f"s_mov_b32 {s(base+2)}, {size}\ns_mov_b32 {s(base+3)}, 0x20000")

    def poll_issue(self, vaddr, soff, off=0, vt=vPT):
        txt = f"buffer_load_dword {v(vt)}, {v(vaddr)}, {s(RW,4)}, {soff} offen offset:{off} sc1"
        return (self.k(txt), txt, vt)

    def poll_steps(self, get, local=True):
        k = self.k
        slow, back, ok = k.label(), k.label(), k.label()
        def s1(): k.wait(get()[0])
        def s2(): k(f"v_cmp_ne_u32 vcc, {s(sEXP if local else sN)}, {v(get()[2])}")
        def s3():
            if self.o.get('nopoll') and self.late: return
            k(f"s_cbranch_vccnz {slow}"); k.place(back)
            _, txt, vt = get()
            t = [f"{slow}:", txt, "s_waitcnt vmcnt(0)", f"v_cmp_ne_u32 vcc, {s(sN)}, {v(vt)}", f"s_cbranch_vccz {ok}",
                 f"s_sub_u32 {s(sSPIN)}, {s(sSPIN)}, 1", f"s_cbranch_scc0 {slow}", "s_branch L_END", f"{ok}:"]
            if local: t += [f"s_cmp_eq_u32 {s(sMODE)}, 0", f"s_cbranch_scc1 {back}", "buffer_inv sc1", "s_waitcnt vmcnt(0)"]
            self.tail.append(t + [f"s_branch {back}"])
        return [s1, s2, s3]

    def poll_check(self, h, local=True):
        for f in self.poll_steps(lambda: h, local): f()
    def poll(self, vaddr, soff, off=0, local=True):
        self.poll_check(self.poll_issue(vaddr, soff, off), local)
    def poll_items(self, vaddr, soff, off, at_issue, at_check):
        box = []
        it = [Item(fn=lambda: box.append(self.poll_issue(vaddr, soff, off)), at=at_issue)]
        return it + [Item(fn=f, at=at_check) for f in self.poll_steps(lambda: box[0])]

    def flag_store(self, soff, off=0, local=True):
        k = self.k
        txt = f"buffer_store_dword {v(vNON)}, {v(vL0)}, {s(RW,4)}, {soff} offen offset:{off}"
        if not local: return k(txt + " sc1")
        slow, back = k.label(), k.label()
        k(f"s_cmp_lg_u32 {s(sMODE)}, 0\ns_cbranch_scc1 {slow}")
        r = k(txt); k.place(back)
        self.tail.append([f"{slow}:", "s_waitcnt vmcnt(0)", "buffer_wbl2 sc1", "s_waitcnt vmcnt(0)", txt + " sc1", f"s_branch {back}"])
        return r
    def publish(self, tok, soff, off=0, local=True):
        self.k.wait(tok)
        return self.flag_store(soff, off, local)
    def publish_items(self, get, soff, off, at):
        return [Item(fn=lambda: self.k.wait(get()), at=at), Item(fn=lambda: self.flag_store(soff, off), cost=2, at=at)]

    def dma(self, vaddr, srd, soff, m0, extra=''):
        self.k(m0)
        return self.k(f"buffer_load_dwordx4 {v(vaddr)}, {s(srd,4)}, {soff} offen {extra} lds".replace('  ', ' '))

    def prologue(self):
        k = self.k
        k("s_cmp_ge_u32 s2, 256\ns_cbranch_scc1 L_END")
        if self.o.get('stamps'): k(f"v_mov_b32 {v(vST[0])}, 0\nv_mov_b32 {v(vST[1])}, 0")
        self.stamp('entry')
        k(f"s_lshr_b32 {s(sJ)}, s2, 3")
        self.code_prefetch()
        for r, off in ((RK, 8), (RV, 16), (RW, 96), (RH, 32), (RS, 24), (RQ, 0), (RG, 56), (RU, 64), (RD, 72), (RO, 80)):
            k(f"s_load_dwordx2 {s(r,2)}, s[0:1], {off}")
        k(f"s_load_dwordx2 {s(sDP,2)}, s[0:1], 40")
        k(f"""s_and_b32 {s(sX)}, s2, 7
              v_lshrrev_b32 v5, 6, v0
              v_and_b32 {v(vL)}, 63, v0
              v_readfirstlane_b32 {s(sW)}, v5
              v_lshlrev_b32 {v(vL16)}, 4, {v(vL)}""")
        for r, size in ((RK, 2097152), (RV, 2097152), (RW, WS_SIZE), (RH, 2097152), (RS, 4096)): self.srd(r, size)

        k(f"""v_lshrrev_b32 v24, 3, {v(vL)}
              v_and_b32 v25, 7, {v(vL)}
              v_and_b32 v26, 2, v24
              v_xor_b32 v25, v25, v26
              s_and_b32 {s(T[0])}, {s(sW)}, 1
              s_lshl_b32 {s(T[0])}, {s(T[0])}, 2
              v_xor_b32 v25, {s(T[0])}, v25
              v_lshlrev_b32 v25, 4, v25
              v_lshl_add_u32 v25, v24, 10, v25
              s_lshl_b32 {s(T[0])}, {s(sJ)}, 16
              s_lshl_b32 {s(T[1])}, {s(sW)}, 14
              s_lshl_b32 {s(T[2])}, {s(sX)}, 7
              s_add_u32 {s(T[0])}, {s(T[0])}, {s(T[1])}
              s_add_u32 {s(T[0])}, {s(T[0])}, {s(T[2])}
              v_add_u32 v25, {s(T[0])}, v25
              v_xor_b32 v26, 64, v25
              v_subrev_u32 v26, 8192, v26
              s_lshl_b32 {s(T[1])}, {s(sW)}, 11
              s_add_u32 {s(T[2])}, {s(T[1])}, {L_K + 1024}
              s_add_u32 {s(T[3])}, {s(T[1])}, {L_V}
              s_movk_i32 {s(T[4])}, 8192
              v_and_b32 v27, 15, {v(vL)}
              s_lshl_b32 {s(T[0])}, {s(sX)}, 6
              s_lshl_b32 {s(T[1])}, {s(sW)}, 4
              s_add_u32 {s(T[1])}, {s(T[0])}, {s(T[1])}
              v_add_u32 v27, {s(T[1])}, v27
              v_lshlrev_b32 v28, 3, v27
              s_lshl_b32 {s(T[1])}, {s(sJ)}, 1
              s_add_u32 {s(T[0])}, {s(T[0])}, {s(T[1])}
              s_lshl_b32 {s(T[5])}, {s(T[0])}, 1
              s_lshl_b32 {s(T[6])}, {s(T[0])}, 12
              s_add_u32 {s(T[7])}, {s(T[6])}, 4096
              v_lshlrev_b32 v29, 4, v0""")
        k.wait_lg0()
        self.stamp('start')
        k(f"s_load_dword {s(sN)}, {s(RW,2)}, 0")
        k(f"s_load_dword {s(sD)}, {s(sDP,2)}, {s(T[5])}")
        self.dma(25, RK, '0', f"s_mov_b32 m0, {s(T[2])}")
        self.dma(25, RV, '0', f"s_mov_b32 m0, {s(T[3])}")
        self.dma(25, RK, s(T[4]), f"s_add_u32 m0, {s(T[2])}, 1024")
        self.dma(25, RV, s(T[4]), f"s_add_u32 m0, {s(T[3])}, 1024")
        skip = k.label()
        k(f"s_cmp_lg_u32 {s(sW)}, 0\ns_cbranch_scc1 {skip}\ns_mov_b32 m0, {L_K}\ns_nop 0")
        k.ins.append(I(f"buffer_load_dwordx4 v26, {s(RK,4)}, 0 offen lds"))
        k.place(skip)
        self.sh_tok = k(f"buffer_load_dwordx2 v[30:31], v28, {s(RS,4)}, 0 offen")
        k(f"buffer_load_dwordx4 v[32:35], v29, {s(RH,4)}, {s(T[6])} offen")
        k(f"buffer_load_dwordx4 v[40:43], v29, {s(RH,4)}, {s(T[7])} offen")
        k(f"buffer_load_dwordx4 v[36:39], v29, {s(RH,4)}, {s(T[6])} offen offset:2")
        self.h_tok = k(f"buffer_load_dwordx4 v[44:47], v29, {s(RH,4)}, {s(T[7])} offen offset:2")
        k(f"""s_getreg_b32 {s(sXCC)}, hwreg(HW_REG_XCC_ID, 0, 4)
              v_cmp_eq_u32 vcc, 0, {v(vL)}
              v_mov_b32 v5, 0x80000000
              s_lshl_b32 {s(T[1])}, {s(sX)}, 5
              s_add_u32 {s(T[1])}, {s(T[1])}, {s(sJ)}
              s_lshl_b32 {s(T[1])}, {s(T[1])}, 7
              s_add_u32 {s(T[1])}, {s(T[1])}, {WS_XCCF}
              v_cndmask_b32 {v(vL0)}, v5, 0, vcc""")
        k.wait_lg0()
        k(f"""s_mul_i32 {s(sN)}, {s(sN)}, 1664525
              s_add_u32 {s(sN)}, {s(sN)}, 1013904223
              s_xor_b32 {s(T[0])}, {s(sN)}, {s(sXCC)}
              v_mov_b32 v5, {s(T[0])}
              v_mov_b32 {v(vNON)}, {s(sN)}""")
        k(f"buffer_store_dword v5, {v(vL0)}, {s(RW,4)}, {s(T[1])} offen sc1")
        for r, size in ((RQ, 2097152), (RG, 1835008), (RU, 1835008), (RD, 1835008), (RO, 2097152)): self.srd(r, size)
        k(f"""s_lshr_b32 {s(sD+2)}, {s(sD)}, 16
              s_and_b32 {s(sD+3)}, {s(sD)}, 0xffff0000
              s_lshl_b32 {s(sD+1)}, {s(sD)}, 16
              s_and_b32 {s(sD)}, {s(sD)}, 0xffff
              s_mov_b32 {s(sC2)}, {f32(LOG2E*LOG2E)}
              s_mov_b32 {s(sC2+1)}, {f32(LOG2E*LOG2E)}
              s_mov_b32 {s(sSPIN)}, {self.o.get('spin', 400000)}
              s_mov_b32 {s(sHALF)}, 0x20000
              s_mov_b32 {s(sHH)}, {H_HALF}
              v_and_b32 {v(vP31)}, 31, {v(vL)}
              v_lshlrev_b32 {v(vP31)}, 2, {v(vP31)}
              v_and_b32 {v(vP7)}, 7, {v(vL)}
              v_lshlrev_b32 {v(vP7)}, 2, {v(vP7)}""")
        for i in range(1, 8): k(f"s_movk_i32 {s(sK4+i)}, {4096*i}")

    def code_prefetch(self):
        if not self.o.get('cpf', 1): return
        k = self.k
        k(f"s_getpc_b64 {s(T[2],2)}")
        k.place("L_PC")
        k(f"""s_mul_i32 {s(T[4])}, {s(sJ)}, ((L_LAST-L_PC+4095)/4096)*128
              v_min_u32 v5, (L_LAST-L_PC+4095)/4096-1, v0
              v_lshl_add_u32 v5, v5, 7, {s(T[4])}
              v_min_u32 v5, L_LAST-L_PC-4, v5
              global_load_dword v219, v5, {s(T[2],2)}""")

    def tlb_touch(self):
        if not self.o.get('tlb', 1): return
        k = self.k
        k(f"v_and_b32 v5, 15, {v(vL)}\nv_lshlrev_b32 v5, 20, v5")
        k(f"buffer_load_dword v220, v5, {s(RW,4)}, 0 offen offset:512")
        k(f"buffer_load_dword v221, v5, {s(RO,4)}, 0 offen")
        k(f"buffer_load_dword v196, v5, {s(RG,4)}, 0 offen")
        k(f"buffer_load_dword v197, v5, {s(RU,4)}, 0 offen")
        k(f"buffer_load_dword v198, v5, {s(RQ,4)}, 0 offen")

    def q_load(self):
        k = self.k
        k(f"""s_lshl_b32 {s(T[0])}, {s(sX)}, 8
              s_lshl_b32 {s(T[1])}, {s(sJ)}, 3
              s_add_u32 {s(T[0])}, {s(T[0])}, {s(T[1])}
              s_add_u32 {s(T[0])}, {s(T[0])}, {s(sW)}
              s_lshl_b32 {s(T[0])}, {s(T[0])}, 10
              s_add_u32 {s(T[1])}, {s(T[0])}, 4096""")
        k(f"buffer_load_dwordx4 v[204:207], {v(vL16)}, {s(RQ,4)}, {s(T[0])} offen")
        self.q_tok = k(f"buffer_load_dwordx4 v[208:211], {v(vL16)}, {s(RQ,4)}, {s(T[1])} offen")

    def persistent(self):
        k = self.k
        k(f"""s_lshl_b32 {s(T[0])}, {s(sJ)}, 2
              s_add_u32 {s(T[0])}, {s(T[0])}, {s(sW)}
              s_lshl_b32 {s(T[8])}, {s(sX)}, 18
              s_lshl_b32 {s(T[9])}, {s(sX)}, 12
              s_lshr_b32 {s(T[10])}, {s(sJ)}, 3
              s_and_b32 {s(T[11])}, {s(sJ)}, 7
              s_lshl_b32 {s(T[1])}, {s(T[0])}, 2
              s_add_u32 {s(T[1])}, {s(T[1])}, {s(T[9])}
              s_add_u32 {s(sAFs)}, {s(T[1])}, {WS_AF}
              s_lshl_b32 {s(T[1])}, {s(sW)}, 7
              s_add_u32 {s(T[1])}, {s(T[1])}, {s(T[9])}
              s_add_u32 {s(sAFp)}, {s(T[1])}, {WS_AF}
              s_lshl_b32 {s(T[2])}, {s(sJ)}, 2
              s_add_u32 {s(T[1])}, {s(T[1])}, {s(T[2])}
              s_add_u32 {s(sHFs)}, {s(T[1])}, {WS_HF}
              s_lshl_b32 {s(T[1])}, {s(T[10])}, 7
              s_lshl_b32 {s(T[2])}, {s(sW)}, 5
              s_add_u32 {s(T[1])}, {s(T[1])}, {s(T[2])}
              s_add_u32 {s(T[1])}, {s(T[1])}, {s(T[9])}
              s_add_u32 {s(sHFp)}, {s(T[1])}, {WS_HF}
              s_lshl_b32 {s(T[2])}, {s(T[11])}, 2
              s_add_u32 {s(T[1])}, {s(T[1])}, {s(T[2])}
              s_add_u32 {s(sFFs)}, {s(T[1])}, {WS_FF}
              s_lshr_b32 {s(T[1])}, {s(sJ)}, 1
              s_lshl_b32 {s(T[1])}, {s(T[1])}, 5
              s_add_u32 {s(T[1])}, {s(T[1])}, {s(T[9])}
              s_add_u32 {s(sFFp)}, {s(T[1])}, {WS_FF}
              s_lshl_b32 {s(T[1])}, {s(T[0])}, 10
              s_add_u32 {s(T[1])}, {s(T[1])}, {s(T[8])}
              s_add_u32 {s(sFR[0])}, {s(T[1])}, {WS_F}
              s_add_u32 {s(sFR[1])}, {s(T[1])}, {WS_F + 0x20000}
              s_lshr_b32 {s(T[1])}, {s(T[0])}, 5
              s_lshl_b32 {s(T[1])}, {s(T[1])}, 15
              s_bfe_u32 {s(T[2])}, {s(T[0])}, 0x10004
              s_lshl_b32 {s(T[2])}, {s(T[2])}, 10
              s_and_b32 {s(T[3])}, {s(T[0])}, 15
              s_lshl_b32 {s(T[3])}, {s(T[3])}, 4
              s_add_u32 {s(T[1])}, {s(T[1])}, {s(T[2])}
              s_add_u32 {s(T[1])}, {s(T[1])}, {s(T[3])}
              s_add_u32 {s(T[1])}, {s(T[1])}, {s(T[8])}
              s_add_u32 {s(T[1])}, {s(T[1])}, {WS_A}
              v_lshrrev_b32 v5, 2, {v(vL)}
              v_lshlrev_b32 v5, 11, v5
              v_and_b32 {v(vAst)}, 3, {v(vL)}
              v_lshl_add_u32 {v(vAst)}, {v(vAst)}, 8, v5
              v_add_u32 {v(vAst)}, {s(T[1])}, {v(vAst)}
              s_lshl_b32 {s(T[1])}, {s(sW)}, 15
              s_add_u32 {s(T[1])}, {s(T[1])}, {s(T[8])}
              s_add_u32 {s(T[1])}, {s(T[1])}, {WS_A}
              v_add_u32 {v(vAld[0])}, {s(T[1])}, {v(vL16)}
              v_add_u32 {v(vAld[1])}, 0x20000, {v(vAld[0])}
              v_add_u32 {v(vW1)}, 57344, {v(vL16)}
              v_lshrrev_b32 v5, 4, {v(vL)}
              v_and_b32 v23, 15, {v(vL)}
              v_lshlrev_b32 v22, 9, v5
              v_lshl_add_u32 v22, v23, 4, v22
              s_mul_i32 {s(T[4])}, {s(sX)}, {H_X}
              s_add_u32 {s(T[4])}, {s(T[4])}, {WS_H}
              s_mul_i32 {s(T[1])}, {s(sW)}, {H_RB}
              s_mul_i32 {s(T[2])}, {s(sJ)}, 3584
              s_add_u32 {s(T[1])}, {s(T[1])}, {s(T[2])}
              s_add_u32 {s(T[1])}, {s(T[1])}, {s(T[4])}
              v_add_u32 {v(vHm)}, {s(T[1])}, v22
              s_mul_i32 {s(T[1])}, {s(T[10])}, {H_RB}
              s_mul_i32 {s(T[2])}, {s(sW)}, 28672
              s_add_u32 {s(T[1])}, {s(T[1])}, {s(T[2])}
              s_add_u32 {s(T[1])}, {s(T[1])}, {s(T[4])}
              v_add_u32 {v(vHld[0])}, {s(T[1])}, v22
              v_add_u32 {v(vHld[1])}, {H_HALF}, {v(vHld[0])}
              v_cmp_gt_u32 vcc, 48, {v(vL)}
              v_add_u32 {v(vHt)}, 2048, {v(vHm)}
              v_mov_b32 v22, 0x80000000
              v_mul_u32_u24 {v(vRw)}, 272, v23
              v_cndmask_b32 {v(vHt)}, v22, {v(vHt)}, vcc
              v_lshl_add_u32 {v(vRw)}, v5, 4, {v(vRw)}
              s_mul_i32 {s(T[1])}, {s(sW)}, 8704
              s_add_u32 {s(T[1])}, {s(T[1])}, {L_RED}
              v_add_u32 {v(vRw)}, {s(T[1])}, {v(vRw)}
              v_lshrrev_b32 v5, 3, {v(vL)}
              v_mul_u32_u24 {v(vRr)}, 272, v5
              v_lshl_add_u32 {v(vRr)}, {v(vP7)}, 3, {v(vRr)}
              s_mul_i32 {s(T[1])}, {s(sW)}, {8*272}
              s_add_u32 {s(T[1])}, {s(T[1])}, {L_RED}
              v_add_u32 {v(vRr)}, {s(T[1])}, {v(vRr)}
              s_lshl_b32 {s(T[1])}, {s(T[10])}, 5
              s_lshl_b32 {s(T[2])}, {s(sW)}, 3
              s_add_u32 {s(T[1])}, {s(T[1])}, {s(T[2])}
              v_add_u32 v5, {s(T[1])}, v5
              s_lshl_b32 {s(T[2])}, {s(T[11])}, 7
              s_add_u32 {s(T[2])}, {s(T[2])}, {s(T[8])}
              v_lshl_add_u32 v22, {v(vP7)}, 2, {s(T[2])}
              v_lshl_add_u32 {v(vF2)}, v5, 10, v22
              v_add_u32 {v(vF2)}, {WS_F}, {v(vF2)}
              v_lshrrev_b32 v23, 2, v5
              v_and_b32 v5, 3, v5
              v_lshl_add_u32 v5, v23, 3, v5
              v_lshl_add_u32 {v(vO)}, v5, 10, v22""")

    W1V = 212
    def w1_addr(self):
        k = self.k; vb = self.W1V
        k(f"s_mul_i32 {s(T[0])}, {s(sJ)}, 112\ns_movk_i32 {s(T[1])}, 9363\ns_movk_i32 {s(T[2])}, {3584 - 7*16}")
        for i in range(7):
            k(f"""v_add_u32 v5, {64*i}, {v(vL)}
                  v_mul_u32_u24 {v(vb+i)}, {s(T[1])}, v5
                  v_lshrrev_b32 {v(vb+i)}, 16, {v(vb+i)}
                  v_mul_u32_u24 {v(vb+i)}, {s(T[2])}, {v(vb+i)}
                  v_lshl_add_u32 {v(vb+i)}, v5, 4, {v(vb+i)}
                  v_add_u32 {v(vb+i)}, {s(T[0])}, {v(vb+i)}""")
        k(f"s_mul_i32 {s(sW1S)}, {s(sW)}, 229376\ns_mul_i32 {s(sW1L)}, {s(sW)}, 14336")

    def w1_dma_text(self, n):
        ck, mat, i = n // 14, (n % 14) // 7, n % 7
        L = []
        if n == 14: L.append(f"s_add_u32 {s(sW1S)}, {s(sW1S)}, {4*229376}")
        L.append(f"s_add_u32 m0, {s(sW1L)}, {ck*57344 + mat*7168 + i*1024}")
        L.append(f"buffer_load_dwordx4 {v(self.W1V+i)}, {s(RU if mat else RG,4)}, {s(sW1S)} offen lds")
        return L
    def w1_dma(self, cnt):
        for _ in range(cnt):
            if self.w1_next >= 28: return
            n = self.w1_next; self.w1_next += 1
            for x in self.w1_dma_text(n): self.w1_tok[n] = self.k(x)

    RL = 222
    def w1_relayout_addr(self):
        k = self.k; r = self.RL
        k(f"""v_lshrrev_b32 v5, 4, {v(vL)}
              v_bfe_u32 {v(r)}, {v(vL)}, 2, 2
              v_lshl_add_u32 {v(r)}, v5, 3, {v(r)}
              v_mul_u32_u24 {v(r)}, 112, {v(r)}
              v_add_u32 {v(r)}, {s(sW1L)}, {v(r)}
              v_and_b32 {v(r+2)}, 3, {v(vL)}
              v_bfe_u32 {v(r+3)}, {v(vL)}, 1, 1
              v_mul_u32_u24 {v(r+3)}, 7168, {v(r+3)}
              v_and_b32 v22, 1, {v(vL)}
              v_lshl_add_u32 {v(r+3)}, v22, 3, {v(r+3)}
              v_add_u32 {v(r+1)}, {v(r)}, {v(r+3)}
              v_lshl_add_u32 {v(r)}, {v(r+2)}, 3, {v(r)}
              v_add_u32 {v(r+2)}, {s(sW1L)}, {v(vL16)}
              v_bfe_u32 {v(r+3)}, {v(vL)}, 1, 2
              v_lshlrev_b32 {v(r+3)}, 2, {v(r+3)}
              v_bfe_u32 v23, {v(vL)}, 3, 1
              v_lshl_add_u32 {v(r+3)}, v23, 1, {v(r+3)}
              v_add_u32 {v(r+3)}, {v(r+3)}, v22
              v_lshl_add_u32 {v(r+3)}, v5, 4, {v(r+3)}
              v_lshlrev_b32 {v(r+3)}, 4, {v(r+3)}
              v_add_u32 {v(r+3)}, {s(sW1L)}, {v(r+3)}""")
    def w1_relayout_items(self, ck, vtemp=False):
        k = self.k; r = self.RL
        R, a = (ACC[1], v) if vtemp else (128, globals()['a'])
        L = [Item(fn=lambda: k.wait(self.w1_tok[14*ck + 13]))]
        if ck == 1: L += [Item(f"v_add_u32 {v(r+i)}, 57344, {v(r+i)}") for i in range(4)]
        for sl in range(2):
            for Tt in range(7):
                for hf in range(2):
                    d = R + (sl*7 + Tt)*4 + 2*hf
                    o = (32*sl + 4*hf)*112
                    if Tt < 6: L.append(Item(f"ds_read_b64_tr_b16 {a(d,2)}, {v(r)} offset:{o + (Tt&1)*7168 + 32*(Tt>>1)}"))
                    else: L.append(Item(f"ds_read_b64_tr_b16 {a(d,2)}, {v(r+1)} offset:{o + 96}"))
        last = L[-1]
        L.append(Item(fn=lambda: k.wait(last.tok)))
        for n in range(14): L.append(Item(f"ds_write_b128 {v(r+3 if n % 7 == 6 else r+2)}, {a(R + n*4, 4)} offset:{n*1024}"))
        return L
    def w1_relayout(self, ck): Queue(self.k, self.w1_relayout_items(ck)).drain()

    JV = 190
    def wd_job_addr(self):
        k = self.k; r = self.JV
        k(f"""s_lshl_b32 {s(T[0])}, s2, 1
              s_lshr_b32 {s(T[1])}, {s(sW)}, 1
              s_add_u32 {s(T[0])}, {s(T[0])}, {s(T[1])}
              s_mul_i32 {s(T[1])}, {s(T[0])}, 4682
              s_lshr_b32 {s(T[1])}, {s(T[1])}, 16
              s_mul_i32 {s(T[2])}, {s(T[1])}, 14
              s_sub_u32 {s(T[2])}, {s(T[0])}, {s(T[2])}
              s_and_b32 {s(T[3])}, {s(T[1])}, 3
              s_lshr_b32 {s(T[1])}, {s(T[1])}, 2
              s_lshl_b32 {s(T[1])}, {s(T[1])}, 7
              s_mul_i32 {s(T[3])}, {s(T[3])}, {8*57344}
              s_add_u32 {s(T[1])}, {s(T[1])}, {s(T[3])}
              s_cmp_lt_u32 s2, 224
              s_cselect_b32 {s(T[3])}, {s(sW)}, 0
              s_bitcmp1_b32 {s(T[3])}, 0
              s_cselect_b32 {s(T[3])}, 0, 0x80000000
              s_lshl_b32 {s(T[4])}, {s(T[0])}, 6
              s_add_u32 {s(T[4])}, {s(T[4])}, {WS_JF}
              s_lshr_b32 {s(sJF)}, {s(T[3])}, 1
              s_or_b32 {s(sJF)}, {s(sJF)}, {s(T[4])}
              s_lshl_b32 {s(T[0])}, {s(T[0])}, 12
              s_add_u32 {s(T[0])}, {s(T[0])}, {WS_WDT}
              s_or_b32 {s(T[0])}, {s(T[0])}, {s(T[3])}
              s_or_b32 {s(T[1])}, {s(T[1])}, {s(T[3])}
              v_add_u32 {v(r+5)}, {s(T[0])}, {v(vL16)}
              v_lshrrev_b32 v5, 3, {v(vL)}
              v_and_b32 v22, 3, v5
              v_lshlrev_b32 v22, 3, v22
              v_cmp_gt_u32 vcc, 4, v5
              v_lshl_add_u32 v23, {v(vP7)}, 2, {s(T[1])}
              s_lshl_b32 {s(T[2])}, {s(T[2])}, 2""")
        for g in range(4):
            k(f"""s_add_u32 {s(T[0])}, {s(T[2])}, {g}
                  s_mul_i32 {s(T[1])}, {s(T[0])}, 9363
                  s_lshr_b32 {s(T[1])}, {s(T[1])}, 16
                  s_mul_i32 {s(T[3])}, {s(T[1])}, 7
                  s_sub_u32 {s(T[0])}, {s(T[0])}, {s(T[3])}
                  s_mul_i32 {s(T[1])}, {s(T[1])}, 56
                  s_mul_i32 {s(T[3])}, {s(T[0])}, 0x04040404
                  s_add_u32 {s(T[4])}, {s(T[3])}, 0x13121110
                  s_add_u32 {s(T[3])}, {s(T[3])}, 0x03020100
                  s_cmp_ge_u32 {s(T[0])}, 4
                  s_cselect_b32 {s(T[3])}, {s(T[4])}, {s(T[3])}
                  s_cselect_b32 {s(T[4])}, {sum(x << (8*e) for e, x in enumerate(flist(4)[4:]))}, {s(T[4])}
                  s_cmp_eq_u32 {s(T[0])}, 5
                  s_cselect_b32 {s(T[4])}, {sum(x << (8*e) for e, x in enumerate(flist(5)[4:]))}, {s(T[4])}
                  s_cmp_eq_u32 {s(T[0])}, 6
                  s_cselect_b32 {s(T[4])}, {sum(x << (8*e) for e, x in enumerate(flist(6)[4:]))}, {s(T[4])}
                  v_mov_b32 v5, {s(T[3])}
                  v_mov_b32 {v(r+g)}, {s(T[4])}
                  v_cndmask_b32 v5, {v(r+g)}, v5, vcc
                  v_bfe_u32 v5, v5, v22, 8
                  v_add_u32 v5, {s(T[1])}, v5
                  v_lshl_add_u32 {v(r+g)}, v5, 10, v23""")
        k(f"""s_lshl_b32 {s(sJL)}, {s(sW)}, 12
              s_add_u32 {s(sJL)}, {s(sJL)}, {L_JOB}
              v_lshrrev_b32 v5, 4, {v(vL)}
              v_lshlrev_b32 {v(r+4)}, 10, v5
              v_bfe_u32 v5, {v(vL)}, 2, 2
              v_lshl_add_u32 {v(r+4)}, v5, 7, {v(r+4)}
              v_and_b32 v5, 3, {v(vL)}
              v_lshl_add_u32 {v(r+4)}, v5, 3, {v(r+4)}
              v_add_u32 {v(r+4)}, {s(sJL)}, {v(r+4)}""")
    def wd_job_issue(self):
        for g in range(4): self.job_tok = self.dma(self.JV+g, RD, '0', f"s_add_u32 m0, {s(sJL)}, {1024*g}")
    def wd_job_finish(self):
        k = self.k; r = self.JV
        k.wait(self.job_tok)
        t = {}
        for nt in range(4):
            for hf in range(2): t[nt] = k(f"ds_read_b64_tr_b16 {a(128 + 4*nt + 2*hf, 2)}, {v(r+4)} offset:{hf*512 + nt*32}")
        for nt in range(4):
            k.wait(t[nt])
            self.job_st = k(f"buffer_store_dwordx4 {a(128 + 4*nt, 4)}, {v(r+5)}, {s(RW,4)}, 0 offen offset:{1024*nt} sc1")
    WDV = 226
    def wd_addr(self):
        self.k(f"""s_and_b32 {s(T[0])}, {s(sJ)}, 7
                   s_lshl_b32 {s(T[0])}, {s(T[0])}, 2
                   s_add_u32 {s(T[0])}, {s(T[0])}, {s(sW)}
                   s_mul_i32 {s(sJFp)}, {s(T[0])}, {14*64}
                   s_add_u32 {s(sJFp)}, {s(sJFp)}, {WS_JF}
                   s_mul_i32 {s(T[0])}, {s(T[0])}, {14*4096}
                   s_add_u32 {s(T[0])}, {s(T[0])}, {WS_WDT}
                   v_add_u32 {v(vWd[0])}, {s(T[0])}, {v(vL16)}
                   v_add_u32 {v(vWd[1])}, 32768, {v(vWd[0])}
                   v_min_u32 v226, 13, {v(vL)}
                   v_lshlrev_b32 v226, 6, v226
                   s_lshr_b32 {s(T[1])}, {s(sJ)}, 3
                   s_mul_i32 {s(T[1])}, {s(T[1])}, {112*128}
                   s_add_u32 {s(T[0])}, {s(T[0])}, {s(T[1])}
                   v_min_u32 v227, 55, {v(vL)}
                   v_lshl_add_u32 v227, v227, 7, {s(T[0])}""")
    def wd_touch_text(self, i):
        return f"buffer_load_dword {v(228+i)}, v227, {s(RW,4)}, {k4(i)} offen offset:{3072*i} sc1"
    def wd_text(self, n):
        U, nt = divmod(n, 4)
        return f"buffer_load_dwordx4 {a(4*n, 4)}, {v(vWd[U >> 3])}, {s(RW,4)}, {k4(U & 7)} offen offset:{1024*nt}{self.o.get('wdm', ' sc1')}"

    def phase0(self):
        k = self.k
        k(f"""v_lshrrev_b32 v5, 4, {v(vL)}
              v_bfe_u32 v48, {v(vL)}, 2, 2
              v_lshl_add_u32 v49, v5, 4, v48
              v_lshlrev_b32 v49, 7, v49
              v_bfe_u32 v50, {v(vL)}, 1, 1
              s_lshl_b32 {s(T[0])}, {s(sW)}, 1
              v_add_u32 v50, {s(T[0])}, v50
              v_and_b32 v48, 2, v48
              v_xor_b32 v50, v50, v48
              v_and_b32 v48, 1, v5
              v_lshlrev_b32 v48, 2, v48
              v_xor_b32 v50, v50, v48
              v_lshl_add_u32 v49, v50, 4, v49
              v_and_b32 v48, 1, {v(vL)}
              v_lshl_add_u32 v49, v48, 3, v49
              v_add_u32 v49, {L_K}, v49
              v_xor_b32 v50, 64, v49
              v_lshlrev_b32 v51, 12, v27
              v_lshl_add_u32 v51, v5, 5, v51
              s_lshl_b32 {s(T[6])}, {s(sJ)}, 7
              s_add_u32 {s(T[6])}, {s(T[6])}, {WS_KVT}
              v_lshlrev_b32 v52, 5, {v(vP31)}
              s_lshl_b32 {s(T[7])}, {s(sX)}, 12
              s_add_u32 {s(T[7])}, {s(T[7])}, {WS_XCCF}
              s_lshl_b32 {s(T[0])}, {s(sX)}, 9
              s_lshl_b32 {s(T[1])}, {s(sW)}, 7
              s_lshl_b32 {s(T[2])}, {s(sJ)}, 2
              s_add_u32 {s(T[1])}, {s(T[1])}, {s(T[2])}
              s_add_u32 {s(T[0])}, {s(T[0])}, {WS_KVF}
              s_add_u32 {s(T[5])}, {s(T[1])}, {s(T[0])}
              s_xor_b32 {s(T[0])}, {s(sN)}, {s(sXCC)}
              s_mov_b32 {s(sMODE)}, 0
              s_mov_b32 {s(sEXP)}, {s(sN)}""")
        k.wait(self.sh_tok)
        k("s_barrier")
        self.stamp('kv_in')
        xh = k(f"buffer_load_dword v53, v52, {s(RW,4)}, {s(T[7])} offen sc1")
        KR, VR, KS, O, VU, P = 56, 68, 78, 88, 104, 120
        k(f"ds_read_b64_tr_b16 {v(KR,2)}, v50 offset:512")
        for i in range(4): k(f"ds_read_b64_tr_b16 {v(KR+2+2*i,2)}, v49 offset:{1024 + 512*i}")
        for i in range(4): lastv = k(f"ds_read_b64_tr_b16 {v(VR+2*i,2)}, v49 offset:{L_V - L_K + 512*i}")
        k("v_alignbit_b32 v54, v30, v30, 16\nv_alignbit_b32 v55, v31, v31, 16")
        k.wait(('lg', lastv[1] - 4))
        for aa in range(-1, 8): k(f"v_alignbit_b32 {v(KS+1+aa)}, {v(KR+2+aa)}, {v(KR+1+aa)}, 16")
        for aa in range(8):
            k(f"v_dot2_f32_bf16 {v(O+2*aa)}, {v(KS+aa)}, v55, 0")
            k(f"v_dot2_f32_bf16 {v(O+2*aa+1)}, {v(KR+1+aa)}, v55, 0")
        for aa in range(8):
            k(f"v_dot2_f32_bf16 {v(O+2*aa)}, {v(KS+1+aa)}, v54, {v(O+2*aa)}")
            k(f"v_dot2_f32_bf16 {v(O+2*aa+1)}, {v(KR+2+aa)}, v54, {v(O+2*aa+1)}")
        k.wait(lastv)
        for g in range(2):
            for aa in range(4*g, 4*g+4):
                k(f"v_lshlrev_b32 {v(VU+2*aa)}, 16, {v(VR+aa)}")
                k(f"v_and_b32 {v(VU+2*aa+1)}, 0xffff0000, {v(VR+aa)}")
            for aa in range(4*g, 4*g+4): k(f"v_pk_mul_f32 {v(O+2*aa,2)}, {v(O+2*aa,2)}, {v(VU+2*aa,2)}")
            for e in range(4): k(f"v_cvt_pk_bf16_f32 {v(P+4*g+e)}, {v(O+8*g+7-2*e)}, {v(O+8*g+6-2*e)}")
            st = k(f"buffer_store_dwordx4 {v(P+4*g,4)}, v51, {s(RW,4)}, {s(T[6])} offen offset:{16*g}")
        self.stamp('kv_st')
        self.toeplitz_write()
        slow, back, done = k.label(), k.label(), k.label()
        k.wait(xh)
        k(f"v_cmp_ne_u32 vcc, {s(T[0])}, v53\ns_cbranch_vccnz {slow}")
        k.place(back)
        self.tail.append([f"{slow}:",
            f"buffer_load_dword v53, v52, {s(RW,4)}, {s(T[7])} offen sc1", "s_waitcnt vmcnt(0)",
            f"v_xor_b32 v54, {s(sN)}, v53", "v_cmp_lt_u32 vcc, 15, v54", f"s_cbranch_vccz {done}",
            f"s_sub_u32 {s(sSPIN)}, {s(sSPIN)}, 1", f"s_cbranch_scc0 {slow}", "s_branch L_END",
            f"{done}:", f"v_cmp_ne_u32 vcc, {s(T[0])}, v53", f"s_cbranch_vccz {back}",
            f"s_mov_b32 {s(sMODE)}, 1", f"s_not_b32 {s(sEXP)}, {s(sN)}", f"s_branch {back}"])
        self.publish(st, s(T[5]))
        self.stamp('kv_pub')

    def toeplitz_write(self):
        k = self.k
        k.wait(self.h_tok)
        k(f"v_add_u32 v48, {SCR}, v29")
        for ch in range(2):
            k(f"ds_write_b128 v48, {v(32+8*ch,4)} offset:{H_E(ch) - SCR}")
            k(f"ds_write_b128 v48, {v(36+8*ch,4)} offset:{H_O(ch) - SCR}")
        skip = k.label()
        k(f"s_cmp_lg_u32 {s(sW)}, 0\ns_cbranch_scc1 {skip}")
        k(f"""v_readfirstlane_b32 {s(T[1])}, v32
              v_readfirstlane_b32 {s(T[2])}, v40
              v_cmp_eq_u32 vcc, 28, {v(vP7)}
              v_add_u32 v49, {SCR}, {v(vP7)}
              s_lshl_b32 {s(T[1])}, {s(T[1])}, 16
              s_lshl_b32 {s(T[2])}, {s(T[2])}, 16
              v_mov_b32 v50, 0
              v_mov_b32 v51, 0
              v_mov_b32 v54, {s(T[1])}
              v_mov_b32 v55, {s(T[2])}
              v_cndmask_b32 v54, v50, v54, vcc
              v_cndmask_b32 v55, v50, v55, vcc
              ds_write_b32 v49, v50 offset:{H_E(0) - 32 - SCR}
              ds_write_b32 v49, v50 offset:{H_E(1) - 32 - SCR}
              ds_write_b32 v49, v54 offset:{H_O(0) - 32 - SCR}
              ds_write_b32 v49, v55 offset:{H_O(1) - 32 - SCR}
              v_lshlrev_b32 v49, 3, {v(vL)}
              v_add_u32 v49, {L_U}, v49
              ds_write_b64 v49, v[50:51]
              ds_write_b64 v49, v[50:51] offset:{U_S}""")
        k.place(skip)

    def front_addr(self):
        k = self.k; o = self.o; yfs = o.get('yfs', 4)
        k(f"""v_and_b32 v24, 15, {v(vL)}
              v_lshrrev_b32 v25, 4, {v(vL)}
              v_lshlrev_b32 v5, 3, v25
              v_sub_u32 v26, v24, v5
              v_add_u32 v26, 9, v26
              v_and_b32 v5, 1, v26
              v_sub_u32 v26, v26, v5
              v_lshlrev_b32 v26, 1, v26
              v_mul_u32_u24 v5, {H_O(0) - H_E(0)}, v5
              v_add_u32 v26, v26, v5
              s_lshr_b32 {s(T[0])}, {s(sW)}, 1
              s_mul_i32 {s(T[2])}, {s(T[0])}, {H_E(1) - H_E(0)}
              s_and_b32 {s(T[1])}, {s(sW)}, 1
              s_lshl_b32 {s(T[3])}, {s(T[1])}, 8
              s_add_u32 {s(T[2])}, {s(T[2])}, {s(T[3])}
              s_add_u32 {s(T[2])}, {s(T[2])}, {H_E(0)}
              v_add_u32 v152, {s(T[2])}, v26
              s_mul_i32 {s(T[4])}, {s(T[0])}, {U_S}
              s_add_u32 {s(T[4])}, {s(T[4])}, {L_U + 512}
              s_lshl_b32 {s(T[2])}, {s(T[1])}, 11
              s_add_u32 {s(sUm0)}, {s(T[4])}, {s(T[2])}
              s_sub_u32 {s(T[4])}, {s(T[4])}, {s(T[3])}
              s_sub_u32 {s(T[4])}, {s(T[4])}, 224
              v_lshlrev_b32 v140, 5, v24
              v_lshl_add_u32 v140, v25, 4, v140
              v_add_u32 v140, {s(T[4])}, v140
              s_lshl_b32 {s(T[0])}, {s(sX)}, 9
              s_lshr_b32 {s(T[1])}, {s(sJ)}, 3
              s_lshl_b32 {s(T[1])}, {s(T[1])}, 7
              s_add_u32 {s(T[0])}, {s(T[0])}, {s(T[1])}
              s_add_u32 {s(sKVFp)}, {s(T[0])}, {WS_KVF}
              s_lshl_b32 {s(T[0])}, {s(sX)}, 18
              s_lshl_b32 {s(T[1])}, {s(sJ)}, 13
              s_lshl_b32 {s(T[2])}, {s(sW)}, 11
              s_add_u32 {s(T[0])}, {s(T[0])}, {s(T[1])}
              s_add_u32 {s(T[0])}, {s(T[0])}, {s(T[2])}
              s_add_u32 {s(sKVs)}, {s(T[0])}, {WS_KVT}
              s_add_u32 {s(sYst)}, {s(T[0])}, {WS_YP}
              v_lshlrev_b32 v141, 5, v24
              v_lshrrev_b32 v5, 1, v25
              v_lshl_add_u32 v141, v5, 4, v141
              v_and_b32 v5, 1, v25
              v_xor_b32 v5, 1, v5
              v_lshl_add_u32 v141, v5, 3, v141
              s_lshl_b32 {s(T[0])}, {s(sW)}, 10
              s_add_u32 {s(T[1])}, {s(T[0])}, {L_U + 512}
              v_add_u32 v141, {s(T[1])}, v141
              s_add_u32 {s(T[1])}, {s(T[0])}, {L_YT}
              v_add_u32 v151, {s(T[1])}, {v(vL16)}
              s_lshl_b32 {s(T[0])}, {s(sW)}, 13
              s_add_u32 {s(T[0])}, {s(T[0])}, {L_CRED}
              v_add_u32 v142, {s(T[0])}, {v(vL16)}
              s_add_u32 {s(T[0])}, {s(T[2])}, {L_CRED}
              v_add_u32 v143, {s(T[0])}, {v(vL16)}
              v_lshlrev_b32 v144, 6, v24
              v_lshl_add_u32 v144, v25, 4, v144
              s_lshl_b32 {s(T[0])}, {s(sX)}, 5
              s_add_u32 {s(T[0])}, {s(T[0])}, {s(sJ)}
              s_lshl_b32 {s(T[1])}, {s(sW)}, 8
              s_add_u32 {s(T[0])}, {s(T[0])}, {s(T[1])}
              s_mul_i32 {s(T[0])}, {s(T[0])}, {yfs}
              s_add_u32 {s(sYFs)}, {s(T[0])}, {WS_YF}
              v_mul_u32_u24 v148, {yfs}, v0
              s_lshr_b32 {s(T[0])}, {s(sX)}, 1
              s_mul_i32 {s(T[0])}, {s(T[0])}, {256*yfs}
              s_add_u32 {s(sYFp)}, {s(T[0])}, {WS_YF}
              v_lshlrev_b32 v149, 13, v0
              s_lshl_b32 {s(T[0])}, {s(sX)}, 10
              s_lshl_b32 {s(T[1])}, {s(sJ)}, 5
              s_add_u32 {s(T[0])}, {s(T[0])}, {s(T[1])}
              s_add_u32 {s(sYld)}, {s(T[0])}, {WS_YP}
              v_lshlrev_b32 v150, 2, v0
              v_add_u32 v150, {L_YT}, v150""")
        for p in range(1, 8): k(f"v_add_u32 {v(152+p)}, {512*p}, v152")

    def conv(self):
        k = self.k; o = self.o
        toep = []
        for rr in range(4):
            for p in range(8):
                d = (rr*8 + p)*4
                toep.append(f"ds_read2_b32 {a(d,2)}, {v(152+p)} offset0:{16*rr} offset1:{16*rr+1}")
                toep.append(f"ds_read2_b32 {a(d+2,2)}, {v(152+p)} offset0:{16*rr+2} offset1:{16*rr+3}")
        k.wait_lg0()
        k("s_barrier")
        n0 = o.get('toep0', 16)
        tt = {}
        for n in range(n0): tt[n] = k(toep[n])
        ph = self.poll_issue(vP31, s(sKVFp))
        self.stamp('toep')
        self.poll_check(ph)
        self.stamp('kv_seen')
        k(f"s_mov_b32 m0, {s(sUm0)}")
        k(f"buffer_load_dwordx4 {v(vL16)}, {s(RW,4)}, {s(sKVs)} offen sc1 lds")
        tok = k(f"buffer_load_dwordx4 {v(vL16)}, {s(RW,4)}, {s(sKVs)} offen offset:1024 sc1 lds")
        n1 = o.get('toep1', 32)
        for n in range(n0, n1): tt[n] = k(toep[n])
        k.wait(tok)
        k("s_barrier")
        self.stamp('u_in')
        B, C = 64, 96
        bt = {}
        def rdB(rr, q): bt[(rr, q)] = k(f"ds_read_b128 {v(B+4*q,4)}, v140 offset:{512*q + 64*(3-rr)}")
        for q in range(8): rdB(0, q)
        self.wd_job_issue()
        self.q_load()
        self.tlb_touch()
        tq = Queue(k, [Item(x) for x in toep[n1:]]); tits = list(tq.q)
        n2 = o.get('n2', 11)
        dq = []
        for i in range(n2):
            if self.w1_next >= 28: break
            n = self.w1_next; self.w1_next += 1
            for x in self.w1_dma_text(n): dq.append(Item(x, at=4 + i*(o.get('n2span', 124) // n2), tag=n))
        dits = list(dq); dq = Queue(k, dq)
        m = 0
        for rr in range(4):
            need = [tt[n] for n in range(16*rr, 16*rr + 16) if n in tt]
            while any(x.tok is None for x in tits[:max(0, 16*rr + 16 - n1)]): tq.emit(tq.q[0])
            need += [x.tok for x in tits[:max(0, 16*rr + 16 - n1)]]
            for q in range(8):
                k.wait(bt[(rr, q)], *(need if q == 0 else []))
                for p in range(8 - q):
                    c = C + 4*(p+q)
                    src = '0' if (rr == 0 and q == 0) else v(c, 4)
                    k(f"v_mfma_f32_16x16x32_bf16 {v(c,4)}, {a((rr*8+p)*4,4)}, {v(B+4*q,4)}, {src}")
                    m += 1
                    if p < 7 - q:
                        cap = dq.fill(2, m)
                        tq.fill(min(cap, 1))
                if rr < 3: rdB(rr+1, q)
        dq.drain()
        for x in dits: self.w1_tok[x.tag] = x.tok
        self.stamp('conv_mfma')
        KV, P = 32, 160
        for t2 in range(2):
            for ch in range(2): k(f"ds_read_b64 {v(KV+4*t2+2*ch,2)}, v141 offset:{512*t2 + ch*U_S}")
        for c in range(8): k(f"ds_write_b128 v142, {v(C+4*c,4)} offset:{1024*c}")
        k.wait_lg0()
        k("s_barrier")
        for t2 in range(2):
            for w in range(4): lastp = k(f"ds_read_b128 {v(P+16*t2+4*w,4)}, v143 offset:{8192*w + 1024*t2}")
        for t2 in range(2):
            k.wait(('lg', lastp[1] - 4*(1-t2)))
            b = P + 16*t2
            L = []
            for ch in range(2):
                for e in (0, 2): L.append(f"v_pk_add_f32 {v(b+8*ch+e,2)}, {v(b+8*ch+e,2)}, {v(b+8*ch+4+e,2)}")
            for e in range(4):
                for ch in range(2):
                    L.append(f"v_dot2_f32_bf16 {v(b+8*ch+e)}, {v(KV+4*t2+2*ch+(1-(e>>1)))}, {s(sD+2*ch+(1-(e&1)))}, {v(b+8*ch+e)}")
            for e in range(4): L.append(f"v_cvt_pk_bf16_f32 {v(b+4+e)}, {v(b+e)}, {v(b+8+e)}")
            L.append(f"buffer_store_dwordx4 {v(b+4,4)}, v144, {s(RW,4)}, {s(sYst)} offen offset:{1024*t2} sc1")
            st = self.run(L)[-1].tok
        self.stamp('y_st')
        self.wd_job_finish()
        self.q_stats()
        self.publish(st, s(sYFs), local=False)
        self.stamp('y_pub')
        self.publish(self.job_st, s(sJF), local=False)
        k("s_barrier")

    def stats(self, rows, out, t0, scale=None):
        L = []; n = len(rows)
        for i, x in enumerate(rows):
            b = t0 + 6*i
            L += [f"v_pk_add_f32 {v(b,2)}, {v(x,2)}, {v(x+2,2)}", f"v_pk_mul_f32 {v(b+2,2)}, {v(x,2)}, {v(x,2)}",
                  f"v_pk_add_f32 {v(b+4,2)}, {v(x+4,2)}, {v(x+6,2)}"]
            L += [f"v_pk_fma_f32 {v(b+2,2)}, {v(x+e,2)}, {v(x+e,2)}, {v(b+2,2)}" for e in (2, 4, 6)]
            L += [f"v_pk_add_f32 {v(b,2)}, {v(b,2)}, {v(b+4,2)}", f"v_add_f32 {v(b+2)}, {v(b+2)}, {v(b+3)}", f"v_add_f32 {v(b)}, {v(b)}, {v(b+1)}"]
        for ctl in ("row_ror:8 row_mask:0xf", "row_ror:4 row_mask:0xf", "row_ror:2 row_mask:0xf", "row_ror:1 row_mask:0xf",
                    "row_bcast:15 row_mask:0xa", "row_bcast:31 row_mask:0xc"):
            for i in range(n):
                for e in (2, 0):
                    r = t0 + 6*i + e
                    L.append(f"v_add_f32_dpp {v(r)}, {v(r)}, {v(r)} {ctl} bank_mask:0xf")
        for i in range(n):
            b = t0 + 6*i
            L += [f"v_mul_f32 {v(b)}, 0x3b000000, {v(b)}", f"v_mul_f32 {v(b+2)}, 0x3b000000, {v(b+2)}",
                  f"v_fma_f32 {v(b+2)}, -{v(b)}, {v(b)}, {v(b+2)}", f"v_max_f32 {v(b+2)}, 0, {v(b+2)}",
                  f"v_add_f32 {v(b+2)}, 0x3727c5ac, {v(b+2)}", f"v_rsq_f32 {v(b+2)}, {v(b+2)}"]
            if scale: L.append(f"v_mul_f32 {v(b+2)}, {f32(scale)}, {v(b+2)}")
            L += [f"v_mul_f32_e64 {v(b)}, -{v(b)}, {v(b+2)}", f"v_readlane_b32 {s(out[i])}, {v(b+2)}, 63",
                  f"v_readlane_b32 {s(out[i]+2)}, {v(b)}, 63", f"s_mov_b32 {s(out[i]+1)}, {s(out[i])}",
                  f"v_mov_b32 {v(b+4)}, {s(out[i]+2)}", f"v_mov_b32 {v(b+5)}, {s(out[i]+2)}"]
        return L
    def unpack(self, dst, src):
        L = []
        for e in range(4): L += [f"v_lshlrev_b32 {v(dst+2*e)}, 16, {v(src+e)}", f"v_and_b32 {v(dst+2*e+1)}, 0xffff0000, {v(src+e)}"]
        return L
    def affine(self, dst, x, sp, vb):
        return [f"v_pk_fma_f32 {v(dst+e,2)}, {v(x+e,2)}, {s(sp,2)}, {v(vb,2)}" for e in (0, 2, 4, 6)]
    def run(self, L, look=12):
        its = [Item(x) for x in L]
        Queue(self.k, its, look).drain()
        return its

    def gate_norm(self, halves, nrm, layer, R):
        L = []; sp = [36, 40]
        t0 = R + 16*len(halves)
        for i, h in enumerate(halves):
            L += self.unpack(R + 16*i, YS[h])
            L += [f"v_pk_fma_f32 {v(XS[h]+e,2)}, {v(nrm[h]+e,2)}, {v(R+16*i+e,2)}, {v(XS[h]+e,2)}" for e in (0, 2, 4, 6)]
        L += self.stats([XS[h] for h in halves], sp[:len(halves)], t0, LOG2E)
        for i, h in enumerate(halves):
            b = R + 16*i
            L += self.affine(b, XS[h], sp[i], t0 + 6*i + 4)
            L += [f"v_cvt_pk_bf16_f32 {v(b+8+e)}, {v(b+2*e)}, {v(b+2*e+1)}" for e in range(4)]
            L.append(f"buffer_store_dwordx4 {v(b+8,4)}, {v(vAst)}, {s(RW,4)}, {s(sHALF) if h else 0} offen")
            if layer == 1:
                L += [f"v_cvt_pk_bf16_f32 {v(b+12+e)}, {v(XS[h]+2*e)}, {v(XS[h]+2*e+1)}" for e in range(4)]
                L.append(f"buffer_store_dwordx4 {v(b+12,4)}, {v(vL16)}, {s(RW,4)}, {s(sFR[h])} offen")
        return L

    N0 = [40, 48]
    def q_stats(self):
        k = self.k
        k.wait(self.q_tok)
        L = []
        for h in range(2): L += self.unpack(XS[h], 204 + 4*h)
        L += self.stats(XS, [36, 40], 128)
        for h in range(2): L += self.affine(self.N0[h], XS[h], [36, 40][h], 128 + 6*h + 4)
        self.run(L)

    def y_in(self):
        k = self.k; o = self.o
        done0 = self.w1_next >= 14
        self.w1_dma(o.get('n3', 5))
        self.persistent()
        self.w1_relayout_addr()
        self.wd_addr()
        if done0: self.w1_relayout(0)
        self.stamp('rl0')
        self.poll(148, s(sYFp), local=False)
        self.stamp('y_seen')
        t0 = k(f"buffer_load_dwordx4 v[32:35], v149, {s(RW,4)}, {s(sYld)} offen sc1")
        t1 = k(f"buffer_load_dwordx4 v[36:39], v149, {s(RW,4)}, {s(sYld)} offen offset:16 sc1")
        pj = self.poll_issue(226, s(sJFp), 0, 229)
        self.w1_dma(o.get('n4', 9))
        if not done0 and self.w1_next >= 14: self.w1_relayout(0); done0 = True
        k.wait(t0)
        for e in range(4): k(f"ds_write_b32 v150, {v(32+e)} offset:{1024*e}")
        k.wait(t1)
        for e in range(4): k(f"ds_write_b32 v150, {v(36+e)} offset:{1024*(4+e)}")
        k.wait_lg0()
        k("s_barrier")
        for h in range(2): k(f"ds_read_b128 {v(YS[h],4)}, v151 offset:{4096*h}")
        k.wait_lg0()
        self.stamp('y_in')
        its = self.run(self.gate_norm([0, 1], self.N0, 0, 56))
        sts = [x.tok for x in its if 'store' in x.text]
        self.stamp('a_st')
        self.poll_check(pj, False)
        if done0: self.gemm1_start(0)
        self.publish(sts[0], s(sAFs), 0)
        self.publish(sts[1], s(sAFs), 512)
        k(f"s_or_b32 {s(T[0])}, s2, {s(sW)}\ns_cmp_eq_u32 {s(T[0])}, 0\ns_cselect_b32 {s(T[0])}, 0, 0x40000000")
        k(f"buffer_store_dword {v(vNON)}, {v(vL0)}, {s(RW,4)}, {s(T[0])} offen sc1")
        self.stamp('a_pub')
        self.w1_dma(o.get('n5', 28))
        self.rl1_done = bool(o.get('rl1_front', 1))
        if not done0: self.w1_relayout(0)
        if self.rl1_done:
            self.w1_relayout(1); k.wait_lg0(); k("s_barrier")
        if not done0: self.gemm1_start(0)

    def epilogue1(self, B, half, off, pk):
        L = []; so = s(sHH) if half else '0'
        def grp(g, u, n, outs, t):
            for e in range(n): L.append(f"v_exp_f32_e64 {v(t+e)}, -{v(g+e)}")
            if pk:
                for e in range(0, n, 2): L.append(f"v_pk_mul_f32 {v(u+e,2)}, {v(g+e,2)}, {v(u+e,2)}")
                for e in range(0, n, 2): L.append(f"v_pk_fma_f32 {v(t+e,2)}, {v(t+e,2)}, {s(sC2,2)}, {s(sC2,2)}")
            else:
                for e in range(n): L.append(f"v_mul_f32 {v(u+e)}, {v(g+e)}, {v(u+e)}")
                for e in range(n): L.append(f"v_fma_f32 {v(t+e)}, {v(t+e)}, {s(sC2)}, {s(sC2)}")
            for e in range(n): L.append(f"v_rcp_f32 {v(t+e)}, {v(t+e)}")
            if pk:
                for e in range(0, n, 2): L.append(f"v_pk_mul_f32 {v(u+e,2)}, {v(u+e,2)}, {v(t+e,2)}")
            else:
                for e in range(n): L.append(f"v_mul_f32 {v(u+e)}, {v(u+e)}, {v(t+e)}")
            for e in range(0, n, 2): L.append(f"v_cvt_pk_bf16_f32 {v(outs[e//2])}, {v(u+e)}, {v(u+e+1)}")
        grp(B, B+4, 4, [B, B+1], TMP)
        grp(B+8, B+12, 4, [B+2, B+3], TMP+4)
        L.append(f"buffer_store_dwordx4 {v(B,4)}, {v(vHm)}, {s(RW,4)}, {so} offen offset:{off}")
        grp(B+16, B+20, 4, [B+8, B+9], TMP)
        grp(B+24, B+26, 2, [B+10], TMP+4)
        Z, C, A_ = B+4, B+5, B+6
        L += [f"v_mov_b32 {v(C)}, {v(B+8)}", f"v_mov_b32 {v(A_)}, {v(B+9)}", f"v_mov_b32 {v(Z)}, {v(B+10)}",
              f"v_permlane32_swap_b32 {v(A_)}, {v(B+11)}", f"v_permlane32_swap_b32 {v(C)}, {v(Z)}",
              f"v_permlane16_swap_b32 {v(Z)}, {v(B+11)}",
              f"buffer_store_dwordx4 {v(B+8,4)}, {v(vHt)}, {s(RW,4)}, {so} offen offset:{off}"]
        return L

    def a_plan(self, layer):
        n = self.o.get('ring0', 8) if layer == 0 else self.o.get('ring1', 4)
        ring = ([('v', AR + 8*i) for i in range(4)] + [('a', 224 + 8*i) for i in range(4)])[:n]
        reg = {gs: ring[gs % n] for gs in range(32)}
        issue = {}
        for gs in range(32):
            prev = [p for p in range(gs) if reg[p] == reg[gs]]
            issue[gs] = prev[-1] + 1 if prev else -1
        return reg, issue

    def gemm1_start(self, layer):
        k = self.k
        self.wt, self.at = {}, {}
        self.areg, self.aiss = self.a_plan(layer)
        for Tt in range(7): self.rdW(0, Tt)
    def rdW(self, gs, Tt):
        st = gs % 16
        base, o = (vL16, st*7168) if st < 8 else (vW1, (st-8)*7168)
        self.wt[(gs, Tt)] = self.k(f"ds_read_b128 {v(WF + 28*(gs&1) + 4*Tt, 4)}, {v(base)} offset:{o + 1024*Tt}")
    def afrag(self, gs, mt):
        kind, b = self.areg[gs]
        return (v if kind == 'v' else a)(b + 4*mt, 4)
    def ldA(self, gs, mt):
        st = gs % 16
        self.at[(gs, mt)] = self.k(f"buffer_load_dwordx4 {self.afrag(gs, mt)}, {v(vAld[gs // 16])}, {s(RW,4)}, {k4(st>>1)} offen offset:{((st&1)*2+mt)*1024} sc1")

    def gemm1(self, layer):
        k = self.k; o = self.o
        lo = 1024*layer
        self.poll(vP31, s(sAFp), lo)
        self.stamp(f'a_seen{layer}')
        todo = sorted(range(32), key=lambda g: g)
        nxtA = 0
        while self.aiss[nxtA] < 0 and nxtA < o.get('a_init', 5):
            for mt in range(2): self.ldA(nxtA, mt)
            nxtA += 1
        if layer == 0: self.w1_dma(28)
        firstB = max(min(self.aiss[g] for g in range(16, 32)), o.get('firstB', 0) if layer else 0)
        queues = []
        if layer == 0:
            queues.append(Queue(k, self.poll_items(vP31, s(sAFp), lo + 512, 14*2, 14*(firstB - 2))))
            rl = self.w1_relayout_items(1, True) if not self.rl1_done else []
            for x in rl: x.at = 14*o.get('rl1_at', 1)
            rlq = Queue(k, rl); queues.append(rlq)
            t0 = o.get('wd_t0', 1); t1 = o.get('wd_t1', 31)
            wd = [Item(self.wd_text(n), at=int(14*(t0 + (t1 - t0)*n/56))) for n in range(o.get('wd_n', 56))]
            wdq = Queue(k, wd, 1); queues.append(wdq)
            burst = None
        else:
            box = []
            s0 = o.get('rowb_at', 5)
            its = self.poll_items(vP7, s(sFFp), 512, 14*(s0 - 3), 14*(s0 - 1) - 8)
            fld = Item(f"buffer_load_dwordx4 {v(ACC[1],4)}, {v(vL16)}, {s(RW,4)}, {s(sFR[1])} offen sc1"); its.append(fld)
            queues.append(Queue(k, its))
            burst = s0
        epi = None; hbox = []
        for gs in range(32):
            ps, st = divmod(gs, 16)
            if gs == burst:
                queues[0].drain(); k.wait(fld.tok)
                self.stamp('rowB_go')
                sts = self.rowop(1, ACC[1])
                self.stamp('rowB')
                queues = [Queue(k, self.publish_items(lambda: sts, s(sAFs), lo + 512, 14*gs + 22)
                                + self.poll_items(vP31, s(sAFp), lo + 512, 14*(firstB - 2) - 4, 14*firstB - 4))]
            if gs == firstB: queues[0].drain()
            if layer == 0 and gs == 7 and not self.rl1_done:
                print('relayout left at step 7:', rlq.cost())
                rlq.drain(); k.wait_lg0(); k("s_barrier")
            if gs == 16:
                for q in queues[:2]: q.drain()
                epi = [Item(x, at=14*16 + 4) for x in self.epilogue1(ACC[0], 0, 0, 0) + self.epilogue1(ACC[0] + 28, 0, 256, 0)]
                last = epi[-1]
                queues = [Queue(k, epi, 14), Queue(k, [])]
                if layer == 0: queues = [queues[0], queues[1], wdq]
                pub = False
            if epi and not pub and not len(queues[0]):
                queues[1].q += self.publish_items(lambda: last.tok, s(sHFs), lo, 14*gs + o.get('ha_pub', 10)); pub = True
                pubstep = gs
                queues[1].q.append(Item(fn=lambda: hbox.append(self.poll_issue(vP7, s(sHFp), lo)), at=o.get('ha_pi', 14*31 + 2)))
            fixed = [[] for _ in range(14)]
            if gs + 1 < 32:
                for Tt in range(7): fixed[2*(Tt // 2)].append(('W', gs+1, Tt))
            slot = 6
            while nxtA < 32 and self.aiss[nxtA] <= gs and slot <= 10 and (nxtA < 16 or gs >= firstB):
                fixed[slot].append(('A', nxtA, 0)); fixed[slot+2].append(('A', nxtA, 1)); nxtA += 1; slot += 4
            k.wait(self.at[(gs, 1)], self.wt[(gs, 6)])
            for i in range(14):
                Tt, mt = divmod(i, 2)
                d = ACC[ps] + 28*mt + 4*Tt
                k(f"v_mfma_f32_16x16x32_bf16 {v(d,4)}, {v(WF + 28*(gs&1) + 4*Tt, 4)}, {self.afrag(gs, mt)}, {'0' if st == 0 else v(d,4)}")
                for it in fixed[i]:
                    if it[0] == 'W': self.rdW(it[1], it[2])
                    else: self.ldA(it[1], it[2])
                cap = 2 - len(fixed[i]) - (1 if i == 13 else 0)
                for q in (queues[::-1] if ps else queues): cap = q.fill(cap, 14*gs + i)
            if gs == 15: self.stamp(f'g1a{layer}'); self.late = layer == 1
        print('layer', layer, 'left after G1B:', [q.cost() for q in queues], f'published in step {pubstep}' if pub else 'not published')
        queues[0].drain()
        if not pub: queues[1].q += self.publish_items(lambda: last.tok, s(sHFs), lo, 0)
        queues[1].drain()
        if layer == 0: wdq.drain(); self.wd_last = wd[-1].tok
        self.stamp(f'g1b{layer}')
        self.ht = {}
        ph = hbox[0] if hbox else self.poll_issue(vP7, s(sHFp), lo)
        epi = [Item(x) for x in self.epilogue1(ACC[1], 1, 0, 1) + self.epilogue1(ACC[1] + 28, 1, 256, 1)]
        q = Queue(k, epi, 12)
        total = q.cost()
        lead = o.get('epi_lead', 24); nld = o.get('epi_ld', 9)
        while total - q.cost() < lead:
            if q.fill(3) == 3: q.emit(q.q[0])
        self.poll_check(ph)
        self.stamp(f'hA_seen{layer}')
        self.nxtH = 0
        marks = [lead + (total - lead)*i // nld for i in range(nld)]
        while len(q):
            while marks and total - q.cost() >= marks[0]: marks.pop(0); self.ldH(0)
            if q.fill(3) == 3: q.emit(q.q[0])
        self.hB_tok = epi[-1].tok
        self.stamp(f'epiB{layer}')

    def g2_order(self):
        D = self.o.get('skew', 4)
        A = [(0, U, mt) for U in range(14) for mt in range(2)]
        B = sorted([(1, U, mt) for U in range(14) for mt in range(2)], key=lambda x: (x[1] + D*x[2], x[2]))
        return A + B
    def hreg(self, n):
        if n < 14: return ACC[0] + 4*n
        if n < 28: return WF + 4*(n - 14)
        if n < 42: return ACC[1] + 4*(n - 28)
        return ACC[0] + 4*(n - 42)
    def ldH(self, _=0):
        n = self.nxtH; self.nxtH += 1
        half, U, mt = self.g2_order()[n]
        self.ht[n] = self.k(f"buffer_load_dwordx4 {v(self.hreg(n),4)}, {v(vHld[half])}, {s(RW,4)}, {k4(U>>1)} offen offset:{(U&1)*2048 + mt*256} sc1")

    def red_write(self, A2):
        return [f"ds_write_b128 {v(vRw)}, {v(A2 + 16*mt + 4*nt, 4)} offset:{4352*mt + 64*nt}" for mt in range(2) for nt in range(4)]
    def red_read(self, P):
        return [f"ds_read_b128 {v(P + 8*w + 4*hf, 4)}, {v(vRr)} offset:{8704*w + 16*hf}" for w in range(4) for hf in range(2)]
    def red_sum(self, P, half, layer, X3, pk):
        L = []
        def add(d, x, y):
            if pk: L.extend(f"v_pk_add_f32 {v(d+e,2)}, {v(x+e,2)}, {v(y+e,2)}" for e in (0, 2, 4, 6))
            else: L.extend(f"v_add_f32 {v(d+e)}, {v(x+e)}, {v(y+e)}" for e in range(8))
        add(P, P, P+8); add(P+16, P+16, P+24)
        if layer == 1:
            L += self.unpack(P+8, X3); add(P, P, P+8)
        add(P, P, P+16)
        L += [f"v_cvt_pk_bf16_f32 {v(P+8+e)}, {v(P+2*e)}, {v(P+2*e+1)}" for e in range(4)]
        if layer == 0: L.append(f"buffer_store_dwordx4 {v(P+8,4)}, {v(vF2)}, {s(RW,4)}, {s(sHALF) if half else 0} offen")
        else: L.append(f"buffer_store_dwordx4 {v(P+8,4)}, {v(vO)}, {s(RO,4)}, {k4(half)} offen{self.o.get('ost', '')}")
        return L

    def gemm2(self, layer):
        k = self.k; o = self.o
        lo = 1024*layer
        AC2 = [AR, WF]
        X3 = [TMP, TMP + 4]
        order = self.g2_order()
        LA = o.get('g2la', 20)
        xt = {}
        def ldX(h): xt[h] = k(f"buffer_load_dwordx4 {v(X3[h],4)}, {v(vF2)}, {s(RW,4)}, {s(sHALF) if h else 0} offen sc1")
        side = Queue(k, self.publish_items(lambda: self.hB_tok, s(sHFs), lo + 512, o.get('hb_pub', 24))
                     + self.poll_items(vP7, s(sHFp), lo + 512, o.get('hb_pi', 44), o.get('hb_pc', 70)))
        if layer == 0: k.wait(self.wd_last)
        fbox = []; seenB = False; wB = self.red_write(AC2[1]); doneB = 0
        def next_load():
            self.ldH()
            if layer == 1 and self.nxtH == 36: ldX(0)
            if layer == 1 and self.nxtH == 56:
                ldX(1)
                if o.get('wbl2', 0): self.writeback()
        for n in range(56):
            half, U, mt = order[n]
            if n == 28:
                self.stamp(f'g2a{layer}')
                side.drain(); seenB = True
                t = 4*28
                sp = o.get('ra_sp', 4)
                L = [Item(x, at=t + 3 + sp*i) for i, x in enumerate(self.red_write(AC2[0]))]
                L += [Item(fn=lambda: k.wait_lg0(), at=t + 8*sp + 3), Item(fn=lambda: k("s_barrier"))]
                L += [Item(x) for x in self.red_read(AR)]
                L += [Item(fn=lambda: k.wait_lg0(), at=t + 8*sp + o.get('ra_rd', 16)), Item(fn=lambda: k("s_barrier"))]
                if layer == 1: L += [Item(fn=lambda: k.wait(xt[0]))]
                L += [Item(x) for x in self.red_sum(AR, 0, layer, X3[0], 0)]
                fA = L[-1]
                if layer == 0:
                    L += self.publish_items(lambda: fA.tok, s(sFFs), 0, o.get('fa_pub', t + 90))
                    L.append(Item(fn=lambda: fbox.append(self.poll_issue(vP7, s(sFFp), 0)), at=o.get('fa_pi', 8*28 - 4)))
                if o.get('nored') and layer == 1: L = []
                side = Queue(k, L)
                last0 = max(i for i in range(28, 56) if order[i][2] == 0)
                late = Queue(k, [Item(x, at=4*(last0 + 1) + 3 + sp*i) for i, x in enumerate(wB[:4])])
            if not len(side): seenB = True
            while n not in self.ht: next_load()
            if n % 2 == 0:
                while seenB and n + 1 not in self.ht: next_load()
                k.wait(self.ht.get(n + 1, self.ht[n]))
            else: k.wait(self.ht[n])
            for nt in range(4):
                d = AC2[half] + 16*mt + 4*nt
                k(f"v_mfma_f32_16x16x32_bf16 {v(d,4)}, {a((4*U+nt)*4,4)}, {v(self.hreg(n),4)}, {'0' if U == 0 else v(d,4)}")
                cap = 2 - (1 if (nt == 3 and n % 2) else 0)
                if (nt == 0 or (nt == 2 and self.nxtH < n + 1 + o.get('g2min', 6))) and self.nxtH < min(56 if seenB else 28, n + 1 + LA) and (self.nxtH < 42 or self.nxtH - 42 < n):
                    next_load(); cap -= 1
                cap = side.fill(cap, 4*n + nt)
                if n >= 28 and all(x.i is not None or x.at > 200 for x in side.q[:1]) and not any('ds_' in (x.text or '') or (x.fn and x.at <= t + 8*sp + 40) for x in side.q):
                    late.fill(cap, 4*n + nt)
        print('layer', layer, 'left after G2B:', side.cost(), late.cost())
        side.drain()
        wB = [x.text for x in late.q] + wB[4:]
        self.stamp(f'g2b{layer}')
        R = ACC[1]
        if layer == 0:
            self.poll_check(fbox[0])
            self.stamp('fA_seen')
            fld = k(f"buffer_load_dwordx4 {v(R,4)}, {v(vL16)}, {s(RW,4)}, {s(sFR[0])} offen sc1")
        for x in wB: k(x)
        if layer == 0: self.run(self.unpack(R + 24, YS[0]))
        k.wait_lg0(); k("s_barrier")
        for x in self.red_read(ACC[0]): k(x)
        if layer == 0:
            k.wait(fld)
            sts, rest = self.rowop(0, R, True)
            self.stamp('rowA')
        k.wait_lg0()
        if layer == 1: k.wait(xt[1])
        fB = self.run(self.red_sum(ACC[0], 1, layer, X3[1], 1))[-1].tok
        self.stamp(f'fB_st{layer}')
        if layer == 0:
            self.gemm1_start(1)
            self.publish(sts, s(sAFs), 1024)
            self.stamp('aA_pub')
            self.run(rest)
            self.publish(fB, s(sFFs), 512)

    def writeback(self):
        k = self.k
        a_, b_ = k.label(), k.label()
        k(f"s_or_b32 {s(T[2])}, {s(sJ)}, {s(sW)}\ns_cmp_lg_u32 {s(T[2])}, 0\ns_cbranch_scc1 {a_}")
        k("buffer_wbl2 sc1")
        k(f"s_branch {b_}"); k.place(a_)
        k.ins.append(I(f"buffer_load_dword {v(vPT)}, {v(vL0)}, {s(RW,4)}, 0 offen"))
        k.place(b_)

    def rowop(self, h, R, split=False):
        L = self.unpack(R + 8, R)
        L += [f"v_pk_add_f32 {v(XS[h]+e,2)}, {v(XS[h]+e,2)}, {v(R+8+e,2)}" for e in (0, 2, 4, 6)]
        L += self.stats([XS[h]], [36], R + 16)
        L += self.affine(R + 8, XS[h], 36, R + 20)
        G = self.gate_norm([h], {h: R + 8}, 1, R + 24)
        rest = []
        if split: G, rest = G[8:-5], G[-5:]
        its = self.run(L + G, 16)
        tok = [x.tok for x in its if 'store' in x.text][-1]
        return (tok, rest) if split else tok

    def build(self):
        k = self.k; o = self.o
        self.prologue()
        self.w1_addr()
        self.w1_dma(o.get('n0', 2))
        self.front_addr()
        self.wd_job_addr()
        self.phase0()
        self.w1_dma(o.get('n1', 1))
        self.conv()
        self.y_in()
        for layer in range(2):
            self.gemm1(layer)
            self.gemm2(layer)
        if o.get('stamps'):
            self.stamp('end')
            k(f"""s_lshl_b32 {s(T[0])}, s2, 2
                  s_add_u32 {s(T[0])}, {s(T[0])}, {s(sW)}
                  s_lshl_b32 {s(T[0])}, {s(T[0])}, 8
                  s_add_u32 {s(T[0])}, {s(T[0])}, {WS_DBG}
                  v_lshrrev_b32 v5, 2, {v(vL16)}
                  buffer_store_dword {v(vST[0])}, v5, {s(RW,4)}, {s(T[0])} offen
                  s_add_u32 {s(T[0])}, {s(T[0])}, 0x40000
                  buffer_store_dword {v(vST[1])}, v5, {s(RW,4)}, {s(T[0])} offen""")
        if o.get('diag'):
            self.stamp('end')
            k(f"""v_sub_u32 v5, {v(vST[1])}, {v(vST[0])}
                  s_nop 1
                  v_readfirstlane_b32 {s(T[0])}, v5
                  s_mul_i32 {s(T[0])}, {s(T[0])}, 8
                  s_memrealtime {s(T[2],2)}
                  s_waitcnt lgkmcnt(0)""")
            k.place("L_DIAG")
            k(f"""s_memrealtime {s(T[4],2)}
                  s_waitcnt lgkmcnt(0)
                  s_sub_u32 {s(T[4])}, {s(T[4])}, {s(T[2])}
                  s_cmp_lt_u32 {s(T[4])}, {s(T[0])}
                  s_cbranch_scc1 L_DIAG""")
        k.place("L_END")
        k("s_endpgm")
        body = k.text()
        for t in self.tail:
            body += "".join((x + "\n") if x.endswith(':') else ("    " + x + "\n") for x in t)
        body += "L_LAST:\n"
        return body

def file_text(opt):
    g = Gen(opt)
    body = g.build()
    ref = open(os.path.join(os.path.dirname(os.path.abspath(__file__)), '..', 'cdna_kernels', NAME + '.s.ref')).read()
    head = ref[:ref.index('; Override launch geometry')]
    txt = head + f"""; @launch grid=(256,1,1) block=(256,1,1) lds={LDS_SIZE}
.amdgcn_target "amdgcn-amd-amdhsa--gfx950"
.text
.globl {NAME}_kernel
.p2align 8
.type {NAME}_kernel,@function
{NAME}_kernel:
{body}.section .rodata,"a"
.p2align 6
.amdhsa_kernel {NAME}_kernel
  .amdhsa_next_free_vgpr 512
  .amdhsa_next_free_sgpr 102
  .amdhsa_accum_offset 256
  .amdhsa_group_segment_fixed_size 0
  .amdhsa_kernarg_size 104
  .amdhsa_user_sgpr_count 2
  .amdhsa_user_sgpr_kernarg_segment_ptr 1
  .amdhsa_system_sgpr_workgroup_id_x 1
.end_amdhsa_kernel
"""
    return txt, g

if __name__ == '__main__':
    import json
    opt = {}; out = None
    for x in sys.argv[1:]:
        if '=' in x:
            kk, vv = x.split('=')
            opt[kk] = vv.split(',') if kk in ('only', 'diag') else (' ' + vv.replace('+', ' ') if kk in ('ost', 'wdm') else int(vv, 0))
        else: out = x
    txt, g = file_text(opt)
    open(out, 'w').write(txt)
    json.dump(g.stamps, open(out + '.stamps.json', 'w'))
    print('instructions', len(g.k.ins), 'nops added', g.k.nops_added, 'stamps', len(g.stamps))
```

```python
import sys, os
sys.path.insert(0, os.path.dirname(os.path.abspath(__file__)))
from dsl import *

NAME = 'interleave_layers__ssm_conv_h3__swiglu_ffn__prompt'

WS_XCCF = 0x1000
WS_KVF  = 0x10000
WS_AF   = 0x11000
WS_HF   = 0x19000
WS_FF   = 0x21000
WS_YF   = 0x30000
WS_JF   = 0x50000
WS_KVT  = 0x100000
WS_F    = WS_KVT
WS_YP   = 0x300000
WS_A    = 0x500000
WS_H    = 0x700000
WS_WDT  = 0xE00000
WS_DBG  = 0x1000000
WS_SIZE = 0x1100000
H_X, H_HALF, H_RB = 917504, 458752, 114688

LDS_SIZE = 163840
SCR   = 114688
L_K   = SCR
L_V   = L_K + 9216
L_H   = L_V + 8192
H_CP  = 4096 + 128
H_E   = lambda ch: L_H + ch * 2 * H_CP + 64
H_O   = lambda ch: L_H + ch * 2 * H_CP + H_CP + 128
L_U   = L_H + 4 * H_CP + 128
U_S   = 4608
assert L_U + 2 * U_S <= LDS_SIZE
L_CRED = SCR
assert L_CRED + 32768 <= L_U
L_YT  = L_U
L_JOB = 114688 - 16384
L_RED = SCR

sX, sJ, sW, sN, sEXP, sSPIN, sXCC, sMODE = 4, 5, 6, 7, 8, 9, 10, 11
T = list(range(12, 24))
sC2 = 24
sHALF = 26
sW1S, sW1L = 27, 3
sD = 28
sDP = 34
RK, RV, RH, RQ, RG, RU, RD, RO, RW, RS = 44, 48, 52, 56, 60, 64, 68, 72, 76, 80
sK4 = 83
def k4(i): return '0' if i == 0 else s(sK4 + i)
sHH = 91
sAFp, sAFs, sHFp, sHFs, sFFp, sFFs = 94, 95, 96, 97, 98, 99
sFR = [100, 101]
sST = (32, 92)
sKVFp, sKVs, sUm0, sYst, sYFs, sYFp, sYld, sJF, sJL, sJFp = 44, 45, 46, 47, 48, 49, 50, 51, 52, 53

vL, vL16, vL0, vNON, vPT = 1, 2, 3, 4, 5
vAld, vHld = [6, 7], [8, 9]
vHm, vHt, vAst, vF2, vO, vRw, vRr, vP31, vP7, vW1 = 10, 11, 12, 13, 14, 15, 16, 17, 18, 19
vST = (20, 21)
vWd = [230, 231]
ACC = [22, 78]
WF, AR, TMP = 134, 190, 222
YS, XS = [232, 236], [240, 248]
LOG2E = 1.4426950408889634

def f32(x):
    import struct
    return '0x%08x' % struct.unpack('<I', struct.pack('<f', x))[0]

def flist(c):
    if c < 4: return [4*c + e for e in range(4)] + [16 + 4*c + e for e in range(4)]
    q = c - 4; X = [44, 46, 54][q]
    return [32 + 4*q + e for e in range(4)] + [48 + 2*q, 49 + 2*q, X, X + 1]

class Gen:
    def __init__(self, opt):
        self.o = opt
        self.k = K()
        self.tail = []
        self.stamps = []
        self.w1_next = 0
        self.late = False
        self.w1_tok = {}

    def stamp(self, name):
        dg = self.o.get('diag')
        if dg and name in dg:
            k = self.k
            k(f"s_memrealtime {s(sST[0],2)}"); k.wait_lg0()
            k(f"v_mov_b32 {v(vST[dg.index(name)])}, {s(sST[0])}")
        if not self.o.get('stamps'): return
        only = self.o.get('only')
        if only and name not in only: return
        k = self.k; n = len(self.stamps)
        k(f"s_memrealtime {s(sST[0],2)}\ns_memtime {s(sST[1],2)}"); k.wait_lg0()
        k(f"v_writelane_b32 {v(vST[0])}, {s(sST[0])}, {n}\nv_writelane_b32 {v(vST[1])}, {s(sST[1])}, {n}")
        self.stamps.append(name)

    def srd(self, base, size):
        self.k(f"s_mov_b32 {s(base+2)}, {size}\ns_mov_b32 {s(base+3)}, 0x20000")

    def poll_issue(self, vaddr, soff, off=0, vt=vPT):
        txt = f"buffer_load_dword {v(vt)}, {v(vaddr)}, {s(RW,4)}, {soff} offen offset:{off} sc1"
        return (self.k(txt), txt, vt)

    def poll_steps(self, get, local=True):
        k = self.k
        slow, back, ok = k.label(), k.label(), k.label()
        def s1(): k.wait(get()[0])
        def s2(): k(f"v_cmp_ne_u32 vcc, {s(sEXP if local else sN)}, {v(get()[2])}")
        def s3():
            if self.o.get('nopoll') and self.late: return
            k(f"s_cbranch_vccnz {slow}"); k.place(back)
            _, txt, vt = get()
            t = [f"{slow}:", txt, "s_waitcnt vmcnt(0)", f"v_cmp_ne_u32 vcc, {s(sN)}, {v(vt)}", f"s_cbranch_vccz {ok}",
                 f"s_sub_u32 {s(sSPIN)}, {s(sSPIN)}, 1", f"s_cbranch_scc0 {slow}", "s_branch L_END", f"{ok}:"]
            if local: t += [f"s_cmp_eq_u32 {s(sMODE)}, 0", f"s_cbranch_scc1 {back}", "buffer_inv sc1", "s_waitcnt vmcnt(0)"]
            self.tail.append(t + [f"s_branch {back}"])
        return [s1, s2, s3]

    def poll_check(self, h, local=True):
        for f in self.poll_steps(lambda: h, local): f()
    def poll(self, vaddr, soff, off=0, local=True):
        self.poll_check(self.poll_issue(vaddr, soff, off), local)
    def poll_items(self, vaddr, soff, off, at_issue, at_check):
        box = []
        it = [Item(fn=lambda: box.append(self.poll_issue(vaddr, soff, off)), at=at_issue)]
        return it + [Item(fn=f, at=at_check) for f in self.poll_steps(lambda: box[0])]

    def flag_store(self, soff, off=0, local=True):
        k = self.k
        txt = f"buffer_store_dword {v(vNON)}, {v(vL0)}, {s(RW,4)}, {soff} offen offset:{off}"
        if not local: return k(txt + " sc1")
        slow, back = k.label(), k.label()
        k(f"s_cmp_lg_u32 {s(sMODE)}, 0\ns_cbranch_scc1 {slow}")
        r = k(txt); k.place(back)
        self.tail.append([f"{slow}:", "s_waitcnt vmcnt(0)", "buffer_wbl2 sc1", "s_waitcnt vmcnt(0)", txt + " sc1", f"s_branch {back}"])
        return r
    def publish(self, tok, soff, off=0, local=True):
        self.k.wait(tok)
        return self.flag_store(soff, off, local)
    def publish_items(self, get, soff, off, at):
        return [Item(fn=lambda: self.k.wait(get()), at=at), Item(fn=lambda: self.flag_store(soff, off), cost=2, at=at)]

    def dma(self, vaddr, srd, soff, m0, extra=''):
        self.k(m0)
        return self.k(f"buffer_load_dwordx4 {v(vaddr)}, {s(srd,4)}, {soff} offen {extra} lds".replace('  ', ' '))

    def prologue(self):
        k = self.k
        k("s_cmp_ge_u32 s2, 256\ns_cbranch_scc1 L_END")
        if self.o.get('stamps'): k(f"v_mov_b32 {v(vST[0])}, 0\nv_mov_b32 {v(vST[1])}, 0")
        self.stamp('entry')
        k(f"s_lshr_b32 {s(sJ)}, s2, 3")
        self.code_prefetch()
        for r, off in ((RK, 8), (RV, 16), (RW, 96), (RH, 32), (RS, 24), (RQ, 0), (RG, 56), (RU, 64), (RD, 72), (RO, 80)):
            k(f"s_load_dwordx2 {s(r,2)}, s[0:1], {off}")
        k(f"s_load_dwordx2 {s(sDP,2)}, s[0:1], 40")
        k(f"""s_and_b32 {s(sX)}, s2, 7
              v_lshrrev_b32 v5, 6, v0
              v_and_b32 {v(vL)}, 63, v0
              v_readfirstlane_b32 {s(sW)}, v5
              v_lshlrev_b32 {v(vL16)}, 4, {v(vL)}""")
        for r, size in ((RK, 2097152), (RV, 2097152), (RW, WS_SIZE), (RH, 2097152), (RS, 4096)): self.srd(r, size)

        k(f"""v_lshrrev_b32 v24, 3, {v(vL)}
              v_and_b32 v25, 7, {v(vL)}
              v_and_b32 v26, 2, v24
              v_xor_b32 v25, v25, v26
              s_and_b32 {s(T[0])}, {s(sW)}, 1
              s_lshl_b32 {s(T[0])}, {s(T[0])}, 2
              v_xor_b32 v25, {s(T[0])}, v25
              v_lshlrev_b32 v25, 4, v25
              v_lshl_add_u32 v25, v24, 10, v25
              s_lshl_b32 {s(T[0])}, {s(sJ)}, 16
              s_lshl_b32 {s(T[1])}, {s(sW)}, 14
              s_lshl_b32 {s(T[2])}, {s(sX)}, 7
              s_add_u32 {s(T[0])}, {s(T[0])}, {s(T[1])}
              s_add_u32 {s(T[0])}, {s(T[0])}, {s(T[2])}
              v_add_u32 v25, {s(T[0])}, v25
              v_xor_b32 v26, 64, v25
              v_subrev_u32 v26, 8192, v26
              s_lshl_b32 {s(T[1])}, {s(sW)}, 11
              s_add_u32 {s(T[2])}, {s(T[1])}, {L_K + 1024}
              s_add_u32 {s(T[3])}, {s(T[1])}, {L_V}
              s_movk_i32 {s(T[4])}, 8192
              v_and_b32 v27, 15, {v(vL)}
              s_lshl_b32 {s(T[0])}, {s(sX)}, 6
              s_lshl_b32 {s(T[1])}, {s(sW)}, 4
              s_add_u32 {s(T[1])}, {s(T[0])}, {s(T[1])}
              v_add_u32 v27, {s(T[1])}, v27
              v_lshlrev_b32 v28, 3, v27
              s_lshl_b32 {s(T[1])}, {s(sJ)}, 1
              s_add_u32 {s(T[0])}, {s(T[0])}, {s(T[1])}
              s_lshl_b32 {s(T[5])}, {s(T[0])}, 1
              s_lshl_b32 {s(T[6])}, {s(T[0])}, 12
              s_add_u32 {s(T[7])}, {s(T[6])}, 4096
              v_lshlrev_b32 v29, 4, v0""")
        k.wait_lg0()
        self.stamp('start')
        k(f"s_load_dword {s(sN)}, {s(RW,2)}, 0")
        k(f"s_load_dword {s(sD)}, {s(sDP,2)}, {s(T[5])}")
        self.dma(25, RK, '0', f"s_mov_b32 m0, {s(T[2])}")
        self.dma(25, RV, '0', f"s_mov_b32 m0, {s(T[3])}")
        self.dma(25, RK, s(T[4]), f"s_add_u32 m0, {s(T[2])}, 1024")
        self.dma(25, RV, s(T[4]), f"s_add_u32 m0, {s(T[3])}, 1024")
        skip = k.label()
        k(f"s_cmp_lg_u32 {s(sW)}, 0\ns_cbranch_scc1 {skip}\ns_mov_b32 m0, {L_K}\ns_nop 0")
        k.ins.append(I(f"buffer_load_dwordx4 v26, {s(RK,4)}, 0 offen lds"))
        k.place(skip)
        self.sh_tok = k(f"buffer_load_dwordx2 v[30:31], v28, {s(RS,4)}, 0 offen")
        k(f"buffer_load_dwordx4 v[32:35], v29, {s(RH,4)}, {s(T[6])} offen")
        k(f"buffer_load_dwordx4 v[40:43], v29, {s(RH,4)}, {s(T[7])} offen")
        k(f"buffer_load_dwordx4 v[36:39], v29, {s(RH,4)}, {s(T[6])} offen offset:2")
        self.h_tok = k(f"buffer_load_dwordx4 v[44:47], v29, {s(RH,4)}, {s(T[7])} offen offset:2")
        k(f"""s_getreg_b32 {s(sXCC)}, hwreg(HW_REG_XCC_ID, 0, 4)
              v_cmp_eq_u32 vcc, 0, {v(vL)}
              v_mov_b32 v5, 0x80000000
              s_lshl_b32 {s(T[1])}, {s(sX)}, 5
              s_add_u32 {s(T[1])}, {s(T[1])}, {s(sJ)}
              s_lshl_b32 {s(T[1])}, {s(T[1])}, 7
              s_add_u32 {s(T[1])}, {s(T[1])}, {WS_XCCF}
              v_cndmask_b32 {v(vL0)}, v5, 0, vcc""")
        k.wait_lg0()
        k(f"""s_mul_i32 {s(sN)}, {s(sN)}, 1664525
              s_add_u32 {s(sN)}, {s(sN)}, 1013904223
              s_xor_b32 {s(T[0])}, {s(sN)}, {s(sXCC)}
              v_mov_b32 v5, {s(T[0])}
              v_mov_b32 {v(vNON)}, {s(sN)}""")
        k(f"buffer_store_dword v5, {v(vL0)}, {s(RW,4)}, {s(T[1])} offen sc1")
        for r, size in ((RQ, 2097152), (RG, 1835008), (RU, 1835008), (RD, 1835008), (RO, 2097152)): self.srd(r, size)
        k(f"""s_lshr_b32 {s(sD+2)}, {s(sD)}, 16
              s_and_b32 {s(sD+3)}, {s(sD)}, 0xffff0000
              s_lshl_b32 {s(sD+1)}, {s(sD)}, 16
              s_and_b32 {s(sD)}, {s(sD)}, 0xffff
              s_mov_b32 {s(sC2)}, {f32(LOG2E*LOG2E)}
              s_mov_b32 {s(sC2+1)}, {f32(LOG2E*LOG2E)}
              s_mov_b32 {s(sSPIN)}, {self.o.get('spin', 400000)}
              s_mov_b32 {s(sHALF)}, 0x20000
              s_mov_b32 {s(sHH)}, {H_HALF}
              v_and_b32 {v(vP31)}, 31, {v(vL)}
              v_lshlrev_b32 {v(vP31)}, 2, {v(vP31)}
              v_and_b32 {v(vP7)}, 7, {v(vL)}
              v_lshlrev_b32 {v(vP7)}, 2, {v(vP7)}""")
        for i in range(1, 8): k(f"s_movk_i32 {s(sK4+i)}, {4096*i}")

    def code_prefetch(self):
        if not self.o.get('cpf', 1): return
        k = self.k
        k(f"s_getpc_b64 {s(T[2],2)}")
        k.place("L_PC")
        k(f"""s_mul_i32 {s(T[4])}, {s(sJ)}, ((L_LAST-L_PC+4095)/4096)*128
              v_min_u32 v5, (L_LAST-L_PC+4095)/4096-1, v0
              v_lshl_add_u32 v5, v5, 7, {s(T[4])}
              v_min_u32 v5, L_LAST-L_PC-4, v5
              global_load_dword v219, v5, {s(T[2],2)}""")

    def tlb_touch(self):
        if not self.o.get('tlb', 1): return
        k = self.k
        k(f"v_and_b32 v5, 15, {v(vL)}\nv_lshlrev_b32 v5, 20, v5")
        k(f"buffer_load_dword v220, v5, {s(RW,4)}, 0 offen offset:512")
        k(f"buffer_load_dword v221, v5, {s(RO,4)}, 0 offen")
        k(f"buffer_load_dword v196, v5, {s(RG,4)}, 0 offen")
        k(f"buffer_load_dword v197, v5, {s(RU,4)}, 0 offen")
        k(f"buffer_load_dword v198, v5, {s(RQ,4)}, 0 offen")

    def q_load(self):
        k = self.k
        k(f"""s_lshl_b32 {s(T[0])}, {s(sX)}, 8
              s_lshl_b32 {s(T[1])}, {s(sJ)}, 3
              s_add_u32 {s(T[0])}, {s(T[0])}, {s(T[1])}
              s_add_u32 {s(T[0])}, {s(T[0])}, {s(sW)}
              s_lshl_b32 {s(T[0])}, {s(T[0])}, 10
              s_add_u32 {s(T[1])}, {s(T[0])}, 4096""")
        k(f"buffer_load_dwordx4 v[204:207], {v(vL16)}, {s(RQ,4)}, {s(T[0])} offen")
        self.q_tok = k(f"buffer_load_dwordx4 v[208:211], {v(vL16)}, {s(RQ,4)}, {s(T[1])} offen")

    def persistent(self):
        k = self.k
        k(f"""s_lshl_b32 {s(T[0])}, {s(sJ)}, 2
              s_add_u32 {s(T[0])}, {s(T[0])}, {s(sW)}
              s_lshl_b32 {s(T[8])}, {s(sX)}, 18
              s_lshl_b32 {s(T[9])}, {s(sX)}, 12
              s_lshr_b32 {s(T[10])}, {s(sJ)}, 3
              s_and_b32 {s(T[11])}, {s(sJ)}, 7
              s_lshl_b32 {s(T[1])}, {s(T[0])}, 2
              s_add_u32 {s(T[1])}, {s(T[1])}, {s(T[9])}
              s_add_u32 {s(sAFs)}, {s(T[1])}, {WS_AF}
              s_lshl_b32 {s(T[1])}, {s(sW)}, 7
              s_add_u32 {s(T[1])}, {s(T[1])}, {s(T[9])}
              s_add_u32 {s(sAFp)}, {s(T[1])}, {WS_AF}
              s_lshl_b32 {s(T[2])}, {s(sJ)}, 2
              s_add_u32 {s(T[1])}, {s(T[1])}, {s(T[2])}
              s_add_u32 {s(sHFs)}, {s(T[1])}, {WS_HF}
              s_lshl_b32 {s(T[1])}, {s(T[10])}, 7
              s_lshl_b32 {s(T[2])}, {s(sW)}, 5
              s_add_u32 {s(T[1])}, {s(T[1])}, {s(T[2])}
              s_add_u32 {s(T[1])}, {s(T[1])}, {s(T[9])}
              s_add_u32 {s(sHFp)}, {s(T[1])}, {WS_HF}
              s_lshl_b32 {s(T[2])}, {s(T[11])}, 2
              s_add_u32 {s(T[1])}, {s(T[1])}, {s(T[2])}
              s_add_u32 {s(sFFs)}, {s(T[1])}, {WS_FF}
              s_lshr_b32 {s(T[1])}, {s(sJ)}, 1
              s_lshl_b32 {s(T[1])}, {s(T[1])}, 5
              s_add_u32 {s(T[1])}, {s(T[1])}, {s(T[9])}
              s_add_u32 {s(sFFp)}, {s(T[1])}, {WS_FF}
              s_lshl_b32 {s(T[1])}, {s(T[0])}, 10
              s_add_u32 {s(T[1])}, {s(T[1])}, {s(T[8])}
              s_add_u32 {s(sFR[0])}, {s(T[1])}, {WS_F}
              s_add_u32 {s(sFR[1])}, {s(T[1])}, {WS_F + 0x20000}
              s_lshr_b32 {s(T[1])}, {s(T[0])}, 5
              s_lshl_b32 {s(T[1])}, {s(T[1])}, 15
              s_bfe_u32 {s(T[2])}, {s(T[0])}, 0x10004
              s_lshl_b32 {s(T[2])}, {s(T[2])}, 10
              s_and_b32 {s(T[3])}, {s(T[0])}, 15
              s_lshl_b32 {s(T[3])}, {s(T[3])}, 4
              s_add_u32 {s(T[1])}, {s(T[1])}, {s(T[2])}
              s_add_u32 {s(T[1])}, {s(T[1])}, {s(T[3])}
              s_add_u32 {s(T[1])}, {s(T[1])}, {s(T[8])}
              s_add_u32 {s(T[1])}, {s(T[1])}, {WS_A}
              v_lshrrev_b32 v5, 2, {v(vL)}
              v_lshlrev_b32 v5, 11, v5
              v_and_b32 {v(vAst)}, 3, {v(vL)}
              v_lshl_add_u32 {v(vAst)}, {v(vAst)}, 8, v5
              v_add_u32 {v(vAst)}, {s(T[1])}, {v(vAst)}
              s_lshl_b32 {s(T[1])}, {s(sW)}, 15
              s_add_u32 {s(T[1])}, {s(T[1])}, {s(T[8])}
              s_add_u32 {s(T[1])}, {s(T[1])}, {WS_A}
              v_add_u32 {v(vAld[0])}, {s(T[1])}, {v(vL16)}
              v_add_u32 {v(vAld[1])}, 0x20000, {v(vAld[0])}
              v_add_u32 {v(vW1)}, 57344, {v(vL16)}
              v_lshrrev_b32 v5, 4, {v(vL)}
              v_and_b32 v23, 15, {v(vL)}
              v_lshlrev_b32 v22, 9, v5
              v_lshl_add_u32 v22, v23, 4, v22
              s_mul_i32 {s(T[4])}, {s(sX)}, {H_X}
              s_add_u32 {s(T[4])}, {s(T[4])}, {WS_H}
              s_mul_i32 {s(T[1])}, {s(sW)}, {H_RB}
              s_mul_i32 {s(T[2])}, {s(sJ)}, 3584
              s_add_u32 {s(T[1])}, {s(T[1])}, {s(T[2])}
              s_add_u32 {s(T[1])}, {s(T[1])}, {s(T[4])}
              v_add_u32 {v(vHm)}, {s(T[1])}, v22
              s_mul_i32 {s(T[1])}, {s(T[10])}, {H_RB}
              s_mul_i32 {s(T[2])}, {s(sW)}, 28672
              s_add_u32 {s(T[1])}, {s(T[1])}, {s(T[2])}
              s_add_u32 {s(T[1])}, {s(T[1])}, {s(T[4])}
              v_add_u32 {v(vHld[0])}, {s(T[1])}, v22
              v_add_u32 {v(vHld[1])}, {H_HALF}, {v(vHld[0])}
              v_cmp_gt_u32 vcc, 48, {v(vL)}
              v_add_u32 {v(vHt)}, 2048, {v(vHm)}
              v_mov_b32 v22, 0x80000000
              v_mul_u32_u24 {v(vRw)}, 272, v23
              v_cndmask_b32 {v(vHt)}, v22, {v(vHt)}, vcc
              v_lshl_add_u32 {v(vRw)}, v5, 4, {v(vRw)}
              s_mul_i32 {s(T[1])}, {s(sW)}, 8704
              s_add_u32 {s(T[1])}, {s(T[1])}, {L_RED}
              v_add_u32 {v(vRw)}, {s(T[1])}, {v(vRw)}
              v_lshrrev_b32 v5, 3, {v(vL)}
              v_mul_u32_u24 {v(vRr)}, 272, v5
              v_lshl_add_u32 {v(vRr)}, {v(vP7)}, 3, {v(vRr)}
              s_mul_i32 {s(T[1])}, {s(sW)}, {8*272}
              s_add_u32 {s(T[1])}, {s(T[1])}, {L_RED}
              v_add_u32 {v(vRr)}, {s(T[1])}, {v(vRr)}
              s_lshl_b32 {s(T[1])}, {s(T[10])}, 5
              s_lshl_b32 {s(T[2])}, {s(sW)}, 3
              s_add_u32 {s(T[1])}, {s(T[1])}, {s(T[2])}
              v_add_u32 v5, {s(T[1])}, v5
              s_lshl_b32 {s(T[2])}, {s(T[11])}, 7
              s_add_u32 {s(T[2])}, {s(T[2])}, {s(T[8])}
              v_lshl_add_u32 v22, {v(vP7)}, 2, {s(T[2])}
              v_lshl_add_u32 {v(vF2)}, v5, 10, v22
              v_add_u32 {v(vF2)}, {WS_F}, {v(vF2)}
              v_lshrrev_b32 v23, 2, v5
              v_and_b32 v5, 3, v5
              v_lshl_add_u32 v5, v23, 3, v5
              v_lshl_add_u32 {v(vO)}, v5, 10, v22""")

    W1V = 212
    def w1_addr(self):
        k = self.k; vb = self.W1V
        k(f"s_mul_i32 {s(T[0])}, {s(sJ)}, 112\ns_movk_i32 {s(T[1])}, 9363\ns_movk_i32 {s(T[2])}, {3584 - 7*16}")
        for i in range(7):
            k(f"""v_add_u32 v5, {64*i}, {v(vL)}
                  v_mul_u32_u24 {v(vb+i)}, {s(T[1])}, v5
                  v_lshrrev_b32 {v(vb+i)}, 16, {v(vb+i)}
                  v_mul_u32_u24 {v(vb+i)}, {s(T[2])}, {v(vb+i)}
                  v_lshl_add_u32 {v(vb+i)}, v5, 4, {v(vb+i)}
                  v_add_u32 {v(vb+i)}, {s(T[0])}, {v(vb+i)}""")
        k(f"s_mul_i32 {s(sW1S)}, {s(sW)}, 229376\ns_mul_i32 {s(sW1L)}, {s(sW)}, 14336")

    def w1_dma_text(self, n):
        ck, mat, i = n // 14, (n % 14) // 7, n % 7
        L = []
        if n == 14: L.append(f"s_add_u32 {s(sW1S)}, {s(sW1S)}, {4*229376}")
        L.append(f"s_add_u32 m0, {s(sW1L)}, {ck*57344 + mat*7168 + i*1024}")
        L.append(f"buffer_load_dwordx4 {v(self.W1V+i)}, {s(RU if mat else RG,4)}, {s(sW1S)} offen lds")
        return L
    def w1_dma(self, cnt):
        for _ in range(cnt):
            if self.w1_next >= 28: return
            n = self.w1_next; self.w1_next += 1
            for x in self.w1_dma_text(n): self.w1_tok[n] = self.k(x)

    RL = 222
    def w1_relayout_addr(self):
        k = self.k; r = self.RL
        k(f"""v_lshrrev_b32 v5, 4, {v(vL)}
              v_bfe_u32 {v(r)}, {v(vL)}, 2, 2
              v_lshl_add_u32 {v(r)}, v5, 3, {v(r)}
              v_mul_u32_u24 {v(r)}, 112, {v(r)}
              v_add_u32 {v(r)}, {s(sW1L)}, {v(r)}
              v_and_b32 {v(r+2)}, 3, {v(vL)}
              v_bfe_u32 {v(r+3)}, {v(vL)}, 1, 1
              v_mul_u32_u24 {v(r+3)}, 7168, {v(r+3)}
              v_and_b32 v22, 1, {v(vL)}
              v_lshl_add_u32 {v(r+3)}, v22, 3, {v(r+3)}
              v_add_u32 {v(r+1)}, {v(r)}, {v(r+3)}
              v_lshl_add_u32 {v(r)}, {v(r+2)}, 3, {v(r)}
              v_add_u32 {v(r+2)}, {s(sW1L)}, {v(vL16)}
              v_bfe_u32 {v(r+3)}, {v(vL)}, 1, 2
              v_lshlrev_b32 {v(r+3)}, 2, {v(r+3)}
              v_bfe_u32 v23, {v(vL)}, 3, 1
              v_lshl_add_u32 {v(r+3)}, v23, 1, {v(r+3)}
              v_add_u32 {v(r+3)}, {v(r+3)}, v22
              v_lshl_add_u32 {v(r+3)}, v5, 4, {v(r+3)}
              v_lshlrev_b32 {v(r+3)}, 4, {v(r+3)}
              v_add_u32 {v(r+3)}, {s(sW1L)}, {v(r+3)}""")
    def w1_relayout_items(self, ck, vtemp=False):
        k = self.k; r = self.RL
        R, a = (ACC[1], v) if vtemp else (128, globals()['a'])
        L = [Item(fn=lambda: k.wait(self.w1_tok[14*ck + 13]))]
        if ck == 1: L += [Item(f"v_add_u32 {v(r+i)}, 57344, {v(r+i)}") for i in range(4)]
        for sl in range(2):
            for Tt in range(7):
                for hf in range(2):
                    d = R + (sl*7 + Tt)*4 + 2*hf
                    o = (32*sl + 4*hf)*112
                    if Tt < 6: L.append(Item(f"ds_read_b64_tr_b16 {a(d,2)}, {v(r)} offset:{o + (Tt&1)*7168 + 32*(Tt>>1)}"))
                    else: L.append(Item(f"ds_read_b64_tr_b16 {a(d,2)}, {v(r+1)} offset:{o + 96}"))
        last = L[-1]
        L.append(Item(fn=lambda: k.wait(last.tok)))
        for n in range(14): L.append(Item(f"ds_write_b128 {v(r+3 if n % 7 == 6 else r+2)}, {a(R + n*4, 4)} offset:{n*1024}"))
        return L
    def w1_relayout(self, ck): Queue(self.k, self.w1_relayout_items(ck)).drain()

    JV = 190
    def wd_job_addr(self):
        k = self.k; r = self.JV
        k(f"""s_lshl_b32 {s(T[0])}, s2, 1
              s_lshr_b32 {s(T[1])}, {s(sW)}, 1
              s_add_u32 {s(T[0])}, {s(T[0])}, {s(T[1])}
              s_mul_i32 {s(T[1])}, {s(T[0])}, 4682
              s_lshr_b32 {s(T[1])}, {s(T[1])}, 16
              s_mul_i32 {s(T[2])}, {s(T[1])}, 14
              s_sub_u32 {s(T[2])}, {s(T[0])}, {s(T[2])}
              s_and_b32 {s(T[3])}, {s(T[1])}, 3
              s_lshr_b32 {s(T[1])}, {s(T[1])}, 2
              s_lshl_b32 {s(T[1])}, {s(T[1])}, 7
              s_mul_i32 {s(T[3])}, {s(T[3])}, {8*57344}
              s_add_u32 {s(T[1])}, {s(T[1])}, {s(T[3])}
              s_cmp_lt_u32 s2, 224
              s_cselect_b32 {s(T[3])}, {s(sW)}, 0
              s_bitcmp1_b32 {s(T[3])}, 0
              s_cselect_b32 {s(T[3])}, 0, 0x80000000
              s_lshl_b32 {s(T[4])}, {s(T[0])}, 6
              s_add_u32 {s(T[4])}, {s(T[4])}, {WS_JF}
              s_lshr_b32 {s(sJF)}, {s(T[3])}, 1
              s_or_b32 {s(sJF)}, {s(sJF)}, {s(T[4])}
              s_lshl_b32 {s(T[0])}, {s(T[0])}, 12
              s_add_u32 {s(T[0])}, {s(T[0])}, {WS_WDT}
              s_or_b32 {s(T[0])}, {s(T[0])}, {s(T[3])}
              s_or_b32 {s(T[1])}, {s(T[1])}, {s(T[3])}
              v_add_u32 {v(r+5)}, {s(T[0])}, {v(vL16)}
              v_lshrrev_b32 v5, 3, {v(vL)}
              v_and_b32 v22, 3, v5
              v_lshlrev_b32 v22, 3, v22
              v_cmp_gt_u32 vcc, 4, v5
              v_lshl_add_u32 v23, {v(vP7)}, 2, {s(T[1])}
              s_lshl_b32 {s(T[2])}, {s(T[2])}, 2""")
        for g in range(4):
            k(f"""s_add_u32 {s(T[0])}, {s(T[2])}, {g}
                  s_mul_i32 {s(T[1])}, {s(T[0])}, 9363
                  s_lshr_b32 {s(T[1])}, {s(T[1])}, 16
                  s_mul_i32 {s(T[3])}, {s(T[1])}, 7
                  s_sub_u32 {s(T[0])}, {s(T[0])}, {s(T[3])}
                  s_mul_i32 {s(T[1])}, {s(T[1])}, 56
                  s_mul_i32 {s(T[3])}, {s(T[0])}, 0x04040404
                  s_add_u32 {s(T[4])}, {s(T[3])}, 0x13121110
                  s_add_u32 {s(T[3])}, {s(T[3])}, 0x03020100
                  s_cmp_ge_u32 {s(T[0])}, 4
                  s_cselect_b32 {s(T[3])}, {s(T[4])}, {s(T[3])}
                  s_cselect_b32 {s(T[4])}, {sum(x << (8*e) for e, x in enumerate(flist(4)[4:]))}, {s(T[4])}
                  s_cmp_eq_u32 {s(T[0])}, 5
                  s_cselect_b32 {s(T[4])}, {sum(x << (8*e) for e, x in enumerate(flist(5)[4:]))}, {s(T[4])}
                  s_cmp_eq_u32 {s(T[0])}, 6
                  s_cselect_b32 {s(T[4])}, {sum(x << (8*e) for e, x in enumerate(flist(6)[4:]))}, {s(T[4])}
                  v_mov_b32 v5, {s(T[3])}
                  v_mov_b32 {v(r+g)}, {s(T[4])}
                  v_cndmask_b32 v5, {v(r+g)}, v5, vcc
                  v_bfe_u32 v5, v5, v22, 8
                  v_add_u32 v5, {s(T[1])}, v5
                  v_lshl_add_u32 {v(r+g)}, v5, 10, v23""")
        k(f"""s_lshl_b32 {s(sJL)}, {s(sW)}, 12
              s_add_u32 {s(sJL)}, {s(sJL)}, {L_JOB}
              v_lshrrev_b32 v5, 4, {v(vL)}
              v_lshlrev_b32 {v(r+4)}, 10, v5
              v_bfe_u32 v5, {v(vL)}, 2, 2
              v_lshl_add_u32 {v(r+4)}, v5, 7, {v(r+4)}
              v_and_b32 v5, 3, {v(vL)}
              v_lshl_add_u32 {v(r+4)}, v5, 3, {v(r+4)}
              v_add_u32 {v(r+4)}, {s(sJL)}, {v(r+4)}""")
    def wd_job_issue(self):
        for g in range(4): self.job_tok = self.dma(self.JV+g, RD, '0', f"s_add_u32 m0, {s(sJL)}, {1024*g}")
    def wd_job_finish(self):
        k = self.k; r = self.JV
        k.wait(self.job_tok)
        t = {}
        for nt in range(4):
            for hf in range(2): t[nt] = k(f"ds_read_b64_tr_b16 {a(128 + 4*nt + 2*hf, 2)}, {v(r+4)} offset:{hf*512 + nt*32}")
        for nt in range(4):
            k.wait(t[nt])
            self.job_st = k(f"buffer_store_dwordx4 {a(128 + 4*nt, 4)}, {v(r+5)}, {s(RW,4)}, 0 offen offset:{1024*nt} sc1")
    WDV = 226
    def wd_addr(self):
        self.k(f"""s_and_b32 {s(T[0])}, {s(sJ)}, 7
                   s_lshl_b32 {s(T[0])}, {s(T[0])}, 2
                   s_add_u32 {s(T[0])}, {s(T[0])}, {s(sW)}
                   s_mul_i32 {s(sJFp)}, {s(T[0])}, {14*64}
                   s_add_u32 {s(sJFp)}, {s(sJFp)}, {WS_JF}
                   s_mul_i32 {s(T[0])}, {s(T[0])}, {14*4096}
                   s_add_u32 {s(T[0])}, {s(T[0])}, {WS_WDT}
                   v_add_u32 {v(vWd[0])}, {s(T[0])}, {v(vL16)}
                   v_add_u32 {v(vWd[1])}, 32768, {v(vWd[0])}
                   v_min_u32 v226, 13, {v(vL)}
                   v_lshlrev_b32 v226, 6, v226
                   s_lshr_b32 {s(T[1])}, {s(sJ)}, 3
                   s_mul_i32 {s(T[1])}, {s(T[1])}, {112*128}
                   s_add_u32 {s(T[0])}, {s(T[0])}, {s(T[1])}
                   v_min_u32 v227, 55, {v(vL)}
                   v_lshl_add_u32 v227, v227, 7, {s(T[0])}""")
    def wd_touch_text(self, i):
        return f"buffer_load_dword {v(228+i)}, v227, {s(RW,4)}, {k4(i)} offen offset:{3072*i} sc1"
    def wd_text(self, n):
        U, nt = divmod(n, 4)
        return f"buffer_load_dwordx4 {a(4*n, 4)}, {v(vWd[U >> 3])}, {s(RW,4)}, {k4(U & 7)} offen offset:{1024*nt}{self.o.get('wdm', ' sc1')}"

    def phase0(self):
        k = self.k
        k(f"""v_lshrrev_b32 v5, 4, {v(vL)}
              v_bfe_u32 v48, {v(vL)}, 2, 2
              v_lshl_add_u32 v49, v5, 4, v48
              v_lshlrev_b32 v49, 7, v49
              v_bfe_u32 v50, {v(vL)}, 1, 1
              s_lshl_b32 {s(T[0])}, {s(sW)}, 1
              v_add_u32 v50, {s(T[0])}, v50
              v_and_b32 v48, 2, v48
              v_xor_b32 v50, v50, v48
              v_and_b32 v48, 1, v5
              v_lshlrev_b32 v48, 2, v48
              v_xor_b32 v50, v50, v48
              v_lshl_add_u32 v49, v50, 4, v49
              v_and_b32 v48, 1, {v(vL)}
              v_lshl_add_u32 v49, v48, 3, v49
              v_add_u32 v49, {L_K}, v49
              v_xor_b32 v50, 64, v49
              v_lshlrev_b32 v51, 12, v27
              v_lshl_add_u32 v51, v5, 5, v51
              s_lshl_b32 {s(T[6])}, {s(sJ)}, 7
              s_add_u32 {s(T[6])}, {s(T[6])}, {WS_KVT}
              v_lshlrev_b32 v52, 5, {v(vP31)}
              s_lshl_b32 {s(T[7])}, {s(sX)}, 12
              s_add_u32 {s(T[7])}, {s(T[7])}, {WS_XCCF}
              s_lshl_b32 {s(T[0])}, {s(sX)}, 9
              s_lshl_b32 {s(T[1])}, {s(sW)}, 7
              s_lshl_b32 {s(T[2])}, {s(sJ)}, 2
              s_add_u32 {s(T[1])}, {s(T[1])}, {s(T[2])}
              s_add_u32 {s(T[0])}, {s(T[0])}, {WS_KVF}
              s_add_u32 {s(T[5])}, {s(T[1])}, {s(T[0])}
              s_xor_b32 {s(T[0])}, {s(sN)}, {s(sXCC)}
              s_mov_b32 {s(sMODE)}, 0
              s_mov_b32 {s(sEXP)}, {s(sN)}""")
        k.wait(self.sh_tok)
        k("s_barrier")
        self.stamp('kv_in')
        xh = k(f"buffer_load_dword v53, v52, {s(RW,4)}, {s(T[7])} offen sc1")
        KR, VR, KS, O, VU, P = 56, 68, 78, 88, 104, 120
        k(f"ds_read_b64_tr_b16 {v(KR,2)}, v50 offset:512")
        for i in range(4): k(f"ds_read_b64_tr_b16 {v(KR+2+2*i,2)}, v49 offset:{1024 + 512*i}")
        for i in range(4): lastv = k(f"ds_read_b64_tr_b16 {v(VR+2*i,2)}, v49 offset:{L_V - L_K + 512*i}")
        k("v_alignbit_b32 v54, v30, v30, 16\nv_alignbit_b32 v55, v31, v31, 16")
        k.wait(('lg', lastv[1] - 4))
        for aa in range(-1, 8): k(f"v_alignbit_b32 {v(KS+1+aa)}, {v(KR+2+aa)}, {v(KR+1+aa)}, 16")
        for aa in range(8):
            k(f"v_dot2_f32_bf16 {v(O+2*aa)}, {v(KS+aa)}, v55, 0")
            k(f"v_dot2_f32_bf16 {v(O+2*aa+1)}, {v(KR+1+aa)}, v55, 0")
        for aa in range(8):
            k(f"v_dot2_f32_bf16 {v(O+2*aa)}, {v(KS+1+aa)}, v54, {v(O+2*aa)}")
            k(f"v_dot2_f32_bf16 {v(O+2*aa+1)}, {v(KR+2+aa)}, v54, {v(O+2*aa+1)}")
        k.wait(lastv)
        for g in range(2):
            for aa in range(4*g, 4*g+4):
                k(f"v_lshlrev_b32 {v(VU+2*aa)}, 16, {v(VR+aa)}")
                k(f"v_and_b32 {v(VU+2*aa+1)}, 0xffff0000, {v(VR+aa)}")
            for aa in range(4*g, 4*g+4): k(f"v_pk_mul_f32 {v(O+2*aa,2)}, {v(O+2*aa,2)}, {v(VU+2*aa,2)}")
            for e in range(4): k(f"v_cvt_pk_bf16_f32 {v(P+4*g+e)}, {v(O+8*g+7-2*e)}, {v(O+8*g+6-2*e)}")
            st = k(f"buffer_store_dwordx4 {v(P+4*g,4)}, v51, {s(RW,4)}, {s(T[6])} offen offset:{16*g}")
        self.stamp('kv_st')
        self.toeplitz_write()
        slow, back, done = k.label(), k.label(), k.label()
        k.wait(xh)
        k(f"v_cmp_ne_u32 vcc, {s(T[0])}, v53\ns_cbranch_vccnz {slow}")
        k.place(back)
        self.tail.append([f"{slow}:",
            f"buffer_load_dword v53, v52, {s(RW,4)}, {s(T[7])} offen sc1", "s_waitcnt vmcnt(0)",
            f"v_xor_b32 v54, {s(sN)}, v53", "v_cmp_lt_u32 vcc, 15, v54", f"s_cbranch_vccz {done}",
            f"s_sub_u32 {s(sSPIN)}, {s(sSPIN)}, 1", f"s_cbranch_scc0 {slow}", "s_branch L_END",
            f"{done}:", f"v_cmp_ne_u32 vcc, {s(T[0])}, v53", f"s_cbranch_vccz {back}",
            f"s_mov_b32 {s(sMODE)}, 1", f"s_not_b32 {s(sEXP)}, {s(sN)}", f"s_branch {back}"])
        self.publish(st, s(T[5]))
        self.stamp('kv_pub')

    def toeplitz_write(self):
        k = self.k
        k.wait(self.h_tok)
        k(f"v_add_u32 v48, {SCR}, v29")
        for ch in range(2):
            k(f"ds_write_b128 v48, {v(32+8*ch,4)} offset:{H_E(ch) - SCR}")
            k(f"ds_write_b128 v48, {v(36+8*ch,4)} offset:{H_O(ch) - SCR}")
        skip = k.label()
        k(f"s_cmp_lg_u32 {s(sW)}, 0\ns_cbranch_scc1 {skip}")
        k(f"""v_readfirstlane_b32 {s(T[1])}, v32
              v_readfirstlane_b32 {s(T[2])}, v40
              v_cmp_eq_u32 vcc, 28, {v(vP7)}
              v_add_u32 v49, {SCR}, {v(vP7)}
              s_lshl_b32 {s(T[1])}, {s(T[1])}, 16
              s_lshl_b32 {s(T[2])}, {s(T[2])}, 16
              v_mov_b32 v50, 0
              v_mov_b32 v51, 0
              v_mov_b32 v54, {s(T[1])}
              v_mov_b32 v55, {s(T[2])}
              v_cndmask_b32 v54, v50, v54, vcc
              v_cndmask_b32 v55, v50, v55, vcc
              ds_write_b32 v49, v50 offset:{H_E(0) - 32 - SCR}
              ds_write_b32 v49, v50 offset:{H_E(1) - 32 - SCR}
              ds_write_b32 v49, v54 offset:{H_O(0) - 32 - SCR}
              ds_write_b32 v49, v55 offset:{H_O(1) - 32 - SCR}
              v_lshlrev_b32 v49, 3, {v(vL)}
              v_add_u32 v49, {L_U}, v49
              ds_write_b64 v49, v[50:51]
              ds_write_b64 v49, v[50:51] offset:{U_S}""")
        k.place(skip)

    def front_addr(self):
        k = self.k; o = self.o; yfs = o.get('yfs', 4)
        k(f"""v_and_b32 v24, 15, {v(vL)}
              v_lshrrev_b32 v25, 4, {v(vL)}
              v_lshlrev_b32 v5, 3, v25
              v_sub_u32 v26, v24, v5
              v_add_u32 v26, 9, v26
              v_and_b32 v5, 1, v26
              v_sub_u32 v26, v26, v5
              v_lshlrev_b32 v26, 1, v26
              v_mul_u32_u24 v5, {H_O(0) - H_E(0)}, v5
              v_add_u32 v26, v26, v5
              s_lshr_b32 {s(T[0])}, {s(sW)}, 1
              s_mul_i32 {s(T[2])}, {s(T[0])}, {H_E(1) - H_E(0)}
              s_and_b32 {s(T[1])}, {s(sW)}, 1
              s_lshl_b32 {s(T[3])}, {s(T[1])}, 8
              s_add_u32 {s(T[2])}, {s(T[2])}, {s(T[3])}
              s_add_u32 {s(T[2])}, {s(T[2])}, {H_E(0)}
              v_add_u32 v152, {s(T[2])}, v26
              s_mul_i32 {s(T[4])}, {s(T[0])}, {U_S}
              s_add_u32 {s(T[4])}, {s(T[4])}, {L_U + 512}
              s_lshl_b32 {s(T[2])}, {s(T[1])}, 11
              s_add_u32 {s(sUm0)}, {s(T[4])}, {s(T[2])}
              s_sub_u32 {s(T[4])}, {s(T[4])}, {s(T[3])}
              s_sub_u32 {s(T[4])}, {s(T[4])}, 224
              v_lshlrev_b32 v140, 5, v24
              v_lshl_add_u32 v140, v25, 4, v140
              v_add_u32 v140, {s(T[4])}, v140
              s_lshl_b32 {s(T[0])}, {s(sX)}, 9
              s_lshr_b32 {s(T[1])}, {s(sJ)}, 3
              s_lshl_b32 {s(T[1])}, {s(T[1])}, 7
              s_add_u32 {s(T[0])}, {s(T[0])}, {s(T[1])}
              s_add_u32 {s(sKVFp)}, {s(T[0])}, {WS_KVF}
              s_lshl_b32 {s(T[0])}, {s(sX)}, 18
              s_lshl_b32 {s(T[1])}, {s(sJ)}, 13
              s_lshl_b32 {s(T[2])}, {s(sW)}, 11
              s_add_u32 {s(T[0])}, {s(T[0])}, {s(T[1])}
              s_add_u32 {s(T[0])}, {s(T[0])}, {s(T[2])}
              s_add_u32 {s(sKVs)}, {s(T[0])}, {WS_KVT}
              s_add_u32 {s(sYst)}, {s(T[0])}, {WS_YP}
              v_lshlrev_b32 v141, 5, v24
              v_lshrrev_b32 v5, 1, v25
              v_lshl_add_u32 v141, v5, 4, v141
              v_and_b32 v5, 1, v25
              v_xor_b32 v5, 1, v5
              v_lshl_add_u32 v141, v5, 3, v141
              s_lshl_b32 {s(T[0])}, {s(sW)}, 10
              s_add_u32 {s(T[1])}, {s(T[0])}, {L_U + 512}
              v_add_u32 v141, {s(T[1])}, v141
              s_add_u32 {s(T[1])}, {s(T[0])}, {L_YT}
              v_add_u32 v151, {s(T[1])}, {v(vL16)}
              s_lshl_b32 {s(T[0])}, {s(sW)}, 13
              s_add_u32 {s(T[0])}, {s(T[0])}, {L_CRED}
              v_add_u32 v142, {s(T[0])}, {v(vL16)}
              s_add_u32 {s(T[0])}, {s(T[2])}, {L_CRED}
              v_add_u32 v143, {s(T[0])}, {v(vL16)}
              v_lshlrev_b32 v144, 6, v24
              v_lshl_add_u32 v144, v25, 4, v144
              s_lshl_b32 {s(T[0])}, {s(sX)}, 5
              s_add_u32 {s(T[0])}, {s(T[0])}, {s(sJ)}
              s_lshl_b32 {s(T[1])}, {s(sW)}, 8
              s_add_u32 {s(T[0])}, {s(T[0])}, {s(T[1])}
              s_mul_i32 {s(T[0])}, {s(T[0])}, {yfs}
              s_add_u32 {s(sYFs)}, {s(T[0])}, {WS_YF}
              v_mul_u32_u24 v148, {yfs}, v0
              s_lshr_b32 {s(T[0])}, {s(sX)}, 1
              s_mul_i32 {s(T[0])}, {s(T[0])}, {256*yfs}
              s_add_u32 {s(sYFp)}, {s(T[0])}, {WS_YF}
              v_lshlrev_b32 v149, 13, v0
              s_lshl_b32 {s(T[0])}, {s(sX)}, 10
              s_lshl_b32 {s(T[1])}, {s(sJ)}, 5
              s_add_u32 {s(T[0])}, {s(T[0])}, {s(T[1])}
              s_add_u32 {s(sYld)}, {s(T[0])}, {WS_YP}
              v_lshlrev_b32 v150, 2, v0
              v_add_u32 v150, {L_YT}, v150""")
        for p in range(1, 8): k(f"v_add_u32 {v(152+p)}, {512*p}, v152")

    def conv(self):
        k = self.k; o = self.o
        toep = []
        for rr in range(4):
            for p in range(8):
                d = (rr*8 + p)*4
                toep.append(f"ds_read2_b32 {a(d,2)}, {v(152+p)} offset0:{16*rr} offset1:{16*rr+1}")
                toep.append(f"ds_read2_b32 {a(d+2,2)}, {v(152+p)} offset0:{16*rr+2} offset1:{16*rr+3}")
        k.wait_lg0()
        k("s_barrier")
        n0 = o.get('toep0', 16)
        tt = {}
        for n in range(n0): tt[n] = k(toep[n])
        ph = self.poll_issue(vP31, s(sKVFp))
        self.stamp('toep')
        self.poll_check(ph)
        self.stamp('kv_seen')
        k(f"s_mov_b32 m0, {s(sUm0)}")
        k(f"buffer_load_dwordx4 {v(vL16)}, {s(RW,4)}, {s(sKVs)} offen sc1 lds")
        tok = k(f"buffer_load_dwordx4 {v(vL16)}, {s(RW,4)}, {s(sKVs)} offen offset:1024 sc1 lds")
        n1 = o.get('toep1', 32)
        for n in range(n0, n1): tt[n] = k(toep[n])
        k.wait(tok)
        k("s_barrier")
        self.stamp('u_in')
        B, C = 64, 96
        bt = {}
        def rdB(rr, q): bt[(rr, q)] = k(f"ds_read_b128 {v(B+4*q,4)}, v140 offset:{512*q + 64*(3-rr)}")
        for q in range(8): rdB(0, q)
        self.wd_job_issue()
        self.q_load()
        self.tlb_touch()
        tq = Queue(k, [Item(x) for x in toep[n1:]]); tits = list(tq.q)
        n2 = o.get('n2', 11)
        dq = []
        for i in range(n2):
            if self.w1_next >= 28: break
            n = self.w1_next; self.w1_next += 1
            for x in self.w1_dma_text(n): dq.append(Item(x, at=4 + i*(o.get('n2span', 124) // n2), tag=n))
        dits = list(dq); dq = Queue(k, dq)
        m = 0
        for rr in range(4):
            need = [tt[n] for n in range(16*rr, 16*rr + 16) if n in tt]
            while any(x.tok is None for x in tits[:max(0, 16*rr + 16 - n1)]): tq.emit(tq.q[0])
            need += [x.tok for x in tits[:max(0, 16*rr + 16 - n1)]]
            for q in range(8):
                k.wait(bt[(rr, q)], *(need if q == 0 else []))
                for p in range(8 - q):
                    c = C + 4*(p+q)
                    src = '0' if (rr == 0 and q == 0) else v(c, 4)
                    k(f"v_mfma_f32_16x16x32_bf16 {v(c,4)}, {a((rr*8+p)*4,4)}, {v(B+4*q,4)}, {src}")
                    m += 1
                    if p < 7 - q:
                        cap = dq.fill(2, m)
                        tq.fill(min(cap, 1))
                if rr < 3: rdB(rr+1, q)
        dq.drain()
        for x in dits: self.w1_tok[x.tag] = x.tok
        self.stamp('conv_mfma')
        KV, P = 32, 160
        for t2 in range(2):
            for ch in range(2): k(f"ds_read_b64 {v(KV+4*t2+2*ch,2)}, v141 offset:{512*t2 + ch*U_S}")
        for c in range(8): k(f"ds_write_b128 v142, {v(C+4*c,4)} offset:{1024*c}")
        k.wait_lg0()
        k("s_barrier")
        for t2 in range(2):
            for w in range(4): lastp = k(f"ds_read_b128 {v(P+16*t2+4*w,4)}, v143 offset:{8192*w + 1024*t2}")
        for t2 in range(2):
            k.wait(('lg', lastp[1] - 4*(1-t2)))
            b = P + 16*t2
            L = []
            for ch in range(2):
                for e in (0, 2): L.append(f"v_pk_add_f32 {v(b+8*ch+e,2)}, {v(b+8*ch+e,2)}, {v(b+8*ch+4+e,2)}")
            for e in range(4):
                for ch in range(2):
                    L.append(f"v_dot2_f32_bf16 {v(b+8*ch+e)}, {v(KV+4*t2+2*ch+(1-(e>>1)))}, {s(sD+2*ch+(1-(e&1)))}, {v(b+8*ch+e)}")
            for e in range(4): L.append(f"v_cvt_pk_bf16_f32 {v(b+4+e)}, {v(b+e)}, {v(b+8+e)}")
            L.append(f"buffer_store_dwordx4 {v(b+4,4)}, v144, {s(RW,4)}, {s(sYst)} offen offset:{1024*t2} sc1")
            st = self.run(L)[-1].tok
        self.stamp('y_st')
        self.wd_job_finish()
        self.q_stats()
        self.publish(st, s(sYFs), local=False)
        self.stamp('y_pub')
        self.publish(self.job_st, s(sJF), local=False)
        k("s_barrier")

    def stats(self, rows, out, t0, scale=None):
        L = []; n = len(rows)
        for i, x in enumerate(rows):
            b = t0 + 6*i
            L += [f"v_pk_add_f32 {v(b,2)}, {v(x,2)}, {v(x+2,2)}", f"v_pk_mul_f32 {v(b+2,2)}, {v(x,2)}, {v(x,2)}",
                  f"v_pk_add_f32 {v(b+4,2)}, {v(x+4,2)}, {v(x+6,2)}"]
            L += [f"v_pk_fma_f32 {v(b+2,2)}, {v(x+e,2)}, {v(x+e,2)}, {v(b+2,2)}" for e in (2, 4, 6)]
            L += [f"v_pk_add_f32 {v(b,2)}, {v(b,2)}, {v(b+4,2)}", f"v_add_f32 {v(b+2)}, {v(b+2)}, {v(b+3)}", f"v_add_f32 {v(b)}, {v(b)}, {v(b+1)}"]
        for ctl in ("row_ror:8 row_mask:0xf", "row_ror:4 row_mask:0xf", "row_ror:2 row_mask:0xf", "row_ror:1 row_mask:0xf",
                    "row_bcast:15 row_mask:0xa", "row_bcast:31 row_mask:0xc"):
            for i in range(n):
                for e in (2, 0):
                    r = t0 + 6*i + e
                    L.append(f"v_add_f32_dpp {v(r)}, {v(r)}, {v(r)} {ctl} bank_mask:0xf")
        for i in range(n):
            b = t0 + 6*i
            L += [f"v_mul_f32 {v(b)}, 0x3b000000, {v(b)}", f"v_mul_f32 {v(b+2)}, 0x3b000000, {v(b+2)}",
                  f"v_fma_f32 {v(b+2)}, -{v(b)}, {v(b)}, {v(b+2)}", f"v_max_f32 {v(b+2)}, 0, {v(b+2)}",
                  f"v_add_f32 {v(b+2)}, 0x3727c5ac, {v(b+2)}", f"v_rsq_f32 {v(b+2)}, {v(b+2)}"]
            if scale: L.append(f"v_mul_f32 {v(b+2)}, {f32(scale)}, {v(b+2)}")
            L += [f"v_mul_f32_e64 {v(b)}, -{v(b)}, {v(b+2)}", f"v_readlane_b32 {s(out[i])}, {v(b+2)}, 63",
                  f"v_readlane_b32 {s(out[i]+2)}, {v(b)}, 63", f"s_mov_b32 {s(out[i]+1)}, {s(out[i])}",
                  f"v_mov_b32 {v(b+4)}, {s(out[i]+2)}", f"v_mov_b32 {v(b+5)}, {s(out[i]+2)}"]
        return L
    def unpack(self, dst, src):
        L = []
        for e in range(4): L += [f"v_lshlrev_b32 {v(dst+2*e)}, 16, {v(src+e)}", f"v_and_b32 {v(dst+2*e+1)}, 0xffff0000, {v(src+e)}"]
        return L
    def affine(self, dst, x, sp, vb):
        return [f"v_pk_fma_f32 {v(dst+e,2)}, {v(x+e,2)}, {s(sp,2)}, {v(vb,2)}" for e in (0, 2, 4, 6)]
    def run(self, L, look=12):
        its = [Item(x) for x in L]
        Queue(self.k, its, look).drain()
        return its

    def gate_norm(self, halves, nrm, layer, R):
        L = []; sp = [36, 40]
        t0 = R + 16*len(halves)
        for i, h in enumerate(halves):
            L += self.unpack(R + 16*i, YS[h])
            L += [f"v_pk_fma_f32 {v(XS[h]+e,2)}, {v(nrm[h]+e,2)}, {v(R+16*i+e,2)}, {v(XS[h]+e,2)}" for e in (0, 2, 4, 6)]
        L += self.stats([XS[h] for h in halves], sp[:len(halves)], t0, LOG2E)
        for i, h in enumerate(halves):
            b = R + 16*i
            L += self.affine(b, XS[h], sp[i], t0 + 6*i + 4)
            L += [f"v_cvt_pk_bf16_f32 {v(b+8+e)}, {v(b+2*e)}, {v(b+2*e+1)}" for e in range(4)]
            L.append(f"buffer_store_dwordx4 {v(b+8,4)}, {v(vAst)}, {s(RW,4)}, {s(sHALF) if h else 0} offen")
            if layer == 1:
                L += [f"v_cvt_pk_bf16_f32 {v(b+12+e)}, {v(XS[h]+2*e)}, {v(XS[h]+2*e+1)}" for e in range(4)]
                L.append(f"buffer_store_dwordx4 {v(b+12,4)}, {v(vL16)}, {s(RW,4)}, {s(sFR[h])} offen")
        return L

    N0 = [40, 48]
    def q_stats(self):
        k = self.k
        k.wait(self.q_tok)
        L = []
        for h in range(2): L += self.unpack(XS[h], 204 + 4*h)
        L += self.stats(XS, [36, 40], 128)
        for h in range(2): L += self.affine(self.N0[h], XS[h], [36, 40][h], 128 + 6*h + 4)
        self.run(L)

    def y_in(self):
        k = self.k; o = self.o
        done0 = self.w1_next >= 14
        self.w1_dma(o.get('n3', 5))
        self.persistent()
        self.w1_relayout_addr()
        self.wd_addr()
        if done0: self.w1_relayout(0)
        self.stamp('rl0')
        self.poll(148, s(sYFp), local=False)
        self.stamp('y_seen')
        t0 = k(f"buffer_load_dwordx4 v[32:35], v149, {s(RW,4)}, {s(sYld)} offen sc1")
        t1 = k(f"buffer_load_dwordx4 v[36:39], v149, {s(RW,4)}, {s(sYld)} offen offset:16 sc1")
        pj = self.poll_issue(226, s(sJFp), 0, 229)
        self.w1_dma(o.get('n4', 9))
        if not done0 and self.w1_next >= 14: self.w1_relayout(0); done0 = True
        k.wait(t0)
        for e in range(4): k(f"ds_write_b32 v150, {v(32+e)} offset:{1024*e}")
        k.wait(t1)
        for e in range(4): k(f"ds_write_b32 v150, {v(36+e)} offset:{1024*(4+e)}")
        k.wait_lg0()
        k("s_barrier")
        for h in range(2): k(f"ds_read_b128 {v(YS[h],4)}, v151 offset:{4096*h}")
        k.wait_lg0()
        self.stamp('y_in')
        its = self.run(self.gate_norm([0, 1], self.N0, 0, 56))
        sts = [x.tok for x in its if 'store' in x.text]
        self.stamp('a_st')
        self.poll_check(pj, False)
        if done0: self.gemm1_start(0)
        self.publish(sts[0], s(sAFs), 0)
        self.publish(sts[1], s(sAFs), 512)
        k(f"s_or_b32 {s(T[0])}, s2, {s(sW)}\ns_cmp_eq_u32 {s(T[0])}, 0\ns_cselect_b32 {s(T[0])}, 0, 0x40000000")
        k(f"buffer_store_dword {v(vNON)}, {v(vL0)}, {s(RW,4)}, {s(T[0])} offen sc1")
        self.stamp('a_pub')
        self.w1_dma(o.get('n5', 28))
        self.rl1_done = bool(o.get('rl1_front', 1))
        if not done0: self.w1_relayout(0)
        if self.rl1_done:
            self.w1_relayout(1); k.wait_lg0(); k("s_barrier")
        if not done0: self.gemm1_start(0)

    def epilogue1(self, B, half, off, pk):
        L = []; so = s(sHH) if half else '0'
        def grp(g, u, n, outs, t):
            for e in range(n): L.append(f"v_exp_f32_e64 {v(t+e)}, -{v(g+e)}")
            if pk:
                for e in range(0, n, 2): L.append(f"v_pk_mul_f32 {v(u+e,2)}, {v(g+e,2)}, {v(u+e,2)}")
                for e in range(0, n, 2): L.append(f"v_pk_fma_f32 {v(t+e,2)}, {v(t+e,2)}, {s(sC2,2)}, {s(sC2,2)}")
            else:
                for e in range(n): L.append(f"v_mul_f32 {v(u+e)}, {v(g+e)}, {v(u+e)}")
                for e in range(n): L.append(f"v_fma_f32 {v(t+e)}, {v(t+e)}, {s(sC2)}, {s(sC2)}")
            for e in range(n): L.append(f"v_rcp_f32 {v(t+e)}, {v(t+e)}")
            if pk:
                for e in range(0, n, 2): L.append(f"v_pk_mul_f32 {v(u+e,2)}, {v(u+e,2)}, {v(t+e,2)}")
            else:
                for e in range(n): L.append(f"v_mul_f32 {v(u+e)}, {v(u+e)}, {v(t+e)}")
            for e in range(0, n, 2): L.append(f"v_cvt_pk_bf16_f32 {v(outs[e//2])}, {v(u+e)}, {v(u+e+1)}")
        grp(B, B+4, 4, [B, B+1], TMP)
        grp(B+8, B+12, 4, [B+2, B+3], TMP+4)
        L.append(f"buffer_store_dwordx4 {v(B,4)}, {v(vHm)}, {s(RW,4)}, {so} offen offset:{off}")
        grp(B+16, B+20, 4, [B+8, B+9], TMP)
        grp(B+24, B+26, 2, [B+10], TMP+4)
        Z, C, A_ = B+4, B+5, B+6
        L += [f"v_mov_b32 {v(C)}, {v(B+8)}", f"v_mov_b32 {v(A_)}, {v(B+9)}", f"v_mov_b32 {v(Z)}, {v(B+10)}",
              f"v_permlane32_swap_b32 {v(A_)}, {v(B+11)}", f"v_permlane32_swap_b32 {v(C)}, {v(Z)}",
              f"v_permlane16_swap_b32 {v(Z)}, {v(B+11)}",
              f"buffer_store_dwordx4 {v(B+8,4)}, {v(vHt)}, {s(RW,4)}, {so} offen offset:{off}"]
        return L

    def a_plan(self, layer):
        n = self.o.get('ring0', 8) if layer == 0 else self.o.get('ring1', 4)
        ring = ([('v', AR + 8*i) for i in range(4)] + [('a', 224 + 8*i) for i in range(4)])[:n]
        reg = {gs: ring[gs % n] for gs in range(32)}
        issue = {}
        for gs in range(32):
            prev = [p for p in range(gs) if reg[p] == reg[gs]]
            issue[gs] = prev[-1] + 1 if prev else -1
        return reg, issue

    def gemm1_start(self, layer):
        k = self.k
        self.wt, self.at = {}, {}
        self.areg, self.aiss = self.a_plan(layer)
        for Tt in range(7): self.rdW(0, Tt)
    def rdW(self, gs, Tt):
        st = gs % 16
        base, o = (vL16, st*7168) if st < 8 else (vW1, (st-8)*7168)
        self.wt[(gs, Tt)] = self.k(f"ds_read_b128 {v(WF + 28*(gs&1) + 4*Tt, 4)}, {v(base)} offset:{o + 1024*Tt}")
    def afrag(self, gs, mt):
        kind, b = self.areg[gs]
        return (v if kind == 'v' else a)(b + 4*mt, 4)
    def ldA(self, gs, mt):
        st = gs % 16
        self.at[(gs, mt)] = self.k(f"buffer_load_dwordx4 {self.afrag(gs, mt)}, {v(vAld[gs // 16])}, {s(RW,4)}, {k4(st>>1)} offen offset:{((st&1)*2+mt)*1024} sc1")

    def gemm1(self, layer):
        k = self.k; o = self.o
        lo = 1024*layer
        self.poll(vP31, s(sAFp), lo)
        self.stamp(f'a_seen{layer}')
        todo = sorted(range(32), key=lambda g: g)
        nxtA = 0
        while self.aiss[nxtA] < 0 and nxtA < o.get('a_init', 5):
            for mt in range(2): self.ldA(nxtA, mt)
            nxtA += 1
        if layer == 0: self.w1_dma(28)
        firstB = max(min(self.aiss[g] for g in range(16, 32)), o.get('firstB', 0) if layer else 0)
        queues = []
        if layer == 0:
            queues.append(Queue(k, self.poll_items(vP31, s(sAFp), lo + 512, 14*2, 14*(firstB - 2))))
            rl = self.w1_relayout_items(1, True) if not self.rl1_done else []
            for x in rl: x.at = 14*o.get('rl1_at', 1)
            rlq = Queue(k, rl); queues.append(rlq)
            t0 = o.get('wd_t0', 1); t1 = o.get('wd_t1', 31)
            wd = [Item(self.wd_text(n), at=int(14*(t0 + (t1 - t0)*n/56))) for n in range(o.get('wd_n', 56))]
            wdq = Queue(k, wd, 1); queues.append(wdq)
            burst = None
        else:
            box = []
            s0 = o.get('rowb_at', 5)
            its = self.poll_items(vP7, s(sFFp), 512, 14*(s0 - 3), 14*(s0 - 1) - 8)
            fld = Item(f"buffer_load_dwordx4 {v(ACC[1],4)}, {v(vL16)}, {s(RW,4)}, {s(sFR[1])} offen sc1"); its.append(fld)
            queues.append(Queue(k, its))
            burst = s0
        epi = None; hbox = []
        for gs in range(32):
            ps, st = divmod(gs, 16)
            if gs == burst:
                queues[0].drain(); k.wait(fld.tok)
                self.stamp('rowB_go')
                sts = self.rowop(1, ACC[1])
                self.stamp('rowB')
                queues = [Queue(k, self.publish_items(lambda: sts, s(sAFs), lo + 512, 14*gs + 22)
                                + self.poll_items(vP31, s(sAFp), lo + 512, 14*(firstB - 2) - 4, 14*firstB - 4))]
            if gs == firstB: queues[0].drain()
            if layer == 0 and gs == 7 and not self.rl1_done:
                print('relayout left at step 7:', rlq.cost())
                rlq.drain(); k.wait_lg0(); k("s_barrier")
            if gs == 16:
                for q in queues[:2]: q.drain()
                epi = [Item(x, at=14*16 + 4) for x in self.epilogue1(ACC[0], 0, 0, 0) + self.epilogue1(ACC[0] + 28, 0, 256, 0)]
                last = epi[-1]
                queues = [Queue(k, epi, 14), Queue(k, [])]
                if layer == 0: queues = [queues[0], queues[1], wdq]
                pub = False
            if epi and not pub and not len(queues[0]):
                queues[1].q += self.publish_items(lambda: last.tok, s(sHFs), lo, 14*gs + o.get('ha_pub', 10)); pub = True
                pubstep = gs
                queues[1].q.append(Item(fn=lambda: hbox.append(self.poll_issue(vP7, s(sHFp), lo)), at=o.get('ha_pi', 14*31 + 2)))
            fixed = [[] for _ in range(14)]
            if gs + 1 < 32:
                for Tt in range(7): fixed[2*(Tt // 2)].append(('W', gs+1, Tt))
            slot = 6
            while nxtA < 32 and self.aiss[nxtA] <= gs and slot <= 10 and (nxtA < 16 or gs >= firstB):
                fixed[slot].append(('A', nxtA, 0)); fixed[slot+2].append(('A', nxtA, 1)); nxtA += 1; slot += 4
            k.wait(self.at[(gs, 1)], self.wt[(gs, 6)])
            for i in range(14):
                Tt, mt = divmod(i, 2)
                d = ACC[ps] + 28*mt + 4*Tt
                k(f"v_mfma_f32_16x16x32_bf16 {v(d,4)}, {v(WF + 28*(gs&1) + 4*Tt, 4)}, {self.afrag(gs, mt)}, {'0' if st == 0 else v(d,4)}")
                for it in fixed[i]:
                    if it[0] == 'W': self.rdW(it[1], it[2])
                    else: self.ldA(it[1], it[2])
                cap = 2 - len(fixed[i]) - (1 if i == 13 else 0)
                for q in (queues[::-1] if ps else queues): cap = q.fill(cap, 14*gs + i)
            if gs == 15: self.stamp(f'g1a{layer}'); self.late = layer == 1
        print('layer', layer, 'left after G1B:', [q.cost() for q in queues], f'published in step {pubstep}' if pub else 'not published')
        queues[0].drain()
        if not pub: queues[1].q += self.publish_items(lambda: last.tok, s(sHFs), lo, 0)
        queues[1].drain()
        if layer == 0: wdq.drain(); self.wd_last = wd[-1].tok
        self.stamp(f'g1b{layer}')
        self.ht = {}
        ph = hbox[0] if hbox else self.poll_issue(vP7, s(sHFp), lo)
        epi = [Item(x) for x in self.epilogue1(ACC[1], 1, 0, 1) + self.epilogue1(ACC[1] + 28, 1, 256, 1)]
        q = Queue(k, epi, 12)
        total = q.cost()
        lead = o.get('epi_lead', 24); nld = o.get('epi_ld', 9)
        while total - q.cost() < lead:
            if q.fill(3) == 3: q.emit(q.q[0])
        self.poll_check(ph)
        self.stamp(f'hA_seen{layer}')
        self.nxtH = 0
        marks = [lead + (total - lead)*i // nld for i in range(nld)]
        while len(q):
            while marks and total - q.cost() >= marks[0]: marks.pop(0); self.ldH(0)
            if q.fill(3) == 3: q.emit(q.q[0])
        self.hB_tok = epi[-1].tok
        self.stamp(f'epiB{layer}')

    def g2_order(self):
        D = self.o.get('skew', 4)
        A = [(0, U, mt) for U in range(14) for mt in range(2)]
        B = sorted([(1, U, mt) for U in range(14) for mt in range(2)], key=lambda x: (x[1] + D*x[2], x[2]))
        return A + B
    def hreg(self, n):
        if n < 14: return ACC[0] + 4*n
        if n < 28: return WF + 4*(n - 14)
        if n < 42: return ACC[1] + 4*(n - 28)
        return ACC[0] + 4*(n - 42)
    def ldH(self, _=0):
        n = self.nxtH; self.nxtH += 1
        half, U, mt = self.g2_order()[n]
        self.ht[n] = self.k(f"buffer_load_dwordx4 {v(self.hreg(n),4)}, {v(vHld[half])}, {s(RW,4)}, {k4(U>>1)} offen offset:{(U&1)*2048 + mt*256} sc1")

    def red_write(self, A2):
        return [f"ds_write_b128 {v(vRw)}, {v(A2 + 16*mt + 4*nt, 4)} offset:{4352*mt + 64*nt}" for mt in range(2) for nt in range(4)]
    def red_read(self, P):
        return [f"ds_read_b128 {v(P + 8*w + 4*hf, 4)}, {v(vRr)} offset:{8704*w + 16*hf}" for w in range(4) for hf in range(2)]
    def red_sum(self, P, half, layer, X3, pk):
        L = []
        def add(d, x, y):
            if pk: L.extend(f"v_pk_add_f32 {v(d+e,2)}, {v(x+e,2)}, {v(y+e,2)}" for e in (0, 2, 4, 6))
            else: L.extend(f"v_add_f32 {v(d+e)}, {v(x+e)}, {v(y+e)}" for e in range(8))
        add(P, P, P+8); add(P+16, P+16, P+24)
        if layer == 1:
            L += self.unpack(P+8, X3); add(P, P, P+8)
        add(P, P, P+16)
        L += [f"v_cvt_pk_bf16_f32 {v(P+8+e)}, {v(P+2*e)}, {v(P+2*e+1)}" for e in range(4)]
        if layer == 0: L.append(f"buffer_store_dwordx4 {v(P+8,4)}, {v(vF2)}, {s(RW,4)}, {s(sHALF) if half else 0} offen")
        else: L.append(f"buffer_store_dwordx4 {v(P+8,4)}, {v(vO)}, {s(RO,4)}, {k4(half)} offen{self.o.get('ost', '')}")
        return L

    def gemm2(self, layer):
        k = self.k; o = self.o
        lo = 1024*layer
        AC2 = [AR, WF]
        X3 = [TMP, TMP + 4]
        order = self.g2_order()
        LA = o.get('g2la', 20)
        xt = {}
        def ldX(h): xt[h] = k(f"buffer_load_dwordx4 {v(X3[h],4)}, {v(vF2)}, {s(RW,4)}, {s(sHALF) if h else 0} offen sc1")
        side = Queue(k, self.publish_items(lambda: self.hB_tok, s(sHFs), lo + 512, o.get('hb_pub', 24))
                     + self.poll_items(vP7, s(sHFp), lo + 512, o.get('hb_pi', 44), o.get('hb_pc', 70)))
        if layer == 0: k.wait(self.wd_last)
        fbox = []; seenB = False; wB = self.red_write(AC2[1]); doneB = 0
        def next_load():
            self.ldH()
            if layer == 1 and self.nxtH == 36: ldX(0)
            if layer == 1 and self.nxtH == 56:
                ldX(1)
                if o.get('wbl2', 0): self.writeback()
        for n in range(56):
            half, U, mt = order[n]
            if n == 28:
                self.stamp(f'g2a{layer}')
                side.drain(); seenB = True
                t = 4*28
                sp = o.get('ra_sp', 4)
                L = [Item(x, at=t + 3 + sp*i) for i, x in enumerate(self.red_write(AC2[0]))]
                L += [Item(fn=lambda: k.wait_lg0(), at=t + 8*sp + 3), Item(fn=lambda: k("s_barrier"))]
                L += [Item(x) for x in self.red_read(AR)]
                L += [Item(fn=lambda: k.wait_lg0(), at=t + 8*sp + o.get('ra_rd', 16)), Item(fn=lambda: k("s_barrier"))]
                if layer == 1: L += [Item(fn=lambda: k.wait(xt[0]))]
                L += [Item(x) for x in self.red_sum(AR, 0, layer, X3[0], 0)]
                fA = L[-1]
                if layer == 0:
                    L += self.publish_items(lambda: fA.tok, s(sFFs), 0, o.get('fa_pub', t + 90))
                    L.append(Item(fn=lambda: fbox.append(self.poll_issue(vP7, s(sFFp), 0)), at=o.get('fa_pi', 8*28 - 4)))
                if o.get('nored') and layer == 1: L = []
                side = Queue(k, L)
                last0 = max(i for i in range(28, 56) if order[i][2] == 0)
                late = Queue(k, [Item(x, at=4*(last0 + 1) + 3 + sp*i) for i, x in enumerate(wB[:4])])
            if not len(side): seenB = True
            while n not in self.ht: next_load()
            if n % 2 == 0:
                while seenB and n + 1 not in self.ht: next_load()
                k.wait(self.ht.get(n + 1, self.ht[n]))
            else: k.wait(self.ht[n])
            for nt in range(4):
                d = AC2[half] + 16*mt + 4*nt
                k(f"v_mfma_f32_16x16x32_bf16 {v(d,4)}, {a((4*U+nt)*4,4)}, {v(self.hreg(n),4)}, {'0' if U == 0 else v(d,4)}")
                cap = 2 - (1 if (nt == 3 and n % 2) else 0)
                if (nt == 0 or (nt == 2 and self.nxtH < n + 1 + o.get('g2min', 6))) and self.nxtH < min(56 if seenB else 28, n + 1 + LA) and (self.nxtH < 42 or self.nxtH - 42 < n):
                    next_load(); cap -= 1
                cap = side.fill(cap, 4*n + nt)
                if n >= 28 and all(x.i is not None or x.at > 200 for x in side.q[:1]) and not any('ds_' in (x.text or '') or (x.fn and x.at <= t + 8*sp + 40) for x in side.q):
                    late.fill(cap, 4*n + nt)
        print('layer', layer, 'left after G2B:', side.cost(), late.cost())
        side.drain()
        wB = [x.text for x in late.q] + wB[4:]
        self.stamp(f'g2b{layer}')
        R = ACC[1]
        if layer == 0:
            self.poll_check(fbox[0])
            self.stamp('fA_seen')
            fld = k(f"buffer_load_dwordx4 {v(R,4)}, {v(vL16)}, {s(RW,4)}, {s(sFR[0])} offen sc1")
        for x in wB: k(x)
        if layer == 0: self.run(self.unpack(R + 24, YS[0]))
        k.wait_lg0(); k("s_barrier")
        for x in self.red_read(ACC[0]): k(x)
        if layer == 0:
            k.wait(fld)
            sts, rest = self.rowop(0, R, True)
            self.stamp('rowA')
        k.wait_lg0()
        if layer == 1: k.wait(xt[1])
        fB = self.run(self.red_sum(ACC[0], 1, layer, X3[1], 1))[-1].tok
        self.stamp(f'fB_st{layer}')
        if layer == 0:
            self.gemm1_start(1)
            self.publish(sts, s(sAFs), 1024)
            self.stamp('aA_pub')
            self.run(rest)
            self.publish(fB, s(sFFs), 512)

    def writeback(self):
        k = self.k
        a_, b_ = k.label(), k.label()
        k(f"s_or_b32 {s(T[2])}, {s(sJ)}, {s(sW)}\ns_cmp_lg_u32 {s(T[2])}, 0\ns_cbranch_scc1 {a_}")
        k("buffer_wbl2 sc1")
        k(f"s_branch {b_}"); k.place(a_)
        k.ins.append(I(f"buffer_load_dword {v(vPT)}, {v(vL0)}, {s(RW,4)}, 0 offen"))
        k.place(b_)

    def rowop(self, h, R, split=False):
        L = self.unpack(R + 8, R)
        L += [f"v_pk_add_f32 {v(XS[h]+e,2)}, {v(XS[h]+e,2)}, {v(R+8+e,2)}" for e in (0, 2, 4, 6)]
        L += self.stats([XS[h]], [36], R + 16)
        L += self.affine(R + 8, XS[h], 36, R + 20)
        G = self.gate_norm([h], {h: R + 8}, 1, R + 24)
        rest = []
        if split: G, rest = G[8:-5], G[-5:]
        its = self.run(L + G, 16)
        tok = [x.tok for x in its if 'store' in x.text][-1]
        return (tok, rest) if split else tok

    def build(self):
        k = self.k; o = self.o
        self.prologue()
        self.w1_addr()
        self.w1_dma(o.get('n0', 2))
        self.front_addr()
        self.wd_job_addr()
        self.phase0()
        self.w1_dma(o.get('n1', 1))
        self.conv()
        self.y_in()
        for layer in range(2):
            self.gemm1(layer)
            self.gemm2(layer)
        if o.get('stamps'):
            self.stamp('end')
            k(f"""s_lshl_b32 {s(T[0])}, s2, 2
                  s_add_u32 {s(T[0])}, {s(T[0])}, {s(sW)}
                  s_lshl_b32 {s(T[0])}, {s(T[0])}, 8
                  s_add_u32 {s(T[0])}, {s(T[0])}, {WS_DBG}
                  v_lshrrev_b32 v5, 2, {v(vL16)}
                  buffer_store_dword {v(vST[0])}, v5, {s(RW,4)}, {s(T[0])} offen
                  s_add_u32 {s(T[0])}, {s(T[0])}, 0x40000
                  buffer_store_dword {v(vST[1])}, v5, {s(RW,4)}, {s(T[0])} offen""")
        if o.get('delay'):
            k(f"""s_mov_b32 {s(T[0])}, {o['delay']}
                  s_memrealtime {s(T[2],2)}
                  s_waitcnt lgkmcnt(0)""")
            k.place("L_DELAY")
            k(f"""s_memrealtime {s(T[4],2)}
                  s_waitcnt lgkmcnt(0)
                  s_sub_u32 {s(T[4])}, {s(T[4])}, {s(T[2])}
                  s_cmp_lt_u32 {s(T[4])}, {s(T[0])}
                  s_cbranch_scc1 L_DELAY""")
        if o.get('diag'):
            self.stamp('end')
            k(f"""v_sub_u32 v5, {v(vST[1])}, {v(vST[0])}
                  s_nop 1
                  v_readfirstlane_b32 {s(T[0])}, v5
                  s_mul_i32 {s(T[0])}, {s(T[0])}, 8
                  s_memrealtime {s(T[2],2)}
                  s_waitcnt lgkmcnt(0)""")
            k.place("L_DIAG")
            k(f"""s_memrealtime {s(T[4],2)}
                  s_waitcnt lgkmcnt(0)
                  s_sub_u32 {s(T[4])}, {s(T[4])}, {s(T[2])}
                  s_cmp_lt_u32 {s(T[4])}, {s(T[0])}
                  s_cbranch_scc1 L_DIAG""")
        k.place("L_END")
        k("s_endpgm")
        body = k.text()
        for t in self.tail:
            body += "".join((x + "\n") if x.endswith(':') else ("    " + x + "\n") for x in t)
        body += "L_LAST:\n"
        return body

def file_text(opt):
    g = Gen(opt)
    body = g.build()
    ref = open(os.path.join(os.path.dirname(os.path.abspath(__file__)), '..', 'cdna_kernels', NAME + '.s.ref')).read()
    head = ref[:ref.index('; Override launch geometry')]
    txt = head + f"""; @launch grid=(256,1,1) block=(256,1,1) lds={LDS_SIZE}
.amdgcn_target "amdgcn-amd-amdhsa--gfx950"
.text
.globl {NAME}_kernel
.p2align 8
.type {NAME}_kernel,@function
{NAME}_kernel:
{body}.section .rodata,"a"
.p2align 6
.amdhsa_kernel {NAME}_kernel
  .amdhsa_next_free_vgpr 512
  .amdhsa_next_free_sgpr 102
  .amdhsa_accum_offset 256
  .amdhsa_group_segment_fixed_size 0
  .amdhsa_kernarg_size 104
  .amdhsa_user_sgpr_count 2
  .amdhsa_user_sgpr_kernarg_segment_ptr 1
  .amdhsa_system_sgpr_workgroup_id_x 1
.end_amdhsa_kernel
"""
    return txt, g

if __name__ == '__main__':
    import json
    opt = {}; out = None
    for x in sys.argv[1:]:
        if '=' in x:
            kk, vv = x.split('=')
            opt[kk] = vv.split(',') if kk in ('only', 'diag') else (' ' + vv.replace('+', ' ') if kk in ('ost', 'wdm') else int(vv, 0))
        else: out = x
    txt, g = file_text(opt)
    open(out, 'w').write(txt)
    json.dump(g.stamps, open(out + '.stamps.json', 'w'))
    print('instructions', len(g.k.ins), 'nops added', g.k.nops_added, 'stamps', len(g.stamps))
```

```python
import sys, os
sys.path.insert(0, os.path.dirname(os.path.abspath(__file__)))
from dsl import *

NAME = 'interleave_layers__ssm_conv_h3__swiglu_ffn__prompt'

WS_XCCF = 0x1000
WS_KVF  = 0x10000
WS_AF   = 0x11000
WS_HF   = 0x19000
WS_FF   = 0x21000
WS_YF   = 0x30000
WS_JF   = 0x50000
WS_KVT  = 0x100000
WS_A    = WS_KVT
WS_YP   = 0x300000
WS_F    = 0x500000
WS_H    = 0x700000
WS_WDT  = 0xE00000
WS_DBG  = 0x1000000
WS_SIZE = 0x1100000
H_X, H_HALF, H_RB = 917504, 458752, 114688

LDS_SIZE = 163840
SCR   = 114688
L_K   = SCR
L_V   = L_K + 9216
L_H   = L_V + 8192
H_CP  = 4096 + 128
H_E   = lambda ch: L_H + ch * 2 * H_CP + 64
H_O   = lambda ch: L_H + ch * 2 * H_CP + H_CP + 128
L_U   = L_H + 4 * H_CP + 128
U_S   = 4608
assert L_U + 2 * U_S <= LDS_SIZE
L_CRED = 57344
L_YT  = L_U
L_JOB = 114688 - 16384
L_RED = SCR

sX, sJ, sW, sN, sEXP, sSPIN, sXCC, sMODE = 4, 5, 6, 7, 8, 9, 10, 11
T = list(range(12, 24))
sC2 = 24
sHALF = 26
sW1S, sW1L = 27, 3
sD = 28
sDP = 34
RK, RV, RH, RQ, RG, RU, RD, RO, RW, RS = 44, 48, 52, 56, 60, 64, 68, 72, 76, 80
sK4 = 83
def k4(i): return '0' if i == 0 else s(sK4 + i)
sHH = 91
sAFp, sAFs, sHFp, sHFs, sFFp, sFFs = 94, 95, 96, 97, 98, 99
sFR = [100, 101]
sST = (32, 92)
sKVFp, sKVs, sUm0, sYst, sYFs, sYFp, sYld, sJF, sJL, sJFp = 44, 45, 46, 47, 48, 49, 50, 51, 52, 53

vL, vL16, vL0, vNON, vPT = 1, 2, 3, 4, 5
vAld, vHld = [6, 7], [8, 9]
vHm, vHt, vAst, vF2, vO, vRw, vRr, vP31, vP7, vW1 = 10, 11, 12, 13, 14, 15, 16, 17, 18, 19
vST = (20, 21)
vWd = [230, 231]
ACC = [22, 78]
WF, AR, TMP = 134, 190, 222
YS, XS = [232, 236], [240, 248]
LOG2E = 1.4426950408889634

def f32(x):
    import struct
    return '0x%08x' % struct.unpack('<I', struct.pack('<f', x))[0]

def flist(c):
    if c < 4: return [4*c + e for e in range(4)] + [16 + 4*c + e for e in range(4)]
    q = c - 4; X = [44, 46, 54][q]
    return [32 + 4*q + e for e in range(4)] + [48 + 2*q, 49 + 2*q, X, X + 1]

class Gen:
    def __init__(self, opt):
        self.o = opt
        self.k = K()
        self.tail = []
        self.stamps = []
        self.w1_next = 0
        self.late = False
        self.w1_tok = {}

    def stamp(self, name):
        dg = self.o.get('diag')
        if dg and name in dg:
            k = self.k
            k(f"s_memrealtime {s(sST[0],2)}"); k.wait_lg0()
            k(f"v_mov_b32 {v(vST[dg.index(name)])}, {s(sST[0])}")
        if not self.o.get('stamps'): return
        only = self.o.get('only')
        if only and name not in only: return
        k = self.k; n = len(self.stamps)
        k(f"s_memrealtime {s(sST[0],2)}\ns_memtime {s(sST[1],2)}"); k.wait_lg0()
        k(f"v_writelane_b32 {v(vST[0])}, {s(sST[0])}, {n}\nv_writelane_b32 {v(vST[1])}, {s(sST[1])}, {n}")
        self.stamps.append(name)

    def srd(self, base, size):
        self.k(f"s_mov_b32 {s(base+2)}, {size}\ns_mov_b32 {s(base+3)}, 0x20000")

    def poll_issue(self, vaddr, soff, off=0, vt=vPT):
        txt = f"buffer_load_dword {v(vt)}, {v(vaddr)}, {s(RW,4)}, {soff} offen offset:{off} sc1"
        return (self.k(txt), txt, vt)

    def poll_steps(self, get, local=True):
        k = self.k
        slow, back, ok = k.label(), k.label(), k.label()
        def s1(): k.wait(get()[0])
        def s2(): k(f"v_cmp_ne_u32 vcc, {s(sEXP if local else sN)}, {v(get()[2])}")
        def s3():
            if self.o.get('nopoll') and self.late: return
            k(f"s_cbranch_vccnz {slow}"); k.place(back)
            _, txt, vt = get()
            t = [f"{slow}:", txt, "s_waitcnt vmcnt(0)", f"v_cmp_ne_u32 vcc, {s(sN)}, {v(vt)}", f"s_cbranch_vccz {ok}",
                 f"s_sub_u32 {s(sSPIN)}, {s(sSPIN)}, 1", f"s_cbranch_scc0 {slow}", "s_branch L_END", f"{ok}:"]
            if local: t += [f"s_cmp_eq_u32 {s(sMODE)}, 0", f"s_cbranch_scc1 {back}", "buffer_inv sc1", "s_waitcnt vmcnt(0)"]
            self.tail.append(t + [f"s_branch {back}"])
        return [s1, s2, s3]

    def poll_check(self, h, local=True):
        for f in self.poll_steps(lambda: h, local): f()
    def poll(self, vaddr, soff, off=0, local=True):
        self.poll_check(self.poll_issue(vaddr, soff, off), local)
    def poll_items(self, vaddr, soff, off, at_issue, at_check):
        box = []
        it = [Item(fn=lambda: box.append(self.poll_issue(vaddr, soff, off)), at=at_issue)]
        return it + [Item(fn=f, at=at_check) for f in self.poll_steps(lambda: box[0])]

    def flag_store(self, soff, off=0, local=True):
        k = self.k
        txt = f"buffer_store_dword {v(vNON)}, {v(vL0)}, {s(RW,4)}, {soff} offen offset:{off}"
        if not local: return k(txt + " sc1")
        slow, back = k.label(), k.label()
        k(f"s_cmp_lg_u32 {s(sMODE)}, 0\ns_cbranch_scc1 {slow}")
        r = k(txt); k.place(back)
        self.tail.append([f"{slow}:", "s_waitcnt vmcnt(0)", "buffer_wbl2 sc1", "s_waitcnt vmcnt(0)", txt + " sc1", f"s_branch {back}"])
        return r
    def publish(self, tok, soff, off=0, local=True):
        self.k.wait(tok)
        return self.flag_store(soff, off, local)
    def publish_items(self, get, soff, off, at):
        return [Item(fn=lambda: self.k.wait(get()), at=at), Item(fn=lambda: self.flag_store(soff, off), cost=2, at=at)]

    def dma(self, vaddr, srd, soff, m0, extra=''):
        self.k(m0)
        return self.k(f"buffer_load_dwordx4 {v(vaddr)}, {s(srd,4)}, {soff} offen {extra} lds".replace('  ', ' '))

    def prologue(self):
        k = self.k
        k("s_cmp_ge_u32 s2, 256\ns_cbranch_scc1 L_END")
        if self.o.get('stamps'): k(f"v_mov_b32 {v(vST[0])}, 0\nv_mov_b32 {v(vST[1])}, 0")
        self.stamp('entry')
        k(f"s_lshr_b32 {s(sJ)}, s2, 3")
        self.code_prefetch()
        for r, off in ((RK, 8), (RV, 16), (RW, 96), (RH, 32), (RS, 24), (RQ, 0), (RG, 56), (RU, 64), (RD, 72), (RO, 80)):
            k(f"s_load_dwordx2 {s(r,2)}, s[0:1], {off}")
        k(f"s_load_dwordx2 {s(sDP,2)}, s[0:1], 40")
        k(f"""s_and_b32 {s(sX)}, s2, 7
              v_lshrrev_b32 v5, 6, v0
              v_and_b32 {v(vL)}, 63, v0
              v_readfirstlane_b32 {s(sW)}, v5
              v_lshlrev_b32 {v(vL16)}, 4, {v(vL)}""")
        for r, size in ((RK, 2097152), (RV, 2097152), (RW, WS_SIZE), (RH, 2097152), (RS, 4096)): self.srd(r, size)

        k(f"""v_lshrrev_b32 v24, 3, {v(vL)}
              v_and_b32 v25, 7, {v(vL)}
              v_and_b32 v26, 2, v24
              v_xor_b32 v25, v25, v26
              s_and_b32 {s(T[0])}, {s(sW)}, 1
              s_lshl_b32 {s(T[0])}, {s(T[0])}, 2
              v_xor_b32 v25, {s(T[0])}, v25
              v_lshlrev_b32 v25, 4, v25
              v_lshl_add_u32 v25, v24, 10, v25
              s_lshl_b32 {s(T[0])}, {s(sJ)}, 16
              s_lshl_b32 {s(T[1])}, {s(sW)}, 14
              s_lshl_b32 {s(T[2])}, {s(sX)}, 7
              s_add_u32 {s(T[0])}, {s(T[0])}, {s(T[1])}
              s_add_u32 {s(T[0])}, {s(T[0])}, {s(T[2])}
              v_add_u32 v25, {s(T[0])}, v25
              v_xor_b32 v26, 64, v25
              v_subrev_u32 v26, 8192, v26
              s_lshl_b32 {s(T[1])}, {s(sW)}, 11
              s_add_u32 {s(T[2])}, {s(T[1])}, {L_K + 1024}
              s_add_u32 {s(T[3])}, {s(T[1])}, {L_V}
              s_movk_i32 {s(T[4])}, 8192
              v_and_b32 v27, 15, {v(vL)}
              s_lshl_b32 {s(T[0])}, {s(sX)}, 6
              s_lshl_b32 {s(T[1])}, {s(sW)}, 4
              s_add_u32 {s(T[1])}, {s(T[0])}, {s(T[1])}
              v_add_u32 v27, {s(T[1])}, v27
              v_lshlrev_b32 v28, 3, v27
              s_lshl_b32 {s(T[1])}, {s(sJ)}, 1
              s_add_u32 {s(T[0])}, {s(T[0])}, {s(T[1])}
              s_lshl_b32 {s(T[5])}, {s(T[0])}, 1
              s_lshl_b32 {s(T[6])}, {s(T[0])}, 12
              s_add_u32 {s(T[7])}, {s(T[6])}, 4096
              v_lshlrev_b32 v29, 4, v0""")
        k.wait_lg0()
        self.stamp('start')
        k(f"s_load_dword {s(sN)}, {s(RW,2)}, 0")
        k(f"s_load_dword {s(sD)}, {s(sDP,2)}, {s(T[5])}")
        self.dma(25, RK, '0', f"s_mov_b32 m0, {s(T[2])}")
        self.dma(25, RV, '0', f"s_mov_b32 m0, {s(T[3])}")
        self.dma(25, RK, s(T[4]), f"s_add_u32 m0, {s(T[2])}, 1024")
        self.dma(25, RV, s(T[4]), f"s_add_u32 m0, {s(T[3])}, 1024")
        skip = k.label()
        k(f"s_cmp_lg_u32 {s(sW)}, 0\ns_cbranch_scc1 {skip}\ns_mov_b32 m0, {L_K}\ns_nop 0")
        k.ins.append(I(f"buffer_load_dwordx4 v26, {s(RK,4)}, 0 offen lds"))
        k.place(skip)
        self.sh_tok = k(f"buffer_load_dwordx2 v[30:31], v28, {s(RS,4)}, 0 offen")
        k(f"buffer_load_dwordx4 v[32:35], v29, {s(RH,4)}, {s(T[6])} offen")
        k(f"buffer_load_dwordx4 v[40:43], v29, {s(RH,4)}, {s(T[7])} offen")
        k(f"buffer_load_dwordx4 v[36:39], v29, {s(RH,4)}, {s(T[6])} offen offset:2")
        self.h_tok = k(f"buffer_load_dwordx4 v[44:47], v29, {s(RH,4)}, {s(T[7])} offen offset:2")
        k(f"""s_getreg_b32 {s(sXCC)}, hwreg(HW_REG_XCC_ID, 0, 4)
              v_cmp_eq_u32 vcc, 0, {v(vL)}
              v_mov_b32 v5, 0x80000000
              s_lshl_b32 {s(T[1])}, {s(sX)}, 5
              s_add_u32 {s(T[1])}, {s(T[1])}, {s(sJ)}
              s_lshl_b32 {s(T[1])}, {s(T[1])}, 7
              s_add_u32 {s(T[1])}, {s(T[1])}, {WS_XCCF}
              v_cndmask_b32 {v(vL0)}, v5, 0, vcc""")
        k.wait_lg0()
        k(f"""s_mul_i32 {s(sN)}, {s(sN)}, 1664525
              s_add_u32 {s(sN)}, {s(sN)}, 1013904223
              s_xor_b32 {s(T[0])}, {s(sN)}, {s(sXCC)}
              v_mov_b32 v5, {s(T[0])}
              v_mov_b32 {v(vNON)}, {s(sN)}""")
        k(f"buffer_store_dword v5, {v(vL0)}, {s(RW,4)}, {s(T[1])} offen sc1")
        for r, size in ((RQ, 2097152), (RG, 1835008), (RU, 1835008), (RD, 1835008), (RO, 2097152)): self.srd(r, size)
        k(f"""s_lshr_b32 {s(sD+2)}, {s(sD)}, 16
              s_and_b32 {s(sD+3)}, {s(sD)}, 0xffff0000
              s_lshl_b32 {s(sD+1)}, {s(sD)}, 16
              s_and_b32 {s(sD)}, {s(sD)}, 0xffff
              s_mov_b32 {s(sC2)}, {f32(LOG2E*LOG2E)}
              s_mov_b32 {s(sC2+1)}, {f32(LOG2E*LOG2E)}
              s_mov_b32 {s(sSPIN)}, {self.o.get('spin', 400000)}
              s_mov_b32 {s(sHALF)}, 0x20000
              s_mov_b32 {s(sHH)}, {H_HALF}
              v_and_b32 {v(vP31)}, 31, {v(vL)}
              v_lshlrev_b32 {v(vP31)}, 2, {v(vP31)}
              v_and_b32 {v(vP7)}, 7, {v(vL)}
              v_lshlrev_b32 {v(vP7)}, 2, {v(vP7)}""")
        for i in range(1, 8): k(f"s_movk_i32 {s(sK4+i)}, {4096*i}")

    def code_prefetch(self):
        if not self.o.get('cpf', 1): return
        k = self.k
        k(f"s_getpc_b64 {s(T[2],2)}")
        k.place("L_PC")
        k(f"""s_mul_i32 {s(T[4])}, {s(sJ)}, ((L_LAST-L_PC+4095)/4096)*128
              v_min_u32 v5, (L_LAST-L_PC+4095)/4096-1, v0
              v_lshl_add_u32 v5, v5, 7, {s(T[4])}
              v_min_u32 v5, L_LAST-L_PC-4, v5
              global_load_dword v219, v5, {s(T[2],2)}""")

    def tlb_touch(self):
        if not self.o.get('tlb', 0): return
        k = self.k
        k(f"v_and_b32 v5, 15, {v(vL)}\nv_lshlrev_b32 v5, 20, v5")
        k(f"buffer_load_dword v200, v5, {s(RW,4)}, 0 offen offset:512")
        k(f"buffer_load_dword v201, v5, {s(RO,4)}, 0 offen")
        k(f"buffer_load_dword v196, v5, {s(RG,4)}, 0 offen")
        k(f"buffer_load_dword v197, v5, {s(RU,4)}, 0 offen")
        k(f"buffer_load_dword v198, v5, {s(RQ,4)}, 0 offen")

    def touch_first(self):
        k = self.k
        if self.o.get('tch_kv', 1):
            k(f"v_and_b32 v5, 15, {v(vL)}\nv_lshlrev_b32 v5, 7, v5")
            k(f"buffer_load_dword v220, v5, {s(RW,4)}, {s(sKVs)} offen sc1")
        if self.o.get('tch_fl', 1):
            k(f"""v_lshrrev_b32 v22, 4, {v(vL)}
                  v_lshlrev_b32 v22, 15, v22
                  v_and_b32 v5, 15, {v(vL)}
                  v_lshl_add_u32 v22, v5, 7, v22
                  s_lshl_b32 {s(T[0])}, {s(sX)}, 12
                  s_add_u32 {s(T[0])}, {s(T[0])}, {WS_AF}
                  v_add_u32 v22, {s(T[0])}, v22
                  v_and_b32 v5, 3, v5
                  s_lshl_b32 {s(T[0])}, {s(sX)}, 9
                  s_add_u32 {s(T[0])}, {s(T[0])}, {WS_KVF}
                  v_lshl_add_u32 v5, v5, 7, {s(T[0])}
                  v_cmp_gt_u32 vcc, 48, {v(vL)}
                  s_cmp_eq_u32 {s(sW)}, 3
                  s_cselect_b32 {s(T[0])}, 0, 0x40000000
                  v_cndmask_b32 v5, v5, v22, vcc
                  buffer_load_dword v221, v5, {s(RW,4)}, {s(T[0])} offen sc1""")
    def touch_f(self):
        k = self.k
        k(f"""v_and_b32 v5, 7, {v(vL)}
              v_lshlrev_b32 v5, 7, v5
              v_bfe_u32 v22, {v(vL)}, 3, 1
              v_lshl_add_u32 v5, v22, 17, v5
              buffer_load_dword v199, v5, {s(RW,4)}, {s(sFR[0])} offen sc1""")

    def q_load(self):
        k = self.k
        k(f"""s_lshl_b32 {s(T[0])}, {s(sX)}, 8
              s_lshl_b32 {s(T[1])}, {s(sJ)}, 3
              s_add_u32 {s(T[0])}, {s(T[0])}, {s(T[1])}
              s_add_u32 {s(T[0])}, {s(T[0])}, {s(sW)}
              s_lshl_b32 {s(T[0])}, {s(T[0])}, 10
              s_add_u32 {s(T[1])}, {s(T[0])}, 4096""")
        k(f"buffer_load_dwordx4 v[204:207], {v(vL16)}, {s(RQ,4)}, {s(T[0])} offen")
        self.q_tok = k(f"buffer_load_dwordx4 v[208:211], {v(vL16)}, {s(RQ,4)}, {s(T[1])} offen")

    def persistent(self):
        k = self.k
        k(f"""s_lshl_b32 {s(T[0])}, {s(sJ)}, 2
              s_add_u32 {s(T[0])}, {s(T[0])}, {s(sW)}
              s_lshl_b32 {s(T[8])}, {s(sX)}, 18
              s_lshl_b32 {s(T[9])}, {s(sX)}, 12
              s_lshr_b32 {s(T[10])}, {s(sJ)}, 3
              s_and_b32 {s(T[11])}, {s(sJ)}, 7
              s_lshl_b32 {s(T[1])}, {s(T[0])}, 2
              s_add_u32 {s(T[1])}, {s(T[1])}, {s(T[9])}
              s_add_u32 {s(sAFs)}, {s(T[1])}, {WS_AF}
              s_lshl_b32 {s(T[1])}, {s(sW)}, 7
              s_add_u32 {s(T[1])}, {s(T[1])}, {s(T[9])}
              s_add_u32 {s(sAFp)}, {s(T[1])}, {WS_AF}
              s_lshl_b32 {s(T[2])}, {s(sJ)}, 2
              s_add_u32 {s(T[1])}, {s(T[1])}, {s(T[2])}
              s_add_u32 {s(sHFs)}, {s(T[1])}, {WS_HF}
              s_lshl_b32 {s(T[1])}, {s(T[10])}, 7
              s_lshl_b32 {s(T[2])}, {s(sW)}, 5
              s_add_u32 {s(T[1])}, {s(T[1])}, {s(T[2])}
              s_add_u32 {s(T[1])}, {s(T[1])}, {s(T[9])}
              s_add_u32 {s(sHFp)}, {s(T[1])}, {WS_HF}
              s_lshl_b32 {s(T[2])}, {s(T[11])}, 2
              s_add_u32 {s(T[1])}, {s(T[1])}, {s(T[2])}
              s_add_u32 {s(sFFs)}, {s(T[1])}, {WS_FF}
              s_lshr_b32 {s(T[1])}, {s(sJ)}, 1
              s_lshl_b32 {s(T[1])}, {s(T[1])}, 5
              s_add_u32 {s(T[1])}, {s(T[1])}, {s(T[9])}
              s_add_u32 {s(sFFp)}, {s(T[1])}, {WS_FF}
              s_lshr_b32 {s(T[1])}, {s(T[0])}, 5
              s_lshl_b32 {s(T[1])}, {s(T[1])}, 15
              s_bfe_u32 {s(T[2])}, {s(T[0])}, 0x10004
              s_lshl_b32 {s(T[2])}, {s(T[2])}, 10
              s_and_b32 {s(T[3])}, {s(T[0])}, 15
              s_lshl_b32 {s(T[3])}, {s(T[3])}, 4
              s_add_u32 {s(T[1])}, {s(T[1])}, {s(T[2])}
              s_add_u32 {s(T[1])}, {s(T[1])}, {s(T[3])}
              s_add_u32 {s(T[1])}, {s(T[1])}, {s(T[8])}
              s_add_u32 {s(T[1])}, {s(T[1])}, {WS_A}
              v_lshrrev_b32 v5, 2, {v(vL)}
              v_lshlrev_b32 v5, 11, v5
              v_and_b32 {v(vAst)}, 3, {v(vL)}
              v_lshl_add_u32 {v(vAst)}, {v(vAst)}, 8, v5
              v_add_u32 {v(vAst)}, {s(T[1])}, {v(vAst)}
              s_lshl_b32 {s(T[1])}, {s(sW)}, 15
              s_add_u32 {s(T[1])}, {s(T[1])}, {s(T[8])}
              s_add_u32 {s(T[1])}, {s(T[1])}, {WS_A}
              v_add_u32 {v(vAld[0])}, {s(T[1])}, {v(vL16)}
              v_add_u32 {v(vAld[1])}, 0x20000, {v(vAld[0])}
              v_add_u32 {v(vW1)}, 57344, {v(vL16)}
              v_lshrrev_b32 v5, 4, {v(vL)}
              v_and_b32 v23, 15, {v(vL)}
              v_lshlrev_b32 v22, 9, v5
              v_lshl_add_u32 v22, v23, 4, v22
              s_mul_i32 {s(T[4])}, {s(sX)}, {H_X}
              s_add_u32 {s(T[4])}, {s(T[4])}, {WS_H}
              s_mul_i32 {s(T[1])}, {s(sW)}, {H_RB}
              s_mul_i32 {s(T[2])}, {s(sJ)}, 3584
              s_add_u32 {s(T[1])}, {s(T[1])}, {s(T[2])}
              s_add_u32 {s(T[1])}, {s(T[1])}, {s(T[4])}
              v_add_u32 {v(vHm)}, {s(T[1])}, v22
              s_mul_i32 {s(T[1])}, {s(T[10])}, {H_RB}
              s_mul_i32 {s(T[2])}, {s(sW)}, 28672
              s_add_u32 {s(T[1])}, {s(T[1])}, {s(T[2])}
              s_add_u32 {s(T[1])}, {s(T[1])}, {s(T[4])}
              v_add_u32 {v(vHld[0])}, {s(T[1])}, v22
              v_add_u32 {v(vHld[1])}, {H_HALF}, {v(vHld[0])}
              v_cmp_gt_u32 vcc, 48, {v(vL)}
              v_add_u32 {v(vHt)}, 2048, {v(vHm)}
              v_mov_b32 v22, 0x80000000
              v_mul_u32_u24 {v(vRw)}, 272, v23
              v_cndmask_b32 {v(vHt)}, v22, {v(vHt)}, vcc
              v_lshl_add_u32 {v(vRw)}, v5, 4, {v(vRw)}
              s_mul_i32 {s(T[1])}, {s(sW)}, 8704
              s_add_u32 {s(T[1])}, {s(T[1])}, {L_RED}
              v_add_u32 {v(vRw)}, {s(T[1])}, {v(vRw)}
              v_lshrrev_b32 v5, 3, {v(vL)}
              v_mul_u32_u24 {v(vRr)}, 272, v5
              v_lshl_add_u32 {v(vRr)}, {v(vP7)}, 3, {v(vRr)}
              s_mul_i32 {s(T[1])}, {s(sW)}, {8*272}
              s_add_u32 {s(T[1])}, {s(T[1])}, {L_RED}
              v_add_u32 {v(vRr)}, {s(T[1])}, {v(vRr)}
              s_lshl_b32 {s(T[1])}, {s(T[10])}, 5
              s_lshl_b32 {s(T[2])}, {s(sW)}, 3
              s_add_u32 {s(T[1])}, {s(T[1])}, {s(T[2])}
              v_add_u32 v5, {s(T[1])}, v5
              s_lshl_b32 {s(T[2])}, {s(T[11])}, 7
              s_add_u32 {s(T[2])}, {s(T[2])}, {s(T[8])}
              v_lshl_add_u32 v22, {v(vP7)}, 2, {s(T[2])}
              v_lshl_add_u32 {v(vF2)}, v5, 10, v22
              v_add_u32 {v(vF2)}, {WS_F}, {v(vF2)}
              v_lshrrev_b32 v23, 2, v5
              v_and_b32 v5, 3, v5
              v_lshl_add_u32 v5, v23, 3, v5
              v_lshl_add_u32 {v(vO)}, v5, 10, v22""")

    W1V = 212
    def w1_addr(self):
        k = self.k; vb = self.W1V
        k(f"s_mul_i32 {s(T[0])}, {s(sJ)}, 112\ns_movk_i32 {s(T[1])}, 9363\ns_movk_i32 {s(T[2])}, {3584 - 7*16}")
        for i in range(7):
            k(f"""v_add_u32 v5, {64*i}, {v(vL)}
                  v_mul_u32_u24 {v(vb+i)}, {s(T[1])}, v5
                  v_lshrrev_b32 {v(vb+i)}, 16, {v(vb+i)}
                  v_mul_u32_u24 {v(vb+i)}, {s(T[2])}, {v(vb+i)}
                  v_lshl_add_u32 {v(vb+i)}, v5, 4, {v(vb+i)}
                  v_add_u32 {v(vb+i)}, {s(T[0])}, {v(vb+i)}""")
        k(f"s_mul_i32 {s(sW1S)}, {s(sW)}, 229376\ns_mul_i32 {s(sW1L)}, {s(sW)}, 14336")

    def w1_dma_text(self, n):
        ck, mat, i = n // 14, (n % 14) // 7, n % 7
        L = []
        if n == 14: L.append(f"s_add_u32 {s(sW1S)}, {s(sW1S)}, {4*229376}")
        L.append(f"s_add_u32 m0, {s(sW1L)}, {ck*57344 + mat*7168 + i*1024}")
        L.append(f"buffer_load_dwordx4 {v(self.W1V+i)}, {s(RU if mat else RG,4)}, {s(sW1S)} offen lds")
        return L
    def w1_dma(self, cnt):
        for _ in range(cnt):
            if self.w1_next >= 28: return
            n = self.w1_next; self.w1_next += 1
            for x in self.w1_dma_text(n): self.w1_tok[n] = self.k(x)

    RL = 222
    def w1_relayout_addr(self):
        k = self.k; r = self.RL
        k(f"""v_lshrrev_b32 v5, 4, {v(vL)}
              v_bfe_u32 {v(r)}, {v(vL)}, 2, 2
              v_lshl_add_u32 {v(r)}, v5, 3, {v(r)}
              v_mul_u32_u24 {v(r)}, 112, {v(r)}
              v_add_u32 {v(r)}, {s(sW1L)}, {v(r)}
              v_and_b32 {v(r+2)}, 3, {v(vL)}
              v_bfe_u32 {v(r+3)}, {v(vL)}, 1, 1
              v_mul_u32_u24 {v(r+3)}, 7168, {v(r+3)}
              v_and_b32 v22, 1, {v(vL)}
              v_lshl_add_u32 {v(r+3)}, v22, 3, {v(r+3)}
              v_add_u32 {v(r+1)}, {v(r)}, {v(r+3)}
              v_lshl_add_u32 {v(r)}, {v(r+2)}, 3, {v(r)}
              v_add_u32 {v(r+2)}, {s(sW1L)}, {v(vL16)}
              v_bfe_u32 {v(r+3)}, {v(vL)}, 1, 2
              v_lshlrev_b32 {v(r+3)}, 2, {v(r+3)}
              v_bfe_u32 v23, {v(vL)}, 3, 1
              v_lshl_add_u32 {v(r+3)}, v23, 1, {v(r+3)}
              v_add_u32 {v(r+3)}, {v(r+3)}, v22
              v_lshl_add_u32 {v(r+3)}, v5, 4, {v(r+3)}
              v_lshlrev_b32 {v(r+3)}, 4, {v(r+3)}
              v_add_u32 {v(r+3)}, {s(sW1L)}, {v(r+3)}""")
    def w1_relayout_items(self, ck, vtemp=False):
        k = self.k; r = self.RL
        R, a = (ACC[1], v) if vtemp else (128, globals()['a'])
        L = [Item(fn=lambda: k.wait(self.w1_tok[14*ck + 13]))]
        if ck == 1: L += [Item(f"v_add_u32 {v(r+i)}, 57344, {v(r+i)}") for i in range(4)]
        for sl in range(2):
            for Tt in range(7):
                for hf in range(2):
                    d = R + (sl*7 + Tt)*4 + 2*hf
                    o = (32*sl + 4*hf)*112
                    if Tt < 6: L.append(Item(f"ds_read_b64_tr_b16 {a(d,2)}, {v(r)} offset:{o + (Tt&1)*7168 + 32*(Tt>>1)}"))
                    else: L.append(Item(f"ds_read_b64_tr_b16 {a(d,2)}, {v(r+1)} offset:{o + 96}"))
        last = L[-1]
        L.append(Item(fn=lambda: k.wait(last.tok)))
        for n in range(14): L.append(Item(f"ds_write_b128 {v(r+3 if n % 7 == 6 else r+2)}, {a(R + n*4, 4)} offset:{n*1024}"))
        return L
    def w1_relayout(self, ck): Queue(self.k, self.w1_relayout_items(ck)).drain()

    JV = 190
    def wd_job_addr(self):
        k = self.k; r = self.JV
        k(f"""s_lshl_b32 {s(T[0])}, s2, 1
              s_lshr_b32 {s(T[1])}, {s(sW)}, 1
              s_add_u32 {s(T[0])}, {s(T[0])}, {s(T[1])}
              s_mul_i32 {s(T[1])}, {s(T[0])}, 4682
              s_lshr_b32 {s(T[1])}, {s(T[1])}, 16
              s_mul_i32 {s(T[2])}, {s(T[1])}, 14
              s_sub_u32 {s(T[2])}, {s(T[0])}, {s(T[2])}
              s_and_b32 {s(T[3])}, {s(T[1])}, 3
              s_lshr_b32 {s(T[1])}, {s(T[1])}, 2
              s_lshl_b32 {s(T[1])}, {s(T[1])}, 7
              s_mul_i32 {s(T[3])}, {s(T[3])}, {8*57344}
              s_add_u32 {s(T[1])}, {s(T[1])}, {s(T[3])}
              s_cmp_lt_u32 s2, 224
              s_cselect_b32 {s(T[3])}, {s(sW)}, 0
              s_bitcmp1_b32 {s(T[3])}, 0
              s_cselect_b32 {s(T[3])}, 0, 0x80000000
              s_lshl_b32 {s(T[4])}, {s(T[0])}, 6
              s_add_u32 {s(T[4])}, {s(T[4])}, {WS_JF}
              s_lshr_b32 {s(sJF)}, {s(T[3])}, 1
              s_or_b32 {s(sJF)}, {s(sJF)}, {s(T[4])}
              s_lshl_b32 {s(T[0])}, {s(T[0])}, 12
              s_add_u32 {s(T[0])}, {s(T[0])}, {WS_WDT}
              s_or_b32 {s(T[0])}, {s(T[0])}, {s(T[3])}
              s_or_b32 {s(T[1])}, {s(T[1])}, {s(T[3])}
              v_add_u32 {v(r+5)}, {s(T[0])}, {v(vL16)}
              v_lshrrev_b32 v5, 3, {v(vL)}
              v_and_b32 v22, 3, v5
              v_lshlrev_b32 v22, 3, v22
              v_cmp_gt_u32 vcc, 4, v5
              v_lshl_add_u32 v23, {v(vP7)}, 2, {s(T[1])}
              s_lshl_b32 {s(T[2])}, {s(T[2])}, 2""")
        for g in range(4):
            k(f"""s_add_u32 {s(T[0])}, {s(T[2])}, {g}
                  s_mul_i32 {s(T[1])}, {s(T[0])}, 9363
                  s_lshr_b32 {s(T[1])}, {s(T[1])}, 16
                  s_mul_i32 {s(T[3])}, {s(T[1])}, 7
                  s_sub_u32 {s(T[0])}, {s(T[0])}, {s(T[3])}
                  s_mul_i32 {s(T[1])}, {s(T[1])}, 56
                  s_mul_i32 {s(T[3])}, {s(T[0])}, 0x04040404
                  s_add_u32 {s(T[4])}, {s(T[3])}, 0x13121110
                  s_add_u32 {s(T[3])}, {s(T[3])}, 0x03020100
                  s_cmp_ge_u32 {s(T[0])}, 4
                  s_cselect_b32 {s(T[3])}, {s(T[4])}, {s(T[3])}
                  s_cselect_b32 {s(T[4])}, {sum(x << (8*e) for e, x in enumerate(flist(4)[4:]))}, {s(T[4])}
                  s_cmp_eq_u32 {s(T[0])}, 5
                  s_cselect_b32 {s(T[4])}, {sum(x << (8*e) for e, x in enumerate(flist(5)[4:]))}, {s(T[4])}
                  s_cmp_eq_u32 {s(T[0])}, 6
                  s_cselect_b32 {s(T[4])}, {sum(x << (8*e) for e, x in enumerate(flist(6)[4:]))}, {s(T[4])}
                  v_mov_b32 v5, {s(T[3])}
                  v_mov_b32 {v(r+g)}, {s(T[4])}
                  v_cndmask_b32 v5, {v(r+g)}, v5, vcc
                  v_bfe_u32 v5, v5, v22, 8
                  v_add_u32 v5, {s(T[1])}, v5
                  v_lshl_add_u32 {v(r+g)}, v5, 10, v23""")
        k(f"""s_lshl_b32 {s(sJL)}, {s(sW)}, 12
              s_add_u32 {s(sJL)}, {s(sJL)}, {L_JOB}
              v_lshrrev_b32 v5, 4, {v(vL)}
              v_lshlrev_b32 {v(r+4)}, 10, v5
              v_bfe_u32 v5, {v(vL)}, 2, 2
              v_lshl_add_u32 {v(r+4)}, v5, 7, {v(r+4)}
              v_and_b32 v5, 3, {v(vL)}
              v_lshl_add_u32 {v(r+4)}, v5, 3, {v(r+4)}
              v_add_u32 {v(r+4)}, {s(sJL)}, {v(r+4)}""")
    def wd_job_issue(self):
        for g in range(4): self.job_tok = self.dma(self.JV+g, RD, '0', f"s_add_u32 m0, {s(sJL)}, {1024*g}")
    def wd_job_finish(self):
        k = self.k; r = self.JV
        k.wait(self.job_tok)
        t = {}
        for nt in range(4):
            for hf in range(2): t[nt] = k(f"ds_read_b64_tr_b16 {a(128 + 4*nt + 2*hf, 2)}, {v(r+4)} offset:{hf*512 + nt*32}")
        for nt in range(4):
            k.wait(t[nt])
            self.job_st = k(f"buffer_store_dwordx4 {a(128 + 4*nt, 4)}, {v(r+5)}, {s(RW,4)}, 0 offen offset:{1024*nt} sc1")
    WDV = 226
    def wd_addr(self):
        self.k(f"""s_and_b32 {s(T[0])}, {s(sJ)}, 7
                   s_lshl_b32 {s(T[0])}, {s(T[0])}, 2
                   s_add_u32 {s(T[0])}, {s(T[0])}, {s(sW)}
                   s_mul_i32 {s(sJFp)}, {s(T[0])}, {14*64}
                   s_add_u32 {s(sJFp)}, {s(sJFp)}, {WS_JF}
                   s_mul_i32 {s(T[0])}, {s(T[0])}, {14*4096}
                   s_add_u32 {s(T[0])}, {s(T[0])}, {WS_WDT}
                   v_add_u32 {v(vWd[0])}, {s(T[0])}, {v(vL16)}
                   v_add_u32 {v(vWd[1])}, 32768, {v(vWd[0])}
                   v_min_u32 v226, 13, {v(vL)}
                   v_lshlrev_b32 v226, 6, v226
                   s_lshr_b32 {s(T[1])}, {s(sJ)}, 3
                   s_mul_i32 {s(T[1])}, {s(T[1])}, {112*128}
                   s_add_u32 {s(T[0])}, {s(T[0])}, {s(T[1])}
                   v_min_u32 v227, 55, {v(vL)}
                   v_lshl_add_u32 v227, v227, 7, {s(T[0])}""")
    def wd_touch_text(self, i):
        return f"buffer_load_dword {v(228+i)}, v227, {s(RW,4)}, {k4(i)} offen offset:{3072*i} sc1"
    def wd_text(self, n):
        U, nt = divmod(n, 4)
        return f"buffer_load_dwordx4 {a(4*n, 4)}, {v(vWd[U >> 3])}, {s(RW,4)}, {k4(U & 7)} offen offset:{1024*nt}{self.o.get('wdm', ' sc1')}"

    def phase0(self):
        k = self.k
        k(f"""v_lshrrev_b32 v5, 4, {v(vL)}
              v_bfe_u32 v48, {v(vL)}, 2, 2
              v_lshl_add_u32 v49, v5, 4, v48
              v_lshlrev_b32 v49, 7, v49
              v_bfe_u32 v50, {v(vL)}, 1, 1
              s_lshl_b32 {s(T[0])}, {s(sW)}, 1
              v_add_u32 v50, {s(T[0])}, v50
              v_and_b32 v48, 2, v48
              v_xor_b32 v50, v50, v48
              v_and_b32 v48, 1, v5
              v_lshlrev_b32 v48, 2, v48
              v_xor_b32 v50, v50, v48
              v_lshl_add_u32 v49, v50, 4, v49
              v_and_b32 v48, 1, {v(vL)}
              v_lshl_add_u32 v49, v48, 3, v49
              v_add_u32 v49, {L_K}, v49
              v_xor_b32 v50, 64, v49
              v_lshlrev_b32 v51, 12, v27
              v_lshl_add_u32 v51, v5, 5, v51
              s_lshl_b32 {s(T[6])}, {s(sJ)}, 7
              s_add_u32 {s(T[6])}, {s(T[6])}, {WS_KVT}
              v_lshlrev_b32 v52, 5, {v(vP31)}
              s_lshl_b32 {s(T[7])}, {s(sX)}, 12
              s_add_u32 {s(T[7])}, {s(T[7])}, {WS_XCCF}
              s_lshl_b32 {s(T[0])}, {s(sX)}, 9
              s_lshl_b32 {s(T[1])}, {s(sW)}, 7
              s_lshl_b32 {s(T[2])}, {s(sJ)}, 2
              s_add_u32 {s(T[1])}, {s(T[1])}, {s(T[2])}
              s_add_u32 {s(T[0])}, {s(T[0])}, {WS_KVF}
              s_add_u32 {s(T[5])}, {s(T[1])}, {s(T[0])}
              s_xor_b32 {s(T[0])}, {s(sN)}, {s(sXCC)}
              s_mov_b32 {s(sMODE)}, 0
              s_mov_b32 {s(sEXP)}, {s(sN)}""")
        k.wait(self.sh_tok)
        k("s_barrier")
        self.stamp('kv_in')
        xh = k(f"buffer_load_dword v53, v52, {s(RW,4)}, {s(T[7])} offen sc1")
        KR, VR, KS, O, VU, P = 56, 68, 78, 88, 104, 120
        k(f"ds_read_b64_tr_b16 {v(KR,2)}, v50 offset:512")
        for i in range(4): k(f"ds_read_b64_tr_b16 {v(KR+2+2*i,2)}, v49 offset:{1024 + 512*i}")
        for i in range(4): lastv = k(f"ds_read_b64_tr_b16 {v(VR+2*i,2)}, v49 offset:{L_V - L_K + 512*i}")
        k("v_alignbit_b32 v54, v30, v30, 16\nv_alignbit_b32 v55, v31, v31, 16")
        k.wait(('lg', lastv[1] - 4))
        for aa in range(-1, 8): k(f"v_alignbit_b32 {v(KS+1+aa)}, {v(KR+2+aa)}, {v(KR+1+aa)}, 16")
        for aa in range(8):
            k(f"v_dot2_f32_bf16 {v(O+2*aa)}, {v(KS+aa)}, v55, 0")
            k(f"v_dot2_f32_bf16 {v(O+2*aa+1)}, {v(KR+1+aa)}, v55, 0")
        for aa in range(8):
            k(f"v_dot2_f32_bf16 {v(O+2*aa)}, {v(KS+1+aa)}, v54, {v(O+2*aa)}")
            k(f"v_dot2_f32_bf16 {v(O+2*aa+1)}, {v(KR+2+aa)}, v54, {v(O+2*aa+1)}")
        k.wait(lastv)
        for g in range(2):
            for aa in range(4*g, 4*g+4):
                k(f"v_lshlrev_b32 {v(VU+2*aa)}, 16, {v(VR+aa)}")
                k(f"v_and_b32 {v(VU+2*aa+1)}, 0xffff0000, {v(VR+aa)}")
            for aa in range(4*g, 4*g+4): k(f"v_pk_mul_f32 {v(O+2*aa,2)}, {v(O+2*aa,2)}, {v(VU+2*aa,2)}")
            for e in range(4): k(f"v_cvt_pk_bf16_f32 {v(P+4*g+e)}, {v(O+8*g+7-2*e)}, {v(O+8*g+6-2*e)}")
            st = k(f"buffer_store_dwordx4 {v(P+4*g,4)}, v51, {s(RW,4)}, {s(T[6])} offen offset:{16*g}")
        self.stamp('kv_st')
        self.toeplitz_write()
        slow, back, done = k.label(), k.label(), k.label()
        k.wait(xh)
        k(f"v_cmp_ne_u32 vcc, {s(T[0])}, v53\ns_cbranch_vccnz {slow}")
        k.place(back)
        self.tail.append([f"{slow}:",
            f"buffer_load_dword v53, v52, {s(RW,4)}, {s(T[7])} offen sc1", "s_waitcnt vmcnt(0)",
            f"v_xor_b32 v54, {s(sN)}, v53", "v_cmp_lt_u32 vcc, 15, v54", f"s_cbranch_vccz {done}",
            f"s_sub_u32 {s(sSPIN)}, {s(sSPIN)}, 1", f"s_cbranch_scc0 {slow}", "s_branch L_END",
            f"{done}:", f"v_cmp_ne_u32 vcc, {s(T[0])}, v53", f"s_cbranch_vccz {back}",
            f"s_mov_b32 {s(sMODE)}, 1", f"s_not_b32 {s(sEXP)}, {s(sN)}", f"s_branch {back}"])
        self.publish(st, s(T[5]))
        self.stamp('kv_pub')

    def toeplitz_write(self):
        k = self.k
        k.wait(self.h_tok)
        k(f"v_add_u32 v48, {SCR}, v29")
        for ch in range(2):
            k(f"ds_write_b128 v48, {v(32+8*ch,4)} offset:{H_E(ch) - SCR}")
            k(f"ds_write_b128 v48, {v(36+8*ch,4)} offset:{H_O(ch) - SCR}")
        skip = k.label()
        k(f"s_cmp_lg_u32 {s(sW)}, 0\ns_cbranch_scc1 {skip}")
        k(f"""v_readfirstlane_b32 {s(T[1])}, v32
              v_readfirstlane_b32 {s(T[2])}, v40
              v_cmp_eq_u32 vcc, 28, {v(vP7)}
              v_add_u32 v49, {SCR}, {v(vP7)}
              s_lshl_b32 {s(T[1])}, {s(T[1])}, 16
              s_lshl_b32 {s(T[2])}, {s(T[2])}, 16
              v_mov_b32 v50, 0
              v_mov_b32 v51, 0
              v_mov_b32 v54, {s(T[1])}
              v_mov_b32 v55, {s(T[2])}
              v_cndmask_b32 v54, v50, v54, vcc
              v_cndmask_b32 v55, v50, v55, vcc
              ds_write_b32 v49, v50 offset:{H_E(0) - 32 - SCR}
              ds_write_b32 v49, v50 offset:{H_E(1) - 32 - SCR}
              ds_write_b32 v49, v54 offset:{H_O(0) - 32 - SCR}
              ds_write_b32 v49, v55 offset:{H_O(1) - 32 - SCR}
              v_lshlrev_b32 v49, 3, {v(vL)}
              v_add_u32 v49, {L_U}, v49
              ds_write_b64 v49, v[50:51]
              ds_write_b64 v49, v[50:51] offset:{U_S}""")
        k.place(skip)

    def front_addr(self):
        k = self.k; o = self.o; yfs = o.get('yfs', 4)
        k(f"""v_and_b32 v24, 15, {v(vL)}
              v_lshrrev_b32 v25, 4, {v(vL)}
              v_lshlrev_b32 v5, 3, v25
              v_sub_u32 v26, v24, v5
              v_add_u32 v26, 9, v26
              v_and_b32 v5, 1, v26
              v_sub_u32 v26, v26, v5
              v_lshlrev_b32 v26, 1, v26
              v_mul_u32_u24 v5, {H_O(0) - H_E(0)}, v5
              v_add_u32 v26, v26, v5
              s_lshr_b32 {s(T[0])}, {s(sW)}, 1
              s_mul_i32 {s(T[2])}, {s(T[0])}, {H_E(1) - H_E(0)}
              s_and_b32 {s(T[1])}, {s(sW)}, 1
              s_lshl_b32 {s(T[3])}, {s(T[1])}, 8
              s_add_u32 {s(T[2])}, {s(T[2])}, {s(T[3])}
              s_add_u32 {s(T[2])}, {s(T[2])}, {H_E(0)}
              v_add_u32 v152, {s(T[2])}, v26
              s_mul_i32 {s(T[4])}, {s(T[0])}, {U_S}
              s_add_u32 {s(T[4])}, {s(T[4])}, {L_U + 512}
              s_lshl_b32 {s(T[2])}, {s(T[1])}, 11
              s_add_u32 {s(sUm0)}, {s(T[4])}, {s(T[2])}
              s_sub_u32 {s(T[4])}, {s(T[4])}, {s(T[3])}
              s_sub_u32 {s(T[4])}, {s(T[4])}, 224
              v_lshlrev_b32 v140, 5, v24
              v_lshl_add_u32 v140, v25, 4, v140
              v_add_u32 v140, {s(T[4])}, v140
              s_lshl_b32 {s(T[0])}, {s(sX)}, 9
              s_lshr_b32 {s(T[1])}, {s(sJ)}, 3
              s_lshl_b32 {s(T[1])}, {s(T[1])}, 7
              s_add_u32 {s(T[0])}, {s(T[0])}, {s(T[1])}
              s_add_u32 {s(sKVFp)}, {s(T[0])}, {WS_KVF}
              s_lshl_b32 {s(T[0])}, {s(sX)}, 18
              s_lshl_b32 {s(T[1])}, {s(sJ)}, 13
              s_lshl_b32 {s(T[2])}, {s(sW)}, 11
              s_add_u32 {s(T[0])}, {s(T[0])}, {s(T[1])}
              s_add_u32 {s(T[0])}, {s(T[0])}, {s(T[2])}
              s_add_u32 {s(sKVs)}, {s(T[0])}, {WS_KVT}
              s_add_u32 {s(sYst)}, {s(T[0])}, {WS_YP}
              v_lshlrev_b32 v141, 5, v24
              v_lshrrev_b32 v5, 1, v25
              v_lshl_add_u32 v141, v5, 4, v141
              v_and_b32 v5, 1, v25
              v_xor_b32 v5, 1, v5
              v_lshl_add_u32 v141, v5, 3, v141
              s_lshl_b32 {s(T[0])}, {s(sW)}, 10
              s_add_u32 {s(T[1])}, {s(T[0])}, {L_U + 512}
              v_add_u32 v141, {s(T[1])}, v141
              s_add_u32 {s(T[1])}, {s(T[0])}, {L_YT}
              v_add_u32 v151, {s(T[1])}, {v(vL16)}
              s_lshl_b32 {s(T[0])}, {s(sW)}, 13
              s_add_u32 {s(T[0])}, {s(T[0])}, {L_CRED}
              v_add_u32 v142, {s(T[0])}, {v(vL16)}
              s_add_u32 {s(T[0])}, {s(T[2])}, {L_CRED}
              v_add_u32 v143, {s(T[0])}, {v(vL16)}
              v_lshlrev_b32 v144, 6, v24
              v_lshl_add_u32 v144, v25, 4, v144
              s_lshl_b32 {s(T[0])}, {s(sX)}, 5
              s_add_u32 {s(T[0])}, {s(T[0])}, {s(sJ)}
              s_lshl_b32 {s(T[1])}, {s(sW)}, 8
              s_add_u32 {s(T[0])}, {s(T[0])}, {s(T[1])}
              s_mul_i32 {s(T[0])}, {s(T[0])}, {yfs}
              s_add_u32 {s(sYFs)}, {s(T[0])}, {WS_YF}
              v_mul_u32_u24 v148, {yfs}, v0
              s_lshr_b32 {s(T[0])}, {s(sX)}, 1
              s_mul_i32 {s(T[0])}, {s(T[0])}, {256*yfs}
              s_add_u32 {s(sYFp)}, {s(T[0])}, {WS_YF}
              v_lshlrev_b32 v149, 13, v0
              s_lshl_b32 {s(T[0])}, {s(sX)}, 10
              s_lshl_b32 {s(T[1])}, {s(sJ)}, 5
              s_add_u32 {s(T[0])}, {s(T[0])}, {s(T[1])}
              s_add_u32 {s(sYld)}, {s(T[0])}, {WS_YP}
              v_lshlrev_b32 v150, 2, v0
              v_add_u32 v150, {L_YT}, v150
              s_lshl_b32 {s(T[0])}, {s(sX)}, 8
              s_lshl_b32 {s(T[1])}, {s(sJ)}, 2
              s_add_u32 {s(T[0])}, {s(T[0])}, {s(T[1])}
              s_add_u32 {s(T[0])}, {s(T[0])}, {s(sW)}
              s_lshl_b32 {s(T[0])}, {s(T[0])}, 10
              s_add_u32 {s(sFR[0])}, {s(T[0])}, {WS_F}
              s_add_u32 {s(sFR[1])}, {s(T[0])}, {WS_F + 0x20000}""")
        for p in range(1, 8): k(f"v_add_u32 {v(152+p)}, {512*p}, v152")

    def conv(self):
        k = self.k; o = self.o
        toep = []
        for rr in range(4):
            for p in range(8):
                d = (rr*8 + p)*4
                toep.append(f"ds_read2_b32 {a(d,2)}, {v(152+p)} offset0:{16*rr} offset1:{16*rr+1}")
                toep.append(f"ds_read2_b32 {a(d+2,2)}, {v(152+p)} offset0:{16*rr+2} offset1:{16*rr+3}")
        k.wait_lg0()
        k("s_barrier")
        n0 = o.get('toep0', 16)
        tt = {}
        for n in range(n0): tt[n] = k(toep[n])
        ph = self.poll_issue(vP31, s(sKVFp))
        self.stamp('toep')
        self.poll_check(ph)
        self.stamp('kv_seen')
        k(f"s_mov_b32 m0, {s(sUm0)}")
        k(f"buffer_load_dwordx4 {v(vL16)}, {s(RW,4)}, {s(sKVs)} offen sc1 lds")
        tok = k(f"buffer_load_dwordx4 {v(vL16)}, {s(RW,4)}, {s(sKVs)} offen offset:1024 sc1 lds")
        n1 = o.get('toep1', 32)
        for n in range(n0, n1): tt[n] = k(toep[n])
        k.wait(tok)
        k("s_barrier")
        self.stamp('u_in')
        B, C = 64, 96
        bt = {}
        def rdB(rr, q): bt[(rr, q)] = k(f"ds_read_b128 {v(B+4*q,4)}, v140 offset:{512*q + 64*(3-rr)}")
        for q in range(8): rdB(0, q)
        self.wd_job_issue()
        self.q_load()
        if o.get('tch_f', 2) == 2: self.touch_f()
        self.tlb_touch()
        tq = Queue(k, [Item(x) for x in toep[n1:]]); tits = list(tq.q)
        n2 = o.get('n2', 11)
        dq = []
        for i in range(n2):
            if self.w1_next >= 28: break
            n = self.w1_next; self.w1_next += 1
            for x in self.w1_dma_text(n): dq.append(Item(x, at=4 + i*(o.get('n2span', 124) // n2), tag=n))
        dits = list(dq); dq = Queue(k, dq)
        m = 0
        for rr in range(4):
            need = [tt[n] for n in range(16*rr, 16*rr + 16) if n in tt]
            while any(x.tok is None for x in tits[:max(0, 16*rr + 16 - n1)]): tq.emit(tq.q[0])
            need += [x.tok for x in tits[:max(0, 16*rr + 16 - n1)]]
            for q in range(8):
                k.wait(bt[(rr, q)], *(need if q == 0 else []))
                for p in range(8 - q):
                    c = C + 4*(p+q)
                    src = '0' if (rr == 0 and q == 0) else v(c, 4)
                    k(f"v_mfma_f32_16x16x32_bf16 {v(c,4)}, {a((rr*8+p)*4,4)}, {v(B+4*q,4)}, {src}")
                    m += 1
                    if p < 7 - q:
                        cap = dq.fill(2, m)
                        tq.fill(min(cap, 1))
                if rr < 3: rdB(rr+1, q)
        dq.drain()
        assert self.w1_next <= 14
        for x in dits: self.w1_tok[x.tag] = x.tok
        self.stamp('conv_mfma')
        KV, P = 32, 160
        for t2 in range(2):
            for ch in range(2): k(f"ds_read_b64 {v(KV+4*t2+2*ch,2)}, v141 offset:{512*t2 + ch*U_S}")
        for c in range(8): k(f"ds_write_b128 v142, {v(C+4*c,4)} offset:{1024*c}")
        k.wait_lg0()
        k("s_barrier")
        for t2 in range(2):
            for w in range(4): lastp = k(f"ds_read_b128 {v(P+16*t2+4*w,4)}, v143 offset:{8192*w + 1024*t2}")
        for t2 in range(2):
            k.wait(('lg', lastp[1] - 4*(1-t2)))
            b = P + 16*t2
            L = []
            for ch in range(2):
                for e in (0, 2): L.append(f"v_pk_add_f32 {v(b+8*ch+e,2)}, {v(b+8*ch+e,2)}, {v(b+8*ch+4+e,2)}")
            for e in range(4):
                for ch in range(2):
                    L.append(f"v_dot2_f32_bf16 {v(b+8*ch+e)}, {v(KV+4*t2+2*ch+(1-(e>>1)))}, {s(sD+2*ch+(1-(e&1)))}, {v(b+8*ch+e)}")
            for e in range(4): L.append(f"v_cvt_pk_bf16_f32 {v(b+4+e)}, {v(b+e)}, {v(b+8+e)}")
            L.append(f"buffer_store_dwordx4 {v(b+4,4)}, v144, {s(RW,4)}, {s(sYst)} offen offset:{1024*t2} sc1")
            st = self.run(L)[-1].tok
        self.stamp('y_st')
        self.wd_job_finish()
        self.stamp('job')
        self.q_stats()
        self.stamp('qst')
        self.publish(st, s(sYFs), local=False)
        self.stamp('y_pub')
        self.publish(self.job_st, s(sJF), local=False)
        k("s_barrier")

    def stats(self, rows, out, t0, scale=None):
        L = []; n = len(rows)
        for i, x in enumerate(rows):
            b = t0 + 6*i
            L += [f"v_pk_add_f32 {v(b,2)}, {v(x,2)}, {v(x+2,2)}", f"v_pk_mul_f32 {v(b+2,2)}, {v(x,2)}, {v(x,2)}",
                  f"v_pk_add_f32 {v(b+4,2)}, {v(x+4,2)}, {v(x+6,2)}"]
            L += [f"v_pk_fma_f32 {v(b+2,2)}, {v(x+e,2)}, {v(x+e,2)}, {v(b+2,2)}" for e in (2, 4, 6)]
            L += [f"v_pk_add_f32 {v(b,2)}, {v(b,2)}, {v(b+4,2)}", f"v_add_f32 {v(b+2)}, {v(b+2)}, {v(b+3)}", f"v_add_f32 {v(b)}, {v(b)}, {v(b+1)}"]
        for ctl in ("row_ror:8 row_mask:0xf", "row_ror:4 row_mask:0xf", "row_ror:2 row_mask:0xf", "row_ror:1 row_mask:0xf",
                    "row_bcast:15 row_mask:0xa", "row_bcast:31 row_mask:0xc"):
            for i in range(n):
                for e in (2, 0):
                    r = t0 + 6*i + e
                    L.append(f"v_add_f32_dpp {v(r)}, {v(r)}, {v(r)} {ctl} bank_mask:0xf")
        for i in range(n):
            b = t0 + 6*i
            L += [f"v_mul_f32 {v(b)}, 0x3b000000, {v(b)}", f"v_mul_f32 {v(b+2)}, 0x3b000000, {v(b+2)}",
                  f"v_fma_f32 {v(b+2)}, -{v(b)}, {v(b)}, {v(b+2)}", f"v_max_f32 {v(b+2)}, 0, {v(b+2)}",
                  f"v_add_f32 {v(b+2)}, 0x3727c5ac, {v(b+2)}", f"v_rsq_f32 {v(b+2)}, {v(b+2)}"]
            if scale: L.append(f"v_mul_f32 {v(b+2)}, {f32(scale)}, {v(b+2)}")
            L += [f"v_mul_f32_e64 {v(b)}, -{v(b)}, {v(b+2)}", f"v_readlane_b32 {s(out[i])}, {v(b+2)}, 63",
                  f"v_readlane_b32 {s(out[i]+2)}, {v(b)}, 63", f"s_mov_b32 {s(out[i]+1)}, {s(out[i])}",
                  f"v_mov_b32 {v(b+4)}, {s(out[i]+2)}", f"v_mov_b32 {v(b+5)}, {s(out[i]+2)}"]
        return L
    def unpack(self, dst, src):
        L = []
        for e in range(4): L += [f"v_lshlrev_b32 {v(dst+2*e)}, 16, {v(src+e)}", f"v_and_b32 {v(dst+2*e+1)}, 0xffff0000, {v(src+e)}"]
        return L
    def affine(self, dst, x, sp, vb):
        return [f"v_pk_fma_f32 {v(dst+e,2)}, {v(x+e,2)}, {s(sp,2)}, {v(vb,2)}" for e in (0, 2, 4, 6)]
    def run(self, L, look=12):
        its = [Item(x) for x in L]
        Queue(self.k, its, look).drain()
        return its

    def gate_norm(self, halves, nrm, layer, R):
        L = []; sp = [36, 40]
        t0 = R + 16*len(halves)
        for i, h in enumerate(halves):
            L += self.unpack(R + 16*i, YS[h])
            L += [f"v_pk_fma_f32 {v(XS[h]+e,2)}, {v(nrm[h]+e,2)}, {v(R+16*i+e,2)}, {v(XS[h]+e,2)}" for e in (0, 2, 4, 6)]
        L += self.stats([XS[h] for h in halves], sp[:len(halves)], t0, LOG2E)
        for i, h in enumerate(halves):
            b = R + 16*i
            L += self.affine(b, XS[h], sp[i], t0 + 6*i + 4)
            L += [f"v_cvt_pk_bf16_f32 {v(b+8+e)}, {v(b+2*e)}, {v(b+2*e+1)}" for e in range(4)]
            L.append(f"buffer_store_dwordx4 {v(b+8,4)}, {v(vAst)}, {s(RW,4)}, {s(sHALF) if h else 0} offen")
            if layer == 1:
                L += [f"v_cvt_pk_bf16_f32 {v(b+12+e)}, {v(XS[h]+2*e)}, {v(XS[h]+2*e+1)}" for e in range(4)]
                L.append(f"buffer_store_dwordx4 {v(b+12,4)}, {v(vL16)}, {s(RW,4)}, {s(sFR[h])} offen")
        return L

    N0 = [40, 48]
    def q_stats(self):
        k = self.k
        k.wait(self.q_tok)
        L = []
        for h in range(2): L += self.unpack(XS[h], 204 + 4*h)
        L += self.stats(XS, [36, 40], 128)
        for h in range(2): L += self.affine(self.N0[h], XS[h], [36, 40][h], 128 + 6*h + 4)
        self.run(L)

    def y_in(self):
        k = self.k; o = self.o
        done0 = self.w1_next >= 14
        self.w1_dma(o.get('n3', 5))
        self.persistent()
        if o.get('tch_f', 2) == 1: self.touch_f()
        self.w1_relayout_addr()
        self.wd_addr()
        if done0: self.w1_relayout(0)
        self.stamp('rl0')
        self.poll(148, s(sYFp), local=False)
        self.stamp('y_seen')
        t0 = k(f"buffer_load_dwordx4 v[32:35], v149, {s(RW,4)}, {s(sYld)} offen sc1")
        t1 = k(f"buffer_load_dwordx4 v[36:39], v149, {s(RW,4)}, {s(sYld)} offen offset:16 sc1")
        pj = self.poll_issue(226, s(sJFp), 0, 229)
        self.w1_dma(o.get('n4', 9))
        if not done0 and self.w1_next >= 14: self.w1_relayout(0); done0 = True
        k.wait(t0)
        for e in range(4): k(f"ds_write_b32 v150, {v(32+e)} offset:{1024*e}")
        k.wait(t1)
        for e in range(4): k(f"ds_write_b32 v150, {v(36+e)} offset:{1024*(4+e)}")
        k.wait_lg0()
        k("s_barrier")
        for h in range(2): k(f"ds_read_b128 {v(YS[h],4)}, v151 offset:{4096*h}")
        k.wait_lg0()
        self.stamp('y_in')
        its = self.run(self.gate_norm([0, 1], self.N0, 0, 56))
        sts = [x.tok for x in its if 'store' in x.text]
        self.stamp('a_st')
        self.poll_check(pj, False)
        if done0: self.gemm1_start(0)
        self.publish(sts[0], s(sAFs), 0)
        self.publish(sts[1], s(sAFs), 512)
        k(f"s_or_b32 {s(T[0])}, s2, {s(sW)}\ns_cmp_eq_u32 {s(T[0])}, 0\ns_cselect_b32 {s(T[0])}, 0, 0x40000000")
        k(f"buffer_store_dword {v(vNON)}, {v(vL0)}, {s(RW,4)}, {s(T[0])} offen sc1")
        self.stamp('a_pub')
        self.w1_dma(o.get('n5', 28))
        self.rl1_done = bool(o.get('rl1_front', 1))
        if not done0: self.w1_relayout(0)
        if self.rl1_done:
            self.w1_relayout(1); k.wait_lg0(); k("s_barrier")
        if not done0: self.gemm1_start(0)

    def epilogue1(self, B, half, off, pk, sc=''):
        L = []; so = s(sHH) if half else '0'
        def grp(g, u, n, outs, t):
            for e in range(n): L.append(f"v_exp_f32_e64 {v(t+e)}, -{v(g+e)}")
            if pk:
                for e in range(0, n, 2): L.append(f"v_pk_mul_f32 {v(u+e,2)}, {v(g+e,2)}, {v(u+e,2)}")
                for e in range(0, n, 2): L.append(f"v_pk_fma_f32 {v(t+e,2)}, {v(t+e,2)}, {s(sC2,2)}, {s(sC2,2)}")
            else:
                for e in range(n): L.append(f"v_mul_f32 {v(u+e)}, {v(g+e)}, {v(u+e)}")
                for e in range(n): L.append(f"v_fma_f32 {v(t+e)}, {v(t+e)}, {s(sC2)}, {s(sC2)}")
            for e in range(n): L.append(f"v_rcp_f32 {v(t+e)}, {v(t+e)}")
            if pk:
                for e in range(0, n, 2): L.append(f"v_pk_mul_f32 {v(u+e,2)}, {v(u+e,2)}, {v(t+e,2)}")
            else:
                for e in range(n): L.append(f"v_mul_f32 {v(u+e)}, {v(u+e)}, {v(t+e)}")
            for e in range(0, n, 2): L.append(f"v_cvt_pk_bf16_f32 {v(outs[e//2])}, {v(u+e)}, {v(u+e+1)}")
        grp(B, B+4, 4, [B, B+1], TMP)
        grp(B+8, B+12, 4, [B+2, B+3], TMP+4)
        L.append(f"buffer_store_dwordx4 {v(B,4)}, {v(vHm)}, {s(RW,4)}, {so} offen offset:{off}{sc}")
        grp(B+16, B+20, 4, [B+8, B+9], TMP)
        grp(B+24, B+26, 2, [B+10], TMP+4)
        Z, C, A_ = B+4, B+5, B+6
        L += [f"v_mov_b32 {v(C)}, {v(B+8)}", f"v_mov_b32 {v(A_)}, {v(B+9)}", f"v_mov_b32 {v(Z)}, {v(B+10)}",
              f"v_permlane32_swap_b32 {v(A_)}, {v(B+11)}", f"v_permlane32_swap_b32 {v(C)}, {v(Z)}",
              f"v_permlane16_swap_b32 {v(Z)}, {v(B+11)}",
              f"buffer_store_dwordx4 {v(B+8,4)}, {v(vHt)}, {s(RW,4)}, {so} offen offset:{off}{sc}"]
        return L

    def a_plan(self, layer):
        n = self.o.get('ring0', 8) if layer == 0 else self.o.get('ring1', 4)
        ring = ([('v', AR + 8*i) for i in range(4)] + [('a', 224 + 8*i) for i in range(4)])[:n]
        reg = {gs: ring[gs % n] for gs in range(32)}
        issue = {}
        for gs in range(32):
            prev = [p for p in range(gs) if reg[p] == reg[gs]]
            issue[gs] = prev[-1] + 1 if prev else -1
        return reg, issue

    def gemm1_start(self, layer):
        k = self.k
        self.wt, self.at = {}, {}
        self.areg, self.aiss = self.a_plan(layer)
        for Tt in range(7): self.rdW(0, Tt)
    def rdW(self, gs, Tt):
        st = gs % 16
        base, o = (vL16, st*7168) if st < 8 else (vW1, (st-8)*7168)
        self.wt[(gs, Tt)] = self.k(f"ds_read_b128 {v(WF + 28*(gs&1) + 4*Tt, 4)}, {v(base)} offset:{o + 1024*Tt}")
    def afrag(self, gs, mt):
        kind, b = self.areg[gs]
        return (v if kind == 'v' else a)(b + 4*mt, 4)
    def ldA(self, gs, mt):
        st = gs % 16
        self.at[(gs, mt)] = self.k(f"buffer_load_dwordx4 {self.afrag(gs, mt)}, {v(vAld[gs // 16])}, {s(RW,4)}, {k4(st>>1)} offen offset:{((st&1)*2+mt)*1024} sc1")

    def gemm1(self, layer):
        k = self.k; o = self.o
        lo = 1024*layer
        self.poll(vP31, s(sAFp), lo)
        self.stamp(f'a_seen{layer}')
        todo = sorted(range(32), key=lambda g: g)
        nxtA = 0
        while self.aiss[nxtA] < 0 and nxtA < o.get('a_init', 5):
            for mt in range(2): self.ldA(nxtA, mt)
            nxtA += 1
        if layer == 0: self.w1_dma(28)
        firstB = max(min(self.aiss[g] for g in range(16, 32)), o.get('firstB', 0) if layer else 0)
        queues = []
        if layer == 0:
            queues.append(Queue(k, self.poll_items(vP31, s(sAFp), lo + 512, 14*2, 14*(firstB - 2))))
            rl = self.w1_relayout_items(1, True) if not self.rl1_done else []
            for x in rl: x.at = 14*o.get('rl1_at', 1)
            rlq = Queue(k, rl); queues.append(rlq)
            t0 = o.get('wd_t0', 1); t1 = o.get('wd_t1', 31)
            wd = [Item(self.wd_text(n), at=int(14*(t0 + (t1 - t0)*n/56))) for n in range(o.get('wd_n', 56))]
            wdq = Queue(k, wd, 1); queues.append(wdq)
            burst = None
        else:
            box = []
            s0 = o.get('rowb_at', 5)
            its = self.poll_items(vP7, s(sFFp), 512, 14*(s0 - 3), 14*(s0 - 1) - 8)
            fld = Item(f"buffer_load_dwordx4 {v(ACC[1],4)}, {v(vL16)}, {s(RW,4)}, {s(sFR[1])} offen sc1"); its.append(fld)
            queues.append(Queue(k, its))
            burst = s0
        epi = None; hbox = []
        hsc = ' sc1' if layer == 0 and o.get('hsc', 1) else ''
        for gs in range(32):
            ps, st = divmod(gs, 16)
            if gs == burst:
                queues[0].drain(); k.wait(fld.tok)
                self.stamp('rowB_go')
                sts = self.rowop(1, ACC[1])
                self.stamp('rowB')
                queues = [Queue(k, self.publish_items(lambda: sts, s(sAFs), lo + 512, 14*gs + 22)
                                + self.poll_items(vP31, s(sAFp), lo + 512, 14*(firstB - 2) - 4, 14*firstB - 4))]
            if gs == firstB: queues[0].drain()
            if layer == 0 and gs == 7 and not self.rl1_done:
                print('relayout left at step 7:', rlq.cost())
                rlq.drain(); k.wait_lg0(); k("s_barrier")
            if gs == 16:
                for q in queues[:2]: q.drain()
                epi = [Item(x, at=14*16 + 4) for x in self.epilogue1(ACC[0], 0, 0, 0, hsc) + self.epilogue1(ACC[0] + 28, 0, 256, 0, hsc)]
                last = epi[-1]
                queues = [Queue(k, epi, 14), Queue(k, [])]
                if layer == 0: queues = [queues[0], queues[1], wdq]
                pub = False
            if epi and not pub and not len(queues[0]):
                queues[1].q += self.publish_items(lambda: last.tok, s(sHFs), lo, 14*gs + o.get('ha_pub', 10)); pub = True
                pubstep = gs
                queues[1].q.append(Item(fn=lambda: hbox.append(self.poll_issue(vP7, s(sHFp), lo)), at=o.get('ha_pi', 14*31 + 2)))
            fixed = [[] for _ in range(14)]
            if gs + 1 < 32:
                for Tt in range(7): fixed[2*(Tt // 2)].append(('W', gs+1, Tt))
            slot = 6
            while nxtA < 32 and self.aiss[nxtA] <= gs and slot <= 10 and (nxtA < 16 or gs >= firstB):
                fixed[slot].append(('A', nxtA, 0)); fixed[slot+2].append(('A', nxtA, 1)); nxtA += 1; slot += 4
            k.wait(self.at[(gs, 1)], self.wt[(gs, 6)])
            for i in range(14):
                Tt, mt = divmod(i, 2)
                d = ACC[ps] + 28*mt + 4*Tt
                k(f"v_mfma_f32_16x16x32_bf16 {v(d,4)}, {v(WF + 28*(gs&1) + 4*Tt, 4)}, {self.afrag(gs, mt)}, {'0' if st == 0 else v(d,4)}")
                for it in fixed[i]:
                    if it[0] == 'W': self.rdW(it[1], it[2])
                    else: self.ldA(it[1], it[2])
                cap = 2 - len(fixed[i]) - (1 if i == 13 else 0)
                for q in (queues[::-1] if ps else queues): cap = q.fill(cap, 14*gs + i)
            if gs == 15: self.stamp(f'g1a{layer}'); self.late = layer == 1
        print('layer', layer, 'left after G1B:', [q.cost() for q in queues], f'published in step {pubstep}' if pub else 'not published')
        queues[0].drain()
        if not pub: queues[1].q += self.publish_items(lambda: last.tok, s(sHFs), lo, 0)
        queues[1].drain()
        if layer == 0: wdq.drain(); self.wd_last = wd[-1].tok
        self.stamp(f'g1b{layer}')
        self.ht = {}
        ph = hbox[0] if hbox else self.poll_issue(vP7, s(sHFp), lo)
        epi = [Item(x) for x in self.epilogue1(ACC[1], 1, 0, 1, hsc) + self.epilogue1(ACC[1] + 28, 1, 256, 1, hsc)]
        q = Queue(k, epi, 12)
        total = q.cost()
        lead = o.get('epi_lead', 24); nld = o.get('epi_ld', 9)
        while total - q.cost() < lead:
            if q.fill(3) == 3: q.emit(q.q[0])
        self.poll_check(ph)
        self.stamp(f'hA_seen{layer}')
        self.nxtH = 0
        marks = [lead + (total - lead)*i // nld for i in range(nld)]
        while len(q):
            while marks and total - q.cost() >= marks[0]: marks.pop(0); self.ldH(0)
            if q.fill(3) == 3: q.emit(q.q[0])
        self.hB_tok = epi[-1].tok
        self.stamp(f'epiB{layer}')

    def g2_order(self):
        D = self.o.get('skew', 4)
        A = [(0, U, mt) for U in range(14) for mt in range(2)]
        B = sorted([(1, U, mt) for U in range(14) for mt in range(2)], key=lambda x: (x[1] + D*x[2], x[2]))
        return A + B
    def hreg(self, n):
        if n < 14: return ACC[0] + 4*n
        if n < 28: return WF + 4*(n - 14)
        if n < 42: return ACC[1] + 4*(n - 28)
        return ACC[0] + 4*(n - 42)
    def ldH(self, _=0):
        n = self.nxtH; self.nxtH += 1
        half, U, mt = self.g2_order()[n]
        self.ht[n] = self.k(f"buffer_load_dwordx4 {v(self.hreg(n),4)}, {v(vHld[half])}, {s(RW,4)}, {k4(U>>1)} offen offset:{(U&1)*2048 + mt*256} sc1")

    def red_write(self, A2):
        return [f"ds_write_b128 {v(vRw)}, {v(A2 + 16*mt + 4*nt, 4)} offset:{4352*mt + 64*nt}" for mt in range(2) for nt in range(4)]
    def red_read(self, P):
        return [f"ds_read_b128 {v(P + 8*w + 4*hf, 4)}, {v(vRr)} offset:{8704*w + 16*hf}" for w in range(4) for hf in range(2)]
    def red_sum(self, P, half, layer, X3, pk):
        L = []
        def add(d, x, y):
            if pk: L.extend(f"v_pk_add_f32 {v(d+e,2)}, {v(x+e,2)}, {v(y+e,2)}" for e in (0, 2, 4, 6))
            else: L.extend(f"v_add_f32 {v(d+e)}, {v(x+e)}, {v(y+e)}" for e in range(8))
        add(P, P, P+8); add(P+16, P+16, P+24)
        if layer == 1:
            L += self.unpack(P+8, X3); add(P, P, P+8)
        add(P, P, P+16)
        L += [f"v_cvt_pk_bf16_f32 {v(P+8+e)}, {v(P+2*e)}, {v(P+2*e+1)}" for e in range(4)]
        if layer == 0: L.append(f"buffer_store_dwordx4 {v(P+8,4)}, {v(vF2)}, {s(RW,4)}, {s(sHALF) if half else 0} offen")
        else: L.append(f"buffer_store_dwordx4 {v(P+8,4)}, {v(vO)}, {s(RO,4)}, {k4(half)} offen{self.o.get('ost', '')}")
        return L

    def gemm2(self, layer):
        k = self.k; o = self.o
        lo = 1024*layer
        AC2 = [AR, WF]
        X3 = [TMP, TMP + 4]
        order = self.g2_order()
        LA = o.get('g2la', 20)
        xt = {}
        def ldX(h): xt[h] = k(f"buffer_load_dwordx4 {v(X3[h],4)}, {v(vF2)}, {s(RW,4)}, {s(sHALF) if h else 0} offen sc1")
        side = Queue(k, self.publish_items(lambda: self.hB_tok, s(sHFs), lo + 512, o.get('hb_pub', 24))
                     + self.poll_items(vP7, s(sHFp), lo + 512, o.get('hb_pi', 44), o.get('hb_pc', 70)))
        if layer == 0: k.wait(self.wd_last)
        fbox = []; seenB = False; wB = self.red_write(AC2[1]); doneB = 0
        def next_load():
            self.ldH()
            if layer == 1 and self.nxtH == 36: ldX(0)
            if layer == 1 and self.nxtH == 56:
                ldX(1)
                if o.get('wbl2', 0): self.writeback()
        for n in range(56):
            half, U, mt = order[n]
            if n == 28:
                self.stamp(f'g2a{layer}')
                side.drain(); seenB = True
                t = 4*28
                sp = o.get('ra_sp', 4)
                L = [Item(x, at=t + 3 + sp*i) for i, x in enumerate(self.red_write(AC2[0]))]
                L += [Item(fn=lambda: k.wait_lg0(), at=t + 8*sp + 3), Item(fn=lambda: k("s_barrier"))]
                L += [Item(x) for x in self.red_read(AR)]
                L += [Item(fn=lambda: k.wait_lg0(), at=t + 8*sp + o.get('ra_rd', 16)), Item(fn=lambda: k("s_barrier"))]
                if layer == 1: L += [Item(fn=lambda: k.wait(xt[0]))]
                L += [Item(x) for x in self.red_sum(AR, 0, layer, X3[0], 0)]
                fA = L[-1]
                if layer == 0:
                    L += self.publish_items(lambda: fA.tok, s(sFFs), 0, o.get('fa_pub', t + 90))
                    L.append(Item(fn=lambda: fbox.append(self.poll_issue(vP7, s(sFFp), 0)), at=o.get('fa_pi', 8*28 - 4)))
                if o.get('nored') and layer == 1: L = []
                side = Queue(k, L)
                last0 = max(i for i in range(28, 56) if order[i][2] == 0)
                late = Queue(k, [Item(x, at=4*(last0 + 1) + 3 + sp*i) for i, x in enumerate(wB[:4])])
            if not len(side): seenB = True
            while n not in self.ht: next_load()
            if n % 2 == 0:
                while seenB and n + 1 not in self.ht: next_load()
                k.wait(self.ht.get(n + 1, self.ht[n]))
            else: k.wait(self.ht[n])
            for nt in range(4):
                d = AC2[half] + 16*mt + 4*nt
                k(f"v_mfma_f32_16x16x32_bf16 {v(d,4)}, {a((4*U+nt)*4,4)}, {v(self.hreg(n),4)}, {'0' if U == 0 else v(d,4)}")
                cap = 2 - (1 if (nt == 3 and n % 2) else 0)
                if (nt == 0 or (nt == 2 and self.nxtH < n + 1 + o.get('g2min', 6))) and self.nxtH < min(56 if seenB else 28, n + 1 + LA) and (self.nxtH < 42 or self.nxtH - 42 < n):
                    next_load(); cap -= 1
                cap = side.fill(cap, 4*n + nt)
                if n >= 28 and all(x.i is not None or x.at > 200 for x in side.q[:1]) and not any('ds_' in (x.text or '') or (x.fn and x.at <= t + 8*sp + 40) for x in side.q):
                    late.fill(cap, 4*n + nt)
        print('layer', layer, 'left after G2B:', side.cost(), late.cost())
        side.drain()
        wB = [x.text for x in late.q] + wB[4:]
        self.stamp(f'g2b{layer}')
        R = ACC[1]
        if layer == 0:
            self.poll_check(fbox[0])
            self.stamp('fA_seen')
            fld = k(f"buffer_load_dwordx4 {v(R,4)}, {v(vL16)}, {s(RW,4)}, {s(sFR[0])} offen sc1")
        for x in wB: k(x)
        if layer == 0: self.run(self.unpack(R + 24, YS[0]))
        k.wait_lg0(); k("s_barrier")
        for x in self.red_read(ACC[0]): k(x)
        if layer == 0:
            k.wait(fld)
            sts, rest = self.rowop(0, R, True)
            self.stamp('rowA')
        k.wait_lg0()
        if layer == 1: k.wait(xt[1])
        fB = self.run(self.red_sum(ACC[0], 1, layer, X3[1], 1))[-1].tok
        self.stamp(f'fB_st{layer}')
        if layer == 0:
            self.gemm1_start(1)
            self.publish(sts, s(sAFs), 1024)
            self.stamp('aA_pub')
            self.run(rest)
            self.publish(fB, s(sFFs), 512)

    def writeback(self):
        k = self.k
        a_, b_ = k.label(), k.label()
        k(f"s_or_b32 {s(T[2])}, {s(sJ)}, {s(sW)}\ns_cmp_lg_u32 {s(T[2])}, 0\ns_cbranch_scc1 {a_}")
        k("buffer_wbl2 sc1")
        k(f"s_branch {b_}"); k.place(a_)
        k.ins.append(I(f"buffer_load_dword {v(vPT)}, {v(vL0)}, {s(RW,4)}, 0 offen"))
        k.place(b_)

    def rowop(self, h, R, split=False):
        L = self.unpack(R + 8, R)
        L += [f"v_pk_add_f32 {v(XS[h]+e,2)}, {v(XS[h]+e,2)}, {v(R+8+e,2)}" for e in (0, 2, 4, 6)]
        L += self.stats([XS[h]], [36], R + 16)
        L += self.affine(R + 8, XS[h], 36, R + 20)
        G = self.gate_norm([h], {h: R + 8}, 1, R + 24)
        rest = []
        if split: G, rest = G[8:-5], G[-5:]
        its = self.run(L + G, 16)
        tok = [x.tok for x in its if 'store' in x.text][-1]
        return (tok, rest) if split else tok

    def build(self):
        k = self.k; o = self.o
        self.prologue()
        self.front_addr()
        self.touch_first()
        if o.get('tch_f', 2) == 3: self.touch_f()
        self.w1_addr()
        self.w1_dma(o.get('n0', 2))
        self.wd_job_addr()
        self.phase0()
        self.w1_dma(o.get('n1', 1))
        self.conv()
        self.y_in()
        for layer in range(2):
            self.gemm1(layer)
            self.gemm2(layer)
        if o.get('stamps'):
            self.stamp('end')
            k(f"""s_lshl_b32 {s(T[0])}, s2, 2
                  s_add_u32 {s(T[0])}, {s(T[0])}, {s(sW)}
                  s_lshl_b32 {s(T[0])}, {s(T[0])}, 8
                  s_add_u32 {s(T[0])}, {s(T[0])}, {WS_DBG}
                  v_lshrrev_b32 v5, 2, {v(vL16)}
                  buffer_store_dword {v(vST[0])}, v5, {s(RW,4)}, {s(T[0])} offen
                  s_add_u32 {s(T[0])}, {s(T[0])}, 0x40000
                  buffer_store_dword {v(vST[1])}, v5, {s(RW,4)}, {s(T[0])} offen""")
        if o.get('delay'):
            k(f"""s_mov_b32 {s(T[0])}, {o['delay']}
                  s_memrealtime {s(T[2],2)}
                  s_waitcnt lgkmcnt(0)""")
            k.place("L_DELAY")
            k(f"""s_memrealtime {s(T[4],2)}
                  s_waitcnt lgkmcnt(0)
                  s_sub_u32 {s(T[4])}, {s(T[4])}, {s(T[2])}
                  s_cmp_lt_u32 {s(T[4])}, {s(T[0])}
                  s_cbranch_scc1 L_DELAY""")
        if o.get('diag'):
            self.stamp('end')
            k(f"""v_sub_u32 v5, {v(vST[1])}, {v(vST[0])}
                  s_nop 1
                  v_readfirstlane_b32 {s(T[0])}, v5
                  s_mul_i32 {s(T[0])}, {s(T[0])}, 8
                  s_memrealtime {s(T[2],2)}
                  s_waitcnt lgkmcnt(0)""")
            k.place("L_DIAG")
            k(f"""s_memrealtime {s(T[4],2)}
                  s_waitcnt lgkmcnt(0)
                  s_sub_u32 {s(T[4])}, {s(T[4])}, {s(T[2])}
                  s_cmp_lt_u32 {s(T[4])}, {s(T[0])}
                  s_cbranch_scc1 L_DIAG""")
        k.place("L_END")
        k("s_endpgm")
        body = k.text()
        for t in self.tail:
            body += "".join((x + "\n") if x.endswith(':') else ("    " + x + "\n") for x in t)
        body += "L_LAST:\n"
        return body

def file_text(opt):
    g = Gen(opt)
    body = g.build()
    ref = open(os.path.join(os.path.dirname(os.path.abspath(__file__)), '..', 'cdna_kernels', NAME + '.s.ref')).read()
    head = ref[:ref.index('; Override launch geometry')]
    txt = head + f"""; @launch grid=(256,1,1) block=(256,1,1) lds={LDS_SIZE}
.amdgcn_target "amdgcn-amd-amdhsa--gfx950"
.text
.globl {NAME}_kernel
.p2align 8
.type {NAME}_kernel,@function
{NAME}_kernel:
{body}.section .rodata,"a"
.p2align 6
.amdhsa_kernel {NAME}_kernel
  .amdhsa_next_free_vgpr 512
  .amdhsa_next_free_sgpr 102
  .amdhsa_accum_offset 256
  .amdhsa_group_segment_fixed_size 0
  .amdhsa_kernarg_size 104
  .amdhsa_user_sgpr_count 2
  .amdhsa_user_sgpr_kernarg_segment_ptr 1
  .amdhsa_system_sgpr_workgroup_id_x 1
.end_amdhsa_kernel
"""
    return txt, g

if __name__ == '__main__':
    import json
    opt = {}; out = None
    for x in sys.argv[1:]:
        if '=' in x:
            kk, vv = x.split('=')
            opt[kk] = vv.split(',') if kk in ('only', 'diag') else (' ' + vv.replace('+', ' ') if kk in ('ost', 'wdm') else int(vv, 0))
        else: out = x
    txt, g = file_text(opt)
    open(out, 'w').write(txt)
    json.dump(g.stamps, open(out + '.stamps.json', 'w'))
    print('instructions', len(g.k.ins), 'nops added', g.k.nops_added, 'stamps', len(g.stamps))
```

```python
import sys, os
sys.path.insert(0, os.path.dirname(os.path.abspath(__file__)))
from dsl import *

NAME = 'interleave_layers__ssm_conv_h3__swiglu_ffn__prompt'

WS_XCCF = 0x1000
WS_KVF  = 0x10000
WS_AF   = 0x11000
WS_HF   = 0x19000
WS_FF   = 0x21000
WS_YF   = 0x30000
WS_JF   = 0x31000
WS_KVT  = 0x100000
WS_A    = WS_KVT
WS_YP   = 0x300000
WS_H    = 0x700000
WS_WDT  = 0xE00000
WS_DBG  = 0x1000000
WS_SIZE = 0x1100000
H_X, H_HALF, H_RB = 917504, 458752, 114688

LDS_SIZE = 163840
SCR   = 114688
L_K   = SCR
L_V   = L_K + 9216
L_H   = L_V + 8192
H_CP  = 4096 + 128
H_E   = lambda ch: L_H + ch * 2 * H_CP + 64
H_O   = lambda ch: L_H + ch * 2 * H_CP + H_CP + 128
L_U   = L_H + 4 * H_CP + 128
U_S   = 4608
assert L_U + 2 * U_S <= LDS_SIZE
L_CRED = 57344
L_YT  = L_U
L_JOB = 114688 - 16384
L_RED = SCR

sX, sJ, sW, sN, sEXP, sSPIN, sXCC, sMODE = 4, 5, 6, 7, 8, 9, 10, 11
T = list(range(12, 24))
sC2 = 24
sHALF = 26
sW1S, sW1L = 27, 3
sD = 28
sDP = 34
RK, RV, RH, RQ, RG, RU, RD, RO, RW, RS = 44, 48, 52, 56, 60, 64, 68, 72, 76, 80
sK4 = 83
def k4(i): return '0' if i == 0 else s(sK4 + i)
sHH = 91
sAFp, sAFs, sHFp, sHFs, sFFp, sFFs = 94, 95, 96, 97, 98, 99
sFR = [100, 101]
sFH = 55
sROT = [0, 1, 34, 35, 54, 80, 81]
sDEL = [82, 83]
sST = (32, 92)
sKVFp, sKVs, sUm0, sYst, sYFs, sYFp, sYld, sJF, sJL, sJFp = 44, 45, 46, 47, 48, 49, 50, 51, 52, 53

vL, vL16, vL0, vNON, vPT = 1, 2, 3, 4, 5
vAld, vHld = [6, 7], [8, 9]
vHm, vHt, vAst, vF2, vO, vRw, vRr, vP31, vP7, vW1 = 10, 11, 12, 13, 14, 15, 16, 17, 18, 19
vST = (20, 21)
vWd = [230, 231]
ACC = [22, 78]
WF, AR, TMP = 134, 190, 222
YS, XS = [232, 236], [240, 248]
LOG2E = 1.4426950408889634

def f32(x):
    import struct
    return '0x%08x' % struct.unpack('<I', struct.pack('<f', x))[0]

def flist(c):
    if c < 4: return [4*c + e for e in range(4)] + [16 + 4*c + e for e in range(4)]
    q = c - 4; X = [44, 46, 54][q]
    return [32 + 4*q + e for e in range(4)] + [48 + 2*q, 49 + 2*q, X, X + 1]

class Gen:
    def __init__(self, opt):
        self.o = opt
        self.k = K()
        self.tail = []
        self.stamps = []
        self.w1_next = 0
        self.late = False
        self.w1_tok = {}

    def stamp(self, name):
        dg = self.o.get('diag')
        if dg and name in dg:
            k = self.k
            k(f"s_memrealtime {s(sST[0],2)}"); k.wait_lg0()
            k(f"v_mov_b32 {v(vST[dg.index(name)])}, {s(sST[0])}")
        if not self.o.get('stamps'): return
        only = self.o.get('only')
        if only and name not in only: return
        k = self.k; n = len(self.stamps)
        k(f"s_memrealtime {s(sST[0],2)}\ns_memtime {s(sST[1],2)}"); k.wait_lg0()
        k(f"v_writelane_b32 {v(vST[0])}, {s(sST[0])}, {n}\nv_writelane_b32 {v(vST[1])}, {s(sST[1])}, {n}")
        self.stamps.append(name)

    def srd(self, base, size):
        self.k(f"s_mov_b32 {s(base+2)}, {size}\ns_mov_b32 {s(base+3)}, 0x20000")

    def poll_issue(self, vaddr, soff, off=0, vt=vPT):
        txt = f"buffer_load_dword {v(vt)}, {v(vaddr)}, {s(RW,4)}, {soff} offen offset:{off} sc1"
        return (self.k(txt), txt, vt)

    def poll_steps(self, get, local=True):
        k = self.k
        slow, back, ok = k.label(), k.label(), k.label()
        def s1(): k.wait(get()[0])
        def s2(): k(f"v_cmp_ne_u32 vcc, {s(sEXP if local else sN)}, {v(get()[2])}")
        def s3():
            if self.o.get('nopoll') and self.late: return
            k(f"s_cbranch_vccnz {slow}"); k.place(back)
            _, txt, vt = get()
            t = [f"{slow}:", txt, "s_waitcnt vmcnt(0)", f"v_cmp_ne_u32 vcc, {s(sN)}, {v(vt)}", f"s_cbranch_vccz {ok}",
                 f"s_sub_u32 {s(sSPIN)}, {s(sSPIN)}, 1", f"s_cbranch_scc0 {slow}", "s_branch L_END", f"{ok}:"]
            if local: t += [f"s_cmp_eq_u32 {s(sMODE)}, 0", f"s_cbranch_scc1 {back}", "buffer_inv sc1", "s_waitcnt vmcnt(0)"]
            self.tail.append(t + [f"s_branch {back}"])
        return [s1, s2, s3]

    def poll_check(self, h, local=True):
        for f in self.poll_steps(lambda: h, local): f()
    def poll(self, vaddr, soff, off=0, local=True):
        self.poll_check(self.poll_issue(vaddr, soff, off), local)
    def poll_items(self, vaddr, soff, off, at_issue, at_check):
        box = []
        it = [Item(fn=lambda: box.append(self.poll_issue(vaddr, soff, off)), at=at_issue)]
        return it + [Item(fn=f, at=at_check) for f in self.poll_steps(lambda: box[0])]

    def flag_store(self, soff, off=0, local=True):
        k = self.k
        txt = f"buffer_store_dword {v(vNON)}, {v(vL0)}, {s(RW,4)}, {soff} offen offset:{off}"
        if not local: return k(txt + " sc1")
        slow, back = k.label(), k.label()
        k(f"s_cmp_lg_u32 {s(sMODE)}, 0\ns_cbranch_scc1 {slow}")
        r = k(txt); k.place(back)
        self.tail.append([f"{slow}:", "s_waitcnt vmcnt(0)", "buffer_wbl2 sc1", "s_waitcnt vmcnt(0)", txt + " sc1", f"s_branch {back}"])
        return r
    def publish(self, tok, soff, off=0, local=True):
        self.k.wait(tok)
        return self.flag_store(soff, off, local)
    def publish_items(self, get, soff, off, at):
        return [Item(fn=lambda: self.k.wait(get()), at=at), Item(fn=lambda: self.flag_store(soff, off), cost=2, at=at)]

    def dma(self, vaddr, srd, soff, m0, extra=''):
        self.k(m0)
        return self.k(f"buffer_load_dwordx4 {v(vaddr)}, {s(srd,4)}, {soff} offen {extra} lds".replace('  ', ' '))

    def prologue(self):
        k = self.k
        k("s_cmp_ge_u32 s2, 256\ns_cbranch_scc1 L_END")
        if self.o.get('stamps'): k(f"v_mov_b32 {v(vST[0])}, 0\nv_mov_b32 {v(vST[1])}, 0")
        self.stamp('entry')
        k(f"s_lshr_b32 {s(sJ)}, s2, 3")
        self.code_prefetch()
        for r, off in ((RK, 8), (RV, 16), (RW, 96), (RH, 32), (RS, 24), (RQ, 0), (RG, 56), (RU, 64), (RD, 72), (RO, 80)):
            k(f"s_load_dwordx2 {s(r,2)}, s[0:1], {off}")
        k(f"s_load_dwordx2 {s(sDP,2)}, s[0:1], 40")
        k(f"""s_and_b32 {s(sX)}, s2, 7
              v_lshrrev_b32 v5, 6, v0
              v_and_b32 {v(vL)}, 63, v0
              v_readfirstlane_b32 {s(sW)}, v5
              v_lshlrev_b32 {v(vL16)}, 4, {v(vL)}""")
        for r, size in ((RK, 2097152), (RV, 2097152), (RW, WS_SIZE), (RH, 2097152), (RS, 4096)): self.srd(r, size)

        k(f"""v_lshrrev_b32 v24, 3, {v(vL)}
              v_and_b32 v25, 7, {v(vL)}
              v_and_b32 v26, 2, v24
              v_xor_b32 v25, v25, v26
              s_and_b32 {s(T[0])}, {s(sW)}, 1
              s_lshl_b32 {s(T[0])}, {s(T[0])}, 2
              v_xor_b32 v25, {s(T[0])}, v25
              v_lshlrev_b32 v25, 4, v25
              v_lshl_add_u32 v25, v24, 10, v25
              s_lshl_b32 {s(T[0])}, {s(sJ)}, 16
              s_lshl_b32 {s(T[1])}, {s(sW)}, 14
              s_lshl_b32 {s(T[2])}, {s(sX)}, 7
              s_add_u32 {s(T[0])}, {s(T[0])}, {s(T[1])}
              s_add_u32 {s(T[0])}, {s(T[0])}, {s(T[2])}
              v_add_u32 v25, {s(T[0])}, v25
              v_xor_b32 v26, 64, v25
              v_subrev_u32 v26, 8192, v26
              s_lshl_b32 {s(T[1])}, {s(sW)}, 11
              s_add_u32 {s(T[2])}, {s(T[1])}, {L_K + 1024}
              s_add_u32 {s(T[3])}, {s(T[1])}, {L_V}
              s_movk_i32 {s(T[4])}, 8192
              v_and_b32 v27, 15, {v(vL)}
              s_lshl_b32 {s(T[0])}, {s(sX)}, 6
              s_lshl_b32 {s(T[1])}, {s(sW)}, 4
              s_add_u32 {s(T[1])}, {s(T[0])}, {s(T[1])}
              v_add_u32 v27, {s(T[1])}, v27
              v_lshlrev_b32 v28, 3, v27
              s_lshl_b32 {s(T[1])}, {s(sJ)}, 1
              s_add_u32 {s(T[0])}, {s(T[0])}, {s(T[1])}
              s_lshl_b32 {s(T[5])}, {s(T[0])}, 1
              s_lshl_b32 {s(T[6])}, {s(T[0])}, 12
              s_add_u32 {s(T[7])}, {s(T[6])}, 4096
              v_lshlrev_b32 v29, 4, v0""")
        k.wait_lg0()
        self.stamp('start')
        k(f"s_load_dword {s(sN)}, {s(RW,2)}, 0")
        k(f"s_load_dword {s(sD)}, {s(sDP,2)}, {s(T[5])}")
        self.dma(25, RK, '0', f"s_mov_b32 m0, {s(T[2])}")
        self.dma(25, RV, '0', f"s_mov_b32 m0, {s(T[3])}")
        self.dma(25, RK, s(T[4]), f"s_add_u32 m0, {s(T[2])}, 1024")
        self.dma(25, RV, s(T[4]), f"s_add_u32 m0, {s(T[3])}, 1024")
        skip = k.label()
        k(f"s_cmp_lg_u32 {s(sW)}, 0\ns_cbranch_scc1 {skip}\ns_mov_b32 m0, {L_K}\ns_nop 0")
        k.ins.append(I(f"buffer_load_dwordx4 v26, {s(RK,4)}, 0 offen lds"))
        k.place(skip)
        self.sh_tok = k(f"buffer_load_dwordx2 v[30:31], v28, {s(RS,4)}, 0 offen")
        k(f"buffer_load_dwordx4 v[32:35], v29, {s(RH,4)}, {s(T[6])} offen")
        k(f"buffer_load_dwordx4 v[40:43], v29, {s(RH,4)}, {s(T[7])} offen")
        k(f"buffer_load_dwordx4 v[36:39], v29, {s(RH,4)}, {s(T[6])} offen offset:2")
        self.h_tok = k(f"buffer_load_dwordx4 v[44:47], v29, {s(RH,4)}, {s(T[7])} offen offset:2")
        k(f"""s_getreg_b32 {s(sXCC)}, hwreg(HW_REG_XCC_ID, 0, 4)
              v_cmp_eq_u32 vcc, 0, {v(vL)}
              v_mov_b32 v5, 0x80000000
              s_lshl_b32 {s(T[1])}, {s(sX)}, 5
              s_add_u32 {s(T[1])}, {s(T[1])}, {s(sJ)}
              s_mul_i32 {s(T[1])}, {s(T[1])}, {self.o.get('xs', 4)}
              s_add_u32 {s(T[1])}, {s(T[1])}, {WS_XCCF}
              s_cmp_eq_u32 {s(sW)}, 2
              s_cselect_b32 {s(T[1])}, {s(T[1])}, 0x40000000
              v_cndmask_b32 {v(vL0)}, v5, 0, vcc""")
        k.wait_lg0()
        k(f"""s_mul_i32 {s(sN)}, {s(sN)}, 1664525
              s_add_u32 {s(sN)}, {s(sN)}, 1013904223
              s_xor_b32 {s(T[0])}, {s(sN)}, {s(sXCC)}
              v_mov_b32 v5, {s(T[0])}
              v_mov_b32 {v(vNON)}, {s(sN)}""")
        k(f"buffer_store_dword v5, {v(vL0)}, {s(RW,4)}, {s(T[1])} offen sc1")
        for r, size in ((RQ, 2097152), (RG, 1835008), (RU, 1835008), (RD, 1835008), (RO, 2097152)): self.srd(r, size)
        k(f"""s_lshr_b32 {s(sD+2)}, {s(sD)}, 16
              s_and_b32 {s(sD+3)}, {s(sD)}, 0xffff0000
              s_lshl_b32 {s(sD+1)}, {s(sD)}, 16
              s_and_b32 {s(sD)}, {s(sD)}, 0xffff
              s_mov_b32 {s(sC2)}, {f32(LOG2E*LOG2E)}
              s_mov_b32 {s(sC2+1)}, {f32(LOG2E*LOG2E)}
              s_mov_b32 {s(sSPIN)}, {self.o.get('spin', 400000)}
              s_mov_b32 {s(sHALF)}, 0x20000
              s_mov_b32 {s(sHH)}, {H_HALF}
              v_and_b32 {v(vP31)}, 31, {v(vL)}
              v_lshlrev_b32 {v(vP31)}, 2, {v(vP31)}
              v_and_b32 {v(vP7)}, 7, {v(vL)}
              v_lshlrev_b32 {v(vP7)}, 2, {v(vP7)}""")
        for i in range(1, 8): k(f"s_movk_i32 {s(sK4+i)}, {4096*i}")

    def code_prefetch(self):
        if not self.o.get('cpf', 1): return
        k = self.k
        k(f"s_getpc_b64 {s(T[2],2)}")
        k.place("L_PC")
        k(f"""s_mul_i32 {s(T[4])}, {s(sJ)}, ((L_LAST-L_PC+4095)/4096)*128
              v_min_u32 v5, (L_LAST-L_PC+4095)/4096-1, v0
              v_lshl_add_u32 v5, v5, 7, {s(T[4])}
              v_min_u32 v5, L_LAST-L_PC-4, v5
              global_load_dword v219, v5, {s(T[2],2)}""")

    def tlb_touch(self):
        if not self.o.get('tlb', 0): return
        k = self.k
        k(f"v_and_b32 v5, 15, {v(vL)}\nv_lshlrev_b32 v5, 20, v5")
        k(f"buffer_load_dword v200, v5, {s(RW,4)}, 0 offen offset:512")
        k(f"buffer_load_dword v201, v5, {s(RO,4)}, 0 offen")
        k(f"buffer_load_dword v196, v5, {s(RG,4)}, 0 offen")
        k(f"buffer_load_dword v197, v5, {s(RU,4)}, 0 offen")
        k(f"buffer_load_dword v198, v5, {s(RQ,4)}, 0 offen")

    def touch_first(self):
        k = self.k
        if self.o.get('tch_kv', 1):
            k(f"v_and_b32 v5, 15, {v(vL)}\nv_lshlrev_b32 v5, 7, v5")
            k(f"buffer_load_dword v220, v5, {s(RW,4)}, {s(sKVs)} offen sc1")
        if self.o.get('tch_fl', 1):
            k(f"""v_lshrrev_b32 v22, 4, {v(vL)}
                  v_lshlrev_b32 v22, 15, v22
                  v_and_b32 v5, 15, {v(vL)}
                  v_lshl_add_u32 v22, v5, 7, v22
                  s_lshl_b32 {s(T[0])}, {s(sX)}, 12
                  s_add_u32 {s(T[0])}, {s(T[0])}, {WS_AF}
                  v_add_u32 v22, {s(T[0])}, v22
                  v_and_b32 v5, 3, v5
                  s_lshl_b32 {s(T[0])}, {s(sX)}, 9
                  s_add_u32 {s(T[0])}, {s(T[0])}, {WS_KVF}
                  v_lshl_add_u32 v5, v5, 7, {s(T[0])}
                  v_cmp_gt_u32 vcc, 48, {v(vL)}
                  s_cmp_eq_u32 {s(sW)}, 3
                  s_cselect_b32 {s(T[0])}, 0, 0x40000000
                  v_cndmask_b32 v5, v5, v22, vcc
                  buffer_load_dword v221, v5, {s(RW,4)}, {s(T[0])} offen sc1""")
    def touch_global_flags(self):
        if not self.o.get('tch_g', 1): return
        k = self.k
        k(f"""v_lshlrev_b32 v5, 7, {v(vL)}
              s_cmp_eq_u32 {s(sW)}, 1
              s_cselect_b32 {s(T[0])}, {s(sJ)}, 31
              s_cmp_eq_u32 {s(T[0])}, 0
              s_cselect_b32 {s(T[0])}, 0, 0x40000000
              s_add_u32 {s(T[0])}, {s(T[0])}, {WS_YF}
              buffer_load_dword v202, v5, {s(RW,4)}, {s(T[0])} offen sc1""")
    def touch_f(self):
        k = self.k
        k(f"""v_and_b32 v5, 7, {v(vL)}
              v_lshlrev_b32 v5, 7, v5
              v_bfe_u32 v22, {v(vL)}, 3, 1
              v_lshl_add_u32 v5, v22, 17, v5
              buffer_load_dword v199, v5, {s(RW,4)}, {s(sFR[0])} offen sc1""")

    def q_load(self):
        k = self.k
        k(f"""s_lshl_b32 {s(T[0])}, {s(sX)}, 8
              s_lshl_b32 {s(T[1])}, {s(sJ)}, 3
              s_add_u32 {s(T[0])}, {s(T[0])}, {s(T[1])}
              s_add_u32 {s(T[0])}, {s(T[0])}, {s(sW)}
              s_lshl_b32 {s(T[0])}, {s(T[0])}, 10
              s_add_u32 {s(T[1])}, {s(T[0])}, 4096""")
        k(f"buffer_load_dwordx4 v[204:207], {v(vL16)}, {s(RQ,4)}, {s(T[0])} offen")
        self.q_tok = k(f"buffer_load_dwordx4 v[208:211], {v(vL16)}, {s(RQ,4)}, {s(T[1])} offen")

    def persistent(self):
        k = self.k
        k(f"""s_lshl_b32 {s(T[0])}, {s(sJ)}, 2
              s_add_u32 {s(T[0])}, {s(T[0])}, {s(sW)}
              s_lshl_b32 {s(T[8])}, {s(sX)}, 18
              s_lshl_b32 {s(T[9])}, {s(sX)}, 12
              s_lshr_b32 {s(T[10])}, {s(sJ)}, 3
              s_and_b32 {s(T[11])}, {s(sJ)}, 7
              s_lshl_b32 {s(T[1])}, {s(T[0])}, 2
              s_add_u32 {s(T[1])}, {s(T[1])}, {s(T[9])}
              s_add_u32 {s(sAFs)}, {s(T[1])}, {WS_AF}
              s_lshl_b32 {s(T[1])}, {s(sW)}, 7
              s_add_u32 {s(T[1])}, {s(T[1])}, {s(T[9])}
              s_add_u32 {s(sAFp)}, {s(T[1])}, {WS_AF}
              s_lshl_b32 {s(T[2])}, {s(sJ)}, 2
              s_add_u32 {s(T[1])}, {s(T[1])}, {s(T[2])}
              s_add_u32 {s(sHFs)}, {s(T[1])}, {WS_HF}
              s_lshl_b32 {s(T[1])}, {s(T[10])}, 7
              s_lshl_b32 {s(T[2])}, {s(sW)}, 5
              s_add_u32 {s(T[1])}, {s(T[1])}, {s(T[2])}
              s_add_u32 {s(T[1])}, {s(T[1])}, {s(T[9])}
              s_add_u32 {s(sHFp)}, {s(T[1])}, {WS_HF}
              s_lshl_b32 {s(T[2])}, {s(T[11])}, 2
              s_add_u32 {s(T[1])}, {s(T[1])}, {s(T[2])}
              s_add_u32 {s(sFFs)}, {s(T[1])}, {WS_FF}
              s_lshr_b32 {s(T[1])}, {s(sJ)}, 1
              s_lshl_b32 {s(T[1])}, {s(T[1])}, 5
              s_add_u32 {s(T[1])}, {s(T[1])}, {s(T[9])}
              s_add_u32 {s(sFFp)}, {s(T[1])}, {WS_FF}
              s_lshr_b32 {s(T[1])}, {s(T[0])}, 5
              s_lshl_b32 {s(T[1])}, {s(T[1])}, 15
              s_bfe_u32 {s(T[2])}, {s(T[0])}, 0x10004
              s_lshl_b32 {s(T[2])}, {s(T[2])}, 10
              s_and_b32 {s(T[3])}, {s(T[0])}, 15
              s_lshl_b32 {s(T[3])}, {s(T[3])}, 4
              s_add_u32 {s(T[1])}, {s(T[1])}, {s(T[2])}
              s_add_u32 {s(T[1])}, {s(T[1])}, {s(T[3])}
              s_add_u32 {s(T[1])}, {s(T[1])}, {s(T[8])}
              s_add_u32 {s(T[1])}, {s(T[1])}, {WS_A}
              v_lshrrev_b32 v5, 2, {v(vL)}
              v_lshlrev_b32 v5, 11, v5
              v_and_b32 {v(vAst)}, 3, {v(vL)}
              v_lshl_add_u32 {v(vAst)}, {v(vAst)}, 8, v5
              v_add_u32 {v(vAst)}, {s(T[1])}, {v(vAst)}
              s_lshl_b32 {s(T[1])}, {s(sW)}, 15
              s_add_u32 {s(T[1])}, {s(T[1])}, {s(T[8])}
              s_add_u32 {s(T[1])}, {s(T[1])}, {WS_A}
              v_add_u32 {v(vAld[0])}, {s(T[1])}, {v(vL16)}
              v_add_u32 {v(vAld[1])}, 0x20000, {v(vAld[0])}
              v_add_u32 {v(vW1)}, 57344, {v(vL16)}
              v_lshrrev_b32 v5, 4, {v(vL)}
              v_and_b32 v23, 15, {v(vL)}
              v_lshlrev_b32 v22, 9, v5
              v_lshl_add_u32 v22, v23, 4, v22
              s_mul_i32 {s(T[4])}, {s(sX)}, {H_X}
              s_add_u32 {s(T[4])}, {s(T[4])}, {WS_H}
              s_mul_i32 {s(T[1])}, {s(sW)}, {H_RB}
              s_mul_i32 {s(T[2])}, {s(sJ)}, 3584
              s_add_u32 {s(T[1])}, {s(T[1])}, {s(T[2])}
              s_add_u32 {s(T[1])}, {s(T[1])}, {s(T[4])}
              v_add_u32 {v(vHm)}, {s(T[1])}, v22
              s_mul_i32 {s(T[1])}, {s(T[10])}, {H_RB}
              s_mul_i32 {s(T[2])}, {s(sW)}, 28672
              s_add_u32 {s(T[1])}, {s(T[1])}, {s(T[2])}
              s_add_u32 {s(T[1])}, {s(T[1])}, {s(T[4])}
              v_add_u32 {v(vHld[0])}, {s(T[1])}, v22
              v_add_u32 {v(vHld[1])}, {H_HALF}, {v(vHld[0])}
              v_cmp_gt_u32 vcc, 48, {v(vL)}
              v_add_u32 {v(vHt)}, 2048, {v(vHm)}
              v_mov_b32 v22, 0x80000000
              v_mul_u32_u24 {v(vRw)}, 272, v23
              v_cndmask_b32 {v(vHt)}, v22, {v(vHt)}, vcc
              v_lshl_add_u32 {v(vRw)}, v5, 4, {v(vRw)}
              s_mul_i32 {s(T[1])}, {s(sW)}, 8704
              s_add_u32 {s(T[1])}, {s(T[1])}, {L_RED}
              v_add_u32 {v(vRw)}, {s(T[1])}, {v(vRw)}
              v_lshrrev_b32 v5, 3, {v(vL)}
              v_mul_u32_u24 {v(vRr)}, 272, v5
              v_lshl_add_u32 {v(vRr)}, {v(vP7)}, 3, {v(vRr)}
              s_mul_i32 {s(T[1])}, {s(sW)}, {8*272}
              s_add_u32 {s(T[1])}, {s(T[1])}, {L_RED}
              v_add_u32 {v(vRr)}, {s(T[1])}, {v(vRr)}
              s_lshl_b32 {s(T[1])}, {s(T[10])}, 5
              s_lshl_b32 {s(T[2])}, {s(sW)}, 3
              s_add_u32 {s(T[1])}, {s(T[1])}, {s(T[2])}
              v_add_u32 v5, {s(T[1])}, v5
              s_lshl_b32 {s(T[2])}, {s(T[11])}, 7
              s_add_u32 {s(T[2])}, {s(T[2])}, {s(T[8])}
              v_lshl_add_u32 v22, {v(vP7)}, 2, {s(T[2])}
              s_lshl_b32 {s(T[1])}, {s(T[11])}, 7
              s_lshl_b32 {s(T[2])}, {s(sX)}, 10
              s_add_u32 {s(T[1])}, {s(T[1])}, {s(T[2])}
              s_add_u32 {s(T[1])}, {s(T[1])}, {WS_YP}
              v_lshl_add_u32 {v(vF2)}, {v(vP7)}, 2, {s(T[1])}
              v_lshl_add_u32 {v(vF2)}, v5, 13, {v(vF2)}
              s_mov_b32 {s(sFH)}, 0x100000
              v_lshrrev_b32 v23, 2, v5
              v_and_b32 v5, 3, v5
              v_lshl_add_u32 v5, v23, 3, v5
              v_lshl_add_u32 {v(vO)}, v5, 10, v22""")

    W1V = 212
    def w1_addr(self):
        k = self.k; vb = self.W1V; rot = self.o.get('rot', 1)
        k(f"""s_mul_i32 {s(T[0])}, {s(sJ)}, 112
              s_movk_i32 {s(T[1])}, 9363
              s_movk_i32 {s(T[2])}, {3584 - 7*16}
              s_mul_i32 {s(sW1S)}, {s(sW)}, 229376
              s_mul_i32 {s(sW1L)}, {s(sW)}, 14336
              s_and_b32 {s(T[3])}, {s(sX)}, {6 if rot else 0}
              s_and_b32 {s(T[4])}, {s(sX)}, {1 if rot else 0}
              s_cselect_b32 {s(T[5])}, {s(RU)}, {s(RG)}
              s_cselect_b32 {s(T[6])}, {s(RU+1)}, {s(RG+1)}
              s_cselect_b32 {s(RU)}, {s(RG)}, {s(RU)}
              s_cselect_b32 {s(RU+1)}, {s(RG+1)}, {s(RU+1)}
              s_cselect_b32 {s(T[4])}, 7168, 0
              s_lshl_b32 {s(sDEL[0])}, {s(T[4])}, 1
              s_sub_u32 {s(sDEL[0])}, 7168, {s(sDEL[0])}
              s_mov_b32 {s(RG)}, {s(T[5])}
              s_mov_b32 {s(RG+1)}, {s(T[6])}
              s_add_u32 {s(sDEL[1])}, {s(sDEL[0])}, 57344
              s_add_u32 {s(T[4])}, {s(T[4])}, {s(sW1L)}""")
        for i in range(7):
            k(f"""s_add_u32 {s(T[5])}, {s(T[3])}, {i}
                  s_sub_u32 {s(T[6])}, {s(T[5])}, 7
                  s_cselect_b32 {s(T[5])}, {s(T[5])}, {s(T[6])}
                  s_lshl_b32 {s(T[6])}, {s(T[5])}, 10
                  s_add_u32 {s(sROT[i])}, {s(T[6])}, {s(T[4])}
                  v_lshl_add_u32 v5, {s(T[5])}, 6, {v(vL)}
                  v_mul_u32_u24 {v(vb+i)}, {s(T[1])}, v5
                  v_lshrrev_b32 {v(vb+i)}, 16, {v(vb+i)}
                  v_mul_u32_u24 {v(vb+i)}, {s(T[2])}, {v(vb+i)}
                  v_lshl_add_u32 {v(vb+i)}, v5, 4, {v(vb+i)}
                  v_add_u32 {v(vb+i)}, {s(T[0])}, {v(vb+i)}""")

    def w1_dma_text(self, n):
        ck, mat, i = n // 14, (n % 14) // 7, n % 7
        L = []
        if n == 14: L.append(f"s_add_u32 {s(sW1S)}, {s(sW1S)}, {4*229376}")
        L.append(f"s_add_u32 m0, {s(sROT[i])}, {s(sDEL[ck]) if mat else ck*57344}")
        L.append(f"buffer_load_dwordx4 {v(self.W1V+i)}, {s(RU if mat else RG,4)}, {s(sW1S)} offen lds")
        return L
    def w1_dma(self, cnt):
        for _ in range(cnt):
            if self.w1_next >= 28: return
            n = self.w1_next; self.w1_next += 1
            for x in self.w1_dma_text(n): self.w1_tok[n] = self.k(x)

    RL = 222
    def w1_relayout_addr(self):
        k = self.k; r = self.RL
        k(f"""v_lshrrev_b32 v5, 4, {v(vL)}
              v_bfe_u32 {v(r)}, {v(vL)}, 2, 2
              v_lshl_add_u32 {v(r)}, v5, 3, {v(r)}
              v_mul_u32_u24 {v(r)}, 112, {v(r)}
              v_add_u32 {v(r)}, {s(sW1L)}, {v(r)}
              v_and_b32 {v(r+2)}, 3, {v(vL)}
              v_bfe_u32 {v(r+3)}, {v(vL)}, 1, 1
              v_mul_u32_u24 {v(r+3)}, 7168, {v(r+3)}
              v_and_b32 v22, 1, {v(vL)}
              v_lshl_add_u32 {v(r+3)}, v22, 3, {v(r+3)}
              v_add_u32 {v(r+1)}, {v(r)}, {v(r+3)}
              v_lshl_add_u32 {v(r)}, {v(r+2)}, 3, {v(r)}
              v_add_u32 {v(r+2)}, {s(sW1L)}, {v(vL16)}
              v_bfe_u32 {v(r+3)}, {v(vL)}, 1, 2
              v_lshlrev_b32 {v(r+3)}, 2, {v(r+3)}
              v_bfe_u32 v23, {v(vL)}, 3, 1
              v_lshl_add_u32 {v(r+3)}, v23, 1, {v(r+3)}
              v_add_u32 {v(r+3)}, {v(r+3)}, v22
              v_lshl_add_u32 {v(r+3)}, v5, 4, {v(r+3)}
              v_lshlrev_b32 {v(r+3)}, 4, {v(r+3)}
              v_add_u32 {v(r+3)}, {s(sW1L)}, {v(r+3)}""")
    def w1_relayout_items(self, ck, vtemp=False):
        k = self.k; r = self.RL
        R, a = (ACC[1], v) if vtemp else (128, globals()['a'])
        L = [Item(fn=lambda: k.wait(self.w1_tok[14*ck + 13]))]
        if ck == 1: L += [Item(f"v_add_u32 {v(r+i)}, 57344, {v(r+i)}") for i in range(4)]
        for sl in range(2):
            for Tt in range(7):
                for hf in range(2):
                    d = R + (sl*7 + Tt)*4 + 2*hf
                    o = (32*sl + 4*hf)*112
                    if Tt < 6: L.append(Item(f"ds_read_b64_tr_b16 {a(d,2)}, {v(r)} offset:{o + (Tt&1)*7168 + 32*(Tt>>1)}"))
                    else: L.append(Item(f"ds_read_b64_tr_b16 {a(d,2)}, {v(r+1)} offset:{o + 96}"))
        last = L[-1]
        L.append(Item(fn=lambda: k.wait(last.tok)))
        for n in range(14): L.append(Item(f"ds_write_b128 {v(r+3 if n % 7 == 6 else r+2)}, {a(R + n*4, 4)} offset:{n*1024}"))
        return L
    def w1_relayout(self, ck): Queue(self.k, self.w1_relayout_items(ck)).drain()

    JV = 190
    def wd_job_addr(self):
        k = self.k; r = self.JV
        k(f"""s_lshl_b32 {s(T[0])}, s2, 1
              s_lshr_b32 {s(T[1])}, {s(sW)}, 1
              s_add_u32 {s(T[0])}, {s(T[0])}, {s(T[1])}
              s_mul_i32 {s(T[1])}, {s(T[0])}, 4682
              s_lshr_b32 {s(T[1])}, {s(T[1])}, 16
              s_mul_i32 {s(T[2])}, {s(T[1])}, 14
              s_sub_u32 {s(T[2])}, {s(T[0])}, {s(T[2])}
              s_and_b32 {s(T[3])}, {s(T[1])}, 3
              s_lshr_b32 {s(T[1])}, {s(T[1])}, 2
              s_lshl_b32 {s(T[1])}, {s(T[1])}, 7
              s_mul_i32 {s(T[3])}, {s(T[3])}, {8*57344}
              s_add_u32 {s(T[1])}, {s(T[1])}, {s(T[3])}
              s_cmp_lt_u32 s2, 224
              s_cselect_b32 {s(T[3])}, {s(sW)}, 0
              s_bitcmp1_b32 {s(T[3])}, 0
              s_cselect_b32 {s(T[3])}, 0, 0x80000000
              s_lshl_b32 {s(T[4])}, {s(T[0])}, 2
              s_add_u32 {s(T[4])}, {s(T[4])}, {WS_JF}
              s_lshr_b32 {s(sJF)}, {s(T[3])}, 1
              s_or_b32 {s(sJF)}, {s(sJF)}, {s(T[4])}
              s_lshl_b32 {s(T[0])}, {s(T[0])}, 12
              s_add_u32 {s(T[0])}, {s(T[0])}, {WS_WDT}
              s_or_b32 {s(T[0])}, {s(T[0])}, {s(T[3])}
              s_or_b32 {s(T[1])}, {s(T[1])}, {s(T[3])}
              v_add_u32 {v(r+5)}, {s(T[0])}, {v(vL16)}
              v_lshrrev_b32 v5, 3, {v(vL)}
              v_and_b32 v22, 3, v5
              v_lshlrev_b32 v22, 3, v22
              v_cmp_gt_u32 vcc, 4, v5
              v_lshl_add_u32 v23, {v(vP7)}, 2, {s(T[1])}
              s_lshl_b32 {s(T[2])}, {s(T[2])}, 2""")
        for g in range(4):
            k(f"""s_add_u32 {s(T[0])}, {s(T[2])}, {g}
                  s_mul_i32 {s(T[1])}, {s(T[0])}, 9363
                  s_lshr_b32 {s(T[1])}, {s(T[1])}, 16
                  s_mul_i32 {s(T[3])}, {s(T[1])}, 7
                  s_sub_u32 {s(T[0])}, {s(T[0])}, {s(T[3])}
                  s_mul_i32 {s(T[1])}, {s(T[1])}, 56
                  s_mul_i32 {s(T[3])}, {s(T[0])}, 0x04040404
                  s_add_u32 {s(T[4])}, {s(T[3])}, 0x13121110
                  s_add_u32 {s(T[3])}, {s(T[3])}, 0x03020100
                  s_cmp_ge_u32 {s(T[0])}, 4
                  s_cselect_b32 {s(T[3])}, {s(T[4])}, {s(T[3])}
                  s_cselect_b32 {s(T[4])}, {sum(x << (8*e) for e, x in enumerate(flist(4)[4:]))}, {s(T[4])}
                  s_cmp_eq_u32 {s(T[0])}, 5
                  s_cselect_b32 {s(T[4])}, {sum(x << (8*e) for e, x in enumerate(flist(5)[4:]))}, {s(T[4])}
                  s_cmp_eq_u32 {s(T[0])}, 6
                  s_cselect_b32 {s(T[4])}, {sum(x << (8*e) for e, x in enumerate(flist(6)[4:]))}, {s(T[4])}
                  v_mov_b32 v5, {s(T[3])}
                  v_mov_b32 {v(r+g)}, {s(T[4])}
                  v_cndmask_b32 v5, {v(r+g)}, v5, vcc
                  v_bfe_u32 v5, v5, v22, 8
                  v_add_u32 v5, {s(T[1])}, v5
                  v_lshl_add_u32 {v(r+g)}, v5, 10, v23""")
        k(f"""s_lshl_b32 {s(sJL)}, {s(sW)}, 12
              s_add_u32 {s(sJL)}, {s(sJL)}, {L_JOB}
              v_lshrrev_b32 v5, 4, {v(vL)}
              v_lshlrev_b32 {v(r+4)}, 10, v5
              v_bfe_u32 v5, {v(vL)}, 2, 2
              v_lshl_add_u32 {v(r+4)}, v5, 7, {v(r+4)}
              v_and_b32 v5, 3, {v(vL)}
              v_lshl_add_u32 {v(r+4)}, v5, 3, {v(r+4)}
              v_add_u32 {v(r+4)}, {s(sJL)}, {v(r+4)}""")
    def wd_job_issue(self):
        for g in range(4): self.job_tok = self.dma(self.JV+g, RD, '0', f"s_add_u32 m0, {s(sJL)}, {1024*g}")
    def wd_job_finish(self):
        k = self.k; r = self.JV
        k.wait(self.job_tok)
        t = {}
        for nt in range(4):
            for hf in range(2): t[nt] = k(f"ds_read_b64_tr_b16 {a(128 + 4*nt + 2*hf, 2)}, {v(r+4)} offset:{hf*512 + nt*32}")
        for nt in range(4):
            k.wait(t[nt])
            self.job_st = k(f"buffer_store_dwordx4 {a(128 + 4*nt, 4)}, {v(r+5)}, {s(RW,4)}, 0 offen offset:{1024*nt} sc1")
    WDV = 226
    def wd_addr(self):
        self.k(f"""s_and_b32 {s(T[0])}, {s(sJ)}, 7
                   s_lshl_b32 {s(T[0])}, {s(T[0])}, 2
                   s_add_u32 {s(T[0])}, {s(T[0])}, {s(sW)}
                   s_mul_i32 {s(sJFp)}, {s(T[0])}, {14*4}
                   s_add_u32 {s(sJFp)}, {s(sJFp)}, {WS_JF}
                   s_mul_i32 {s(T[0])}, {s(T[0])}, {14*4096}
                   s_add_u32 {s(T[0])}, {s(T[0])}, {WS_WDT}
                   v_add_u32 {v(vWd[0])}, {s(T[0])}, {v(vL16)}
                   v_add_u32 {v(vWd[1])}, 32768, {v(vWd[0])}
                   v_min_u32 v226, 13, {v(vL)}
                   v_lshlrev_b32 v226, 2, v226
                   s_lshr_b32 {s(T[1])}, {s(sJ)}, 3
                   s_mul_i32 {s(T[1])}, {s(T[1])}, {112*128}
                   s_add_u32 {s(T[0])}, {s(T[0])}, {s(T[1])}
                   v_min_u32 v227, 55, {v(vL)}
                   v_lshl_add_u32 v227, v227, 7, {s(T[0])}""")
    def wd_touch_text(self, i):
        return f"buffer_load_dword {v(228+i)}, v227, {s(RW,4)}, {k4(i)} offen offset:{3072*i} sc1"
    def wd_text(self, n):
        U, nt = divmod(n, 4)
        return f"buffer_load_dwordx4 {a(4*n, 4)}, {v(vWd[U >> 3])}, {s(RW,4)}, {k4(U & 7)} offen offset:{1024*nt}{self.o.get('wdm', ' sc1')}"

    def phase0(self):
        k = self.k
        k(f"""v_lshrrev_b32 v5, 4, {v(vL)}
              v_bfe_u32 v48, {v(vL)}, 2, 2
              v_lshl_add_u32 v49, v5, 4, v48
              v_lshlrev_b32 v49, 7, v49
              v_bfe_u32 v50, {v(vL)}, 1, 1
              s_lshl_b32 {s(T[0])}, {s(sW)}, 1
              v_add_u32 v50, {s(T[0])}, v50
              v_and_b32 v48, 2, v48
              v_xor_b32 v50, v50, v48
              v_and_b32 v48, 1, v5
              v_lshlrev_b32 v48, 2, v48
              v_xor_b32 v50, v50, v48
              v_lshl_add_u32 v49, v50, 4, v49
              v_and_b32 v48, 1, {v(vL)}
              v_lshl_add_u32 v49, v48, 3, v49
              v_add_u32 v49, {L_K}, v49
              v_xor_b32 v50, 64, v49
              v_lshlrev_b32 v51, 12, v27
              v_lshl_add_u32 v51, v5, 5, v51
              s_lshl_b32 {s(T[6])}, {s(sJ)}, 7
              s_add_u32 {s(T[6])}, {s(T[6])}, {WS_KVT}
              v_mul_u32_u24 v52, {self.o.get('xs', 4)//4}, {v(vP31)}
              s_mul_i32 {s(T[7])}, {s(sX)}, {32*self.o.get('xs', 4)}
              s_add_u32 {s(T[7])}, {s(T[7])}, {WS_XCCF}
              s_lshl_b32 {s(T[0])}, {s(sX)}, 9
              s_lshl_b32 {s(T[1])}, {s(sW)}, 7
              s_lshl_b32 {s(T[2])}, {s(sJ)}, 2
              s_add_u32 {s(T[1])}, {s(T[1])}, {s(T[2])}
              s_add_u32 {s(T[0])}, {s(T[0])}, {WS_KVF}
              s_add_u32 {s(T[5])}, {s(T[1])}, {s(T[0])}
              s_xor_b32 {s(T[0])}, {s(sN)}, {s(sXCC)}
              s_mov_b32 {s(sMODE)}, 0
              s_mov_b32 {s(sEXP)}, {s(sN)}""")
        k.wait(self.sh_tok)
        k("s_barrier")
        self.stamp('kv_in')
        xh = k(f"buffer_load_dword v53, v52, {s(RW,4)}, {s(T[7])} offen sc1")
        KR, VR, KS, O, VU, P = 56, 68, 78, 88, 104, 120
        k(f"ds_read_b64_tr_b16 {v(KR,2)}, v50 offset:512")
        for i in range(4): k(f"ds_read_b64_tr_b16 {v(KR+2+2*i,2)}, v49 offset:{1024 + 512*i}")
        for i in range(4): lastv = k(f"ds_read_b64_tr_b16 {v(VR+2*i,2)}, v49 offset:{L_V - L_K + 512*i}")
        k("v_alignbit_b32 v54, v30, v30, 16\nv_alignbit_b32 v55, v31, v31, 16")
        k.wait(('lg', lastv[1] - 4))
        for aa in range(-1, 8): k(f"v_alignbit_b32 {v(KS+1+aa)}, {v(KR+2+aa)}, {v(KR+1+aa)}, 16")
        for aa in range(8):
            k(f"v_dot2_f32_bf16 {v(O+2*aa)}, {v(KS+aa)}, v55, 0")
            k(f"v_dot2_f32_bf16 {v(O+2*aa+1)}, {v(KR+1+aa)}, v55, 0")
        for aa in range(8):
            k(f"v_dot2_f32_bf16 {v(O+2*aa)}, {v(KS+1+aa)}, v54, {v(O+2*aa)}")
            k(f"v_dot2_f32_bf16 {v(O+2*aa+1)}, {v(KR+2+aa)}, v54, {v(O+2*aa+1)}")
        k.wait(lastv)
        for g in range(2):
            for aa in range(4*g, 4*g+4):
                k(f"v_lshlrev_b32 {v(VU+2*aa)}, 16, {v(VR+aa)}")
                k(f"v_and_b32 {v(VU+2*aa+1)}, 0xffff0000, {v(VR+aa)}")
            for aa in range(4*g, 4*g+4): k(f"v_pk_mul_f32 {v(O+2*aa,2)}, {v(O+2*aa,2)}, {v(VU+2*aa,2)}")
            for e in range(4): k(f"v_cvt_pk_bf16_f32 {v(P+4*g+e)}, {v(O+8*g+7-2*e)}, {v(O+8*g+6-2*e)}")
            st = k(f"buffer_store_dwordx4 {v(P+4*g,4)}, v51, {s(RW,4)}, {s(T[6])} offen offset:{16*g}")
        self.stamp('kv_st')
        self.toeplitz_write()
        slow, back, done = k.label(), k.label(), k.label()
        k.wait(xh)
        k(f"v_cmp_ne_u32 vcc, {s(T[0])}, v53\ns_cbranch_vccnz {slow}")
        k.place(back)
        self.tail.append([f"{slow}:",
            f"buffer_load_dword v53, v52, {s(RW,4)}, {s(T[7])} offen sc1", "s_waitcnt vmcnt(0)",
            f"v_xor_b32 v54, {s(sN)}, v53", "v_cmp_lt_u32 vcc, 15, v54", f"s_cbranch_vccz {done}",
            f"s_sub_u32 {s(sSPIN)}, {s(sSPIN)}, 1", f"s_cbranch_scc0 {slow}", "s_branch L_END",
            f"{done}:", f"v_cmp_ne_u32 vcc, {s(T[0])}, v53", f"s_cbranch_vccz {back}",
            f"s_mov_b32 {s(sMODE)}, 1", f"s_not_b32 {s(sEXP)}, {s(sN)}", f"s_branch {back}"])
        self.publish(st, s(T[5]))
        self.stamp('kv_pub')

    def toeplitz_write(self):
        k = self.k
        k.wait(self.h_tok)
        k(f"v_add_u32 v48, {SCR}, v29")
        for ch in range(2):
            k(f"ds_write_b128 v48, {v(32+8*ch,4)} offset:{H_E(ch) - SCR}")
            k(f"ds_write_b128 v48, {v(36+8*ch,4)} offset:{H_O(ch) - SCR}")
        skip = k.label()
        k(f"s_cmp_lg_u32 {s(sW)}, 0\ns_cbranch_scc1 {skip}")
        k(f"""v_readfirstlane_b32 {s(T[1])}, v32
              v_readfirstlane_b32 {s(T[2])}, v40
              v_cmp_eq_u32 vcc, 28, {v(vP7)}
              v_add_u32 v49, {SCR}, {v(vP7)}
              s_lshl_b32 {s(T[1])}, {s(T[1])}, 16
              s_lshl_b32 {s(T[2])}, {s(T[2])}, 16
              v_mov_b32 v50, 0
              v_mov_b32 v51, 0
              v_mov_b32 v54, {s(T[1])}
              v_mov_b32 v55, {s(T[2])}
              v_cndmask_b32 v54, v50, v54, vcc
              v_cndmask_b32 v55, v50, v55, vcc
              ds_write_b32 v49, v50 offset:{H_E(0) - 32 - SCR}
              ds_write_b32 v49, v50 offset:{H_E(1) - 32 - SCR}
              ds_write_b32 v49, v54 offset:{H_O(0) - 32 - SCR}
              ds_write_b32 v49, v55 offset:{H_O(1) - 32 - SCR}
              v_lshlrev_b32 v49, 3, {v(vL)}
              v_add_u32 v49, {L_U}, v49
              ds_write_b64 v49, v[50:51]
              ds_write_b64 v49, v[50:51] offset:{U_S}""")
        k.place(skip)

    def front_addr(self):
        k = self.k; o = self.o; yfs = o.get('yfs', 4)
        k(f"""v_and_b32 v24, 15, {v(vL)}
              v_lshrrev_b32 v25, 4, {v(vL)}
              v_lshlrev_b32 v5, 3, v25
              v_sub_u32 v26, v24, v5
              v_add_u32 v26, 9, v26
              v_and_b32 v5, 1, v26
              v_sub_u32 v26, v26, v5
              v_lshlrev_b32 v26, 1, v26
              v_mul_u32_u24 v5, {H_O(0) - H_E(0)}, v5
              v_add_u32 v26, v26, v5
              s_lshr_b32 {s(T[0])}, {s(sW)}, 1
              s_mul_i32 {s(T[2])}, {s(T[0])}, {H_E(1) - H_E(0)}
              s_and_b32 {s(T[1])}, {s(sW)}, 1
              s_lshl_b32 {s(T[3])}, {s(T[1])}, 8
              s_add_u32 {s(T[2])}, {s(T[2])}, {s(T[3])}
              s_add_u32 {s(T[2])}, {s(T[2])}, {H_E(0)}
              v_add_u32 v152, {s(T[2])}, v26
              s_mul_i32 {s(T[4])}, {s(T[0])}, {U_S}
              s_add_u32 {s(T[4])}, {s(T[4])}, {L_U + 512}
              s_lshl_b32 {s(T[2])}, {s(T[1])}, 11
              s_add_u32 {s(sUm0)}, {s(T[4])}, {s(T[2])}
              s_sub_u32 {s(T[4])}, {s(T[4])}, {s(T[3])}
              s_sub_u32 {s(T[4])}, {s(T[4])}, 224
              v_lshlrev_b32 v140, 5, v24
              v_lshl_add_u32 v140, v25, 4, v140
              v_add_u32 v140, {s(T[4])}, v140
              s_lshl_b32 {s(T[0])}, {s(sX)}, 9
              s_lshr_b32 {s(T[1])}, {s(sJ)}, 3
              s_lshl_b32 {s(T[1])}, {s(T[1])}, 7
              s_add_u32 {s(T[0])}, {s(T[0])}, {s(T[1])}
              s_add_u32 {s(sKVFp)}, {s(T[0])}, {WS_KVF}
              s_lshl_b32 {s(T[0])}, {s(sX)}, 18
              s_lshl_b32 {s(T[1])}, {s(sJ)}, 13
              s_lshl_b32 {s(T[2])}, {s(sW)}, 11
              s_add_u32 {s(T[0])}, {s(T[0])}, {s(T[1])}
              s_add_u32 {s(T[0])}, {s(T[0])}, {s(T[2])}
              s_add_u32 {s(sKVs)}, {s(T[0])}, {WS_KVT}
              s_add_u32 {s(sYst)}, {s(T[0])}, {WS_YP}
              v_lshlrev_b32 v141, 5, v24
              v_lshrrev_b32 v5, 1, v25
              v_lshl_add_u32 v141, v5, 4, v141
              v_and_b32 v5, 1, v25
              v_xor_b32 v5, 1, v5
              v_lshl_add_u32 v141, v5, 3, v141
              s_lshl_b32 {s(T[0])}, {s(sW)}, 10
              s_add_u32 {s(T[1])}, {s(T[0])}, {L_U + 512}
              v_add_u32 v141, {s(T[1])}, v141
              s_add_u32 {s(T[1])}, {s(T[0])}, {L_YT}
              v_add_u32 v151, {s(T[1])}, {v(vL16)}
              s_lshl_b32 {s(T[0])}, {s(sW)}, 13
              s_add_u32 {s(T[0])}, {s(T[0])}, {L_CRED}
              v_add_u32 v142, {s(T[0])}, {v(vL16)}
              s_add_u32 {s(T[0])}, {s(T[2])}, {L_CRED}
              v_add_u32 v143, {s(T[0])}, {v(vL16)}
              v_lshlrev_b32 v144, 6, v24
              v_lshl_add_u32 v144, v25, 4, v144
              s_lshl_b32 {s(T[0])}, {s(sX)}, 5
              s_add_u32 {s(T[0])}, {s(T[0])}, {s(sJ)}
              s_lshl_b32 {s(T[1])}, {s(sW)}, 8
              s_add_u32 {s(T[0])}, {s(T[0])}, {s(T[1])}
              s_mul_i32 {s(T[0])}, {s(T[0])}, {yfs}
              s_add_u32 {s(sYFs)}, {s(T[0])}, {WS_YF}
              v_mul_u32_u24 v148, {yfs}, v0
              s_lshr_b32 {s(T[0])}, {s(sX)}, 1
              s_mul_i32 {s(T[0])}, {s(T[0])}, {256*yfs}
              s_add_u32 {s(sYFp)}, {s(T[0])}, {WS_YF}
              v_lshlrev_b32 v149, 13, v0
              s_lshl_b32 {s(T[0])}, {s(sX)}, 10
              s_lshl_b32 {s(T[1])}, {s(sJ)}, 5
              s_add_u32 {s(T[0])}, {s(T[0])}, {s(T[1])}
              s_add_u32 {s(sYld)}, {s(T[0])}, {WS_YP}
              v_lshlrev_b32 v150, 2, v0
              v_add_u32 v150, {L_YT}, v150
              s_lshl_b32 {s(T[0])}, {s(sJ)}, 2
              s_add_u32 {s(T[0])}, {s(T[0])}, {s(sW)}
              s_lshl_b32 {s(T[0])}, {s(T[0])}, 13
              s_lshl_b32 {s(T[1])}, {s(sX)}, 10
              s_add_u32 {s(T[0])}, {s(T[0])}, {s(T[1])}
              s_add_u32 {s(sFR[0])}, {s(T[0])}, {WS_YP}
              s_add_u32 {s(sFR[1])}, {s(T[0])}, {WS_YP + 0x100000}""")
        for p in range(1, 8): k(f"v_add_u32 {v(152+p)}, {512*p}, v152")

    def conv(self):
        k = self.k; o = self.o
        toep = []
        for rr in range(4):
            for p in range(8):
                d = (rr*8 + p)*4
                toep.append(f"ds_read2_b32 {a(d,2)}, {v(152+p)} offset0:{16*rr} offset1:{16*rr+1}")
                toep.append(f"ds_read2_b32 {a(d+2,2)}, {v(152+p)} offset0:{16*rr+2} offset1:{16*rr+3}")
        k.wait_lg0()
        k("s_barrier")
        n0 = o.get('toep0', 16)
        tt = {}
        for n in range(n0): tt[n] = k(toep[n])
        ph = self.poll_issue(vP31, s(sKVFp))
        self.stamp('toep')
        self.poll_check(ph)
        self.stamp('kv_seen')
        k(f"s_mov_b32 m0, {s(sUm0)}")
        k(f"buffer_load_dwordx4 {v(vL16)}, {s(RW,4)}, {s(sKVs)} offen sc1 lds")
        tok = k(f"buffer_load_dwordx4 {v(vL16)}, {s(RW,4)}, {s(sKVs)} offen offset:1024 sc1 lds")
        n1 = o.get('toep1', 32)
        for n in range(n0, n1): tt[n] = k(toep[n])
        k.wait(tok)
        k("s_barrier")
        self.stamp('u_in')
        B, C = 64, 96
        bt = {}
        def rdB(rr, q): bt[(rr, q)] = k(f"ds_read_b128 {v(B+4*q,4)}, v140 offset:{512*q + 64*(3-rr)}")
        for q in range(8): rdB(0, q)
        self.wd_job_issue()
        if o.get('qpos', 0) == 0: self.q_load()
        if o.get('tch_f', 0) == 2: self.touch_f()
        self.tlb_touch()
        tq = Queue(k, [Item(x) for x in toep[n1:]]); tits = list(tq.q)
        n2 = o.get('n2', 11)
        dq = []
        for i in range(n2):
            if self.w1_next >= 28: break
            n = self.w1_next; self.w1_next += 1
            for x in self.w1_dma_text(n): dq.append(Item(x, at=4 + i*(o.get('n2span', 124) // n2), tag=n))
        dits = list(dq); dq = Queue(k, dq)
        m = 0
        for rr in range(4):
            need = [tt[n] for n in range(16*rr, 16*rr + 16) if n in tt]
            while any(x.tok is None for x in tits[:max(0, 16*rr + 16 - n1)]): tq.emit(tq.q[0])
            need += [x.tok for x in tits[:max(0, 16*rr + 16 - n1)]]
            for q in range(8):
                k.wait(bt[(rr, q)], *(need if q == 0 else []))
                for p in range(8 - q):
                    c = C + 4*(p+q)
                    src = '0' if (rr == 0 and q == 0) else v(c, 4)
                    k(f"v_mfma_f32_16x16x32_bf16 {v(c,4)}, {a((rr*8+p)*4,4)}, {v(B+4*q,4)}, {src}")
                    m += 1
                    if p < 7 - q:
                        cap = dq.fill(2, m)
                        tq.fill(min(cap, 1))
                if rr < 3: rdB(rr+1, q)
        dq.drain()
        assert self.w1_next <= 14
        for x in dits: self.w1_tok[x.tag] = x.tok
        self.stamp('conv_mfma')
        KV, P = 32, 160
        for t2 in range(2):
            for ch in range(2): k(f"ds_read_b64 {v(KV+4*t2+2*ch,2)}, v141 offset:{512*t2 + ch*U_S}")
        for c in range(8): k(f"ds_write_b128 v142, {v(C+4*c,4)} offset:{1024*c}")
        k.wait_lg0()
        k("s_barrier")
        for t2 in range(2):
            for w in range(4): lastp = k(f"ds_read_b128 {v(P+16*t2+4*w,4)}, v143 offset:{8192*w + 1024*t2}")
        for t2 in range(2):
            k.wait(('lg', lastp[1] - 4*(1-t2)))
            b = P + 16*t2
            L = []
            for ch in range(2):
                for e in (0, 2): L.append(f"v_pk_add_f32 {v(b+8*ch+e,2)}, {v(b+8*ch+e,2)}, {v(b+8*ch+4+e,2)}")
            for e in range(4):
                for ch in range(2):
                    L.append(f"v_dot2_f32_bf16 {v(b+8*ch+e)}, {v(KV+4*t2+2*ch+(1-(e>>1)))}, {s(sD+2*ch+(1-(e&1)))}, {v(b+8*ch+e)}")
            for e in range(4): L.append(f"v_cvt_pk_bf16_f32 {v(b+4+e)}, {v(b+e)}, {v(b+8+e)}")
            L.append(f"buffer_store_dwordx4 {v(b+4,4)}, v144, {s(RW,4)}, {s(sYst)} offen offset:{1024*t2} sc1")
            st = self.run(L)[-1].tok
        self.stamp('y_st')
        self.wd_job_finish()
        self.stamp('job')
        if o.get('qpos', 0) == 0: self.q_stats()
        self.stamp('qst')
        self.publish(st, s(sYFs), local=False)
        self.stamp('y_pub')
        self.publish(self.job_st, s(sJF), local=False)
        k("s_barrier")

    def stats(self, rows, out, t0, scale=None):
        L = []; n = len(rows)
        for i, x in enumerate(rows):
            b = t0 + 6*i
            L += [f"v_pk_add_f32 {v(b,2)}, {v(x,2)}, {v(x+2,2)}", f"v_pk_mul_f32 {v(b+2,2)}, {v(x,2)}, {v(x,2)}",
                  f"v_pk_add_f32 {v(b+4,2)}, {v(x+4,2)}, {v(x+6,2)}"]
            L += [f"v_pk_fma_f32 {v(b+2,2)}, {v(x+e,2)}, {v(x+e,2)}, {v(b+2,2)}" for e in (2, 4, 6)]
            L += [f"v_pk_add_f32 {v(b,2)}, {v(b,2)}, {v(b+4,2)}", f"v_add_f32 {v(b+2)}, {v(b+2)}, {v(b+3)}", f"v_add_f32 {v(b)}, {v(b)}, {v(b+1)}"]
        for ctl in ("row_ror:8 row_mask:0xf", "row_ror:4 row_mask:0xf", "row_ror:2 row_mask:0xf", "row_ror:1 row_mask:0xf",
                    "row_bcast:15 row_mask:0xa", "row_bcast:31 row_mask:0xc"):
            for i in range(n):
                for e in (2, 0):
                    r = t0 + 6*i + e
                    L.append(f"v_add_f32_dpp {v(r)}, {v(r)}, {v(r)} {ctl} bank_mask:0xf")
        for i in range(n):
            b = t0 + 6*i
            L += [f"v_mul_f32 {v(b)}, 0x3b000000, {v(b)}", f"v_mul_f32 {v(b+2)}, 0x3b000000, {v(b+2)}",
                  f"v_fma_f32 {v(b+2)}, -{v(b)}, {v(b)}, {v(b+2)}", f"v_max_f32 {v(b+2)}, 0, {v(b+2)}",
                  f"v_add_f32 {v(b+2)}, 0x3727c5ac, {v(b+2)}", f"v_rsq_f32 {v(b+2)}, {v(b+2)}"]
            if scale: L.append(f"v_mul_f32 {v(b+2)}, {f32(scale)}, {v(b+2)}")
            L += [f"v_mul_f32_e64 {v(b)}, -{v(b)}, {v(b+2)}", f"v_readlane_b32 {s(out[i])}, {v(b+2)}, 63",
                  f"v_readlane_b32 {s(out[i]+2)}, {v(b)}, 63", f"s_mov_b32 {s(out[i]+1)}, {s(out[i])}",
                  f"v_mov_b32 {v(b+4)}, {s(out[i]+2)}", f"v_mov_b32 {v(b+5)}, {s(out[i]+2)}"]
        return L
    def unpack(self, dst, src):
        L = []
        for e in range(4): L += [f"v_lshlrev_b32 {v(dst+2*e)}, 16, {v(src+e)}", f"v_and_b32 {v(dst+2*e+1)}, 0xffff0000, {v(src+e)}"]
        return L
    def affine(self, dst, x, sp, vb):
        return [f"v_pk_fma_f32 {v(dst+e,2)}, {v(x+e,2)}, {s(sp,2)}, {v(vb,2)}" for e in (0, 2, 4, 6)]
    def run(self, L, look=12):
        its = [Item(x) for x in L]
        Queue(self.k, its, look).drain()
        return its

    def gate_norm(self, halves, nrm, layer, R):
        L = []; sp = [36, 40]
        t0 = R + 16*len(halves)
        for i, h in enumerate(halves):
            L += self.unpack(R + 16*i, YS[h])
            L += [f"v_pk_fma_f32 {v(XS[h]+e,2)}, {v(nrm[h]+e,2)}, {v(R+16*i+e,2)}, {v(XS[h]+e,2)}" for e in (0, 2, 4, 6)]
        L += self.stats([XS[h] for h in halves], sp[:len(halves)], t0, LOG2E)
        for i, h in enumerate(halves):
            b = R + 16*i
            L += self.affine(b, XS[h], sp[i], t0 + 6*i + 4)
            L += [f"v_cvt_pk_bf16_f32 {v(b+8+e)}, {v(b+2*e)}, {v(b+2*e+1)}" for e in range(4)]
            L.append(f"buffer_store_dwordx4 {v(b+8,4)}, {v(vAst)}, {s(RW,4)}, {s(sHALF) if h else 0} offen")
            if layer == 1:
                L += [f"v_cvt_pk_bf16_f32 {v(b+12+e)}, {v(XS[h]+2*e)}, {v(XS[h]+2*e+1)}" for e in range(4)]
                L.append(f"buffer_store_dwordx4 {v(b+12,4)}, {v(vL16)}, {s(RW,4)}, {s(sFR[h])} offen")
        return L

    N0 = [40, 48]
    def q_stats(self):
        k = self.k
        k.wait(self.q_tok)
        L = []
        for h in range(2): L += self.unpack(XS[h], 204 + 4*h)
        L += self.stats(XS, [36, 40], 128)
        for h in range(2): L += self.affine(self.N0[h], XS[h], [36, 40][h], 128 + 6*h + 4)
        self.run(L)

    def y_in(self):
        k = self.k; o = self.o
        done0 = self.w1_next >= 14
        if o.get('qpos', 0) == 1: self.q_load()
        self.w1_dma(o.get('n3', 5))
        self.persistent()
        if o.get('tch_f', 0) == 1: self.touch_f()
        self.w1_relayout_addr()
        self.wd_addr()
        if done0: self.w1_relayout(0)
        if o.get('qpos', 0) == 1: self.q_stats()
        self.stamp('rl0')
        self.poll(148, s(sYFp), local=False)
        self.stamp('y_seen')
        t0 = k(f"buffer_load_dwordx4 v[32:35], v149, {s(RW,4)}, {s(sYld)} offen sc1")
        t1 = k(f"buffer_load_dwordx4 v[36:39], v149, {s(RW,4)}, {s(sYld)} offen offset:16 sc1")
        pj = self.poll_issue(226, s(sJFp), 0, 229)
        self.w1_dma(o.get('n4', 9))
        if not done0 and self.w1_next >= 14: self.w1_relayout(0); done0 = True
        k.wait(t0)
        for e in range(4): k(f"ds_write_b32 v150, {v(32+e)} offset:{1024*e}")
        k.wait(t1)
        for e in range(4): k(f"ds_write_b32 v150, {v(36+e)} offset:{1024*(4+e)}")
        k.wait_lg0()
        k("s_barrier")
        for h in range(2): k(f"ds_read_b128 {v(YS[h],4)}, v151 offset:{4096*h}")
        k.wait_lg0()
        self.stamp('y_in')
        its = self.run(self.gate_norm([0, 1], self.N0, 0, 56))
        sts = [x.tok for x in its if 'store' in x.text]
        self.stamp('a_st')
        self.poll_check(pj, False)
        if done0: self.gemm1_start(0)
        self.publish(sts[0], s(sAFs), 0)
        self.publish(sts[1], s(sAFs), 512)
        k(f"s_or_b32 {s(T[0])}, s2, {s(sW)}\ns_cmp_eq_u32 {s(T[0])}, 0\ns_cselect_b32 {s(T[0])}, 0, 0x40000000")
        k(f"buffer_store_dword {v(vNON)}, {v(vL0)}, {s(RW,4)}, {s(T[0])} offen sc1")
        self.stamp('a_pub')
        self.w1_dma(o.get('n5', 28))
        self.rl1_done = bool(o.get('rl1_front', 1))
        if not done0: self.w1_relayout(0)
        if self.rl1_done:
            self.w1_relayout(1); k.wait_lg0(); k("s_barrier")
        if not done0: self.gemm1_start(0)

    def epilogue1(self, B, half, off, pk, sc=''):
        L = []; so = s(sHH) if half else '0'
        def grp(g, u, n, outs, t):
            for e in range(n): L.append(f"v_exp_f32_e64 {v(t+e)}, -{v(g+e)}")
            if pk:
                for e in range(0, n, 2): L.append(f"v_pk_mul_f32 {v(u+e,2)}, {v(g+e,2)}, {v(u+e,2)}")
                for e in range(0, n, 2): L.append(f"v_pk_fma_f32 {v(t+e,2)}, {v(t+e,2)}, {s(sC2,2)}, {s(sC2,2)}")
            else:
                for e in range(n): L.append(f"v_mul_f32 {v(u+e)}, {v(g+e)}, {v(u+e)}")
                for e in range(n): L.append(f"v_fma_f32 {v(t+e)}, {v(t+e)}, {s(sC2)}, {s(sC2)}")
            for e in range(n): L.append(f"v_rcp_f32 {v(t+e)}, {v(t+e)}")
            if pk:
                for e in range(0, n, 2): L.append(f"v_pk_mul_f32 {v(u+e,2)}, {v(u+e,2)}, {v(t+e,2)}")
            else:
                for e in range(n): L.append(f"v_mul_f32 {v(u+e)}, {v(u+e)}, {v(t+e)}")
            for e in range(0, n, 2): L.append(f"v_cvt_pk_bf16_f32 {v(outs[e//2])}, {v(u+e)}, {v(u+e+1)}")
        grp(B, B+4, 4, [B, B+1], TMP)
        grp(B+8, B+12, 4, [B+2, B+3], TMP+4)
        L.append(f"buffer_store_dwordx4 {v(B,4)}, {v(vHm)}, {s(RW,4)}, {so} offen offset:{off}{sc}")
        grp(B+16, B+20, 4, [B+8, B+9], TMP)
        grp(B+24, B+26, 2, [B+10], TMP+4)
        Z, C, A_ = B+4, B+5, B+6
        L += [f"v_mov_b32 {v(C)}, {v(B+8)}", f"v_mov_b32 {v(A_)}, {v(B+9)}", f"v_mov_b32 {v(Z)}, {v(B+10)}",
              f"v_permlane32_swap_b32 {v(A_)}, {v(B+11)}", f"v_permlane32_swap_b32 {v(C)}, {v(Z)}",
              f"v_permlane16_swap_b32 {v(Z)}, {v(B+11)}",
              f"buffer_store_dwordx4 {v(B+8,4)}, {v(vHt)}, {s(RW,4)}, {so} offen offset:{off}{sc}"]
        return L

    def a_plan(self, layer):
        n = self.o.get('ring0', 8) if layer == 0 else self.o.get('ring1', 4)
        ring = ([('v', AR + 8*i) for i in range(4)] + [('a', 224 + 8*i) for i in range(4)])[:n]
        reg = {gs: ring[gs % n] for gs in range(32)}
        issue = {}
        for gs in range(32):
            prev = [p for p in range(gs) if reg[p] == reg[gs]]
            issue[gs] = prev[-1] + 1 if prev else -1
        return reg, issue

    def gemm1_start(self, layer):
        k = self.k
        self.wt, self.at = {}, {}
        self.areg, self.aiss = self.a_plan(layer)
        for Tt in range(7): self.rdW(0, Tt)
    def rdW(self, gs, Tt):
        st = gs % 16
        base, o = (vL16, st*7168) if st < 8 else (vW1, (st-8)*7168)
        self.wt[(gs, Tt)] = self.k(f"ds_read_b128 {v(WF + 28*(gs&1) + 4*Tt, 4)}, {v(base)} offset:{o + 1024*Tt}")
    def afrag(self, gs, mt):
        kind, b = self.areg[gs]
        return (v if kind == 'v' else a)(b + 4*mt, 4)
    def ldA(self, gs, mt):
        st = gs % 16
        self.at[(gs, mt)] = self.k(f"buffer_load_dwordx4 {self.afrag(gs, mt)}, {v(vAld[gs // 16])}, {s(RW,4)}, {k4(st>>1)} offen offset:{((st&1)*2+mt)*1024} sc1")

    def gemm1(self, layer):
        k = self.k; o = self.o
        lo = 1024*layer
        self.poll(vP31, s(sAFp), lo)
        self.stamp(f'a_seen{layer}')
        todo = sorted(range(32), key=lambda g: g)
        nxtA = 0
        while self.aiss[nxtA] < 0 and nxtA < o.get('a_init', 5):
            for mt in range(2): self.ldA(nxtA, mt)
            nxtA += 1
        if layer == 0: self.w1_dma(28)
        firstB = max(min(self.aiss[g] for g in range(16, 32)), o.get('firstB', 0) if layer else 0)
        queues = []
        if layer == 0:
            queues.append(Queue(k, self.poll_items(vP31, s(sAFp), lo + 512, 14*2, 14*(firstB - 2))))
            rl = self.w1_relayout_items(1, True) if not self.rl1_done else []
            for x in rl: x.at = 14*o.get('rl1_at', 1)
            rlq = Queue(k, rl); queues.append(rlq)
            t0 = o.get('wd_t0', 1); t1 = o.get('wd_t1', 31)
            wd = [Item(self.wd_text(n), at=int(14*(t0 + (t1 - t0)*n/56))) for n in range(o.get('wd_n', 56))]
            wdq = Queue(k, wd, 1); queues.append(wdq)
            burst = None
        else:
            box = []
            s0 = o.get('rowb_at', 5)
            its = self.poll_items(vP7, s(sFFp), 512, 14*(s0 - 3), 14*(s0 - 1) - 8)
            fld = Item(f"buffer_load_dwordx4 {v(ACC[1],4)}, {v(vL16)}, {s(RW,4)}, {s(sFR[1])} offen sc1"); its.append(fld)
            queues.append(Queue(k, its))
            burst = s0
        epi = None; hbox = []
        hsc = ' sc1' if layer == 0 and o.get('hsc', 1) else ''
        for gs in range(32):
            ps, st = divmod(gs, 16)
            if gs == burst:
                queues[0].drain(); k.wait(fld.tok)
                self.stamp('rowB_go')
                sts = self.rowop(1, ACC[1])
                self.stamp('rowB')
                queues = [Queue(k, self.publish_items(lambda: sts, s(sAFs), lo + 512, 14*gs + 22)
                                + self.poll_items(vP31, s(sAFp), lo + 512, 14*(firstB - 2) - 4, 14*firstB - 4))]
            if gs == firstB: queues[0].drain()
            if layer == 0 and gs == 7 and not self.rl1_done:
                print('relayout left at step 7:', rlq.cost())
                rlq.drain(); k.wait_lg0(); k("s_barrier")
            if gs == 16:
                for q in queues[:2]: q.drain()
                epi = [Item(x, at=14*16 + 4) for x in self.epilogue1(ACC[0], 0, 0, 0, hsc) + self.epilogue1(ACC[0] + 28, 0, 256, 0, hsc)]
                last = epi[-1]
                queues = [Queue(k, epi, 14), Queue(k, [])]
                if layer == 0: queues = [queues[0], queues[1], wdq]
                pub = False
            if epi and not pub and not len(queues[0]):
                queues[1].q += self.publish_items(lambda: last.tok, s(sHFs), lo, 14*gs + o.get('ha_pub', 10)); pub = True
                pubstep = gs
                queues[1].q.append(Item(fn=lambda: hbox.append(self.poll_issue(vP7, s(sHFp), lo)), at=o.get('ha_pi', 14*31 + 2)))
            fixed = [[] for _ in range(14)]
            if gs + 1 < 32:
                for Tt in range(7): fixed[2*(Tt // 2)].append(('W', gs+1, Tt))
            slot = 6
            while nxtA < 32 and self.aiss[nxtA] <= gs and slot <= 10 and (nxtA < 16 or gs >= firstB):
                fixed[slot].append(('A', nxtA, 0)); fixed[slot+2].append(('A', nxtA, 1)); nxtA += 1; slot += 4
            k.wait(self.at[(gs, 1)], self.wt[(gs, 6)])
            for i in range(14):
                Tt, mt = divmod(i, 2)
                d = ACC[ps] + 28*mt + 4*Tt
                k(f"v_mfma_f32_16x16x32_bf16 {v(d,4)}, {v(WF + 28*(gs&1) + 4*Tt, 4)}, {self.afrag(gs, mt)}, {'0' if st == 0 else v(d,4)}")
                for it in fixed[i]:
                    if it[0] == 'W': self.rdW(it[1], it[2])
                    else: self.ldA(it[1], it[2])
                cap = 2 - len(fixed[i]) - (1 if i == 13 else 0)
                for q in (queues[::-1] if ps else queues): cap = q.fill(cap, 14*gs + i)
            if gs == 15: self.stamp(f'g1a{layer}'); self.late = layer == 1
        print('layer', layer, 'left after G1B:', [q.cost() for q in queues], f'published in step {pubstep}' if pub else 'not published')
        queues[0].drain()
        if not pub: queues[1].q += self.publish_items(lambda: last.tok, s(sHFs), lo, 0)
        queues[1].drain()
        if layer == 0: wdq.drain(); self.wd_last = wd[-1].tok
        self.stamp(f'g1b{layer}')
        self.ht = {}
        ph = hbox[0] if hbox else self.poll_issue(vP7, s(sHFp), lo)
        epi = [Item(x) for x in self.epilogue1(ACC[1], 1, 0, 1, hsc) + self.epilogue1(ACC[1] + 28, 1, 256, 1, hsc)]
        q = Queue(k, epi, 12)
        total = q.cost()
        lead = o.get('epi_lead', 24); nld = o.get('epi_ld', 9)
        while total - q.cost() < lead:
            if q.fill(3) == 3: q.emit(q.q[0])
        self.poll_check(ph)
        self.stamp(f'hA_seen{layer}')
        self.nxtH = 0
        marks = [lead + (total - lead)*i // nld for i in range(nld)]
        while len(q):
            while marks and total - q.cost() >= marks[0]: marks.pop(0); self.ldH(0)
            if q.fill(3) == 3: q.emit(q.q[0])
        self.hB_tok = epi[-1].tok
        self.stamp(f'epiB{layer}')

    def g2_order(self):
        D = self.o.get('skew', 4)
        A = [(0, U, mt) for U in range(14) for mt in range(2)]
        B = sorted([(1, U, mt) for U in range(14) for mt in range(2)], key=lambda x: (x[1] + D*x[2], x[2]))
        return A + B
    def hreg(self, n):
        if n < 14: return ACC[0] + 4*n
        if n < 28: return WF + 4*(n - 14)
        if n < 42: return ACC[1] + 4*(n - 28)
        return ACC[0] + 4*(n - 42)
    def ldH(self, _=0):
        n = self.nxtH; self.nxtH += 1
        half, U, mt = self.g2_order()[n]
        self.ht[n] = self.k(f"buffer_load_dwordx4 {v(self.hreg(n),4)}, {v(vHld[half])}, {s(RW,4)}, {k4(U>>1)} offen offset:{(U&1)*2048 + mt*256} sc1")

    def red_write(self, A2):
        return [f"ds_write_b128 {v(vRw)}, {v(A2 + 16*mt + 4*nt, 4)} offset:{4352*mt + 64*nt}" for mt in range(2) for nt in range(4)]
    def red_read(self, P):
        return [f"ds_read_b128 {v(P + 8*w + 4*hf, 4)}, {v(vRr)} offset:{8704*w + 16*hf}" for w in range(4) for hf in range(2)]
    def red_sum(self, P, half, layer, X3, pk):
        L = []
        def add(d, x, y):
            if pk: L.extend(f"v_pk_add_f32 {v(d+e,2)}, {v(x+e,2)}, {v(y+e,2)}" for e in (0, 2, 4, 6))
            else: L.extend(f"v_add_f32 {v(d+e)}, {v(x+e)}, {v(y+e)}" for e in range(8))
        add(P, P, P+8); add(P+16, P+16, P+24)
        if layer == 1:
            L += self.unpack(P+8, X3); add(P, P, P+8)
        add(P, P, P+16)
        L += [f"v_cvt_pk_bf16_f32 {v(P+8+e)}, {v(P+2*e)}, {v(P+2*e+1)}" for e in range(4)]
        if layer == 0: L.append(f"buffer_store_dwordx4 {v(P+8,4)}, {v(vF2)}, {s(RW,4)}, {s(sFH) if half else 0} offen")
        else: L.append(f"buffer_store_dwordx4 {v(P+8,4)}, {v(vO)}, {s(RO,4)}, {k4(half)} offen{self.o.get('ost', '')}")
        return L

    def gemm2(self, layer):
        k = self.k; o = self.o
        lo = 1024*layer
        AC2 = [AR, WF]
        X3 = [TMP, TMP + 4]
        order = self.g2_order()
        LA = o.get('g2la', 20)
        xt = {}
        def ldX(h): xt[h] = k(f"buffer_load_dwordx4 {v(X3[h],4)}, {v(vF2)}, {s(RW,4)}, {s(sFH) if h else 0} offen sc1")
        side = Queue(k, self.publish_items(lambda: self.hB_tok, s(sHFs), lo + 512, o.get('hb_pub', 24))
                     + self.poll_items(vP7, s(sHFp), lo + 512, o.get('hb_pi', 44), o.get('hb_pc', 70)))
        if layer == 0: k.wait(self.wd_last)
        fbox = []; seenB = False; wB = self.red_write(AC2[1]); doneB = 0
        def next_load():
            self.ldH()
            if layer == 1 and self.nxtH == 36: ldX(0)
            if layer == 1 and self.nxtH == 56:
                ldX(1)
                if o.get('wbl2', 0): self.writeback()
        for n in range(56):
            half, U, mt = order[n]
            if n == 28:
                self.stamp(f'g2a{layer}')
                side.drain(); seenB = True
                t = 4*28
                sp = o.get('ra_sp', 4)
                L = [Item(x, at=t + 3 + sp*i) for i, x in enumerate(self.red_write(AC2[0]))]
                L += [Item(fn=lambda: k.wait_lg0(), at=t + 8*sp + 3), Item(fn=lambda: k("s_barrier"))]
                L += [Item(x) for x in self.red_read(AR)]
                L += [Item(fn=lambda: k.wait_lg0(), at=t + 8*sp + o.get('ra_rd', 16)), Item(fn=lambda: k("s_barrier"))]
                if layer == 1: L += [Item(fn=lambda: k.wait(xt[0]))]
                L += [Item(x) for x in self.red_sum(AR, 0, layer, X3[0], 0)]
                fA = L[-1]
                if layer == 0:
                    L += self.publish_items(lambda: fA.tok, s(sFFs), 0, o.get('fa_pub', t + 90))
                    L.append(Item(fn=lambda: fbox.append(self.poll_issue(vP7, s(sFFp), 0)), at=o.get('fa_pi', 8*28 - 4)))
                if o.get('nored') and layer == 1: L = []
                side = Queue(k, L)
                last0 = max(i for i in range(28, 56) if order[i][2] == 0)
                late = Queue(k, [Item(x, at=4*(last0 + 1) + 3 + sp*i) for i, x in enumerate(wB[:4])])
            if not len(side): seenB = True
            while n not in self.ht: next_load()
            if n % 2 == 0:
                while seenB and n + 1 not in self.ht: next_load()
                k.wait(self.ht.get(n + 1, self.ht[n]))
            else: k.wait(self.ht[n])
            for nt in range(4):
                d = AC2[half] + 16*mt + 4*nt
                k(f"v_mfma_f32_16x16x32_bf16 {v(d,4)}, {a((4*U+nt)*4,4)}, {v(self.hreg(n),4)}, {'0' if U == 0 else v(d,4)}")
                cap = 2 - (1 if (nt == 3 and n % 2) else 0)
                if (nt == 0 or (nt == 2 and self.nxtH < n + 1 + o.get('g2min', 6))) and self.nxtH < min(56 if seenB else 28, n + 1 + LA) and (self.nxtH < 42 or self.nxtH - 42 < n):
                    next_load(); cap -= 1
                cap = side.fill(cap, 4*n + nt)
                if n >= 28 and all(x.i is not None or x.at > 200 for x in side.q[:1]) and not any('ds_' in (x.text or '') or (x.fn and x.at <= t + 8*sp + 40) for x in side.q):
                    late.fill(cap, 4*n + nt)
        print('layer', layer, 'left after G2B:', side.cost(), late.cost())
        side.drain()
        wB = [x.text for x in late.q] + wB[4:]
        self.stamp(f'g2b{layer}')
        R = ACC[1]
        if layer == 0:
            self.poll_check(fbox[0])
            self.stamp('fA_seen')
            fld = k(f"buffer_load_dwordx4 {v(R,4)}, {v(vL16)}, {s(RW,4)}, {s(sFR[0])} offen sc1")
        for x in wB: k(x)
        if layer == 0: self.run(self.unpack(R + 24, YS[0]))
        k.wait_lg0(); k("s_barrier")
        for x in self.red_read(ACC[0]): k(x)
        if layer == 0:
            k.wait(fld)
            sts, rest = self.rowop(0, R, True)
            self.stamp('rowA')
        k.wait_lg0()
        if layer == 1: k.wait(xt[1])
        fB = self.run(self.red_sum(ACC[0], 1, layer, X3[1], 1))[-1].tok
        self.stamp(f'fB_st{layer}')
        if layer == 0:
            self.gemm1_start(1)
            self.publish(sts, s(sAFs), 1024)
            self.stamp('aA_pub')
            self.run(rest)
            self.publish(fB, s(sFFs), 512)

    def writeback(self):
        k = self.k
        a_, b_ = k.label(), k.label()
        k(f"s_or_b32 {s(T[2])}, {s(sJ)}, {s(sW)}\ns_cmp_lg_u32 {s(T[2])}, 0\ns_cbranch_scc1 {a_}")
        k("buffer_wbl2 sc1")
        k(f"s_branch {b_}"); k.place(a_)
        k.ins.append(I(f"buffer_load_dword {v(vPT)}, {v(vL0)}, {s(RW,4)}, 0 offen"))
        k.place(b_)

    def rowop(self, h, R, split=False):
        L = self.unpack(R + 8, R)
        L += [f"v_pk_add_f32 {v(XS[h]+e,2)}, {v(XS[h]+e,2)}, {v(R+8+e,2)}" for e in (0, 2, 4, 6)]
        L += self.stats([XS[h]], [36], R + 16)
        L += self.affine(R + 8, XS[h], 36, R + 20)
        G = self.gate_norm([h], {h: R + 8}, 1, R + 24)
        rest = []
        if split: G, rest = G[8:-5], G[-5:]
        its = self.run(L + G, 16)
        tok = [x.tok for x in its if 'store' in x.text][-1]
        return (tok, rest) if split else tok

    def build(self):
        k = self.k; o = self.o
        self.prologue()
        self.front_addr()
        self.touch_first()
        self.touch_global_flags()
        if o.get('tch_f', 0) == 3: self.touch_f()
        self.w1_addr()
        self.w1_dma(o.get('n0', 2))
        self.wd_job_addr()
        self.phase0()
        self.w1_dma(o.get('n1', 1))
        self.conv()
        self.y_in()
        for layer in range(2):
            self.gemm1(layer)
            self.gemm2(layer)
        if o.get('stamps'):
            self.stamp('end')
            k(f"""s_lshl_b32 {s(T[0])}, s2, 2
                  s_add_u32 {s(T[0])}, {s(T[0])}, {s(sW)}
                  s_lshl_b32 {s(T[0])}, {s(T[0])}, 8
                  s_add_u32 {s(T[0])}, {s(T[0])}, {WS_DBG}
                  v_lshrrev_b32 v5, 2, {v(vL16)}
                  buffer_store_dword {v(vST[0])}, v5, {s(RW,4)}, {s(T[0])} offen
                  s_add_u32 {s(T[0])}, {s(T[0])}, 0x40000
                  buffer_store_dword {v(vST[1])}, v5, {s(RW,4)}, {s(T[0])} offen""")
        if o.get('delay'):
            k(f"""s_mov_b32 {s(T[0])}, {o['delay']}
                  s_memrealtime {s(T[2],2)}
                  s_waitcnt lgkmcnt(0)""")
            k.place("L_DELAY")
            k(f"""s_memrealtime {s(T[4],2)}
                  s_waitcnt lgkmcnt(0)
                  s_sub_u32 {s(T[4])}, {s(T[4])}, {s(T[2])}
                  s_cmp_lt_u32 {s(T[4])}, {s(T[0])}
                  s_cbranch_scc1 L_DELAY""")
        if o.get('diag'):
            self.stamp('end')
            k(f"""v_sub_u32 v5, {v(vST[1])}, {v(vST[0])}
                  s_nop 1
                  v_readfirstlane_b32 {s(T[0])}, v5
                  s_mul_i32 {s(T[0])}, {s(T[0])}, 8
                  s_memrealtime {s(T[2],2)}
                  s_waitcnt lgkmcnt(0)""")
            k.place("L_DIAG")
            k(f"""s_memrealtime {s(T[4],2)}
                  s_waitcnt lgkmcnt(0)
                  s_sub_u32 {s(T[4])}, {s(T[4])}, {s(T[2])}
                  s_cmp_lt_u32 {s(T[4])}, {s(T[0])}
                  s_cbranch_scc1 L_DIAG""")
        k.place("L_END")
        k("s_endpgm")
        body = k.text()
        for t in self.tail:
            body += "".join((x + "\n") if x.endswith(':') else ("    " + x + "\n") for x in t)
        body += "L_LAST:\n"
        return body

def file_text(opt):
    g = Gen(opt)
    body = g.build()
    ref = open(os.path.join(os.path.dirname(os.path.abspath(__file__)), '..', 'cdna_kernels', NAME + '.s.ref')).read()
    head = ref[:ref.index('; Override launch geometry')]
    txt = head + f"""; @launch grid=(256,1,1) block=(256,1,1) lds={LDS_SIZE}
.amdgcn_target "amdgcn-amd-amdhsa--gfx950"
.text
.globl {NAME}_kernel
.p2align 8
.type {NAME}_kernel,@function
{NAME}_kernel:
{body}.section .rodata,"a"
.p2align 6
.amdhsa_kernel {NAME}_kernel
  .amdhsa_next_free_vgpr 512
  .amdhsa_next_free_sgpr 102
  .amdhsa_accum_offset 256
  .amdhsa_group_segment_fixed_size 0
  .amdhsa_kernarg_size 104
  .amdhsa_user_sgpr_count 2
  .amdhsa_user_sgpr_kernarg_segment_ptr 1
  .amdhsa_system_sgpr_workgroup_id_x 1
.end_amdhsa_kernel
"""
    return txt, g

if __name__ == '__main__':
    import json
    opt = {}; out = None
    for x in sys.argv[1:]:
        if '=' in x:
            kk, vv = x.split('=')
            opt[kk] = vv.split(',') if kk in ('only', 'diag') else (' ' + vv.replace('+', ' ') if kk in ('ost', 'wdm') else int(vv, 0))
        else: out = x
    txt, g = file_text(opt)
    open(out, 'w').write(txt)
    json.dump(g.stamps, open(out + '.stamps.json', 'w'))
    print('instructions', len(g.k.ins), 'nops added', g.k.nops_added, 'stamps', len(g.stamps))
```

```python
import sys, os
sys.path.insert(0, os.path.dirname(os.path.abspath(__file__)))
from dsl import *

NAME = 'interleave_layers__ssm_conv_h3__swiglu_ffn__prompt'

WS_XCCF = 0x1000
WS_KVF  = 0x10000
WS_AF   = 0x11000
WS_HF   = 0x19000
WS_FF   = 0x21000
WS_YF   = 0x30000
WS_JF   = 0x31000
WS_KVT  = 0x100000
WS_A    = WS_KVT
WS_YP   = 0x300000
WS_H    = 0x700000
WS_WDT  = 0xE00000
WS_DBG  = 0x1000000
WS_SIZE = 0x1100000
H_X, H_HALF, H_RB = 917504, 458752, 114688

LDS_SIZE = 163840
SCR   = 114688
L_K   = SCR
L_V   = L_K + 9216
L_H   = L_V + 8192
H_CP  = 4096 + 128
H_E   = lambda ch: L_H + ch * 2 * H_CP + 64
H_O   = lambda ch: L_H + ch * 2 * H_CP + H_CP + 128
L_U   = L_H + 4 * H_CP + 128
U_S   = 4608
assert L_U + 2 * U_S <= LDS_SIZE
L_CRED = 57344
L_YT  = L_U
L_JOB = 114688 - 16384
L_RED = SCR

sX, sJ, sW, sN, sEXP, sSPIN, sXCC, sMODE = 4, 5, 6, 7, 8, 9, 10, 11
T = list(range(12, 24))
sC2 = 24
sHALF = 26
sW1S, sW1L = 27, 3
sD = 28
sDP = 34
RK, RV, RH, RQ, RG, RU, RD, RO, RW, RS = 44, 48, 52, 56, 60, 64, 68, 72, 76, 80
sK4 = 83
def k4(i): return '0' if i == 0 else s(sK4 + i)
sHH = 91
sAFp, sAFs, sHFp, sHFs, sFFp, sFFs = 94, 95, 96, 97, 98, 99
sFR = [100, 101]
sFH = 55
sROT = [0, 1, 34, 35, 54, 80, 81]
sDEL = [82, 83]
sST = (32, 92)
sKVFp, sKVs, sUm0, sYst, sYFs, sYFp, sYld, sJF, sJL, sJFp = 44, 45, 46, 47, 48, 49, 50, 51, 52, 53

vL, vL16, vL0, vNON, vPT = 1, 2, 3, 4, 5
vAld, vHld = [6, 7], [8, 9]
vHm, vHt, vAst, vF2, vO, vRw, vRr, vP31, vP7, vW1 = 10, 11, 12, 13, 14, 15, 16, 17, 18, 19
vST = (20, 21)
vWd = [230, 231]
ACC = [22, 78]
WF, AR, TMP = 134, 190, 222
YS, XS = [232, 236], [240, 248]
LOG2E = 1.4426950408889634

def f32(x):
    import struct
    return '0x%08x' % struct.unpack('<I', struct.pack('<f', x))[0]

def flist(c):
    if c < 4: return [4*c + e for e in range(4)] + [16 + 4*c + e for e in range(4)]
    q = c - 4; X = [44, 46, 54][q]
    return [32 + 4*q + e for e in range(4)] + [48 + 2*q, 49 + 2*q, X, X + 1]

class Gen:
    def __init__(self, opt):
        self.o = opt
        self.k = K()
        self.tail = []
        self.stamps = []
        self.w1_next = 0
        self.late = False
        self.w1_tok = {}

    def stamp(self, name):
        dg = self.o.get('diag')
        if dg and name in dg:
            k = self.k
            k(f"s_memrealtime {s(sST[0],2)}"); k.wait_lg0()
            k(f"v_mov_b32 {v(vST[dg.index(name)])}, {s(sST[0])}")
        if not self.o.get('stamps'): return
        only = self.o.get('only')
        if only and name not in only: return
        k = self.k; n = len(self.stamps)
        k(f"s_memrealtime {s(sST[0],2)}\ns_memtime {s(sST[1],2)}"); k.wait_lg0()
        k(f"v_writelane_b32 {v(vST[0])}, {s(sST[0])}, {n}\nv_writelane_b32 {v(vST[1])}, {s(sST[1])}, {n}")
        self.stamps.append(name)

    def srd(self, base, size):
        self.k(f"s_mov_b32 {s(base+2)}, {size}\ns_mov_b32 {s(base+3)}, 0x20000")

    def poll_issue(self, vaddr, soff, off=0, vt=vPT):
        txt = f"buffer_load_dword {v(vt)}, {v(vaddr)}, {s(RW,4)}, {soff} offen offset:{off} sc1"
        return (self.k(txt), txt, vt)

    def poll_steps(self, get, local=True):
        k = self.k
        slow, back, ok = k.label(), k.label(), k.label()
        def s1(): k.wait(get()[0])
        def s2(): k(f"v_cmp_ne_u32 vcc, {s(sEXP if local else sN)}, {v(get()[2])}")
        def s3():
            if self.o.get('nopoll') and self.late: return
            k(f"s_cbranch_vccnz {slow}"); k.place(back)
            _, txt, vt = get()
            t = [f"{slow}:", txt, "s_waitcnt vmcnt(0)", f"v_cmp_ne_u32 vcc, {s(sN)}, {v(vt)}", f"s_cbranch_vccz {ok}",
                 f"s_sub_u32 {s(sSPIN)}, {s(sSPIN)}, 1", f"s_cbranch_scc0 {slow}", "s_branch L_END", f"{ok}:"]
            if local: t += [f"s_cmp_eq_u32 {s(sMODE)}, 0", f"s_cbranch_scc1 {back}", "buffer_inv sc1", "s_waitcnt vmcnt(0)"]
            self.tail.append(t + [f"s_branch {back}"])
        return [s1, s2, s3]

    def poll_check(self, h, local=True):
        for f in self.poll_steps(lambda: h, local): f()
    def poll(self, vaddr, soff, off=0, local=True):
        self.poll_check(self.poll_issue(vaddr, soff, off), local)
    def poll_items(self, vaddr, soff, off, at_issue, at_check):
        box = []
        it = [Item(fn=lambda: box.append(self.poll_issue(vaddr, soff, off)), at=at_issue)]
        return it + [Item(fn=f, at=at_check) for f in self.poll_steps(lambda: box[0])]

    def flag_store(self, soff, off=0, local=True):
        k = self.k
        txt = f"buffer_store_dword {v(vNON)}, {v(vL0)}, {s(RW,4)}, {soff} offen offset:{off}"
        if not local: return k(txt + " sc1")
        slow, back = k.label(), k.label()
        k(f"s_cmp_lg_u32 {s(sMODE)}, 0\ns_cbranch_scc1 {slow}")
        r = k(txt); k.place(back)
        self.tail.append([f"{slow}:", "s_waitcnt vmcnt(0)", "buffer_wbl2 sc1", "s_waitcnt vmcnt(0)", txt + " sc1", f"s_branch {back}"])
        return r
    def publish(self, tok, soff, off=0, local=True):
        self.k.wait(tok)
        return self.flag_store(soff, off, local)
    def publish_items(self, get, soff, off, at):
        return [Item(fn=lambda: self.k.wait(get()), at=at), Item(fn=lambda: self.flag_store(soff, off), cost=2, at=at)]

    def dma(self, vaddr, srd, soff, m0, extra=''):
        self.k(m0)
        return self.k(f"buffer_load_dwordx4 {v(vaddr)}, {s(srd,4)}, {soff} offen {extra} lds".replace('  ', ' '))

    def prologue(self):
        k = self.k
        k("s_cmp_ge_u32 s2, 256\ns_cbranch_scc1 L_END")
        if self.o.get('stamps'): k(f"v_mov_b32 {v(vST[0])}, 0\nv_mov_b32 {v(vST[1])}, 0")
        self.stamp('entry')
        k(f"s_lshr_b32 {s(sJ)}, s2, 3")
        self.code_prefetch()
        for r, off in ((RK, 8), (RV, 16), (RW, 96), (RH, 32), (RS, 24), (RQ, 0), (RG, 56), (RU, 64), (RD, 72), (RO, 80)):
            k(f"s_load_dwordx2 {s(r,2)}, s[0:1], {off}")
        k(f"s_load_dwordx2 {s(sDP,2)}, s[0:1], 40")
        k(f"""s_and_b32 {s(sX)}, s2, 7
              v_lshrrev_b32 v5, 6, v0
              v_and_b32 {v(vL)}, 63, v0
              v_readfirstlane_b32 {s(sW)}, v5
              v_lshlrev_b32 {v(vL16)}, 4, {v(vL)}""")
        for r, size in ((RK, 2097152), (RV, 2097152), (RW, WS_SIZE), (RH, 2097152), (RS, 4096)): self.srd(r, size)

        k(f"""v_lshrrev_b32 v24, 3, {v(vL)}
              v_and_b32 v25, 7, {v(vL)}
              v_and_b32 v26, 2, v24
              v_xor_b32 v25, v25, v26
              s_and_b32 {s(T[0])}, {s(sW)}, 1
              s_lshl_b32 {s(T[0])}, {s(T[0])}, 2
              v_xor_b32 v25, {s(T[0])}, v25
              v_lshlrev_b32 v25, 4, v25
              v_lshl_add_u32 v25, v24, 10, v25
              s_lshl_b32 {s(T[0])}, {s(sJ)}, 16
              s_lshl_b32 {s(T[1])}, {s(sW)}, 14
              s_lshl_b32 {s(T[2])}, {s(sX)}, 7
              s_add_u32 {s(T[0])}, {s(T[0])}, {s(T[1])}
              s_add_u32 {s(T[0])}, {s(T[0])}, {s(T[2])}
              v_add_u32 v25, {s(T[0])}, v25
              v_xor_b32 v26, 64, v25
              v_subrev_u32 v26, 8192, v26
              s_lshl_b32 {s(T[1])}, {s(sW)}, 11
              s_add_u32 {s(T[2])}, {s(T[1])}, {L_K + 1024}
              s_add_u32 {s(T[3])}, {s(T[1])}, {L_V}
              s_movk_i32 {s(T[4])}, 8192
              v_and_b32 v27, 15, {v(vL)}
              s_lshl_b32 {s(T[0])}, {s(sX)}, 6
              s_lshl_b32 {s(T[1])}, {s(sW)}, 4
              s_add_u32 {s(T[1])}, {s(T[0])}, {s(T[1])}
              v_add_u32 v27, {s(T[1])}, v27
              v_lshlrev_b32 v28, 3, v27
              s_lshl_b32 {s(T[1])}, {s(sJ)}, 1
              s_add_u32 {s(T[0])}, {s(T[0])}, {s(T[1])}
              s_lshl_b32 {s(T[5])}, {s(T[0])}, 1
              s_lshl_b32 {s(T[6])}, {s(T[0])}, 12
              s_add_u32 {s(T[7])}, {s(T[6])}, 4096
              v_lshlrev_b32 v29, 4, v0""")
        k.wait_lg0()
        self.stamp('start')
        k(f"s_load_dword {s(sN)}, {s(RW,2)}, 0")
        k(f"s_load_dword {s(sD)}, {s(sDP,2)}, {s(T[5])}")
        self.dma(25, RK, '0', f"s_mov_b32 m0, {s(T[2])}")
        self.dma(25, RV, '0', f"s_mov_b32 m0, {s(T[3])}")
        self.dma(25, RK, s(T[4]), f"s_add_u32 m0, {s(T[2])}, 1024")
        self.dma(25, RV, s(T[4]), f"s_add_u32 m0, {s(T[3])}, 1024")
        skip = k.label()
        k(f"s_cmp_lg_u32 {s(sW)}, 0\ns_cbranch_scc1 {skip}\ns_mov_b32 m0, {L_K}\ns_nop 0")
        k.ins.append(I(f"buffer_load_dwordx4 v26, {s(RK,4)}, 0 offen lds"))
        k.place(skip)
        self.sh_tok = k(f"buffer_load_dwordx2 v[30:31], v28, {s(RS,4)}, 0 offen")
        k(f"buffer_load_dwordx4 v[32:35], v29, {s(RH,4)}, {s(T[6])} offen")
        k(f"buffer_load_dwordx4 v[40:43], v29, {s(RH,4)}, {s(T[7])} offen")
        k(f"buffer_load_dwordx4 v[36:39], v29, {s(RH,4)}, {s(T[6])} offen offset:2")
        self.h_tok = k(f"buffer_load_dwordx4 v[44:47], v29, {s(RH,4)}, {s(T[7])} offen offset:2")
        k(f"""s_getreg_b32 {s(sXCC)}, hwreg(HW_REG_XCC_ID, 0, 4)
              v_cmp_eq_u32 vcc, 0, {v(vL)}
              v_mov_b32 v5, 0x80000000
              s_lshl_b32 {s(T[1])}, {s(sX)}, 5
              s_add_u32 {s(T[1])}, {s(T[1])}, {s(sJ)}
              s_mul_i32 {s(T[1])}, {s(T[1])}, {self.o.get('xs', 4)}
              s_add_u32 {s(T[1])}, {s(T[1])}, {WS_XCCF}
              s_cmp_eq_u32 {s(sW)}, 2
              s_cselect_b32 {s(T[1])}, {s(T[1])}, 0x40000000
              v_cndmask_b32 {v(vL0)}, v5, 0, vcc""")
        k.wait_lg0()
        k(f"""s_mul_i32 {s(sN)}, {s(sN)}, 1664525
              s_add_u32 {s(sN)}, {s(sN)}, 1013904223
              s_xor_b32 {s(T[0])}, {s(sN)}, {s(sXCC)}
              v_mov_b32 v5, {s(T[0])}
              v_mov_b32 {v(vNON)}, {s(sN)}""")
        k(f"buffer_store_dword v5, {v(vL0)}, {s(RW,4)}, {s(T[1])} offen sc1")
        for r, size in ((RQ, 2097152), (RG, 1835008), (RU, 1835008), (RD, 1835008), (RO, 2097152)): self.srd(r, size)
        k(f"""s_lshr_b32 {s(sD+2)}, {s(sD)}, 16
              s_and_b32 {s(sD+3)}, {s(sD)}, 0xffff0000
              s_lshl_b32 {s(sD+1)}, {s(sD)}, 16
              s_and_b32 {s(sD)}, {s(sD)}, 0xffff
              s_mov_b32 {s(sC2)}, {f32(LOG2E*LOG2E)}
              s_mov_b32 {s(sC2+1)}, {f32(LOG2E*LOG2E)}
              s_mov_b32 {s(sSPIN)}, {self.o.get('spin', 400000)}
              s_mov_b32 {s(sHALF)}, 0x20000
              s_mov_b32 {s(sHH)}, {H_HALF}
              v_and_b32 {v(vP31)}, 31, {v(vL)}
              v_lshlrev_b32 {v(vP31)}, 2, {v(vP31)}
              v_and_b32 {v(vP7)}, 7, {v(vL)}
              v_lshlrev_b32 {v(vP7)}, 2, {v(vP7)}""")
        for i in range(1, 8): k(f"s_movk_i32 {s(sK4+i)}, {4096*i}")

    def code_prefetch(self):
        if not self.o.get('cpf', 1): return
        k = self.k
        k(f"s_getpc_b64 {s(T[2],2)}")
        k.place("L_PC")
        k(f"""s_mul_i32 {s(T[4])}, {s(sJ)}, ((L_LAST-L_PC+4095)/4096)*128
              v_min_u32 v5, (L_LAST-L_PC+4095)/4096-1, v0
              v_lshl_add_u32 v5, v5, 7, {s(T[4])}
              v_min_u32 v5, L_LAST-L_PC-4, v5
              global_load_dword v219, v5, {s(T[2],2)}""")

    def tlb_touch(self):
        if not self.o.get('tlb', 0): return
        k = self.k
        k(f"v_and_b32 v5, 15, {v(vL)}\nv_lshlrev_b32 v5, 20, v5")
        k(f"buffer_load_dword v200, v5, {s(RW,4)}, 0 offen offset:512")
        k(f"buffer_load_dword v201, v5, {s(RO,4)}, 0 offen")
        k(f"buffer_load_dword v196, v5, {s(RG,4)}, 0 offen")
        k(f"buffer_load_dword v197, v5, {s(RU,4)}, 0 offen")
        k(f"buffer_load_dword v198, v5, {s(RQ,4)}, 0 offen")

    def touch_first(self):
        k = self.k
        if self.o.get('tch_kv', 1):
            k(f"v_and_b32 v5, 15, {v(vL)}\nv_lshlrev_b32 v5, 7, v5")
            k(f"buffer_load_dword v220, v5, {s(RW,4)}, {s(sKVs)} offen sc1")
        if self.o.get('tch_fl', 1):
            k(f"""v_lshrrev_b32 v22, 4, {v(vL)}
                  v_lshlrev_b32 v22, 15, v22
                  v_and_b32 v5, 15, {v(vL)}
                  v_lshl_add_u32 v22, v5, 7, v22
                  s_lshl_b32 {s(T[0])}, {s(sX)}, 12
                  s_add_u32 {s(T[0])}, {s(T[0])}, {WS_AF}
                  v_add_u32 v22, {s(T[0])}, v22
                  v_and_b32 v5, 3, v5
                  s_lshl_b32 {s(T[0])}, {s(sX)}, 9
                  s_add_u32 {s(T[0])}, {s(T[0])}, {WS_KVF}
                  v_lshl_add_u32 v5, v5, 7, {s(T[0])}
                  v_cmp_gt_u32 vcc, 48, {v(vL)}
                  s_cmp_eq_u32 {s(sW)}, 3
                  s_cselect_b32 {s(T[0])}, 0, 0x40000000
                  v_cndmask_b32 v5, v5, v22, vcc
                  buffer_load_dword v221, v5, {s(RW,4)}, {s(T[0])} offen sc1""")
    def touch_global_flags(self):
        if not self.o.get('tch_g', 1): return
        k = self.k
        k(f"""v_lshlrev_b32 v5, 7, {v(vL)}
              s_cmp_eq_u32 {s(sW)}, 1
              s_cselect_b32 {s(T[0])}, {s(sJ)}, 31
              s_cmp_eq_u32 {s(T[0])}, 0
              s_cselect_b32 {s(T[0])}, 0, 0x40000000
              s_add_u32 {s(T[0])}, {s(T[0])}, {WS_YF}
              buffer_load_dword v202, v5, {s(RW,4)}, {s(T[0])} offen sc1""")
    def touch_f(self):
        k = self.k
        k(f"""v_and_b32 v5, 7, {v(vL)}
              v_lshlrev_b32 v5, 7, v5
              v_bfe_u32 v22, {v(vL)}, 3, 1
              v_lshl_add_u32 v5, v22, 17, v5
              buffer_load_dword v199, v5, {s(RW,4)}, {s(sFR[0])} offen sc1""")

    def q_load(self):
        k = self.k
        k(f"""s_lshl_b32 {s(T[0])}, {s(sX)}, 8
              s_lshl_b32 {s(T[1])}, {s(sJ)}, 3
              s_add_u32 {s(T[0])}, {s(T[0])}, {s(T[1])}
              s_add_u32 {s(T[0])}, {s(T[0])}, {s(sW)}
              s_lshl_b32 {s(T[0])}, {s(T[0])}, 10
              s_add_u32 {s(T[1])}, {s(T[0])}, 4096""")
        k(f"buffer_load_dwordx4 v[204:207], {v(vL16)}, {s(RQ,4)}, {s(T[0])} offen")
        self.q_tok = k(f"buffer_load_dwordx4 v[208:211], {v(vL16)}, {s(RQ,4)}, {s(T[1])} offen")

    def persistent(self):
        k = self.k
        k(f"""s_lshl_b32 {s(T[0])}, {s(sJ)}, 2
              s_add_u32 {s(T[0])}, {s(T[0])}, {s(sW)}
              s_lshl_b32 {s(T[8])}, {s(sX)}, 18
              s_lshl_b32 {s(T[9])}, {s(sX)}, 12
              s_lshr_b32 {s(T[10])}, {s(sJ)}, 3
              s_and_b32 {s(T[11])}, {s(sJ)}, 7
              s_lshl_b32 {s(T[1])}, {s(T[0])}, 2
              s_add_u32 {s(T[1])}, {s(T[1])}, {s(T[9])}
              s_add_u32 {s(sAFs)}, {s(T[1])}, {WS_AF}
              s_lshl_b32 {s(T[1])}, {s(sW)}, 7
              s_add_u32 {s(T[1])}, {s(T[1])}, {s(T[9])}
              s_add_u32 {s(sAFp)}, {s(T[1])}, {WS_AF}
              s_lshl_b32 {s(T[2])}, {s(sJ)}, 2
              s_add_u32 {s(T[1])}, {s(T[1])}, {s(T[2])}
              s_add_u32 {s(sHFs)}, {s(T[1])}, {WS_HF}
              s_lshl_b32 {s(T[1])}, {s(T[10])}, 7
              s_lshl_b32 {s(T[2])}, {s(sW)}, 5
              s_add_u32 {s(T[1])}, {s(T[1])}, {s(T[2])}
              s_add_u32 {s(T[1])}, {s(T[1])}, {s(T[9])}
              s_add_u32 {s(sHFp)}, {s(T[1])}, {WS_HF}
              s_lshl_b32 {s(T[2])}, {s(T[11])}, 2
              s_add_u32 {s(T[1])}, {s(T[1])}, {s(T[2])}
              s_add_u32 {s(sFFs)}, {s(T[1])}, {WS_FF}
              s_lshr_b32 {s(T[1])}, {s(sJ)}, 1
              s_lshl_b32 {s(T[1])}, {s(T[1])}, 5
              s_add_u32 {s(T[1])}, {s(T[1])}, {s(T[9])}
              s_add_u32 {s(sFFp)}, {s(T[1])}, {WS_FF}
              s_lshr_b32 {s(T[1])}, {s(T[0])}, 5
              s_lshl_b32 {s(T[1])}, {s(T[1])}, 15
              s_bfe_u32 {s(T[2])}, {s(T[0])}, 0x10004
              s_lshl_b32 {s(T[2])}, {s(T[2])}, 10
              s_and_b32 {s(T[3])}, {s(T[0])}, 15
              s_lshl_b32 {s(T[3])}, {s(T[3])}, 4
              s_add_u32 {s(T[1])}, {s(T[1])}, {s(T[2])}
              s_add_u32 {s(T[1])}, {s(T[1])}, {s(T[3])}
              s_add_u32 {s(T[1])}, {s(T[1])}, {s(T[8])}
              s_add_u32 {s(T[1])}, {s(T[1])}, {WS_A}
              v_lshrrev_b32 v5, 2, {v(vL)}
              v_lshlrev_b32 v5, 11, v5
              v_and_b32 {v(vAst)}, 3, {v(vL)}
              v_lshl_add_u32 {v(vAst)}, {v(vAst)}, 8, v5
              v_add_u32 {v(vAst)}, {s(T[1])}, {v(vAst)}
              s_lshl_b32 {s(T[1])}, {s(sW)}, 15
              s_add_u32 {s(T[1])}, {s(T[1])}, {s(T[8])}
              s_add_u32 {s(T[1])}, {s(T[1])}, {WS_A}
              v_add_u32 {v(vAld[0])}, {s(T[1])}, {v(vL16)}
              v_add_u32 {v(vAld[1])}, 0x20000, {v(vAld[0])}
              v_add_u32 {v(vW1)}, 57344, {v(vL16)}
              v_lshrrev_b32 v5, 4, {v(vL)}
              v_and_b32 v23, 15, {v(vL)}
              v_lshlrev_b32 v22, 9, v5
              v_lshl_add_u32 v22, v23, 4, v22
              s_mul_i32 {s(T[4])}, {s(sX)}, {H_X}
              s_add_u32 {s(T[4])}, {s(T[4])}, {WS_H}
              s_mul_i32 {s(T[1])}, {s(sW)}, {H_RB}
              s_mul_i32 {s(T[2])}, {s(sJ)}, 3584
              s_add_u32 {s(T[1])}, {s(T[1])}, {s(T[2])}
              s_add_u32 {s(T[1])}, {s(T[1])}, {s(T[4])}
              v_add_u32 {v(vHm)}, {s(T[1])}, v22
              s_mul_i32 {s(T[1])}, {s(T[10])}, {H_RB}
              s_mul_i32 {s(T[2])}, {s(sW)}, 28672
              s_add_u32 {s(T[1])}, {s(T[1])}, {s(T[2])}
              s_add_u32 {s(T[1])}, {s(T[1])}, {s(T[4])}
              v_add_u32 {v(vHld[0])}, {s(T[1])}, v22
              v_add_u32 {v(vHld[1])}, {H_HALF}, {v(vHld[0])}
              v_cmp_gt_u32 vcc, 48, {v(vL)}
              v_add_u32 {v(vHt)}, 2048, {v(vHm)}
              v_mov_b32 v22, 0x80000000
              v_mul_u32_u24 {v(vRw)}, 272, v23
              v_cndmask_b32 {v(vHt)}, v22, {v(vHt)}, vcc
              v_lshl_add_u32 {v(vRw)}, v5, 4, {v(vRw)}
              s_mul_i32 {s(T[1])}, {s(sW)}, 8704
              s_add_u32 {s(T[1])}, {s(T[1])}, {L_RED}
              v_add_u32 {v(vRw)}, {s(T[1])}, {v(vRw)}
              v_lshrrev_b32 v5, 3, {v(vL)}
              v_mul_u32_u24 {v(vRr)}, 272, v5
              v_lshl_add_u32 {v(vRr)}, {v(vP7)}, 3, {v(vRr)}
              s_mul_i32 {s(T[1])}, {s(sW)}, {8*272}
              s_add_u32 {s(T[1])}, {s(T[1])}, {L_RED}
              v_add_u32 {v(vRr)}, {s(T[1])}, {v(vRr)}
              s_lshl_b32 {s(T[1])}, {s(T[10])}, 5
              s_lshl_b32 {s(T[2])}, {s(sW)}, 3
              s_add_u32 {s(T[1])}, {s(T[1])}, {s(T[2])}
              v_add_u32 v5, {s(T[1])}, v5
              s_lshl_b32 {s(T[2])}, {s(T[11])}, 7
              s_add_u32 {s(T[2])}, {s(T[2])}, {s(T[8])}
              v_lshl_add_u32 v22, {v(vP7)}, 2, {s(T[2])}
              s_lshl_b32 {s(T[1])}, {s(T[11])}, 7
              s_lshl_b32 {s(T[2])}, {s(sX)}, 10
              s_add_u32 {s(T[1])}, {s(T[1])}, {s(T[2])}
              s_add_u32 {s(T[1])}, {s(T[1])}, {WS_YP}
              v_lshl_add_u32 {v(vF2)}, {v(vP7)}, 2, {s(T[1])}
              v_lshl_add_u32 {v(vF2)}, v5, 13, {v(vF2)}
              s_mov_b32 {s(sFH)}, 0x100000
              v_lshrrev_b32 v23, 2, v5
              v_and_b32 v5, 3, v5
              v_lshl_add_u32 v5, v23, 3, v5
              v_lshl_add_u32 {v(vO)}, v5, 10, v22""")

    W1V = 212
    def w1_addr(self):
        k = self.k; vb = self.W1V; rot = self.o.get('rot', 1)
        k(f"""s_mul_i32 {s(T[0])}, {s(sJ)}, 112
              s_movk_i32 {s(T[1])}, 9363
              s_movk_i32 {s(T[2])}, {3584 - 7*16}
              s_mul_i32 {s(sW1S)}, {s(sW)}, 229376
              s_mul_i32 {s(sW1L)}, {s(sW)}, 14336
              s_and_b32 {s(T[3])}, {s(sX)}, {6 if rot else 0}
              s_and_b32 {s(T[4])}, {s(sX)}, {1 if rot else 0}
              s_cselect_b32 {s(T[5])}, {s(RU)}, {s(RG)}
              s_cselect_b32 {s(T[6])}, {s(RU+1)}, {s(RG+1)}
              s_cselect_b32 {s(RU)}, {s(RG)}, {s(RU)}
              s_cselect_b32 {s(RU+1)}, {s(RG+1)}, {s(RU+1)}
              s_cselect_b32 {s(T[4])}, 7168, 0
              s_lshl_b32 {s(sDEL[0])}, {s(T[4])}, 1
              s_sub_u32 {s(sDEL[0])}, 7168, {s(sDEL[0])}
              s_mov_b32 {s(RG)}, {s(T[5])}
              s_mov_b32 {s(RG+1)}, {s(T[6])}
              s_add_u32 {s(sDEL[1])}, {s(sDEL[0])}, 57344
              s_add_u32 {s(T[4])}, {s(T[4])}, {s(sW1L)}""")
        for i in range(7):
            k(f"""s_add_u32 {s(T[5])}, {s(T[3])}, {i}
                  s_sub_u32 {s(T[6])}, {s(T[5])}, 7
                  s_cselect_b32 {s(T[5])}, {s(T[5])}, {s(T[6])}
                  s_lshl_b32 {s(T[6])}, {s(T[5])}, 10
                  s_add_u32 {s(sROT[i])}, {s(T[6])}, {s(T[4])}
                  v_lshl_add_u32 v5, {s(T[5])}, 6, {v(vL)}
                  v_mul_u32_u24 {v(vb+i)}, {s(T[1])}, v5
                  v_lshrrev_b32 {v(vb+i)}, 16, {v(vb+i)}
                  v_mul_u32_u24 {v(vb+i)}, {s(T[2])}, {v(vb+i)}
                  v_lshl_add_u32 {v(vb+i)}, v5, 4, {v(vb+i)}
                  v_add_u32 {v(vb+i)}, {s(T[0])}, {v(vb+i)}""")

    def w1_dma_text(self, n):
        ck, mat, i = n // 14, (n % 14) // 7, n % 7
        L = []
        if n == 14: L.append(f"s_add_u32 {s(sW1S)}, {s(sW1S)}, {4*229376}")
        L.append(f"s_add_u32 m0, {s(sROT[i])}, {s(sDEL[ck]) if mat else ck*57344}")
        L.append(f"buffer_load_dwordx4 {v(self.W1V+i)}, {s(RU if mat else RG,4)}, {s(sW1S)} offen lds")
        return L
    def w1_dma(self, cnt):
        for _ in range(cnt):
            if self.w1_next >= 28: return
            n = self.w1_next; self.w1_next += 1
            for x in self.w1_dma_text(n): self.w1_tok[n] = self.k(x)

    RL = 222
    def w1_relayout_addr(self):
        k = self.k; r = self.RL
        k(f"""v_lshrrev_b32 v5, 4, {v(vL)}
              v_bfe_u32 {v(r)}, {v(vL)}, 2, 2
              v_lshl_add_u32 {v(r)}, v5, 3, {v(r)}
              v_mul_u32_u24 {v(r)}, 112, {v(r)}
              v_add_u32 {v(r)}, {s(sW1L)}, {v(r)}
              v_and_b32 {v(r+2)}, 3, {v(vL)}
              v_bfe_u32 {v(r+3)}, {v(vL)}, 1, 1
              v_mul_u32_u24 {v(r+3)}, 7168, {v(r+3)}
              v_and_b32 v22, 1, {v(vL)}
              v_lshl_add_u32 {v(r+3)}, v22, 3, {v(r+3)}
              v_add_u32 {v(r+1)}, {v(r)}, {v(r+3)}
              v_lshl_add_u32 {v(r)}, {v(r+2)}, 3, {v(r)}
              v_add_u32 {v(r+2)}, {s(sW1L)}, {v(vL16)}
              v_bfe_u32 {v(r+3)}, {v(vL)}, 1, 2
              v_lshlrev_b32 {v(r+3)}, 2, {v(r+3)}
              v_bfe_u32 v23, {v(vL)}, 3, 1
              v_lshl_add_u32 {v(r+3)}, v23, 1, {v(r+3)}
              v_add_u32 {v(r+3)}, {v(r+3)}, v22
              v_lshl_add_u32 {v(r+3)}, v5, 4, {v(r+3)}
              v_lshlrev_b32 {v(r+3)}, 4, {v(r+3)}
              v_add_u32 {v(r+3)}, {s(sW1L)}, {v(r+3)}""")
    def w1_relayout_items(self, ck, vtemp=False):
        k = self.k; r = self.RL
        R, a = (ACC[1], v) if vtemp else (128, globals()['a'])
        L = [Item(fn=lambda: k.wait(self.w1_tok[14*ck + 13]))]
        if ck == 1: L += [Item(f"v_add_u32 {v(r+i)}, 57344, {v(r+i)}") for i in range(4)]
        for sl in range(2):
            for Tt in range(7):
                for hf in range(2):
                    d = R + (sl*7 + Tt)*4 + 2*hf
                    o = (32*sl + 4*hf)*112
                    if Tt < 6: L.append(Item(f"ds_read_b64_tr_b16 {a(d,2)}, {v(r)} offset:{o + (Tt&1)*7168 + 32*(Tt>>1)}"))
                    else: L.append(Item(f"ds_read_b64_tr_b16 {a(d,2)}, {v(r+1)} offset:{o + 96}"))
        last = L[-1]
        L.append(Item(fn=lambda: k.wait(last.tok)))
        for n in range(14): L.append(Item(f"ds_write_b128 {v(r+3 if n % 7 == 6 else r+2)}, {a(R + n*4, 4)} offset:{n*1024}"))
        return L
    def w1_relayout(self, ck): Queue(self.k, self.w1_relayout_items(ck)).drain()

    JV = 190
    def wd_job_addr(self):
        k = self.k; r = self.JV
        k(f"""s_lshl_b32 {s(T[0])}, s2, 1
              s_lshr_b32 {s(T[1])}, {s(sW)}, 1
              s_add_u32 {s(T[0])}, {s(T[0])}, {s(T[1])}
              s_mul_i32 {s(T[1])}, {s(T[0])}, 4682
              s_lshr_b32 {s(T[1])}, {s(T[1])}, 16
              s_mul_i32 {s(T[2])}, {s(T[1])}, 14
              s_sub_u32 {s(T[2])}, {s(T[0])}, {s(T[2])}
              s_and_b32 {s(T[3])}, {s(T[1])}, 3
              s_lshr_b32 {s(T[1])}, {s(T[1])}, 2
              s_lshl_b32 {s(T[1])}, {s(T[1])}, 7
              s_mul_i32 {s(T[3])}, {s(T[3])}, {8*57344}
              s_add_u32 {s(T[1])}, {s(T[1])}, {s(T[3])}
              s_cmp_lt_u32 s2, 224
              s_cselect_b32 {s(T[3])}, {s(sW)}, 0
              s_bitcmp1_b32 {s(T[3])}, 0
              s_cselect_b32 {s(T[3])}, 0, 0x80000000
              s_lshl_b32 {s(T[4])}, {s(T[0])}, 2
              s_add_u32 {s(T[4])}, {s(T[4])}, {WS_JF}
              s_lshr_b32 {s(sJF)}, {s(T[3])}, 1
              s_or_b32 {s(sJF)}, {s(sJF)}, {s(T[4])}
              s_lshl_b32 {s(T[0])}, {s(T[0])}, 12
              s_add_u32 {s(T[0])}, {s(T[0])}, {WS_WDT}
              s_or_b32 {s(T[0])}, {s(T[0])}, {s(T[3])}
              s_or_b32 {s(T[1])}, {s(T[1])}, {s(T[3])}
              v_add_u32 {v(r+5)}, {s(T[0])}, {v(vL16)}
              v_lshrrev_b32 v5, 3, {v(vL)}
              v_and_b32 v22, 3, v5
              v_lshlrev_b32 v22, 3, v22
              v_cmp_gt_u32 vcc, 4, v5
              v_lshl_add_u32 v23, {v(vP7)}, 2, {s(T[1])}
              s_lshl_b32 {s(T[2])}, {s(T[2])}, 2""")
        for g in range(4):
            k(f"""s_add_u32 {s(T[0])}, {s(T[2])}, {g}
                  s_mul_i32 {s(T[1])}, {s(T[0])}, 9363
                  s_lshr_b32 {s(T[1])}, {s(T[1])}, 16
                  s_mul_i32 {s(T[3])}, {s(T[1])}, 7
                  s_sub_u32 {s(T[0])}, {s(T[0])}, {s(T[3])}
                  s_mul_i32 {s(T[1])}, {s(T[1])}, 56
                  s_mul_i32 {s(T[3])}, {s(T[0])}, 0x04040404
                  s_add_u32 {s(T[4])}, {s(T[3])}, 0x13121110
                  s_add_u32 {s(T[3])}, {s(T[3])}, 0x03020100
                  s_cmp_ge_u32 {s(T[0])}, 4
                  s_cselect_b32 {s(T[3])}, {s(T[4])}, {s(T[3])}
                  s_cselect_b32 {s(T[4])}, {sum(x << (8*e) for e, x in enumerate(flist(4)[4:]))}, {s(T[4])}
                  s_cmp_eq_u32 {s(T[0])}, 5
                  s_cselect_b32 {s(T[4])}, {sum(x << (8*e) for e, x in enumerate(flist(5)[4:]))}, {s(T[4])}
                  s_cmp_eq_u32 {s(T[0])}, 6
                  s_cselect_b32 {s(T[4])}, {sum(x << (8*e) for e, x in enumerate(flist(6)[4:]))}, {s(T[4])}
                  v_mov_b32 v5, {s(T[3])}
                  v_mov_b32 {v(r+g)}, {s(T[4])}
                  v_cndmask_b32 v5, {v(r+g)}, v5, vcc
                  v_bfe_u32 v5, v5, v22, 8
                  v_add_u32 v5, {s(T[1])}, v5
                  v_lshl_add_u32 {v(r+g)}, v5, 10, v23""")
        k(f"""s_lshl_b32 {s(sJL)}, {s(sW)}, 12
              s_add_u32 {s(sJL)}, {s(sJL)}, {L_JOB}
              v_lshrrev_b32 v5, 4, {v(vL)}
              v_lshlrev_b32 {v(r+4)}, 10, v5
              v_bfe_u32 v5, {v(vL)}, 2, 2
              v_lshl_add_u32 {v(r+4)}, v5, 7, {v(r+4)}
              v_and_b32 v5, 3, {v(vL)}
              v_lshl_add_u32 {v(r+4)}, v5, 3, {v(r+4)}
              v_add_u32 {v(r+4)}, {s(sJL)}, {v(r+4)}""")
    def wd_job_issue(self):
        for g in range(4): self.job_tok = self.dma(self.JV+g, RD, '0', f"s_add_u32 m0, {s(sJL)}, {1024*g}")
    def wd_job_finish(self):
        k = self.k; r = self.JV
        k.wait(self.job_tok)
        t = {}
        for nt in range(4):
            for hf in range(2): t[nt] = k(f"ds_read_b64_tr_b16 {a(128 + 4*nt + 2*hf, 2)}, {v(r+4)} offset:{hf*512 + nt*32}")
        for nt in range(4):
            k.wait(t[nt])
            self.job_st = k(f"buffer_store_dwordx4 {a(128 + 4*nt, 4)}, {v(r+5)}, {s(RW,4)}, 0 offen offset:{1024*nt} sc1")
    WDV = 226
    def wd_addr(self):
        self.k(f"""s_and_b32 {s(T[0])}, {s(sJ)}, 7
                   s_lshl_b32 {s(T[0])}, {s(T[0])}, 2
                   s_add_u32 {s(T[0])}, {s(T[0])}, {s(sW)}
                   s_mul_i32 {s(sJFp)}, {s(T[0])}, {14*4}
                   s_add_u32 {s(sJFp)}, {s(sJFp)}, {WS_JF}
                   s_mul_i32 {s(T[0])}, {s(T[0])}, {14*4096}
                   s_add_u32 {s(T[0])}, {s(T[0])}, {WS_WDT}
                   v_add_u32 {v(vWd[0])}, {s(T[0])}, {v(vL16)}
                   v_add_u32 {v(vWd[1])}, 32768, {v(vWd[0])}
                   v_min_u32 v226, 13, {v(vL)}
                   v_lshlrev_b32 v226, 2, v226
                   s_lshr_b32 {s(T[1])}, {s(sJ)}, 3
                   s_mul_i32 {s(T[1])}, {s(T[1])}, {112*128}
                   s_add_u32 {s(T[0])}, {s(T[0])}, {s(T[1])}
                   v_min_u32 v227, 55, {v(vL)}
                   v_lshl_add_u32 v227, v227, 7, {s(T[0])}""")
    def wd_touch_text(self, i):
        return f"buffer_load_dword {v(228+i)}, v227, {s(RW,4)}, {k4(i)} offen offset:{3072*i} sc1"
    def wd_text(self, n):
        U, nt = divmod(n, 4)
        return f"buffer_load_dwordx4 {a(4*n, 4)}, {v(vWd[U >> 3])}, {s(RW,4)}, {k4(U & 7)} offen offset:{1024*nt}{self.o.get('wdm', ' sc1')}"

    def phase0(self):
        k = self.k
        k(f"""v_lshrrev_b32 v5, 4, {v(vL)}
              v_bfe_u32 v48, {v(vL)}, 2, 2
              v_lshl_add_u32 v49, v5, 4, v48
              v_lshlrev_b32 v49, 7, v49
              v_bfe_u32 v50, {v(vL)}, 1, 1
              s_lshl_b32 {s(T[0])}, {s(sW)}, 1
              v_add_u32 v50, {s(T[0])}, v50
              v_and_b32 v48, 2, v48
              v_xor_b32 v50, v50, v48
              v_and_b32 v48, 1, v5
              v_lshlrev_b32 v48, 2, v48
              v_xor_b32 v50, v50, v48
              v_lshl_add_u32 v49, v50, 4, v49
              v_and_b32 v48, 1, {v(vL)}
              v_lshl_add_u32 v49, v48, 3, v49
              v_add_u32 v49, {L_K}, v49
              v_xor_b32 v50, 64, v49
              v_lshlrev_b32 v51, 12, v27
              v_lshl_add_u32 v51, v5, 5, v51
              s_lshl_b32 {s(T[6])}, {s(sJ)}, 7
              s_add_u32 {s(T[6])}, {s(T[6])}, {WS_KVT}
              v_mul_u32_u24 v52, {self.o.get('xs', 4)//4}, {v(vP31)}
              s_mul_i32 {s(T[7])}, {s(sX)}, {32*self.o.get('xs', 4)}
              s_add_u32 {s(T[7])}, {s(T[7])}, {WS_XCCF}
              s_lshl_b32 {s(T[0])}, {s(sX)}, 9
              s_lshl_b32 {s(T[1])}, {s(sW)}, 7
              s_lshl_b32 {s(T[2])}, {s(sJ)}, 2
              s_add_u32 {s(T[1])}, {s(T[1])}, {s(T[2])}
              s_add_u32 {s(T[0])}, {s(T[0])}, {WS_KVF}
              s_add_u32 {s(T[5])}, {s(T[1])}, {s(T[0])}
              s_xor_b32 {s(T[0])}, {s(sN)}, {s(sXCC)}
              s_mov_b32 {s(sMODE)}, 0
              s_mov_b32 {s(sEXP)}, {s(sN)}""")
        k.wait(self.sh_tok)
        k("s_barrier")
        self.stamp('kv_in')
        xh = k(f"buffer_load_dword v53, v52, {s(RW,4)}, {s(T[7])} offen sc1")
        KR, VR, KS, O, VU, P = 56, 68, 78, 88, 104, 120
        k(f"ds_read_b64_tr_b16 {v(KR,2)}, v50 offset:512")
        for i in range(4): k(f"ds_read_b64_tr_b16 {v(KR+2+2*i,2)}, v49 offset:{1024 + 512*i}")
        for i in range(4): lastv = k(f"ds_read_b64_tr_b16 {v(VR+2*i,2)}, v49 offset:{L_V - L_K + 512*i}")
        k("v_alignbit_b32 v54, v30, v30, 16\nv_alignbit_b32 v55, v31, v31, 16")
        k.wait(('lg', lastv[1] - 4))
        for aa in range(-1, 8): k(f"v_alignbit_b32 {v(KS+1+aa)}, {v(KR+2+aa)}, {v(KR+1+aa)}, 16")
        for aa in range(8):
            k(f"v_dot2_f32_bf16 {v(O+2*aa)}, {v(KS+aa)}, v55, 0")
            k(f"v_dot2_f32_bf16 {v(O+2*aa+1)}, {v(KR+1+aa)}, v55, 0")
        for aa in range(8):
            k(f"v_dot2_f32_bf16 {v(O+2*aa)}, {v(KS+1+aa)}, v54, {v(O+2*aa)}")
            k(f"v_dot2_f32_bf16 {v(O+2*aa+1)}, {v(KR+2+aa)}, v54, {v(O+2*aa+1)}")
        k.wait(lastv)
        for g in range(2):
            for aa in range(4*g, 4*g+4):
                k(f"v_lshlrev_b32 {v(VU+2*aa)}, 16, {v(VR+aa)}")
                k(f"v_and_b32 {v(VU+2*aa+1)}, 0xffff0000, {v(VR+aa)}")
            for aa in range(4*g, 4*g+4): k(f"v_pk_mul_f32 {v(O+2*aa,2)}, {v(O+2*aa,2)}, {v(VU+2*aa,2)}")
            for e in range(4): k(f"v_cvt_pk_bf16_f32 {v(P+4*g+e)}, {v(O+8*g+7-2*e)}, {v(O+8*g+6-2*e)}")
            st = k(f"buffer_store_dwordx4 {v(P+4*g,4)}, v51, {s(RW,4)}, {s(T[6])} offen offset:{16*g}")
        self.stamp('kv_st')
        self.toeplitz_write()
        slow, back, done = k.label(), k.label(), k.label()
        k.wait(xh)
        k(f"v_cmp_ne_u32 vcc, {s(T[0])}, v53\ns_cbranch_vccnz {slow}")
        k.place(back)
        self.tail.append([f"{slow}:",
            f"buffer_load_dword v53, v52, {s(RW,4)}, {s(T[7])} offen sc1", "s_waitcnt vmcnt(0)",
            f"v_xor_b32 v54, {s(sN)}, v53", "v_cmp_lt_u32 vcc, 15, v54", f"s_cbranch_vccz {done}",
            f"s_sub_u32 {s(sSPIN)}, {s(sSPIN)}, 1", f"s_cbranch_scc0 {slow}", "s_branch L_END",
            f"{done}:", f"v_cmp_ne_u32 vcc, {s(T[0])}, v53", f"s_cbranch_vccz {back}",
            f"s_mov_b32 {s(sMODE)}, 1", f"s_not_b32 {s(sEXP)}, {s(sN)}", f"s_branch {back}"])
        self.publish(st, s(T[5]))
        self.stamp('kv_pub')

    def toeplitz_write(self):
        k = self.k
        k.wait(self.h_tok)
        k(f"v_add_u32 v48, {SCR}, v29")
        for ch in range(2):
            k(f"ds_write_b128 v48, {v(32+8*ch,4)} offset:{H_E(ch) - SCR}")
            k(f"ds_write_b128 v48, {v(36+8*ch,4)} offset:{H_O(ch) - SCR}")
        skip = k.label()
        k(f"s_cmp_lg_u32 {s(sW)}, 0\ns_cbranch_scc1 {skip}")
        k(f"""v_readfirstlane_b32 {s(T[1])}, v32
              v_readfirstlane_b32 {s(T[2])}, v40
              v_cmp_eq_u32 vcc, 28, {v(vP7)}
              v_add_u32 v49, {SCR}, {v(vP7)}
              s_lshl_b32 {s(T[1])}, {s(T[1])}, 16
              s_lshl_b32 {s(T[2])}, {s(T[2])}, 16
              v_mov_b32 v50, 0
              v_mov_b32 v51, 0
              v_mov_b32 v54, {s(T[1])}
              v_mov_b32 v55, {s(T[2])}
              v_cndmask_b32 v54, v50, v54, vcc
              v_cndmask_b32 v55, v50, v55, vcc
              ds_write_b32 v49, v50 offset:{H_E(0) - 32 - SCR}
              ds_write_b32 v49, v50 offset:{H_E(1) - 32 - SCR}
              ds_write_b32 v49, v54 offset:{H_O(0) - 32 - SCR}
              ds_write_b32 v49, v55 offset:{H_O(1) - 32 - SCR}
              v_lshlrev_b32 v49, 3, {v(vL)}
              v_add_u32 v49, {L_U}, v49
              ds_write_b64 v49, v[50:51]
              ds_write_b64 v49, v[50:51] offset:{U_S}""")
        k.place(skip)

    def front_addr(self):
        k = self.k; o = self.o; yfs = o.get('yfs', 4)
        k(f"""v_and_b32 v24, 15, {v(vL)}
              v_lshrrev_b32 v25, 4, {v(vL)}
              v_lshlrev_b32 v5, 3, v25
              v_sub_u32 v26, v24, v5
              v_add_u32 v26, 9, v26
              v_and_b32 v5, 1, v26
              v_sub_u32 v26, v26, v5
              v_lshlrev_b32 v26, 1, v26
              v_mul_u32_u24 v5, {H_O(0) - H_E(0)}, v5
              v_add_u32 v26, v26, v5
              s_lshr_b32 {s(T[0])}, {s(sW)}, 1
              s_mul_i32 {s(T[2])}, {s(T[0])}, {H_E(1) - H_E(0)}
              s_and_b32 {s(T[1])}, {s(sW)}, 1
              s_lshl_b32 {s(T[3])}, {s(T[1])}, 8
              s_add_u32 {s(T[2])}, {s(T[2])}, {s(T[3])}
              s_add_u32 {s(T[2])}, {s(T[2])}, {H_E(0)}
              v_add_u32 v152, {s(T[2])}, v26
              s_mul_i32 {s(T[4])}, {s(T[0])}, {U_S}
              s_add_u32 {s(T[4])}, {s(T[4])}, {L_U + 512}
              s_lshl_b32 {s(T[2])}, {s(T[1])}, 11
              s_add_u32 {s(sUm0)}, {s(T[4])}, {s(T[2])}
              s_sub_u32 {s(T[4])}, {s(T[4])}, {s(T[3])}
              s_sub_u32 {s(T[4])}, {s(T[4])}, 224
              v_lshlrev_b32 v140, 5, v24
              v_lshl_add_u32 v140, v25, 4, v140
              v_add_u32 v140, {s(T[4])}, v140
              s_lshl_b32 {s(T[0])}, {s(sX)}, 9
              s_lshr_b32 {s(T[1])}, {s(sJ)}, 3
              s_lshl_b32 {s(T[1])}, {s(T[1])}, 7
              s_add_u32 {s(T[0])}, {s(T[0])}, {s(T[1])}
              s_add_u32 {s(sKVFp)}, {s(T[0])}, {WS_KVF}
              s_lshl_b32 {s(T[0])}, {s(sX)}, 18
              s_lshl_b32 {s(T[1])}, {s(sJ)}, 13
              s_lshl_b32 {s(T[2])}, {s(sW)}, 11
              s_add_u32 {s(T[0])}, {s(T[0])}, {s(T[1])}
              s_add_u32 {s(T[0])}, {s(T[0])}, {s(T[2])}
              s_add_u32 {s(sKVs)}, {s(T[0])}, {WS_KVT}
              s_add_u32 {s(sYst)}, {s(T[0])}, {WS_YP}
              v_lshlrev_b32 v141, 5, v24
              v_lshrrev_b32 v5, 1, v25
              v_lshl_add_u32 v141, v5, 4, v141
              v_and_b32 v5, 1, v25
              v_xor_b32 v5, 1, v5
              v_lshl_add_u32 v141, v5, 3, v141
              s_lshl_b32 {s(T[0])}, {s(sW)}, 10
              s_add_u32 {s(T[1])}, {s(T[0])}, {L_U + 512}
              v_add_u32 v141, {s(T[1])}, v141
              s_add_u32 {s(T[1])}, {s(T[0])}, {L_YT}
              v_add_u32 v151, {s(T[1])}, {v(vL16)}
              s_lshl_b32 {s(T[0])}, {s(sW)}, 13
              s_add_u32 {s(T[0])}, {s(T[0])}, {L_CRED}
              v_add_u32 v142, {s(T[0])}, {v(vL16)}
              s_add_u32 {s(T[0])}, {s(T[2])}, {L_CRED}
              v_add_u32 v143, {s(T[0])}, {v(vL16)}
              v_lshlrev_b32 v144, 6, v24
              v_lshl_add_u32 v144, v25, 4, v144
              s_lshl_b32 {s(T[0])}, {s(sX)}, 5
              s_add_u32 {s(T[0])}, {s(T[0])}, {s(sJ)}
              s_lshl_b32 {s(T[1])}, {s(sW)}, 8
              s_add_u32 {s(T[0])}, {s(T[0])}, {s(T[1])}
              s_mul_i32 {s(T[0])}, {s(T[0])}, {yfs}
              s_add_u32 {s(sYFs)}, {s(T[0])}, {WS_YF}
              v_mul_u32_u24 v148, {yfs}, v0
              s_lshr_b32 {s(T[0])}, {s(sX)}, 1
              s_mul_i32 {s(T[0])}, {s(T[0])}, {256*yfs}
              s_add_u32 {s(sYFp)}, {s(T[0])}, {WS_YF}
              v_lshlrev_b32 v149, 13, v0
              s_lshl_b32 {s(T[0])}, {s(sX)}, 10
              s_lshl_b32 {s(T[1])}, {s(sJ)}, 5
              s_add_u32 {s(T[0])}, {s(T[0])}, {s(T[1])}
              s_add_u32 {s(sYld)}, {s(T[0])}, {WS_YP}
              v_lshlrev_b32 v150, 2, v0
              v_add_u32 v150, {L_YT}, v150
              s_lshl_b32 {s(T[0])}, {s(sJ)}, 2
              s_add_u32 {s(T[0])}, {s(T[0])}, {s(sW)}
              s_lshl_b32 {s(T[0])}, {s(T[0])}, 13
              s_lshl_b32 {s(T[1])}, {s(sX)}, 10
              s_add_u32 {s(T[0])}, {s(T[0])}, {s(T[1])}
              s_add_u32 {s(sFR[0])}, {s(T[0])}, {WS_YP}
              s_add_u32 {s(sFR[1])}, {s(T[0])}, {WS_YP + 0x100000}""")
        for p in range(1, 8): k(f"v_add_u32 {v(152+p)}, {512*p}, v152")

    def conv(self):
        k = self.k; o = self.o
        toep = []
        for rr in range(4):
            for p in range(8):
                d = (rr*8 + p)*4
                toep.append(f"ds_read2_b32 {a(d,2)}, {v(152+p)} offset0:{16*rr} offset1:{16*rr+1}")
                toep.append(f"ds_read2_b32 {a(d+2,2)}, {v(152+p)} offset0:{16*rr+2} offset1:{16*rr+3}")
        k.wait_lg0()
        k("s_barrier")
        n0 = o.get('toep0', 16)
        tt = {}
        for n in range(n0): tt[n] = k(toep[n])
        ph = self.poll_issue(vP31, s(sKVFp))
        self.stamp('toep')
        self.poll_check(ph)
        self.stamp('kv_seen')
        k(f"s_mov_b32 m0, {s(sUm0)}")
        k(f"buffer_load_dwordx4 {v(vL16)}, {s(RW,4)}, {s(sKVs)} offen sc1 lds")
        tok = k(f"buffer_load_dwordx4 {v(vL16)}, {s(RW,4)}, {s(sKVs)} offen offset:1024 sc1 lds")
        n1 = o.get('toep1', 32)
        for n in range(n0, n1): tt[n] = k(toep[n])
        k.wait(tok)
        k("s_barrier")
        self.stamp('u_in')
        B, C = 64, 96
        bt = {}
        def rdB(rr, q): bt[(rr, q)] = k(f"ds_read_b128 {v(B+4*q,4)}, v140 offset:{512*q + 64*(3-rr)}")
        for q in range(8): rdB(0, q)
        self.wd_job_issue()
        if o.get('qpos', 1) == 0: self.q_load()
        if o.get('tch_f', 0) == 2: self.touch_f()
        self.tlb_touch()
        tq = Queue(k, [Item(x) for x in toep[n1:]]); tits = list(tq.q)
        n2 = o.get('n2', 11)
        dq = []
        for i in range(n2):
            if self.w1_next >= 28: break
            n = self.w1_next; self.w1_next += 1
            for x in self.w1_dma_text(n): dq.append(Item(x, at=4 + i*(o.get('n2span', 124) // n2), tag=n))
        dits = list(dq); dq = Queue(k, dq)
        m = 0
        for rr in range(4):
            need = [tt[n] for n in range(16*rr, 16*rr + 16) if n in tt]
            while any(x.tok is None for x in tits[:max(0, 16*rr + 16 - n1)]): tq.emit(tq.q[0])
            need += [x.tok for x in tits[:max(0, 16*rr + 16 - n1)]]
            for q in range(8):
                k.wait(bt[(rr, q)], *(need if q == 0 else []))
                for p in range(8 - q):
                    c = C + 4*(p+q)
                    src = '0' if (rr == 0 and q == 0) else v(c, 4)
                    k(f"v_mfma_f32_16x16x32_bf16 {v(c,4)}, {a((rr*8+p)*4,4)}, {v(B+4*q,4)}, {src}")
                    m += 1
                    if p < 7 - q:
                        cap = dq.fill(2, m)
                        tq.fill(min(cap, 1))
                if rr < 3: rdB(rr+1, q)
        dq.drain()
        assert self.w1_next <= 14
        for x in dits: self.w1_tok[x.tag] = x.tok
        self.stamp('conv_mfma')
        KV, P = 32, 160
        for t2 in range(2):
            for ch in range(2): k(f"ds_read_b64 {v(KV+4*t2+2*ch,2)}, v141 offset:{512*t2 + ch*U_S}")
        for c in range(8): k(f"ds_write_b128 v142, {v(C+4*c,4)} offset:{1024*c}")
        k.wait_lg0()
        k("s_barrier")
        for t2 in range(2):
            for w in range(4): lastp = k(f"ds_read_b128 {v(P+16*t2+4*w,4)}, v143 offset:{8192*w + 1024*t2}")
        for t2 in range(2):
            k.wait(('lg', lastp[1] - 4*(1-t2)))
            b = P + 16*t2
            L = []
            for ch in range(2):
                for e in (0, 2): L.append(f"v_pk_add_f32 {v(b+8*ch+e,2)}, {v(b+8*ch+e,2)}, {v(b+8*ch+4+e,2)}")
            for e in range(4):
                for ch in range(2):
                    L.append(f"v_dot2_f32_bf16 {v(b+8*ch+e)}, {v(KV+4*t2+2*ch+(1-(e>>1)))}, {s(sD+2*ch+(1-(e&1)))}, {v(b+8*ch+e)}")
            for e in range(4): L.append(f"v_cvt_pk_bf16_f32 {v(b+4+e)}, {v(b+e)}, {v(b+8+e)}")
            L.append(f"buffer_store_dwordx4 {v(b+4,4)}, v144, {s(RW,4)}, {s(sYst)} offen offset:{1024*t2} sc1")
            st = self.run(L)[-1].tok
        self.stamp('y_st')
        self.wd_job_finish()
        self.stamp('job')
        if o.get('qpos', 1) == 0: self.q_stats()
        self.stamp('qst')
        self.publish(st, s(sYFs), local=False)
        self.stamp('y_pub')
        self.publish(self.job_st, s(sJF), local=False)
        k("s_barrier")

    def stats(self, rows, out, t0, scale=None):
        L = []; n = len(rows)
        for i, x in enumerate(rows):
            b = t0 + 6*i
            L += [f"v_pk_add_f32 {v(b,2)}, {v(x,2)}, {v(x+2,2)}", f"v_pk_mul_f32 {v(b+2,2)}, {v(x,2)}, {v(x,2)}",
                  f"v_pk_add_f32 {v(b+4,2)}, {v(x+4,2)}, {v(x+6,2)}"]
            L += [f"v_pk_fma_f32 {v(b+2,2)}, {v(x+e,2)}, {v(x+e,2)}, {v(b+2,2)}" for e in (2, 4, 6)]
            L += [f"v_pk_add_f32 {v(b,2)}, {v(b,2)}, {v(b+4,2)}", f"v_add_f32 {v(b+2)}, {v(b+2)}, {v(b+3)}", f"v_add_f32 {v(b)}, {v(b)}, {v(b+1)}"]
        for ctl in ("row_ror:8 row_mask:0xf", "row_ror:4 row_mask:0xf", "row_ror:2 row_mask:0xf", "row_ror:1 row_mask:0xf",
                    "row_bcast:15 row_mask:0xa", "row_bcast:31 row_mask:0xc"):
            for i in range(n):
                for e in (2, 0):
                    r = t0 + 6*i + e
                    L.append(f"v_add_f32_dpp {v(r)}, {v(r)}, {v(r)} {ctl} bank_mask:0xf")
        for i in range(n):
            b = t0 + 6*i
            L += [f"v_mul_f32 {v(b)}, 0x3b000000, {v(b)}", f"v_mul_f32 {v(b+2)}, 0x3b000000, {v(b+2)}",
                  f"v_fma_f32 {v(b+2)}, -{v(b)}, {v(b)}, {v(b+2)}", f"v_max_f32 {v(b+2)}, 0, {v(b+2)}",
                  f"v_add_f32 {v(b+2)}, 0x3727c5ac, {v(b+2)}", f"v_rsq_f32 {v(b+2)}, {v(b+2)}"]
            if scale: L.append(f"v_mul_f32 {v(b+2)}, {f32(scale)}, {v(b+2)}")
            L += [f"v_mul_f32_e64 {v(b)}, -{v(b)}, {v(b+2)}", f"v_readlane_b32 {s(out[i])}, {v(b+2)}, 63",
                  f"v_readlane_b32 {s(out[i]+2)}, {v(b)}, 63", f"s_mov_b32 {s(out[i]+1)}, {s(out[i])}",
                  f"v_mov_b32 {v(b+4)}, {s(out[i]+2)}", f"v_mov_b32 {v(b+5)}, {s(out[i]+2)}"]
        return L
    def unpack(self, dst, src):
        L = []
        for e in range(4): L += [f"v_lshlrev_b32 {v(dst+2*e)}, 16, {v(src+e)}", f"v_and_b32 {v(dst+2*e+1)}, 0xffff0000, {v(src+e)}"]
        return L
    def affine(self, dst, x, sp, vb):
        return [f"v_pk_fma_f32 {v(dst+e,2)}, {v(x+e,2)}, {s(sp,2)}, {v(vb,2)}" for e in (0, 2, 4, 6)]
    def run(self, L, look=12):
        its = [Item(x) for x in L]
        Queue(self.k, its, look).drain()
        return its

    def gate_norm(self, halves, nrm, layer, R):
        L = []; sp = [36, 40]
        t0 = R + 16*len(halves)
        for i, h in enumerate(halves):
            L += self.unpack(R + 16*i, YS[h])
            L += [f"v_pk_fma_f32 {v(XS[h]+e,2)}, {v(nrm[h]+e,2)}, {v(R+16*i+e,2)}, {v(XS[h]+e,2)}" for e in (0, 2, 4, 6)]
        L += self.stats([XS[h] for h in halves], sp[:len(halves)], t0, LOG2E)
        for i, h in enumerate(halves):
            b = R + 16*i
            L += self.affine(b, XS[h], sp[i], t0 + 6*i + 4)
            L += [f"v_cvt_pk_bf16_f32 {v(b+8+e)}, {v(b+2*e)}, {v(b+2*e+1)}" for e in range(4)]
            L.append(f"buffer_store_dwordx4 {v(b+8,4)}, {v(vAst)}, {s(RW,4)}, {s(sHALF) if h else 0} offen")
            if layer == 1:
                L += [f"v_cvt_pk_bf16_f32 {v(b+12+e)}, {v(XS[h]+2*e)}, {v(XS[h]+2*e+1)}" for e in range(4)]
                L.append(f"buffer_store_dwordx4 {v(b+12,4)}, {v(vL16)}, {s(RW,4)}, {s(sFR[h])} offen")
        return L

    N0 = [40, 48]
    def q_stats(self):
        k = self.k
        k.wait(self.q_tok)
        L = []
        for h in range(2): L += self.unpack(XS[h], 204 + 4*h)
        L += self.stats(XS, [36, 40], 128)
        for h in range(2): L += self.affine(self.N0[h], XS[h], [36, 40][h], 128 + 6*h + 4)
        self.run(L)

    def y_in(self):
        k = self.k; o = self.o
        done0 = self.w1_next >= 14
        if o.get('qpos', 1) == 1: self.q_load()
        self.w1_dma(o.get('n3', 5))
        self.persistent()
        if o.get('tch_f', 0) == 1: self.touch_f()
        self.w1_relayout_addr()
        self.wd_addr()
        if done0: self.w1_relayout(0)
        if o.get('qpos', 1) == 1: self.q_stats()
        self.stamp('rl0')
        self.poll(148, s(sYFp), local=False)
        self.stamp('y_seen')
        t0 = k(f"buffer_load_dwordx4 v[32:35], v149, {s(RW,4)}, {s(sYld)} offen sc1")
        t1 = k(f"buffer_load_dwordx4 v[36:39], v149, {s(RW,4)}, {s(sYld)} offen offset:16 sc1")
        pj = self.poll_issue(226, s(sJFp), 0, 229)
        self.w1_dma(o.get('n4', 9))
        if not done0 and self.w1_next >= 14: self.w1_relayout(0); done0 = True
        k.wait(t0)
        for e in range(4): k(f"ds_write_b32 v150, {v(32+e)} offset:{1024*e}")
        k.wait(t1)
        for e in range(4): k(f"ds_write_b32 v150, {v(36+e)} offset:{1024*(4+e)}")
        k.wait_lg0()
        k("s_barrier")
        for h in range(2): k(f"ds_read_b128 {v(YS[h],4)}, v151 offset:{4096*h}")
        k.wait_lg0()
        self.stamp('y_in')
        its = self.run(self.gate_norm([0, 1], self.N0, 0, 56))
        sts = [x.tok for x in its if 'store' in x.text]
        self.stamp('a_st')
        self.poll_check(pj, False)
        if done0: self.gemm1_start(0)
        self.publish(sts[0], s(sAFs), 0)
        self.publish(sts[1], s(sAFs), 512)
        k(f"s_or_b32 {s(T[0])}, s2, {s(sW)}\ns_cmp_eq_u32 {s(T[0])}, 0\ns_cselect_b32 {s(T[0])}, 0, 0x40000000")
        k(f"buffer_store_dword {v(vNON)}, {v(vL0)}, {s(RW,4)}, {s(T[0])} offen sc1")
        self.stamp('a_pub')
        self.w1_dma(o.get('n5', 28))
        self.rl1_done = bool(o.get('rl1_front', 1))
        if not done0: self.w1_relayout(0)
        if self.rl1_done:
            self.w1_relayout(1); k.wait_lg0(); k("s_barrier")
        if not done0: self.gemm1_start(0)

    def epilogue1(self, B, half, off, pk, sc=''):
        L = []; so = s(sHH) if half else '0'
        def grp(g, u, n, outs, t):
            for e in range(n): L.append(f"v_exp_f32_e64 {v(t+e)}, -{v(g+e)}")
            if pk:
                for e in range(0, n, 2): L.append(f"v_pk_mul_f32 {v(u+e,2)}, {v(g+e,2)}, {v(u+e,2)}")
                for e in range(0, n, 2): L.append(f"v_pk_fma_f32 {v(t+e,2)}, {v(t+e,2)}, {s(sC2,2)}, {s(sC2,2)}")
            else:
                for e in range(n): L.append(f"v_mul_f32 {v(u+e)}, {v(g+e)}, {v(u+e)}")
                for e in range(n): L.append(f"v_fma_f32 {v(t+e)}, {v(t+e)}, {s(sC2)}, {s(sC2)}")
            for e in range(n): L.append(f"v_rcp_f32 {v(t+e)}, {v(t+e)}")
            if pk:
                for e in range(0, n, 2): L.append(f"v_pk_mul_f32 {v(u+e,2)}, {v(u+e,2)}, {v(t+e,2)}")
            else:
                for e in range(n): L.append(f"v_mul_f32 {v(u+e)}, {v(u+e)}, {v(t+e)}")
            for e in range(0, n, 2): L.append(f"v_cvt_pk_bf16_f32 {v(outs[e//2])}, {v(u+e)}, {v(u+e+1)}")
        grp(B, B+4, 4, [B, B+1], TMP)
        grp(B+8, B+12, 4, [B+2, B+3], TMP+4)
        L.append(f"buffer_store_dwordx4 {v(B,4)}, {v(vHm)}, {s(RW,4)}, {so} offen offset:{off}{sc}")
        grp(B+16, B+20, 4, [B+8, B+9], TMP)
        grp(B+24, B+26, 2, [B+10], TMP+4)
        Z, C, A_ = B+4, B+5, B+6
        L += [f"v_mov_b32 {v(C)}, {v(B+8)}", f"v_mov_b32 {v(A_)}, {v(B+9)}", f"v_mov_b32 {v(Z)}, {v(B+10)}",
              f"v_permlane32_swap_b32 {v(A_)}, {v(B+11)}", f"v_permlane32_swap_b32 {v(C)}, {v(Z)}",
              f"v_permlane16_swap_b32 {v(Z)}, {v(B+11)}",
              f"buffer_store_dwordx4 {v(B+8,4)}, {v(vHt)}, {s(RW,4)}, {so} offen offset:{off}{sc}"]
        return L

    def a_plan(self, layer):
        n = self.o.get('ring0', 8) if layer == 0 else self.o.get('ring1', 4)
        ring = ([('v', AR + 8*i) for i in range(4)] + [('a', 224 + 8*i) for i in range(4)])[:n]
        reg = {gs: ring[gs % n] for gs in range(32)}
        issue = {}
        for gs in range(32):
            prev = [p for p in range(gs) if reg[p] == reg[gs]]
            issue[gs] = prev[-1] + 1 if prev else -1
        return reg, issue

    def gemm1_start(self, layer):
        k = self.k
        self.wt, self.at = {}, {}
        self.areg, self.aiss = self.a_plan(layer)
        for Tt in range(7): self.rdW(0, Tt)
    def rdW(self, gs, Tt):
        st = gs % 16
        base, o = (vL16, st*7168) if st < 8 else (vW1, (st-8)*7168)
        self.wt[(gs, Tt)] = self.k(f"ds_read_b128 {v(WF + 28*(gs&1) + 4*Tt, 4)}, {v(base)} offset:{o + 1024*Tt}")
    def afrag(self, gs, mt):
        kind, b = self.areg[gs]
        return (v if kind == 'v' else a)(b + 4*mt, 4)
    def ldA(self, gs, mt):
        st = gs % 16
        self.at[(gs, mt)] = self.k(f"buffer_load_dwordx4 {self.afrag(gs, mt)}, {v(vAld[gs // 16])}, {s(RW,4)}, {k4(st>>1)} offen offset:{((st&1)*2+mt)*1024} sc1")

    def gemm1(self, layer):
        k = self.k; o = self.o
        lo = 1024*layer
        self.poll(vP31, s(sAFp), lo)
        self.stamp(f'a_seen{layer}')
        todo = sorted(range(32), key=lambda g: g)
        nxtA = 0
        while self.aiss[nxtA] < 0 and nxtA < o.get('a_init', 5):
            for mt in range(2): self.ldA(nxtA, mt)
            nxtA += 1
        if layer == 0: self.w1_dma(28)
        firstB = max(min(self.aiss[g] for g in range(16, 32)), o.get('firstB', 0) if layer else 0)
        queues = []
        if layer == 0:
            queues.append(Queue(k, self.poll_items(vP31, s(sAFp), lo + 512, 14*2, 14*(firstB - 2))))
            rl = self.w1_relayout_items(1, True) if not self.rl1_done else []
            for x in rl: x.at = 14*o.get('rl1_at', 1)
            rlq = Queue(k, rl); queues.append(rlq)
            t0 = o.get('wd_t0', 1); t1 = o.get('wd_t1', 31)
            wd = [Item(self.wd_text(n), at=int(14*(t0 + (t1 - t0)*n/56))) for n in range(o.get('wd_n', 56))]
            wdq = Queue(k, wd, 1); queues.append(wdq)
            burst = None
        else:
            box = []
            s0 = o.get('rowb_at', 5)
            its = self.poll_items(vP7, s(sFFp), 512, 14*(s0 - 3), 14*(s0 - 1) - 8)
            fld = Item(f"buffer_load_dwordx4 {v(ACC[1],4)}, {v(vL16)}, {s(RW,4)}, {s(sFR[1])} offen sc1"); its.append(fld)
            queues.append(Queue(k, its))
            burst = s0
        epi = None; hbox = []
        hsc = ' sc1' if layer < o.get('hsc', 1) else ''
        for gs in range(32):
            ps, st = divmod(gs, 16)
            if gs == burst:
                queues[0].drain(); k.wait(fld.tok)
                self.stamp('rowB_go')
                sts = self.rowop(1, ACC[1])
                self.stamp('rowB')
                queues = [Queue(k, self.publish_items(lambda: sts, s(sAFs), lo + 512, 14*gs + 22)
                                + self.poll_items(vP31, s(sAFp), lo + 512, 14*(firstB - 2) - 4, 14*firstB - 4))]
            if gs == firstB: queues[0].drain()
            if layer == 0 and gs == 7 and not self.rl1_done:
                print('relayout left at step 7:', rlq.cost())
                rlq.drain(); k.wait_lg0(); k("s_barrier")
            if gs == 16:
                for q in queues[:2]: q.drain()
                epi = [Item(x, at=14*16 + 4) for x in self.epilogue1(ACC[0], 0, 0, 0, hsc) + self.epilogue1(ACC[0] + 28, 0, 256, 0, hsc)]
                last = epi[-1]
                queues = [Queue(k, epi, 14), Queue(k, [])]
                if layer == 0: queues = [queues[0], queues[1], wdq]
                pub = False
            if epi and not pub and not len(queues[0]):
                queues[1].q += self.publish_items(lambda: last.tok, s(sHFs), lo, 14*gs + o.get('ha_pub', 10)); pub = True
                pubstep = gs
                queues[1].q.append(Item(fn=lambda: hbox.append(self.poll_issue(vP7, s(sHFp), lo)), at=o.get('ha_pi', 14*31 + 2)))
            fixed = [[] for _ in range(14)]
            if gs + 1 < 32:
                for Tt in range(7): fixed[2*(Tt // 2)].append(('W', gs+1, Tt))
            slot = 6
            while nxtA < 32 and self.aiss[nxtA] <= gs and slot <= 10 and (nxtA < 16 or gs >= firstB):
                fixed[slot].append(('A', nxtA, 0)); fixed[slot+2].append(('A', nxtA, 1)); nxtA += 1; slot += 4
            k.wait(self.at[(gs, 1)], self.wt[(gs, 6)])
            for i in range(14):
                Tt, mt = divmod(i, 2)
                d = ACC[ps] + 28*mt + 4*Tt
                k(f"v_mfma_f32_16x16x32_bf16 {v(d,4)}, {v(WF + 28*(gs&1) + 4*Tt, 4)}, {self.afrag(gs, mt)}, {'0' if st == 0 else v(d,4)}")
                for it in fixed[i]:
                    if it[0] == 'W': self.rdW(it[1], it[2])
                    else: self.ldA(it[1], it[2])
                cap = 2 - len(fixed[i]) - (1 if i == 13 else 0)
                for q in (queues[::-1] if ps else queues): cap = q.fill(cap, 14*gs + i)
            if gs == 15: self.stamp(f'g1a{layer}'); self.late = layer == 1
        print('layer', layer, 'left after G1B:', [q.cost() for q in queues], f'published in step {pubstep}' if pub else 'not published')
        queues[0].drain()
        if not pub: queues[1].q += self.publish_items(lambda: last.tok, s(sHFs), lo, 0)
        queues[1].drain()
        if layer == 0: wdq.drain(); self.wd_last = wd[-1].tok
        self.stamp(f'g1b{layer}')
        self.ht = {}
        ph = hbox[0] if hbox else self.poll_issue(vP7, s(sHFp), lo)
        epi = [Item(x) for x in self.epilogue1(ACC[1], 1, 0, 1, hsc) + self.epilogue1(ACC[1] + 28, 1, 256, 1, hsc)]
        q = Queue(k, epi, 12)
        total = q.cost()
        lead = o.get('epi_lead', 24); nld = o.get('epi_ld', 9)
        while total - q.cost() < lead:
            if q.fill(3) == 3: q.emit(q.q[0])
        self.poll_check(ph)
        self.stamp(f'hA_seen{layer}')
        self.nxtH = 0
        marks = [lead + (total - lead)*i // nld for i in range(nld)]
        while len(q):
            while marks and total - q.cost() >= marks[0]: marks.pop(0); self.ldH(0)
            if q.fill(3) == 3: q.emit(q.q[0])
        self.hB_tok = epi[-1].tok
        self.stamp(f'epiB{layer}')

    def g2_order(self):
        D = self.o.get('skew', 4)
        A = [(0, U, mt) for U in range(14) for mt in range(2)]
        B = sorted([(1, U, mt) for U in range(14) for mt in range(2)], key=lambda x: (x[1] + D*x[2], x[2]))
        return A + B
    def hreg(self, n):
        if n < 14: return ACC[0] + 4*n
        if n < 28: return WF + 4*(n - 14)
        if n < 42: return ACC[1] + 4*(n - 28)
        return ACC[0] + 4*(n - 42)
    def ldH(self, _=0):
        n = self.nxtH; self.nxtH += 1
        half, U, mt = self.g2_order()[n]
        self.ht[n] = self.k(f"buffer_load_dwordx4 {v(self.hreg(n),4)}, {v(vHld[half])}, {s(RW,4)}, {k4(U>>1)} offen offset:{(U&1)*2048 + mt*256} sc1")

    def red_write(self, A2):
        return [f"ds_write_b128 {v(vRw)}, {v(A2 + 16*mt + 4*nt, 4)} offset:{4352*mt + 64*nt}" for mt in range(2) for nt in range(4)]
    def red_read(self, P):
        return [f"ds_read_b128 {v(P + 8*w + 4*hf, 4)}, {v(vRr)} offset:{8704*w + 16*hf}" for w in range(4) for hf in range(2)]
    def red_sum(self, P, half, layer, X3, pk):
        L = []
        def add(d, x, y):
            if pk: L.extend(f"v_pk_add_f32 {v(d+e,2)}, {v(x+e,2)}, {v(y+e,2)}" for e in (0, 2, 4, 6))
            else: L.extend(f"v_add_f32 {v(d+e)}, {v(x+e)}, {v(y+e)}" for e in range(8))
        add(P, P, P+8); add(P+16, P+16, P+24)
        if layer == 1:
            L += self.unpack(P+8, X3); add(P, P, P+8)
        add(P, P, P+16)
        L += [f"v_cvt_pk_bf16_f32 {v(P+8+e)}, {v(P+2*e)}, {v(P+2*e+1)}" for e in range(4)]
        if layer == 0: L.append(f"buffer_store_dwordx4 {v(P+8,4)}, {v(vF2)}, {s(RW,4)}, {s(sFH) if half else 0} offen")
        else: L.append(f"buffer_store_dwordx4 {v(P+8,4)}, {v(vO)}, {s(RO,4)}, {k4(half)} offen{self.o.get('ost', '')}")
        return L

    def gemm2(self, layer):
        k = self.k; o = self.o
        lo = 1024*layer
        AC2 = [AR, WF]
        X3 = [TMP, TMP + 4]
        order = self.g2_order()
        LA = o.get('g2la', 20)
        xt = {}
        def ldX(h): xt[h] = k(f"buffer_load_dwordx4 {v(X3[h],4)}, {v(vF2)}, {s(RW,4)}, {s(sFH) if h else 0} offen sc1")
        side = Queue(k, self.publish_items(lambda: self.hB_tok, s(sHFs), lo + 512, o.get('hb_pub', 24))
                     + self.poll_items(vP7, s(sHFp), lo + 512, o.get('hb_pi', 44), o.get('hb_pc', 70)))
        if layer == 0: k.wait(self.wd_last)
        fbox = []; seenB = False; wB = self.red_write(AC2[1]); doneB = 0
        def next_load():
            self.ldH()
            if layer == 1 and self.nxtH == 36: ldX(0)
            if layer == 1 and self.nxtH == 56:
                ldX(1)
                if o.get('wbl2', 0): self.writeback()
        for n in range(56):
            half, U, mt = order[n]
            if n == 28:
                self.stamp(f'g2a{layer}')
                side.drain(); seenB = True
                t = 4*28
                sp = o.get('ra_sp', 4)
                L = [Item(x, at=t + 3 + sp*i) for i, x in enumerate(self.red_write(AC2[0]))]
                L += [Item(fn=lambda: k.wait_lg0(), at=t + 8*sp + 3), Item(fn=lambda: k("s_barrier"))]
                L += [Item(x) for x in self.red_read(AR)]
                L += [Item(fn=lambda: k.wait_lg0(), at=t + 8*sp + o.get('ra_rd', 16)), Item(fn=lambda: k("s_barrier"))]
                if layer == 1: L += [Item(fn=lambda: k.wait(xt[0]))]
                L += [Item(x) for x in self.red_sum(AR, 0, layer, X3[0], 0)]
                fA = L[-1]
                if layer == 0:
                    L += self.publish_items(lambda: fA.tok, s(sFFs), 0, o.get('fa_pub', t + 90))
                    L.append(Item(fn=lambda: fbox.append(self.poll_issue(vP7, s(sFFp), 0)), at=o.get('fa_pi', 8*28 - 4)))
                if o.get('nored') and layer == 1: L = []
                side = Queue(k, L)
                last0 = max(i for i in range(28, 56) if order[i][2] == 0)
                late = Queue(k, [Item(x, at=4*(last0 + 1) + 3 + sp*i) for i, x in enumerate(wB[:4])])
            if not len(side): seenB = True
            while n not in self.ht: next_load()
            if n % 2 == 0:
                while seenB and n + 1 not in self.ht: next_load()
                k.wait(self.ht.get(n + 1, self.ht[n]))
            else: k.wait(self.ht[n])
            for nt in range(4):
                d = AC2[half] + 16*mt + 4*nt
                k(f"v_mfma_f32_16x16x32_bf16 {v(d,4)}, {a((4*U+nt)*4,4)}, {v(self.hreg(n),4)}, {'0' if U == 0 else v(d,4)}")
                cap = 2 - (1 if (nt == 3 and n % 2) else 0)
                if (nt == 0 or (nt == 2 and self.nxtH < n + 1 + o.get('g2min', 6))) and self.nxtH < min(56 if seenB else 28, n + 1 + LA) and (self.nxtH < 42 or self.nxtH - 42 < n):
                    next_load(); cap -= 1
                cap = side.fill(cap, 4*n + nt)
                if n >= 28 and all(x.i is not None or x.at > 200 for x in side.q[:1]) and not any('ds_' in (x.text or '') or (x.fn and x.at <= t + 8*sp + 40) for x in side.q):
                    late.fill(cap, 4*n + nt)
        print('layer', layer, 'left after G2B:', side.cost(), late.cost())
        side.drain()
        wB = [x.text for x in late.q] + wB[4:]
        self.stamp(f'g2b{layer}')
        R = ACC[1]
        if layer == 0:
            self.poll_check(fbox[0])
            self.stamp('fA_seen')
            fld = k(f"buffer_load_dwordx4 {v(R,4)}, {v(vL16)}, {s(RW,4)}, {s(sFR[0])} offen sc1")
        for x in wB: k(x)
        if layer == 0: self.run(self.unpack(R + 24, YS[0]))
        k.wait_lg0(); k("s_barrier")
        for x in self.red_read(ACC[0]): k(x)
        if layer == 0:
            k.wait(fld)
            sts, rest = self.rowop(0, R, True)
            self.stamp('rowA')
        k.wait_lg0()
        if layer == 1: k.wait(xt[1])
        fB = self.run(self.red_sum(ACC[0], 1, layer, X3[1], 1))[-1].tok
        self.stamp(f'fB_st{layer}')
        if layer == 0:
            self.gemm1_start(1)
            self.publish(sts, s(sAFs), 1024)
            self.stamp('aA_pub')
            self.run(rest)
            self.publish(fB, s(sFFs), 512)

    def writeback(self):
        k = self.k
        a_, b_ = k.label(), k.label()
        k(f"s_or_b32 {s(T[2])}, {s(sJ)}, {s(sW)}\ns_cmp_lg_u32 {s(T[2])}, 0\ns_cbranch_scc1 {a_}")
        k("buffer_wbl2 sc1")
        k(f"s_branch {b_}"); k.place(a_)
        k.ins.append(I(f"buffer_load_dword {v(vPT)}, {v(vL0)}, {s(RW,4)}, 0 offen"))
        k.place(b_)

    def rowop(self, h, R, split=False):
        L = self.unpack(R + 8, R)
        L += [f"v_pk_add_f32 {v(XS[h]+e,2)}, {v(XS[h]+e,2)}, {v(R+8+e,2)}" for e in (0, 2, 4, 6)]
        L += self.stats([XS[h]], [36], R + 16)
        L += self.affine(R + 8, XS[h], 36, R + 20)
        G = self.gate_norm([h], {h: R + 8}, 1, R + 24)
        rest = []
        if split: G, rest = G[8:-5], G[-5:]
        its = self.run(L + G, 16)
        tok = [x.tok for x in its if 'store' in x.text][-1]
        return (tok, rest) if split else tok

    def build(self):
        k = self.k; o = self.o
        self.prologue()
        self.front_addr()
        self.touch_first()
        self.touch_global_flags()
        if o.get('tch_f', 0) == 3: self.touch_f()
        self.w1_addr()
        self.w1_dma(o.get('n0', 2))
        self.wd_job_addr()
        self.phase0()
        self.w1_dma(o.get('n1', 1))
        self.conv()
        self.y_in()
        for layer in range(2):
            self.gemm1(layer)
            self.gemm2(layer)
        if o.get('stamps'):
            self.stamp('end')
            k(f"""s_lshl_b32 {s(T[0])}, s2, 2
                  s_add_u32 {s(T[0])}, {s(T[0])}, {s(sW)}
                  s_lshl_b32 {s(T[0])}, {s(T[0])}, 8
                  s_add_u32 {s(T[0])}, {s(T[0])}, {WS_DBG}
                  v_lshrrev_b32 v5, 2, {v(vL16)}
                  buffer_store_dword {v(vST[0])}, v5, {s(RW,4)}, {s(T[0])} offen
                  s_add_u32 {s(T[0])}, {s(T[0])}, 0x40000
                  buffer_store_dword {v(vST[1])}, v5, {s(RW,4)}, {s(T[0])} offen""")
        if o.get('delay'):
            k(f"""s_mov_b32 {s(T[0])}, {o['delay']}
                  s_memrealtime {s(T[2],2)}
                  s_waitcnt lgkmcnt(0)""")
            k.place("L_DELAY")
            k(f"""s_memrealtime {s(T[4],2)}
                  s_waitcnt lgkmcnt(0)
                  s_sub_u32 {s(T[4])}, {s(T[4])}, {s(T[2])}
                  s_cmp_lt_u32 {s(T[4])}, {s(T[0])}
                  s_cbranch_scc1 L_DELAY""")
        if o.get('diag'):
            self.stamp('end')
            k(f"""v_sub_u32 v5, {v(vST[1])}, {v(vST[0])}
                  s_nop 1
                  v_readfirstlane_b32 {s(T[0])}, v5
                  s_mul_i32 {s(T[0])}, {s(T[0])}, 8
                  s_memrealtime {s(T[2],2)}
                  s_waitcnt lgkmcnt(0)""")
            k.place("L_DIAG")
            k(f"""s_memrealtime {s(T[4],2)}
                  s_waitcnt lgkmcnt(0)
                  s_sub_u32 {s(T[4])}, {s(T[4])}, {s(T[2])}
                  s_cmp_lt_u32 {s(T[4])}, {s(T[0])}
                  s_cbranch_scc1 L_DIAG""")
        k.place("L_END")
        k("s_endpgm")
        body = k.text()
        for t in self.tail:
            body += "".join((x + "\n") if x.endswith(':') else ("    " + x + "\n") for x in t)
        body += "L_LAST:\n"
        return body

def file_text(opt):
    g = Gen(opt)
    body = g.build()
    ref = open(os.path.join(os.path.dirname(os.path.abspath(__file__)), '..', 'cdna_kernels', NAME + '.s.ref')).read()
    head = ref[:ref.index('; Override launch geometry')]
    txt = head + f"""; @launch grid=(256,1,1) block=(256,1,1) lds={LDS_SIZE}
.amdgcn_target "amdgcn-amd-amdhsa--gfx950"
.text
.globl {NAME}_kernel
.p2align 8
.type {NAME}_kernel,@function
{NAME}_kernel:
{body}.section .rodata,"a"
.p2align 6
.amdhsa_kernel {NAME}_kernel
  .amdhsa_next_free_vgpr 512
  .amdhsa_next_free_sgpr 102
  .amdhsa_accum_offset 256
  .amdhsa_group_segment_fixed_size 0
  .amdhsa_kernarg_size 104
  .amdhsa_user_sgpr_count 2
  .amdhsa_user_sgpr_kernarg_segment_ptr 1
  .amdhsa_system_sgpr_workgroup_id_x 1
.end_amdhsa_kernel
"""
    return txt, g

if __name__ == '__main__':
    import json
    opt = {}; out = None
    for x in sys.argv[1:]:
        if '=' in x:
            kk, vv = x.split('=')
            opt[kk] = vv.split(',') if kk in ('only', 'diag') else (' ' + vv.replace('+', ' ') if kk in ('ost', 'wdm') else int(vv, 0))
        else: out = x
    txt, g = file_text(opt)
    open(out, 'w').write(txt)
    json.dump(g.stamps, open(out + '.stamps.json', 'w'))
    print('instructions', len(g.k.ins), 'nops added', g.k.nops_added, 'stamps', len(g.stamps))
```

```python
import sys, os
sys.path.insert(0, os.path.dirname(os.path.abspath(__file__)))
from dsl import *

NAME = 'interleave_layers__ssm_conv_h3__swiglu_ffn__prompt'

WS_XCCF = 0x1000
WS_KVF  = 0x10000
WS_AF   = 0x11000
WS_HF   = 0x19000
WS_FF   = 0x21000
WS_YF   = 0x40000
WS_JF   = 0x3E000
WS_KVT  = 0x100000
WS_A    = WS_KVT
WS_YP   = 0x300000
WS_H    = 0x700000
WS_WDT  = 0xE00000
WS_DBG  = 0x1000000
WS_SIZE = 0x1100000
H_X, H_HALF, H_RB = 917504, 458752, 114688

LDS_SIZE = 163840
SCR   = 114688
L_K   = SCR
L_V   = L_K + 9216
L_H   = L_V + 8192
H_CP  = 4096 + 128
H_E   = lambda ch: L_H + ch * 2 * H_CP + 64
H_O   = lambda ch: L_H + ch * 2 * H_CP + H_CP + 128
L_U   = L_H + 4 * H_CP + 128
U_S   = 4608
assert L_U + 2 * U_S <= LDS_SIZE
L_CRED = 57344
L_YT  = L_U
L_JOB = 114688 - 16384
L_RED = SCR

sX, sJ, sW, sN, sEXP, sSPIN, sXCC, sMODE = 4, 5, 6, 7, 8, 9, 10, 11
T = list(range(12, 24))
sC2 = 24
sHALF = 26
sW1S, sW1L = 27, 3
sD = 28
sDP = 34
RK, RV, RH, RQ, RG, RU, RD, RO, RW, RS = 44, 48, 52, 56, 60, 64, 68, 72, 76, 80
sK4 = 83
def k4(i): return '0' if i == 0 else s(sK4 + i)
sHH = 91
sAFp, sAFs, sHFp, sHFs, sFFp, sFFs = 94, 95, 96, 97, 98, 99
sFR = [100, 101]
sFH = 55
sROT = [0, 1, 34, 35, 54, 80, 81]
sDEL = [82, 83]
sST = (32, 92)
sKVFp, sKVs, sUm0, sYst, sYFs, sYFp, sYld, sJF, sJL, sJFp = 44, 45, 46, 47, 48, 49, 50, 51, 52, 53

vL, vL16, vL0, vNON, vPT = 1, 2, 3, 4, 5
vAld, vHld = [6, 7], [8, 9]
vHm, vHt, vAst, vF2, vO, vRw, vRr, vP31, vP7, vW1 = 10, 11, 12, 13, 14, 15, 16, 17, 18, 19
vST = (20, 21)
vFr = 0
vWd = [230, 231]
ACC = [22, 78]
WF, AR, TMP = 134, 190, 222
YS, XS = [232, 236], [240, 248]
LOG2E = 1.4426950408889634

def f32(x):
    import struct
    return '0x%08x' % struct.unpack('<I', struct.pack('<f', x))[0]

def flist(c):
    if c < 4: return [4*c + e for e in range(4)] + [16 + 4*c + e for e in range(4)]
    q = c - 4; X = [44, 46, 54][q]
    return [32 + 4*q + e for e in range(4)] + [48 + 2*q, 49 + 2*q, X, X + 1]

class Gen:
    def __init__(self, opt):
        self.o = opt
        self.k = K()
        self.tail = []
        self.stamps = []
        self.w1_next = 0
        self.late = False
        self.w1_tok = {}

    def stamp(self, name):
        dg = self.o.get('diag')
        if dg and name in dg:
            k = self.k
            k(f"s_memrealtime {s(sST[0],2)}"); k.wait_lg0()
            k(f"v_mov_b32 {v(vST[dg.index(name)])}, {s(sST[0])}")
        if not self.o.get('stamps'): return
        only = self.o.get('only')
        if only and name not in only: return
        k = self.k; n = len(self.stamps)
        k(f"s_memrealtime {s(sST[0],2)}\ns_memtime {s(sST[1],2)}"); k.wait_lg0()
        k(f"v_writelane_b32 {v(vST[0])}, {s(sST[0])}, {n}\nv_writelane_b32 {v(vST[1])}, {s(sST[1])}, {n}")
        self.stamps.append(name)

    def srd(self, base, size):
        self.k(f"s_mov_b32 {s(base+2)}, {size}\ns_mov_b32 {s(base+3)}, 0x20000")

    def poll_issue(self, vaddr, soff, off=0, vt=vPT):
        txt = f"buffer_load_dword {v(vt)}, {v(vaddr)}, {s(RW,4)}, {soff} offen offset:{off} sc1"
        return (self.k(txt), txt, vt)

    def poll_steps(self, get, local=True):
        k = self.k
        slow, back, ok = k.label(), k.label(), k.label()
        def s1(): k.wait(get()[0])
        def s2(): k(f"v_cmp_ne_u32 vcc, {s(sEXP if local else sN)}, {v(get()[2])}")
        def s3():
            if self.o.get('nopoll') and self.late: return
            k(f"s_cbranch_vccnz {slow}"); k.place(back)
            _, txt, vt = get()
            nap = self.o.get('nap_l', 0) if local else self.o.get('nap_g', 0)
            t = [f"{slow}:"] + ([f"s_sleep {nap}"] if nap else []) + [txt, "s_waitcnt vmcnt(0)", f"v_cmp_ne_u32 vcc, {s(sN)}, {v(vt)}", f"s_cbranch_vccz {ok}",
                 f"s_sub_u32 {s(sSPIN)}, {s(sSPIN)}, 1", f"s_cbranch_scc0 {slow}", "s_branch L_END", f"{ok}:"]
            if local: t += [f"s_cmp_eq_u32 {s(sMODE)}, 0", f"s_cbranch_scc1 {back}", "buffer_inv sc1", "s_waitcnt vmcnt(0)"]
            self.tail.append(t + [f"s_branch {back}"])
        return [s1, s2, s3]

    def poll_check(self, h, local=True):
        for f in self.poll_steps(lambda: h, local): f()
    def poll(self, vaddr, soff, off=0, local=True):
        self.poll_check(self.poll_issue(vaddr, soff, off), local)
    def poll_items(self, vaddr, soff, off, at_issue, at_check):
        box = []
        it = [Item(fn=lambda: box.append(self.poll_issue(vaddr, soff, off)), at=at_issue)]
        return it + [Item(fn=f, at=at_check) for f in self.poll_steps(lambda: box[0])]

    def flag_store(self, soff, off=0, local=True):
        k = self.k
        txt = f"buffer_store_dword {v(vNON)}, {v(vL0)}, {s(RW,4)}, {soff} offen offset:{off}"
        if not local: return k(txt + " sc1")
        slow, back = k.label(), k.label()
        k(f"s_cmp_lg_u32 {s(sMODE)}, 0\ns_cbranch_scc1 {slow}")
        r = k(txt); k.place(back)
        self.tail.append([f"{slow}:", "s_waitcnt vmcnt(0)", "buffer_wbl2 sc1", "s_waitcnt vmcnt(0)", txt + " sc1", f"s_branch {back}"])
        return r
    def publish(self, tok, soff, off=0, local=True):
        self.k.wait(tok)
        return self.flag_store(soff, off, local)
    def publish_items(self, get, soff, off, at):
        return [Item(fn=lambda: self.k.wait(get()), at=at), Item(fn=lambda: self.flag_store(soff, off), cost=2, at=at)]

    def dma(self, vaddr, srd, soff, m0, extra=''):
        self.k(m0)
        return self.k(f"buffer_load_dwordx4 {v(vaddr)}, {s(srd,4)}, {soff} offen {extra} lds".replace('  ', ' '))

    def prologue(self):
        k = self.k
        k("s_cmp_ge_u32 s2, 256\ns_cbranch_scc1 L_END")
        if self.o.get('stamps'): k(f"v_mov_b32 {v(vST[0])}, 0\nv_mov_b32 {v(vST[1])}, 0")
        self.stamp('entry')
        k(f"s_lshr_b32 {s(sJ)}, s2, 3")
        self.code_prefetch()
        for r, off in ((RK, 8), (RV, 16), (RW, 96), (RH, 32), (RS, 24), (RQ, 0), (RG, 56), (RU, 64), (RD, 72), (RO, 80)):
            k(f"s_load_dwordx2 {s(r,2)}, s[0:1], {off}")
        k(f"s_load_dwordx2 {s(sDP,2)}, s[0:1], 40")
        k(f"""s_and_b32 {s(sX)}, s2, 7
              v_lshrrev_b32 v5, 6, v0
              v_and_b32 {v(vL)}, 63, v0
              v_readfirstlane_b32 {s(sW)}, v5
              v_lshlrev_b32 {v(vL16)}, 4, {v(vL)}""")
        for r, size in ((RK, 2097152), (RV, 2097152), (RW, WS_SIZE), (RH, 2097152), (RS, 4096)): self.srd(r, size)

        k(f"""v_lshrrev_b32 v24, 3, {v(vL)}
              v_and_b32 v25, 7, {v(vL)}
              v_and_b32 v26, 2, v24
              v_xor_b32 v25, v25, v26
              s_and_b32 {s(T[0])}, {s(sW)}, 1
              s_lshl_b32 {s(T[0])}, {s(T[0])}, 2
              v_xor_b32 v25, {s(T[0])}, v25
              v_lshlrev_b32 v25, 4, v25
              v_lshl_add_u32 v25, v24, 10, v25
              s_lshl_b32 {s(T[0])}, {s(sJ)}, 16
              s_lshl_b32 {s(T[1])}, {s(sW)}, 14
              s_lshl_b32 {s(T[2])}, {s(sX)}, 7
              s_add_u32 {s(T[0])}, {s(T[0])}, {s(T[1])}
              s_add_u32 {s(T[0])}, {s(T[0])}, {s(T[2])}
              v_add_u32 v25, {s(T[0])}, v25
              v_xor_b32 v26, 64, v25
              v_subrev_u32 v26, 8192, v26
              s_lshl_b32 {s(T[1])}, {s(sW)}, 11
              s_add_u32 {s(T[2])}, {s(T[1])}, {L_K + 1024}
              s_add_u32 {s(T[3])}, {s(T[1])}, {L_V}
              s_movk_i32 {s(T[4])}, 8192
              v_and_b32 v27, 15, {v(vL)}
              s_lshl_b32 {s(T[0])}, {s(sX)}, 6
              s_lshl_b32 {s(T[1])}, {s(sW)}, 4
              s_add_u32 {s(T[1])}, {s(T[0])}, {s(T[1])}
              v_add_u32 v27, {s(T[1])}, v27
              v_lshlrev_b32 v28, 3, v27
              s_lshl_b32 {s(T[1])}, {s(sJ)}, 1
              s_add_u32 {s(T[0])}, {s(T[0])}, {s(T[1])}
              s_lshl_b32 {s(T[5])}, {s(T[0])}, 1
              s_lshl_b32 {s(T[6])}, {s(T[0])}, 12
              s_add_u32 {s(T[7])}, {s(T[6])}, 4096
              v_lshlrev_b32 v29, 4, v0""")
        k.wait_lg0()
        self.stamp('start')
        k(f"s_load_dword {s(sN)}, {s(RW,2)}, 0")
        k(f"s_load_dword {s(sD)}, {s(sDP,2)}, {s(T[5])}")
        self.dma(25, RK, '0', f"s_mov_b32 m0, {s(T[2])}")
        self.dma(25, RV, '0', f"s_mov_b32 m0, {s(T[3])}")
        self.dma(25, RK, s(T[4]), f"s_add_u32 m0, {s(T[2])}, 1024")
        self.dma(25, RV, s(T[4]), f"s_add_u32 m0, {s(T[3])}, 1024")
        skip = k.label()
        k(f"s_cmp_lg_u32 {s(sW)}, 0\ns_cbranch_scc1 {skip}\ns_mov_b32 m0, {L_K}\ns_nop 0")
        k.ins.append(I(f"buffer_load_dwordx4 v26, {s(RK,4)}, 0 offen lds"))
        k.place(skip)
        self.sh_tok = k(f"buffer_load_dwordx2 v[30:31], v28, {s(RS,4)}, 0 offen")
        k(f"buffer_load_dwordx4 v[32:35], v29, {s(RH,4)}, {s(T[6])} offen")
        k(f"buffer_load_dwordx4 v[40:43], v29, {s(RH,4)}, {s(T[7])} offen")
        k(f"buffer_load_dwordx4 v[36:39], v29, {s(RH,4)}, {s(T[6])} offen offset:2")
        self.h_tok = k(f"buffer_load_dwordx4 v[44:47], v29, {s(RH,4)}, {s(T[7])} offen offset:2")
        k(f"""s_getreg_b32 {s(sXCC)}, hwreg(HW_REG_XCC_ID, 0, 4)
              v_cmp_eq_u32 vcc, 0, {v(vL)}
              v_mov_b32 v5, 0x80000000
              s_lshl_b32 {s(T[1])}, {s(sX)}, 5
              s_add_u32 {s(T[1])}, {s(T[1])}, {s(sJ)}
              s_mul_i32 {s(T[1])}, {s(T[1])}, {self.o.get('xs', 4)}
              s_add_u32 {s(T[1])}, {s(T[1])}, {WS_XCCF}
              s_cmp_eq_u32 {s(sW)}, 2
              s_cselect_b32 {s(T[1])}, {s(T[1])}, 0x40000000
              v_cndmask_b32 {v(vL0)}, v5, 0, vcc""")
        k.wait_lg0()
        k(f"""s_mul_i32 {s(sN)}, {s(sN)}, 1664525
              s_add_u32 {s(sN)}, {s(sN)}, 1013904223
              s_xor_b32 {s(T[0])}, {s(sN)}, {s(sXCC)}
              v_mov_b32 v5, {s(T[0])}
              v_mov_b32 {v(vNON)}, {s(sN)}""")
        k(f"buffer_store_dword v5, {v(vL0)}, {s(RW,4)}, {s(T[1])} offen sc1")
        for r, size in ((RQ, 2097152), (RG, 1835008), (RU, 1835008), (RD, 1835008), (RO, 2097152)): self.srd(r, size)
        k(f"""s_lshr_b32 {s(sD+2)}, {s(sD)}, 16
              s_and_b32 {s(sD+3)}, {s(sD)}, 0xffff0000
              s_lshl_b32 {s(sD+1)}, {s(sD)}, 16
              s_and_b32 {s(sD)}, {s(sD)}, 0xffff
              s_mov_b32 {s(sC2)}, {f32(LOG2E*LOG2E)}
              s_mov_b32 {s(sC2+1)}, {f32(LOG2E*LOG2E)}
              s_mov_b32 {s(sSPIN)}, {self.o.get('spin', 400000)}
              s_mov_b32 {s(sHALF)}, 0x20000
              s_mov_b32 {s(sHH)}, {H_HALF}
              v_and_b32 {v(vP31)}, 31, {v(vL)}
              v_lshlrev_b32 {v(vP31)}, 2, {v(vP31)}
              v_and_b32 {v(vP7)}, 7, {v(vL)}
              v_lshlrev_b32 {v(vP7)}, 2, {v(vP7)}""")
        for i in range(1, 8): k(f"s_movk_i32 {s(sK4+i)}, {4096*i}")

    def code_prefetch(self):
        if not self.o.get('cpf', 1): return
        k = self.k
        k(f"s_getpc_b64 {s(T[2],2)}")
        k.place("L_PC")
        k(f"""s_mul_i32 {s(T[4])}, {s(sJ)}, ((L_LAST-L_PC+4095)/4096)*128
              v_min_u32 v5, (L_LAST-L_PC+4095)/4096-1, v0
              v_lshl_add_u32 v5, v5, 7, {s(T[4])}
              v_min_u32 v5, L_LAST-L_PC-4, v5
              global_load_dword v219, v5, {s(T[2],2)}""")

    def tlb_touch(self):
        if not self.o.get('tlb', 0): return
        k = self.k
        k(f"v_and_b32 v5, 15, {v(vL)}\nv_lshlrev_b32 v5, 20, v5")
        k(f"buffer_load_dword v200, v5, {s(RW,4)}, 0 offen offset:512")
        k(f"buffer_load_dword v201, v5, {s(RO,4)}, 0 offen")
        k(f"buffer_load_dword v196, v5, {s(RG,4)}, 0 offen")
        k(f"buffer_load_dword v197, v5, {s(RU,4)}, 0 offen")
        k(f"buffer_load_dword v198, v5, {s(RQ,4)}, 0 offen")

    def touch_first(self):
        k = self.k
        if self.o.get('tch_kv', 1):
            k(f"v_and_b32 v5, 15, {v(vL)}\nv_lshlrev_b32 v5, 7, v5")
            k(f"buffer_load_dword v220, v5, {s(RW,4)}, {s(sKVs)} offen sc1")
        if self.o.get('tch_fl', 1):
            k(f"""v_lshrrev_b32 v22, 4, {v(vL)}
                  v_lshlrev_b32 v22, 15, v22
                  v_and_b32 v5, 15, {v(vL)}
                  v_lshl_add_u32 v22, v5, 7, v22
                  s_lshl_b32 {s(T[0])}, {s(sX)}, 12
                  s_add_u32 {s(T[0])}, {s(T[0])}, {WS_AF}
                  v_add_u32 v22, {s(T[0])}, v22
                  v_and_b32 v5, 3, v5
                  s_lshl_b32 {s(T[0])}, {s(sX)}, 9
                  s_add_u32 {s(T[0])}, {s(T[0])}, {WS_KVF}
                  v_lshl_add_u32 v5, v5, 7, {s(T[0])}
                  v_cmp_gt_u32 vcc, 48, {v(vL)}
                  s_cmp_eq_u32 {s(sW)}, 3
                  s_cselect_b32 {s(T[0])}, 0, 0x40000000
                  v_cndmask_b32 v5, v5, v22, vcc
                  buffer_load_dword v221, v5, {s(RW,4)}, {s(T[0])} offen sc1""")
    def touch_global_flags(self):
        if not self.o.get('tch_g', 1): return
        k = self.k
        k(f"""v_lshlrev_b32 v5, 7, {v(vL)}
              s_cmp_eq_u32 {s(sW)}, 1
              s_cselect_b32 {s(T[0])}, {s(sJ)}, 31
              s_lshl_b32 {s(T[1])}, {s(T[0])}, 13
              s_cmp_lt_u32 {s(T[0])}, {1 + self.o.get('yfs', 4)//4}
              s_cselect_b32 {s(T[0])}, {s(T[1])}, 0x40000000
              s_add_u32 {s(T[0])}, {s(T[0])}, {WS_JF}
              buffer_load_dword v202, v5, {s(RW,4)}, {s(T[0])} offen sc1""")
    def touch_f(self):
        k = self.k
        k(f"""v_and_b32 v5, 7, {v(vL)}
              v_lshlrev_b32 v5, 7, v5
              v_bfe_u32 v22, {v(vL)}, 3, 1
              v_lshl_add_u32 v5, v22, 17, v5
              buffer_load_dword v199, v5, {s(RW,4)}, {s(sFR[0])} offen sc1""")

    def q_load(self):
        k = self.k
        k(f"""s_lshl_b32 {s(T[0])}, {s(sX)}, 7
              s_lshl_b32 {s(T[1])}, {s(sJ)}, 2
              s_add_u32 {s(T[0])}, {s(T[0])}, {s(T[1])}
              s_add_u32 {s(T[0])}, {s(T[0])}, {s(sW)}
              s_lshl_b32 {s(T[0])}, {s(T[0])}, 10
              s_add_u32 {s(T[1])}, {s(T[0])}, 0x100000""")
        k(f"buffer_load_dwordx4 v[204:207], {v(vL16)}, {s(RQ,4)}, {s(T[0])} offen")
        self.q_tok = k(f"buffer_load_dwordx4 v[208:211], {v(vL16)}, {s(RQ,4)}, {s(T[1])} offen")

    def persistent(self):
        k = self.k
        k(f"""s_lshl_b32 {s(T[0])}, {s(sJ)}, 2
              s_add_u32 {s(T[0])}, {s(T[0])}, {s(sW)}
              s_lshl_b32 {s(T[8])}, {s(sX)}, 18
              s_lshl_b32 {s(T[9])}, {s(sX)}, 12
              s_lshr_b32 {s(T[10])}, {s(sJ)}, 3
              s_and_b32 {s(T[11])}, {s(sJ)}, 7
              s_lshl_b32 {s(T[1])}, {s(T[0])}, 2
              s_add_u32 {s(T[1])}, {s(T[1])}, {s(T[9])}
              s_add_u32 {s(sAFs)}, {s(T[1])}, {WS_AF}
              s_lshl_b32 {s(T[1])}, {s(sW)}, 7
              s_add_u32 {s(T[1])}, {s(T[1])}, {s(T[9])}
              s_add_u32 {s(sAFp)}, {s(T[1])}, {WS_AF}
              s_lshl_b32 {s(T[2])}, {s(sJ)}, 2
              s_add_u32 {s(T[1])}, {s(T[1])}, {s(T[2])}
              s_add_u32 {s(sHFs)}, {s(T[1])}, {WS_HF}
              s_lshl_b32 {s(T[1])}, {s(T[10])}, 7
              s_lshl_b32 {s(T[2])}, {s(sW)}, 5
              s_add_u32 {s(T[1])}, {s(T[1])}, {s(T[2])}
              s_add_u32 {s(T[1])}, {s(T[1])}, {s(T[9])}
              s_add_u32 {s(sHFp)}, {s(T[1])}, {WS_HF}
              s_lshl_b32 {s(T[2])}, {s(T[11])}, 2
              s_add_u32 {s(T[1])}, {s(T[1])}, {s(T[2])}
              s_add_u32 {s(sFFs)}, {s(T[1])}, {WS_FF}
              s_lshr_b32 {s(T[1])}, {s(sJ)}, 1
              s_lshl_b32 {s(T[1])}, {s(T[1])}, 5
              s_add_u32 {s(T[1])}, {s(T[1])}, {s(T[9])}
              s_add_u32 {s(sFFp)}, {s(T[1])}, {WS_FF}
              s_lshr_b32 {s(T[1])}, {s(T[0])}, 5
              s_lshl_b32 {s(T[1])}, {s(T[1])}, 15
              s_bfe_u32 {s(T[2])}, {s(T[0])}, 0x10004
              s_lshl_b32 {s(T[2])}, {s(T[2])}, 10
              s_and_b32 {s(T[3])}, {s(T[0])}, 15
              s_lshl_b32 {s(T[3])}, {s(T[3])}, 4
              s_add_u32 {s(T[1])}, {s(T[1])}, {s(T[2])}
              s_add_u32 {s(T[1])}, {s(T[1])}, {s(T[3])}
              s_add_u32 {s(T[1])}, {s(T[1])}, {s(T[8])}
              s_add_u32 {s(T[1])}, {s(T[1])}, {WS_A}
              v_lshrrev_b32 v5, 2, {v(vL)}
              v_lshlrev_b32 v5, 11, v5
              v_and_b32 {v(vAst)}, 3, {v(vL)}
              v_lshl_add_u32 {v(vAst)}, {v(vAst)}, 8, v5
              v_add_u32 {v(vAst)}, {s(T[1])}, {v(vAst)}
              s_lshl_b32 {s(T[1])}, {s(sW)}, 15
              s_add_u32 {s(T[1])}, {s(T[1])}, {s(T[8])}
              s_add_u32 {s(T[1])}, {s(T[1])}, {WS_A}
              v_add_u32 {v(vAld[0])}, {s(T[1])}, {v(vL16)}
              v_add_u32 {v(vAld[1])}, 0x20000, {v(vAld[0])}
              v_add_u32 {v(vW1)}, 57344, {v(vL16)}
              v_lshrrev_b32 v5, 4, {v(vL)}
              v_and_b32 v23, 15, {v(vL)}
              v_lshlrev_b32 v22, 9, v5
              v_lshl_add_u32 v22, v23, 4, v22
              s_mul_i32 {s(T[4])}, {s(sX)}, {H_X}
              s_add_u32 {s(T[4])}, {s(T[4])}, {WS_H}
              s_mul_i32 {s(T[1])}, {s(sW)}, {H_RB}
              s_mul_i32 {s(T[2])}, {s(sJ)}, 3584
              s_add_u32 {s(T[1])}, {s(T[1])}, {s(T[2])}
              s_add_u32 {s(T[1])}, {s(T[1])}, {s(T[4])}
              v_add_u32 {v(vHm)}, {s(T[1])}, v22
              s_mul_i32 {s(T[1])}, {s(T[10])}, {H_RB}
              s_mul_i32 {s(T[2])}, {s(sW)}, 28672
              s_add_u32 {s(T[1])}, {s(T[1])}, {s(T[2])}
              s_add_u32 {s(T[1])}, {s(T[1])}, {s(T[4])}
              v_add_u32 {v(vHld[0])}, {s(T[1])}, v22
              v_add_u32 {v(vHld[1])}, {H_HALF}, {v(vHld[0])}
              v_cmp_gt_u32 vcc, 48, {v(vL)}
              v_add_u32 {v(vHt)}, 2048, {v(vHm)}
              v_mov_b32 v22, 0x80000000
              v_mul_u32_u24 {v(vRw)}, 272, v23
              v_cndmask_b32 {v(vHt)}, v22, {v(vHt)}, vcc
              v_lshl_add_u32 {v(vRw)}, v5, 4, {v(vRw)}
              s_mul_i32 {s(T[1])}, {s(sW)}, 8704
              s_add_u32 {s(T[1])}, {s(T[1])}, {L_RED}
              v_add_u32 {v(vRw)}, {s(T[1])}, {v(vRw)}
              v_lshrrev_b32 v5, 3, {v(vL)}
              v_mul_u32_u24 {v(vRr)}, 272, v5
              v_lshl_add_u32 {v(vRr)}, {v(vP7)}, 3, {v(vRr)}
              s_mul_i32 {s(T[1])}, {s(sW)}, {8*272}
              s_add_u32 {s(T[1])}, {s(T[1])}, {L_RED}
              v_add_u32 {v(vRr)}, {s(T[1])}, {v(vRr)}
              s_lshl_b32 {s(T[1])}, {s(T[10])}, 5
              s_lshl_b32 {s(T[2])}, {s(sW)}, 3
              s_add_u32 {s(T[1])}, {s(T[1])}, {s(T[2])}
              v_add_u32 v5, {s(T[1])}, v5
              s_lshl_b32 {s(T[2])}, {s(T[11])}, 7
              s_lshl_b32 {s(T[1])}, {s(sX)}, 17
              s_add_u32 {s(T[2])}, {s(T[2])}, {s(T[1])}
              v_lshl_add_u32 v22, {v(vP7)}, 2, {s(T[2])}
              v_lshl_add_u32 {v(vO)}, v5, 10, v22
              s_lshr_b32 {s(T[1])}, {s(T[11])}, 2
              s_lshl_b32 {s(T[1])}, {s(T[1])}, 13
              s_and_b32 {s(T[2])}, {s(T[11])}, 3
              s_lshl_b32 {s(T[2])}, {s(T[2])}, 7
              s_add_u32 {s(T[1])}, {s(T[1])}, {s(T[2])}
              s_lshl_b32 {s(T[2])}, {s(sX)}, 9
              s_add_u32 {s(T[1])}, {s(T[1])}, {s(T[2])}
              s_add_u32 {s(T[1])}, {s(T[1])}, {WS_YP}
              v_lshl_add_u32 {v(vF2)}, {v(vP7)}, 2, {s(T[1])}
              v_lshl_add_u32 {v(vF2)}, v5, 14, {v(vF2)}
              s_mov_b32 {s(sFH)}, 0x100000
              s_lshl_b32 {s(T[1])}, {s(T[0])}, 14
              s_add_u32 {s(T[1])}, {s(T[1])}, {s(T[2])}
              s_add_u32 {s(sFR[0])}, {s(T[1])}, {WS_YP}
              s_add_u32 {s(sFR[1])}, {s(T[1])}, {WS_YP + 4096}
              v_lshrrev_b32 v5, 5, {v(vL)}
              v_lshlrev_b32 v5, 13, v5
              v_lshl_add_u32 {v(vFr)}, {v(vP31)}, 2, v5""")

    W1V = 212
    def w1_addr(self):
        k = self.k; vb = self.W1V; rot = self.o.get('rot', 1)
        k(f"""s_mul_i32 {s(T[0])}, {s(sJ)}, 112
              s_movk_i32 {s(T[1])}, 9363
              s_movk_i32 {s(T[2])}, {3584 - 7*16}
              s_mul_i32 {s(sW1S)}, {s(sW)}, 229376
              s_mul_i32 {s(sW1L)}, {s(sW)}, 14336
              s_and_b32 {s(T[3])}, {s(sX)}, {6 if rot else 0}
              s_and_b32 {s(T[4])}, {s(sX)}, {1 if rot else 0}
              s_cselect_b32 {s(T[5])}, {s(RU)}, {s(RG)}
              s_cselect_b32 {s(T[6])}, {s(RU+1)}, {s(RG+1)}
              s_cselect_b32 {s(RU)}, {s(RG)}, {s(RU)}
              s_cselect_b32 {s(RU+1)}, {s(RG+1)}, {s(RU+1)}
              s_cselect_b32 {s(T[4])}, 7168, 0
              s_lshl_b32 {s(sDEL[0])}, {s(T[4])}, 1
              s_sub_u32 {s(sDEL[0])}, 7168, {s(sDEL[0])}
              s_mov_b32 {s(RG)}, {s(T[5])}
              s_mov_b32 {s(RG+1)}, {s(T[6])}
              s_add_u32 {s(sDEL[1])}, {s(sDEL[0])}, 57344
              s_add_u32 {s(T[4])}, {s(T[4])}, {s(sW1L)}""")
        for i in range(7):
            k(f"""s_add_u32 {s(T[5])}, {s(T[3])}, {i}
                  s_sub_u32 {s(T[6])}, {s(T[5])}, 7
                  s_cselect_b32 {s(T[5])}, {s(T[5])}, {s(T[6])}
                  s_lshl_b32 {s(T[6])}, {s(T[5])}, 10
                  s_add_u32 {s(sROT[i])}, {s(T[6])}, {s(T[4])}
                  v_lshl_add_u32 v5, {s(T[5])}, 6, {v(vL)}
                  v_mul_u32_u24 {v(vb+i)}, {s(T[1])}, v5
                  v_lshrrev_b32 {v(vb+i)}, 16, {v(vb+i)}
                  v_mul_u32_u24 {v(vb+i)}, {s(T[2])}, {v(vb+i)}
                  v_lshl_add_u32 {v(vb+i)}, v5, 4, {v(vb+i)}
                  v_add_u32 {v(vb+i)}, {s(T[0])}, {v(vb+i)}""")

    def w1_dma_text(self, n):
        ck, mat, i = n // 14, (n % 14) // 7, n % 7
        L = []
        if n == 14: L.append(f"s_add_u32 {s(sW1S)}, {s(sW1S)}, {4*229376}")
        L.append(f"s_add_u32 m0, {s(sROT[i])}, {s(sDEL[ck]) if mat else ck*57344}")
        L.append(f"buffer_load_dwordx4 {v(self.W1V+i)}, {s(RU if mat else RG,4)}, {s(sW1S)} offen lds")
        return L
    def w1_dma(self, cnt):
        for _ in range(cnt):
            if self.w1_next >= 28: return
            n = self.w1_next; self.w1_next += 1
            for x in self.w1_dma_text(n): self.w1_tok[n] = self.k(x)

    RL = 222
    def w1_relayout_addr(self):
        k = self.k; r = self.RL
        k(f"""v_lshrrev_b32 v5, 4, {v(vL)}
              v_bfe_u32 {v(r)}, {v(vL)}, 2, 2
              v_lshl_add_u32 {v(r)}, v5, 3, {v(r)}
              v_mul_u32_u24 {v(r)}, 112, {v(r)}
              v_add_u32 {v(r)}, {s(sW1L)}, {v(r)}
              v_and_b32 {v(r+2)}, 3, {v(vL)}
              v_bfe_u32 {v(r+3)}, {v(vL)}, 1, 1
              v_mul_u32_u24 {v(r+3)}, 7168, {v(r+3)}
              v_and_b32 v22, 1, {v(vL)}
              v_lshl_add_u32 {v(r+3)}, v22, 3, {v(r+3)}
              v_add_u32 {v(r+1)}, {v(r)}, {v(r+3)}
              v_lshl_add_u32 {v(r)}, {v(r+2)}, 3, {v(r)}
              v_add_u32 {v(r+2)}, {s(sW1L)}, {v(vL16)}
              v_bfe_u32 {v(r+3)}, {v(vL)}, 1, 2
              v_lshlrev_b32 {v(r+3)}, 2, {v(r+3)}
              v_bfe_u32 v23, {v(vL)}, 3, 1
              v_lshl_add_u32 {v(r+3)}, v23, 1, {v(r+3)}
              v_add_u32 {v(r+3)}, {v(r+3)}, v22
              v_lshl_add_u32 {v(r+3)}, v5, 4, {v(r+3)}
              v_lshlrev_b32 {v(r+3)}, 4, {v(r+3)}
              v_add_u32 {v(r+3)}, {s(sW1L)}, {v(r+3)}""")
    def w1_relayout_items(self, ck, vtemp=False):
        k = self.k; r = self.RL
        R, a = (ACC[1], v) if vtemp else (128, globals()['a'])
        L = [Item(fn=lambda: k.wait(self.w1_tok[14*ck + 13]))]
        if ck == 1: L += [Item(f"v_add_u32 {v(r+i)}, 57344, {v(r+i)}") for i in range(4)]
        for sl in range(2):
            for Tt in range(7):
                for hf in range(2):
                    d = R + (sl*7 + Tt)*4 + 2*hf
                    o = (32*sl + 4*hf)*112
                    if Tt < 6: L.append(Item(f"ds_read_b64_tr_b16 {a(d,2)}, {v(r)} offset:{o + (Tt&1)*7168 + 32*(Tt>>1)}"))
                    else: L.append(Item(f"ds_read_b64_tr_b16 {a(d,2)}, {v(r+1)} offset:{o + 96}"))
        last = L[-1]
        L.append(Item(fn=lambda: k.wait(last.tok)))
        for n in range(14): L.append(Item(f"ds_write_b128 {v(r+3 if n % 7 == 6 else r+2)}, {a(R + n*4, 4)} offset:{n*1024}"))
        return L
    def w1_relayout(self, ck): Queue(self.k, self.w1_relayout_items(ck)).drain()

    JV = 190
    def wd_job_addr(self):
        k = self.k; r = self.JV
        k(f"""s_lshl_b32 {s(T[0])}, s2, 1
              s_lshr_b32 {s(T[1])}, {s(sW)}, 1
              s_add_u32 {s(T[0])}, {s(T[0])}, {s(T[1])}
              s_mul_i32 {s(T[1])}, {s(T[0])}, 4682
              s_lshr_b32 {s(T[1])}, {s(T[1])}, 16
              s_mul_i32 {s(T[2])}, {s(T[1])}, 14
              s_sub_u32 {s(T[2])}, {s(T[0])}, {s(T[2])}
              s_and_b32 {s(T[3])}, {s(T[1])}, 3
              s_lshr_b32 {s(T[1])}, {s(T[1])}, 2
              s_lshl_b32 {s(T[1])}, {s(T[1])}, 7
              s_mul_i32 {s(T[3])}, {s(T[3])}, {8*57344}
              s_add_u32 {s(T[1])}, {s(T[1])}, {s(T[3])}
              s_cmp_lt_u32 s2, 224
              s_cselect_b32 {s(T[3])}, {s(sW)}, 0
              s_bitcmp1_b32 {s(T[3])}, 0
              s_cselect_b32 {s(T[3])}, 0, 0x80000000
              s_lshl_b32 {s(T[4])}, {s(T[0])}, 2
              s_add_u32 {s(T[4])}, {s(T[4])}, {WS_JF}
              s_lshr_b32 {s(sJF)}, {s(T[3])}, 1
              s_or_b32 {s(sJF)}, {s(sJF)}, {s(T[4])}
              s_lshl_b32 {s(T[0])}, {s(T[0])}, 12
              s_add_u32 {s(T[0])}, {s(T[0])}, {WS_WDT}
              s_or_b32 {s(T[0])}, {s(T[0])}, {s(T[3])}
              s_or_b32 {s(T[1])}, {s(T[1])}, {s(T[3])}
              v_add_u32 {v(r+5)}, {s(T[0])}, {v(vL16)}
              v_lshrrev_b32 v5, 3, {v(vL)}
              v_and_b32 v22, 3, v5
              v_lshlrev_b32 v22, 3, v22
              v_cmp_gt_u32 vcc, 4, v5
              v_lshl_add_u32 v23, {v(vP7)}, 2, {s(T[1])}
              s_lshl_b32 {s(T[2])}, {s(T[2])}, 2""")
        for g in range(4):
            k(f"""s_add_u32 {s(T[0])}, {s(T[2])}, {g}
                  s_mul_i32 {s(T[1])}, {s(T[0])}, 9363
                  s_lshr_b32 {s(T[1])}, {s(T[1])}, 16
                  s_mul_i32 {s(T[3])}, {s(T[1])}, 7
                  s_sub_u32 {s(T[0])}, {s(T[0])}, {s(T[3])}
                  s_mul_i32 {s(T[1])}, {s(T[1])}, 56
                  s_mul_i32 {s(T[3])}, {s(T[0])}, 0x04040404
                  s_add_u32 {s(T[4])}, {s(T[3])}, 0x13121110
                  s_add_u32 {s(T[3])}, {s(T[3])}, 0x03020100
                  s_cmp_ge_u32 {s(T[0])}, 4
                  s_cselect_b32 {s(T[3])}, {s(T[4])}, {s(T[3])}
                  s_cselect_b32 {s(T[4])}, {sum(x << (8*e) for e, x in enumerate(flist(4)[4:]))}, {s(T[4])}
                  s_cmp_eq_u32 {s(T[0])}, 5
                  s_cselect_b32 {s(T[4])}, {sum(x << (8*e) for e, x in enumerate(flist(5)[4:]))}, {s(T[4])}
                  s_cmp_eq_u32 {s(T[0])}, 6
                  s_cselect_b32 {s(T[4])}, {sum(x << (8*e) for e, x in enumerate(flist(6)[4:]))}, {s(T[4])}
                  v_mov_b32 v5, {s(T[3])}
                  v_mov_b32 {v(r+g)}, {s(T[4])}
                  v_cndmask_b32 v5, {v(r+g)}, v5, vcc
                  v_bfe_u32 v5, v5, v22, 8
                  v_add_u32 v5, {s(T[1])}, v5
                  v_lshl_add_u32 {v(r+g)}, v5, 10, v23""")
        k(f"""s_lshl_b32 {s(sJL)}, {s(sW)}, 12
              s_add_u32 {s(sJL)}, {s(sJL)}, {L_JOB}
              v_lshrrev_b32 v5, 4, {v(vL)}
              v_lshlrev_b32 {v(r+4)}, 10, v5
              v_bfe_u32 v5, {v(vL)}, 2, 2
              v_lshl_add_u32 {v(r+4)}, v5, 7, {v(r+4)}
              v_and_b32 v5, 3, {v(vL)}
              v_lshl_add_u32 {v(r+4)}, v5, 3, {v(r+4)}
              v_add_u32 {v(r+4)}, {s(sJL)}, {v(r+4)}""")
    def wd_job_issue(self):
        for g in range(4): self.job_tok = self.dma(self.JV+g, RD, '0', f"s_add_u32 m0, {s(sJL)}, {1024*g}")
    def wd_job_finish(self):
        k = self.k; r = self.JV
        k.wait(self.job_tok)
        t = {}
        for nt in range(4):
            for hf in range(2): t[nt] = k(f"ds_read_b64_tr_b16 {a(128 + 4*nt + 2*hf, 2)}, {v(r+4)} offset:{hf*512 + nt*32}")
        for nt in range(4):
            k.wait(t[nt])
            self.job_st = k(f"buffer_store_dwordx4 {a(128 + 4*nt, 4)}, {v(r+5)}, {s(RW,4)}, 0 offen offset:{1024*nt} sc1")
    WDV = 226
    def wd_addr(self):
        self.k(f"""s_and_b32 {s(T[0])}, {s(sJ)}, 7
                   s_lshl_b32 {s(T[0])}, {s(T[0])}, 2
                   s_add_u32 {s(T[0])}, {s(T[0])}, {s(sW)}
                   s_mul_i32 {s(sJFp)}, {s(T[0])}, {14*4}
                   s_add_u32 {s(sJFp)}, {s(sJFp)}, {WS_JF}
                   s_mul_i32 {s(T[0])}, {s(T[0])}, {14*4096}
                   s_add_u32 {s(T[0])}, {s(T[0])}, {WS_WDT}
                   v_add_u32 {v(vWd[0])}, {s(T[0])}, {v(vL16)}
                   v_add_u32 {v(vWd[1])}, 32768, {v(vWd[0])}
                   v_min_u32 v226, 13, {v(vL)}
                   v_lshlrev_b32 v226, 2, v226
                   s_lshr_b32 {s(T[1])}, {s(sJ)}, 3
                   s_mul_i32 {s(T[1])}, {s(T[1])}, {112*128}
                   s_add_u32 {s(T[0])}, {s(T[0])}, {s(T[1])}
                   v_min_u32 v227, 55, {v(vL)}
                   v_lshl_add_u32 v227, v227, 7, {s(T[0])}""")
    def wd_touch_text(self, i):
        return f"buffer_load_dword {v(228+i)}, v227, {s(RW,4)}, {k4(i)} offen offset:{3072*i} sc1"
    def wd_text(self, n):
        U, nt = divmod(n, 4)
        return f"buffer_load_dwordx4 {a(4*n, 4)}, {v(vWd[U >> 3])}, {s(RW,4)}, {k4(U & 7)} offen offset:{1024*nt}{self.o.get('wdm', ' sc1')}"

    def phase0(self):
        k = self.k
        k(f"""v_lshrrev_b32 v5, 4, {v(vL)}
              v_bfe_u32 v48, {v(vL)}, 2, 2
              v_lshl_add_u32 v49, v5, 4, v48
              v_lshlrev_b32 v49, 7, v49
              v_bfe_u32 v50, {v(vL)}, 1, 1
              s_lshl_b32 {s(T[0])}, {s(sW)}, 1
              v_add_u32 v50, {s(T[0])}, v50
              v_and_b32 v48, 2, v48
              v_xor_b32 v50, v50, v48
              v_and_b32 v48, 1, v5
              v_lshlrev_b32 v48, 2, v48
              v_xor_b32 v50, v50, v48
              v_lshl_add_u32 v49, v50, 4, v49
              v_and_b32 v48, 1, {v(vL)}
              v_lshl_add_u32 v49, v48, 3, v49
              v_add_u32 v49, {L_K}, v49
              v_xor_b32 v50, 64, v49
              v_lshlrev_b32 v51, 12, v27
              v_lshl_add_u32 v51, v5, 5, v51
              s_lshl_b32 {s(T[6])}, {s(sJ)}, 7
              s_add_u32 {s(T[6])}, {s(T[6])}, {WS_KVT}
              v_mul_u32_u24 v52, {self.o.get('xs', 4)//4}, {v(vP31)}
              s_mul_i32 {s(T[7])}, {s(sX)}, {32*self.o.get('xs', 4)}
              s_add_u32 {s(T[7])}, {s(T[7])}, {WS_XCCF}
              s_lshl_b32 {s(T[0])}, {s(sX)}, 9
              s_lshl_b32 {s(T[1])}, {s(sW)}, 7
              s_lshl_b32 {s(T[2])}, {s(sJ)}, 2
              s_add_u32 {s(T[1])}, {s(T[1])}, {s(T[2])}
              s_add_u32 {s(T[0])}, {s(T[0])}, {WS_KVF}
              s_add_u32 {s(T[5])}, {s(T[1])}, {s(T[0])}
              s_xor_b32 {s(T[0])}, {s(sN)}, {s(sXCC)}
              s_mov_b32 {s(sMODE)}, 0
              s_mov_b32 {s(sEXP)}, {s(sN)}""")
        k.wait(self.sh_tok)
        k("s_barrier")
        self.stamp('kv_in')
        xh = k(f"buffer_load_dword v53, v52, {s(RW,4)}, {s(T[7])} offen sc1")
        KR, VR, KS, O, VU, P = 56, 68, 78, 88, 104, 120
        k(f"ds_read_b64_tr_b16 {v(KR,2)}, v50 offset:512")
        for i in range(4): k(f"ds_read_b64_tr_b16 {v(KR+2+2*i,2)}, v49 offset:{1024 + 512*i}")
        for i in range(4): lastv = k(f"ds_read_b64_tr_b16 {v(VR+2*i,2)}, v49 offset:{L_V - L_K + 512*i}")
        k("v_alignbit_b32 v54, v30, v30, 16\nv_alignbit_b32 v55, v31, v31, 16")
        k.wait(('lg', lastv[1] - 4))
        for aa in range(-1, 8): k(f"v_alignbit_b32 {v(KS+1+aa)}, {v(KR+2+aa)}, {v(KR+1+aa)}, 16")
        for aa in range(8):
            k(f"v_dot2_f32_bf16 {v(O+2*aa)}, {v(KS+aa)}, v55, 0")
            k(f"v_dot2_f32_bf16 {v(O+2*aa+1)}, {v(KR+1+aa)}, v55, 0")
        for aa in range(8):
            k(f"v_dot2_f32_bf16 {v(O+2*aa)}, {v(KS+1+aa)}, v54, {v(O+2*aa)}")
            k(f"v_dot2_f32_bf16 {v(O+2*aa+1)}, {v(KR+2+aa)}, v54, {v(O+2*aa+1)}")
        k.wait(lastv)
        for g in range(2):
            for aa in range(4*g, 4*g+4):
                k(f"v_lshlrev_b32 {v(VU+2*aa)}, 16, {v(VR+aa)}")
                k(f"v_and_b32 {v(VU+2*aa+1)}, 0xffff0000, {v(VR+aa)}")
            for aa in range(4*g, 4*g+4): k(f"v_pk_mul_f32 {v(O+2*aa,2)}, {v(O+2*aa,2)}, {v(VU+2*aa,2)}")
            for e in range(4): k(f"v_cvt_pk_bf16_f32 {v(P+4*g+e)}, {v(O+8*g+7-2*e)}, {v(O+8*g+6-2*e)}")
            st = k(f"buffer_store_dwordx4 {v(P+4*g,4)}, v51, {s(RW,4)}, {s(T[6])} offen offset:{16*g}")
        self.stamp('kv_st')
        self.toeplitz_write()
        slow, back, done = k.label(), k.label(), k.label()
        k.wait(xh)
        k(f"v_cmp_ne_u32 vcc, {s(T[0])}, v53\ns_cbranch_vccnz {slow}")
        k.place(back)
        self.tail.append([f"{slow}:",
            f"buffer_load_dword v53, v52, {s(RW,4)}, {s(T[7])} offen sc1", "s_waitcnt vmcnt(0)",
            f"v_xor_b32 v54, {s(sN)}, v53", "v_cmp_lt_u32 vcc, 15, v54", f"s_cbranch_vccz {done}",
            f"s_sub_u32 {s(sSPIN)}, {s(sSPIN)}, 1", f"s_cbranch_scc0 {slow}", "s_branch L_END",
            f"{done}:", f"v_cmp_ne_u32 vcc, {s(T[0])}, v53", f"s_cbranch_vccz {back}",
            f"s_mov_b32 {s(sMODE)}, 1", f"s_not_b32 {s(sEXP)}, {s(sN)}", f"s_branch {back}"])
        self.publish(st, s(T[5]))
        self.stamp('kv_pub')

    def toeplitz_write(self):
        k = self.k
        k.wait(self.h_tok)
        k(f"v_add_u32 v48, {SCR}, v29")
        for ch in range(2):
            k(f"ds_write_b128 v48, {v(32+8*ch,4)} offset:{H_E(ch) - SCR}")
            k(f"ds_write_b128 v48, {v(36+8*ch,4)} offset:{H_O(ch) - SCR}")
        skip = k.label()
        k(f"s_cmp_lg_u32 {s(sW)}, 0\ns_cbranch_scc1 {skip}")
        k(f"""v_readfirstlane_b32 {s(T[1])}, v32
              v_readfirstlane_b32 {s(T[2])}, v40
              v_cmp_eq_u32 vcc, 28, {v(vP7)}
              v_add_u32 v49, {SCR}, {v(vP7)}
              s_lshl_b32 {s(T[1])}, {s(T[1])}, 16
              s_lshl_b32 {s(T[2])}, {s(T[2])}, 16
              v_mov_b32 v50, 0
              v_mov_b32 v51, 0
              v_mov_b32 v54, {s(T[1])}
              v_mov_b32 v55, {s(T[2])}
              v_cndmask_b32 v54, v50, v54, vcc
              v_cndmask_b32 v55, v50, v55, vcc
              ds_write_b32 v49, v50 offset:{H_E(0) - 32 - SCR}
              ds_write_b32 v49, v50 offset:{H_E(1) - 32 - SCR}
              ds_write_b32 v49, v54 offset:{H_O(0) - 32 - SCR}
              ds_write_b32 v49, v55 offset:{H_O(1) - 32 - SCR}
              v_lshlrev_b32 v49, 3, {v(vL)}
              v_add_u32 v49, {L_U}, v49
              ds_write_b64 v49, v[50:51]
              ds_write_b64 v49, v[50:51] offset:{U_S}""")
        k.place(skip)

    YA = 146
    def front_addr(self):
        k = self.k; o = self.o; Y = self.YA; yfs = o.get('yfs', 4)
        k(f"""v_and_b32 v24, 15, {v(vL)}
              v_lshrrev_b32 v25, 4, {v(vL)}
              v_lshlrev_b32 v5, 3, v25
              v_sub_u32 v26, v24, v5
              v_add_u32 v26, 9, v26
              v_and_b32 v5, 1, v26
              v_sub_u32 v26, v26, v5
              v_lshlrev_b32 v26, 1, v26
              v_mul_u32_u24 v5, {H_O(0) - H_E(0)}, v5
              v_add_u32 v26, v26, v5
              s_lshr_b32 {s(T[0])}, {s(sW)}, 1
              s_mul_i32 {s(T[2])}, {s(T[0])}, {H_E(1) - H_E(0)}
              s_and_b32 {s(T[1])}, {s(sW)}, 1
              s_lshl_b32 {s(T[3])}, {s(T[1])}, 8
              s_add_u32 {s(T[2])}, {s(T[2])}, {s(T[3])}
              s_add_u32 {s(T[2])}, {s(T[2])}, {H_E(0)}
              v_add_u32 v152, {s(T[2])}, v26
              s_mul_i32 {s(T[4])}, {s(T[0])}, {U_S}
              s_add_u32 {s(T[4])}, {s(T[4])}, {L_U + 512}
              s_lshl_b32 {s(T[2])}, {s(T[1])}, 11
              s_add_u32 {s(sUm0)}, {s(T[4])}, {s(T[2])}
              s_sub_u32 {s(T[4])}, {s(T[4])}, {s(T[3])}
              s_sub_u32 {s(T[4])}, {s(T[4])}, 224
              v_lshlrev_b32 v140, 5, v24
              v_lshl_add_u32 v140, v25, 4, v140
              v_add_u32 v140, {s(T[4])}, v140
              s_lshl_b32 {s(T[0])}, {s(sX)}, 9
              s_lshr_b32 {s(T[1])}, {s(sJ)}, 3
              s_lshl_b32 {s(T[1])}, {s(T[1])}, 7
              s_add_u32 {s(T[1])}, {s(T[0])}, {s(T[1])}
              s_add_u32 {s(sKVFp)}, {s(T[1])}, {WS_KVF}
              s_lshl_b32 {s(T[1])}, {s(sJ)}, 4
              s_add_u32 {s(T[0])}, {s(T[0])}, {s(T[1])}
              s_add_u32 {s(sYld)}, {s(T[0])}, {WS_YP}
              s_lshl_b32 {s(T[0])}, {s(sX)}, 18
              s_lshl_b32 {s(T[1])}, {s(sJ)}, 13
              s_add_u32 {s(T[0])}, {s(T[0])}, {s(T[1])}
              s_lshl_b32 {s(T[2])}, {s(sW)}, 11
              s_add_u32 {s(T[1])}, {s(T[0])}, {s(T[2])}
              s_add_u32 {s(sKVs)}, {s(T[1])}, {WS_KVT}
              s_lshl_b32 {s(T[2])}, {s(sW)}, 10
              s_add_u32 {s(T[1])}, {s(T[0])}, {s(T[2])}
              s_add_u32 {s(sYst)}, {s(T[1])}, {WS_YP}
              v_lshlrev_b32 v141, 5, v24
              v_lshrrev_b32 v5, 1, v25
              v_lshl_add_u32 v141, v5, 4, v141
              v_and_b32 v5, 1, v25
              v_xor_b32 v5, 1, v5
              v_lshl_add_u32 v141, v5, 3, v141
              s_lshl_b32 {s(T[0])}, {s(sW)}, 9
              s_add_u32 {s(T[1])}, {s(T[0])}, {L_U + 512}
              v_add_u32 v141, {s(T[1])}, v141
              s_add_u32 {s(T[1])}, {s(T[2])}, {L_YT}
              v_add_u32 {v(Y+3)}, {s(T[1])}, {v(vL16)}
              s_lshl_b32 {s(T[0])}, {s(sW)}, 12
              s_add_u32 {s(T[0])}, {s(T[0])}, {L_CRED}
              v_add_u32 v142, {s(T[0])}, {v(vL16)}
              s_add_u32 {s(T[0])}, {s(T[2])}, {L_CRED}
              v_add_u32 v143, {s(T[0])}, {v(vL16)}
              v_lshlrev_b32 v144, 6, v24
              v_lshl_add_u32 v144, v25, 4, v144
              v_add_u32 v145, 4096, v144
              s_lshl_b32 {s(T[0])}, {s(sX)}, 5
              s_add_u32 {s(T[0])}, {s(T[0])}, {s(sJ)}
              s_lshl_b32 {s(T[0])}, {s(T[0])}, 2
              s_add_u32 {s(T[0])}, {s(T[0])}, {s(T[2])}
              s_mul_i32 {s(T[0])}, {s(T[0])}, {yfs//4}
              s_add_u32 {s(sYFs)}, {s(T[0])}, {WS_YF}
              v_lshlrev_b32 {v(Y+2)}, 2, v0
              v_mul_u32_u24 {v(Y)}, {yfs}, v0
              s_lshr_b32 {s(T[0])}, {s(sX)}, 1
              s_mul_i32 {s(T[0])}, {s(T[0])}, {256*yfs}
              s_add_u32 {s(sYFp)}, {s(T[0])}, {WS_YF}
              v_lshlrev_b32 {v(Y+1)}, 13, v0
              v_add_u32 {v(Y+2)}, {L_YT}, {v(Y+2)}""")
        for p in range(1, 8): k(f"v_add_u32 {v(152+p)}, {512*p}, v152")

    def conv_finish(self, h, C, pk):
        KV, P = 32, 160 + 16*h
        W = [f"ds_write_b128 v142, {v(C + 16*h + 4*c, 4)} offset:{16384*h + 1024*c}" for c in range(4)]
        R = [f"ds_read_b64 {v(KV + 4*h + 2*ch, 2)}, v141 offset:{2048*h + ch*U_S}" for ch in range(2)]
        R2 = [f"ds_read_b128 {v(P + 4*w, 4)}, v143 offset:{16384*h + 4096*w}" for w in range(4)]
        L = []
        for ch in range(2):
            if pk: L += [f"v_pk_add_f32 {v(P+8*ch+e,2)}, {v(P+8*ch+e,2)}, {v(P+8*ch+4+e,2)}" for e in (0, 2)]
            else: L += [f"v_add_f32 {v(P+8*ch+e)}, {v(P+8*ch+e)}, {v(P+8*ch+4+e)}" for e in range(4)]
        D = [f"v_dot2_f32_bf16 {v(P+8*ch+e)}, {v(KV+4*h+2*ch+(1-(e>>1)))}, {s(sD+2*ch+(1-(e&1)))}, {v(P+8*ch+e)}" for e in range(4) for ch in range(2)]
        E = [f"v_cvt_pk_bf16_f32 {v(P+4+e)}, {v(P+e)}, {v(P+8+e)}" for e in range(4)]
        E.append(f"buffer_store_dwordx4 {v(P+4,4)}, {v(144+h)}, {s(RW,4)}, {s(sYst)} offen sc1")
        return W, R, R2, L, D, E

    def conv(self):
        k = self.k; o = self.o; Y = self.YA
        def tz(rr, p):
            d = (rr*8 + p)*4
            return [f"ds_read2_b32 {a(d,2)}, {v(152+p)} offset0:{16*rr} offset1:{16*rr+1}",
                    f"ds_read2_b32 {a(d+2,2)}, {v(152+p)} offset0:{16*rr+2} offset1:{16*rr+3}"]
        first = [x for rr in range(4) for p in range(4) for x in tz(rr, p)]
        second = [x for rr in range(4) for p in range(4, 8) for x in tz(rr, p)]
        k.wait_lg0()
        k("s_barrier")
        n0 = o.get('toep0', 20)
        ph = self.poll_issue(vP31, s(sKVFp))
        for x in first[:n0]: k(x)
        self.stamp('toep')
        self.poll_check(ph)
        self.stamp('kv_seen')
        k(f"s_mov_b32 m0, {s(sUm0)}")
        k(f"buffer_load_dwordx4 {v(vL16)}, {s(RW,4)}, {s(sKVs)} offen sc1 lds")
        tok = k(f"buffer_load_dwordx4 {v(vL16)}, {s(RW,4)}, {s(sKVs)} offen offset:1024 sc1 lds")
        for x in first[n0:]: k(x)
        k.wait(tok)
        k("s_barrier")
        self.stamp('u_in')
        B, C = 64, 96
        uses = [(0, rr, q) for rr in range(4) for q in range(4)] + [(1, rr, q) for rr in range(4) for q in range(8)]
        bt = {}
        def rdB(i):
            part, rr, q = uses[i]
            bt[i] = k(f"ds_read_b128 {v(B + 4*(i % 8), 4)}, v140 offset:{512*q + 64*(3-rr)}")
        for i in range(8): rdB(i)
        pre = []
        if o.get('jpos', 0) == 0: self.wd_job_issue()
        if not o.get('joint', 1): self.q_load()
        tq = Queue(k, [Item(x) for x in second]); tits = list(tq.q)
        n2 = o.get('n2', 11); dq = []
        for i in range(n2):
            if self.w1_next >= 14: break
            n = self.w1_next; self.w1_next += 1
            for x in self.w1_dma_text(n): dq.append(Item(x, at=o.get('n2at', 2) + i*(o.get('n2span', 130) // n2), tag=n))
        dits = list(dq); dq = Queue(k, dq)
        side = Queue(k, []); ybox = []
        m = 0; started = set()
        for i, (part, rr, q) in enumerate(uses):
            need = []
            if part == 1 and q == 0:
                while any(x.tok is None for x in tits[:8*rr + 8]): tq.emit(tq.q[0])
                need = [tits[8*rr + 7].tok]
            if part == 1 and rr == 0 and q == 0:
                W, R, R2, L, D, E = self.conv_finish(0, C, False)
                its = [Item(x, cost=2, at=m + 3 + 2*n) for n, x in enumerate(W)] + [Item(x) for x in R]
                its += [Item(fn=lambda: k.wait_lg0(), at=m + 16), Item(fn=lambda: k("s_barrier"))]
                its += [Item(x) for x in R2]; lastr = its[-1]
                its += [Item(fn=lambda: k.wait(lastr.tok), at=m + 26)] + [Item(x) for x in L]
                its += [Item(fn=lambda: [k(x) for x in D], cost=2)] + [Item(x) for x in E]
                ysA = its[-1]
                if not o.get('joint', 1): its += [Item(fn=lambda: k.wait(ysA.tok), at=o.get('ya_pub', 118)), Item(fn=lambda: self.flag_store(s(sYFs), 0, False))]
                side = Queue(k, its)
            if i % 2 == 0: k.wait(bt[i + 1], *need)
            ps = range(4 - q) if part == 0 else range(max(0, 4 - q), 8 - q)
            for n, p in enumerate(ps):
                c = C + 4*(p + q)
                src = v(c, 4) if (p + q) in started else '0'
                started.add(p + q)
                k(f"v_mfma_f32_16x16x32_bf16 {v(c,4)}, {a((rr*8+p)*4,4)}, {v(B + 4*(i % 8),4)}, {src}")
                m += 1
                cap = 2
                if n == len(ps) - 1: cap -= (1 if i + 8 < len(uses) else 0) + (i % 2)
                cap = side.fill(cap, m)
                cap = dq.fill(cap, m)
                tq.fill(min(cap, 1))
            if i + 8 < len(uses): rdB(i + 8)
        print('conv left:', side.cost(), dq.cost())
        dq.drain()
        for x in dits: self.w1_tok[x.tag] = x.tok
        self.stamp('conv_mfma')
        W, R, R2, L, D, E = self.conv_finish(1, C, True)
        for x in R + W: k(x)
        side.drain()
        k.wait_lg0()
        k("s_barrier")
        for x in R2: k(x)
        if not o.get('joint', 1): pa = self.poll_issue(Y, s(sYFp))
        k.wait_lg0()
        self.ysB = self.run(L + D + E)[-1].tok
        self.stamp('y_st')
        if not o.get('joint', 1):
            self.poll_check(pa, False)
            self.stamp('y_seen')

    def y_joint(self):
        k = self.k; o = self.o; Y = self.YA
        self.wd_job_finish()
        self.persistent()
        self.publish(self.ysB, s(sYFs), local=False)
        self.stamp('y_pub')
        self.publish(self.job_st, s(sJF), local=False)
        k("s_barrier")
        done0 = self.w1_next >= 14
        self.q_load()
        self.w1_dma(o.get('n3', 4))
        self.w1_relayout_addr()
        self.wd_addr()
        k(f"s_add_u32 {s(T[8])}, {s(sYld)}, 4096")
        if done0: self.w1_relayout(0)
        self.q_stats()
        self.stamp('rl0')
        self.poll(Y, s(sYFp), local=False)
        self.stamp('y_seen')
        t0 = k(f"buffer_load_dwordx4 v[32:35], {v(Y+1)}, {s(RW,4)}, {s(sYld)} offen sc1")
        t1 = k(f"buffer_load_dwordx4 v[36:39], {v(Y+1)}, {s(RW,4)}, {s(T[8])} offen sc1")
        pj = self.poll_issue(226, s(sJFp), 0, 229)
        self.w1_dma(o.get('n4', 10))
        if not done0 and self.w1_next >= 14: self.w1_relayout(0); done0 = True
        k.wait(t0)
        for e in range(4): k(f"ds_write_b32 {v(Y+2)}, {v(32+e)} offset:{1024*e}")
        k.wait(t1)
        for e in range(4): k(f"ds_write_b32 {v(Y+2)}, {v(36+e)} offset:{1024*(4+e)}")
        k.wait_lg0()
        k("s_barrier")
        for h in range(2): k(f"ds_read_b128 {v(YS[h],4)}, {v(Y+3)} offset:{4096*h}")
        k.wait_lg0()
        self.stamp('y_in')
        its = self.run(self.gate_norm([0, 1], self.N0, 0, 56))
        sts = [x.tok for x in its if 'store' in x.text]
        self.stamp('a_st')
        self.poll_check(pj, False)
        if done0: self.gemm1_start(0)
        self.publish(sts[0], s(sAFs), 0)
        self.publish(sts[1], s(sAFs), 512)
        k(f"s_or_b32 {s(T[0])}, s2, {s(sW)}\ns_cmp_eq_u32 {s(T[0])}, 0\ns_cselect_b32 {s(T[0])}, 0, 0x40000000")
        k(f"buffer_store_dword {v(vNON)}, {v(vL0)}, {s(RW,4)}, {s(T[0])} offen sc1")
        self.stamp('a_pub')
        self.rl1_done = bool(o.get('rl1_front', 1)); self.rowb_done = True
        self.w1_dma(28 if self.rl1_done else o.get('n5', 0))
        if self.w1_next < 28:
            for i in range(7): k(f"v_mov_b32 {v(126+i)}, {v(self.W1V+i)}")
            self.W1V = 126
        if not done0: self.w1_relayout(0)
        if self.rl1_done: self.w1_relayout(1)
        if self.rl1_done or not done0: k.wait_lg0(); k("s_barrier")
        if not done0: self.gemm1_start(0)

    def stats(self, rows, out, t0, scale=None):
        L = []; n = len(rows)
        for i, x in enumerate(rows):
            b = t0 + 6*i
            L += [f"v_pk_add_f32 {v(b,2)}, {v(x,2)}, {v(x+2,2)}", f"v_pk_mul_f32 {v(b+2,2)}, {v(x,2)}, {v(x,2)}",
                  f"v_pk_add_f32 {v(b+4,2)}, {v(x+4,2)}, {v(x+6,2)}"]
            L += [f"v_pk_fma_f32 {v(b+2,2)}, {v(x+e,2)}, {v(x+e,2)}, {v(b+2,2)}" for e in (2, 4, 6)]
            L += [f"v_pk_add_f32 {v(b,2)}, {v(b,2)}, {v(b+4,2)}", f"v_add_f32 {v(b+2)}, {v(b+2)}, {v(b+3)}", f"v_add_f32 {v(b)}, {v(b)}, {v(b+1)}"]
        for ctl in ("row_ror:8 row_mask:0xf", "row_ror:4 row_mask:0xf", "row_ror:2 row_mask:0xf", "row_ror:1 row_mask:0xf",
                    "row_bcast:15 row_mask:0xa", "row_bcast:31 row_mask:0xc"):
            for i in range(n):
                for e in (2, 0):
                    r = t0 + 6*i + e
                    L.append(f"v_add_f32_dpp {v(r)}, {v(r)}, {v(r)} {ctl} bank_mask:0xf")
        for i in range(n):
            b = t0 + 6*i
            L += [f"v_mul_f32 {v(b)}, 0x3b000000, {v(b)}", f"v_mul_f32 {v(b+2)}, 0x3b000000, {v(b+2)}",
                  f"v_fma_f32 {v(b+2)}, -{v(b)}, {v(b)}, {v(b+2)}", f"v_max_f32 {v(b+2)}, 0, {v(b+2)}",
                  f"v_add_f32 {v(b+2)}, 0x3727c5ac, {v(b+2)}", f"v_rsq_f32 {v(b+2)}, {v(b+2)}"]
            if scale: L.append(f"v_mul_f32 {v(b+2)}, {f32(scale)}, {v(b+2)}")
            L += [f"v_mul_f32_e64 {v(b)}, -{v(b)}, {v(b+2)}", f"v_readlane_b32 {s(out[i])}, {v(b+2)}, 63",
                  f"v_readlane_b32 {s(out[i]+2)}, {v(b)}, 63", f"s_mov_b32 {s(out[i]+1)}, {s(out[i])}",
                  f"v_mov_b32 {v(b+4)}, {s(out[i]+2)}", f"v_mov_b32 {v(b+5)}, {s(out[i]+2)}"]
        return L
    def unpack(self, dst, src):
        L = []
        for e in range(4): L += [f"v_lshlrev_b32 {v(dst+2*e)}, 16, {v(src+e)}", f"v_and_b32 {v(dst+2*e+1)}, 0xffff0000, {v(src+e)}"]
        return L
    def affine(self, dst, x, sp, vb):
        return [f"v_pk_fma_f32 {v(dst+e,2)}, {v(x+e,2)}, {s(sp,2)}, {v(vb,2)}" for e in (0, 2, 4, 6)]
    def run(self, L, look=12):
        its = [Item(x) for x in L]
        Queue(self.k, its, look).drain()
        return its

    def gate_norm(self, halves, nrm, layer, R):
        L = []; sp = [36, 40]
        t0 = R + 16*len(halves)
        for i, h in enumerate(halves):
            L += self.unpack(R + 16*i, YS[h])
            L += [f"v_pk_fma_f32 {v(XS[h]+e,2)}, {v(nrm[h]+e,2)}, {v(R+16*i+e,2)}, {v(XS[h]+e,2)}" for e in (0, 2, 4, 6)]
        L += self.stats([XS[h] for h in halves], sp[:len(halves)], t0, LOG2E)
        for i, h in enumerate(halves):
            b = R + 16*i
            L += self.affine(b, XS[h], sp[i], t0 + 6*i + 4)
            L += [f"v_cvt_pk_bf16_f32 {v(b+8+e)}, {v(b+2*e)}, {v(b+2*e+1)}" for e in range(4)]
            L.append(f"buffer_store_dwordx4 {v(b+8,4)}, {v(vAst)}, {s(RW,4)}, {s(sHALF) if h else 0} offen")
            if layer == 1:
                L += [f"v_cvt_pk_bf16_f32 {v(b+12+e)}, {v(XS[h]+2*e)}, {v(XS[h]+2*e+1)}" for e in range(4)]
                L.append(f"buffer_store_dwordx4 {v(b+12,4)}, {v(vFr)}, {s(RW,4)}, {s(sFR[h])} offen{self.o.get('x3m', '')}")
        return L

    N0 = [40, 118]
    def q_stats(self):
        k = self.k
        k.wait(self.q_tok)
        L = []
        for h in range(2): L += self.unpack(XS[h], 204 + 4*h)
        L += self.stats(XS, [36, 40], 128)
        for h in range(2): L += self.affine(self.N0[h], XS[h], [36, 40][h], 128 + 6*h + 4)
        self.run(L)

    def y_row(self, h, t, raw):
        k = self.k; Y = self.YA
        k.wait(t)
        for e in range(4): k(f"ds_write_b32 {v(Y+2)}, {v(raw+e)} offset:{4096*h + 1024*e}")
        k.wait_lg0()
        k("s_barrier")
        k(f"ds_read_b128 {v(YS[h],4)}, {v(Y+3)} offset:{4096*h}")
        k.wait_lg0()

    def y_in(self):
        k = self.k; o = self.o; Y = self.YA
        t0 = k(f"buffer_load_dwordx4 v[32:35], {v(Y+1)}, {s(RW,4)}, {s(sYld)} offen sc1")
        k(f"s_add_u32 {s(sYFs)}, {s(sYFs)}, {1024*o.get('yfs', 4)}\ns_add_u32 {s(sYFp)}, {s(sYFp)}, {1024*o.get('yfs', 4)}\ns_add_u32 {s(sYld)}, {s(sYld)}, 4096")
        self.publish(self.ysB, s(sYFs), local=False)
        self.stamp('y_pub')
        if o.get('jpos', 0) == 0: self.wd_job_finish()
        self.q_stats()
        self.persistent()
        k("s_barrier")
        self.w1_dma(o.get('n4', 6))
        self.y_row(0, t0, 32)
        self.stamp('y_in')
        its = self.run(self.gate_norm([0], self.N0, 0, 56))
        st = [x.tok for x in its if 'store' in x.text][0]
        self.stamp('a_st')
        for i in range(4): k(f"v_mov_b32 {v(110+i)}, {v(Y+i)}")
        self.YA = 110
        if self.w1_next + o.get('n5', 28) < 28:
            for i in range(7): k(f"v_mov_b32 {v(126+i)}, {v(self.W1V+i)}")
            self.W1V = 126
        self.w1_relayout_addr()
        self.publish(st, s(sAFs), 0)
        self.flag_store(s(sJF), 0, False)
        k(f"s_or_b32 {s(T[0])}, s2, {s(sW)}\ns_cmp_eq_u32 {s(T[0])}, 0\ns_cselect_b32 {s(T[0])}, 0, 0x40000000")
        k(f"buffer_store_dword {v(vNON)}, {v(vL0)}, {s(RW,4)}, {s(T[0])} offen sc1")
        self.stamp('a_pub')
        self.w1_dma(o.get('n5', 28))
        self.w1_relayout(0)
        self.wd_addr()
        self.rl1_done = bool(o.get('rl1_front', 1))
        if self.rl1_done:
            if o.get('rowb_front', 1): self.row_b0()
            self.w1_relayout(1)
        k.wait_lg0(); k("s_barrier")
        self.stamp('w1')
        self.gemm1_start(0)

    def row_b0(self, h0=None):
        k = self.k; Y = self.YA
        if h0 is None:
            self.poll(Y, s(sYFp), local=False)
            h0 = k(f"buffer_load_dwordx4 v[106:109], {v(Y+1)}, {s(RW,4)}, {s(sYld)} offen sc1")
        self.y_row(1, h0, 106)
        its = self.run(self.gate_norm([1], self.N0, 0, ACC[1]))
        self.aB_tok = [x.tok for x in its if 'store' in x.text][0]
        self.rowb_done = True
        if self.o.get('rowb_front', 1) and self.rl1_done: self.publish(self.aB_tok, s(sAFs), 512)

    def epilogue1(self, B, half, off, pk, sc=''):
        L = []; so = s(sHH) if half else '0'
        def grp(g, u, n, outs, t):
            for e in range(n): L.append(f"v_exp_f32_e64 {v(t+e)}, -{v(g+e)}")
            if pk:
                for e in range(0, n, 2): L.append(f"v_pk_mul_f32 {v(u+e,2)}, {v(g+e,2)}, {v(u+e,2)}")
                for e in range(0, n, 2): L.append(f"v_pk_fma_f32 {v(t+e,2)}, {v(t+e,2)}, {s(sC2,2)}, {s(sC2,2)}")
            else:
                for e in range(n): L.append(f"v_mul_f32 {v(u+e)}, {v(g+e)}, {v(u+e)}")
                for e in range(n): L.append(f"v_fma_f32 {v(t+e)}, {v(t+e)}, {s(sC2)}, {s(sC2)}")
            for e in range(n): L.append(f"v_rcp_f32 {v(t+e)}, {v(t+e)}")
            if pk:
                for e in range(0, n, 2): L.append(f"v_pk_mul_f32 {v(u+e,2)}, {v(u+e,2)}, {v(t+e,2)}")
            else:
                for e in range(n): L.append(f"v_mul_f32 {v(u+e)}, {v(u+e)}, {v(t+e)}")
            for e in range(0, n, 2): L.append(f"v_cvt_pk_bf16_f32 {v(outs[e//2])}, {v(u+e)}, {v(u+e+1)}")
        grp(B, B+4, 4, [B, B+1], TMP)
        grp(B+8, B+12, 4, [B+2, B+3], TMP+4)
        L.append(f"buffer_store_dwordx4 {v(B,4)}, {v(vHm)}, {s(RW,4)}, {so} offen offset:{off}{sc}")
        grp(B+16, B+20, 4, [B+8, B+9], TMP)
        grp(B+24, B+26, 2, [B+10], TMP+4)
        Z, C, A_ = B+4, B+5, B+6
        L += [f"v_mov_b32 {v(C)}, {v(B+8)}", f"v_mov_b32 {v(A_)}, {v(B+9)}", f"v_mov_b32 {v(Z)}, {v(B+10)}",
              f"v_permlane32_swap_b32 {v(A_)}, {v(B+11)}", f"v_permlane32_swap_b32 {v(C)}, {v(Z)}",
              f"v_permlane16_swap_b32 {v(Z)}, {v(B+11)}",
              f"buffer_store_dwordx4 {v(B+8,4)}, {v(vHt)}, {s(RW,4)}, {so} offen offset:{off}{sc}"]
        return L

    def a_plan(self, layer):
        n = self.o.get('ring0', 8) if layer == 0 else self.o.get('ring1', 4)
        ring = ([('v', AR + 8*i) for i in range(4)] + [('a', 224 + 8*i) for i in range(4)])[:n]
        reg = {gs: ring[gs % n] for gs in range(32)}
        issue = {}
        for gs in range(32):
            prev = [p for p in range(gs) if reg[p] == reg[gs]]
            issue[gs] = prev[-1] + 1 if prev else -1
        return reg, issue

    def gemm1_start(self, layer):
        k = self.k
        self.wt, self.at = {}, {}
        self.areg, self.aiss = self.a_plan(layer)
        for Tt in range(7): self.rdW(0, Tt)
    def rdW(self, gs, Tt):
        st = gs % 16
        base, o = (vL16, st*7168) if st < 8 else (vW1, (st-8)*7168)
        self.wt[(gs, Tt)] = self.k(f"ds_read_b128 {v(WF + 28*(gs&1) + 4*Tt, 4)}, {v(base)} offset:{o + 1024*Tt}")
    def afrag(self, gs, mt):
        kind, b = self.areg[gs]
        return (v if kind == 'v' else a)(b + 4*mt, 4)
    def ldA(self, gs, mt):
        st = gs % 16
        self.at[(gs, mt)] = self.k(f"buffer_load_dwordx4 {self.afrag(gs, mt)}, {v(vAld[gs // 16])}, {s(RW,4)}, {k4(st>>1)} offen offset:{((st&1)*2+mt)*1024} sc1")

    def gemm1(self, layer):
        k = self.k; o = self.o
        lo = 1024*layer
        self.poll(vP31, s(sAFp), lo)
        self.stamp(f'a_seen{layer}')
        todo = sorted(range(32), key=lambda g: g)
        nxtA = 0
        while self.aiss[nxtA] < 0 and nxtA < o.get('a_init', 5):
            for mt in range(2): self.ldA(nxtA, mt)
            nxtA += 1
        w1q = []
        if layer == 0:
            if o.get('w1_spread'):
                n0 = self.w1_next
                for n in range(n0, 28):
                    for x in self.w1_dma_text(n): w1q.append(Item(x, at=int(14*o['w1_spread']*(n - n0)/(28 - n0)), tag=n))
                self.w1_next = 28
            else: self.w1_dma(28)
        firstB = max(min(self.aiss[g] for g in range(16, 32)), o.get('firstB', 0) if layer else 0)
        queues = []
        if layer == 0:
            burst = None
            if getattr(self, 'rowb_done', False):
                queues.append(Queue(k, self.poll_items(vP31, s(sAFp), lo + 512, 14*2, 14*(firstB - 2))))
            else:
                burst = o.get('rowb0_at', 3); box = []
                its = [Item(fn=lambda: box.append(self.poll_issue(self.YA, s(sYFp))))] + [Item(fn=f, at=14*(burst - 2)) for f in self.poll_steps(lambda: box[0], False)]
                fld = Item(f"buffer_load_dwordx4 v[106:109], {v(self.YA+1)}, {s(RW,4)}, {s(sYld)} offen sc1"); its.append(fld)
                queues.append(Queue(k, its))
                firstB = max(firstB, o.get('firstB0', 12))
            rl = self.w1_relayout_items(1) if not self.rl1_done else []
            for x in rl: x.at = 14*o.get('rl1_at', 1)
            if w1q:
                def note():
                    for x in w1q: self.w1_tok[x.tag] = x.tok
                rl = w1q + [Item(fn=note, cost=0)] + rl
            rlq = Queue(k, rl); queues.append(rlq)
            t0 = o.get('wd_t0', 1); t1 = o.get('wd_t1', 31)
            wd = [Item(self.wd_text(n), at=int(14*(t0 + (t1 - t0)*n/56))) for n in range(o.get('wd_n', 56))]
            jb = []
            pj = [Item(fn=lambda: jb.append(self.poll_issue(226, s(sJFp), 0, 229)))] + [Item(fn=f, at=14*t0 - 4) for f in self.poll_steps(lambda: jb[0], False)]
            if o.get('joint', 1): pj = []
            wdq = Queue(k, pj + wd, 1); queues.append(wdq)
        else:
            box = []
            s0 = o.get('rowb_at', 5)
            its = self.poll_items(vP7, s(sFFp), 512, 14*(s0 - 3), 14*(s0 - 1) - 8)
            fld = Item(f"buffer_load_dwordx4 {v(ACC[1],4)}, {v(vFr)}, {s(RW,4)}, {s(sFR[1])} offen sc1"); its.append(fld)
            queues.append(Queue(k, its))
            burst = s0
        epi = None; hbox = []
        hsc = [' sc1' if o.get('hsc', 15) >> (2*layer + h) & 1 else '' for h in range(2)]
        for gs in range(32):
            ps, st = divmod(gs, 16)
            if gs == burst:
                queues[0].drain(); k.wait(fld.tok)
                self.stamp('rowB_go')
                if layer: sts = self.rowop(1, ACC[1])
                else: self.row_b0(fld.tok); sts = self.aB_tok
                self.stamp('rowB')
                queues[:1] = [Queue(k, self.publish_items(lambda: sts, s(sAFs), lo + 512, 14*gs + 22)
                                + self.poll_items(vP31, s(sAFp), lo + 512, 14*(firstB - 2) - 4, 14*firstB - 4))]
            if gs == firstB: queues[0].drain()
            if layer == 0 and gs == o.get('rl1_bar', 7) and not self.rl1_done:
                print('relayout left at step 7:', rlq.cost())
                rlq.drain(); k.wait_lg0(); k("s_barrier")
            if gs == 16:
                for q in queues[:2]: q.drain()
                epi = [Item(x, at=14*16 + 4) for x in self.epilogue1(ACC[0], 0, 0, 0, hsc[0]) + self.epilogue1(ACC[0] + 28, 0, 256, 0, hsc[0])]
                last = epi[-1]
                queues = [Queue(k, epi, 14), Queue(k, [])]
                if layer == 0: queues = [queues[0], queues[1], wdq]
                pub = False
            if epi and not pub and not len(queues[0]):
                queues[1].q += self.publish_items(lambda: last.tok, s(sHFs), lo, 14*gs + o.get('ha_pub', 10)); pub = True
                pubstep = gs
                queues[1].q.append(Item(fn=lambda: hbox.append(self.poll_issue(vP7, s(sHFp), lo)), at=o.get('ha_pi', 14*31 + 2)))
            fixed = [[] for _ in range(14)]
            if gs + 1 < 32:
                for Tt in range(7): fixed[2*(Tt // 2)].append(('W', gs+1, Tt))
            slot = 6
            while nxtA < 32 and self.aiss[nxtA] <= gs and slot <= 10 and (nxtA < 16 or gs >= firstB):
                fixed[slot].append(('A', nxtA, 0)); fixed[slot+2].append(('A', nxtA, 1)); nxtA += 1; slot += 4
            k.wait(self.at[(gs, 1)], self.wt[(gs, 6)])
            for i in range(14):
                Tt, mt = divmod(i, 2)
                d = ACC[ps] + 28*mt + 4*Tt
                k(f"v_mfma_f32_16x16x32_bf16 {v(d,4)}, {v(WF + 28*(gs&1) + 4*Tt, 4)}, {self.afrag(gs, mt)}, {'0' if st == 0 else v(d,4)}")
                for it in fixed[i]:
                    if it[0] == 'W': self.rdW(it[1], it[2])
                    else: self.ldA(it[1], it[2])
                cap = 2 - len(fixed[i]) - (1 if i == 13 else 0)
                for q in (queues[::-1] if ps else queues): cap = q.fill(cap, 14*gs + i)
            if gs == 15: self.stamp(f'g1a{layer}'); self.late = layer == 1
        print('layer', layer, 'left after G1B:', [q.cost() for q in queues], f'published in step {pubstep}' if pub else 'not published')
        queues[0].drain()
        if not pub: queues[1].q += self.publish_items(lambda: last.tok, s(sHFs), lo, 0)
        queues[1].drain()
        if layer == 0: wdq.drain(); self.wd_last = wd[-1].tok
        self.stamp(f'g1b{layer}')
        self.ht = {}
        ph = hbox[0] if hbox else self.poll_issue(vP7, s(sHFp), lo)
        epi = [Item(x) for x in self.epilogue1(ACC[1], 1, 0, 1, hsc[1]) + self.epilogue1(ACC[1] + 28, 1, 256, 1, hsc[1])]
        q = Queue(k, epi, 12)
        total = q.cost()
        lead = o.get('epi_lead', 24); nld = o.get('epi_ld', 9)
        while total - q.cost() < lead:
            if q.fill(3) == 3: q.emit(q.q[0])
        self.poll_check(ph)
        self.stamp(f'hA_seen{layer}')
        self.nxtH = 0
        marks = [lead + (total - lead)*i // nld for i in range(nld)]
        while len(q):
            while marks and total - q.cost() >= marks[0]: marks.pop(0); self.ldH(0)
            if q.fill(3) == 3: q.emit(q.q[0])
        self.hB_tok = epi[-1].tok
        self.stamp(f'epiB{layer}')

    def g2_order(self):
        D = self.o.get('skew', 6)
        A = [(0, U, mt) for U in range(14) for mt in range(2)]
        B = sorted([(1, U, mt) for U in range(14) for mt in range(2)], key=lambda x: (x[1] + D*x[2], x[2]))
        return A + B
    def hreg(self, n):
        if n < 14: return ACC[0] + 4*n
        if n < 28: return WF + 4*(n - 14)
        if n < 42: return ACC[1] + 4*(n - 28)
        return ACC[0] + 4*(n - 42)
    def ldH(self, _=0):
        n = self.nxtH; self.nxtH += 1
        half, U, mt = self.g2_order()[n]
        self.ht[n] = self.k(f"buffer_load_dwordx4 {v(self.hreg(n),4)}, {v(vHld[half])}, {s(RW,4)}, {k4(U>>1)} offen offset:{(U&1)*2048 + mt*256} sc1")

    def red_write(self, A2):
        return [f"ds_write_b128 {v(vRw)}, {v(A2 + 16*mt + 4*nt, 4)} offset:{4352*mt + 64*nt}" for mt in range(2) for nt in range(4)]
    def red_read(self, P):
        return [f"ds_read_b128 {v(P + 8*w + 4*hf, 4)}, {v(vRr)} offset:{8704*w + 16*hf}" for w in range(4) for hf in range(2)]
    def red_sum(self, P, half, layer, X3, pk):
        L = []
        def add(d, x, y):
            if pk: L.extend(f"v_pk_add_f32 {v(d+e,2)}, {v(x+e,2)}, {v(y+e,2)}" for e in (0, 2, 4, 6))
            else: L.extend(f"v_add_f32 {v(d+e)}, {v(x+e)}, {v(y+e)}" for e in range(8))
        add(P, P, P+8); add(P+16, P+16, P+24)
        if layer == 1:
            L += self.unpack(P+8, X3); add(P, P, P+8)
        add(P, P, P+16)
        L += [f"v_cvt_pk_bf16_f32 {v(P+8+e)}, {v(P+2*e)}, {v(P+2*e+1)}" for e in range(4)]
        if layer == 0: L.append(f"buffer_store_dwordx4 {v(P+8,4)}, {v(vF2)}, {s(RW,4)}, {k4(half)} offen")
        else: L.append(f"buffer_store_dwordx4 {v(P+8,4)}, {v(vO)}, {s(RO,4)}, {s(sFH) if half else 0} offen{self.o.get('ost', '')}")
        return L

    def gemm2(self, layer):
        k = self.k; o = self.o
        lo = 1024*layer
        AC2 = [AR, WF]
        X3 = [TMP, TMP + 4]
        order = self.g2_order()
        LA = o.get('g2la', 20)
        xt = {}
        def ldX(h): xt[h] = k(f"buffer_load_dwordx4 {v(X3[h],4)}, {v(vF2)}, {s(RW,4)}, {k4(h)} offen sc1")
        side = Queue(k, self.publish_items(lambda: self.hB_tok, s(sHFs), lo + 512, o.get('hb_pub', 24))
                     + self.poll_items(vP7, s(sHFp), lo + 512, o.get('hb_pi', 44), o.get('hb_pc', 70)))
        if layer == 0: k.wait(self.wd_last)
        fbox = []; seenB = False; wB = self.red_write(AC2[1]); doneB = 0
        def next_load():
            self.ldH()
            if layer == 1 and self.nxtH == 36: ldX(0)
            if layer == 1 and self.nxtH == 56:
                ldX(1)
                if o.get('wbl2', 0): self.writeback()
        for n in range(56):
            half, U, mt = order[n]
            if n == 28:
                self.stamp(f'g2a{layer}')
                side.drain(); seenB = True
                t = 4*28
                sp = o.get('ra_sp', 2)
                L = [Item(x, at=t + 3 + sp*i) for i, x in enumerate(self.red_write(AC2[0]))]
                L += [Item(fn=lambda: k.wait_lg0(), at=t + 8*sp + 3), Item(fn=lambda: k("s_barrier"))]
                L += [Item(x) for x in self.red_read(AR)]
                L += [Item(fn=lambda: k.wait_lg0(), at=t + 8*sp + o.get('ra_rd', 14)), Item(fn=lambda: k("s_barrier"))]
                if layer == 1: L += [Item(fn=lambda: k.wait(xt[0]))]
                L += [Item(x) for x in self.red_sum(AR, 0, layer, X3[0], 0)]
                fA = L[-1]
                if layer == 0:
                    L += self.publish_items(lambda: fA.tok, s(sFFs), 0, t + o.get('fa_pub', 74))
                    L += [Item(x, at=t + 60) for x in self.unpack(ACC[1] + 24, YS[0])]
                    L.append(Item(fn=lambda: fbox.append(self.poll_issue(vP7, s(sFFp), 0)), at=t + o.get('fa_pi', 96)))
                if o.get('nored') and layer == 1: L = []
                side = Queue(k, L)
                last0 = max(i for i in range(28, 56) if order[i][2] == 0)
                late = Queue(k, [Item(x, at=4*(last0 + 1) + 3 + sp*i) for i, x in enumerate(wB[:4])])
            if not len(side): seenB = True
            while n not in self.ht: next_load()
            if n % 2 == 0:
                while seenB and n + 1 not in self.ht: next_load()
                k.wait(self.ht.get(n + 1, self.ht[n]))
            else: k.wait(self.ht[n])
            for nt in range(4):
                d = AC2[half] + 16*mt + 4*nt
                k(f"v_mfma_f32_16x16x32_bf16 {v(d,4)}, {a((4*U+nt)*4,4)}, {v(self.hreg(n),4)}, {'0' if U == 0 else v(d,4)}")
                cap = 2 - (1 if (nt == 3 and n % 2) else 0)
                if (nt == 0 or (nt == 2 and self.nxtH < n + 1 + o.get('g2min', 6))) and self.nxtH < min(56 if seenB else 28, n + 1 + LA) and (self.nxtH < 42 or self.nxtH - 42 < n):
                    next_load(); cap -= 1
                cap = side.fill(cap, 4*n + nt)
                if n >= 28 and not any('ds_' in (x.text or '') or (x.fn and x.at <= t + 8*sp + 40) for x in side.q):
                    late.fill(cap, 4*n + nt)
        print('layer', layer, 'left after G2B:', side.cost(), late.cost())
        side.drain()
        wB = [x.text for x in late.q] + wB[4:]
        self.stamp(f'g2b{layer}')
        R = ACC[1]
        if layer == 0:
            self.poll_check(fbox[0])
            self.stamp('fA_seen')
            fld = k(f"buffer_load_dwordx4 {v(R,4)}, {v(vFr)}, {s(RW,4)}, {s(sFR[0])} offen sc1")
        for x in wB: k(x)
        early = layer == 0 and o.get('rowa_first', 1)
        if early:
            k.wait(fld)
            sts, rest = self.rowop(0, R, True)
            self.stamp('rowA')
        k.wait_lg0(); k("s_barrier")
        for x in self.red_read(ACC[0]): k(x)
        if layer == 0 and not early:
            k.wait(fld)
            sts, rest = self.rowop(0, R, True)
            self.stamp('rowA')
        k.wait_lg0()
        if layer == 1: k.wait(xt[1])
        if early: self.publish(sts, s(sAFs), 1024)
        fB = self.run(self.red_sum(ACC[0], 1, layer, X3[1], 1))[-1].tok
        self.stamp(f'fB_st{layer}')
        if layer == 0:
            self.gemm1_start(1)
            if not early: self.publish(sts, s(sAFs), 1024)
            self.stamp('aA_pub')
            self.run(rest)
            self.publish(fB, s(sFFs), 512)

    def writeback(self):
        k = self.k
        a_, b_ = k.label(), k.label()
        k(f"s_or_b32 {s(T[2])}, {s(sJ)}, {s(sW)}\ns_cmp_lg_u32 {s(T[2])}, 0\ns_cbranch_scc1 {a_}")
        k("buffer_wbl2 sc1")
        k(f"s_branch {b_}"); k.place(a_)
        k.ins.append(I(f"buffer_load_dword {v(vPT)}, {v(vL0)}, {s(RW,4)}, 0 offen"))
        k.place(b_)

    def rowop(self, h, R, split=False):
        L = self.unpack(R + 8, R)
        L += [f"v_pk_add_f32 {v(XS[h]+e,2)}, {v(XS[h]+e,2)}, {v(R+8+e,2)}" for e in (0, 2, 4, 6)]
        L += self.stats([XS[h]], [36], R + 16)
        L += self.affine(R + 8, XS[h], 36, R + 20)
        G = self.gate_norm([h], {h: R + 8}, 1, R + 24)
        rest = []
        if split: G, rest = G[8:-5], G[-5:]
        its = self.run(L + G, 16)
        tok = [x.tok for x in its if 'store' in x.text][-1]
        return (tok, rest) if split else tok

    def build(self):
        k = self.k; o = self.o
        self.prologue()
        self.front_addr()
        self.touch_first()
        self.touch_global_flags()
        self.w1_addr()
        self.w1_dma(o.get('n0', 2))
        self.wd_job_addr()
        self.phase0()
        self.w1_dma(o.get('n1', 1))
        self.conv()
        if o.get('joint', 1): self.y_joint()
        else: self.y_in()
        for layer in range(2):
            self.gemm1(layer)
            self.gemm2(layer)
        if o.get('stamps'):
            self.stamp('end')
            k(f"""s_lshl_b32 {s(T[0])}, s2, 2
                  s_add_u32 {s(T[0])}, {s(T[0])}, {s(sW)}
                  s_lshl_b32 {s(T[0])}, {s(T[0])}, 8
                  s_add_u32 {s(T[0])}, {s(T[0])}, {WS_DBG}
                  v_lshrrev_b32 v5, 2, {v(vL16)}
                  buffer_store_dword {v(vST[0])}, v5, {s(RW,4)}, {s(T[0])} offen
                  s_add_u32 {s(T[0])}, {s(T[0])}, 0x40000
                  buffer_store_dword {v(vST[1])}, v5, {s(RW,4)}, {s(T[0])} offen""")
        if o.get('delay'):
            k(f"""s_mov_b32 {s(T[0])}, {o['delay']}
                  s_memrealtime {s(T[2],2)}
                  s_waitcnt lgkmcnt(0)""")
            k.place("L_DELAY")
            k(f"""s_memrealtime {s(T[4],2)}
                  s_waitcnt lgkmcnt(0)
                  s_sub_u32 {s(T[4])}, {s(T[4])}, {s(T[2])}
                  s_cmp_lt_u32 {s(T[4])}, {s(T[0])}
                  s_cbranch_scc1 L_DELAY""")
        if o.get('diag'):
            self.stamp('end')
            k(f"""v_sub_u32 v5, {v(vST[1])}, {v(vST[0])}
                  s_nop 1
                  v_readfirstlane_b32 {s(T[0])}, v5
                  s_mul_i32 {s(T[0])}, {s(T[0])}, 8
                  s_memrealtime {s(T[2],2)}
                  s_waitcnt lgkmcnt(0)""")
            k.place("L_DIAG")
            k(f"""s_memrealtime {s(T[4],2)}
                  s_waitcnt lgkmcnt(0)
                  s_sub_u32 {s(T[4])}, {s(T[4])}, {s(T[2])}
                  s_cmp_lt_u32 {s(T[4])}, {s(T[0])}
                  s_cbranch_scc1 L_DIAG""")
        k.place("L_END")
        k("s_endpgm")
        body = k.text()
        for t in self.tail:
            body += "".join((x + "\n") if x.endswith(':') else ("    " + x + "\n") for x in t)
        body += "L_LAST:\n"
        return body

def file_text(opt):
    g = Gen(opt)
    body = g.build()
    ref = open(os.path.join(os.path.dirname(os.path.abspath(__file__)), '..', 'cdna_kernels', NAME + '.s.ref')).read()
    head = ref[:ref.index('; Override launch geometry')]
    txt = head + f"""; @launch grid=(256,1,1) block=(256,1,1) lds={LDS_SIZE}
.amdgcn_target "amdgcn-amd-amdhsa--gfx950"
.text
.globl {NAME}_kernel
.p2align 8
.type {NAME}_kernel,@function
{NAME}_kernel:
{body}.section .rodata,"a"
.p2align 6
.amdhsa_kernel {NAME}_kernel
  .amdhsa_next_free_vgpr 512
  .amdhsa_next_free_sgpr 102
  .amdhsa_accum_offset 256
  .amdhsa_group_segment_fixed_size 0
  .amdhsa_kernarg_size 104
  .amdhsa_user_sgpr_count 2
  .amdhsa_user_sgpr_kernarg_segment_ptr 1
  .amdhsa_system_sgpr_workgroup_id_x 1
.end_amdhsa_kernel
"""
    return txt, g

if __name__ == '__main__':
    import json
    opt = {}; out = None
    for x in sys.argv[1:]:
        if '=' in x:
            kk, vv = x.split('=')
            opt[kk] = vv.split(',') if kk in ('only', 'diag') else (' ' + vv.replace('+', ' ') if kk in ('ost', 'wdm', 'x3m') else int(vv, 0))
        else: out = x
    txt, g = file_text(opt)
    open(out, 'w').write(txt)
    json.dump(g.stamps, open(out + '.stamps.json', 'w'))
    print('instructions', len(g.k.ins), 'nops added', g.k.nops_added, 'stamps', len(g.stamps))
```

```python
import sys, os
sys.path.insert(0, os.path.dirname(os.path.abspath(__file__)))
from dsl import *

NAME = 'interleave_layers__ssm_conv_h3__swiglu_ffn__prompt'

WS_XCCF = 0x1000
WS_KVF  = 0x10000
WS_AF   = 0x11000
WS_HF   = 0x19000
WS_FF   = 0x21000
WS_YF   = 0x40000
WS_JF   = 0x3E000
WS_KVT  = 0x100000
WS_A    = WS_KVT
WS_YP   = 0x300000
WS_H    = 0x700000
WS_WDT  = 0xE00000
WS_DBG  = 0x1000000
WS_SIZE = 0x1100000
H_X, H_HALF, H_RB = 917504, 458752, 114688

LDS_SIZE = 163840
SCR   = 114688
L_K   = SCR
L_V   = L_K + 9216
L_H   = L_V + 8192
H_CP  = 4096 + 128
H_E   = lambda ch: L_H + ch * 2 * H_CP + 64
H_O   = lambda ch: L_H + ch * 2 * H_CP + H_CP + 128
L_U   = L_H + 4 * H_CP + 128
U_S   = 4608
assert L_U + 2 * U_S <= LDS_SIZE
L_CRED = 57344
L_YT  = L_U
L_JOB = 114688 - 16384
L_RED = SCR

sX, sJ, sW, sN, sEXP, sSPIN, sXCC, sMODE = 4, 5, 6, 7, 8, 9, 10, 11
T = list(range(12, 24))
sC2 = 24
sHALF = 26
sW1S, sW1L = 27, 3
sD = 28
sDP = 34
RK, RV, RH, RQ, RG, RU, RD, RO, RW, RS = 44, 48, 52, 56, 60, 64, 68, 72, 76, 80
sK4 = 83
def k4(i): return '0' if i == 0 else s(sK4 + i)
sHH = 91
sAFp, sAFs, sHFp, sHFs, sFFp, sFFs = 94, 95, 96, 97, 98, 99
sFR = [100, 101]
sFH = 55
sROT = [0, 1, 34, 35, 54, 80, 81]
sDEL = [82, 83]
sST = (32, 92)
sKVFp, sKVs, sUm0, sYst, sYFs, sYFp, sYld, sJF, sJL, sJFp = 44, 45, 46, 47, 48, 49, 50, 51, 52, 53

vL, vL16, vL0, vNON, vPT = 1, 2, 3, 4, 5
vAld, vHld = [6, 7], [8, 9]
vHm, vHt, vAst, vF2, vO, vRw, vRr, vP31, vP7, vW1 = 10, 11, 12, 13, 14, 15, 16, 17, 18, 19
vST = (20, 21)
vFr = 0
vWd = [230, 231]
ACC = [22, 78]
WF, AR, TMP = 134, 190, 222
YS, XS = [232, 236], [240, 248]
LOG2E = 1.4426950408889634

def f32(x):
    import struct
    return '0x%08x' % struct.unpack('<I', struct.pack('<f', x))[0]

def flist(c):
    if c < 4: return [4*c + e for e in range(4)] + [16 + 4*c + e for e in range(4)]
    q = c - 4; X = [44, 46, 54][q]
    return [32 + 4*q + e for e in range(4)] + [48 + 2*q, 49 + 2*q, X, X + 1]

class Gen:
    def __init__(self, opt):
        self.o = opt
        self.k = K()
        self.tail = []
        self.stamps = []
        self.w1_next = 0
        self.late = False
        self.w1_tok = {}

    def stamp(self, name):
        dg = self.o.get('diag')
        if dg and name in dg:
            k = self.k
            k(f"s_memrealtime {s(sST[0],2)}"); k.wait_lg0()
            k(f"v_mov_b32 {v(vST[dg.index(name)])}, {s(sST[0])}")
        if not self.o.get('stamps'): return
        only = self.o.get('only')
        if only and name not in only: return
        k = self.k; n = len(self.stamps)
        k(f"s_memrealtime {s(sST[0],2)}\ns_memtime {s(sST[1],2)}"); k.wait_lg0()
        if self.o.get('spinstat') and n >= 2: k(f"s_sub_u32 {s(sST[1])}, 0, {s(sSPIN)}")
        k(f"v_writelane_b32 {v(vST[0])}, {s(sST[0])}, {n}\nv_writelane_b32 {v(vST[1])}, {s(sST[1])}, {n}")
        self.stamps.append(name)

    def srd(self, base, size):
        self.k(f"s_mov_b32 {s(base+2)}, {size}\ns_mov_b32 {s(base+3)}, 0x20000")

    def poll_issue(self, vaddr, soff, off=0, vt=vPT):
        txt = f"buffer_load_dword {v(vt)}, {v(vaddr)}, {s(RW,4)}, {soff} offen offset:{off} sc1"
        return (self.k(txt), txt, vt)

    def poll_steps(self, get, local=True):
        k = self.k
        slow, back, ok = k.label(), k.label(), k.label()
        def s1(): k.wait(get()[0])
        def s2(): k(f"v_cmp_ne_u32 vcc, {s(sEXP if local else sN)}, {v(get()[2])}")
        def s3():
            if self.o.get('nopoll') and self.late: return
            k(f"s_cbranch_vccnz {slow}"); k.place(back)
            _, txt, vt = get()
            nap = self.o.get('nap_l', 0) if local else self.o.get('nap_g', 0)
            t = [f"{slow}:"] + ([f"s_sleep {nap}"] if nap else []) + [txt, "s_waitcnt vmcnt(0)", f"v_cmp_ne_u32 vcc, {s(sN)}, {v(vt)}", f"s_cbranch_vccz {ok}",
                 f"s_sub_u32 {s(sSPIN)}, {s(sSPIN)}, 1", f"s_cbranch_scc0 {slow}", "s_branch L_END", f"{ok}:"]
            if local: t += [f"s_cmp_eq_u32 {s(sMODE)}, 0", f"s_cbranch_scc1 {back}", "buffer_inv sc1", "s_waitcnt vmcnt(0)"]
            self.tail.append(t + [f"s_branch {back}"])
        return [s1, s2, s3]

    def poll_check(self, h, local=True):
        for f in self.poll_steps(lambda: h, local): f()
    def poll(self, vaddr, soff, off=0, local=True):
        self.poll_check(self.poll_issue(vaddr, soff, off), local)
    def poll_items(self, vaddr, soff, off, at_issue, at_check):
        box = []
        it = [Item(fn=lambda: box.append(self.poll_issue(vaddr, soff, off)), at=at_issue)]
        return it + [Item(fn=f, at=at_check) for f in self.poll_steps(lambda: box[0])]

    def flag_store(self, soff, off=0, local=True):
        k = self.k
        txt = f"buffer_store_dword {v(vNON)}, {v(vL0)}, {s(RW,4)}, {soff} offen offset:{off}"
        if not local: return k(txt + " sc1")
        slow, back = k.label(), k.label()
        k(f"s_cmp_lg_u32 {s(sMODE)}, 0\ns_cbranch_scc1 {slow}")
        r = k(txt); k.place(back)
        self.tail.append([f"{slow}:", "s_waitcnt vmcnt(0)", "buffer_wbl2 sc1", "s_waitcnt vmcnt(0)", txt + " sc1", f"s_branch {back}"])
        return r
    def publish(self, tok, soff, off=0, local=True):
        self.k.wait(tok)
        return self.flag_store(soff, off, local)
    def publish_items(self, get, soff, off, at):
        return [Item(fn=lambda: self.k.wait(get()), at=at), Item(fn=lambda: self.flag_store(soff, off), cost=2, at=at)]

    def dma(self, vaddr, srd, soff, m0, extra=''):
        self.k(m0)
        return self.k(f"buffer_load_dwordx4 {v(vaddr)}, {s(srd,4)}, {soff} offen {extra} lds".replace('  ', ' '))

    def prologue(self):
        k = self.k
        k("s_cmp_ge_u32 s2, 256\ns_cbranch_scc1 L_END")
        if self.o.get('stamps'): k(f"v_mov_b32 {v(vST[0])}, 0\nv_mov_b32 {v(vST[1])}, 0")
        self.stamp('entry')
        k(f"s_lshr_b32 {s(sJ)}, s2, 3")
        self.code_prefetch()
        for r, off in ((RK, 8), (RV, 16), (RW, 96), (RH, 32), (RS, 24), (RQ, 0), (RG, 56), (RU, 64), (RD, 72), (RO, 80)):
            k(f"s_load_dwordx2 {s(r,2)}, s[0:1], {off}")
        k(f"s_load_dwordx2 {s(sDP,2)}, s[0:1], 40")
        k(f"""s_and_b32 {s(sX)}, s2, 7
              v_lshrrev_b32 v5, 6, v0
              v_and_b32 {v(vL)}, 63, v0
              v_readfirstlane_b32 {s(sW)}, v5
              v_lshlrev_b32 {v(vL16)}, 4, {v(vL)}""")
        for r, size in ((RK, 2097152), (RV, 2097152), (RW, WS_SIZE), (RH, 2097152), (RS, 4096)): self.srd(r, size)

        k(f"""v_lshrrev_b32 v24, 3, {v(vL)}
              v_and_b32 v25, 7, {v(vL)}
              v_and_b32 v26, 2, v24
              v_xor_b32 v25, v25, v26
              s_and_b32 {s(T[0])}, {s(sW)}, 1
              s_lshl_b32 {s(T[0])}, {s(T[0])}, 2
              v_xor_b32 v25, {s(T[0])}, v25
              v_lshlrev_b32 v25, 4, v25
              v_lshl_add_u32 v25, v24, 10, v25
              s_lshl_b32 {s(T[0])}, {s(sJ)}, 16
              s_lshl_b32 {s(T[1])}, {s(sW)}, 14
              s_lshl_b32 {s(T[2])}, {s(sX)}, 7
              s_add_u32 {s(T[0])}, {s(T[0])}, {s(T[1])}
              s_add_u32 {s(T[0])}, {s(T[0])}, {s(T[2])}
              v_add_u32 v25, {s(T[0])}, v25
              v_xor_b32 v26, 64, v25
              v_subrev_u32 v26, 8192, v26
              s_lshl_b32 {s(T[1])}, {s(sW)}, 11
              s_add_u32 {s(T[2])}, {s(T[1])}, {L_K + 1024}
              s_add_u32 {s(T[3])}, {s(T[1])}, {L_V}
              s_movk_i32 {s(T[4])}, 8192
              v_and_b32 v27, 15, {v(vL)}
              s_lshl_b32 {s(T[0])}, {s(sX)}, 6
              s_lshl_b32 {s(T[1])}, {s(sW)}, 4
              s_add_u32 {s(T[1])}, {s(T[0])}, {s(T[1])}
              v_add_u32 v27, {s(T[1])}, v27
              v_lshlrev_b32 v28, 3, v27
              s_lshl_b32 {s(T[1])}, {s(sJ)}, 1
              s_add_u32 {s(T[0])}, {s(T[0])}, {s(T[1])}
              s_lshl_b32 {s(T[5])}, {s(T[0])}, 1
              s_lshl_b32 {s(T[6])}, {s(T[0])}, 12
              s_add_u32 {s(T[7])}, {s(T[6])}, 4096
              v_lshlrev_b32 v29, 4, v0""")
        k.wait_lg0()
        self.stamp('start')
        k(f"s_load_dword {s(sN)}, {s(RW,2)}, 0")
        k(f"s_load_dword {s(sD)}, {s(sDP,2)}, {s(T[5])}")
        self.dma(25, RK, '0', f"s_mov_b32 m0, {s(T[2])}")
        self.dma(25, RV, '0', f"s_mov_b32 m0, {s(T[3])}")
        self.dma(25, RK, s(T[4]), f"s_add_u32 m0, {s(T[2])}, 1024")
        self.dma(25, RV, s(T[4]), f"s_add_u32 m0, {s(T[3])}, 1024")
        skip = k.label()
        k(f"s_cmp_lg_u32 {s(sW)}, 0\ns_cbranch_scc1 {skip}\ns_mov_b32 m0, {L_K}\ns_nop 0")
        k.ins.append(I(f"buffer_load_dwordx4 v26, {s(RK,4)}, 0 offen lds"))
        k.place(skip)
        self.sh_tok = k(f"buffer_load_dwordx2 v[30:31], v28, {s(RS,4)}, 0 offen")
        k(f"buffer_load_dwordx4 v[32:35], v29, {s(RH,4)}, {s(T[6])} offen")
        k(f"buffer_load_dwordx4 v[40:43], v29, {s(RH,4)}, {s(T[7])} offen")
        k(f"buffer_load_dwordx4 v[36:39], v29, {s(RH,4)}, {s(T[6])} offen offset:2")
        self.h_tok = k(f"buffer_load_dwordx4 v[44:47], v29, {s(RH,4)}, {s(T[7])} offen offset:2")
        k(f"""s_getreg_b32 {s(sXCC)}, hwreg(HW_REG_XCC_ID, 0, 4)
              v_cmp_eq_u32 vcc, 0, {v(vL)}
              v_mov_b32 v5, 0x80000000
              s_lshl_b32 {s(T[1])}, {s(sX)}, 5
              s_add_u32 {s(T[1])}, {s(T[1])}, {s(sJ)}
              s_mul_i32 {s(T[1])}, {s(T[1])}, {self.o.get('xs', 4)}
              s_add_u32 {s(T[1])}, {s(T[1])}, {WS_XCCF}
              s_cmp_eq_u32 {s(sW)}, 2
              s_cselect_b32 {s(T[1])}, {s(T[1])}, 0x40000000
              v_cndmask_b32 {v(vL0)}, v5, 0, vcc""")
        k.wait_lg0()
        k(f"""s_mul_i32 {s(sN)}, {s(sN)}, 1664525
              s_add_u32 {s(sN)}, {s(sN)}, 1013904223
              s_xor_b32 {s(T[0])}, {s(sN)}, {s(sXCC)}
              v_mov_b32 v5, {s(T[0])}
              v_mov_b32 {v(vNON)}, {s(sN)}""")
        k(f"buffer_store_dword v5, {v(vL0)}, {s(RW,4)}, {s(T[1])} offen sc1")
        for r, size in ((RQ, 2097152), (RG, 1835008), (RU, 1835008), (RD, 1835008), (RO, 2097152)): self.srd(r, size)
        k(f"""s_lshr_b32 {s(sD+2)}, {s(sD)}, 16
              s_and_b32 {s(sD+3)}, {s(sD)}, 0xffff0000
              s_lshl_b32 {s(sD+1)}, {s(sD)}, 16
              s_and_b32 {s(sD)}, {s(sD)}, 0xffff
              s_mov_b32 {s(sC2)}, {f32(LOG2E*LOG2E)}
              s_mov_b32 {s(sC2+1)}, {f32(LOG2E*LOG2E)}
              s_mov_b32 {s(sSPIN)}, {self.o.get('spin', 400000)}
              s_mov_b32 {s(sHALF)}, 0x20000
              s_mov_b32 {s(sHH)}, {H_HALF}
              v_and_b32 {v(vP31)}, 31, {v(vL)}
              v_lshlrev_b32 {v(vP31)}, 2, {v(vP31)}
              v_and_b32 {v(vP7)}, 7, {v(vL)}
              v_lshlrev_b32 {v(vP7)}, 2, {v(vP7)}""")
        for i in range(1, 8): k(f"s_movk_i32 {s(sK4+i)}, {4096*i}")

    def code_prefetch(self):
        if not self.o.get('cpf', 1): return
        k = self.k
        k(f"s_getpc_b64 {s(T[2],2)}")
        k.place("L_PC")
        k(f"""s_mul_i32 {s(T[4])}, {s(sJ)}, ((L_LAST-L_PC+4095)/4096)*128
              v_min_u32 v5, (L_LAST-L_PC+4095)/4096-1, v0
              v_lshl_add_u32 v5, v5, 7, {s(T[4])}
              v_min_u32 v5, L_LAST-L_PC-4, v5
              global_load_dword v219, v5, {s(T[2],2)}""")

    def tlb_touch(self):
        if not self.o.get('tlb', 0): return
        k = self.k
        k(f"v_and_b32 v5, 15, {v(vL)}\nv_lshlrev_b32 v5, 20, v5")
        k(f"buffer_load_dword v200, v5, {s(RW,4)}, 0 offen offset:512")
        k(f"buffer_load_dword v201, v5, {s(RO,4)}, 0 offen")
        k(f"buffer_load_dword v196, v5, {s(RG,4)}, 0 offen")
        k(f"buffer_load_dword v197, v5, {s(RU,4)}, 0 offen")
        k(f"buffer_load_dword v198, v5, {s(RQ,4)}, 0 offen")

    def touch_first(self):
        k = self.k
        if self.o.get('tch_kv', 1):
            k(f"v_and_b32 v5, 15, {v(vL)}\nv_lshlrev_b32 v5, 7, v5")
            k(f"buffer_load_dword v220, v5, {s(RW,4)}, {s(sKVs)} offen sc1")
        if self.o.get('tch_fl', 1):
            k(f"""s_lshl_b32 {s(T[0])}, {s(sX)}, 12
                  s_add_u32 {s(T[0])}, {s(T[0])}, {WS_AF}
                  v_lshl_add_u32 v22, {v(vL)}, 7, {s(T[0])}
                  v_cmp_lt_u32 vcc, 15, {v(vL)}
                  v_add_u32 v5, {0x8000 - 16*128}, v22
                  s_lshl_b32 {s(T[0])}, {s(sX)}, 9
                  v_cndmask_b32 v22, v22, v5, vcc
                  v_cmp_lt_u32 vcc, 47, {v(vL)}
                  v_add_u32 v5, {0x8000 - 32*128}, v22
                  s_add_u32 {s(T[0])}, {s(T[0])}, {WS_KVF}
                  v_cndmask_b32 v22, v22, v5, vcc
                  v_cmp_lt_u32 vcc, 55, {v(vL)}
                  v_and_b32 v5, 3, {v(vL)}
                  v_lshl_add_u32 v5, v5, 7, {s(T[0])}
                  s_cmp_eq_u32 {s(sW)}, 3
                  s_cselect_b32 {s(T[0])}, 0, 0x40000000
                  v_cndmask_b32 v5, v22, v5, vcc
                  buffer_load_dword v221, v5, {s(RW,4)}, {s(T[0])} offen sc1""")
    def touch_global_flags(self):
        if not self.o.get('tch_g', 1): return
        k = self.k
        k(f"""v_lshlrev_b32 v5, 7, {v(vL)}
              s_cmp_eq_u32 {s(sW)}, 1
              s_cselect_b32 {s(T[0])}, {s(sJ)}, 31
              s_lshl_b32 {s(T[1])}, {s(T[0])}, 13
              s_cmp_lt_u32 {s(T[0])}, {1 + self.o.get('yfs', 4)//4}
              s_cselect_b32 {s(T[0])}, {s(T[1])}, 0x40000000
              s_add_u32 {s(T[0])}, {s(T[0])}, {WS_JF}
              buffer_load_dword v202, v5, {s(RW,4)}, {s(T[0])} offen sc1""")
    def touch_h_addr(self):
        self.k(f"""s_lshl_b32 {s(T[0])}, {s(sJ)}, 2
                  s_add_u32 {s(T[0])}, {s(T[0])}, {s(sW)}
                  s_mul_i32 {s(T[0])}, {s(T[0])}, 7168
                  s_mul_i32 {s(T[1])}, {s(sX)}, {H_X}
                  s_add_u32 {s(T[0])}, {s(T[0])}, {s(T[1])}
                  s_add_u32 {s(T[0])}, {s(T[0])}, {WS_H}
                  v_min_u32 v227, 55, {v(vL)}
                  v_lshl_add_u32 v227, v227, 7, {s(T[0])}""")
    def touch_h_text(self): return f"buffer_load_dword v228, v227, {s(RW,4)}, 0 offen sc1"
    def touch_f(self):
        k = self.k
        k(f"""v_and_b32 v5, 7, {v(vL)}
              v_lshlrev_b32 v5, 7, v5
              v_bfe_u32 v22, {v(vL)}, 3, 1
              v_lshl_add_u32 v5, v22, 17, v5
              buffer_load_dword v199, v5, {s(RW,4)}, {s(sFR[0])} offen sc1""")

    def q_load(self):
        k = self.k
        k(f"""s_lshl_b32 {s(T[0])}, {s(sX)}, 7
              s_lshl_b32 {s(T[1])}, {s(sJ)}, 2
              s_add_u32 {s(T[0])}, {s(T[0])}, {s(T[1])}
              s_add_u32 {s(T[0])}, {s(T[0])}, {s(sW)}
              s_lshl_b32 {s(T[0])}, {s(T[0])}, 10
              s_add_u32 {s(T[1])}, {s(T[0])}, 0x100000""")
        k(f"buffer_load_dwordx4 v[204:207], {v(vL16)}, {s(RQ,4)}, {s(T[0])} offen")
        self.q_tok = k(f"buffer_load_dwordx4 v[208:211], {v(vL16)}, {s(RQ,4)}, {s(T[1])} offen")

    def persistent(self):
        k = self.k
        k(f"""s_lshl_b32 {s(T[0])}, {s(sJ)}, 2
              s_add_u32 {s(T[0])}, {s(T[0])}, {s(sW)}
              s_lshl_b32 {s(T[8])}, {s(sX)}, 18
              s_lshl_b32 {s(T[9])}, {s(sX)}, 12
              s_lshr_b32 {s(T[10])}, {s(sJ)}, 3
              s_and_b32 {s(T[11])}, {s(sJ)}, 7
              s_lshl_b32 {s(T[1])}, {s(T[0])}, 2
              s_add_u32 {s(T[1])}, {s(T[1])}, {s(T[9])}
              s_add_u32 {s(sAFs)}, {s(T[1])}, {WS_AF}
              s_lshl_b32 {s(T[1])}, {s(sW)}, 7
              s_add_u32 {s(T[1])}, {s(T[1])}, {s(T[9])}
              s_add_u32 {s(sAFp)}, {s(T[1])}, {WS_AF}
              s_lshl_b32 {s(T[2])}, {s(sJ)}, 2
              s_add_u32 {s(T[1])}, {s(T[1])}, {s(T[2])}
              s_add_u32 {s(sHFs)}, {s(T[1])}, {WS_HF}
              s_lshl_b32 {s(T[1])}, {s(T[10])}, 7
              s_lshl_b32 {s(T[2])}, {s(sW)}, 5
              s_add_u32 {s(T[1])}, {s(T[1])}, {s(T[2])}
              s_add_u32 {s(T[1])}, {s(T[1])}, {s(T[9])}
              s_add_u32 {s(sHFp)}, {s(T[1])}, {WS_HF}
              s_lshl_b32 {s(T[2])}, {s(T[11])}, 2
              s_add_u32 {s(T[1])}, {s(T[1])}, {s(T[2])}
              s_add_u32 {s(sFFs)}, {s(T[1])}, {WS_FF}
              s_lshr_b32 {s(T[1])}, {s(sJ)}, 1
              s_lshl_b32 {s(T[1])}, {s(T[1])}, 5
              s_add_u32 {s(T[1])}, {s(T[1])}, {s(T[9])}
              s_add_u32 {s(sFFp)}, {s(T[1])}, {WS_FF}
              s_lshr_b32 {s(T[1])}, {s(T[0])}, 5
              s_lshl_b32 {s(T[1])}, {s(T[1])}, 15
              s_bfe_u32 {s(T[2])}, {s(T[0])}, 0x10004
              s_lshl_b32 {s(T[2])}, {s(T[2])}, 10
              s_and_b32 {s(T[3])}, {s(T[0])}, 15
              s_lshl_b32 {s(T[3])}, {s(T[3])}, 4
              s_add_u32 {s(T[1])}, {s(T[1])}, {s(T[2])}
              s_add_u32 {s(T[1])}, {s(T[1])}, {s(T[3])}
              s_add_u32 {s(T[1])}, {s(T[1])}, {s(T[8])}
              s_add_u32 {s(T[1])}, {s(T[1])}, {WS_A}
              v_lshrrev_b32 v5, 2, {v(vL)}
              v_lshlrev_b32 v5, 11, v5
              v_and_b32 {v(vAst)}, 3, {v(vL)}
              v_lshl_add_u32 {v(vAst)}, {v(vAst)}, 8, v5
              v_add_u32 {v(vAst)}, {s(T[1])}, {v(vAst)}
              s_lshl_b32 {s(T[1])}, {s(sW)}, 15
              s_add_u32 {s(T[1])}, {s(T[1])}, {s(T[8])}
              s_add_u32 {s(T[1])}, {s(T[1])}, {WS_A}
              v_add_u32 {v(vAld[0])}, {s(T[1])}, {v(vL16)}
              v_add_u32 {v(vAld[1])}, 0x20000, {v(vAld[0])}
              v_add_u32 {v(vW1)}, 57344, {v(vL16)}
              v_lshrrev_b32 v5, 4, {v(vL)}
              v_and_b32 v23, 15, {v(vL)}
              v_lshlrev_b32 v22, 9, v5
              v_lshl_add_u32 v22, v23, 4, v22
              s_mul_i32 {s(T[4])}, {s(sX)}, {H_X}
              s_add_u32 {s(T[4])}, {s(T[4])}, {WS_H}
              s_mul_i32 {s(T[1])}, {s(sW)}, {H_RB}
              s_mul_i32 {s(T[2])}, {s(sJ)}, 3584
              s_add_u32 {s(T[1])}, {s(T[1])}, {s(T[2])}
              s_add_u32 {s(T[1])}, {s(T[1])}, {s(T[4])}
              v_add_u32 {v(vHm)}, {s(T[1])}, v22
              s_mul_i32 {s(T[1])}, {s(T[10])}, {H_RB}
              s_mul_i32 {s(T[2])}, {s(sW)}, 28672
              s_add_u32 {s(T[1])}, {s(T[1])}, {s(T[2])}
              s_add_u32 {s(T[1])}, {s(T[1])}, {s(T[4])}
              v_add_u32 {v(vHld[0])}, {s(T[1])}, v22
              v_add_u32 {v(vHld[1])}, {H_HALF}, {v(vHld[0])}
              v_cmp_gt_u32 vcc, 48, {v(vL)}
              v_add_u32 {v(vHt)}, 2048, {v(vHm)}
              v_mov_b32 v22, 0x80000000
              v_mul_u32_u24 {v(vRw)}, 272, v23
              v_cndmask_b32 {v(vHt)}, v22, {v(vHt)}, vcc
              v_lshl_add_u32 {v(vRw)}, v5, 4, {v(vRw)}
              s_mul_i32 {s(T[1])}, {s(sW)}, 8704
              s_add_u32 {s(T[1])}, {s(T[1])}, {L_RED}
              v_add_u32 {v(vRw)}, {s(T[1])}, {v(vRw)}
              v_lshrrev_b32 v5, 3, {v(vL)}
              v_mul_u32_u24 {v(vRr)}, 272, v5
              v_lshl_add_u32 {v(vRr)}, {v(vP7)}, 3, {v(vRr)}
              s_mul_i32 {s(T[1])}, {s(sW)}, {8*272}
              s_add_u32 {s(T[1])}, {s(T[1])}, {L_RED}
              v_add_u32 {v(vRr)}, {s(T[1])}, {v(vRr)}
              s_lshl_b32 {s(T[1])}, {s(T[10])}, 5
              s_lshl_b32 {s(T[2])}, {s(sW)}, 3
              s_add_u32 {s(T[1])}, {s(T[1])}, {s(T[2])}
              v_add_u32 v5, {s(T[1])}, v5
              s_lshl_b32 {s(T[2])}, {s(T[11])}, 7
              s_lshl_b32 {s(T[1])}, {s(sX)}, 17
              s_add_u32 {s(T[2])}, {s(T[2])}, {s(T[1])}
              v_lshl_add_u32 v22, {v(vP7)}, 2, {s(T[2])}
              v_lshl_add_u32 {v(vO)}, v5, 10, v22
              s_lshr_b32 {s(T[1])}, {s(T[11])}, 2
              s_lshl_b32 {s(T[1])}, {s(T[1])}, 13
              s_and_b32 {s(T[2])}, {s(T[11])}, 3
              s_lshl_b32 {s(T[2])}, {s(T[2])}, 7
              s_add_u32 {s(T[1])}, {s(T[1])}, {s(T[2])}
              s_lshl_b32 {s(T[2])}, {s(sX)}, 9
              s_add_u32 {s(T[1])}, {s(T[1])}, {s(T[2])}
              s_add_u32 {s(T[1])}, {s(T[1])}, {WS_YP}
              v_lshl_add_u32 {v(vF2)}, {v(vP7)}, 2, {s(T[1])}
              v_lshl_add_u32 {v(vF2)}, v5, 14, {v(vF2)}
              s_mov_b32 {s(sFH)}, 0x100000
              s_lshl_b32 {s(T[1])}, {s(T[0])}, 14
              s_add_u32 {s(T[1])}, {s(T[1])}, {s(T[2])}
              s_add_u32 {s(sFR[0])}, {s(T[1])}, {WS_YP}
              s_add_u32 {s(sFR[1])}, {s(T[1])}, {WS_YP + 4096}
              v_lshrrev_b32 v5, 5, {v(vL)}
              v_lshlrev_b32 v5, 13, v5
              v_lshl_add_u32 {v(vFr)}, {v(vP31)}, 2, v5""")

    W1V = 212
    def w1_addr(self):
        k = self.k; vb = self.W1V; rot = self.o.get('rot', 1)
        k(f"""s_mul_i32 {s(T[0])}, {s(sJ)}, 112
              s_movk_i32 {s(T[1])}, 9363
              s_movk_i32 {s(T[2])}, {3584 - 7*16}
              s_mul_i32 {s(sW1S)}, {s(sW)}, 229376
              s_mul_i32 {s(sW1L)}, {s(sW)}, 14336
              s_and_b32 {s(T[3])}, {s(sX)}, {6 if rot else 0}
              s_and_b32 {s(T[4])}, {s(sX)}, {1 if rot else 0}
              s_cselect_b32 {s(T[5])}, {s(RU)}, {s(RG)}
              s_cselect_b32 {s(T[6])}, {s(RU+1)}, {s(RG+1)}
              s_cselect_b32 {s(RU)}, {s(RG)}, {s(RU)}
              s_cselect_b32 {s(RU+1)}, {s(RG+1)}, {s(RU+1)}
              s_cselect_b32 {s(T[4])}, 7168, 0
              s_lshl_b32 {s(sDEL[0])}, {s(T[4])}, 1
              s_sub_u32 {s(sDEL[0])}, 7168, {s(sDEL[0])}
              s_mov_b32 {s(RG)}, {s(T[5])}
              s_mov_b32 {s(RG+1)}, {s(T[6])}
              s_add_u32 {s(sDEL[1])}, {s(sDEL[0])}, 57344
              s_add_u32 {s(T[4])}, {s(T[4])}, {s(sW1L)}""")
        for i in range(7):
            k(f"""s_add_u32 {s(T[5])}, {s(T[3])}, {i}
                  s_sub_u32 {s(T[6])}, {s(T[5])}, 7
                  s_cselect_b32 {s(T[5])}, {s(T[5])}, {s(T[6])}
                  s_lshl_b32 {s(T[6])}, {s(T[5])}, 10
                  s_add_u32 {s(sROT[i])}, {s(T[6])}, {s(T[4])}
                  v_lshl_add_u32 v5, {s(T[5])}, 6, {v(vL)}
                  v_mul_u32_u24 {v(vb+i)}, {s(T[1])}, v5
                  v_lshrrev_b32 {v(vb+i)}, 16, {v(vb+i)}
                  v_mul_u32_u24 {v(vb+i)}, {s(T[2])}, {v(vb+i)}
                  v_lshl_add_u32 {v(vb+i)}, v5, 4, {v(vb+i)}
                  v_add_u32 {v(vb+i)}, {s(T[0])}, {v(vb+i)}""")

    def w1_dma_text(self, n):
        ck, mat, i = n // 14, (n % 14) // 7, n % 7
        L = []
        if n == 14: L.append(f"s_add_u32 {s(sW1S)}, {s(sW1S)}, {4*229376}")
        L.append(f"s_add_u32 m0, {s(sROT[i])}, {s(sDEL[ck]) if mat else ck*57344}")
        L.append(f"buffer_load_dwordx4 {v(self.W1V+i)}, {s(RU if mat else RG,4)}, {s(sW1S)} offen lds")
        return L
    def w1_dma(self, cnt):
        for _ in range(cnt):
            if self.w1_next >= 28: return
            n = self.w1_next; self.w1_next += 1
            for x in self.w1_dma_text(n): self.w1_tok[n] = self.k(x)

    RL = 222
    def w1_relayout_addr(self):
        k = self.k; r = self.RL
        k(f"""v_lshrrev_b32 v5, 4, {v(vL)}
              v_bfe_u32 {v(r)}, {v(vL)}, 2, 2
              v_lshl_add_u32 {v(r)}, v5, 3, {v(r)}
              v_mul_u32_u24 {v(r)}, 112, {v(r)}
              v_add_u32 {v(r)}, {s(sW1L)}, {v(r)}
              v_and_b32 {v(r+2)}, 3, {v(vL)}
              v_bfe_u32 {v(r+3)}, {v(vL)}, 1, 1
              v_mul_u32_u24 {v(r+3)}, 7168, {v(r+3)}
              v_and_b32 v22, 1, {v(vL)}
              v_lshl_add_u32 {v(r+3)}, v22, 3, {v(r+3)}
              v_add_u32 {v(r+1)}, {v(r)}, {v(r+3)}
              v_lshl_add_u32 {v(r)}, {v(r+2)}, 3, {v(r)}
              v_add_u32 {v(r+2)}, {s(sW1L)}, {v(vL16)}
              v_bfe_u32 {v(r+3)}, {v(vL)}, 1, 2
              v_lshlrev_b32 {v(r+3)}, 2, {v(r+3)}
              v_bfe_u32 v23, {v(vL)}, 3, 1
              v_lshl_add_u32 {v(r+3)}, v23, 1, {v(r+3)}
              v_add_u32 {v(r+3)}, {v(r+3)}, v22
              v_lshl_add_u32 {v(r+3)}, v5, 4, {v(r+3)}
              v_lshlrev_b32 {v(r+3)}, 4, {v(r+3)}
              v_add_u32 {v(r+3)}, {s(sW1L)}, {v(r+3)}""")
    def w1_relayout_items(self, ck, vtemp=False):
        k = self.k; r = self.RL
        R, a = (ACC[1], v) if vtemp else (128, globals()['a'])
        L = [Item(fn=lambda: k.wait(self.w1_tok[14*ck + 13]))]
        if ck == 1: L += [Item(f"v_add_u32 {v(r+i)}, 57344, {v(r+i)}") for i in range(4)]
        for sl in range(2):
            for Tt in range(7):
                for hf in range(2):
                    d = R + (sl*7 + Tt)*4 + 2*hf
                    o = (32*sl + 4*hf)*112
                    if Tt < 6: L.append(Item(f"ds_read_b64_tr_b16 {a(d,2)}, {v(r)} offset:{o + (Tt&1)*7168 + 32*(Tt>>1)}"))
                    else: L.append(Item(f"ds_read_b64_tr_b16 {a(d,2)}, {v(r+1)} offset:{o + 96}"))
        last = L[-1]
        L.append(Item(fn=lambda: k.wait(last.tok)))
        for n in range(14): L.append(Item(f"ds_write_b128 {v(r+3 if n % 7 == 6 else r+2)}, {a(R + n*4, 4)} offset:{n*1024}"))
        return L
    def w1_relayout(self, ck): Queue(self.k, self.w1_relayout_items(ck)).drain()

    JV = 190
    def wd_job_addr(self):
        k = self.k; r = self.JV
        k(f"""s_lshl_b32 {s(T[0])}, s2, 1
              s_lshr_b32 {s(T[1])}, {s(sW)}, 1
              s_add_u32 {s(T[0])}, {s(T[0])}, {s(T[1])}
              s_mul_i32 {s(T[1])}, {s(T[0])}, 4682
              s_lshr_b32 {s(T[1])}, {s(T[1])}, 16
              s_mul_i32 {s(T[2])}, {s(T[1])}, 14
              s_sub_u32 {s(T[2])}, {s(T[0])}, {s(T[2])}
              s_and_b32 {s(T[3])}, {s(T[1])}, 3
              s_lshr_b32 {s(T[1])}, {s(T[1])}, 2
              s_lshl_b32 {s(T[1])}, {s(T[1])}, 7
              s_mul_i32 {s(T[3])}, {s(T[3])}, {8*57344}
              s_add_u32 {s(T[1])}, {s(T[1])}, {s(T[3])}
              s_cmp_lt_u32 s2, 224
              s_cselect_b32 {s(T[3])}, {s(sW)}, 0
              s_bitcmp1_b32 {s(T[3])}, 0
              s_cselect_b32 {s(T[3])}, 0, 0x80000000
              s_lshl_b32 {s(T[4])}, {s(T[0])}, 2
              s_add_u32 {s(T[4])}, {s(T[4])}, {WS_JF}
              s_lshr_b32 {s(sJF)}, {s(T[3])}, 1
              s_or_b32 {s(sJF)}, {s(sJF)}, {s(T[4])}
              s_lshl_b32 {s(T[0])}, {s(T[0])}, 12
              s_add_u32 {s(T[0])}, {s(T[0])}, {WS_WDT}
              s_or_b32 {s(T[0])}, {s(T[0])}, {s(T[3])}
              s_or_b32 {s(T[1])}, {s(T[1])}, {s(T[3])}
              v_add_u32 {v(r+5)}, {s(T[0])}, {v(vL16)}
              v_lshrrev_b32 v5, 3, {v(vL)}
              v_and_b32 v22, 3, v5
              v_lshlrev_b32 v22, 3, v22
              v_cmp_gt_u32 vcc, 4, v5
              v_lshl_add_u32 v23, {v(vP7)}, 2, {s(T[1])}
              s_lshl_b32 {s(T[2])}, {s(T[2])}, 2""")
        for g in range(4):
            k(f"""s_add_u32 {s(T[0])}, {s(T[2])}, {g}
                  s_mul_i32 {s(T[1])}, {s(T[0])}, 9363
                  s_lshr_b32 {s(T[1])}, {s(T[1])}, 16
                  s_mul_i32 {s(T[3])}, {s(T[1])}, 7
                  s_sub_u32 {s(T[0])}, {s(T[0])}, {s(T[3])}
                  s_mul_i32 {s(T[1])}, {s(T[1])}, 56
                  s_mul_i32 {s(T[3])}, {s(T[0])}, 0x04040404
                  s_add_u32 {s(T[4])}, {s(T[3])}, 0x13121110
                  s_add_u32 {s(T[3])}, {s(T[3])}, 0x03020100
                  s_cmp_ge_u32 {s(T[0])}, 4
                  s_cselect_b32 {s(T[3])}, {s(T[4])}, {s(T[3])}
                  s_cselect_b32 {s(T[4])}, {sum(x << (8*e) for e, x in enumerate(flist(4)[4:]))}, {s(T[4])}
                  s_cmp_eq_u32 {s(T[0])}, 5
                  s_cselect_b32 {s(T[4])}, {sum(x << (8*e) for e, x in enumerate(flist(5)[4:]))}, {s(T[4])}
                  s_cmp_eq_u32 {s(T[0])}, 6
                  s_cselect_b32 {s(T[4])}, {sum(x << (8*e) for e, x in enumerate(flist(6)[4:]))}, {s(T[4])}
                  v_mov_b32 v5, {s(T[3])}
                  v_mov_b32 {v(r+g)}, {s(T[4])}
                  v_cndmask_b32 v5, {v(r+g)}, v5, vcc
                  v_bfe_u32 v5, v5, v22, 8
                  v_add_u32 v5, {s(T[1])}, v5
                  v_lshl_add_u32 {v(r+g)}, v5, 10, v23""")
        k(f"""s_lshl_b32 {s(sJL)}, {s(sW)}, 12
              s_add_u32 {s(sJL)}, {s(sJL)}, {L_JOB}
              v_lshrrev_b32 v5, 4, {v(vL)}
              v_lshlrev_b32 {v(r+4)}, 10, v5
              v_bfe_u32 v5, {v(vL)}, 2, 2
              v_lshl_add_u32 {v(r+4)}, v5, 7, {v(r+4)}
              v_and_b32 v5, 3, {v(vL)}
              v_lshl_add_u32 {v(r+4)}, v5, 3, {v(r+4)}
              v_add_u32 {v(r+4)}, {s(sJL)}, {v(r+4)}""")
    def wd_job_issue(self):
        for g in range(4): self.job_tok = self.dma(self.JV+g, RD, '0', f"s_add_u32 m0, {s(sJL)}, {1024*g}")
    def wd_job_finish(self):
        k = self.k; r = self.JV
        k.wait(self.job_tok)
        t = {}
        for nt in range(4):
            for hf in range(2): t[nt] = k(f"ds_read_b64_tr_b16 {a(128 + 4*nt + 2*hf, 2)}, {v(r+4)} offset:{hf*512 + nt*32}")
        for nt in range(4):
            k.wait(t[nt])
            self.job_st = k(f"buffer_store_dwordx4 {a(128 + 4*nt, 4)}, {v(r+5)}, {s(RW,4)}, 0 offen offset:{1024*nt} sc1")
    WDV = 226
    def wd_addr(self):
        self.k(f"""s_and_b32 {s(T[0])}, {s(sJ)}, 7
                   s_lshl_b32 {s(T[0])}, {s(T[0])}, 2
                   s_add_u32 {s(T[0])}, {s(T[0])}, {s(sW)}
                   s_mul_i32 {s(sJFp)}, {s(T[0])}, {14*4}
                   s_add_u32 {s(sJFp)}, {s(sJFp)}, {WS_JF}
                   s_mul_i32 {s(T[0])}, {s(T[0])}, {14*4096}
                   s_add_u32 {s(T[0])}, {s(T[0])}, {WS_WDT}
                   v_add_u32 {v(vWd[0])}, {s(T[0])}, {v(vL16)}
                   v_add_u32 {v(vWd[1])}, 32768, {v(vWd[0])}
                   v_min_u32 v226, 13, {v(vL)}
                   v_lshlrev_b32 v226, 2, v226""")
    def wd_touch_text(self, i):
        return f"buffer_load_dword {v(228+i)}, v227, {s(RW,4)}, {k4(i)} offen offset:{3072*i} sc1"
    def wd_text(self, n):
        U, nt = divmod(n, 4)
        return f"buffer_load_dwordx4 {a(4*n, 4)}, {v(vWd[U >> 3])}, {s(RW,4)}, {k4(U & 7)} offen offset:{1024*nt}{self.o.get('wdm', ' sc1')}"

    def phase0(self):
        k = self.k
        k(f"""v_lshrrev_b32 v5, 4, {v(vL)}
              v_bfe_u32 v48, {v(vL)}, 2, 2
              v_lshl_add_u32 v49, v5, 4, v48
              v_lshlrev_b32 v49, 7, v49
              v_bfe_u32 v50, {v(vL)}, 1, 1
              s_lshl_b32 {s(T[0])}, {s(sW)}, 1
              v_add_u32 v50, {s(T[0])}, v50
              v_and_b32 v48, 2, v48
              v_xor_b32 v50, v50, v48
              v_and_b32 v48, 1, v5
              v_lshlrev_b32 v48, 2, v48
              v_xor_b32 v50, v50, v48
              v_lshl_add_u32 v49, v50, 4, v49
              v_and_b32 v48, 1, {v(vL)}
              v_lshl_add_u32 v49, v48, 3, v49
              v_add_u32 v49, {L_K}, v49
              v_xor_b32 v50, 64, v49
              v_lshlrev_b32 v51, 12, v27
              v_lshl_add_u32 v51, v5, 5, v51
              s_lshl_b32 {s(T[6])}, {s(sJ)}, 7
              s_add_u32 {s(T[6])}, {s(T[6])}, {WS_KVT}
              v_mul_u32_u24 v52, {self.o.get('xs', 4)//4}, {v(vP31)}
              s_mul_i32 {s(T[7])}, {s(sX)}, {32*self.o.get('xs', 4)}
              s_add_u32 {s(T[7])}, {s(T[7])}, {WS_XCCF}
              s_lshl_b32 {s(T[0])}, {s(sX)}, 9
              s_lshl_b32 {s(T[1])}, {s(sW)}, 7
              s_lshl_b32 {s(T[2])}, {s(sJ)}, 2
              s_add_u32 {s(T[1])}, {s(T[1])}, {s(T[2])}
              s_add_u32 {s(T[0])}, {s(T[0])}, {WS_KVF}
              s_add_u32 {s(T[5])}, {s(T[1])}, {s(T[0])}
              s_xor_b32 {s(T[0])}, {s(sN)}, {s(sXCC)}
              s_mov_b32 {s(sMODE)}, 0
              s_mov_b32 {s(sEXP)}, {s(sN)}""")
        k.wait(self.sh_tok)
        k("s_barrier")
        self.stamp('kv_in')
        xh = k(f"buffer_load_dword v53, v52, {s(RW,4)}, {s(T[7])} offen sc1")
        KR, VR, KS, O, VU, P = 56, 68, 78, 88, 104, 120
        k(f"ds_read_b64_tr_b16 {v(KR,2)}, v50 offset:512")
        for i in range(4): k(f"ds_read_b64_tr_b16 {v(KR+2+2*i,2)}, v49 offset:{1024 + 512*i}")
        for i in range(4): lastv = k(f"ds_read_b64_tr_b16 {v(VR+2*i,2)}, v49 offset:{L_V - L_K + 512*i}")
        k("v_alignbit_b32 v54, v30, v30, 16\nv_alignbit_b32 v55, v31, v31, 16")
        k.wait(('lg', lastv[1] - 4))
        for aa in range(-1, 8): k(f"v_alignbit_b32 {v(KS+1+aa)}, {v(KR+2+aa)}, {v(KR+1+aa)}, 16")
        for aa in range(8):
            k(f"v_dot2_f32_bf16 {v(O+2*aa)}, {v(KS+aa)}, v55, 0")
            k(f"v_dot2_f32_bf16 {v(O+2*aa+1)}, {v(KR+1+aa)}, v55, 0")
        for aa in range(8):
            k(f"v_dot2_f32_bf16 {v(O+2*aa)}, {v(KS+1+aa)}, v54, {v(O+2*aa)}")
            k(f"v_dot2_f32_bf16 {v(O+2*aa+1)}, {v(KR+2+aa)}, v54, {v(O+2*aa+1)}")
        k.wait(lastv)
        for g in range(2):
            for aa in range(4*g, 4*g+4):
                k(f"v_lshlrev_b32 {v(VU+2*aa)}, 16, {v(VR+aa)}")
                k(f"v_and_b32 {v(VU+2*aa+1)}, 0xffff0000, {v(VR+aa)}")
            for aa in range(4*g, 4*g+4): k(f"v_pk_mul_f32 {v(O+2*aa,2)}, {v(O+2*aa,2)}, {v(VU+2*aa,2)}")
            for e in range(4): k(f"v_cvt_pk_bf16_f32 {v(P+4*g+e)}, {v(O+8*g+7-2*e)}, {v(O+8*g+6-2*e)}")
            st = k(f"buffer_store_dwordx4 {v(P+4*g,4)}, v51, {s(RW,4)}, {s(T[6])} offen offset:{16*g}")
        self.stamp('kv_st')
        self.toeplitz_write()
        slow, back, done = k.label(), k.label(), k.label()
        k.wait(xh)
        k(f"v_cmp_ne_u32 vcc, {s(T[0])}, v53\ns_cbranch_vccnz {slow}")
        k.place(back)
        self.tail.append([f"{slow}:",
            f"buffer_load_dword v53, v52, {s(RW,4)}, {s(T[7])} offen sc1", "s_waitcnt vmcnt(0)",
            f"v_xor_b32 v54, {s(sN)}, v53", "v_cmp_lt_u32 vcc, 15, v54", f"s_cbranch_vccz {done}",
            f"s_sub_u32 {s(sSPIN)}, {s(sSPIN)}, 1", f"s_cbranch_scc0 {slow}", "s_branch L_END",
            f"{done}:", f"v_cmp_ne_u32 vcc, {s(T[0])}, v53", f"s_cbranch_vccz {back}",
            f"s_mov_b32 {s(sMODE)}, 1", f"s_not_b32 {s(sEXP)}, {s(sN)}", f"s_branch {back}"])
        self.publish(st, s(T[5]))
        self.stamp('kv_pub')

    def toeplitz_write(self):
        k = self.k
        k.wait(self.h_tok)
        k(f"v_add_u32 v48, {SCR}, v29")
        for ch in range(2):
            k(f"ds_write_b128 v48, {v(32+8*ch,4)} offset:{H_E(ch) - SCR}")
            k(f"ds_write_b128 v48, {v(36+8*ch,4)} offset:{H_O(ch) - SCR}")
        skip = k.label()
        k(f"s_cmp_lg_u32 {s(sW)}, 0\ns_cbranch_scc1 {skip}")
        k(f"""v_readfirstlane_b32 {s(T[1])}, v32
              v_readfirstlane_b32 {s(T[2])}, v40
              v_cmp_eq_u32 vcc, 28, {v(vP7)}
              v_add_u32 v49, {SCR}, {v(vP7)}
              s_lshl_b32 {s(T[1])}, {s(T[1])}, 16
              s_lshl_b32 {s(T[2])}, {s(T[2])}, 16
              v_mov_b32 v50, 0
              v_mov_b32 v51, 0
              v_mov_b32 v54, {s(T[1])}
              v_mov_b32 v55, {s(T[2])}
              v_cndmask_b32 v54, v50, v54, vcc
              v_cndmask_b32 v55, v50, v55, vcc
              ds_write_b32 v49, v50 offset:{H_E(0) - 32 - SCR}
              ds_write_b32 v49, v50 offset:{H_E(1) - 32 - SCR}
              ds_write_b32 v49, v54 offset:{H_O(0) - 32 - SCR}
              ds_write_b32 v49, v55 offset:{H_O(1) - 32 - SCR}
              v_lshlrev_b32 v49, 3, {v(vL)}
              v_add_u32 v49, {L_U}, v49
              ds_write_b64 v49, v[50:51]
              ds_write_b64 v49, v[50:51] offset:{U_S}""")
        k.place(skip)

    YA = 146
    def front_addr(self):
        k = self.k; o = self.o; Y = self.YA; yfs = o.get('yfs', 4)
        k(f"""v_and_b32 v24, 15, {v(vL)}
              v_lshrrev_b32 v25, 4, {v(vL)}
              v_lshlrev_b32 v5, 3, v25
              v_sub_u32 v26, v24, v5
              v_add_u32 v26, 9, v26
              v_and_b32 v5, 1, v26
              v_sub_u32 v26, v26, v5
              v_lshlrev_b32 v26, 1, v26
              v_mul_u32_u24 v5, {H_O(0) - H_E(0)}, v5
              v_add_u32 v26, v26, v5
              s_lshr_b32 {s(T[0])}, {s(sW)}, 1
              s_mul_i32 {s(T[2])}, {s(T[0])}, {H_E(1) - H_E(0)}
              s_and_b32 {s(T[1])}, {s(sW)}, 1
              s_lshl_b32 {s(T[3])}, {s(T[1])}, 8
              s_add_u32 {s(T[2])}, {s(T[2])}, {s(T[3])}
              s_add_u32 {s(T[2])}, {s(T[2])}, {H_E(0)}
              v_add_u32 v152, {s(T[2])}, v26
              s_mul_i32 {s(T[4])}, {s(T[0])}, {U_S}
              s_add_u32 {s(T[4])}, {s(T[4])}, {L_U + 512}
              s_lshl_b32 {s(T[2])}, {s(T[1])}, 11
              s_add_u32 {s(sUm0)}, {s(T[4])}, {s(T[2])}
              s_sub_u32 {s(T[4])}, {s(T[4])}, {s(T[3])}
              s_sub_u32 {s(T[4])}, {s(T[4])}, 224
              v_lshlrev_b32 v140, 5, v24
              v_lshl_add_u32 v140, v25, 4, v140
              v_add_u32 v140, {s(T[4])}, v140
              s_lshl_b32 {s(T[0])}, {s(sX)}, 9
              s_lshr_b32 {s(T[1])}, {s(sJ)}, 3
              s_lshl_b32 {s(T[1])}, {s(T[1])}, 7
              s_add_u32 {s(T[1])}, {s(T[0])}, {s(T[1])}
              s_add_u32 {s(sKVFp)}, {s(T[1])}, {WS_KVF}
              s_lshl_b32 {s(T[1])}, {s(sJ)}, 4
              s_add_u32 {s(T[0])}, {s(T[0])}, {s(T[1])}
              s_add_u32 {s(sYld)}, {s(T[0])}, {WS_YP}
              s_lshl_b32 {s(T[0])}, {s(sX)}, 18
              s_lshl_b32 {s(T[1])}, {s(sJ)}, 13
              s_add_u32 {s(T[0])}, {s(T[0])}, {s(T[1])}
              s_lshl_b32 {s(T[2])}, {s(sW)}, 11
              s_add_u32 {s(T[1])}, {s(T[0])}, {s(T[2])}
              s_add_u32 {s(sKVs)}, {s(T[1])}, {WS_KVT}
              s_lshl_b32 {s(T[2])}, {s(sW)}, 10
              s_add_u32 {s(T[1])}, {s(T[0])}, {s(T[2])}
              s_add_u32 {s(sYst)}, {s(T[1])}, {WS_YP}
              v_lshlrev_b32 v141, 5, v24
              v_lshrrev_b32 v5, 1, v25
              v_lshl_add_u32 v141, v5, 4, v141
              v_and_b32 v5, 1, v25
              v_xor_b32 v5, 1, v5
              v_lshl_add_u32 v141, v5, 3, v141
              s_lshl_b32 {s(T[0])}, {s(sW)}, 9
              s_add_u32 {s(T[1])}, {s(T[0])}, {L_U + 512}
              v_add_u32 v141, {s(T[1])}, v141
              s_add_u32 {s(T[1])}, {s(T[2])}, {L_YT}
              v_add_u32 {v(Y+3)}, {s(T[1])}, {v(vL16)}
              s_lshl_b32 {s(T[0])}, {s(sW)}, 12
              s_add_u32 {s(T[0])}, {s(T[0])}, {L_CRED}
              v_add_u32 v142, {s(T[0])}, {v(vL16)}
              s_add_u32 {s(T[0])}, {s(T[2])}, {L_CRED}
              v_add_u32 v143, {s(T[0])}, {v(vL16)}
              v_lshlrev_b32 v144, 6, v24
              v_lshl_add_u32 v144, v25, 4, v144
              v_add_u32 v145, 4096, v144
              s_lshl_b32 {s(T[0])}, {s(sX)}, 5
              s_add_u32 {s(T[0])}, {s(T[0])}, {s(sJ)}
              s_lshl_b32 {s(T[0])}, {s(T[0])}, 2
              s_add_u32 {s(T[0])}, {s(T[0])}, {s(T[2])}
              s_mul_i32 {s(T[0])}, {s(T[0])}, {yfs//4}
              s_add_u32 {s(sYFs)}, {s(T[0])}, {WS_YF}
              v_lshlrev_b32 {v(Y+2)}, 2, v0
              v_mul_u32_u24 {v(Y)}, {yfs}, v0
              s_lshr_b32 {s(T[0])}, {s(sX)}, 1
              s_mul_i32 {s(T[0])}, {s(T[0])}, {256*yfs}
              s_add_u32 {s(sYFp)}, {s(T[0])}, {WS_YF}
              v_lshlrev_b32 {v(Y+1)}, 13, v0
              v_add_u32 {v(Y+2)}, {L_YT}, {v(Y+2)}""")
        for p in range(1, 8): k(f"v_add_u32 {v(152+p)}, {512*p}, v152")

    def conv_finish(self, h, C, pk):
        KV, P = 32, 160 + 16*h
        W = [f"ds_write_b128 v142, {v(C + 16*h + 4*c, 4)} offset:{16384*h + 1024*c}" for c in range(4)]
        R = [f"ds_read_b64 {v(KV + 4*h + 2*ch, 2)}, v141 offset:{2048*h + ch*U_S}" for ch in range(2)]
        R2 = [f"ds_read_b128 {v(P + 4*w, 4)}, v143 offset:{16384*h + 4096*w}" for w in range(4)]
        L = []
        for ch in range(2):
            if pk: L += [f"v_pk_add_f32 {v(P+8*ch+e,2)}, {v(P+8*ch+e,2)}, {v(P+8*ch+4+e,2)}" for e in (0, 2)]
            else: L += [f"v_add_f32 {v(P+8*ch+e)}, {v(P+8*ch+e)}, {v(P+8*ch+4+e)}" for e in range(4)]
        D = [f"v_dot2_f32_bf16 {v(P+8*ch+e)}, {v(KV+4*h+2*ch+(1-(e>>1)))}, {s(sD+2*ch+(1-(e&1)))}, {v(P+8*ch+e)}" for e in range(4) for ch in range(2)]
        E = [f"v_cvt_pk_bf16_f32 {v(P+4+e)}, {v(P+e)}, {v(P+8+e)}" for e in range(4)]
        E.append(f"buffer_store_dwordx4 {v(P+4,4)}, {v(144+h)}, {s(RW,4)}, {s(sYst)} offen sc1")
        return W, R, R2, L, D, E

    def conv(self):
        k = self.k; o = self.o; Y = self.YA
        def tz(rr, p):
            d = (rr*8 + p)*4
            return [f"ds_read2_b32 {a(d,2)}, {v(152+p)} offset0:{16*rr} offset1:{16*rr+1}",
                    f"ds_read2_b32 {a(d+2,2)}, {v(152+p)} offset0:{16*rr+2} offset1:{16*rr+3}"]
        first = [x for rr in range(4) for p in range(4) for x in tz(rr, p)]
        second = [x for rr in range(4) for p in range(4, 8) for x in tz(rr, p)]
        k.wait_lg0()
        k("s_barrier")
        n0 = o.get('toep0', 20)
        ph = self.poll_issue(vP31, s(sKVFp))
        for x in first[:n0]: k(x)
        self.stamp('toep')
        self.poll_check(ph)
        self.stamp('kv_seen')
        k(f"s_mov_b32 m0, {s(sUm0)}")
        k(f"buffer_load_dwordx4 {v(vL16)}, {s(RW,4)}, {s(sKVs)} offen sc1 lds")
        tok = k(f"buffer_load_dwordx4 {v(vL16)}, {s(RW,4)}, {s(sKVs)} offen offset:1024 sc1 lds")
        for x in first[n0:]: k(x)
        k.wait(tok)
        k("s_barrier")
        self.stamp('u_in')
        B, C = 64, 96
        uses = [(0, rr, q) for rr in range(4) for q in range(4)] + [(1, rr, q) for rr in range(4) for q in range(8)]
        bt = {}
        def rdB(i):
            part, rr, q = uses[i]
            bt[i] = k(f"ds_read_b128 {v(B + 4*(i % 8), 4)}, v140 offset:{512*q + 64*(3-rr)}")
        for i in range(8): rdB(i)
        pre = []
        if o.get('jpos', 0) == 0: self.wd_job_issue()
        if not o.get('joint', 1): self.q_load()
        tq = Queue(k, [Item(x) for x in second]); tits = list(tq.q)
        n2 = o.get('n2', 11); dq = []
        for i in range(n2):
            if self.w1_next >= 14: break
            n = self.w1_next; self.w1_next += 1
            for x in self.w1_dma_text(n): dq.append(Item(x, at=o.get('n2at', 2) + i*(o.get('n2span', 130) // n2), tag=n))
        dits = list(dq); dq = Queue(k, dq)
        side = Queue(k, []); ybox = []
        m = 0; started = set()
        for i, (part, rr, q) in enumerate(uses):
            need = []
            if part == 1 and q == 0:
                while any(x.tok is None for x in tits[:8*rr + 8]): tq.emit(tq.q[0])
                need = [tits[8*rr + 7].tok]
            if part == 1 and rr == 0 and q == 0:
                W, R, R2, L, D, E = self.conv_finish(0, C, False)
                its = [Item(x, cost=2, at=m + 3 + 2*n) for n, x in enumerate(W)] + [Item(x) for x in R]
                its += [Item(fn=lambda: k.wait_lg0(), at=m + 16), Item(fn=lambda: k("s_barrier"))]
                its += [Item(x) for x in R2]; lastr = its[-1]
                its += [Item(fn=lambda: k.wait(lastr.tok), at=m + 26)] + [Item(x) for x in L]
                its += [Item(fn=lambda: [k(x) for x in D], cost=2)] + [Item(x) for x in E]
                ysA = its[-1]
                if not o.get('joint', 1): its += [Item(fn=lambda: k.wait(ysA.tok), at=o.get('ya_pub', 118)), Item(fn=lambda: self.flag_store(s(sYFs), 0, False))]
                side = Queue(k, its)
            if i % 2 == 0: k.wait(bt[i + 1], *need)
            ps = range(4 - q) if part == 0 else range(max(0, 4 - q), 8 - q)
            for n, p in enumerate(ps):
                c = C + 4*(p + q)
                src = v(c, 4) if (p + q) in started else '0'
                started.add(p + q)
                k(f"v_mfma_f32_16x16x32_bf16 {v(c,4)}, {a((rr*8+p)*4,4)}, {v(B + 4*(i % 8),4)}, {src}")
                m += 1
                cap = 2
                if n == len(ps) - 1: cap -= (1 if i + 8 < len(uses) else 0) + (i % 2)
                cap = side.fill(cap, m)
                cap = dq.fill(cap, m)
                tq.fill(min(cap, 1))
            if i + 8 < len(uses): rdB(i + 8)
        print('conv left:', side.cost(), dq.cost())
        dq.drain()
        for x in dits: self.w1_tok[x.tag] = x.tok
        self.stamp('conv_mfma')
        W, R, R2, L, D, E = self.conv_finish(1, C, True)
        for x in R + W: k(x)
        side.drain()
        k.wait_lg0()
        k("s_barrier")
        for x in R2: k(x)
        if not o.get('joint', 1): pa = self.poll_issue(Y, s(sYFp))
        k.wait_lg0()
        self.ysB = self.run(L + D + E)[-1].tok
        self.stamp('y_st')
        if not o.get('joint', 1):
            self.poll_check(pa, False)
            self.stamp('y_seen')

    def y_joint(self):
        k = self.k; o = self.o; Y = self.YA
        self.wd_job_finish()
        self.persistent()
        self.publish(self.ysB, s(sYFs), local=False)
        self.stamp('y_pub')
        self.publish(self.job_st, s(sJF), local=False)
        k("s_barrier")
        done0 = self.w1_next >= 14
        self.q_load()
        self.w1_dma(o.get('n3', 4))
        self.w1_relayout_addr()
        self.wd_addr()
        if o.get('tch_h', 0): self.touch_h_addr()
        k(f"s_add_u32 {s(T[8])}, {s(sYld)}, 4096")
        if done0: self.w1_relayout(0)
        self.q_stats()
        self.stamp('rl0')
        self.poll(Y, s(sYFp), local=False)
        self.stamp('y_seen')
        t0 = k(f"buffer_load_dwordx4 v[32:35], {v(Y+1)}, {s(RW,4)}, {s(sYld)} offen sc1")
        t1 = k(f"buffer_load_dwordx4 v[36:39], {v(Y+1)}, {s(RW,4)}, {s(T[8])} offen sc1")
        pj = self.poll_issue(226, s(sJFp), 0, 229)
        self.w1_dma(o.get('n4', 10))
        if o.get('tch_h', 0) == 1: k(self.touch_h_text())
        if not done0 and self.w1_next >= 14: self.w1_relayout(0); done0 = True
        k.wait(t0)
        for e in range(4): k(f"ds_write_b32 {v(Y+2)}, {v(32+e)} offset:{1024*e}")
        k.wait(t1)
        for e in range(4): k(f"ds_write_b32 {v(Y+2)}, {v(36+e)} offset:{1024*(4+e)}")
        k.wait_lg0()
        k("s_barrier")
        for h in range(2): k(f"ds_read_b128 {v(YS[h],4)}, {v(Y+3)} offset:{4096*h}")
        k.wait_lg0()
        self.stamp('y_in')
        its = self.run(self.gate_norm([0, 1], self.N0, 0, 56))
        sts = [x.tok for x in its if 'store' in x.text]
        self.stamp('a_st')
        self.poll_check(pj, False)
        if done0: self.gemm1_start(0)
        self.publish(sts[0], s(sAFs), 0)
        self.publish(sts[1], s(sAFs), 512)
        k(f"s_or_b32 {s(T[0])}, s2, {s(sW)}\ns_cmp_eq_u32 {s(T[0])}, 0\ns_cselect_b32 {s(T[0])}, 0, 0x40000000")
        k(f"buffer_store_dword {v(vNON)}, {v(vL0)}, {s(RW,4)}, {s(T[0])} offen sc1")
        self.stamp('a_pub')
        self.rl1_done = bool(o.get('rl1_front', 1)); self.rowb_done = True
        self.wd0 = o.get('wd0', 0)
        for n in range(self.wd0): k(self.wd_text(n))
        self.w1_dma(28 if self.rl1_done else o.get('n5', 0))
        if self.w1_next < 28:
            for i in range(7): k(f"v_mov_b32 {v(126+i)}, {v(self.W1V+i)}")
            self.W1V = 126
        if not done0: self.w1_relayout(0)
        if self.rl1_done: self.w1_relayout(1)
        if self.rl1_done or not done0: k.wait_lg0(); k("s_barrier")
        if not done0: self.gemm1_start(0)

    def stats(self, rows, out, t0, scale=None):
        L = []; n = len(rows)
        for i, x in enumerate(rows):
            b = t0 + 6*i
            L += [f"v_pk_add_f32 {v(b,2)}, {v(x,2)}, {v(x+2,2)}", f"v_pk_mul_f32 {v(b+2,2)}, {v(x,2)}, {v(x,2)}",
                  f"v_pk_add_f32 {v(b+4,2)}, {v(x+4,2)}, {v(x+6,2)}"]
            L += [f"v_pk_fma_f32 {v(b+2,2)}, {v(x+e,2)}, {v(x+e,2)}, {v(b+2,2)}" for e in (2, 4, 6)]
            L += [f"v_pk_add_f32 {v(b,2)}, {v(b,2)}, {v(b+4,2)}", f"v_add_f32 {v(b+2)}, {v(b+2)}, {v(b+3)}", f"v_add_f32 {v(b)}, {v(b)}, {v(b+1)}"]
        for ctl in ("row_ror:8 row_mask:0xf", "row_ror:4 row_mask:0xf", "row_ror:2 row_mask:0xf", "row_ror:1 row_mask:0xf",
                    "row_bcast:15 row_mask:0xa", "row_bcast:31 row_mask:0xc"):
            for i in range(n):
                for e in (2, 0):
                    r = t0 + 6*i + e
                    L.append(f"v_add_f32_dpp {v(r)}, {v(r)}, {v(r)} {ctl} bank_mask:0xf")
        for i in range(n):
            b = t0 + 6*i
            L += [f"v_mul_f32 {v(b)}, 0x3b000000, {v(b)}", f"v_mul_f32 {v(b+2)}, 0x3b000000, {v(b+2)}",
                  f"v_fma_f32 {v(b+2)}, -{v(b)}, {v(b)}, {v(b+2)}", f"v_max_f32 {v(b+2)}, 0, {v(b+2)}",
                  f"v_add_f32 {v(b+2)}, 0x3727c5ac, {v(b+2)}", f"v_rsq_f32 {v(b+2)}, {v(b+2)}"]
            if scale: L.append(f"v_mul_f32 {v(b+2)}, {f32(scale)}, {v(b+2)}")
            L += [f"v_mul_f32_e64 {v(b)}, -{v(b)}, {v(b+2)}", f"v_readlane_b32 {s(out[i])}, {v(b+2)}, 63",
                  f"v_readlane_b32 {s(out[i]+2)}, {v(b)}, 63", f"s_mov_b32 {s(out[i]+1)}, {s(out[i])}",
                  f"v_mov_b32 {v(b+4)}, {s(out[i]+2)}", f"v_mov_b32 {v(b+5)}, {s(out[i]+2)}"]
        return L
    def unpack(self, dst, src):
        L = []
        for e in range(4): L += [f"v_lshlrev_b32 {v(dst+2*e)}, 16, {v(src+e)}", f"v_and_b32 {v(dst+2*e+1)}, 0xffff0000, {v(src+e)}"]
        return L
    def affine(self, dst, x, sp, vb):
        return [f"v_pk_fma_f32 {v(dst+e,2)}, {v(x+e,2)}, {s(sp,2)}, {v(vb,2)}" for e in (0, 2, 4, 6)]
    def run(self, L, look=12):
        its = [Item(x) for x in L]
        Queue(self.k, its, look).drain()
        return its

    def gate_norm(self, halves, nrm, layer, R):
        L = []; sp = [36, 40]
        t0 = R + 16*len(halves)
        for i, h in enumerate(halves):
            L += self.unpack(R + 16*i, YS[h])
            L += [f"v_pk_fma_f32 {v(XS[h]+e,2)}, {v(nrm[h]+e,2)}, {v(R+16*i+e,2)}, {v(XS[h]+e,2)}" for e in (0, 2, 4, 6)]
        L += self.stats([XS[h] for h in halves], sp[:len(halves)], t0, LOG2E)
        for i, h in enumerate(halves):
            b = R + 16*i
            L += self.affine(b, XS[h], sp[i], t0 + 6*i + 4)
            L += [f"v_cvt_pk_bf16_f32 {v(b+8+e)}, {v(b+2*e)}, {v(b+2*e+1)}" for e in range(4)]
            L.append(f"buffer_store_dwordx4 {v(b+8,4)}, {v(vAst)}, {s(RW,4)}, {s(sHALF) if h else 0} offen")
            if layer == 1:
                L += [f"v_cvt_pk_bf16_f32 {v(b+12+e)}, {v(XS[h]+2*e)}, {v(XS[h]+2*e+1)}" for e in range(4)]
                L.append(f"buffer_store_dwordx4 {v(b+12,4)}, {v(vFr)}, {s(RW,4)}, {s(sFR[h])} offen{self.o.get('x3m', '')}")
        return L

    N0 = [40, 118]
    def q_stats(self):
        k = self.k
        k.wait(self.q_tok)
        L = []
        for h in range(2): L += self.unpack(XS[h], 204 + 4*h)
        L += self.stats(XS, [36, 40], 128)
        for h in range(2): L += self.affine(self.N0[h], XS[h], [36, 40][h], 128 + 6*h + 4)
        self.run(L)

    def y_row(self, h, t, raw):
        k = self.k; Y = self.YA
        k.wait(t)
        for e in range(4): k(f"ds_write_b32 {v(Y+2)}, {v(raw+e)} offset:{4096*h + 1024*e}")
        k.wait_lg0()
        k("s_barrier")
        k(f"ds_read_b128 {v(YS[h],4)}, {v(Y+3)} offset:{4096*h}")
        k.wait_lg0()

    def y_in(self):
        k = self.k; o = self.o; Y = self.YA
        t0 = k(f"buffer_load_dwordx4 v[32:35], {v(Y+1)}, {s(RW,4)}, {s(sYld)} offen sc1")
        k(f"s_add_u32 {s(sYFs)}, {s(sYFs)}, {1024*o.get('yfs', 4)}\ns_add_u32 {s(sYFp)}, {s(sYFp)}, {1024*o.get('yfs', 4)}\ns_add_u32 {s(sYld)}, {s(sYld)}, 4096")
        self.publish(self.ysB, s(sYFs), local=False)
        self.stamp('y_pub')
        if o.get('jpos', 0) == 0: self.wd_job_finish()
        self.q_stats()
        self.persistent()
        k("s_barrier")
        self.w1_dma(o.get('n4', 6))
        self.y_row(0, t0, 32)
        self.stamp('y_in')
        its = self.run(self.gate_norm([0], self.N0, 0, 56))
        st = [x.tok for x in its if 'store' in x.text][0]
        self.stamp('a_st')
        for i in range(4): k(f"v_mov_b32 {v(110+i)}, {v(Y+i)}")
        self.YA = 110
        if self.w1_next + o.get('n5', 28) < 28:
            for i in range(7): k(f"v_mov_b32 {v(126+i)}, {v(self.W1V+i)}")
            self.W1V = 126
        self.w1_relayout_addr()
        self.publish(st, s(sAFs), 0)
        self.flag_store(s(sJF), 0, False)
        k(f"s_or_b32 {s(T[0])}, s2, {s(sW)}\ns_cmp_eq_u32 {s(T[0])}, 0\ns_cselect_b32 {s(T[0])}, 0, 0x40000000")
        k(f"buffer_store_dword {v(vNON)}, {v(vL0)}, {s(RW,4)}, {s(T[0])} offen sc1")
        self.stamp('a_pub')
        self.w1_dma(o.get('n5', 28))
        self.w1_relayout(0)
        self.wd_addr()
        self.rl1_done = bool(o.get('rl1_front', 1))
        if self.rl1_done:
            if o.get('rowb_front', 1): self.row_b0()
            self.w1_relayout(1)
        k.wait_lg0(); k("s_barrier")
        self.stamp('w1')
        self.gemm1_start(0)

    def row_b0(self, h0=None):
        k = self.k; Y = self.YA
        if h0 is None:
            self.poll(Y, s(sYFp), local=False)
            h0 = k(f"buffer_load_dwordx4 v[106:109], {v(Y+1)}, {s(RW,4)}, {s(sYld)} offen sc1")
        self.y_row(1, h0, 106)
        its = self.run(self.gate_norm([1], self.N0, 0, ACC[1]))
        self.aB_tok = [x.tok for x in its if 'store' in x.text][0]
        self.rowb_done = True
        if self.o.get('rowb_front', 1) and self.rl1_done: self.publish(self.aB_tok, s(sAFs), 512)

    def epilogue1(self, B, half, off, pk, sc=''):
        L = []; so = s(sHH) if half else '0'
        def grp(g, u, n, outs, t):
            for e in range(n): L.append(f"v_exp_f32_e64 {v(t+e)}, -{v(g+e)}")
            if pk:
                for e in range(0, n, 2): L.append(f"v_pk_mul_f32 {v(u+e,2)}, {v(g+e,2)}, {v(u+e,2)}")
                for e in range(0, n, 2): L.append(f"v_pk_fma_f32 {v(t+e,2)}, {v(t+e,2)}, {s(sC2,2)}, {s(sC2,2)}")
            else:
                for e in range(n): L.append(f"v_mul_f32 {v(u+e)}, {v(g+e)}, {v(u+e)}")
                for e in range(n): L.append(f"v_fma_f32 {v(t+e)}, {v(t+e)}, {s(sC2)}, {s(sC2)}")
            for e in range(n): L.append(f"v_rcp_f32 {v(t+e)}, {v(t+e)}")
            if pk:
                for e in range(0, n, 2): L.append(f"v_pk_mul_f32 {v(u+e,2)}, {v(u+e,2)}, {v(t+e,2)}")
            else:
                for e in range(n): L.append(f"v_mul_f32 {v(u+e)}, {v(u+e)}, {v(t+e)}")
            for e in range(0, n, 2): L.append(f"v_cvt_pk_bf16_f32 {v(outs[e//2])}, {v(u+e)}, {v(u+e+1)}")
        grp(B, B+4, 4, [B, B+1], TMP)
        grp(B+8, B+12, 4, [B+2, B+3], TMP+4)
        L.append(f"buffer_store_dwordx4 {v(B,4)}, {v(vHm)}, {s(RW,4)}, {so} offen offset:{off}{sc}")
        grp(B+16, B+20, 4, [B+8, B+9], TMP)
        grp(B+24, B+26, 2, [B+10], TMP+4)
        Z, C, A_ = B+4, B+5, B+6
        L += [f"v_mov_b32 {v(C)}, {v(B+8)}", f"v_mov_b32 {v(A_)}, {v(B+9)}", f"v_mov_b32 {v(Z)}, {v(B+10)}",
              f"v_permlane32_swap_b32 {v(A_)}, {v(B+11)}", f"v_permlane32_swap_b32 {v(C)}, {v(Z)}",
              f"v_permlane16_swap_b32 {v(Z)}, {v(B+11)}",
              f"buffer_store_dwordx4 {v(B+8,4)}, {v(vHt)}, {s(RW,4)}, {so} offen offset:{off}{sc}"]
        return L

    def a_plan(self, layer):
        n = self.o.get('ring0', 8) if layer == 0 else self.o.get('ring1', 4)
        ring = ([('v', AR + 8*i) for i in range(4)] + [('a', 224 + 8*i) for i in range(4)])[:n]
        reg = {gs: ring[gs % n] for gs in range(32)}
        issue = {}
        for gs in range(32):
            prev = [p for p in range(gs) if reg[p] == reg[gs]]
            issue[gs] = prev[-1] + 1 if prev else -1
        return reg, issue

    def gemm1_start(self, layer):
        k = self.k
        self.wt, self.at = {}, {}
        self.areg, self.aiss = self.a_plan(layer)
        for Tt in range(7): self.rdW(0, Tt)
    def rdW(self, gs, Tt):
        st = gs % 16
        base, o = (vL16, st*7168) if st < 8 else (vW1, (st-8)*7168)
        self.wt[(gs, Tt)] = self.k(f"ds_read_b128 {v(WF + 28*(gs&1) + 4*Tt, 4)}, {v(base)} offset:{o + 1024*Tt}")
    def afrag(self, gs, mt):
        kind, b = self.areg[gs]
        return (v if kind == 'v' else a)(b + 4*mt, 4)
    def ldA(self, gs, mt):
        st = gs % 16
        self.at[(gs, mt)] = self.k(f"buffer_load_dwordx4 {self.afrag(gs, mt)}, {v(vAld[gs // 16])}, {s(RW,4)}, {k4(st>>1)} offen offset:{((st&1)*2+mt)*1024} sc1")

    def gemm1(self, layer):
        k = self.k; o = self.o
        lo = 1024*layer
        self.poll(vP31, s(sAFp), lo)
        self.stamp(f'a_seen{layer}')
        todo = sorted(range(32), key=lambda g: g)
        nxtA = 0
        while self.aiss[nxtA] < 0 and nxtA < o.get('a_init', 5):
            for mt in range(2): self.ldA(nxtA, mt)
            nxtA += 1
        w1q = []
        if layer == 0:
            if o.get('w1_spread'):
                n0 = self.w1_next
                for n in range(n0, 28):
                    for x in self.w1_dma_text(n): w1q.append(Item(x, at=int(14*o['w1_spread']*(n - n0)/(28 - n0)), tag=n))
                self.w1_next = 28
            else: self.w1_dma(28)
        firstB = max(min(self.aiss[g] for g in range(16, 32)), o.get('firstB', 0) if layer else 0)
        queues = []
        if layer == 0:
            burst = None
            if getattr(self, 'rowb_done', False):
                queues.append(Queue(k, self.poll_items(vP31, s(sAFp), lo + 512, 14*2, 14*(firstB - 2))))
            else:
                burst = o.get('rowb0_at', 3); box = []
                its = [Item(fn=lambda: box.append(self.poll_issue(self.YA, s(sYFp))))] + [Item(fn=f, at=14*(burst - 2)) for f in self.poll_steps(lambda: box[0], False)]
                fld = Item(f"buffer_load_dwordx4 v[106:109], {v(self.YA+1)}, {s(RW,4)}, {s(sYld)} offen sc1"); its.append(fld)
                queues.append(Queue(k, its))
                firstB = max(firstB, o.get('firstB0', 12))
            rl = self.w1_relayout_items(1) if not self.rl1_done else []
            for x in rl: x.at = 14*o.get('rl1_at', 1)
            if w1q:
                def note():
                    for x in w1q: self.w1_tok[x.tag] = x.tok
                rl = w1q + [Item(fn=note, cost=0)] + rl
            rlq = Queue(k, rl); queues.append(rlq)
            t0 = o.get('wd_t0', 1); t1 = o.get('wd_t1', 31)
            wd = [Item(self.wd_text(n), at=int(14*(t0 + (t1 - t0)*n/56))) for n in range(getattr(self, 'wd0', 0), o.get('wd_n', 56))]
            jb = []
            pj = [Item(fn=lambda: jb.append(self.poll_issue(226, s(sJFp), 0, 229)))] + [Item(fn=f, at=14*t0 - 4) for f in self.poll_steps(lambda: jb[0], False)]
            if o.get('joint', 1): pj = []
            if o.get('tch_h', 0) == 2: pj = [Item(self.touch_h_text(), at=14*o.get('tch_at', 0))]
            wdq = Queue(k, pj + wd, 1); queues.append(wdq)
        else:
            box = []
            s0 = o.get('rowb_at', 5)
            its = self.poll_items(vP7, s(sFFp), 512, 14*(s0 - 3), 14*(s0 - 1) - 8)
            fld = Item(f"buffer_load_dwordx4 {v(ACC[1],4)}, {v(vFr)}, {s(RW,4)}, {s(sFR[1])} offen sc1"); its.append(fld)
            queues.append(Queue(k, its))
            burst = s0
        epi = None; hbox = []
        ho = lambda half, mt: 2048*layer + 1024*half + 512*mt
        hsc = [' sc1' if o.get('hsc', 15) >> (2*layer + h) & 1 else '' for h in range(2)]
        for gs in range(32):
            ps, st = divmod(gs, 16)
            if gs == burst:
                queues[0].drain(); k.wait(fld.tok)
                self.stamp('rowB_go')
                if layer: sts = self.rowop(1, ACC[1])
                else: self.row_b0(fld.tok); sts = self.aB_tok
                self.stamp('rowB')
                queues[:1] = [Queue(k, self.publish_items(lambda: sts, s(sAFs), lo + 512, 14*gs + 22)
                                + self.poll_items(vP31, s(sAFp), lo + 512, 14*(firstB - 2) - 4, 14*firstB - 4))]
            if gs == firstB: queues[0].drain()
            if layer == 0 and gs == o.get('rl1_bar', 7) and not self.rl1_done:
                print('relayout left at step 7:', rlq.cost())
                rlq.drain(); k.wait_lg0(); k("s_barrier")
            if gs == 16:
                for q in queues[:2]: q.drain()
                e0 = [Item(x, at=14*16 + 4) for x in self.epilogue1(ACC[0], 0, 0, 0, hsc[0])]
                e1 = [Item(x, at=14*16 + 4) for x in self.epilogue1(ACC[0] + 28, 0, 256, 0, hsc[0])]
                epi = e0 + e1
                queues = [Queue(k, epi, 14), Queue(k, []), Queue(k, [])]
                if layer == 0: queues.append(wdq)
                pub = [False, False]; self.ht = {}; self.nxtH = 0
            if epi:
                dl = o.get('ha_pub', 50 if hsc[0] else 30)
                if not pub[0] and e0[-1].tok:
                    pub[0] = gs
                    queues[1].q += self.publish_items(lambda: e0[-1].tok, s(sHFs), ho(0, 0), 14*gs + dl)
                    t1_ = 14*gs + dl + o.get('ha_gap', 34)
                    queues[2].q += self.poll_items(vP7, s(sHFp), ho(0, 0), t1_, t1_ + o.get('ha_rtt', 22))
                    queues[2].q += [Item(fn=self.ldH, at=t1_ + o.get('ha_rtt', 22) + 4*n) for n in range(7)]
                if not pub[1] and e1[-1].tok:
                    pub[1] = gs
                    queues[1].q += self.publish_items(lambda: e1[-1].tok, s(sHFs), ho(0, 1), 14*gs + dl)
                    queues[2].q += [Item(fn=self.ldH, at=14*31 + 4*n) for n in range(o.get('ha_more', 3))]
            fixed = [[] for _ in range(14)]
            if gs + 1 < 32:
                for Tt in range(7): fixed[2*(Tt // 2)].append(('W', gs+1, Tt))
            slot = 6
            while nxtA < 32 and self.aiss[nxtA] <= gs and slot <= 10 and (nxtA < 16 or gs >= firstB):
                fixed[slot].append(('A', nxtA, 0)); fixed[slot+2].append(('A', nxtA, 1)); nxtA += 1; slot += 4
            k.wait(self.at[(gs, 1)], self.wt[(gs, 6)])
            for i in range(14):
                Tt, mt = divmod(i, 2)
                d = ACC[ps] + 28*mt + 4*Tt
                k(f"v_mfma_f32_16x16x32_bf16 {v(d,4)}, {v(WF + 28*(gs&1) + 4*Tt, 4)}, {self.afrag(gs, mt)}, {'0' if st == 0 else v(d,4)}")
                for it in fixed[i]:
                    if it[0] == 'W': self.rdW(it[1], it[2])
                    else: self.ldA(it[1], it[2])
                cap = 2 - len(fixed[i]) - (1 if i == 13 else 0)
                for q in (queues[::-1] if ps else queues): cap = q.fill(cap, 14*gs + i)
            if gs == 15: self.stamp(f'g1a{layer}'); self.late = layer == 1
        print('layer', layer, 'left after G1B:', [q.cost() for q in queues], 'stores done in steps', pub, 'h loads out', self.nxtH)
        queues[0].drain()
        if not pub[1]: queues[1].q += self.publish_items(lambda: e1[-1].tok, s(sHFs), ho(0, 1), 0)
        if layer == 0: wdq.drain(); self.wd_last = wd[-1].tok
        self.stamp(f'g1b{layer}')
        b0 = [Item(x) for x in self.epilogue1(ACC[1], 1, 0, 1, hsc[1])]
        b1 = [Item(x) for x in self.epilogue1(ACC[1] + 28, 1, 256, 1, hsc[1])]
        q = Queue(k, b0 + b1, 12)
        total = q.cost()
        side = [x for x in queues[2].q if x.fn != self.ldH]
        pubq = list(queues[1].q)
        ev = [(o.get('epi_pub', 30), lambda: Queue(k, pubq).drain()), (o.get('epi_lead', 10), lambda: Queue(k, side).drain())]
        gap = o.get('epi_gap', 20); t = o.get('epi_lead', 10)
        for n in range(self.nxtH, 14):
            ev.append((t, self.ldH)); t += gap
        box = []
        ev.append((o.get('ha1_pi', 140), lambda: box.append(self.poll_issue(vP7, s(sHFp), ho(0, 1)))))
        ev.sort(key=lambda x: x[0])
        while len(q):
            while ev and total - q.cost() >= ev[0][0]: ev.pop(0)[1]()
            if q.fill(3) == 3: q.emit(q.q[0])
        for _, f in ev: f()
        self.hA1_poll = box[0]
        self.hB_tok = [b0[-1].tok, b1[-1].tok]
        self.hsc = hsc
        self.stamp(f'epiB{layer}')

    def g2_order(self):
        return [(half, U, mt) for half in range(2) for mt in range(2) for U in range(14)]
    def hreg(self, n):
        if n < 14: return ACC[0] + 4*n
        if n < 28: return WF + 4*(n - 14)
        if n < 42: return ACC[1] + 4*(n - 28)
        return ACC[0] + 4*(n - 42)
    def ldH(self, _=0):
        n = self.nxtH; self.nxtH += 1
        half, U, mt = self.g2_order()[n]
        self.ht[n] = self.k(f"buffer_load_dwordx4 {v(self.hreg(n),4)}, {v(vHld[half])}, {s(RW,4)}, {k4(U>>1)} offen offset:{(U&1)*2048 + mt*256} sc1")

    def red_write(self, A2):
        return [f"ds_write_b128 {v(vRw)}, {v(A2 + 16*mt + 4*nt, 4)} offset:{4352*mt + 64*nt}" for mt in range(2) for nt in range(4)]
    def red_read(self, P):
        return [f"ds_read_b128 {v(P + 8*w + 4*hf, 4)}, {v(vRr)} offset:{8704*w + 16*hf}" for w in range(4) for hf in range(2)]
    def red_sum(self, P, half, layer, X3, pk):
        L = []
        def add(d, x, y):
            if pk: L.extend(f"v_pk_add_f32 {v(d+e,2)}, {v(x+e,2)}, {v(y+e,2)}" for e in (0, 2, 4, 6))
            else: L.extend(f"v_add_f32 {v(d+e)}, {v(x+e)}, {v(y+e)}" for e in range(8))
        add(P, P, P+8); add(P+16, P+16, P+24)
        if layer == 1:
            L += self.unpack(P+8, X3); add(P, P, P+8)
        add(P, P, P+16)
        L += [f"v_cvt_pk_bf16_f32 {v(P+8+e)}, {v(P+2*e)}, {v(P+2*e+1)}" for e in range(4)]
        if layer == 0: L.append(f"buffer_store_dwordx4 {v(P+8,4)}, {v(vF2)}, {s(RW,4)}, {k4(half)} offen")
        else: L.append(f"buffer_store_dwordx4 {v(P+8,4)}, {v(vO)}, {s(RO,4)}, {s(sFH) if half else 0} offen{self.o.get('ost', '')}")
        return L

    def gemm2(self, layer):
        k = self.k; o = self.o
        lo = 1024*layer
        AC2 = [AR, WF]
        X3 = [TMP, TMP + 4]
        order = self.g2_order()
        LA = o.get('g2la', 20)
        xt = {}
        def ldX(h): xt[h] = k(f"buffer_load_dwordx4 {v(X3[h],4)}, {v(vF2)}, {s(RW,4)}, {k4(h)} offen sc1")
        ho = lambda half, mt: 2048*layer + 1024*half + 512*mt
        sl = self.hsc[1]
        gate = [14]
        def opened(n): return Item(fn=lambda: gate.__setitem__(0, n), cost=0)
        p0, p1 = o.get('hb_pub0', 20 if sl else 4), o.get('hb_pub1', 44 if sl else 20)
        g_, r_ = o.get('hb_gap', 20), o.get('hb_rtt', 30)
        side = Queue(k, [Item(fn=f, at=o.get('ha1_pc', 8)) for f in self.poll_steps(lambda: self.hA1_poll)] + [opened(28)]
                     + self.publish_items(lambda: self.hB_tok[0], s(sHFs), ho(1, 0), p0)
                     + self.publish_items(lambda: self.hB_tok[1], s(sHFs), ho(1, 1), p1))
        side2 = Queue(k, self.poll_items(vP7, s(sHFp), ho(1, 0), p0 + g_, p0 + g_ + r_) + [opened(42)]
                      + self.poll_items(vP7, s(sHFp), ho(1, 1), max(p1 + g_, p0 + g_ + r_ + 2), max(p1 + g_, p0 + g_ + r_ + 2) + r_) + [opened(56)])
        if layer == 0: k.wait(self.wd_last)
        fbox = []; seenB = False; wB = self.red_write(AC2[1]); doneB = 0
        def next_load():
            self.ldH()
            if layer == 1 and self.nxtH == 34: ldX(0)
            if layer == 1 and self.nxtH == 56:
                ldX(1)
                if o.get('wbl2', 0): self.writeback()
        for n in range(56):
            half, U, mt = order[n]
            if n == 28:
                self.stamp(f'g2a{layer}')
                side.drain()
                t = 4*28
                sp = o.get('ra_sp', 2)
                L = [Item(x, at=t + 3 + sp*i) for i, x in enumerate(self.red_write(AC2[0]))]
                L += [Item(fn=lambda: k.wait_lg0(), at=t + 8*sp + 3), Item(fn=lambda: k("s_barrier"))]
                L += [Item(x) for x in self.red_read(AR)]
                L += [Item(fn=lambda: k.wait_lg0(), at=t + 8*sp + o.get('ra_rd', 14)), Item(fn=lambda: k("s_barrier"))]
                if layer == 1: L += [Item(fn=lambda: k.wait(xt[0]))]
                L += [Item(x) for x in self.red_sum(AR, 0, layer, X3[0], 0)]
                fA = L[-1]
                if layer == 0:
                    L += self.publish_items(lambda: fA.tok, s(sFFs), 0, t + o.get('fa_pub', 74))
                    L += [Item(x, at=t + 60) for x in self.unpack(ACC[1] + 24, YS[0])]
                    L.append(Item(fn=lambda: fbox.append(self.poll_issue(vP7, s(sFFp), 0)), at=t + o.get('fa_pi', 96)))
                if o.get('nored') and layer == 1: L = []
                side = Queue(k, L)
                last0 = max(i for i in range(28, 56) if order[i][2] == 0)
                late = Queue(k, [Item(x, at=4*(last0 + 1) + 3 + sp*i) for i, x in enumerate(wB[:4])])
            if n in (8, 16, 22, 36, 44, 50): self.stamp(f'g2_{layer}_{n}')
            for m in range(n, n + 2 - n % 2):
                while m not in self.ht:
                    while self.nxtH >= gate[0]:
                        qq = side if (gate[0] == 14) else side2
                        qq.emit(qq.q[0])
                    next_load()
            if n % 2 == 0: k.wait(self.ht[n + 1])
            for nt in range(4):
                d = AC2[half] + 16*mt + 4*nt
                k(f"v_mfma_f32_16x16x32_bf16 {v(d,4)}, {a((4*U+nt)*4,4)}, {v(self.hreg(n),4)}, {'0' if U == 0 else v(d,4)}")
                cap = 2 - (1 if (nt == 3 and n % 2) else 0)
                if (nt == 0 or (nt == 2 and self.nxtH < n + 1 + o.get('g2min', 6))) and self.nxtH < min(gate[0], n + 1 + LA) and (self.nxtH < 42 or self.nxtH - 42 < n):
                    next_load(); cap -= 1
                if gate[0] > 14: cap = side2.fill(cap, 4*n + nt)
                cap = side.fill(cap, 4*n + nt)
                if n >= 28 and not any('ds_' in (x.text or '') or (x.fn and x.at <= t + 8*sp + 40) for x in side.q):
                    late.fill(cap, 4*n + nt)
        print('layer', layer, 'left after G2B:', side.cost(), late.cost())
        side.drain()
        wB = [x.text for x in late.q] + wB[4:]
        self.stamp(f'g2b{layer}')
        R = ACC[1]
        if layer == 0:
            self.poll_check(fbox[0])
            self.stamp('fA_seen')
            fld = k(f"buffer_load_dwordx4 {v(R,4)}, {v(vFr)}, {s(RW,4)}, {s(sFR[0])} offen sc1")
        for x in wB: k(x)
        early = layer == 0 and o.get('rowa_first', 1)
        if early:
            k.wait(fld)
            sts, rest = self.rowop(0, R, True)
            self.stamp('rowA')
        k.wait_lg0(); k("s_barrier")
        for x in self.red_read(ACC[0]): k(x)
        if layer == 0 and not early:
            k.wait(fld)
            sts, rest = self.rowop(0, R, True)
            self.stamp('rowA')
        k.wait_lg0()
        if layer == 1: k.wait(xt[1])
        if early: self.publish(sts, s(sAFs), 1024)
        fB = self.run(self.red_sum(ACC[0], 1, layer, X3[1], 1))[-1].tok
        self.stamp(f'fB_st{layer}')
        if layer == 0:
            self.gemm1_start(1)
            if not early: self.publish(sts, s(sAFs), 1024)
            self.stamp('aA_pub')
            self.run(rest)
            self.publish(fB, s(sFFs), 512)

    def writeback(self):
        k = self.k
        a_, b_ = k.label(), k.label()
        k(f"s_or_b32 {s(T[2])}, {s(sJ)}, {s(sW)}\ns_cmp_lg_u32 {s(T[2])}, 0\ns_cbranch_scc1 {a_}")
        k("buffer_wbl2 sc1")
        k(f"s_branch {b_}"); k.place(a_)
        k.ins.append(I(f"buffer_load_dword {v(vPT)}, {v(vL0)}, {s(RW,4)}, 0 offen"))
        k.place(b_)

    def rowop(self, h, R, split=False):
        L = self.unpack(R + 8, R)
        L += [f"v_pk_add_f32 {v(XS[h]+e,2)}, {v(XS[h]+e,2)}, {v(R+8+e,2)}" for e in (0, 2, 4, 6)]
        L += self.stats([XS[h]], [36], R + 16)
        L += self.affine(R + 8, XS[h], 36, R + 20)
        G = self.gate_norm([h], {h: R + 8}, 1, R + 24)
        rest = []
        if split: G, rest = G[8:-5], G[-5:]
        its = self.run(L + G, 16)
        tok = [x.tok for x in its if 'store' in x.text][-1]
        return (tok, rest) if split else tok

    def build(self):
        k = self.k; o = self.o
        self.prologue()
        self.front_addr()
        self.touch_first()
        self.touch_global_flags()
        self.w1_addr()
        self.w1_dma(o.get('n0', 2))
        self.wd_job_addr()
        self.phase0()
        self.w1_dma(o.get('n1', 1))
        self.conv()
        if o.get('joint', 1): self.y_joint()
        else: self.y_in()
        for layer in range(2):
            self.gemm1(layer)
            self.gemm2(layer)
        if o.get('stamps'):
            self.stamp('end')
            k(f"""s_lshl_b32 {s(T[0])}, s2, 2
                  s_add_u32 {s(T[0])}, {s(T[0])}, {s(sW)}
                  s_lshl_b32 {s(T[0])}, {s(T[0])}, 8
                  s_add_u32 {s(T[0])}, {s(T[0])}, {WS_DBG}
                  v_lshrrev_b32 v5, 2, {v(vL16)}
                  buffer_store_dword {v(vST[0])}, v5, {s(RW,4)}, {s(T[0])} offen
                  s_add_u32 {s(T[0])}, {s(T[0])}, 0x40000
                  buffer_store_dword {v(vST[1])}, v5, {s(RW,4)}, {s(T[0])} offen""")
        if o.get('delay'):
            k(f"""s_mov_b32 {s(T[0])}, {o['delay']}
                  s_memrealtime {s(T[2],2)}
                  s_waitcnt lgkmcnt(0)""")
            k.place("L_DELAY")
            k(f"""s_memrealtime {s(T[4],2)}
                  s_waitcnt lgkmcnt(0)
                  s_sub_u32 {s(T[4])}, {s(T[4])}, {s(T[2])}
                  s_cmp_lt_u32 {s(T[4])}, {s(T[0])}
                  s_cbranch_scc1 L_DELAY""")
        if o.get('diag'):
            self.stamp('end')
            k(f"""v_sub_u32 v5, {v(vST[1])}, {v(vST[0])}
                  s_nop 1
                  v_readfirstlane_b32 {s(T[0])}, v5
                  s_mul_i32 {s(T[0])}, {s(T[0])}, 8
                  s_memrealtime {s(T[2],2)}
                  s_waitcnt lgkmcnt(0)""")
            k.place("L_DIAG")
            k(f"""s_memrealtime {s(T[4],2)}
                  s_waitcnt lgkmcnt(0)
                  s_sub_u32 {s(T[4])}, {s(T[4])}, {s(T[2])}
                  s_cmp_lt_u32 {s(T[4])}, {s(T[0])}
                  s_cbranch_scc1 L_DIAG""")
        k.place("L_END")
        k("s_endpgm")
        body = k.text()
        for t in self.tail:
            body += "".join((x + "\n") if x.endswith(':') else ("    " + x + "\n") for x in t)
        body += "L_LAST:\n"
        return body

def file_text(opt):
    g = Gen(opt)
    body = g.build()
    ref = open(os.path.join(os.path.dirname(os.path.abspath(__file__)), '..', 'cdna_kernels', NAME + '.s.ref')).read()
    head = ref[:ref.index('; Override launch geometry')]
    txt = head + f"""; @launch grid=(256,1,1) block=(256,1,1) lds={LDS_SIZE}
.amdgcn_target "amdgcn-amd-amdhsa--gfx950"
.text
.globl {NAME}_kernel
.p2align 8
.type {NAME}_kernel,@function
{NAME}_kernel:
{body}.section .rodata,"a"
.p2align 6
.amdhsa_kernel {NAME}_kernel
  .amdhsa_next_free_vgpr 512
  .amdhsa_next_free_sgpr 102
  .amdhsa_accum_offset 256
  .amdhsa_group_segment_fixed_size 0
  .amdhsa_kernarg_size 104
  .amdhsa_user_sgpr_count 2
  .amdhsa_user_sgpr_kernarg_segment_ptr 1
  .amdhsa_system_sgpr_workgroup_id_x 1
.end_amdhsa_kernel
"""
    return txt, g

if __name__ == '__main__':
    import json
    opt = {}; out = None
    for x in sys.argv[1:]:
        if '=' in x:
            kk, vv = x.split('=')
            opt[kk] = vv.split(',') if kk in ('only', 'diag') else (' ' + vv.replace('+', ' ') if kk in ('ost', 'wdm', 'x3m') else int(vv, 0))
        else: out = x
    txt, g = file_text(opt)
    open(out, 'w').write(txt)
    json.dump(g.stamps, open(out + '.stamps.json', 'w'))
    print('instructions', len(g.k.ins), 'nops added', g.k.nops_added, 'stamps', len(g.stamps))
```

```python
import sys, os
sys.path.insert(0, os.path.dirname(os.path.abspath(__file__)))
from dsl import *

NAME = 'interleave_layers__ssm_conv_h3__swiglu_ffn__prompt'

WS_XCCF = 0x1000
WS_KVF  = 0x10000
WS_AF   = 0x11000
WS_HF   = 0x19000
WS_FF   = 0x21000
WS_YF   = 0x40000
WS_JF   = 0x3E000
WS_KVT  = 0x100000
WS_A    = WS_KVT
WS_YP   = 0x300000
WS_H    = 0x700000
WS_WDT  = 0xE00000
WS_DBG  = 0x1000000
WS_SIZE = 0x1100000
H_X, H_HALF, H_RB = 917504, 458752, 114688

LDS_SIZE = 163840
SCR   = 114688
L_K   = SCR
L_V   = L_K + 9216
L_H   = L_V + 8192
H_CP  = 4096 + 128
H_E   = lambda ch: L_H + ch * 2 * H_CP + 64
H_O   = lambda ch: L_H + ch * 2 * H_CP + H_CP + 128
L_U   = L_H + 4 * H_CP + 128
U_S   = 4608
assert L_U + 2 * U_S <= LDS_SIZE
L_CRED = 57344
L_YT  = L_U
L_JOB = 114688 - 16384
L_RED = SCR
L_AG  = LDS_SIZE - 4352
L_AG2 = SCR

sX, sJ, sW, sN, sEXP, sSPIN, sXCC, sMODE = 4, 5, 6, 7, 8, 9, 10, 11
T = list(range(12, 24))
sC2 = 24
sHALF = 26
sW1S, sW1L = 27, 3
sD = 28
sDP = 34
RK, RV, RH, RQ, RG, RU, RD, RO, RW, RS = 44, 48, 52, 56, 60, 64, 68, 72, 76, 80
sK4 = 83
def k4(i): return '0' if i == 0 else s(sK4 + i)
sHH = 91
sAFp, sAFs, sHFp, sHFs, sFFp, sFFs = 94, 95, 96, 97, 98, 99
sFR = [100, 101]
sFH = 55
sAG = [56, 57]
sROT = [0, 1, 34, 35, 54, 80, 81]
sDEL = [82, 83]
sST = (32, 92)
sKVFp, sKVs, sUm0, sYst, sYFs, sYFp, sYld, sJF, sJL, sJFp = 44, 45, 46, 47, 48, 49, 50, 51, 52, 53

vL, vL16, vL0, vNON, vPT = 1, 2, 3, 4, 5
vAld, vHld = [6, 7], [8, 9]
vHm, vHt, vAst, vF2, vO, vRw, vRr, vP31, vP7, vW1 = 10, 11, 12, 13, 14, 15, 16, 17, 18, 19
vST = (20, 21)
vFr = 0
vWd = [230, 231]
ACC = [22, 78]
WF, AR, TMP = 134, 190, 222
YS, XS = [232, 236], [240, 248]
LOG2E = 1.4426950408889634

def f32(x):
    import struct
    return '0x%08x' % struct.unpack('<I', struct.pack('<f', x))[0]

def flist(c):
    if c < 4: return [4*c + e for e in range(4)] + [16 + 4*c + e for e in range(4)]
    q = c - 4; X = [44, 46, 54][q]
    return [32 + 4*q + e for e in range(4)] + [48 + 2*q, 49 + 2*q, X, X + 1]

class Gen:
    def __init__(self, opt):
        self.o = opt
        self.k = K()
        self.tail = []
        self.stamps = []
        self.w1_next = 0
        self.late = False
        self.w1_tok = {}

    def stamp(self, name):
        dg = self.o.get('diag')
        if dg and name in dg:
            k = self.k
            k(f"s_memrealtime {s(sST[0],2)}"); k.wait_lg0()
            k(f"v_mov_b32 {v(vST[dg.index(name)])}, {s(sST[0])}")
        if not self.o.get('stamps'): return
        only = self.o.get('only')
        if only and name not in only: return
        k = self.k; n = len(self.stamps)
        k(f"s_memrealtime {s(sST[0],2)}\ns_memtime {s(sST[1],2)}"); k.wait_lg0()
        if self.o.get('spinstat') and n >= 2: k(f"s_sub_u32 {s(sST[1])}, 0, {s(sSPIN)}")
        k(f"v_writelane_b32 {v(vST[0])}, {s(sST[0])}, {n}\nv_writelane_b32 {v(vST[1])}, {s(sST[1])}, {n}")
        self.stamps.append(name)

    def srd(self, base, size):
        self.k(f"s_mov_b32 {s(base+2)}, {size}\ns_mov_b32 {s(base+3)}, 0x20000")

    def poll_issue(self, vaddr, soff, off=0, vt=vPT):
        txt = f"buffer_load_dword {v(vt)}, {v(vaddr)}, {s(RW,4)}, {soff} offen offset:{off} sc1"
        return (self.k(txt), txt, vt)

    def poll_steps(self, get, local=True):
        k = self.k
        slow, back, ok = k.label(), k.label(), k.label()
        def s1(): k.wait(get()[0])
        def s2(): k(f"v_cmp_ne_u32 vcc, {s(sEXP if local else sN)}, {v(get()[2])}")
        def s3():
            if self.o.get('nopoll') and self.late: return
            k(f"s_cbranch_vccnz {slow}"); k.place(back)
            _, txt, vt = get()
            nap = self.o.get('nap_l', 0) if local else self.o.get('nap_g', 0)
            t = [f"{slow}:"] + ([f"s_sleep {nap}"] if nap else []) + [txt, "s_waitcnt vmcnt(0)", f"v_cmp_ne_u32 vcc, {s(sN)}, {v(vt)}", f"s_cbranch_vccz {ok}",
                 f"s_sub_u32 {s(sSPIN)}, {s(sSPIN)}, 1", f"s_cbranch_scc0 {slow}", "s_branch L_END", f"{ok}:"]
            if local: t += [f"s_cmp_eq_u32 {s(sMODE)}, 0", f"s_cbranch_scc1 {back}", "buffer_inv sc1", "s_waitcnt vmcnt(0)"]
            self.tail.append(t + [f"s_branch {back}"])
        return [s1, s2, s3]

    def poll_check(self, h, local=True):
        for f in self.poll_steps(lambda: h, local): f()
    def poll(self, vaddr, soff, off=0, local=True):
        self.poll_check(self.poll_issue(vaddr, soff, off), local)
    def poll_items(self, vaddr, soff, off, at_issue, at_check):
        box = []
        it = [Item(fn=lambda: box.append(self.poll_issue(vaddr, soff, off)), at=at_issue)]
        return it + [Item(fn=f, at=at_check) for f in self.poll_steps(lambda: box[0])]

    def flag_store(self, soff, off=0, local=True):
        k = self.k
        txt = f"buffer_store_dword {v(vNON)}, {v(vL0)}, {s(RW,4)}, {soff} offen offset:{off}"
        if not local: return k(txt + " sc1")
        slow, back = k.label(), k.label()
        k(f"s_cmp_lg_u32 {s(sMODE)}, 0\ns_cbranch_scc1 {slow}")
        r = k(txt); k.place(back)
        self.tail.append([f"{slow}:", "s_waitcnt vmcnt(0)", "buffer_wbl2 sc1", "s_waitcnt vmcnt(0)", txt + " sc1", f"s_branch {back}"])
        return r
    def publish(self, tok, soff, off=0, local=True):
        self.k.wait(tok)
        return self.flag_store(soff, off, local)
    def publish_items(self, get, soff, off, at):
        return [Item(fn=lambda: self.k.wait(get()), at=at), Item(fn=lambda: self.flag_store(soff, off), cost=2, at=at)]

    def dma(self, vaddr, srd, soff, m0, extra=''):
        self.k(m0)
        return self.k(f"buffer_load_dwordx4 {v(vaddr)}, {s(srd,4)}, {soff} offen {extra} lds".replace('  ', ' '))

    def prologue(self):
        k = self.k
        k("s_cmp_ge_u32 s2, 256\ns_cbranch_scc1 L_END")
        if self.o.get('stamps'): k(f"v_mov_b32 {v(vST[0])}, 0\nv_mov_b32 {v(vST[1])}, 0")
        self.stamp('entry')
        for r, off in ((RK, 8), (RV, 16), (RW, 96), (RH, 32), (RS, 24), (RQ, 0), (RG, 56), (RU, 64), (RD, 72), (RO, 80)):
            k(f"s_load_dwordx2 {s(r,2)}, s[0:1], {off}")
        k(f"s_load_dwordx2 {s(sDP,2)}, s[0:1], 40")
        k(f"s_lshr_b32 {s(sJ)}, s2, 3")
        self.code_prefetch()
        k(f"""s_and_b32 {s(sX)}, s2, 7
              v_lshrrev_b32 v5, 6, v0
              v_and_b32 {v(vL)}, 63, v0
              v_readfirstlane_b32 {s(sW)}, v5
              v_lshlrev_b32 {v(vL16)}, 4, {v(vL)}""")
        for r, size in ((RK, 2097152), (RV, 2097152), (RW, WS_SIZE), (RH, 2097152), (RS, 4096)): self.srd(r, size)

        k(f"""v_lshrrev_b32 v24, 3, {v(vL)}
              v_and_b32 v25, 7, {v(vL)}
              v_and_b32 v26, 2, v24
              v_xor_b32 v25, v25, v26
              s_and_b32 {s(T[0])}, {s(sW)}, 1
              s_lshl_b32 {s(T[0])}, {s(T[0])}, 2
              v_xor_b32 v25, {s(T[0])}, v25
              v_lshlrev_b32 v25, 4, v25
              v_lshl_add_u32 v25, v24, 10, v25
              s_lshl_b32 {s(T[0])}, {s(sJ)}, 16
              s_lshl_b32 {s(T[1])}, {s(sW)}, 14
              s_lshl_b32 {s(T[2])}, {s(sX)}, 7
              s_add_u32 {s(T[0])}, {s(T[0])}, {s(T[1])}
              s_add_u32 {s(T[0])}, {s(T[0])}, {s(T[2])}
              v_add_u32 v25, {s(T[0])}, v25
              v_xor_b32 v26, 64, v25
              v_subrev_u32 v26, 8192, v26
              s_lshl_b32 {s(T[1])}, {s(sW)}, 11
              s_add_u32 {s(T[2])}, {s(T[1])}, {L_K + 1024}
              s_add_u32 {s(T[3])}, {s(T[1])}, {L_V}
              s_movk_i32 {s(T[4])}, 8192
              v_and_b32 v27, 15, {v(vL)}
              s_lshl_b32 {s(T[0])}, {s(sX)}, 6
              s_lshl_b32 {s(T[1])}, {s(sW)}, 4
              s_add_u32 {s(T[1])}, {s(T[0])}, {s(T[1])}
              v_add_u32 v27, {s(T[1])}, v27
              v_lshlrev_b32 v28, 3, v27
              s_lshl_b32 {s(T[1])}, {s(sJ)}, 1
              s_add_u32 {s(T[0])}, {s(T[0])}, {s(T[1])}
              s_lshl_b32 {s(T[5])}, {s(T[0])}, 1
              s_lshl_b32 {s(T[6])}, {s(T[0])}, 12
              s_add_u32 {s(T[7])}, {s(T[6])}, 4096
              v_lshlrev_b32 v29, 4, v0""")
        k.wait_lg0()
        self.stamp('start')
        k(f"s_load_dword {s(sN)}, {s(RW,2)}, 0")
        k(f"s_load_dword {s(sD)}, {s(sDP,2)}, {s(T[5])}")
        self.dma(25, RK, '0', f"s_mov_b32 m0, {s(T[2])}")
        self.dma(25, RV, '0', f"s_mov_b32 m0, {s(T[3])}")
        self.dma(25, RK, s(T[4]), f"s_add_u32 m0, {s(T[2])}, 1024")
        self.dma(25, RV, s(T[4]), f"s_add_u32 m0, {s(T[3])}, 1024")
        skip = k.label()
        k(f"s_cmp_lg_u32 {s(sW)}, 0\ns_cbranch_scc1 {skip}\ns_mov_b32 m0, {L_K}\ns_nop 0")
        k.ins.append(I(f"buffer_load_dwordx4 v26, {s(RK,4)}, 0 offen lds"))
        k.place(skip)
        self.sh_tok = k(f"buffer_load_dwordx2 v[30:31], v28, {s(RS,4)}, 0 offen")
        k(f"buffer_load_dwordx4 v[32:35], v29, {s(RH,4)}, {s(T[6])} offen")
        k(f"buffer_load_dwordx4 v[40:43], v29, {s(RH,4)}, {s(T[7])} offen")
        k(f"buffer_load_dwordx4 v[36:39], v29, {s(RH,4)}, {s(T[6])} offen offset:2")
        self.h_tok = k(f"buffer_load_dwordx4 v[44:47], v29, {s(RH,4)}, {s(T[7])} offen offset:2")
        k(f"""s_getreg_b32 {s(sXCC)}, hwreg(HW_REG_XCC_ID, 0, 4)
              v_cmp_eq_u32 vcc, 0, {v(vL)}
              v_mov_b32 v5, 0x80000000
              s_lshl_b32 {s(T[1])}, {s(sX)}, 5
              s_add_u32 {s(T[1])}, {s(T[1])}, {s(sJ)}
              s_mul_i32 {s(T[1])}, {s(T[1])}, {self.o.get('xs', 4)}
              s_add_u32 {s(T[1])}, {s(T[1])}, {WS_XCCF}
              s_cmp_eq_u32 {s(sW)}, 2
              s_cselect_b32 {s(T[1])}, {s(T[1])}, 0x40000000
              v_cndmask_b32 {v(vL0)}, v5, 0, vcc""")
        k.wait_lg0()
        k(f"""s_mul_i32 {s(sN)}, {s(sN)}, 1664525
              s_add_u32 {s(sN)}, {s(sN)}, 1013904223
              s_xor_b32 {s(T[0])}, {s(sN)}, {s(sXCC)}
              v_mov_b32 v5, {s(T[0])}
              v_mov_b32 {v(vNON)}, {s(sN)}""")
        k(f"buffer_store_dword v5, {v(vL0)}, {s(RW,4)}, {s(T[1])} offen sc1")
        for r, size in ((RQ, 2097152), (RG, 1835008), (RU, 1835008), (RD, 1835008), (RO, 2097152)): self.srd(r, size)
        k(f"""s_lshr_b32 {s(sD+2)}, {s(sD)}, 16
              s_and_b32 {s(sD+3)}, {s(sD)}, 0xffff0000
              s_lshl_b32 {s(sD+1)}, {s(sD)}, 16
              s_and_b32 {s(sD)}, {s(sD)}, 0xffff
              s_mov_b32 {s(sC2)}, {f32(LOG2E*LOG2E)}
              s_mov_b32 {s(sC2+1)}, {f32(LOG2E*LOG2E)}
              s_mov_b32 {s(sSPIN)}, {self.o.get('spin', 400000)}
              s_mov_b32 {s(sHALF)}, 0x20000
              s_mov_b32 {s(sHH)}, {H_HALF}
              v_and_b32 {v(vP31)}, 31, {v(vL)}
              v_lshlrev_b32 {v(vP31)}, 2, {v(vP31)}
              v_and_b32 {v(vP7)}, 7, {v(vL)}
              v_lshlrev_b32 {v(vP7)}, 2, {v(vP7)}""")
        for i in range(1, 8): k(f"s_movk_i32 {s(sK4+i)}, {4096*i}")

    def code_prefetch(self):
        if not self.o.get('cpf', 1): return
        k = self.k
        k(f"s_getpc_b64 {s(T[2],2)}")
        k.place("L_PC")
        k(f"""s_mul_i32 {s(T[4])}, {s(sJ)}, ((L_LAST-L_PC+4095)/4096)*128
              v_min_u32 v5, (L_LAST-L_PC+4095)/4096-1, v0
              v_lshl_add_u32 v5, v5, 7, {s(T[4])}
              v_min_u32 v5, L_LAST-L_PC-4, v5
              global_load_dword v219, v5, {s(T[2],2)}""")

    def tlb_touch(self):
        if not self.o.get('tlb', 0): return
        k = self.k
        k(f"v_and_b32 v5, 15, {v(vL)}\nv_lshlrev_b32 v5, 20, v5")
        k(f"buffer_load_dword v200, v5, {s(RW,4)}, 0 offen offset:512")
        k(f"buffer_load_dword v201, v5, {s(RO,4)}, 0 offen")
        k(f"buffer_load_dword v196, v5, {s(RG,4)}, 0 offen")
        k(f"buffer_load_dword v197, v5, {s(RU,4)}, 0 offen")
        k(f"buffer_load_dword v198, v5, {s(RQ,4)}, 0 offen")

    def touch_first(self):
        k = self.k
        if self.o.get('tch_kv', 1):
            k(f"v_and_b32 v5, 15, {v(vL)}\nv_lshlrev_b32 v5, 7, v5")
            k(f"buffer_load_dword v220, v5, {s(RW,4)}, {s(sKVs)} offen sc1")
        if self.o.get('tch_fl', 1):
            k(f"""s_lshl_b32 {s(T[0])}, {s(sX)}, 12
                  s_add_u32 {s(T[0])}, {s(T[0])}, {WS_AF}
                  v_lshl_add_u32 v22, {v(vL)}, 7, {s(T[0])}
                  v_cmp_lt_u32 vcc, 15, {v(vL)}
                  v_add_u32 v5, {0x8000 - 16*128}, v22
                  s_lshl_b32 {s(T[0])}, {s(sX)}, 9
                  v_cndmask_b32 v22, v22, v5, vcc
                  v_cmp_lt_u32 vcc, 47, {v(vL)}
                  v_add_u32 v5, {0x8000 - 32*128}, v22
                  s_add_u32 {s(T[0])}, {s(T[0])}, {WS_KVF}
                  v_cndmask_b32 v22, v22, v5, vcc
                  v_cmp_lt_u32 vcc, 55, {v(vL)}
                  v_and_b32 v5, 3, {v(vL)}
                  v_lshl_add_u32 v5, v5, 7, {s(T[0])}
                  s_cmp_eq_u32 {s(sW)}, 3
                  s_cselect_b32 {s(T[0])}, 0, 0x40000000
                  v_cndmask_b32 v5, v22, v5, vcc
                  buffer_load_dword v221, v5, {s(RW,4)}, {s(T[0])} offen sc1""")
    def touch_global_flags(self):
        if not self.o.get('tch_g', 1): return
        k = self.k
        k(f"""v_lshlrev_b32 v5, 7, {v(vL)}
              s_cmp_eq_u32 {s(sW)}, 1
              s_cselect_b32 {s(T[0])}, {s(sJ)}, 31
              s_lshl_b32 {s(T[1])}, {s(T[0])}, 13
              s_cmp_lt_u32 {s(T[0])}, {1 + self.o.get('yfs', 4)//4}
              s_cselect_b32 {s(T[0])}, {s(T[1])}, 0x40000000
              s_add_u32 {s(T[0])}, {s(T[0])}, {WS_JF}
              buffer_load_dword v202, v5, {s(RW,4)}, {s(T[0])} offen sc1""")
    def touch_h_addr(self):
        self.k(f"""s_lshl_b32 {s(T[0])}, {s(sJ)}, 2
                  s_add_u32 {s(T[0])}, {s(T[0])}, {s(sW)}
                  s_mul_i32 {s(T[0])}, {s(T[0])}, 7168
                  s_mul_i32 {s(T[1])}, {s(sX)}, {H_X}
                  s_add_u32 {s(T[0])}, {s(T[0])}, {s(T[1])}
                  s_add_u32 {s(T[0])}, {s(T[0])}, {WS_H}
                  v_min_u32 v227, 55, {v(vL)}
                  v_lshl_add_u32 v227, v227, 7, {s(T[0])}""")
    def touch_h_text(self): return f"buffer_load_dword v228, v227, {s(RW,4)}, 0 offen sc1"
    def touch_f(self):
        k = self.k
        k(f"""v_and_b32 v5, 7, {v(vL)}
              v_lshlrev_b32 v5, 7, v5
              v_bfe_u32 v22, {v(vL)}, 3, 1
              v_lshl_add_u32 v5, v22, 17, v5
              buffer_load_dword v199, v5, {s(RW,4)}, {s(sFR[0])} offen sc1""")

    def q_load(self):
        k = self.k
        k(f"""s_lshl_b32 {s(T[0])}, {s(sX)}, 7
              s_lshl_b32 {s(T[1])}, {s(sJ)}, 2
              s_add_u32 {s(T[0])}, {s(T[0])}, {s(T[1])}
              s_add_u32 {s(T[0])}, {s(T[0])}, {s(sW)}
              s_lshl_b32 {s(T[0])}, {s(T[0])}, 10
              s_add_u32 {s(T[1])}, {s(T[0])}, 0x100000""")
        k(f"buffer_load_dwordx4 v[204:207], {v(vL16)}, {s(RQ,4)}, {s(T[0])} offen")
        self.q_tok = k(f"buffer_load_dwordx4 v[208:211], {v(vL16)}, {s(RQ,4)}, {s(T[1])} offen")

    def persistent(self):
        k = self.k; AG = self.o.get('ag', 1)
        k(f"""s_lshl_b32 {s(T[0])}, {s(sJ)}, 2
              s_add_u32 {s(T[0])}, {s(T[0])}, {s(sW)}
              s_lshl_b32 {s(T[8])}, {s(sX)}, 18
              s_lshl_b32 {s(T[9])}, {s(sX)}, 12
              s_lshr_b32 {s(T[10])}, {s(sJ)}, 3
              s_and_b32 {s(T[11])}, {s(sJ)}, 7
              s_lshl_b32 {s(T[1])}, {s(T[0])}, 2
              s_add_u32 {s(T[1])}, {s(T[1])}, {s(T[9])}
              s_add_u32 {s(sAFs)}, {s(T[1])}, {WS_AF}
              s_lshl_b32 {s(T[1])}, {s(sW)}, 7
              s_add_u32 {s(T[1])}, {s(T[1])}, {s(T[9])}
              s_add_u32 {s(sAFp)}, {s(T[1])}, {WS_AF}
              s_lshl_b32 {s(T[2])}, {s(sJ)}, 2
              s_add_u32 {s(T[1])}, {s(T[1])}, {s(T[2])}
              s_add_u32 {s(sHFs)}, {s(T[1])}, {WS_HF}
              s_lshl_b32 {s(T[1])}, {s(T[10])}, 7
              s_lshl_b32 {s(T[2])}, {s(sW)}, 5
              s_add_u32 {s(T[1])}, {s(T[1])}, {s(T[2])}
              s_add_u32 {s(T[1])}, {s(T[1])}, {s(T[9])}
              s_add_u32 {s(sHFp)}, {s(T[1])}, {WS_HF}
              s_lshl_b32 {s(T[2])}, {s(T[11])}, 2
              s_add_u32 {s(T[1])}, {s(T[1])}, {s(T[2])}
              s_add_u32 {s(sFFs)}, {s(T[1])}, {WS_FF}
              s_lshr_b32 {s(T[1])}, {s(sJ)}, 1
              s_lshl_b32 {s(T[1])}, {s(T[1])}, 5
              s_add_u32 {s(T[1])}, {s(T[1])}, {s(T[9])}
              s_add_u32 {s(sFFp)}, {s(T[1])}, {WS_FF}
              s_lshr_b32 {s(T[1])}, {s(T[0])}, 5
              s_lshl_b32 {s(T[1])}, {s(T[1])}, 15
              s_bfe_u32 {s(T[2])}, {s(T[0])}, 0x10004
              s_lshl_b32 {s(T[2])}, {s(T[2])}, 10
              s_and_b32 {s(T[3])}, {s(T[0])}, {12 if AG else 15}
              s_lshl_b32 {s(T[3])}, {s(T[3])}, 4
              s_add_u32 {s(T[1])}, {s(T[1])}, {s(T[2])}
              s_add_u32 {s(T[1])}, {s(T[1])}, {s(T[3])}
              s_add_u32 {s(T[1])}, {s(T[1])}, {s(T[8])}
              s_lshl_b32 {s(T[2])}, {s(sW)}, 13
              s_add_u32 {s(T[2])}, {s(T[2])}, {WS_A}
              s_add_u32 {s(T[1])}, {s(T[1])}, {s(T[2]) if AG else WS_A}
              v_lshrrev_b32 v5, {4 if AG else 2}, {v(vL)}
              v_lshlrev_b32 v5, 11, v5
              v_bfe_u32 {v(vAst)}, {v(vL)}, {2 if AG else 0}, 2
              v_lshl_add_u32 {v(vAst)}, {v(vAst)}, 8, v5
              v_and_b32 v5, {3 if AG else 0}, {v(vL)}
              v_lshl_add_u32 {v(vAst)}, v5, 4, {v(vAst)}
              v_add_u32 {v(vAst)}, {s(T[1])}, {v(vAst)}
              s_lshl_b32 {s(T[1])}, {s(sW)}, 15
              s_add_u32 {s(T[1])}, {s(T[1])}, {s(T[8])}
              s_add_u32 {s(T[1])}, {s(T[1])}, {WS_A}
              v_add_u32 {v(vAld[0])}, {s(T[1])}, {v(vL16)}
              v_add_u32 {v(vAld[1])}, 0x20000, {v(vAld[0])}
              v_add_u32 {v(vW1)}, 57344, {v(vL16)}
              v_lshrrev_b32 v5, 4, {v(vL)}
              v_and_b32 v23, 15, {v(vL)}
              v_lshlrev_b32 v22, 9, v5
              v_lshl_add_u32 v22, v23, 4, v22
              s_mul_i32 {s(T[4])}, {s(sX)}, {H_X}
              s_add_u32 {s(T[4])}, {s(T[4])}, {WS_H}
              s_mul_i32 {s(T[1])}, {s(sW)}, {H_RB}
              s_mul_i32 {s(T[2])}, {s(sJ)}, 3584
              s_add_u32 {s(T[1])}, {s(T[1])}, {s(T[2])}
              s_add_u32 {s(T[1])}, {s(T[1])}, {s(T[4])}
              v_add_u32 {v(vHm)}, {s(T[1])}, v22
              s_mul_i32 {s(T[1])}, {s(T[10])}, {H_RB}
              s_mul_i32 {s(T[2])}, {s(sW)}, 28672
              s_add_u32 {s(T[1])}, {s(T[1])}, {s(T[2])}
              s_add_u32 {s(T[1])}, {s(T[1])}, {s(T[4])}
              v_add_u32 {v(vHld[0])}, {s(T[1])}, v22
              v_add_u32 {v(vHld[1])}, {H_HALF}, {v(vHld[0])}
              v_cmp_gt_u32 vcc, 48, {v(vL)}
              v_add_u32 {v(vHt)}, 2048, {v(vHm)}
              v_mov_b32 v22, 0x80000000
              v_mul_u32_u24 {v(vRw)}, 272, v23
              v_cndmask_b32 {v(vHt)}, v22, {v(vHt)}, vcc
              v_lshl_add_u32 {v(vRw)}, v5, 4, {v(vRw)}
              s_mul_i32 {s(T[1])}, {s(sW)}, 8704
              s_add_u32 {s(T[1])}, {s(T[1])}, {L_RED}
              v_add_u32 {v(vRw)}, {s(T[1])}, {v(vRw)}
              v_lshrrev_b32 v5, 3, {v(vL)}
              v_mul_u32_u24 {v(vRr)}, 272, v5
              v_lshl_add_u32 {v(vRr)}, {v(vP7)}, 3, {v(vRr)}
              s_mul_i32 {s(T[1])}, {s(sW)}, {8*272}
              s_add_u32 {s(T[1])}, {s(T[1])}, {L_RED}
              v_add_u32 {v(vRr)}, {s(T[1])}, {v(vRr)}
              s_lshl_b32 {s(T[1])}, {s(T[10])}, 5
              s_lshl_b32 {s(T[2])}, {s(sW)}, 3
              s_add_u32 {s(T[1])}, {s(T[1])}, {s(T[2])}
              v_add_u32 v5, {s(T[1])}, v5
              s_lshl_b32 {s(T[2])}, {s(T[11])}, 7
              s_lshl_b32 {s(T[1])}, {s(sX)}, 17
              s_add_u32 {s(T[2])}, {s(T[2])}, {s(T[1])}
              v_lshl_add_u32 v22, {v(vP7)}, 2, {s(T[2])}
              v_lshl_add_u32 {v(vO)}, v5, 10, v22
              s_lshr_b32 {s(T[1])}, {s(T[11])}, 2
              s_lshl_b32 {s(T[1])}, {s(T[1])}, 13
              s_and_b32 {s(T[2])}, {s(T[11])}, 3
              s_lshl_b32 {s(T[2])}, {s(T[2])}, 7
              s_add_u32 {s(T[1])}, {s(T[1])}, {s(T[2])}
              s_lshl_b32 {s(T[2])}, {s(sX)}, 9
              s_add_u32 {s(T[1])}, {s(T[1])}, {s(T[2])}
              s_add_u32 {s(T[1])}, {s(T[1])}, {WS_YP}
              v_lshl_add_u32 {v(vF2)}, {v(vP7)}, 2, {s(T[1])}
              v_lshl_add_u32 {v(vF2)}, v5, 14, {v(vF2)}
              s_mov_b32 {s(sFH)}, 0x100000
              s_lshl_b32 {s(T[1])}, {s(T[0])}, 14
              s_add_u32 {s(T[1])}, {s(T[1])}, {s(T[2])}
              s_add_u32 {s(sFR[0])}, {s(T[1])}, {WS_YP}
              s_add_u32 {s(sFR[1])}, {s(T[1])}, {WS_YP + 4096}
              v_lshrrev_b32 v5, 5, {v(vL)}
              v_lshlrev_b32 v5, 13, v5
              v_lshl_add_u32 {v(vFr)}, {v(vP31)}, 2, v5""")

    W1V = 212
    def w1_addr(self):
        k = self.k; vb = self.W1V; rot = self.o.get('rot', 1)
        k(f"""s_mul_i32 {s(T[0])}, {s(sJ)}, 112
              s_movk_i32 {s(T[1])}, 9363
              s_movk_i32 {s(T[2])}, {3584 - 7*16}
              s_mul_i32 {s(sW1S)}, {s(sW)}, 229376
              s_mul_i32 {s(sW1L)}, {s(sW)}, 14336
              s_and_b32 {s(T[3])}, {s(sX)}, {6 if rot else 0}
              s_and_b32 {s(T[4])}, {s(sX)}, {1 if rot else 0}
              s_cselect_b32 {s(T[5])}, {s(RU)}, {s(RG)}
              s_cselect_b32 {s(T[6])}, {s(RU+1)}, {s(RG+1)}
              s_cselect_b32 {s(RU)}, {s(RG)}, {s(RU)}
              s_cselect_b32 {s(RU+1)}, {s(RG+1)}, {s(RU+1)}
              s_cselect_b32 {s(T[4])}, 7168, 0
              s_lshl_b32 {s(sDEL[0])}, {s(T[4])}, 1
              s_sub_u32 {s(sDEL[0])}, 7168, {s(sDEL[0])}
              s_mov_b32 {s(RG)}, {s(T[5])}
              s_mov_b32 {s(RG+1)}, {s(T[6])}
              s_add_u32 {s(sDEL[1])}, {s(sDEL[0])}, 57344
              s_add_u32 {s(T[4])}, {s(T[4])}, {s(sW1L)}""")
        for i in range(7):
            k(f"""s_add_u32 {s(T[5])}, {s(T[3])}, {i}
                  s_sub_u32 {s(T[6])}, {s(T[5])}, 7
                  s_cselect_b32 {s(T[5])}, {s(T[5])}, {s(T[6])}
                  s_lshl_b32 {s(T[6])}, {s(T[5])}, 10
                  s_add_u32 {s(sROT[i])}, {s(T[6])}, {s(T[4])}
                  v_lshl_add_u32 v5, {s(T[5])}, 6, {v(vL)}
                  v_mul_u32_u24 {v(vb+i)}, {s(T[1])}, v5
                  v_lshrrev_b32 {v(vb+i)}, 16, {v(vb+i)}
                  v_mul_u32_u24 {v(vb+i)}, {s(T[2])}, {v(vb+i)}
                  v_lshl_add_u32 {v(vb+i)}, v5, 4, {v(vb+i)}
                  v_add_u32 {v(vb+i)}, {s(T[0])}, {v(vb+i)}""")

    def w1_dma_text(self, n):
        ck, mat, i = n // 14, (n % 14) // 7, n % 7
        L = []
        if n == 14: L.append(f"s_add_u32 {s(sW1S)}, {s(sW1S)}, {4*229376}")
        L.append(f"s_add_u32 m0, {s(sROT[i])}, {s(sDEL[ck]) if mat else ck*57344}")
        L.append(f"buffer_load_dwordx4 {v(self.W1V+i)}, {s(RU if mat else RG,4)}, {s(sW1S)} offen lds")
        return L
    def w1_dma(self, cnt):
        for _ in range(cnt):
            if self.w1_next >= 28: return
            n = self.w1_next; self.w1_next += 1
            for x in self.w1_dma_text(n): self.w1_tok[n] = self.k(x)

    RL = 222
    def w1_relayout_addr(self):
        k = self.k; r = self.RL
        k(f"""v_lshrrev_b32 v5, 4, {v(vL)}
              v_bfe_u32 {v(r)}, {v(vL)}, 2, 2
              v_lshl_add_u32 {v(r)}, v5, 3, {v(r)}
              v_mul_u32_u24 {v(r)}, 112, {v(r)}
              v_add_u32 {v(r)}, {s(sW1L)}, {v(r)}
              v_and_b32 {v(r+2)}, 3, {v(vL)}
              v_bfe_u32 {v(r+3)}, {v(vL)}, 1, 1
              v_mul_u32_u24 {v(r+3)}, 7168, {v(r+3)}
              v_and_b32 v22, 1, {v(vL)}
              v_lshl_add_u32 {v(r+3)}, v22, 3, {v(r+3)}
              v_add_u32 {v(r+1)}, {v(r)}, {v(r+3)}
              v_lshl_add_u32 {v(r)}, {v(r+2)}, 3, {v(r)}
              v_add_u32 {v(r+2)}, {s(sW1L)}, {v(vL16)}
              v_bfe_u32 {v(r+3)}, {v(vL)}, 1, 2
              v_lshlrev_b32 {v(r+3)}, 2, {v(r+3)}
              v_bfe_u32 v23, {v(vL)}, 3, 1
              v_lshl_add_u32 {v(r+3)}, v23, 1, {v(r+3)}
              v_add_u32 {v(r+3)}, {v(r+3)}, v22
              v_lshl_add_u32 {v(r+3)}, v5, 4, {v(r+3)}
              v_lshlrev_b32 {v(r+3)}, 4, {v(r+3)}
              v_add_u32 {v(r+3)}, {s(sW1L)}, {v(r+3)}""")
    def w1_relayout_items(self, ck, vtemp=False):
        k = self.k; r = self.RL
        R, a = (ACC[1], v) if vtemp else (128, globals()['a'])
        L = [Item(fn=lambda: k.wait(self.w1_tok[14*ck + 13]))]
        if ck == 1: L += [Item(f"v_add_u32 {v(r+i)}, 57344, {v(r+i)}") for i in range(4)]
        for sl in range(2):
            for Tt in range(7):
                for hf in range(2):
                    d = R + (sl*7 + Tt)*4 + 2*hf
                    o = (32*sl + 4*hf)*112
                    if Tt < 6: L.append(Item(f"ds_read_b64_tr_b16 {a(d,2)}, {v(r)} offset:{o + (Tt&1)*7168 + 32*(Tt>>1)}"))
                    else: L.append(Item(f"ds_read_b64_tr_b16 {a(d,2)}, {v(r+1)} offset:{o + 96}"))
        last = L[-1]
        L.append(Item(fn=lambda: k.wait(last.tok)))
        for n in range(14): L.append(Item(f"ds_write_b128 {v(r+3 if n % 7 == 6 else r+2)}, {a(R + n*4, 4)} offset:{n*1024}"))
        return L
    def w1_relayout(self, ck): Queue(self.k, self.w1_relayout_items(ck)).drain()

    JV = 190
    def wd_job_addr(self):
        k = self.k; r = self.JV
        k(f"""s_lshl_b32 {s(T[0])}, s2, 1
              s_lshr_b32 {s(T[1])}, {s(sW)}, 1
              s_add_u32 {s(T[0])}, {s(T[0])}, {s(T[1])}
              s_mul_i32 {s(T[1])}, {s(T[0])}, 4682
              s_lshr_b32 {s(T[1])}, {s(T[1])}, 16
              s_mul_i32 {s(T[2])}, {s(T[1])}, 14
              s_sub_u32 {s(T[2])}, {s(T[0])}, {s(T[2])}
              s_and_b32 {s(T[3])}, {s(T[1])}, 3
              s_lshr_b32 {s(T[1])}, {s(T[1])}, 2
              s_lshl_b32 {s(T[1])}, {s(T[1])}, 7
              s_mul_i32 {s(T[3])}, {s(T[3])}, {8*57344}
              s_add_u32 {s(T[1])}, {s(T[1])}, {s(T[3])}
              s_cmp_lt_u32 s2, 224
              s_cselect_b32 {s(T[3])}, {s(sW)}, 0
              s_bitcmp1_b32 {s(T[3])}, 0
              s_cselect_b32 {s(T[3])}, 0, 0x80000000
              s_lshl_b32 {s(T[4])}, {s(T[0])}, 2
              s_add_u32 {s(T[4])}, {s(T[4])}, {WS_JF}
              s_lshr_b32 {s(sJF)}, {s(T[3])}, 1
              s_or_b32 {s(sJF)}, {s(sJF)}, {s(T[4])}
              s_lshl_b32 {s(T[0])}, {s(T[0])}, 12
              s_add_u32 {s(T[0])}, {s(T[0])}, {WS_WDT}
              s_or_b32 {s(T[0])}, {s(T[0])}, {s(T[3])}
              s_or_b32 {s(T[1])}, {s(T[1])}, {s(T[3])}
              v_add_u32 {v(r+5)}, {s(T[0])}, {v(vL16)}
              v_lshrrev_b32 v5, 3, {v(vL)}
              v_and_b32 v22, 3, v5
              v_lshlrev_b32 v22, 3, v22
              v_cmp_gt_u32 vcc, 4, v5
              v_lshl_add_u32 v23, {v(vP7)}, 2, {s(T[1])}
              s_lshl_b32 {s(T[2])}, {s(T[2])}, 2""")
        for g in range(4):
            k(f"""s_add_u32 {s(T[0])}, {s(T[2])}, {g}
                  s_mul_i32 {s(T[1])}, {s(T[0])}, 9363
                  s_lshr_b32 {s(T[1])}, {s(T[1])}, 16
                  s_mul_i32 {s(T[3])}, {s(T[1])}, 7
                  s_sub_u32 {s(T[0])}, {s(T[0])}, {s(T[3])}
                  s_mul_i32 {s(T[1])}, {s(T[1])}, 56
                  s_mul_i32 {s(T[3])}, {s(T[0])}, 0x04040404
                  s_add_u32 {s(T[4])}, {s(T[3])}, 0x13121110
                  s_add_u32 {s(T[3])}, {s(T[3])}, 0x03020100
                  s_cmp_ge_u32 {s(T[0])}, 4
                  s_cselect_b32 {s(T[3])}, {s(T[4])}, {s(T[3])}
                  s_cselect_b32 {s(T[4])}, {sum(x << (8*e) for e, x in enumerate(flist(4)[4:]))}, {s(T[4])}
                  s_cmp_eq_u32 {s(T[0])}, 5
                  s_cselect_b32 {s(T[4])}, {sum(x << (8*e) for e, x in enumerate(flist(5)[4:]))}, {s(T[4])}
                  s_cmp_eq_u32 {s(T[0])}, 6
                  s_cselect_b32 {s(T[4])}, {sum(x << (8*e) for e, x in enumerate(flist(6)[4:]))}, {s(T[4])}
                  v_mov_b32 v5, {s(T[3])}
                  v_mov_b32 {v(r+g)}, {s(T[4])}
                  v_cndmask_b32 v5, {v(r+g)}, v5, vcc
                  v_bfe_u32 v5, v5, v22, 8
                  v_add_u32 v5, {s(T[1])}, v5
                  v_lshl_add_u32 {v(r+g)}, v5, 10, v23""")
        k(f"""s_lshl_b32 {s(sJL)}, {s(sW)}, 12
              s_add_u32 {s(sJL)}, {s(sJL)}, {L_JOB}
              v_lshrrev_b32 v5, 4, {v(vL)}
              v_lshlrev_b32 {v(r+4)}, 10, v5
              v_bfe_u32 v5, {v(vL)}, 2, 2
              v_lshl_add_u32 {v(r+4)}, v5, 7, {v(r+4)}
              v_and_b32 v5, 3, {v(vL)}
              v_lshl_add_u32 {v(r+4)}, v5, 3, {v(r+4)}
              v_add_u32 {v(r+4)}, {s(sJL)}, {v(r+4)}""")
    def wd_job_issue(self):
        for g in range(4): self.job_tok = self.dma(self.JV+g, RD, '0', f"s_add_u32 m0, {s(sJL)}, {1024*g}")
    def wd_job_finish(self):
        k = self.k; r = self.JV
        k.wait(self.job_tok)
        t = {}
        for nt in range(4):
            for hf in range(2): t[nt] = k(f"ds_read_b64_tr_b16 {a(128 + 4*nt + 2*hf, 2)}, {v(r+4)} offset:{hf*512 + nt*32}")
        for nt in range(4):
            k.wait(t[nt])
            self.job_st = k(f"buffer_store_dwordx4 {a(128 + 4*nt, 4)}, {v(r+5)}, {s(RW,4)}, 0 offen offset:{1024*nt} sc1")
    WDV = 226
    def wd_addr(self):
        self.k(f"""s_and_b32 {s(T[0])}, {s(sJ)}, 7
                   s_lshl_b32 {s(T[0])}, {s(T[0])}, 2
                   s_add_u32 {s(T[0])}, {s(T[0])}, {s(sW)}
                   s_mul_i32 {s(sJFp)}, {s(T[0])}, {14*4}
                   s_add_u32 {s(sJFp)}, {s(sJFp)}, {WS_JF}
                   s_mul_i32 {s(T[0])}, {s(T[0])}, {14*4096}
                   s_add_u32 {s(T[0])}, {s(T[0])}, {WS_WDT}
                   v_add_u32 {v(vWd[0])}, {s(T[0])}, {v(vL16)}
                   v_add_u32 {v(vWd[1])}, 32768, {v(vWd[0])}
                   v_min_u32 v226, 13, {v(vL)}
                   v_lshlrev_b32 v226, 2, v226""")
    def wd_touch_text(self, i):
        return f"buffer_load_dword {v(228+i)}, v227, {s(RW,4)}, {k4(i)} offen offset:{3072*i} sc1"
    def wd_text(self, n):
        U, nt = divmod(n, 4)
        return f"buffer_load_dwordx4 {a(4*n, 4)}, {v(vWd[U >> 3])}, {s(RW,4)}, {k4(U & 7)} offen offset:{1024*nt}{self.o.get('wdm', ' sc1')}"

    def phase0(self):
        k = self.k
        k(f"""v_lshrrev_b32 v5, 4, {v(vL)}
              v_bfe_u32 v48, {v(vL)}, 2, 2
              v_lshl_add_u32 v49, v5, 4, v48
              v_lshlrev_b32 v49, 7, v49
              v_bfe_u32 v50, {v(vL)}, 1, 1
              s_lshl_b32 {s(T[0])}, {s(sW)}, 1
              v_add_u32 v50, {s(T[0])}, v50
              v_and_b32 v48, 2, v48
              v_xor_b32 v50, v50, v48
              v_and_b32 v48, 1, v5
              v_lshlrev_b32 v48, 2, v48
              v_xor_b32 v50, v50, v48
              v_lshl_add_u32 v49, v50, 4, v49
              v_and_b32 v48, 1, {v(vL)}
              v_lshl_add_u32 v49, v48, 3, v49
              v_add_u32 v49, {L_K}, v49
              v_xor_b32 v50, 64, v49
              v_lshlrev_b32 v51, 12, v27
              v_lshl_add_u32 v51, v5, 5, v51
              s_lshl_b32 {s(T[6])}, {s(sJ)}, 7
              s_add_u32 {s(T[6])}, {s(T[6])}, {WS_KVT}
              v_mul_u32_u24 v52, {self.o.get('xs', 4)//4}, {v(vP31)}
              s_mul_i32 {s(T[7])}, {s(sX)}, {32*self.o.get('xs', 4)}
              s_add_u32 {s(T[7])}, {s(T[7])}, {WS_XCCF}
              s_lshl_b32 {s(T[0])}, {s(sX)}, 9
              s_lshl_b32 {s(T[1])}, {s(sW)}, 7
              s_lshl_b32 {s(T[2])}, {s(sJ)}, 2
              s_add_u32 {s(T[1])}, {s(T[1])}, {s(T[2])}
              s_add_u32 {s(T[0])}, {s(T[0])}, {WS_KVF}
              s_add_u32 {s(T[5])}, {s(T[1])}, {s(T[0])}
              s_xor_b32 {s(T[0])}, {s(sN)}, {s(sXCC)}
              s_mov_b32 {s(sMODE)}, 0
              s_mov_b32 {s(sEXP)}, {s(sN)}""")
        k.wait(self.sh_tok)
        k("s_barrier")
        self.stamp('kv_in')
        xh = k(f"buffer_load_dword v53, v52, {s(RW,4)}, {s(T[7])} offen sc1")
        KR, VR, KS, O, VU, P = 56, 68, 78, 88, 104, 120
        k(f"ds_read_b64_tr_b16 {v(KR,2)}, v50 offset:512")
        for i in range(4): k(f"ds_read_b64_tr_b16 {v(KR+2+2*i,2)}, v49 offset:{1024 + 512*i}")
        for i in range(4): lastv = k(f"ds_read_b64_tr_b16 {v(VR+2*i,2)}, v49 offset:{L_V - L_K + 512*i}")
        k("v_alignbit_b32 v54, v30, v30, 16\nv_alignbit_b32 v55, v31, v31, 16")
        k.wait(('lg', lastv[1] - 4))
        for aa in range(-1, 8): k(f"v_alignbit_b32 {v(KS+1+aa)}, {v(KR+2+aa)}, {v(KR+1+aa)}, 16")
        for aa in range(8):
            k(f"v_dot2_f32_bf16 {v(O+2*aa)}, {v(KS+aa)}, v55, 0")
            k(f"v_dot2_f32_bf16 {v(O+2*aa+1)}, {v(KR+1+aa)}, v55, 0")
        for aa in range(8):
            k(f"v_dot2_f32_bf16 {v(O+2*aa)}, {v(KS+1+aa)}, v54, {v(O+2*aa)}")
            k(f"v_dot2_f32_bf16 {v(O+2*aa+1)}, {v(KR+2+aa)}, v54, {v(O+2*aa+1)}")
        k.wait(lastv)
        for g in range(2):
            for aa in range(4*g, 4*g+4):
                k(f"v_lshlrev_b32 {v(VU+2*aa)}, 16, {v(VR+aa)}")
                k(f"v_and_b32 {v(VU+2*aa+1)}, 0xffff0000, {v(VR+aa)}")
            for aa in range(4*g, 4*g+4): k(f"v_pk_mul_f32 {v(O+2*aa,2)}, {v(O+2*aa,2)}, {v(VU+2*aa,2)}")
            for e in range(4): k(f"v_cvt_pk_bf16_f32 {v(P+4*g+e)}, {v(O+8*g+7-2*e)}, {v(O+8*g+6-2*e)}")
            st = k(f"buffer_store_dwordx4 {v(P+4*g,4)}, v51, {s(RW,4)}, {s(T[6])} offen offset:{16*g}")
        self.stamp('kv_st')
        self.toeplitz_write()
        slow, back, done = k.label(), k.label(), k.label()
        k.wait(xh)
        k(f"v_cmp_ne_u32 vcc, {s(T[0])}, v53\ns_cbranch_vccnz {slow}")
        k.place(back)
        self.tail.append([f"{slow}:",
            f"buffer_load_dword v53, v52, {s(RW,4)}, {s(T[7])} offen sc1", "s_waitcnt vmcnt(0)",
            f"v_xor_b32 v54, {s(sN)}, v53", "v_cmp_lt_u32 vcc, 15, v54", f"s_cbranch_vccz {done}",
            f"s_sub_u32 {s(sSPIN)}, {s(sSPIN)}, 1", f"s_cbranch_scc0 {slow}", "s_branch L_END",
            f"{done}:", f"v_cmp_ne_u32 vcc, {s(T[0])}, v53", f"s_cbranch_vccz {back}",
            f"s_mov_b32 {s(sMODE)}, 1", f"s_not_b32 {s(sEXP)}, {s(sN)}", f"s_branch {back}"])
        self.publish(st, s(T[5]))
        self.stamp('kv_pub')

    def toeplitz_write(self):
        k = self.k
        k.wait(self.h_tok)
        k(f"v_add_u32 v48, {SCR}, v29")
        for ch in range(2):
            k(f"ds_write_b128 v48, {v(32+8*ch,4)} offset:{H_E(ch) - SCR}")
            k(f"ds_write_b128 v48, {v(36+8*ch,4)} offset:{H_O(ch) - SCR}")
        skip = k.label()
        k(f"s_cmp_lg_u32 {s(sW)}, 0\ns_cbranch_scc1 {skip}")
        k(f"""v_readfirstlane_b32 {s(T[1])}, v32
              v_readfirstlane_b32 {s(T[2])}, v40
              v_cmp_eq_u32 vcc, 28, {v(vP7)}
              v_add_u32 v49, {SCR}, {v(vP7)}
              s_lshl_b32 {s(T[1])}, {s(T[1])}, 16
              s_lshl_b32 {s(T[2])}, {s(T[2])}, 16
              v_mov_b32 v50, 0
              v_mov_b32 v51, 0
              v_mov_b32 v54, {s(T[1])}
              v_mov_b32 v55, {s(T[2])}
              v_cndmask_b32 v54, v50, v54, vcc
              v_cndmask_b32 v55, v50, v55, vcc
              ds_write_b32 v49, v50 offset:{H_E(0) - 32 - SCR}
              ds_write_b32 v49, v50 offset:{H_E(1) - 32 - SCR}
              ds_write_b32 v49, v54 offset:{H_O(0) - 32 - SCR}
              ds_write_b32 v49, v55 offset:{H_O(1) - 32 - SCR}
              v_lshlrev_b32 v49, 3, {v(vL)}
              v_add_u32 v49, {L_U}, v49
              ds_write_b64 v49, v[50:51]
              ds_write_b64 v49, v[50:51] offset:{U_S}""")
        k.place(skip)

    YA = 146
    def front_addr(self):
        k = self.k; o = self.o; Y = self.YA; yfs = o.get('yfs', 4)
        k(f"""v_and_b32 v24, 15, {v(vL)}
              v_lshrrev_b32 v25, 4, {v(vL)}
              v_lshlrev_b32 v5, 3, v25
              v_sub_u32 v26, v24, v5
              v_add_u32 v26, 9, v26
              v_and_b32 v5, 1, v26
              v_sub_u32 v26, v26, v5
              v_lshlrev_b32 v26, 1, v26
              v_mul_u32_u24 v5, {H_O(0) - H_E(0)}, v5
              v_add_u32 v26, v26, v5
              s_lshr_b32 {s(T[0])}, {s(sW)}, 1
              s_mul_i32 {s(T[2])}, {s(T[0])}, {H_E(1) - H_E(0)}
              s_and_b32 {s(T[1])}, {s(sW)}, 1
              s_lshl_b32 {s(T[3])}, {s(T[1])}, 8
              s_add_u32 {s(T[2])}, {s(T[2])}, {s(T[3])}
              s_add_u32 {s(T[2])}, {s(T[2])}, {H_E(0)}
              v_add_u32 v152, {s(T[2])}, v26
              s_mul_i32 {s(T[4])}, {s(T[0])}, {U_S}
              s_add_u32 {s(T[4])}, {s(T[4])}, {L_U + 512}
              s_lshl_b32 {s(T[2])}, {s(T[1])}, 11
              s_add_u32 {s(sUm0)}, {s(T[4])}, {s(T[2])}
              s_sub_u32 {s(T[4])}, {s(T[4])}, {s(T[3])}
              s_sub_u32 {s(T[4])}, {s(T[4])}, 224
              v_lshlrev_b32 v140, 5, v24
              v_lshl_add_u32 v140, v25, 4, v140
              v_add_u32 v140, {s(T[4])}, v140
              s_lshl_b32 {s(T[0])}, {s(sX)}, 9
              s_lshr_b32 {s(T[1])}, {s(sJ)}, 3
              s_lshl_b32 {s(T[1])}, {s(T[1])}, 7
              s_add_u32 {s(T[1])}, {s(T[0])}, {s(T[1])}
              s_add_u32 {s(sKVFp)}, {s(T[1])}, {WS_KVF}
              s_lshl_b32 {s(T[1])}, {s(sJ)}, 4
              s_add_u32 {s(T[0])}, {s(T[0])}, {s(T[1])}
              s_add_u32 {s(sYld)}, {s(T[0])}, {WS_YP}
              s_lshl_b32 {s(T[0])}, {s(sX)}, 18
              s_lshl_b32 {s(T[1])}, {s(sJ)}, 13
              s_add_u32 {s(T[0])}, {s(T[0])}, {s(T[1])}
              s_lshl_b32 {s(T[2])}, {s(sW)}, 11
              s_add_u32 {s(T[1])}, {s(T[0])}, {s(T[2])}
              s_add_u32 {s(sKVs)}, {s(T[1])}, {WS_KVT}
              s_lshl_b32 {s(T[2])}, {s(sW)}, 10
              s_add_u32 {s(T[1])}, {s(T[0])}, {s(T[2])}
              s_add_u32 {s(sYst)}, {s(T[1])}, {WS_YP}
              v_lshlrev_b32 v141, 5, v24
              v_lshrrev_b32 v5, 1, v25
              v_lshl_add_u32 v141, v5, 4, v141
              v_and_b32 v5, 1, v25
              v_xor_b32 v5, 1, v5
              v_lshl_add_u32 v141, v5, 3, v141
              s_lshl_b32 {s(T[0])}, {s(sW)}, 9
              s_add_u32 {s(T[1])}, {s(T[0])}, {L_U + 512}
              v_add_u32 v141, {s(T[1])}, v141
              s_add_u32 {s(T[1])}, {s(T[2])}, {L_YT}
              v_add_u32 {v(Y+3)}, {s(T[1])}, {v(vL16)}
              s_lshl_b32 {s(T[0])}, {s(sW)}, 12
              s_add_u32 {s(T[0])}, {s(T[0])}, {L_CRED}
              v_add_u32 v142, {s(T[0])}, {v(vL16)}
              s_add_u32 {s(T[0])}, {s(T[2])}, {L_CRED}
              v_add_u32 v143, {s(T[0])}, {v(vL16)}
              v_lshlrev_b32 v144, 6, v24
              v_lshl_add_u32 v144, v25, 4, v144
              v_add_u32 v145, 4096, v144
              s_lshl_b32 {s(T[0])}, {s(sX)}, 5
              s_add_u32 {s(T[0])}, {s(T[0])}, {s(sJ)}
              s_lshl_b32 {s(T[0])}, {s(T[0])}, 2
              s_add_u32 {s(T[0])}, {s(T[0])}, {s(T[2])}
              s_mul_i32 {s(T[0])}, {s(T[0])}, {yfs//4}
              s_add_u32 {s(sYFs)}, {s(T[0])}, {WS_YF}
              v_lshlrev_b32 {v(Y+2)}, 2, v0
              v_mul_u32_u24 {v(Y)}, {yfs}, v0
              s_lshr_b32 {s(T[0])}, {s(sX)}, 1
              s_mul_i32 {s(T[0])}, {s(T[0])}, {256*yfs}
              s_add_u32 {s(sYFp)}, {s(T[0])}, {WS_YF}
              v_lshlrev_b32 {v(Y+1)}, 13, v0
              v_add_u32 {v(Y+2)}, {L_YT}, {v(Y+2)}""")
        for p in range(1, 8): k(f"v_add_u32 {v(152+p)}, {512*p}, v152")

    def conv_finish(self, h, C, pk):
        KV, P = 32, 160 + 16*h
        W = [f"ds_write_b128 v142, {v(C + 16*h + 4*c, 4)} offset:{16384*h + 1024*c}" for c in range(4)]
        R = [f"ds_read_b64 {v(KV + 4*h + 2*ch, 2)}, v141 offset:{2048*h + ch*U_S}" for ch in range(2)]
        R2 = [f"ds_read_b128 {v(P + 4*w, 4)}, v143 offset:{16384*h + 4096*w}" for w in range(4)]
        L = []
        for ch in range(2):
            if pk: L += [f"v_pk_add_f32 {v(P+8*ch+e,2)}, {v(P+8*ch+e,2)}, {v(P+8*ch+4+e,2)}" for e in (0, 2)]
            else: L += [f"v_add_f32 {v(P+8*ch+e)}, {v(P+8*ch+e)}, {v(P+8*ch+4+e)}" for e in range(4)]
        D = [f"v_dot2_f32_bf16 {v(P+8*ch+e)}, {v(KV+4*h+2*ch+(1-(e>>1)))}, {s(sD+2*ch+(1-(e&1)))}, {v(P+8*ch+e)}" for e in range(4) for ch in range(2)]
        E = [f"v_cvt_pk_bf16_f32 {v(P+4+e)}, {v(P+e)}, {v(P+8+e)}" for e in range(4)]
        E.append(f"buffer_store_dwordx4 {v(P+4,4)}, {v(144+h)}, {s(RW,4)}, {s(sYst)} offen sc1")
        return W, R, R2, L, D, E

    def conv(self):
        k = self.k; o = self.o; Y = self.YA
        def tz(rr, p):
            d = (rr*8 + p)*4
            return [f"ds_read2_b32 {a(d,2)}, {v(152+p)} offset0:{16*rr} offset1:{16*rr+1}",
                    f"ds_read2_b32 {a(d+2,2)}, {v(152+p)} offset0:{16*rr+2} offset1:{16*rr+3}"]
        first = [x for rr in range(4) for p in range(4) for x in tz(rr, p)]
        second = [x for rr in range(4) for p in range(4, 8) for x in tz(rr, p)]
        k.wait_lg0()
        k("s_barrier")
        n0 = o.get('toep0', 20)
        ph = self.poll_issue(vP31, s(sKVFp))
        for x in first[:n0]: k(x)
        self.stamp('toep')
        self.poll_check(ph)
        self.stamp('kv_seen')
        k(f"s_mov_b32 m0, {s(sUm0)}")
        k(f"buffer_load_dwordx4 {v(vL16)}, {s(RW,4)}, {s(sKVs)} offen sc1 lds")
        tok = k(f"buffer_load_dwordx4 {v(vL16)}, {s(RW,4)}, {s(sKVs)} offen offset:1024 sc1 lds")
        for x in first[n0:]: k(x)
        k.wait(tok)
        k("s_barrier")
        self.stamp('u_in')
        B, C = 64, 96
        uses = [(0, rr, q) for rr in range(4) for q in range(4)] + [(1, rr, q) for rr in range(4) for q in range(8)]
        bt = {}
        def rdB(i):
            part, rr, q = uses[i]
            bt[i] = k(f"ds_read_b128 {v(B + 4*(i % 8), 4)}, v140 offset:{512*q + 64*(3-rr)}")
        for i in range(8): rdB(i)
        pre = []
        if o.get('jpos', 0) == 0: self.wd_job_issue()
        if not o.get('joint', 1): self.q_load()
        tq = Queue(k, [Item(x) for x in second]); tits = list(tq.q)
        n2 = o.get('n2', 11); dq = []
        for i in range(n2):
            if self.w1_next >= 14: break
            n = self.w1_next; self.w1_next += 1
            for x in self.w1_dma_text(n): dq.append(Item(x, at=o.get('n2at', 2) + i*(o.get('n2span', 130) // n2), tag=n))
        dits = list(dq); dq = Queue(k, dq)
        side = Queue(k, []); ybox = []
        m = 0; started = set()
        for i, (part, rr, q) in enumerate(uses):
            need = []
            if part == 1 and q == 0:
                while any(x.tok is None for x in tits[:8*rr + 8]): tq.emit(tq.q[0])
                need = [tits[8*rr + 7].tok]
            if part == 1 and rr == 0 and q == 0:
                W, R, R2, L, D, E = self.conv_finish(0, C, False)
                its = [Item(x, cost=2, at=m + 3 + 2*n) for n, x in enumerate(W)] + [Item(x) for x in R]
                its += [Item(fn=lambda: k.wait_lg0(), at=m + 16), Item(fn=lambda: k("s_barrier"))]
                its += [Item(x) for x in R2]; lastr = its[-1]
                its += [Item(fn=lambda: k.wait(lastr.tok), at=m + 26)] + [Item(x) for x in L]
                its += [Item(fn=lambda: [k(x) for x in D], cost=2)] + [Item(x) for x in E]
                ysA = its[-1]
                if not o.get('joint', 1): its += [Item(fn=lambda: k.wait(ysA.tok), at=o.get('ya_pub', 118)), Item(fn=lambda: self.flag_store(s(sYFs), 0, False))]
                side = Queue(k, its)
            if i % 2 == 0: k.wait(bt[i + 1], *need)
            ps = range(4 - q) if part == 0 else range(max(0, 4 - q), 8 - q)
            for n, p in enumerate(ps):
                c = C + 4*(p + q)
                src = v(c, 4) if (p + q) in started else '0'
                started.add(p + q)
                k(f"v_mfma_f32_16x16x32_bf16 {v(c,4)}, {a((rr*8+p)*4,4)}, {v(B + 4*(i % 8),4)}, {src}")
                m += 1
                cap = 2
                if n == len(ps) - 1: cap -= (1 if i + 8 < len(uses) else 0) + (i % 2)
                cap = side.fill(cap, m)
                cap = dq.fill(cap, m)
                tq.fill(min(cap, 1))
            if i + 8 < len(uses): rdB(i + 8)
        print('conv left:', side.cost(), dq.cost())
        dq.drain()
        for x in dits: self.w1_tok[x.tag] = x.tok
        self.stamp('conv_mfma')
        W, R, R2, L, D, E = self.conv_finish(1, C, True)
        for x in R + W: k(x)
        side.drain()
        k.wait_lg0()
        k("s_barrier")
        for x in R2: k(x)
        if not o.get('joint', 1): pa = self.poll_issue(Y, s(sYFp))
        k.wait_lg0()
        self.ysB = self.run(L + D + E)[-1].tok
        self.stamp('y_st')
        if not o.get('joint', 1):
            self.poll_check(pa, False)
            self.stamp('y_seen')

    def y_joint(self):
        k = self.k; o = self.o; Y = self.YA
        self.wd_job_finish()
        self.persistent()
        self.publish(self.ysB, s(sYFs), local=False)
        self.stamp('y_pub')
        self.publish(self.job_st, s(sJF), local=False)
        k("s_barrier")
        done0 = self.w1_next >= 14
        self.q_load()
        self.w1_dma(o.get('n3', 4))
        self.w1_relayout_addr()
        self.wd_addr()
        k(f"s_add_u32 {s(T[8])}, {s(sYld)}, 4096")
        if done0: self.w1_relayout(0)
        self.q_stats()
        k(f"s_mul_i32 {s(sAG[0])}, {s(sW)}, 1088\ns_add_u32 {s(sAG[0])}, {s(sAG[0])}, {L_AG2}\ns_lshl_b32 {s(sAG[1])}, {s(sW)}, 8\ns_add_u32 {s(sAG[1])}, {s(sAG[1])}, {L_AG2}")
        self.run(self.ag_addr(100))
        self.stamp('rl0')
        self.poll(Y, s(sYFp), local=False)
        self.stamp('y_seen')
        t0 = k(f"buffer_load_dwordx4 v[32:35], {v(Y+1)}, {s(RW,4)}, {s(sYld)} offen sc1")
        t1 = k(f"buffer_load_dwordx4 v[36:39], {v(Y+1)}, {s(RW,4)}, {s(T[8])} offen sc1")
        pj = self.poll_issue(226, s(sJFp), 0, 229)
        self.w1_dma(o.get('n4', 6))
        if o.get('tch_h', 0) == 1: k(self.touch_h_text())
        if not done0 and self.w1_next >= 14: self.w1_relayout(0); done0 = True
        k.wait(t0)
        for e in range(4): k(f"ds_write_b32 {v(Y+2)}, {v(32+e)} offset:{1024*e}")
        k.wait(t1)
        for e in range(4): k(f"ds_write_b32 {v(Y+2)}, {v(36+e)} offset:{1024*(4+e)}")
        k.wait_lg0()
        k("s_barrier")
        for h in range(2): k(f"ds_read_b128 {v(YS[h],4)}, {v(Y+3)} offset:{4096*h}")
        k.wait_lg0()
        self.stamp('y_in')
        its = self.run(self.gate_norm([0, 1], self.N0, 0, 56))
        sts = self.a_out([0, 1], 56) if o.get('ag', 1) else [x.tok for x in its if 'store' in x.text]
        self.stamp('a_st')
        self.poll_check(pj, False)
        if done0: self.gemm1_start(0)
        self.publish(sts[0], s(sAFs), 0)
        self.publish(sts[1], s(sAFs), 512)
        k(f"s_or_b32 {s(T[0])}, s2, {s(sW)}\ns_cmp_eq_u32 {s(T[0])}, 0\ns_cselect_b32 {s(T[0])}, 0, 0x40000000")
        k(f"buffer_store_dword {v(vNON)}, {v(vL0)}, {s(RW,4)}, {s(T[0])} offen sc1")
        self.stamp('a_pub')
        self.rl1_done = bool(o.get('rl1_front', 0)); self.rowb_done = True
        self.wd0 = o.get('wd0', 0)
        for n in range(self.wd0): k(self.wd_text(n))
        self.w1_dma(28 if self.rl1_done else o.get('n5', 0))
        if self.w1_next < 28:
            for i in range(7): k(f"v_mov_b32 {v(126+i)}, {v(self.W1V+i)}")
            self.W1V = 126
        if not done0: self.w1_relayout(0)
        if self.rl1_done: self.w1_relayout(1)
        if self.rl1_done or not done0: k.wait_lg0(); k("s_barrier")
        if not done0: self.gemm1_start(0)

    def stats(self, rows, out, t0, scale=None):
        L = []; n = len(rows)
        for i, x in enumerate(rows):
            b = t0 + 6*i
            L += [f"v_pk_add_f32 {v(b,2)}, {v(x,2)}, {v(x+2,2)}", f"v_pk_mul_f32 {v(b+2,2)}, {v(x,2)}, {v(x,2)}",
                  f"v_pk_add_f32 {v(b+4,2)}, {v(x+4,2)}, {v(x+6,2)}"]
            L += [f"v_pk_fma_f32 {v(b+2,2)}, {v(x+e,2)}, {v(x+e,2)}, {v(b+2,2)}" for e in (2, 4, 6)]
            L += [f"v_pk_add_f32 {v(b,2)}, {v(b,2)}, {v(b+4,2)}", f"v_add_f32 {v(b+2)}, {v(b+2)}, {v(b+3)}", f"v_add_f32 {v(b)}, {v(b)}, {v(b+1)}"]
        for ctl in ("row_ror:8 row_mask:0xf", "row_ror:4 row_mask:0xf", "row_ror:2 row_mask:0xf", "row_ror:1 row_mask:0xf",
                    "row_bcast:15 row_mask:0xa", "row_bcast:31 row_mask:0xc"):
            for i in range(n):
                for e in (2, 0):
                    r = t0 + 6*i + e
                    L.append(f"v_add_f32_dpp {v(r)}, {v(r)}, {v(r)} {ctl} bank_mask:0xf")
        for i in range(n):
            b = t0 + 6*i
            L += [f"v_mul_f32 {v(b)}, 0x3b000000, {v(b)}", f"v_mul_f32 {v(b+2)}, 0x3b000000, {v(b+2)}",
                  f"v_fma_f32 {v(b+2)}, -{v(b)}, {v(b)}, {v(b+2)}", f"v_max_f32 {v(b+2)}, 0, {v(b+2)}",
                  f"v_add_f32 {v(b+2)}, 0x3727c5ac, {v(b+2)}", f"v_rsq_f32 {v(b+2)}, {v(b+2)}"]
            if scale: L.append(f"v_mul_f32 {v(b+2)}, {f32(scale)}, {v(b+2)}")
            L += [f"v_mul_f32_e64 {v(b)}, -{v(b)}, {v(b+2)}", f"v_readlane_b32 {s(out[i])}, {v(b+2)}, 63",
                  f"v_readlane_b32 {s(out[i]+2)}, {v(b)}, 63", f"s_mov_b32 {s(out[i]+1)}, {s(out[i])}",
                  f"v_mov_b32 {v(b+4)}, {s(out[i]+2)}", f"v_mov_b32 {v(b+5)}, {s(out[i]+2)}"]
        return L
    def unpack(self, dst, src):
        L = []
        for e in range(4): L += [f"v_lshlrev_b32 {v(dst+2*e)}, 16, {v(src+e)}", f"v_and_b32 {v(dst+2*e+1)}, 0xffff0000, {v(src+e)}"]
        return L
    def affine(self, dst, x, sp, vb):
        return [f"v_pk_fma_f32 {v(dst+e,2)}, {v(x+e,2)}, {s(sp,2)}, {v(vb,2)}" for e in (0, 2, 4, 6)]
    def run(self, L, look=12):
        its = [Item(x) for x in L]
        Queue(self.k, its, look).drain()
        return its

    def gate_norm(self, halves, nrm, layer, R):
        L = []; sp = [36, 40]
        t0 = R + 16*len(halves)
        for i, h in enumerate(halves):
            L += self.unpack(R + 16*i, YS[h])
            L += [f"v_pk_fma_f32 {v(XS[h]+e,2)}, {v(nrm[h]+e,2)}, {v(R+16*i+e,2)}, {v(XS[h]+e,2)}" for e in (0, 2, 4, 6)]
        L += self.stats([XS[h] for h in halves], sp[:len(halves)], t0, LOG2E)
        for i, h in enumerate(halves):
            b = R + 16*i
            L += self.affine(b, XS[h], sp[i], t0 + 6*i + 4)
            L += [f"v_cvt_pk_bf16_f32 {v(b+8+e)}, {v(b+2*e)}, {v(b+2*e+1)}" for e in range(4)]
            if self.o.get('ag', 1): L.append(f"ds_write_b128 {v(self.agw)}, {v(b+8,4)} offset:{L_AG - L_AG2 if i == 0 else 0}")
            else: L.append(f"buffer_store_dwordx4 {v(b+8,4)}, {v(vAst)}, {s(RW,4)}, {s(sHALF) if h else 0} offen")
            if layer == 1:
                L += [f"v_cvt_pk_bf16_f32 {v(b+12+e)}, {v(XS[h]+2*e)}, {v(XS[h]+2*e+1)}" for e in range(4)]
                L.append(f"buffer_store_dwordx4 {v(b+12,4)}, {v(vFr)}, {s(RW,4)}, {s(sFR[h])} offen{self.o.get('x3m', '')}")
        return L

    def ag_addr(self, r):
        if not self.o.get('ag', 1): return []
        self.agw, self.agr = r, r + 1
        return [f"v_bfe_u32 {v(r+1)}, {v(vL16)}, 4, 2", f"v_mul_u32_u24 {v(r+1)}, 1088, {v(r+1)}", f"v_lshrrev_b32 {v(r)}, 6, {v(vL16)}",
                f"v_lshl_add_u32 {v(r+1)}, {v(r)}, 4, {v(r+1)}", f"v_add_u32 {v(r+1)}, {s(sAG[1])}, {v(r+1)}", f"v_add_u32 {v(r)}, {s(sAG[0])}, {v(vL16)}"]
    def a_out(self, halves, R, between=None):
        k = self.k
        if between: between()
        k.wait_lg0(); k("s_barrier")
        t = [k(f"ds_read_b128 {v(R + 4*i, 4)}, {v(self.agr)} offset:{L_AG - L_AG2 if i == 0 else 0}") for i in range(len(halves))]
        out = []
        for i, h in enumerate(halves):
            k.wait(t[i])
            out.append(k(f"buffer_store_dwordx4 {v(R + 4*i, 4)}, {v(vAst)}, {s(RW,4)}, {s(sHALF) if h else 0} offen"))
        return out

    N0 = [40, 118]
    def q_stats(self):
        k = self.k
        k.wait(self.q_tok)
        L = []
        for h in range(2): L += self.unpack(XS[h], 204 + 4*h)
        L += self.stats(XS, [36, 40], 128)
        for h in range(2): L += self.affine(self.N0[h], XS[h], [36, 40][h], 128 + 6*h + 4)
        self.run(L)

    def y_row(self, h, t, raw):
        k = self.k; Y = self.YA
        k.wait(t)
        for e in range(4): k(f"ds_write_b32 {v(Y+2)}, {v(raw+e)} offset:{4096*h + 1024*e}")
        k.wait_lg0()
        k("s_barrier")
        k(f"ds_read_b128 {v(YS[h],4)}, {v(Y+3)} offset:{4096*h}")
        k.wait_lg0()

    def y_in(self):
        k = self.k; o = self.o; Y = self.YA
        t0 = k(f"buffer_load_dwordx4 v[32:35], {v(Y+1)}, {s(RW,4)}, {s(sYld)} offen sc1")
        k(f"s_add_u32 {s(sYFs)}, {s(sYFs)}, {1024*o.get('yfs', 4)}\ns_add_u32 {s(sYFp)}, {s(sYFp)}, {1024*o.get('yfs', 4)}\ns_add_u32 {s(sYld)}, {s(sYld)}, 4096")
        self.publish(self.ysB, s(sYFs), local=False)
        self.stamp('y_pub')
        if o.get('jpos', 0) == 0: self.wd_job_finish()
        self.q_stats()
        self.persistent()
        k("s_barrier")
        self.w1_dma(o.get('n4', 6))
        self.y_row(0, t0, 32)
        self.stamp('y_in')
        its = self.run(self.gate_norm([0], self.N0, 0, 56))
        st = [x.tok for x in its if 'store' in x.text][0]
        self.stamp('a_st')
        for i in range(4): k(f"v_mov_b32 {v(110+i)}, {v(Y+i)}")
        self.YA = 110
        if self.w1_next + o.get('n5', 28) < 28:
            for i in range(7): k(f"v_mov_b32 {v(126+i)}, {v(self.W1V+i)}")
            self.W1V = 126
        self.w1_relayout_addr()
        self.publish(st, s(sAFs), 0)
        self.flag_store(s(sJF), 0, False)
        k(f"s_or_b32 {s(T[0])}, s2, {s(sW)}\ns_cmp_eq_u32 {s(T[0])}, 0\ns_cselect_b32 {s(T[0])}, 0, 0x40000000")
        k(f"buffer_store_dword {v(vNON)}, {v(vL0)}, {s(RW,4)}, {s(T[0])} offen sc1")
        self.stamp('a_pub')
        self.w1_dma(o.get('n5', 28))
        self.w1_relayout(0)
        self.wd_addr()
        self.rl1_done = bool(o.get('rl1_front', 1))
        if self.rl1_done:
            if o.get('rowb_front', 1): self.row_b0()
            self.w1_relayout(1)
        k.wait_lg0(); k("s_barrier")
        self.stamp('w1')
        self.gemm1_start(0)

    def row_b0(self, h0=None):
        k = self.k; Y = self.YA
        if h0 is None:
            self.poll(Y, s(sYFp), local=False)
            h0 = k(f"buffer_load_dwordx4 v[106:109], {v(Y+1)}, {s(RW,4)}, {s(sYld)} offen sc1")
        self.y_row(1, h0, 106)
        its = self.run(self.gate_norm([1], self.N0, 0, ACC[1]))
        self.aB_tok = [x.tok for x in its if 'store' in x.text][0]
        self.rowb_done = True
        if self.o.get('rowb_front', 1) and self.rl1_done: self.publish(self.aB_tok, s(sAFs), 512)

    def epilogue1(self, B, half, off, pk, sc=''):
        L = []; so = s(sHH) if half else '0'
        def grp(g, u, n, outs, t):
            for e in range(n): L.append(f"v_exp_f32_e64 {v(t+e)}, -{v(g+e)}")
            if pk:
                for e in range(0, n, 2): L.append(f"v_pk_mul_f32 {v(u+e,2)}, {v(g+e,2)}, {v(u+e,2)}")
                for e in range(0, n, 2): L.append(f"v_pk_fma_f32 {v(t+e,2)}, {v(t+e,2)}, {s(sC2,2)}, {s(sC2,2)}")
            else:
                for e in range(n): L.append(f"v_mul_f32 {v(u+e)}, {v(g+e)}, {v(u+e)}")
                for e in range(n): L.append(f"v_fma_f32 {v(t+e)}, {v(t+e)}, {s(sC2)}, {s(sC2)}")
            for e in range(n): L.append(f"v_rcp_f32 {v(t+e)}, {v(t+e)}")
            if pk:
                for e in range(0, n, 2): L.append(f"v_pk_mul_f32 {v(u+e,2)}, {v(u+e,2)}, {v(t+e,2)}")
            else:
                for e in range(n): L.append(f"v_mul_f32 {v(u+e)}, {v(u+e)}, {v(t+e)}")
            for e in range(0, n, 2): L.append(f"v_cvt_pk_bf16_f32 {v(outs[e//2])}, {v(u+e)}, {v(u+e+1)}")
        grp(B, B+4, 4, [B, B+1], TMP)
        grp(B+8, B+12, 4, [B+2, B+3], TMP+4)
        L.append(f"buffer_store_dwordx4 {v(B,4)}, {v(vHm)}, {s(RW,4)}, {so} offen offset:{off}{sc}")
        grp(B+16, B+20, 4, [B+8, B+9], TMP)
        grp(B+24, B+26, 2, [B+10], TMP+4)
        Z, C, A_ = B+4, B+5, B+6
        L += [f"v_mov_b32 {v(C)}, {v(B+8)}", f"v_mov_b32 {v(A_)}, {v(B+9)}", f"v_mov_b32 {v(Z)}, {v(B+10)}",
              f"v_permlane32_swap_b32 {v(A_)}, {v(B+11)}", f"v_permlane32_swap_b32 {v(C)}, {v(Z)}",
              f"v_permlane16_swap_b32 {v(Z)}, {v(B+11)}",
              f"buffer_store_dwordx4 {v(B+8,4)}, {v(vHt)}, {s(RW,4)}, {so} offen offset:{off}{sc}"]
        return L

    def a_plan(self, layer):
        n = self.o.get('ring0', 8) if layer == 0 else self.o.get('ring1', 4)
        ring = ([('v', AR + 8*i) for i in range(4)] + [('a', 224 + 8*i) for i in range(4)])[:n]
        reg = {gs: ring[gs % n] for gs in range(32)}
        issue = {}
        for gs in range(32):
            prev = [p for p in range(gs) if reg[p] == reg[gs]]
            issue[gs] = prev[-1] + 1 if prev else -1
        return reg, issue

    def gemm1_start(self, layer):
        k = self.k
        self.wt, self.at = {}, {}
        self.areg, self.aiss = self.a_plan(layer)
        for Tt in range(7): self.rdW(0, Tt)
    def rdW(self, gs, Tt):
        st = gs % 16
        base, o = (vL16, st*7168) if st < 8 else (vW1, (st-8)*7168)
        self.wt[(gs, Tt)] = self.k(f"ds_read_b128 {v(WF + 28*(gs&1) + 4*Tt, 4)}, {v(base)} offset:{o + 1024*Tt}")
    def afrag(self, gs, mt):
        kind, b = self.areg[gs]
        return (v if kind == 'v' else a)(b + 4*mt, 4)
    def ldA(self, gs, mt):
        st = gs % 16
        self.at[(gs, mt)] = self.k(f"buffer_load_dwordx4 {self.afrag(gs, mt)}, {v(vAld[gs // 16])}, {s(RW,4)}, {k4(st>>1)} offen offset:{((st&1)*2+mt)*1024} sc1")

    def gemm1(self, layer):
        k = self.k; o = self.o
        lo = 1024*layer
        if layer: self.poll_check(self.a_poll)
        else: self.poll(vP31, s(sAFp), lo)
        self.stamp(f'a_seen{layer}')
        todo = sorted(range(32), key=lambda g: g)
        nxtA = 0
        while self.aiss[nxtA] < 0 and nxtA < o.get('a_init', 5):
            for mt in range(2): self.ldA(nxtA, mt)
            nxtA += 1
        w1q = []
        if layer == 0:
            if o.get('w1_spread', 1):
                n0 = self.w1_next
                for n in range(n0, 28):
                    for x in self.w1_dma_text(n): w1q.append(Item(x, at=int(14*o.get('w1_spread', 1)*(n - n0)/(28 - n0)), tag=n))
                self.w1_next = 28
            else: self.w1_dma(28)
        firstB = max(min(self.aiss[g] for g in range(16, 32)), o.get('firstB', 0) if layer else 0)
        queues = []
        if layer == 0:
            burst = None
            if getattr(self, 'rowb_done', False):
                queues.append(Queue(k, self.poll_items(vP31, s(sAFp), lo + 512, 14*2, 14*(firstB - 2))))
            else:
                burst = o.get('rowb0_at', 3); box = []
                its = [Item(fn=lambda: box.append(self.poll_issue(self.YA, s(sYFp))))] + [Item(fn=f, at=14*(burst - 2)) for f in self.poll_steps(lambda: box[0], False)]
                fld = Item(f"buffer_load_dwordx4 v[106:109], {v(self.YA+1)}, {s(RW,4)}, {s(sYld)} offen sc1"); its.append(fld)
                queues.append(Queue(k, its))
                firstB = max(firstB, o.get('firstB0', 12))
            rl = self.w1_relayout_items(1) if not self.rl1_done else []
            for x in rl: x.at = 14*o.get('rl1_at', 3)
            if w1q:
                def note():
                    for x in w1q: self.w1_tok[x.tag] = x.tok
                rl = w1q + [Item(fn=note, cost=0)] + rl
            rlq = Queue(k, rl); queues.append(rlq)
            t0 = o.get('wd_t0', 3); t1 = o.get('wd_t1', 31)
            wd = [Item(self.wd_text(n), at=int(14*(t0 + (t1 - t0)*n/56))) for n in range(getattr(self, 'wd0', 0), o.get('wd_n', 56))]
            jb = []
            pj = [Item(fn=lambda: jb.append(self.poll_issue(226, s(sJFp), 0, 229)))] + [Item(fn=f, at=14*t0 - 4) for f in self.poll_steps(lambda: jb[0], False)]
            if o.get('joint', 1): pj = []
            if o.get('tch_h', 0) == 2: pj = [Item(self.touch_h_text(), at=14*o.get('tch_at', 0))]
            wdq = Queue(k, pj + wd, 1); queues.append(wdq)
        else:
            box = []
            s0 = o.get('rowb_at', 6)
            its = self.publish_items(lambda: self.fB, s(sFFs), 512, o.get('fb_pub', 0)) + self.poll_items(vP7, s(sFFp), 512, 14*s0 - o.get('fb_pi', 56), 14*s0 - o.get('fb_pc', 36))
            fld = Item(f"buffer_load_dwordx4 {v(ACC[1],4)}, {v(vFr)}, {s(RW,4)}, {s(sFR[1])} offen sc1"); its.append(fld)
            queues.append(Queue(k, its))
            burst = s0
        epi = None; hbox = []
        ho = lambda half, mt: 2048*layer + 1024*half + 512*mt
        hsc = [' sc1' if o.get('hsc', 15) >> (2*layer + h) & 1 else '' for h in range(2)]
        for gs in range(32):
            ps, st = divmod(gs, 16)
            if gs == burst:
                queues[0].drain(); k.wait(fld.tok)
                self.stamp('rowB_go')
                if layer: sts = self.rowop(1, ACC[1])
                else: self.row_b0(fld.tok); sts = self.aB_tok
                self.stamp('rowB')
                queues[:1] = [Queue(k, self.publish_items(lambda: sts, s(sAFs), lo + 512, 14*gs + o.get('ab_pub', 36))
                                + self.poll_items(vP31, s(sAFp), lo + 512, 14*(firstB - 2) - 4, 14*firstB - 4))]
            if gs == firstB: queues[0].drain()
            if layer == 0 and gs == o.get('rl1_bar', 7) and not self.rl1_done:
                print('relayout left at step 7:', rlq.cost())
                rlq.drain(); k.wait_lg0(); k("s_barrier")
            if gs == 16:
                for q in queues[:2]: q.drain()
                e0 = [Item(x, at=14*16 + 4) for x in self.epilogue1(ACC[0], 0, 0, 0, hsc[0])]
                e1 = [Item(x, at=14*16 + 4) for x in self.epilogue1(ACC[0] + 28, 0, 256, 0, hsc[0])]
                epi = e0 + e1
                queues = [Queue(k, epi, 14), Queue(k, []), Queue(k, [])]
                if layer == 0: queues.append(wdq)
                pub = [False, False]; self.ht = {}; self.nxtH = 0
            if epi:
                dl = o.get('ha_pub', 50 if hsc[0] else 30)
                if not pub[0] and e0[-1].tok:
                    pub[0] = gs
                    queues[1].q += self.publish_items(lambda: e0[-1].tok, s(sHFs), ho(0, 0), 14*gs + dl)
                    t1_ = 14*gs + dl + o.get('ha_gap', 34)
                    queues[2].q += self.poll_items(vP7, s(sHFp), ho(0, 0), t1_, t1_ + o.get('ha_rtt', 22))
                    queues[2].q += [Item(fn=self.ldH, at=t1_ + o.get('ha_rtt', 22) + 4*n) for n in range(7)]
                if not pub[1] and e1[-1].tok:
                    pub[1] = gs
                    queues[1].q += self.publish_items(lambda: e1[-1].tok, s(sHFs), ho(0, 1), 14*gs + dl)
                    queues[2].q += [Item(fn=self.ldH, at=14*31 + 4*n) for n in range(o.get('ha_more', 3))]
            if gs in (2, 4, 8, 10, 12, 14, 20, 24, 28): self.stamp(f'g1_{layer}_{gs}')
            fixed = [[] for _ in range(14)]
            if gs + 1 < 32:
                for Tt in range(7): fixed[2*(Tt // 2)].append(('W', gs+1, Tt))
            slot = 6
            while nxtA < 32 and self.aiss[nxtA] <= gs and slot <= 10 and (nxtA < 16 or gs >= firstB):
                fixed[slot].append(('A', nxtA, 0)); fixed[slot+2].append(('A', nxtA, 1)); nxtA += 1; slot += 4
            k.wait(self.at[(gs, 1)], self.wt[(gs, 6)])
            for i in range(14):
                Tt, mt = divmod(i, 2)
                d = ACC[ps] + 28*mt + 4*Tt
                k(f"v_mfma_f32_16x16x32_bf16 {v(d,4)}, {v(WF + 28*(gs&1) + 4*Tt, 4)}, {self.afrag(gs, mt)}, {'0' if st == 0 else v(d,4)}")
                for it in fixed[i]:
                    if it[0] == 'W': self.rdW(it[1], it[2])
                    else: self.ldA(it[1], it[2])
                cap = 2 - len(fixed[i]) - (1 if i == 13 else 0)
                for q in (queues[::-1] if ps else queues): cap = q.fill(cap, 14*gs + i)
            if gs == 15: self.stamp(f'g1a{layer}'); self.late = layer == 1
        print('layer', layer, 'left after G1B:', [q.cost() for q in queues], 'stores done in steps', pub, 'h loads out', self.nxtH)
        queues[0].drain()
        if not pub[1]: queues[1].q += self.publish_items(lambda: e1[-1].tok, s(sHFs), ho(0, 1), 0)
        if layer == 0: wdq.drain(); self.wd_last = wd[-1].tok
        self.stamp(f'g1b{layer}')
        b0 = [Item(x) for x in self.epilogue1(ACC[1], 1, 0, 1, hsc[1])]
        b1 = [Item(x) for x in self.epilogue1(ACC[1] + 28, 1, 256, 1, hsc[1])]
        q = Queue(k, b0 + b1, 12)
        total = q.cost()
        side = [x for x in queues[2].q if x.fn != self.ldH]
        pubq = list(queues[1].q)
        ev = [(o.get('epi_pub', 30), lambda: Queue(k, pubq).drain()), (o.get('epi_lead', 10), lambda: Queue(k, side).drain())]
        gap = o.get('epi_gap', 20); t = o.get('epi_lead', 10)
        for n in range(self.nxtH, 14):
            ev.append((t, self.ldH)); t += gap
        box = []
        ev.append((o.get('ha1_pi', 140), lambda: box.append(self.poll_issue(vP7, s(sHFp), ho(0, 1)))))
        ev.sort(key=lambda x: x[0])
        while len(q):
            while ev and total - q.cost() >= ev[0][0]: ev.pop(0)[1]()
            if q.fill(3) == 3: q.emit(q.q[0])
        for _, f in ev: f()
        self.hA1_poll = box[0]
        self.hB_tok = [b0[-1].tok, b1[-1].tok]
        self.hsc = hsc
        self.stamp(f'epiB{layer}')

    def g2_order(self):
        return [(half, U, mt) for half in range(2) for mt in range(2) for U in range(14)]
    def hreg(self, n):
        if n < 14: return ACC[0] + 4*n
        if n < 28: return WF + 4*(n - 14)
        if n < 42: return ACC[1] + 4*(n - 28)
        return ACC[0] + 4*(n - 42)
    def ldH(self, _=0):
        n = self.nxtH; self.nxtH += 1
        half, U, mt = self.g2_order()[n]
        self.ht[n] = self.k(f"buffer_load_dwordx4 {v(self.hreg(n),4)}, {v(vHld[half])}, {s(RW,4)}, {k4(U>>1)} offen offset:{(U&1)*2048 + mt*256} sc1")

    def red_write(self, A2):
        return [f"ds_write_b128 {v(vRw)}, {v(A2 + 16*mt + 4*nt, 4)} offset:{4352*mt + 64*nt}" for mt in range(2) for nt in range(4)]
    def red_read(self, P):
        return [f"ds_read_b128 {v(P + 8*w + 4*hf, 4)}, {v(vRr)} offset:{8704*w + 16*hf}" for w in range(4) for hf in range(2)]
    def red_sum(self, P, half, layer, X3, pk):
        L = []
        def add(d, x, y):
            if pk: L.extend(f"v_pk_add_f32 {v(d+e,2)}, {v(x+e,2)}, {v(y+e,2)}" for e in (0, 2, 4, 6))
            else: L.extend(f"v_add_f32 {v(d+e)}, {v(x+e)}, {v(y+e)}" for e in range(8))
        add(P, P, P+8); add(P+16, P+16, P+24)
        if layer == 1:
            L += self.unpack(P+8, X3); add(P, P, P+8)
        add(P, P, P+16)
        L += [f"v_cvt_pk_bf16_f32 {v(P+8+e)}, {v(P+2*e)}, {v(P+2*e+1)}" for e in range(4)]
        if layer == 0: L.append(f"buffer_store_dwordx4 {v(P+8,4)}, {v(vF2)}, {s(RW,4)}, {k4(half)} offen")
        else: L.append(f"buffer_store_dwordx4 {v(P+8,4)}, {v(vO)}, {s(RO,4)}, {s(sFH) if half else 0} offen{self.o.get('ost', ' sc1')}")
        return L

    def gemm2(self, layer):
        k = self.k; o = self.o
        lo = 1024*layer
        AC2 = [AR, WF]
        X3 = [TMP, TMP + 4]
        order = self.g2_order()
        LA = o.get('g2la', 20)
        xt = {}
        def ldX(h): xt[h] = k(f"buffer_load_dwordx4 {v(X3[h],4)}, {v(vF2)}, {s(RW,4)}, {k4(h)} offen sc1")
        ho = lambda half, mt: 2048*layer + 1024*half + 512*mt
        sl = self.hsc[1]
        gate = [14]
        def opened(n): return Item(fn=lambda: gate.__setitem__(0, n), cost=0)
        p0, p1 = o.get('hb_pub0', 20 if sl else 4), o.get('hb_pub1', 44 if sl else 20)
        g_, r_ = o.get('hb_gap', 20), o.get('hb_rtt', 30)
        side = Queue(k, [Item(fn=f, at=o.get('ha1_pc', 8)) for f in self.poll_steps(lambda: self.hA1_poll)] + [opened(28)]
                     + self.publish_items(lambda: self.hB_tok[0], s(sHFs), ho(1, 0), p0)
                     + self.publish_items(lambda: self.hB_tok[1], s(sHFs), ho(1, 1), p1))
        side2 = Queue(k, self.poll_items(vP7, s(sHFp), ho(1, 0), p0 + g_, p0 + g_ + r_) + [opened(42)]
                      + self.poll_items(vP7, s(sHFp), ho(1, 1), max(p1 + g_, p0 + g_ + r_ + 2), max(p1 + g_, p0 + g_ + r_ + 2) + r_) + [opened(56)])
        if layer == 0: k.wait(self.wd_last)
        fbox = []; seenB = False; wB = self.red_write(AC2[1]); doneB = 0
        def next_load():
            self.ldH()
            if layer == 1 and self.nxtH == 34: ldX(0)
            if layer == 1 and self.nxtH == 56:
                ldX(1)
                if o.get('wbl2', 0): self.writeback()
        for n in range(56):
            half, U, mt = order[n]
            if n == 28:
                self.stamp(f'g2a{layer}')
                side.drain()
                t = 4*28
                sp = o.get('ra_sp', 2)
                L = [Item(x, at=t + 3 + sp*i) for i, x in enumerate(self.red_write(AC2[0]))]
                L += [Item(fn=lambda: k.wait_lg0(), at=t + 8*sp + 3), Item(fn=lambda: k("s_barrier"))]
                L += [Item(x) for x in self.red_read(AR)]
                L += [Item(fn=lambda: k.wait_lg0(), at=t + 8*sp + o.get('ra_rd', 14)), Item(fn=lambda: k("s_barrier"))]
                if layer == 1: L += [Item(fn=lambda: k.wait(xt[0]))]
                L += [Item(x) for x in self.red_sum(AR, 0, layer, X3[0], 0)]
                fA = L[-1]
                if layer == 0:
                    L += self.publish_items(lambda: fA.tok, s(sFFs), 0, t + o.get('fa_pub', 66))
                    L += [Item(x, at=t + 60) for x in self.unpack(ACC[1] + 24, YS[0]) + self.ag_addr(ACC[1] + 52)]
                    L.append(Item(fn=lambda: fbox.append(self.poll_issue(vP7, s(sFFp), 0)), at=t + o.get('fa_pi', 86)))
                    if o.get('fa_in', 1):
                        L += [Item(fn=f, at=t + o.get('fa_pc', 104)) for f in self.poll_steps(lambda: fbox[0])]
                        fldi = Item(f"buffer_load_dwordx4 {v(ACC[1],4)}, {v(vFr)}, {s(RW,4)}, {s(sFR[0])} offen sc1"); L.append(fldi)
                if o.get('nored') and layer == 1: L = []
                side = Queue(k, L)
                last0 = max(i for i in range(28, 56) if order[i][2] == 0)
                late = Queue(k, [Item(x, at=4*(last0 + 1) + 3 + sp*i) for i, x in enumerate(wB[:4])])
            if n in (8, 16, 22, 36, 44, 50): self.stamp(f'g2_{layer}_{n}')
            for m in range(n, n + 2 - n % 2):
                while m not in self.ht:
                    while self.nxtH >= gate[0]:
                        qq = side if (gate[0] == 14) else side2
                        qq.emit(qq.q[0])
                    next_load()
            if n % 2 == 0: k.wait(self.ht[n + 1])
            for nt in range(4):
                d = AC2[half] + 16*mt + 4*nt
                k(f"v_mfma_f32_16x16x32_bf16 {v(d,4)}, {a((4*U+nt)*4,4)}, {v(self.hreg(n),4)}, {'0' if U == 0 else v(d,4)}")
                cap = 2 - (1 if (nt == 3 and n % 2) else 0)
                if (nt == 0 or (nt == 2 and self.nxtH < n + 1 + o.get('g2min', 6))) and self.nxtH < min(gate[0], n + 1 + LA) and (self.nxtH < 42 or self.nxtH - 42 < n):
                    next_load(); cap -= 1
                if gate[0] > 14: cap = side2.fill(cap, 4*n + nt)
                cap = side.fill(cap, 4*n + nt)
                if n >= 28 and not any('ds_' in (x.text or '') or (x.fn and x.at <= t + 8*sp + 40) for x in side.q):
                    late.fill(cap, 4*n + nt)
        print('layer', layer, 'left after G2B:', side.cost(), late.cost())
        side.drain()
        wB = [x.text for x in late.q] + wB[4:]
        self.stamp(f'g2b{layer}')
        R = ACC[1]
        if layer == 0 and not o.get('fa_in', 1):
            self.poll_check(fbox[0])
            fld = k(f"buffer_load_dwordx4 {v(R,4)}, {v(vFr)}, {s(RW,4)}, {s(sFR[0])} offen sc1")
        elif layer == 0: fld = fldi.tok
        for x in wB: k(x)
        if layer == 0:
            k.wait(fld)
            self.stamp('fA_in')
            sts, rest = self.rowop(0, R, True)
            self.stamp('rowA')
            if o.get('apub_first', 2): self.run(rest)
            if o.get('apub_first', 2) == 1: self.publish(sts, s(sAFs), 1024)
        if not (layer == 0 and o.get('ag', 1)): k.wait_lg0(); k("s_barrier")
        for x in self.red_read(ACC[0]): k(x)
        if layer == 0 and o.get('apub_first', 2) == 2: self.publish(sts, s(sAFs), 1024)
        k.wait_lg0()
        if layer == 1: k.wait(xt[1])
        if layer == 0 and not o.get('apub_first', 2): self.publish(sts, s(sAFs), 1024)
        if layer == 0: self.a_poll = self.poll_issue(vP31, s(sAFp), 1024)
        self.fB = self.run(self.red_sum(ACC[0], 1, layer, X3[1], 1))[-1].tok
        self.stamp(f'fB_st{layer}')
        if layer == 0:
            self.gemm1_start(1)
            if not o.get('apub_first', 2): self.run(rest)

    def writeback(self):
        k = self.k
        a_, b_ = k.label(), k.label()
        k(f"s_or_b32 {s(T[2])}, {s(sJ)}, {s(sW)}\ns_cmp_lg_u32 {s(T[2])}, 0\ns_cbranch_scc1 {a_}")
        k("buffer_wbl2 sc1")
        k(f"s_branch {b_}"); k.place(a_)
        k.ins.append(I(f"buffer_load_dword {v(vPT)}, {v(vL0)}, {s(RW,4)}, 0 offen"))
        k.place(b_)

    def rowop(self, h, R, split=False):
        L = self.unpack(R + 8, R)
        L += [f"v_pk_add_f32 {v(XS[h]+e,2)}, {v(XS[h]+e,2)}, {v(R+8+e,2)}" for e in (0, 2, 4, 6)]
        L += self.stats([XS[h]], [36], R + 16)
        L += self.affine(R + 8, XS[h], 36, R + 20)
        G = self.gate_norm([h], {h: R + 8}, 1, R + 24)
        rest = []
        if split: G = G[8:]
        if self.o.get('ag', 1):
            self.run(L + G[:-5], 16)
            tok = self.a_out([h], R, lambda: self.run(G[-5:]))[0]
            return (tok, []) if split else tok
        if split: G, rest = G[:-5], G[-5:]
        its = self.run(L + G, 16)
        tok = [x.tok for x in its if 'store' in x.text][-1]
        return (tok, rest) if split else tok

    def build(self):
        k = self.k; o = self.o
        self.prologue()
        self.front_addr()
        self.touch_first()
        self.touch_global_flags()
        self.w1_addr()
        self.w1_dma(o.get('n0', 2))
        self.wd_job_addr()
        self.phase0()
        self.w1_dma(o.get('n1', 1))
        self.conv()
        if o.get('joint', 1): self.y_joint()
        else: self.y_in()
        for layer in range(2):
            self.gemm1(layer)
            self.gemm2(layer)
        if o.get('stamps'):
            self.stamp('end')
            k(f"""s_lshl_b32 {s(T[0])}, s2, 2
                  s_add_u32 {s(T[0])}, {s(T[0])}, {s(sW)}
                  s_lshl_b32 {s(T[0])}, {s(T[0])}, 8
                  s_add_u32 {s(T[0])}, {s(T[0])}, {WS_DBG}
                  v_lshrrev_b32 v5, 2, {v(vL16)}
                  buffer_store_dword {v(vST[0])}, v5, {s(RW,4)}, {s(T[0])} offen
                  s_add_u32 {s(T[0])}, {s(T[0])}, 0x40000
                  buffer_store_dword {v(vST[1])}, v5, {s(RW,4)}, {s(T[0])} offen""")
        if o.get('delay'):
            k(f"""s_mov_b32 {s(T[0])}, {o['delay']}
                  s_memrealtime {s(T[2],2)}
                  s_waitcnt lgkmcnt(0)""")
            k.place("L_DELAY")
            k(f"""s_memrealtime {s(T[4],2)}
                  s_waitcnt lgkmcnt(0)
                  s_sub_u32 {s(T[4])}, {s(T[4])}, {s(T[2])}
                  s_cmp_lt_u32 {s(T[4])}, {s(T[0])}
                  s_cbranch_scc1 L_DELAY""")
        if o.get('diag'):
            self.stamp('end')
            k(f"""v_sub_u32 v5, {v(vST[1])}, {v(vST[0])}
                  s_nop 1
                  v_readfirstlane_b32 {s(T[0])}, v5
                  s_mul_i32 {s(T[0])}, {s(T[0])}, 8
                  s_memrealtime {s(T[2],2)}
                  s_waitcnt lgkmcnt(0)""")
            k.place("L_DIAG")
            k(f"""s_memrealtime {s(T[4],2)}
                  s_waitcnt lgkmcnt(0)
                  s_sub_u32 {s(T[4])}, {s(T[4])}, {s(T[2])}
                  s_cmp_lt_u32 {s(T[4])}, {s(T[0])}
                  s_cbranch_scc1 L_DIAG""")
        k.place("L_END")
        k("s_endpgm")
        body = k.text()
        for t in self.tail:
            body += "".join((x + "\n") if x.endswith(':') else ("    " + x + "\n") for x in t)
        body += "L_LAST:\n"
        return body

def file_text(opt):
    g = Gen(opt)
    body = g.build()
    ref = open(os.path.join(os.path.dirname(os.path.abspath(__file__)), '..', 'cdna_kernels', NAME + '.s.ref')).read()
    head = ref[:ref.index('; Override launch geometry')]
    txt = head + f"""; @launch grid=(256,1,1) block=(256,1,1) lds={LDS_SIZE}
.amdgcn_target "amdgcn-amd-amdhsa--gfx950"
.text
.globl {NAME}_kernel
.p2align 8
.type {NAME}_kernel,@function
{NAME}_kernel:
{body}.section .rodata,"a"
.p2align 6
.amdhsa_kernel {NAME}_kernel
  .amdhsa_next_free_vgpr 512
  .amdhsa_next_free_sgpr 102
  .amdhsa_accum_offset 256
  .amdhsa_group_segment_fixed_size 0
  .amdhsa_kernarg_size 104
  .amdhsa_user_sgpr_count 2
  .amdhsa_user_sgpr_kernarg_segment_ptr 1
  .amdhsa_system_sgpr_workgroup_id_x 1
.end_amdhsa_kernel
"""
    return txt, g

if __name__ == '__main__':
    import json
    opt = {}; out = None
    for x in sys.argv[1:]:
        if '=' in x:
            kk, vv = x.split('=')
            opt[kk] = vv.split(',') if kk in ('only', 'diag') else (' ' + vv.replace('+', ' ') if kk in ('ost', 'wdm', 'x3m') else int(vv, 0))
        else: out = x
    txt, g = file_text(opt)
    open(out, 'w').write(txt)
    json.dump(g.stamps, open(out + '.stamps.json', 'w'))
    print('instructions', len(g.k.ins), 'nops added', g.k.nops_added, 'stamps', len(g.stamps))
```

```python
import sys, os
sys.path.insert(0, os.path.dirname(os.path.abspath(__file__)))
from dsl import *

NAME = 'interleave_layers__ssm_conv_h3__swiglu_ffn__prompt'

WS_XCCF = 0x1000
WS_KVF  = 0x10000
WS_AF   = 0x11000
WS_HF   = 0x19000
WS_FF   = 0x21000
WS_YF   = 0x40000
WS_JF   = 0x3E000
WS_KVT  = 0x100000
WS_A    = WS_KVT
WS_YP   = 0x300000
WS_H    = 0x700000
WS_WDT  = 0xE00000
WS_DBG  = 0x1000000
WS_SIZE = 0x1100000
H_X, H_HALF, H_RB = 917504, 458752, 114688

LDS_SIZE = 163840
SCR   = 114688
L_K   = SCR
L_V   = L_K + 9216
L_H   = L_V + 8192
H_CP  = 4096 + 128
H_E   = lambda ch: L_H + ch * 2 * H_CP + 64
H_O   = lambda ch: L_H + ch * 2 * H_CP + H_CP + 128
L_U   = L_H + 4 * H_CP + 128
U_S   = 4608
assert L_U + 2 * U_S <= LDS_SIZE
L_CRED = 57344
L_YT  = L_U
L_JOB = 114688 - 16384
L_RED = SCR
L_AG  = LDS_SIZE - 4352
L_AG2 = SCR

sX, sJ, sW, sN, sEXP, sSPIN, sXCC, sMODE = 4, 5, 6, 7, 8, 9, 10, 11
T = list(range(12, 24))
sC2 = 24
sHALF = 26
sW1S, sW1L = 27, 3
sD = 28
sDP = 34
RK, RV, RH, RQ, RG, RU, RD, RO, RW, RS = 44, 48, 52, 56, 60, 64, 68, 72, 76, 80
sK4 = 83
def k4(i): return '0' if i == 0 else s(sK4 + i)
sHH = 91
sAFp, sAFs, sHFp, sHFs, sFFp, sFFs = 94, 95, 96, 97, 98, 99
sFR = [100, 101]
sFH = 55
sAG = [56, 57]
sROT = [0, 1, 34, 35, 54, 80, 81]
sDEL = [82, 83]
sST = (32, 92)
sKVFp, sKVs, sUm0, sYst, sYFs, sYFp, sYld, sJF, sJL, sJFp = 44, 45, 46, 47, 48, 49, 50, 51, 52, 53

vL, vL16, vL0, vNON, vPT = 1, 2, 3, 4, 5
vAld, vHld = [6, 7], [8, 9]
vHm, vHt, vAst, vF2, vO, vRw, vRr, vP31, vP7, vW1 = 10, 11, 12, 13, 14, 15, 16, 17, 18, 19
vST = (20, 21)
vFr = 0
vWd = [230, 231]
ACC = [22, 78]
WF, AR, TMP = 134, 190, 222
YS, XS = [232, 236], [240, 248]
LOG2E = 1.4426950408889634

def f32(x):
    import struct
    return '0x%08x' % struct.unpack('<I', struct.pack('<f', x))[0]

def flist(c):
    if c < 4: return [4*c + e for e in range(4)] + [16 + 4*c + e for e in range(4)]
    q = c - 4; X = [44, 46, 54][q]
    return [32 + 4*q + e for e in range(4)] + [48 + 2*q, 49 + 2*q, X, X + 1]

class Gen:
    def __init__(self, opt):
        self.o = opt
        self.k = K()
        self.tail = []
        self.stamps = []
        self.w1_next = 0
        self.late = False
        self.w1_tok = {}

    def stamp(self, name):
        dg = self.o.get('diag')
        if dg and name in dg:
            k = self.k
            k(f"s_memrealtime {s(sST[0],2)}"); k.wait_lg0()
            k(f"v_mov_b32 {v(vST[dg.index(name)])}, {s(sST[0])}")
        if not self.o.get('stamps'): return
        only = self.o.get('only')
        if only and name not in only: return
        k = self.k; n = len(self.stamps)
        k(f"s_memrealtime {s(sST[0],2)}\ns_memtime {s(sST[1],2)}"); k.wait_lg0()
        if self.o.get('spinstat') and n >= 2: k(f"s_sub_u32 {s(sST[1])}, 0, {s(sSPIN)}")
        k(f"v_writelane_b32 {v(vST[0])}, {s(sST[0])}, {n}\nv_writelane_b32 {v(vST[1])}, {s(sST[1])}, {n}")
        self.stamps.append(name)

    def srd(self, base, size):
        self.k(f"s_mov_b32 {s(base+2)}, {size}\ns_mov_b32 {s(base+3)}, 0x20000")

    def poll_issue(self, vaddr, soff, off=0, vt=vPT):
        txt = f"buffer_load_dword {v(vt)}, {v(vaddr)}, {s(RW,4)}, {soff} offen offset:{off} sc1"
        return (self.k(txt), txt, vt)

    def poll_steps(self, get, local=True):
        k = self.k
        slow, back, ok = k.label(), k.label(), k.label()
        def s1(): k.wait(get()[0])
        def s2(): k(f"v_cmp_ne_u32 vcc, {s(sEXP if local else sN)}, {v(get()[2])}")
        def s3():
            if self.o.get('nopoll') and self.late: return
            k(f"s_cbranch_vccnz {slow}"); k.place(back)
            _, txt, vt = get()
            nap = self.o.get('nap_l', 0) if local else self.o.get('nap_g', 0)
            t = [f"{slow}:"] + ([f"s_sleep {nap}"] if nap else []) + [txt, "s_waitcnt vmcnt(0)", f"v_cmp_ne_u32 vcc, {s(sN)}, {v(vt)}", f"s_cbranch_vccz {ok}",
                 f"s_sub_u32 {s(sSPIN)}, {s(sSPIN)}, 1", f"s_cbranch_scc0 {slow}", "s_branch L_END", f"{ok}:"]
            if local: t += [f"s_cmp_eq_u32 {s(sMODE)}, 0", f"s_cbranch_scc1 {back}", "buffer_inv sc1", "s_waitcnt vmcnt(0)"]
            self.tail.append(t + [f"s_branch {back}"])
        return [s1, s2, s3]

    def poll_check(self, h, local=True):
        for f in self.poll_steps(lambda: h, local): f()
    def poll(self, vaddr, soff, off=0, local=True):
        self.poll_check(self.poll_issue(vaddr, soff, off), local)
    def poll_items(self, vaddr, soff, off, at_issue, at_check):
        box = []
        it = [Item(fn=lambda: box.append(self.poll_issue(vaddr, soff, off)), at=at_issue)]
        return it + [Item(fn=f, at=at_check) for f in self.poll_steps(lambda: box[0])]

    def flag_store(self, soff, off=0, local=True):
        k = self.k
        txt = f"buffer_store_dword {v(vNON)}, {v(vL0)}, {s(RW,4)}, {soff} offen offset:{off}"
        if not local: return k(txt + " sc1")
        slow, back = k.label(), k.label()
        k(f"s_cmp_lg_u32 {s(sMODE)}, 0\ns_cbranch_scc1 {slow}")
        r = k(txt); k.place(back)
        self.tail.append([f"{slow}:", "s_waitcnt vmcnt(0)", "buffer_wbl2 sc1", "s_waitcnt vmcnt(0)", txt + " sc1", f"s_branch {back}"])
        return r
    def publish(self, tok, soff, off=0, local=True):
        self.k.wait(tok)
        return self.flag_store(soff, off, local)
    def publish_items(self, get, soff, off, at):
        return [Item(fn=lambda: self.k.wait(get()), at=at), Item(fn=lambda: self.flag_store(soff, off), cost=2, at=at)]

    def dma(self, vaddr, srd, soff, m0, extra=''):
        self.k(m0)
        return self.k(f"buffer_load_dwordx4 {v(vaddr)}, {s(srd,4)}, {soff} offen {extra} lds".replace('  ', ' '))

    def prologue(self):
        k = self.k
        k("s_cmp_ge_u32 s2, 256\ns_cbranch_scc1 L_END")
        if self.o.get('stamps'): k(f"v_mov_b32 {v(vST[0])}, 0\nv_mov_b32 {v(vST[1])}, 0")
        self.stamp('entry')
        for r, off in ((RK, 8), (RV, 16), (RW, 96), (RH, 32), (RS, 24), (RQ, 0), (RG, 56), (RU, 64), (RD, 72), (RO, 80)):
            k(f"s_load_dwordx2 {s(r,2)}, s[0:1], {off}")
        k(f"s_load_dwordx2 {s(sDP,2)}, s[0:1], 40")
        k(f"s_lshr_b32 {s(sJ)}, s2, 3")
        self.code_prefetch()
        k(f"""s_and_b32 {s(sX)}, s2, 7
              v_lshrrev_b32 v5, 6, v0
              v_and_b32 {v(vL)}, 63, v0
              v_readfirstlane_b32 {s(sW)}, v5
              v_lshlrev_b32 {v(vL16)}, 4, {v(vL)}""")
        for r, size in ((RK, 2097152), (RV, 2097152), (RW, WS_SIZE), (RH, 2097152), (RS, 4096)): self.srd(r, size)

        k(f"""v_lshrrev_b32 v24, 3, {v(vL)}
              v_and_b32 v25, 7, {v(vL)}
              v_and_b32 v26, 2, v24
              v_xor_b32 v25, v25, v26
              s_and_b32 {s(T[0])}, {s(sW)}, 1
              s_lshl_b32 {s(T[0])}, {s(T[0])}, 2
              v_xor_b32 v25, {s(T[0])}, v25
              v_lshlrev_b32 v25, 4, v25
              v_lshl_add_u32 v25, v24, 10, v25
              s_lshl_b32 {s(T[0])}, {s(sJ)}, 16
              s_lshl_b32 {s(T[1])}, {s(sW)}, 14
              s_lshl_b32 {s(T[2])}, {s(sX)}, 7
              s_add_u32 {s(T[0])}, {s(T[0])}, {s(T[1])}
              s_add_u32 {s(T[0])}, {s(T[0])}, {s(T[2])}
              v_add_u32 v25, {s(T[0])}, v25
              v_xor_b32 v26, 64, v25
              v_subrev_u32 v26, 8192, v26
              s_lshl_b32 {s(T[1])}, {s(sW)}, 11
              s_add_u32 {s(T[2])}, {s(T[1])}, {L_K + 1024}
              s_add_u32 {s(T[3])}, {s(T[1])}, {L_V}
              s_movk_i32 {s(T[4])}, 8192
              v_and_b32 v27, 15, {v(vL)}
              s_lshl_b32 {s(T[0])}, {s(sX)}, 6
              s_lshl_b32 {s(T[1])}, {s(sW)}, 4
              s_add_u32 {s(T[1])}, {s(T[0])}, {s(T[1])}
              v_add_u32 v27, {s(T[1])}, v27
              v_lshlrev_b32 v28, 3, v27
              s_lshl_b32 {s(T[1])}, {s(sJ)}, 1
              s_add_u32 {s(T[0])}, {s(T[0])}, {s(T[1])}
              s_lshl_b32 {s(T[5])}, {s(T[0])}, 1
              s_lshl_b32 {s(T[6])}, {s(T[0])}, 12
              s_add_u32 {s(T[7])}, {s(T[6])}, 4096
              v_lshlrev_b32 v29, 4, v0""")
        k.wait_lg0()
        self.stamp('start')
        k(f"s_load_dword {s(sN)}, {s(RW,2)}, 0")
        k(f"s_load_dword {s(sD)}, {s(sDP,2)}, {s(T[5])}")
        self.dma(25, RK, '0', f"s_mov_b32 m0, {s(T[2])}")
        self.dma(25, RV, '0', f"s_mov_b32 m0, {s(T[3])}")
        self.dma(25, RK, s(T[4]), f"s_add_u32 m0, {s(T[2])}, 1024")
        self.dma(25, RV, s(T[4]), f"s_add_u32 m0, {s(T[3])}, 1024")
        skip = k.label()
        k(f"s_cmp_lg_u32 {s(sW)}, 0\ns_cbranch_scc1 {skip}\ns_mov_b32 m0, {L_K}\ns_nop 0")
        k.ins.append(I(f"buffer_load_dwordx4 v26, {s(RK,4)}, 0 offen lds"))
        k.place(skip)
        self.sh_tok = k(f"buffer_load_dwordx2 v[30:31], v28, {s(RS,4)}, 0 offen")
        k(f"buffer_load_dwordx4 v[32:35], v29, {s(RH,4)}, {s(T[6])} offen")
        k(f"buffer_load_dwordx4 v[40:43], v29, {s(RH,4)}, {s(T[7])} offen")
        k(f"buffer_load_dwordx4 v[36:39], v29, {s(RH,4)}, {s(T[6])} offen offset:2")
        self.h_tok = k(f"buffer_load_dwordx4 v[44:47], v29, {s(RH,4)}, {s(T[7])} offen offset:2")
        k(f"""s_getreg_b32 {s(sXCC)}, hwreg(HW_REG_XCC_ID, 0, 4)
              v_cmp_eq_u32 vcc, 0, {v(vL)}
              v_mov_b32 v5, 0x80000000
              s_lshl_b32 {s(T[1])}, {s(sX)}, 5
              s_add_u32 {s(T[1])}, {s(T[1])}, {s(sJ)}
              s_mul_i32 {s(T[1])}, {s(T[1])}, {self.o.get('xs', 4)}
              s_add_u32 {s(T[1])}, {s(T[1])}, {WS_XCCF}
              s_cmp_eq_u32 {s(sW)}, 2
              s_cselect_b32 {s(T[1])}, {s(T[1])}, 0x40000000
              v_cndmask_b32 {v(vL0)}, v5, 0, vcc""")
        k.wait_lg0()
        k(f"""s_mul_i32 {s(sN)}, {s(sN)}, 1664525
              s_add_u32 {s(sN)}, {s(sN)}, 1013904223
              s_xor_b32 {s(T[0])}, {s(sN)}, {s(sXCC)}
              v_mov_b32 v5, {s(T[0])}
              v_mov_b32 {v(vNON)}, {s(sN)}""")
        k(f"buffer_store_dword v5, {v(vL0)}, {s(RW,4)}, {s(T[1])} offen sc1")
        for r, size in ((RQ, 2097152), (RG, 1835008), (RU, 1835008), (RD, 1835008), (RO, 2097152)): self.srd(r, size)
        k(f"""s_lshr_b32 {s(sD+2)}, {s(sD)}, 16
              s_and_b32 {s(sD+3)}, {s(sD)}, 0xffff0000
              s_lshl_b32 {s(sD+1)}, {s(sD)}, 16
              s_and_b32 {s(sD)}, {s(sD)}, 0xffff
              s_mov_b32 {s(sC2)}, {f32(LOG2E*LOG2E)}
              s_mov_b32 {s(sC2+1)}, {f32(LOG2E*LOG2E)}
              s_mov_b32 {s(sSPIN)}, {self.o.get('spin', 400000)}
              s_mov_b32 {s(sHALF)}, 0x20000
              s_mov_b32 {s(sHH)}, {H_HALF}
              v_and_b32 {v(vP31)}, 31, {v(vL)}
              v_lshlrev_b32 {v(vP31)}, 2, {v(vP31)}
              v_and_b32 {v(vP7)}, 7, {v(vL)}
              v_lshlrev_b32 {v(vP7)}, 2, {v(vP7)}""")
        for i in range(1, 8): k(f"s_movk_i32 {s(sK4+i)}, {4096*i}")

    def code_prefetch(self):
        if not self.o.get('cpf', 1): return
        k = self.k
        k(f"s_getpc_b64 {s(T[2],2)}")
        k.place("L_PC")
        k(f"""s_mul_i32 {s(T[4])}, {s(sJ)}, ((L_LAST-L_PC+4095)/4096)*128
              v_min_u32 v5, (L_LAST-L_PC+4095)/4096-1, v0
              v_lshl_add_u32 v5, v5, 7, {s(T[4])}
              v_min_u32 v5, L_LAST-L_PC-4, v5
              global_load_dword v219, v5, {s(T[2],2)}""")

    def tlb_touch(self):
        if not self.o.get('tlb', 0): return
        k = self.k
        k(f"v_and_b32 v5, 15, {v(vL)}\nv_lshlrev_b32 v5, 20, v5")
        k(f"buffer_load_dword v200, v5, {s(RW,4)}, 0 offen offset:512")
        k(f"buffer_load_dword v201, v5, {s(RO,4)}, 0 offen")
        k(f"buffer_load_dword v196, v5, {s(RG,4)}, 0 offen")
        k(f"buffer_load_dword v197, v5, {s(RU,4)}, 0 offen")
        k(f"buffer_load_dword v198, v5, {s(RQ,4)}, 0 offen")

    def touch_first(self):
        k = self.k
        if self.o.get('tch_kv', 1):
            k(f"v_and_b32 v5, 15, {v(vL)}\nv_lshlrev_b32 v5, 7, v5")
            k(f"buffer_load_dword v220, v5, {s(RW,4)}, {s(sKVs)} offen sc1")
        if self.o.get('tch_fl', 1):
            k(f"""s_lshl_b32 {s(T[0])}, {s(sX)}, 12
                  s_add_u32 {s(T[0])}, {s(T[0])}, {WS_AF}
                  v_lshl_add_u32 v22, {v(vL)}, 7, {s(T[0])}
                  v_cmp_lt_u32 vcc, 15, {v(vL)}
                  v_add_u32 v5, {0x8000 - 16*128}, v22
                  s_lshl_b32 {s(T[0])}, {s(sX)}, 9
                  v_cndmask_b32 v22, v22, v5, vcc
                  v_cmp_lt_u32 vcc, 47, {v(vL)}
                  v_add_u32 v5, {0x8000 - 32*128}, v22
                  s_add_u32 {s(T[0])}, {s(T[0])}, {WS_KVF}
                  v_cndmask_b32 v22, v22, v5, vcc
                  v_cmp_lt_u32 vcc, 55, {v(vL)}
                  v_and_b32 v5, 3, {v(vL)}
                  v_lshl_add_u32 v5, v5, 7, {s(T[0])}
                  s_cmp_eq_u32 {s(sW)}, 3
                  s_cselect_b32 {s(T[0])}, 0, 0x40000000
                  v_cndmask_b32 v5, v22, v5, vcc
                  buffer_load_dword v221, v5, {s(RW,4)}, {s(T[0])} offen sc1""")
    def touch_global_flags(self):
        if not self.o.get('tch_g', 1): return
        k = self.k
        k(f"""v_lshlrev_b32 v5, 7, {v(vL)}
              s_cmp_eq_u32 {s(sW)}, 1
              s_cselect_b32 {s(T[0])}, {s(sJ)}, 31
              s_lshl_b32 {s(T[1])}, {s(T[0])}, 13
              s_cmp_lt_u32 {s(T[0])}, {1 + self.o.get('yfs', 4)//4}
              s_cselect_b32 {s(T[0])}, {s(T[1])}, 0x40000000
              s_add_u32 {s(T[0])}, {s(T[0])}, {WS_JF}
              buffer_load_dword v202, v5, {s(RW,4)}, {s(T[0])} offen sc1""")
    def touch_h_addr(self):
        self.k(f"""s_lshl_b32 {s(T[0])}, {s(sJ)}, 2
                  s_add_u32 {s(T[0])}, {s(T[0])}, {s(sW)}
                  s_mul_i32 {s(T[0])}, {s(T[0])}, 7168
                  s_mul_i32 {s(T[1])}, {s(sX)}, {H_X}
                  s_add_u32 {s(T[0])}, {s(T[0])}, {s(T[1])}
                  s_add_u32 {s(T[0])}, {s(T[0])}, {WS_H}
                  v_min_u32 v227, 55, {v(vL)}
                  v_lshl_add_u32 v227, v227, 7, {s(T[0])}""")
    def touch_h_text(self): return f"buffer_load_dword v228, v227, {s(RW,4)}, 0 offen sc1"
    def touch_f(self):
        k = self.k
        k(f"""v_and_b32 v5, 7, {v(vL)}
              v_lshlrev_b32 v5, 7, v5
              v_bfe_u32 v22, {v(vL)}, 3, 1
              v_lshl_add_u32 v5, v22, 17, v5
              buffer_load_dword v199, v5, {s(RW,4)}, {s(sFR[0])} offen sc1""")

    def q_load(self):
        k = self.k
        k(f"""s_lshl_b32 {s(T[0])}, {s(sX)}, 7
              s_lshl_b32 {s(T[1])}, {s(sJ)}, 2
              s_add_u32 {s(T[0])}, {s(T[0])}, {s(T[1])}
              s_add_u32 {s(T[0])}, {s(T[0])}, {s(sW)}
              s_lshl_b32 {s(T[0])}, {s(T[0])}, 10
              s_add_u32 {s(T[1])}, {s(T[0])}, 0x100000""")
        k(f"buffer_load_dwordx4 v[204:207], {v(vL16)}, {s(RQ,4)}, {s(T[0])} offen")
        self.q_tok = k(f"buffer_load_dwordx4 v[208:211], {v(vL16)}, {s(RQ,4)}, {s(T[1])} offen")

    def persistent(self):
        k = self.k; AG = self.o.get('ag', 1)
        k(f"""s_lshl_b32 {s(T[0])}, {s(sJ)}, 2
              s_add_u32 {s(T[0])}, {s(T[0])}, {s(sW)}
              s_lshl_b32 {s(T[8])}, {s(sX)}, 18
              s_lshl_b32 {s(T[9])}, {s(sX)}, 12
              s_lshr_b32 {s(T[10])}, {s(sJ)}, 3
              s_and_b32 {s(T[11])}, {s(sJ)}, 7
              s_lshl_b32 {s(T[1])}, {s(T[0])}, 2
              s_add_u32 {s(T[1])}, {s(T[1])}, {s(T[9])}
              s_add_u32 {s(sAFs)}, {s(T[1])}, {WS_AF}
              s_lshl_b32 {s(T[1])}, {s(sW)}, 7
              s_add_u32 {s(T[1])}, {s(T[1])}, {s(T[9])}
              s_add_u32 {s(sAFp)}, {s(T[1])}, {WS_AF}
              s_lshl_b32 {s(T[2])}, {s(sJ)}, 2
              s_add_u32 {s(T[1])}, {s(T[1])}, {s(T[2])}
              s_add_u32 {s(sHFs)}, {s(T[1])}, {WS_HF}
              s_lshl_b32 {s(T[1])}, {s(T[10])}, 7
              s_lshl_b32 {s(T[2])}, {s(sW)}, 5
              s_add_u32 {s(T[1])}, {s(T[1])}, {s(T[2])}
              s_add_u32 {s(T[1])}, {s(T[1])}, {s(T[9])}
              s_add_u32 {s(sHFp)}, {s(T[1])}, {WS_HF}
              s_lshl_b32 {s(T[2])}, {s(T[11])}, 2
              s_add_u32 {s(T[1])}, {s(T[1])}, {s(T[2])}
              s_add_u32 {s(sFFs)}, {s(T[1])}, {WS_FF}
              s_lshr_b32 {s(T[1])}, {s(sJ)}, 1
              s_lshl_b32 {s(T[1])}, {s(T[1])}, 5
              s_add_u32 {s(T[1])}, {s(T[1])}, {s(T[9])}
              s_add_u32 {s(sFFp)}, {s(T[1])}, {WS_FF}
              s_lshr_b32 {s(T[1])}, {s(T[0])}, 5
              s_lshl_b32 {s(T[1])}, {s(T[1])}, 15
              s_bfe_u32 {s(T[2])}, {s(T[0])}, 0x10004
              s_lshl_b32 {s(T[2])}, {s(T[2])}, 10
              s_and_b32 {s(T[3])}, {s(T[0])}, {12 if AG else 15}
              s_lshl_b32 {s(T[3])}, {s(T[3])}, 4
              s_add_u32 {s(T[1])}, {s(T[1])}, {s(T[2])}
              s_add_u32 {s(T[1])}, {s(T[1])}, {s(T[3])}
              s_add_u32 {s(T[1])}, {s(T[1])}, {s(T[8])}
              s_lshl_b32 {s(T[2])}, {s(sW)}, 13
              s_add_u32 {s(T[2])}, {s(T[2])}, {WS_A}
              s_add_u32 {s(T[1])}, {s(T[1])}, {s(T[2]) if AG else WS_A}
              v_lshrrev_b32 v5, {4 if AG else 2}, {v(vL)}
              v_lshlrev_b32 v5, 11, v5
              v_bfe_u32 {v(vAst)}, {v(vL)}, {2 if AG else 0}, 2
              v_lshl_add_u32 {v(vAst)}, {v(vAst)}, 8, v5
              v_and_b32 v5, {3 if AG else 0}, {v(vL)}
              v_lshl_add_u32 {v(vAst)}, v5, 4, {v(vAst)}
              v_add_u32 {v(vAst)}, {s(T[1])}, {v(vAst)}
              s_lshl_b32 {s(T[1])}, {s(sW)}, 15
              s_add_u32 {s(T[1])}, {s(T[1])}, {s(T[8])}
              s_add_u32 {s(T[1])}, {s(T[1])}, {WS_A}
              v_add_u32 {v(vAld[0])}, {s(T[1])}, {v(vL16)}
              v_add_u32 {v(vAld[1])}, 0x20000, {v(vAld[0])}
              v_add_u32 {v(vW1)}, 57344, {v(vL16)}
              v_lshrrev_b32 v5, 4, {v(vL)}
              v_and_b32 v23, 15, {v(vL)}
              v_lshlrev_b32 v22, 9, v5
              v_lshl_add_u32 v22, v23, 4, v22
              s_mul_i32 {s(T[4])}, {s(sX)}, {H_X}
              s_add_u32 {s(T[4])}, {s(T[4])}, {WS_H}
              s_mul_i32 {s(T[1])}, {s(sW)}, {H_RB}
              s_mul_i32 {s(T[2])}, {s(sJ)}, 3584
              s_add_u32 {s(T[1])}, {s(T[1])}, {s(T[2])}
              s_add_u32 {s(T[1])}, {s(T[1])}, {s(T[4])}
              v_add_u32 {v(vHm)}, {s(T[1])}, v22
              s_mul_i32 {s(T[1])}, {s(T[10])}, {H_RB}
              s_mul_i32 {s(T[2])}, {s(sW)}, 28672
              s_add_u32 {s(T[1])}, {s(T[1])}, {s(T[2])}
              s_add_u32 {s(T[1])}, {s(T[1])}, {s(T[4])}
              v_add_u32 {v(vHld[0])}, {s(T[1])}, v22
              v_add_u32 {v(vHld[1])}, {H_HALF}, {v(vHld[0])}
              v_cmp_gt_u32 vcc, 48, {v(vL)}
              v_add_u32 {v(vHt)}, 2048, {v(vHm)}
              v_mov_b32 v22, 0x80000000
              v_mul_u32_u24 {v(vRw)}, 272, v23
              v_cndmask_b32 {v(vHt)}, v22, {v(vHt)}, vcc
              v_lshl_add_u32 {v(vRw)}, v5, 4, {v(vRw)}
              s_mul_i32 {s(T[1])}, {s(sW)}, 8704
              s_add_u32 {s(T[1])}, {s(T[1])}, {L_RED}
              v_add_u32 {v(vRw)}, {s(T[1])}, {v(vRw)}
              v_lshrrev_b32 v5, 3, {v(vL)}
              v_mul_u32_u24 {v(vRr)}, 272, v5
              v_lshl_add_u32 {v(vRr)}, {v(vP7)}, 3, {v(vRr)}
              s_mul_i32 {s(T[1])}, {s(sW)}, {8*272}
              s_add_u32 {s(T[1])}, {s(T[1])}, {L_RED}
              v_add_u32 {v(vRr)}, {s(T[1])}, {v(vRr)}
              s_lshl_b32 {s(T[1])}, {s(T[10])}, 5
              s_lshl_b32 {s(T[2])}, {s(sW)}, 3
              s_add_u32 {s(T[1])}, {s(T[1])}, {s(T[2])}
              v_add_u32 v5, {s(T[1])}, v5
              s_lshl_b32 {s(T[2])}, {s(T[11])}, 7
              s_lshl_b32 {s(T[1])}, {s(sX)}, 17
              s_add_u32 {s(T[2])}, {s(T[2])}, {s(T[1])}
              v_lshl_add_u32 v22, {v(vP7)}, 2, {s(T[2])}
              v_lshl_add_u32 {v(vO)}, v5, 10, v22
              s_lshr_b32 {s(T[1])}, {s(T[11])}, 2
              s_lshl_b32 {s(T[1])}, {s(T[1])}, 13
              s_and_b32 {s(T[2])}, {s(T[11])}, 3
              s_lshl_b32 {s(T[2])}, {s(T[2])}, 7
              s_add_u32 {s(T[1])}, {s(T[1])}, {s(T[2])}
              s_lshl_b32 {s(T[2])}, {s(sX)}, 9
              s_add_u32 {s(T[1])}, {s(T[1])}, {s(T[2])}
              s_add_u32 {s(T[1])}, {s(T[1])}, {WS_YP}
              v_lshl_add_u32 {v(vF2)}, {v(vP7)}, 2, {s(T[1])}
              v_lshl_add_u32 {v(vF2)}, v5, 14, {v(vF2)}
              s_mov_b32 {s(sFH)}, 0x100000
              s_lshl_b32 {s(T[1])}, {s(T[0])}, 14
              s_add_u32 {s(T[1])}, {s(T[1])}, {s(T[2])}
              s_add_u32 {s(sFR[0])}, {s(T[1])}, {WS_YP}
              s_add_u32 {s(sFR[1])}, {s(T[1])}, {WS_YP + 4096}
              v_lshrrev_b32 v5, 5, {v(vL)}
              v_lshlrev_b32 v5, 13, v5
              v_lshl_add_u32 {v(vFr)}, {v(vP31)}, 2, v5""")

    W1V = 212
    def w1_addr(self):
        k = self.k; vb = self.W1V; rot = self.o.get('rot', 1)
        k(f"""s_mul_i32 {s(T[0])}, {s(sJ)}, 112
              s_movk_i32 {s(T[1])}, 9363
              s_movk_i32 {s(T[2])}, {3584 - 7*16}
              s_mul_i32 {s(sW1S)}, {s(sW)}, 229376
              s_mul_i32 {s(sW1L)}, {s(sW)}, 14336
              s_and_b32 {s(T[3])}, {s(sX)}, {6 if rot else 0}
              s_and_b32 {s(T[4])}, {s(sX)}, {1 if rot else 0}
              s_cselect_b32 {s(T[5])}, {s(RU)}, {s(RG)}
              s_cselect_b32 {s(T[6])}, {s(RU+1)}, {s(RG+1)}
              s_cselect_b32 {s(RU)}, {s(RG)}, {s(RU)}
              s_cselect_b32 {s(RU+1)}, {s(RG+1)}, {s(RU+1)}
              s_cselect_b32 {s(T[4])}, 7168, 0
              s_lshl_b32 {s(sDEL[0])}, {s(T[4])}, 1
              s_sub_u32 {s(sDEL[0])}, 7168, {s(sDEL[0])}
              s_mov_b32 {s(RG)}, {s(T[5])}
              s_mov_b32 {s(RG+1)}, {s(T[6])}
              s_add_u32 {s(sDEL[1])}, {s(sDEL[0])}, 57344
              s_add_u32 {s(T[4])}, {s(T[4])}, {s(sW1L)}""")
        for i in range(7):
            k(f"""s_add_u32 {s(T[5])}, {s(T[3])}, {i}
                  s_sub_u32 {s(T[6])}, {s(T[5])}, 7
                  s_cselect_b32 {s(T[5])}, {s(T[5])}, {s(T[6])}
                  s_lshl_b32 {s(T[6])}, {s(T[5])}, 10
                  s_add_u32 {s(sROT[i])}, {s(T[6])}, {s(T[4])}
                  v_lshl_add_u32 v5, {s(T[5])}, 6, {v(vL)}
                  v_mul_u32_u24 {v(vb+i)}, {s(T[1])}, v5
                  v_lshrrev_b32 {v(vb+i)}, 16, {v(vb+i)}
                  v_mul_u32_u24 {v(vb+i)}, {s(T[2])}, {v(vb+i)}
                  v_lshl_add_u32 {v(vb+i)}, v5, 4, {v(vb+i)}
                  v_add_u32 {v(vb+i)}, {s(T[0])}, {v(vb+i)}""")

    def w1_dma_text(self, n):
        ck, mat, i = n // 14, (n % 14) // 7, n % 7
        L = []
        if n == 14: L.append(f"s_add_u32 {s(sW1S)}, {s(sW1S)}, {4*229376}")
        L.append(f"s_add_u32 m0, {s(sROT[i])}, {s(sDEL[ck]) if mat else ck*57344}")
        L.append(f"buffer_load_dwordx4 {v(self.W1V+i)}, {s(RU if mat else RG,4)}, {s(sW1S)} offen lds")
        return L
    def w1_dma(self, cnt):
        for _ in range(cnt):
            if self.w1_next >= 28: return
            n = self.w1_next; self.w1_next += 1
            for x in self.w1_dma_text(n): self.w1_tok[n] = self.k(x)

    RL = 222
    def w1_relayout_addr(self):
        k = self.k; r = self.RL
        k(f"""v_lshrrev_b32 v5, 4, {v(vL)}
              v_bfe_u32 {v(r)}, {v(vL)}, 2, 2
              v_lshl_add_u32 {v(r)}, v5, 3, {v(r)}
              v_mul_u32_u24 {v(r)}, 112, {v(r)}
              v_add_u32 {v(r)}, {s(sW1L)}, {v(r)}
              v_and_b32 {v(r+2)}, 3, {v(vL)}
              v_bfe_u32 {v(r+3)}, {v(vL)}, 1, 1
              v_mul_u32_u24 {v(r+3)}, 7168, {v(r+3)}
              v_and_b32 v22, 1, {v(vL)}
              v_lshl_add_u32 {v(r+3)}, v22, 3, {v(r+3)}
              v_add_u32 {v(r+1)}, {v(r)}, {v(r+3)}
              v_lshl_add_u32 {v(r)}, {v(r+2)}, 3, {v(r)}
              v_add_u32 {v(r+2)}, {s(sW1L)}, {v(vL16)}
              v_bfe_u32 {v(r+3)}, {v(vL)}, 1, 2
              v_lshlrev_b32 {v(r+3)}, 2, {v(r+3)}
              v_bfe_u32 v23, {v(vL)}, 3, 1
              v_lshl_add_u32 {v(r+3)}, v23, 1, {v(r+3)}
              v_add_u32 {v(r+3)}, {v(r+3)}, v22
              v_lshl_add_u32 {v(r+3)}, v5, 4, {v(r+3)}
              v_lshlrev_b32 {v(r+3)}, 4, {v(r+3)}
              v_add_u32 {v(r+3)}, {s(sW1L)}, {v(r+3)}""")
    def w1_relayout_items(self, ck, vtemp=False):
        k = self.k; r = self.RL
        R, a = (ACC[1], v) if vtemp else (128, globals()['a'])
        L = [Item(fn=lambda: k.wait(self.w1_tok[14*ck + 13]))]
        if ck == 1: L += [Item(f"v_add_u32 {v(r+i)}, 57344, {v(r+i)}") for i in range(4)]
        for sl in range(2):
            for Tt in range(7):
                for hf in range(2):
                    d = R + (sl*7 + Tt)*4 + 2*hf
                    o = (32*sl + 4*hf)*112
                    if Tt < 6: L.append(Item(f"ds_read_b64_tr_b16 {a(d,2)}, {v(r)} offset:{o + (Tt&1)*7168 + 32*(Tt>>1)}"))
                    else: L.append(Item(f"ds_read_b64_tr_b16 {a(d,2)}, {v(r+1)} offset:{o + 96}"))
        last = L[-1]
        L.append(Item(fn=lambda: k.wait(last.tok)))
        for n in range(14): L.append(Item(f"ds_write_b128 {v(r+3 if n % 7 == 6 else r+2)}, {a(R + n*4, 4)} offset:{n*1024}"))
        return L
    def w1_relayout(self, ck): Queue(self.k, self.w1_relayout_items(ck)).drain()

    JV = 190
    def wd_job_addr(self):
        k = self.k; r = self.JV
        k(f"""s_lshl_b32 {s(T[0])}, s2, 1
              s_lshr_b32 {s(T[1])}, {s(sW)}, 1
              s_add_u32 {s(T[0])}, {s(T[0])}, {s(T[1])}
              s_mul_i32 {s(T[1])}, {s(T[0])}, 4682
              s_lshr_b32 {s(T[1])}, {s(T[1])}, 16
              s_mul_i32 {s(T[2])}, {s(T[1])}, 14
              s_sub_u32 {s(T[2])}, {s(T[0])}, {s(T[2])}
              s_and_b32 {s(T[3])}, {s(T[1])}, 3
              s_lshr_b32 {s(T[1])}, {s(T[1])}, 2
              s_lshl_b32 {s(T[1])}, {s(T[1])}, 7
              s_mul_i32 {s(T[3])}, {s(T[3])}, {8*57344}
              s_add_u32 {s(T[1])}, {s(T[1])}, {s(T[3])}
              s_cmp_lt_u32 s2, 224
              s_cselect_b32 {s(T[3])}, {s(sW)}, 0
              s_bitcmp1_b32 {s(T[3])}, 0
              s_cselect_b32 {s(T[3])}, 0, 0x80000000
              s_lshl_b32 {s(T[4])}, {s(T[0])}, 2
              s_add_u32 {s(T[4])}, {s(T[4])}, {WS_JF}
              s_lshr_b32 {s(sJF)}, {s(T[3])}, 1
              s_or_b32 {s(sJF)}, {s(sJF)}, {s(T[4])}
              s_lshl_b32 {s(T[0])}, {s(T[0])}, 12
              s_add_u32 {s(T[0])}, {s(T[0])}, {WS_WDT}
              s_or_b32 {s(T[0])}, {s(T[0])}, {s(T[3])}
              s_or_b32 {s(T[1])}, {s(T[1])}, {s(T[3])}
              v_add_u32 {v(r+5)}, {s(T[0])}, {v(vL16)}
              v_lshrrev_b32 v5, 3, {v(vL)}
              v_and_b32 v22, 3, v5
              v_lshlrev_b32 v22, 3, v22
              v_cmp_gt_u32 vcc, 4, v5
              v_lshl_add_u32 v23, {v(vP7)}, 2, {s(T[1])}
              s_lshl_b32 {s(T[2])}, {s(T[2])}, 2""")
        for g in range(4):
            k(f"""s_add_u32 {s(T[0])}, {s(T[2])}, {g}
                  s_mul_i32 {s(T[1])}, {s(T[0])}, 9363
                  s_lshr_b32 {s(T[1])}, {s(T[1])}, 16
                  s_mul_i32 {s(T[3])}, {s(T[1])}, 7
                  s_sub_u32 {s(T[0])}, {s(T[0])}, {s(T[3])}
                  s_mul_i32 {s(T[1])}, {s(T[1])}, 56
                  s_mul_i32 {s(T[3])}, {s(T[0])}, 0x04040404
                  s_add_u32 {s(T[4])}, {s(T[3])}, 0x13121110
                  s_add_u32 {s(T[3])}, {s(T[3])}, 0x03020100
                  s_cmp_ge_u32 {s(T[0])}, 4
                  s_cselect_b32 {s(T[3])}, {s(T[4])}, {s(T[3])}
                  s_cselect_b32 {s(T[4])}, {sum(x << (8*e) for e, x in enumerate(flist(4)[4:]))}, {s(T[4])}
                  s_cmp_eq_u32 {s(T[0])}, 5
                  s_cselect_b32 {s(T[4])}, {sum(x << (8*e) for e, x in enumerate(flist(5)[4:]))}, {s(T[4])}
                  s_cmp_eq_u32 {s(T[0])}, 6
                  s_cselect_b32 {s(T[4])}, {sum(x << (8*e) for e, x in enumerate(flist(6)[4:]))}, {s(T[4])}
                  v_mov_b32 v5, {s(T[3])}
                  v_mov_b32 {v(r+g)}, {s(T[4])}
                  v_cndmask_b32 v5, {v(r+g)}, v5, vcc
                  v_bfe_u32 v5, v5, v22, 8
                  v_add_u32 v5, {s(T[1])}, v5
                  v_lshl_add_u32 {v(r+g)}, v5, 10, v23""")
        k(f"""s_lshl_b32 {s(sJL)}, {s(sW)}, 12
              s_add_u32 {s(sJL)}, {s(sJL)}, {L_JOB}
              v_lshrrev_b32 v5, 4, {v(vL)}
              v_lshlrev_b32 {v(r+4)}, 10, v5
              v_bfe_u32 v5, {v(vL)}, 2, 2
              v_lshl_add_u32 {v(r+4)}, v5, 7, {v(r+4)}
              v_and_b32 v5, 3, {v(vL)}
              v_lshl_add_u32 {v(r+4)}, v5, 3, {v(r+4)}
              v_add_u32 {v(r+4)}, {s(sJL)}, {v(r+4)}""")
    def wd_job_issue(self):
        for g in range(4): self.job_tok = self.dma(self.JV+g, RD, '0', f"s_add_u32 m0, {s(sJL)}, {1024*g}")
    def wd_job_finish(self):
        k = self.k; r = self.JV
        k.wait(self.job_tok)
        t = {}
        for nt in range(4):
            for hf in range(2): t[nt] = k(f"ds_read_b64_tr_b16 {a(128 + 4*nt + 2*hf, 2)}, {v(r+4)} offset:{hf*512 + nt*32}")
        for nt in range(4):
            k.wait(t[nt])
            self.job_st = k(f"buffer_store_dwordx4 {a(128 + 4*nt, 4)}, {v(r+5)}, {s(RW,4)}, 0 offen offset:{1024*nt} sc1")
    WDV = 226
    def wd_addr(self):
        self.k(f"""s_and_b32 {s(T[0])}, {s(sJ)}, 7
                   s_lshl_b32 {s(T[0])}, {s(T[0])}, 2
                   s_add_u32 {s(T[0])}, {s(T[0])}, {s(sW)}
                   s_mul_i32 {s(sJFp)}, {s(T[0])}, {14*4}
                   s_add_u32 {s(sJFp)}, {s(sJFp)}, {WS_JF}
                   s_mul_i32 {s(T[0])}, {s(T[0])}, {14*4096}
                   s_add_u32 {s(T[0])}, {s(T[0])}, {WS_WDT}
                   v_add_u32 {v(vWd[0])}, {s(T[0])}, {v(vL16)}
                   v_add_u32 {v(vWd[1])}, 32768, {v(vWd[0])}
                   v_min_u32 v226, 13, {v(vL)}
                   v_lshlrev_b32 v226, 2, v226""")
    def wd_touch_text(self, i):
        return f"buffer_load_dword {v(228+i)}, v227, {s(RW,4)}, {k4(i)} offen offset:{3072*i} sc1"
    def wd_text(self, n):
        U, nt = divmod(n, 4)
        return f"buffer_load_dwordx4 {a(4*n, 4)}, {v(vWd[U >> 3])}, {s(RW,4)}, {k4(U & 7)} offen offset:{1024*nt}{self.o.get('wdm', ' sc1')}"

    def phase0(self):
        k = self.k
        k(f"""v_lshrrev_b32 v5, 4, {v(vL)}
              v_bfe_u32 v48, {v(vL)}, 2, 2
              v_lshl_add_u32 v49, v5, 4, v48
              v_lshlrev_b32 v49, 7, v49
              v_bfe_u32 v50, {v(vL)}, 1, 1
              s_lshl_b32 {s(T[0])}, {s(sW)}, 1
              v_add_u32 v50, {s(T[0])}, v50
              v_and_b32 v48, 2, v48
              v_xor_b32 v50, v50, v48
              v_and_b32 v48, 1, v5
              v_lshlrev_b32 v48, 2, v48
              v_xor_b32 v50, v50, v48
              v_lshl_add_u32 v49, v50, 4, v49
              v_and_b32 v48, 1, {v(vL)}
              v_lshl_add_u32 v49, v48, 3, v49
              v_add_u32 v49, {L_K}, v49
              v_xor_b32 v50, 64, v49
              v_lshlrev_b32 v51, 12, v27
              v_lshl_add_u32 v51, v5, 5, v51
              s_lshl_b32 {s(T[6])}, {s(sJ)}, 7
              s_add_u32 {s(T[6])}, {s(T[6])}, {WS_KVT}
              v_mul_u32_u24 v52, {self.o.get('xs', 4)//4}, {v(vP31)}
              s_mul_i32 {s(T[7])}, {s(sX)}, {32*self.o.get('xs', 4)}
              s_add_u32 {s(T[7])}, {s(T[7])}, {WS_XCCF}
              s_lshl_b32 {s(T[0])}, {s(sX)}, 9
              s_lshl_b32 {s(T[1])}, {s(sW)}, 7
              s_lshl_b32 {s(T[2])}, {s(sJ)}, 2
              s_add_u32 {s(T[1])}, {s(T[1])}, {s(T[2])}
              s_add_u32 {s(T[0])}, {s(T[0])}, {WS_KVF}
              s_add_u32 {s(T[5])}, {s(T[1])}, {s(T[0])}
              s_xor_b32 {s(T[0])}, {s(sN)}, {s(sXCC)}
              s_mov_b32 {s(sMODE)}, 0
              s_mov_b32 {s(sEXP)}, {s(sN)}""")
        k.wait(self.sh_tok)
        k("s_barrier")
        self.stamp('kv_in')
        xh = k(f"buffer_load_dword v53, v52, {s(RW,4)}, {s(T[7])} offen sc1")
        KR, VR, KS, O, VU, P = 56, 68, 78, 88, 104, 120
        k(f"ds_read_b64_tr_b16 {v(KR,2)}, v50 offset:512")
        for i in range(4): k(f"ds_read_b64_tr_b16 {v(KR+2+2*i,2)}, v49 offset:{1024 + 512*i}")
        for i in range(4): lastv = k(f"ds_read_b64_tr_b16 {v(VR+2*i,2)}, v49 offset:{L_V - L_K + 512*i}")
        k("v_alignbit_b32 v54, v30, v30, 16\nv_alignbit_b32 v55, v31, v31, 16")
        k.wait(('lg', lastv[1] - 4))
        for aa in range(-1, 8): k(f"v_alignbit_b32 {v(KS+1+aa)}, {v(KR+2+aa)}, {v(KR+1+aa)}, 16")
        for aa in range(8):
            k(f"v_dot2_f32_bf16 {v(O+2*aa)}, {v(KS+aa)}, v55, 0")
            k(f"v_dot2_f32_bf16 {v(O+2*aa+1)}, {v(KR+1+aa)}, v55, 0")
        for aa in range(8):
            k(f"v_dot2_f32_bf16 {v(O+2*aa)}, {v(KS+1+aa)}, v54, {v(O+2*aa)}")
            k(f"v_dot2_f32_bf16 {v(O+2*aa+1)}, {v(KR+2+aa)}, v54, {v(O+2*aa+1)}")
        k.wait(lastv)
        for g in range(2):
            for aa in range(4*g, 4*g+4):
                k(f"v_lshlrev_b32 {v(VU+2*aa)}, 16, {v(VR+aa)}")
                k(f"v_and_b32 {v(VU+2*aa+1)}, 0xffff0000, {v(VR+aa)}")
            for aa in range(4*g, 4*g+4): k(f"v_pk_mul_f32 {v(O+2*aa,2)}, {v(O+2*aa,2)}, {v(VU+2*aa,2)}")
            for e in range(4): k(f"v_cvt_pk_bf16_f32 {v(P+4*g+e)}, {v(O+8*g+7-2*e)}, {v(O+8*g+6-2*e)}")
            st = k(f"buffer_store_dwordx4 {v(P+4*g,4)}, v51, {s(RW,4)}, {s(T[6])} offen offset:{16*g}")
        self.stamp('kv_st')
        self.toeplitz_write()
        slow, back, done = k.label(), k.label(), k.label()
        k.wait(xh)
        k(f"v_cmp_ne_u32 vcc, {s(T[0])}, v53\ns_cbranch_vccnz {slow}")
        k.place(back)
        self.tail.append([f"{slow}:",
            f"buffer_load_dword v53, v52, {s(RW,4)}, {s(T[7])} offen sc1", "s_waitcnt vmcnt(0)",
            f"v_xor_b32 v54, {s(sN)}, v53", "v_cmp_lt_u32 vcc, 15, v54", f"s_cbranch_vccz {done}",
            f"s_sub_u32 {s(sSPIN)}, {s(sSPIN)}, 1", f"s_cbranch_scc0 {slow}", "s_branch L_END",
            f"{done}:", f"v_cmp_ne_u32 vcc, {s(T[0])}, v53", f"s_cbranch_vccz {back}",
            f"s_mov_b32 {s(sMODE)}, 1", f"s_not_b32 {s(sEXP)}, {s(sN)}", f"s_branch {back}"])
        self.publish(st, s(T[5]))
        self.stamp('kv_pub')

    def toeplitz_write(self):
        k = self.k
        k.wait(self.h_tok)
        k(f"v_add_u32 v48, {SCR}, v29")
        for ch in range(2):
            k(f"ds_write_b128 v48, {v(32+8*ch,4)} offset:{H_E(ch) - SCR}")
            k(f"ds_write_b128 v48, {v(36+8*ch,4)} offset:{H_O(ch) - SCR}")
        skip = k.label()
        k(f"s_cmp_lg_u32 {s(sW)}, 0\ns_cbranch_scc1 {skip}")
        k(f"""v_readfirstlane_b32 {s(T[1])}, v32
              v_readfirstlane_b32 {s(T[2])}, v40
              v_cmp_eq_u32 vcc, 28, {v(vP7)}
              v_add_u32 v49, {SCR}, {v(vP7)}
              s_lshl_b32 {s(T[1])}, {s(T[1])}, 16
              s_lshl_b32 {s(T[2])}, {s(T[2])}, 16
              v_mov_b32 v50, 0
              v_mov_b32 v51, 0
              v_mov_b32 v54, {s(T[1])}
              v_mov_b32 v55, {s(T[2])}
              v_cndmask_b32 v54, v50, v54, vcc
              v_cndmask_b32 v55, v50, v55, vcc
              ds_write_b32 v49, v50 offset:{H_E(0) - 32 - SCR}
              ds_write_b32 v49, v50 offset:{H_E(1) - 32 - SCR}
              ds_write_b32 v49, v54 offset:{H_O(0) - 32 - SCR}
              ds_write_b32 v49, v55 offset:{H_O(1) - 32 - SCR}
              v_lshlrev_b32 v49, 3, {v(vL)}
              v_add_u32 v49, {L_U}, v49
              ds_write_b64 v49, v[50:51]
              ds_write_b64 v49, v[50:51] offset:{U_S}""")
        k.place(skip)

    YA = 146
    def front_addr(self):
        k = self.k; o = self.o; Y = self.YA; yfs = o.get('yfs', 4)
        k(f"""v_and_b32 v24, 15, {v(vL)}
              v_lshrrev_b32 v25, 4, {v(vL)}
              v_lshlrev_b32 v5, 3, v25
              v_sub_u32 v26, v24, v5
              v_add_u32 v26, 9, v26
              v_and_b32 v5, 1, v26
              v_sub_u32 v26, v26, v5
              v_lshlrev_b32 v26, 1, v26
              v_mul_u32_u24 v5, {H_O(0) - H_E(0)}, v5
              v_add_u32 v26, v26, v5
              s_lshr_b32 {s(T[0])}, {s(sW)}, 1
              s_mul_i32 {s(T[2])}, {s(T[0])}, {H_E(1) - H_E(0)}
              s_and_b32 {s(T[1])}, {s(sW)}, 1
              s_lshl_b32 {s(T[3])}, {s(T[1])}, 8
              s_add_u32 {s(T[2])}, {s(T[2])}, {s(T[3])}
              s_add_u32 {s(T[2])}, {s(T[2])}, {H_E(0)}
              v_add_u32 v152, {s(T[2])}, v26
              s_mul_i32 {s(T[4])}, {s(T[0])}, {U_S}
              s_add_u32 {s(T[4])}, {s(T[4])}, {L_U + 512}
              s_lshl_b32 {s(T[2])}, {s(T[1])}, 11
              s_add_u32 {s(sUm0)}, {s(T[4])}, {s(T[2])}
              s_sub_u32 {s(T[4])}, {s(T[4])}, {s(T[3])}
              s_sub_u32 {s(T[4])}, {s(T[4])}, 224
              v_lshlrev_b32 v140, 5, v24
              v_lshl_add_u32 v140, v25, 4, v140
              v_add_u32 v140, {s(T[4])}, v140
              s_lshl_b32 {s(T[0])}, {s(sX)}, 9
              s_lshr_b32 {s(T[1])}, {s(sJ)}, 3
              s_lshl_b32 {s(T[1])}, {s(T[1])}, 7
              s_add_u32 {s(T[1])}, {s(T[0])}, {s(T[1])}
              s_add_u32 {s(sKVFp)}, {s(T[1])}, {WS_KVF}
              s_lshl_b32 {s(T[1])}, {s(sJ)}, 4
              s_add_u32 {s(T[0])}, {s(T[0])}, {s(T[1])}
              s_add_u32 {s(sYld)}, {s(T[0])}, {WS_YP}
              s_lshl_b32 {s(T[0])}, {s(sX)}, 18
              s_lshl_b32 {s(T[1])}, {s(sJ)}, 13
              s_add_u32 {s(T[0])}, {s(T[0])}, {s(T[1])}
              s_lshl_b32 {s(T[2])}, {s(sW)}, 11
              s_add_u32 {s(T[1])}, {s(T[0])}, {s(T[2])}
              s_add_u32 {s(sKVs)}, {s(T[1])}, {WS_KVT}
              s_lshl_b32 {s(T[2])}, {s(sW)}, 10
              s_add_u32 {s(T[1])}, {s(T[0])}, {s(T[2])}
              s_add_u32 {s(sYst)}, {s(T[1])}, {WS_YP}
              v_lshlrev_b32 v141, 5, v24
              v_lshrrev_b32 v5, 1, v25
              v_lshl_add_u32 v141, v5, 4, v141
              v_and_b32 v5, 1, v25
              v_xor_b32 v5, 1, v5
              v_lshl_add_u32 v141, v5, 3, v141
              s_lshl_b32 {s(T[0])}, {s(sW)}, 9
              s_add_u32 {s(T[1])}, {s(T[0])}, {L_U + 512}
              v_add_u32 v141, {s(T[1])}, v141
              s_add_u32 {s(T[1])}, {s(T[2])}, {L_YT}
              v_add_u32 {v(Y+3)}, {s(T[1])}, {v(vL16)}
              s_lshl_b32 {s(T[0])}, {s(sW)}, 12
              s_add_u32 {s(T[0])}, {s(T[0])}, {L_CRED}
              v_add_u32 v142, {s(T[0])}, {v(vL16)}
              s_add_u32 {s(T[0])}, {s(T[2])}, {L_CRED}
              v_add_u32 v143, {s(T[0])}, {v(vL16)}
              v_lshlrev_b32 v144, 6, v24
              v_lshl_add_u32 v144, v25, 4, v144
              v_add_u32 v145, 4096, v144
              s_lshl_b32 {s(T[0])}, {s(sX)}, 5
              s_add_u32 {s(T[0])}, {s(T[0])}, {s(sJ)}
              s_lshl_b32 {s(T[0])}, {s(T[0])}, 2
              s_add_u32 {s(T[0])}, {s(T[0])}, {s(T[2])}
              s_mul_i32 {s(T[0])}, {s(T[0])}, {yfs//4}
              s_add_u32 {s(sYFs)}, {s(T[0])}, {WS_YF}
              v_lshlrev_b32 {v(Y+2)}, 2, v0
              v_mul_u32_u24 {v(Y)}, {yfs}, v0
              s_lshr_b32 {s(T[0])}, {s(sX)}, 1
              s_mul_i32 {s(T[0])}, {s(T[0])}, {256*yfs}
              s_add_u32 {s(sYFp)}, {s(T[0])}, {WS_YF}
              v_lshlrev_b32 {v(Y+1)}, 13, v0
              v_add_u32 {v(Y+2)}, {L_YT}, {v(Y+2)}""")
        for p in range(1, 8): k(f"v_add_u32 {v(152+p)}, {512*p}, v152")

    def conv_finish(self, h, C, pk):
        KV, P = 32, 160 + 16*h
        W = [f"ds_write_b128 v142, {v(C + 16*h + 4*c, 4)} offset:{16384*h + 1024*c}" for c in range(4)]
        R = [f"ds_read_b64 {v(KV + 4*h + 2*ch, 2)}, v141 offset:{2048*h + ch*U_S}" for ch in range(2)]
        R2 = [f"ds_read_b128 {v(P + 4*w, 4)}, v143 offset:{16384*h + 4096*w}" for w in range(4)]
        L = []
        for ch in range(2):
            if pk: L += [f"v_pk_add_f32 {v(P+8*ch+e,2)}, {v(P+8*ch+e,2)}, {v(P+8*ch+4+e,2)}" for e in (0, 2)]
            else: L += [f"v_add_f32 {v(P+8*ch+e)}, {v(P+8*ch+e)}, {v(P+8*ch+4+e)}" for e in range(4)]
        D = [f"v_dot2_f32_bf16 {v(P+8*ch+e)}, {v(KV+4*h+2*ch+(1-(e>>1)))}, {s(sD+2*ch+(1-(e&1)))}, {v(P+8*ch+e)}" for e in range(4) for ch in range(2)]
        E = [f"v_cvt_pk_bf16_f32 {v(P+4+e)}, {v(P+e)}, {v(P+8+e)}" for e in range(4)]
        E.append(f"buffer_store_dwordx4 {v(P+4,4)}, {v(144+h)}, {s(RW,4)}, {s(sYst)} offen sc1")
        return W, R, R2, L, D, E

    def conv(self):
        k = self.k; o = self.o; Y = self.YA
        def tz(rr, p):
            d = (rr*8 + p)*4
            return [f"ds_read2_b32 {a(d,2)}, {v(152+p)} offset0:{16*rr} offset1:{16*rr+1}",
                    f"ds_read2_b32 {a(d+2,2)}, {v(152+p)} offset0:{16*rr+2} offset1:{16*rr+3}"]
        first = [x for rr in range(4) for p in range(4) for x in tz(rr, p)]
        second = [x for rr in range(4) for p in range(4, 8) for x in tz(rr, p)]
        k.wait_lg0()
        k("s_barrier")
        n0 = o.get('toep0', 20)
        ph = self.poll_issue(vP31, s(sKVFp))
        for x in first[:n0]: k(x)
        self.stamp('toep')
        self.poll_check(ph)
        self.stamp('kv_seen')
        k(f"s_mov_b32 m0, {s(sUm0)}")
        k(f"buffer_load_dwordx4 {v(vL16)}, {s(RW,4)}, {s(sKVs)} offen sc1 lds")
        tok = k(f"buffer_load_dwordx4 {v(vL16)}, {s(RW,4)}, {s(sKVs)} offen offset:1024 sc1 lds")
        for x in first[n0:]: k(x)
        k.wait(tok)
        k("s_barrier")
        self.stamp('u_in')
        B, C = 64, 96
        uses = [(0, rr, q) for rr in range(4) for q in range(4)] + [(1, rr, q) for rr in range(4) for q in range(8)]
        bt = {}
        def rdB(i):
            part, rr, q = uses[i]
            bt[i] = k(f"ds_read_b128 {v(B + 4*(i % 8), 4)}, v140 offset:{512*q + 64*(3-rr)}")
        for i in range(8): rdB(i)
        pre = []
        if o.get('jpos', 0) == 0: self.wd_job_issue()
        if not o.get('joint', 1): self.q_load()
        tq = Queue(k, [Item(x) for x in second]); tits = list(tq.q)
        n2 = o.get('n2', 11); dq = []
        for i in range(n2):
            if self.w1_next >= 14: break
            n = self.w1_next; self.w1_next += 1
            for x in self.w1_dma_text(n): dq.append(Item(x, at=o.get('n2at', 2) + i*(o.get('n2span', 130) // n2), tag=n))
        dits = list(dq); dq = Queue(k, dq)
        side = Queue(k, []); ybox = []
        m = 0; started = set()
        for i, (part, rr, q) in enumerate(uses):
            need = []
            if part == 1 and q == 0:
                while any(x.tok is None for x in tits[:8*rr + 8]): tq.emit(tq.q[0])
                need = [tits[8*rr + 7].tok]
            if part == 1 and rr == 0 and q == 0:
                W, R, R2, L, D, E = self.conv_finish(0, C, False)
                its = [Item(x, cost=2, at=m + 3 + 2*n) for n, x in enumerate(W)] + [Item(x) for x in R]
                its += [Item(fn=lambda: k.wait_lg0(), at=m + 16), Item(fn=lambda: k("s_barrier"))]
                its += [Item(x) for x in R2]; lastr = its[-1]
                its += [Item(fn=lambda: k.wait(lastr.tok), at=m + 26)] + [Item(x) for x in L]
                its += [Item(fn=lambda: [k(x) for x in D], cost=2)] + [Item(x) for x in E]
                ysA = its[-1]
                if not o.get('joint', 1): its += [Item(fn=lambda: k.wait(ysA.tok), at=o.get('ya_pub', 118)), Item(fn=lambda: self.flag_store(s(sYFs), 0, False))]
                side = Queue(k, its)
            if i % 2 == 0: k.wait(bt[i + 1], *need)
            ps = range(4 - q) if part == 0 else range(max(0, 4 - q), 8 - q)
            for n, p in enumerate(ps):
                c = C + 4*(p + q)
                src = v(c, 4) if (p + q) in started else '0'
                started.add(p + q)
                k(f"v_mfma_f32_16x16x32_bf16 {v(c,4)}, {a((rr*8+p)*4,4)}, {v(B + 4*(i % 8),4)}, {src}")
                m += 1
                cap = 2
                if n == len(ps) - 1: cap -= (1 if i + 8 < len(uses) else 0) + (i % 2)
                cap = side.fill(cap, m)
                cap = dq.fill(cap, m)
                tq.fill(min(cap, 1))
            if i + 8 < len(uses): rdB(i + 8)
        print('conv left:', side.cost(), dq.cost())
        dq.drain()
        for x in dits: self.w1_tok[x.tag] = x.tok
        self.stamp('conv_mfma')
        W, R, R2, L, D, E = self.conv_finish(1, C, True)
        for x in R + W: k(x)
        side.drain()
        k.wait_lg0()
        k("s_barrier")
        for x in R2: k(x)
        if not o.get('joint', 1): pa = self.poll_issue(Y, s(sYFp))
        k.wait_lg0()
        self.ysB = self.run(L + D + E)[-1].tok
        self.stamp('y_st')
        if not o.get('joint', 1):
            self.poll_check(pa, False)
            self.stamp('y_seen')

    def y_joint(self):
        k = self.k; o = self.o; Y = self.YA
        self.wd_job_finish()
        self.persistent()
        self.publish(self.ysB, s(sYFs), local=False)
        self.stamp('y_pub')
        self.publish(self.job_st, s(sJF), local=False)
        k("s_barrier")
        done0 = self.w1_next >= 14
        self.q_load()
        self.w1_dma(o.get('n3', 4))
        self.w1_relayout_addr()
        self.wd_addr()
        k(f"s_add_u32 {s(T[8])}, {s(sYld)}, 4096")
        if done0: self.w1_relayout(0)
        self.q_stats()
        k(f"s_mul_i32 {s(sAG[0])}, {s(sW)}, 1088\ns_add_u32 {s(sAG[0])}, {s(sAG[0])}, {L_AG2}\ns_lshl_b32 {s(sAG[1])}, {s(sW)}, 8\ns_add_u32 {s(sAG[1])}, {s(sAG[1])}, {L_AG2}")
        self.run(self.ag_addr(100))
        self.stamp('rl0')
        self.poll(Y, s(sYFp), local=False)
        self.stamp('y_seen')
        t0 = k(f"buffer_load_dwordx4 v[32:35], {v(Y+1)}, {s(RW,4)}, {s(sYld)} offen sc1")
        t1 = k(f"buffer_load_dwordx4 v[36:39], {v(Y+1)}, {s(RW,4)}, {s(T[8])} offen sc1")
        pj = self.poll_issue(226, s(sJFp), 0, 229)
        self.w1_dma(o.get('n4', 6))
        if o.get('tch_h', 0) == 1: k(self.touch_h_text())
        if not done0 and self.w1_next >= 14: self.w1_relayout(0); done0 = True
        k.wait(t0)
        for e in range(4): k(f"ds_write_b32 {v(Y+2)}, {v(32+e)} offset:{1024*e}")
        k.wait(t1)
        for e in range(4): k(f"ds_write_b32 {v(Y+2)}, {v(36+e)} offset:{1024*(4+e)}")
        k.wait_lg0()
        k("s_barrier")
        for h in range(2): k(f"ds_read_b128 {v(YS[h],4)}, {v(Y+3)} offset:{4096*h}")
        k.wait_lg0()
        self.stamp('y_in')
        its = self.run(self.gate_norm([0, 1], self.N0, 0, 56))
        sts = self.a_out([0, 1], 56) if o.get('ag', 1) else [x.tok for x in its if 'store' in x.text]
        self.stamp('a_st')
        self.poll_check(pj, False)
        if done0: self.gemm1_start(0)
        self.publish(sts[0], s(sAFs), 0)
        self.publish(sts[1], s(sAFs), 512)
        k(f"s_or_b32 {s(T[0])}, s2, {s(sW)}\ns_cmp_eq_u32 {s(T[0])}, 0\ns_cselect_b32 {s(T[0])}, 0, 0x40000000")
        k(f"buffer_store_dword {v(vNON)}, {v(vL0)}, {s(RW,4)}, {s(T[0])} offen sc1")
        self.stamp('a_pub')
        self.rl1_done = bool(o.get('rl1_front', 0)); self.rowb_done = True
        self.wd0 = o.get('wd0', 0)
        for n in range(self.wd0): k(self.wd_text(n))
        self.w1_dma(28 if self.rl1_done else o.get('n5', 4))
        if self.w1_next < 28:
            for i in range(7): k(f"v_mov_b32 {v(126+i)}, {v(self.W1V+i)}")
            self.W1V = 126
        if not done0: self.w1_relayout(0)
        if self.rl1_done: self.w1_relayout(1)
        if self.rl1_done or not done0: k.wait_lg0(); k("s_barrier")
        if not done0: self.gemm1_start(0)

    def stats(self, rows, out, t0, scale=None):
        L = []; n = len(rows)
        for i, x in enumerate(rows):
            b = t0 + 6*i
            L += [f"v_pk_add_f32 {v(b,2)}, {v(x,2)}, {v(x+2,2)}", f"v_pk_mul_f32 {v(b+2,2)}, {v(x,2)}, {v(x,2)}",
                  f"v_pk_add_f32 {v(b+4,2)}, {v(x+4,2)}, {v(x+6,2)}"]
            L += [f"v_pk_fma_f32 {v(b+2,2)}, {v(x+e,2)}, {v(x+e,2)}, {v(b+2,2)}" for e in (2, 4, 6)]
            L += [f"v_pk_add_f32 {v(b,2)}, {v(b,2)}, {v(b+4,2)}", f"v_add_f32 {v(b+2)}, {v(b+2)}, {v(b+3)}", f"v_add_f32 {v(b)}, {v(b)}, {v(b+1)}"]
        for ctl in ("row_ror:8 row_mask:0xf", "row_ror:4 row_mask:0xf", "row_ror:2 row_mask:0xf", "row_ror:1 row_mask:0xf",
                    "row_bcast:15 row_mask:0xa", "row_bcast:31 row_mask:0xc"):
            for i in range(n):
                for e in (2, 0):
                    r = t0 + 6*i + e
                    L.append(f"v_add_f32_dpp {v(r)}, {v(r)}, {v(r)} {ctl} bank_mask:0xf")
        for i in range(n):
            b = t0 + 6*i
            L += [f"v_mul_f32 {v(b)}, 0x3b000000, {v(b)}", f"v_mul_f32 {v(b+2)}, 0x3b000000, {v(b+2)}",
                  f"v_fma_f32 {v(b+2)}, -{v(b)}, {v(b)}, {v(b+2)}", f"v_max_f32 {v(b+2)}, 0, {v(b+2)}",
                  f"v_add_f32 {v(b+2)}, 0x3727c5ac, {v(b+2)}", f"v_rsq_f32 {v(b+2)}, {v(b+2)}"]
            if scale: L.append(f"v_mul_f32 {v(b+2)}, {f32(scale)}, {v(b+2)}")
            L += [f"v_mul_f32_e64 {v(b)}, -{v(b)}, {v(b+2)}", f"v_readlane_b32 {s(out[i])}, {v(b+2)}, 63",
                  f"v_readlane_b32 {s(out[i]+2)}, {v(b)}, 63", f"s_mov_b32 {s(out[i]+1)}, {s(out[i])}",
                  f"v_mov_b32 {v(b+4)}, {s(out[i]+2)}", f"v_mov_b32 {v(b+5)}, {s(out[i]+2)}"]
        return L
    def unpack(self, dst, src):
        L = []
        for e in range(4): L += [f"v_lshlrev_b32 {v(dst+2*e)}, 16, {v(src+e)}", f"v_and_b32 {v(dst+2*e+1)}, 0xffff0000, {v(src+e)}"]
        return L
    def affine(self, dst, x, sp, vb):
        return [f"v_pk_fma_f32 {v(dst+e,2)}, {v(x+e,2)}, {s(sp,2)}, {v(vb,2)}" for e in (0, 2, 4, 6)]
    def run(self, L, look=12):
        its = [Item(x) for x in L]
        Queue(self.k, its, look).drain()
        return its

    def gate_norm(self, halves, nrm, layer, R):
        L = []; sp = [36, 40]
        t0 = R + 16*len(halves)
        for i, h in enumerate(halves):
            L += self.unpack(R + 16*i, YS[h])
            L += [f"v_pk_fma_f32 {v(XS[h]+e,2)}, {v(nrm[h]+e,2)}, {v(R+16*i+e,2)}, {v(XS[h]+e,2)}" for e in (0, 2, 4, 6)]
        L += self.stats([XS[h] for h in halves], sp[:len(halves)], t0, LOG2E)
        for i, h in enumerate(halves):
            b = R + 16*i
            L += self.affine(b, XS[h], sp[i], t0 + 6*i + 4)
            L += [f"v_cvt_pk_bf16_f32 {v(b+8+e)}, {v(b+2*e)}, {v(b+2*e+1)}" for e in range(4)]
            if self.o.get('ag', 1): L.append(f"ds_write_b128 {v(self.agw)}, {v(b+8,4)} offset:{L_AG - L_AG2 if i == 0 else 0}")
            else: L.append(f"buffer_store_dwordx4 {v(b+8,4)}, {v(vAst)}, {s(RW,4)}, {s(sHALF) if h else 0} offen")
            if layer == 1:
                L += [f"v_cvt_pk_bf16_f32 {v(b+12+e)}, {v(XS[h]+2*e)}, {v(XS[h]+2*e+1)}" for e in range(4)]
                L.append(f"buffer_store_dwordx4 {v(b+12,4)}, {v(vFr)}, {s(RW,4)}, {s(sFR[h])} offen{self.o.get('x3m', '')}")
        return L

    def ag_addr(self, r):
        if not self.o.get('ag', 1): return []
        self.agw, self.agr = r, r + 1
        return [f"v_bfe_u32 {v(r+1)}, {v(vL16)}, 4, 2", f"v_mul_u32_u24 {v(r+1)}, 1088, {v(r+1)}", f"v_lshrrev_b32 {v(r)}, 6, {v(vL16)}",
                f"v_lshl_add_u32 {v(r+1)}, {v(r)}, 4, {v(r+1)}", f"v_add_u32 {v(r+1)}, {s(sAG[1])}, {v(r+1)}", f"v_add_u32 {v(r)}, {s(sAG[0])}, {v(vL16)}"]
    def a_out(self, halves, R, between=None):
        k = self.k
        if between: between()
        k.wait_lg0(); k("s_barrier")
        t = [k(f"ds_read_b128 {v(R + 4*i, 4)}, {v(self.agr)} offset:{L_AG - L_AG2 if i == 0 else 0}") for i in range(len(halves))]
        out = []
        for i, h in enumerate(halves):
            k.wait(t[i])
            out.append(k(f"buffer_store_dwordx4 {v(R + 4*i, 4)}, {v(vAst)}, {s(RW,4)}, {s(sHALF) if h else 0} offen"))
        return out

    N0 = [40, 118]
    def q_stats(self):
        k = self.k
        k.wait(self.q_tok)
        L = []
        for h in range(2): L += self.unpack(XS[h], 204 + 4*h)
        L += self.stats(XS, [36, 40], 128)
        for h in range(2): L += self.affine(self.N0[h], XS[h], [36, 40][h], 128 + 6*h + 4)
        self.run(L)

    def y_row(self, h, t, raw):
        k = self.k; Y = self.YA
        k.wait(t)
        for e in range(4): k(f"ds_write_b32 {v(Y+2)}, {v(raw+e)} offset:{4096*h + 1024*e}")
        k.wait_lg0()
        k("s_barrier")
        k(f"ds_read_b128 {v(YS[h],4)}, {v(Y+3)} offset:{4096*h}")
        k.wait_lg0()

    def y_in(self):
        k = self.k; o = self.o; Y = self.YA
        t0 = k(f"buffer_load_dwordx4 v[32:35], {v(Y+1)}, {s(RW,4)}, {s(sYld)} offen sc1")
        k(f"s_add_u32 {s(sYFs)}, {s(sYFs)}, {1024*o.get('yfs', 4)}\ns_add_u32 {s(sYFp)}, {s(sYFp)}, {1024*o.get('yfs', 4)}\ns_add_u32 {s(sYld)}, {s(sYld)}, 4096")
        self.publish(self.ysB, s(sYFs), local=False)
        self.stamp('y_pub')
        if o.get('jpos', 0) == 0: self.wd_job_finish()
        self.q_stats()
        self.persistent()
        k("s_barrier")
        self.w1_dma(o.get('n4', 6))
        self.y_row(0, t0, 32)
        self.stamp('y_in')
        its = self.run(self.gate_norm([0], self.N0, 0, 56))
        st = [x.tok for x in its if 'store' in x.text][0]
        self.stamp('a_st')
        for i in range(4): k(f"v_mov_b32 {v(110+i)}, {v(Y+i)}")
        self.YA = 110
        if self.w1_next + o.get('n5', 28) < 28:
            for i in range(7): k(f"v_mov_b32 {v(126+i)}, {v(self.W1V+i)}")
            self.W1V = 126
        self.w1_relayout_addr()
        self.publish(st, s(sAFs), 0)
        self.flag_store(s(sJF), 0, False)
        k(f"s_or_b32 {s(T[0])}, s2, {s(sW)}\ns_cmp_eq_u32 {s(T[0])}, 0\ns_cselect_b32 {s(T[0])}, 0, 0x40000000")
        k(f"buffer_store_dword {v(vNON)}, {v(vL0)}, {s(RW,4)}, {s(T[0])} offen sc1")
        self.stamp('a_pub')
        self.w1_dma(o.get('n5', 28))
        self.w1_relayout(0)
        self.wd_addr()
        self.rl1_done = bool(o.get('rl1_front', 1))
        if self.rl1_done:
            if o.get('rowb_front', 1): self.row_b0()
            self.w1_relayout(1)
        k.wait_lg0(); k("s_barrier")
        self.stamp('w1')
        self.gemm1_start(0)

    def row_b0(self, h0=None):
        k = self.k; Y = self.YA
        if h0 is None:
            self.poll(Y, s(sYFp), local=False)
            h0 = k(f"buffer_load_dwordx4 v[106:109], {v(Y+1)}, {s(RW,4)}, {s(sYld)} offen sc1")
        self.y_row(1, h0, 106)
        its = self.run(self.gate_norm([1], self.N0, 0, ACC[1]))
        self.aB_tok = [x.tok for x in its if 'store' in x.text][0]
        self.rowb_done = True
        if self.o.get('rowb_front', 1) and self.rl1_done: self.publish(self.aB_tok, s(sAFs), 512)

    def epilogue1(self, B, half, off, pk, sc=''):
        L = []; so = s(sHH) if half else '0'
        def grp(g, u, n, outs, t):
            for e in range(n): L.append(f"v_exp_f32_e64 {v(t+e)}, -{v(g+e)}")
            if pk:
                for e in range(0, n, 2): L.append(f"v_pk_mul_f32 {v(u+e,2)}, {v(g+e,2)}, {v(u+e,2)}")
                for e in range(0, n, 2): L.append(f"v_pk_fma_f32 {v(t+e,2)}, {v(t+e,2)}, {s(sC2,2)}, {s(sC2,2)}")
            else:
                for e in range(n): L.append(f"v_mul_f32 {v(u+e)}, {v(g+e)}, {v(u+e)}")
                for e in range(n): L.append(f"v_fma_f32 {v(t+e)}, {v(t+e)}, {s(sC2)}, {s(sC2)}")
            for e in range(n): L.append(f"v_rcp_f32 {v(t+e)}, {v(t+e)}")
            if pk:
                for e in range(0, n, 2): L.append(f"v_pk_mul_f32 {v(u+e,2)}, {v(u+e,2)}, {v(t+e,2)}")
            else:
                for e in range(n): L.append(f"v_mul_f32 {v(u+e)}, {v(u+e)}, {v(t+e)}")
            for e in range(0, n, 2): L.append(f"v_cvt_pk_bf16_f32 {v(outs[e//2])}, {v(u+e)}, {v(u+e+1)}")
        grp(B, B+4, 4, [B, B+1], TMP)
        grp(B+8, B+12, 4, [B+2, B+3], TMP+4)
        L.append(f"buffer_store_dwordx4 {v(B,4)}, {v(vHm)}, {s(RW,4)}, {so} offen offset:{off}{sc}")
        grp(B+16, B+20, 4, [B+8, B+9], TMP)
        grp(B+24, B+26, 2, [B+10], TMP+4)
        Z, C, A_ = B+4, B+5, B+6
        L += [f"v_mov_b32 {v(C)}, {v(B+8)}", f"v_mov_b32 {v(A_)}, {v(B+9)}", f"v_mov_b32 {v(Z)}, {v(B+10)}",
              f"v_permlane32_swap_b32 {v(A_)}, {v(B+11)}", f"v_permlane32_swap_b32 {v(C)}, {v(Z)}",
              f"v_permlane16_swap_b32 {v(Z)}, {v(B+11)}",
              f"buffer_store_dwordx4 {v(B+8,4)}, {v(vHt)}, {s(RW,4)}, {so} offen offset:{off}{sc}"]
        return L

    def a_plan(self, layer):
        n = self.o.get('ring0', 8) if layer == 0 else self.o.get('ring1', 4)
        ring = ([('v', AR + 8*i) for i in range(4)] + [('a', 224 + 8*i) for i in range(4)])[:n]
        reg = {gs: ring[gs % n] for gs in range(32)}
        issue = {}
        for gs in range(32):
            prev = [p for p in range(gs) if reg[p] == reg[gs]]
            issue[gs] = prev[-1] + 1 if prev else -1
        return reg, issue

    def gemm1_start(self, layer):
        k = self.k
        self.wt, self.at = {}, {}
        self.areg, self.aiss = self.a_plan(layer)
        for Tt in range(7): self.rdW(0, Tt)
    def rdW(self, gs, Tt):
        st = gs % 16
        base, o = (vL16, st*7168) if st < 8 else (vW1, (st-8)*7168)
        self.wt[(gs, Tt)] = self.k(f"ds_read_b128 {v(WF + 28*(gs&1) + 4*Tt, 4)}, {v(base)} offset:{o + 1024*Tt}")
    def afrag(self, gs, mt):
        kind, b = self.areg[gs]
        return (v if kind == 'v' else a)(b + 4*mt, 4)
    def ldA(self, gs, mt):
        st = gs % 16
        self.at[(gs, mt)] = self.k(f"buffer_load_dwordx4 {self.afrag(gs, mt)}, {v(vAld[gs // 16])}, {s(RW,4)}, {k4(st>>1)} offen offset:{((st&1)*2+mt)*1024} sc1")

    def gemm1(self, layer):
        k = self.k; o = self.o
        lo = 1024*layer
        if layer: self.poll_check(self.a_poll)
        else: self.poll(vP31, s(sAFp), lo)
        self.stamp(f'a_seen{layer}')
        todo = sorted(range(32), key=lambda g: g)
        nxtA = 0
        while self.aiss[nxtA] < 0 and nxtA < o.get('a_init', 5):
            for mt in range(2): self.ldA(nxtA, mt)
            nxtA += 1
        w1q = []
        if layer == 0:
            if o.get('w1_spread', 1):
                n0 = self.w1_next
                for n in range(n0, 28):
                    for x in self.w1_dma_text(n): w1q.append(Item(x, at=int(14*o.get('w1_spread', 1)*(n - n0)/(28 - n0)), tag=n))
                self.w1_next = 28
            else: self.w1_dma(28)
        firstB = max(min(self.aiss[g] for g in range(16, 32)), o.get('firstB', 0) if layer else 0)
        queues = []
        if layer == 0:
            burst = None
            if getattr(self, 'rowb_done', False):
                queues.append(Queue(k, self.poll_items(vP31, s(sAFp), lo + 512, 14*2, 14*(firstB - 2))))
            else:
                burst = o.get('rowb0_at', 3); box = []
                its = [Item(fn=lambda: box.append(self.poll_issue(self.YA, s(sYFp))))] + [Item(fn=f, at=14*(burst - 2)) for f in self.poll_steps(lambda: box[0], False)]
                fld = Item(f"buffer_load_dwordx4 v[106:109], {v(self.YA+1)}, {s(RW,4)}, {s(sYld)} offen sc1"); its.append(fld)
                queues.append(Queue(k, its))
                firstB = max(firstB, o.get('firstB0', 12))
            rl = self.w1_relayout_items(1) if not self.rl1_done else []
            for x in rl: x.at = 14*o.get('rl1_at', 3)
            if w1q:
                def note():
                    for x in w1q: self.w1_tok[x.tag] = x.tok
                rl = w1q + [Item(fn=note, cost=0)] + rl
            rlq = Queue(k, rl); queues.append(rlq)
            t0 = o.get('wd_t0', 3); t1 = o.get('wd_t1', 31)
            wd = [Item(self.wd_text(n), at=int(14*(t0 + (t1 - t0)*n/56))) for n in range(getattr(self, 'wd0', 0), o.get('wd_n', 56))]
            jb = []
            pj = [Item(fn=lambda: jb.append(self.poll_issue(226, s(sJFp), 0, 229)))] + [Item(fn=f, at=14*t0 - 4) for f in self.poll_steps(lambda: jb[0], False)]
            if o.get('joint', 1): pj = []
            if o.get('tch_h', 0) == 2: pj = [Item(self.touch_h_text(), at=14*o.get('tch_at', 0))]
            wdq = Queue(k, pj + wd, 1); queues.append(wdq)
        else:
            box = []
            s0 = o.get('rowb_at', 6)
            its = self.publish_items(lambda: self.fB, s(sFFs), 512, o.get('fb_pub', 0)) + self.poll_items(vP7, s(sFFp), 512, 14*s0 - o.get('fb_pi', 56), 14*s0 - o.get('fb_pc', 36))
            fld = Item(f"buffer_load_dwordx4 {v(ACC[1],4)}, {v(vFr)}, {s(RW,4)}, {s(sFR[1])} offen sc1"); its.append(fld)
            queues.append(Queue(k, its))
            burst = s0
        epi = None; hbox = []
        ho = lambda half, mt: 2048*layer + 1024*half + 512*mt
        hsc = [' sc1' if o.get('hsc', 15) >> (2*layer + h) & 1 else '' for h in range(2)]
        for gs in range(32):
            ps, st = divmod(gs, 16)
            if gs == burst:
                queues[0].drain(); k.wait(fld.tok)
                self.stamp('rowB_go')
                if layer: sts = self.rowop(1, ACC[1])
                else: self.row_b0(fld.tok); sts = self.aB_tok
                self.stamp('rowB')
                queues[:1] = [Queue(k, self.publish_items(lambda: sts, s(sAFs), lo + 512, 14*gs + o.get('ab_pub', 36))
                                + self.poll_items(vP31, s(sAFp), lo + 512, 14*(firstB - 2) - 4, 14*firstB - 4))]
            if gs == firstB: queues[0].drain()
            if layer == 0 and gs == o.get('rl1_bar', 7) and not self.rl1_done:
                print('relayout left at step 7:', rlq.cost())
                rlq.drain(); k.wait_lg0(); k("s_barrier")
            if gs == 16:
                for q in queues[:2]: q.drain()
                xb = o.get('e0_burst', 1)
                e0 = [Item(x, at=14*16 + 4) for x in self.epilogue1(ACC[0], 0, 0, xb, hsc[0])]
                if xb: Queue(k, e0, 12).drain()
                e1 = [Item(x, at=14*16 + 4) for x in self.epilogue1(ACC[0] + 28, 0, 256, 0, hsc[0])]
                epi = ([] if xb else e0) + e1
                queues = [Queue(k, epi, 14), Queue(k, []), Queue(k, [])]
                if layer == 0: queues.append(wdq)
                pub = [False, False]; self.ht = {}; self.nxtH = 0
            if epi:
                dl = o.get('ha_pub', 50 if hsc[0] else 30)
                if not pub[0] and e0[-1].tok:
                    pub[0] = gs
                    queues[1].q += self.publish_items(lambda: e0[-1].tok, s(sHFs), ho(0, 0), 14*gs + dl)
                    t1_ = 14*gs + dl + o.get('ha_gap', 34)
                    queues[2].q += self.poll_items(vP7, s(sHFp), ho(0, 0), t1_, t1_ + o.get('ha_rtt', 22))
                    queues[2].q += [Item(fn=self.ldH, at=t1_ + o.get('ha_rtt', 22) + 4*n) for n in range(7)]
                if not pub[1] and e1[-1].tok:
                    pub[1] = gs
                    queues[1].q += self.publish_items(lambda: e1[-1].tok, s(sHFs), ho(0, 1), 14*gs + dl)
                    queues[2].q += [Item(fn=self.ldH, at=14*31 + 4*n) for n in range(o.get('ha_more', 7))]
            if gs in (2, 4, 8, 10, 12, 14, 20, 24, 28): self.stamp(f'g1_{layer}_{gs}')
            fixed = [[] for _ in range(14)]
            if gs + 1 < 32:
                for Tt in range(7): fixed[2*(Tt // 2)].append(('W', gs+1, Tt))
            slot = 6
            while nxtA < 32 and self.aiss[nxtA] <= gs and slot <= 10 and (nxtA < 16 or gs >= firstB):
                fixed[slot].append(('A', nxtA, 0)); fixed[slot+2].append(('A', nxtA, 1)); nxtA += 1; slot += 4
            k.wait(self.at[(gs, 1)], self.wt[(gs, 6)])
            for i in range(14):
                Tt, mt = divmod(i, 2)
                d = ACC[ps] + 28*mt + 4*Tt
                k(f"v_mfma_f32_16x16x32_bf16 {v(d,4)}, {v(WF + 28*(gs&1) + 4*Tt, 4)}, {self.afrag(gs, mt)}, {'0' if st == 0 else v(d,4)}")
                for it in fixed[i]:
                    if it[0] == 'W': self.rdW(it[1], it[2])
                    else: self.ldA(it[1], it[2])
                cap = 2 - len(fixed[i]) - (1 if i == 13 else 0)
                for q in (queues[::-1] if ps else queues): cap = q.fill(cap, 14*gs + i)
            if gs == 15: self.stamp(f'g1a{layer}'); self.late = layer == 1
        print('layer', layer, 'left after G1B:', [q.cost() for q in queues], 'stores done in steps', pub, 'h loads out', self.nxtH)
        queues[0].drain()
        if not pub[1]: queues[1].q += self.publish_items(lambda: e1[-1].tok, s(sHFs), ho(0, 1), 0)
        if layer == 0: wdq.drain(); self.wd_last = wd[-1].tok
        self.stamp(f'g1b{layer}')
        b0 = [Item(x) for x in self.epilogue1(ACC[1], 1, 0, 1, hsc[1])]
        b1 = [Item(x) for x in self.epilogue1(ACC[1] + 28, 1, 256, 1, hsc[1])]
        q = Queue(k, b0 + b1, 12)
        total = q.cost()
        side = [x for x in queues[2].q if x.fn != self.ldH]
        pubq = list(queues[1].q)
        ev = [(o.get('epi_pub', 0), lambda: Queue(k, pubq).drain()), (o.get('epi_lead', 10), lambda: Queue(k, side).drain())]
        gap = o.get('epi_gap', 20); t = o.get('epi_lead', 10)
        for n in range(self.nxtH, 14):
            ev.append((t, self.ldH)); t += gap
        box = []
        self.hA1_issue = lambda: box.append(self.poll_issue(vP7, s(sHFp), ho(0, 1)))
        if 'ha1_slot' not in o: ev.append((o.get('ha1_pi', 20), self.hA1_issue))
        ev.sort(key=lambda x: x[0])
        while len(q):
            while ev and total - q.cost() >= ev[0][0]: ev.pop(0)[1]()
            if q.fill(3) == 3: q.emit(q.q[0])
        for _, f in ev: f()
        self.hA1_box = box
        self.hB_tok = [b0[-1].tok, b1[-1].tok]
        self.hsc = hsc
        self.stamp(f'epiB{layer}')

    def g2_order(self):
        return [(half, U, mt) for half in range(2) for mt in range(2) for U in range(14)]
    def hreg(self, n):
        if n < 14: return ACC[0] + 4*n
        if n < 28: return WF + 4*(n - 14)
        if n < 42: return ACC[1] + 4*(n - 28)
        return ACC[0] + 4*(n - 42)
    def ldH(self, _=0):
        n = self.nxtH; self.nxtH += 1
        half, U, mt = self.g2_order()[n]
        self.ht[n] = self.k(f"buffer_load_dwordx4 {v(self.hreg(n),4)}, {v(vHld[half])}, {s(RW,4)}, {k4(U>>1)} offen offset:{(U&1)*2048 + mt*256} sc1")

    def red_write(self, A2):
        return [f"ds_write_b128 {v(vRw)}, {v(A2 + 16*mt + 4*nt, 4)} offset:{4352*mt + 64*nt}" for mt in range(2) for nt in range(4)]
    def red_read(self, P):
        return [f"ds_read_b128 {v(P + 8*w + 4*hf, 4)}, {v(vRr)} offset:{8704*w + 16*hf}" for w in range(4) for hf in range(2)]
    def red_sum(self, P, half, layer, X3, pk):
        L = []
        def add(d, x, y):
            if pk: L.extend(f"v_pk_add_f32 {v(d+e,2)}, {v(x+e,2)}, {v(y+e,2)}" for e in (0, 2, 4, 6))
            else: L.extend(f"v_add_f32 {v(d+e)}, {v(x+e)}, {v(y+e)}" for e in range(8))
        add(P, P, P+8); add(P+16, P+16, P+24)
        if layer == 1:
            L += self.unpack(P+8, X3); add(P, P, P+8)
        add(P, P, P+16)
        L += [f"v_cvt_pk_bf16_f32 {v(P+8+e)}, {v(P+2*e)}, {v(P+2*e+1)}" for e in range(4)]
        if layer == 0: L.append(f"buffer_store_dwordx4 {v(P+8,4)}, {v(vF2)}, {s(RW,4)}, {k4(half)} offen")
        else: L.append(f"buffer_store_dwordx4 {v(P+8,4)}, {v(vO)}, {s(RO,4)}, {s(sFH) if half else 0} offen{self.o.get('ost', ' sc1')}")
        return L

    def gemm2(self, layer):
        k = self.k; o = self.o
        lo = 1024*layer
        AC2 = [AR, WF]
        X3 = [TMP, TMP + 4]
        order = self.g2_order()
        LA = o.get('g2la', 20)
        xt = {}
        def ldX(h): xt[h] = k(f"buffer_load_dwordx4 {v(X3[h],4)}, {v(vF2)}, {s(RW,4)}, {k4(h)} offen sc1")
        ho = lambda half, mt: 2048*layer + 1024*half + 512*mt
        sl = self.hsc[1]
        gate = [14]
        def opened(n): return Item(fn=lambda: gate.__setitem__(0, n), cost=0)
        p0, p1 = o.get('hb_pub0', 21 if sl else 4), o.get('hb_pub1', 50 if sl else 20)
        g_, r_ = o.get('hb_gap', 28), o.get('hb_rtt', 25)
        side = Queue(k, self.publish_items(lambda: self.hB_tok[0], s(sHFs), ho(1, 0), p0)
                     + self.publish_items(lambda: self.hB_tok[1], s(sHFs), ho(1, 1), p1))
        side2 = Queue(k, ([Item(fn=self.hA1_issue, at=o['ha1_slot'])] if 'ha1_slot' in o else [])
                      + [Item(fn=f, at=o.get('ha1_pc', 0)) for f in self.poll_steps(lambda: self.hA1_box[0])] + [opened(28)]
                      + self.poll_items(vP7, s(sHFp), ho(1, 0), p0 + g_, p0 + g_ + r_) + [opened(42)]
                      + self.poll_items(vP7, s(sHFp), ho(1, 1), max(p1 + g_, p0 + g_ + r_ + 2), max(p1 + g_, p0 + g_ + r_ + 2) + r_) + [opened(56)])
        if layer == 0: k.wait(self.wd_last)
        fbox = []; seenB = False; wB = self.red_write(AC2[1]); doneB = 0
        def next_load():
            self.ldH()
            if layer == 1 and self.nxtH == 34: ldX(0)
            if layer == 1 and self.nxtH == 56:
                ldX(1)
                if o.get('wbl2', 0): self.writeback()
        for n in range(56):
            half, U, mt = order[n]
            if n == 28:
                self.stamp(f'g2a{layer}')
                side.drain()
                t = 4*28
                sp = o.get('ra_sp', 2)
                L = [Item(x, at=t + 3 + sp*i) for i, x in enumerate(self.red_write(AC2[0]))]
                L += [Item(fn=lambda: k.wait_lg0(), at=t + 8*sp + 3), Item(fn=lambda: k("s_barrier"))]
                L += [Item(x) for x in self.red_read(AR)]
                L += [Item(fn=lambda: k.wait_lg0(), at=t + 8*sp + o.get('ra_rd', 14)), Item(fn=lambda: k("s_barrier"))]
                if layer == 1: L += [Item(fn=lambda: k.wait(xt[0]))]
                L += [Item(x) for x in self.red_sum(AR, 0, layer, X3[0], 0)]
                fA = L[-1]
                if layer == 0:
                    L += self.publish_items(lambda: fA.tok, s(sFFs), 0, t + o.get('fa_pub', 66))
                    L += [Item(x, at=t + 60) for x in self.unpack(ACC[1] + 24, YS[0]) + self.ag_addr(ACC[1] + 52)]
                    L.append(Item(fn=lambda: fbox.append(self.poll_issue(vP7, s(sFFp), 0)), at=t + o.get('fa_pi', 86)))
                    if o.get('fa_in', 1):
                        L += [Item(fn=f, at=t + o.get('fa_pc', 104)) for f in self.poll_steps(lambda: fbox[0])]
                        fldi = Item(f"buffer_load_dwordx4 {v(ACC[1],4)}, {v(vFr)}, {s(RW,4)}, {s(sFR[0])} offen sc1"); L.append(fldi)
                if o.get('nored') and layer == 1: L = []
                side = Queue(k, L)
                last0 = max(i for i in range(28, 56) if order[i][2] == 0)
                late = Queue(k, [Item(x, at=4*(last0 + 1) + 3 + sp*i) for i, x in enumerate(wB[:4])])
            if n in (8, 16, 22, 36, 44, 50): self.stamp(f'g2_{layer}_{n}')
            for m in range(n, n + 2 - n % 2):
                while m not in self.ht:
                    while self.nxtH >= gate[0]:
                        if gate[0] > 14: side.drain() if n < 28 else None
                        side2.emit(side2.q[0])
                    next_load()
            if n % 2 == 0: k.wait(self.ht[n + 1])
            for nt in range(4):
                d = AC2[half] + 16*mt + 4*nt
                k(f"v_mfma_f32_16x16x32_bf16 {v(d,4)}, {a((4*U+nt)*4,4)}, {v(self.hreg(n),4)}, {'0' if U == 0 else v(d,4)}")
                cap = 2 - (1 if (nt == 3 and n % 2) else 0)
                if (nt == 0 or (nt == 2 and self.nxtH < n + 1 + o.get('g2min', 6))) and self.nxtH < min(gate[0], n + 1 + LA) and (self.nxtH < 42 or self.nxtH - 42 < n):
                    next_load(); cap -= 1
                cap = side2.fill(cap, 4*n + nt)
                cap = side.fill(cap, 4*n + nt)
                if n >= 28 and not any('ds_' in (x.text or '') or (x.fn and x.at <= t + 8*sp + 40) for x in side.q):
                    late.fill(cap, 4*n + nt)
        print('layer', layer, 'left after G2B:', side.cost(), late.cost())
        side.drain()
        wB = [x.text for x in late.q] + wB[4:]
        self.stamp(f'g2b{layer}')
        R = ACC[1]
        if layer == 0 and not o.get('fa_in', 1):
            self.poll_check(fbox[0])
            fld = k(f"buffer_load_dwordx4 {v(R,4)}, {v(vFr)}, {s(RW,4)}, {s(sFR[0])} offen sc1")
        elif layer == 0: fld = fldi.tok
        for x in wB: k(x)
        if layer == 0:
            k.wait(fld)
            self.stamp('fA_in')
            sts, rest = self.rowop(0, R, True)
            self.stamp('rowA')
            if o.get('apub_first', 2): self.run(rest)
            if o.get('apub_first', 2) == 1: self.publish(sts, s(sAFs), 1024)
        if not (layer == 0 and o.get('ag', 1)): k.wait_lg0(); k("s_barrier")
        for x in self.red_read(ACC[0]): k(x)
        if layer == 0 and o.get('apub_first', 2) == 2: self.publish(sts, s(sAFs), 1024)
        k.wait_lg0()
        if layer == 1: k.wait(xt[1])
        if layer == 0 and not o.get('apub_first', 2): self.publish(sts, s(sAFs), 1024)
        if layer == 0: self.a_poll = self.poll_issue(vP31, s(sAFp), 1024)
        self.fB = self.run(self.red_sum(ACC[0], 1, layer, X3[1], 1))[-1].tok
        self.stamp(f'fB_st{layer}')
        if layer == 0:
            self.gemm1_start(1)
            if not o.get('apub_first', 2): self.run(rest)

    def writeback(self):
        k = self.k
        a_, b_ = k.label(), k.label()
        k(f"s_or_b32 {s(T[2])}, {s(sJ)}, {s(sW)}\ns_cmp_lg_u32 {s(T[2])}, 0\ns_cbranch_scc1 {a_}")
        k("buffer_wbl2 sc1")
        k(f"s_branch {b_}"); k.place(a_)
        k.ins.append(I(f"buffer_load_dword {v(vPT)}, {v(vL0)}, {s(RW,4)}, 0 offen"))
        k.place(b_)

    def rowop(self, h, R, split=False):
        L = self.unpack(R + 8, R)
        L += [f"v_pk_add_f32 {v(XS[h]+e,2)}, {v(XS[h]+e,2)}, {v(R+8+e,2)}" for e in (0, 2, 4, 6)]
        L += self.stats([XS[h]], [36], R + 16)
        L += self.affine(R + 8, XS[h], 36, R + 20)
        G = self.gate_norm([h], {h: R + 8}, 1, R + 24)
        rest = []
        if split: G = G[8:]
        if self.o.get('ag', 1):
            self.run(L + G[:-5], 16)
            tok = self.a_out([h], R, lambda: self.run(G[-5:]))[0]
            return (tok, []) if split else tok
        if split: G, rest = G[:-5], G[-5:]
        its = self.run(L + G, 16)
        tok = [x.tok for x in its if 'store' in x.text][-1]
        return (tok, rest) if split else tok

    def build(self):
        k = self.k; o = self.o
        self.prologue()
        self.front_addr()
        self.touch_first()
        self.touch_global_flags()
        self.w1_addr()
        self.w1_dma(o.get('n0', 2))
        self.wd_job_addr()
        self.phase0()
        self.w1_dma(o.get('n1', 1))
        self.conv()
        if o.get('joint', 1): self.y_joint()
        else: self.y_in()
        for layer in range(2):
            self.gemm1(layer)
            self.gemm2(layer)
        if o.get('stamps'):
            self.stamp('end')
            k(f"""s_lshl_b32 {s(T[0])}, s2, 2
                  s_add_u32 {s(T[0])}, {s(T[0])}, {s(sW)}
                  s_lshl_b32 {s(T[0])}, {s(T[0])}, 8
                  s_add_u32 {s(T[0])}, {s(T[0])}, {WS_DBG}
                  v_lshrrev_b32 v5, 2, {v(vL16)}
                  buffer_store_dword {v(vST[0])}, v5, {s(RW,4)}, {s(T[0])} offen
                  s_add_u32 {s(T[0])}, {s(T[0])}, 0x40000
                  buffer_store_dword {v(vST[1])}, v5, {s(RW,4)}, {s(T[0])} offen""")
        if o.get('delay'):
            k(f"""s_mov_b32 {s(T[0])}, {o['delay']}
                  s_memrealtime {s(T[2],2)}
                  s_waitcnt lgkmcnt(0)""")
            k.place("L_DELAY")
            k(f"""s_memrealtime {s(T[4],2)}
                  s_waitcnt lgkmcnt(0)
                  s_sub_u32 {s(T[4])}, {s(T[4])}, {s(T[2])}
                  s_cmp_lt_u32 {s(T[4])}, {s(T[0])}
                  s_cbranch_scc1 L_DELAY""")
        if o.get('diag'):
            self.stamp('end')
            k(f"""v_sub_u32 v5, {v(vST[1])}, {v(vST[0])}
                  s_nop 1
                  v_readfirstlane_b32 {s(T[0])}, v5
                  s_mul_i32 {s(T[0])}, {s(T[0])}, 8
                  s_memrealtime {s(T[2],2)}
                  s_waitcnt lgkmcnt(0)""")
            k.place("L_DIAG")
            k(f"""s_memrealtime {s(T[4],2)}
                  s_waitcnt lgkmcnt(0)
                  s_sub_u32 {s(T[4])}, {s(T[4])}, {s(T[2])}
                  s_cmp_lt_u32 {s(T[4])}, {s(T[0])}
                  s_cbranch_scc1 L_DIAG""")
        k.place("L_END")
        k("s_endpgm")
        body = k.text()
        for t in self.tail:
            body += "".join((x + "\n") if x.endswith(':') else ("    " + x + "\n") for x in t)
        body += "L_LAST:\n"
        return body

def file_text(opt):
    g = Gen(opt)
    body = g.build()
    ref = open(os.path.join(os.path.dirname(os.path.abspath(__file__)), '..', 'cdna_kernels', NAME + '.s.ref')).read()
    head = ref[:ref.index('; Override launch geometry')]
    txt = head + f"""; @launch grid=(256,1,1) block=(256,1,1) lds={LDS_SIZE}
.amdgcn_target "amdgcn-amd-amdhsa--gfx950"
.text
.globl {NAME}_kernel
.p2align 8
.type {NAME}_kernel,@function
{NAME}_kernel:
{body}.section .rodata,"a"
.p2align 6
.amdhsa_kernel {NAME}_kernel
  .amdhsa_next_free_vgpr 512
  .amdhsa_next_free_sgpr 102
  .amdhsa_accum_offset 256
  .amdhsa_group_segment_fixed_size 0
  .amdhsa_kernarg_size 104
  .amdhsa_user_sgpr_count 2
  .amdhsa_user_sgpr_kernarg_segment_ptr 1
  .amdhsa_system_sgpr_workgroup_id_x 1
.end_amdhsa_kernel
"""
    return txt, g

if __name__ == '__main__':
    import json
    opt = {}; out = None
    for x in sys.argv[1:]:
        if '=' in x:
            kk, vv = x.split('=')
            opt[kk] = vv.split(',') if kk in ('only', 'diag') else (' ' + vv.replace('+', ' ') if kk in ('ost', 'wdm', 'x3m') else int(vv, 0))
        else: out = x
    txt, g = file_text(opt)
    open(out, 'w').write(txt)
    json.dump(g.stamps, open(out + '.stamps.json', 'w'))
    print('instructions', len(g.k.ins), 'nops added', g.k.nops_added, 'stamps', len(g.stamps))
```

```python
import sys, os
sys.path.insert(0, os.path.dirname(os.path.abspath(__file__)))
from dsl import *

NAME = 'interleave_layers__ssm_conv_h3__swiglu_ffn__prompt'

WS_XCCF = 0x1000
WS_KVF  = 0x10000
WS_AF   = 0x11000
WS_HF   = 0x19000
WS_FF   = 0x21000
WS_YF   = 0x40000
WS_JF   = 0x3E000
WS_KVT  = 0x100000
WS_A    = WS_KVT
WS_YP   = 0x300000
WS_H    = 0x700000
WS_WDT  = 0xE00000
WS_DBG  = 0x1000000
WS_SIZE = 0x1100000
H_X, H_HALF, H_RB = 917504, 458752, 114688

LDS_SIZE = 163840
SCR   = 114688
L_K   = SCR
L_V   = L_K + 9216
L_H   = L_V + 8192
H_CP  = 4096 + 128
H_E   = lambda ch: L_H + ch * 2 * H_CP + 64
H_O   = lambda ch: L_H + ch * 2 * H_CP + H_CP + 128
L_U   = L_H + 4 * H_CP + 128
U_S   = 4608
assert L_U + 2 * U_S <= LDS_SIZE
L_CRED = 57344
L_YT  = L_U
L_JOB = 114688 - 16384
L_RED = SCR
L_AG  = LDS_SIZE - 4352
L_AG2 = SCR

sX, sJ, sW, sN, sEXP, sSPIN, sXCC, sMODE = 4, 5, 6, 7, 8, 9, 10, 11
T = list(range(12, 24))
sC2 = 24
sHALF = 26
sW1S, sW1L = 27, 3
sD = 28
sDP = 34
RK, RV, RH, RQ, RG, RU, RD, RO, RW, RS = 44, 48, 52, 56, 60, 64, 68, 72, 76, 80
sK4 = 83
def k4(i): return '0' if i == 0 else s(sK4 + i)
sHH = 91
sAFp, sAFs, sHFp, sHFs, sFFp, sFFs = 94, 95, 96, 97, 98, 99
sFR = [100, 101]
sFH = 55
sAG = [56, 57]
sROT = [0, 1, 34, 35, 54, 80, 81]
sDEL = [82, 83]
sST = (32, 92)
sKVFp, sKVs, sUm0, sYst, sYFs, sYFp, sYld, sJF, sJL, sJFp = 44, 45, 46, 47, 48, 49, 50, 51, 52, 53

vL, vL16, vL0, vNON, vPT = 1, 2, 3, 4, 5
vAld, vHld = [6, 7], [8, 9]
vHm, vHt, vAst, vF2, vO, vRw, vRr, vP31, vP7, vW1 = 10, 11, 12, 13, 14, 15, 16, 17, 18, 19
vST = (20, 21)
vFr = 0
vWd = [230, 231]
ACC = [22, 78]
WF, AR, TMP = 134, 190, 222
YS, XS = [232, 236], [240, 248]
LOG2E = 1.4426950408889634

def f32(x):
    import struct
    return '0x%08x' % struct.unpack('<I', struct.pack('<f', x))[0]

def flist(c):
    if c < 4: return [4*c + e for e in range(4)] + [16 + 4*c + e for e in range(4)]
    q = c - 4; X = [44, 46, 54][q]
    return [32 + 4*q + e for e in range(4)] + [48 + 2*q, 49 + 2*q, X, X + 1]

class Gen:
    def __init__(self, opt):
        self.o = opt
        self.k = K()
        self.tail = []
        self.stamps = []
        self.w1_next = 0
        self.late = False
        self.w1_tok = {}

    def stamp(self, name):
        dg = self.o.get('diag')
        if dg and name in dg:
            k = self.k
            k(f"s_memrealtime {s(sST[0],2)}"); k.wait_lg0()
            k(f"v_mov_b32 {v(vST[dg.index(name)])}, {s(sST[0])}")
        if not self.o.get('stamps'): return
        only = self.o.get('only')
        if only and name not in only: return
        k = self.k; n = len(self.stamps)
        k(f"s_memrealtime {s(sST[0],2)}\ns_memtime {s(sST[1],2)}"); k.wait_lg0()
        if self.o.get('spinstat') and n >= 2: k(f"s_sub_u32 {s(sST[1])}, 0, {s(sSPIN)}")
        k(f"v_writelane_b32 {v(vST[0])}, {s(sST[0])}, {n}\nv_writelane_b32 {v(vST[1])}, {s(sST[1])}, {n}")
        self.stamps.append(name)

    def srd(self, base, size):
        self.k(f"s_mov_b32 {s(base+2)}, {size}\ns_mov_b32 {s(base+3)}, 0x20000")

    def poll_issue(self, vaddr, soff, off=0, vt=vPT):
        txt = f"buffer_load_dword {v(vt)}, {v(vaddr)}, {s(RW,4)}, {soff} offen offset:{off} sc1"
        return (self.k(txt), txt, vt)

    def poll_steps(self, get, local=True):
        k = self.k
        slow, back, ok = k.label(), k.label(), k.label()
        def s1(): k.wait(get()[0])
        def s2(): k(f"v_cmp_ne_u32 vcc, {s(sEXP if local else sN)}, {v(get()[2])}")
        def s3():
            if self.o.get('nopoll') and self.late: return
            k(f"s_cbranch_vccnz {slow}"); k.place(back)
            _, txt, vt = get()
            nap = self.o.get('nap_l', 0) if local else self.o.get('nap_g', 0)
            t = [f"{slow}:"] + ([f"s_sleep {nap}"] if nap else []) + [txt, "s_waitcnt vmcnt(0)", f"v_cmp_ne_u32 vcc, {s(sN)}, {v(vt)}", f"s_cbranch_vccz {ok}",
                 f"s_sub_u32 {s(sSPIN)}, {s(sSPIN)}, 1", f"s_cbranch_scc0 {slow}", "s_branch L_END", f"{ok}:"]
            if local: t += [f"s_cmp_eq_u32 {s(sMODE)}, 0", f"s_cbranch_scc1 {back}", "buffer_inv sc1", "s_waitcnt vmcnt(0)"]
            self.tail.append(t + [f"s_branch {back}"])
        return [s1, s2, s3]

    def poll_check(self, h, local=True):
        for f in self.poll_steps(lambda: h, local): f()
    def poll(self, vaddr, soff, off=0, local=True):
        self.poll_check(self.poll_issue(vaddr, soff, off), local)
    def poll_items(self, vaddr, soff, off, at_issue, at_check):
        box = []
        it = [Item(fn=lambda: box.append(self.poll_issue(vaddr, soff, off)), at=at_issue)]
        return it + [Item(fn=f, at=at_check) for f in self.poll_steps(lambda: box[0])]

    def flag_store(self, soff, off=0, local=True):
        k = self.k
        txt = f"buffer_store_dword {v(vNON)}, {v(vL0)}, {s(RW,4)}, {soff} offen offset:{off}"
        if not local: return k(txt + " sc1")
        slow, back = k.label(), k.label()
        k(f"s_cmp_lg_u32 {s(sMODE)}, 0\ns_cbranch_scc1 {slow}")
        r = k(txt); k.place(back)
        self.tail.append([f"{slow}:", "s_waitcnt vmcnt(0)", "buffer_wbl2 sc1", "s_waitcnt vmcnt(0)", txt + " sc1", f"s_branch {back}"])
        return r
    def publish(self, tok, soff, off=0, local=True):
        self.k.wait(tok)
        return self.flag_store(soff, off, local)
    def publish_items(self, get, soff, off, at):
        return [Item(fn=lambda: self.k.wait(get()), at=at), Item(fn=lambda: self.flag_store(soff, off), cost=2, at=at)]

    def dma(self, vaddr, srd, soff, m0, extra=''):
        self.k(m0)
        return self.k(f"buffer_load_dwordx4 {v(vaddr)}, {s(srd,4)}, {soff} offen {extra} lds".replace('  ', ' '))

    def prologue(self):
        k = self.k
        k("s_cmp_ge_u32 s2, 256\ns_cbranch_scc1 L_END")
        if self.o.get('stamps'): k(f"v_mov_b32 {v(vST[0])}, 0\nv_mov_b32 {v(vST[1])}, 0")
        self.stamp('entry')
        for r, off in ((RK, 8), (RV, 16), (RW, 96), (RH, 32), (RS, 24), (RQ, 0), (RG, 56), (RU, 64), (RD, 72), (RO, 80)):
            k(f"s_load_dwordx2 {s(r,2)}, s[0:1], {off}")
        k(f"s_load_dwordx2 {s(sDP,2)}, s[0:1], 40")
        k(f"s_lshr_b32 {s(sJ)}, s2, 3")
        self.code_prefetch()
        k(f"""s_and_b32 {s(sX)}, s2, 7
              v_lshrrev_b32 v5, 6, v0
              v_and_b32 {v(vL)}, 63, v0
              v_readfirstlane_b32 {s(sW)}, v5
              v_lshlrev_b32 {v(vL16)}, 4, {v(vL)}""")
        for r, size in ((RK, 2097152), (RV, 2097152), (RW, WS_SIZE), (RH, 2097152), (RS, 4096)): self.srd(r, size)

        k(f"""v_lshrrev_b32 v24, 3, {v(vL)}
              v_and_b32 v25, 7, {v(vL)}
              v_and_b32 v26, 2, v24
              v_xor_b32 v25, v25, v26
              s_and_b32 {s(T[0])}, {s(sW)}, 1
              s_lshl_b32 {s(T[0])}, {s(T[0])}, 2
              v_xor_b32 v25, {s(T[0])}, v25
              v_lshlrev_b32 v25, 4, v25
              v_lshl_add_u32 v25, v24, 10, v25
              s_lshl_b32 {s(T[0])}, {s(sJ)}, 16
              s_lshl_b32 {s(T[1])}, {s(sW)}, 14
              s_lshl_b32 {s(T[2])}, {s(sX)}, 7
              s_add_u32 {s(T[0])}, {s(T[0])}, {s(T[1])}
              s_add_u32 {s(T[0])}, {s(T[0])}, {s(T[2])}
              v_add_u32 v25, {s(T[0])}, v25
              v_xor_b32 v26, 64, v25
              v_subrev_u32 v26, 8192, v26
              s_lshl_b32 {s(T[1])}, {s(sW)}, 11
              s_add_u32 {s(T[2])}, {s(T[1])}, {L_K + 1024}
              s_add_u32 {s(T[3])}, {s(T[1])}, {L_V}
              s_movk_i32 {s(T[4])}, 8192
              v_and_b32 v27, 15, {v(vL)}
              s_lshl_b32 {s(T[0])}, {s(sX)}, 6
              s_lshl_b32 {s(T[1])}, {s(sW)}, 4
              s_add_u32 {s(T[1])}, {s(T[0])}, {s(T[1])}
              v_add_u32 v27, {s(T[1])}, v27
              v_lshlrev_b32 v28, 3, v27
              s_lshl_b32 {s(T[1])}, {s(sJ)}, 1
              s_add_u32 {s(T[0])}, {s(T[0])}, {s(T[1])}
              s_lshl_b32 {s(T[5])}, {s(T[0])}, 1
              s_lshl_b32 {s(T[6])}, {s(T[0])}, 12
              s_add_u32 {s(T[7])}, {s(T[6])}, 4096
              v_lshlrev_b32 v29, 4, v0""")
        k.wait_lg0()
        self.stamp('start')
        k(f"s_load_dword {s(sN)}, {s(RW,2)}, 0")
        k(f"s_load_dword {s(sD)}, {s(sDP,2)}, {s(T[5])}")
        self.dma(25, RK, '0', f"s_mov_b32 m0, {s(T[2])}")
        self.dma(25, RV, '0', f"s_mov_b32 m0, {s(T[3])}")
        self.dma(25, RK, s(T[4]), f"s_add_u32 m0, {s(T[2])}, 1024")
        self.dma(25, RV, s(T[4]), f"s_add_u32 m0, {s(T[3])}, 1024")
        skip = k.label()
        k(f"s_cmp_lg_u32 {s(sW)}, 0\ns_cbranch_scc1 {skip}\ns_mov_b32 m0, {L_K}\ns_nop 0")
        k.ins.append(I(f"buffer_load_dwordx4 v26, {s(RK,4)}, 0 offen lds"))
        k.place(skip)
        self.sh_tok = k(f"buffer_load_dwordx2 v[30:31], v28, {s(RS,4)}, 0 offen")
        k(f"buffer_load_dwordx4 v[32:35], v29, {s(RH,4)}, {s(T[6])} offen")
        k(f"buffer_load_dwordx4 v[40:43], v29, {s(RH,4)}, {s(T[7])} offen")
        k(f"buffer_load_dwordx4 v[36:39], v29, {s(RH,4)}, {s(T[6])} offen offset:2")
        self.h_tok = k(f"buffer_load_dwordx4 v[44:47], v29, {s(RH,4)}, {s(T[7])} offen offset:2")
        k(f"""s_getreg_b32 {s(sXCC)}, hwreg(HW_REG_XCC_ID, 0, 4)
              v_cmp_eq_u32 vcc, 0, {v(vL)}
              v_mov_b32 v5, 0x80000000
              s_lshl_b32 {s(T[1])}, {s(sX)}, 5
              s_add_u32 {s(T[1])}, {s(T[1])}, {s(sJ)}
              s_mul_i32 {s(T[1])}, {s(T[1])}, {self.o.get('xs', 4)}
              s_add_u32 {s(T[1])}, {s(T[1])}, {WS_XCCF}
              s_cmp_eq_u32 {s(sW)}, 2
              s_cselect_b32 {s(T[1])}, {s(T[1])}, 0x40000000
              v_cndmask_b32 {v(vL0)}, v5, 0, vcc""")
        k.wait_lg0()
        k(f"""s_mul_i32 {s(sN)}, {s(sN)}, 1664525
              s_add_u32 {s(sN)}, {s(sN)}, 1013904223
              s_xor_b32 {s(T[0])}, {s(sN)}, {s(sXCC)}
              v_mov_b32 v5, {s(T[0])}
              v_mov_b32 {v(vNON)}, {s(sN)}""")
        k(f"buffer_store_dword v5, {v(vL0)}, {s(RW,4)}, {s(T[1])} offen sc1")
        for r, size in ((RQ, 2097152), (RG, 1835008), (RU, 1835008), (RD, 1835008), (RO, 2097152)): self.srd(r, size)
        k(f"""s_lshr_b32 {s(sD+2)}, {s(sD)}, 16
              s_and_b32 {s(sD+3)}, {s(sD)}, 0xffff0000
              s_lshl_b32 {s(sD+1)}, {s(sD)}, 16
              s_and_b32 {s(sD)}, {s(sD)}, 0xffff
              s_mov_b32 {s(sC2)}, {f32(LOG2E*LOG2E)}
              s_mov_b32 {s(sC2+1)}, {f32(LOG2E*LOG2E)}
              s_mov_b32 {s(sSPIN)}, {self.o.get('spin', 400000)}
              s_mov_b32 {s(sHALF)}, 0x20000
              s_mov_b32 {s(sHH)}, {H_HALF}
              v_and_b32 {v(vP31)}, 31, {v(vL)}
              v_lshlrev_b32 {v(vP31)}, 2, {v(vP31)}
              v_and_b32 {v(vP7)}, 7, {v(vL)}
              v_lshlrev_b32 {v(vP7)}, 2, {v(vP7)}""")
        for i in range(1, 8): k(f"s_movk_i32 {s(sK4+i)}, {4096*i}")

    def code_prefetch(self):
        if not self.o.get('cpf', 1): return
        k = self.k
        k(f"s_getpc_b64 {s(T[2],2)}")
        k.place("L_PC")
        k(f"""s_mul_i32 {s(T[4])}, {s(sJ)}, ((L_LAST-L_PC+4095)/4096)*128
              v_min_u32 v5, (L_LAST-L_PC+4095)/4096-1, v0
              v_lshl_add_u32 v5, v5, 7, {s(T[4])}
              v_min_u32 v5, L_LAST-L_PC-4, v5
              global_load_dword v219, v5, {s(T[2],2)}""")

    def tlb_touch(self):
        if not self.o.get('tlb', 0): return
        k = self.k
        k(f"v_and_b32 v5, 15, {v(vL)}\nv_lshlrev_b32 v5, 20, v5")
        k(f"buffer_load_dword v200, v5, {s(RW,4)}, 0 offen offset:512")
        k(f"buffer_load_dword v201, v5, {s(RO,4)}, 0 offen")
        k(f"buffer_load_dword v196, v5, {s(RG,4)}, 0 offen")
        k(f"buffer_load_dword v197, v5, {s(RU,4)}, 0 offen")
        k(f"buffer_load_dword v198, v5, {s(RQ,4)}, 0 offen")

    def touch_first(self):
        k = self.k
        if self.o.get('tch_kv', 1):
            k(f"v_and_b32 v5, 15, {v(vL)}\nv_lshlrev_b32 v5, 7, v5")
            k(f"buffer_load_dword v220, v5, {s(RW,4)}, {s(sKVs)} offen sc1")
        if self.o.get('tch_fl', 1):
            k(f"""s_lshl_b32 {s(T[0])}, {s(sX)}, 12
                  s_add_u32 {s(T[0])}, {s(T[0])}, {WS_AF}
                  v_lshl_add_u32 v22, {v(vL)}, 7, {s(T[0])}
                  v_cmp_lt_u32 vcc, 15, {v(vL)}
                  v_add_u32 v5, {0x8000 - 16*128}, v22
                  s_lshl_b32 {s(T[0])}, {s(sX)}, 9
                  v_cndmask_b32 v22, v22, v5, vcc
                  v_cmp_lt_u32 vcc, 47, {v(vL)}
                  v_add_u32 v5, {0x8000 - 32*128}, v22
                  s_add_u32 {s(T[0])}, {s(T[0])}, {WS_KVF}
                  v_cndmask_b32 v22, v22, v5, vcc
                  v_cmp_lt_u32 vcc, 55, {v(vL)}
                  v_and_b32 v5, 3, {v(vL)}
                  v_lshl_add_u32 v5, v5, 7, {s(T[0])}
                  s_cmp_eq_u32 {s(sW)}, 3
                  s_cselect_b32 {s(T[0])}, 0, 0x40000000
                  v_cndmask_b32 v5, v22, v5, vcc
                  buffer_load_dword v221, v5, {s(RW,4)}, {s(T[0])} offen sc1""")
    def touch_global_flags(self):
        if not self.o.get('tch_g', 1): return
        k = self.k
        k(f"""v_lshlrev_b32 v5, 7, {v(vL)}
              s_cmp_eq_u32 {s(sW)}, 1
              s_cselect_b32 {s(T[0])}, {s(sJ)}, 31
              s_lshl_b32 {s(T[1])}, {s(T[0])}, 13
              s_cmp_lt_u32 {s(T[0])}, {1 + self.o.get('yfs', 4)//4}
              s_cselect_b32 {s(T[0])}, {s(T[1])}, 0x40000000
              s_add_u32 {s(T[0])}, {s(T[0])}, {WS_JF}
              buffer_load_dword v202, v5, {s(RW,4)}, {s(T[0])} offen sc1""")
    def touch_h_addr(self):
        self.k(f"""s_lshl_b32 {s(T[0])}, {s(sJ)}, 2
                  s_add_u32 {s(T[0])}, {s(T[0])}, {s(sW)}
                  s_mul_i32 {s(T[0])}, {s(T[0])}, 7168
                  s_mul_i32 {s(T[1])}, {s(sX)}, {H_X}
                  s_add_u32 {s(T[0])}, {s(T[0])}, {s(T[1])}
                  s_add_u32 {s(T[0])}, {s(T[0])}, {WS_H}
                  v_min_u32 v227, 55, {v(vL)}
                  v_lshl_add_u32 v227, v227, 7, {s(T[0])}""")
    def touch_h_text(self): return f"buffer_load_dword v228, v227, {s(RW,4)}, 0 offen sc1"
    def touch_f(self):
        k = self.k
        k(f"""v_and_b32 v5, 7, {v(vL)}
              v_lshlrev_b32 v5, 7, v5
              v_bfe_u32 v22, {v(vL)}, 3, 1
              v_lshl_add_u32 v5, v22, 17, v5
              buffer_load_dword v199, v5, {s(RW,4)}, {s(sFR[0])} offen sc1""")

    def q_load(self):
        k = self.k
        k(f"""s_lshl_b32 {s(T[0])}, {s(sX)}, 7
              s_lshl_b32 {s(T[1])}, {s(sJ)}, 2
              s_add_u32 {s(T[0])}, {s(T[0])}, {s(T[1])}
              s_add_u32 {s(T[0])}, {s(T[0])}, {s(sW)}
              s_lshl_b32 {s(T[0])}, {s(T[0])}, 10
              s_add_u32 {s(T[1])}, {s(T[0])}, 0x100000""")
        k(f"buffer_load_dwordx4 v[204:207], {v(vL16)}, {s(RQ,4)}, {s(T[0])} offen")
        self.q_tok = k(f"buffer_load_dwordx4 v[208:211], {v(vL16)}, {s(RQ,4)}, {s(T[1])} offen")

    def persistent(self):
        k = self.k; AG = self.o.get('ag', 1)
        k(f"""s_lshl_b32 {s(T[0])}, {s(sJ)}, 2
              s_add_u32 {s(T[0])}, {s(T[0])}, {s(sW)}
              s_lshl_b32 {s(T[8])}, {s(sX)}, 18
              s_lshl_b32 {s(T[9])}, {s(sX)}, 12
              s_lshr_b32 {s(T[10])}, {s(sJ)}, 3
              s_and_b32 {s(T[11])}, {s(sJ)}, 7
              s_lshl_b32 {s(T[1])}, {s(T[0])}, 2
              s_add_u32 {s(T[1])}, {s(T[1])}, {s(T[9])}
              s_add_u32 {s(sAFs)}, {s(T[1])}, {WS_AF}
              s_lshl_b32 {s(T[1])}, {s(sW)}, 7
              s_add_u32 {s(T[1])}, {s(T[1])}, {s(T[9])}
              s_add_u32 {s(sAFp)}, {s(T[1])}, {WS_AF}
              s_lshl_b32 {s(T[2])}, {s(sJ)}, 2
              s_add_u32 {s(T[1])}, {s(T[1])}, {s(T[2])}
              s_add_u32 {s(sHFs)}, {s(T[1])}, {WS_HF}
              s_lshl_b32 {s(T[1])}, {s(T[10])}, 7
              s_lshl_b32 {s(T[2])}, {s(sW)}, 5
              s_add_u32 {s(T[1])}, {s(T[1])}, {s(T[2])}
              s_add_u32 {s(T[1])}, {s(T[1])}, {s(T[9])}
              s_add_u32 {s(sHFp)}, {s(T[1])}, {WS_HF}
              s_lshl_b32 {s(T[2])}, {s(T[11])}, 2
              s_add_u32 {s(T[1])}, {s(T[1])}, {s(T[2])}
              s_add_u32 {s(sFFs)}, {s(T[1])}, {WS_FF}
              s_lshr_b32 {s(T[1])}, {s(sJ)}, 1
              s_lshl_b32 {s(T[1])}, {s(T[1])}, 5
              s_add_u32 {s(T[1])}, {s(T[1])}, {s(T[9])}
              s_add_u32 {s(sFFp)}, {s(T[1])}, {WS_FF}
              s_lshr_b32 {s(T[1])}, {s(T[0])}, 5
              s_lshl_b32 {s(T[1])}, {s(T[1])}, 15
              s_bfe_u32 {s(T[2])}, {s(T[0])}, 0x10004
              s_lshl_b32 {s(T[2])}, {s(T[2])}, 10
              s_and_b32 {s(T[3])}, {s(T[0])}, {12 if AG else 15}
              s_lshl_b32 {s(T[3])}, {s(T[3])}, 4
              s_add_u32 {s(T[1])}, {s(T[1])}, {s(T[2])}
              s_add_u32 {s(T[1])}, {s(T[1])}, {s(T[3])}
              s_add_u32 {s(T[1])}, {s(T[1])}, {s(T[8])}
              s_lshl_b32 {s(T[2])}, {s(sW)}, 13
              s_add_u32 {s(T[2])}, {s(T[2])}, {WS_A}
              s_add_u32 {s(T[1])}, {s(T[1])}, {s(T[2]) if AG else WS_A}
              v_lshrrev_b32 v5, {4 if AG else 2}, {v(vL)}
              v_lshlrev_b32 v5, 11, v5
              v_bfe_u32 {v(vAst)}, {v(vL)}, {2 if AG else 0}, 2
              v_lshl_add_u32 {v(vAst)}, {v(vAst)}, 8, v5
              v_and_b32 v5, {3 if AG else 0}, {v(vL)}
              v_lshl_add_u32 {v(vAst)}, v5, 4, {v(vAst)}
              v_add_u32 {v(vAst)}, {s(T[1])}, {v(vAst)}
              s_lshl_b32 {s(T[1])}, {s(sW)}, 15
              s_add_u32 {s(T[1])}, {s(T[1])}, {s(T[8])}
              s_add_u32 {s(T[1])}, {s(T[1])}, {WS_A}
              v_add_u32 {v(vAld[0])}, {s(T[1])}, {v(vL16)}
              v_add_u32 {v(vAld[1])}, 0x20000, {v(vAld[0])}
              v_add_u32 {v(vW1)}, 57344, {v(vL16)}
              v_lshrrev_b32 v5, 4, {v(vL)}
              v_and_b32 v23, 15, {v(vL)}
              v_lshlrev_b32 v22, 9, v5
              v_lshl_add_u32 v22, v23, 4, v22
              s_mul_i32 {s(T[4])}, {s(sX)}, {H_X}
              s_add_u32 {s(T[4])}, {s(T[4])}, {WS_H}
              s_mul_i32 {s(T[1])}, {s(sW)}, {H_RB}
              s_mul_i32 {s(T[2])}, {s(sJ)}, 3584
              s_add_u32 {s(T[1])}, {s(T[1])}, {s(T[2])}
              s_add_u32 {s(T[1])}, {s(T[1])}, {s(T[4])}
              v_add_u32 {v(vHm)}, {s(T[1])}, v22
              s_mul_i32 {s(T[1])}, {s(T[10])}, {H_RB}
              s_mul_i32 {s(T[2])}, {s(sW)}, 28672
              s_add_u32 {s(T[1])}, {s(T[1])}, {s(T[2])}
              s_add_u32 {s(T[1])}, {s(T[1])}, {s(T[4])}
              v_add_u32 {v(vHld[0])}, {s(T[1])}, v22
              v_add_u32 {v(vHld[1])}, {H_HALF}, {v(vHld[0])}
              v_cmp_gt_u32 vcc, 48, {v(vL)}
              v_add_u32 {v(vHt)}, 2048, {v(vHm)}
              v_mov_b32 v22, 0x80000000
              v_mul_u32_u24 {v(vRw)}, 272, v23
              v_cndmask_b32 {v(vHt)}, v22, {v(vHt)}, vcc
              v_lshl_add_u32 {v(vRw)}, v5, 4, {v(vRw)}
              s_mul_i32 {s(T[1])}, {s(sW)}, 8704
              s_add_u32 {s(T[1])}, {s(T[1])}, {L_RED}
              v_add_u32 {v(vRw)}, {s(T[1])}, {v(vRw)}
              v_lshrrev_b32 v5, 3, {v(vL)}
              v_mul_u32_u24 {v(vRr)}, 272, v5
              v_lshl_add_u32 {v(vRr)}, {v(vP7)}, 3, {v(vRr)}
              s_mul_i32 {s(T[1])}, {s(sW)}, {8*272}
              s_add_u32 {s(T[1])}, {s(T[1])}, {L_RED}
              v_add_u32 {v(vRr)}, {s(T[1])}, {v(vRr)}
              s_lshl_b32 {s(T[1])}, {s(T[10])}, 5
              s_lshl_b32 {s(T[2])}, {s(sW)}, 3
              s_add_u32 {s(T[1])}, {s(T[1])}, {s(T[2])}
              v_add_u32 v5, {s(T[1])}, v5
              s_lshl_b32 {s(T[2])}, {s(T[11])}, 7
              s_lshl_b32 {s(T[1])}, {s(sX)}, 17
              s_add_u32 {s(T[2])}, {s(T[2])}, {s(T[1])}
              v_lshl_add_u32 v22, {v(vP7)}, 2, {s(T[2])}
              v_lshl_add_u32 {v(vO)}, v5, 10, v22
              s_lshr_b32 {s(T[1])}, {s(T[11])}, 2
              s_lshl_b32 {s(T[1])}, {s(T[1])}, 13
              s_and_b32 {s(T[2])}, {s(T[11])}, 3
              s_lshl_b32 {s(T[2])}, {s(T[2])}, 7
              s_add_u32 {s(T[1])}, {s(T[1])}, {s(T[2])}
              s_lshl_b32 {s(T[2])}, {s(sX)}, 9
              s_add_u32 {s(T[1])}, {s(T[1])}, {s(T[2])}
              s_add_u32 {s(T[1])}, {s(T[1])}, {WS_YP}
              v_lshl_add_u32 {v(vF2)}, {v(vP7)}, 2, {s(T[1])}
              v_lshl_add_u32 {v(vF2)}, v5, 14, {v(vF2)}
              s_mov_b32 {s(sFH)}, 0x100000
              s_lshl_b32 {s(T[1])}, {s(T[0])}, 14
              s_add_u32 {s(T[1])}, {s(T[1])}, {s(T[2])}
              s_add_u32 {s(sFR[0])}, {s(T[1])}, {WS_YP}
              s_add_u32 {s(sFR[1])}, {s(T[1])}, {WS_YP + 4096}
              v_lshrrev_b32 v5, 5, {v(vL)}
              v_lshlrev_b32 v5, 13, v5
              v_lshl_add_u32 {v(vFr)}, {v(vP31)}, 2, v5""")

    W1V = 212
    def w1_addr(self):
        k = self.k; vb = self.W1V; rot = self.o.get('rot', 1)
        k(f"""s_mul_i32 {s(T[0])}, {s(sJ)}, 112
              s_movk_i32 {s(T[1])}, 9363
              s_movk_i32 {s(T[2])}, {3584 - 7*16}
              s_mul_i32 {s(sW1S)}, {s(sW)}, 229376
              s_mul_i32 {s(sW1L)}, {s(sW)}, 14336
              s_and_b32 {s(T[3])}, {s(sX)}, {6 if rot else 0}
              s_and_b32 {s(T[4])}, {s(sX)}, {1 if rot else 0}
              s_cselect_b32 {s(T[5])}, {s(RU)}, {s(RG)}
              s_cselect_b32 {s(T[6])}, {s(RU+1)}, {s(RG+1)}
              s_cselect_b32 {s(RU)}, {s(RG)}, {s(RU)}
              s_cselect_b32 {s(RU+1)}, {s(RG+1)}, {s(RU+1)}
              s_cselect_b32 {s(T[4])}, 7168, 0
              s_lshl_b32 {s(sDEL[0])}, {s(T[4])}, 1
              s_sub_u32 {s(sDEL[0])}, 7168, {s(sDEL[0])}
              s_mov_b32 {s(RG)}, {s(T[5])}
              s_mov_b32 {s(RG+1)}, {s(T[6])}
              s_add_u32 {s(sDEL[1])}, {s(sDEL[0])}, 57344
              s_add_u32 {s(T[4])}, {s(T[4])}, {s(sW1L)}""")
        for i in range(7):
            k(f"""s_add_u32 {s(T[5])}, {s(T[3])}, {i}
                  s_sub_u32 {s(T[6])}, {s(T[5])}, 7
                  s_cselect_b32 {s(T[5])}, {s(T[5])}, {s(T[6])}
                  s_lshl_b32 {s(T[6])}, {s(T[5])}, 10
                  s_add_u32 {s(sROT[i])}, {s(T[6])}, {s(T[4])}
                  v_lshl_add_u32 v5, {s(T[5])}, 6, {v(vL)}
                  v_mul_u32_u24 {v(vb+i)}, {s(T[1])}, v5
                  v_lshrrev_b32 {v(vb+i)}, 16, {v(vb+i)}
                  v_mul_u32_u24 {v(vb+i)}, {s(T[2])}, {v(vb+i)}
                  v_lshl_add_u32 {v(vb+i)}, v5, 4, {v(vb+i)}
                  v_add_u32 {v(vb+i)}, {s(T[0])}, {v(vb+i)}""")

    def w1_dma_text(self, n):
        ck, mat, i = n // 14, (n % 14) // 7, n % 7
        L = []
        if n == 14: L.append(f"s_add_u32 {s(sW1S)}, {s(sW1S)}, {4*229376}")
        L.append(f"s_add_u32 m0, {s(sROT[i])}, {s(sDEL[ck]) if mat else ck*57344}")
        L.append(f"buffer_load_dwordx4 {v(self.W1V+i)}, {s(RU if mat else RG,4)}, {s(sW1S)} offen lds")
        return L
    def w1_dma(self, cnt):
        for _ in range(cnt):
            if self.w1_next >= 28: return
            n = self.w1_next; self.w1_next += 1
            for x in self.w1_dma_text(n): self.w1_tok[n] = self.k(x)

    RL = 222
    def w1_relayout_addr(self):
        k = self.k; r = self.RL
        k(f"""v_lshrrev_b32 v5, 4, {v(vL)}
              v_bfe_u32 {v(r)}, {v(vL)}, 2, 2
              v_lshl_add_u32 {v(r)}, v5, 3, {v(r)}
              v_mul_u32_u24 {v(r)}, 112, {v(r)}
              v_add_u32 {v(r)}, {s(sW1L)}, {v(r)}
              v_and_b32 {v(r+2)}, 3, {v(vL)}
              v_bfe_u32 {v(r+3)}, {v(vL)}, 1, 1
              v_mul_u32_u24 {v(r+3)}, 7168, {v(r+3)}
              v_and_b32 v22, 1, {v(vL)}
              v_lshl_add_u32 {v(r+3)}, v22, 3, {v(r+3)}
              v_add_u32 {v(r+1)}, {v(r)}, {v(r+3)}
              v_lshl_add_u32 {v(r)}, {v(r+2)}, 3, {v(r)}
              v_add_u32 {v(r+2)}, {s(sW1L)}, {v(vL16)}
              v_bfe_u32 {v(r+3)}, {v(vL)}, 1, 2
              v_lshlrev_b32 {v(r+3)}, 2, {v(r+3)}
              v_bfe_u32 v23, {v(vL)}, 3, 1
              v_lshl_add_u32 {v(r+3)}, v23, 1, {v(r+3)}
              v_add_u32 {v(r+3)}, {v(r+3)}, v22
              v_lshl_add_u32 {v(r+3)}, v5, 4, {v(r+3)}
              v_lshlrev_b32 {v(r+3)}, 4, {v(r+3)}
              v_add_u32 {v(r+3)}, {s(sW1L)}, {v(r+3)}""")
    def w1_relayout_items(self, ck, vtemp=False):
        k = self.k; r = self.RL
        R, a = (ACC[1], v) if vtemp else (128, globals()['a'])
        L = [Item(fn=lambda: k.wait(self.w1_tok[14*ck + 13]))]
        if ck == 1: L += [Item(f"v_add_u32 {v(r+i)}, 57344, {v(r+i)}") for i in range(4)]
        for sl in range(2):
            for Tt in range(7):
                for hf in range(2):
                    d = R + (sl*7 + Tt)*4 + 2*hf
                    o = (32*sl + 4*hf)*112
                    if Tt < 6: L.append(Item(f"ds_read_b64_tr_b16 {a(d,2)}, {v(r)} offset:{o + (Tt&1)*7168 + 32*(Tt>>1)}"))
                    else: L.append(Item(f"ds_read_b64_tr_b16 {a(d,2)}, {v(r+1)} offset:{o + 96}"))
        last = L[-1]
        L.append(Item(fn=lambda: k.wait(last.tok)))
        for n in range(14): L.append(Item(f"ds_write_b128 {v(r+3 if n % 7 == 6 else r+2)}, {a(R + n*4, 4)} offset:{n*1024}"))
        return L
    def w1_relayout(self, ck): Queue(self.k, self.w1_relayout_items(ck)).drain()

    JV = 190
    def wd_job_addr(self):
        k = self.k; r = self.JV
        k(f"""s_lshl_b32 {s(T[0])}, s2, 1
              s_lshr_b32 {s(T[1])}, {s(sW)}, 1
              s_add_u32 {s(T[0])}, {s(T[0])}, {s(T[1])}
              s_mul_i32 {s(T[1])}, {s(T[0])}, 4682
              s_lshr_b32 {s(T[1])}, {s(T[1])}, 16
              s_mul_i32 {s(T[2])}, {s(T[1])}, 14
              s_sub_u32 {s(T[2])}, {s(T[0])}, {s(T[2])}
              s_and_b32 {s(T[3])}, {s(T[1])}, 3
              s_lshr_b32 {s(T[1])}, {s(T[1])}, 2
              s_lshl_b32 {s(T[1])}, {s(T[1])}, 7
              s_mul_i32 {s(T[3])}, {s(T[3])}, {8*57344}
              s_add_u32 {s(T[1])}, {s(T[1])}, {s(T[3])}
              s_cmp_lt_u32 s2, 224
              s_cselect_b32 {s(T[3])}, {s(sW)}, 0
              s_bitcmp1_b32 {s(T[3])}, 0
              s_cselect_b32 {s(T[3])}, 0, 0x80000000
              s_lshl_b32 {s(T[4])}, {s(T[0])}, 2
              s_add_u32 {s(T[4])}, {s(T[4])}, {WS_JF}
              s_lshr_b32 {s(sJF)}, {s(T[3])}, 1
              s_or_b32 {s(sJF)}, {s(sJF)}, {s(T[4])}
              s_lshl_b32 {s(T[0])}, {s(T[0])}, 12
              s_add_u32 {s(T[0])}, {s(T[0])}, {WS_WDT}
              s_or_b32 {s(T[0])}, {s(T[0])}, {s(T[3])}
              s_or_b32 {s(T[1])}, {s(T[1])}, {s(T[3])}
              v_add_u32 {v(r+5)}, {s(T[0])}, {v(vL16)}
              v_lshrrev_b32 v5, 3, {v(vL)}
              v_and_b32 v22, 3, v5
              v_lshlrev_b32 v22, 3, v22
              v_cmp_gt_u32 vcc, 4, v5
              v_lshl_add_u32 v23, {v(vP7)}, 2, {s(T[1])}
              s_lshl_b32 {s(T[2])}, {s(T[2])}, 2""")
        for g in range(4):
            k(f"""s_add_u32 {s(T[0])}, {s(T[2])}, {g}
                  s_mul_i32 {s(T[1])}, {s(T[0])}, 9363
                  s_lshr_b32 {s(T[1])}, {s(T[1])}, 16
                  s_mul_i32 {s(T[3])}, {s(T[1])}, 7
                  s_sub_u32 {s(T[0])}, {s(T[0])}, {s(T[3])}
                  s_mul_i32 {s(T[1])}, {s(T[1])}, 56
                  s_mul_i32 {s(T[3])}, {s(T[0])}, 0x04040404
                  s_add_u32 {s(T[4])}, {s(T[3])}, 0x13121110
                  s_add_u32 {s(T[3])}, {s(T[3])}, 0x03020100
                  s_cmp_ge_u32 {s(T[0])}, 4
                  s_cselect_b32 {s(T[3])}, {s(T[4])}, {s(T[3])}
                  s_cselect_b32 {s(T[4])}, {sum(x << (8*e) for e, x in enumerate(flist(4)[4:]))}, {s(T[4])}
                  s_cmp_eq_u32 {s(T[0])}, 5
                  s_cselect_b32 {s(T[4])}, {sum(x << (8*e) for e, x in enumerate(flist(5)[4:]))}, {s(T[4])}
                  s_cmp_eq_u32 {s(T[0])}, 6
                  s_cselect_b32 {s(T[4])}, {sum(x << (8*e) for e, x in enumerate(flist(6)[4:]))}, {s(T[4])}
                  v_mov_b32 v5, {s(T[3])}
                  v_mov_b32 {v(r+g)}, {s(T[4])}
                  v_cndmask_b32 v5, {v(r+g)}, v5, vcc
                  v_bfe_u32 v5, v5, v22, 8
                  v_add_u32 v5, {s(T[1])}, v5
                  v_lshl_add_u32 {v(r+g)}, v5, 10, v23""")
        k(f"""s_lshl_b32 {s(sJL)}, {s(sW)}, 12
              s_add_u32 {s(sJL)}, {s(sJL)}, {L_JOB}
              v_lshrrev_b32 v5, 4, {v(vL)}
              v_lshlrev_b32 {v(r+4)}, 10, v5
              v_bfe_u32 v5, {v(vL)}, 2, 2
              v_lshl_add_u32 {v(r+4)}, v5, 7, {v(r+4)}
              v_and_b32 v5, 3, {v(vL)}
              v_lshl_add_u32 {v(r+4)}, v5, 3, {v(r+4)}
              v_add_u32 {v(r+4)}, {s(sJL)}, {v(r+4)}""")
    def wd_job_issue(self):
        for g in range(4): self.job_tok = self.dma(self.JV+g, RD, '0', f"s_add_u32 m0, {s(sJL)}, {1024*g}")
    def wd_job_finish(self):
        k = self.k; r = self.JV
        k.wait(self.job_tok)
        t = {}
        for nt in range(4):
            for hf in range(2): t[nt] = k(f"ds_read_b64_tr_b16 {a(128 + 4*nt + 2*hf, 2)}, {v(r+4)} offset:{hf*512 + nt*32}")
        for nt in range(4):
            k.wait(t[nt])
            self.job_st = k(f"buffer_store_dwordx4 {a(128 + 4*nt, 4)}, {v(r+5)}, {s(RW,4)}, 0 offen offset:{1024*nt} sc1")
    WDV = 226
    def wd_addr(self):
        self.k(f"""s_and_b32 {s(T[0])}, {s(sJ)}, 7
                   s_lshl_b32 {s(T[0])}, {s(T[0])}, 2
                   s_add_u32 {s(T[0])}, {s(T[0])}, {s(sW)}
                   s_mul_i32 {s(sJFp)}, {s(T[0])}, {14*4}
                   s_add_u32 {s(sJFp)}, {s(sJFp)}, {WS_JF}
                   s_mul_i32 {s(T[0])}, {s(T[0])}, {14*4096}
                   s_add_u32 {s(T[0])}, {s(T[0])}, {WS_WDT}
                   v_add_u32 {v(vWd[0])}, {s(T[0])}, {v(vL16)}
                   v_add_u32 {v(vWd[1])}, 32768, {v(vWd[0])}
                   v_min_u32 v226, 13, {v(vL)}
                   v_lshlrev_b32 v226, 2, v226""")
    def wd_touch_text(self, i):
        return f"buffer_load_dword {v(228+i)}, v227, {s(RW,4)}, {k4(i)} offen offset:{3072*i} sc1"
    def wd_text(self, n):
        U, nt = divmod(n, 4)
        return f"buffer_load_dwordx4 {a(4*n, 4)}, {v(vWd[U >> 3])}, {s(RW,4)}, {k4(U & 7)} offen offset:{1024*nt}{self.o.get('wdm', ' sc1')}"

    def phase0(self):
        k = self.k
        k(f"""v_lshrrev_b32 v5, 4, {v(vL)}
              v_bfe_u32 v48, {v(vL)}, 2, 2
              v_lshl_add_u32 v49, v5, 4, v48
              v_lshlrev_b32 v49, 7, v49
              v_bfe_u32 v50, {v(vL)}, 1, 1
              s_lshl_b32 {s(T[0])}, {s(sW)}, 1
              v_add_u32 v50, {s(T[0])}, v50
              v_and_b32 v48, 2, v48
              v_xor_b32 v50, v50, v48
              v_and_b32 v48, 1, v5
              v_lshlrev_b32 v48, 2, v48
              v_xor_b32 v50, v50, v48
              v_lshl_add_u32 v49, v50, 4, v49
              v_and_b32 v48, 1, {v(vL)}
              v_lshl_add_u32 v49, v48, 3, v49
              v_add_u32 v49, {L_K}, v49
              v_xor_b32 v50, 64, v49
              v_lshlrev_b32 v51, 12, v27
              v_lshl_add_u32 v51, v5, 5, v51
              s_lshl_b32 {s(T[6])}, {s(sJ)}, 7
              s_add_u32 {s(T[6])}, {s(T[6])}, {WS_KVT}
              v_mul_u32_u24 v52, {self.o.get('xs', 4)//4}, {v(vP31)}
              s_mul_i32 {s(T[7])}, {s(sX)}, {32*self.o.get('xs', 4)}
              s_add_u32 {s(T[7])}, {s(T[7])}, {WS_XCCF}
              s_lshl_b32 {s(T[0])}, {s(sX)}, 9
              s_lshl_b32 {s(T[1])}, {s(sW)}, 7
              s_lshl_b32 {s(T[2])}, {s(sJ)}, 2
              s_add_u32 {s(T[1])}, {s(T[1])}, {s(T[2])}
              s_add_u32 {s(T[0])}, {s(T[0])}, {WS_KVF}
              s_add_u32 {s(T[5])}, {s(T[1])}, {s(T[0])}
              s_xor_b32 {s(T[0])}, {s(sN)}, {s(sXCC)}
              s_mov_b32 {s(sMODE)}, 0
              s_mov_b32 {s(sEXP)}, {s(sN)}""")
        k.wait(self.sh_tok)
        k("s_barrier")
        self.stamp('kv_in')
        xh = k(f"buffer_load_dword v53, v52, {s(RW,4)}, {s(T[7])} offen sc1")
        KR, VR, KS, O, VU, P = 56, 68, 78, 88, 104, 120
        k(f"ds_read_b64_tr_b16 {v(KR,2)}, v50 offset:512")
        for i in range(4): k(f"ds_read_b64_tr_b16 {v(KR+2+2*i,2)}, v49 offset:{1024 + 512*i}")
        for i in range(4): lastv = k(f"ds_read_b64_tr_b16 {v(VR+2*i,2)}, v49 offset:{L_V - L_K + 512*i}")
        k("v_alignbit_b32 v54, v30, v30, 16\nv_alignbit_b32 v55, v31, v31, 16")
        k.wait(('lg', lastv[1] - 4))
        for aa in range(-1, 8): k(f"v_alignbit_b32 {v(KS+1+aa)}, {v(KR+2+aa)}, {v(KR+1+aa)}, 16")
        for aa in range(8):
            k(f"v_dot2_f32_bf16 {v(O+2*aa)}, {v(KS+aa)}, v55, 0")
            k(f"v_dot2_f32_bf16 {v(O+2*aa+1)}, {v(KR+1+aa)}, v55, 0")
        for aa in range(8):
            k(f"v_dot2_f32_bf16 {v(O+2*aa)}, {v(KS+1+aa)}, v54, {v(O+2*aa)}")
            k(f"v_dot2_f32_bf16 {v(O+2*aa+1)}, {v(KR+2+aa)}, v54, {v(O+2*aa+1)}")
        k.wait(lastv)
        for g in range(2):
            for aa in range(4*g, 4*g+4):
                k(f"v_lshlrev_b32 {v(VU+2*aa)}, 16, {v(VR+aa)}")
                k(f"v_and_b32 {v(VU+2*aa+1)}, 0xffff0000, {v(VR+aa)}")
            for aa in range(4*g, 4*g+4): k(f"v_pk_mul_f32 {v(O+2*aa,2)}, {v(O+2*aa,2)}, {v(VU+2*aa,2)}")
            for e in range(4): k(f"v_cvt_pk_bf16_f32 {v(P+4*g+e)}, {v(O+8*g+7-2*e)}, {v(O+8*g+6-2*e)}")
            st = k(f"buffer_store_dwordx4 {v(P+4*g,4)}, v51, {s(RW,4)}, {s(T[6])} offen offset:{16*g}")
        self.stamp('kv_st')
        self.toeplitz_write()
        slow, back, done = k.label(), k.label(), k.label()
        k.wait(xh)
        k(f"v_cmp_ne_u32 vcc, {s(T[0])}, v53\ns_cbranch_vccnz {slow}")
        k.place(back)
        self.tail.append([f"{slow}:",
            f"buffer_load_dword v53, v52, {s(RW,4)}, {s(T[7])} offen sc1", "s_waitcnt vmcnt(0)",
            f"v_xor_b32 v54, {s(sN)}, v53", "v_cmp_lt_u32 vcc, 15, v54", f"s_cbranch_vccz {done}",
            f"s_sub_u32 {s(sSPIN)}, {s(sSPIN)}, 1", f"s_cbranch_scc0 {slow}", "s_branch L_END",
            f"{done}:", f"v_cmp_ne_u32 vcc, {s(T[0])}, v53", f"s_cbranch_vccz {back}",
            f"s_mov_b32 {s(sMODE)}, 1", f"s_not_b32 {s(sEXP)}, {s(sN)}", f"s_branch {back}"])
        self.publish(st, s(T[5]))
        self.stamp('kv_pub')

    def toeplitz_write(self):
        k = self.k
        k.wait(self.h_tok)
        k(f"v_add_u32 v48, {SCR}, v29")
        for ch in range(2):
            k(f"ds_write_b128 v48, {v(32+8*ch,4)} offset:{H_E(ch) - SCR}")
            k(f"ds_write_b128 v48, {v(36+8*ch,4)} offset:{H_O(ch) - SCR}")
        skip = k.label()
        k(f"s_cmp_lg_u32 {s(sW)}, 0\ns_cbranch_scc1 {skip}")
        k(f"""v_readfirstlane_b32 {s(T[1])}, v32
              v_readfirstlane_b32 {s(T[2])}, v40
              v_cmp_eq_u32 vcc, 28, {v(vP7)}
              v_add_u32 v49, {SCR}, {v(vP7)}
              s_lshl_b32 {s(T[1])}, {s(T[1])}, 16
              s_lshl_b32 {s(T[2])}, {s(T[2])}, 16
              v_mov_b32 v50, 0
              v_mov_b32 v51, 0
              v_mov_b32 v54, {s(T[1])}
              v_mov_b32 v55, {s(T[2])}
              v_cndmask_b32 v54, v50, v54, vcc
              v_cndmask_b32 v55, v50, v55, vcc
              ds_write_b32 v49, v50 offset:{H_E(0) - 32 - SCR}
              ds_write_b32 v49, v50 offset:{H_E(1) - 32 - SCR}
              ds_write_b32 v49, v54 offset:{H_O(0) - 32 - SCR}
              ds_write_b32 v49, v55 offset:{H_O(1) - 32 - SCR}
              v_lshlrev_b32 v49, 3, {v(vL)}
              v_add_u32 v49, {L_U}, v49
              ds_write_b64 v49, v[50:51]
              ds_write_b64 v49, v[50:51] offset:{U_S}""")
        k.place(skip)

    YA = 146
    def front_addr(self):
        k = self.k; o = self.o; Y = self.YA; yfs = o.get('yfs', 4)
        k(f"""v_and_b32 v24, 15, {v(vL)}
              v_lshrrev_b32 v25, 4, {v(vL)}
              v_lshlrev_b32 v5, 3, v25
              v_sub_u32 v26, v24, v5
              v_add_u32 v26, 9, v26
              v_and_b32 v5, 1, v26
              v_sub_u32 v26, v26, v5
              v_lshlrev_b32 v26, 1, v26
              v_mul_u32_u24 v5, {H_O(0) - H_E(0)}, v5
              v_add_u32 v26, v26, v5
              s_lshr_b32 {s(T[0])}, {s(sW)}, 1
              s_mul_i32 {s(T[2])}, {s(T[0])}, {H_E(1) - H_E(0)}
              s_and_b32 {s(T[1])}, {s(sW)}, 1
              s_lshl_b32 {s(T[3])}, {s(T[1])}, 8
              s_add_u32 {s(T[2])}, {s(T[2])}, {s(T[3])}
              s_add_u32 {s(T[2])}, {s(T[2])}, {H_E(0)}
              v_add_u32 v152, {s(T[2])}, v26
              s_mul_i32 {s(T[4])}, {s(T[0])}, {U_S}
              s_add_u32 {s(T[4])}, {s(T[4])}, {L_U + 512}
              s_lshl_b32 {s(T[2])}, {s(T[1])}, 11
              s_add_u32 {s(sUm0)}, {s(T[4])}, {s(T[2])}
              s_sub_u32 {s(T[4])}, {s(T[4])}, {s(T[3])}
              s_sub_u32 {s(T[4])}, {s(T[4])}, 224
              v_lshlrev_b32 v140, 5, v24
              v_lshl_add_u32 v140, v25, 4, v140
              v_add_u32 v140, {s(T[4])}, v140
              s_lshl_b32 {s(T[0])}, {s(sX)}, 9
              s_lshr_b32 {s(T[1])}, {s(sJ)}, 3
              s_lshl_b32 {s(T[1])}, {s(T[1])}, 7
              s_add_u32 {s(T[1])}, {s(T[0])}, {s(T[1])}
              s_add_u32 {s(sKVFp)}, {s(T[1])}, {WS_KVF}
              s_lshl_b32 {s(T[1])}, {s(sJ)}, 4
              s_add_u32 {s(T[0])}, {s(T[0])}, {s(T[1])}
              s_add_u32 {s(sYld)}, {s(T[0])}, {WS_YP}
              s_lshl_b32 {s(T[0])}, {s(sX)}, 18
              s_lshl_b32 {s(T[1])}, {s(sJ)}, 13
              s_add_u32 {s(T[0])}, {s(T[0])}, {s(T[1])}
              s_lshl_b32 {s(T[2])}, {s(sW)}, 11
              s_add_u32 {s(T[1])}, {s(T[0])}, {s(T[2])}
              s_add_u32 {s(sKVs)}, {s(T[1])}, {WS_KVT}
              s_lshl_b32 {s(T[2])}, {s(sW)}, 10
              s_add_u32 {s(T[1])}, {s(T[0])}, {s(T[2])}
              s_add_u32 {s(sYst)}, {s(T[1])}, {WS_YP}
              v_lshlrev_b32 v141, 5, v24
              v_lshrrev_b32 v5, 1, v25
              v_lshl_add_u32 v141, v5, 4, v141
              v_and_b32 v5, 1, v25
              v_xor_b32 v5, 1, v5
              v_lshl_add_u32 v141, v5, 3, v141
              s_lshl_b32 {s(T[0])}, {s(sW)}, 9
              s_add_u32 {s(T[1])}, {s(T[0])}, {L_U + 512}
              v_add_u32 v141, {s(T[1])}, v141
              s_add_u32 {s(T[1])}, {s(T[2])}, {L_YT}
              v_add_u32 {v(Y+3)}, {s(T[1])}, {v(vL16)}
              s_lshl_b32 {s(T[0])}, {s(sW)}, 12
              s_add_u32 {s(T[0])}, {s(T[0])}, {L_CRED}
              v_add_u32 v142, {s(T[0])}, {v(vL16)}
              s_add_u32 {s(T[0])}, {s(T[2])}, {L_CRED}
              v_add_u32 v143, {s(T[0])}, {v(vL16)}
              v_lshlrev_b32 v144, 6, v24
              v_lshl_add_u32 v144, v25, 4, v144
              v_add_u32 v145, 4096, v144
              s_lshl_b32 {s(T[0])}, {s(sX)}, 5
              s_add_u32 {s(T[0])}, {s(T[0])}, {s(sJ)}
              s_lshl_b32 {s(T[0])}, {s(T[0])}, 2
              s_add_u32 {s(T[0])}, {s(T[0])}, {s(T[2])}
              s_mul_i32 {s(T[0])}, {s(T[0])}, {yfs//4}
              s_add_u32 {s(sYFs)}, {s(T[0])}, {WS_YF}
              v_lshlrev_b32 {v(Y+2)}, 2, v0
              v_mul_u32_u24 {v(Y)}, {yfs}, v0
              s_lshr_b32 {s(T[0])}, {s(sX)}, 1
              s_mul_i32 {s(T[0])}, {s(T[0])}, {256*yfs}
              s_add_u32 {s(sYFp)}, {s(T[0])}, {WS_YF}
              v_lshlrev_b32 {v(Y+1)}, 13, v0
              v_add_u32 {v(Y+2)}, {L_YT}, {v(Y+2)}""")
        for p in range(1, 8): k(f"v_add_u32 {v(152+p)}, {512*p}, v152")

    def conv_finish(self, h, C, pk):
        KV, P = 32, 160 + 16*h
        W = [f"ds_write_b128 v142, {v(C + 16*h + 4*c, 4)} offset:{16384*h + 1024*c}" for c in range(4)]
        R = [f"ds_read_b64 {v(KV + 4*h + 2*ch, 2)}, v141 offset:{2048*h + ch*U_S}" for ch in range(2)]
        R2 = [f"ds_read_b128 {v(P + 4*w, 4)}, v143 offset:{16384*h + 4096*w}" for w in range(4)]
        L = []
        for ch in range(2):
            if pk: L += [f"v_pk_add_f32 {v(P+8*ch+e,2)}, {v(P+8*ch+e,2)}, {v(P+8*ch+4+e,2)}" for e in (0, 2)]
            else: L += [f"v_add_f32 {v(P+8*ch+e)}, {v(P+8*ch+e)}, {v(P+8*ch+4+e)}" for e in range(4)]
        D = [f"v_dot2_f32_bf16 {v(P+8*ch+e)}, {v(KV+4*h+2*ch+(1-(e>>1)))}, {s(sD+2*ch+(1-(e&1)))}, {v(P+8*ch+e)}" for e in range(4) for ch in range(2)]
        E = [f"v_cvt_pk_bf16_f32 {v(P+4+e)}, {v(P+e)}, {v(P+8+e)}" for e in range(4)]
        E.append(f"buffer_store_dwordx4 {v(P+4,4)}, {v(144+h)}, {s(RW,4)}, {s(sYst)} offen sc1")
        return W, R, R2, L, D, E

    def conv(self):
        k = self.k; o = self.o; Y = self.YA
        def tz(rr, p):
            d = (rr*8 + p)*4
            return [f"ds_read2_b32 {a(d,2)}, {v(152+p)} offset0:{16*rr} offset1:{16*rr+1}",
                    f"ds_read2_b32 {a(d+2,2)}, {v(152+p)} offset0:{16*rr+2} offset1:{16*rr+3}"]
        first = [x for rr in range(4) for p in range(4) for x in tz(rr, p)]
        second = [x for rr in range(4) for p in range(4, 8) for x in tz(rr, p)]
        k.wait_lg0()
        k("s_barrier")
        n0 = o.get('toep0', 20)
        ph = self.poll_issue(vP31, s(sKVFp))
        for x in first[:n0]: k(x)
        self.stamp('toep')
        self.poll_check(ph)
        self.stamp('kv_seen')
        k(f"s_mov_b32 m0, {s(sUm0)}")
        k(f"buffer_load_dwordx4 {v(vL16)}, {s(RW,4)}, {s(sKVs)} offen sc1 lds")
        tok = k(f"buffer_load_dwordx4 {v(vL16)}, {s(RW,4)}, {s(sKVs)} offen offset:1024 sc1 lds")
        for x in first[n0:]: k(x)
        k.wait(tok)
        k("s_barrier")
        self.stamp('u_in')
        B, C = 64, 96
        uses = [(0, rr, q) for rr in range(4) for q in range(4)] + [(1, rr, q) for rr in range(4) for q in range(8)]
        bt = {}
        def rdB(i):
            part, rr, q = uses[i]
            bt[i] = k(f"ds_read_b128 {v(B + 4*(i % 8), 4)}, v140 offset:{512*q + 64*(3-rr)}")
        for i in range(8): rdB(i)
        pre = []
        if o.get('jpos', 0) == 0: self.wd_job_issue()
        if not o.get('joint', 1): self.q_load()
        tq = Queue(k, [Item(x) for x in second]); tits = list(tq.q)
        n2 = o.get('n2', 11); dq = []
        for i in range(n2):
            if self.w1_next >= 14: break
            n = self.w1_next; self.w1_next += 1
            for x in self.w1_dma_text(n): dq.append(Item(x, at=o.get('n2at', 2) + i*(o.get('n2span', 130) // n2), tag=n))
        dits = list(dq); dq = Queue(k, dq)
        side = Queue(k, []); ybox = []
        m = 0; started = set()
        for i, (part, rr, q) in enumerate(uses):
            need = []
            if part == 1 and q == 0:
                while any(x.tok is None for x in tits[:8*rr + 8]): tq.emit(tq.q[0])
                need = [tits[8*rr + 7].tok]
            if part == 1 and rr == 0 and q == 0:
                W, R, R2, L, D, E = self.conv_finish(0, C, False)
                its = [Item(x, cost=2, at=m + 3 + 2*n) for n, x in enumerate(W)] + [Item(x) for x in R]
                its += [Item(fn=lambda: k.wait_lg0(), at=m + 16), Item(fn=lambda: k("s_barrier"))]
                its += [Item(x) for x in R2]; lastr = its[-1]
                its += [Item(fn=lambda: k.wait(lastr.tok), at=m + 26)] + [Item(x) for x in L]
                its += [Item(fn=lambda: [k(x) for x in D], cost=2)] + [Item(x) for x in E]
                ysA = its[-1]
                if not o.get('joint', 1): its += [Item(fn=lambda: k.wait(ysA.tok), at=o.get('ya_pub', 118)), Item(fn=lambda: self.flag_store(s(sYFs), 0, False))]
                side = Queue(k, its)
            if i % 2 == 0: k.wait(bt[i + 1], *need)
            ps = range(4 - q) if part == 0 else range(max(0, 4 - q), 8 - q)
            for n, p in enumerate(ps):
                c = C + 4*(p + q)
                src = v(c, 4) if (p + q) in started else '0'
                started.add(p + q)
                k(f"v_mfma_f32_16x16x32_bf16 {v(c,4)}, {a((rr*8+p)*4,4)}, {v(B + 4*(i % 8),4)}, {src}")
                m += 1
                cap = 2
                if n == len(ps) - 1: cap -= (1 if i + 8 < len(uses) else 0) + (i % 2)
                cap = side.fill(cap, m)
                cap = dq.fill(cap, m)
                tq.fill(min(cap, 1))
            if i + 8 < len(uses): rdB(i + 8)
        print('conv left:', side.cost(), dq.cost())
        dq.drain()
        for x in dits: self.w1_tok[x.tag] = x.tok
        self.stamp('conv_mfma')
        W, R, R2, L, D, E = self.conv_finish(1, C, True)
        for x in R + W: k(x)
        side.drain()
        k.wait_lg0()
        k("s_barrier")
        for x in R2: k(x)
        if not o.get('joint', 1): pa = self.poll_issue(Y, s(sYFp))
        k.wait_lg0()
        self.ysB = self.run(L + D + E)[-1].tok
        self.stamp('y_st')
        if not o.get('joint', 1):
            self.poll_check(pa, False)
            self.stamp('y_seen')

    def y_joint(self):
        k = self.k; o = self.o; Y = self.YA
        self.wd_job_finish()
        self.persistent()
        self.publish(self.ysB, s(sYFs), local=False)
        self.stamp('y_pub')
        self.publish(self.job_st, s(sJF), local=False)
        k("s_barrier")
        done0 = self.w1_next >= 14
        self.q_load()
        self.w1_dma(o.get('n3', 4))
        self.w1_relayout_addr()
        self.wd_addr()
        k(f"s_add_u32 {s(T[8])}, {s(sYld)}, 4096")
        if done0: self.w1_relayout(0)
        self.q_stats()
        k(f"s_mul_i32 {s(sAG[0])}, {s(sW)}, 1088\ns_add_u32 {s(sAG[0])}, {s(sAG[0])}, {L_AG2}\ns_lshl_b32 {s(sAG[1])}, {s(sW)}, 8\ns_add_u32 {s(sAG[1])}, {s(sAG[1])}, {L_AG2}")
        self.run(self.ag_addr(100))
        self.stamp('rl0')
        self.poll(Y, s(sYFp), local=False)
        self.stamp('y_seen')
        t0 = k(f"buffer_load_dwordx4 v[32:35], {v(Y+1)}, {s(RW,4)}, {s(sYld)} offen sc1")
        t1 = k(f"buffer_load_dwordx4 v[36:39], {v(Y+1)}, {s(RW,4)}, {s(T[8])} offen sc1")
        pj = self.poll_issue(226, s(sJFp), 0, 229)
        self.w1_dma(o.get('n4', 6))
        if o.get('tch_h', 0) == 1: k(self.touch_h_text())
        if not done0 and self.w1_next >= 14: self.w1_relayout(0); done0 = True
        k.wait(t0)
        for e in range(4): k(f"ds_write_b32 {v(Y+2)}, {v(32+e)} offset:{1024*e}")
        k.wait(t1)
        for e in range(4): k(f"ds_write_b32 {v(Y+2)}, {v(36+e)} offset:{1024*(4+e)}")
        k.wait_lg0()
        k("s_barrier")
        for h in range(2): k(f"ds_read_b128 {v(YS[h],4)}, {v(Y+3)} offset:{4096*h}")
        k.wait_lg0()
        self.stamp('y_in')
        its = self.run(self.gate_norm([0, 1], self.N0, 0, 56))
        sts = self.a_out([0, 1], 56) if o.get('ag', 1) else [x.tok for x in its if 'store' in x.text]
        self.stamp('a_st')
        self.poll_check(pj, False)
        if done0: self.gemm1_start(0)
        self.publish(sts[0], s(sAFs), 0)
        self.publish(sts[1], s(sAFs), 512)
        k(f"s_or_b32 {s(T[0])}, s2, {s(sW)}\ns_cmp_eq_u32 {s(T[0])}, 0\ns_cselect_b32 {s(T[0])}, 0, 0x40000000")
        k(f"buffer_store_dword {v(vNON)}, {v(vL0)}, {s(RW,4)}, {s(T[0])} offen sc1")
        self.stamp('a_pub')
        self.rl1_done = bool(o.get('rl1_front', 0)); self.rowb_done = True
        self.wd0 = o.get('wd0', 0)
        for n in range(self.wd0): k(self.wd_text(n))
        self.w1_dma(28 if self.rl1_done else o.get('n5', 4))
        if self.w1_next < 28:
            for i in range(7): k(f"v_mov_b32 {v(126+i)}, {v(self.W1V+i)}")
            self.W1V = 126
        if not done0: self.w1_relayout(0)
        if self.rl1_done: self.w1_relayout(1)
        if self.rl1_done or not done0: k.wait_lg0(); k("s_barrier")
        if not done0: self.gemm1_start(0)

    def stats(self, rows, out, t0, scale=None):
        L = []; n = len(rows)
        for i, x in enumerate(rows):
            b = t0 + 6*i
            L += [f"v_pk_add_f32 {v(b,2)}, {v(x,2)}, {v(x+2,2)}", f"v_pk_mul_f32 {v(b+2,2)}, {v(x,2)}, {v(x,2)}",
                  f"v_pk_add_f32 {v(b+4,2)}, {v(x+4,2)}, {v(x+6,2)}"]
            L += [f"v_pk_fma_f32 {v(b+2,2)}, {v(x+e,2)}, {v(x+e,2)}, {v(b+2,2)}" for e in (2, 4, 6)]
            L += [f"v_pk_add_f32 {v(b,2)}, {v(b,2)}, {v(b+4,2)}", f"v_add_f32 {v(b+2)}, {v(b+2)}, {v(b+3)}", f"v_add_f32 {v(b)}, {v(b)}, {v(b+1)}"]
        for ctl in ("row_ror:8 row_mask:0xf", "row_ror:4 row_mask:0xf", "row_ror:2 row_mask:0xf", "row_ror:1 row_mask:0xf",
                    "row_bcast:15 row_mask:0xa", "row_bcast:31 row_mask:0xc"):
            for i in range(n):
                for e in (2, 0):
                    r = t0 + 6*i + e
                    L.append(f"v_add_f32_dpp {v(r)}, {v(r)}, {v(r)} {ctl} bank_mask:0xf")
        for i in range(n):
            b = t0 + 6*i
            L += [f"v_mul_f32 {v(b)}, 0x3b000000, {v(b)}", f"v_mul_f32 {v(b+2)}, 0x3b000000, {v(b+2)}",
                  f"v_fma_f32 {v(b+2)}, -{v(b)}, {v(b)}, {v(b+2)}", f"v_max_f32 {v(b+2)}, 0, {v(b+2)}",
                  f"v_add_f32 {v(b+2)}, 0x3727c5ac, {v(b+2)}", f"v_rsq_f32 {v(b+2)}, {v(b+2)}"]
            if scale: L.append(f"v_mul_f32 {v(b+2)}, {f32(scale)}, {v(b+2)}")
            L += [f"v_mul_f32_e64 {v(b)}, -{v(b)}, {v(b+2)}", f"v_readlane_b32 {s(out[i])}, {v(b+2)}, 63",
                  f"v_readlane_b32 {s(out[i]+2)}, {v(b)}, 63", f"s_mov_b32 {s(out[i]+1)}, {s(out[i])}",
                  f"v_mov_b32 {v(b+4)}, {s(out[i]+2)}", f"v_mov_b32 {v(b+5)}, {s(out[i]+2)}"]
        return L
    def unpack(self, dst, src):
        L = []
        for e in range(4): L += [f"v_lshlrev_b32 {v(dst+2*e)}, 16, {v(src+e)}", f"v_and_b32 {v(dst+2*e+1)}, 0xffff0000, {v(src+e)}"]
        return L
    def affine(self, dst, x, sp, vb):
        return [f"v_pk_fma_f32 {v(dst+e,2)}, {v(x+e,2)}, {s(sp,2)}, {v(vb,2)}" for e in (0, 2, 4, 6)]
    def run(self, L, look=12):
        its = [Item(x) for x in L]
        Queue(self.k, its, look).drain()
        return its

    def gate_norm(self, halves, nrm, layer, R):
        L = []; sp = [36, 40]
        t0 = R + 16*len(halves)
        for i, h in enumerate(halves):
            L += self.unpack(R + 16*i, YS[h])
            L += [f"v_pk_fma_f32 {v(XS[h]+e,2)}, {v(nrm[h]+e,2)}, {v(R+16*i+e,2)}, {v(XS[h]+e,2)}" for e in (0, 2, 4, 6)]
        L += self.stats([XS[h] for h in halves], sp[:len(halves)], t0, LOG2E)
        for i, h in enumerate(halves):
            b = R + 16*i
            L += self.affine(b, XS[h], sp[i], t0 + 6*i + 4)
            L += [f"v_cvt_pk_bf16_f32 {v(b+8+e)}, {v(b+2*e)}, {v(b+2*e+1)}" for e in range(4)]
            if self.o.get('ag', 1): L.append(f"ds_write_b128 {v(self.agw)}, {v(b+8,4)} offset:{L_AG - L_AG2 if i == 0 else 0}")
            else: L.append(f"buffer_store_dwordx4 {v(b+8,4)}, {v(vAst)}, {s(RW,4)}, {s(sHALF) if h else 0} offen")
            if layer == 1:
                L += [f"v_cvt_pk_bf16_f32 {v(b+12+e)}, {v(XS[h]+2*e)}, {v(XS[h]+2*e+1)}" for e in range(4)]
                L.append(f"buffer_store_dwordx4 {v(b+12,4)}, {v(vFr)}, {s(RW,4)}, {s(sFR[h])} offen{self.o.get('x3m', '')}")
        return L

    def ag_addr(self, r):
        if not self.o.get('ag', 1): return []
        self.agw, self.agr = r, r + 1
        return [f"v_bfe_u32 {v(r+1)}, {v(vL16)}, 4, 2", f"v_mul_u32_u24 {v(r+1)}, 1088, {v(r+1)}", f"v_lshrrev_b32 {v(r)}, 6, {v(vL16)}",
                f"v_lshl_add_u32 {v(r+1)}, {v(r)}, 4, {v(r+1)}", f"v_add_u32 {v(r+1)}, {s(sAG[1])}, {v(r+1)}", f"v_add_u32 {v(r)}, {s(sAG[0])}, {v(vL16)}"]
    def a_out(self, halves, R, between=None):
        k = self.k
        if between: between()
        k.wait_lg0(); k("s_barrier")
        t = [k(f"ds_read_b128 {v(R + 4*i, 4)}, {v(self.agr)} offset:{L_AG - L_AG2 if i == 0 else 0}") for i in range(len(halves))]
        out = []
        for i, h in enumerate(halves):
            k.wait(t[i])
            out.append(k(f"buffer_store_dwordx4 {v(R + 4*i, 4)}, {v(vAst)}, {s(RW,4)}, {s(sHALF) if h else 0} offen"))
        return out

    N0 = [40, 118]
    def q_stats(self):
        k = self.k
        k.wait(self.q_tok)
        L = []
        for h in range(2): L += self.unpack(XS[h], 204 + 4*h)
        L += self.stats(XS, [36, 40], 128)
        for h in range(2): L += self.affine(self.N0[h], XS[h], [36, 40][h], 128 + 6*h + 4)
        self.run(L)

    def y_row(self, h, t, raw):
        k = self.k; Y = self.YA
        k.wait(t)
        for e in range(4): k(f"ds_write_b32 {v(Y+2)}, {v(raw+e)} offset:{4096*h + 1024*e}")
        k.wait_lg0()
        k("s_barrier")
        k(f"ds_read_b128 {v(YS[h],4)}, {v(Y+3)} offset:{4096*h}")
        k.wait_lg0()

    def y_in(self):
        k = self.k; o = self.o; Y = self.YA
        t0 = k(f"buffer_load_dwordx4 v[32:35], {v(Y+1)}, {s(RW,4)}, {s(sYld)} offen sc1")
        k(f"s_add_u32 {s(sYFs)}, {s(sYFs)}, {1024*o.get('yfs', 4)}\ns_add_u32 {s(sYFp)}, {s(sYFp)}, {1024*o.get('yfs', 4)}\ns_add_u32 {s(sYld)}, {s(sYld)}, 4096")
        self.publish(self.ysB, s(sYFs), local=False)
        self.stamp('y_pub')
        if o.get('jpos', 0) == 0: self.wd_job_finish()
        self.q_stats()
        self.persistent()
        k("s_barrier")
        self.w1_dma(o.get('n4', 6))
        self.y_row(0, t0, 32)
        self.stamp('y_in')
        its = self.run(self.gate_norm([0], self.N0, 0, 56))
        st = [x.tok for x in its if 'store' in x.text][0]
        self.stamp('a_st')
        for i in range(4): k(f"v_mov_b32 {v(110+i)}, {v(Y+i)}")
        self.YA = 110
        if self.w1_next + o.get('n5', 28) < 28:
            for i in range(7): k(f"v_mov_b32 {v(126+i)}, {v(self.W1V+i)}")
            self.W1V = 126
        self.w1_relayout_addr()
        self.publish(st, s(sAFs), 0)
        self.flag_store(s(sJF), 0, False)
        k(f"s_or_b32 {s(T[0])}, s2, {s(sW)}\ns_cmp_eq_u32 {s(T[0])}, 0\ns_cselect_b32 {s(T[0])}, 0, 0x40000000")
        k(f"buffer_store_dword {v(vNON)}, {v(vL0)}, {s(RW,4)}, {s(T[0])} offen sc1")
        self.stamp('a_pub')
        self.w1_dma(o.get('n5', 28))
        self.w1_relayout(0)
        self.wd_addr()
        self.rl1_done = bool(o.get('rl1_front', 1))
        if self.rl1_done:
            if o.get('rowb_front', 1): self.row_b0()
            self.w1_relayout(1)
        k.wait_lg0(); k("s_barrier")
        self.stamp('w1')
        self.gemm1_start(0)

    def row_b0(self, h0=None):
        k = self.k; Y = self.YA
        if h0 is None:
            self.poll(Y, s(sYFp), local=False)
            h0 = k(f"buffer_load_dwordx4 v[106:109], {v(Y+1)}, {s(RW,4)}, {s(sYld)} offen sc1")
        self.y_row(1, h0, 106)
        its = self.run(self.gate_norm([1], self.N0, 0, ACC[1]))
        self.aB_tok = [x.tok for x in its if 'store' in x.text][0]
        self.rowb_done = True
        if self.o.get('rowb_front', 1) and self.rl1_done: self.publish(self.aB_tok, s(sAFs), 512)

    def epilogue1(self, B, half, off, pk, sc=''):
        L = []; so = s(sHH) if half else '0'
        def grp(g, u, n, outs, t):
            for e in range(n): L.append(f"v_exp_f32_e64 {v(t+e)}, -{v(g+e)}")
            if pk:
                for e in range(0, n, 2): L.append(f"v_pk_mul_f32 {v(u+e,2)}, {v(g+e,2)}, {v(u+e,2)}")
                for e in range(0, n, 2): L.append(f"v_pk_fma_f32 {v(t+e,2)}, {v(t+e,2)}, {s(sC2,2)}, {s(sC2,2)}")
            else:
                for e in range(n): L.append(f"v_mul_f32 {v(u+e)}, {v(g+e)}, {v(u+e)}")
                for e in range(n): L.append(f"v_fma_f32 {v(t+e)}, {v(t+e)}, {s(sC2)}, {s(sC2)}")
            for e in range(n): L.append(f"v_rcp_f32 {v(t+e)}, {v(t+e)}")
            if pk:
                for e in range(0, n, 2): L.append(f"v_pk_mul_f32 {v(u+e,2)}, {v(u+e,2)}, {v(t+e,2)}")
            else:
                for e in range(n): L.append(f"v_mul_f32 {v(u+e)}, {v(u+e)}, {v(t+e)}")
            for e in range(0, n, 2): L.append(f"v_cvt_pk_bf16_f32 {v(outs[e//2])}, {v(u+e)}, {v(u+e+1)}")
        grp(B, B+4, 4, [B, B+1], TMP)
        grp(B+8, B+12, 4, [B+2, B+3], TMP+4)
        L.append(f"buffer_store_dwordx4 {v(B,4)}, {v(vHm)}, {s(RW,4)}, {so} offen offset:{off}{sc}")
        grp(B+16, B+20, 4, [B+8, B+9], TMP)
        grp(B+24, B+26, 2, [B+10], TMP+4)
        Z, C, A_ = B+4, B+5, B+6
        L += [f"v_mov_b32 {v(C)}, {v(B+8)}", f"v_mov_b32 {v(A_)}, {v(B+9)}", f"v_mov_b32 {v(Z)}, {v(B+10)}",
              f"v_permlane32_swap_b32 {v(A_)}, {v(B+11)}", f"v_permlane32_swap_b32 {v(C)}, {v(Z)}",
              f"v_permlane16_swap_b32 {v(Z)}, {v(B+11)}",
              f"buffer_store_dwordx4 {v(B+8,4)}, {v(vHt)}, {s(RW,4)}, {so} offen offset:{off}{sc}"]
        return L

    def a_plan(self, layer):
        n = self.o.get('ring0', 8) if layer == 0 else self.o.get('ring1', 4)
        ring = ([('v', AR + 8*i) for i in range(4)] + [('a', 224 + 8*i) for i in range(4)])[:n]
        reg = {gs: ring[gs % n] for gs in range(32)}
        issue = {}
        for gs in range(32):
            prev = [p for p in range(gs) if reg[p] == reg[gs]]
            issue[gs] = prev[-1] + 1 if prev else -1
        return reg, issue

    def gemm1_start(self, layer):
        k = self.k
        self.wt, self.at = {}, {}
        self.areg, self.aiss = self.a_plan(layer)
        for Tt in range(7): self.rdW(0, Tt)
    def rdW(self, gs, Tt):
        st = gs % 16
        base, o = (vL16, st*7168) if st < 8 else (vW1, (st-8)*7168)
        self.wt[(gs, Tt)] = self.k(f"ds_read_b128 {v(WF + 28*(gs&1) + 4*Tt, 4)}, {v(base)} offset:{o + 1024*Tt}")
    def afrag(self, gs, mt):
        kind, b = self.areg[gs]
        return (v if kind == 'v' else a)(b + 4*mt, 4)
    def ldA(self, gs, mt):
        st = gs % 16
        self.at[(gs, mt)] = self.k(f"buffer_load_dwordx4 {self.afrag(gs, mt)}, {v(vAld[gs // 16])}, {s(RW,4)}, {k4(st>>1)} offen offset:{((st&1)*2+mt)*1024} sc1")

    def gemm1(self, layer):
        k = self.k; o = self.o
        lo = 1024*layer
        if layer: self.poll_check(self.a_poll)
        else: self.poll(vP31, s(sAFp), lo)
        self.stamp(f'a_seen{layer}')
        todo = sorted(range(32), key=lambda g: g)
        nxtA = 0
        while self.aiss[nxtA] < 0 and nxtA < o.get('a_init', 5):
            for mt in range(2): self.ldA(nxtA, mt)
            nxtA += 1
        w1q = []
        if layer == 0:
            if o.get('w1_spread', 1):
                n0 = self.w1_next
                for n in range(n0, 28):
                    for x in self.w1_dma_text(n): w1q.append(Item(x, at=int(14*o.get('w1_spread', 1)*(n - n0)/(28 - n0)), tag=n))
                self.w1_next = 28
            else: self.w1_dma(28)
        firstB = max(min(self.aiss[g] for g in range(16, 32)), o.get('firstB', 0) if layer else 0)
        queues = []
        if layer == 0:
            burst = None
            if getattr(self, 'rowb_done', False):
                queues.append(Queue(k, self.poll_items(vP31, s(sAFp), lo + 512, 14*2, 14*(firstB - 2))))
            else:
                burst = o.get('rowb0_at', 3); box = []
                its = [Item(fn=lambda: box.append(self.poll_issue(self.YA, s(sYFp))))] + [Item(fn=f, at=14*(burst - 2)) for f in self.poll_steps(lambda: box[0], False)]
                fld = Item(f"buffer_load_dwordx4 v[106:109], {v(self.YA+1)}, {s(RW,4)}, {s(sYld)} offen sc1"); its.append(fld)
                queues.append(Queue(k, its))
                firstB = max(firstB, o.get('firstB0', 12))
            rl = self.w1_relayout_items(1) if not self.rl1_done else []
            for x in rl: x.at = 14*o.get('rl1_at', 4)
            if w1q:
                def note():
                    for x in w1q: self.w1_tok[x.tag] = x.tok
                rl = w1q + [Item(fn=note, cost=0)] + rl
            rlq = Queue(k, rl); queues.append(rlq)
            t0 = o.get('wd_t0', 1); t1 = o.get('wd_t1', 30)
            wd = [Item(self.wd_text(n), at=int(14*(t0 + (t1 - t0)*n/56))) for n in range(getattr(self, 'wd0', 0), o.get('wd_n', 56))]
            jb = []
            pj = [Item(fn=lambda: jb.append(self.poll_issue(226, s(sJFp), 0, 229)))] + [Item(fn=f, at=14*t0 - 4) for f in self.poll_steps(lambda: jb[0], False)]
            if o.get('joint', 1): pj = []
            if o.get('tch_h', 0) == 2: pj = [Item(self.touch_h_text(), at=14*o.get('tch_at', 0))]
            wdq = Queue(k, pj + wd, 1); queues.append(wdq)
        else:
            box = []
            s0 = o.get('rowb_at', 6)
            its = self.publish_items(lambda: self.fB, s(sFFs), 512, o.get('fb_pub', 24)) + self.poll_items(vP7, s(sFFp), 512, 14*s0 - o.get('fb_pi', 56), 14*s0 - o.get('fb_pc', 36))
            fld = Item(f"buffer_load_dwordx4 {v(ACC[1],4)}, {v(vFr)}, {s(RW,4)}, {s(sFR[1])} offen sc1"); its.append(fld)
            queues.append(Queue(k, its))
            burst = s0
        epi = None; hbox = []
        ho = lambda half, mt: 2048*layer + 1024*half + 512*mt
        hsc = [' sc1' if o.get('hsc', 15) >> (2*layer + h) & 1 else '' for h in range(2)]
        for gs in range(32):
            ps, st = divmod(gs, 16)
            if gs == burst:
                queues[0].drain(); k.wait(fld.tok)
                self.stamp('rowB_go')
                if layer: sts = self.rowop(1, ACC[1])
                else: self.row_b0(fld.tok); sts = self.aB_tok
                self.stamp('rowB')
                queues[:1] = [Queue(k, self.publish_items(lambda: sts, s(sAFs), lo + 512, 14*gs + o.get('ab_pub', 36))
                                + self.poll_items(vP31, s(sAFp), lo + 512, 14*(firstB - 2) - 4, 14*firstB - 4))]
            if gs == firstB: queues[0].drain()
            if layer == 0 and gs == o.get('rl1_bar', 7) and not self.rl1_done:
                print('relayout left at step 7:', rlq.cost())
                rlq.drain(); k.wait_lg0(); k("s_barrier")
            if gs == 16:
                for q in queues[:2]: q.drain()
                xb = o.get('e0_burst', 1)
                e0 = [Item(x, at=14*16 + 4) for x in self.epilogue1(ACC[0], 0, 0, xb, hsc[0])]
                if xb: Queue(k, e0, 12).drain()
                e1 = [Item(x, at=14*16 + 4) for x in self.epilogue1(ACC[0] + 28, 0, 256, 0, hsc[0])]
                epi = ([] if xb else e0) + e1
                queues = [Queue(k, epi, 14), Queue(k, []), Queue(k, [])]
                if layer == 0: queues.append(wdq)
                pub = [False, False]; self.ht = {}; self.nxtH = 0
            if epi:
                dl = o.get('ha_pub', 84 if hsc[0] else 50)
                if not pub[0] and e0[-1].tok:
                    pub[0] = gs
                    queues[1].q += self.publish_items(lambda: e0[-1].tok, s(sHFs), ho(0, 0), 14*gs + dl)
                    t1_ = 14*gs + dl + o.get('ha_gap', 40)
                    queues[2].q += self.poll_items(vP7, s(sHFp), ho(0, 0), t1_, t1_ + o.get('ha_rtt', 28))
                    queues[2].q += [Item(fn=self.ldH, at=t1_ + o.get('ha_rtt', 28) + 4*n) for n in range(7)]
                if not pub[1] and e1[-1].tok:
                    pub[1] = gs
                    queues[1].q += self.publish_items(lambda: e1[-1].tok, s(sHFs), ho(0, 1), 14*gs + o.get('ha_pub1', 70 if hsc[0] else 40))
                    queues[2].q += [Item(fn=self.ldH, at=o.get('ha_more_at', 410) + 4*n) for n in range(o.get('ha_more', 7))]
            if gs in (2, 4, 8, 10, 12, 14, 20, 24, 28): self.stamp(f'g1_{layer}_{gs}')
            fixed = [[] for _ in range(14)]
            if gs + 1 < 32:
                for Tt in range(7): fixed[2*(Tt // 2)].append(('W', gs+1, Tt))
            slot = 6
            while nxtA < 32 and self.aiss[nxtA] <= gs and slot <= 10 and (nxtA < 16 or gs >= firstB):
                fixed[slot].append(('A', nxtA, 0)); fixed[slot+2].append(('A', nxtA, 1)); nxtA += 1; slot += 4
            k.wait(self.at[(gs, 1)], self.wt[(gs, 6)])
            for i in range(14):
                Tt, mt = divmod(i, 2)
                d = ACC[ps] + 28*mt + 4*Tt
                k(f"v_mfma_f32_16x16x32_bf16 {v(d,4)}, {v(WF + 28*(gs&1) + 4*Tt, 4)}, {self.afrag(gs, mt)}, {'0' if st == 0 else v(d,4)}")
                for it in fixed[i]:
                    if it[0] == 'W': self.rdW(it[1], it[2])
                    else: self.ldA(it[1], it[2])
                cap = 2 - len(fixed[i]) - (1 if i == 13 else 0)
                for q in (queues[::-1] if ps else queues): cap = q.fill(cap, 14*gs + i)
            if gs == 15: self.stamp(f'g1a{layer}'); self.late = layer == 1
        print('layer', layer, 'left after G1B:', [q.cost() for q in queues], 'stores done in steps', pub, 'h loads out', self.nxtH)
        queues[0].drain()
        if not pub[1]: queues[1].q += self.publish_items(lambda: e1[-1].tok, s(sHFs), ho(0, 1), 0)
        if layer == 0: wdq.drain(); self.wd_last = wd[-1].tok
        self.stamp(f'g1b{layer}')
        b0 = [Item(x) for x in self.epilogue1(ACC[1], 1, 0, 1, hsc[1])]
        b1 = [Item(x) for x in self.epilogue1(ACC[1] + 28, 1, 256, 1, hsc[1])]
        q = Queue(k, b0 + b1, 12)
        total = q.cost()
        side = [x for x in queues[2].q if x.fn != self.ldH]
        pubq = list(queues[1].q)
        ev = [(o.get('epi_pub', 0), lambda: Queue(k, pubq).drain()), (o.get('epi_lead', 10), lambda: Queue(k, side).drain())]
        gap = o.get('epi_gap', 20); t = o.get('epi_lead', 10)
        for n in range(self.nxtH, 14):
            ev.append((t, self.ldH)); t += gap
        box = []
        self.hA1_issue = lambda: box.append(self.poll_issue(vP7, s(sHFp), ho(0, 1)))
        if 'ha1_slot' not in o: ev.append((o.get('ha1_pi', 60), self.hA1_issue))
        ev.sort(key=lambda x: x[0])
        while len(q):
            while ev and total - q.cost() >= ev[0][0]: ev.pop(0)[1]()
            if q.fill(3) == 3: q.emit(q.q[0])
        for _, f in ev: f()
        self.hA1_box = box
        self.hB_tok = [b0[-1].tok, b1[-1].tok]
        self.hsc = hsc
        self.stamp(f'epiB{layer}')

    def g2_order(self):
        return [(half, U, mt) for half in range(2) for mt in range(2) for U in range(14)]
    def hreg(self, n):
        if n < 14: return ACC[0] + 4*n
        if n < 28: return WF + 4*(n - 14)
        if n < 42: return ACC[1] + 4*(n - 28)
        return ACC[0] + 4*(n - 42)
    def ldH(self, _=0):
        n = self.nxtH; self.nxtH += 1
        half, U, mt = self.g2_order()[n]
        self.ht[n] = self.k(f"buffer_load_dwordx4 {v(self.hreg(n),4)}, {v(vHld[half])}, {s(RW,4)}, {k4(U>>1)} offen offset:{(U&1)*2048 + mt*256} sc1")

    def red_write(self, A2):
        return [f"ds_write_b128 {v(vRw)}, {v(A2 + 16*mt + 4*nt, 4)} offset:{4352*mt + 64*nt}" for mt in range(2) for nt in range(4)]
    def red_read(self, P):
        return [f"ds_read_b128 {v(P + 8*w + 4*hf, 4)}, {v(vRr)} offset:{8704*w + 16*hf}" for w in range(4) for hf in range(2)]
    def red_sum(self, P, half, layer, X3, pk):
        L = []
        def add(d, x, y):
            if pk: L.extend(f"v_pk_add_f32 {v(d+e,2)}, {v(x+e,2)}, {v(y+e,2)}" for e in (0, 2, 4, 6))
            else: L.extend(f"v_add_f32 {v(d+e)}, {v(x+e)}, {v(y+e)}" for e in range(8))
        add(P, P, P+8); add(P+16, P+16, P+24)
        if layer == 1:
            L += self.unpack(P+8, X3); add(P, P, P+8)
        add(P, P, P+16)
        L += [f"v_cvt_pk_bf16_f32 {v(P+8+e)}, {v(P+2*e)}, {v(P+2*e+1)}" for e in range(4)]
        if layer == 0: L.append(f"buffer_store_dwordx4 {v(P+8,4)}, {v(vF2)}, {s(RW,4)}, {k4(half)} offen")
        else: L.append(f"buffer_store_dwordx4 {v(P+8,4)}, {v(vO)}, {s(RO,4)}, {s(sFH) if half else 0} offen{self.o.get('ost', ' sc1')}")
        return L

    def gemm2(self, layer):
        k = self.k; o = self.o
        lo = 1024*layer
        AC2 = [AR, WF]
        X3 = [TMP, TMP + 4]
        order = self.g2_order()
        LA = o.get('g2la', 20)
        xt = {}
        def ldX(h): xt[h] = k(f"buffer_load_dwordx4 {v(X3[h],4)}, {v(vF2)}, {s(RW,4)}, {k4(h)} offen sc1")
        ho = lambda half, mt: 2048*layer + 1024*half + 512*mt
        sl = self.hsc[1]
        gate = [14]
        def opened(n): return Item(fn=lambda: gate.__setitem__(0, n), cost=0)
        p0, p1 = o.get('hb_pub0', 21 if sl else 4), o.get('hb_pub1', 50 if sl else 20)
        g_, r_ = o.get('hb_gap', 28), o.get('hb_rtt', 25)
        side = Queue(k, self.publish_items(lambda: self.hB_tok[0], s(sHFs), ho(1, 0), p0)
                     + self.publish_items(lambda: self.hB_tok[1], s(sHFs), ho(1, 1), p1))
        side2 = Queue(k, ([Item(fn=self.hA1_issue, at=o['ha1_slot'])] if 'ha1_slot' in o else [])
                      + [Item(fn=f, at=o.get('ha1_pc', 0)) for f in self.poll_steps(lambda: self.hA1_box[0])] + [opened(28)]
                      + self.poll_items(vP7, s(sHFp), ho(1, 0), p0 + g_, p0 + g_ + r_) + [opened(42)]
                      + self.poll_items(vP7, s(sHFp), ho(1, 1), max(p1 + g_, p0 + g_ + r_ + 2), max(p1 + g_, p0 + g_ + r_ + 2) + r_) + [opened(56)])
        if layer == 0: k.wait(self.wd_last)
        fbox = []; seenB = False; wB = self.red_write(AC2[1]); doneB = 0
        def next_load():
            self.ldH()
            if layer == 1 and self.nxtH == 34: ldX(0)
            if layer == 1 and self.nxtH == 56:
                ldX(1)
                if o.get('wbl2', 0): self.writeback()
        for n in range(56):
            half, U, mt = order[n]
            if n == 28:
                self.stamp(f'g2a{layer}')
                side.drain()
                t = 4*28
                sp = o.get('ra_sp', 2)
                L = [Item(x, at=t + 3 + sp*i) for i, x in enumerate(self.red_write(AC2[0]))]
                L += [Item(fn=lambda: k.wait_lg0(), at=t + 8*sp + 3), Item(fn=lambda: k("s_barrier"))]
                L += [Item(x) for x in self.red_read(AR)]
                L += [Item(fn=lambda: k.wait_lg0(), at=t + 8*sp + o.get('ra_rd', 14)), Item(fn=lambda: k("s_barrier"))]
                if layer == 1: L += [Item(fn=lambda: k.wait(xt[0]))]
                L += [Item(x) for x in self.red_sum(AR, 0, layer, X3[0], 0)]
                fA = L[-1]
                if layer == 0:
                    L += self.publish_items(lambda: fA.tok, s(sFFs), 0, t + o.get('fa_pub', 66))
                    L += [Item(x, at=t + 60) for x in self.unpack(ACC[1] + 24, YS[0]) + self.ag_addr(ACC[1] + 52)]
                    L.append(Item(fn=lambda: fbox.append(self.poll_issue(vP7, s(sFFp), 0)), at=t + o.get('fa_pi', 86)))
                    if o.get('fa_in', 1):
                        L += [Item(fn=f, at=t + o.get('fa_pc', 104)) for f in self.poll_steps(lambda: fbox[0])]
                        fldi = Item(f"buffer_load_dwordx4 {v(ACC[1],4)}, {v(vFr)}, {s(RW,4)}, {s(sFR[0])} offen sc1"); L.append(fldi)
                if o.get('nored') and layer == 1: L = []
                side = Queue(k, L)
                last0 = max(i for i in range(28, 56) if order[i][2] == 0)
                late = Queue(k, [Item(x, at=4*(last0 + 1) + 3 + sp*i) for i, x in enumerate(wB[:4])])
            if n in (8, 16, 22, 36, 44, 50): self.stamp(f'g2_{layer}_{n}')
            for m in range(n, n + 2 - n % 2):
                while m not in self.ht:
                    while self.nxtH >= gate[0]:
                        if gate[0] > 14: side.drain() if n < 28 else None
                        side2.emit(side2.q[0])
                    next_load()
            if n % 2 == 0: k.wait(self.ht[n + 1])
            for nt in range(4):
                d = AC2[half] + 16*mt + 4*nt
                k(f"v_mfma_f32_16x16x32_bf16 {v(d,4)}, {a((4*U+nt)*4,4)}, {v(self.hreg(n),4)}, {'0' if U == 0 else v(d,4)}")
                cap = 2 - (1 if (nt == 3 and n % 2) else 0)
                if (nt == 0 or (nt == 2 and self.nxtH < n + 1 + o.get('g2min', 6))) and self.nxtH < min(gate[0], n + 1 + LA) and (self.nxtH < 42 or self.nxtH - 42 < n):
                    next_load(); cap -= 1
                cap = side2.fill(cap, 4*n + nt)
                cap = side.fill(cap, 4*n + nt)
                if n >= 28 and not any('ds_' in (x.text or '') or (x.fn and x.at <= t + 8*sp + 40) for x in side.q):
                    late.fill(cap, 4*n + nt)
        print('layer', layer, 'left after G2B:', side.cost(), late.cost())
        side.drain()
        wB = [x.text for x in late.q] + wB[4:]
        self.stamp(f'g2b{layer}')
        R = ACC[1]
        if layer == 0 and not o.get('fa_in', 1):
            self.poll_check(fbox[0])
            fld = k(f"buffer_load_dwordx4 {v(R,4)}, {v(vFr)}, {s(RW,4)}, {s(sFR[0])} offen sc1")
        elif layer == 0: fld = fldi.tok
        for x in wB: k(x)
        if layer == 0:
            k.wait(fld)
            self.stamp('fA_in')
            sts, rest = self.rowop(0, R, True)
            self.stamp('rowA')
            if o.get('apub_first', 2): self.run(rest)
            if o.get('apub_first', 2) == 1: self.publish(sts, s(sAFs), 1024)
        if not (layer == 0 and o.get('ag', 1)): k.wait_lg0(); k("s_barrier")
        for x in self.red_read(ACC[0]): k(x)
        if layer == 0 and o.get('apub_first', 2) == 2: self.publish(sts, s(sAFs), 1024)
        k.wait_lg0()
        if layer == 1: k.wait(xt[1])
        if layer == 0 and not o.get('apub_first', 2): self.publish(sts, s(sAFs), 1024)
        if layer == 0: self.a_poll = self.poll_issue(vP31, s(sAFp), 1024)
        self.fB = self.run(self.red_sum(ACC[0], 1, layer, X3[1], 1))[-1].tok
        self.stamp(f'fB_st{layer}')
        if layer == 0:
            self.gemm1_start(1)
            if not o.get('apub_first', 2): self.run(rest)

    def writeback(self):
        k = self.k
        a_, b_ = k.label(), k.label()
        k(f"s_or_b32 {s(T[2])}, {s(sJ)}, {s(sW)}\ns_cmp_lg_u32 {s(T[2])}, 0\ns_cbranch_scc1 {a_}")
        k("buffer_wbl2 sc1")
        k(f"s_branch {b_}"); k.place(a_)
        k.ins.append(I(f"buffer_load_dword {v(vPT)}, {v(vL0)}, {s(RW,4)}, 0 offen"))
        k.place(b_)

    def rowop(self, h, R, split=False):
        L = self.unpack(R + 8, R)
        L += [f"v_pk_add_f32 {v(XS[h]+e,2)}, {v(XS[h]+e,2)}, {v(R+8+e,2)}" for e in (0, 2, 4, 6)]
        L += self.stats([XS[h]], [36], R + 16)
        L += self.affine(R + 8, XS[h], 36, R + 20)
        G = self.gate_norm([h], {h: R + 8}, 1, R + 24)
        rest = []
        if split: G = G[8:]
        if self.o.get('ag', 1):
            self.run(L + G[:-5], 16)
            tok = self.a_out([h], R, lambda: self.run(G[-5:]))[0]
            return (tok, []) if split else tok
        if split: G, rest = G[:-5], G[-5:]
        its = self.run(L + G, 16)
        tok = [x.tok for x in its if 'store' in x.text][-1]
        return (tok, rest) if split else tok

    def build(self):
        k = self.k; o = self.o
        self.prologue()
        self.front_addr()
        self.touch_first()
        self.touch_global_flags()
        self.w1_addr()
        self.w1_dma(o.get('n0', 2))
        self.wd_job_addr()
        self.phase0()
        self.w1_dma(o.get('n1', 1))
        self.conv()
        if o.get('joint', 1): self.y_joint()
        else: self.y_in()
        for layer in range(2):
            self.gemm1(layer)
            self.gemm2(layer)
        if o.get('stamps'):
            self.stamp('end')
            k(f"""s_lshl_b32 {s(T[0])}, s2, 2
                  s_add_u32 {s(T[0])}, {s(T[0])}, {s(sW)}
                  s_lshl_b32 {s(T[0])}, {s(T[0])}, 8
                  s_add_u32 {s(T[0])}, {s(T[0])}, {WS_DBG}
                  v_lshrrev_b32 v5, 2, {v(vL16)}
                  buffer_store_dword {v(vST[0])}, v5, {s(RW,4)}, {s(T[0])} offen
                  s_add_u32 {s(T[0])}, {s(T[0])}, 0x40000
                  buffer_store_dword {v(vST[1])}, v5, {s(RW,4)}, {s(T[0])} offen""")
        if o.get('delay'):
            k(f"""s_mov_b32 {s(T[0])}, {o['delay']}
                  s_memrealtime {s(T[2],2)}
                  s_waitcnt lgkmcnt(0)""")
            k.place("L_DELAY")
            k(f"""s_memrealtime {s(T[4],2)}
                  s_waitcnt lgkmcnt(0)
                  s_sub_u32 {s(T[4])}, {s(T[4])}, {s(T[2])}
                  s_cmp_lt_u32 {s(T[4])}, {s(T[0])}
                  s_cbranch_scc1 L_DELAY""")
        if o.get('diag'):
            self.stamp('end')
            k(f"""v_sub_u32 v5, {v(vST[1])}, {v(vST[0])}
                  s_nop 1
                  v_readfirstlane_b32 {s(T[0])}, v5
                  s_mul_i32 {s(T[0])}, {s(T[0])}, 8
                  s_memrealtime {s(T[2],2)}
                  s_waitcnt lgkmcnt(0)""")
            k.place("L_DIAG")
            k(f"""s_memrealtime {s(T[4],2)}
                  s_waitcnt lgkmcnt(0)
                  s_sub_u32 {s(T[4])}, {s(T[4])}, {s(T[2])}
                  s_cmp_lt_u32 {s(T[4])}, {s(T[0])}
                  s_cbranch_scc1 L_DIAG""")
        k.place("L_END")
        k("s_endpgm")
        body = k.text()
        for t in self.tail:
            body += "".join((x + "\n") if x.endswith(':') else ("    " + x + "\n") for x in t)
        body += "L_LAST:\n"
        return body

def file_text(opt):
    g = Gen(opt)
    body = g.build()
    ref = open(os.path.join(os.path.dirname(os.path.abspath(__file__)), '..', 'cdna_kernels', NAME + '.s.ref')).read()
    head = ref[:ref.index('; Override launch geometry')]
    txt = head + f"""; @launch grid=(256,1,1) block=(256,1,1) lds={LDS_SIZE}
.amdgcn_target "amdgcn-amd-amdhsa--gfx950"
.text
.globl {NAME}_kernel
.p2align 8
.type {NAME}_kernel,@function
{NAME}_kernel:
{body}.section .rodata,"a"
.p2align 6
.amdhsa_kernel {NAME}_kernel
  .amdhsa_next_free_vgpr 512
  .amdhsa_next_free_sgpr 102
  .amdhsa_accum_offset 256
  .amdhsa_group_segment_fixed_size 0
  .amdhsa_kernarg_size 104
  .amdhsa_user_sgpr_count 2
  .amdhsa_user_sgpr_kernarg_segment_ptr 1
  .amdhsa_system_sgpr_workgroup_id_x 1
.end_amdhsa_kernel
"""
    return txt, g

if __name__ == '__main__':
    import json
    opt = {}; out = None
    for x in sys.argv[1:]:
        if '=' in x:
            kk, vv = x.split('=')
            opt[kk] = vv.split(',') if kk in ('only', 'diag') else (' ' + vv.replace('+', ' ') if kk in ('ost', 'wdm', 'x3m') else int(vv, 0))
        else: out = x
    txt, g = file_text(opt)
    open(out, 'w').write(txt)
    json.dump(g.stamps, open(out + '.stamps.json', 'w'))
    print('instructions', len(g.k.ins), 'nops added', g.k.nops_added, 'stamps', len(g.stamps))
```

```python
import sys, os
sys.path.insert(0, os.path.dirname(os.path.abspath(__file__)))
from dsl import *

NAME = 'interleave_layers__ssm_conv_h3__swiglu_ffn__prompt'

WS_XCCF = 0x1000
WS_KVF  = 0x10000
WS_AF   = 0x11000
WS_HF   = 0x19000
WS_FF   = 0x21000
WS_YF   = 0x40000
WS_JF   = 0x3E000
WS_KVT  = 0x100000
WS_A    = WS_KVT
WS_YP   = 0x300000
WS_H    = 0x700000
WS_WDT  = 0xE00000
WS_DBG  = 0x1000000
WS_SIZE = 0x1100000
H_X, H_HALF, H_RB = 917504, 458752, 114688

LDS_SIZE = 163840
SCR   = 114688
L_K   = SCR
L_V   = L_K + 9216
L_H   = L_V + 8192
H_CP  = 4096 + 128
H_E   = lambda ch: L_H + ch * 2 * H_CP + 64
H_O   = lambda ch: L_H + ch * 2 * H_CP + H_CP + 128
L_U   = L_H + 4 * H_CP + 128
U_S   = 4608
assert L_U + 2 * U_S <= LDS_SIZE
L_CRED = 57344
L_YT  = L_U
L_JOB = 114688 - 16384
L_RED = SCR
L_AG  = LDS_SIZE - 4352
L_AG2 = SCR

sX, sJ, sW, sN, sEXP, sSPIN, sXCC, sMODE = 4, 5, 6, 7, 8, 9, 10, 11
T = list(range(12, 24))
sC2 = 24
sHALF = 26
sW1S, sW1L = 27, 3
sD = 28
sDP = 34
RK, RV, RH, RQ, RG, RU, RD, RO, RW, RS = 44, 48, 52, 56, 60, 64, 68, 72, 76, 80
sK4 = 83
def k4(i): return '0' if i == 0 else s(sK4 + i)
sHH = 91
sAFp, sAFs, sHFp, sHFs, sFFp, sFFs = 94, 95, 96, 97, 98, 99
sFR = [100, 101]
sFH = 55
sAG = [56, 57]
sROT = [0, 1, 34, 35, 54, 80, 81]
sDEL = [82, 83]
sST = (32, 92)
sKVFp, sKVs, sUm0, sYst, sYFs, sYFp, sYld, sJF, sJL, sJFp = 44, 45, 46, 47, 48, 49, 50, 51, 52, 53

vL, vL16, vL0, vNON, vPT = 1, 2, 3, 4, 5
vAld, vHld = [6, 7], [8, 9]
vHm, vHt, vAst, vF2, vO, vRw, vRr, vP31, vP7, vW1 = 10, 11, 12, 13, 14, 15, 16, 17, 18, 19
vST = (20, 21)
vFr = 0
vWd = [230, 231]
ACC = [22, 78]
WF, AR, TMP = 134, 190, 222
YS, XS = [232, 236], [240, 248]
LOG2E = 1.4426950408889634

def f32(x):
    import struct
    return '0x%08x' % struct.unpack('<I', struct.pack('<f', x))[0]

def ag_off(layer, h):
    return L_AG - L_AG2 if h == 0 else (0 if layer == 0 else L_AG - L_AG2 - 4352)

def flist(c):
    if c < 4: return [4*c + e for e in range(4)] + [16 + 4*c + e for e in range(4)]
    q = c - 4; X = [44, 46, 54][q]
    return [32 + 4*q + e for e in range(4)] + [48 + 2*q, 49 + 2*q, X, X + 1]

class Gen:
    def __init__(self, opt):
        self.o = opt
        self.k = K()
        self.tail = []
        self.stamps = []
        self.w1_next = 0
        self.late = False
        self.w1_tok = {}

    def stamp(self, name):
        self.k.ins.append(I(f"; ---- {name}"))
        dg = self.o.get('diag')
        if dg and name in dg:
            k = self.k
            k(f"s_memrealtime {s(sST[0],2)}"); k.wait_lg0()
            k(f"v_mov_b32 {v(vST[dg.index(name)])}, {s(sST[0])}")
        if not self.o.get('stamps'): return
        only = self.o.get('only')
        if only and name not in only: return
        k = self.k; n = len(self.stamps)
        k(f"s_memrealtime {s(sST[0],2)}\ns_memtime {s(sST[1],2)}"); k.wait_lg0()
        if self.o.get('spinstat') and n >= 2: k(f"s_sub_u32 {s(sST[1])}, 0, {s(sSPIN)}")
        k(f"v_writelane_b32 {v(vST[0])}, {s(sST[0])}, {n}\nv_writelane_b32 {v(vST[1])}, {s(sST[1])}, {n}")
        self.stamps.append(name)

    def srd(self, base, size):
        self.k(f"s_mov_b32 {s(base+2)}, {size}\ns_mov_b32 {s(base+3)}, 0x20000")

    def poll_issue(self, vaddr, soff, off=0, vt=vPT):
        txt = f"buffer_load_dword {v(vt)}, {v(vaddr)}, {s(RW,4)}, {soff} offen offset:{off} sc1"
        return (self.k(txt), txt, vt)

    def poll_steps(self, get, local=True):
        k = self.k
        slow, back, ok = k.label(), k.label(), k.label()
        def s1(): k.wait(get()[0])
        def s2(): k(f"v_cmp_ne_u32 vcc, {s(sEXP if local else sN)}, {v(get()[2])}")
        def s3():
            if self.o.get('nopoll') and self.late: return
            k(f"s_cbranch_vccnz {slow}"); k.place(back)
            _, txt, vt = get()
            nap = self.o.get('nap_l', 0) if local else self.o.get('nap_g', 0)
            t = [f"{slow}:"] + ([f"s_sleep {nap}"] if nap else []) + [txt, "s_waitcnt vmcnt(0)", f"v_cmp_ne_u32 vcc, {s(sN)}, {v(vt)}", f"s_cbranch_vccz {ok}",
                 f"s_sub_u32 {s(sSPIN)}, {s(sSPIN)}, 1", f"s_cbranch_scc0 {slow}", "s_branch L_END", f"{ok}:"]
            if local: t += [f"s_cmp_eq_u32 {s(sMODE)}, 0", f"s_cbranch_scc1 {back}", "buffer_inv sc1", "s_waitcnt vmcnt(0)"]
            self.tail.append(t + [f"s_branch {back}"])
        return [s1, s2, s3]

    def poll_check(self, h, local=True):
        for f in self.poll_steps(lambda: h, local): f()
    def poll(self, vaddr, soff, off=0, local=True):
        self.poll_check(self.poll_issue(vaddr, soff, off), local)
    def poll_items(self, vaddr, soff, off, at_issue, at_check):
        box = []
        it = [Item(fn=lambda: box.append(self.poll_issue(vaddr, soff, off)), at=at_issue)]
        return it + [Item(fn=f, at=at_check) for f in self.poll_steps(lambda: box[0])]

    def flag_store(self, soff, off=0, local=True):
        k = self.k
        txt = f"buffer_store_dword {v(vNON)}, {v(vL0)}, {s(RW,4)}, {soff} offen offset:{off}"
        if not local: return k(txt + " sc1")
        slow, back = k.label(), k.label()
        k(f"s_cmp_lg_u32 {s(sMODE)}, 0\ns_cbranch_scc1 {slow}")
        r = k(txt); k.place(back)
        self.tail.append([f"{slow}:", "s_waitcnt vmcnt(0)", "buffer_wbl2 sc1", "s_waitcnt vmcnt(0)", txt + " sc1", f"s_branch {back}"])
        return r
    def publish(self, tok, soff, off=0, local=True):
        self.k.wait(tok)
        return self.flag_store(soff, off, local)
    def publish_items(self, get, soff, off, at):
        return [Item(fn=lambda: self.k.wait(get()), at=at), Item(fn=lambda: self.flag_store(soff, off), cost=2, at=at)]

    def dma(self, vaddr, srd, soff, m0, extra=''):
        self.k(m0)
        return self.k(f"buffer_load_dwordx4 {v(vaddr)}, {s(srd,4)}, {soff} offen {extra} lds".replace('  ', ' '))

    def prologue(self):
        k = self.k
        k("s_cmp_ge_u32 s2, 256\ns_cbranch_scc1 L_END")
        if self.o.get('stamps'): k(f"v_mov_b32 {v(vST[0])}, 0\nv_mov_b32 {v(vST[1])}, 0")
        self.stamp('entry')
        for r, off in ((RK, 8), (RV, 16), (RW, 96), (RH, 32), (RS, 24), (RQ, 0), (RG, 56), (RU, 64), (RD, 72), (RO, 80)):
            k(f"s_load_dwordx2 {s(r,2)}, s[0:1], {off}")
        k(f"s_load_dwordx2 {s(sDP,2)}, s[0:1], 40")
        k(f"s_lshr_b32 {s(sJ)}, s2, 3")
        self.code_prefetch()
        k(f"""s_and_b32 {s(sX)}, s2, 7
              v_lshrrev_b32 v5, 6, v0
              v_and_b32 {v(vL)}, 63, v0
              v_readfirstlane_b32 {s(sW)}, v5
              v_lshlrev_b32 {v(vL16)}, 4, {v(vL)}""")
        for r, size in ((RK, 2097152), (RV, 2097152), (RW, WS_SIZE), (RH, 2097152), (RS, 4096)): self.srd(r, size)

        k(f"""v_lshrrev_b32 v24, 3, {v(vL)}
              v_and_b32 v25, 7, {v(vL)}
              v_and_b32 v26, 2, v24
              v_xor_b32 v25, v25, v26
              s_and_b32 {s(T[0])}, {s(sW)}, 1
              s_lshl_b32 {s(T[0])}, {s(T[0])}, 2
              v_xor_b32 v25, {s(T[0])}, v25
              v_lshlrev_b32 v25, 4, v25
              v_lshl_add_u32 v25, v24, 10, v25
              s_lshl_b32 {s(T[0])}, {s(sJ)}, 16
              s_lshl_b32 {s(T[1])}, {s(sW)}, 14
              s_lshl_b32 {s(T[2])}, {s(sX)}, 7
              s_add_u32 {s(T[0])}, {s(T[0])}, {s(T[1])}
              s_add_u32 {s(T[0])}, {s(T[0])}, {s(T[2])}
              v_add_u32 v25, {s(T[0])}, v25
              v_xor_b32 v26, 64, v25
              v_subrev_u32 v26, 8192, v26
              s_lshl_b32 {s(T[1])}, {s(sW)}, 11
              s_add_u32 {s(T[2])}, {s(T[1])}, {L_K + 1024}
              s_add_u32 {s(T[3])}, {s(T[1])}, {L_V}
              s_movk_i32 {s(T[4])}, 8192
              v_and_b32 v27, 15, {v(vL)}
              s_lshl_b32 {s(T[0])}, {s(sX)}, 6
              s_lshl_b32 {s(T[1])}, {s(sW)}, 4
              s_add_u32 {s(T[1])}, {s(T[0])}, {s(T[1])}
              v_add_u32 v27, {s(T[1])}, v27
              v_lshlrev_b32 v28, 3, v27
              s_lshl_b32 {s(T[1])}, {s(sJ)}, 1
              s_add_u32 {s(T[0])}, {s(T[0])}, {s(T[1])}
              s_lshl_b32 {s(T[5])}, {s(T[0])}, 1
              s_lshl_b32 {s(T[6])}, {s(T[0])}, 12
              s_add_u32 {s(T[7])}, {s(T[6])}, 4096
              v_lshlrev_b32 v29, 4, v0""")
        k.wait_lg0()
        self.stamp('start')
        k(f"s_load_dword {s(sN)}, {s(RW,2)}, 0")
        k(f"s_load_dword {s(sD)}, {s(sDP,2)}, {s(T[5])}")
        self.dma(25, RK, '0', f"s_mov_b32 m0, {s(T[2])}")
        self.dma(25, RV, '0', f"s_mov_b32 m0, {s(T[3])}")
        self.dma(25, RK, s(T[4]), f"s_add_u32 m0, {s(T[2])}, 1024")
        self.dma(25, RV, s(T[4]), f"s_add_u32 m0, {s(T[3])}, 1024")
        skip = k.label()
        k(f"s_cmp_lg_u32 {s(sW)}, 0\ns_cbranch_scc1 {skip}\ns_mov_b32 m0, {L_K}\ns_nop 0")
        k.ins.append(I(f"buffer_load_dwordx4 v26, {s(RK,4)}, 0 offen lds"))
        k.place(skip)
        self.sh_tok = k(f"buffer_load_dwordx2 v[30:31], v28, {s(RS,4)}, 0 offen")
        k(f"buffer_load_dwordx4 v[32:35], v29, {s(RH,4)}, {s(T[6])} offen")
        k(f"buffer_load_dwordx4 v[40:43], v29, {s(RH,4)}, {s(T[7])} offen")
        k(f"buffer_load_dwordx4 v[36:39], v29, {s(RH,4)}, {s(T[6])} offen offset:2")
        self.h_tok = k(f"buffer_load_dwordx4 v[44:47], v29, {s(RH,4)}, {s(T[7])} offen offset:2")
        k(f"""s_getreg_b32 {s(sXCC)}, hwreg(HW_REG_XCC_ID, 0, 4)
              v_cmp_eq_u32 vcc, 0, {v(vL)}
              v_mov_b32 v5, 0x80000000
              s_lshl_b32 {s(T[1])}, {s(sX)}, 5
              s_add_u32 {s(T[1])}, {s(T[1])}, {s(sJ)}
              s_mul_i32 {s(T[1])}, {s(T[1])}, {self.o.get('xs', 4)}
              s_add_u32 {s(T[1])}, {s(T[1])}, {WS_XCCF}
              s_cmp_eq_u32 {s(sW)}, 2
              s_cselect_b32 {s(T[1])}, {s(T[1])}, 0x40000000
              v_cndmask_b32 {v(vL0)}, v5, 0, vcc""")
        k.wait_lg0()
        k(f"""s_mul_i32 {s(sN)}, {s(sN)}, 1664525
              s_add_u32 {s(sN)}, {s(sN)}, 1013904223
              s_xor_b32 {s(T[0])}, {s(sN)}, {s(sXCC)}
              v_mov_b32 v5, {s(T[0])}
              v_mov_b32 {v(vNON)}, {s(sN)}""")
        k(f"buffer_store_dword v5, {v(vL0)}, {s(RW,4)}, {s(T[1])} offen sc1")
        for r, size in ((RQ, 2097152), (RG, 1835008), (RU, 1835008), (RD, 1835008), (RO, 2097152)): self.srd(r, size)
        k(f"""s_lshr_b32 {s(sD+2)}, {s(sD)}, 16
              s_and_b32 {s(sD+3)}, {s(sD)}, 0xffff0000
              s_lshl_b32 {s(sD+1)}, {s(sD)}, 16
              s_and_b32 {s(sD)}, {s(sD)}, 0xffff
              s_mov_b32 {s(sC2)}, {f32(LOG2E*LOG2E)}
              s_mov_b32 {s(sC2+1)}, {f32(LOG2E*LOG2E)}
              s_mov_b32 {s(sSPIN)}, {self.o.get('spin', 400000)}
              s_mov_b32 {s(sHALF)}, 0x20000
              s_mov_b32 {s(sHH)}, {H_HALF}
              v_and_b32 {v(vP31)}, 31, {v(vL)}
              v_lshlrev_b32 {v(vP31)}, 2, {v(vP31)}
              v_and_b32 {v(vP7)}, 7, {v(vL)}
              v_lshlrev_b32 {v(vP7)}, 2, {v(vP7)}""")
        for i in range(1, 8): k(f"s_movk_i32 {s(sK4+i)}, {4096*i}")

    def code_prefetch(self):
        if not self.o.get('cpf', 1): return
        k = self.k
        k(f"s_getpc_b64 {s(T[2],2)}")
        k.place("L_PC")
        k(f"""s_mul_i32 {s(T[4])}, {s(sJ)}, ((L_LAST-L_PC+4095)/4096)*128
              v_min_u32 v5, (L_LAST-L_PC+4095)/4096-1, v0
              v_lshl_add_u32 v5, v5, 7, {s(T[4])}
              v_min_u32 v5, L_LAST-L_PC-4, v5
              global_load_dword v219, v5, {s(T[2],2)}""")

    def tlb_touch(self):
        if not self.o.get('tlb', 0): return
        k = self.k
        k(f"v_and_b32 v5, 15, {v(vL)}\nv_lshlrev_b32 v5, 20, v5")
        k(f"buffer_load_dword v200, v5, {s(RW,4)}, 0 offen offset:512")
        k(f"buffer_load_dword v201, v5, {s(RO,4)}, 0 offen")
        k(f"buffer_load_dword v196, v5, {s(RG,4)}, 0 offen")
        k(f"buffer_load_dword v197, v5, {s(RU,4)}, 0 offen")
        k(f"buffer_load_dword v198, v5, {s(RQ,4)}, 0 offen")

    def touch_first(self):
        k = self.k
        if self.o.get('tch_kv', 1):
            k(f"v_and_b32 v5, 15, {v(vL)}\nv_lshlrev_b32 v5, 7, v5")
            k(f"buffer_load_dword v220, v5, {s(RW,4)}, {s(sKVs)} offen sc1")
        if self.o.get('tch_fl', 1):
            k(f"""s_lshl_b32 {s(T[0])}, {s(sX)}, 12
                  s_add_u32 {s(T[0])}, {s(T[0])}, {WS_AF}
                  v_lshl_add_u32 v22, {v(vL)}, 7, {s(T[0])}
                  v_cmp_lt_u32 vcc, 15, {v(vL)}
                  v_add_u32 v5, {0x8000 - 16*128}, v22
                  s_lshl_b32 {s(T[0])}, {s(sX)}, 9
                  v_cndmask_b32 v22, v22, v5, vcc
                  v_cmp_lt_u32 vcc, 47, {v(vL)}
                  v_add_u32 v5, {0x8000 - 32*128}, v22
                  s_add_u32 {s(T[0])}, {s(T[0])}, {WS_KVF}
                  v_cndmask_b32 v22, v22, v5, vcc
                  v_cmp_lt_u32 vcc, 55, {v(vL)}
                  v_and_b32 v5, 3, {v(vL)}
                  v_lshl_add_u32 v5, v5, 7, {s(T[0])}
                  s_cmp_eq_u32 {s(sW)}, 3
                  s_cselect_b32 {s(T[0])}, 0, 0x40000000
                  v_cndmask_b32 v5, v22, v5, vcc
                  buffer_load_dword v221, v5, {s(RW,4)}, {s(T[0])} offen sc1""")
    def touch_global_flags(self):
        if not self.o.get('tch_g', 1): return
        k = self.k
        k(f"""v_lshlrev_b32 v5, 7, {v(vL)}
              s_cmp_eq_u32 {s(sW)}, 1
              s_cselect_b32 {s(T[0])}, {s(sJ)}, 31
              s_lshl_b32 {s(T[1])}, {s(T[0])}, 13
              s_cmp_lt_u32 {s(T[0])}, {1 + self.o.get('yfs', 4)//4}
              s_cselect_b32 {s(T[0])}, {s(T[1])}, 0x40000000
              s_add_u32 {s(T[0])}, {s(T[0])}, {WS_JF}
              buffer_load_dword v202, v5, {s(RW,4)}, {s(T[0])} offen sc1""")
    def touch_h_addr(self):
        self.k(f"""s_lshl_b32 {s(T[0])}, {s(sJ)}, 2
                  s_add_u32 {s(T[0])}, {s(T[0])}, {s(sW)}
                  s_mul_i32 {s(T[0])}, {s(T[0])}, 7168
                  s_mul_i32 {s(T[1])}, {s(sX)}, {H_X}
                  s_add_u32 {s(T[0])}, {s(T[0])}, {s(T[1])}
                  s_add_u32 {s(T[0])}, {s(T[0])}, {WS_H}
                  v_min_u32 v227, 55, {v(vL)}
                  v_lshl_add_u32 v227, v227, 7, {s(T[0])}""")
    def touch_h_text(self): return f"buffer_load_dword v228, v227, {s(RW,4)}, 0 offen sc1"
    def touch_f(self):
        k = self.k
        k(f"""v_and_b32 v5, 7, {v(vL)}
              v_lshlrev_b32 v5, 7, v5
              v_bfe_u32 v22, {v(vL)}, 3, 1
              v_lshl_add_u32 v5, v22, 17, v5
              buffer_load_dword v199, v5, {s(RW,4)}, {s(sFR[0])} offen sc1""")

    def q_load(self):
        k = self.k
        k(f"""s_lshl_b32 {s(T[0])}, {s(sX)}, 7
              s_lshl_b32 {s(T[1])}, {s(sJ)}, 2
              s_add_u32 {s(T[0])}, {s(T[0])}, {s(T[1])}
              s_add_u32 {s(T[0])}, {s(T[0])}, {s(sW)}
              s_lshl_b32 {s(T[0])}, {s(T[0])}, 10
              s_add_u32 {s(T[1])}, {s(T[0])}, 0x100000""")
        k(f"buffer_load_dwordx4 v[204:207], {v(vL16)}, {s(RQ,4)}, {s(T[0])} offen")
        self.q_tok = k(f"buffer_load_dwordx4 v[208:211], {v(vL16)}, {s(RQ,4)}, {s(T[1])} offen")

    def persistent(self):
        k = self.k; AG = self.o.get('ag', 1)
        k(f"""s_lshl_b32 {s(T[0])}, {s(sJ)}, 2
              s_add_u32 {s(T[0])}, {s(T[0])}, {s(sW)}
              s_lshl_b32 {s(T[8])}, {s(sX)}, 18
              s_lshl_b32 {s(T[9])}, {s(sX)}, 12
              s_lshr_b32 {s(T[10])}, {s(sJ)}, 3
              s_and_b32 {s(T[11])}, {s(sJ)}, 7
              s_lshl_b32 {s(T[1])}, {s(T[0])}, 2
              s_add_u32 {s(T[1])}, {s(T[1])}, {s(T[9])}
              s_add_u32 {s(sAFs)}, {s(T[1])}, {WS_AF}
              s_lshl_b32 {s(T[1])}, {s(sW)}, 7
              s_add_u32 {s(T[1])}, {s(T[1])}, {s(T[9])}
              s_add_u32 {s(sAFp)}, {s(T[1])}, {WS_AF}
              s_lshl_b32 {s(T[2])}, {s(sJ)}, 2
              s_add_u32 {s(T[1])}, {s(T[1])}, {s(T[2])}
              s_add_u32 {s(sHFs)}, {s(T[1])}, {WS_HF}
              s_lshl_b32 {s(T[1])}, {s(T[10])}, 7
              s_lshl_b32 {s(T[2])}, {s(sW)}, 5
              s_add_u32 {s(T[1])}, {s(T[1])}, {s(T[2])}
              s_add_u32 {s(T[1])}, {s(T[1])}, {s(T[9])}
              s_add_u32 {s(sHFp)}, {s(T[1])}, {WS_HF}
              s_lshl_b32 {s(T[2])}, {s(T[11])}, 2
              s_add_u32 {s(T[1])}, {s(T[1])}, {s(T[2])}
              s_add_u32 {s(sFFs)}, {s(T[1])}, {WS_FF}
              s_lshr_b32 {s(T[1])}, {s(sJ)}, 1
              s_lshl_b32 {s(T[1])}, {s(T[1])}, 5
              s_add_u32 {s(T[1])}, {s(T[1])}, {s(T[9])}
              s_add_u32 {s(sFFp)}, {s(T[1])}, {WS_FF}
              s_lshr_b32 {s(T[1])}, {s(T[0])}, 5
              s_lshl_b32 {s(T[1])}, {s(T[1])}, 15
              s_bfe_u32 {s(T[2])}, {s(T[0])}, 0x10004
              s_lshl_b32 {s(T[2])}, {s(T[2])}, 10
              s_and_b32 {s(T[3])}, {s(T[0])}, {12 if AG else 15}
              s_lshl_b32 {s(T[3])}, {s(T[3])}, 4
              s_add_u32 {s(T[1])}, {s(T[1])}, {s(T[2])}
              s_add_u32 {s(T[1])}, {s(T[1])}, {s(T[3])}
              s_add_u32 {s(T[1])}, {s(T[1])}, {s(T[8])}
              s_lshl_b32 {s(T[2])}, {s(sW)}, 13
              s_add_u32 {s(T[2])}, {s(T[2])}, {WS_A}
              s_add_u32 {s(T[1])}, {s(T[1])}, {s(T[2]) if AG else WS_A}
              v_lshrrev_b32 v5, {4 if AG else 2}, {v(vL)}
              v_lshlrev_b32 v5, 11, v5
              v_bfe_u32 {v(vAst)}, {v(vL)}, {2 if AG else 0}, 2
              v_lshl_add_u32 {v(vAst)}, {v(vAst)}, 8, v5
              v_and_b32 v5, {3 if AG else 0}, {v(vL)}
              v_lshl_add_u32 {v(vAst)}, v5, 4, {v(vAst)}
              v_add_u32 {v(vAst)}, {s(T[1])}, {v(vAst)}
              s_lshl_b32 {s(T[1])}, {s(sW)}, 15
              s_add_u32 {s(T[1])}, {s(T[1])}, {s(T[8])}
              s_add_u32 {s(T[1])}, {s(T[1])}, {WS_A}
              v_add_u32 {v(vAld[0])}, {s(T[1])}, {v(vL16)}
              v_add_u32 {v(vAld[1])}, 0x20000, {v(vAld[0])}
              v_add_u32 {v(vW1)}, 57344, {v(vL16)}
              v_lshrrev_b32 v5, 4, {v(vL)}
              v_and_b32 v23, 15, {v(vL)}
              v_lshlrev_b32 v22, 9, v5
              v_lshl_add_u32 v22, v23, 4, v22
              s_mul_i32 {s(T[4])}, {s(sX)}, {H_X}
              s_add_u32 {s(T[4])}, {s(T[4])}, {WS_H}
              s_mul_i32 {s(T[1])}, {s(sW)}, {H_RB}
              s_mul_i32 {s(T[2])}, {s(sJ)}, 3584
              s_add_u32 {s(T[1])}, {s(T[1])}, {s(T[2])}
              s_add_u32 {s(T[1])}, {s(T[1])}, {s(T[4])}
              v_add_u32 {v(vHm)}, {s(T[1])}, v22
              s_mul_i32 {s(T[1])}, {s(T[10])}, {H_RB}
              s_mul_i32 {s(T[2])}, {s(sW)}, 28672
              s_add_u32 {s(T[1])}, {s(T[1])}, {s(T[2])}
              s_add_u32 {s(T[1])}, {s(T[1])}, {s(T[4])}
              v_add_u32 {v(vHld[0])}, {s(T[1])}, v22
              v_add_u32 {v(vHld[1])}, {H_HALF}, {v(vHld[0])}
              v_cmp_gt_u32 vcc, 48, {v(vL)}
              v_add_u32 {v(vHt)}, 2048, {v(vHm)}
              v_mov_b32 v22, 0x80000000
              v_mul_u32_u24 {v(vRw)}, 272, v23
              v_cndmask_b32 {v(vHt)}, v22, {v(vHt)}, vcc
              v_lshl_add_u32 {v(vRw)}, v5, 4, {v(vRw)}
              s_mul_i32 {s(T[1])}, {s(sW)}, 8704
              s_add_u32 {s(T[1])}, {s(T[1])}, {L_RED}
              v_add_u32 {v(vRw)}, {s(T[1])}, {v(vRw)}
              v_lshrrev_b32 v5, 3, {v(vL)}
              v_mul_u32_u24 {v(vRr)}, 272, v5
              v_lshl_add_u32 {v(vRr)}, {v(vP7)}, 3, {v(vRr)}
              s_mul_i32 {s(T[1])}, {s(sW)}, {8*272}
              s_add_u32 {s(T[1])}, {s(T[1])}, {L_RED}
              v_add_u32 {v(vRr)}, {s(T[1])}, {v(vRr)}
              s_lshl_b32 {s(T[1])}, {s(T[10])}, 5
              s_lshl_b32 {s(T[2])}, {s(sW)}, 3
              s_add_u32 {s(T[1])}, {s(T[1])}, {s(T[2])}
              v_add_u32 v5, {s(T[1])}, v5
              s_lshl_b32 {s(T[2])}, {s(T[11])}, 7
              s_lshl_b32 {s(T[1])}, {s(sX)}, 17
              s_add_u32 {s(T[2])}, {s(T[2])}, {s(T[1])}
              v_lshl_add_u32 v22, {v(vP7)}, 2, {s(T[2])}
              v_lshl_add_u32 {v(vO)}, v5, 10, v22
              s_lshr_b32 {s(T[1])}, {s(T[11])}, 2
              s_lshl_b32 {s(T[1])}, {s(T[1])}, 13
              s_and_b32 {s(T[2])}, {s(T[11])}, 3
              s_lshl_b32 {s(T[2])}, {s(T[2])}, 7
              s_add_u32 {s(T[1])}, {s(T[1])}, {s(T[2])}
              s_lshl_b32 {s(T[2])}, {s(sX)}, 9
              s_add_u32 {s(T[1])}, {s(T[1])}, {s(T[2])}
              s_add_u32 {s(T[1])}, {s(T[1])}, {WS_YP}
              v_lshl_add_u32 {v(vF2)}, {v(vP7)}, 2, {s(T[1])}
              v_lshl_add_u32 {v(vF2)}, v5, 14, {v(vF2)}
              s_mov_b32 {s(sFH)}, 0x100000
              s_lshl_b32 {s(T[1])}, {s(T[0])}, 14
              s_add_u32 {s(T[1])}, {s(T[1])}, {s(T[2])}
              s_add_u32 {s(sFR[0])}, {s(T[1])}, {WS_YP}
              s_add_u32 {s(sFR[1])}, {s(T[1])}, {WS_YP + 4096}
              v_lshrrev_b32 v5, 5, {v(vL)}
              v_lshlrev_b32 v5, 13, v5
              v_lshl_add_u32 {v(vFr)}, {v(vP31)}, 2, v5""")

    W1V = 212
    def w1_addr(self):
        k = self.k; vb = self.W1V; rot = self.o.get('rot', 1)
        k(f"""s_mul_i32 {s(T[0])}, {s(sJ)}, 112
              s_movk_i32 {s(T[1])}, 9363
              s_movk_i32 {s(T[2])}, {3584 - 7*16}
              s_mul_i32 {s(sW1S)}, {s(sW)}, 229376
              s_mul_i32 {s(sW1L)}, {s(sW)}, 14336
              s_and_b32 {s(T[3])}, {s(sX)}, {6 if rot else 0}
              s_and_b32 {s(T[4])}, {s(sX)}, {1 if rot else 0}
              s_cselect_b32 {s(T[5])}, {s(RU)}, {s(RG)}
              s_cselect_b32 {s(T[6])}, {s(RU+1)}, {s(RG+1)}
              s_cselect_b32 {s(RU)}, {s(RG)}, {s(RU)}
              s_cselect_b32 {s(RU+1)}, {s(RG+1)}, {s(RU+1)}
              s_cselect_b32 {s(T[4])}, 7168, 0
              s_lshl_b32 {s(sDEL[0])}, {s(T[4])}, 1
              s_sub_u32 {s(sDEL[0])}, 7168, {s(sDEL[0])}
              s_mov_b32 {s(RG)}, {s(T[5])}
              s_mov_b32 {s(RG+1)}, {s(T[6])}
              s_add_u32 {s(sDEL[1])}, {s(sDEL[0])}, 57344
              s_add_u32 {s(T[4])}, {s(T[4])}, {s(sW1L)}""")
        for i in range(7):
            k(f"""s_add_u32 {s(T[5])}, {s(T[3])}, {i}
                  s_sub_u32 {s(T[6])}, {s(T[5])}, 7
                  s_cselect_b32 {s(T[5])}, {s(T[5])}, {s(T[6])}
                  s_lshl_b32 {s(T[6])}, {s(T[5])}, 10
                  s_add_u32 {s(sROT[i])}, {s(T[6])}, {s(T[4])}
                  v_lshl_add_u32 v5, {s(T[5])}, 6, {v(vL)}
                  v_mul_u32_u24 {v(vb+i)}, {s(T[1])}, v5
                  v_lshrrev_b32 {v(vb+i)}, 16, {v(vb+i)}
                  v_mul_u32_u24 {v(vb+i)}, {s(T[2])}, {v(vb+i)}
                  v_lshl_add_u32 {v(vb+i)}, v5, 4, {v(vb+i)}
                  v_add_u32 {v(vb+i)}, {s(T[0])}, {v(vb+i)}""")

    def w1_dma_text(self, n):
        ck, mat, i = n // 14, (n % 14) // 7, n % 7
        L = []
        if n == 14: L.append(f"s_add_u32 {s(sW1S)}, {s(sW1S)}, {4*229376}")
        L.append(f"s_add_u32 m0, {s(sROT[i])}, {s(sDEL[ck]) if mat else ck*57344}")
        L.append(f"buffer_load_dwordx4 {v(self.W1V+i)}, {s(RU if mat else RG,4)}, {s(sW1S)} offen lds")
        return L
    def w1_dma(self, cnt):
        for _ in range(cnt):
            if self.w1_next >= 28: return
            n = self.w1_next; self.w1_next += 1
            for x in self.w1_dma_text(n): self.w1_tok[n] = self.k(x)

    RL = 222
    def w1_relayout_addr(self):
        k = self.k; r = self.RL
        k(f"""v_lshrrev_b32 v5, 4, {v(vL)}
              v_bfe_u32 {v(r)}, {v(vL)}, 2, 2
              v_lshl_add_u32 {v(r)}, v5, 3, {v(r)}
              v_mul_u32_u24 {v(r)}, 112, {v(r)}
              v_add_u32 {v(r)}, {s(sW1L)}, {v(r)}
              v_and_b32 {v(r+2)}, 3, {v(vL)}
              v_bfe_u32 {v(r+3)}, {v(vL)}, 1, 1
              v_mul_u32_u24 {v(r+3)}, 7168, {v(r+3)}
              v_and_b32 v22, 1, {v(vL)}
              v_lshl_add_u32 {v(r+3)}, v22, 3, {v(r+3)}
              v_add_u32 {v(r+1)}, {v(r)}, {v(r+3)}
              v_lshl_add_u32 {v(r)}, {v(r+2)}, 3, {v(r)}
              v_add_u32 {v(r+2)}, {s(sW1L)}, {v(vL16)}
              v_bfe_u32 {v(r+3)}, {v(vL)}, 1, 2
              v_lshlrev_b32 {v(r+3)}, 2, {v(r+3)}
              v_bfe_u32 v23, {v(vL)}, 3, 1
              v_lshl_add_u32 {v(r+3)}, v23, 1, {v(r+3)}
              v_add_u32 {v(r+3)}, {v(r+3)}, v22
              v_lshl_add_u32 {v(r+3)}, v5, 4, {v(r+3)}
              v_lshlrev_b32 {v(r+3)}, 4, {v(r+3)}
              v_add_u32 {v(r+3)}, {s(sW1L)}, {v(r+3)}""")
    def w1_relayout_items(self, ck, vtemp=False):
        k = self.k; r = self.RL
        R, a = (ACC[1], v) if vtemp else (128, globals()['a'])
        L = [Item(fn=lambda: k.wait(self.w1_tok[14*ck + 13]))]
        if ck == 1: L += [Item(f"v_add_u32 {v(r+i)}, 57344, {v(r+i)}") for i in range(4)]
        for sl in range(2):
            for Tt in range(7):
                for hf in range(2):
                    d = R + (sl*7 + Tt)*4 + 2*hf
                    o = (32*sl + 4*hf)*112
                    if Tt < 6: L.append(Item(f"ds_read_b64_tr_b16 {a(d,2)}, {v(r)} offset:{o + (Tt&1)*7168 + 32*(Tt>>1)}"))
                    else: L.append(Item(f"ds_read_b64_tr_b16 {a(d,2)}, {v(r+1)} offset:{o + 96}"))
        last = L[-1]
        L.append(Item(fn=lambda: k.wait(last.tok)))
        for n in range(14): L.append(Item(f"ds_write_b128 {v(r+3 if n % 7 == 6 else r+2)}, {a(R + n*4, 4)} offset:{n*1024}"))
        return L
    def w1_relayout(self, ck): Queue(self.k, self.w1_relayout_items(ck)).drain()

    JV = 190
    def wd_job_addr(self):
        k = self.k; r = self.JV
        k(f"""s_lshl_b32 {s(T[0])}, s2, 1
              s_lshr_b32 {s(T[1])}, {s(sW)}, 1
              s_add_u32 {s(T[0])}, {s(T[0])}, {s(T[1])}
              s_mul_i32 {s(T[1])}, {s(T[0])}, 4682
              s_lshr_b32 {s(T[1])}, {s(T[1])}, 16
              s_mul_i32 {s(T[2])}, {s(T[1])}, 14
              s_sub_u32 {s(T[2])}, {s(T[0])}, {s(T[2])}
              s_and_b32 {s(T[3])}, {s(T[1])}, 3
              s_lshr_b32 {s(T[1])}, {s(T[1])}, 2
              s_lshl_b32 {s(T[1])}, {s(T[1])}, 7
              s_mul_i32 {s(T[3])}, {s(T[3])}, {8*57344}
              s_add_u32 {s(T[1])}, {s(T[1])}, {s(T[3])}
              s_cmp_lt_u32 s2, 224
              s_cselect_b32 {s(T[3])}, {s(sW)}, 0
              s_bitcmp1_b32 {s(T[3])}, 0
              s_cselect_b32 {s(T[3])}, 0, 0x80000000
              s_lshl_b32 {s(T[4])}, {s(T[0])}, 2
              s_add_u32 {s(T[4])}, {s(T[4])}, {WS_JF}
              s_lshr_b32 {s(sJF)}, {s(T[3])}, 1
              s_or_b32 {s(sJF)}, {s(sJF)}, {s(T[4])}
              s_lshl_b32 {s(T[0])}, {s(T[0])}, 12
              s_add_u32 {s(T[0])}, {s(T[0])}, {WS_WDT}
              s_or_b32 {s(T[0])}, {s(T[0])}, {s(T[3])}
              s_or_b32 {s(T[1])}, {s(T[1])}, {s(T[3])}
              v_add_u32 {v(r+5)}, {s(T[0])}, {v(vL16)}
              v_lshrrev_b32 v5, 3, {v(vL)}
              v_and_b32 v22, 3, v5
              v_lshlrev_b32 v22, 3, v22
              v_cmp_gt_u32 vcc, 4, v5
              v_lshl_add_u32 v23, {v(vP7)}, 2, {s(T[1])}
              s_lshl_b32 {s(T[2])}, {s(T[2])}, 2""")
        for g in range(4):
            k(f"""s_add_u32 {s(T[0])}, {s(T[2])}, {g}
                  s_mul_i32 {s(T[1])}, {s(T[0])}, 9363
                  s_lshr_b32 {s(T[1])}, {s(T[1])}, 16
                  s_mul_i32 {s(T[3])}, {s(T[1])}, 7
                  s_sub_u32 {s(T[0])}, {s(T[0])}, {s(T[3])}
                  s_mul_i32 {s(T[1])}, {s(T[1])}, 56
                  s_mul_i32 {s(T[3])}, {s(T[0])}, 0x04040404
                  s_add_u32 {s(T[4])}, {s(T[3])}, 0x13121110
                  s_add_u32 {s(T[3])}, {s(T[3])}, 0x03020100
                  s_cmp_ge_u32 {s(T[0])}, 4
                  s_cselect_b32 {s(T[3])}, {s(T[4])}, {s(T[3])}
                  s_cselect_b32 {s(T[4])}, {sum(x << (8*e) for e, x in enumerate(flist(4)[4:]))}, {s(T[4])}
                  s_cmp_eq_u32 {s(T[0])}, 5
                  s_cselect_b32 {s(T[4])}, {sum(x << (8*e) for e, x in enumerate(flist(5)[4:]))}, {s(T[4])}
                  s_cmp_eq_u32 {s(T[0])}, 6
                  s_cselect_b32 {s(T[4])}, {sum(x << (8*e) for e, x in enumerate(flist(6)[4:]))}, {s(T[4])}
                  v_mov_b32 v5, {s(T[3])}
                  v_mov_b32 {v(r+g)}, {s(T[4])}
                  v_cndmask_b32 v5, {v(r+g)}, v5, vcc
                  v_bfe_u32 v5, v5, v22, 8
                  v_add_u32 v5, {s(T[1])}, v5
                  v_lshl_add_u32 {v(r+g)}, v5, 10, v23""")
        k(f"""s_lshl_b32 {s(sJL)}, {s(sW)}, 12
              s_add_u32 {s(sJL)}, {s(sJL)}, {L_JOB}
              v_lshrrev_b32 v5, 4, {v(vL)}
              v_lshlrev_b32 {v(r+4)}, 10, v5
              v_bfe_u32 v5, {v(vL)}, 2, 2
              v_lshl_add_u32 {v(r+4)}, v5, 7, {v(r+4)}
              v_and_b32 v5, 3, {v(vL)}
              v_lshl_add_u32 {v(r+4)}, v5, 3, {v(r+4)}
              v_add_u32 {v(r+4)}, {s(sJL)}, {v(r+4)}""")
    def wd_job_issue(self):
        for g in range(4): self.job_tok = self.dma(self.JV+g, RD, '0', f"s_add_u32 m0, {s(sJL)}, {1024*g}")
    def wd_job_finish(self):
        k = self.k; r = self.JV
        k.wait(self.job_tok)
        t = {}
        for nt in range(4):
            for hf in range(2): t[nt] = k(f"ds_read_b64_tr_b16 {a(128 + 4*nt + 2*hf, 2)}, {v(r+4)} offset:{hf*512 + nt*32}")
        for nt in range(4):
            k.wait(t[nt])
            self.job_st = k(f"buffer_store_dwordx4 {a(128 + 4*nt, 4)}, {v(r+5)}, {s(RW,4)}, 0 offen offset:{1024*nt} sc1")
    WDV = 226
    def wd_addr(self):
        self.k(f"""s_and_b32 {s(T[0])}, {s(sJ)}, 7
                   s_lshl_b32 {s(T[0])}, {s(T[0])}, 2
                   s_add_u32 {s(T[0])}, {s(T[0])}, {s(sW)}
                   s_mul_i32 {s(sJFp)}, {s(T[0])}, {14*4}
                   s_add_u32 {s(sJFp)}, {s(sJFp)}, {WS_JF}
                   s_mul_i32 {s(T[0])}, {s(T[0])}, {14*4096}
                   s_add_u32 {s(T[0])}, {s(T[0])}, {WS_WDT}
                   v_add_u32 {v(vWd[0])}, {s(T[0])}, {v(vL16)}
                   v_add_u32 {v(vWd[1])}, 32768, {v(vWd[0])}
                   v_min_u32 v226, 13, {v(vL)}
                   v_lshlrev_b32 v226, 2, v226""")
    def wd_touch_text(self, i):
        return f"buffer_load_dword {v(228+i)}, v227, {s(RW,4)}, {k4(i)} offen offset:{3072*i} sc1"
    def wd_text(self, n):
        U, nt = divmod(n, 4)
        return f"buffer_load_dwordx4 {a(4*n, 4)}, {v(vWd[U >> 3])}, {s(RW,4)}, {k4(U & 7)} offen offset:{1024*nt}{self.o.get('wdm', ' sc1')}"

    def phase0(self):
        k = self.k
        k(f"""v_lshrrev_b32 v5, 4, {v(vL)}
              v_bfe_u32 v48, {v(vL)}, 2, 2
              v_lshl_add_u32 v49, v5, 4, v48
              v_lshlrev_b32 v49, 7, v49
              v_bfe_u32 v50, {v(vL)}, 1, 1
              s_lshl_b32 {s(T[0])}, {s(sW)}, 1
              v_add_u32 v50, {s(T[0])}, v50
              v_and_b32 v48, 2, v48
              v_xor_b32 v50, v50, v48
              v_and_b32 v48, 1, v5
              v_lshlrev_b32 v48, 2, v48
              v_xor_b32 v50, v50, v48
              v_lshl_add_u32 v49, v50, 4, v49
              v_and_b32 v48, 1, {v(vL)}
              v_lshl_add_u32 v49, v48, 3, v49
              v_add_u32 v49, {L_K}, v49
              v_xor_b32 v50, 64, v49
              v_lshlrev_b32 v51, 12, v27
              v_lshl_add_u32 v51, v5, 5, v51
              s_lshl_b32 {s(T[6])}, {s(sJ)}, 7
              s_add_u32 {s(T[6])}, {s(T[6])}, {WS_KVT}
              v_mul_u32_u24 v52, {self.o.get('xs', 4)//4}, {v(vP31)}
              s_mul_i32 {s(T[7])}, {s(sX)}, {32*self.o.get('xs', 4)}
              s_add_u32 {s(T[7])}, {s(T[7])}, {WS_XCCF}
              s_lshl_b32 {s(T[0])}, {s(sX)}, 9
              s_lshl_b32 {s(T[1])}, {s(sW)}, 7
              s_lshl_b32 {s(T[2])}, {s(sJ)}, 2
              s_add_u32 {s(T[1])}, {s(T[1])}, {s(T[2])}
              s_add_u32 {s(T[0])}, {s(T[0])}, {WS_KVF}
              s_add_u32 {s(T[5])}, {s(T[1])}, {s(T[0])}
              s_xor_b32 {s(T[0])}, {s(sN)}, {s(sXCC)}
              s_mov_b32 {s(sMODE)}, 0
              s_mov_b32 {s(sEXP)}, {s(sN)}""")
        k.wait(self.sh_tok)
        k("s_barrier")
        self.stamp('kv_in')
        xh = k(f"buffer_load_dword v53, v52, {s(RW,4)}, {s(T[7])} offen sc1")
        KR, VR, KS, O, VU, P = 56, 68, 78, 88, 104, 120
        k(f"ds_read_b64_tr_b16 {v(KR,2)}, v50 offset:512")
        for i in range(4): k(f"ds_read_b64_tr_b16 {v(KR+2+2*i,2)}, v49 offset:{1024 + 512*i}")
        for i in range(4): lastv = k(f"ds_read_b64_tr_b16 {v(VR+2*i,2)}, v49 offset:{L_V - L_K + 512*i}")
        k("v_alignbit_b32 v54, v30, v30, 16\nv_alignbit_b32 v55, v31, v31, 16")
        k.wait(('lg', lastv[1] - 4))
        for aa in range(-1, 8): k(f"v_alignbit_b32 {v(KS+1+aa)}, {v(KR+2+aa)}, {v(KR+1+aa)}, 16")
        for aa in range(8):
            k(f"v_dot2_f32_bf16 {v(O+2*aa)}, {v(KS+aa)}, v55, 0")
            k(f"v_dot2_f32_bf16 {v(O+2*aa+1)}, {v(KR+1+aa)}, v55, 0")
        for aa in range(8):
            k(f"v_dot2_f32_bf16 {v(O+2*aa)}, {v(KS+1+aa)}, v54, {v(O+2*aa)}")
            k(f"v_dot2_f32_bf16 {v(O+2*aa+1)}, {v(KR+2+aa)}, v54, {v(O+2*aa+1)}")
        k.wait(lastv)
        for g in range(2):
            for aa in range(4*g, 4*g+4):
                k(f"v_lshlrev_b32 {v(VU+2*aa)}, 16, {v(VR+aa)}")
                k(f"v_and_b32 {v(VU+2*aa+1)}, 0xffff0000, {v(VR+aa)}")
            for aa in range(4*g, 4*g+4): k(f"v_pk_mul_f32 {v(O+2*aa,2)}, {v(O+2*aa,2)}, {v(VU+2*aa,2)}")
            for e in range(4): k(f"v_cvt_pk_bf16_f32 {v(P+4*g+e)}, {v(O+8*g+7-2*e)}, {v(O+8*g+6-2*e)}")
            st = k(f"buffer_store_dwordx4 {v(P+4*g,4)}, v51, {s(RW,4)}, {s(T[6])} offen offset:{16*g}")
        self.stamp('kv_st')
        self.toeplitz_write()
        slow, back, done = k.label(), k.label(), k.label()
        k.wait(xh)
        k(f"v_cmp_ne_u32 vcc, {s(T[0])}, v53\ns_cbranch_vccnz {slow}")
        k.place(back)
        self.tail.append([f"{slow}:",
            f"buffer_load_dword v53, v52, {s(RW,4)}, {s(T[7])} offen sc1", "s_waitcnt vmcnt(0)",
            f"v_xor_b32 v54, {s(sN)}, v53", "v_cmp_lt_u32 vcc, 15, v54", f"s_cbranch_vccz {done}",
            f"s_sub_u32 {s(sSPIN)}, {s(sSPIN)}, 1", f"s_cbranch_scc0 {slow}", "s_branch L_END",
            f"{done}:", f"v_cmp_ne_u32 vcc, {s(T[0])}, v53", f"s_cbranch_vccz {back}",
            f"s_mov_b32 {s(sMODE)}, 1", f"s_not_b32 {s(sEXP)}, {s(sN)}", f"s_branch {back}"])
        if not self.o.get('fake_kv'): self.publish(st, s(T[5]))
        self.stamp('kv_pub')

    def toeplitz_write(self):
        k = self.k
        k.wait(self.h_tok)
        k(f"v_add_u32 v48, {SCR}, v29")
        for ch in range(2):
            k(f"ds_write_b128 v48, {v(32+8*ch,4)} offset:{H_E(ch) - SCR}")
            k(f"ds_write_b128 v48, {v(36+8*ch,4)} offset:{H_O(ch) - SCR}")
        skip = k.label()
        k(f"s_cmp_lg_u32 {s(sW)}, 0\ns_cbranch_scc1 {skip}")
        k(f"""v_readfirstlane_b32 {s(T[1])}, v32
              v_readfirstlane_b32 {s(T[2])}, v40
              v_cmp_eq_u32 vcc, 28, {v(vP7)}
              v_add_u32 v49, {SCR}, {v(vP7)}
              s_lshl_b32 {s(T[1])}, {s(T[1])}, 16
              s_lshl_b32 {s(T[2])}, {s(T[2])}, 16
              v_mov_b32 v50, 0
              v_mov_b32 v51, 0
              v_mov_b32 v54, {s(T[1])}
              v_mov_b32 v55, {s(T[2])}
              v_cndmask_b32 v54, v50, v54, vcc
              v_cndmask_b32 v55, v50, v55, vcc
              ds_write_b32 v49, v50 offset:{H_E(0) - 32 - SCR}
              ds_write_b32 v49, v50 offset:{H_E(1) - 32 - SCR}
              ds_write_b32 v49, v54 offset:{H_O(0) - 32 - SCR}
              ds_write_b32 v49, v55 offset:{H_O(1) - 32 - SCR}
              v_lshlrev_b32 v49, 3, {v(vL)}
              v_add_u32 v49, {L_U}, v49
              ds_write_b64 v49, v[50:51]
              ds_write_b64 v49, v[50:51] offset:{U_S}""")
        k.place(skip)

    YA = 146
    def front_addr(self):
        k = self.k; o = self.o; Y = self.YA; yfs = o.get('yfs', 4)
        k(f"""v_and_b32 v24, 15, {v(vL)}
              v_lshrrev_b32 v25, 4, {v(vL)}
              v_lshlrev_b32 v5, 3, v25
              v_sub_u32 v26, v24, v5
              v_add_u32 v26, 9, v26
              v_and_b32 v5, 1, v26
              v_sub_u32 v26, v26, v5
              v_lshlrev_b32 v26, 1, v26
              v_mul_u32_u24 v5, {H_O(0) - H_E(0)}, v5
              v_add_u32 v26, v26, v5
              s_lshr_b32 {s(T[0])}, {s(sW)}, 1
              s_mul_i32 {s(T[2])}, {s(T[0])}, {H_E(1) - H_E(0)}
              s_and_b32 {s(T[1])}, {s(sW)}, 1
              s_lshl_b32 {s(T[3])}, {s(T[1])}, 8
              s_add_u32 {s(T[2])}, {s(T[2])}, {s(T[3])}
              s_add_u32 {s(T[2])}, {s(T[2])}, {H_E(0)}
              v_add_u32 v152, {s(T[2])}, v26
              s_mul_i32 {s(T[4])}, {s(T[0])}, {U_S}
              s_add_u32 {s(T[4])}, {s(T[4])}, {L_U + 512}
              s_lshl_b32 {s(T[2])}, {s(T[1])}, 11
              s_add_u32 {s(sUm0)}, {s(T[4])}, {s(T[2])}
              s_sub_u32 {s(T[4])}, {s(T[4])}, {s(T[3])}
              s_sub_u32 {s(T[4])}, {s(T[4])}, 224
              v_lshlrev_b32 v140, 5, v24
              v_lshl_add_u32 v140, v25, 4, v140
              v_add_u32 v140, {s(T[4])}, v140
              s_lshl_b32 {s(T[0])}, {s(sX)}, 9
              s_lshr_b32 {s(T[1])}, {s(sJ)}, 3
              s_lshl_b32 {s(T[1])}, {s(T[1])}, 7
              s_add_u32 {s(T[1])}, {s(T[0])}, {s(T[1])}
              s_add_u32 {s(sKVFp)}, {s(T[1])}, {WS_KVF}
              s_lshl_b32 {s(T[1])}, {s(sJ)}, 4
              s_add_u32 {s(T[0])}, {s(T[0])}, {s(T[1])}
              s_add_u32 {s(sYld)}, {s(T[0])}, {WS_YP}
              s_lshl_b32 {s(T[0])}, {s(sX)}, 18
              s_lshl_b32 {s(T[1])}, {s(sJ)}, 13
              s_add_u32 {s(T[0])}, {s(T[0])}, {s(T[1])}
              s_lshl_b32 {s(T[2])}, {s(sW)}, 11
              s_add_u32 {s(T[1])}, {s(T[0])}, {s(T[2])}
              s_add_u32 {s(sKVs)}, {s(T[1])}, {WS_KVT}
              s_lshl_b32 {s(T[2])}, {s(sW)}, 10
              s_add_u32 {s(T[1])}, {s(T[0])}, {s(T[2])}
              s_add_u32 {s(sYst)}, {s(T[1])}, {WS_YP}
              v_lshlrev_b32 v141, 5, v24
              v_lshrrev_b32 v5, 1, v25
              v_lshl_add_u32 v141, v5, 4, v141
              v_and_b32 v5, 1, v25
              v_xor_b32 v5, 1, v5
              v_lshl_add_u32 v141, v5, 3, v141
              s_lshl_b32 {s(T[0])}, {s(sW)}, 9
              s_add_u32 {s(T[1])}, {s(T[0])}, {L_U + 512}
              v_add_u32 v141, {s(T[1])}, v141
              s_add_u32 {s(T[1])}, {s(T[2])}, {L_YT}
              v_add_u32 {v(Y+3)}, {s(T[1])}, {v(vL16)}
              s_lshl_b32 {s(T[0])}, {s(sW)}, 12
              s_add_u32 {s(T[0])}, {s(T[0])}, {L_CRED}
              v_add_u32 v142, {s(T[0])}, {v(vL16)}
              s_add_u32 {s(T[0])}, {s(T[2])}, {L_CRED}
              v_add_u32 v143, {s(T[0])}, {v(vL16)}
              v_lshlrev_b32 v144, 6, v24
              v_lshl_add_u32 v144, v25, 4, v144
              v_add_u32 v145, 4096, v144
              s_lshl_b32 {s(T[0])}, {s(sX)}, 5
              s_add_u32 {s(T[0])}, {s(T[0])}, {s(sJ)}
              s_lshl_b32 {s(T[0])}, {s(T[0])}, 2
              s_add_u32 {s(T[0])}, {s(T[0])}, {s(T[2])}
              s_mul_i32 {s(T[0])}, {s(T[0])}, {yfs//4}
              s_add_u32 {s(sYFs)}, {s(T[0])}, {WS_YF}
              v_lshlrev_b32 {v(Y+2)}, 2, v0
              v_mul_u32_u24 {v(Y)}, {yfs}, v0
              s_lshr_b32 {s(T[0])}, {s(sX)}, 1
              s_mul_i32 {s(T[0])}, {s(T[0])}, {256*yfs}
              s_add_u32 {s(sYFp)}, {s(T[0])}, {WS_YF}
              v_lshlrev_b32 {v(Y+1)}, 13, v0
              v_add_u32 {v(Y+2)}, {L_YT}, {v(Y+2)}""")
        for p in range(1, 8): k(f"v_add_u32 {v(152+p)}, {512*p}, v152")

    def conv_finish(self, h, C, pk):
        KV, P = 32, 160 + 16*h
        W = [f"ds_write_b128 v142, {v(C + 16*h + 4*c, 4)} offset:{16384*h + 1024*c}" for c in range(4)]
        R = [f"ds_read_b64 {v(KV + 4*h + 2*ch, 2)}, v141 offset:{2048*h + ch*U_S}" for ch in range(2)]
        R2 = [f"ds_read_b128 {v(P + 4*w, 4)}, v143 offset:{16384*h + 4096*w}" for w in range(4)]
        L = []
        for ch in range(2):
            if pk: L += [f"v_pk_add_f32 {v(P+8*ch+e,2)}, {v(P+8*ch+e,2)}, {v(P+8*ch+4+e,2)}" for e in (0, 2)]
            else: L += [f"v_add_f32 {v(P+8*ch+e)}, {v(P+8*ch+e)}, {v(P+8*ch+4+e)}" for e in range(4)]
        D = [f"v_dot2_f32_bf16 {v(P+8*ch+e)}, {v(KV+4*h+2*ch+(1-(e>>1)))}, {s(sD+2*ch+(1-(e&1)))}, {v(P+8*ch+e)}" for e in range(4) for ch in range(2)]
        E = [f"v_cvt_pk_bf16_f32 {v(P+4+e)}, {v(P+e)}, {v(P+8+e)}" for e in range(4)]
        E.append(f"buffer_store_dwordx4 {v(P+4,4)}, {v(144+h)}, {s(RW,4)}, {s(sYst)} offen sc1")
        return W, R, R2, L, D, E

    def conv(self):
        k = self.k; o = self.o; Y = self.YA
        def tz(rr, p):
            d = (rr*8 + p)*4
            return [f"ds_read2_b32 {a(d,2)}, {v(152+p)} offset0:{16*rr} offset1:{16*rr+1}",
                    f"ds_read2_b32 {a(d+2,2)}, {v(152+p)} offset0:{16*rr+2} offset1:{16*rr+3}"]
        first = [x for rr in range(4) for p in range(4) for x in tz(rr, p)]
        second = [x for rr in range(4) for p in range(4, 8) for x in tz(rr, p)]
        k.wait_lg0()
        k("s_barrier")
        n0 = o.get('toep0', 20)
        if not o.get('fake_kv'): ph = self.poll_issue(vP31, s(sKVFp))
        for x in first[:n0]: k(x)
        self.stamp('toep')
        if not o.get('fake_kv'): self.poll_check(ph)
        self.stamp('kv_seen')
        k(f"s_mov_b32 m0, {s(sUm0)}")
        k(f"buffer_load_dwordx4 {v(vL16)}, {s(RW,4)}, {s(sKVs)} offen sc1 lds")
        tok = k(f"buffer_load_dwordx4 {v(vL16)}, {s(RW,4)}, {s(sKVs)} offen offset:1024 sc1 lds")
        for x in first[n0:]: k(x)
        k.wait(tok)
        k("s_barrier")
        self.stamp('u_in')
        B, C = 64, 96
        uses = [(0, rr, q) for rr in range(4) for q in range(4)] + [(1, rr, q) for rr in range(4) for q in range(8)]
        bt = {}
        def rdB(i):
            part, rr, q = uses[i]
            bt[i] = k(f"ds_read_b128 {v(B + 4*(i % 8), 4)}, v140 offset:{512*q + 64*(3-rr)}")
        for i in range(8): rdB(i)
        pre = []
        if o.get('jpos', 0) == 0: self.wd_job_issue()
        if not o.get('joint', 1): self.q_load()
        tq = Queue(k, [Item(x) for x in second]); tits = list(tq.q)
        n2 = o.get('n2', 11); dq = []
        for i in range(n2):
            if self.w1_next >= 14: break
            n = self.w1_next; self.w1_next += 1
            for x in self.w1_dma_text(n): dq.append(Item(x, at=o.get('n2at', 2) + i*(o.get('n2span', 130) // n2), tag=n))
        dits = list(dq); dq = Queue(k, dq)
        side = Queue(k, []); ybox = []
        m = 0; started = set()
        for i, (part, rr, q) in enumerate(uses):
            need = []
            if part == 1 and q == 0:
                while any(x.tok is None for x in tits[:8*rr + 8]): tq.emit(tq.q[0])
                need = [tits[8*rr + 7].tok]
            if part == 1 and rr == 0 and q == 0:
                W, R, R2, L, D, E = self.conv_finish(0, C, False)
                its = [Item(x, cost=2, at=m + 3 + 2*n) for n, x in enumerate(W)] + [Item(x) for x in R]
                its += [Item(fn=lambda: k.wait_lg0(), at=m + 16), Item(fn=lambda: k("s_barrier"))]
                its += [Item(x) for x in R2]; lastr = its[-1]
                its += [Item(fn=lambda: k.wait(lastr.tok), at=m + 26)] + [Item(x) for x in L]
                its += [Item(fn=lambda: [k(x) for x in D], cost=2)] + [Item(x) for x in E]
                ysA = its[-1]
                if not o.get('joint', 1): its += [Item(fn=lambda: k.wait(ysA.tok), at=o.get('ya_pub', 118)), Item(fn=lambda: self.flag_store(s(sYFs), 0, False))]
                side = Queue(k, its)
            if i % 2 == 0: k.wait(bt[i + 1], *need)
            ps = range(4 - q) if part == 0 else range(max(0, 4 - q), 8 - q)
            for n, p in enumerate(ps):
                c = C + 4*(p + q)
                src = v(c, 4) if (p + q) in started else '0'
                started.add(p + q)
                k(f"v_mfma_f32_16x16x32_bf16 {v(c,4)}, {a((rr*8+p)*4,4)}, {v(B + 4*(i % 8),4)}, {src}")
                m += 1
                cap = 2
                if n == len(ps) - 1: cap -= (1 if i + 8 < len(uses) else 0) + (i % 2)
                cap = side.fill(cap, m)
                cap = dq.fill(cap, m)
                tq.fill(min(cap, 1))
            if i + 8 < len(uses): rdB(i + 8)
        print('conv left:', side.cost(), dq.cost())
        dq.drain()
        for x in dits: self.w1_tok[x.tag] = x.tok
        self.stamp('conv_mfma')
        W, R, R2, L, D, E = self.conv_finish(1, C, True)
        for x in R + W: k(x)
        side.drain()
        k.wait_lg0()
        k("s_barrier")
        for x in R2: k(x)
        if not o.get('joint', 1): pa = self.poll_issue(Y, s(sYFp))
        k.wait_lg0()
        self.ysB = self.run(L + D + E)[-1].tok
        self.stamp('y_st')
        if not o.get('joint', 1):
            self.poll_check(pa, False)
            self.stamp('y_seen')

    def y_joint(self):
        k = self.k; o = self.o; Y = self.YA
        self.wd_job_finish()
        self.persistent()
        if not o.get('fake_y'):
            self.publish(self.ysB, s(sYFs), local=False)
            self.stamp('y_pub')
            self.publish(self.job_st, s(sJF), local=False)
        k("s_barrier")
        done0 = self.w1_next >= 14
        self.q_load()
        self.w1_dma(o.get('n3', 4))
        self.w1_relayout_addr()
        self.wd_addr()
        k(f"s_add_u32 {s(T[8])}, {s(sYld)}, 4096")
        if done0: self.w1_relayout(0)
        self.q_stats()
        k(f"s_mul_i32 {s(sAG[0])}, {s(sW)}, 1088\ns_add_u32 {s(sAG[0])}, {s(sAG[0])}, {L_AG2}\ns_lshl_b32 {s(sAG[1])}, {s(sW)}, 8\ns_add_u32 {s(sAG[1])}, {s(sAG[1])}, {L_AG2}")
        self.run(self.ag_addr(100))
        self.stamp('rl0')
        if not o.get('fake_y'): self.poll(Y, s(sYFp), local=False)
        else: self.publish(self.job_st, s(sJF), local=False)
        self.stamp('y_seen')
        t0 = k(f"buffer_load_dwordx4 v[32:35], {v(Y+1)}, {s(RW,4)}, {s(sYld)} offen sc1")
        t1 = k(f"buffer_load_dwordx4 v[36:39], {v(Y+1)}, {s(RW,4)}, {s(T[8])} offen sc1")
        pj = self.poll_issue(226, s(sJFp), 0, 229)
        self.w1_dma(o.get('n4', 6))
        if o.get('tch_h', 0) == 1: k(self.touch_h_text())
        if not done0 and self.w1_next >= 14: self.w1_relayout(0); done0 = True
        k.wait(t0)
        for e in range(4): k(f"ds_write_b32 {v(Y+2)}, {v(32+e)} offset:{1024*e}")
        k.wait(t1)
        for e in range(4): k(f"ds_write_b32 {v(Y+2)}, {v(36+e)} offset:{1024*(4+e)}")
        k.wait_lg0()
        k("s_barrier")
        for h in range(2): k(f"ds_read_b128 {v(YS[h],4)}, {v(Y+3)} offset:{4096*h}")
        k.wait_lg0()
        self.stamp('y_in')
        its = self.run(self.gate_norm([0, 1], self.N0, 0, 56))
        sts = self.a_out([0, 1], 56, 0) if o.get('ag', 1) else [x.tok for x in its if 'store' in x.text]
        self.stamp('a_st')
        self.poll_check(pj, False)
        if done0: self.gemm1_start(0)
        self.publish(sts[0], s(sAFs), 0)
        self.publish(sts[1], s(sAFs), 512)
        k(f"s_or_b32 {s(T[0])}, s2, {s(sW)}\ns_cmp_eq_u32 {s(T[0])}, 0\ns_cselect_b32 {s(T[0])}, 0, 0x40000000")
        k(f"buffer_store_dword {v(vNON)}, {v(vL0)}, {s(RW,4)}, {s(T[0])} offen sc1")
        self.stamp('a_pub')
        self.rl1_done = bool(o.get('rl1_front', 0)); self.rowb_done = True
        self.wd0 = o.get('wd0', 0)
        for n in range(self.wd0): k(self.wd_text(n))
        self.w1_dma(28 if self.rl1_done else o.get('n5', 4))
        if self.w1_next < 28:
            for i in range(7): k(f"v_mov_b32 {v(126+i)}, {v(self.W1V+i)}")
            self.W1V = 126
        if not done0: self.w1_relayout(0)
        if self.rl1_done: self.w1_relayout(1)
        if self.rl1_done or not done0: k.wait_lg0(); k("s_barrier")
        if not done0: self.gemm1_start(0)

    def stats(self, rows, out, t0, scale=None):
        L = []; n = len(rows)
        for i, x in enumerate(rows):
            b = t0 + 6*i
            L += [f"v_pk_add_f32 {v(b,2)}, {v(x,2)}, {v(x+2,2)}", f"v_pk_mul_f32 {v(b+2,2)}, {v(x,2)}, {v(x,2)}",
                  f"v_pk_add_f32 {v(b+4,2)}, {v(x+4,2)}, {v(x+6,2)}"]
            L += [f"v_pk_fma_f32 {v(b+2,2)}, {v(x+e,2)}, {v(x+e,2)}, {v(b+2,2)}" for e in (2, 4, 6)]
            L += [f"v_pk_add_f32 {v(b,2)}, {v(b,2)}, {v(b+4,2)}", f"v_add_f32 {v(b+2)}, {v(b+2)}, {v(b+3)}", f"v_add_f32 {v(b)}, {v(b)}, {v(b+1)}"]
        for ctl in ("row_ror:8 row_mask:0xf", "row_ror:4 row_mask:0xf", "row_ror:2 row_mask:0xf", "row_ror:1 row_mask:0xf",
                    "row_bcast:15 row_mask:0xa", "row_bcast:31 row_mask:0xc"):
            for i in range(n):
                for e in (2, 0):
                    r = t0 + 6*i + e
                    L.append(f"v_add_f32_dpp {v(r)}, {v(r)}, {v(r)} {ctl} bank_mask:0xf")
        for i in range(n):
            b = t0 + 6*i
            L += [f"v_mul_f32 {v(b)}, 0x3b000000, {v(b)}", f"v_mul_f32 {v(b+2)}, 0x3b000000, {v(b+2)}",
                  f"v_fma_f32 {v(b+2)}, -{v(b)}, {v(b)}, {v(b+2)}", f"v_max_f32 {v(b+2)}, 0, {v(b+2)}",
                  f"v_add_f32 {v(b+2)}, 0x3727c5ac, {v(b+2)}", f"v_rsq_f32 {v(b+2)}, {v(b+2)}"]
            if scale: L.append(f"v_mul_f32 {v(b+2)}, {f32(scale)}, {v(b+2)}")
            L += [f"v_mul_f32_e64 {v(b)}, -{v(b)}, {v(b+2)}", f"v_readlane_b32 {s(out[i])}, {v(b+2)}, 63",
                  f"v_readlane_b32 {s(out[i]+2)}, {v(b)}, 63", f"v_mov_b32 {v(b+4)}, {s(out[i]+2)}"]
        return L
    def unpack(self, dst, src):
        L = []
        for e in range(4): L += [f"v_lshlrev_b32 {v(dst+2*e)}, 16, {v(src+e)}", f"v_and_b32 {v(dst+2*e+1)}, 0xffff0000, {v(src+e)}"]
        return L
    def affine(self, dst, x, sp, vb):
        return [f"v_pk_fma_f32 {v(dst+e,2)}, {v(x+e,2)}, {s(sp,2)}, {v(vb,2)} op_sel_hi:[1,0,0]" for e in (0, 2, 4, 6)]
    def run(self, L, look=12):
        its = [Item(x) for x in L]
        Queue(self.k, its, look).drain()
        return its

    def gate_norm(self, halves, nrm, layer, R):
        L = []; sp = [36, 40]
        t0 = R + 16*len(halves)
        for i, h in enumerate(halves):
            L += self.unpack(R + 16*i, YS[h])
            L += [f"v_pk_fma_f32 {v(XS[h]+e,2)}, {v(nrm[h]+e,2)}, {v(R+16*i+e,2)}, {v(XS[h]+e,2)}" for e in (0, 2, 4, 6)]
        L += self.stats([XS[h] for h in halves], sp[:len(halves)], t0, LOG2E)
        for i, h in enumerate(halves):
            b = R + 16*i
            L += self.affine(b, XS[h], sp[i], t0 + 6*i + 4)
            L += [f"v_cvt_pk_bf16_f32 {v(b+8+e)}, {v(b+2*e)}, {v(b+2*e+1)}" for e in range(4)]
            if self.o.get('ag', 1): L.append(f"ds_write_b128 {v(self.agw)}, {v(b+8,4)} offset:{ag_off(layer, h)}")
            else: L.append(f"buffer_store_dwordx4 {v(b+8,4)}, {v(vAst)}, {s(RW,4)}, {s(sHALF) if h else 0} offen")
            if layer == 1:
                L += [f"v_cvt_pk_bf16_f32 {v(b+12+e)}, {v(XS[h]+2*e)}, {v(XS[h]+2*e+1)}" for e in range(4)]
                L.append(f"buffer_store_dwordx4 {v(b+12,4)}, {v(vFr)}, {s(RW,4)}, {s(sFR[h])} offen{self.o.get('x3m', '')}")
        return L

    def ag_addr(self, r):
        if not self.o.get('ag', 1): return []
        self.agw, self.agr = r, r + 1
        return [f"v_bfe_u32 {v(r+1)}, {v(vL16)}, 4, 2", f"v_mul_u32_u24 {v(r+1)}, 1088, {v(r+1)}", f"v_lshrrev_b32 {v(r)}, 6, {v(vL16)}",
                f"v_lshl_add_u32 {v(r+1)}, {v(r)}, 4, {v(r+1)}", f"v_add_u32 {v(r+1)}, {s(sAG[1])}, {v(r+1)}", f"v_add_u32 {v(r)}, {s(sAG[0])}, {v(vL16)}"]
    def a_out(self, halves, R, layer, between=None):
        k = self.k
        if between: between()
        k.wait_lg0(); k("s_barrier")
        t = [k(f"ds_read_b128 {v(R + 4*i, 4)}, {v(self.agr)} offset:{ag_off(layer, h)}") for i, h in enumerate(halves)]
        out = []
        for i, h in enumerate(halves):
            k.wait(t[i])
            out.append(k(f"buffer_store_dwordx4 {v(R + 4*i, 4)}, {v(vAst)}, {s(RW,4)}, {s(sHALF) if h else 0} offen"))
        return out

    N0 = [40, 118]
    def q_stats(self):
        k = self.k
        k.wait(self.q_tok)
        L = []
        for h in range(2): L += self.unpack(XS[h], 204 + 4*h)
        L += self.stats(XS, [36, 40], 128)
        for h in range(2): L += self.affine(self.N0[h], XS[h], [36, 40][h], 128 + 6*h + 4)
        self.run(L)

    def y_row(self, h, t, raw):
        k = self.k; Y = self.YA
        k.wait(t)
        for e in range(4): k(f"ds_write_b32 {v(Y+2)}, {v(raw+e)} offset:{4096*h + 1024*e}")
        k.wait_lg0()
        k("s_barrier")
        k(f"ds_read_b128 {v(YS[h],4)}, {v(Y+3)} offset:{4096*h}")
        k.wait_lg0()

    def y_in(self):
        k = self.k; o = self.o; Y = self.YA
        t0 = k(f"buffer_load_dwordx4 v[32:35], {v(Y+1)}, {s(RW,4)}, {s(sYld)} offen sc1")
        k(f"s_add_u32 {s(sYFs)}, {s(sYFs)}, {1024*o.get('yfs', 4)}\ns_add_u32 {s(sYFp)}, {s(sYFp)}, {1024*o.get('yfs', 4)}\ns_add_u32 {s(sYld)}, {s(sYld)}, 4096")
        self.publish(self.ysB, s(sYFs), local=False)
        self.stamp('y_pub')
        if o.get('jpos', 0) == 0: self.wd_job_finish()
        self.q_stats()
        self.persistent()
        k("s_barrier")
        self.w1_dma(o.get('n4', 6))
        self.y_row(0, t0, 32)
        self.stamp('y_in')
        its = self.run(self.gate_norm([0], self.N0, 0, 56))
        st = [x.tok for x in its if 'store' in x.text][0]
        self.stamp('a_st')
        for i in range(4): k(f"v_mov_b32 {v(110+i)}, {v(Y+i)}")
        self.YA = 110
        if self.w1_next + o.get('n5', 28) < 28:
            for i in range(7): k(f"v_mov_b32 {v(126+i)}, {v(self.W1V+i)}")
            self.W1V = 126
        self.w1_relayout_addr()
        self.publish(st, s(sAFs), 0)
        self.flag_store(s(sJF), 0, False)
        k(f"s_or_b32 {s(T[0])}, s2, {s(sW)}\ns_cmp_eq_u32 {s(T[0])}, 0\ns_cselect_b32 {s(T[0])}, 0, 0x40000000")
        k(f"buffer_store_dword {v(vNON)}, {v(vL0)}, {s(RW,4)}, {s(T[0])} offen sc1")
        self.stamp('a_pub')
        self.w1_dma(o.get('n5', 28))
        self.w1_relayout(0)
        self.wd_addr()
        self.rl1_done = bool(o.get('rl1_front', 1))
        if self.rl1_done:
            if o.get('rowb_front', 1): self.row_b0()
            self.w1_relayout(1)
        k.wait_lg0(); k("s_barrier")
        self.stamp('w1')
        self.gemm1_start(0)

    def row_b0(self, h0=None):
        k = self.k; Y = self.YA
        if h0 is None:
            self.poll(Y, s(sYFp), local=False)
            h0 = k(f"buffer_load_dwordx4 v[106:109], {v(Y+1)}, {s(RW,4)}, {s(sYld)} offen sc1")
        self.y_row(1, h0, 106)
        its = self.run(self.gate_norm([1], self.N0, 0, ACC[1]))
        self.aB_tok = [x.tok for x in its if 'store' in x.text][0]
        self.rowb_done = True
        if self.o.get('rowb_front', 1) and self.rl1_done: self.publish(self.aB_tok, s(sAFs), 512)

    def epilogue1(self, B, half, off, pk, sc=''):
        L = []; so = s(sHH) if half else '0'
        def grp(g, u, n, outs, t):
            for e in range(n): L.append(f"v_exp_f32_e64 {v(t+e)}, -{v(g+e)}")
            if pk:
                for e in range(0, n, 2): L.append(f"v_pk_mul_f32 {v(u+e,2)}, {v(g+e,2)}, {v(u+e,2)}")
                for e in range(0, n, 2): L.append(f"v_pk_fma_f32 {v(t+e,2)}, {v(t+e,2)}, {s(sC2,2)}, {s(sC2,2)}")
            else:
                for e in range(n): L.append(f"v_mul_f32 {v(u+e)}, {v(g+e)}, {v(u+e)}")
                for e in range(n): L.append(f"v_fma_f32 {v(t+e)}, {v(t+e)}, {s(sC2)}, {s(sC2)}")
            for e in range(n): L.append(f"v_rcp_f32 {v(t+e)}, {v(t+e)}")
            if pk:
                for e in range(0, n, 2): L.append(f"v_pk_mul_f32 {v(u+e,2)}, {v(u+e,2)}, {v(t+e,2)}")
            else:
                for e in range(n): L.append(f"v_mul_f32 {v(u+e)}, {v(u+e)}, {v(t+e)}")
            for e in range(0, n, 2): L.append(f"v_cvt_pk_bf16_f32 {v(outs[e//2])}, {v(u+e)}, {v(u+e+1)}")
        grp(B, B+4, 4, [B, B+1], TMP)
        grp(B+8, B+12, 4, [B+2, B+3], TMP+4)
        L.append(f"buffer_store_dwordx4 {v(B,4)}, {v(vHm)}, {s(RW,4)}, {so} offen offset:{off}{sc}")
        grp(B+16, B+20, 4, [B+8, B+9], TMP)
        grp(B+24, B+26, 2, [B+10], TMP+4)
        Z, C, A_ = B+4, B+5, B+6
        L += [f"v_mov_b32 {v(C)}, {v(B+8)}", f"v_mov_b32 {v(A_)}, {v(B+9)}", f"v_mov_b32 {v(Z)}, {v(B+10)}",
              f"v_permlane32_swap_b32 {v(A_)}, {v(B+11)}", f"v_permlane32_swap_b32 {v(C)}, {v(Z)}",
              f"v_permlane16_swap_b32 {v(Z)}, {v(B+11)}",
              f"buffer_store_dwordx4 {v(B+8,4)}, {v(vHt)}, {s(RW,4)}, {so} offen offset:{off}{sc}"]
        return L

    def a_plan(self, layer):
        n = self.o.get('ring0', 8) if layer == 0 else self.o.get('ring1', 4)
        ring = ([('v', AR + 8*i) for i in range(4)] + [('a', 224 + 8*i) for i in range(4)])[:n]
        reg = {gs: ring[gs % n] for gs in range(32)}
        issue = {}
        for gs in range(32):
            prev = [p for p in range(gs) if reg[p] == reg[gs]]
            issue[gs] = prev[-1] + 1 if prev else -1
        return reg, issue

    def gemm1_start(self, layer):
        k = self.k
        self.wt, self.at = {}, {}
        self.areg, self.aiss = self.a_plan(layer)
        for Tt in range(7): self.rdW(0, Tt)
    def rdW(self, gs, Tt):
        st = gs % 16
        base, o = (vL16, st*7168) if st < 8 else (vW1, (st-8)*7168)
        self.wt[(gs, Tt)] = self.k(f"ds_read_b128 {v(WF + 28*(gs&1) + 4*Tt, 4)}, {v(base)} offset:{o + 1024*Tt}")
    def afrag(self, gs, mt):
        kind, b = self.areg[gs]
        return (v if kind == 'v' else a)(b + 4*mt, 4)
    def ldA(self, gs, mt):
        st = gs % 16
        self.at[(gs, mt)] = self.k(f"buffer_load_dwordx4 {self.afrag(gs, mt)}, {v(vAld[gs // 16])}, {s(RW,4)}, {k4(st>>1)} offen offset:{((st&1)*2+mt)*1024} sc1")

    def gemm1(self, layer):
        k = self.k; o = self.o
        lo = 1024*layer
        if layer: self.poll_check(self.a_poll)
        else: self.poll(vP31, s(sAFp), lo)
        self.stamp(f'a_seen{layer}')
        todo = sorted(range(32), key=lambda g: g)
        nxtA = 0
        while self.aiss[nxtA] < 0 and nxtA < o.get('a_init', 5):
            for mt in range(2): self.ldA(nxtA, mt)
            nxtA += 1
        w1q = []
        if layer == 0:
            if o.get('w1_spread', 1):
                n0 = self.w1_next
                for n in range(n0, 28):
                    for x in self.w1_dma_text(n): w1q.append(Item(x, at=int(14*o.get('w1_spread', 1)*(n - n0)/(28 - n0)), tag=n))
                self.w1_next = 28
            else: self.w1_dma(28)
        firstB = max(min(self.aiss[g] for g in range(16, 32)), o.get('firstB', 0) if layer else 0)
        queues = []
        if layer == 0:
            burst = None
            if getattr(self, 'rowb_done', False):
                queues.append(Queue(k, self.poll_items(vP31, s(sAFp), lo + 512, 14*2, 14*(firstB - 2))))
            else:
                burst = o.get('rowb0_at', 3); box = []
                its = [Item(fn=lambda: box.append(self.poll_issue(self.YA, s(sYFp))))] + [Item(fn=f, at=14*(burst - 2)) for f in self.poll_steps(lambda: box[0], False)]
                fld = Item(f"buffer_load_dwordx4 v[106:109], {v(self.YA+1)}, {s(RW,4)}, {s(sYld)} offen sc1"); its.append(fld)
                queues.append(Queue(k, its))
                firstB = max(firstB, o.get('firstB0', 12))
            rl = self.w1_relayout_items(1) if not self.rl1_done else []
            for x in rl: x.at = 14*o.get('rl1_at', 4)
            if w1q:
                def note():
                    for x in w1q: self.w1_tok[x.tag] = x.tok
                rl = w1q + [Item(fn=note, cost=0)] + rl
            rlq = Queue(k, rl); queues.append(rlq)
            t0 = o.get('wd_t0', 1); t1 = o.get('wd_t1', 30)
            wd = [Item(self.wd_text(n), at=int(14*(t0 + (t1 - t0)*n/56))) for n in range(getattr(self, 'wd0', 0), o.get('wd_n', 56))]
            jb = []
            pj = [Item(fn=lambda: jb.append(self.poll_issue(226, s(sJFp), 0, 229)))] + [Item(fn=f, at=14*t0 - 4) for f in self.poll_steps(lambda: jb[0], False)]
            if o.get('joint', 1): pj = []
            if o.get('tch_h', 0) == 2: pj = [Item(self.touch_h_text(), at=14*o.get('tch_at', 0))]
            wdq = Queue(k, pj + wd, 1); queues.append(wdq)
        else:
            box = []
            s0 = o.get('rowb_at', 6)
            its = self.publish_items(lambda: self.fB, s(sFFs), 512, o.get('fb_pub', 24)) + self.poll_items(vP7, s(sFFp), 512, 14*s0 - o.get('fb_pi', 56), 14*s0 - o.get('fb_pc', 36))
            fld = Item(f"buffer_load_dwordx4 {v(ACC[1],4)}, {v(vFr)}, {s(RW,4)}, {s(sFR[1])} offen sc1"); its.append(fld)
            queues.append(Queue(k, its))
            burst = s0
        epi = None; hbox = []
        ho = lambda half, mt: 2048*layer + 1024*half + 512*mt
        hsc = [' sc1' if o.get('hsc', 15) >> (2*layer + h) & 1 else '' for h in range(2)]
        for gs in range(32):
            ps, st = divmod(gs, 16)
            if gs == burst:
                queues[0].drain(); k.wait(fld.tok)
                self.stamp('rowB_go')
                if layer: sts = self.rowop(1, ACC[1])
                else: self.row_b0(fld.tok); sts = self.aB_tok
                self.stamp('rowB')
                queues[:1] = [Queue(k, self.publish_items(lambda: sts, s(sAFs), lo + 512, 14*gs + o.get('ab_pub', 36))
                                + self.poll_items(vP31, s(sAFp), lo + 512, 14*(firstB - 2) - 4, 14*firstB - 4))]
            if gs == firstB: queues[0].drain()
            if layer == 0 and gs == o.get('rl1_bar', 7) and not self.rl1_done:
                print('relayout left at step 7:', rlq.cost())
                rlq.drain(); k.wait_lg0(); k("s_barrier")
            if gs == 16:
                for q in queues[:2]: q.drain()
                xb = o.get('e0_burst', 1)
                e0 = [Item(x, at=14*16 + 4) for x in self.epilogue1(ACC[0], 0, 0, xb, hsc[0])]
                if xb: Queue(k, e0, 12).drain()
                e1 = [Item(x, at=14*16 + 4) for x in self.epilogue1(ACC[0] + 28, 0, 256, 0, hsc[0])]
                epi = ([] if xb else e0) + e1
                queues = [Queue(k, epi, 14), Queue(k, []), Queue(k, [])]
                if layer == 0: queues.append(wdq)
                pub = [False, False]; self.ht = {}; self.nxtH = 0
            if epi:
                dl = o.get('ha_pub', 84 if hsc[0] else 50)
                if not pub[0] and e0[-1].tok:
                    pub[0] = gs
                    queues[1].q += self.publish_items(lambda: e0[-1].tok, s(sHFs), ho(0, 0), 14*gs + dl)
                    t1_ = 14*gs + dl + o.get('ha_gap', 40)
                    queues[2].q += self.poll_items(vP7, s(sHFp), ho(0, 0), t1_, t1_ + o.get('ha_rtt', 28))
                    queues[2].q += [Item(fn=self.ldH, at=t1_ + o.get('ha_rtt', 28) + 4*n) for n in range(7)]
                if not pub[1] and e1[-1].tok:
                    pub[1] = gs
                    queues[1].q += self.publish_items(lambda: e1[-1].tok, s(sHFs), ho(0, 1), 14*gs + o.get('ha_pub1', 70 if hsc[0] else 40))
                    queues[2].q += [Item(fn=self.ldH, at=o.get('ha_more_at', 410) + 4*n) for n in range(o.get('ha_more', 7))]
            if gs in (2, 4, 8, 10, 12, 14, 20, 24, 28): self.stamp(f'g1_{layer}_{gs}')
            fixed = [[] for _ in range(14)]
            if gs + 1 < 32:
                for Tt in range(7): fixed[2*(Tt // 2)].append(('W', gs+1, Tt))
            slot = 6
            while nxtA < 32 and self.aiss[nxtA] <= gs and slot <= 10 and (nxtA < 16 or gs >= firstB):
                fixed[slot].append(('A', nxtA, 0)); fixed[slot+2].append(('A', nxtA, 1)); nxtA += 1; slot += 4
            k.wait(self.at[(gs, 1)], self.wt[(gs, 6)])
            for i in range(14):
                Tt, mt = divmod(i, 2)
                d = ACC[ps] + 28*mt + 4*Tt
                k(f"v_mfma_f32_16x16x32_bf16 {v(d,4)}, {v(WF + 28*(gs&1) + 4*Tt, 4)}, {self.afrag(gs, mt)}, {'0' if st == 0 else v(d,4)}")
                for it in fixed[i]:
                    if it[0] == 'W': self.rdW(it[1], it[2])
                    else: self.ldA(it[1], it[2])
                cap = 2 - len(fixed[i]) - (1 if i == 13 else 0)
                for q in (queues[::-1] if ps else queues): cap = q.fill(cap, 14*gs + i)
            if gs == 15: self.stamp(f'g1a{layer}'); self.late = layer == 1
        print('layer', layer, 'left after G1B:', [q.cost() for q in queues], 'stores done in steps', pub, 'h loads out', self.nxtH)
        queues[0].drain()
        if not pub[1]: queues[1].q += self.publish_items(lambda: e1[-1].tok, s(sHFs), ho(0, 1), 0)
        if layer == 0: wdq.drain(); self.wd_last = wd[-1].tok
        self.stamp(f'g1b{layer}')
        b0 = [Item(x) for x in self.epilogue1(ACC[1], 1, 0, 1, hsc[1])]
        b1 = [Item(x) for x in self.epilogue1(ACC[1] + 28, 1, 256, 1, hsc[1])]
        q = Queue(k, b0 + b1, 12)
        total = q.cost()
        side = [x for x in queues[2].q if x.fn != self.ldH]
        pubq = list(queues[1].q)
        ev = [(o.get('epi_pub', 0), lambda: Queue(k, pubq).drain()), (o.get('epi_lead', 10), lambda: Queue(k, side).drain())]
        gap = o.get('epi_gap', 20); t = o.get('epi_lead', 10)
        for n in range(self.nxtH, 14):
            ev.append((t, self.ldH)); t += gap
        box = []
        self.hA1_issue = lambda: box.append(self.poll_issue(vP7, s(sHFp), ho(0, 1)))
        if 'ha1_slot' not in o: ev.append((o.get('ha1_pi', 60), self.hA1_issue))
        ev.sort(key=lambda x: x[0])
        while len(q):
            while ev and total - q.cost() >= ev[0][0]: ev.pop(0)[1]()
            if q.fill(3) == 3: q.emit(q.q[0])
        for _, f in ev: f()
        self.hA1_box = box
        self.hB_tok = [b0[-1].tok, b1[-1].tok]
        self.hsc = hsc
        self.stamp(f'epiB{layer}')

    def g2_order(self):
        return [(half, U, mt) for half in range(2) for mt in range(2) for U in range(14)]
    def hreg(self, n):
        if n < 14: return ACC[0] + 4*n
        if n < 28: return WF + 4*(n - 14)
        if n < 42: return ACC[1] + 4*(n - 28)
        return ACC[0] + 4*(n - 42)
    def ldH(self, _=0):
        n = self.nxtH; self.nxtH += 1
        half, U, mt = self.g2_order()[n]
        self.ht[n] = self.k(f"buffer_load_dwordx4 {v(self.hreg(n),4)}, {v(vHld[half])}, {s(RW,4)}, {k4(U>>1)} offen offset:{(U&1)*2048 + mt*256} sc1")

    def red_write(self, A2):
        return [f"ds_write_b128 {v(vRw)}, {v(A2 + 16*mt + 4*nt, 4)} offset:{4352*mt + 64*nt}" for mt in range(2) for nt in range(4)]
    def red_read(self, P):
        return [f"ds_read_b128 {v(P + 8*w + 4*hf, 4)}, {v(vRr)} offset:{8704*w + 16*hf}" for w in range(4) for hf in range(2)]
    def red_sum(self, P, half, layer, X3, pk):
        L = []
        def add(d, x, y):
            if pk: L.extend(f"v_pk_add_f32 {v(d+e,2)}, {v(x+e,2)}, {v(y+e,2)}" for e in (0, 2, 4, 6))
            else: L.extend(f"v_add_f32 {v(d+e)}, {v(x+e)}, {v(y+e)}" for e in range(8))
        add(P, P, P+8); add(P+16, P+16, P+24)
        if layer == 1:
            L += self.unpack(P+8, X3); add(P, P, P+8)
        add(P, P, P+16)
        L += [f"v_cvt_pk_bf16_f32 {v(P+8+e)}, {v(P+2*e)}, {v(P+2*e+1)}" for e in range(4)]
        if layer == 0: L.append(f"buffer_store_dwordx4 {v(P+8,4)}, {v(vF2)}, {s(RW,4)}, {k4(half)} offen")
        else: L.append(f"buffer_store_dwordx4 {v(P+8,4)}, {v(vO)}, {s(RO,4)}, {s(sFH) if half else 0} offen{self.o.get('ost', ' sc1')}")
        return L

    def gemm2(self, layer):
        k = self.k; o = self.o
        lo = 1024*layer
        AC2 = [AR, WF]
        X3 = [TMP, TMP + 4]
        order = self.g2_order()
        LA = o.get('g2la', 20)
        xt = {}
        def ldX(h): xt[h] = k(f"buffer_load_dwordx4 {v(X3[h],4)}, {v(vF2)}, {s(RW,4)}, {k4(h)} offen sc1")
        ho = lambda half, mt: 2048*layer + 1024*half + 512*mt
        sl = self.hsc[1]
        gate = [14]
        def opened(n): return Item(fn=lambda: gate.__setitem__(0, n), cost=0)
        p0, p1 = o.get('hb_pub0', 21 if sl else 4), o.get('hb_pub1', 50 if sl else 20)
        g_, r_ = o.get('hb_gap', 28), o.get('hb_rtt', 25)
        side = Queue(k, self.publish_items(lambda: self.hB_tok[0], s(sHFs), ho(1, 0), p0)
                     + self.publish_items(lambda: self.hB_tok[1], s(sHFs), ho(1, 1), p1))
        side2 = Queue(k, ([Item(fn=self.hA1_issue, at=o['ha1_slot'])] if 'ha1_slot' in o else [])
                      + [Item(fn=f, at=o.get('ha1_pc', 0)) for f in self.poll_steps(lambda: self.hA1_box[0])] + [opened(28)]
                      + self.poll_items(vP7, s(sHFp), ho(1, 0), p0 + g_, p0 + g_ + r_) + [opened(42)]
                      + self.poll_items(vP7, s(sHFp), ho(1, 1), max(p1 + g_, p0 + g_ + r_ + 2), max(p1 + g_, p0 + g_ + r_ + 2) + r_) + [opened(56)])
        if layer == 0: k.wait(self.wd_last)
        fbox = []; seenB = False; wB = self.red_write(AC2[1]); doneB = 0
        def next_load():
            self.ldH()
            if layer == 1 and self.nxtH == 34: ldX(0)
            if layer == 1 and self.nxtH == 56:
                ldX(1)
                if o.get('wbl2', 0): self.writeback()
        for n in range(56):
            half, U, mt = order[n]
            if n == 28:
                self.stamp(f'g2a{layer}')
                side.drain()
                t = 4*28
                sp = o.get('ra_sp', 2)
                L = [Item(x, at=t + 3 + sp*i) for i, x in enumerate(self.red_write(AC2[0]))]
                L += [Item(fn=lambda: k.wait_lg0(), at=t + 8*sp + 3), Item(fn=lambda: k("s_barrier"))]
                L += [Item(x) for x in self.red_read(AR)]
                L += [Item(fn=lambda: k.wait_lg0(), at=t + 8*sp + o.get('ra_rd', 14)), Item(fn=lambda: k("s_barrier"))]
                if layer == 1: L += [Item(fn=lambda: k.wait(xt[0]))]
                L += [Item(x) for x in self.red_sum(AR, 0, layer, X3[0], 0)]
                fA = L[-1]
                if layer == 0:
                    L += self.publish_items(lambda: fA.tok, s(sFFs), 0, t + o.get('fa_pub', 66))
                    L += [Item(x, at=t + 60) for x in self.unpack(ACC[1] + 24, YS[0]) + self.ag_addr(ACC[1] + 52)]
                    L.append(Item(fn=lambda: fbox.append(self.poll_issue(vP7, s(sFFp), 0)), at=t + o.get('fa_pi', 86)))
                    if o.get('fa_in', 1):
                        L += [Item(fn=f, at=t + o.get('fa_pc', 104)) for f in self.poll_steps(lambda: fbox[0])]
                        fldi = Item(f"buffer_load_dwordx4 {v(ACC[1],4)}, {v(vFr)}, {s(RW,4)}, {s(sFR[0])} offen sc1"); L.append(fldi)
                if o.get('nored') and layer == 1: L = []
                side = Queue(k, L)
                last0 = max(i for i in range(28, 56) if order[i][2] == 0)
                late = Queue(k, [Item(x, at=4*(last0 + 1) + 3 + sp*i) for i, x in enumerate(wB[:4])])
            if n in (8, 16, 22, 36, 44, 50): self.stamp(f'g2_{layer}_{n}')
            for m in range(n, n + 2 - n % 2):
                while m not in self.ht:
                    while self.nxtH >= gate[0]:
                        if gate[0] > 14: side.drain() if n < 28 else None
                        side2.emit(side2.q[0])
                    next_load()
            if n % 2 == 0: k.wait(self.ht[n + 1])
            for nt in range(4):
                d = AC2[half] + 16*mt + 4*nt
                k(f"v_mfma_f32_16x16x32_bf16 {v(d,4)}, {a((4*U+nt)*4,4)}, {v(self.hreg(n),4)}, {'0' if U == 0 else v(d,4)}")
                cap = 2 - (1 if (nt == 3 and n % 2) else 0)
                if (nt == 0 or (nt == 2 and self.nxtH < n + 1 + o.get('g2min', 6))) and self.nxtH < min(gate[0], n + 1 + LA) and (self.nxtH < 42 or self.nxtH - 42 < n):
                    next_load(); cap -= 1
                cap = side2.fill(cap, 4*n + nt)
                cap = side.fill(cap, 4*n + nt)
                if n >= 28 and not any('ds_' in (x.text or '') or (x.fn and x.at <= t + 8*sp + 40) for x in side.q):
                    late.fill(cap, 4*n + nt)
        print('layer', layer, 'left after G2B:', side.cost(), late.cost())
        side.drain()
        wB = [x.text for x in late.q] + wB[4:]
        self.stamp(f'g2b{layer}')
        R = ACC[1]
        if layer == 0 and not o.get('fa_in', 1):
            self.poll_check(fbox[0])
            fld = k(f"buffer_load_dwordx4 {v(R,4)}, {v(vFr)}, {s(RW,4)}, {s(sFR[0])} offen sc1")
        elif layer == 0: fld = fldi.tok
        for x in wB: k(x)
        if layer == 0:
            k.wait(fld)
            self.stamp('fA_in')
            sts, rest = self.rowop(0, R, True)
            self.stamp('rowA')
            if o.get('apub_first', 2): self.run(rest)
            if o.get('apub_first', 2) == 1: self.publish(sts, s(sAFs), 1024)
        if not (layer == 0 and o.get('ag', 1)): k.wait_lg0(); k("s_barrier")
        for x in self.red_read(ACC[0]): k(x)
        if layer == 0 and o.get('apub_first', 2) == 2: self.publish(sts, s(sAFs), 1024)
        k.wait_lg0()
        if layer == 1: k.wait(xt[1])
        if layer == 0 and not o.get('apub_first', 2): self.publish(sts, s(sAFs), 1024)
        if layer == 0: self.a_poll = self.poll_issue(vP31, s(sAFp), 1024)
        self.fB = self.run(self.red_sum(ACC[0], 1, layer, X3[1], 1))[-1].tok
        self.stamp(f'fB_st{layer}')
        if layer == 0:
            self.gemm1_start(1)
            if not o.get('apub_first', 2): self.run(rest)

    def writeback(self):
        k = self.k
        a_, b_ = k.label(), k.label()
        k(f"s_or_b32 {s(T[2])}, {s(sJ)}, {s(sW)}\ns_cmp_lg_u32 {s(T[2])}, 0\ns_cbranch_scc1 {a_}")
        k("buffer_wbl2 sc1")
        k(f"s_branch {b_}"); k.place(a_)
        k.ins.append(I(f"buffer_load_dword {v(vPT)}, {v(vL0)}, {s(RW,4)}, 0 offen"))
        k.place(b_)

    def rowop(self, h, R, split=False):
        L = self.unpack(R + 8, R)
        L += [f"v_pk_add_f32 {v(XS[h]+e,2)}, {v(XS[h]+e,2)}, {v(R+8+e,2)}" for e in (0, 2, 4, 6)]
        L += self.stats([XS[h]], [36], R + 16)
        L += self.affine(R + 8, XS[h], 36, R + 20)
        G = self.gate_norm([h], {h: R + 8}, 1, R + 24)
        rest = []
        if split: G = G[8:]
        if self.o.get('ag', 1):
            self.run(L + G[:-5], 16)
            tok = self.a_out([h], R, 1, lambda: self.run(G[-5:]))[0]
            return (tok, []) if split else tok
        if split: G, rest = G[:-5], G[-5:]
        its = self.run(L + G, 16)
        tok = [x.tok for x in its if 'store' in x.text][-1]
        return (tok, rest) if split else tok

    def build(self):
        k = self.k; o = self.o
        self.prologue()
        self.front_addr()
        self.touch_first()
        self.touch_global_flags()
        self.w1_addr()
        self.w1_dma(o.get('n0', 2))
        self.wd_job_addr()
        self.phase0()
        self.w1_dma(o.get('n1', 1))
        self.conv()
        if o.get('joint', 1): self.y_joint()
        else: self.y_in()
        for layer in range(2):
            self.gemm1(layer)
            self.gemm2(layer)
        if o.get('stamps'):
            self.stamp('end')
            k(f"""s_lshl_b32 {s(T[0])}, s2, 2
                  s_add_u32 {s(T[0])}, {s(T[0])}, {s(sW)}
                  s_lshl_b32 {s(T[0])}, {s(T[0])}, 8
                  s_add_u32 {s(T[0])}, {s(T[0])}, {WS_DBG}
                  v_lshrrev_b32 v5, 2, {v(vL16)}
                  buffer_store_dword {v(vST[0])}, v5, {s(RW,4)}, {s(T[0])} offen
                  s_add_u32 {s(T[0])}, {s(T[0])}, 0x40000
                  buffer_store_dword {v(vST[1])}, v5, {s(RW,4)}, {s(T[0])} offen""")
        if o.get('delay'):
            k(f"""s_mov_b32 {s(T[0])}, {o['delay']}
                  s_memrealtime {s(T[2],2)}
                  s_waitcnt lgkmcnt(0)""")
            k.place("L_DELAY")
            k(f"""s_memrealtime {s(T[4],2)}
                  s_waitcnt lgkmcnt(0)
                  s_sub_u32 {s(T[4])}, {s(T[4])}, {s(T[2])}
                  s_cmp_lt_u32 {s(T[4])}, {s(T[0])}
                  s_cbranch_scc1 L_DELAY""")
        if o.get('diag'):
            self.stamp('end')
            k(f"""v_sub_u32 v5, {v(vST[1])}, {v(vST[0])}
                  s_nop 1
                  v_readfirstlane_b32 {s(T[0])}, v5
                  s_mul_i32 {s(T[0])}, {s(T[0])}, 8
                  s_memrealtime {s(T[2],2)}
                  s_waitcnt lgkmcnt(0)""")
            k.place("L_DIAG")
            k(f"""s_memrealtime {s(T[4],2)}
                  s_waitcnt lgkmcnt(0)
                  s_sub_u32 {s(T[4])}, {s(T[4])}, {s(T[2])}
                  s_cmp_lt_u32 {s(T[4])}, {s(T[0])}
                  s_cbranch_scc1 L_DIAG""")
        k.place("L_END")
        k("s_endpgm")
        body = k.text()
        for t in self.tail:
            body += "".join((x + "\n") if x.endswith(':') else ("    " + x + "\n") for x in t)
        body += "L_LAST:\n"
        return body

def file_text(opt):
    g = Gen(opt)
    body = g.build()
    ref = open(os.path.join(os.path.dirname(os.path.abspath(__file__)), '..', 'cdna_kernels', NAME + '.s.ref')).read()
    head = ref[:ref.index('; Override launch geometry')]
    txt = head + f"""; @launch grid=(256,1,1) block=(256,1,1) lds={LDS_SIZE}
;
; One persistent launch, 256 workgroups of 4 waves, one per CU (generated by a script of my own).
; Workgroup b: group x = b & 7, member j = b >> 3.
;   1. kv = shortconv(k) * v for a 64-step x 64-channel tile, handed over transposed inside the group.
;   2. long causal conv of 2 channels as block-Toeplitz MFMAs (exact products, fp32 sums), plus kv * D.
;      y does not depend on the residual stream, so it is computed once and used by both layers.
;   3. each wave owns two rows (x, y in registers): x += LN(x) * y ; a = LN(x).
;   4. GEMM1: 256 rows x 56 hidden units per workgroup, gate/up weights resident in LDS; SwiGLU.
;   5. GEMM2: 64 x 64 tile per workgroup, w_down slice resident in accumulator registers, K split over waves.
;   Steps 3-5 run twice, in two row halves that hide each other's hand-off latency.
; Hand-offs use flag words in d_ws that carry a per-launch tag derived from d_ws word 0.
; Inside a group they go through one L2 when all 32 members report the same die id; otherwise every
; hand-off takes the device-scope release/acquire path, so any placement gives the same result.
.amdgcn_target "amdgcn-amd-amdhsa--gfx950"
.text
.globl {NAME}_kernel
.p2align 8
.type {NAME}_kernel,@function
{NAME}_kernel:
{body}.section .rodata,"a"
.p2align 6
.amdhsa_kernel {NAME}_kernel
  .amdhsa_next_free_vgpr 512
  .amdhsa_next_free_sgpr 102
  .amdhsa_accum_offset 256
  .amdhsa_group_segment_fixed_size 0
  .amdhsa_kernarg_size 104
  .amdhsa_user_sgpr_count 2
  .amdhsa_user_sgpr_kernarg_segment_ptr 1
  .amdhsa_system_sgpr_workgroup_id_x 1
.end_amdhsa_kernel
"""
    return txt, g

if __name__ == '__main__':
    import json
    opt = {}; out = None
    for x in sys.argv[1:]:
        if '=' in x:
            kk, vv = x.split('=')
            opt[kk] = vv.split(',') if kk in ('only', 'diag') else (' ' + vv.replace('+', ' ') if kk in ('ost', 'wdm', 'x3m') else int(vv, 0))
        else: out = x
    txt, g = file_text(opt)
    open(out, 'w').write(txt)
    json.dump(g.stamps, open(out + '.stamps.json', 'w'))
    print('instructions', len(g.k.ins), 'nops added', g.k.nops_added, 'stamps', len(g.stamps))
```

```python
import sys, os
sys.path.insert(0, os.path.dirname(os.path.abspath(__file__)))
from dsl import *

NAME = 'interleave_layers__ssm_conv_h3__swiglu_ffn__prompt'

WS_XCCF = 0x1000
WS_KVF  = 0x10000
WS_AF   = 0x11000
WS_HF   = 0x19000
WS_FF   = 0x21000
WS_YF   = 0x40000
WS_JF   = 0x3E000
WS_KVT  = 0x100000
WS_A    = WS_KVT
WS_YP   = 0x300000
WS_H    = 0x700000
WS_WDT  = 0xE00000
WS_DBG  = 0x1000000
WS_SIZE = 0x1100000
H_X, H_HALF, H_RB = 917504, 458752, 114688

LDS_SIZE = 163840
SCR   = 114688
L_K   = SCR
L_V   = L_K + 9216
L_H   = L_V + 8192
H_CP  = 4096 + 128
H_E   = lambda ch: L_H + ch * 2 * H_CP + 64
H_O   = lambda ch: L_H + ch * 2 * H_CP + H_CP + 128
L_U   = L_H + 4 * H_CP + 128
U_S   = 4608
assert L_U + 2 * U_S <= LDS_SIZE
L_CRED = 57344
L_YT  = L_U
L_JOB = 114688 - 16384
L_RED = SCR
L_AG  = LDS_SIZE - 4352
L_AG2 = SCR

sX, sJ, sW, sN, sEXP, sSPIN, sXCC, sMODE = 4, 5, 6, 7, 8, 9, 10, 11
T = list(range(12, 24))
sC2 = 24
sHALF = 26
sW1S, sW1L = 27, 3
sD = 28
sDP = 34
RK, RV, RH, RQ, RG, RU, RD, RO, RW, RS = 44, 48, 52, 56, 60, 64, 68, 72, 76, 80
sK4 = 83
def k4(i): return '0' if i == 0 else s(sK4 + i)
sHH = 91
sAFp, sAFs, sHFp, sHFs, sFFp, sFFs = 94, 95, 96, 97, 98, 99
sFR = [100, 101]
sFH = 55
sAG = [56, 57]
sROT = [0, 1, 34, 35, 54, 80, 81]
sDEL = [82, 83]
sST = (32, 92)
sKVFp, sKVs, sUm0, sYst, sYFs, sYFp, sYld, sJF, sJL, sJFp = 44, 45, 46, 47, 48, 49, 50, 51, 52, 53

vL, vL16, vL0, vNON, vPT = 1, 2, 3, 4, 5
vAld, vHld = [6, 7], [8, 9]
vHm, vHt, vAst, vF2, vO, vRw, vRr, vP31, vP7, vW1 = 10, 11, 12, 13, 14, 15, 16, 17, 18, 19
vST = (20, 21)
vFr = 0
vWd = [230, 231]
ACC = [22, 78]
WF, AR, TMP = 134, 190, 222
YS, XS = [232, 236], [240, 248]
LOG2E = 1.4426950408889634

def f32(x):
    import struct
    return '0x%08x' % struct.unpack('<I', struct.pack('<f', x))[0]

def ag_off(layer, h):
    return L_AG - L_AG2 if h == 0 else (0 if layer == 0 else L_AG - L_AG2 - 4352)

def flist(c):
    if c < 4: return [4*c + e for e in range(4)] + [16 + 4*c + e for e in range(4)]
    q = c - 4; X = [44, 46, 54][q]
    return [32 + 4*q + e for e in range(4)] + [48 + 2*q, 49 + 2*q, X, X + 1]

class Gen:
    def __init__(self, opt):
        self.o = opt
        self.k = K()
        self.tail = []
        self.stamps = []
        self.w1_next = 0
        self.late = False
        self.w1_tok = {}

    def stamp(self, name):
        self.k.ins.append(I(f"; ---- {name}"))
        dg = self.o.get('diag')
        if dg and name in dg:
            k = self.k
            k(f"s_memrealtime {s(sST[0],2)}"); k.wait_lg0()
            k(f"v_mov_b32 {v(vST[dg.index(name)])}, {s(sST[0])}")
        if not self.o.get('stamps'): return
        only = self.o.get('only')
        if only and name not in only: return
        k = self.k; n = len(self.stamps)
        k(f"s_memrealtime {s(sST[0],2)}\ns_memtime {s(sST[1],2)}"); k.wait_lg0()
        if self.o.get('spinstat') and n >= 2: k(f"s_sub_u32 {s(sST[1])}, 0, {s(sSPIN)}")
        k(f"v_writelane_b32 {v(vST[0])}, {s(sST[0])}, {n}\nv_writelane_b32 {v(vST[1])}, {s(sST[1])}, {n}")
        self.stamps.append(name)

    def srd(self, base, size):
        self.k(f"s_mov_b32 {s(base+2)}, {size}\ns_mov_b32 {s(base+3)}, 0x20000")

    def poll_issue(self, vaddr, soff, off=0, vt=vPT):
        txt = f"buffer_load_dword {v(vt)}, {v(vaddr)}, {s(RW,4)}, {soff} offen offset:{off} sc1"
        return (self.k(txt), txt, vt)

    def poll_steps(self, get, local=True):
        k = self.k
        slow, back, ok = k.label(), k.label(), k.label()
        def s1(): k.wait(get()[0])
        def s2(): k(f"v_cmp_ne_u32 vcc, {s(sEXP if local else sN)}, {v(get()[2])}")
        def s3():
            if self.o.get('nopoll') and self.late: return
            k(f"s_cbranch_vccnz {slow}"); k.place(back)
            _, txt, vt = get()
            nap = self.o.get('nap_l', 0) if local else self.o.get('nap_g', 0)
            t = [f"{slow}:"] + ([f"s_sleep {nap}"] if nap else []) + [txt, "s_waitcnt vmcnt(0)", f"v_cmp_ne_u32 vcc, {s(sN)}, {v(vt)}", f"s_cbranch_vccz {ok}",
                 f"s_sub_u32 {s(sSPIN)}, {s(sSPIN)}, 1", f"s_cbranch_scc0 {slow}", "s_branch L_END", f"{ok}:"]
            if local: t += [f"s_cmp_eq_u32 {s(sMODE)}, 0", f"s_cbranch_scc1 {back}", "buffer_inv sc1", "s_waitcnt vmcnt(0)"]
            self.tail.append(t + [f"s_branch {back}"])
        return [s1, s2, s3]

    def poll_check(self, h, local=True):
        for f in self.poll_steps(lambda: h, local): f()
    def poll(self, vaddr, soff, off=0, local=True):
        self.poll_check(self.poll_issue(vaddr, soff, off), local)
    def poll_items(self, vaddr, soff, off, at_issue, at_check):
        box = []
        it = [Item(fn=lambda: box.append(self.poll_issue(vaddr, soff, off)), at=at_issue)]
        return it + [Item(fn=f, at=at_check) for f in self.poll_steps(lambda: box[0])]

    def flag_store(self, soff, off=0, local=True):
        k = self.k
        txt = f"buffer_store_dword {v(vNON)}, {v(vL0)}, {s(RW,4)}, {soff} offen offset:{off}"
        if not local: return k(txt + " sc1")
        slow, back = k.label(), k.label()
        k(f"s_cmp_lg_u32 {s(sMODE)}, 0\ns_cbranch_scc1 {slow}")
        r = k(txt); k.place(back)
        self.tail.append([f"{slow}:", "s_waitcnt vmcnt(0)", "buffer_wbl2 sc1", "s_waitcnt vmcnt(0)", txt + " sc1", f"s_branch {back}"])
        return r
    def publish(self, tok, soff, off=0, local=True):
        self.k.wait(tok)
        return self.flag_store(soff, off, local)
    def publish_items(self, get, soff, off, at):
        return [Item(fn=lambda: self.k.wait(get()), at=at), Item(fn=lambda: self.flag_store(soff, off), cost=2, at=at)]

    def dma(self, vaddr, srd, soff, m0, extra=''):
        self.k(m0)
        return self.k(f"buffer_load_dwordx4 {v(vaddr)}, {s(srd,4)}, {soff} offen {extra} lds".replace('  ', ' '))

    def prologue(self):
        k = self.k
        k("s_cmp_ge_u32 s2, 256\ns_cbranch_scc1 L_END")
        if self.o.get('stamps'): k(f"v_mov_b32 {v(vST[0])}, 0\nv_mov_b32 {v(vST[1])}, 0")
        self.stamp('entry')
        for r, off in ((RK, 8), (RV, 16), (RW, 96), (RH, 32), (RS, 24), (RQ, 0), (RG, 56), (RU, 64), (RD, 72), (RO, 80)):
            k(f"s_load_dwordx2 {s(r,2)}, s[0:1], {off}")
        k(f"s_load_dwordx2 {s(sDP,2)}, s[0:1], 40")
        k(f"s_lshr_b32 {s(sJ)}, s2, 3")
        self.code_prefetch()
        k(f"""s_and_b32 {s(sX)}, s2, 7
              v_lshrrev_b32 v5, 6, v0
              v_and_b32 {v(vL)}, 63, v0
              v_readfirstlane_b32 {s(sW)}, v5
              v_lshlrev_b32 {v(vL16)}, 4, {v(vL)}""")
        for r, size in ((RK, 2097152), (RV, 2097152), (RW, WS_SIZE), (RH, 2097152), (RS, 4096)): self.srd(r, size)

        k(f"""v_lshrrev_b32 v24, 3, {v(vL)}
              v_and_b32 v25, 7, {v(vL)}
              v_and_b32 v26, 2, v24
              v_xor_b32 v25, v25, v26
              s_and_b32 {s(T[0])}, {s(sW)}, 1
              s_lshl_b32 {s(T[0])}, {s(T[0])}, 2
              v_xor_b32 v25, {s(T[0])}, v25
              v_lshlrev_b32 v25, 4, v25
              v_lshl_add_u32 v25, v24, 10, v25
              s_lshl_b32 {s(T[0])}, {s(sJ)}, 16
              s_lshl_b32 {s(T[1])}, {s(sW)}, 14
              s_lshl_b32 {s(T[2])}, {s(sX)}, 7
              s_add_u32 {s(T[0])}, {s(T[0])}, {s(T[1])}
              s_add_u32 {s(T[0])}, {s(T[0])}, {s(T[2])}
              v_add_u32 v25, {s(T[0])}, v25
              v_xor_b32 v26, 64, v25
              v_subrev_u32 v26, 8192, v26
              s_lshl_b32 {s(T[1])}, {s(sW)}, 11
              s_add_u32 {s(T[2])}, {s(T[1])}, {L_K + 1024}
              s_add_u32 {s(T[3])}, {s(T[1])}, {L_V}
              s_movk_i32 {s(T[4])}, 8192
              v_and_b32 v27, 15, {v(vL)}
              s_lshl_b32 {s(T[0])}, {s(sX)}, 6
              s_lshl_b32 {s(T[1])}, {s(sW)}, 4
              s_add_u32 {s(T[1])}, {s(T[0])}, {s(T[1])}
              v_add_u32 v27, {s(T[1])}, v27
              v_lshlrev_b32 v28, 3, v27
              s_lshl_b32 {s(T[1])}, {s(sJ)}, 1
              s_add_u32 {s(T[0])}, {s(T[0])}, {s(T[1])}
              s_lshl_b32 {s(T[5])}, {s(T[0])}, 1
              s_lshl_b32 {s(T[6])}, {s(T[0])}, 12
              s_add_u32 {s(T[7])}, {s(T[6])}, 4096
              v_lshlrev_b32 v29, 4, v0""")
        k.wait_lg0()
        self.stamp('start')
        k(f"s_load_dword {s(sN)}, {s(RW,2)}, 0")
        k(f"s_load_dword {s(sD)}, {s(sDP,2)}, {s(T[5])}")
        self.dma(25, RK, '0', f"s_mov_b32 m0, {s(T[2])}")
        self.dma(25, RV, '0', f"s_mov_b32 m0, {s(T[3])}")
        self.dma(25, RK, s(T[4]), f"s_add_u32 m0, {s(T[2])}, 1024")
        self.dma(25, RV, s(T[4]), f"s_add_u32 m0, {s(T[3])}, 1024")
        skip = k.label()
        k(f"s_cmp_lg_u32 {s(sW)}, 0\ns_cbranch_scc1 {skip}\ns_mov_b32 m0, {L_K}\ns_nop 0")
        k.ins.append(I(f"buffer_load_dwordx4 v26, {s(RK,4)}, 0 offen lds"))
        k.place(skip)
        self.sh_tok = k(f"buffer_load_dwordx2 v[30:31], v28, {s(RS,4)}, 0 offen")
        if not self.o.get('hpos', 1): self.h_load()
        k(f"""s_getreg_b32 {s(sXCC)}, hwreg(HW_REG_XCC_ID, 0, 4)
              v_cmp_eq_u32 vcc, 0, {v(vL)}
              v_mov_b32 v5, 0x80000000
              s_lshl_b32 {s(T[1])}, {s(sX)}, 5
              s_add_u32 {s(T[1])}, {s(T[1])}, {s(sJ)}
              s_mul_i32 {s(T[1])}, {s(T[1])}, {self.o.get('xs', 4)}
              s_add_u32 {s(T[1])}, {s(T[1])}, {WS_XCCF}
              s_cmp_eq_u32 {s(sW)}, 2
              s_cselect_b32 {s(T[1])}, {s(T[1])}, 0x40000000
              v_cndmask_b32 {v(vL0)}, v5, 0, vcc""")
        k.wait_lg0()
        k(f"""s_mul_i32 {s(sN)}, {s(sN)}, 1664525
              s_add_u32 {s(sN)}, {s(sN)}, 1013904223
              s_xor_b32 {s(T[0])}, {s(sN)}, {s(sXCC)}
              v_mov_b32 v5, {s(T[0])}
              v_mov_b32 {v(vNON)}, {s(sN)}""")
        k(f"buffer_store_dword v5, {v(vL0)}, {s(RW,4)}, {s(T[1])} offen sc1")
        for r, size in ((RQ, 2097152), (RG, 1835008), (RU, 1835008), (RD, 1835008), (RO, 2097152)): self.srd(r, size)
        k(f"""s_lshr_b32 {s(sD+2)}, {s(sD)}, 16
              s_and_b32 {s(sD+3)}, {s(sD)}, 0xffff0000
              s_lshl_b32 {s(sD+1)}, {s(sD)}, 16
              s_and_b32 {s(sD)}, {s(sD)}, 0xffff
              s_mov_b32 {s(sC2)}, {f32(LOG2E*LOG2E)}
              s_mov_b32 {s(sC2+1)}, {f32(LOG2E*LOG2E)}
              s_mov_b32 {s(sSPIN)}, {self.o.get('spin', 400000)}
              s_mov_b32 {s(sHALF)}, 0x20000
              s_mov_b32 {s(sHH)}, {H_HALF}
              v_and_b32 {v(vP31)}, 31, {v(vL)}
              v_lshlrev_b32 {v(vP31)}, 2, {v(vP31)}
              v_and_b32 {v(vP7)}, 7, {v(vL)}
              v_lshlrev_b32 {v(vP7)}, 2, {v(vP7)}""")
        for i in range(1, 8): k(f"s_movk_i32 {s(sK4+i)}, {4096*i}")

    def h_load(self):
        k = self.k
        k(f"buffer_load_dwordx4 v[32:35], v29, {s(RH,4)}, {s(T[6])} offen")
        k(f"buffer_load_dwordx4 v[40:43], v29, {s(RH,4)}, {s(T[7])} offen")
        k(f"buffer_load_dwordx4 v[36:39], v29, {s(RH,4)}, {s(T[6])} offen offset:2")
        self.h_tok = k(f"buffer_load_dwordx4 v[44:47], v29, {s(RH,4)}, {s(T[7])} offen offset:2")

    def code_prefetch(self):
        if not self.o.get('cpf', 1): return
        k = self.k
        k(f"s_getpc_b64 {s(T[2],2)}")
        k.place("L_PC")
        k(f"""s_mul_i32 {s(T[4])}, {s(sJ)}, ((L_LAST-L_PC+4095)/4096)*128
              v_min_u32 v5, (L_LAST-L_PC+4095)/4096-1, v0
              v_lshl_add_u32 v5, v5, 7, {s(T[4])}
              v_min_u32 v5, L_LAST-L_PC-4, v5
              global_load_dword v219, v5, {s(T[2],2)}""")

    def tlb_touch(self):
        if not self.o.get('tlb', 0): return
        k = self.k
        k(f"v_and_b32 v5, 15, {v(vL)}\nv_lshlrev_b32 v5, 20, v5")
        k(f"buffer_load_dword v200, v5, {s(RW,4)}, 0 offen offset:512")
        k(f"buffer_load_dword v201, v5, {s(RO,4)}, 0 offen")
        k(f"buffer_load_dword v196, v5, {s(RG,4)}, 0 offen")
        k(f"buffer_load_dword v197, v5, {s(RU,4)}, 0 offen")
        k(f"buffer_load_dword v198, v5, {s(RQ,4)}, 0 offen")

    def touch_first(self):
        k = self.k
        if self.o.get('tch_kv', 1):
            k(f"v_and_b32 v5, 15, {v(vL)}\nv_lshlrev_b32 v5, 7, v5")
            k(f"buffer_load_dword v220, v5, {s(RW,4)}, {s(sKVs)} offen sc1")
        if self.o.get('tch_fl', 1):
            k(f"""s_lshl_b32 {s(T[0])}, {s(sX)}, 12
                  s_add_u32 {s(T[0])}, {s(T[0])}, {WS_AF}
                  v_lshl_add_u32 v22, {v(vL)}, 7, {s(T[0])}
                  v_cmp_lt_u32 vcc, 15, {v(vL)}
                  v_add_u32 v5, {0x8000 - 16*128}, v22
                  s_lshl_b32 {s(T[0])}, {s(sX)}, 9
                  v_cndmask_b32 v22, v22, v5, vcc
                  v_cmp_lt_u32 vcc, 47, {v(vL)}
                  v_add_u32 v5, {0x8000 - 32*128}, v22
                  s_add_u32 {s(T[0])}, {s(T[0])}, {WS_KVF}
                  v_cndmask_b32 v22, v22, v5, vcc
                  v_cmp_lt_u32 vcc, 55, {v(vL)}
                  v_and_b32 v5, 3, {v(vL)}
                  v_lshl_add_u32 v5, v5, 7, {s(T[0])}
                  s_cmp_eq_u32 {s(sW)}, 3
                  s_cselect_b32 {s(T[0])}, 0, 0x40000000
                  v_cndmask_b32 v5, v22, v5, vcc
                  buffer_load_dword v221, v5, {s(RW,4)}, {s(T[0])} offen sc1""")
    def touch_global_flags(self):
        if not self.o.get('tch_g', 1): return
        k = self.k
        k(f"""v_lshlrev_b32 v5, 7, {v(vL)}
              s_cmp_eq_u32 {s(sW)}, 1
              s_cselect_b32 {s(T[0])}, {s(sJ)}, 31
              s_lshl_b32 {s(T[1])}, {s(T[0])}, 13
              s_cmp_lt_u32 {s(T[0])}, {1 + self.o.get('yfs', 4)//4}
              s_cselect_b32 {s(T[0])}, {s(T[1])}, 0x40000000
              s_add_u32 {s(T[0])}, {s(T[0])}, {WS_JF}
              buffer_load_dword v202, v5, {s(RW,4)}, {s(T[0])} offen sc1""")
    def touch_h_addr(self):
        self.k(f"""s_lshl_b32 {s(T[0])}, {s(sJ)}, 2
                  s_add_u32 {s(T[0])}, {s(T[0])}, {s(sW)}
                  s_mul_i32 {s(T[0])}, {s(T[0])}, 7168
                  s_mul_i32 {s(T[1])}, {s(sX)}, {H_X}
                  s_add_u32 {s(T[0])}, {s(T[0])}, {s(T[1])}
                  s_add_u32 {s(T[0])}, {s(T[0])}, {WS_H}
                  v_min_u32 v227, 55, {v(vL)}
                  v_lshl_add_u32 v227, v227, 7, {s(T[0])}""")
    def touch_h_text(self): return f"buffer_load_dword v228, v227, {s(RW,4)}, 0 offen sc1"
    def touch_f(self):
        k = self.k
        k(f"""v_and_b32 v5, 7, {v(vL)}
              v_lshlrev_b32 v5, 7, v5
              v_bfe_u32 v22, {v(vL)}, 3, 1
              v_lshl_add_u32 v5, v22, 17, v5
              buffer_load_dword v199, v5, {s(RW,4)}, {s(sFR[0])} offen sc1""")

    def q_load(self):
        k = self.k
        k(f"""s_lshl_b32 {s(T[0])}, {s(sX)}, 7
              s_lshl_b32 {s(T[1])}, {s(sJ)}, 2
              s_add_u32 {s(T[0])}, {s(T[0])}, {s(T[1])}
              s_add_u32 {s(T[0])}, {s(T[0])}, {s(sW)}
              s_lshl_b32 {s(T[0])}, {s(T[0])}, 10
              s_add_u32 {s(T[1])}, {s(T[0])}, 0x100000""")
        k(f"buffer_load_dwordx4 v[204:207], {v(vL16)}, {s(RQ,4)}, {s(T[0])} offen")
        self.q_tok = k(f"buffer_load_dwordx4 v[208:211], {v(vL16)}, {s(RQ,4)}, {s(T[1])} offen")

    def persistent(self):
        k = self.k; AG = self.o.get('ag', 1)
        k(f"""s_lshl_b32 {s(T[0])}, {s(sJ)}, 2
              s_add_u32 {s(T[0])}, {s(T[0])}, {s(sW)}
              s_lshl_b32 {s(T[8])}, {s(sX)}, 18
              s_lshl_b32 {s(T[9])}, {s(sX)}, 12
              s_lshr_b32 {s(T[10])}, {s(sJ)}, 3
              s_and_b32 {s(T[11])}, {s(sJ)}, 7
              s_lshl_b32 {s(T[1])}, {s(T[0])}, 2
              s_add_u32 {s(T[1])}, {s(T[1])}, {s(T[9])}
              s_add_u32 {s(sAFs)}, {s(T[1])}, {WS_AF}
              s_lshl_b32 {s(T[1])}, {s(sW)}, 7
              s_add_u32 {s(T[1])}, {s(T[1])}, {s(T[9])}
              s_add_u32 {s(sAFp)}, {s(T[1])}, {WS_AF}
              s_lshl_b32 {s(T[2])}, {s(sJ)}, 2
              s_add_u32 {s(T[1])}, {s(T[1])}, {s(T[2])}
              s_add_u32 {s(sHFs)}, {s(T[1])}, {WS_HF}
              s_lshl_b32 {s(T[1])}, {s(T[10])}, 7
              s_lshl_b32 {s(T[2])}, {s(sW)}, 5
              s_add_u32 {s(T[1])}, {s(T[1])}, {s(T[2])}
              s_add_u32 {s(T[1])}, {s(T[1])}, {s(T[9])}
              s_add_u32 {s(sHFp)}, {s(T[1])}, {WS_HF}
              s_lshl_b32 {s(T[2])}, {s(T[11])}, 2
              s_add_u32 {s(T[1])}, {s(T[1])}, {s(T[2])}
              s_add_u32 {s(sFFs)}, {s(T[1])}, {WS_FF}
              s_lshr_b32 {s(T[1])}, {s(sJ)}, 1
              s_lshl_b32 {s(T[1])}, {s(T[1])}, 5
              s_add_u32 {s(T[1])}, {s(T[1])}, {s(T[9])}
              s_add_u32 {s(sFFp)}, {s(T[1])}, {WS_FF}
              s_lshr_b32 {s(T[1])}, {s(T[0])}, 5
              s_lshl_b32 {s(T[1])}, {s(T[1])}, 15
              s_bfe_u32 {s(T[2])}, {s(T[0])}, 0x10004
              s_lshl_b32 {s(T[2])}, {s(T[2])}, 10
              s_and_b32 {s(T[3])}, {s(T[0])}, {12 if AG else 15}
              s_lshl_b32 {s(T[3])}, {s(T[3])}, 4
              s_add_u32 {s(T[1])}, {s(T[1])}, {s(T[2])}
              s_add_u32 {s(T[1])}, {s(T[1])}, {s(T[3])}
              s_add_u32 {s(T[1])}, {s(T[1])}, {s(T[8])}
              s_lshl_b32 {s(T[2])}, {s(sW)}, 13
              s_add_u32 {s(T[2])}, {s(T[2])}, {WS_A}
              s_add_u32 {s(T[1])}, {s(T[1])}, {s(T[2]) if AG else WS_A}
              v_lshrrev_b32 v5, {4 if AG else 2}, {v(vL)}
              v_lshlrev_b32 v5, 11, v5
              v_bfe_u32 {v(vAst)}, {v(vL)}, {2 if AG else 0}, 2
              v_lshl_add_u32 {v(vAst)}, {v(vAst)}, 8, v5
              v_and_b32 v5, {3 if AG else 0}, {v(vL)}
              v_lshl_add_u32 {v(vAst)}, v5, 4, {v(vAst)}
              v_add_u32 {v(vAst)}, {s(T[1])}, {v(vAst)}
              s_lshl_b32 {s(T[1])}, {s(sW)}, 15
              s_add_u32 {s(T[1])}, {s(T[1])}, {s(T[8])}
              s_add_u32 {s(T[1])}, {s(T[1])}, {WS_A}
              v_add_u32 {v(vAld[0])}, {s(T[1])}, {v(vL16)}
              v_add_u32 {v(vAld[1])}, 0x20000, {v(vAld[0])}
              v_add_u32 {v(vW1)}, 57344, {v(vL16)}
              v_lshrrev_b32 v5, 4, {v(vL)}
              v_and_b32 v23, 15, {v(vL)}
              v_lshlrev_b32 v22, 9, v5
              v_lshl_add_u32 v22, v23, 4, v22
              s_mul_i32 {s(T[4])}, {s(sX)}, {H_X}
              s_add_u32 {s(T[4])}, {s(T[4])}, {WS_H}
              s_mul_i32 {s(T[1])}, {s(sW)}, {H_RB}
              s_mul_i32 {s(T[2])}, {s(sJ)}, 3584
              s_add_u32 {s(T[1])}, {s(T[1])}, {s(T[2])}
              s_add_u32 {s(T[1])}, {s(T[1])}, {s(T[4])}
              v_add_u32 {v(vHm)}, {s(T[1])}, v22
              s_mul_i32 {s(T[1])}, {s(T[10])}, {H_RB}
              s_mul_i32 {s(T[2])}, {s(sW)}, 28672
              s_add_u32 {s(T[1])}, {s(T[1])}, {s(T[2])}
              s_add_u32 {s(T[1])}, {s(T[1])}, {s(T[4])}
              v_add_u32 {v(vHld[0])}, {s(T[1])}, v22
              v_add_u32 {v(vHld[1])}, {H_HALF}, {v(vHld[0])}
              v_cmp_gt_u32 vcc, 48, {v(vL)}
              v_add_u32 {v(vHt)}, 2048, {v(vHm)}
              v_mov_b32 v22, 0x80000000
              v_mul_u32_u24 {v(vRw)}, 272, v23
              v_cndmask_b32 {v(vHt)}, v22, {v(vHt)}, vcc
              v_lshl_add_u32 {v(vRw)}, v5, 4, {v(vRw)}
              s_mul_i32 {s(T[1])}, {s(sW)}, 8704
              s_add_u32 {s(T[1])}, {s(T[1])}, {L_RED}
              v_add_u32 {v(vRw)}, {s(T[1])}, {v(vRw)}
              v_lshrrev_b32 v5, 3, {v(vL)}
              v_mul_u32_u24 {v(vRr)}, 272, v5
              v_lshl_add_u32 {v(vRr)}, {v(vP7)}, 3, {v(vRr)}
              s_mul_i32 {s(T[1])}, {s(sW)}, {8*272}
              s_add_u32 {s(T[1])}, {s(T[1])}, {L_RED}
              v_add_u32 {v(vRr)}, {s(T[1])}, {v(vRr)}
              s_lshl_b32 {s(T[1])}, {s(T[10])}, 5
              s_lshl_b32 {s(T[2])}, {s(sW)}, 3
              s_add_u32 {s(T[1])}, {s(T[1])}, {s(T[2])}
              v_add_u32 v5, {s(T[1])}, v5
              s_lshl_b32 {s(T[2])}, {s(T[11])}, 7
              s_lshl_b32 {s(T[1])}, {s(sX)}, 17
              s_add_u32 {s(T[2])}, {s(T[2])}, {s(T[1])}
              v_lshl_add_u32 v22, {v(vP7)}, 2, {s(T[2])}
              v_lshl_add_u32 {v(vO)}, v5, 10, v22
              s_lshr_b32 {s(T[1])}, {s(T[11])}, 2
              s_lshl_b32 {s(T[1])}, {s(T[1])}, 13
              s_and_b32 {s(T[2])}, {s(T[11])}, 3
              s_lshl_b32 {s(T[2])}, {s(T[2])}, 7
              s_add_u32 {s(T[1])}, {s(T[1])}, {s(T[2])}
              s_lshl_b32 {s(T[2])}, {s(sX)}, 9
              s_add_u32 {s(T[1])}, {s(T[1])}, {s(T[2])}
              s_add_u32 {s(T[1])}, {s(T[1])}, {WS_YP}
              v_lshl_add_u32 {v(vF2)}, {v(vP7)}, 2, {s(T[1])}
              v_lshl_add_u32 {v(vF2)}, v5, 14, {v(vF2)}
              s_mov_b32 {s(sFH)}, 0x100000
              s_lshl_b32 {s(T[1])}, {s(T[0])}, 14
              s_add_u32 {s(T[1])}, {s(T[1])}, {s(T[2])}
              s_add_u32 {s(sFR[0])}, {s(T[1])}, {WS_YP}
              s_add_u32 {s(sFR[1])}, {s(T[1])}, {WS_YP + 4096}
              v_lshrrev_b32 v5, 5, {v(vL)}
              v_lshlrev_b32 v5, 13, v5
              v_lshl_add_u32 {v(vFr)}, {v(vP31)}, 2, v5""")

    W1V = 212
    def w1_addr(self):
        k = self.k; vb = self.W1V; rot = self.o.get('rot', 1)
        k(f"""s_mul_i32 {s(T[0])}, {s(sJ)}, 112
              s_movk_i32 {s(T[1])}, 9363
              s_movk_i32 {s(T[2])}, {3584 - 7*16}
              s_mul_i32 {s(sW1S)}, {s(sW)}, 229376
              s_mul_i32 {s(sW1L)}, {s(sW)}, 14336
              s_and_b32 {s(T[3])}, {s(sX)}, {6 if rot else 0}
              s_and_b32 {s(T[4])}, {s(sX)}, {1 if rot else 0}
              s_cselect_b32 {s(T[5])}, {s(RU)}, {s(RG)}
              s_cselect_b32 {s(T[6])}, {s(RU+1)}, {s(RG+1)}
              s_cselect_b32 {s(RU)}, {s(RG)}, {s(RU)}
              s_cselect_b32 {s(RU+1)}, {s(RG+1)}, {s(RU+1)}
              s_cselect_b32 {s(T[4])}, 7168, 0
              s_lshl_b32 {s(sDEL[0])}, {s(T[4])}, 1
              s_sub_u32 {s(sDEL[0])}, 7168, {s(sDEL[0])}
              s_mov_b32 {s(RG)}, {s(T[5])}
              s_mov_b32 {s(RG+1)}, {s(T[6])}
              s_add_u32 {s(sDEL[1])}, {s(sDEL[0])}, 57344
              s_add_u32 {s(T[4])}, {s(T[4])}, {s(sW1L)}""")
        for i in range(7):
            k(f"""s_add_u32 {s(T[5])}, {s(T[3])}, {i}
                  s_sub_u32 {s(T[6])}, {s(T[5])}, 7
                  s_cselect_b32 {s(T[5])}, {s(T[5])}, {s(T[6])}
                  s_lshl_b32 {s(T[6])}, {s(T[5])}, 10
                  s_add_u32 {s(sROT[i])}, {s(T[6])}, {s(T[4])}
                  v_lshl_add_u32 v5, {s(T[5])}, 6, {v(vL)}
                  v_mul_u32_u24 {v(vb+i)}, {s(T[1])}, v5
                  v_lshrrev_b32 {v(vb+i)}, 16, {v(vb+i)}
                  v_mul_u32_u24 {v(vb+i)}, {s(T[2])}, {v(vb+i)}
                  v_lshl_add_u32 {v(vb+i)}, v5, 4, {v(vb+i)}
                  v_add_u32 {v(vb+i)}, {s(T[0])}, {v(vb+i)}""")

    def w1_dma_text(self, n):
        ck, mat, i = n // 14, (n % 14) // 7, n % 7
        L = []
        if n == 14: L.append(f"s_add_u32 {s(sW1S)}, {s(sW1S)}, {4*229376}")
        L.append(f"s_add_u32 m0, {s(sROT[i])}, {s(sDEL[ck]) if mat else ck*57344}")
        L.append(f"buffer_load_dwordx4 {v(self.W1V+i)}, {s(RU if mat else RG,4)}, {s(sW1S)} offen lds")
        return L
    def w1_dma(self, cnt):
        for _ in range(cnt):
            if self.w1_next >= 28: return
            n = self.w1_next; self.w1_next += 1
            for x in self.w1_dma_text(n): self.w1_tok[n] = self.k(x)

    RL = 222
    def w1_relayout_addr(self):
        k = self.k; r = self.RL
        k(f"""v_lshrrev_b32 v5, 4, {v(vL)}
              v_bfe_u32 {v(r)}, {v(vL)}, 2, 2
              v_lshl_add_u32 {v(r)}, v5, 3, {v(r)}
              v_mul_u32_u24 {v(r)}, 112, {v(r)}
              v_add_u32 {v(r)}, {s(sW1L)}, {v(r)}
              v_and_b32 {v(r+2)}, 3, {v(vL)}
              v_bfe_u32 {v(r+3)}, {v(vL)}, 1, 1
              v_mul_u32_u24 {v(r+3)}, 7168, {v(r+3)}
              v_and_b32 v22, 1, {v(vL)}
              v_lshl_add_u32 {v(r+3)}, v22, 3, {v(r+3)}
              v_add_u32 {v(r+1)}, {v(r)}, {v(r+3)}
              v_lshl_add_u32 {v(r)}, {v(r+2)}, 3, {v(r)}
              v_add_u32 {v(r+2)}, {s(sW1L)}, {v(vL16)}
              v_bfe_u32 {v(r+3)}, {v(vL)}, 1, 2
              v_lshlrev_b32 {v(r+3)}, 2, {v(r+3)}
              v_bfe_u32 v23, {v(vL)}, 3, 1
              v_lshl_add_u32 {v(r+3)}, v23, 1, {v(r+3)}
              v_add_u32 {v(r+3)}, {v(r+3)}, v22
              v_lshl_add_u32 {v(r+3)}, v5, 4, {v(r+3)}
              v_lshlrev_b32 {v(r+3)}, 4, {v(r+3)}
              v_add_u32 {v(r+3)}, {s(sW1L)}, {v(r+3)}""")
    def w1_relayout_items(self, ck, vtemp=False):
        k = self.k; r = self.RL
        R, a = (ACC[1], v) if vtemp else (128, globals()['a'])
        L = [Item(fn=lambda: k.wait(self.w1_tok[14*ck + 13]))]
        if ck == 1: L += [Item(f"v_add_u32 {v(r+i)}, 57344, {v(r+i)}") for i in range(4)]
        for sl in range(2):
            for Tt in range(7):
                for hf in range(2):
                    d = R + (sl*7 + Tt)*4 + 2*hf
                    o = (32*sl + 4*hf)*112
                    if Tt < 6: L.append(Item(f"ds_read_b64_tr_b16 {a(d,2)}, {v(r)} offset:{o + (Tt&1)*7168 + 32*(Tt>>1)}"))
                    else: L.append(Item(f"ds_read_b64_tr_b16 {a(d,2)}, {v(r+1)} offset:{o + 96}"))
        last = L[-1]
        L.append(Item(fn=lambda: k.wait(last.tok)))
        for n in range(14): L.append(Item(f"ds_write_b128 {v(r+3 if n % 7 == 6 else r+2)}, {a(R + n*4, 4)} offset:{n*1024}"))
        return L
    def w1_relayout(self, ck): Queue(self.k, self.w1_relayout_items(ck)).drain()

    JV = 190
    def wd_job_addr(self):
        k = self.k; r = self.JV
        k(f"""s_lshl_b32 {s(T[0])}, s2, 1
              s_lshr_b32 {s(T[1])}, {s(sW)}, 1
              s_add_u32 {s(T[0])}, {s(T[0])}, {s(T[1])}
              s_mul_i32 {s(T[1])}, {s(T[0])}, 4682
              s_lshr_b32 {s(T[1])}, {s(T[1])}, 16
              s_mul_i32 {s(T[2])}, {s(T[1])}, 14
              s_sub_u32 {s(T[2])}, {s(T[0])}, {s(T[2])}
              s_and_b32 {s(T[3])}, {s(T[1])}, 3
              s_lshr_b32 {s(T[1])}, {s(T[1])}, 2
              s_lshl_b32 {s(T[1])}, {s(T[1])}, 7
              s_mul_i32 {s(T[3])}, {s(T[3])}, {8*57344}
              s_add_u32 {s(T[1])}, {s(T[1])}, {s(T[3])}
              s_cmp_lt_u32 s2, 224
              s_cselect_b32 {s(T[3])}, {s(sW)}, 0
              s_bitcmp1_b32 {s(T[3])}, 0
              s_cselect_b32 {s(T[3])}, 0, 0x80000000
              s_lshl_b32 {s(T[4])}, {s(T[0])}, 2
              s_add_u32 {s(T[4])}, {s(T[4])}, {WS_JF}
              s_lshr_b32 {s(sJF)}, {s(T[3])}, 1
              s_or_b32 {s(sJF)}, {s(sJF)}, {s(T[4])}
              s_lshl_b32 {s(T[0])}, {s(T[0])}, 12
              s_add_u32 {s(T[0])}, {s(T[0])}, {WS_WDT}
              s_or_b32 {s(T[0])}, {s(T[0])}, {s(T[3])}
              s_or_b32 {s(T[1])}, {s(T[1])}, {s(T[3])}
              v_add_u32 {v(r+5)}, {s(T[0])}, {v(vL16)}
              v_lshrrev_b32 v5, 3, {v(vL)}
              v_and_b32 v22, 3, v5
              v_lshlrev_b32 v22, 3, v22
              v_cmp_gt_u32 vcc, 4, v5
              v_lshl_add_u32 v23, {v(vP7)}, 2, {s(T[1])}
              s_lshl_b32 {s(T[2])}, {s(T[2])}, 2""")
        for g in range(4):
            k(f"""s_add_u32 {s(T[0])}, {s(T[2])}, {g}
                  s_mul_i32 {s(T[1])}, {s(T[0])}, 9363
                  s_lshr_b32 {s(T[1])}, {s(T[1])}, 16
                  s_mul_i32 {s(T[3])}, {s(T[1])}, 7
                  s_sub_u32 {s(T[0])}, {s(T[0])}, {s(T[3])}
                  s_mul_i32 {s(T[1])}, {s(T[1])}, 56
                  s_mul_i32 {s(T[3])}, {s(T[0])}, 0x04040404
                  s_add_u32 {s(T[4])}, {s(T[3])}, 0x13121110
                  s_add_u32 {s(T[3])}, {s(T[3])}, 0x03020100
                  s_cmp_ge_u32 {s(T[0])}, 4
                  s_cselect_b32 {s(T[3])}, {s(T[4])}, {s(T[3])}
                  s_cselect_b32 {s(T[4])}, {sum(x << (8*e) for e, x in enumerate(flist(4)[4:]))}, {s(T[4])}
                  s_cmp_eq_u32 {s(T[0])}, 5
                  s_cselect_b32 {s(T[4])}, {sum(x << (8*e) for e, x in enumerate(flist(5)[4:]))}, {s(T[4])}
                  s_cmp_eq_u32 {s(T[0])}, 6
                  s_cselect_b32 {s(T[4])}, {sum(x << (8*e) for e, x in enumerate(flist(6)[4:]))}, {s(T[4])}
                  v_mov_b32 v5, {s(T[3])}
                  v_mov_b32 {v(r+g)}, {s(T[4])}
                  v_cndmask_b32 v5, {v(r+g)}, v5, vcc
                  v_bfe_u32 v5, v5, v22, 8
                  v_add_u32 v5, {s(T[1])}, v5
                  v_lshl_add_u32 {v(r+g)}, v5, 10, v23""")
        k(f"""s_lshl_b32 {s(sJL)}, {s(sW)}, 12
              s_add_u32 {s(sJL)}, {s(sJL)}, {L_JOB}
              v_lshrrev_b32 v5, 4, {v(vL)}
              v_lshlrev_b32 {v(r+4)}, 10, v5
              v_bfe_u32 v5, {v(vL)}, 2, 2
              v_lshl_add_u32 {v(r+4)}, v5, 7, {v(r+4)}
              v_and_b32 v5, 3, {v(vL)}
              v_lshl_add_u32 {v(r+4)}, v5, 3, {v(r+4)}
              v_add_u32 {v(r+4)}, {s(sJL)}, {v(r+4)}""")
    def wd_job_issue(self):
        for g in range(4): self.job_tok = self.dma(self.JV+g, RD, '0', f"s_add_u32 m0, {s(sJL)}, {1024*g}")
    def wd_job_finish(self):
        k = self.k; r = self.JV
        k.wait(self.job_tok)
        t = {}
        for nt in range(4):
            for hf in range(2): t[nt] = k(f"ds_read_b64_tr_b16 {a(128 + 4*nt + 2*hf, 2)}, {v(r+4)} offset:{hf*512 + nt*32}")
        for nt in range(4):
            k.wait(t[nt])
            self.job_st = k(f"buffer_store_dwordx4 {a(128 + 4*nt, 4)}, {v(r+5)}, {s(RW,4)}, 0 offen offset:{1024*nt} sc1")
    WDV = 226
    def wd_addr(self):
        self.k(f"""s_and_b32 {s(T[0])}, {s(sJ)}, 7
                   s_lshl_b32 {s(T[0])}, {s(T[0])}, 2
                   s_add_u32 {s(T[0])}, {s(T[0])}, {s(sW)}
                   s_mul_i32 {s(sJFp)}, {s(T[0])}, {14*4}
                   s_add_u32 {s(sJFp)}, {s(sJFp)}, {WS_JF}
                   s_mul_i32 {s(T[0])}, {s(T[0])}, {14*4096}
                   s_add_u32 {s(T[0])}, {s(T[0])}, {WS_WDT}
                   v_add_u32 {v(vWd[0])}, {s(T[0])}, {v(vL16)}
                   v_add_u32 {v(vWd[1])}, 32768, {v(vWd[0])}
                   v_min_u32 v226, 13, {v(vL)}
                   v_lshlrev_b32 v226, 2, v226""")
    def wd_touch_text(self, i):
        return f"buffer_load_dword {v(228+i)}, v227, {s(RW,4)}, {k4(i)} offen offset:{3072*i} sc1"
    def wd_text(self, n):
        U, nt = divmod(n, 4)
        return f"buffer_load_dwordx4 {a(4*n, 4)}, {v(vWd[U >> 3])}, {s(RW,4)}, {k4(U & 7)} offen offset:{1024*nt}{self.o.get('wdm', ' sc1')}"

    def phase0(self):
        k = self.k
        k(f"""v_lshrrev_b32 v5, 4, {v(vL)}
              v_bfe_u32 v48, {v(vL)}, 2, 2
              v_lshl_add_u32 v49, v5, 4, v48
              v_lshlrev_b32 v49, 7, v49
              v_bfe_u32 v50, {v(vL)}, 1, 1
              s_lshl_b32 {s(T[0])}, {s(sW)}, 1
              v_add_u32 v50, {s(T[0])}, v50
              v_and_b32 v48, 2, v48
              v_xor_b32 v50, v50, v48
              v_and_b32 v48, 1, v5
              v_lshlrev_b32 v48, 2, v48
              v_xor_b32 v50, v50, v48
              v_lshl_add_u32 v49, v50, 4, v49
              v_and_b32 v48, 1, {v(vL)}
              v_lshl_add_u32 v49, v48, 3, v49
              v_add_u32 v49, {L_K}, v49
              v_xor_b32 v50, 64, v49
              v_lshlrev_b32 v51, 12, v27
              v_lshl_add_u32 v51, v5, 5, v51
              s_lshl_b32 {s(T[6])}, {s(sJ)}, 7
              s_add_u32 {s(T[6])}, {s(T[6])}, {WS_KVT}
              v_mul_u32_u24 v52, {self.o.get('xs', 4)//4}, {v(vP31)}
              s_mul_i32 {s(T[7])}, {s(sX)}, {32*self.o.get('xs', 4)}
              s_add_u32 {s(T[7])}, {s(T[7])}, {WS_XCCF}
              s_lshl_b32 {s(T[0])}, {s(sX)}, 9
              s_lshl_b32 {s(T[1])}, {s(sW)}, 7
              s_lshl_b32 {s(T[2])}, {s(sJ)}, 2
              s_add_u32 {s(T[1])}, {s(T[1])}, {s(T[2])}
              s_add_u32 {s(T[0])}, {s(T[0])}, {WS_KVF}
              s_add_u32 {s(T[5])}, {s(T[1])}, {s(T[0])}
              s_xor_b32 {s(T[0])}, {s(sN)}, {s(sXCC)}
              s_mov_b32 {s(sMODE)}, 0
              s_mov_b32 {s(sEXP)}, {s(sN)}""")
        k.wait(self.sh_tok)
        k("s_barrier")
        self.stamp('kv_in')
        xh = k(f"buffer_load_dword v53, v52, {s(RW,4)}, {s(T[7])} offen sc1")
        KR, VR, KS, O, VU, P = 56, 68, 78, 88, 104, 120
        k(f"ds_read_b64_tr_b16 {v(KR,2)}, v50 offset:512")
        for i in range(4): k(f"ds_read_b64_tr_b16 {v(KR+2+2*i,2)}, v49 offset:{1024 + 512*i}")
        for i in range(4): lastv = k(f"ds_read_b64_tr_b16 {v(VR+2*i,2)}, v49 offset:{L_V - L_K + 512*i}")
        k("v_alignbit_b32 v54, v30, v30, 16\nv_alignbit_b32 v55, v31, v31, 16")
        k.wait(('lg', lastv[1] - 4))
        for aa in range(-1, 8): k(f"v_alignbit_b32 {v(KS+1+aa)}, {v(KR+2+aa)}, {v(KR+1+aa)}, 16")
        for aa in range(8):
            k(f"v_dot2_f32_bf16 {v(O+2*aa)}, {v(KS+aa)}, v55, 0")
            k(f"v_dot2_f32_bf16 {v(O+2*aa+1)}, {v(KR+1+aa)}, v55, 0")
        for aa in range(8):
            k(f"v_dot2_f32_bf16 {v(O+2*aa)}, {v(KS+1+aa)}, v54, {v(O+2*aa)}")
            k(f"v_dot2_f32_bf16 {v(O+2*aa+1)}, {v(KR+2+aa)}, v54, {v(O+2*aa+1)}")
        k.wait(lastv)
        for g in range(2):
            for aa in range(4*g, 4*g+4):
                k(f"v_lshlrev_b32 {v(VU+2*aa)}, 16, {v(VR+aa)}")
                k(f"v_and_b32 {v(VU+2*aa+1)}, 0xffff0000, {v(VR+aa)}")
            for aa in range(4*g, 4*g+4): k(f"v_pk_mul_f32 {v(O+2*aa,2)}, {v(O+2*aa,2)}, {v(VU+2*aa,2)}")
            for e in range(4): k(f"v_cvt_pk_bf16_f32 {v(P+4*g+e)}, {v(O+8*g+7-2*e)}, {v(O+8*g+6-2*e)}")
            st = k(f"buffer_store_dwordx4 {v(P+4*g,4)}, v51, {s(RW,4)}, {s(T[6])} offen offset:{16*g}")
        self.stamp('kv_st')
        self.toeplitz_write()
        slow, back, done = k.label(), k.label(), k.label()
        k.wait(xh)
        k(f"v_cmp_ne_u32 vcc, {s(T[0])}, v53\ns_cbranch_vccnz {slow}")
        k.place(back)
        self.tail.append([f"{slow}:",
            f"buffer_load_dword v53, v52, {s(RW,4)}, {s(T[7])} offen sc1", "s_waitcnt vmcnt(0)",
            f"v_xor_b32 v54, {s(sN)}, v53", "v_cmp_lt_u32 vcc, 15, v54", f"s_cbranch_vccz {done}",
            f"s_sub_u32 {s(sSPIN)}, {s(sSPIN)}, 1", f"s_cbranch_scc0 {slow}", "s_branch L_END",
            f"{done}:", f"v_cmp_ne_u32 vcc, {s(T[0])}, v53", f"s_cbranch_vccz {back}",
            f"s_mov_b32 {s(sMODE)}, 1", f"s_not_b32 {s(sEXP)}, {s(sN)}", f"s_branch {back}"])
        if not self.o.get('fake_kv'): self.publish(st, s(T[5]))
        self.stamp('kv_pub')

    def toeplitz_write(self):
        k = self.k
        k.wait(self.h_tok)
        k(f"v_add_u32 v48, {SCR}, v29")
        for ch in range(2):
            k(f"ds_write_b128 v48, {v(32+8*ch,4)} offset:{H_E(ch) - SCR}")
            k(f"ds_write_b128 v48, {v(36+8*ch,4)} offset:{H_O(ch) - SCR}")
        skip = k.label()
        k(f"s_cmp_lg_u32 {s(sW)}, 0\ns_cbranch_scc1 {skip}")
        k(f"""v_readfirstlane_b32 {s(T[1])}, v32
              v_readfirstlane_b32 {s(T[2])}, v40
              v_cmp_eq_u32 vcc, 28, {v(vP7)}
              v_add_u32 v49, {SCR}, {v(vP7)}
              s_lshl_b32 {s(T[1])}, {s(T[1])}, 16
              s_lshl_b32 {s(T[2])}, {s(T[2])}, 16
              v_mov_b32 v50, 0
              v_mov_b32 v51, 0
              v_mov_b32 v54, {s(T[1])}
              v_mov_b32 v55, {s(T[2])}
              v_cndmask_b32 v54, v50, v54, vcc
              v_cndmask_b32 v55, v50, v55, vcc
              ds_write_b32 v49, v50 offset:{H_E(0) - 32 - SCR}
              ds_write_b32 v49, v50 offset:{H_E(1) - 32 - SCR}
              ds_write_b32 v49, v54 offset:{H_O(0) - 32 - SCR}
              ds_write_b32 v49, v55 offset:{H_O(1) - 32 - SCR}
              v_lshlrev_b32 v49, 3, {v(vL)}
              v_add_u32 v49, {L_U}, v49
              ds_write_b64 v49, v[50:51]
              ds_write_b64 v49, v[50:51] offset:{U_S}""")
        k.place(skip)

    YA = 146
    def front_addr(self):
        k = self.k; o = self.o; Y = self.YA; yfs = o.get('yfs', 4)
        k(f"""v_and_b32 v24, 15, {v(vL)}
              v_lshrrev_b32 v25, 4, {v(vL)}
              v_lshlrev_b32 v5, 3, v25
              v_sub_u32 v26, v24, v5
              v_add_u32 v26, 9, v26
              v_and_b32 v5, 1, v26
              v_sub_u32 v26, v26, v5
              v_lshlrev_b32 v26, 1, v26
              v_mul_u32_u24 v5, {H_O(0) - H_E(0)}, v5
              v_add_u32 v26, v26, v5
              s_lshr_b32 {s(T[0])}, {s(sW)}, 1
              s_mul_i32 {s(T[2])}, {s(T[0])}, {H_E(1) - H_E(0)}
              s_and_b32 {s(T[1])}, {s(sW)}, 1
              s_lshl_b32 {s(T[3])}, {s(T[1])}, 8
              s_add_u32 {s(T[2])}, {s(T[2])}, {s(T[3])}
              s_add_u32 {s(T[2])}, {s(T[2])}, {H_E(0)}
              v_add_u32 v152, {s(T[2])}, v26
              s_mul_i32 {s(T[4])}, {s(T[0])}, {U_S}
              s_add_u32 {s(T[4])}, {s(T[4])}, {L_U + 512}
              s_lshl_b32 {s(T[2])}, {s(T[1])}, 11
              s_add_u32 {s(sUm0)}, {s(T[4])}, {s(T[2])}
              s_sub_u32 {s(T[4])}, {s(T[4])}, {s(T[3])}
              s_sub_u32 {s(T[4])}, {s(T[4])}, 224
              v_lshlrev_b32 v140, 5, v24
              v_lshl_add_u32 v140, v25, 4, v140
              v_add_u32 v140, {s(T[4])}, v140
              s_lshl_b32 {s(T[0])}, {s(sX)}, 9
              s_lshr_b32 {s(T[1])}, {s(sJ)}, 3
              s_lshl_b32 {s(T[1])}, {s(T[1])}, 7
              s_add_u32 {s(T[1])}, {s(T[0])}, {s(T[1])}
              s_add_u32 {s(sKVFp)}, {s(T[1])}, {WS_KVF}
              s_lshl_b32 {s(T[1])}, {s(sJ)}, 4
              s_add_u32 {s(T[0])}, {s(T[0])}, {s(T[1])}
              s_add_u32 {s(sYld)}, {s(T[0])}, {WS_YP}
              s_lshl_b32 {s(T[0])}, {s(sX)}, 18
              s_lshl_b32 {s(T[1])}, {s(sJ)}, 13
              s_add_u32 {s(T[0])}, {s(T[0])}, {s(T[1])}
              s_lshl_b32 {s(T[2])}, {s(sW)}, 11
              s_add_u32 {s(T[1])}, {s(T[0])}, {s(T[2])}
              s_add_u32 {s(sKVs)}, {s(T[1])}, {WS_KVT}
              s_lshl_b32 {s(T[2])}, {s(sW)}, 10
              s_add_u32 {s(T[1])}, {s(T[0])}, {s(T[2])}
              s_add_u32 {s(sYst)}, {s(T[1])}, {WS_YP}
              v_lshlrev_b32 v141, 5, v24
              v_lshrrev_b32 v5, 1, v25
              v_lshl_add_u32 v141, v5, 4, v141
              v_and_b32 v5, 1, v25
              v_xor_b32 v5, 1, v5
              v_lshl_add_u32 v141, v5, 3, v141
              s_lshl_b32 {s(T[0])}, {s(sW)}, 9
              s_add_u32 {s(T[1])}, {s(T[0])}, {L_U + 512}
              v_add_u32 v141, {s(T[1])}, v141
              s_add_u32 {s(T[1])}, {s(T[2])}, {L_YT}
              v_add_u32 {v(Y+3)}, {s(T[1])}, {v(vL16)}
              s_lshl_b32 {s(T[0])}, {s(sW)}, 12
              s_add_u32 {s(T[0])}, {s(T[0])}, {L_CRED}
              v_add_u32 v142, {s(T[0])}, {v(vL16)}
              s_add_u32 {s(T[0])}, {s(T[2])}, {L_CRED}
              v_add_u32 v143, {s(T[0])}, {v(vL16)}
              v_lshlrev_b32 v144, 6, v24
              v_lshl_add_u32 v144, v25, 4, v144
              v_add_u32 v145, 4096, v144
              s_lshl_b32 {s(T[0])}, {s(sX)}, 5
              s_add_u32 {s(T[0])}, {s(T[0])}, {s(sJ)}
              s_lshl_b32 {s(T[0])}, {s(T[0])}, 2
              s_add_u32 {s(T[0])}, {s(T[0])}, {s(T[2])}
              s_mul_i32 {s(T[0])}, {s(T[0])}, {yfs//4}
              s_add_u32 {s(sYFs)}, {s(T[0])}, {WS_YF}
              v_lshlrev_b32 {v(Y+2)}, 2, v0
              v_mul_u32_u24 {v(Y)}, {yfs}, v0
              s_lshr_b32 {s(T[0])}, {s(sX)}, 1
              s_mul_i32 {s(T[0])}, {s(T[0])}, {256*yfs}
              s_add_u32 {s(sYFp)}, {s(T[0])}, {WS_YF}
              v_lshlrev_b32 {v(Y+1)}, 13, v0
              v_add_u32 {v(Y+2)}, {L_YT}, {v(Y+2)}""")
        for p in range(1, 8): k(f"v_add_u32 {v(152+p)}, {512*p}, v152")

    def conv_finish(self, h, C, pk):
        KV, P = 32, 160 + 16*h
        W = [f"ds_write_b128 v142, {v(C + 16*h + 4*c, 4)} offset:{16384*h + 1024*c}" for c in range(4)]
        R = [f"ds_read_b64 {v(KV + 4*h + 2*ch, 2)}, v141 offset:{2048*h + ch*U_S}" for ch in range(2)]
        R2 = [f"ds_read_b128 {v(P + 4*w, 4)}, v143 offset:{16384*h + 4096*w}" for w in range(4)]
        L = []
        for ch in range(2):
            if pk: L += [f"v_pk_add_f32 {v(P+8*ch+e,2)}, {v(P+8*ch+e,2)}, {v(P+8*ch+4+e,2)}" for e in (0, 2)]
            else: L += [f"v_add_f32 {v(P+8*ch+e)}, {v(P+8*ch+e)}, {v(P+8*ch+4+e)}" for e in range(4)]
        D = [f"v_dot2_f32_bf16 {v(P+8*ch+e)}, {v(KV+4*h+2*ch+(1-(e>>1)))}, {s(sD+2*ch+(1-(e&1)))}, {v(P+8*ch+e)}" for e in range(4) for ch in range(2)]
        E = [f"v_cvt_pk_bf16_f32 {v(P+4+e)}, {v(P+e)}, {v(P+8+e)}" for e in range(4)]
        E.append(f"buffer_store_dwordx4 {v(P+4,4)}, {v(144+h)}, {s(RW,4)}, {s(sYst)} offen sc1")
        return W, R, R2, L, D, E

    def conv(self):
        k = self.k; o = self.o; Y = self.YA
        def tz(rr, p):
            d = (rr*8 + p)*4
            return [f"ds_read2_b32 {a(d,2)}, {v(152+p)} offset0:{16*rr} offset1:{16*rr+1}",
                    f"ds_read2_b32 {a(d+2,2)}, {v(152+p)} offset0:{16*rr+2} offset1:{16*rr+3}"]
        first = [x for rr in range(4) for p in range(4) for x in tz(rr, p)]
        second = [x for rr in range(4) for p in range(4, 8) for x in tz(rr, p)]
        k.wait_lg0()
        k("s_barrier")
        n0 = o.get('toep0', 20)
        if not o.get('fake_kv'): ph = self.poll_issue(vP31, s(sKVFp))
        for x in first[:n0]: k(x)
        self.stamp('toep')
        if not o.get('fake_kv'): self.poll_check(ph)
        self.stamp('kv_seen')
        k(f"s_mov_b32 m0, {s(sUm0)}")
        k(f"buffer_load_dwordx4 {v(vL16)}, {s(RW,4)}, {s(sKVs)} offen sc1 lds")
        tok = k(f"buffer_load_dwordx4 {v(vL16)}, {s(RW,4)}, {s(sKVs)} offen offset:1024 sc1 lds")
        for x in first[n0:]: k(x)
        k.wait(tok)
        k("s_barrier")
        self.stamp('u_in')
        B, C = 64, 96
        uses = [(0, rr, q) for rr in range(4) for q in range(4)] + [(1, rr, q) for rr in range(4) for q in range(8)]
        bt = {}
        def rdB(i):
            part, rr, q = uses[i]
            bt[i] = k(f"ds_read_b128 {v(B + 4*(i % 8), 4)}, v140 offset:{512*q + 64*(3-rr)}")
        for i in range(8): rdB(i)
        pre = []
        if o.get('jpos', 0) == 0: self.wd_job_issue()
        if not o.get('joint', 1): self.q_load()
        tq = Queue(k, [Item(x) for x in second]); tits = list(tq.q)
        n2 = o.get('n2', 11); dq = []
        for i in range(n2):
            if self.w1_next >= 14: break
            n = self.w1_next; self.w1_next += 1
            for x in self.w1_dma_text(n): dq.append(Item(x, at=o.get('n2at', 2) + i*(o.get('n2span', 130) // n2), tag=n))
        dits = list(dq); dq = Queue(k, dq)
        side = Queue(k, []); ybox = []
        m = 0; started = set()
        for i, (part, rr, q) in enumerate(uses):
            need = []
            if part == 1 and q == 0:
                while any(x.tok is None for x in tits[:8*rr + 8]): tq.emit(tq.q[0])
                need = [tits[8*rr + 7].tok]
            if part == 1 and rr == 0 and q == 0:
                W, R, R2, L, D, E = self.conv_finish(0, C, False)
                its = [Item(x, cost=2, at=m + 3 + 2*n) for n, x in enumerate(W)] + [Item(x) for x in R]
                its += [Item(fn=lambda: k.wait_lg0(), at=m + 16), Item(fn=lambda: k("s_barrier"))]
                its += [Item(x) for x in R2]; lastr = its[-1]
                its += [Item(fn=lambda: k.wait(lastr.tok), at=m + 26)] + [Item(x) for x in L]
                its += [Item(fn=lambda: [k(x) for x in D], cost=2)] + [Item(x) for x in E]
                ysA = its[-1]
                if not o.get('joint', 1): its += [Item(fn=lambda: k.wait(ysA.tok), at=o.get('ya_pub', 118)), Item(fn=lambda: self.flag_store(s(sYFs), 0, False))]
                side = Queue(k, its)
            if i % 2 == 0: k.wait(bt[i + 1], *need)
            ps = range(4 - q) if part == 0 else range(max(0, 4 - q), 8 - q)
            for n, p in enumerate(ps):
                c = C + 4*(p + q)
                src = v(c, 4) if (p + q) in started else '0'
                started.add(p + q)
                k(f"v_mfma_f32_16x16x32_bf16 {v(c,4)}, {a((rr*8+p)*4,4)}, {v(B + 4*(i % 8),4)}, {src}")
                m += 1
                cap = 2
                if n == len(ps) - 1: cap -= (1 if i + 8 < len(uses) else 0) + (i % 2)
                cap = side.fill(cap, m)
                cap = dq.fill(cap, m)
                tq.fill(min(cap, 1))
            if i + 8 < len(uses): rdB(i + 8)
        print('conv left:', side.cost(), dq.cost())
        dq.drain()
        for x in dits: self.w1_tok[x.tag] = x.tok
        self.stamp('conv_mfma')
        W, R, R2, L, D, E = self.conv_finish(1, C, True)
        for x in R + W: k(x)
        side.drain()
        k.wait_lg0()
        k("s_barrier")
        for x in R2: k(x)
        if not o.get('joint', 1): pa = self.poll_issue(Y, s(sYFp))
        k.wait_lg0()
        self.ysB = self.run(L + D + E)[-1].tok
        self.stamp('y_st')
        if not o.get('joint', 1):
            self.poll_check(pa, False)
            self.stamp('y_seen')

    def y_joint(self):
        k = self.k; o = self.o; Y = self.YA
        self.wd_job_finish()
        self.persistent()
        if not o.get('fake_y'):
            self.publish(self.ysB, s(sYFs), local=False)
            self.stamp('y_pub')
            self.publish(self.job_st, s(sJF), local=False)
        k("s_barrier")
        done0 = self.w1_next >= 14
        self.q_load()
        self.w1_dma(o.get('n3', 4))
        self.w1_relayout_addr()
        self.wd_addr()
        k(f"s_add_u32 {s(T[8])}, {s(sYld)}, 4096")
        if done0: self.w1_relayout(0)
        self.q_stats()
        k(f"s_mul_i32 {s(sAG[0])}, {s(sW)}, 1088\ns_add_u32 {s(sAG[0])}, {s(sAG[0])}, {L_AG2}\ns_lshl_b32 {s(sAG[1])}, {s(sW)}, 8\ns_add_u32 {s(sAG[1])}, {s(sAG[1])}, {L_AG2}")
        self.run(self.ag_addr(100))
        self.stamp('rl0')
        if not o.get('fake_y'): self.poll(Y, s(sYFp), local=False)
        else: self.publish(self.job_st, s(sJF), local=False)
        self.stamp('y_seen')
        t0 = k(f"buffer_load_dwordx4 v[32:35], {v(Y+1)}, {s(RW,4)}, {s(sYld)} offen sc1")
        t1 = k(f"buffer_load_dwordx4 v[36:39], {v(Y+1)}, {s(RW,4)}, {s(T[8])} offen sc1")
        pj = self.poll_issue(226, s(sJFp), 0, 229)
        self.w1_dma(o.get('n4', 6))
        if o.get('tch_h', 0) == 1: k(self.touch_h_text())
        if not done0 and self.w1_next >= 14: self.w1_relayout(0); done0 = True
        k.wait(t0)
        for e in range(4): k(f"ds_write_b32 {v(Y+2)}, {v(32+e)} offset:{1024*e}")
        k.wait(t1)
        for e in range(4): k(f"ds_write_b32 {v(Y+2)}, {v(36+e)} offset:{1024*(4+e)}")
        k.wait_lg0()
        k("s_barrier")
        for h in range(2): k(f"ds_read_b128 {v(YS[h],4)}, {v(Y+3)} offset:{4096*h}")
        k.wait_lg0()
        self.stamp('y_in')
        its = self.run(self.gate_norm([0, 1], self.N0, 0, 56))
        sts = self.a_out([0, 1], 56, 0) if o.get('ag', 1) else [x.tok for x in its if 'store' in x.text]
        self.stamp('a_st')
        self.poll_check(pj, False)
        if done0: self.gemm1_start(0)
        self.publish(sts[0], s(sAFs), 0)
        self.publish(sts[1], s(sAFs), 512)
        k(f"s_or_b32 {s(T[0])}, s2, {s(sW)}\ns_cmp_eq_u32 {s(T[0])}, 0\ns_cselect_b32 {s(T[0])}, 0, 0x40000000")
        k(f"buffer_store_dword {v(vNON)}, {v(vL0)}, {s(RW,4)}, {s(T[0])} offen sc1")
        self.stamp('a_pub')
        self.rl1_done = bool(o.get('rl1_front', 0)); self.rowb_done = True
        self.wd0 = o.get('wd0', 0)
        for n in range(self.wd0): k(self.wd_text(n))
        self.w1_dma(28 if self.rl1_done else o.get('n5', 4))
        if self.w1_next < 28:
            for i in range(7): k(f"v_mov_b32 {v(126+i)}, {v(self.W1V+i)}")
            self.W1V = 126
        if not done0: self.w1_relayout(0)
        if self.rl1_done: self.w1_relayout(1)
        if self.rl1_done or not done0: k.wait_lg0(); k("s_barrier")
        if not done0: self.gemm1_start(0)

    def stats(self, rows, out, t0, scale=None):
        L = []; n = len(rows)
        for i, x in enumerate(rows):
            b = t0 + 6*i
            L += [f"v_pk_add_f32 {v(b,2)}, {v(x,2)}, {v(x+2,2)}", f"v_pk_mul_f32 {v(b+2,2)}, {v(x,2)}, {v(x,2)}",
                  f"v_pk_add_f32 {v(b+4,2)}, {v(x+4,2)}, {v(x+6,2)}"]
            L += [f"v_pk_fma_f32 {v(b+2,2)}, {v(x+e,2)}, {v(x+e,2)}, {v(b+2,2)}" for e in (2, 4, 6)]
            L += [f"v_pk_add_f32 {v(b,2)}, {v(b,2)}, {v(b+4,2)}", f"v_add_f32 {v(b+2)}, {v(b+2)}, {v(b+3)}", f"v_add_f32 {v(b)}, {v(b)}, {v(b+1)}"]
        for ctl in ("row_ror:8 row_mask:0xf", "row_ror:4 row_mask:0xf", "row_ror:2 row_mask:0xf", "row_ror:1 row_mask:0xf",
                    "row_bcast:15 row_mask:0xa", "row_bcast:31 row_mask:0xc"):
            for i in range(n):
                for e in (2, 0):
                    r = t0 + 6*i + e
                    L.append(f"v_add_f32_dpp {v(r)}, {v(r)}, {v(r)} {ctl} bank_mask:0xf")
        for i in range(n):
            b = t0 + 6*i
            L += [f"v_mul_f32 {v(b)}, 0x3b000000, {v(b)}", f"v_mul_f32 {v(b+2)}, 0x3b000000, {v(b+2)}",
                  f"v_fma_f32 {v(b+2)}, -{v(b)}, {v(b)}, {v(b+2)}", f"v_max_f32 {v(b+2)}, 0, {v(b+2)}",
                  f"v_add_f32 {v(b+2)}, 0x3727c5ac, {v(b+2)}", f"v_rsq_f32 {v(b+2)}, {v(b+2)}"]
            if scale: L.append(f"v_mul_f32 {v(b+2)}, {f32(scale)}, {v(b+2)}")
            L += [f"v_mul_f32_e64 {v(b)}, -{v(b)}, {v(b+2)}", f"v_readlane_b32 {s(out[i])}, {v(b+2)}, 63",
                  f"v_readlane_b32 {s(out[i]+2)}, {v(b)}, 63", f"v_mov_b32 {v(b+4)}, {s(out[i]+2)}"]
        return L
    def unpack(self, dst, src):
        L = []
        for e in range(4): L += [f"v_lshlrev_b32 {v(dst+2*e)}, 16, {v(src+e)}", f"v_and_b32 {v(dst+2*e+1)}, 0xffff0000, {v(src+e)}"]
        return L
    def affine(self, dst, x, sp, vb):
        return [f"v_pk_fma_f32 {v(dst+e,2)}, {v(x+e,2)}, {s(sp,2)}, {v(vb,2)} op_sel_hi:[1,0,0]" for e in (0, 2, 4, 6)]
    def run(self, L, look=12):
        its = [Item(x) for x in L]
        Queue(self.k, its, look).drain()
        return its

    def gate_norm(self, halves, nrm, layer, R):
        L = []; sp = [36, 40]
        t0 = R + 16*len(halves)
        for i, h in enumerate(halves):
            L += self.unpack(R + 16*i, YS[h])
            L += [f"v_pk_fma_f32 {v(XS[h]+e,2)}, {v(nrm[h]+e,2)}, {v(R+16*i+e,2)}, {v(XS[h]+e,2)}" for e in (0, 2, 4, 6)]
        L += self.stats([XS[h] for h in halves], sp[:len(halves)], t0, LOG2E)
        for i, h in enumerate(halves):
            b = R + 16*i
            L += self.affine(b, XS[h], sp[i], t0 + 6*i + 4)
            L += [f"v_cvt_pk_bf16_f32 {v(b+8+e)}, {v(b+2*e)}, {v(b+2*e+1)}" for e in range(4)]
            if self.o.get('ag', 1): L.append(f"ds_write_b128 {v(self.agw)}, {v(b+8,4)} offset:{ag_off(layer, h)}")
            else: L.append(f"buffer_store_dwordx4 {v(b+8,4)}, {v(vAst)}, {s(RW,4)}, {s(sHALF) if h else 0} offen")
            if layer == 1:
                L += [f"v_cvt_pk_bf16_f32 {v(b+12+e)}, {v(XS[h]+2*e)}, {v(XS[h]+2*e+1)}" for e in range(4)]
                L.append(f"buffer_store_dwordx4 {v(b+12,4)}, {v(vFr)}, {s(RW,4)}, {s(sFR[h])} offen{self.o.get('x3m', '')}")
        return L

    def ag_addr(self, r):
        if not self.o.get('ag', 1): return []
        self.agw, self.agr = r, r + 1
        return [f"v_bfe_u32 {v(r+1)}, {v(vL16)}, 4, 2", f"v_mul_u32_u24 {v(r+1)}, 1088, {v(r+1)}", f"v_lshrrev_b32 {v(r)}, 6, {v(vL16)}",
                f"v_lshl_add_u32 {v(r+1)}, {v(r)}, 4, {v(r+1)}", f"v_add_u32 {v(r+1)}, {s(sAG[1])}, {v(r+1)}", f"v_add_u32 {v(r)}, {s(sAG[0])}, {v(vL16)}"]
    def a_out(self, halves, R, layer, between=None):
        k = self.k
        if between: between()
        k.wait_lg0(); k("s_barrier")
        t = [k(f"ds_read_b128 {v(R + 4*i, 4)}, {v(self.agr)} offset:{ag_off(layer, h)}") for i, h in enumerate(halves)]
        out = []
        for i, h in enumerate(halves):
            k.wait(t[i])
            out.append(k(f"buffer_store_dwordx4 {v(R + 4*i, 4)}, {v(vAst)}, {s(RW,4)}, {s(sHALF) if h else 0} offen"))
        return out

    N0 = [40, 118]
    def q_stats(self):
        k = self.k
        k.wait(self.q_tok)
        L = []
        for h in range(2): L += self.unpack(XS[h], 204 + 4*h)
        L += self.stats(XS, [36, 40], 128)
        for h in range(2): L += self.affine(self.N0[h], XS[h], [36, 40][h], 128 + 6*h + 4)
        self.run(L)

    def y_row(self, h, t, raw):
        k = self.k; Y = self.YA
        k.wait(t)
        for e in range(4): k(f"ds_write_b32 {v(Y+2)}, {v(raw+e)} offset:{4096*h + 1024*e}")
        k.wait_lg0()
        k("s_barrier")
        k(f"ds_read_b128 {v(YS[h],4)}, {v(Y+3)} offset:{4096*h}")
        k.wait_lg0()

    def y_in(self):
        k = self.k; o = self.o; Y = self.YA
        t0 = k(f"buffer_load_dwordx4 v[32:35], {v(Y+1)}, {s(RW,4)}, {s(sYld)} offen sc1")
        k(f"s_add_u32 {s(sYFs)}, {s(sYFs)}, {1024*o.get('yfs', 4)}\ns_add_u32 {s(sYFp)}, {s(sYFp)}, {1024*o.get('yfs', 4)}\ns_add_u32 {s(sYld)}, {s(sYld)}, 4096")
        self.publish(self.ysB, s(sYFs), local=False)
        self.stamp('y_pub')
        if o.get('jpos', 0) == 0: self.wd_job_finish()
        self.q_stats()
        self.persistent()
        k("s_barrier")
        self.w1_dma(o.get('n4', 6))
        self.y_row(0, t0, 32)
        self.stamp('y_in')
        its = self.run(self.gate_norm([0], self.N0, 0, 56))
        st = [x.tok for x in its if 'store' in x.text][0]
        self.stamp('a_st')
        for i in range(4): k(f"v_mov_b32 {v(110+i)}, {v(Y+i)}")
        self.YA = 110
        if self.w1_next + o.get('n5', 28) < 28:
            for i in range(7): k(f"v_mov_b32 {v(126+i)}, {v(self.W1V+i)}")
            self.W1V = 126
        self.w1_relayout_addr()
        self.publish(st, s(sAFs), 0)
        self.flag_store(s(sJF), 0, False)
        k(f"s_or_b32 {s(T[0])}, s2, {s(sW)}\ns_cmp_eq_u32 {s(T[0])}, 0\ns_cselect_b32 {s(T[0])}, 0, 0x40000000")
        k(f"buffer_store_dword {v(vNON)}, {v(vL0)}, {s(RW,4)}, {s(T[0])} offen sc1")
        self.stamp('a_pub')
        self.w1_dma(o.get('n5', 28))
        self.w1_relayout(0)
        self.wd_addr()
        self.rl1_done = bool(o.get('rl1_front', 1))
        if self.rl1_done:
            if o.get('rowb_front', 1): self.row_b0()
            self.w1_relayout(1)
        k.wait_lg0(); k("s_barrier")
        self.stamp('w1')
        self.gemm1_start(0)

    def row_b0(self, h0=None):
        k = self.k; Y = self.YA
        if h0 is None:
            self.poll(Y, s(sYFp), local=False)
            h0 = k(f"buffer_load_dwordx4 v[106:109], {v(Y+1)}, {s(RW,4)}, {s(sYld)} offen sc1")
        self.y_row(1, h0, 106)
        its = self.run(self.gate_norm([1], self.N0, 0, ACC[1]))
        self.aB_tok = [x.tok for x in its if 'store' in x.text][0]
        self.rowb_done = True
        if self.o.get('rowb_front', 1) and self.rl1_done: self.publish(self.aB_tok, s(sAFs), 512)

    def epilogue1(self, B, half, off, pk, sc=''):
        L = []; so = s(sHH) if half else '0'
        def grp(g, u, n, outs, t):
            for e in range(n): L.append(f"v_exp_f32_e64 {v(t+e)}, -{v(g+e)}")
            if pk:
                for e in range(0, n, 2): L.append(f"v_pk_mul_f32 {v(u+e,2)}, {v(g+e,2)}, {v(u+e,2)}")
                for e in range(0, n, 2): L.append(f"v_pk_fma_f32 {v(t+e,2)}, {v(t+e,2)}, {s(sC2,2)}, {s(sC2,2)}")
            else:
                for e in range(n): L.append(f"v_mul_f32 {v(u+e)}, {v(g+e)}, {v(u+e)}")
                for e in range(n): L.append(f"v_fma_f32 {v(t+e)}, {v(t+e)}, {s(sC2)}, {s(sC2)}")
            for e in range(n): L.append(f"v_rcp_f32 {v(t+e)}, {v(t+e)}")
            if pk:
                for e in range(0, n, 2): L.append(f"v_pk_mul_f32 {v(u+e,2)}, {v(u+e,2)}, {v(t+e,2)}")
            else:
                for e in range(n): L.append(f"v_mul_f32 {v(u+e)}, {v(u+e)}, {v(t+e)}")
            for e in range(0, n, 2): L.append(f"v_cvt_pk_bf16_f32 {v(outs[e//2])}, {v(u+e)}, {v(u+e+1)}")
        grp(B, B+4, 4, [B, B+1], TMP)
        grp(B+8, B+12, 4, [B+2, B+3], TMP+4)
        L.append(f"buffer_store_dwordx4 {v(B,4)}, {v(vHm)}, {s(RW,4)}, {so} offen offset:{off}{sc}")
        grp(B+16, B+20, 4, [B+8, B+9], TMP)
        grp(B+24, B+26, 2, [B+10], TMP+4)
        Z, C, A_ = B+4, B+5, B+6
        L += [f"v_mov_b32 {v(C)}, {v(B+8)}", f"v_mov_b32 {v(A_)}, {v(B+9)}", f"v_mov_b32 {v(Z)}, {v(B+10)}",
              f"v_permlane32_swap_b32 {v(A_)}, {v(B+11)}", f"v_permlane32_swap_b32 {v(C)}, {v(Z)}",
              f"v_permlane16_swap_b32 {v(Z)}, {v(B+11)}",
              f"buffer_store_dwordx4 {v(B+8,4)}, {v(vHt)}, {s(RW,4)}, {so} offen offset:{off}{sc}"]
        return L

    def a_plan(self, layer):
        n = self.o.get('ring0', 8) if layer == 0 else self.o.get('ring1', 6)
        ring = ([('v', AR + 8*i) for i in range(4)] + [('a', 224 + 8*i) for i in range(4)])[:n]
        reg = {gs: ring[gs % n] for gs in range(32)}
        issue = {}
        for gs in range(32):
            prev = [p for p in range(gs) if reg[p] == reg[gs]]
            issue[gs] = prev[-1] + 1 if prev else -1
        return reg, issue

    def gemm1_start(self, layer):
        k = self.k
        self.wt, self.at = {}, {}
        self.areg, self.aiss = self.a_plan(layer)
        for Tt in range(7): self.rdW(0, Tt)
    def rdW(self, gs, Tt):
        st = gs % 16
        base, o = (vL16, st*7168) if st < 8 else (vW1, (st-8)*7168)
        self.wt[(gs, Tt)] = self.k(f"ds_read_b128 {v(WF + 28*(gs&1) + 4*Tt, 4)}, {v(base)} offset:{o + 1024*Tt}")
    def afrag(self, gs, mt):
        kind, b = self.areg[gs]
        return (v if kind == 'v' else a)(b + 4*mt, 4)
    def ldA(self, gs, mt):
        st = gs % 16
        self.at[(gs, mt)] = self.k(f"buffer_load_dwordx4 {self.afrag(gs, mt)}, {v(vAld[gs // 16])}, {s(RW,4)}, {k4(st>>1)} offen offset:{((st&1)*2+mt)*1024} sc1")

    def gemm1(self, layer):
        k = self.k; o = self.o
        lo = 1024*layer
        if layer: self.poll_check(self.a_poll)
        else: self.poll(vP31, s(sAFp), lo)
        self.stamp(f'a_seen{layer}')
        todo = sorted(range(32), key=lambda g: g)
        nxtA = 0
        while self.aiss[nxtA] < 0 and nxtA < o.get('a_init', 5):
            for mt in range(2): self.ldA(nxtA, mt)
            nxtA += 1
        w1q = []
        if layer == 0:
            if o.get('w1_spread', 1):
                n0 = self.w1_next
                for n in range(n0, 28):
                    for x in self.w1_dma_text(n): w1q.append(Item(x, at=int(14*o.get('w1_spread', 1)*(n - n0)/(28 - n0)), tag=n))
                self.w1_next = 28
            else: self.w1_dma(28)
        firstB = max(min(self.aiss[g] for g in range(16, 32)), o.get('firstB', 13) if layer else 0)
        queues = []
        if layer == 0:
            burst = None
            if getattr(self, 'rowb_done', False):
                queues.append(Queue(k, self.poll_items(vP31, s(sAFp), lo + 512, 14*2, 14*(firstB - 2))))
            else:
                burst = o.get('rowb0_at', 3); box = []
                its = [Item(fn=lambda: box.append(self.poll_issue(self.YA, s(sYFp))))] + [Item(fn=f, at=14*(burst - 2)) for f in self.poll_steps(lambda: box[0], False)]
                fld = Item(f"buffer_load_dwordx4 v[106:109], {v(self.YA+1)}, {s(RW,4)}, {s(sYld)} offen sc1"); its.append(fld)
                queues.append(Queue(k, its))
                firstB = max(firstB, o.get('firstB0', 12))
            rl = self.w1_relayout_items(1) if not self.rl1_done else []
            nr = nw = 0
            for x in rl:
                x.at = 14*o.get('rl1_at', 4)
                if o.get('rl_pace', 1) and x.text:
                    if 'ds_read' in x.text: x.at = o.get('rl_r0', 0) + nr*o.get('rl_rs', 10)//10; nr += 1
                    elif 'ds_write' in x.text: x.at = o.get('rl_w0', 34) + nw*o.get('rl_ws', 4); nw += 1; x.cost = 2
                    else: x.at = 0
                elif o.get('rl_pace', 1): x.at = 0 if nr == 0 else o.get('rl_w0', 34) - 2
            if w1q:
                def note():
                    for x in w1q: self.w1_tok[x.tag] = x.tok
                rl = w1q + [Item(fn=note, cost=0)] + rl
            rlq = Queue(k, rl); queues.append(rlq)
            t0 = o.get('wd_t0', 1); t1 = o.get('wd_t1', 30)
            wd = [Item(self.wd_text(n), at=int(14*(t0 + (t1 - t0)*n/56))) for n in range(getattr(self, 'wd0', 0), o.get('wd_n', 56))]
            jb = []
            pj = [Item(fn=lambda: jb.append(self.poll_issue(226, s(sJFp), 0, 229)))] + [Item(fn=f, at=14*t0 - 4) for f in self.poll_steps(lambda: jb[0], False)]
            if o.get('joint', 1): pj = []
            if o.get('tch_h', 0) == 2: pj = [Item(self.touch_h_text(), at=14*o.get('tch_at', 0))]
            wdq = Queue(k, pj + wd, 1); queues.append(wdq)
        else:
            box = []
            s0 = o.get('rowb_at', 7)
            its = self.publish_items(lambda: self.fB, s(sFFs), 512, o.get('fb_pub', 4)) + self.poll_items(vP7, s(sFFp), 512, 14*s0 - o.get('fb_pi', 54), 14*s0 - o.get('fb_pc', 32))
            fld = Item(f"buffer_load_dwordx4 {v(ACC[1],4)}, {v(vFr)}, {s(RW,4)}, {s(sFR[1])} offen sc1"); its.append(fld)
            queues.append(Queue(k, its))
            burst = s0
        epi = None; hbox = []
        ho = lambda half, mt: 2048*layer + 1024*half + 512*mt
        hsc = [' sc1' if o.get('hsc', 15) >> (2*layer + h) & 1 else '' for h in range(2)]
        for gs in range(32):
            ps, st = divmod(gs, 16)
            if gs == burst:
                queues[0].drain(); k.wait(fld.tok)
                self.stamp('rowB_go')
                if layer: sts = self.rowop(1, ACC[1])
                else: self.row_b0(fld.tok); sts = self.aB_tok
                self.stamp('rowB')
                queues[:1] = [Queue(k, self.publish_items(lambda: sts, s(sAFs), lo + 512, 14*gs + o.get('ab_pub', 36))
                                + self.poll_items(vP31, s(sAFp), lo + 512, 14*(firstB - 2) - 4, 14*firstB - 4))]
            if gs == firstB: queues[0].drain()
            if layer == 0 and gs == o.get('rl1_bar', 7) and not self.rl1_done:
                print('relayout left at step 7:', rlq.cost())
                rlq.drain(); k.wait_lg0(); k("s_barrier")
            if gs == 16:
                for q in queues[:2]: q.drain()
                xb = o.get('e0_burst', 1)
                e0 = [Item(x, at=14*16 + 4) for x in self.epilogue1(ACC[0], 0, 0, xb, hsc[0])]
                if xb: Queue(k, e0, 12).drain()
                e1 = [Item(x, at=14*16 + 4) for x in self.epilogue1(ACC[0] + 28, 0, 256, 0, hsc[0])]
                epi = ([] if xb else e0) + e1
                queues = [Queue(k, epi, 14), Queue(k, []), Queue(k, [])]
                if layer == 0: queues.append(wdq)
                pub = [False, False]; self.ht = {}; self.nxtH = 0
            if epi:
                dl = o.get('ha_pub', 84 if hsc[0] else 50)
                if not pub[0] and e0[-1].tok:
                    pub[0] = gs
                    queues[1].q += self.publish_items(lambda: e0[-1].tok, s(sHFs), ho(0, 0), 14*gs + dl)
                    t1_ = 14*gs + dl + o.get('ha_gap', 40)
                    queues[2].q += self.poll_items(vP7, s(sHFp), ho(0, 0), t1_, t1_ + o.get('ha_rtt', 28))
                    queues[2].q += [Item(fn=self.ldH, at=t1_ + o.get('ha_rtt', 28) + 4*n) for n in range(7)]
                if not pub[1] and e1[-1].tok:
                    pub[1] = gs
                    queues[1].q += self.publish_items(lambda: e1[-1].tok, s(sHFs), ho(0, 1), 14*gs + o.get('ha_pub1', 70 if hsc[0] else 40))
                    queues[2].q += [Item(fn=self.ldH, at=o.get('ha_more_at', 410) + 4*n) for n in range(o.get('ha_more', 7))]
            if gs in (2, 4, 8, 10, 12, 14, 20, 24, 28): self.stamp(f'g1_{layer}_{gs}')
            fixed = [[] for _ in range(14)]
            if gs + 1 < 32:
                for Tt in range(7): fixed[2*(Tt // 2)].append(('W', gs+1, Tt))
            slot = 6
            while nxtA < 32 and self.aiss[nxtA] <= gs and slot <= 10 and (nxtA < 16 or gs >= firstB):
                fixed[slot].append(('A', nxtA, 0)); fixed[slot+2].append(('A', nxtA, 1)); nxtA += 1; slot += 4
            k.wait(self.at[(gs, 1)], self.wt[(gs, 6)])
            for i in range(14):
                Tt, mt = divmod(i, 2)
                d = ACC[ps] + 28*mt + 4*Tt
                k(f"v_mfma_f32_16x16x32_bf16 {v(d,4)}, {v(WF + 28*(gs&1) + 4*Tt, 4)}, {self.afrag(gs, mt)}, {'0' if st == 0 else v(d,4)}")
                for it in fixed[i]:
                    if it[0] == 'W': self.rdW(it[1], it[2])
                    else: self.ldA(it[1], it[2])
                cap = 2 - len(fixed[i]) - (1 if i == 13 else 0)
                for q in (queues[::-1] if ps else queues): cap = q.fill(cap, 14*gs + i)
            if gs == 15: self.stamp(f'g1a{layer}'); self.late = layer == 1
        print('layer', layer, 'left after G1B:', [q.cost() for q in queues], 'stores done in steps', pub, 'h loads out', self.nxtH)
        queues[0].drain()
        if not pub[1]: queues[1].q += self.publish_items(lambda: e1[-1].tok, s(sHFs), ho(0, 1), 0)
        if layer == 0: wdq.drain(); self.wd_last = wd[-1].tok
        self.stamp(f'g1b{layer}')
        b0 = [Item(x) for x in self.epilogue1(ACC[1], 1, 0, 1, hsc[1])]
        b1 = [Item(x) for x in self.epilogue1(ACC[1] + 28, 1, 256, 1, hsc[1])]
        q = Queue(k, b0 + b1, 12)
        total = q.cost()
        side = [x for x in queues[2].q if x.fn != self.ldH]
        pubq = list(queues[1].q)
        ev = [(o.get('epi_pub', 0), lambda: Queue(k, pubq).drain()), (o.get('epi_lead', 10), lambda: Queue(k, side).drain())]
        gap = o.get('epi_gap', 20); t = o.get('epi_lead', 10)
        for n in range(self.nxtH, 14):
            ev.append((t, self.ldH)); t += gap
        box = []
        self.hA1_issue = lambda: box.append(self.poll_issue(vP7, s(sHFp), ho(0, 1)))
        if 'ha1_slot' not in o: ev.append((o.get('ha1_pi', 60), self.hA1_issue))
        ev.sort(key=lambda x: x[0])
        while len(q):
            while ev and total - q.cost() >= ev[0][0]: ev.pop(0)[1]()
            if q.fill(3) == 3: q.emit(q.q[0])
        for _, f in ev: f()
        self.hA1_box = box
        self.hB_tok = [b0[-1].tok, b1[-1].tok]
        self.hsc = hsc
        self.stamp(f'epiB{layer}')

    def g2_order(self):
        return [(half, U, mt) for half in range(2) for mt in range(2) for U in range(14)]
    def hreg(self, n):
        if n < 14: return ACC[0] + 4*n
        if n < 28: return WF + 4*(n - 14)
        if n < 42: return ACC[1] + 4*(n - 28)
        return ACC[0] + 4*(n - 42)
    def ldH(self, _=0):
        n = self.nxtH; self.nxtH += 1
        half, U, mt = self.g2_order()[n]
        self.ht[n] = self.k(f"buffer_load_dwordx4 {v(self.hreg(n),4)}, {v(vHld[half])}, {s(RW,4)}, {k4(U>>1)} offen offset:{(U&1)*2048 + mt*256} sc1")

    def red_write(self, A2):
        return [f"ds_write_b128 {v(vRw)}, {v(A2 + 16*mt + 4*nt, 4)} offset:{4352*mt + 64*nt}" for mt in range(2) for nt in range(4)]
    def red_read(self, P):
        return [f"ds_read_b128 {v(P + 8*w + 4*hf, 4)}, {v(vRr)} offset:{8704*w + 16*hf}" for w in range(4) for hf in range(2)]
    def red_sum(self, P, half, layer, X3, pk):
        L = []
        def add(d, x, y):
            if pk: L.extend(f"v_pk_add_f32 {v(d+e,2)}, {v(x+e,2)}, {v(y+e,2)}" for e in (0, 2, 4, 6))
            else: L.extend(f"v_add_f32 {v(d+e)}, {v(x+e)}, {v(y+e)}" for e in range(8))
        add(P, P, P+8); add(P+16, P+16, P+24)
        if layer == 1:
            L += self.unpack(P+8, X3); add(P, P, P+8)
        add(P, P, P+16)
        L += [f"v_cvt_pk_bf16_f32 {v(P+8+e)}, {v(P+2*e)}, {v(P+2*e+1)}" for e in range(4)]
        if layer == 0: L.append(f"buffer_store_dwordx4 {v(P+8,4)}, {v(vF2)}, {s(RW,4)}, {k4(half)} offen")
        else: L.append(f"buffer_store_dwordx4 {v(P+8,4)}, {v(vO)}, {s(RO,4)}, {s(sFH) if half else 0} offen{self.o.get('ost', ' sc1')}")
        return L

    def gemm2(self, layer):
        k = self.k; o = self.o
        lo = 1024*layer
        AC2 = [AR, WF]
        X3 = [TMP, TMP + 4]
        order = self.g2_order()
        LA = o.get('g2la', 20)
        xt = {}
        def ldX(h): xt[h] = k(f"buffer_load_dwordx4 {v(X3[h],4)}, {v(vF2)}, {s(RW,4)}, {k4(h)} offen sc1")
        ho = lambda half, mt: 2048*layer + 1024*half + 512*mt
        sl = self.hsc[1]
        gate = [14]
        def opened(n): return Item(fn=lambda: gate.__setitem__(0, n), cost=0)
        p0, p1 = o.get('hb_pub0', 21 if sl else 4), o.get('hb_pub1', 50 if sl else 20)
        g_, r_ = o.get('hb_gap', 28), o.get('hb_rtt', 25)
        side = Queue(k, self.publish_items(lambda: self.hB_tok[0], s(sHFs), ho(1, 0), p0)
                     + self.publish_items(lambda: self.hB_tok[1], s(sHFs), ho(1, 1), p1))
        side2 = Queue(k, ([Item(fn=self.hA1_issue, at=o['ha1_slot'])] if 'ha1_slot' in o else [])
                      + [Item(fn=f, at=o.get('ha1_pc', 0)) for f in self.poll_steps(lambda: self.hA1_box[0])] + [opened(28)]
                      + self.poll_items(vP7, s(sHFp), ho(1, 0), p0 + g_, p0 + g_ + r_) + [opened(42)]
                      + self.poll_items(vP7, s(sHFp), ho(1, 1), max(p1 + g_, p0 + g_ + r_ + 2), max(p1 + g_, p0 + g_ + r_ + 2) + r_) + [opened(56)])
        if layer == 0: k.wait(self.wd_last)
        fbox = []; seenB = False; wB = self.red_write(AC2[1]); doneB = 0
        def next_load():
            self.ldH()
            if layer == 1 and self.nxtH == 34: ldX(0)
            if layer == 1 and self.nxtH == 56:
                ldX(1)
                if o.get('wbl2', 0): self.writeback()
        for n in range(56):
            half, U, mt = order[n]
            if n == 28:
                self.stamp(f'g2a{layer}')
                side.drain()
                t = 4*28
                sp = o.get('ra_sp', 2)
                L = [Item(x, at=t + 3 + sp*i) for i, x in enumerate(self.red_write(AC2[0]))]
                L += [Item(fn=lambda: k.wait_lg0(), at=t + 8*sp + 3), Item(fn=lambda: k("s_barrier"))]
                L += [Item(x) for x in self.red_read(AR)]
                L += [Item(fn=lambda: k.wait_lg0(), at=t + 8*sp + o.get('ra_rd', 14)), Item(fn=lambda: k("s_barrier"))]
                if layer == 1: L += [Item(fn=lambda: k.wait(xt[0]))]
                L += [Item(x) for x in self.red_sum(AR, 0, layer, X3[0], 0)]
                fA = L[-1]
                if layer == 0:
                    L += self.publish_items(lambda: fA.tok, s(sFFs), 0, t + o.get('fa_pub', 66))
                    L += [Item(x, at=t + 60) for x in self.unpack(ACC[1] + 24, YS[0]) + self.ag_addr(ACC[1] + 52)]
                    L.append(Item(fn=lambda: fbox.append(self.poll_issue(vP7, s(sFFp), 0)), at=t + o.get('fa_pi', 86)))
                    if o.get('fa_in', 1):
                        L += [Item(fn=f, at=t + o.get('fa_pc', 104)) for f in self.poll_steps(lambda: fbox[0])]
                        fldi = Item(f"buffer_load_dwordx4 {v(ACC[1],4)}, {v(vFr)}, {s(RW,4)}, {s(sFR[0])} offen sc1"); L.append(fldi)
                if o.get('nored') and layer == 1: L = []
                side = Queue(k, L)
                last0 = max(i for i in range(28, 56) if order[i][2] == 0)
                late = Queue(k, [Item(x, at=4*(last0 + 1) + 3 + sp*i) for i, x in enumerate(wB[:4])])
            if n in (8, 16, 22, 36, 44, 50): self.stamp(f'g2_{layer}_{n}')
            for m in range(n, n + 2 - n % 2):
                while m not in self.ht:
                    while self.nxtH >= gate[0]:
                        if gate[0] > 14: side.drain() if n < 28 else None
                        side2.emit(side2.q[0])
                    next_load()
            if n % 2 == 0: k.wait(self.ht[n + 1])
            for nt in range(4):
                d = AC2[half] + 16*mt + 4*nt
                k(f"v_mfma_f32_16x16x32_bf16 {v(d,4)}, {a((4*U+nt)*4,4)}, {v(self.hreg(n),4)}, {'0' if U == 0 else v(d,4)}")
                cap = 2 - (1 if (nt == 3 and n % 2) else 0)
                if (nt == 0 or (nt == 2 and self.nxtH < n + 1 + o.get('g2min', 9))) and self.nxtH < min(gate[0], n + 1 + LA) and (self.nxtH < 42 or self.nxtH - 42 < n):
                    next_load(); cap -= 1
                cap = side2.fill(cap, 4*n + nt)
                cap = side.fill(cap, 4*n + nt)
                if n >= 28 and not any('ds_' in (x.text or '') or (x.fn and x.at <= t + 8*sp + 40) for x in side.q):
                    late.fill(cap, 4*n + nt)
        print('layer', layer, 'left after G2B:', side.cost(), late.cost())
        side.drain()
        wB = [x.text for x in late.q] + wB[4:]
        self.stamp(f'g2b{layer}')
        R = ACC[1]
        if layer == 0 and not o.get('fa_in', 1):
            self.poll_check(fbox[0])
            fld = k(f"buffer_load_dwordx4 {v(R,4)}, {v(vFr)}, {s(RW,4)}, {s(sFR[0])} offen sc1")
        elif layer == 0: fld = fldi.tok
        for x in wB: k(x)
        if layer == 0:
            k.wait(fld)
            self.stamp('fA_in')
            sts, rest = self.rowop(0, R, True)
            self.stamp('rowA')
            if o.get('apub_first', 2): self.run(rest)
            if o.get('apub_first', 2) == 1: self.publish(sts, s(sAFs), 1024)
        if not (layer == 0 and o.get('ag', 1)): k.wait_lg0(); k("s_barrier")
        for x in self.red_read(ACC[0]): k(x)
        if layer == 0 and o.get('apub_first', 2) == 2: self.publish(sts, s(sAFs), 1024)
        k.wait_lg0()
        if layer == 1: k.wait(xt[1])
        if layer == 0 and not o.get('apub_first', 2): self.publish(sts, s(sAFs), 1024)
        if layer == 0: self.a_poll = self.poll_issue(vP31, s(sAFp), 1024)
        self.fB = self.run(self.red_sum(ACC[0], 1, layer, X3[1], 1))[-1].tok
        self.stamp(f'fB_st{layer}')
        if layer == 0:
            self.gemm1_start(1)
            if not o.get('apub_first', 2): self.run(rest)

    def writeback(self):
        k = self.k
        a_, b_ = k.label(), k.label()
        k(f"s_or_b32 {s(T[2])}, {s(sJ)}, {s(sW)}\ns_cmp_lg_u32 {s(T[2])}, 0\ns_cbranch_scc1 {a_}")
        k("buffer_wbl2 sc1")
        k(f"s_branch {b_}"); k.place(a_)
        k.ins.append(I(f"buffer_load_dword {v(vPT)}, {v(vL0)}, {s(RW,4)}, 0 offen"))
        k.place(b_)

    def rowop(self, h, R, split=False):
        L = self.unpack(R + 8, R)
        L += [f"v_pk_add_f32 {v(XS[h]+e,2)}, {v(XS[h]+e,2)}, {v(R+8+e,2)}" for e in (0, 2, 4, 6)]
        L += self.stats([XS[h]], [36], R + 16)
        L += self.affine(R + 8, XS[h], 36, R + 20)
        G = self.gate_norm([h], {h: R + 8}, 1, R + 24)
        rest = []
        if split: G = G[8:]
        if self.o.get('ag', 1):
            self.run(L + G[:-5], 16)
            tok = self.a_out([h], R, 1, lambda: self.run(G[-5:]))[0]
            return (tok, []) if split else tok
        if split: G, rest = G[:-5], G[-5:]
        its = self.run(L + G, 16)
        tok = [x.tok for x in its if 'store' in x.text][-1]
        return (tok, rest) if split else tok

    def build(self):
        k = self.k; o = self.o
        self.prologue()
        self.front_addr()
        if o.get('hpos', 1): self.h_load()
        self.touch_first()
        self.touch_global_flags()
        self.w1_addr()
        self.w1_dma(o.get('n0', 2))
        self.wd_job_addr()
        self.phase0()
        self.w1_dma(o.get('n1', 1))
        self.conv()
        if o.get('joint', 1): self.y_joint()
        else: self.y_in()
        for layer in range(2):
            self.gemm1(layer)
            self.gemm2(layer)
        if o.get('stamps'):
            self.stamp('end')
            k(f"""s_lshl_b32 {s(T[0])}, s2, 2
                  s_add_u32 {s(T[0])}, {s(T[0])}, {s(sW)}
                  s_lshl_b32 {s(T[0])}, {s(T[0])}, 8
                  s_add_u32 {s(T[0])}, {s(T[0])}, {WS_DBG}
                  v_lshrrev_b32 v5, 2, {v(vL16)}
                  buffer_store_dword {v(vST[0])}, v5, {s(RW,4)}, {s(T[0])} offen
                  s_add_u32 {s(T[0])}, {s(T[0])}, 0x40000
                  buffer_store_dword {v(vST[1])}, v5, {s(RW,4)}, {s(T[0])} offen""")
        if o.get('delay'):
            k(f"""s_mov_b32 {s(T[0])}, {o['delay']}
                  s_memrealtime {s(T[2],2)}
                  s_waitcnt lgkmcnt(0)""")
            k.place("L_DELAY")
            k(f"""s_memrealtime {s(T[4],2)}
                  s_waitcnt lgkmcnt(0)
                  s_sub_u32 {s(T[4])}, {s(T[4])}, {s(T[2])}
                  s_cmp_lt_u32 {s(T[4])}, {s(T[0])}
                  s_cbranch_scc1 L_DELAY""")
        if o.get('diag'):
            self.stamp('end')
            k(f"""v_sub_u32 v5, {v(vST[1])}, {v(vST[0])}
                  s_nop 1
                  v_readfirstlane_b32 {s(T[0])}, v5
                  s_mul_i32 {s(T[0])}, {s(T[0])}, 8
                  s_memrealtime {s(T[2],2)}
                  s_waitcnt lgkmcnt(0)""")
            k.place("L_DIAG")
            k(f"""s_memrealtime {s(T[4],2)}
                  s_waitcnt lgkmcnt(0)
                  s_sub_u32 {s(T[4])}, {s(T[4])}, {s(T[2])}
                  s_cmp_lt_u32 {s(T[4])}, {s(T[0])}
                  s_cbranch_scc1 L_DIAG""")
        k.place("L_END")
        k("s_endpgm")
        body = k.text()
        for t in self.tail:
            body += "".join((x + "\n") if x.endswith(':') else ("    " + x + "\n") for x in t)
        body += "L_LAST:\n"
        return body

def file_text(opt):
    g = Gen(opt)
    body = g.build()
    ref = open(os.path.join(os.path.dirname(os.path.abspath(__file__)), '..', 'cdna_kernels', NAME + '.s.ref')).read()
    head = ref[:ref.index('; Override launch geometry')]
    txt = head + f"""; @launch grid=(256,1,1) block=(256,1,1) lds={LDS_SIZE}
;
; One persistent launch, 256 workgroups of 4 waves, one per CU (generated by a script of my own).
; Workgroup b: group x = b & 7, member j = b >> 3.
;   1. kv = shortconv(k) * v for a 64-step x 64-channel tile, handed over transposed inside the group.
;   2. long causal conv of 2 channels as block-Toeplitz MFMAs (exact products, fp32 sums), plus kv * D.
;      y does not depend on the residual stream, so it is computed once and used by both layers.
;   3. each wave owns two rows (x, y in registers): x += LN(x) * y ; a = LN(x).
;   4. GEMM1: 256 rows x 56 hidden units per workgroup, gate/up weights resident in LDS; SwiGLU.
;   5. GEMM2: 64 x 64 tile per workgroup, w_down slice resident in accumulator registers, K split over waves.
;   Steps 3-5 run twice, in two row halves that hide each other's hand-off latency.
; Hand-offs use flag words in d_ws that carry a per-launch tag derived from d_ws word 0.
; Inside a group they go through one L2 when all 32 members report the same die id; otherwise every
; hand-off takes the device-scope release/acquire path, so any placement gives the same result.
.amdgcn_target "amdgcn-amd-amdhsa--gfx950"
.text
.globl {NAME}_kernel
.p2align 8
.type {NAME}_kernel,@function
{NAME}_kernel:
{body}.section .rodata,"a"
.p2align 6
.amdhsa_kernel {NAME}_kernel
  .amdhsa_next_free_vgpr 512
  .amdhsa_next_free_sgpr 102
  .amdhsa_accum_offset 256
  .amdhsa_group_segment_fixed_size 0
  .amdhsa_kernarg_size 104
  .amdhsa_user_sgpr_count 2
  .amdhsa_user_sgpr_kernarg_segment_ptr 1
  .amdhsa_system_sgpr_workgroup_id_x 1
.end_amdhsa_kernel
"""
    return txt, g

if __name__ == '__main__':
    import json
    opt = {}; out = None
    for x in sys.argv[1:]:
        if '=' in x:
            kk, vv = x.split('=')
            opt[kk] = vv.split(',') if kk in ('only', 'diag') else (' ' + vv.replace('+', ' ') if kk in ('ost', 'wdm', 'x3m') else int(vv, 0))
        else: out = x
    txt, g = file_text(opt)
    open(out, 'w').write(txt)
    json.dump(g.stamps, open(out + '.stamps.json', 'w'))
    print('instructions', len(g.k.ins), 'nops added', g.k.nops_added, 'stamps', len(g.stamps))
```

```python
import sys, os
sys.path.insert(0, os.path.dirname(os.path.abspath(__file__)))
from dsl import *

NAME = 'interleave_layers__ssm_conv_h3__swiglu_ffn__prompt'

WS_XCCF = 0x1000
WS_KVF  = 0x10000
WS_AF   = 0x11000
WS_HF   = 0x19000
WS_FF   = 0x21000
WS_YF   = 0x40000
JFS = int(os.environ.get('JFS', '4'))
JF_BLK = (448*JFS + 8191)//8192
WS_JF   = 0x40000 - 8192*JF_BLK
WS_KVT  = 0x100000
WS_A    = WS_KVT
WS_YP   = 0x300000
WS_H    = 0x700000
WS_WDT  = 0xE00000
WS_DBG  = 0x1000000
WS_SIZE = 0x1100000
H_X, H_HALF, H_RB = 917504, 458752, 114688

LDS_SIZE = 163840
SCR   = 114688
L_K   = SCR
L_V   = L_K + 9216
L_H   = L_V + 8192
H_CP  = 4096 + 128
H_E   = lambda ch: L_H + ch * 2 * H_CP + 64
H_O   = lambda ch: L_H + ch * 2 * H_CP + H_CP + 128
L_U   = L_H + 4 * H_CP + 128
U_S   = 4608
assert L_U + 2 * U_S <= LDS_SIZE
L_CRED = 57344
L_YT  = L_U
L_JOB = 114688 - 16384
L_RED = SCR
L_AG  = LDS_SIZE - 4352
L_AG2 = SCR

sX, sJ, sW, sN, sEXP, sSPIN, sXCC, sMODE = 4, 5, 6, 7, 8, 9, 10, 11
T = list(range(12, 24))
sC2 = 24
sHALF = 26
sW1S, sW1L = 27, 3
sD = 28
sDP = 34
RK, RV, RH, RQ, RG, RU, RD, RO, RW, RS = 44, 48, 52, 56, 60, 64, 68, 72, 76, 80
sK4 = 83
def k4(i): return '0' if i == 0 else s(sK4 + i)
sHH = 91
sAFp, sAFs, sHFp, sHFs, sFFp, sFFs = 94, 95, 96, 97, 98, 99
sFR = [100, 101]
sFH = 55
sAG = [56, 57]
sROT = [0, 1, 34, 35, 54, 80, 81]
sDEL = [82, 83]
sST = (32, 92)
sKVFp, sKVs, sUm0, sYst, sYFs, sYFp, sYld, sJF, sJL, sJFp = 44, 45, 46, 47, 48, 49, 50, 51, 52, 53

vL, vL16, vL0, vNON, vPT = 1, 2, 3, 4, 5
vAld, vHld = [6, 7], [8, 9]
vHm, vHt, vAst, vF2, vO, vRw, vRr, vP31, vP7, vW1 = 10, 11, 12, 13, 14, 15, 16, 17, 18, 19
vST = (20, 21)
vFr = 0
vWd = [230, 231]
ACC = [22, 78]
WF, AR, TMP = 134, 190, 222
YS, XS = [232, 236], [240, 248]
LOG2E = 1.4426950408889634

def f32(x):
    import struct
    return '0x%08x' % struct.unpack('<I', struct.pack('<f', x))[0]

def ag_off(layer, h):
    return L_AG - L_AG2 if h == 0 else (0 if layer == 0 else L_AG - L_AG2 - 4352)

def flist(c):
    if c < 4: return [4*c + e for e in range(4)] + [16 + 4*c + e for e in range(4)]
    q = c - 4; X = [44, 46, 54][q]
    return [32 + 4*q + e for e in range(4)] + [48 + 2*q, 49 + 2*q, X, X + 1]

class Gen:
    def __init__(self, opt):
        self.o = opt
        self.k = K()
        self.tail = []
        self.stamps = []
        self.w1_next = 0
        self.late = False
        self.w1_tok = {}

    def stamp(self, name):
        self.k.ins.append(I(f"; ---- {name}"))
        dg = self.o.get('diag')
        if dg and name in dg:
            k = self.k
            k(f"s_memrealtime {s(sST[0],2)}"); k.wait_lg0()
            k(f"v_mov_b32 {v(vST[dg.index(name)])}, {s(sST[0])}")
        if not self.o.get('stamps'): return
        only = self.o.get('only')
        if only and name not in only: return
        k = self.k; n = len(self.stamps)
        k(f"s_memrealtime {s(sST[0],2)}\ns_memtime {s(sST[1],2)}"); k.wait_lg0()
        if self.o.get('spinstat') and n >= 2: k(f"s_sub_u32 {s(sST[1])}, 0, {s(sSPIN)}")
        k(f"v_writelane_b32 {v(vST[0])}, {s(sST[0])}, {n}\nv_writelane_b32 {v(vST[1])}, {s(sST[1])}, {n}")
        self.stamps.append(name)

    def srd(self, base, size):
        self.k(f"s_mov_b32 {s(base+2)}, {size}\ns_mov_b32 {s(base+3)}, 0x20000")

    def poll_issue(self, vaddr, soff, off=0, vt=vPT):
        txt = f"buffer_load_dword {v(vt)}, {v(vaddr)}, {s(RW,4)}, {soff} offen offset:{off} sc1"
        return (self.k(txt), txt, vt)

    def poll_steps(self, get, local=True):
        k = self.k
        slow, back, ok = k.label(), k.label(), k.label()
        def s1(): k.wait(get()[0])
        def s2(): k(f"v_cmp_ne_u32 vcc, {s(sEXP if local else sN)}, {v(get()[2])}")
        def s3():
            if self.o.get('nopoll') and self.late: return
            k(f"s_cbranch_vccnz {slow}"); k.place(back)
            _, txt, vt = get()
            nap = self.o.get('nap_l', 0) if local else self.o.get('nap_g', 0)
            t = [f"{slow}:"] + ([f"s_sleep {nap}"] if nap else []) + [txt, "s_waitcnt vmcnt(0)", f"v_cmp_ne_u32 vcc, {s(sN)}, {v(vt)}", f"s_cbranch_vccz {ok}",
                 f"s_sub_u32 {s(sSPIN)}, {s(sSPIN)}, 1", f"s_cbranch_scc0 {slow}", "s_branch L_END", f"{ok}:"]
            if local: t += [f"s_cmp_eq_u32 {s(sMODE)}, 0", f"s_cbranch_scc1 {back}", "buffer_inv sc1", "s_waitcnt vmcnt(0)"]
            self.tail.append(t + [f"s_branch {back}"])
        return [s1, s2, s3]

    def poll_check(self, h, local=True):
        for f in self.poll_steps(lambda: h, local): f()
    def poll(self, vaddr, soff, off=0, local=True):
        self.poll_check(self.poll_issue(vaddr, soff, off), local)
    def poll_items(self, vaddr, soff, off, at_issue, at_check):
        box = []
        it = [Item(fn=lambda: box.append(self.poll_issue(vaddr, soff, off)), at=at_issue)]
        return it + [Item(fn=f, at=at_check) for f in self.poll_steps(lambda: box[0])]

    def flag_store(self, soff, off=0, local=True):
        k = self.k
        txt = f"buffer_store_dword {v(vNON)}, {v(vL0)}, {s(RW,4)}, {soff} offen offset:{off}"
        if not local: return k(txt + " sc1")
        slow, back = k.label(), k.label()
        k(f"s_cmp_lg_u32 {s(sMODE)}, 0\ns_cbranch_scc1 {slow}")
        r = k(txt); k.place(back)
        self.tail.append([f"{slow}:", "s_waitcnt vmcnt(0)", "buffer_wbl2 sc1", "s_waitcnt vmcnt(0)", txt + " sc1", f"s_branch {back}"])
        return r
    def publish(self, tok, soff, off=0, local=True):
        self.k.wait(tok)
        return self.flag_store(soff, off, local)
    def publish_items(self, get, soff, off, at):
        return [Item(fn=lambda: self.k.wait(get()), at=at), Item(fn=lambda: self.flag_store(soff, off), cost=2, at=at)]

    def dma(self, vaddr, srd, soff, m0, extra=''):
        self.k(m0)
        return self.k(f"buffer_load_dwordx4 {v(vaddr)}, {s(srd,4)}, {soff} offen {extra} lds".replace('  ', ' '))

    def prologue(self):
        k = self.k
        k("s_cmp_ge_u32 s2, 256\ns_cbranch_scc1 L_END")
        if self.o.get('stamps'): k(f"v_mov_b32 {v(vST[0])}, 0\nv_mov_b32 {v(vST[1])}, 0")
        self.stamp('entry')
        for r, off in ((RK, 8), (RV, 16), (RW, 96), (RH, 32), (RS, 24), (RQ, 0), (RG, 56), (RU, 64), (RD, 72), (RO, 80)):
            k(f"s_load_dwordx2 {s(r,2)}, s[0:1], {off}")
        k(f"s_load_dwordx2 {s(sDP,2)}, s[0:1], 40")
        k(f"s_lshr_b32 {s(sJ)}, s2, 3")
        self.code_prefetch()
        k(f"""s_and_b32 {s(sX)}, s2, 7
              v_lshrrev_b32 v5, 6, v0
              v_and_b32 {v(vL)}, 63, v0
              v_readfirstlane_b32 {s(sW)}, v5
              v_lshlrev_b32 {v(vL16)}, 4, {v(vL)}""")
        for r, size in ((RK, 2097152), (RV, 2097152), (RW, WS_SIZE), (RH, 2097152), (RS, 4096)): self.srd(r, size)

        k(f"""v_lshrrev_b32 v24, 3, {v(vL)}
              v_and_b32 v25, 7, {v(vL)}
              v_and_b32 v26, 2, v24
              v_xor_b32 v25, v25, v26
              s_and_b32 {s(T[0])}, {s(sW)}, 1
              s_lshl_b32 {s(T[0])}, {s(T[0])}, 2
              v_xor_b32 v25, {s(T[0])}, v25
              v_lshlrev_b32 v25, 4, v25
              v_lshl_add_u32 v25, v24, 10, v25
              s_lshl_b32 {s(T[0])}, {s(sJ)}, 16
              s_lshl_b32 {s(T[1])}, {s(sW)}, 14
              s_lshl_b32 {s(T[2])}, {s(sX)}, 7
              s_add_u32 {s(T[0])}, {s(T[0])}, {s(T[1])}
              s_add_u32 {s(T[0])}, {s(T[0])}, {s(T[2])}
              v_add_u32 v25, {s(T[0])}, v25
              v_xor_b32 v26, 64, v25
              v_subrev_u32 v26, 8192, v26
              s_lshl_b32 {s(T[1])}, {s(sW)}, 11
              s_add_u32 {s(T[2])}, {s(T[1])}, {L_K + 1024}
              s_add_u32 {s(T[3])}, {s(T[1])}, {L_V}
              s_movk_i32 {s(T[4])}, 8192
              v_and_b32 v27, 15, {v(vL)}
              s_lshl_b32 {s(T[0])}, {s(sX)}, 6
              s_lshl_b32 {s(T[1])}, {s(sW)}, 4
              s_add_u32 {s(T[1])}, {s(T[0])}, {s(T[1])}
              v_add_u32 v27, {s(T[1])}, v27
              v_lshlrev_b32 v28, 3, v27
              s_lshl_b32 {s(T[1])}, {s(sJ)}, 1
              s_add_u32 {s(T[0])}, {s(T[0])}, {s(T[1])}
              s_lshl_b32 {s(T[5])}, {s(T[0])}, 1
              s_lshl_b32 {s(T[6])}, {s(T[0])}, 12
              s_add_u32 {s(T[7])}, {s(T[6])}, 4096
              v_lshlrev_b32 v29, 4, v0""")
        k.wait_lg0()
        self.stamp('start')
        k(f"s_load_dword {s(sN)}, {s(RW,2)}, 0")
        k(f"s_load_dword {s(sD)}, {s(sDP,2)}, {s(T[5])}")
        self.dma(25, RK, '0', f"s_mov_b32 m0, {s(T[2])}")
        self.dma(25, RV, '0', f"s_mov_b32 m0, {s(T[3])}")
        self.dma(25, RK, s(T[4]), f"s_add_u32 m0, {s(T[2])}, 1024")
        self.dma(25, RV, s(T[4]), f"s_add_u32 m0, {s(T[3])}, 1024")
        skip = k.label()
        k(f"s_cmp_lg_u32 {s(sW)}, 0\ns_cbranch_scc1 {skip}\ns_mov_b32 m0, {L_K}\ns_nop 0")
        k.ins.append(I(f"buffer_load_dwordx4 v26, {s(RK,4)}, 0 offen lds"))
        k.place(skip)
        self.sh_tok = k(f"buffer_load_dwordx2 v[30:31], v28, {s(RS,4)}, 0 offen")
        if not self.o.get('hpos', 1): self.h_load()
        k(f"""s_getreg_b32 {s(sXCC)}, hwreg(HW_REG_XCC_ID, 0, 4)
              v_cmp_eq_u32 vcc, 0, {v(vL)}
              v_mov_b32 v5, 0x80000000
              s_lshl_b32 {s(T[1])}, {s(sX)}, 5
              s_add_u32 {s(T[1])}, {s(T[1])}, {s(sJ)}
              s_mul_i32 {s(T[1])}, {s(T[1])}, {self.o.get('xs', 4)}
              s_add_u32 {s(T[1])}, {s(T[1])}, {WS_XCCF}
              s_cmp_eq_u32 {s(sW)}, 2
              s_cselect_b32 {s(T[1])}, {s(T[1])}, 0x40000000
              v_cndmask_b32 {v(vL0)}, v5, 0, vcc""")
        k.wait_lg0()
        k(f"""s_mul_i32 {s(sN)}, {s(sN)}, 1664525
              s_add_u32 {s(sN)}, {s(sN)}, 1013904223
              s_xor_b32 {s(T[0])}, {s(sN)}, {s(sXCC)}
              v_mov_b32 v5, {s(T[0])}
              v_mov_b32 {v(vNON)}, {s(sN)}""")
        k(f"buffer_store_dword v5, {v(vL0)}, {s(RW,4)}, {s(T[1])} offen sc1")
        for r, size in ((RQ, 2097152), (RG, 1835008), (RU, 1835008), (RD, 1835008), (RO, 2097152)): self.srd(r, size)
        k(f"""s_lshr_b32 {s(sD+2)}, {s(sD)}, 16
              s_and_b32 {s(sD+3)}, {s(sD)}, 0xffff0000
              s_lshl_b32 {s(sD+1)}, {s(sD)}, 16
              s_and_b32 {s(sD)}, {s(sD)}, 0xffff
              s_mov_b32 {s(sC2)}, {f32(LOG2E*LOG2E)}
              s_mov_b32 {s(sC2+1)}, {f32(LOG2E*LOG2E)}
              s_mov_b32 {s(sSPIN)}, {self.o.get('spin', 400000)}
              s_mov_b32 {s(sHALF)}, 0x20000
              s_mov_b32 {s(sHH)}, {H_HALF}
              v_and_b32 {v(vP31)}, 31, {v(vL)}
              v_lshlrev_b32 {v(vP31)}, 2, {v(vP31)}
              v_and_b32 {v(vP7)}, 7, {v(vL)}
              v_lshlrev_b32 {v(vP7)}, 2, {v(vP7)}""")
        for i in range(1, 8): k(f"s_movk_i32 {s(sK4+i)}, {4096*i}")

    def h_load(self):
        k = self.k
        k(f"buffer_load_dwordx4 v[32:35], v29, {s(RH,4)}, {s(T[6])} offen")
        k(f"buffer_load_dwordx4 v[40:43], v29, {s(RH,4)}, {s(T[7])} offen")
        k(f"buffer_load_dwordx4 v[36:39], v29, {s(RH,4)}, {s(T[6])} offen offset:2")
        self.h_tok = k(f"buffer_load_dwordx4 v[44:47], v29, {s(RH,4)}, {s(T[7])} offen offset:2")

    def code_prefetch(self):
        if not self.o.get('cpf', 1): return
        k = self.k
        k(f"s_getpc_b64 {s(T[2],2)}")
        k.place("L_PC")
        k(f"""s_mul_i32 {s(T[4])}, {s(sJ)}, ((L_LAST-L_PC+4095)/4096)*128
              v_min_u32 v5, (L_LAST-L_PC+4095)/4096-1, v0
              v_lshl_add_u32 v5, v5, 7, {s(T[4])}
              v_min_u32 v5, L_LAST-L_PC-4, v5
              global_load_dword v219, v5, {s(T[2],2)}""")

    def tlb_touch(self):
        if not self.o.get('tlb', 0): return
        k = self.k
        k(f"v_and_b32 v5, 15, {v(vL)}\nv_lshlrev_b32 v5, 20, v5")
        k(f"buffer_load_dword v200, v5, {s(RW,4)}, 0 offen offset:512")
        k(f"buffer_load_dword v201, v5, {s(RO,4)}, 0 offen")
        k(f"buffer_load_dword v196, v5, {s(RG,4)}, 0 offen")
        k(f"buffer_load_dword v197, v5, {s(RU,4)}, 0 offen")
        k(f"buffer_load_dword v198, v5, {s(RQ,4)}, 0 offen")

    def touch_first(self):
        k = self.k
        if self.o.get('tch_kv', 1):
            k(f"v_and_b32 v5, 15, {v(vL)}\nv_lshlrev_b32 v5, 7, v5")
            k(f"buffer_load_dword v220, v5, {s(RW,4)}, {s(sKVs)} offen sc1")
        if self.o.get('tch_fl', 1):
            k(f"""s_lshl_b32 {s(T[0])}, {s(sX)}, 12
                  s_add_u32 {s(T[0])}, {s(T[0])}, {WS_AF}
                  v_lshl_add_u32 v22, {v(vL)}, 7, {s(T[0])}
                  v_cmp_lt_u32 vcc, 15, {v(vL)}
                  v_add_u32 v5, {0x8000 - 16*128}, v22
                  s_lshl_b32 {s(T[0])}, {s(sX)}, 9
                  v_cndmask_b32 v22, v22, v5, vcc
                  v_cmp_lt_u32 vcc, 47, {v(vL)}
                  v_add_u32 v5, {0x8000 - 32*128}, v22
                  s_add_u32 {s(T[0])}, {s(T[0])}, {WS_KVF}
                  v_cndmask_b32 v22, v22, v5, vcc
                  v_cmp_lt_u32 vcc, 55, {v(vL)}
                  v_and_b32 v5, 3, {v(vL)}
                  v_lshl_add_u32 v5, v5, 7, {s(T[0])}
                  s_cmp_eq_u32 {s(sW)}, 3
                  s_cselect_b32 {s(T[0])}, 0, 0x40000000
                  v_cndmask_b32 v5, v22, v5, vcc
                  buffer_load_dword v221, v5, {s(RW,4)}, {s(T[0])} offen sc1""")
    def touch_global_flags(self):
        if not self.o.get('tch_g', 1): return
        k = self.k
        k(f"""v_lshlrev_b32 v5, 7, {v(vL)}
              s_cmp_eq_u32 {s(sW)}, 1
              s_cselect_b32 {s(T[0])}, {s(sJ)}, 31
              s_lshl_b32 {s(T[1])}, {s(T[0])}, 13
              s_cmp_lt_u32 {s(T[0])}, {JF_BLK + self.o.get('yfs', 4)//4}
              s_cselect_b32 {s(T[0])}, {s(T[1])}, 0x40000000
              s_add_u32 {s(T[0])}, {s(T[0])}, {WS_JF}
              buffer_load_dword v202, v5, {s(RW,4)}, {s(T[0])} offen sc1""")
    def touch_h_addr(self):
        self.k(f"""s_lshl_b32 {s(T[0])}, {s(sJ)}, 2
                  s_add_u32 {s(T[0])}, {s(T[0])}, {s(sW)}
                  s_mul_i32 {s(T[0])}, {s(T[0])}, 7168
                  s_mul_i32 {s(T[1])}, {s(sX)}, {H_X}
                  s_add_u32 {s(T[0])}, {s(T[0])}, {s(T[1])}
                  s_add_u32 {s(T[0])}, {s(T[0])}, {WS_H}
                  v_min_u32 v227, 55, {v(vL)}
                  v_lshl_add_u32 v227, v227, 7, {s(T[0])}""")
    def touch_h_text(self): return f"buffer_load_dword v228, v227, {s(RW,4)}, 0 offen sc1"
    def touch_f(self):
        k = self.k
        k(f"""v_and_b32 v5, 7, {v(vL)}
              v_lshlrev_b32 v5, 7, v5
              v_bfe_u32 v22, {v(vL)}, 3, 1
              v_lshl_add_u32 v5, v22, 17, v5
              buffer_load_dword v199, v5, {s(RW,4)}, {s(sFR[0])} offen sc1""")

    def q_load(self, issue=True):
        k = self.k
        k(f"""s_lshl_b32 {s(T[0])}, {s(sX)}, 7
              s_lshl_b32 {s(T[1])}, {s(sJ)}, 2
              s_add_u32 {s(T[0])}, {s(T[0])}, {s(T[1])}
              s_add_u32 {s(T[0])}, {s(T[0])}, {s(sW)}
              s_lshl_b32 {s(T[0])}, {s(T[0])}, 10
              s_mov_b32 {s(T[10])}, {s(T[0])}
              s_add_u32 {s(T[11])}, {s(T[0])}, 0x100000""")
        if issue: self.q_issue()
    def q_issue(self):
        k = self.k
        k(f"buffer_load_dwordx4 v[204:207], {v(vL16)}, {s(RQ,4)}, {s(T[10])} offen")
        self.q_tok = k(f"buffer_load_dwordx4 v[208:211], {v(vL16)}, {s(RQ,4)}, {s(T[11])} offen")

    def persistent(self):
        k = self.k; AG = self.o.get('ag', 1)
        k(f"""s_lshl_b32 {s(T[0])}, {s(sJ)}, 2
              s_add_u32 {s(T[0])}, {s(T[0])}, {s(sW)}
              s_lshl_b32 {s(T[8])}, {s(sX)}, 18
              s_lshl_b32 {s(T[9])}, {s(sX)}, 12
              s_lshr_b32 {s(T[10])}, {s(sJ)}, 3
              s_and_b32 {s(T[11])}, {s(sJ)}, 7
              s_lshl_b32 {s(T[1])}, {s(T[0])}, 2
              s_add_u32 {s(T[1])}, {s(T[1])}, {s(T[9])}
              s_add_u32 {s(sAFs)}, {s(T[1])}, {WS_AF}
              s_lshl_b32 {s(T[1])}, {s(sW)}, 7
              s_add_u32 {s(T[1])}, {s(T[1])}, {s(T[9])}
              s_add_u32 {s(sAFp)}, {s(T[1])}, {WS_AF}
              s_lshl_b32 {s(T[2])}, {s(sJ)}, 2
              s_add_u32 {s(T[1])}, {s(T[1])}, {s(T[2])}
              s_add_u32 {s(sHFs)}, {s(T[1])}, {WS_HF}
              s_lshl_b32 {s(T[1])}, {s(T[10])}, 7
              s_lshl_b32 {s(T[2])}, {s(sW)}, 5
              s_add_u32 {s(T[1])}, {s(T[1])}, {s(T[2])}
              s_add_u32 {s(T[1])}, {s(T[1])}, {s(T[9])}
              s_add_u32 {s(sHFp)}, {s(T[1])}, {WS_HF}
              s_lshl_b32 {s(T[2])}, {s(T[11])}, 2
              s_add_u32 {s(T[1])}, {s(T[1])}, {s(T[2])}
              s_add_u32 {s(sFFs)}, {s(T[1])}, {WS_FF}
              s_lshr_b32 {s(T[1])}, {s(sJ)}, 1
              s_lshl_b32 {s(T[1])}, {s(T[1])}, 5
              s_add_u32 {s(T[1])}, {s(T[1])}, {s(T[9])}
              s_add_u32 {s(sFFp)}, {s(T[1])}, {WS_FF}
              s_lshr_b32 {s(T[1])}, {s(T[0])}, 5
              s_lshl_b32 {s(T[1])}, {s(T[1])}, 15
              s_bfe_u32 {s(T[2])}, {s(T[0])}, 0x10004
              s_lshl_b32 {s(T[2])}, {s(T[2])}, 10
              s_and_b32 {s(T[3])}, {s(T[0])}, {12 if AG else 15}
              s_lshl_b32 {s(T[3])}, {s(T[3])}, 4
              s_add_u32 {s(T[1])}, {s(T[1])}, {s(T[2])}
              s_add_u32 {s(T[1])}, {s(T[1])}, {s(T[3])}
              s_add_u32 {s(T[1])}, {s(T[1])}, {s(T[8])}
              s_lshl_b32 {s(T[2])}, {s(sW)}, 13
              s_add_u32 {s(T[2])}, {s(T[2])}, {WS_A}
              s_add_u32 {s(T[1])}, {s(T[1])}, {s(T[2]) if AG else WS_A}
              v_lshrrev_b32 v5, {4 if AG else 2}, {v(vL)}
              v_lshlrev_b32 v5, 11, v5
              v_bfe_u32 {v(vAst)}, {v(vL)}, {2 if AG else 0}, 2
              v_lshl_add_u32 {v(vAst)}, {v(vAst)}, 8, v5
              v_and_b32 v5, {3 if AG else 0}, {v(vL)}
              v_lshl_add_u32 {v(vAst)}, v5, 4, {v(vAst)}
              v_add_u32 {v(vAst)}, {s(T[1])}, {v(vAst)}
              s_lshl_b32 {s(T[1])}, {s(sW)}, 15
              s_add_u32 {s(T[1])}, {s(T[1])}, {s(T[8])}
              s_add_u32 {s(T[1])}, {s(T[1])}, {WS_A}
              v_add_u32 {v(vAld[0])}, {s(T[1])}, {v(vL16)}
              v_add_u32 {v(vAld[1])}, 0x20000, {v(vAld[0])}
              v_add_u32 {v(vW1)}, 57344, {v(vL16)}
              v_lshrrev_b32 v5, 4, {v(vL)}
              v_and_b32 v23, 15, {v(vL)}
              v_lshlrev_b32 v22, 9, v5
              v_lshl_add_u32 v22, v23, 4, v22
              s_mul_i32 {s(T[4])}, {s(sX)}, {H_X}
              s_add_u32 {s(T[4])}, {s(T[4])}, {WS_H}
              s_mul_i32 {s(T[1])}, {s(sW)}, {H_RB}
              s_mul_i32 {s(T[2])}, {s(sJ)}, 3584
              s_add_u32 {s(T[1])}, {s(T[1])}, {s(T[2])}
              s_add_u32 {s(T[1])}, {s(T[1])}, {s(T[4])}
              v_add_u32 {v(vHm)}, {s(T[1])}, v22
              s_mul_i32 {s(T[1])}, {s(T[10])}, {H_RB}
              s_mul_i32 {s(T[2])}, {s(sW)}, 28672
              s_add_u32 {s(T[1])}, {s(T[1])}, {s(T[2])}
              s_add_u32 {s(T[1])}, {s(T[1])}, {s(T[4])}
              v_add_u32 {v(vHld[0])}, {s(T[1])}, v22
              v_add_u32 {v(vHld[1])}, {H_HALF}, {v(vHld[0])}
              v_cmp_gt_u32 vcc, 48, {v(vL)}
              v_add_u32 {v(vHt)}, 2048, {v(vHm)}
              v_mov_b32 v22, 0x80000000
              v_mul_u32_u24 {v(vRw)}, 272, v23
              v_cndmask_b32 {v(vHt)}, v22, {v(vHt)}, vcc
              v_lshl_add_u32 {v(vRw)}, v5, 4, {v(vRw)}
              s_mul_i32 {s(T[1])}, {s(sW)}, 8704
              s_add_u32 {s(T[1])}, {s(T[1])}, {L_RED}
              v_add_u32 {v(vRw)}, {s(T[1])}, {v(vRw)}
              v_lshrrev_b32 v5, 3, {v(vL)}
              v_mul_u32_u24 {v(vRr)}, 272, v5
              v_lshl_add_u32 {v(vRr)}, {v(vP7)}, 3, {v(vRr)}
              s_mul_i32 {s(T[1])}, {s(sW)}, {8*272}
              s_add_u32 {s(T[1])}, {s(T[1])}, {L_RED}
              v_add_u32 {v(vRr)}, {s(T[1])}, {v(vRr)}
              s_lshl_b32 {s(T[1])}, {s(T[10])}, 5
              s_lshl_b32 {s(T[2])}, {s(sW)}, 3
              s_add_u32 {s(T[1])}, {s(T[1])}, {s(T[2])}
              v_add_u32 v5, {s(T[1])}, v5
              s_lshl_b32 {s(T[2])}, {s(T[11])}, 7
              s_lshl_b32 {s(T[1])}, {s(sX)}, 17
              s_add_u32 {s(T[2])}, {s(T[2])}, {s(T[1])}
              v_lshl_add_u32 v22, {v(vP7)}, 2, {s(T[2])}
              v_lshl_add_u32 {v(vO)}, v5, 10, v22
              s_lshr_b32 {s(T[1])}, {s(T[11])}, 2
              s_lshl_b32 {s(T[1])}, {s(T[1])}, 13
              s_and_b32 {s(T[2])}, {s(T[11])}, 3
              s_lshl_b32 {s(T[2])}, {s(T[2])}, 7
              s_add_u32 {s(T[1])}, {s(T[1])}, {s(T[2])}
              s_lshl_b32 {s(T[2])}, {s(sX)}, 9
              s_add_u32 {s(T[1])}, {s(T[1])}, {s(T[2])}
              s_add_u32 {s(T[1])}, {s(T[1])}, {WS_YP}
              v_lshl_add_u32 {v(vF2)}, {v(vP7)}, 2, {s(T[1])}
              v_lshl_add_u32 {v(vF2)}, v5, 14, {v(vF2)}
              s_mov_b32 {s(sFH)}, 0x100000
              s_lshl_b32 {s(T[1])}, {s(T[0])}, 14
              s_add_u32 {s(T[1])}, {s(T[1])}, {s(T[2])}
              s_add_u32 {s(sFR[0])}, {s(T[1])}, {WS_YP}
              s_add_u32 {s(sFR[1])}, {s(T[1])}, {WS_YP + 4096}
              v_lshrrev_b32 v5, 5, {v(vL)}
              v_lshlrev_b32 v5, 13, v5
              v_lshl_add_u32 {v(vFr)}, {v(vP31)}, 2, v5""")

    W1V = 212
    def w1_addr(self):
        k = self.k; vb = self.W1V; rot = self.o.get('rot', 1)
        k(f"""s_mul_i32 {s(T[0])}, {s(sJ)}, 112
              s_movk_i32 {s(T[1])}, 9363
              s_movk_i32 {s(T[2])}, {3584 - 7*16}
              s_mul_i32 {s(sW1S)}, {s(sW)}, 229376
              s_mul_i32 {s(sW1L)}, {s(sW)}, 14336
              s_and_b32 {s(T[3])}, {s(sX)}, {6 if rot else 0}
              s_and_b32 {s(T[4])}, {s(sX)}, {1 if rot else 0}
              s_cselect_b32 {s(T[5])}, {s(RU)}, {s(RG)}
              s_cselect_b32 {s(T[6])}, {s(RU+1)}, {s(RG+1)}
              s_cselect_b32 {s(RU)}, {s(RG)}, {s(RU)}
              s_cselect_b32 {s(RU+1)}, {s(RG+1)}, {s(RU+1)}
              s_cselect_b32 {s(T[4])}, 7168, 0
              s_lshl_b32 {s(sDEL[0])}, {s(T[4])}, 1
              s_sub_u32 {s(sDEL[0])}, 7168, {s(sDEL[0])}
              s_mov_b32 {s(RG)}, {s(T[5])}
              s_mov_b32 {s(RG+1)}, {s(T[6])}
              s_add_u32 {s(sDEL[1])}, {s(sDEL[0])}, 57344
              s_add_u32 {s(T[4])}, {s(T[4])}, {s(sW1L)}""")
        for i in range(7):
            k(f"""s_add_u32 {s(T[5])}, {s(T[3])}, {i}
                  s_sub_u32 {s(T[6])}, {s(T[5])}, 7
                  s_cselect_b32 {s(T[5])}, {s(T[5])}, {s(T[6])}
                  s_lshl_b32 {s(T[6])}, {s(T[5])}, 10
                  s_add_u32 {s(sROT[i])}, {s(T[6])}, {s(T[4])}
                  v_lshl_add_u32 v5, {s(T[5])}, 6, {v(vL)}
                  v_mul_u32_u24 {v(vb+i)}, {s(T[1])}, v5
                  v_lshrrev_b32 {v(vb+i)}, 16, {v(vb+i)}
                  v_mul_u32_u24 {v(vb+i)}, {s(T[2])}, {v(vb+i)}
                  v_lshl_add_u32 {v(vb+i)}, v5, 4, {v(vb+i)}
                  v_add_u32 {v(vb+i)}, {s(T[0])}, {v(vb+i)}""")

    def w1_dma_text(self, n):
        ck, mat, i = n // 14, (n % 14) // 7, n % 7
        L = []
        if n == 14: L.append(f"s_add_u32 {s(sW1S)}, {s(sW1S)}, {4*229376}")
        L.append(f"s_add_u32 m0, {s(sROT[i])}, {s(sDEL[ck]) if mat else ck*57344}")
        L.append(f"buffer_load_dwordx4 {v(self.W1V+i)}, {s(RU if mat else RG,4)}, {s(sW1S)} offen lds")
        return L
    def w1_dma(self, cnt):
        for _ in range(cnt):
            if self.w1_next >= 28: return
            n = self.w1_next; self.w1_next += 1
            for x in self.w1_dma_text(n): self.w1_tok[n] = self.k(x)

    RL = 222
    def w1_relayout_addr(self):
        k = self.k; r = self.RL
        k(f"""v_lshrrev_b32 v5, 4, {v(vL)}
              v_bfe_u32 {v(r)}, {v(vL)}, 2, 2
              v_lshl_add_u32 {v(r)}, v5, 3, {v(r)}
              v_mul_u32_u24 {v(r)}, 112, {v(r)}
              v_add_u32 {v(r)}, {s(sW1L)}, {v(r)}
              v_and_b32 {v(r+2)}, 3, {v(vL)}
              v_bfe_u32 {v(r+3)}, {v(vL)}, 1, 1
              v_mul_u32_u24 {v(r+3)}, 7168, {v(r+3)}
              v_and_b32 v22, 1, {v(vL)}
              v_lshl_add_u32 {v(r+3)}, v22, 3, {v(r+3)}
              v_add_u32 {v(r+1)}, {v(r)}, {v(r+3)}
              v_lshl_add_u32 {v(r)}, {v(r+2)}, 3, {v(r)}
              v_add_u32 {v(r+2)}, {s(sW1L)}, {v(vL16)}
              v_bfe_u32 {v(r+3)}, {v(vL)}, 1, 2
              v_lshlrev_b32 {v(r+3)}, 2, {v(r+3)}
              v_bfe_u32 v23, {v(vL)}, 3, 1
              v_lshl_add_u32 {v(r+3)}, v23, 1, {v(r+3)}
              v_add_u32 {v(r+3)}, {v(r+3)}, v22
              v_lshl_add_u32 {v(r+3)}, v5, 4, {v(r+3)}
              v_lshlrev_b32 {v(r+3)}, 4, {v(r+3)}
              v_add_u32 {v(r+3)}, {s(sW1L)}, {v(r+3)}""")
    def w1_relayout_items(self, ck, vtemp=False):
        k = self.k; r = self.RL
        R, a = (ACC[1], v) if vtemp else (128, globals()['a'])
        L = [Item(fn=lambda: k.wait(self.w1_tok[14*ck + 13]))]
        if ck == 1: L += [Item(f"v_add_u32 {v(r+i)}, 57344, {v(r+i)}") for i in range(4)]
        for sl in range(2):
            for Tt in range(7):
                for hf in range(2):
                    d = R + (sl*7 + Tt)*4 + 2*hf
                    o = (32*sl + 4*hf)*112
                    if Tt < 6: L.append(Item(f"ds_read_b64_tr_b16 {a(d,2)}, {v(r)} offset:{o + (Tt&1)*7168 + 32*(Tt>>1)}"))
                    else: L.append(Item(f"ds_read_b64_tr_b16 {a(d,2)}, {v(r+1)} offset:{o + 96}"))
        last = L[-1]
        L.append(Item(fn=lambda: k.wait(last.tok)))
        for n in range(14): L.append(Item(f"ds_write_b128 {v(r+3 if n % 7 == 6 else r+2)}, {a(R + n*4, 4)} offset:{n*1024}"))
        return L
    def w1_relayout(self, ck): Queue(self.k, self.w1_relayout_items(ck)).drain()

    JV = 190
    def wd_job_addr(self):
        k = self.k; r = self.JV
        k(f"""s_lshl_b32 {s(T[0])}, s2, 1
              s_lshr_b32 {s(T[1])}, {s(sW)}, 1
              s_add_u32 {s(T[0])}, {s(T[0])}, {s(T[1])}
              s_mul_i32 {s(T[1])}, {s(T[0])}, 4682
              s_lshr_b32 {s(T[1])}, {s(T[1])}, 16
              s_mul_i32 {s(T[2])}, {s(T[1])}, 14
              s_sub_u32 {s(T[2])}, {s(T[0])}, {s(T[2])}
              s_and_b32 {s(T[3])}, {s(T[1])}, 3
              s_lshr_b32 {s(T[1])}, {s(T[1])}, 2
              s_lshl_b32 {s(T[1])}, {s(T[1])}, 7
              s_mul_i32 {s(T[3])}, {s(T[3])}, {8*57344}
              s_add_u32 {s(T[1])}, {s(T[1])}, {s(T[3])}
              s_cmp_lt_u32 s2, 224
              s_cselect_b32 {s(T[3])}, {s(sW)}, 0
              s_bitcmp1_b32 {s(T[3])}, 0
              s_cselect_b32 {s(T[3])}, 0, 0x80000000
              s_mul_i32 {s(T[4])}, {s(T[0])}, {JFS}
              s_add_u32 {s(T[4])}, {s(T[4])}, {WS_JF}
              s_lshr_b32 {s(sJF)}, {s(T[3])}, 1
              s_or_b32 {s(sJF)}, {s(sJF)}, {s(T[4])}
              s_lshl_b32 {s(T[0])}, {s(T[0])}, 12
              s_add_u32 {s(T[0])}, {s(T[0])}, {WS_WDT}
              s_or_b32 {s(T[0])}, {s(T[0])}, {s(T[3])}
              s_or_b32 {s(T[1])}, {s(T[1])}, {s(T[3])}
              v_add_u32 {v(r+5)}, {s(T[0])}, {v(vL16)}
              v_lshrrev_b32 v5, 3, {v(vL)}
              v_and_b32 v22, 3, v5
              v_lshlrev_b32 v22, 3, v22
              v_cmp_gt_u32 vcc, 4, v5
              v_lshl_add_u32 v23, {v(vP7)}, 2, {s(T[1])}
              s_lshl_b32 {s(T[2])}, {s(T[2])}, 2""")
        for g in range(4):
            k(f"""s_add_u32 {s(T[0])}, {s(T[2])}, {g}
                  s_mul_i32 {s(T[1])}, {s(T[0])}, 9363
                  s_lshr_b32 {s(T[1])}, {s(T[1])}, 16
                  s_mul_i32 {s(T[3])}, {s(T[1])}, 7
                  s_sub_u32 {s(T[0])}, {s(T[0])}, {s(T[3])}
                  s_mul_i32 {s(T[1])}, {s(T[1])}, 56
                  s_mul_i32 {s(T[3])}, {s(T[0])}, 0x04040404
                  s_add_u32 {s(T[4])}, {s(T[3])}, 0x13121110
                  s_add_u32 {s(T[3])}, {s(T[3])}, 0x03020100
                  s_cmp_ge_u32 {s(T[0])}, 4
                  s_cselect_b32 {s(T[3])}, {s(T[4])}, {s(T[3])}
                  s_cselect_b32 {s(T[4])}, {sum(x << (8*e) for e, x in enumerate(flist(4)[4:]))}, {s(T[4])}
                  s_cmp_eq_u32 {s(T[0])}, 5
                  s_cselect_b32 {s(T[4])}, {sum(x << (8*e) for e, x in enumerate(flist(5)[4:]))}, {s(T[4])}
                  s_cmp_eq_u32 {s(T[0])}, 6
                  s_cselect_b32 {s(T[4])}, {sum(x << (8*e) for e, x in enumerate(flist(6)[4:]))}, {s(T[4])}
                  v_mov_b32 v5, {s(T[3])}
                  v_mov_b32 {v(r+g)}, {s(T[4])}
                  v_cndmask_b32 v5, {v(r+g)}, v5, vcc
                  v_bfe_u32 v5, v5, v22, 8
                  v_add_u32 v5, {s(T[1])}, v5
                  v_lshl_add_u32 {v(r+g)}, v5, 10, v23""")
        k(f"""s_lshl_b32 {s(sJL)}, {s(sW)}, 12
              s_add_u32 {s(sJL)}, {s(sJL)}, {L_JOB}
              v_lshrrev_b32 v5, 4, {v(vL)}
              v_lshlrev_b32 {v(r+4)}, 10, v5
              v_bfe_u32 v5, {v(vL)}, 2, 2
              v_lshl_add_u32 {v(r+4)}, v5, 7, {v(r+4)}
              v_and_b32 v5, 3, {v(vL)}
              v_lshl_add_u32 {v(r+4)}, v5, 3, {v(r+4)}
              v_add_u32 {v(r+4)}, {s(sJL)}, {v(r+4)}""")
    def wd_job_issue(self):
        for g in range(4): self.job_tok = self.dma(self.JV+g, RD, '0', f"s_add_u32 m0, {s(sJL)}, {1024*g}")
    def wd_job_finish(self):
        k = self.k; r = self.JV
        k.wait(self.job_tok)
        t = {}
        for nt in range(4):
            for hf in range(2): t[nt] = k(f"ds_read_b64_tr_b16 {a(128 + 4*nt + 2*hf, 2)}, {v(r+4)} offset:{hf*512 + nt*32}")
        for nt in range(4):
            k.wait(t[nt])
            self.job_st = k(f"buffer_store_dwordx4 {a(128 + 4*nt, 4)}, {v(r+5)}, {s(RW,4)}, 0 offen offset:{1024*nt} sc1")
    WDV = 226
    def wd_addr(self):
        self.k(f"""s_and_b32 {s(T[0])}, {s(sJ)}, 7
                   s_lshl_b32 {s(T[0])}, {s(T[0])}, 2
                   s_add_u32 {s(T[0])}, {s(T[0])}, {s(sW)}
                   s_mul_i32 {s(sJFp)}, {s(T[0])}, {14*JFS}
                   s_add_u32 {s(sJFp)}, {s(sJFp)}, {WS_JF}
                   s_mul_i32 {s(T[0])}, {s(T[0])}, {14*4096}
                   s_add_u32 {s(T[0])}, {s(T[0])}, {WS_WDT}
                   v_add_u32 {v(vWd[0])}, {s(T[0])}, {v(vL16)}
                   v_add_u32 {v(vWd[1])}, 32768, {v(vWd[0])}
                   v_min_u32 v226, 13, {v(vL)}
                   v_mul_u32_u24 v226, {JFS}, v226""")
    def wd_touch_text(self, i):
        return f"buffer_load_dword {v(228+i)}, v227, {s(RW,4)}, {k4(i)} offen offset:{3072*i} sc1"
    def wd_text(self, n):
        U, nt = divmod(n, 4)
        return f"buffer_load_dwordx4 {a(4*n, 4)}, {v(vWd[U >> 3])}, {s(RW,4)}, {k4(U & 7)} offen offset:{1024*nt}{self.o.get('wdm', ' sc1')}"

    def phase0(self):
        k = self.k
        k(f"""v_lshrrev_b32 v5, 4, {v(vL)}
              v_bfe_u32 v48, {v(vL)}, 2, 2
              v_lshl_add_u32 v49, v5, 4, v48
              v_lshlrev_b32 v49, 7, v49
              v_bfe_u32 v50, {v(vL)}, 1, 1
              s_lshl_b32 {s(T[0])}, {s(sW)}, 1
              v_add_u32 v50, {s(T[0])}, v50
              v_and_b32 v48, 2, v48
              v_xor_b32 v50, v50, v48
              v_and_b32 v48, 1, v5
              v_lshlrev_b32 v48, 2, v48
              v_xor_b32 v50, v50, v48
              v_lshl_add_u32 v49, v50, 4, v49
              v_and_b32 v48, 1, {v(vL)}
              v_lshl_add_u32 v49, v48, 3, v49
              v_add_u32 v49, {L_K}, v49
              v_xor_b32 v50, 64, v49
              v_lshlrev_b32 v51, 12, v27
              v_lshl_add_u32 v51, v5, 5, v51
              s_lshl_b32 {s(T[6])}, {s(sJ)}, 7
              s_add_u32 {s(T[6])}, {s(T[6])}, {WS_KVT}
              v_mul_u32_u24 v52, {self.o.get('xs', 4)//4}, {v(vP31)}
              s_mul_i32 {s(T[7])}, {s(sX)}, {32*self.o.get('xs', 4)}
              s_add_u32 {s(T[7])}, {s(T[7])}, {WS_XCCF}
              s_lshl_b32 {s(T[0])}, {s(sX)}, 9
              s_lshl_b32 {s(T[1])}, {s(sW)}, 7
              s_lshl_b32 {s(T[2])}, {s(sJ)}, 2
              s_add_u32 {s(T[1])}, {s(T[1])}, {s(T[2])}
              s_add_u32 {s(T[0])}, {s(T[0])}, {WS_KVF}
              s_add_u32 {s(T[5])}, {s(T[1])}, {s(T[0])}
              s_xor_b32 {s(T[0])}, {s(sN)}, {s(sXCC)}
              s_mov_b32 {s(sMODE)}, 0
              s_mov_b32 {s(sEXP)}, {s(sN)}""")
        k.wait(self.sh_tok)
        k("s_barrier")
        self.stamp('kv_in')
        xh = k(f"buffer_load_dword v53, v52, {s(RW,4)}, {s(T[7])} offen sc1")
        KR, VR, KS, O, VU, P = 56, 68, 78, 88, 104, 120
        k(f"ds_read_b64_tr_b16 {v(KR,2)}, v50 offset:512")
        for i in range(4): k(f"ds_read_b64_tr_b16 {v(KR+2+2*i,2)}, v49 offset:{1024 + 512*i}")
        for i in range(4): lastv = k(f"ds_read_b64_tr_b16 {v(VR+2*i,2)}, v49 offset:{L_V - L_K + 512*i}")
        k("v_alignbit_b32 v54, v30, v30, 16\nv_alignbit_b32 v55, v31, v31, 16")
        k.wait(('lg', lastv[1] - 4))
        for aa in range(-1, 8): k(f"v_alignbit_b32 {v(KS+1+aa)}, {v(KR+2+aa)}, {v(KR+1+aa)}, 16")
        for aa in range(8):
            k(f"v_dot2_f32_bf16 {v(O+2*aa)}, {v(KS+aa)}, v55, 0")
            k(f"v_dot2_f32_bf16 {v(O+2*aa+1)}, {v(KR+1+aa)}, v55, 0")
        for aa in range(8):
            k(f"v_dot2_f32_bf16 {v(O+2*aa)}, {v(KS+1+aa)}, v54, {v(O+2*aa)}")
            k(f"v_dot2_f32_bf16 {v(O+2*aa+1)}, {v(KR+2+aa)}, v54, {v(O+2*aa+1)}")
        k.wait(lastv)
        for g in range(2):
            for aa in range(4*g, 4*g+4):
                k(f"v_lshlrev_b32 {v(VU+2*aa)}, 16, {v(VR+aa)}")
                k(f"v_and_b32 {v(VU+2*aa+1)}, 0xffff0000, {v(VR+aa)}")
            for aa in range(4*g, 4*g+4): k(f"v_pk_mul_f32 {v(O+2*aa,2)}, {v(O+2*aa,2)}, {v(VU+2*aa,2)}")
            for e in range(4): k(f"v_cvt_pk_bf16_f32 {v(P+4*g+e)}, {v(O+8*g+7-2*e)}, {v(O+8*g+6-2*e)}")
            st = k(f"buffer_store_dwordx4 {v(P+4*g,4)}, v51, {s(RW,4)}, {s(T[6])} offen offset:{16*g}")
        self.stamp('kv_st')
        self.toeplitz_write()
        slow, back, done = k.label(), k.label(), k.label()
        k.wait(xh)
        k(f"v_cmp_ne_u32 vcc, {s(T[0])}, v53\ns_cbranch_vccnz {slow}")
        k.place(back)
        self.tail.append([f"{slow}:",
            f"buffer_load_dword v53, v52, {s(RW,4)}, {s(T[7])} offen sc1", "s_waitcnt vmcnt(0)",
            f"v_xor_b32 v54, {s(sN)}, v53", "v_cmp_lt_u32 vcc, 15, v54", f"s_cbranch_vccz {done}",
            f"s_sub_u32 {s(sSPIN)}, {s(sSPIN)}, 1", f"s_cbranch_scc0 {slow}", "s_branch L_END",
            f"{done}:", f"v_cmp_ne_u32 vcc, {s(T[0])}, v53", f"s_cbranch_vccz {back}",
            f"s_mov_b32 {s(sMODE)}, 1", f"s_not_b32 {s(sEXP)}, {s(sN)}", f"s_branch {back}"])
        if not self.o.get('fake_kv'): self.publish(st, s(T[5]))
        self.stamp('kv_pub')

    def toeplitz_write(self):
        k = self.k
        k.wait(self.h_tok)
        k(f"v_add_u32 v48, {SCR}, v29")
        for ch in range(2):
            k(f"ds_write_b128 v48, {v(32+8*ch,4)} offset:{H_E(ch) - SCR}")
            k(f"ds_write_b128 v48, {v(36+8*ch,4)} offset:{H_O(ch) - SCR}")
        skip = k.label()
        k(f"s_cmp_lg_u32 {s(sW)}, 0\ns_cbranch_scc1 {skip}")
        k(f"""v_readfirstlane_b32 {s(T[1])}, v32
              v_readfirstlane_b32 {s(T[2])}, v40
              v_cmp_eq_u32 vcc, 28, {v(vP7)}
              v_add_u32 v49, {SCR}, {v(vP7)}
              s_lshl_b32 {s(T[1])}, {s(T[1])}, 16
              s_lshl_b32 {s(T[2])}, {s(T[2])}, 16
              v_mov_b32 v50, 0
              v_mov_b32 v51, 0
              v_mov_b32 v54, {s(T[1])}
              v_mov_b32 v55, {s(T[2])}
              v_cndmask_b32 v54, v50, v54, vcc
              v_cndmask_b32 v55, v50, v55, vcc
              ds_write_b32 v49, v50 offset:{H_E(0) - 32 - SCR}
              ds_write_b32 v49, v50 offset:{H_E(1) - 32 - SCR}
              ds_write_b32 v49, v54 offset:{H_O(0) - 32 - SCR}
              ds_write_b32 v49, v55 offset:{H_O(1) - 32 - SCR}
              v_lshlrev_b32 v49, 3, {v(vL)}
              v_add_u32 v49, {L_U}, v49
              ds_write_b64 v49, v[50:51]
              ds_write_b64 v49, v[50:51] offset:{U_S}""")
        k.place(skip)

    YA = 146
    def front_addr(self):
        k = self.k; o = self.o; Y = self.YA; yfs = o.get('yfs', 4)
        k(f"""v_and_b32 v24, 15, {v(vL)}
              v_lshrrev_b32 v25, 4, {v(vL)}
              v_lshlrev_b32 v5, 3, v25
              v_sub_u32 v26, v24, v5
              v_add_u32 v26, 9, v26
              v_and_b32 v5, 1, v26
              v_sub_u32 v26, v26, v5
              v_lshlrev_b32 v26, 1, v26
              v_mul_u32_u24 v5, {H_O(0) - H_E(0)}, v5
              v_add_u32 v26, v26, v5
              s_lshr_b32 {s(T[0])}, {s(sW)}, 1
              s_mul_i32 {s(T[2])}, {s(T[0])}, {H_E(1) - H_E(0)}
              s_and_b32 {s(T[1])}, {s(sW)}, 1
              s_lshl_b32 {s(T[3])}, {s(T[1])}, 8
              s_add_u32 {s(T[2])}, {s(T[2])}, {s(T[3])}
              s_add_u32 {s(T[2])}, {s(T[2])}, {H_E(0)}
              v_add_u32 v152, {s(T[2])}, v26
              s_mul_i32 {s(T[4])}, {s(T[0])}, {U_S}
              s_add_u32 {s(T[4])}, {s(T[4])}, {L_U + 512}
              s_lshl_b32 {s(T[2])}, {s(T[1])}, 11
              s_add_u32 {s(sUm0)}, {s(T[4])}, {s(T[2])}
              s_sub_u32 {s(T[4])}, {s(T[4])}, {s(T[3])}
              s_sub_u32 {s(T[4])}, {s(T[4])}, 224
              v_lshlrev_b32 v140, 5, v24
              v_lshl_add_u32 v140, v25, 4, v140
              v_add_u32 v140, {s(T[4])}, v140
              s_lshl_b32 {s(T[0])}, {s(sX)}, 9
              s_lshr_b32 {s(T[1])}, {s(sJ)}, 3
              s_lshl_b32 {s(T[1])}, {s(T[1])}, 7
              s_add_u32 {s(T[1])}, {s(T[0])}, {s(T[1])}
              s_add_u32 {s(sKVFp)}, {s(T[1])}, {WS_KVF}
              s_lshl_b32 {s(T[1])}, {s(sJ)}, 4
              s_add_u32 {s(T[0])}, {s(T[0])}, {s(T[1])}
              s_add_u32 {s(sYld)}, {s(T[0])}, {WS_YP}
              s_lshl_b32 {s(T[0])}, {s(sX)}, 18
              s_lshl_b32 {s(T[1])}, {s(sJ)}, 13
              s_add_u32 {s(T[0])}, {s(T[0])}, {s(T[1])}
              s_lshl_b32 {s(T[2])}, {s(sW)}, 11
              s_add_u32 {s(T[1])}, {s(T[0])}, {s(T[2])}
              s_add_u32 {s(sKVs)}, {s(T[1])}, {WS_KVT}
              s_lshl_b32 {s(T[2])}, {s(sW)}, 10
              s_add_u32 {s(T[1])}, {s(T[0])}, {s(T[2])}
              s_add_u32 {s(sYst)}, {s(T[1])}, {WS_YP}
              v_lshlrev_b32 v141, 5, v24
              v_lshrrev_b32 v5, 1, v25
              v_lshl_add_u32 v141, v5, 4, v141
              v_and_b32 v5, 1, v25
              v_xor_b32 v5, 1, v5
              v_lshl_add_u32 v141, v5, 3, v141
              s_lshl_b32 {s(T[0])}, {s(sW)}, 9
              s_add_u32 {s(T[1])}, {s(T[0])}, {L_U + 512}
              v_add_u32 v141, {s(T[1])}, v141
              s_add_u32 {s(T[1])}, {s(T[2])}, {L_YT}
              v_add_u32 {v(Y+3)}, {s(T[1])}, {v(vL16)}
              s_lshl_b32 {s(T[0])}, {s(sW)}, 12
              s_add_u32 {s(T[0])}, {s(T[0])}, {L_CRED}
              v_add_u32 v142, {s(T[0])}, {v(vL16)}
              s_add_u32 {s(T[0])}, {s(T[2])}, {L_CRED}
              v_add_u32 v143, {s(T[0])}, {v(vL16)}
              v_lshlrev_b32 v144, 6, v24
              v_lshl_add_u32 v144, v25, 4, v144
              v_add_u32 v145, 4096, v144
              s_lshl_b32 {s(T[0])}, {s(sX)}, 5
              s_add_u32 {s(T[0])}, {s(T[0])}, {s(sJ)}
              s_lshl_b32 {s(T[0])}, {s(T[0])}, 2
              s_add_u32 {s(T[0])}, {s(T[0])}, {s(T[2])}
              s_mul_i32 {s(T[0])}, {s(T[0])}, {yfs//4}
              s_add_u32 {s(sYFs)}, {s(T[0])}, {WS_YF}
              v_lshlrev_b32 {v(Y+2)}, 2, v0
              v_mul_u32_u24 {v(Y)}, {yfs}, v0
              s_lshr_b32 {s(T[0])}, {s(sX)}, 1
              s_mul_i32 {s(T[0])}, {s(T[0])}, {256*yfs}
              s_add_u32 {s(sYFp)}, {s(T[0])}, {WS_YF}
              v_lshlrev_b32 {v(Y+1)}, 13, v0
              v_add_u32 {v(Y+2)}, {L_YT}, {v(Y+2)}""")
        for p in range(1, 8): k(f"v_add_u32 {v(152+p)}, {512*p}, v152")

    def conv_finish(self, h, C, pk):
        KV, P = 32, 160 + 16*h
        W = [f"ds_write_b128 v142, {v(C + 16*h + 4*c, 4)} offset:{16384*h + 1024*c}" for c in range(4)]
        R = [f"ds_read_b64 {v(KV + 4*h + 2*ch, 2)}, v141 offset:{2048*h + ch*U_S}" for ch in range(2)]
        R2 = [f"ds_read_b128 {v(P + 4*w, 4)}, v143 offset:{16384*h + 4096*w}" for w in range(4)]
        L = []
        for ch in range(2):
            if pk: L += [f"v_pk_add_f32 {v(P+8*ch+e,2)}, {v(P+8*ch+e,2)}, {v(P+8*ch+4+e,2)}" for e in (0, 2)]
            else: L += [f"v_add_f32 {v(P+8*ch+e)}, {v(P+8*ch+e)}, {v(P+8*ch+4+e)}" for e in range(4)]
        D = [f"v_dot2_f32_bf16 {v(P+8*ch+e)}, {v(KV+4*h+2*ch+(1-(e>>1)))}, {s(sD+2*ch+(1-(e&1)))}, {v(P+8*ch+e)}" for e in range(4) for ch in range(2)]
        E = [f"v_cvt_pk_bf16_f32 {v(P+4+e)}, {v(P+e)}, {v(P+8+e)}" for e in range(4)]
        E.append(f"buffer_store_dwordx4 {v(P+4,4)}, {v(144+h)}, {s(RW,4)}, {s(sYst)} offen sc1")
        return W, R, R2, L, D, E

    def conv(self):
        k = self.k; o = self.o; Y = self.YA
        def tz(rr, p):
            d = (rr*8 + p)*4
            return [f"ds_read2_b32 {a(d,2)}, {v(152+p)} offset0:{16*rr} offset1:{16*rr+1}",
                    f"ds_read2_b32 {a(d+2,2)}, {v(152+p)} offset0:{16*rr+2} offset1:{16*rr+3}"]
        first = [x for rr in range(4) for p in range(4) for x in tz(rr, p)]
        second = [x for rr in range(4) for p in range(4, 8) for x in tz(rr, p)]
        k.wait_lg0()
        k("s_barrier")
        n0 = o.get('toep0', 20)
        if not o.get('fake_kv'): ph = self.poll_issue(vP31, s(sKVFp))
        for x in first[:n0]: k(x)
        self.stamp('toep')
        if not o.get('fake_kv'): self.poll_check(ph)
        self.stamp('kv_seen')
        k(f"s_mov_b32 m0, {s(sUm0)}")
        k(f"buffer_load_dwordx4 {v(vL16)}, {s(RW,4)}, {s(sKVs)} offen sc1 lds")
        tok = k(f"buffer_load_dwordx4 {v(vL16)}, {s(RW,4)}, {s(sKVs)} offen offset:1024 sc1 lds")
        for x in first[n0:]: k(x)
        k.wait(tok)
        k("s_barrier")
        self.stamp('u_in')
        B, C = 64, 96
        uses = [(0, rr, q) for rr in range(4) for q in range(4)] + [(1, rr, q) for rr in range(4) for q in range(8)]
        bt = {}
        def rdB(i):
            part, rr, q = uses[i]
            bt[i] = k(f"ds_read_b128 {v(B + 4*(i % 8), 4)}, v140 offset:{512*q + 64*(3-rr)}")
        for i in range(8): rdB(i)
        pre = []
        if o.get('jpos', 0) == 0: self.wd_job_issue()
        if not o.get('joint', 1): self.q_load()
        tq = Queue(k, [Item(x) for x in second]); tits = list(tq.q)
        n2 = o.get('n2', 11); dq = []
        for i in range(n2):
            if self.w1_next >= 14: break
            n = self.w1_next; self.w1_next += 1
            for x in self.w1_dma_text(n): dq.append(Item(x, at=o.get('n2at', 2) + i*(o.get('n2span', 130) // n2), tag=n))
        dits = list(dq)
        if o.get('qpos', 1) == 2:
            dq.append(Item(fn=self.q_issue, cost=2, at=o.get('q_at', 30))); dq.sort(key=lambda x: x.at)
        dq = Queue(k, dq)
        side = Queue(k, []); ybox = []
        m = 0; started = set()
        for i, (part, rr, q) in enumerate(uses):
            need = []
            if part == 1 and q == 0:
                while any(x.tok is None for x in tits[:8*rr + 8]): tq.emit(tq.q[0])
                need = [tits[8*rr + 7].tok]
            if part == 1 and rr == 0 and q == 0:
                W, R, R2, L, D, E = self.conv_finish(0, C, False)
                its = [Item(x, cost=2, at=m + 3 + 2*n) for n, x in enumerate(W)] + [Item(x) for x in R]
                its += [Item(fn=lambda: k.wait_lg0(), at=m + 16), Item(fn=lambda: k("s_barrier"))]
                its += [Item(x) for x in R2]; lastr = its[-1]
                its += [Item(fn=lambda: k.wait(lastr.tok), at=m + 26)] + [Item(x) for x in L]
                its += [Item(fn=lambda: [k(x) for x in D], cost=2)] + [Item(x) for x in E]
                ysA = its[-1]
                if not o.get('joint', 1): its += [Item(fn=lambda: k.wait(ysA.tok), at=o.get('ya_pub', 118)), Item(fn=lambda: self.flag_store(s(sYFs), 0, False))]
                side = Queue(k, its)
            if i % 2 == 0: k.wait(bt[i + 1], *need)
            ps = range(4 - q) if part == 0 else range(max(0, 4 - q), 8 - q)
            for n, p in enumerate(ps):
                c = C + 4*(p + q)
                src = v(c, 4) if (p + q) in started else '0'
                started.add(p + q)
                k(f"v_mfma_f32_16x16x32_bf16 {v(c,4)}, {a((rr*8+p)*4,4)}, {v(B + 4*(i % 8),4)}, {src}")
                m += 1
                cap = 2
                if n == len(ps) - 1: cap -= (1 if i + 8 < len(uses) else 0) + (i % 2)
                cap = side.fill(cap, m)
                cap = dq.fill(cap, m)
                tq.fill(min(cap, 1))
            if i + 8 < len(uses): rdB(i + 8)
        print('conv left:', side.cost(), dq.cost())
        dq.drain()
        for x in dits: self.w1_tok[x.tag] = x.tok
        self.stamp('conv_mfma')
        W, R, R2, L, D, E = self.conv_finish(1, C, True)
        for x in R + W: k(x)
        side.drain()
        k.wait_lg0()
        k("s_barrier")
        for x in R2: k(x)
        if not o.get('joint', 1): pa = self.poll_issue(Y, s(sYFp))
        k.wait_lg0()
        self.ysB = self.run(L + D + E)[-1].tok
        self.stamp('y_st')
        if not o.get('joint', 1):
            self.poll_check(pa, False)
            self.stamp('y_seen')

    def y_joint(self):
        k = self.k; o = self.o; Y = self.YA
        self.wd_job_finish()
        self.persistent()
        if not o.get('fake_y'):
            self.publish(self.ysB, s(sYFs), local=False)
            self.stamp('y_pub')
            if not o.get('jlate', 0): self.publish(self.job_st, s(sJF), local=False)
        k("s_barrier")
        done0 = self.w1_next >= 14
        if o.get('qpos', 1) == 1: self.q_load()
        self.w1_dma(o.get('n3', 4))
        self.w1_relayout_addr()
        self.wd_addr()
        k(f"s_add_u32 {s(T[8])}, {s(sYld)}, 4096")
        if o.get('qpos', 1) == 2: self.q_stats()
        if o.get('jlate', 0): self.publish(self.job_st, s(sJF), local=False)
        if done0: self.w1_relayout(0)
        if o.get('qpos', 1) == 1: self.q_stats()
        k(f"s_mul_i32 {s(sAG[0])}, {s(sW)}, 1088\ns_add_u32 {s(sAG[0])}, {s(sAG[0])}, {L_AG2}\ns_lshl_b32 {s(sAG[1])}, {s(sW)}, 8\ns_add_u32 {s(sAG[1])}, {s(sAG[1])}, {L_AG2}")
        self.run(self.ag_addr(100))
        self.stamp('rl0')
        if not o.get('fake_y'): self.poll(Y, s(sYFp), local=False)
        else: self.publish(self.job_st, s(sJF), local=False)
        self.stamp('y_seen')
        t0 = k(f"buffer_load_dwordx4 v[32:35], {v(Y+1)}, {s(RW,4)}, {s(sYld)} offen sc1")
        t1 = k(f"buffer_load_dwordx4 v[36:39], {v(Y+1)}, {s(RW,4)}, {s(T[8])} offen sc1")
        if o.get('jlate', 0) < 2: pj = self.poll_issue(226, s(sJFp), 0, 229)
        self.w1_dma(o.get('n4', 6))
        if o.get('tch_h', 0) == 1: k(self.touch_h_text())
        if not done0 and self.w1_next >= 14: self.w1_relayout(0); done0 = True
        k.wait(t0)
        for e in range(4): k(f"ds_write_b32 {v(Y+2)}, {v(32+e)} offset:{1024*e}")
        k.wait(t1)
        for e in range(4): k(f"ds_write_b32 {v(Y+2)}, {v(36+e)} offset:{1024*(4+e)}")
        k.wait_lg0()
        k("s_barrier")
        for h in range(2): k(f"ds_read_b128 {v(YS[h],4)}, {v(Y+3)} offset:{4096*h}")
        k.wait_lg0()
        self.stamp('y_in')
        its = self.run(self.gate_norm([0, 1], self.N0, 0, 56))
        sts = self.a_out([0, 1], 56, 0) if o.get('ag', 1) else [x.tok for x in its if 'store' in x.text]
        self.stamp('a_st')
        if o.get('jlate', 0) < 2: self.poll_check(pj, False)
        if done0: self.gemm1_start(0)
        self.publish(sts[0], s(sAFs), 0)
        self.publish(sts[1], s(sAFs), 512)
        k(f"s_or_b32 {s(T[0])}, s2, {s(sW)}\ns_cmp_eq_u32 {s(T[0])}, 0\ns_cselect_b32 {s(T[0])}, 0, 0x40000000")
        k(f"buffer_store_dword {v(vNON)}, {v(vL0)}, {s(RW,4)}, {s(T[0])} offen sc1")
        self.stamp('a_pub')
        self.rl1_done = bool(o.get('rl1_front', 0)); self.rowb_done = True
        self.wd0 = o.get('wd0', 0)
        for n in range(self.wd0): k(self.wd_text(n))
        self.w1_dma(28 if self.rl1_done else o.get('n5', 4))
        if self.w1_next < 28:
            for i in range(7): k(f"v_mov_b32 {v(126+i)}, {v(self.W1V+i)}")
            self.W1V = 126
        if not done0: self.w1_relayout(0)
        if self.rl1_done: self.w1_relayout(1)
        if self.rl1_done or not done0: k.wait_lg0(); k("s_barrier")
        if not done0: self.gemm1_start(0)

    def stats(self, rows, out, t0, scale=None):
        L = []; n = len(rows)
        for i, x in enumerate(rows):
            b = t0 + 6*i
            L += [f"v_pk_add_f32 {v(b,2)}, {v(x,2)}, {v(x+2,2)}", f"v_pk_mul_f32 {v(b+2,2)}, {v(x,2)}, {v(x,2)}",
                  f"v_pk_add_f32 {v(b+4,2)}, {v(x+4,2)}, {v(x+6,2)}"]
            L += [f"v_pk_fma_f32 {v(b+2,2)}, {v(x+e,2)}, {v(x+e,2)}, {v(b+2,2)}" for e in (2, 4, 6)]
            L += [f"v_pk_add_f32 {v(b,2)}, {v(b,2)}, {v(b+4,2)}", f"v_add_f32 {v(b+2)}, {v(b+2)}, {v(b+3)}", f"v_add_f32 {v(b)}, {v(b)}, {v(b+1)}"]
        for ctl in ("row_ror:8 row_mask:0xf", "row_ror:4 row_mask:0xf", "row_ror:2 row_mask:0xf", "row_ror:1 row_mask:0xf",
                    "row_bcast:15 row_mask:0xa", "row_bcast:31 row_mask:0xc"):
            for i in range(n):
                for e in (2, 0):
                    r = t0 + 6*i + e
                    L.append(f"v_add_f32_dpp {v(r)}, {v(r)}, {v(r)} {ctl} bank_mask:0xf")
        for i in range(n):
            b = t0 + 6*i
            L += [f"v_mul_f32 {v(b)}, 0x3b000000, {v(b)}", f"v_mul_f32 {v(b+2)}, 0x3b000000, {v(b+2)}",
                  f"v_fma_f32 {v(b+2)}, -{v(b)}, {v(b)}, {v(b+2)}", f"v_max_f32 {v(b+2)}, 0, {v(b+2)}",
                  f"v_add_f32 {v(b+2)}, 0x3727c5ac, {v(b+2)}", f"v_rsq_f32 {v(b+2)}, {v(b+2)}"]
            if scale: L.append(f"v_mul_f32 {v(b+2)}, {f32(scale)}, {v(b+2)}")
            L += [f"v_mul_f32_e64 {v(b)}, -{v(b)}, {v(b+2)}", f"v_readlane_b32 {s(out[i])}, {v(b+2)}, 63",
                  f"v_readlane_b32 {s(out[i]+2)}, {v(b)}, 63", f"v_mov_b32 {v(b+4)}, {s(out[i]+2)}"]
        return L
    def unpack(self, dst, src):
        L = []
        for e in range(4): L += [f"v_lshlrev_b32 {v(dst+2*e)}, 16, {v(src+e)}", f"v_and_b32 {v(dst+2*e+1)}, 0xffff0000, {v(src+e)}"]
        return L
    def affine(self, dst, x, sp, vb):
        return [f"v_pk_fma_f32 {v(dst+e,2)}, {v(x+e,2)}, {s(sp,2)}, {v(vb,2)} op_sel_hi:[1,0,0]" for e in (0, 2, 4, 6)]
    def run(self, L, look=12):
        its = [Item(x) for x in L]
        Queue(self.k, its, look).drain()
        return its

    def gate_norm(self, halves, nrm, layer, R):
        L = []; sp = [36, 40]
        t0 = R + 16*len(halves)
        for i, h in enumerate(halves):
            L += self.unpack(R + 16*i, YS[h])
            L += [f"v_pk_fma_f32 {v(XS[h]+e,2)}, {v(nrm[h]+e,2)}, {v(R+16*i+e,2)}, {v(XS[h]+e,2)}" for e in (0, 2, 4, 6)]
        L += self.stats([XS[h] for h in halves], sp[:len(halves)], t0, LOG2E)
        for i, h in enumerate(halves):
            b = R + 16*i
            L += self.affine(b, XS[h], sp[i], t0 + 6*i + 4)
            L += [f"v_cvt_pk_bf16_f32 {v(b+8+e)}, {v(b+2*e)}, {v(b+2*e+1)}" for e in range(4)]
            if self.o.get('ag', 1): L.append(f"ds_write_b128 {v(self.agw)}, {v(b+8,4)} offset:{ag_off(layer, h)}")
            else: L.append(f"buffer_store_dwordx4 {v(b+8,4)}, {v(vAst)}, {s(RW,4)}, {s(sHALF) if h else 0} offen")
            if layer == 1:
                L += [f"v_cvt_pk_bf16_f32 {v(b+12+e)}, {v(XS[h]+2*e)}, {v(XS[h]+2*e+1)}" for e in range(4)]
                L.append(f"buffer_store_dwordx4 {v(b+12,4)}, {v(vFr)}, {s(RW,4)}, {s(sFR[h])} offen{self.o.get('x3m', '')}")
        return L

    def ag_addr(self, r):
        if not self.o.get('ag', 1): return []
        self.agw, self.agr = r, r + 1
        return [f"v_bfe_u32 {v(r+1)}, {v(vL16)}, 4, 2", f"v_mul_u32_u24 {v(r+1)}, 1088, {v(r+1)}", f"v_lshrrev_b32 {v(r)}, 6, {v(vL16)}",
                f"v_lshl_add_u32 {v(r+1)}, {v(r)}, 4, {v(r+1)}", f"v_add_u32 {v(r+1)}, {s(sAG[1])}, {v(r+1)}", f"v_add_u32 {v(r)}, {s(sAG[0])}, {v(vL16)}"]
    def a_out(self, halves, R, layer, between=None):
        k = self.k
        if between: between()
        k.wait_lg0(); k("s_barrier")
        t = [k(f"ds_read_b128 {v(R + 4*i, 4)}, {v(self.agr)} offset:{ag_off(layer, h)}") for i, h in enumerate(halves)]
        out = []
        for i, h in enumerate(halves):
            k.wait(t[i])
            out.append(k(f"buffer_store_dwordx4 {v(R + 4*i, 4)}, {v(vAst)}, {s(RW,4)}, {s(sHALF) if h else 0} offen"))
        return out

    N0 = [40, 118]
    def q_stats(self):
        k = self.k
        k.wait(self.q_tok)
        L = []
        for h in range(2): L += self.unpack(XS[h], 204 + 4*h)
        L += self.stats(XS, [36, 40], 128)
        for h in range(2): L += self.affine(self.N0[h], XS[h], [36, 40][h], 128 + 6*h + 4)
        self.run(L)

    def y_row(self, h, t, raw):
        k = self.k; Y = self.YA
        k.wait(t)
        for e in range(4): k(f"ds_write_b32 {v(Y+2)}, {v(raw+e)} offset:{4096*h + 1024*e}")
        k.wait_lg0()
        k("s_barrier")
        k(f"ds_read_b128 {v(YS[h],4)}, {v(Y+3)} offset:{4096*h}")
        k.wait_lg0()

    def y_in(self):
        k = self.k; o = self.o; Y = self.YA
        t0 = k(f"buffer_load_dwordx4 v[32:35], {v(Y+1)}, {s(RW,4)}, {s(sYld)} offen sc1")
        k(f"s_add_u32 {s(sYFs)}, {s(sYFs)}, {1024*o.get('yfs', 4)}\ns_add_u32 {s(sYFp)}, {s(sYFp)}, {1024*o.get('yfs', 4)}\ns_add_u32 {s(sYld)}, {s(sYld)}, 4096")
        self.publish(self.ysB, s(sYFs), local=False)
        self.stamp('y_pub')
        if o.get('jpos', 0) == 0: self.wd_job_finish()
        self.q_stats()
        self.persistent()
        k("s_barrier")
        self.w1_dma(o.get('n4', 6))
        self.y_row(0, t0, 32)
        self.stamp('y_in')
        its = self.run(self.gate_norm([0], self.N0, 0, 56))
        st = [x.tok for x in its if 'store' in x.text][0]
        self.stamp('a_st')
        for i in range(4): k(f"v_mov_b32 {v(110+i)}, {v(Y+i)}")
        self.YA = 110
        if self.w1_next + o.get('n5', 28) < 28:
            for i in range(7): k(f"v_mov_b32 {v(126+i)}, {v(self.W1V+i)}")
            self.W1V = 126
        self.w1_relayout_addr()
        self.publish(st, s(sAFs), 0)
        self.flag_store(s(sJF), 0, False)
        k(f"s_or_b32 {s(T[0])}, s2, {s(sW)}\ns_cmp_eq_u32 {s(T[0])}, 0\ns_cselect_b32 {s(T[0])}, 0, 0x40000000")
        k(f"buffer_store_dword {v(vNON)}, {v(vL0)}, {s(RW,4)}, {s(T[0])} offen sc1")
        self.stamp('a_pub')
        self.w1_dma(o.get('n5', 28))
        self.w1_relayout(0)
        self.wd_addr()
        self.rl1_done = bool(o.get('rl1_front', 1))
        if self.rl1_done:
            if o.get('rowb_front', 1): self.row_b0()
            self.w1_relayout(1)
        k.wait_lg0(); k("s_barrier")
        self.stamp('w1')
        self.gemm1_start(0)

    def row_b0(self, h0=None):
        k = self.k; Y = self.YA
        if h0 is None:
            self.poll(Y, s(sYFp), local=False)
            h0 = k(f"buffer_load_dwordx4 v[106:109], {v(Y+1)}, {s(RW,4)}, {s(sYld)} offen sc1")
        self.y_row(1, h0, 106)
        its = self.run(self.gate_norm([1], self.N0, 0, ACC[1]))
        self.aB_tok = [x.tok for x in its if 'store' in x.text][0]
        self.rowb_done = True
        if self.o.get('rowb_front', 1) and self.rl1_done: self.publish(self.aB_tok, s(sAFs), 512)

    def epilogue1(self, B, half, off, pk, sc=''):
        L = []; so = s(sHH) if half else '0'
        if not sc and self.o.get('hst_nt'): sc = ' nt'
        def grp(g, u, n, outs, t):
            for e in range(n): L.append(f"v_exp_f32_e64 {v(t+e)}, -{v(g+e)}")
            if pk:
                for e in range(0, n, 2): L.append(f"v_pk_mul_f32 {v(u+e,2)}, {v(g+e,2)}, {v(u+e,2)}")
                for e in range(0, n, 2): L.append(f"v_pk_fma_f32 {v(t+e,2)}, {v(t+e,2)}, {s(sC2,2)}, {s(sC2,2)}")
            else:
                for e in range(n): L.append(f"v_mul_f32 {v(u+e)}, {v(g+e)}, {v(u+e)}")
                for e in range(n): L.append(f"v_fma_f32 {v(t+e)}, {v(t+e)}, {s(sC2)}, {s(sC2)}")
            for e in range(n): L.append(f"v_rcp_f32 {v(t+e)}, {v(t+e)}")
            if pk:
                for e in range(0, n, 2): L.append(f"v_pk_mul_f32 {v(u+e,2)}, {v(u+e,2)}, {v(t+e,2)}")
            else:
                for e in range(n): L.append(f"v_mul_f32 {v(u+e)}, {v(u+e)}, {v(t+e)}")
            for e in range(0, n, 2): L.append(f"v_cvt_pk_bf16_f32 {v(outs[e//2])}, {v(u+e)}, {v(u+e+1)}")
        grp(B, B+4, 4, [B, B+1], TMP)
        grp(B+8, B+12, 4, [B+2, B+3], TMP+4)
        L.append(f"buffer_store_dwordx4 {v(B,4)}, {v(vHm)}, {s(RW,4)}, {so} offen offset:{off}{sc}")
        grp(B+16, B+20, 4, [B+8, B+9], TMP)
        grp(B+24, B+26, 2, [B+10], TMP+4)
        Z, C, A_ = B+4, B+5, B+6
        L += [f"v_mov_b32 {v(C)}, {v(B+8)}", f"v_mov_b32 {v(A_)}, {v(B+9)}", f"v_mov_b32 {v(Z)}, {v(B+10)}",
              f"v_permlane32_swap_b32 {v(A_)}, {v(B+11)}", f"v_permlane32_swap_b32 {v(C)}, {v(Z)}",
              f"v_permlane16_swap_b32 {v(Z)}, {v(B+11)}",
              f"buffer_store_dwordx4 {v(B+8,4)}, {v(vHt)}, {s(RW,4)}, {so} offen offset:{off}{sc}"]
        return L

    def a_plan(self, layer):
        n = self.o.get('ring0', 8) if layer == 0 else self.o.get('ring1', 6)
        ring = ([('v', AR + 8*i) for i in range(4)] + [('a', 224 + 8*i) for i in range(4)])[:n]
        reg = {gs: ring[gs % n] for gs in range(32)}
        issue = {}
        for gs in range(32):
            prev = [p for p in range(gs) if reg[p] == reg[gs]]
            issue[gs] = prev[-1] + 1 if prev else -1
        return reg, issue

    def gemm1_start(self, layer):
        k = self.k
        self.wt, self.at = {}, {}
        self.areg, self.aiss = self.a_plan(layer)
        for Tt in range(7): self.rdW(0, Tt)
    def rdW(self, gs, Tt):
        st = gs % 16
        base, o = (vL16, st*7168) if st < 8 else (vW1, (st-8)*7168)
        self.wt[(gs, Tt)] = self.k(f"ds_read_b128 {v(WF + 28*(gs&1) + 4*Tt, 4)}, {v(base)} offset:{o + 1024*Tt}")
    def afrag(self, gs, mt):
        kind, b = self.areg[gs]
        return (v if kind == 'v' else a)(b + 4*mt, 4)
    def ldA(self, gs, mt):
        st = gs % 16
        self.at[(gs, mt)] = self.k(f"buffer_load_dwordx4 {self.afrag(gs, mt)}, {v(vAld[gs // 16])}, {s(RW,4)}, {k4(st>>1)} offen offset:{((st&1)*2+mt)*1024} sc1")

    def gemm1(self, layer):
        k = self.k; o = self.o
        lo = 1024*layer
        if layer: self.poll_check(self.a_poll)
        else: self.poll(vP31, s(sAFp), lo)
        self.stamp(f'a_seen{layer}')
        todo = sorted(range(32), key=lambda g: g)
        nxtA = 0
        while self.aiss[nxtA] < 0 and nxtA < o.get('a_init', 5):
            for mt in range(2): self.ldA(nxtA, mt)
            nxtA += 1
        w1q = []
        if layer == 0:
            if o.get('w1_spread', 1):
                n0 = self.w1_next
                for n in range(n0, 28):
                    for x in self.w1_dma_text(n): w1q.append(Item(x, at=int(14*o.get('w1_spread', 1)*(n - n0)/(28 - n0)), tag=n))
                self.w1_next = 28
            else: self.w1_dma(28)
        firstB = max(min(self.aiss[g] for g in range(16, 32)), o.get('firstB', 13) if layer else 0)
        queues = []
        if layer == 0:
            burst = None
            if getattr(self, 'rowb_done', False):
                queues.append(Queue(k, self.poll_items(vP31, s(sAFp), lo + 512, 14*2, 14*(firstB - 2))))
            else:
                burst = o.get('rowb0_at', 3); box = []
                its = [Item(fn=lambda: box.append(self.poll_issue(self.YA, s(sYFp))))] + [Item(fn=f, at=14*(burst - 2)) for f in self.poll_steps(lambda: box[0], False)]
                fld = Item(f"buffer_load_dwordx4 v[106:109], {v(self.YA+1)}, {s(RW,4)}, {s(sYld)} offen sc1"); its.append(fld)
                queues.append(Queue(k, its))
                firstB = max(firstB, o.get('firstB0', 12))
            rl = self.w1_relayout_items(1) if not self.rl1_done else []
            nr = nw = 0
            for x in rl:
                x.at = 14*o.get('rl1_at', 4)
                if o.get('rl_pace', 1) and x.text:
                    if 'ds_read' in x.text: x.at = o.get('rl_r0', 0) + nr*o.get('rl_rs', 10)//10; nr += 1
                    elif 'ds_write' in x.text: x.at = o.get('rl_w0', 34) + nw*o.get('rl_ws', 4); nw += 1; x.cost = 2
                    else: x.at = 0
                elif o.get('rl_pace', 1): x.at = 0 if nr == 0 else o.get('rl_w0', 34) - 2
            if w1q:
                def note():
                    for x in w1q: self.w1_tok[x.tag] = x.tok
                rl = w1q + [Item(fn=note, cost=0)] + rl
            rlq = Queue(k, rl); queues.append(rlq)
            t0 = o.get('wd_t0', 1); t1 = o.get('wd_t1', 30)
            wd = [Item(self.wd_text(n), at=int(14*(t0 + (t1 - t0)*n/56))) for n in range(getattr(self, 'wd0', 0), o.get('wd_n', 56))]
            jb = []
            pj = [Item(fn=lambda: jb.append(self.poll_issue(226, s(sJFp), 0, 229)))] + [Item(fn=f, at=14*t0 - 4) for f in self.poll_steps(lambda: jb[0], False)]
            if o.get('joint', 1) and o.get('jlate', 0) < 2: pj = []
            if o.get('tch_h', 0) == 2: pj = [Item(self.touch_h_text(), at=14*o.get('tch_at', 0))]
            wdq = Queue(k, pj + wd, 1); queues.append(wdq)
        else:
            box = []
            s0 = o.get('rowb_at', 7)
            its = self.publish_items(lambda: self.fB, s(sFFs), 512, o.get('fb_pub', 4)) + self.poll_items(vP7, s(sFFp), 512, 14*s0 - o.get('fb_pi', 54), 14*s0 - o.get('fb_pc', 32))
            fld = Item(f"buffer_load_dwordx4 {v(ACC[1],4)}, {v(vFr)}, {s(RW,4)}, {s(sFR[1])} offen sc1"); its.append(fld)
            queues.append(Queue(k, its))
            burst = s0
        epi = None; hbox = []
        ho = lambda half, mt: 2048*layer + 1024*half + 512*mt
        hsc = [' sc1' if o.get('hsc', 15) >> (2*layer + h) & 1 else '' for h in range(2)]
        self.cur_layer = layer
        for gs in range(32):
            ps, st = divmod(gs, 16)
            if gs == burst:
                queues[0].drain(); k.wait(fld.tok)
                self.stamp('rowB_go')
                if layer: sts = self.rowop(1, ACC[1])
                else: self.row_b0(fld.tok); sts = self.aB_tok
                self.stamp('rowB')
                queues[:1] = [Queue(k, self.publish_items(lambda: sts, s(sAFs), lo + 512, 14*gs + o.get('ab_pub', 36))
                                + self.poll_items(vP31, s(sAFp), lo + 512, 14*(firstB - 2) - 4, 14*firstB - 4))]
            if gs == firstB: queues[0].drain()
            if layer == 0 and gs == o.get('rl1_bar', 7) and not self.rl1_done:
                print('relayout left at step 7:', rlq.cost())
                rlq.drain(); k.wait_lg0(); k("s_barrier")
            if gs == 16:
                for q in queues[:2]: q.drain()
                xb = o.get('e0_burst', 1)
                e0 = [Item(x, at=14*16 + 4) for x in self.epilogue1(ACC[0], 0, 0, xb, hsc[0])]
                if xb: Queue(k, e0, 12).drain()
                e1 = [Item(x, at=14*16 + 4) for x in self.epilogue1(ACC[0] + 28, 0, 256, 0, hsc[0])]
                epi = ([] if xb else e0) + e1
                queues = [Queue(k, epi, 14), Queue(k, []), Queue(k, [])]
                if layer == 0: queues.append(wdq)
                pub = [False, False]; self.ht = {}; self.nxtH = 0
            if epi:
                dl = o.get('ha_pub', 84 if hsc[0] else 50)
                if not pub[0] and e0[-1].tok:
                    pub[0] = gs
                    queues[1].q += self.publish_items(lambda: e0[-1].tok, s(sHFs), ho(0, 0), 14*gs + dl)
                    t1_ = 14*gs + dl + o.get('ha_gap', 40)
                    queues[2].q += self.poll_items(vP7, s(sHFp), ho(0, 0), t1_, t1_ + o.get('ha_rtt', 28))
                    queues[2].q += [Item(fn=self.ldH, at=t1_ + o.get('ha_rtt', 28) + 4*n) for n in range(7)]
                if not pub[1] and e1[-1].tok:
                    pub[1] = gs
                    queues[1].q += self.publish_items(lambda: e1[-1].tok, s(sHFs), ho(0, 1), 14*gs + o.get('ha_pub1', 70 if hsc[0] else 40))
                    queues[2].q += [Item(fn=self.ldH, at=o.get('ha_more_at', 410) + 4*n) for n in range(o.get('ha_more', 7))]
            if gs in (2, 4, 8, 10, 12, 14, 20, 24, 28): self.stamp(f'g1_{layer}_{gs}')
            fixed = [[] for _ in range(14)]
            if gs + 1 < 32:
                for Tt in range(7): fixed[2*(Tt // 2)].append(('W', gs+1, Tt))
            slot = 6
            while nxtA < 32 and self.aiss[nxtA] <= gs and slot <= 10 and (nxtA < 16 or gs >= firstB):
                fixed[slot].append(('A', nxtA, 0)); fixed[slot+2].append(('A', nxtA, 1)); nxtA += 1; slot += 4
            k.wait(self.at[(gs, 1)], self.wt[(gs, 6)])
            for i in range(14):
                Tt, mt = divmod(i, 2)
                d = ACC[ps] + 28*mt + 4*Tt
                k(f"v_mfma_f32_16x16x32_bf16 {v(d,4)}, {v(WF + 28*(gs&1) + 4*Tt, 4)}, {self.afrag(gs, mt)}, {'0' if st == 0 else v(d,4)}")
                for it in fixed[i]:
                    if it[0] == 'W': self.rdW(it[1], it[2])
                    else: self.ldA(it[1], it[2])
                cap = 2 - len(fixed[i]) - (1 if i == 13 else 0)
                for q in (queues[::-1] if ps else queues): cap = q.fill(cap, 14*gs + i)
            if gs == 15: self.stamp(f'g1a{layer}'); self.late = layer == 1
        print('layer', layer, 'left after G1B:', [q.cost() for q in queues], 'stores done in steps', pub, 'h loads out', self.nxtH)
        queues[0].drain()
        if not pub[1]: queues[1].q += self.publish_items(lambda: e1[-1].tok, s(sHFs), ho(0, 1), 0)
        if layer == 0: wdq.drain(); self.wd_last = wd[-1].tok
        self.stamp(f'g1b{layer}')
        b0 = [Item(x) for x in self.epilogue1(ACC[1], 1, 0, 1, hsc[1])]
        b1 = [Item(x) for x in self.epilogue1(ACC[1] + 28, 1, 256, 1, hsc[1])]
        q = Queue(k, b0 + b1, 12)
        total = q.cost()
        side = [x for x in queues[2].q if x.fn != self.ldH]
        pubq = list(queues[1].q)
        ev = [(o.get('epi_pub', 0), lambda: Queue(k, pubq).drain()), (o.get('epi_lead', 10), lambda: Queue(k, side).drain())]
        gap = o.get('epi_gap', 20); t = o.get('epi_lead', 10)
        for n in range(self.nxtH, 14):
            ev.append((t, self.ldH)); t += gap
        box = []
        self.hA1_issue = lambda: box.append(self.poll_issue(vP7, s(sHFp), ho(0, 1)))
        if 'ha1_slot' not in o: ev.append((o.get('ha1_pi', 60), self.hA1_issue))
        ev.sort(key=lambda x: x[0])
        while len(q):
            while ev and total - q.cost() >= ev[0][0]: ev.pop(0)[1]()
            if q.fill(3) == 3: q.emit(q.q[0])
        for _, f in ev: f()
        self.hA1_box = box
        self.hB_tok = [b0[-1].tok, b1[-1].tok]
        self.hsc = hsc
        self.stamp(f'epiB{layer}')

    def g2_order(self):
        return [(half, U, mt) for half in range(2) for mt in range(2) for U in range(14)]
    def hreg(self, n):
        if n < 14: return ACC[0] + 4*n
        if n < 28: return WF + 4*(n - 14)
        if n < 42: return ACC[1] + 4*(n - 28)
        return ACC[0] + 4*(n - 42)
    def ldH(self, _=0):
        n = self.nxtH; self.nxtH += 1
        half, U, mt = self.g2_order()[n]
        self.ht[n] = self.k(f"buffer_load_dwordx4 {v(self.hreg(n),4)}, {v(vHld[half])}, {s(RW,4)}, {k4(U>>1)} offen offset:{(U&1)*2048 + mt*256} sc1{' nt' if self.o.get('hld_nt') and self.cur_layer else ''}")

    def red_write(self, A2):
        return [f"ds_write_b128 {v(vRw)}, {v(A2 + 16*mt + 4*nt, 4)} offset:{4352*mt + 64*nt}" for mt in range(2) for nt in range(4)]
    def red_read(self, P):
        return [f"ds_read_b128 {v(P + 8*w + 4*hf, 4)}, {v(vRr)} offset:{8704*w + 16*hf}" for w in range(4) for hf in range(2)]
    def red_sum(self, P, half, layer, X3, pk):
        L = []
        def add(d, x, y):
            if pk: L.extend(f"v_pk_add_f32 {v(d+e,2)}, {v(x+e,2)}, {v(y+e,2)}" for e in (0, 2, 4, 6))
            else: L.extend(f"v_add_f32 {v(d+e)}, {v(x+e)}, {v(y+e)}" for e in range(8))
        add(P, P, P+8); add(P+16, P+16, P+24)
        if layer == 1:
            L += self.unpack(P+8, X3); add(P, P, P+8)
        add(P, P, P+16)
        L += [f"v_cvt_pk_bf16_f32 {v(P+8+e)}, {v(P+2*e)}, {v(P+2*e+1)}" for e in range(4)]
        if layer == 0: L.append(f"buffer_store_dwordx4 {v(P+8,4)}, {v(vF2)}, {s(RW,4)}, {k4(half)} offen")
        else: L.append(f"buffer_store_dwordx4 {v(P+8,4)}, {v(vO)}, {s(RO,4)}, {s(sFH) if half else 0} offen{self.o.get('ost', ' sc1')}")
        return L

    def gemm2(self, layer):
        k = self.k; o = self.o
        lo = 1024*layer
        AC2 = [AR, WF]
        X3 = [TMP, TMP + 4]
        order = self.g2_order()
        LA = o.get('g2la', 20)
        xt = {}
        def ldX(h): xt[h] = k(f"buffer_load_dwordx4 {v(X3[h],4)}, {v(vF2)}, {s(RW,4)}, {k4(h)} offen sc1")
        ho = lambda half, mt: 2048*layer + 1024*half + 512*mt
        sl = self.hsc[1]
        gate = [14]
        def opened(n): return Item(fn=lambda: gate.__setitem__(0, n), cost=0)
        p0, p1 = o.get('hb_pub0', 21 if sl else 4), o.get('hb_pub1', 50 if sl else 20)
        g_, r_ = o.get('hb_gap', 28), o.get('hb_rtt', 25)
        side = Queue(k, self.publish_items(lambda: self.hB_tok[0], s(sHFs), ho(1, 0), p0)
                     + self.publish_items(lambda: self.hB_tok[1], s(sHFs), ho(1, 1), p1))
        side2 = Queue(k, ([Item(fn=self.hA1_issue, at=o['ha1_slot'])] if 'ha1_slot' in o else [])
                      + [Item(fn=f, at=o.get('ha1_pc', 0)) for f in self.poll_steps(lambda: self.hA1_box[0])] + [opened(28)]
                      + self.poll_items(vP7, s(sHFp), ho(1, 0), p0 + g_, p0 + g_ + r_) + [opened(42)]
                      + self.poll_items(vP7, s(sHFp), ho(1, 1), max(p1 + g_, p0 + g_ + r_ + 2), max(p1 + g_, p0 + g_ + r_ + 2) + r_) + [opened(56)])
        if layer == 0: k.wait(self.wd_last)
        fbox = []; seenB = False; wB = self.red_write(AC2[1]); doneB = 0
        def next_load():
            self.ldH()
            if layer == 1 and self.nxtH == 34: ldX(0)
            if layer == 1 and self.nxtH == 56:
                ldX(1)
                if o.get('wbl2', 0): self.writeback()
        for n in range(56):
            half, U, mt = order[n]
            if n == 28:
                self.stamp(f'g2a{layer}')
                side.drain()
                t = 4*28
                sp = o.get('ra_sp', 2)
                L = [Item(x, at=t + 3 + sp*i) for i, x in enumerate(self.red_write(AC2[0]))]
                L += [Item(fn=lambda: k.wait_lg0(), at=t + 8*sp + 3), Item(fn=lambda: k("s_barrier"))]
                L += [Item(x) for x in self.red_read(AR)]
                L += [Item(fn=lambda: k.wait_lg0(), at=t + 8*sp + o.get('ra_rd', 14)), Item(fn=lambda: k("s_barrier"))]
                if layer == 1: L += [Item(fn=lambda: k.wait(xt[0]))]
                L += [Item(x) for x in self.red_sum(AR, 0, layer, X3[0], 0)]
                fA = L[-1]
                if layer == 0:
                    L += self.publish_items(lambda: fA.tok, s(sFFs), 0, t + o.get('fa_pub', 66))
                    L += [Item(x, at=t + 60) for x in self.unpack(ACC[1] + 24, YS[0]) + self.ag_addr(ACC[1] + 52)]
                    L.append(Item(fn=lambda: fbox.append(self.poll_issue(vP7, s(sFFp), 0)), at=t + o.get('fa_pi', 86)))
                    if o.get('fa_in', 1):
                        L += [Item(fn=f, at=t + o.get('fa_pc', 104)) for f in self.poll_steps(lambda: fbox[0])]
                        fldi = Item(f"buffer_load_dwordx4 {v(ACC[1],4)}, {v(vFr)}, {s(RW,4)}, {s(sFR[0])} offen sc1"); L.append(fldi)
                if o.get('nored') and layer == 1: L = []
                side = Queue(k, L)
                last0 = max(i for i in range(28, 56) if order[i][2] == 0)
                late = Queue(k, [Item(x, at=4*(last0 + 1) + 3 + sp*i) for i, x in enumerate(wB[:4])])
            if n in (8, 16, 22, 36, 44, 50): self.stamp(f'g2_{layer}_{n}')
            for m in range(n, n + 2 - n % 2):
                while m not in self.ht:
                    while self.nxtH >= gate[0]:
                        if gate[0] > 14: side.drain() if n < 28 else None
                        side2.emit(side2.q[0])
                    next_load()
            if n % 2 == 0: k.wait(self.ht[n + 1])
            for nt in range(4):
                d = AC2[half] + 16*mt + 4*nt
                k(f"v_mfma_f32_16x16x32_bf16 {v(d,4)}, {a((4*U+nt)*4,4)}, {v(self.hreg(n),4)}, {'0' if U == 0 else v(d,4)}")
                cap = 2 - (1 if (nt == 3 and n % 2) else 0)
                if (nt == 0 or (nt == 2 and self.nxtH < n + 1 + o.get('g2min', 9))) and self.nxtH < min(gate[0], n + 1 + LA) and (self.nxtH < 42 or self.nxtH - 42 < n):
                    next_load(); cap -= 1
                cap = side2.fill(cap, 4*n + nt)
                cap = side.fill(cap, 4*n + nt)
                if n >= 28 and not any('ds_' in (x.text or '') or (x.fn and x.at <= t + 8*sp + 40) for x in side.q):
                    late.fill(cap, 4*n + nt)
        print('layer', layer, 'left after G2B:', side.cost(), late.cost())
        side.drain()
        wB = [x.text for x in late.q] + wB[4:]
        self.stamp(f'g2b{layer}')
        R = ACC[1]
        if layer == 0 and not o.get('fa_in', 1):
            self.poll_check(fbox[0])
            fld = k(f"buffer_load_dwordx4 {v(R,4)}, {v(vFr)}, {s(RW,4)}, {s(sFR[0])} offen sc1")
        elif layer == 0: fld = fldi.tok
        for x in wB: k(x)
        if layer == 0:
            k.wait(fld)
            self.stamp('fA_in')
            sts, rest = self.rowop(0, R, True)
            self.stamp('rowA')
            if o.get('apub_first', 2): self.run(rest)
            if o.get('apub_first', 2) == 1: self.publish(sts, s(sAFs), 1024)
        if not (layer == 0 and o.get('ag', 1)): k.wait_lg0(); k("s_barrier")
        for x in self.red_read(ACC[0]): k(x)
        if layer == 0 and o.get('apub_first', 2) == 2: self.publish(sts, s(sAFs), 1024)
        k.wait_lg0()
        if layer == 1: k.wait(xt[1])
        if layer == 0 and not o.get('apub_first', 2): self.publish(sts, s(sAFs), 1024)
        if layer == 0: self.a_poll = self.poll_issue(vP31, s(sAFp), 1024)
        self.fB = self.run(self.red_sum(ACC[0], 1, layer, X3[1], 1))[-1].tok
        self.stamp(f'fB_st{layer}')
        if layer == 0:
            self.gemm1_start(1)
            if not o.get('apub_first', 2): self.run(rest)

    def writeback(self):
        k = self.k
        a_, b_ = k.label(), k.label()
        k(f"s_or_b32 {s(T[2])}, {s(sJ)}, {s(sW)}\ns_cmp_lg_u32 {s(T[2])}, 0\ns_cbranch_scc1 {a_}")
        k("buffer_wbl2 sc1")
        k(f"s_branch {b_}"); k.place(a_)
        k.ins.append(I(f"buffer_load_dword {v(vPT)}, {v(vL0)}, {s(RW,4)}, 0 offen"))
        k.place(b_)

    def rowop(self, h, R, split=False):
        L = self.unpack(R + 8, R)
        L += [f"v_pk_add_f32 {v(XS[h]+e,2)}, {v(XS[h]+e,2)}, {v(R+8+e,2)}" for e in (0, 2, 4, 6)]
        L += self.stats([XS[h]], [36], R + 16)
        L += self.affine(R + 8, XS[h], 36, R + 20)
        G = self.gate_norm([h], {h: R + 8}, 1, R + 24)
        rest = []
        if split: G = G[8:]
        if self.o.get('ag', 1):
            self.run(L + G[:-5], 16)
            tok = self.a_out([h], R, 1, lambda: self.run(G[-5:]))[0]
            return (tok, []) if split else tok
        if split: G, rest = G[:-5], G[-5:]
        its = self.run(L + G, 16)
        tok = [x.tok for x in its if 'store' in x.text][-1]
        return (tok, rest) if split else tok

    def build(self):
        k = self.k; o = self.o
        self.prologue()
        self.front_addr()
        if o.get('hpos', 1): self.h_load()
        self.touch_first()
        self.touch_global_flags()
        self.w1_addr()
        self.w1_dma(o.get('n0', 2))
        self.wd_job_addr()
        if o.get('qpos', 1) == 2: self.q_load(False)
        self.phase0()
        self.w1_dma(o.get('n1', 1))
        self.conv()
        if o.get('joint', 1): self.y_joint()
        else: self.y_in()
        for layer in range(2):
            self.gemm1(layer)
            self.gemm2(layer)
        if o.get('stamps'):
            self.stamp('end')
            k(f"""s_lshl_b32 {s(T[0])}, s2, 2
                  s_add_u32 {s(T[0])}, {s(T[0])}, {s(sW)}
                  s_lshl_b32 {s(T[0])}, {s(T[0])}, 8
                  s_add_u32 {s(T[0])}, {s(T[0])}, {WS_DBG}
                  v_lshrrev_b32 v5, 2, {v(vL16)}
                  buffer_store_dword {v(vST[0])}, v5, {s(RW,4)}, {s(T[0])} offen
                  s_add_u32 {s(T[0])}, {s(T[0])}, 0x40000
                  buffer_store_dword {v(vST[1])}, v5, {s(RW,4)}, {s(T[0])} offen""")
        if o.get('delay'):
            k(f"""s_mov_b32 {s(T[0])}, {o['delay']}
                  s_memrealtime {s(T[2],2)}
                  s_waitcnt lgkmcnt(0)""")
            k.place("L_DELAY")
            k(f"""s_memrealtime {s(T[4],2)}
                  s_waitcnt lgkmcnt(0)
                  s_sub_u32 {s(T[4])}, {s(T[4])}, {s(T[2])}
                  s_cmp_lt_u32 {s(T[4])}, {s(T[0])}
                  s_cbranch_scc1 L_DELAY""")
        if o.get('diag'):
            self.stamp('end')
            k(f"""v_sub_u32 v5, {v(vST[1])}, {v(vST[0])}
                  s_nop 1
                  v_readfirstlane_b32 {s(T[0])}, v5
                  s_mul_i32 {s(T[0])}, {s(T[0])}, 8
                  s_memrealtime {s(T[2],2)}
                  s_waitcnt lgkmcnt(0)""")
            k.place("L_DIAG")
            k(f"""s_memrealtime {s(T[4],2)}
                  s_waitcnt lgkmcnt(0)
                  s_sub_u32 {s(T[4])}, {s(T[4])}, {s(T[2])}
                  s_cmp_lt_u32 {s(T[4])}, {s(T[0])}
                  s_cbranch_scc1 L_DIAG""")
        k.place("L_END")
        k("s_endpgm")
        body = k.text()
        for t in self.tail:
            body += "".join((x + "\n") if x.endswith(':') else ("    " + x + "\n") for x in t)
        body += "L_LAST:\n"
        return body

def file_text(opt):
    g = Gen(opt)
    body = g.build()
    ref = open(os.path.join(os.path.dirname(os.path.abspath(__file__)), '..', 'cdna_kernels', NAME + '.s.ref')).read()
    head = ref[:ref.index('; Override launch geometry')]
    txt = head + f"""; @launch grid=(256,1,1) block=(256,1,1) lds={LDS_SIZE}
;
; One persistent launch, 256 workgroups of 4 waves, one per CU (generated by a script of my own).
; Workgroup b: group x = b & 7, member j = b >> 3.
;   1. kv = shortconv(k) * v for a 64-step x 64-channel tile, handed over transposed inside the group.
;   2. long causal conv of 2 channels as block-Toeplitz MFMAs (exact products, fp32 sums), plus kv * D.
;      y does not depend on the residual stream, so it is computed once and used by both layers.
;   3. each wave owns two rows (x, y in registers): x += LN(x) * y ; a = LN(x).
;   4. GEMM1: 256 rows x 56 hidden units per workgroup, gate/up weights resident in LDS; SwiGLU.
;   5. GEMM2: 64 x 64 tile per workgroup, w_down slice resident in accumulator registers, K split over waves.
;   Steps 3-5 run twice, in two row halves that hide each other's hand-off latency.
; Hand-offs use flag words in d_ws that carry a per-launch tag derived from d_ws word 0.
; Inside a group they go through one L2 when all 32 members report the same die id; otherwise every
; hand-off takes the device-scope release/acquire path, so any placement gives the same result.
.amdgcn_target "amdgcn-amd-amdhsa--gfx950"
.text
.globl {NAME}_kernel
.p2align 8
.type {NAME}_kernel,@function
{NAME}_kernel:
{body}.section .rodata,"a"
.p2align 6
.amdhsa_kernel {NAME}_kernel
  .amdhsa_next_free_vgpr 512
  .amdhsa_next_free_sgpr 102
  .amdhsa_accum_offset 256
  .amdhsa_group_segment_fixed_size 0
  .amdhsa_kernarg_size 104
  .amdhsa_user_sgpr_count 2
  .amdhsa_user_sgpr_kernarg_segment_ptr 1
  .amdhsa_system_sgpr_workgroup_id_x 1
.end_amdhsa_kernel
"""
    return txt, g

if __name__ == '__main__':
    import json
    opt = {}; out = None
    for x in sys.argv[1:]:
        if '=' in x:
            kk, vv = x.split('=')
            opt[kk] = vv.split(',') if kk in ('only', 'diag') else (' ' + vv.replace('+', ' ') if kk in ('ost', 'wdm', 'x3m') else int(vv, 0))
        else: out = x
    txt, g = file_text(opt)
    open(out, 'w').write(txt)
    json.dump(g.stamps, open(out + '.stamps.json', 'w'))
    print('instructions', len(g.k.ins), 'nops added', g.k.nops_added, 'stamps', len(g.stamps))
```

```python
import sys, os
sys.path.insert(0, os.path.dirname(os.path.abspath(__file__)))
from dsl import *

NAME = 'interleave_layers__ssm_conv_h3__swiglu_ffn__prompt'

WS_XCCF = 0x1000
WS_KVF  = 0x10000
WS_AF   = 0x11000
WS_HF   = 0x19000
WS_FF   = 0x21000
WS_YF   = 0x40000
JFS = int(os.environ.get('JFS', '4'))
JF_BLK = (448*JFS + 8191)//8192
WS_JF   = 0x40000 - 8192*JF_BLK
WS_KVT  = 0x100000
WS_A    = WS_KVT
WS_YP   = 0x300000
WS_H    = 0x700000
WS_WDT  = 0xE00000
WS_DBG  = 0x1000000
WS_SIZE = 0x1100000
H_X, H_HALF, H_RB = 917504, 458752, 114688

LDS_SIZE = 163840
SCR   = 114688
L_K   = SCR
L_V   = L_K + 9216
L_H   = L_V + 8192
H_CP  = 4096 + 128
H_E   = lambda ch: L_H + ch * 2 * H_CP + 64
H_O   = lambda ch: L_H + ch * 2 * H_CP + H_CP + 128
L_U   = L_H + 4 * H_CP + 128
U_S   = 4608
assert L_U + 2 * U_S <= LDS_SIZE
L_CRED = 57344
L_YT  = L_U
L_JOB = 114688 - 16384
L_RED = SCR
L_AG  = LDS_SIZE - 4352
L_AG2 = SCR

sX, sJ, sW, sN, sEXP, sSPIN, sXCC, sMODE = 4, 5, 6, 7, 8, 9, 10, 11
T = list(range(12, 24))
sC2 = 24
sHALF = 26
sW1S, sW1L = 27, 3
sD = 28
sDP = 34
RK, RV, RH, RQ, RG, RU, RD, RO, RW, RS = 44, 48, 52, 56, 60, 64, 68, 72, 76, 80
sK4 = 83
def k4(i): return '0' if i == 0 else s(sK4 + i)
sHH = 91
sAFp, sAFs, sHFp, sHFs, sFFp, sFFs = 94, 95, 96, 97, 98, 99
sFR = [100, 101]
sFH = 55
sAG = [56, 57]
sROT = [0, 1, 34, 35, 54, 80, 81]
sDEL = [82, 83]
sST = (32, 92)
sKVFp, sKVs, sUm0, sYst, sYFs, sYFp, sYld, sJF, sJL, sJFp = 44, 45, 46, 47, 48, 49, 50, 51, 52, 53

vL, vL16, vL0, vNON, vPT = 1, 2, 3, 4, 5
vAld, vHld = [6, 7], [8, 9]
vHm, vHt, vAst, vF2, vO, vRw, vRr, vP31, vP7, vW1 = 10, 11, 12, 13, 14, 15, 16, 17, 18, 19
vST = (20, 21)
vFr = 0
vWd = [230, 231]
ACC = [22, 78]
WF, AR, TMP = 134, 190, 222
YS, XS = [232, 236], [240, 248]
LOG2E = 1.4426950408889634

def f32(x):
    import struct
    return '0x%08x' % struct.unpack('<I', struct.pack('<f', x))[0]

def ag_off(layer, h):
    return L_AG - L_AG2 if h == 0 else (0 if layer == 0 else L_AG - L_AG2 - 4352)

def flist(c):
    if c < 4: return [4*c + e for e in range(4)] + [16 + 4*c + e for e in range(4)]
    q = c - 4; X = [44, 46, 54][q]
    return [32 + 4*q + e for e in range(4)] + [48 + 2*q, 49 + 2*q, X, X + 1]

class Gen:
    def __init__(self, opt):
        self.o = opt
        self.k = K()
        self.tail = []
        self.stamps = []
        self.w1_next = 0
        self.late = False
        self.w1_tok = {}

    def stamp(self, name):
        self.k.ins.append(I(f"; ---- {name}"))
        dg = self.o.get('diag')
        if dg and name in dg:
            k = self.k
            k(f"s_memrealtime {s(sST[0],2)}"); k.wait_lg0()
            k(f"v_mov_b32 {v(vST[dg.index(name)])}, {s(sST[0])}")
        if not self.o.get('stamps'): return
        only = self.o.get('only')
        if only and name not in only: return
        k = self.k; n = len(self.stamps)
        k(f"s_memrealtime {s(sST[0],2)}\ns_memtime {s(sST[1],2)}"); k.wait_lg0()
        if self.o.get('spinstat') and n >= 2: k(f"s_sub_u32 {s(sST[1])}, 0, {s(sSPIN)}")
        k(f"v_writelane_b32 {v(vST[0])}, {s(sST[0])}, {n}\nv_writelane_b32 {v(vST[1])}, {s(sST[1])}, {n}")
        self.stamps.append(name)

    def srd(self, base, size):
        self.k(f"s_mov_b32 {s(base+2)}, {size}\ns_mov_b32 {s(base+3)}, 0x20000")

    def poll_issue(self, vaddr, soff, off=0, vt=vPT):
        txt = f"buffer_load_dword {v(vt)}, {v(vaddr)}, {s(RW,4)}, {soff} offen offset:{off} sc1"
        return (self.k(txt), txt, vt)

    def poll_steps(self, get, local=True):
        k = self.k
        slow, back, ok = k.label(), k.label(), k.label()
        def s1(): k.wait(get()[0])
        def s2(): k(f"v_cmp_ne_u32 vcc, {s(sEXP if local else sN)}, {v(get()[2])}")
        def s3():
            if self.o.get('nopoll') and self.late: return
            k(f"s_cbranch_vccnz {slow}"); k.place(back)
            _, txt, vt = get()
            nap = self.o.get('nap_l', 0) if local else self.o.get('nap_g', 0)
            t = [f"{slow}:"] + ([f"s_sleep {nap}"] if nap else []) + [txt, "s_waitcnt vmcnt(0)", f"v_cmp_ne_u32 vcc, {s(sN)}, {v(vt)}", f"s_cbranch_vccz {ok}",
                 f"s_sub_u32 {s(sSPIN)}, {s(sSPIN)}, 1", f"s_cbranch_scc0 {slow}", "s_branch L_END", f"{ok}:"]
            if local: t += [f"s_cmp_eq_u32 {s(sMODE)}, 0", f"s_cbranch_scc1 {back}", "buffer_inv sc1", "s_waitcnt vmcnt(0)"]
            self.tail.append(t + [f"s_branch {back}"])
        return [s1, s2, s3]

    def poll_check(self, h, local=True):
        for f in self.poll_steps(lambda: h, local): f()
    def poll(self, vaddr, soff, off=0, local=True):
        self.poll_check(self.poll_issue(vaddr, soff, off), local)
    def poll_items(self, vaddr, soff, off, at_issue, at_check):
        box = []
        it = [Item(fn=lambda: box.append(self.poll_issue(vaddr, soff, off)), at=at_issue)]
        return it + [Item(fn=f, at=at_check) for f in self.poll_steps(lambda: box[0])]

    def flag_store(self, soff, off=0, local=True):
        k = self.k
        txt = f"buffer_store_dword {v(vNON)}, {v(vL0)}, {s(RW,4)}, {soff} offen offset:{off}"
        if not local: return k(txt + " sc1")
        slow, back = k.label(), k.label()
        k(f"s_cmp_lg_u32 {s(sMODE)}, 0\ns_cbranch_scc1 {slow}")
        r = k(txt); k.place(back)
        self.tail.append([f"{slow}:", "s_waitcnt vmcnt(0)", "buffer_wbl2 sc1", "s_waitcnt vmcnt(0)", txt + " sc1", f"s_branch {back}"])
        return r
    def publish(self, tok, soff, off=0, local=True):
        self.k.wait(tok)
        return self.flag_store(soff, off, local)
    def publish_items(self, get, soff, off, at):
        return [Item(fn=lambda: self.k.wait(get()), at=at), Item(fn=lambda: self.flag_store(soff, off), cost=2, at=at)]

    def dma(self, vaddr, srd, soff, m0, extra=''):
        self.k(m0)
        return self.k(f"buffer_load_dwordx4 {v(vaddr)}, {s(srd,4)}, {soff} offen {extra} lds".replace('  ', ' '))

    def prologue(self):
        k = self.k
        k("s_cmp_ge_u32 s2, 256\ns_cbranch_scc1 L_END")
        if self.o.get('stamps'): k(f"v_mov_b32 {v(vST[0])}, 0\nv_mov_b32 {v(vST[1])}, 0")
        self.stamp('entry')
        for r, off in ((RK, 8), (RV, 16), (RW, 96), (RH, 32), (RS, 24), (RQ, 0), (RG, 56), (RU, 64), (RD, 72), (RO, 80)):
            k(f"s_load_dwordx2 {s(r,2)}, s[0:1], {off}")
        k(f"s_load_dwordx2 {s(sDP,2)}, s[0:1], 40")
        k(f"s_lshr_b32 {s(sJ)}, s2, 3")
        self.code_prefetch()
        k(f"""s_and_b32 {s(sX)}, s2, 7
              v_lshrrev_b32 v5, 6, v0
              v_and_b32 {v(vL)}, 63, v0
              v_readfirstlane_b32 {s(sW)}, v5
              v_lshlrev_b32 {v(vL16)}, 4, {v(vL)}""")
        for r, size in ((RK, 2097152), (RV, 2097152), (RW, WS_SIZE), (RH, 2097152), (RS, 4096)): self.srd(r, size)

        k(f"""v_lshrrev_b32 v24, 3, {v(vL)}
              v_and_b32 v25, 7, {v(vL)}
              v_and_b32 v26, 2, v24
              v_xor_b32 v25, v25, v26
              s_and_b32 {s(T[0])}, {s(sW)}, 1
              s_lshl_b32 {s(T[0])}, {s(T[0])}, 2
              v_xor_b32 v25, {s(T[0])}, v25
              v_lshlrev_b32 v25, 4, v25
              v_lshl_add_u32 v25, v24, 10, v25
              s_lshl_b32 {s(T[0])}, {s(sJ)}, 16
              s_lshl_b32 {s(T[1])}, {s(sW)}, 14
              s_lshl_b32 {s(T[2])}, {s(sX)}, 7
              s_add_u32 {s(T[0])}, {s(T[0])}, {s(T[1])}
              s_add_u32 {s(T[0])}, {s(T[0])}, {s(T[2])}
              v_add_u32 v25, {s(T[0])}, v25
              v_xor_b32 v26, 64, v25
              v_subrev_u32 v26, 8192, v26
              s_lshl_b32 {s(T[1])}, {s(sW)}, 11
              s_add_u32 {s(T[2])}, {s(T[1])}, {L_K + 1024}
              s_add_u32 {s(T[3])}, {s(T[1])}, {L_V}
              s_movk_i32 {s(T[4])}, 8192
              v_and_b32 v27, 15, {v(vL)}
              s_lshl_b32 {s(T[0])}, {s(sX)}, 6
              s_lshl_b32 {s(T[1])}, {s(sW)}, 4
              s_add_u32 {s(T[1])}, {s(T[0])}, {s(T[1])}
              v_add_u32 v27, {s(T[1])}, v27
              v_lshlrev_b32 v28, 3, v27
              s_lshl_b32 {s(T[1])}, {s(sJ)}, 1
              s_add_u32 {s(T[0])}, {s(T[0])}, {s(T[1])}
              s_lshl_b32 {s(T[5])}, {s(T[0])}, 1
              s_lshl_b32 {s(T[6])}, {s(T[0])}, 12
              s_add_u32 {s(T[7])}, {s(T[6])}, 4096
              v_lshlrev_b32 v29, 4, v0""")
        k.wait_lg0()
        self.stamp('start')
        k(f"s_load_dword {s(sN)}, {s(RW,2)}, 0")
        k(f"s_load_dword {s(sD)}, {s(sDP,2)}, {s(T[5])}")
        self.dma(25, RK, '0', f"s_mov_b32 m0, {s(T[2])}")
        self.dma(25, RV, '0', f"s_mov_b32 m0, {s(T[3])}")
        self.dma(25, RK, s(T[4]), f"s_add_u32 m0, {s(T[2])}, 1024")
        self.dma(25, RV, s(T[4]), f"s_add_u32 m0, {s(T[3])}, 1024")
        skip = k.label()
        k(f"s_cmp_lg_u32 {s(sW)}, 0\ns_cbranch_scc1 {skip}\ns_mov_b32 m0, {L_K}\ns_nop 0")
        k.ins.append(I(f"buffer_load_dwordx4 v26, {s(RK,4)}, 0 offen lds"))
        k.place(skip)
        self.sh_tok = k(f"buffer_load_dwordx2 v[30:31], v28, {s(RS,4)}, 0 offen")
        if not self.o.get('hpos', 1): self.h_load()
        k(f"""s_getreg_b32 {s(sXCC)}, hwreg(HW_REG_XCC_ID, 0, 4)
              v_cmp_eq_u32 vcc, 0, {v(vL)}
              v_mov_b32 v5, 0x80000000
              s_lshl_b32 {s(T[1])}, {s(sX)}, 5
              s_add_u32 {s(T[1])}, {s(T[1])}, {s(sJ)}
              s_mul_i32 {s(T[1])}, {s(T[1])}, {self.o.get('xs', 4)}
              s_add_u32 {s(T[1])}, {s(T[1])}, {WS_XCCF}
              s_cmp_eq_u32 {s(sW)}, 2
              s_cselect_b32 {s(T[1])}, {s(T[1])}, 0x40000000
              v_cndmask_b32 {v(vL0)}, v5, 0, vcc""")
        k.wait_lg0()
        k(f"""s_mul_i32 {s(sN)}, {s(sN)}, 1664525
              s_add_u32 {s(sN)}, {s(sN)}, 1013904223
              s_xor_b32 {s(T[0])}, {s(sN)}, {s(sXCC)}
              v_mov_b32 v5, {s(T[0])}
              v_mov_b32 {v(vNON)}, {s(sN)}""")
        k(f"buffer_store_dword v5, {v(vL0)}, {s(RW,4)}, {s(T[1])} offen sc1")
        for r, size in ((RQ, 2097152), (RG, 1835008), (RU, 1835008), (RD, 1835008), (RO, 2097152)): self.srd(r, size)
        k(f"""s_lshr_b32 {s(sD+2)}, {s(sD)}, 16
              s_and_b32 {s(sD+3)}, {s(sD)}, 0xffff0000
              s_lshl_b32 {s(sD+1)}, {s(sD)}, 16
              s_and_b32 {s(sD)}, {s(sD)}, 0xffff
              s_mov_b32 {s(sC2)}, {f32(LOG2E*LOG2E)}
              s_mov_b32 {s(sC2+1)}, {f32(LOG2E*LOG2E)}
              s_mov_b32 {s(sSPIN)}, {self.o.get('spin', 400000)}
              s_mov_b32 {s(sHALF)}, 0x20000
              s_mov_b32 {s(sHH)}, {H_HALF}
              v_and_b32 {v(vP31)}, 31, {v(vL)}
              v_lshlrev_b32 {v(vP31)}, 2, {v(vP31)}
              v_and_b32 {v(vP7)}, 7, {v(vL)}
              v_lshlrev_b32 {v(vP7)}, 2, {v(vP7)}""")
        for i in range(1, 8): k(f"s_movk_i32 {s(sK4+i)}, {4096*i}")

    def h_load(self):
        k = self.k
        k(f"buffer_load_dwordx4 v[32:35], v29, {s(RH,4)}, {s(T[6])} offen")
        k(f"buffer_load_dwordx4 v[40:43], v29, {s(RH,4)}, {s(T[7])} offen")
        k(f"buffer_load_dwordx4 v[36:39], v29, {s(RH,4)}, {s(T[6])} offen offset:2")
        self.h_tok = k(f"buffer_load_dwordx4 v[44:47], v29, {s(RH,4)}, {s(T[7])} offen offset:2")

    def code_prefetch(self):
        if not self.o.get('cpf', 1): return
        k = self.k
        k(f"s_getpc_b64 {s(T[2],2)}")
        k.place("L_PC")
        k(f"""s_mul_i32 {s(T[4])}, {s(sJ)}, ((L_LAST-L_PC+4095)/4096)*128
              v_min_u32 v5, (L_LAST-L_PC+4095)/4096-1, v0
              v_lshl_add_u32 v5, v5, 7, {s(T[4])}
              v_min_u32 v5, L_LAST-L_PC-4, v5
              global_load_dword v219, v5, {s(T[2],2)}""")

    def tlb_touch(self):
        if not self.o.get('tlb', 0): return
        k = self.k
        k(f"v_and_b32 v5, 15, {v(vL)}\nv_lshlrev_b32 v5, 20, v5")
        k(f"buffer_load_dword v200, v5, {s(RW,4)}, 0 offen offset:512")
        k(f"buffer_load_dword v201, v5, {s(RO,4)}, 0 offen")
        k(f"buffer_load_dword v196, v5, {s(RG,4)}, 0 offen")
        k(f"buffer_load_dword v197, v5, {s(RU,4)}, 0 offen")
        k(f"buffer_load_dword v198, v5, {s(RQ,4)}, 0 offen")

    def touch_first(self):
        k = self.k
        if self.o.get('tch_kv', 1):
            k(f"v_and_b32 v5, 15, {v(vL)}\nv_lshlrev_b32 v5, 7, v5")
            k(f"buffer_load_dword v220, v5, {s(RW,4)}, {s(sKVs)} offen sc1")
        if self.o.get('tch_fl', 1):
            k(f"""s_lshl_b32 {s(T[0])}, {s(sX)}, 12
                  s_add_u32 {s(T[0])}, {s(T[0])}, {WS_AF}
                  v_lshl_add_u32 v22, {v(vL)}, 7, {s(T[0])}
                  v_cmp_lt_u32 vcc, 15, {v(vL)}
                  v_add_u32 v5, {0x8000 - 16*128}, v22
                  s_lshl_b32 {s(T[0])}, {s(sX)}, 9
                  v_cndmask_b32 v22, v22, v5, vcc
                  v_cmp_lt_u32 vcc, 47, {v(vL)}
                  v_add_u32 v5, {0x8000 - 32*128}, v22
                  s_add_u32 {s(T[0])}, {s(T[0])}, {WS_KVF}
                  v_cndmask_b32 v22, v22, v5, vcc
                  v_cmp_lt_u32 vcc, 55, {v(vL)}
                  v_and_b32 v5, 3, {v(vL)}
                  v_lshl_add_u32 v5, v5, 7, {s(T[0])}
                  s_cmp_eq_u32 {s(sW)}, 3
                  s_cselect_b32 {s(T[0])}, 0, 0x40000000
                  v_cndmask_b32 v5, v22, v5, vcc
                  buffer_load_dword v221, v5, {s(RW,4)}, {s(T[0])} offen sc1""")
    def touch_global_flags(self):
        if not self.o.get('tch_g', 1): return
        k = self.k
        k(f"""v_lshlrev_b32 v5, 7, {v(vL)}
              s_cmp_eq_u32 {s(sW)}, 1
              s_cselect_b32 {s(T[0])}, {s(sJ)}, 31
              s_lshl_b32 {s(T[1])}, {s(T[0])}, 13
              s_cmp_lt_u32 {s(T[0])}, {JF_BLK + self.o.get('yfs', 4)//4}
              s_cselect_b32 {s(T[0])}, {s(T[1])}, 0x40000000
              s_add_u32 {s(T[0])}, {s(T[0])}, {WS_JF}
              buffer_load_dword v202, v5, {s(RW,4)}, {s(T[0])} offen sc1""")
    def touch_h_addr(self):
        self.k(f"""s_lshl_b32 {s(T[0])}, {s(sJ)}, 2
                  s_add_u32 {s(T[0])}, {s(T[0])}, {s(sW)}
                  s_mul_i32 {s(T[0])}, {s(T[0])}, 7168
                  s_mul_i32 {s(T[1])}, {s(sX)}, {H_X}
                  s_add_u32 {s(T[0])}, {s(T[0])}, {s(T[1])}
                  s_add_u32 {s(T[0])}, {s(T[0])}, {WS_H}
                  v_min_u32 v227, 55, {v(vL)}
                  v_lshl_add_u32 v227, v227, 7, {s(T[0])}""")
    def touch_h_text(self): return f"buffer_load_dword v228, v227, {s(RW,4)}, 0 offen sc1"
    def touch_f(self):
        k = self.k
        k(f"""v_and_b32 v5, 7, {v(vL)}
              v_lshlrev_b32 v5, 7, v5
              v_bfe_u32 v22, {v(vL)}, 3, 1
              v_lshl_add_u32 v5, v22, 17, v5
              buffer_load_dword v199, v5, {s(RW,4)}, {s(sFR[0])} offen sc1""")

    def q_load(self, issue=True):
        k = self.k
        k(f"""s_lshl_b32 {s(T[0])}, {s(sX)}, 7
              s_lshl_b32 {s(T[1])}, {s(sJ)}, 2
              s_add_u32 {s(T[0])}, {s(T[0])}, {s(T[1])}
              s_add_u32 {s(T[0])}, {s(T[0])}, {s(sW)}
              s_lshl_b32 {s(T[0])}, {s(T[0])}, 10
              s_mov_b32 {s(T[10])}, {s(T[0])}
              s_add_u32 {s(T[11])}, {s(T[0])}, 0x100000""")
        if issue: self.q_issue()
    def q_issue(self):
        k = self.k
        k(f"buffer_load_dwordx4 v[204:207], {v(vL16)}, {s(RQ,4)}, {s(T[10])} offen")
        self.q_tok = k(f"buffer_load_dwordx4 v[208:211], {v(vL16)}, {s(RQ,4)}, {s(T[11])} offen")

    def persistent(self):
        k = self.k; AG = self.o.get('ag', 1)
        k(f"""s_lshl_b32 {s(T[0])}, {s(sJ)}, 2
              s_add_u32 {s(T[0])}, {s(T[0])}, {s(sW)}
              s_lshl_b32 {s(T[8])}, {s(sX)}, 18
              s_lshl_b32 {s(T[9])}, {s(sX)}, 12
              s_lshr_b32 {s(T[10])}, {s(sJ)}, 3
              s_and_b32 {s(T[11])}, {s(sJ)}, 7
              s_lshl_b32 {s(T[1])}, {s(T[0])}, 2
              s_add_u32 {s(T[1])}, {s(T[1])}, {s(T[9])}
              s_add_u32 {s(sAFs)}, {s(T[1])}, {WS_AF}
              s_lshl_b32 {s(T[1])}, {s(sW)}, 7
              s_add_u32 {s(T[1])}, {s(T[1])}, {s(T[9])}
              s_add_u32 {s(sAFp)}, {s(T[1])}, {WS_AF}
              s_lshl_b32 {s(T[2])}, {s(sJ)}, 2
              s_add_u32 {s(T[1])}, {s(T[1])}, {s(T[2])}
              s_add_u32 {s(sHFs)}, {s(T[1])}, {WS_HF}
              s_lshl_b32 {s(T[1])}, {s(T[10])}, 7
              s_lshl_b32 {s(T[2])}, {s(sW)}, 5
              s_add_u32 {s(T[1])}, {s(T[1])}, {s(T[2])}
              s_add_u32 {s(T[1])}, {s(T[1])}, {s(T[9])}
              s_add_u32 {s(sHFp)}, {s(T[1])}, {WS_HF}
              s_lshl_b32 {s(T[2])}, {s(T[11])}, 2
              s_add_u32 {s(T[1])}, {s(T[1])}, {s(T[2])}
              s_add_u32 {s(sFFs)}, {s(T[1])}, {WS_FF}
              s_lshr_b32 {s(T[1])}, {s(sJ)}, 1
              s_lshl_b32 {s(T[1])}, {s(T[1])}, 5
              s_add_u32 {s(T[1])}, {s(T[1])}, {s(T[9])}
              s_add_u32 {s(sFFp)}, {s(T[1])}, {WS_FF}
              s_lshr_b32 {s(T[1])}, {s(T[0])}, 5
              s_lshl_b32 {s(T[1])}, {s(T[1])}, 15
              s_bfe_u32 {s(T[2])}, {s(T[0])}, 0x10004
              s_lshl_b32 {s(T[2])}, {s(T[2])}, 10
              s_and_b32 {s(T[3])}, {s(T[0])}, {12 if AG else 15}
              s_lshl_b32 {s(T[3])}, {s(T[3])}, 4
              s_add_u32 {s(T[1])}, {s(T[1])}, {s(T[2])}
              s_add_u32 {s(T[1])}, {s(T[1])}, {s(T[3])}
              s_add_u32 {s(T[1])}, {s(T[1])}, {s(T[8])}
              s_lshl_b32 {s(T[2])}, {s(sW)}, 13
              s_add_u32 {s(T[2])}, {s(T[2])}, {WS_A}
              s_add_u32 {s(T[1])}, {s(T[1])}, {s(T[2]) if AG else WS_A}
              v_lshrrev_b32 v5, {4 if AG else 2}, {v(vL)}
              v_lshlrev_b32 v5, 11, v5
              v_bfe_u32 {v(vAst)}, {v(vL)}, {2 if AG else 0}, 2
              v_lshl_add_u32 {v(vAst)}, {v(vAst)}, 8, v5
              v_and_b32 v5, {3 if AG else 0}, {v(vL)}
              v_lshl_add_u32 {v(vAst)}, v5, 4, {v(vAst)}
              v_add_u32 {v(vAst)}, {s(T[1])}, {v(vAst)}
              s_lshl_b32 {s(T[1])}, {s(sW)}, 15
              s_add_u32 {s(T[1])}, {s(T[1])}, {s(T[8])}
              s_add_u32 {s(T[1])}, {s(T[1])}, {WS_A}
              v_add_u32 {v(vAld[0])}, {s(T[1])}, {v(vL16)}
              v_add_u32 {v(vAld[1])}, 0x20000, {v(vAld[0])}
              v_add_u32 {v(vW1)}, 57344, {v(vL16)}
              v_lshrrev_b32 v5, 4, {v(vL)}
              v_and_b32 v23, 15, {v(vL)}
              v_lshlrev_b32 v22, 9, v5
              v_lshl_add_u32 v22, v23, 4, v22
              s_mul_i32 {s(T[4])}, {s(sX)}, {H_X}
              s_add_u32 {s(T[4])}, {s(T[4])}, {WS_H}
              s_mul_i32 {s(T[1])}, {s(sW)}, {H_RB}
              s_mul_i32 {s(T[2])}, {s(sJ)}, 3584
              s_add_u32 {s(T[1])}, {s(T[1])}, {s(T[2])}
              s_add_u32 {s(T[1])}, {s(T[1])}, {s(T[4])}
              v_add_u32 {v(vHm)}, {s(T[1])}, v22
              s_mul_i32 {s(T[1])}, {s(T[10])}, {H_RB}
              s_mul_i32 {s(T[2])}, {s(sW)}, 28672
              s_add_u32 {s(T[1])}, {s(T[1])}, {s(T[2])}
              s_add_u32 {s(T[1])}, {s(T[1])}, {s(T[4])}
              v_add_u32 {v(vHld[0])}, {s(T[1])}, v22
              v_add_u32 {v(vHld[1])}, {H_HALF}, {v(vHld[0])}
              v_cmp_gt_u32 vcc, 48, {v(vL)}
              v_add_u32 {v(vHt)}, 2048, {v(vHm)}
              v_mov_b32 v22, 0x80000000
              v_mul_u32_u24 {v(vRw)}, 272, v23
              v_cndmask_b32 {v(vHt)}, v22, {v(vHt)}, vcc
              v_lshl_add_u32 {v(vRw)}, v5, 4, {v(vRw)}
              s_mul_i32 {s(T[1])}, {s(sW)}, 8704
              s_add_u32 {s(T[1])}, {s(T[1])}, {L_RED}
              v_add_u32 {v(vRw)}, {s(T[1])}, {v(vRw)}
              v_lshrrev_b32 v5, 3, {v(vL)}
              v_mul_u32_u24 {v(vRr)}, 272, v5
              v_lshl_add_u32 {v(vRr)}, {v(vP7)}, 3, {v(vRr)}
              s_mul_i32 {s(T[1])}, {s(sW)}, {8*272}
              s_add_u32 {s(T[1])}, {s(T[1])}, {L_RED}
              v_add_u32 {v(vRr)}, {s(T[1])}, {v(vRr)}
              s_lshl_b32 {s(T[1])}, {s(T[10])}, 5
              s_lshl_b32 {s(T[2])}, {s(sW)}, 3
              s_add_u32 {s(T[1])}, {s(T[1])}, {s(T[2])}
              v_add_u32 v5, {s(T[1])}, v5
              s_lshl_b32 {s(T[2])}, {s(T[11])}, 7
              s_lshl_b32 {s(T[1])}, {s(sX)}, 17
              s_add_u32 {s(T[2])}, {s(T[2])}, {s(T[1])}
              v_lshl_add_u32 v22, {v(vP7)}, 2, {s(T[2])}
              v_lshl_add_u32 {v(vO)}, v5, 10, v22
              s_lshr_b32 {s(T[1])}, {s(T[11])}, 2
              s_lshl_b32 {s(T[1])}, {s(T[1])}, 13
              s_and_b32 {s(T[2])}, {s(T[11])}, 3
              s_lshl_b32 {s(T[2])}, {s(T[2])}, 7
              s_add_u32 {s(T[1])}, {s(T[1])}, {s(T[2])}
              s_lshl_b32 {s(T[2])}, {s(sX)}, 9
              s_add_u32 {s(T[1])}, {s(T[1])}, {s(T[2])}
              s_add_u32 {s(T[1])}, {s(T[1])}, {WS_YP}
              v_lshl_add_u32 {v(vF2)}, {v(vP7)}, 2, {s(T[1])}
              v_lshl_add_u32 {v(vF2)}, v5, 14, {v(vF2)}
              s_mov_b32 {s(sFH)}, 0x100000
              s_lshl_b32 {s(T[1])}, {s(T[0])}, 14
              s_add_u32 {s(T[1])}, {s(T[1])}, {s(T[2])}
              s_add_u32 {s(sFR[0])}, {s(T[1])}, {WS_YP}
              s_add_u32 {s(sFR[1])}, {s(T[1])}, {WS_YP + 4096}
              v_lshrrev_b32 v5, 5, {v(vL)}
              v_lshlrev_b32 v5, 13, v5
              v_lshl_add_u32 {v(vFr)}, {v(vP31)}, 2, v5""")

    W1V = 212
    def w1_addr(self):
        k = self.k; vb = self.W1V; rot = self.o.get('rot', 1)
        k(f"""s_mul_i32 {s(T[0])}, {s(sJ)}, 112
              s_movk_i32 {s(T[1])}, 9363
              s_movk_i32 {s(T[2])}, {3584 - 7*16}
              s_mul_i32 {s(sW1S)}, {s(sW)}, 229376
              s_mul_i32 {s(sW1L)}, {s(sW)}, 14336
              s_and_b32 {s(T[3])}, {s(sX)}, {6 if rot else 0}
              s_and_b32 {s(T[4])}, {s(sX)}, {1 if rot else 0}
              s_cselect_b32 {s(T[5])}, {s(RU)}, {s(RG)}
              s_cselect_b32 {s(T[6])}, {s(RU+1)}, {s(RG+1)}
              s_cselect_b32 {s(RU)}, {s(RG)}, {s(RU)}
              s_cselect_b32 {s(RU+1)}, {s(RG+1)}, {s(RU+1)}
              s_cselect_b32 {s(T[4])}, 7168, 0
              s_lshl_b32 {s(sDEL[0])}, {s(T[4])}, 1
              s_sub_u32 {s(sDEL[0])}, 7168, {s(sDEL[0])}
              s_mov_b32 {s(RG)}, {s(T[5])}
              s_mov_b32 {s(RG+1)}, {s(T[6])}
              s_add_u32 {s(sDEL[1])}, {s(sDEL[0])}, 57344
              s_add_u32 {s(T[4])}, {s(T[4])}, {s(sW1L)}""")
        for i in range(7):
            k(f"""s_add_u32 {s(T[5])}, {s(T[3])}, {i}
                  s_sub_u32 {s(T[6])}, {s(T[5])}, 7
                  s_cselect_b32 {s(T[5])}, {s(T[5])}, {s(T[6])}
                  s_lshl_b32 {s(T[6])}, {s(T[5])}, 10
                  s_add_u32 {s(sROT[i])}, {s(T[6])}, {s(T[4])}
                  v_lshl_add_u32 v5, {s(T[5])}, 6, {v(vL)}
                  v_mul_u32_u24 {v(vb+i)}, {s(T[1])}, v5
                  v_lshrrev_b32 {v(vb+i)}, 16, {v(vb+i)}
                  v_mul_u32_u24 {v(vb+i)}, {s(T[2])}, {v(vb+i)}
                  v_lshl_add_u32 {v(vb+i)}, v5, 4, {v(vb+i)}
                  v_add_u32 {v(vb+i)}, {s(T[0])}, {v(vb+i)}""")

    def w1_dma_text(self, n):
        ck, mat, i = n // 14, (n % 14) // 7, n % 7
        L = []
        if n == 14: L.append(f"s_add_u32 {s(sW1S)}, {s(sW1S)}, {4*229376}")
        L.append(f"s_add_u32 m0, {s(sROT[i])}, {s(sDEL[ck]) if mat else ck*57344}")
        L.append(f"buffer_load_dwordx4 {v(self.W1V+i)}, {s(RU if mat else RG,4)}, {s(sW1S)} offen lds")
        return L
    def w1_dma(self, cnt):
        for _ in range(cnt):
            if self.w1_next >= 28: return
            n = self.w1_next; self.w1_next += 1
            for x in self.w1_dma_text(n): self.w1_tok[n] = self.k(x)

    RL = 222
    def w1_relayout_addr(self):
        k = self.k; r = self.RL
        k(f"""v_lshrrev_b32 v5, 4, {v(vL)}
              v_bfe_u32 {v(r)}, {v(vL)}, 2, 2
              v_lshl_add_u32 {v(r)}, v5, 3, {v(r)}
              v_mul_u32_u24 {v(r)}, 112, {v(r)}
              v_add_u32 {v(r)}, {s(sW1L)}, {v(r)}
              v_and_b32 {v(r+2)}, 3, {v(vL)}
              v_bfe_u32 {v(r+3)}, {v(vL)}, 1, 1
              v_mul_u32_u24 {v(r+3)}, 7168, {v(r+3)}
              v_and_b32 v22, 1, {v(vL)}
              v_lshl_add_u32 {v(r+3)}, v22, 3, {v(r+3)}
              v_add_u32 {v(r+1)}, {v(r)}, {v(r+3)}
              v_lshl_add_u32 {v(r)}, {v(r+2)}, 3, {v(r)}
              v_add_u32 {v(r+2)}, {s(sW1L)}, {v(vL16)}
              v_bfe_u32 {v(r+3)}, {v(vL)}, 1, 2
              v_lshlrev_b32 {v(r+3)}, 2, {v(r+3)}
              v_bfe_u32 v23, {v(vL)}, 3, 1
              v_lshl_add_u32 {v(r+3)}, v23, 1, {v(r+3)}
              v_add_u32 {v(r+3)}, {v(r+3)}, v22
              v_lshl_add_u32 {v(r+3)}, v5, 4, {v(r+3)}
              v_lshlrev_b32 {v(r+3)}, 4, {v(r+3)}
              v_add_u32 {v(r+3)}, {s(sW1L)}, {v(r+3)}""")
    def w1_relayout_items(self, ck, vtemp=False):
        k = self.k; r = self.RL
        R, a = (ACC[1], v) if vtemp else (128, globals()['a'])
        L = [Item(fn=lambda: k.wait(self.w1_tok[14*ck + 13]))]
        if ck == 1: L += [Item(f"v_add_u32 {v(r+i)}, 57344, {v(r+i)}") for i in range(4)]
        for sl in range(2):
            for Tt in range(7):
                for hf in range(2):
                    d = R + (sl*7 + Tt)*4 + 2*hf
                    o = (32*sl + 4*hf)*112
                    if Tt < 6: L.append(Item(f"ds_read_b64_tr_b16 {a(d,2)}, {v(r)} offset:{o + (Tt&1)*7168 + 32*(Tt>>1)}"))
                    else: L.append(Item(f"ds_read_b64_tr_b16 {a(d,2)}, {v(r+1)} offset:{o + 96}"))
        last = L[-1]
        L.append(Item(fn=lambda: k.wait(last.tok)))
        for n in range(14): L.append(Item(f"ds_write_b128 {v(r+3 if n % 7 == 6 else r+2)}, {a(R + n*4, 4)} offset:{n*1024}"))
        return L
    def w1_relayout(self, ck): Queue(self.k, self.w1_relayout_items(ck)).drain()

    JV = 190
    def wd_job_addr(self):
        k = self.k; r = self.JV
        k(f"""s_lshl_b32 {s(T[0])}, s2, 1
              s_lshr_b32 {s(T[1])}, {s(sW)}, 1
              s_add_u32 {s(T[0])}, {s(T[0])}, {s(T[1])}
              s_mul_i32 {s(T[1])}, {s(T[0])}, 4682
              s_lshr_b32 {s(T[1])}, {s(T[1])}, 16
              s_mul_i32 {s(T[2])}, {s(T[1])}, 14
              s_sub_u32 {s(T[2])}, {s(T[0])}, {s(T[2])}
              s_and_b32 {s(T[3])}, {s(T[1])}, 3
              s_lshr_b32 {s(T[1])}, {s(T[1])}, 2
              s_lshl_b32 {s(T[1])}, {s(T[1])}, 7
              s_mul_i32 {s(T[3])}, {s(T[3])}, {8*57344}
              s_add_u32 {s(T[1])}, {s(T[1])}, {s(T[3])}
              s_cmp_lt_u32 s2, 224
              s_cselect_b32 {s(T[3])}, {s(sW)}, 0
              s_bitcmp1_b32 {s(T[3])}, 0
              s_cselect_b32 {s(T[3])}, 0, 0x80000000
              s_mul_i32 {s(T[4])}, {s(T[0])}, {JFS}
              s_add_u32 {s(T[4])}, {s(T[4])}, {WS_JF}
              s_lshr_b32 {s(sJF)}, {s(T[3])}, 1
              s_or_b32 {s(sJF)}, {s(sJF)}, {s(T[4])}
              s_lshl_b32 {s(T[0])}, {s(T[0])}, 12
              s_add_u32 {s(T[0])}, {s(T[0])}, {WS_WDT}
              s_or_b32 {s(T[0])}, {s(T[0])}, {s(T[3])}
              s_or_b32 {s(T[1])}, {s(T[1])}, {s(T[3])}
              v_add_u32 {v(r+5)}, {s(T[0])}, {v(vL16)}
              v_lshrrev_b32 v5, 3, {v(vL)}
              v_and_b32 v22, 3, v5
              v_lshlrev_b32 v22, 3, v22
              v_cmp_gt_u32 vcc, 4, v5
              v_lshl_add_u32 v23, {v(vP7)}, 2, {s(T[1])}
              s_lshl_b32 {s(T[2])}, {s(T[2])}, 2""")
        for g in range(4):
            k(f"""s_add_u32 {s(T[0])}, {s(T[2])}, {g}
                  s_mul_i32 {s(T[1])}, {s(T[0])}, 9363
                  s_lshr_b32 {s(T[1])}, {s(T[1])}, 16
                  s_mul_i32 {s(T[3])}, {s(T[1])}, 7
                  s_sub_u32 {s(T[0])}, {s(T[0])}, {s(T[3])}
                  s_mul_i32 {s(T[1])}, {s(T[1])}, 56
                  s_mul_i32 {s(T[3])}, {s(T[0])}, 0x04040404
                  s_add_u32 {s(T[4])}, {s(T[3])}, 0x13121110
                  s_add_u32 {s(T[3])}, {s(T[3])}, 0x03020100
                  s_cmp_ge_u32 {s(T[0])}, 4
                  s_cselect_b32 {s(T[3])}, {s(T[4])}, {s(T[3])}
                  s_cselect_b32 {s(T[4])}, {sum(x << (8*e) for e, x in enumerate(flist(4)[4:]))}, {s(T[4])}
                  s_cmp_eq_u32 {s(T[0])}, 5
                  s_cselect_b32 {s(T[4])}, {sum(x << (8*e) for e, x in enumerate(flist(5)[4:]))}, {s(T[4])}
                  s_cmp_eq_u32 {s(T[0])}, 6
                  s_cselect_b32 {s(T[4])}, {sum(x << (8*e) for e, x in enumerate(flist(6)[4:]))}, {s(T[4])}
                  v_mov_b32 v5, {s(T[3])}
                  v_mov_b32 {v(r+g)}, {s(T[4])}
                  v_cndmask_b32 v5, {v(r+g)}, v5, vcc
                  v_bfe_u32 v5, v5, v22, 8
                  v_add_u32 v5, {s(T[1])}, v5
                  v_lshl_add_u32 {v(r+g)}, v5, 10, v23""")
        k(f"""s_lshl_b32 {s(sJL)}, {s(sW)}, 12
              s_add_u32 {s(sJL)}, {s(sJL)}, {L_JOB}
              v_lshrrev_b32 v5, 4, {v(vL)}
              v_lshlrev_b32 {v(r+4)}, 10, v5
              v_bfe_u32 v5, {v(vL)}, 2, 2
              v_lshl_add_u32 {v(r+4)}, v5, 7, {v(r+4)}
              v_and_b32 v5, 3, {v(vL)}
              v_lshl_add_u32 {v(r+4)}, v5, 3, {v(r+4)}
              v_add_u32 {v(r+4)}, {s(sJL)}, {v(r+4)}""")
    def wd_job_issue(self):
        for g in range(4): self.job_tok = self.dma(self.JV+g, RD, '0', f"s_add_u32 m0, {s(sJL)}, {1024*g}")
    def wd_job_finish(self):
        k = self.k; r = self.JV
        k.wait(self.job_tok)
        t = {}
        for nt in range(4):
            for hf in range(2): t[nt] = k(f"ds_read_b64_tr_b16 {a(128 + 4*nt + 2*hf, 2)}, {v(r+4)} offset:{hf*512 + nt*32}")
        for nt in range(4):
            k.wait(t[nt])
            self.job_st = k(f"buffer_store_dwordx4 {a(128 + 4*nt, 4)}, {v(r+5)}, {s(RW,4)}, 0 offen offset:{1024*nt} sc1")
    WDV = 226
    def wd_addr(self):
        self.k(f"""s_and_b32 {s(T[0])}, {s(sJ)}, 7
                   s_lshl_b32 {s(T[0])}, {s(T[0])}, 2
                   s_add_u32 {s(T[0])}, {s(T[0])}, {s(sW)}
                   s_mul_i32 {s(sJFp)}, {s(T[0])}, {14*JFS}
                   s_add_u32 {s(sJFp)}, {s(sJFp)}, {WS_JF}
                   s_mul_i32 {s(T[0])}, {s(T[0])}, {14*4096}
                   s_add_u32 {s(T[0])}, {s(T[0])}, {WS_WDT}
                   v_add_u32 {v(vWd[0])}, {s(T[0])}, {v(vL16)}
                   v_add_u32 {v(vWd[1])}, 32768, {v(vWd[0])}
                   v_min_u32 v226, 13, {v(vL)}
                   v_mul_u32_u24 v226, {JFS}, v226""")
    def wd_touch_text(self, i):
        return f"buffer_load_dword {v(228+i)}, v227, {s(RW,4)}, {k4(i)} offen offset:{3072*i} sc1"
    def wd_text(self, n):
        U, nt = divmod(n, 4)
        return f"buffer_load_dwordx4 {a(4*n, 4)}, {v(vWd[U >> 3])}, {s(RW,4)}, {k4(U & 7)} offen offset:{1024*nt}{self.o.get('wdm', ' sc1')}"

    def phase0(self):
        k = self.k
        k(f"""v_lshrrev_b32 v5, 4, {v(vL)}
              v_bfe_u32 v48, {v(vL)}, 2, 2
              v_lshl_add_u32 v49, v5, 4, v48
              v_lshlrev_b32 v49, 7, v49
              v_bfe_u32 v50, {v(vL)}, 1, 1
              s_lshl_b32 {s(T[0])}, {s(sW)}, 1
              v_add_u32 v50, {s(T[0])}, v50
              v_and_b32 v48, 2, v48
              v_xor_b32 v50, v50, v48
              v_and_b32 v48, 1, v5
              v_lshlrev_b32 v48, 2, v48
              v_xor_b32 v50, v50, v48
              v_lshl_add_u32 v49, v50, 4, v49
              v_and_b32 v48, 1, {v(vL)}
              v_lshl_add_u32 v49, v48, 3, v49
              v_add_u32 v49, {L_K}, v49
              v_xor_b32 v50, 64, v49
              v_lshlrev_b32 v51, 12, v27
              v_lshl_add_u32 v51, v5, 5, v51
              s_lshl_b32 {s(T[6])}, {s(sJ)}, 7
              s_add_u32 {s(T[6])}, {s(T[6])}, {WS_KVT}
              v_mul_u32_u24 v52, {self.o.get('xs', 4)//4}, {v(vP31)}
              s_mul_i32 {s(T[7])}, {s(sX)}, {32*self.o.get('xs', 4)}
              s_add_u32 {s(T[7])}, {s(T[7])}, {WS_XCCF}
              s_lshl_b32 {s(T[0])}, {s(sX)}, 9
              s_lshl_b32 {s(T[1])}, {s(sW)}, 7
              s_lshl_b32 {s(T[2])}, {s(sJ)}, 2
              s_add_u32 {s(T[1])}, {s(T[1])}, {s(T[2])}
              s_add_u32 {s(T[0])}, {s(T[0])}, {WS_KVF}
              s_add_u32 {s(T[5])}, {s(T[1])}, {s(T[0])}
              s_xor_b32 {s(T[0])}, {s(sN)}, {s(sXCC)}
              s_mov_b32 {s(sMODE)}, 0
              s_mov_b32 {s(sEXP)}, {s(sN)}""")
        k.wait(self.sh_tok)
        k("s_barrier")
        self.stamp('kv_in')
        xh = k(f"buffer_load_dword v53, v52, {s(RW,4)}, {s(T[7])} offen sc1")
        KR, VR, KS, O, VU, P = 56, 68, 78, 88, 104, 120
        k(f"ds_read_b64_tr_b16 {v(KR,2)}, v50 offset:512")
        for i in range(4): k(f"ds_read_b64_tr_b16 {v(KR+2+2*i,2)}, v49 offset:{1024 + 512*i}")
        for i in range(4): lastv = k(f"ds_read_b64_tr_b16 {v(VR+2*i,2)}, v49 offset:{L_V - L_K + 512*i}")
        k("v_alignbit_b32 v54, v30, v30, 16\nv_alignbit_b32 v55, v31, v31, 16")
        k.wait(('lg', lastv[1] - 4))
        for aa in range(-1, 8): k(f"v_alignbit_b32 {v(KS+1+aa)}, {v(KR+2+aa)}, {v(KR+1+aa)}, 16")
        for aa in range(8):
            k(f"v_dot2_f32_bf16 {v(O+2*aa)}, {v(KS+aa)}, v55, 0")
            k(f"v_dot2_f32_bf16 {v(O+2*aa+1)}, {v(KR+1+aa)}, v55, 0")
        for aa in range(8):
            k(f"v_dot2_f32_bf16 {v(O+2*aa)}, {v(KS+1+aa)}, v54, {v(O+2*aa)}")
            k(f"v_dot2_f32_bf16 {v(O+2*aa+1)}, {v(KR+2+aa)}, v54, {v(O+2*aa+1)}")
        k.wait(lastv)
        for g in range(2):
            for aa in range(4*g, 4*g+4):
                k(f"v_lshlrev_b32 {v(VU+2*aa)}, 16, {v(VR+aa)}")
                k(f"v_and_b32 {v(VU+2*aa+1)}, 0xffff0000, {v(VR+aa)}")
            for aa in range(4*g, 4*g+4): k(f"v_pk_mul_f32 {v(O+2*aa,2)}, {v(O+2*aa,2)}, {v(VU+2*aa,2)}")
            for e in range(4): k(f"v_cvt_pk_bf16_f32 {v(P+4*g+e)}, {v(O+8*g+7-2*e)}, {v(O+8*g+6-2*e)}")
            st = k(f"buffer_store_dwordx4 {v(P+4*g,4)}, v51, {s(RW,4)}, {s(T[6])} offen offset:{16*g}")
        self.stamp('kv_st')
        self.toeplitz_write()
        slow, back, done = k.label(), k.label(), k.label()
        k.wait(xh)
        k(f"v_cmp_ne_u32 vcc, {s(T[0])}, v53\ns_cbranch_vccnz {slow}")
        k.place(back)
        self.tail.append([f"{slow}:",
            f"buffer_load_dword v53, v52, {s(RW,4)}, {s(T[7])} offen sc1", "s_waitcnt vmcnt(0)",
            f"v_xor_b32 v54, {s(sN)}, v53", "v_cmp_lt_u32 vcc, 15, v54", f"s_cbranch_vccz {done}",
            f"s_sub_u32 {s(sSPIN)}, {s(sSPIN)}, 1", f"s_cbranch_scc0 {slow}", "s_branch L_END",
            f"{done}:", f"v_cmp_ne_u32 vcc, {s(T[0])}, v53", f"s_cbranch_vccz {back}",
            f"s_mov_b32 {s(sMODE)}, 1", f"s_not_b32 {s(sEXP)}, {s(sN)}", f"s_branch {back}"])
        if not self.o.get('fake_kv'): self.publish(st, s(T[5]))
        self.stamp('kv_pub')

    def toeplitz_write(self):
        k = self.k
        k.wait(self.h_tok)
        k(f"v_add_u32 v48, {SCR}, v29")
        for ch in range(2):
            k(f"ds_write_b128 v48, {v(32+8*ch,4)} offset:{H_E(ch) - SCR}")
            k(f"ds_write_b128 v48, {v(36+8*ch,4)} offset:{H_O(ch) - SCR}")
        skip = k.label()
        k(f"s_cmp_lg_u32 {s(sW)}, 0\ns_cbranch_scc1 {skip}")
        k(f"""v_readfirstlane_b32 {s(T[1])}, v32
              v_readfirstlane_b32 {s(T[2])}, v40
              v_cmp_eq_u32 vcc, 28, {v(vP7)}
              v_add_u32 v49, {SCR}, {v(vP7)}
              s_lshl_b32 {s(T[1])}, {s(T[1])}, 16
              s_lshl_b32 {s(T[2])}, {s(T[2])}, 16
              v_mov_b32 v50, 0
              v_mov_b32 v51, 0
              v_mov_b32 v54, {s(T[1])}
              v_mov_b32 v55, {s(T[2])}
              v_cndmask_b32 v54, v50, v54, vcc
              v_cndmask_b32 v55, v50, v55, vcc
              ds_write_b32 v49, v50 offset:{H_E(0) - 32 - SCR}
              ds_write_b32 v49, v50 offset:{H_E(1) - 32 - SCR}
              ds_write_b32 v49, v54 offset:{H_O(0) - 32 - SCR}
              ds_write_b32 v49, v55 offset:{H_O(1) - 32 - SCR}
              v_lshlrev_b32 v49, 3, {v(vL)}
              v_add_u32 v49, {L_U}, v49
              ds_write_b64 v49, v[50:51]
              ds_write_b64 v49, v[50:51] offset:{U_S}""")
        k.place(skip)

    YA = 146
    def front_addr(self):
        k = self.k; o = self.o; Y = self.YA; yfs = o.get('yfs', 4)
        k(f"""v_and_b32 v24, 15, {v(vL)}
              v_lshrrev_b32 v25, 4, {v(vL)}
              v_lshlrev_b32 v5, 3, v25
              v_sub_u32 v26, v24, v5
              v_add_u32 v26, 9, v26
              v_and_b32 v5, 1, v26
              v_sub_u32 v26, v26, v5
              v_lshlrev_b32 v26, 1, v26
              v_mul_u32_u24 v5, {H_O(0) - H_E(0)}, v5
              v_add_u32 v26, v26, v5
              s_lshr_b32 {s(T[0])}, {s(sW)}, 1
              s_mul_i32 {s(T[2])}, {s(T[0])}, {H_E(1) - H_E(0)}
              s_and_b32 {s(T[1])}, {s(sW)}, 1
              s_lshl_b32 {s(T[3])}, {s(T[1])}, 8
              s_add_u32 {s(T[2])}, {s(T[2])}, {s(T[3])}
              s_add_u32 {s(T[2])}, {s(T[2])}, {H_E(0)}
              v_add_u32 v152, {s(T[2])}, v26
              s_mul_i32 {s(T[4])}, {s(T[0])}, {U_S}
              s_add_u32 {s(T[4])}, {s(T[4])}, {L_U + 512}
              s_lshl_b32 {s(T[2])}, {s(T[1])}, 11
              s_add_u32 {s(sUm0)}, {s(T[4])}, {s(T[2])}
              s_sub_u32 {s(T[4])}, {s(T[4])}, {s(T[3])}
              s_sub_u32 {s(T[4])}, {s(T[4])}, 224
              v_lshlrev_b32 v140, 5, v24
              v_lshl_add_u32 v140, v25, 4, v140
              v_add_u32 v140, {s(T[4])}, v140
              s_lshl_b32 {s(T[0])}, {s(sX)}, 9
              s_lshr_b32 {s(T[1])}, {s(sJ)}, 3
              s_lshl_b32 {s(T[1])}, {s(T[1])}, 7
              s_add_u32 {s(T[1])}, {s(T[0])}, {s(T[1])}
              s_add_u32 {s(sKVFp)}, {s(T[1])}, {WS_KVF}
              s_lshl_b32 {s(T[1])}, {s(sJ)}, 4
              s_add_u32 {s(T[0])}, {s(T[0])}, {s(T[1])}
              s_add_u32 {s(sYld)}, {s(T[0])}, {WS_YP}
              s_lshl_b32 {s(T[0])}, {s(sX)}, 18
              s_lshl_b32 {s(T[1])}, {s(sJ)}, 13
              s_add_u32 {s(T[0])}, {s(T[0])}, {s(T[1])}
              s_lshl_b32 {s(T[2])}, {s(sW)}, 11
              s_add_u32 {s(T[1])}, {s(T[0])}, {s(T[2])}
              s_add_u32 {s(sKVs)}, {s(T[1])}, {WS_KVT}
              s_lshl_b32 {s(T[2])}, {s(sW)}, 10
              s_add_u32 {s(T[1])}, {s(T[0])}, {s(T[2])}
              s_add_u32 {s(sYst)}, {s(T[1])}, {WS_YP}
              v_lshlrev_b32 v141, 5, v24
              v_lshrrev_b32 v5, 1, v25
              v_lshl_add_u32 v141, v5, 4, v141
              v_and_b32 v5, 1, v25
              v_xor_b32 v5, 1, v5
              v_lshl_add_u32 v141, v5, 3, v141
              s_lshl_b32 {s(T[0])}, {s(sW)}, 9
              s_add_u32 {s(T[1])}, {s(T[0])}, {L_U + 512}
              v_add_u32 v141, {s(T[1])}, v141
              s_add_u32 {s(T[1])}, {s(T[2])}, {L_YT}
              v_add_u32 {v(Y+3)}, {s(T[1])}, {v(vL16)}
              s_lshl_b32 {s(T[0])}, {s(sW)}, 12
              s_add_u32 {s(T[0])}, {s(T[0])}, {L_CRED}
              v_add_u32 v142, {s(T[0])}, {v(vL16)}
              s_add_u32 {s(T[0])}, {s(T[2])}, {L_CRED}
              v_add_u32 v143, {s(T[0])}, {v(vL16)}
              v_lshlrev_b32 v144, 6, v24
              v_lshl_add_u32 v144, v25, 4, v144
              v_add_u32 v145, 4096, v144
              s_lshl_b32 {s(T[0])}, {s(sX)}, 5
              s_add_u32 {s(T[0])}, {s(T[0])}, {s(sJ)}
              s_lshl_b32 {s(T[0])}, {s(T[0])}, 2
              s_add_u32 {s(T[0])}, {s(T[0])}, {s(T[2])}
              s_mul_i32 {s(T[0])}, {s(T[0])}, {yfs//4}
              s_add_u32 {s(sYFs)}, {s(T[0])}, {WS_YF}
              v_lshlrev_b32 {v(Y+2)}, 2, v0
              v_mul_u32_u24 {v(Y)}, {yfs}, v0
              s_lshr_b32 {s(T[0])}, {s(sX)}, 1
              s_mul_i32 {s(T[0])}, {s(T[0])}, {256*yfs}
              s_add_u32 {s(sYFp)}, {s(T[0])}, {WS_YF}
              v_lshlrev_b32 {v(Y+1)}, 13, v0
              v_add_u32 {v(Y+2)}, {L_YT}, {v(Y+2)}""")
        for p in range(1, 8): k(f"v_add_u32 {v(152+p)}, {512*p}, v152")

    def conv_finish(self, h, C, pk):
        KV, P = 32, 160 + 16*h
        W = [f"ds_write_b128 v142, {v(C + 16*h + 4*c, 4)} offset:{16384*h + 1024*c}" for c in range(4)]
        R = [f"ds_read_b64 {v(KV + 4*h + 2*ch, 2)}, v141 offset:{2048*h + ch*U_S}" for ch in range(2)]
        R2 = [f"ds_read_b128 {v(P + 4*w, 4)}, v143 offset:{16384*h + 4096*w}" for w in range(4)]
        L = []
        for ch in range(2):
            if pk: L += [f"v_pk_add_f32 {v(P+8*ch+e,2)}, {v(P+8*ch+e,2)}, {v(P+8*ch+4+e,2)}" for e in (0, 2)]
            else: L += [f"v_add_f32 {v(P+8*ch+e)}, {v(P+8*ch+e)}, {v(P+8*ch+4+e)}" for e in range(4)]
        D = [f"v_dot2_f32_bf16 {v(P+8*ch+e)}, {v(KV+4*h+2*ch+(1-(e>>1)))}, {s(sD+2*ch+(1-(e&1)))}, {v(P+8*ch+e)}" for e in range(4) for ch in range(2)]
        E = [f"v_cvt_pk_bf16_f32 {v(P+4+e)}, {v(P+e)}, {v(P+8+e)}" for e in range(4)]
        E.append(f"buffer_store_dwordx4 {v(P+4,4)}, {v(144+h)}, {s(RW,4)}, {s(sYst)} offen sc1")
        return W, R, R2, L, D, E

    def conv(self):
        k = self.k; o = self.o; Y = self.YA
        def tz(rr, p):
            d = (rr*8 + p)*4
            return [f"ds_read2_b32 {a(d,2)}, {v(152+p)} offset0:{16*rr} offset1:{16*rr+1}",
                    f"ds_read2_b32 {a(d+2,2)}, {v(152+p)} offset0:{16*rr+2} offset1:{16*rr+3}"]
        first = [x for rr in range(4) for p in range(4) for x in tz(rr, p)]
        second = [x for rr in range(4) for p in range(4, 8) for x in tz(rr, p)]
        k.wait_lg0()
        k("s_barrier")
        n0 = o.get('toep0', 20)
        if not o.get('fake_kv'): ph = self.poll_issue(vP31, s(sKVFp))
        for x in first[:n0]: k(x)
        self.stamp('toep')
        if not o.get('fake_kv'): self.poll_check(ph)
        self.stamp('kv_seen')
        k(f"s_mov_b32 m0, {s(sUm0)}")
        k(f"buffer_load_dwordx4 {v(vL16)}, {s(RW,4)}, {s(sKVs)} offen sc1 lds")
        tok = k(f"buffer_load_dwordx4 {v(vL16)}, {s(RW,4)}, {s(sKVs)} offen offset:1024 sc1 lds")
        for x in first[n0:]: k(x)
        k.wait(tok)
        k("s_barrier")
        self.stamp('u_in')
        B, C = 64, 96
        uses = [(0, rr, q) for rr in range(4) for q in range(4)] + [(1, rr, q) for rr in range(4) for q in range(8)]
        bt = {}
        def rdB(i):
            part, rr, q = uses[i]
            bt[i] = k(f"ds_read_b128 {v(B + 4*(i % 8), 4)}, v140 offset:{512*q + 64*(3-rr)}")
        for i in range(8): rdB(i)
        pre = []
        if o.get('jpos', 0) == 0: self.wd_job_issue()
        if not o.get('joint', 1): self.q_load()
        tq = Queue(k, [Item(x) for x in second]); tits = list(tq.q)
        n2 = o.get('n2', 11); dq = []
        for i in range(n2):
            if self.w1_next >= 14: break
            n = self.w1_next; self.w1_next += 1
            for x in self.w1_dma_text(n): dq.append(Item(x, at=o.get('n2at', 2) + i*(o.get('n2span', 130) // n2), tag=n))
        dits = list(dq)
        if o.get('qpos', 1) == 2:
            dq.append(Item(fn=self.q_issue, cost=2, at=o.get('q_at', 30))); dq.sort(key=lambda x: x.at)
        dq = Queue(k, dq)
        side = Queue(k, []); ybox = []
        m = 0; started = set()
        for i, (part, rr, q) in enumerate(uses):
            need = []
            if part == 1 and q == 0:
                while any(x.tok is None for x in tits[:8*rr + 8]): tq.emit(tq.q[0])
                need = [tits[8*rr + 7].tok]
            if part == 1 and rr == 0 and q == 0:
                W, R, R2, L, D, E = self.conv_finish(0, C, False)
                its = [Item(x, cost=2, at=m + 3 + 2*n) for n, x in enumerate(W)] + [Item(x) for x in R]
                its += [Item(fn=lambda: k.wait_lg0(), at=m + 16), Item(fn=lambda: k("s_barrier"))]
                its += [Item(x) for x in R2]; lastr = its[-1]
                its += [Item(fn=lambda: k.wait(lastr.tok), at=m + 26)] + [Item(x) for x in L]
                its += [Item(fn=lambda: [k(x) for x in D], cost=2)] + [Item(x) for x in E]
                ysA = its[-1]
                if not o.get('joint', 1): its += [Item(fn=lambda: k.wait(ysA.tok), at=o.get('ya_pub', 118)), Item(fn=lambda: self.flag_store(s(sYFs), 0, False))]
                side = Queue(k, its)
            if i % 2 == 0: k.wait(bt[i + 1], *need)
            ps = range(4 - q) if part == 0 else range(max(0, 4 - q), 8 - q)
            for n, p in enumerate(ps):
                c = C + 4*(p + q)
                src = v(c, 4) if (p + q) in started else '0'
                started.add(p + q)
                k(f"v_mfma_f32_16x16x32_bf16 {v(c,4)}, {a((rr*8+p)*4,4)}, {v(B + 4*(i % 8),4)}, {src}")
                m += 1
                cap = 2
                if n == len(ps) - 1: cap -= (1 if i + 8 < len(uses) else 0) + (i % 2)
                cap = side.fill(cap, m)
                cap = dq.fill(cap, m)
                tq.fill(min(cap, 1))
            if i + 8 < len(uses): rdB(i + 8)
        print('conv left:', side.cost(), dq.cost())
        dq.drain()
        for x in dits: self.w1_tok[x.tag] = x.tok
        self.stamp('conv_mfma')
        W, R, R2, L, D, E = self.conv_finish(1, C, True)
        for x in R + W: k(x)
        side.drain()
        k.wait_lg0()
        k("s_barrier")
        for x in R2: k(x)
        if not o.get('joint', 1): pa = self.poll_issue(Y, s(sYFp))
        k.wait_lg0()
        self.ysB = self.run(L + D + E)[-1].tok
        self.stamp('y_st')
        if not o.get('joint', 1):
            self.poll_check(pa, False)
            self.stamp('y_seen')

    def y_joint(self):
        k = self.k; o = self.o; Y = self.YA
        self.wd_job_finish()
        self.persistent()
        if not o.get('fake_y'):
            self.publish(self.ysB, s(sYFs), local=False)
            self.stamp('y_pub')
            if not o.get('jlate', 0): self.publish(self.job_st, s(sJF), local=False)
        k("s_barrier")
        done0 = self.w1_next >= 14
        if o.get('qpos', 1) == 1: self.q_load()
        self.w1_dma(o.get('n3', 4))
        self.w1_relayout_addr()
        self.wd_addr()
        k(f"s_add_u32 {s(T[8])}, {s(sYld)}, 4096")
        if o.get('qpos', 1) == 2: self.q_stats()
        if o.get('jlate', 0): self.publish(self.job_st, s(sJF), local=False)
        if done0: self.w1_relayout(0)
        if o.get('qpos', 1) == 1: self.q_stats()
        k(f"s_mul_i32 {s(sAG[0])}, {s(sW)}, 1088\ns_add_u32 {s(sAG[0])}, {s(sAG[0])}, {L_AG2}\ns_lshl_b32 {s(sAG[1])}, {s(sW)}, 8\ns_add_u32 {s(sAG[1])}, {s(sAG[1])}, {L_AG2}")
        self.run(self.ag_addr(100))
        self.stamp('rl0')
        if not o.get('fake_y'): self.poll(Y, s(sYFp), local=False)
        else: self.publish(self.job_st, s(sJF), local=False)
        self.stamp('y_seen')
        t0 = k(f"buffer_load_dwordx4 v[32:35], {v(Y+1)}, {s(RW,4)}, {s(sYld)} offen sc1")
        t1 = k(f"buffer_load_dwordx4 v[36:39], {v(Y+1)}, {s(RW,4)}, {s(T[8])} offen sc1")
        if o.get('jlate', 0) < 2: pj = self.poll_issue(226, s(sJFp), 0, 229)
        self.w1_dma(o.get('n4', 6))
        if o.get('tch_h', 0) == 1: k(self.touch_h_text())
        if not done0 and self.w1_next >= 14: self.w1_relayout(0); done0 = True
        k.wait(t0)
        for e in range(4): k(f"ds_write_b32 {v(Y+2)}, {v(32+e)} offset:{1024*e}")
        k.wait(t1)
        for e in range(4): k(f"ds_write_b32 {v(Y+2)}, {v(36+e)} offset:{1024*(4+e)}")
        k.wait_lg0()
        k("s_barrier")
        for h in range(2): k(f"ds_read_b128 {v(YS[h],4)}, {v(Y+3)} offset:{4096*h}")
        k.wait_lg0()
        self.stamp('y_in')
        its = self.run(self.gate_norm([0, 1], self.N0, 0, 56))
        sts = self.a_out([0, 1], 56, 0) if o.get('ag', 1) else [x.tok for x in its if 'store' in x.text]
        self.stamp('a_st')
        if o.get('jlate', 0) < 2: self.poll_check(pj, False)
        if done0: self.gemm1_start(0)
        self.publish(sts[0], s(sAFs), 0)
        self.publish(sts[1], s(sAFs), 512)
        k(f"s_or_b32 {s(T[0])}, s2, {s(sW)}\ns_cmp_eq_u32 {s(T[0])}, 0\ns_cselect_b32 {s(T[0])}, 0, 0x40000000")
        k(f"buffer_store_dword {v(vNON)}, {v(vL0)}, {s(RW,4)}, {s(T[0])} offen sc1")
        self.stamp('a_pub')
        self.rl1_done = bool(o.get('rl1_front', 0)); self.rowb_done = True
        self.wd0 = o.get('wd0', 0)
        for n in range(self.wd0): k(self.wd_text(n))
        self.w1_dma(28 if self.rl1_done else o.get('n5', 4))
        if self.w1_next < 28:
            for i in range(7): k(f"v_mov_b32 {v(126+i)}, {v(self.W1V+i)}")
            self.W1V = 126
        if not done0: self.w1_relayout(0)
        if self.rl1_done: self.w1_relayout(1)
        if self.rl1_done or not done0: k.wait_lg0(); k("s_barrier")
        if not done0: self.gemm1_start(0)

    def stats(self, rows, out, t0, scale=None):
        L = []; n = len(rows)
        for i, x in enumerate(rows):
            b = t0 + 6*i
            L += [f"v_pk_add_f32 {v(b,2)}, {v(x,2)}, {v(x+2,2)}", f"v_pk_mul_f32 {v(b+2,2)}, {v(x,2)}, {v(x,2)}",
                  f"v_pk_add_f32 {v(b+4,2)}, {v(x+4,2)}, {v(x+6,2)}"]
            L += [f"v_pk_fma_f32 {v(b+2,2)}, {v(x+e,2)}, {v(x+e,2)}, {v(b+2,2)}" for e in (2, 4, 6)]
            L += [f"v_pk_add_f32 {v(b,2)}, {v(b,2)}, {v(b+4,2)}", f"v_add_f32 {v(b+2)}, {v(b+2)}, {v(b+3)}", f"v_add_f32 {v(b)}, {v(b)}, {v(b+1)}"]
        for ctl in ("row_ror:8 row_mask:0xf", "row_ror:4 row_mask:0xf", "row_ror:2 row_mask:0xf", "row_ror:1 row_mask:0xf",
                    "row_bcast:15 row_mask:0xa", "row_bcast:31 row_mask:0xc"):
            for i in range(n):
                for e in (2, 0):
                    r = t0 + 6*i + e
                    L.append(f"v_add_f32_dpp {v(r)}, {v(r)}, {v(r)} {ctl} bank_mask:0xf")
        for i in range(n):
            b = t0 + 6*i
            L += [f"v_mul_f32 {v(b)}, 0x3b000000, {v(b)}", f"v_mul_f32 {v(b+2)}, 0x3b000000, {v(b+2)}",
                  f"v_fma_f32 {v(b+2)}, -{v(b)}, {v(b)}, {v(b+2)}", f"v_max_f32 {v(b+2)}, 0, {v(b+2)}",
                  f"v_add_f32 {v(b+2)}, 0x3727c5ac, {v(b+2)}", f"v_rsq_f32 {v(b+2)}, {v(b+2)}"]
            if scale: L.append(f"v_mul_f32 {v(b+2)}, {f32(scale)}, {v(b+2)}")
            L += [f"v_mul_f32_e64 {v(b)}, -{v(b)}, {v(b+2)}", f"v_readlane_b32 {s(out[i])}, {v(b+2)}, 63",
                  f"v_readlane_b32 {s(out[i]+2)}, {v(b)}, 63", f"v_mov_b32 {v(b+4)}, {s(out[i]+2)}"]
        return L
    def unpack(self, dst, src):
        L = []
        for e in range(4): L += [f"v_lshlrev_b32 {v(dst+2*e)}, 16, {v(src+e)}", f"v_and_b32 {v(dst+2*e+1)}, 0xffff0000, {v(src+e)}"]
        return L
    def affine(self, dst, x, sp, vb):
        return [f"v_pk_fma_f32 {v(dst+e,2)}, {v(x+e,2)}, {s(sp,2)}, {v(vb,2)} op_sel_hi:[1,0,0]" for e in (0, 2, 4, 6)]
    def run(self, L, look=12):
        its = [Item(x) for x in L]
        Queue(self.k, its, look).drain()
        return its

    def gate_norm(self, halves, nrm, layer, R):
        L = []; sp = [36, 40]
        t0 = R + 16*len(halves)
        for i, h in enumerate(halves):
            L += self.unpack(R + 16*i, YS[h])
            L += [f"v_pk_fma_f32 {v(XS[h]+e,2)}, {v(nrm[h]+e,2)}, {v(R+16*i+e,2)}, {v(XS[h]+e,2)}" for e in (0, 2, 4, 6)]
        L += self.stats([XS[h] for h in halves], sp[:len(halves)], t0, LOG2E)
        for i, h in enumerate(halves):
            b = R + 16*i
            L += self.affine(b, XS[h], sp[i], t0 + 6*i + 4)
            L += [f"v_cvt_pk_bf16_f32 {v(b+8+e)}, {v(b+2*e)}, {v(b+2*e+1)}" for e in range(4)]
            if self.o.get('ag', 1): L.append(f"ds_write_b128 {v(self.agw)}, {v(b+8,4)} offset:{ag_off(layer, h)}")
            else: L.append(f"buffer_store_dwordx4 {v(b+8,4)}, {v(vAst)}, {s(RW,4)}, {s(sHALF) if h else 0} offen")
            if layer == 1:
                L += [f"v_cvt_pk_bf16_f32 {v(b+12+e)}, {v(XS[h]+2*e)}, {v(XS[h]+2*e+1)}" for e in range(4)]
                L.append(f"buffer_store_dwordx4 {v(b+12,4)}, {v(vFr)}, {s(RW,4)}, {s(sFR[h])} offen{self.o.get('x3m', '')}")
        return L

    def ag_addr(self, r):
        if not self.o.get('ag', 1): return []
        self.agw, self.agr = r, r + 1
        return [f"v_bfe_u32 {v(r+1)}, {v(vL16)}, 4, 2", f"v_mul_u32_u24 {v(r+1)}, 1088, {v(r+1)}", f"v_lshrrev_b32 {v(r)}, 6, {v(vL16)}",
                f"v_lshl_add_u32 {v(r+1)}, {v(r)}, 4, {v(r+1)}", f"v_add_u32 {v(r+1)}, {s(sAG[1])}, {v(r+1)}", f"v_add_u32 {v(r)}, {s(sAG[0])}, {v(vL16)}"]
    def a_out(self, halves, R, layer, between=None):
        k = self.k
        if between: between()
        k.wait_lg0(); k("s_barrier")
        t = [k(f"ds_read_b128 {v(R + 4*i, 4)}, {v(self.agr)} offset:{ag_off(layer, h)}") for i, h in enumerate(halves)]
        out = []
        for i, h in enumerate(halves):
            k.wait(t[i])
            out.append(k(f"buffer_store_dwordx4 {v(R + 4*i, 4)}, {v(vAst)}, {s(RW,4)}, {s(sHALF) if h else 0} offen"))
        return out

    N0 = [40, 118]
    def q_stats(self):
        k = self.k
        k.wait(self.q_tok)
        L = []
        for h in range(2): L += self.unpack(XS[h], 204 + 4*h)
        L += self.stats(XS, [36, 40], 128)
        for h in range(2): L += self.affine(self.N0[h], XS[h], [36, 40][h], 128 + 6*h + 4)
        self.run(L)

    def y_row(self, h, t, raw):
        k = self.k; Y = self.YA
        k.wait(t)
        for e in range(4): k(f"ds_write_b32 {v(Y+2)}, {v(raw+e)} offset:{4096*h + 1024*e}")
        k.wait_lg0()
        k("s_barrier")
        k(f"ds_read_b128 {v(YS[h],4)}, {v(Y+3)} offset:{4096*h}")
        k.wait_lg0()

    def y_in(self):
        k = self.k; o = self.o; Y = self.YA
        t0 = k(f"buffer_load_dwordx4 v[32:35], {v(Y+1)}, {s(RW,4)}, {s(sYld)} offen sc1")
        k(f"s_add_u32 {s(sYFs)}, {s(sYFs)}, {1024*o.get('yfs', 4)}\ns_add_u32 {s(sYFp)}, {s(sYFp)}, {1024*o.get('yfs', 4)}\ns_add_u32 {s(sYld)}, {s(sYld)}, 4096")
        self.publish(self.ysB, s(sYFs), local=False)
        self.stamp('y_pub')
        if o.get('jpos', 0) == 0: self.wd_job_finish()
        self.q_stats()
        self.persistent()
        k("s_barrier")
        self.w1_dma(o.get('n4', 6))
        self.y_row(0, t0, 32)
        self.stamp('y_in')
        its = self.run(self.gate_norm([0], self.N0, 0, 56))
        st = [x.tok for x in its if 'store' in x.text][0]
        self.stamp('a_st')
        for i in range(4): k(f"v_mov_b32 {v(110+i)}, {v(Y+i)}")
        self.YA = 110
        if self.w1_next + o.get('n5', 28) < 28:
            for i in range(7): k(f"v_mov_b32 {v(126+i)}, {v(self.W1V+i)}")
            self.W1V = 126
        self.w1_relayout_addr()
        self.publish(st, s(sAFs), 0)
        self.flag_store(s(sJF), 0, False)
        k(f"s_or_b32 {s(T[0])}, s2, {s(sW)}\ns_cmp_eq_u32 {s(T[0])}, 0\ns_cselect_b32 {s(T[0])}, 0, 0x40000000")
        k(f"buffer_store_dword {v(vNON)}, {v(vL0)}, {s(RW,4)}, {s(T[0])} offen sc1")
        self.stamp('a_pub')
        self.w1_dma(o.get('n5', 28))
        self.w1_relayout(0)
        self.wd_addr()
        self.rl1_done = bool(o.get('rl1_front', 1))
        if self.rl1_done:
            if o.get('rowb_front', 1): self.row_b0()
            self.w1_relayout(1)
        k.wait_lg0(); k("s_barrier")
        self.stamp('w1')
        self.gemm1_start(0)

    def row_b0(self, h0=None):
        k = self.k; Y = self.YA
        if h0 is None:
            self.poll(Y, s(sYFp), local=False)
            h0 = k(f"buffer_load_dwordx4 v[106:109], {v(Y+1)}, {s(RW,4)}, {s(sYld)} offen sc1")
        self.y_row(1, h0, 106)
        its = self.run(self.gate_norm([1], self.N0, 0, ACC[1]))
        self.aB_tok = [x.tok for x in its if 'store' in x.text][0]
        self.rowb_done = True
        if self.o.get('rowb_front', 1) and self.rl1_done: self.publish(self.aB_tok, s(sAFs), 512)

    def epilogue1(self, B, half, off, pk, sc=''):
        L = []; so = s(sHH) if half else '0'
        if not sc and self.o.get('hst_nt'): sc = ' nt'
        def grp(g, u, n, outs, t):
            for e in range(n): L.append(f"v_exp_f32_e64 {v(t+e)}, -{v(g+e)}")
            if pk:
                for e in range(0, n, 2): L.append(f"v_pk_mul_f32 {v(u+e,2)}, {v(g+e,2)}, {v(u+e,2)}")
                for e in range(0, n, 2): L.append(f"v_pk_fma_f32 {v(t+e,2)}, {v(t+e,2)}, {s(sC2,2)}, {s(sC2,2)}")
            else:
                for e in range(n): L.append(f"v_mul_f32 {v(u+e)}, {v(g+e)}, {v(u+e)}")
                for e in range(n): L.append(f"v_fma_f32 {v(t+e)}, {v(t+e)}, {s(sC2)}, {s(sC2)}")
            for e in range(n): L.append(f"v_rcp_f32 {v(t+e)}, {v(t+e)}")
            if pk:
                for e in range(0, n, 2): L.append(f"v_pk_mul_f32 {v(u+e,2)}, {v(u+e,2)}, {v(t+e,2)}")
            else:
                for e in range(n): L.append(f"v_mul_f32 {v(u+e)}, {v(u+e)}, {v(t+e)}")
            for e in range(0, n, 2): L.append(f"v_cvt_pk_bf16_f32 {v(outs[e//2])}, {v(u+e)}, {v(u+e+1)}")
        grp(B, B+4, 4, [B, B+1], TMP)
        grp(B+8, B+12, 4, [B+2, B+3], TMP+4)
        L.append(f"buffer_store_dwordx4 {v(B,4)}, {v(vHm)}, {s(RW,4)}, {so} offen offset:{off}{sc}")
        grp(B+16, B+20, 4, [B+8, B+9], TMP)
        grp(B+24, B+26, 2, [B+10], TMP+4)
        Z, C, A_ = B+4, B+5, B+6
        L += [f"v_mov_b32 {v(C)}, {v(B+8)}", f"v_mov_b32 {v(A_)}, {v(B+9)}", f"v_mov_b32 {v(Z)}, {v(B+10)}",
              f"v_permlane32_swap_b32 {v(A_)}, {v(B+11)}", f"v_permlane32_swap_b32 {v(C)}, {v(Z)}",
              f"v_permlane16_swap_b32 {v(Z)}, {v(B+11)}",
              f"buffer_store_dwordx4 {v(B+8,4)}, {v(vHt)}, {s(RW,4)}, {so} offen offset:{off}{sc}"]
        return L

    def a_plan(self, layer):
        n = self.o.get('ring0', 8) if layer == 0 else self.o.get('ring1', 6)
        ring = ([('v', AR + 8*i) for i in range(4)] + [('a', 224 + 8*i) for i in range(4)])[:n]
        reg = {gs: ring[gs % n] for gs in range(32)}
        issue = {}
        for gs in range(32):
            prev = [p for p in range(gs) if reg[p] == reg[gs]]
            issue[gs] = prev[-1] + 1 if prev else -1
        return reg, issue

    def gemm1_start(self, layer):
        k = self.k
        self.wt, self.at = {}, {}
        self.areg, self.aiss = self.a_plan(layer)
        for Tt in range(7): self.rdW(0, Tt)
    def rdW(self, gs, Tt):
        st = gs % 16
        base, o = (vL16, st*7168) if st < 8 else (vW1, (st-8)*7168)
        self.wt[(gs, Tt)] = self.k(f"ds_read_b128 {v(WF + 28*(gs&1) + 4*Tt, 4)}, {v(base)} offset:{o + 1024*Tt}")
    def afrag(self, gs, mt):
        kind, b = self.areg[gs]
        return (v if kind == 'v' else a)(b + 4*mt, 4)
    def ldA(self, gs, mt):
        st = gs % 16
        self.at[(gs, mt)] = self.k(f"buffer_load_dwordx4 {self.afrag(gs, mt)}, {v(vAld[gs // 16])}, {s(RW,4)}, {k4(st>>1)} offen offset:{((st&1)*2+mt)*1024} sc1")

    def gemm1(self, layer):
        k = self.k; o = self.o
        lo = 1024*layer
        if layer: self.poll_check(self.a_poll)
        else: self.poll(vP31, s(sAFp), lo)
        self.stamp(f'a_seen{layer}')
        todo = sorted(range(32), key=lambda g: g)
        nxtA = 0
        while self.aiss[nxtA] < 0 and nxtA < o.get('a_init', 5):
            for mt in range(2): self.ldA(nxtA, mt)
            nxtA += 1
        w1q = []
        if layer == 0:
            if o.get('w1_spread', 1):
                n0 = self.w1_next
                for n in range(n0, 28):
                    for x in self.w1_dma_text(n): w1q.append(Item(x, at=int(14*o.get('w1_spread', 1)*(n - n0)/(28 - n0)), tag=n))
                self.w1_next = 28
            else: self.w1_dma(28)
        firstB = max(min(self.aiss[g] for g in range(16, 32)), o.get('firstB', 13) if layer else 0)
        queues = []
        if layer == 0:
            burst = None
            if getattr(self, 'rowb_done', False):
                queues.append(Queue(k, self.poll_items(vP31, s(sAFp), lo + 512, 14*2, 14*(firstB - 2))))
            else:
                burst = o.get('rowb0_at', 3); box = []
                its = [Item(fn=lambda: box.append(self.poll_issue(self.YA, s(sYFp))))] + [Item(fn=f, at=14*(burst - 2)) for f in self.poll_steps(lambda: box[0], False)]
                fld = Item(f"buffer_load_dwordx4 v[106:109], {v(self.YA+1)}, {s(RW,4)}, {s(sYld)} offen sc1"); its.append(fld)
                queues.append(Queue(k, its))
                firstB = max(firstB, o.get('firstB0', 12))
            rl = self.w1_relayout_items(1) if not self.rl1_done else []
            nr = nw = 0
            for x in rl:
                x.at = 14*o.get('rl1_at', 4)
                if o.get('rl_pace', 1) and x.text:
                    if 'ds_read' in x.text: x.at = o.get('rl_r0', 0) + nr*o.get('rl_rs', 10)//10; nr += 1
                    elif 'ds_write' in x.text: x.at = o.get('rl_w0', 34) + nw*o.get('rl_ws', 4); nw += 1; x.cost = 2
                    else: x.at = 0
                elif o.get('rl_pace', 1): x.at = 0 if nr == 0 else o.get('rl_w0', 34) - 2
            if w1q:
                def note():
                    for x in w1q: self.w1_tok[x.tag] = x.tok
                rl = w1q + [Item(fn=note, cost=0)] + rl
            rlq = Queue(k, rl); queues.append(rlq)
            t0 = o.get('wd_t0', 1); t1 = o.get('wd_t1', 30)
            wd = [Item(self.wd_text(n), at=int(14*(t0 + (t1 - t0)*n/56))) for n in range(getattr(self, 'wd0', 0), o.get('wd_n', 56))]
            jb = []
            pj = [Item(fn=lambda: jb.append(self.poll_issue(226, s(sJFp), 0, 229)))] + [Item(fn=f, at=14*t0 - 4) for f in self.poll_steps(lambda: jb[0], False)]
            if o.get('joint', 1) and o.get('jlate', 0) < 2: pj = []
            if o.get('tch_h', 0) == 2: pj = [Item(self.touch_h_text(), at=14*o.get('tch_at', 0))]
            wdq = Queue(k, pj + wd, 1); queues.append(wdq)
        else:
            box = []
            s0 = o.get('rowb_at', 7)
            its = self.publish_items(lambda: self.fB, s(sFFs), 512, o.get('fb_pub', 4)) + self.poll_items(vP7, s(sFFp), 512, 14*s0 - o.get('fb_pi', 54), 14*s0 - o.get('fb_pc', 32))
            fld = Item(f"buffer_load_dwordx4 {v(ACC[1],4)}, {v(vFr)}, {s(RW,4)}, {s(sFR[1])} offen sc1"); its.append(fld)
            queues.append(Queue(k, its))
            burst = s0
        epi = None; hbox = []
        ho = lambda half, mt: 2048*layer + 1024*half + 512*mt
        hsc = [' sc1' if o.get('hsc', 15) >> (2*layer + h) & 1 else '' for h in range(2)]
        self.cur_layer = layer
        for gs in range(32):
            ps, st = divmod(gs, 16)
            if gs == burst:
                queues[0].drain(); k.wait(fld.tok)
                self.stamp('rowB_go')
                if layer: sts = self.rowop(1, ACC[1])
                else: self.row_b0(fld.tok); sts = self.aB_tok
                if o.get('xdirty'):
                    k(f"s_lshl_b32 {s(T[0])}, s2, 2\ns_add_u32 {s(T[0])}, {s(T[0])}, {s(sW)}\ns_lshl_b32 {s(T[0])}, {s(T[0])}, 12\ns_add_u32 {s(T[0])}, {s(T[0])}, 0x1100000")
                    for n in range(o['xdirty']): k(f"buffer_store_dwordx4 v[78:81], {v(vL16)}, {s(RW,4)}, {s(T[0])} offen offset:{1024*n}")
                self.stamp('rowB')
                queues[:1] = [Queue(k, self.publish_items(lambda: sts, s(sAFs), lo + 512, 14*gs + o.get('ab_pub', 36))
                                + self.poll_items(vP31, s(sAFp), lo + 512, 14*(firstB - 2) - 4, 14*firstB - 4))]
            if gs == firstB: queues[0].drain()
            if layer == 0 and gs == o.get('rl1_bar', 7) and not self.rl1_done:
                print('relayout left at step 7:', rlq.cost())
                rlq.drain(); k.wait_lg0(); k("s_barrier")
            if gs == 16:
                for q in queues[:2]: q.drain()
                xb = o.get('e0_burst', 1)
                e0 = [Item(x, at=14*16 + 4) for x in self.epilogue1(ACC[0], 0, 0, xb, hsc[0])]
                if xb: Queue(k, e0, 12).drain()
                e1 = [Item(x, at=14*16 + 4) for x in self.epilogue1(ACC[0] + 28, 0, 256, 0, hsc[0])]
                epi = ([] if xb else e0) + e1
                queues = [Queue(k, epi, 14), Queue(k, []), Queue(k, [])]
                if layer == 0: queues.append(wdq)
                pub = [False, False]; self.ht = {}; self.nxtH = 0
            if epi:
                dl = o.get('ha_pub', 84 if hsc[0] else 50)
                if not pub[0] and e0[-1].tok:
                    pub[0] = gs
                    queues[1].q += self.publish_items(lambda: e0[-1].tok, s(sHFs), ho(0, 0), 14*gs + dl)
                    t1_ = 14*gs + dl + o.get('ha_gap', 40)
                    queues[2].q += self.poll_items(vP7, s(sHFp), ho(0, 0), t1_, t1_ + o.get('ha_rtt', 28))
                    queues[2].q += [Item(fn=self.ldH, at=t1_ + o.get('ha_rtt', 28) + 4*n) for n in range(7)]
                if not pub[1] and e1[-1].tok:
                    pub[1] = gs
                    queues[1].q += self.publish_items(lambda: e1[-1].tok, s(sHFs), ho(0, 1), 14*gs + o.get('ha_pub1', 70 if hsc[0] else 40))
                    queues[2].q += [Item(fn=self.ldH, at=o.get('ha_more_at', 410) + 4*n) for n in range(o.get('ha_more', 7))]
            if gs in (2, 4, 8, 10, 12, 14, 20, 24, 28): self.stamp(f'g1_{layer}_{gs}')
            fixed = [[] for _ in range(14)]
            if gs + 1 < 32:
                for Tt in range(7): fixed[2*(Tt // 2)].append(('W', gs+1, Tt))
            slot = 6
            while nxtA < 32 and self.aiss[nxtA] <= gs and slot <= 10 and (nxtA < 16 or gs >= firstB):
                fixed[slot].append(('A', nxtA, 0)); fixed[slot+2].append(('A', nxtA, 1)); nxtA += 1; slot += 4
            k.wait(self.at[(gs, 1)], self.wt[(gs, 6)])
            for i in range(14):
                Tt, mt = divmod(i, 2)
                d = ACC[ps] + 28*mt + 4*Tt
                k(f"v_mfma_f32_16x16x32_bf16 {v(d,4)}, {v(WF + 28*(gs&1) + 4*Tt, 4)}, {self.afrag(gs, mt)}, {'0' if st == 0 else v(d,4)}")
                for it in fixed[i]:
                    if it[0] == 'W': self.rdW(it[1], it[2])
                    else: self.ldA(it[1], it[2])
                cap = 2 - len(fixed[i]) - (1 if i == 13 else 0)
                for q in (queues[::-1] if ps else queues): cap = q.fill(cap, 14*gs + i)
            if gs == 15: self.stamp(f'g1a{layer}'); self.late = layer == 1
        print('layer', layer, 'left after G1B:', [q.cost() for q in queues], 'stores done in steps', pub, 'h loads out', self.nxtH)
        queues[0].drain()
        if not pub[1]: queues[1].q += self.publish_items(lambda: e1[-1].tok, s(sHFs), ho(0, 1), 0)
        if layer == 0: wdq.drain(); self.wd_last = wd[-1].tok
        self.stamp(f'g1b{layer}')
        b0 = [Item(x) for x in self.epilogue1(ACC[1], 1, 0, 1, hsc[1])]
        b1 = [Item(x) for x in self.epilogue1(ACC[1] + 28, 1, 256, 1, hsc[1])]
        q = Queue(k, b0 + b1, 12)
        total = q.cost()
        side = [x for x in queues[2].q if x.fn != self.ldH]
        pubq = list(queues[1].q)
        ev = [(o.get('epi_pub', 0), lambda: Queue(k, pubq).drain()), (o.get('epi_lead', 10), lambda: Queue(k, side).drain())]
        gap = o.get('epi_gap', 20); t = o.get('epi_lead', 10)
        for n in range(self.nxtH, 14):
            ev.append((t, self.ldH)); t += gap
        box = []
        self.hA1_issue = lambda: box.append(self.poll_issue(vP7, s(sHFp), ho(0, 1)))
        if 'ha1_slot' not in o: ev.append((o.get('ha1_pi', 60), self.hA1_issue))
        ev.sort(key=lambda x: x[0])
        while len(q):
            while ev and total - q.cost() >= ev[0][0]: ev.pop(0)[1]()
            if q.fill(3) == 3: q.emit(q.q[0])
        for _, f in ev: f()
        self.hA1_box = box
        self.hB_tok = [b0[-1].tok, b1[-1].tok]
        self.hsc = hsc
        self.stamp(f'epiB{layer}')

    def g2_order(self):
        return [(half, U, mt) for half in range(2) for mt in range(2) for U in range(14)]
    def hreg(self, n):
        if n < 14: return ACC[0] + 4*n
        if n < 28: return WF + 4*(n - 14)
        if n < 42: return ACC[1] + 4*(n - 28)
        return ACC[0] + 4*(n - 42)
    def ldH(self, _=0):
        n = self.nxtH; self.nxtH += 1
        half, U, mt = self.g2_order()[n]
        self.ht[n] = self.k(f"buffer_load_dwordx4 {v(self.hreg(n),4)}, {v(vHld[half])}, {s(RW,4)}, {k4(U>>1)} offen offset:{(U&1)*2048 + mt*256} sc1{' nt' if self.o.get('hld_nt') and self.cur_layer else ''}")

    def red_write(self, A2):
        return [f"ds_write_b128 {v(vRw)}, {v(A2 + 16*mt + 4*nt, 4)} offset:{4352*mt + 64*nt}" for mt in range(2) for nt in range(4)]
    def red_read(self, P):
        return [f"ds_read_b128 {v(P + 8*w + 4*hf, 4)}, {v(vRr)} offset:{8704*w + 16*hf}" for w in range(4) for hf in range(2)]
    def red_sum(self, P, half, layer, X3, pk):
        L = []
        def add(d, x, y):
            if pk: L.extend(f"v_pk_add_f32 {v(d+e,2)}, {v(x+e,2)}, {v(y+e,2)}" for e in (0, 2, 4, 6))
            else: L.extend(f"v_add_f32 {v(d+e)}, {v(x+e)}, {v(y+e)}" for e in range(8))
        add(P, P, P+8); add(P+16, P+16, P+24)
        if layer == 1:
            L += self.unpack(P+8, X3); add(P, P, P+8)
        add(P, P, P+16)
        L += [f"v_cvt_pk_bf16_f32 {v(P+8+e)}, {v(P+2*e)}, {v(P+2*e+1)}" for e in range(4)]
        if layer == 0: L.append(f"buffer_store_dwordx4 {v(P+8,4)}, {v(vF2)}, {s(RW,4)}, {k4(half)} offen")
        else: L.append(f"buffer_store_dwordx4 {v(P+8,4)}, {v(vO)}, {s(RO,4)}, {s(sFH) if half else 0} offen{'' if half and self.o.get('ostb') else self.o.get('ost', ' sc1')}")
        return L

    def gemm2(self, layer):
        k = self.k; o = self.o
        lo = 1024*layer
        AC2 = [AR, WF]
        X3 = [TMP, TMP + 4]
        order = self.g2_order()
        LA = o.get('g2la', 20)
        xt = {}
        def ldX(h): xt[h] = k(f"buffer_load_dwordx4 {v(X3[h],4)}, {v(vF2)}, {s(RW,4)}, {k4(h)} offen sc1")
        ho = lambda half, mt: 2048*layer + 1024*half + 512*mt
        sl = self.hsc[1]
        gate = [14]
        def opened(n): return Item(fn=lambda: gate.__setitem__(0, n), cost=0)
        p0, p1 = o.get('hb_pub0', 21 if sl else 4), o.get('hb_pub1', 50 if sl else 20)
        g_, r_ = o.get('hb_gap', 28), o.get('hb_rtt', 25)
        side = Queue(k, self.publish_items(lambda: self.hB_tok[0], s(sHFs), ho(1, 0), p0)
                     + self.publish_items(lambda: self.hB_tok[1], s(sHFs), ho(1, 1), p1))
        side2 = Queue(k, ([Item(fn=self.hA1_issue, at=o['ha1_slot'])] if 'ha1_slot' in o else [])
                      + [Item(fn=f, at=o.get('ha1_pc', 0)) for f in self.poll_steps(lambda: self.hA1_box[0])] + [opened(28)]
                      + self.poll_items(vP7, s(sHFp), ho(1, 0), p0 + g_, p0 + g_ + r_) + [opened(42)]
                      + self.poll_items(vP7, s(sHFp), ho(1, 1), max(p1 + g_, p0 + g_ + r_ + 2), max(p1 + g_, p0 + g_ + r_ + 2) + r_) + [opened(56)])
        if layer == 0: k.wait(self.wd_last)
        fbox = []; seenB = False; wB = self.red_write(AC2[1]); doneB = 0
        def next_load():
            self.ldH()
            if layer == 1 and self.nxtH == 34: ldX(0)
            if layer == 1 and self.nxtH == 56:
                ldX(1)
                if o.get('wbl2', 0): self.writeback()
        for n in range(56):
            half, U, mt = order[n]
            if n == 28:
                self.stamp(f'g2a{layer}')
                side.drain()
                t = 4*28
                sp = o.get('ra_sp', 2)
                L = [Item(x, at=t + 3 + sp*i) for i, x in enumerate(self.red_write(AC2[0]))]
                L += [Item(fn=lambda: k.wait_lg0(), at=t + 8*sp + 3), Item(fn=lambda: k("s_barrier"))]
                L += [Item(x) for x in self.red_read(AR)]
                L += [Item(fn=lambda: k.wait_lg0(), at=t + 8*sp + o.get('ra_rd', 14)), Item(fn=lambda: k("s_barrier"))]
                if layer == 1: L += [Item(fn=lambda: k.wait(xt[0]))]
                L += [Item(x) for x in self.red_sum(AR, 0, layer, X3[0], 0)]
                fA = L[-1]
                if layer == 0:
                    L += self.publish_items(lambda: fA.tok, s(sFFs), 0, t + o.get('fa_pub', 66))
                    L += [Item(x, at=t + 60) for x in self.unpack(ACC[1] + 24, YS[0]) + self.ag_addr(ACC[1] + 52)]
                    L.append(Item(fn=lambda: fbox.append(self.poll_issue(vP7, s(sFFp), 0)), at=t + o.get('fa_pi', 86)))
                    if o.get('fa_in', 1):
                        L += [Item(fn=f, at=t + o.get('fa_pc', 104)) for f in self.poll_steps(lambda: fbox[0])]
                        fldi = Item(f"buffer_load_dwordx4 {v(ACC[1],4)}, {v(vFr)}, {s(RW,4)}, {s(sFR[0])} offen sc1"); L.append(fldi)
                if o.get('nored') and layer == 1: L = []
                side = Queue(k, L)
                last0 = max(i for i in range(28, 56) if order[i][2] == 0)
                late = Queue(k, [Item(x, at=4*(last0 + 1) + 3 + sp*i) for i, x in enumerate(wB[:4])])
            if n in (8, 16, 22, 36, 44, 50): self.stamp(f'g2_{layer}_{n}')
            for m in range(n, n + 2 - n % 2):
                while m not in self.ht:
                    while self.nxtH >= gate[0]:
                        if gate[0] > 14: side.drain() if n < 28 else None
                        side2.emit(side2.q[0])
                    next_load()
            if n % 2 == 0: k.wait(self.ht[n + 1])
            for nt in range(4):
                d = AC2[half] + 16*mt + 4*nt
                k(f"v_mfma_f32_16x16x32_bf16 {v(d,4)}, {a((4*U+nt)*4,4)}, {v(self.hreg(n),4)}, {'0' if U == 0 else v(d,4)}")
                cap = 2 - (1 if (nt == 3 and n % 2) else 0)
                if (nt == 0 or (nt == 2 and self.nxtH < n + 1 + o.get('g2min', 9))) and self.nxtH < min(gate[0], n + 1 + LA) and (self.nxtH < 42 or self.nxtH - 42 < n):
                    next_load(); cap -= 1
                cap = side2.fill(cap, 4*n + nt)
                cap = side.fill(cap, 4*n + nt)
                if n >= 28 and not any('ds_' in (x.text or '') or (x.fn and x.at <= t + 8*sp + 40) for x in side.q):
                    late.fill(cap, 4*n + nt)
        print('layer', layer, 'left after G2B:', side.cost(), late.cost())
        side.drain()
        wB = [x.text for x in late.q] + wB[4:]
        self.stamp(f'g2b{layer}')
        R = ACC[1]
        if layer == 0 and not o.get('fa_in', 1):
            self.poll_check(fbox[0])
            fld = k(f"buffer_load_dwordx4 {v(R,4)}, {v(vFr)}, {s(RW,4)}, {s(sFR[0])} offen sc1")
        elif layer == 0: fld = fldi.tok
        for x in wB: k(x)
        if layer == 0:
            k.wait(fld)
            self.stamp('fA_in')
            sts, rest = self.rowop(0, R, True)
            self.stamp('rowA')
            if o.get('apub_first', 2): self.run(rest)
            if o.get('apub_first', 2) == 1: self.publish(sts, s(sAFs), 1024)
        if not (layer == 0 and o.get('ag', 1)): k.wait_lg0(); k("s_barrier")
        for x in self.red_read(ACC[0]): k(x)
        if layer == 0 and o.get('apub_first', 2) == 2: self.publish(sts, s(sAFs), 1024)
        k.wait_lg0()
        if layer == 1: k.wait(xt[1])
        if layer == 0 and not o.get('apub_first', 2): self.publish(sts, s(sAFs), 1024)
        if layer == 0: self.a_poll = self.poll_issue(vP31, s(sAFp), 1024)
        self.fB = self.run(self.red_sum(ACC[0], 1, layer, X3[1], 1))[-1].tok
        self.stamp(f'fB_st{layer}')
        if layer == 0:
            self.gemm1_start(1)
            if not o.get('apub_first', 2): self.run(rest)

    def writeback(self):
        k = self.k
        a_, b_ = k.label(), k.label()
        k(f"s_or_b32 {s(T[2])}, {s(sJ)}, {s(sW)}\ns_cmp_lg_u32 {s(T[2])}, 0\ns_cbranch_scc1 {a_}")
        k("buffer_wbl2 sc1")
        k(f"s_branch {b_}"); k.place(a_)
        k.ins.append(I(f"buffer_load_dword {v(vPT)}, {v(vL0)}, {s(RW,4)}, 0 offen"))
        k.place(b_)

    def rowop(self, h, R, split=False):
        L = self.unpack(R + 8, R)
        L += [f"v_pk_add_f32 {v(XS[h]+e,2)}, {v(XS[h]+e,2)}, {v(R+8+e,2)}" for e in (0, 2, 4, 6)]
        L += self.stats([XS[h]], [36], R + 16)
        L += self.affine(R + 8, XS[h], 36, R + 20)
        G = self.gate_norm([h], {h: R + 8}, 1, R + 24)
        rest = []
        if split: G = G[8:]
        if self.o.get('ag', 1):
            self.run(L + G[:-5], 16)
            tok = self.a_out([h], R, 1, lambda: self.run(G[-5:]))[0]
            return (tok, []) if split else tok
        if split: G, rest = G[:-5], G[-5:]
        its = self.run(L + G, 16)
        tok = [x.tok for x in its if 'store' in x.text][-1]
        return (tok, rest) if split else tok

    def build(self):
        k = self.k; o = self.o
        self.prologue()
        self.front_addr()
        if o.get('hpos', 1): self.h_load()
        self.touch_first()
        self.touch_global_flags()
        self.w1_addr()
        self.w1_dma(o.get('n0', 2))
        self.wd_job_addr()
        if o.get('qpos', 1) == 2: self.q_load(False)
        self.phase0()
        self.w1_dma(o.get('n1', 1))
        self.conv()
        if o.get('joint', 1): self.y_joint()
        else: self.y_in()
        for layer in range(2):
            self.gemm1(layer)
            self.gemm2(layer)
        if o.get('stamps'):
            self.stamp('end')
            k(f"""s_lshl_b32 {s(T[0])}, s2, 2
                  s_add_u32 {s(T[0])}, {s(T[0])}, {s(sW)}
                  s_lshl_b32 {s(T[0])}, {s(T[0])}, 8
                  s_add_u32 {s(T[0])}, {s(T[0])}, {WS_DBG}
                  v_lshrrev_b32 v5, 2, {v(vL16)}
                  buffer_store_dword {v(vST[0])}, v5, {s(RW,4)}, {s(T[0])} offen
                  s_add_u32 {s(T[0])}, {s(T[0])}, 0x40000
                  buffer_store_dword {v(vST[1])}, v5, {s(RW,4)}, {s(T[0])} offen""")
        if o.get('delay'):
            k(f"""s_mov_b32 {s(T[0])}, {o['delay']}
                  s_memrealtime {s(T[2],2)}
                  s_waitcnt lgkmcnt(0)""")
            k.place("L_DELAY")
            k(f"""s_memrealtime {s(T[4],2)}
                  s_waitcnt lgkmcnt(0)
                  s_sub_u32 {s(T[4])}, {s(T[4])}, {s(T[2])}
                  s_cmp_lt_u32 {s(T[4])}, {s(T[0])}
                  s_cbranch_scc1 L_DELAY""")
        if o.get('diag'):
            self.stamp('end')
            k(f"""v_sub_u32 v5, {v(vST[1])}, {v(vST[0])}
                  s_nop 1
                  v_readfirstlane_b32 {s(T[0])}, v5
                  s_mul_i32 {s(T[0])}, {s(T[0])}, 8
                  s_memrealtime {s(T[2],2)}
                  s_waitcnt lgkmcnt(0)""")
            k.place("L_DIAG")
            k(f"""s_memrealtime {s(T[4],2)}
                  s_waitcnt lgkmcnt(0)
                  s_sub_u32 {s(T[4])}, {s(T[4])}, {s(T[2])}
                  s_cmp_lt_u32 {s(T[4])}, {s(T[0])}
                  s_cbranch_scc1 L_DIAG""")
        k.place("L_END")
        k("s_endpgm")
        body = k.text()
        for t in self.tail:
            body += "".join((x + "\n") if x.endswith(':') else ("    " + x + "\n") for x in t)
        body += "L_LAST:\n"
        return body

def file_text(opt):
    g = Gen(opt)
    body = g.build()
    ref = open(os.path.join(os.path.dirname(os.path.abspath(__file__)), '..', 'cdna_kernels', NAME + '.s.ref')).read()
    head = ref[:ref.index('; Override launch geometry')]
    txt = head + f"""; @launch grid=(256,1,1) block=(256,1,1) lds={LDS_SIZE}
;
; One persistent launch, 256 workgroups of 4 waves, one per CU (generated by a script of my own).
; Workgroup b: group x = b & 7, member j = b >> 3.
;   1. kv = shortconv(k) * v for a 64-step x 64-channel tile, handed over transposed inside the group.
;   2. long causal conv of 2 channels as block-Toeplitz MFMAs (exact products, fp32 sums), plus kv * D.
;      y does not depend on the residual stream, so it is computed once and used by both layers.
;   3. each wave owns two rows (x, y in registers): x += LN(x) * y ; a = LN(x).
;   4. GEMM1: 256 rows x 56 hidden units per workgroup, gate/up weights resident in LDS; SwiGLU.
;   5. GEMM2: 64 x 64 tile per workgroup, w_down slice resident in accumulator registers, K split over waves.
;   Steps 3-5 run twice, in two row halves that hide each other's hand-off latency.
; Hand-offs use flag words in d_ws that carry a per-launch tag derived from d_ws word 0.
; Inside a group they go through one L2 when all 32 members report the same die id; otherwise every
; hand-off takes the device-scope release/acquire path, so any placement gives the same result.
.amdgcn_target "amdgcn-amd-amdhsa--gfx950"
.text
.globl {NAME}_kernel
.p2align 8
.type {NAME}_kernel,@function
{NAME}_kernel:
{body}.section .rodata,"a"
.p2align 6
.amdhsa_kernel {NAME}_kernel
  .amdhsa_next_free_vgpr 512
  .amdhsa_next_free_sgpr 102
  .amdhsa_accum_offset 256
  .amdhsa_group_segment_fixed_size 0
  .amdhsa_kernarg_size 104
  .amdhsa_user_sgpr_count 2
  .amdhsa_user_sgpr_kernarg_segment_ptr 1
  .amdhsa_system_sgpr_workgroup_id_x 1
.end_amdhsa_kernel
"""
    return txt, g

if __name__ == '__main__':
    import json
    opt = {}; out = None
    for x in sys.argv[1:]:
        if '=' in x:
            kk, vv = x.split('=')
            opt[kk] = vv.split(',') if kk in ('only', 'diag') else (' ' + vv.replace('+', ' ') if kk in ('ost', 'wdm', 'x3m') else int(vv, 0))
        else: out = x
    txt, g = file_text(opt)
    open(out, 'w').write(txt)
    json.dump(g.stamps, open(out + '.stamps.json', 'w'))
    print('instructions', len(g.k.ins), 'nops added', g.k.nops_added, 'stamps', len(g.stamps))
```

```python
import sys, os
sys.path.insert(0, os.path.dirname(os.path.abspath(__file__)))
from dsl import *

NAME = 'interleave_layers__ssm_conv_h3__swiglu_ffn__prompt'

WS_XCCF = 0x1000
WS_KVF  = 0x10000
WS_AF   = 0x11000
WS_HF   = 0x19000
WS_FF   = 0x21000
WS_YF   = 0x40000
JFS = int(os.environ.get('JFS', '4'))
JF_BLK = (448*JFS + 8191)//8192
WS_JF   = 0x40000 - 8192*JF_BLK
WS_KVT  = 0x100000
WS_A    = WS_KVT
WS_YP   = 0x300000
WS_H    = 0x700000
WS_WDT  = 0xE00000
WS_DBG  = 0x1000000
WS_SIZE = 0x1100000
H_X, H_HALF, H_RB = 917504, 458752, 114688

LDS_SIZE = 163840
SCR   = 114688
L_K   = SCR
L_V   = L_K + 9216
L_H   = L_V + 8192
H_CP  = 4096 + 128
H_E   = lambda ch: L_H + ch * 2 * H_CP + 64
H_O   = lambda ch: L_H + ch * 2 * H_CP + H_CP + 128
L_U   = L_H + 4 * H_CP + 128
U_S   = 4608
assert L_U + 2 * U_S <= LDS_SIZE
L_CRED = 57344
L_YT  = L_U
L_JOB = 114688 - 16384
L_RED = SCR
L_AG  = LDS_SIZE - 4352
L_AG2 = SCR

sX, sJ, sW, sN, sEXP, sSPIN, sXCC, sMODE = 4, 5, 6, 7, 8, 9, 10, 11
T = list(range(12, 24))
sC2 = 24
sHALF = 26
sW1S, sW1L = 27, 3
sD = 28
sDP = 34
RK, RV, RH, RQ, RG, RU, RD, RO, RW, RS = 44, 48, 52, 56, 60, 64, 68, 72, 76, 80
sK4 = 83
def k4(i): return '0' if i == 0 else s(sK4 + i)
sHH = 91
sAFp, sAFs, sHFp, sHFs, sFFp, sFFs = 94, 95, 96, 97, 98, 99
sFR = [100, 101]
sFH = 55
sAG = [56, 57]
sAD = 58
sROT = [0, 1, 34, 35, 54, 80, 81]
sDEL = [82, 83]
sST = (32, 92)
sKVFp, sKVs, sUm0, sYst, sYFs, sYFp, sYld, sJF, sJL, sJFp = 44, 45, 46, 47, 48, 49, 50, 51, 52, 53

vL, vL16, vL0, vNON, vPT = 1, 2, 3, 4, 5
vAld, vHld = [6, 7], [8, 9]
vHm, vHt, vAst, vF2, vO, vRw, vRr, vP31, vP7, vW1 = 10, 11, 12, 13, 14, 15, 16, 17, 18, 19
vST = (20, 21)
vFr = 0
vWd = [230, 231]
ACC = [22, 78]
WF, AR, TMP = 134, 190, 222
YS, XS = [232, 236], [240, 248]
LOG2E = 1.4426950408889634

def f32(x):
    import struct
    return '0x%08x' % struct.unpack('<I', struct.pack('<f', x))[0]

def ag_off(layer, h):
    return L_AG - L_AG2 if h == 0 else (0 if layer == 0 else L_AG - L_AG2 - 4352)

def flist(c):
    if c < 4: return [4*c + e for e in range(4)] + [16 + 4*c + e for e in range(4)]
    q = c - 4; X = [44, 46, 54][q]
    return [32 + 4*q + e for e in range(4)] + [48 + 2*q, 49 + 2*q, X, X + 1]

class Gen:
    def __init__(self, opt):
        self.o = opt
        self.k = K()
        self.tail = []
        self.stamps = []
        self.w1_next = 0
        self.late = False
        self.w1_tok = {}

    def stamp(self, name):
        self.k.ins.append(I(f"; ---- {name}"))
        dg = self.o.get('diag')
        if dg and name in dg:
            k = self.k
            k(f"s_memrealtime {s(sST[0],2)}"); k.wait_lg0()
            k(f"v_mov_b32 {v(vST[dg.index(name)])}, {s(sST[0])}")
        if not self.o.get('stamps'): return
        only = self.o.get('only')
        if only and name not in only: return
        k = self.k; n = len(self.stamps)
        k(f"s_memrealtime {s(sST[0],2)}\ns_memtime {s(sST[1],2)}"); k.wait_lg0()
        if self.o.get('spinstat') and n >= 2: k(f"s_sub_u32 {s(sST[1])}, 0, {s(sSPIN)}")
        k(f"v_writelane_b32 {v(vST[0])}, {s(sST[0])}, {n}\nv_writelane_b32 {v(vST[1])}, {s(sST[1])}, {n}")
        self.stamps.append(name)

    def srd(self, base, size):
        self.k(f"s_mov_b32 {s(base+2)}, {size}\ns_mov_b32 {s(base+3)}, 0x20000")

    def poll_issue(self, vaddr, soff, off=0, vt=vPT):
        txt = f"buffer_load_dword {v(vt)}, {v(vaddr)}, {s(RW,4)}, {soff} offen offset:{off} sc1"
        return (self.k(txt), txt, vt)

    def poll_steps(self, get, local=True):
        k = self.k
        slow, back, ok = k.label(), k.label(), k.label()
        def s1(): k.wait(get()[0])
        def s2(): k(f"v_cmp_ne_u32 vcc, {s(sEXP if local else sN)}, {v(get()[2])}")
        def s3():
            if self.o.get('nopoll') and self.late: return
            k(f"s_cbranch_vccnz {slow}"); k.place(back)
            _, txt, vt = get()
            nap = self.o.get('nap_l', 0) if local else self.o.get('nap_g', 0)
            t = [f"{slow}:"] + ([f"s_sleep {nap}"] if nap else []) + [txt, "s_waitcnt vmcnt(0)", f"v_cmp_ne_u32 vcc, {s(sN)}, {v(vt)}", f"s_cbranch_vccz {ok}",
                 f"s_sub_u32 {s(sSPIN)}, {s(sSPIN)}, 1", f"s_cbranch_scc0 {slow}", "s_branch L_END", f"{ok}:"]
            if local: t += [f"s_cmp_eq_u32 {s(sMODE)}, 0", f"s_cbranch_scc1 {back}", "buffer_inv sc1", "s_waitcnt vmcnt(0)"]
            self.tail.append(t + [f"s_branch {back}"])
        return [s1, s2, s3]

    def poll_check(self, h, local=True):
        for f in self.poll_steps(lambda: h, local): f()
    def poll(self, vaddr, soff, off=0, local=True):
        self.poll_check(self.poll_issue(vaddr, soff, off), local)
    def poll_items(self, vaddr, soff, off, at_issue, at_check):
        box = []
        it = [Item(fn=lambda: box.append(self.poll_issue(vaddr, soff, off)), at=at_issue)]
        return it + [Item(fn=f, at=at_check) for f in self.poll_steps(lambda: box[0])]

    def flag_store(self, soff, off=0, local=True):
        k = self.k
        txt = f"buffer_store_dword {v(vNON)}, {v(vL0)}, {s(RW,4)}, {soff} offen offset:{off}"
        if not local: return k(txt + " sc1")
        slow, back = k.label(), k.label()
        k(f"s_cmp_lg_u32 {s(sMODE)}, 0\ns_cbranch_scc1 {slow}")
        r = k(txt); k.place(back)
        self.tail.append([f"{slow}:", "s_waitcnt vmcnt(0)", "buffer_wbl2 sc1", "s_waitcnt vmcnt(0)", txt + " sc1", f"s_branch {back}"])
        return r
    def publish(self, tok, soff, off=0, local=True):
        self.k.wait(tok)
        return self.flag_store(soff, off, local)
    def publish_items(self, get, soff, off, at):
        return [Item(fn=lambda: self.k.wait(get()), at=at), Item(fn=lambda: self.flag_store(soff, off), cost=2, at=at)]

    def dma(self, vaddr, srd, soff, m0, extra=''):
        self.k(m0)
        return self.k(f"buffer_load_dwordx4 {v(vaddr)}, {s(srd,4)}, {soff} offen {extra} lds".replace('  ', ' '))

    def prologue(self):
        k = self.k
        k("s_cmp_ge_u32 s2, 256\ns_cbranch_scc1 L_END")
        if self.o.get('stamps'): k(f"v_mov_b32 {v(vST[0])}, 0\nv_mov_b32 {v(vST[1])}, 0")
        self.stamp('entry')
        for r, off in ((RK, 8), (RV, 16), (RW, 96), (RH, 32), (RS, 24), (RQ, 0), (RG, 56), (RU, 64), (RD, 72), (RO, 80)):
            k(f"s_load_dwordx2 {s(r,2)}, s[0:1], {off}")
        k(f"s_load_dwordx2 {s(sDP,2)}, s[0:1], 40")
        k(f"s_lshr_b32 {s(sJ)}, s2, 3")
        self.code_prefetch()
        k(f"""s_and_b32 {s(sX)}, s2, 7
              v_lshrrev_b32 v5, 6, v0
              v_and_b32 {v(vL)}, 63, v0
              v_readfirstlane_b32 {s(sW)}, v5
              v_lshlrev_b32 {v(vL16)}, 4, {v(vL)}""")
        for r, size in ((RK, 2097152), (RV, 2097152), (RW, WS_SIZE), (RH, 2097152), (RS, 4096)): self.srd(r, size)

        k(f"""v_lshrrev_b32 v24, 3, {v(vL)}
              v_and_b32 v25, 7, {v(vL)}
              v_and_b32 v26, 2, v24
              v_xor_b32 v25, v25, v26
              s_and_b32 {s(T[0])}, {s(sW)}, 1
              s_lshl_b32 {s(T[0])}, {s(T[0])}, 2
              v_xor_b32 v25, {s(T[0])}, v25
              v_lshlrev_b32 v25, 4, v25
              v_lshl_add_u32 v25, v24, 10, v25
              s_lshl_b32 {s(T[0])}, {s(sJ)}, 16
              s_lshl_b32 {s(T[1])}, {s(sW)}, 14
              s_lshl_b32 {s(T[2])}, {s(sX)}, 7
              s_add_u32 {s(T[0])}, {s(T[0])}, {s(T[1])}
              s_add_u32 {s(T[0])}, {s(T[0])}, {s(T[2])}
              v_add_u32 v25, {s(T[0])}, v25
              v_xor_b32 v26, 64, v25
              v_subrev_u32 v26, 8192, v26
              s_lshl_b32 {s(T[1])}, {s(sW)}, 11
              s_add_u32 {s(T[2])}, {s(T[1])}, {L_K + 1024}
              s_add_u32 {s(T[3])}, {s(T[1])}, {L_V}
              s_movk_i32 {s(T[4])}, 8192
              v_and_b32 v27, 15, {v(vL)}
              s_lshl_b32 {s(T[0])}, {s(sX)}, 6
              s_lshl_b32 {s(T[1])}, {s(sW)}, 4
              s_add_u32 {s(T[1])}, {s(T[0])}, {s(T[1])}
              v_add_u32 v27, {s(T[1])}, v27
              v_lshlrev_b32 v28, 3, v27
              s_lshl_b32 {s(T[1])}, {s(sJ)}, 1
              s_add_u32 {s(T[0])}, {s(T[0])}, {s(T[1])}
              s_lshl_b32 {s(T[5])}, {s(T[0])}, 1
              s_lshl_b32 {s(T[6])}, {s(T[0])}, 12
              s_add_u32 {s(T[7])}, {s(T[6])}, 4096
              v_lshlrev_b32 v29, 4, v0""")
        k.wait_lg0()
        self.stamp('start')
        k(f"s_load_dword {s(sN)}, {s(RW,2)}, 0")
        k(f"s_load_dword {s(sD)}, {s(sDP,2)}, {s(T[5])}")
        self.dma(25, RK, '0', f"s_mov_b32 m0, {s(T[2])}")
        self.dma(25, RV, '0', f"s_mov_b32 m0, {s(T[3])}")
        self.dma(25, RK, s(T[4]), f"s_add_u32 m0, {s(T[2])}, 1024")
        self.dma(25, RV, s(T[4]), f"s_add_u32 m0, {s(T[3])}, 1024")
        skip = k.label()
        k(f"s_cmp_lg_u32 {s(sW)}, 0\ns_cbranch_scc1 {skip}\ns_mov_b32 m0, {L_K}\ns_nop 0")
        k.ins.append(I(f"buffer_load_dwordx4 v26, {s(RK,4)}, 0 offen lds"))
        k.place(skip)
        self.sh_tok = k(f"buffer_load_dwordx2 v[30:31], v28, {s(RS,4)}, 0 offen")
        if not self.o.get('hpos', 1): self.h_load()
        k(f"""s_getreg_b32 {s(sXCC)}, hwreg(HW_REG_XCC_ID, 0, 4)
              v_cmp_eq_u32 vcc, 0, {v(vL)}
              v_mov_b32 v5, 0x80000000
              s_lshl_b32 {s(T[1])}, {s(sX)}, 5
              s_add_u32 {s(T[1])}, {s(T[1])}, {s(sJ)}
              s_mul_i32 {s(T[1])}, {s(T[1])}, {self.o.get('xs', 4)}
              s_add_u32 {s(T[1])}, {s(T[1])}, {WS_XCCF}
              s_cmp_eq_u32 {s(sW)}, 2
              s_cselect_b32 {s(T[1])}, {s(T[1])}, 0x40000000
              v_cndmask_b32 {v(vL0)}, v5, 0, vcc""")
        k.wait_lg0()
        k(f"""s_mul_i32 {s(sN)}, {s(sN)}, 1664525
              s_add_u32 {s(sN)}, {s(sN)}, 1013904223
              s_xor_b32 {s(T[0])}, {s(sN)}, {s(sXCC)}
              v_mov_b32 v5, {s(T[0])}
              v_mov_b32 {v(vNON)}, {s(sN)}""")
        k(f"buffer_store_dword v5, {v(vL0)}, {s(RW,4)}, {s(T[1])} offen sc1")
        for r, size in ((RQ, 2097152), (RG, 1835008), (RU, 1835008), (RD, 1835008), (RO, 2097152)): self.srd(r, size)
        k(f"""s_lshr_b32 {s(sD+2)}, {s(sD)}, 16
              s_and_b32 {s(sD+3)}, {s(sD)}, 0xffff0000
              s_lshl_b32 {s(sD+1)}, {s(sD)}, 16
              s_and_b32 {s(sD)}, {s(sD)}, 0xffff
              s_mov_b32 {s(sC2)}, {f32(LOG2E*LOG2E)}
              s_mov_b32 {s(sC2+1)}, {f32(LOG2E*LOG2E)}
              s_mov_b32 {s(sSPIN)}, {self.o.get('spin', 400000)}
              s_mov_b32 {s(sHALF)}, 0x20000
              s_mov_b32 {s(sHH)}, {H_HALF}
              v_and_b32 {v(vP31)}, 31, {v(vL)}
              v_lshlrev_b32 {v(vP31)}, 2, {v(vP31)}
              v_and_b32 {v(vP7)}, 7, {v(vL)}
              v_lshlrev_b32 {v(vP7)}, 2, {v(vP7)}""")
        for i in range(1, 8): k(f"s_movk_i32 {s(sK4+i)}, {4096*i}")

    def h_load(self):
        k = self.k
        k(f"buffer_load_dwordx4 v[32:35], v29, {s(RH,4)}, {s(T[6])} offen")
        k(f"buffer_load_dwordx4 v[40:43], v29, {s(RH,4)}, {s(T[7])} offen")
        k(f"buffer_load_dwordx4 v[36:39], v29, {s(RH,4)}, {s(T[6])} offen offset:2")
        self.h_tok = k(f"buffer_load_dwordx4 v[44:47], v29, {s(RH,4)}, {s(T[7])} offen offset:2")

    def code_prefetch(self):
        if not self.o.get('cpf', 1): return
        k = self.k
        k(f"s_getpc_b64 {s(T[2],2)}")
        k.place("L_PC")
        k(f"""s_mul_i32 {s(T[4])}, {s(sJ)}, ((L_LAST-L_PC+4095)/4096)*128
              v_min_u32 v5, (L_LAST-L_PC+4095)/4096-1, v0
              v_lshl_add_u32 v5, v5, 7, {s(T[4])}
              v_min_u32 v5, L_LAST-L_PC-4, v5
              global_load_dword v219, v5, {s(T[2],2)}""")

    def tlb_touch(self):
        if not self.o.get('tlb', 0): return
        k = self.k
        k(f"v_and_b32 v5, 15, {v(vL)}\nv_lshlrev_b32 v5, 20, v5")
        k(f"buffer_load_dword v200, v5, {s(RW,4)}, 0 offen offset:512")
        k(f"buffer_load_dword v201, v5, {s(RO,4)}, 0 offen")
        k(f"buffer_load_dword v196, v5, {s(RG,4)}, 0 offen")
        k(f"buffer_load_dword v197, v5, {s(RU,4)}, 0 offen")
        k(f"buffer_load_dword v198, v5, {s(RQ,4)}, 0 offen")

    def touch_first(self):
        k = self.k
        if self.o.get('tch_kv', 1):
            k(f"v_and_b32 v5, 15, {v(vL)}\nv_lshlrev_b32 v5, 7, v5")
            k(f"buffer_load_dword v220, v5, {s(RW,4)}, {s(sKVs)} offen sc1")
        if self.o.get('tch_fl', 1):
            k(f"""s_lshl_b32 {s(T[0])}, {s(sX)}, 12
                  s_add_u32 {s(T[0])}, {s(T[0])}, {WS_AF}
                  v_lshl_add_u32 v22, {v(vL)}, 7, {s(T[0])}
                  v_cmp_lt_u32 vcc, 15, {v(vL)}
                  v_add_u32 v5, {0x8000 - 16*128}, v22
                  s_lshl_b32 {s(T[0])}, {s(sX)}, 9
                  v_cndmask_b32 v22, v22, v5, vcc
                  v_cmp_lt_u32 vcc, 47, {v(vL)}
                  v_add_u32 v5, {0x8000 - 32*128}, v22
                  s_add_u32 {s(T[0])}, {s(T[0])}, {WS_KVF}
                  v_cndmask_b32 v22, v22, v5, vcc
                  v_cmp_lt_u32 vcc, 55, {v(vL)}
                  v_and_b32 v5, 3, {v(vL)}
                  v_lshl_add_u32 v5, v5, 7, {s(T[0])}
                  s_cmp_eq_u32 {s(sW)}, 3
                  s_cselect_b32 {s(T[0])}, 0, 0x40000000
                  v_cndmask_b32 v5, v22, v5, vcc
                  buffer_load_dword v221, v5, {s(RW,4)}, {s(T[0])} offen sc1""")
    def touch_global_flags(self):
        if not self.o.get('tch_g', 1): return
        k = self.k
        k(f"""v_lshlrev_b32 v5, 7, {v(vL)}
              s_cmp_eq_u32 {s(sW)}, 1
              s_cselect_b32 {s(T[0])}, {s(sJ)}, 31
              s_lshl_b32 {s(T[1])}, {s(T[0])}, 13
              s_cmp_lt_u32 {s(T[0])}, {JF_BLK + self.o.get('yfs', 4)//4}
              s_cselect_b32 {s(T[0])}, {s(T[1])}, 0x40000000
              s_add_u32 {s(T[0])}, {s(T[0])}, {WS_JF}
              buffer_load_dword v202, v5, {s(RW,4)}, {s(T[0])} offen sc1""")
    def touch_h_addr(self):
        self.k(f"""s_lshl_b32 {s(T[0])}, {s(sJ)}, 2
                  s_add_u32 {s(T[0])}, {s(T[0])}, {s(sW)}
                  s_mul_i32 {s(T[0])}, {s(T[0])}, 7168
                  s_mul_i32 {s(T[1])}, {s(sX)}, {H_X}
                  s_add_u32 {s(T[0])}, {s(T[0])}, {s(T[1])}
                  s_add_u32 {s(T[0])}, {s(T[0])}, {WS_H}
                  v_min_u32 v227, 55, {v(vL)}
                  v_lshl_add_u32 v227, v227, 7, {s(T[0])}""")
    def touch_h_text(self): return f"buffer_load_dword v228, v227, {s(RW,4)}, 0 offen sc1"
    def touch_f(self):
        k = self.k
        k(f"""v_and_b32 v5, 7, {v(vL)}
              v_lshlrev_b32 v5, 7, v5
              v_bfe_u32 v22, {v(vL)}, 3, 1
              v_lshl_add_u32 v5, v22, 17, v5
              buffer_load_dword v199, v5, {s(RW,4)}, {s(sFR[0])} offen sc1""")

    def q_load(self, issue=True):
        k = self.k
        k(f"""s_lshl_b32 {s(T[0])}, {s(sX)}, 7
              s_lshl_b32 {s(T[1])}, {s(sJ)}, 2
              s_add_u32 {s(T[0])}, {s(T[0])}, {s(T[1])}
              s_add_u32 {s(T[0])}, {s(T[0])}, {s(sW)}
              s_lshl_b32 {s(T[0])}, {s(T[0])}, 10
              s_mov_b32 {s(T[10])}, {s(T[0])}
              s_add_u32 {s(T[11])}, {s(T[0])}, 0x100000""")
        if issue: self.q_issue()
    def q_issue(self):
        k = self.k
        k(f"buffer_load_dwordx4 v[204:207], {v(vL16)}, {s(RQ,4)}, {s(T[10])} offen")
        self.q_tok = k(f"buffer_load_dwordx4 v[208:211], {v(vL16)}, {s(RQ,4)}, {s(T[11])} offen")

    def persistent(self):
        k = self.k; AG = self.o.get('ag', 1)
        k(f"""s_lshl_b32 {s(T[0])}, {s(sJ)}, 2
              s_add_u32 {s(T[0])}, {s(T[0])}, {s(sW)}
              s_lshl_b32 {s(T[8])}, {s(sX)}, 18
              s_lshl_b32 {s(T[9])}, {s(sX)}, 12
              s_lshr_b32 {s(T[10])}, {s(sJ)}, 3
              s_and_b32 {s(T[11])}, {s(sJ)}, 7
              s_lshl_b32 {s(T[1])}, {s(T[0])}, 2
              s_add_u32 {s(T[1])}, {s(T[1])}, {s(T[9])}
              s_add_u32 {s(sAFs)}, {s(T[1])}, {WS_AF}
              s_lshl_b32 {s(T[1])}, {s(sW)}, 7
              s_add_u32 {s(T[1])}, {s(T[1])}, {s(T[9])}
              s_add_u32 {s(sAFp)}, {s(T[1])}, {WS_AF}
              s_lshl_b32 {s(T[2])}, {s(sJ)}, 2
              s_add_u32 {s(T[1])}, {s(T[1])}, {s(T[2])}
              s_add_u32 {s(sHFs)}, {s(T[1])}, {WS_HF}
              s_lshl_b32 {s(T[1])}, {s(T[10])}, 7
              s_lshl_b32 {s(T[2])}, {s(sW)}, 5
              s_add_u32 {s(T[1])}, {s(T[1])}, {s(T[2])}
              s_add_u32 {s(T[1])}, {s(T[1])}, {s(T[9])}
              s_add_u32 {s(sHFp)}, {s(T[1])}, {WS_HF}
              s_lshl_b32 {s(T[2])}, {s(T[11])}, 2
              s_add_u32 {s(T[1])}, {s(T[1])}, {s(T[2])}
              s_add_u32 {s(sFFs)}, {s(T[1])}, {WS_FF}
              s_lshr_b32 {s(T[1])}, {s(sJ)}, 1
              s_lshl_b32 {s(T[1])}, {s(T[1])}, 5
              s_add_u32 {s(T[1])}, {s(T[1])}, {s(T[9])}
              s_add_u32 {s(sFFp)}, {s(T[1])}, {WS_FF}
              s_lshr_b32 {s(T[1])}, {s(T[0])}, 5
              s_lshl_b32 {s(T[1])}, {s(T[1])}, 15
              s_bfe_u32 {s(T[2])}, {s(T[0])}, 0x10004
              s_lshl_b32 {s(T[2])}, {s(T[2])}, 10
              s_and_b32 {s(T[3])}, {s(T[0])}, {12 if AG else 15}
              s_lshl_b32 {s(T[3])}, {s(T[3])}, 4
              s_add_u32 {s(T[1])}, {s(T[1])}, {s(T[2])}
              s_add_u32 {s(T[1])}, {s(T[1])}, {s(T[3])}
              s_add_u32 {s(T[1])}, {s(T[1])}, {s(T[8])}
              s_lshl_b32 {s(T[2])}, {s(sW)}, 13
              s_add_u32 {s(T[2])}, {s(T[2])}, {WS_A}
              s_add_u32 {s(T[1])}, {s(T[1])}, {s(T[2]) if AG else WS_A}
              v_lshrrev_b32 v5, {4 if AG else 2}, {v(vL)}
              v_lshlrev_b32 v5, 11, v5
              v_bfe_u32 {v(vAst)}, {v(vL)}, {2 if AG else 0}, 2
              v_lshl_add_u32 {v(vAst)}, {v(vAst)}, 8, v5
              v_and_b32 v5, {3 if AG else 0}, {v(vL)}
              v_lshl_add_u32 {v(vAst)}, v5, 4, {v(vAst)}
              v_add_u32 {v(vAst)}, {s(T[1])}, {v(vAst)}
              s_lshl_b32 {s(T[1])}, {s(sW)}, 15
              s_add_u32 {s(T[1])}, {s(T[1])}, {s(T[8])}
              s_add_u32 {s(T[1])}, {s(T[1])}, {WS_A}
              v_add_u32 {v(vAld[0])}, {s(T[1])}, {v(vL16)}
              v_add_u32 {v(vAld[1])}, 0x20000, {v(vAld[0])}
              v_add_u32 {v(vW1)}, 57344, {v(vL16)}
              v_lshrrev_b32 v5, 4, {v(vL)}
              v_and_b32 v23, 15, {v(vL)}
              v_lshlrev_b32 v22, 9, v5
              v_lshl_add_u32 v22, v23, 4, v22
              s_mul_i32 {s(T[4])}, {s(sX)}, {H_X}
              s_add_u32 {s(T[4])}, {s(T[4])}, {WS_H}
              s_mul_i32 {s(T[1])}, {s(sW)}, {H_RB}
              s_mul_i32 {s(T[2])}, {s(sJ)}, 3584
              s_add_u32 {s(T[1])}, {s(T[1])}, {s(T[2])}
              s_add_u32 {s(T[1])}, {s(T[1])}, {s(T[4])}
              v_add_u32 {v(vHm)}, {s(T[1])}, v22
              s_mul_i32 {s(T[1])}, {s(T[10])}, {H_RB}
              s_mul_i32 {s(T[2])}, {s(sW)}, 28672
              s_add_u32 {s(T[1])}, {s(T[1])}, {s(T[2])}
              s_add_u32 {s(T[1])}, {s(T[1])}, {s(T[4])}
              v_add_u32 {v(vHld[0])}, {s(T[1])}, v22
              v_add_u32 {v(vHld[1])}, {H_HALF}, {v(vHld[0])}
              v_cmp_gt_u32 vcc, 48, {v(vL)}
              v_add_u32 {v(vHt)}, 2048, {v(vHm)}
              v_mov_b32 v22, 0x80000000
              v_mul_u32_u24 {v(vRw)}, 272, v23
              v_cndmask_b32 {v(vHt)}, v22, {v(vHt)}, vcc
              v_lshl_add_u32 {v(vRw)}, v5, 4, {v(vRw)}
              s_mul_i32 {s(T[1])}, {s(sW)}, 8704
              s_add_u32 {s(T[1])}, {s(T[1])}, {L_RED}
              v_add_u32 {v(vRw)}, {s(T[1])}, {v(vRw)}
              v_lshrrev_b32 v5, 3, {v(vL)}
              v_mul_u32_u24 {v(vRr)}, 272, v5
              v_lshl_add_u32 {v(vRr)}, {v(vP7)}, 3, {v(vRr)}
              s_mul_i32 {s(T[1])}, {s(sW)}, {8*272}
              s_add_u32 {s(T[1])}, {s(T[1])}, {L_RED}
              v_add_u32 {v(vRr)}, {s(T[1])}, {v(vRr)}
              s_lshl_b32 {s(T[1])}, {s(T[10])}, 5
              s_lshl_b32 {s(T[2])}, {s(sW)}, 3
              s_add_u32 {s(T[1])}, {s(T[1])}, {s(T[2])}
              v_add_u32 v5, {s(T[1])}, v5
              s_lshl_b32 {s(T[2])}, {s(T[11])}, 7
              s_lshl_b32 {s(T[1])}, {s(sX)}, 17
              s_add_u32 {s(T[2])}, {s(T[2])}, {s(T[1])}
              v_lshl_add_u32 v22, {v(vP7)}, 2, {s(T[2])}
              v_lshl_add_u32 {v(vO)}, v5, 10, v22
              s_lshr_b32 {s(T[1])}, {s(T[11])}, 2
              s_lshl_b32 {s(T[1])}, {s(T[1])}, 13
              s_and_b32 {s(T[2])}, {s(T[11])}, 3
              s_lshl_b32 {s(T[2])}, {s(T[2])}, 7
              s_add_u32 {s(T[1])}, {s(T[1])}, {s(T[2])}
              s_lshl_b32 {s(T[2])}, {s(sX)}, 9
              s_add_u32 {s(T[1])}, {s(T[1])}, {s(T[2])}
              s_add_u32 {s(T[1])}, {s(T[1])}, {WS_YP}
              v_lshl_add_u32 {v(vF2)}, {v(vP7)}, 2, {s(T[1])}
              v_lshl_add_u32 {v(vF2)}, v5, 14, {v(vF2)}
              s_mov_b32 {s(sFH)}, 0x100000
              s_lshl_b32 {s(T[1])}, {s(T[0])}, 14
              s_add_u32 {s(T[1])}, {s(T[1])}, {s(T[2])}
              s_add_u32 {s(sFR[0])}, {s(T[1])}, {WS_YP}
              s_add_u32 {s(sFR[1])}, {s(T[1])}, {WS_YP + 4096}
              v_lshrrev_b32 v5, 5, {v(vL)}
              v_lshlrev_b32 v5, 13, v5
              v_lshl_add_u32 {v(vFr)}, {v(vP31)}, 2, v5""")

    W1V = 212
    def w1_addr(self):
        k = self.k; vb = self.W1V; rot = self.o.get('rot', 1)
        k(f"""s_mul_i32 {s(T[0])}, {s(sJ)}, 112
              s_movk_i32 {s(T[1])}, 9363
              s_movk_i32 {s(T[2])}, {3584 - 7*16}
              s_mul_i32 {s(sW1S)}, {s(sW)}, 229376
              s_mul_i32 {s(sW1L)}, {s(sW)}, 14336
              s_and_b32 {s(T[3])}, {s(sX)}, {6 if rot else 0}
              s_and_b32 {s(T[4])}, {s(sX)}, {1 if rot else 0}
              s_cselect_b32 {s(T[5])}, {s(RU)}, {s(RG)}
              s_cselect_b32 {s(T[6])}, {s(RU+1)}, {s(RG+1)}
              s_cselect_b32 {s(RU)}, {s(RG)}, {s(RU)}
              s_cselect_b32 {s(RU+1)}, {s(RG+1)}, {s(RU+1)}
              s_cselect_b32 {s(T[4])}, 7168, 0
              s_lshl_b32 {s(sDEL[0])}, {s(T[4])}, 1
              s_sub_u32 {s(sDEL[0])}, 7168, {s(sDEL[0])}
              s_mov_b32 {s(RG)}, {s(T[5])}
              s_mov_b32 {s(RG+1)}, {s(T[6])}
              s_add_u32 {s(sDEL[1])}, {s(sDEL[0])}, 57344
              s_add_u32 {s(T[4])}, {s(T[4])}, {s(sW1L)}""")
        for i in range(7):
            k(f"""s_add_u32 {s(T[5])}, {s(T[3])}, {i}
                  s_sub_u32 {s(T[6])}, {s(T[5])}, 7
                  s_cselect_b32 {s(T[5])}, {s(T[5])}, {s(T[6])}
                  s_lshl_b32 {s(T[6])}, {s(T[5])}, 10
                  s_add_u32 {s(sROT[i])}, {s(T[6])}, {s(T[4])}
                  v_lshl_add_u32 v5, {s(T[5])}, 6, {v(vL)}
                  v_mul_u32_u24 {v(vb+i)}, {s(T[1])}, v5
                  v_lshrrev_b32 {v(vb+i)}, 16, {v(vb+i)}
                  v_mul_u32_u24 {v(vb+i)}, {s(T[2])}, {v(vb+i)}
                  v_lshl_add_u32 {v(vb+i)}, v5, 4, {v(vb+i)}
                  v_add_u32 {v(vb+i)}, {s(T[0])}, {v(vb+i)}""")

    def w1_dma_text(self, n):
        ck, mat, i = n // 14, (n % 14) // 7, n % 7
        L = []
        if n == 14: L.append(f"s_add_u32 {s(sW1S)}, {s(sW1S)}, {4*229376}")
        L.append(f"s_add_u32 m0, {s(sROT[i])}, {s(sDEL[ck]) if mat else ck*57344}")
        L.append(f"buffer_load_dwordx4 {v(self.W1V+i)}, {s(RU if mat else RG,4)}, {s(sW1S)} offen lds")
        return L
    def w1_dma(self, cnt):
        for _ in range(cnt):
            if self.w1_next >= 28: return
            n = self.w1_next; self.w1_next += 1
            for x in self.w1_dma_text(n): self.w1_tok[n] = self.k(x)

    RL = 222
    def w1_relayout_addr(self):
        k = self.k; r = self.RL
        k(f"""v_lshrrev_b32 v5, 4, {v(vL)}
              v_bfe_u32 {v(r)}, {v(vL)}, 2, 2
              v_lshl_add_u32 {v(r)}, v5, 3, {v(r)}
              v_mul_u32_u24 {v(r)}, 112, {v(r)}
              v_add_u32 {v(r)}, {s(sW1L)}, {v(r)}
              v_and_b32 {v(r+2)}, 3, {v(vL)}
              v_bfe_u32 {v(r+3)}, {v(vL)}, 1, 1
              v_mul_u32_u24 {v(r+3)}, 7168, {v(r+3)}
              v_and_b32 v22, 1, {v(vL)}
              v_lshl_add_u32 {v(r+3)}, v22, 3, {v(r+3)}
              v_add_u32 {v(r+1)}, {v(r)}, {v(r+3)}
              v_lshl_add_u32 {v(r)}, {v(r+2)}, 3, {v(r)}
              v_add_u32 {v(r+2)}, {s(sW1L)}, {v(vL16)}
              v_bfe_u32 {v(r+3)}, {v(vL)}, 1, 2
              v_lshlrev_b32 {v(r+3)}, 2, {v(r+3)}
              v_bfe_u32 v23, {v(vL)}, 3, 1
              v_lshl_add_u32 {v(r+3)}, v23, 1, {v(r+3)}
              v_add_u32 {v(r+3)}, {v(r+3)}, v22
              v_lshl_add_u32 {v(r+3)}, v5, 4, {v(r+3)}
              v_lshlrev_b32 {v(r+3)}, 4, {v(r+3)}
              v_add_u32 {v(r+3)}, {s(sW1L)}, {v(r+3)}""")
    def w1_relayout_items(self, ck, vtemp=False):
        k = self.k; r = self.RL
        R, a = (ACC[1], v) if vtemp else (128, globals()['a'])
        L = [Item(fn=lambda: k.wait(self.w1_tok[14*ck + 13]))]
        if ck == 1: L += [Item(f"v_add_u32 {v(r+i)}, 57344, {v(r+i)}") for i in range(4)]
        for sl in range(2):
            for Tt in range(7):
                for hf in range(2):
                    d = R + (sl*7 + Tt)*4 + 2*hf
                    o = (32*sl + 4*hf)*112
                    if Tt < 6: L.append(Item(f"ds_read_b64_tr_b16 {a(d,2)}, {v(r)} offset:{o + (Tt&1)*7168 + 32*(Tt>>1)}"))
                    else: L.append(Item(f"ds_read_b64_tr_b16 {a(d,2)}, {v(r+1)} offset:{o + 96}"))
        last = L[-1]
        L.append(Item(fn=lambda: k.wait(last.tok)))
        for n in range(14): L.append(Item(f"ds_write_b128 {v(r+3 if n % 7 == 6 else r+2)}, {a(R + n*4, 4)} offset:{n*1024}"))
        return L
    def w1_relayout(self, ck): Queue(self.k, self.w1_relayout_items(ck)).drain()

    JV = 190
    def wd_job_addr(self):
        k = self.k; r = self.JV
        k(f"""s_lshl_b32 {s(T[0])}, s2, 1
              s_lshr_b32 {s(T[1])}, {s(sW)}, 1
              s_add_u32 {s(T[0])}, {s(T[0])}, {s(T[1])}
              s_mul_i32 {s(T[1])}, {s(T[0])}, 4682
              s_lshr_b32 {s(T[1])}, {s(T[1])}, 16
              s_mul_i32 {s(T[2])}, {s(T[1])}, 14
              s_sub_u32 {s(T[2])}, {s(T[0])}, {s(T[2])}
              s_and_b32 {s(T[3])}, {s(T[1])}, 3
              s_lshr_b32 {s(T[1])}, {s(T[1])}, 2
              s_lshl_b32 {s(T[1])}, {s(T[1])}, 7
              s_mul_i32 {s(T[3])}, {s(T[3])}, {8*57344}
              s_add_u32 {s(T[1])}, {s(T[1])}, {s(T[3])}
              s_cmp_lt_u32 s2, 224
              s_cselect_b32 {s(T[3])}, {s(sW)}, 0
              s_bitcmp1_b32 {s(T[3])}, 0
              s_cselect_b32 {s(T[3])}, 0, 0x80000000
              s_mul_i32 {s(T[4])}, {s(T[0])}, {JFS}
              s_add_u32 {s(T[4])}, {s(T[4])}, {WS_JF}
              s_lshr_b32 {s(sJF)}, {s(T[3])}, 1
              s_or_b32 {s(sJF)}, {s(sJF)}, {s(T[4])}
              s_lshl_b32 {s(T[0])}, {s(T[0])}, 12
              s_add_u32 {s(T[0])}, {s(T[0])}, {WS_WDT}
              s_or_b32 {s(T[0])}, {s(T[0])}, {s(T[3])}
              s_or_b32 {s(T[1])}, {s(T[1])}, {s(T[3])}
              v_add_u32 {v(r+5)}, {s(T[0])}, {v(vL16)}
              v_lshrrev_b32 v5, 3, {v(vL)}
              v_and_b32 v22, 3, v5
              v_lshlrev_b32 v22, 3, v22
              v_cmp_gt_u32 vcc, 4, v5
              v_lshl_add_u32 v23, {v(vP7)}, 2, {s(T[1])}
              s_lshl_b32 {s(T[2])}, {s(T[2])}, 2""")
        for g in range(4):
            k(f"""s_add_u32 {s(T[0])}, {s(T[2])}, {g}
                  s_mul_i32 {s(T[1])}, {s(T[0])}, 9363
                  s_lshr_b32 {s(T[1])}, {s(T[1])}, 16
                  s_mul_i32 {s(T[3])}, {s(T[1])}, 7
                  s_sub_u32 {s(T[0])}, {s(T[0])}, {s(T[3])}
                  s_mul_i32 {s(T[1])}, {s(T[1])}, 56
                  s_mul_i32 {s(T[3])}, {s(T[0])}, 0x04040404
                  s_add_u32 {s(T[4])}, {s(T[3])}, 0x13121110
                  s_add_u32 {s(T[3])}, {s(T[3])}, 0x03020100
                  s_cmp_ge_u32 {s(T[0])}, 4
                  s_cselect_b32 {s(T[3])}, {s(T[4])}, {s(T[3])}
                  s_cselect_b32 {s(T[4])}, {sum(x << (8*e) for e, x in enumerate(flist(4)[4:]))}, {s(T[4])}
                  s_cmp_eq_u32 {s(T[0])}, 5
                  s_cselect_b32 {s(T[4])}, {sum(x << (8*e) for e, x in enumerate(flist(5)[4:]))}, {s(T[4])}
                  s_cmp_eq_u32 {s(T[0])}, 6
                  s_cselect_b32 {s(T[4])}, {sum(x << (8*e) for e, x in enumerate(flist(6)[4:]))}, {s(T[4])}
                  v_mov_b32 v5, {s(T[3])}
                  v_mov_b32 {v(r+g)}, {s(T[4])}
                  v_cndmask_b32 v5, {v(r+g)}, v5, vcc
                  v_bfe_u32 v5, v5, v22, 8
                  v_add_u32 v5, {s(T[1])}, v5
                  v_lshl_add_u32 {v(r+g)}, v5, 10, v23""")
        k(f"""s_lshl_b32 {s(sJL)}, {s(sW)}, 12
              s_add_u32 {s(sJL)}, {s(sJL)}, {L_JOB}
              v_lshrrev_b32 v5, 4, {v(vL)}
              v_lshlrev_b32 {v(r+4)}, 10, v5
              v_bfe_u32 v5, {v(vL)}, 2, 2
              v_lshl_add_u32 {v(r+4)}, v5, 7, {v(r+4)}
              v_and_b32 v5, 3, {v(vL)}
              v_lshl_add_u32 {v(r+4)}, v5, 3, {v(r+4)}
              v_add_u32 {v(r+4)}, {s(sJL)}, {v(r+4)}""")
    def wd_job_issue(self):
        for g in range(4): self.job_tok = self.dma(self.JV+g, RD, '0', f"s_add_u32 m0, {s(sJL)}, {1024*g}")
    def wd_job_finish(self):
        k = self.k; r = self.JV
        k.wait(self.job_tok)
        t = {}
        for nt in range(4):
            for hf in range(2): t[nt] = k(f"ds_read_b64_tr_b16 {a(128 + 4*nt + 2*hf, 2)}, {v(r+4)} offset:{hf*512 + nt*32}")
        for nt in range(4):
            k.wait(t[nt])
            self.job_st = k(f"buffer_store_dwordx4 {a(128 + 4*nt, 4)}, {v(r+5)}, {s(RW,4)}, 0 offen offset:{1024*nt} sc1")
    WDV = 226
    def wd_addr(self):
        self.k(f"""s_and_b32 {s(T[0])}, {s(sJ)}, 7
                   s_lshl_b32 {s(T[0])}, {s(T[0])}, 2
                   s_add_u32 {s(T[0])}, {s(T[0])}, {s(sW)}
                   s_mul_i32 {s(sJFp)}, {s(T[0])}, {14*JFS}
                   s_add_u32 {s(sJFp)}, {s(sJFp)}, {WS_JF}
                   s_mul_i32 {s(T[0])}, {s(T[0])}, {14*4096}
                   s_add_u32 {s(T[0])}, {s(T[0])}, {WS_WDT}
                   v_add_u32 {v(vWd[0])}, {s(T[0])}, {v(vL16)}
                   v_add_u32 {v(vWd[1])}, 32768, {v(vWd[0])}
                   v_min_u32 v226, 13, {v(vL)}
                   v_mul_u32_u24 v226, {JFS}, v226""")
    def wd_touch_text(self, i):
        return f"buffer_load_dword {v(228+i)}, v227, {s(RW,4)}, {k4(i)} offen offset:{3072*i} sc1"
    def wd_text(self, n):
        U, nt = divmod(n, 4)
        return f"buffer_load_dwordx4 {a(4*n, 4)}, {v(vWd[U >> 3])}, {s(RW,4)}, {k4(U & 7)} offen offset:{1024*nt}{self.o.get('wdm', ' sc1')}"

    def phase0(self):
        k = self.k
        k(f"""v_lshrrev_b32 v5, 4, {v(vL)}
              v_bfe_u32 v48, {v(vL)}, 2, 2
              v_lshl_add_u32 v49, v5, 4, v48
              v_lshlrev_b32 v49, 7, v49
              v_bfe_u32 v50, {v(vL)}, 1, 1
              s_lshl_b32 {s(T[0])}, {s(sW)}, 1
              v_add_u32 v50, {s(T[0])}, v50
              v_and_b32 v48, 2, v48
              v_xor_b32 v50, v50, v48
              v_and_b32 v48, 1, v5
              v_lshlrev_b32 v48, 2, v48
              v_xor_b32 v50, v50, v48
              v_lshl_add_u32 v49, v50, 4, v49
              v_and_b32 v48, 1, {v(vL)}
              v_lshl_add_u32 v49, v48, 3, v49
              v_add_u32 v49, {L_K}, v49
              v_xor_b32 v50, 64, v49
              v_lshlrev_b32 v51, 12, v27
              v_lshl_add_u32 v51, v5, 5, v51
              s_lshl_b32 {s(T[6])}, {s(sJ)}, 7
              s_add_u32 {s(T[6])}, {s(T[6])}, {WS_KVT}
              v_mul_u32_u24 v52, {self.o.get('xs', 4)//4}, {v(vP31)}
              s_mul_i32 {s(T[7])}, {s(sX)}, {32*self.o.get('xs', 4)}
              s_add_u32 {s(T[7])}, {s(T[7])}, {WS_XCCF}
              s_lshl_b32 {s(T[0])}, {s(sX)}, 9
              s_lshl_b32 {s(T[1])}, {s(sW)}, 7
              s_lshl_b32 {s(T[2])}, {s(sJ)}, 2
              s_add_u32 {s(T[1])}, {s(T[1])}, {s(T[2])}
              s_add_u32 {s(T[0])}, {s(T[0])}, {WS_KVF}
              s_add_u32 {s(T[5])}, {s(T[1])}, {s(T[0])}
              s_xor_b32 {s(T[0])}, {s(sN)}, {s(sXCC)}
              s_mov_b32 {s(sMODE)}, 0
              s_mov_b32 {s(sEXP)}, {s(sN)}""")
        k.wait(self.sh_tok)
        k("s_barrier")
        self.stamp('kv_in')
        xh = k(f"buffer_load_dword v53, v52, {s(RW,4)}, {s(T[7])} offen sc1")
        KR, VR, KS, O, VU, P = 56, 68, 78, 88, 104, 120
        k(f"ds_read_b64_tr_b16 {v(KR,2)}, v50 offset:512")
        for i in range(4): k(f"ds_read_b64_tr_b16 {v(KR+2+2*i,2)}, v49 offset:{1024 + 512*i}")
        for i in range(4): lastv = k(f"ds_read_b64_tr_b16 {v(VR+2*i,2)}, v49 offset:{L_V - L_K + 512*i}")
        k("v_alignbit_b32 v54, v30, v30, 16\nv_alignbit_b32 v55, v31, v31, 16")
        k.wait(('lg', lastv[1] - 4))
        for aa in range(-1, 8): k(f"v_alignbit_b32 {v(KS+1+aa)}, {v(KR+2+aa)}, {v(KR+1+aa)}, 16")
        for aa in range(8):
            k(f"v_dot2_f32_bf16 {v(O+2*aa)}, {v(KS+aa)}, v55, 0")
            k(f"v_dot2_f32_bf16 {v(O+2*aa+1)}, {v(KR+1+aa)}, v55, 0")
        for aa in range(8):
            k(f"v_dot2_f32_bf16 {v(O+2*aa)}, {v(KS+1+aa)}, v54, {v(O+2*aa)}")
            k(f"v_dot2_f32_bf16 {v(O+2*aa+1)}, {v(KR+2+aa)}, v54, {v(O+2*aa+1)}")
        k.wait(lastv)
        for g in range(2):
            for aa in range(4*g, 4*g+4):
                k(f"v_lshlrev_b32 {v(VU+2*aa)}, 16, {v(VR+aa)}")
                k(f"v_and_b32 {v(VU+2*aa+1)}, 0xffff0000, {v(VR+aa)}")
            for aa in range(4*g, 4*g+4): k(f"v_pk_mul_f32 {v(O+2*aa,2)}, {v(O+2*aa,2)}, {v(VU+2*aa,2)}")
            for e in range(4): k(f"v_cvt_pk_bf16_f32 {v(P+4*g+e)}, {v(O+8*g+7-2*e)}, {v(O+8*g+6-2*e)}")
            st = k(f"buffer_store_dwordx4 {v(P+4*g,4)}, v51, {s(RW,4)}, {s(T[6])} offen offset:{16*g}")
        self.stamp('kv_st')
        self.toeplitz_write()
        slow, back, done = k.label(), k.label(), k.label()
        k.wait(xh)
        k(f"v_cmp_ne_u32 vcc, {s(T[0])}, v53\ns_cbranch_vccnz {slow}")
        k.place(back)
        self.tail.append([f"{slow}:",
            f"buffer_load_dword v53, v52, {s(RW,4)}, {s(T[7])} offen sc1", "s_waitcnt vmcnt(0)",
            f"v_xor_b32 v54, {s(sN)}, v53", "v_cmp_lt_u32 vcc, 15, v54", f"s_cbranch_vccz {done}",
            f"s_sub_u32 {s(sSPIN)}, {s(sSPIN)}, 1", f"s_cbranch_scc0 {slow}", "s_branch L_END",
            f"{done}:", f"v_cmp_ne_u32 vcc, {s(T[0])}, v53", f"s_cbranch_vccz {back}",
            f"s_mov_b32 {s(sMODE)}, 1", f"s_not_b32 {s(sEXP)}, {s(sN)}", f"s_branch {back}"])
        if not self.o.get('fake_kv'): self.publish(st, s(T[5]))
        self.stamp('kv_pub')

    def toeplitz_write(self):
        k = self.k
        k.wait(self.h_tok)
        k(f"v_add_u32 v48, {SCR}, v29")
        for ch in range(2):
            k(f"ds_write_b128 v48, {v(32+8*ch,4)} offset:{H_E(ch) - SCR}")
            k(f"ds_write_b128 v48, {v(36+8*ch,4)} offset:{H_O(ch) - SCR}")
        skip = k.label()
        k(f"s_cmp_lg_u32 {s(sW)}, 0\ns_cbranch_scc1 {skip}")
        k(f"""v_readfirstlane_b32 {s(T[1])}, v32
              v_readfirstlane_b32 {s(T[2])}, v40
              v_cmp_eq_u32 vcc, 28, {v(vP7)}
              v_add_u32 v49, {SCR}, {v(vP7)}
              s_lshl_b32 {s(T[1])}, {s(T[1])}, 16
              s_lshl_b32 {s(T[2])}, {s(T[2])}, 16
              v_mov_b32 v50, 0
              v_mov_b32 v51, 0
              v_mov_b32 v54, {s(T[1])}
              v_mov_b32 v55, {s(T[2])}
              v_cndmask_b32 v54, v50, v54, vcc
              v_cndmask_b32 v55, v50, v55, vcc
              ds_write_b32 v49, v50 offset:{H_E(0) - 32 - SCR}
              ds_write_b32 v49, v50 offset:{H_E(1) - 32 - SCR}
              ds_write_b32 v49, v54 offset:{H_O(0) - 32 - SCR}
              ds_write_b32 v49, v55 offset:{H_O(1) - 32 - SCR}
              v_lshlrev_b32 v49, 3, {v(vL)}
              v_add_u32 v49, {L_U}, v49
              ds_write_b64 v49, v[50:51]
              ds_write_b64 v49, v[50:51] offset:{U_S}""")
        k.place(skip)

    YA = 146
    def front_addr(self):
        k = self.k; o = self.o; Y = self.YA; yfs = o.get('yfs', 4)
        k(f"""v_and_b32 v24, 15, {v(vL)}
              v_lshrrev_b32 v25, 4, {v(vL)}
              v_lshlrev_b32 v5, 3, v25
              v_sub_u32 v26, v24, v5
              v_add_u32 v26, 9, v26
              v_and_b32 v5, 1, v26
              v_sub_u32 v26, v26, v5
              v_lshlrev_b32 v26, 1, v26
              v_mul_u32_u24 v5, {H_O(0) - H_E(0)}, v5
              v_add_u32 v26, v26, v5
              s_lshr_b32 {s(T[0])}, {s(sW)}, 1
              s_mul_i32 {s(T[2])}, {s(T[0])}, {H_E(1) - H_E(0)}
              s_and_b32 {s(T[1])}, {s(sW)}, 1
              s_lshl_b32 {s(T[3])}, {s(T[1])}, 8
              s_add_u32 {s(T[2])}, {s(T[2])}, {s(T[3])}
              s_add_u32 {s(T[2])}, {s(T[2])}, {H_E(0)}
              v_add_u32 v152, {s(T[2])}, v26
              s_mul_i32 {s(T[4])}, {s(T[0])}, {U_S}
              s_add_u32 {s(T[4])}, {s(T[4])}, {L_U + 512}
              s_lshl_b32 {s(T[2])}, {s(T[1])}, 11
              s_add_u32 {s(sUm0)}, {s(T[4])}, {s(T[2])}
              s_sub_u32 {s(T[4])}, {s(T[4])}, {s(T[3])}
              s_sub_u32 {s(T[4])}, {s(T[4])}, 224
              v_lshlrev_b32 v140, 5, v24
              v_lshl_add_u32 v140, v25, 4, v140
              v_add_u32 v140, {s(T[4])}, v140
              s_lshl_b32 {s(T[0])}, {s(sX)}, 9
              s_lshr_b32 {s(T[1])}, {s(sJ)}, 3
              s_lshl_b32 {s(T[1])}, {s(T[1])}, 7
              s_add_u32 {s(T[1])}, {s(T[0])}, {s(T[1])}
              s_add_u32 {s(sKVFp)}, {s(T[1])}, {WS_KVF}
              s_lshl_b32 {s(T[1])}, {s(sJ)}, 4
              s_add_u32 {s(T[0])}, {s(T[0])}, {s(T[1])}
              s_add_u32 {s(sYld)}, {s(T[0])}, {WS_YP}
              s_lshl_b32 {s(T[0])}, {s(sX)}, 18
              s_lshl_b32 {s(T[1])}, {s(sJ)}, 13
              s_add_u32 {s(T[0])}, {s(T[0])}, {s(T[1])}
              s_lshl_b32 {s(T[2])}, {s(sW)}, 11
              s_add_u32 {s(T[1])}, {s(T[0])}, {s(T[2])}
              s_add_u32 {s(sKVs)}, {s(T[1])}, {WS_KVT}
              s_lshl_b32 {s(T[2])}, {s(sW)}, 10
              s_add_u32 {s(T[1])}, {s(T[0])}, {s(T[2])}
              s_add_u32 {s(sYst)}, {s(T[1])}, {WS_YP}
              v_lshlrev_b32 v141, 5, v24
              v_lshrrev_b32 v5, 1, v25
              v_lshl_add_u32 v141, v5, 4, v141
              v_and_b32 v5, 1, v25
              v_xor_b32 v5, 1, v5
              v_lshl_add_u32 v141, v5, 3, v141
              s_lshl_b32 {s(T[0])}, {s(sW)}, 9
              s_add_u32 {s(T[1])}, {s(T[0])}, {L_U + 512}
              v_add_u32 v141, {s(T[1])}, v141
              s_add_u32 {s(T[1])}, {s(T[2])}, {L_YT}
              v_add_u32 {v(Y+3)}, {s(T[1])}, {v(vL16)}
              s_lshl_b32 {s(T[0])}, {s(sW)}, 12
              s_add_u32 {s(T[0])}, {s(T[0])}, {L_CRED}
              v_add_u32 v142, {s(T[0])}, {v(vL16)}
              s_add_u32 {s(T[0])}, {s(T[2])}, {L_CRED}
              v_add_u32 v143, {s(T[0])}, {v(vL16)}
              v_lshlrev_b32 v144, 6, v24
              v_lshl_add_u32 v144, v25, 4, v144
              v_add_u32 v145, 4096, v144
              s_lshl_b32 {s(T[0])}, {s(sX)}, 5
              s_add_u32 {s(T[0])}, {s(T[0])}, {s(sJ)}
              s_lshl_b32 {s(T[0])}, {s(T[0])}, 2
              s_add_u32 {s(T[0])}, {s(T[0])}, {s(T[2])}
              s_mul_i32 {s(T[0])}, {s(T[0])}, {yfs//4}
              s_add_u32 {s(sYFs)}, {s(T[0])}, {WS_YF}
              v_lshlrev_b32 {v(Y+2)}, 2, v0
              v_mul_u32_u24 {v(Y)}, {yfs}, v0
              s_lshr_b32 {s(T[0])}, {s(sX)}, 1
              s_mul_i32 {s(T[0])}, {s(T[0])}, {256*yfs}
              s_add_u32 {s(sYFp)}, {s(T[0])}, {WS_YF}
              v_lshlrev_b32 {v(Y+1)}, 13, v0
              v_add_u32 {v(Y+2)}, {L_YT}, {v(Y+2)}""")
        for p in range(1, 8): k(f"v_add_u32 {v(152+p)}, {512*p}, v152")

    def conv_finish(self, h, C, pk):
        KV, P = 32, 160 + 16*h
        W = [f"ds_write_b128 v142, {v(C + 16*h + 4*c, 4)} offset:{16384*h + 1024*c}" for c in range(4)]
        R = [f"ds_read_b64 {v(KV + 4*h + 2*ch, 2)}, v141 offset:{2048*h + ch*U_S}" for ch in range(2)]
        R2 = [f"ds_read_b128 {v(P + 4*w, 4)}, v143 offset:{16384*h + 4096*w}" for w in range(4)]
        L = []
        for ch in range(2):
            if pk: L += [f"v_pk_add_f32 {v(P+8*ch+e,2)}, {v(P+8*ch+e,2)}, {v(P+8*ch+4+e,2)}" for e in (0, 2)]
            else: L += [f"v_add_f32 {v(P+8*ch+e)}, {v(P+8*ch+e)}, {v(P+8*ch+4+e)}" for e in range(4)]
        D = [f"v_dot2_f32_bf16 {v(P+8*ch+e)}, {v(KV+4*h+2*ch+(1-(e>>1)))}, {s(sD+2*ch+(1-(e&1)))}, {v(P+8*ch+e)}" for e in range(4) for ch in range(2)]
        E = [f"v_cvt_pk_bf16_f32 {v(P+4+e)}, {v(P+e)}, {v(P+8+e)}" for e in range(4)]
        E.append(f"buffer_store_dwordx4 {v(P+4,4)}, {v(144+h)}, {s(RW,4)}, {s(sYst)} offen sc1")
        return W, R, R2, L, D, E

    def conv(self):
        k = self.k; o = self.o; Y = self.YA
        def tz(rr, p):
            d = (rr*8 + p)*4
            return [f"ds_read2_b32 {a(d,2)}, {v(152+p)} offset0:{16*rr} offset1:{16*rr+1}",
                    f"ds_read2_b32 {a(d+2,2)}, {v(152+p)} offset0:{16*rr+2} offset1:{16*rr+3}"]
        first = [x for rr in range(4) for p in range(4) for x in tz(rr, p)]
        second = [x for rr in range(4) for p in range(4, 8) for x in tz(rr, p)]
        k.wait_lg0()
        k("s_barrier")
        n0 = o.get('toep0', 20)
        if not o.get('fake_kv'): ph = self.poll_issue(vP31, s(sKVFp))
        for x in first[:n0]: k(x)
        self.stamp('toep')
        if not o.get('fake_kv'): self.poll_check(ph)
        self.stamp('kv_seen')
        k(f"s_mov_b32 m0, {s(sUm0)}")
        k(f"buffer_load_dwordx4 {v(vL16)}, {s(RW,4)}, {s(sKVs)} offen sc1 lds")
        tok = k(f"buffer_load_dwordx4 {v(vL16)}, {s(RW,4)}, {s(sKVs)} offen offset:1024 sc1 lds")
        for x in first[n0:]: k(x)
        k.wait(tok)
        k("s_barrier")
        self.stamp('u_in')
        B, C = 64, 96
        uses = [(0, rr, q) for rr in range(4) for q in range(4)] + [(1, rr, q) for rr in range(4) for q in range(8)]
        bt = {}
        def rdB(i):
            part, rr, q = uses[i]
            bt[i] = k(f"ds_read_b128 {v(B + 4*(i % 8), 4)}, v140 offset:{512*q + 64*(3-rr)}")
        for i in range(8): rdB(i)
        pre = []
        if o.get('jpos', 0) == 0: self.wd_job_issue()
        if not o.get('joint', 1): self.q_load()
        tq = Queue(k, [Item(x) for x in second]); tits = list(tq.q)
        n2 = o.get('n2', 11); dq = []
        for i in range(n2):
            if self.w1_next >= 14: break
            n = self.w1_next; self.w1_next += 1
            for x in self.w1_dma_text(n): dq.append(Item(x, at=o.get('n2at', 2) + i*(o.get('n2span', 130) // n2), tag=n))
        dits = list(dq)
        if o.get('qpos', 1) == 2:
            dq.append(Item(fn=self.q_issue, cost=2, at=o.get('q_at', 30))); dq.sort(key=lambda x: x.at)
        dq = Queue(k, dq)
        side = Queue(k, []); ybox = []
        m = 0; started = set()
        for i, (part, rr, q) in enumerate(uses):
            need = []
            if part == 1 and q == 0:
                while any(x.tok is None for x in tits[:8*rr + 8]): tq.emit(tq.q[0])
                need = [tits[8*rr + 7].tok]
            if part == 1 and rr == 0 and q == 0:
                W, R, R2, L, D, E = self.conv_finish(0, C, False)
                its = [Item(x, cost=2, at=m + 3 + 2*n) for n, x in enumerate(W)] + [Item(x) for x in R]
                its += [Item(fn=lambda: k.wait_lg0(), at=m + 16), Item(fn=lambda: k("s_barrier"))]
                its += [Item(x) for x in R2]; lastr = its[-1]
                its += [Item(fn=lambda: k.wait(lastr.tok), at=m + 26)] + [Item(x) for x in L]
                its += [Item(fn=lambda: [k(x) for x in D], cost=2)] + [Item(x) for x in E]
                ysA = its[-1]
                if not o.get('joint', 1): its += [Item(fn=lambda: k.wait(ysA.tok), at=o.get('ya_pub', 118)), Item(fn=lambda: self.flag_store(s(sYFs), 0, False))]
                side = Queue(k, its)
            if i % 2 == 0: k.wait(bt[i + 1], *need)
            ps = range(4 - q) if part == 0 else range(max(0, 4 - q), 8 - q)
            for n, p in enumerate(ps):
                c = C + 4*(p + q)
                src = v(c, 4) if (p + q) in started else '0'
                started.add(p + q)
                k(f"v_mfma_f32_16x16x32_bf16 {v(c,4)}, {a((rr*8+p)*4,4)}, {v(B + 4*(i % 8),4)}, {src}")
                m += 1
                cap = 2
                if n == len(ps) - 1: cap -= (1 if i + 8 < len(uses) else 0) + (i % 2)
                cap = side.fill(cap, m)
                cap = dq.fill(cap, m)
                tq.fill(min(cap, 1))
            if i + 8 < len(uses): rdB(i + 8)
        print('conv left:', side.cost(), dq.cost())
        dq.drain()
        for x in dits: self.w1_tok[x.tag] = x.tok
        self.stamp('conv_mfma')
        W, R, R2, L, D, E = self.conv_finish(1, C, True)
        for x in R + W: k(x)
        side.drain()
        k.wait_lg0()
        k("s_barrier")
        for x in R2: k(x)
        if not o.get('joint', 1): pa = self.poll_issue(Y, s(sYFp))
        k.wait_lg0()
        self.ysB = self.run(L + D + E)[-1].tok
        self.stamp('y_st')
        if not o.get('joint', 1):
            self.poll_check(pa, False)
            self.stamp('y_seen')

    def y_joint(self):
        k = self.k; o = self.o; Y = self.YA
        self.wd_job_finish()
        self.persistent()
        if not o.get('fake_y'):
            self.publish(self.ysB, s(sYFs), local=False)
            self.stamp('y_pub')
            if not o.get('jlate', 0): self.publish(self.job_st, s(sJF), local=False)
        k("s_barrier")
        done0 = self.w1_next >= 14
        if o.get('qpos', 1) == 1: self.q_load()
        self.w1_dma(o.get('n3', 4))
        self.w1_relayout_addr()
        self.wd_addr()
        k(f"s_add_u32 {s(T[8])}, {s(sYld)}, 4096")
        if o.get('qpos', 1) == 2: self.q_stats()
        if o.get('jlate', 0): self.publish(self.job_st, s(sJF), local=False)
        if done0: self.w1_relayout(0)
        if o.get('qpos', 1) == 1: self.q_stats()
        k(f"s_mul_i32 {s(sAG[0])}, {s(sW)}, 1088\ns_add_u32 {s(sAG[0])}, {s(sAG[0])}, {L_AG2}\ns_lshl_b32 {s(sAG[1])}, {s(sW)}, 8\ns_add_u32 {s(sAG[1])}, {s(sAG[1])}, {L_AG2}")
        self.run(self.ag_addr(100))
        if o.get('agb', 0) == 0:
            k(f"""s_lshl_b32 {s(T[0])}, {s(sJ)}, 2
                  s_add_u32 {s(T[0])}, {s(T[0])}, {s(sW)}
                  s_lshr_b32 {s(T[1])}, {s(T[0])}, 5
                  s_lshl_b32 {s(T[1])}, {s(T[1])}, 15
                  s_bfe_u32 {s(T[2])}, {s(T[0])}, 0x10004
                  s_lshl_b32 {s(T[2])}, {s(T[2])}, 10
                  s_and_b32 {s(T[0])}, {s(T[0])}, 15
                  s_lshl_b32 {s(T[0])}, {s(T[0])}, 4
                  s_add_u32 {s(T[1])}, {s(T[1])}, {s(T[2])}
                  s_add_u32 {s(T[1])}, {s(T[1])}, {s(T[0])}
                  s_lshl_b32 {s(T[0])}, {s(sX)}, 18
                  s_add_u32 {s(T[1])}, {s(T[1])}, {s(T[0])}
                  s_add_u32 {s(sAD)}, {s(T[1])}, {WS_A + 0x20000}""")
        self.stamp('rl0')
        if not o.get('fake_y'): self.poll(Y, s(sYFp), local=False)
        else: self.publish(self.job_st, s(sJF), local=False)
        self.stamp('y_seen')
        t0 = k(f"buffer_load_dwordx4 v[32:35], {v(Y+1)}, {s(RW,4)}, {s(sYld)} offen sc1")
        t1 = k(f"buffer_load_dwordx4 v[36:39], {v(Y+1)}, {s(RW,4)}, {s(T[8])} offen sc1")
        if o.get('jlate', 0) < 2: pj = self.poll_issue(226, s(sJFp), 0, 229)
        self.w1_dma(o.get('n4', 6))
        if o.get('tch_h', 0) == 1: k(self.touch_h_text())
        if not done0 and self.w1_next >= 14: self.w1_relayout(0); done0 = True
        k.wait(t0)
        for e in range(4): k(f"ds_write_b32 {v(Y+2)}, {v(32+e)} offset:{1024*e}")
        k.wait(t1)
        for e in range(4): k(f"ds_write_b32 {v(Y+2)}, {v(36+e)} offset:{1024*(4+e)}")
        k.wait_lg0()
        k("s_barrier")
        for h in range(2): k(f"ds_read_b128 {v(YS[h],4)}, {v(Y+3)} offset:{4096*h}")
        k.wait_lg0()
        self.stamp('y_in')
        its = self.run(self.gate_norm([0, 1], self.N0, 0, 56))
        sts = self.a_out([0, 1], 56, 0) if o.get('ag', 1) else [x.tok for x in its if 'store' in x.text]
        self.stamp('a_st')
        if o.get('jlate', 0) < 2: self.poll_check(pj, False)
        if done0: self.gemm1_start(0)
        self.publish(sts[0], s(sAFs), 0)
        self.publish(sts[1], s(sAFs), 512)
        k(f"s_or_b32 {s(T[0])}, s2, {s(sW)}\ns_cmp_eq_u32 {s(T[0])}, 0\ns_cselect_b32 {s(T[0])}, 0, 0x40000000")
        k(f"buffer_store_dword {v(vNON)}, {v(vL0)}, {s(RW,4)}, {s(T[0])} offen sc1")
        self.stamp('a_pub')
        self.rl1_done = bool(o.get('rl1_front', 0)); self.rowb_done = True
        self.wd0 = o.get('wd0', 0)
        for n in range(self.wd0): k(self.wd_text(n))
        self.w1_dma(28 if self.rl1_done else o.get('n5', 4))
        if self.w1_next < 28:
            for i in range(7): k(f"v_mov_b32 {v(126+i)}, {v(self.W1V+i)}")
            self.W1V = 126
        if not done0: self.w1_relayout(0)
        if self.rl1_done: self.w1_relayout(1)
        if self.rl1_done or not done0: k.wait_lg0(); k("s_barrier")
        if not done0: self.gemm1_start(0)

    def stats(self, rows, out, t0, scale=None):
        L = []; n = len(rows)
        for i, x in enumerate(rows):
            b = t0 + 6*i
            L += [f"v_pk_add_f32 {v(b,2)}, {v(x,2)}, {v(x+2,2)}", f"v_pk_mul_f32 {v(b+2,2)}, {v(x,2)}, {v(x,2)}",
                  f"v_pk_add_f32 {v(b+4,2)}, {v(x+4,2)}, {v(x+6,2)}"]
            L += [f"v_pk_fma_f32 {v(b+2,2)}, {v(x+e,2)}, {v(x+e,2)}, {v(b+2,2)}" for e in (2, 4, 6)]
            L += [f"v_pk_add_f32 {v(b,2)}, {v(b,2)}, {v(b+4,2)}", f"v_add_f32 {v(b+2)}, {v(b+2)}, {v(b+3)}", f"v_add_f32 {v(b)}, {v(b)}, {v(b+1)}"]
        for ctl in ("row_ror:8 row_mask:0xf", "row_ror:4 row_mask:0xf", "row_ror:2 row_mask:0xf", "row_ror:1 row_mask:0xf",
                    "row_bcast:15 row_mask:0xa", "row_bcast:31 row_mask:0xc"):
            for i in range(n):
                for e in (2, 0):
                    r = t0 + 6*i + e
                    L.append(f"v_add_f32_dpp {v(r)}, {v(r)}, {v(r)} {ctl} bank_mask:0xf")
        for i in range(n):
            b = t0 + 6*i
            L += [f"v_mul_f32 {v(b)}, 0x3b000000, {v(b)}", f"v_mul_f32 {v(b+2)}, 0x3b000000, {v(b+2)}",
                  f"v_fma_f32 {v(b+2)}, -{v(b)}, {v(b)}, {v(b+2)}", f"v_max_f32 {v(b+2)}, 0, {v(b+2)}",
                  f"v_add_f32 {v(b+2)}, 0x3727c5ac, {v(b+2)}", f"v_rsq_f32 {v(b+2)}, {v(b+2)}"]
            if scale: L.append(f"v_mul_f32 {v(b+2)}, {f32(scale)}, {v(b+2)}")
            L += [f"v_mul_f32_e64 {v(b)}, -{v(b)}, {v(b+2)}", f"v_readlane_b32 {s(out[i])}, {v(b+2)}, 63",
                  f"v_readlane_b32 {s(out[i]+2)}, {v(b)}, 63", f"v_mov_b32 {v(b+4)}, {s(out[i]+2)}"]
        return L
    def unpack(self, dst, src):
        L = []
        for e in range(4): L += [f"v_lshlrev_b32 {v(dst+2*e)}, 16, {v(src+e)}", f"v_and_b32 {v(dst+2*e+1)}, 0xffff0000, {v(src+e)}"]
        return L
    def affine(self, dst, x, sp, vb):
        return [f"v_pk_fma_f32 {v(dst+e,2)}, {v(x+e,2)}, {s(sp,2)}, {v(vb,2)} op_sel_hi:[1,0,0]" for e in (0, 2, 4, 6)]
    def run(self, L, look=12):
        its = [Item(x) for x in L]
        Queue(self.k, its, look).drain()
        return its

    def gate_norm(self, halves, nrm, layer, R, direct=None):
        L = []; sp = [36, 40]
        t0 = R + 16*len(halves)
        for i, h in enumerate(halves):
            L += self.unpack(R + 16*i, YS[h])
            L += [f"v_pk_fma_f32 {v(XS[h]+e,2)}, {v(nrm[h]+e,2)}, {v(R+16*i+e,2)}, {v(XS[h]+e,2)}" for e in (0, 2, 4, 6)]
        L += self.stats([XS[h] for h in halves], sp[:len(halves)], t0, LOG2E)
        for i, h in enumerate(halves):
            b = R + 16*i
            L += self.affine(b, XS[h], sp[i], t0 + 6*i + 4)
            L += [f"v_cvt_pk_bf16_f32 {v(b+8+e)}, {v(b+2*e)}, {v(b+2*e+1)}" for e in range(4)]
            if direct: L.append(f"buffer_store_dwordx4 {v(b+8,4)}, {v(direct)}, {s(RW,4)}, {s(sAD)} offen")
            elif self.o.get('ag', 1): L.append(f"ds_write_b128 {v(self.agw)}, {v(b+8,4)} offset:{ag_off(layer, h)}")
            else: L.append(f"buffer_store_dwordx4 {v(b+8,4)}, {v(vAst)}, {s(RW,4)}, {s(sHALF) if h else 0} offen")
            if layer == 1:
                L += [f"v_cvt_pk_bf16_f32 {v(b+12+e)}, {v(XS[h]+2*e)}, {v(XS[h]+2*e+1)}" for e in range(4)]
                L.append(f"buffer_store_dwordx4 {v(b+12,4)}, {v(vFr)}, {s(RW,4)}, {s(sFR[h])} offen{self.o.get('x3m', '')}")
        return L

    def ag_addr(self, r):
        if not self.o.get('ag', 1): return []
        self.agw, self.agr = r, r + 1
        return [f"v_bfe_u32 {v(r+1)}, {v(vL16)}, 4, 2", f"v_mul_u32_u24 {v(r+1)}, 1088, {v(r+1)}", f"v_lshrrev_b32 {v(r)}, 6, {v(vL16)}",
                f"v_lshl_add_u32 {v(r+1)}, {v(r)}, 4, {v(r+1)}", f"v_add_u32 {v(r+1)}, {s(sAG[1])}, {v(r+1)}", f"v_add_u32 {v(r)}, {s(sAG[0])}, {v(vL16)}"]
    def a_out(self, halves, R, layer, between=None):
        k = self.k
        if between: between()
        k.wait_lg0(); k("s_barrier")
        t = [k(f"ds_read_b128 {v(R + 4*i, 4)}, {v(self.agr)} offset:{ag_off(layer, h)}") for i, h in enumerate(halves)]
        out = []
        for i, h in enumerate(halves):
            k.wait(t[i])
            out.append(k(f"buffer_store_dwordx4 {v(R + 4*i, 4)}, {v(vAst)}, {s(RW,4)}, {s(sHALF) if h else 0} offen"))
        return out

    N0 = [40, 118]
    def q_stats(self):
        k = self.k
        k.wait(self.q_tok)
        L = []
        for h in range(2): L += self.unpack(XS[h], 204 + 4*h)
        L += self.stats(XS, [36, 40], 128)
        for h in range(2): L += self.affine(self.N0[h], XS[h], [36, 40][h], 128 + 6*h + 4)
        self.run(L)

    def y_row(self, h, t, raw):
        k = self.k; Y = self.YA
        k.wait(t)
        for e in range(4): k(f"ds_write_b32 {v(Y+2)}, {v(raw+e)} offset:{4096*h + 1024*e}")
        k.wait_lg0()
        k("s_barrier")
        k(f"ds_read_b128 {v(YS[h],4)}, {v(Y+3)} offset:{4096*h}")
        k.wait_lg0()

    def y_in(self):
        k = self.k; o = self.o; Y = self.YA
        t0 = k(f"buffer_load_dwordx4 v[32:35], {v(Y+1)}, {s(RW,4)}, {s(sYld)} offen sc1")
        k(f"s_add_u32 {s(sYFs)}, {s(sYFs)}, {1024*o.get('yfs', 4)}\ns_add_u32 {s(sYFp)}, {s(sYFp)}, {1024*o.get('yfs', 4)}\ns_add_u32 {s(sYld)}, {s(sYld)}, 4096")
        self.publish(self.ysB, s(sYFs), local=False)
        self.stamp('y_pub')
        if o.get('jpos', 0) == 0: self.wd_job_finish()
        self.q_stats()
        self.persistent()
        k("s_barrier")
        self.w1_dma(o.get('n4', 6))
        self.y_row(0, t0, 32)
        self.stamp('y_in')
        its = self.run(self.gate_norm([0], self.N0, 0, 56))
        st = [x.tok for x in its if 'store' in x.text][0]
        self.stamp('a_st')
        for i in range(4): k(f"v_mov_b32 {v(110+i)}, {v(Y+i)}")
        self.YA = 110
        if self.w1_next + o.get('n5', 28) < 28:
            for i in range(7): k(f"v_mov_b32 {v(126+i)}, {v(self.W1V+i)}")
            self.W1V = 126
        self.w1_relayout_addr()
        self.publish(st, s(sAFs), 0)
        self.flag_store(s(sJF), 0, False)
        k(f"s_or_b32 {s(T[0])}, s2, {s(sW)}\ns_cmp_eq_u32 {s(T[0])}, 0\ns_cselect_b32 {s(T[0])}, 0, 0x40000000")
        k(f"buffer_store_dword {v(vNON)}, {v(vL0)}, {s(RW,4)}, {s(T[0])} offen sc1")
        self.stamp('a_pub')
        self.w1_dma(o.get('n5', 28))
        self.w1_relayout(0)
        self.wd_addr()
        self.rl1_done = bool(o.get('rl1_front', 1))
        if self.rl1_done:
            if o.get('rowb_front', 1): self.row_b0()
            self.w1_relayout(1)
        k.wait_lg0(); k("s_barrier")
        self.stamp('w1')
        self.gemm1_start(0)

    def row_b0(self, h0=None):
        k = self.k; Y = self.YA
        if h0 is None:
            self.poll(Y, s(sYFp), local=False)
            h0 = k(f"buffer_load_dwordx4 v[106:109], {v(Y+1)}, {s(RW,4)}, {s(sYld)} offen sc1")
        self.y_row(1, h0, 106)
        its = self.run(self.gate_norm([1], self.N0, 0, ACC[1]))
        self.aB_tok = [x.tok for x in its if 'store' in x.text][0]
        self.rowb_done = True
        if self.o.get('rowb_front', 1) and self.rl1_done: self.publish(self.aB_tok, s(sAFs), 512)

    def epilogue1(self, B, half, off, pk, sc=''):
        L = []; so = s(sHH) if half else '0'
        if not sc and self.o.get('hst_nt'): sc = ' nt'
        def grp(g, u, n, outs, t):
            for e in range(n): L.append(f"v_exp_f32_e64 {v(t+e)}, -{v(g+e)}")
            if pk:
                for e in range(0, n, 2): L.append(f"v_pk_mul_f32 {v(u+e,2)}, {v(g+e,2)}, {v(u+e,2)}")
                for e in range(0, n, 2): L.append(f"v_pk_fma_f32 {v(t+e,2)}, {v(t+e,2)}, {s(sC2,2)}, {s(sC2,2)}")
            else:
                for e in range(n): L.append(f"v_mul_f32 {v(u+e)}, {v(g+e)}, {v(u+e)}")
                for e in range(n): L.append(f"v_fma_f32 {v(t+e)}, {v(t+e)}, {s(sC2)}, {s(sC2)}")
            for e in range(n): L.append(f"v_rcp_f32 {v(t+e)}, {v(t+e)}")
            if pk:
                for e in range(0, n, 2): L.append(f"v_pk_mul_f32 {v(u+e,2)}, {v(u+e,2)}, {v(t+e,2)}")
            else:
                for e in range(n): L.append(f"v_mul_f32 {v(u+e)}, {v(u+e)}, {v(t+e)}")
            for e in range(0, n, 2): L.append(f"v_cvt_pk_bf16_f32 {v(outs[e//2])}, {v(u+e)}, {v(u+e+1)}")
        grp(B, B+4, 4, [B, B+1], TMP)
        grp(B+8, B+12, 4, [B+2, B+3], TMP+4)
        L.append(f"buffer_store_dwordx4 {v(B,4)}, {v(vHm)}, {s(RW,4)}, {so} offen offset:{off}{sc}")
        grp(B+16, B+20, 4, [B+8, B+9], TMP)
        grp(B+24, B+26, 2, [B+10], TMP+4)
        Z, C, A_ = B+4, B+5, B+6
        L += [f"v_mov_b32 {v(C)}, {v(B+8)}", f"v_mov_b32 {v(A_)}, {v(B+9)}", f"v_mov_b32 {v(Z)}, {v(B+10)}",
              f"v_permlane32_swap_b32 {v(A_)}, {v(B+11)}", f"v_permlane32_swap_b32 {v(C)}, {v(Z)}",
              f"v_permlane16_swap_b32 {v(Z)}, {v(B+11)}",
              f"buffer_store_dwordx4 {v(B+8,4)}, {v(vHt)}, {s(RW,4)}, {so} offen offset:{off}{sc}"]
        return L

    def a_plan(self, layer):
        n = self.o.get('ring0', 8) if layer == 0 else self.o.get('ring1', 6)
        ring = ([('v', AR + 8*i) for i in range(4)] + [('a', 224 + 8*i) for i in range(4)])[:n]
        reg = {gs: ring[gs % n] for gs in range(32)}
        issue = {}
        for gs in range(32):
            prev = [p for p in range(gs) if reg[p] == reg[gs]]
            issue[gs] = prev[-1] + 1 if prev else -1
        return reg, issue

    def gemm1_start(self, layer):
        k = self.k
        self.wt, self.at = {}, {}
        self.areg, self.aiss = self.a_plan(layer)
        for Tt in range(7): self.rdW(0, Tt)
    def rdW(self, gs, Tt):
        st = gs % 16
        base, o = (vL16, st*7168) if st < 8 else (vW1, (st-8)*7168)
        self.wt[(gs, Tt)] = self.k(f"ds_read_b128 {v(WF + 28*(gs&1) + 4*Tt, 4)}, {v(base)} offset:{o + 1024*Tt}")
    def afrag(self, gs, mt):
        kind, b = self.areg[gs]
        return (v if kind == 'v' else a)(b + 4*mt, 4)
    def ldA(self, gs, mt):
        st = gs % 16
        self.at[(gs, mt)] = self.k(f"buffer_load_dwordx4 {self.afrag(gs, mt)}, {v(vAld[gs // 16])}, {s(RW,4)}, {k4(st>>1)} offen offset:{((st&1)*2+mt)*1024} sc1")

    def gemm1(self, layer):
        k = self.k; o = self.o
        lo = 1024*layer
        if layer: self.poll_check(self.a_poll)
        else: self.poll(vP31, s(sAFp), lo)
        self.stamp(f'a_seen{layer}')
        todo = sorted(range(32), key=lambda g: g)
        nxtA = 0
        while self.aiss[nxtA] < 0 and nxtA < o.get('a_init', 5):
            for mt in range(2): self.ldA(nxtA, mt)
            nxtA += 1
        w1q = []
        if layer == 0:
            if o.get('w1_spread', 1):
                n0 = self.w1_next
                for n in range(n0, 28):
                    for x in self.w1_dma_text(n): w1q.append(Item(x, at=int(14*o.get('w1_spread', 1)*(n - n0)/(28 - n0)), tag=n))
                self.w1_next = 28
            else: self.w1_dma(28)
        firstB = max(min(self.aiss[g] for g in range(16, 32)), o.get('firstB', 13) if layer else 0)
        queues = []
        if layer == 0:
            burst = None
            if getattr(self, 'rowb_done', False):
                queues.append(Queue(k, self.poll_items(vP31, s(sAFp), lo + 512, 14*2, 14*(firstB - 2))))
            else:
                burst = o.get('rowb0_at', 3); box = []
                its = [Item(fn=lambda: box.append(self.poll_issue(self.YA, s(sYFp))))] + [Item(fn=f, at=14*(burst - 2)) for f in self.poll_steps(lambda: box[0], False)]
                fld = Item(f"buffer_load_dwordx4 v[106:109], {v(self.YA+1)}, {s(RW,4)}, {s(sYld)} offen sc1"); its.append(fld)
                queues.append(Queue(k, its))
                firstB = max(firstB, o.get('firstB0', 12))
            rl = self.w1_relayout_items(1) if not self.rl1_done else []
            nr = nw = 0
            for x in rl:
                x.at = 14*o.get('rl1_at', 4)
                if o.get('rl_pace', 1) and x.text:
                    if 'ds_read' in x.text: x.at = o.get('rl_r0', 0) + nr*o.get('rl_rs', 10)//10; nr += 1
                    elif 'ds_write' in x.text: x.at = o.get('rl_w0', 34) + nw*o.get('rl_ws', 4); nw += 1; x.cost = 2
                    else: x.at = 0
                elif o.get('rl_pace', 1): x.at = 0 if nr == 0 else o.get('rl_w0', 34) - 2
            if w1q:
                def note():
                    for x in w1q: self.w1_tok[x.tag] = x.tok
                rl = w1q + [Item(fn=note, cost=0)] + rl
            rlq = Queue(k, rl); queues.append(rlq)
            t0 = o.get('wd_t0', 1); t1 = o.get('wd_t1', 30)
            wd = [Item(self.wd_text(n), at=int(14*(t0 + (t1 - t0)*n/56))) for n in range(getattr(self, 'wd0', 0), o.get('wd_n', 56))]
            jb = []
            pj = [Item(fn=lambda: jb.append(self.poll_issue(226, s(sJFp), 0, 229)))] + [Item(fn=f, at=14*t0 - 4) for f in self.poll_steps(lambda: jb[0], False)]
            if o.get('joint', 1) and o.get('jlate', 0) < 2: pj = []
            if o.get('tch_h', 0) == 2: pj = [Item(self.touch_h_text(), at=14*o.get('tch_at', 0))]
            wdq = Queue(k, pj + wd, 1); queues.append(wdq)
        else:
            box = []
            s0 = o.get('rowb_at', 7)
            its = self.publish_items(lambda: self.fB, s(sFFs), 512, o.get('fb_pub', 4)) + self.poll_items(vP7, s(sFFp), 512, 14*s0 - o.get('fb_pi', 54), 14*s0 - o.get('fb_pc', 32))
            fld = Item(f"buffer_load_dwordx4 {v(ACC[1],4)}, {v(vFr)}, {s(RW,4)}, {s(sFR[1])} offen sc1"); its.append(fld)
            r = ACC[1] + 54
            if o.get('agb', 0) == 0:
                its += [Item(x) for x in (f"v_lshrrev_b32 {v(r)}, 6, {v(vL16)}", f"v_lshlrev_b32 {v(r)}, 11, {v(r)}", f"v_bfe_u32 {v(r+1)}, {v(vL16)}, 4, 2",
                                          f"v_lshl_add_u32 {v(r)}, {v(r+1)}, 8, {v(r)}")]
            queues.append(Queue(k, its))
            burst = s0
        epi = None; hbox = []
        ho = lambda half, mt: 2048*layer + 1024*half + 512*mt
        hsc = [' sc1' if o.get('hsc', 15) >> (2*layer + h) & 1 else '' for h in range(2)]
        self.cur_layer = layer
        for gs in range(32):
            ps, st = divmod(gs, 16)
            if gs == burst:
                queues[0].drain(); k.wait(fld.tok)
                self.stamp('rowB_go')
                if layer: sts = self.rowop(1, ACC[1])
                else: self.row_b0(fld.tok); sts = self.aB_tok
                if o.get('xdirty'):
                    k(f"s_lshl_b32 {s(T[0])}, s2, 2\ns_add_u32 {s(T[0])}, {s(T[0])}, {s(sW)}\ns_lshl_b32 {s(T[0])}, {s(T[0])}, 12\ns_add_u32 {s(T[0])}, {s(T[0])}, 0x1100000")
                    for n in range(o['xdirty']): k(f"buffer_store_dwordx4 v[78:81], {v(vL16)}, {s(RW,4)}, {s(T[0])} offen offset:{1024*n}")
                self.stamp('rowB')
                queues[:1] = [Queue(k, self.publish_items(lambda: sts, s(sAFs), lo + 512, 14*gs + o.get('ab_pub', 36))
                                + self.poll_items(vP31, s(sAFp), lo + 512, 14*(firstB - 2) - 4, 14*firstB - 4))]
            if gs == firstB: queues[0].drain()
            if layer == 0 and gs == o.get('rl1_bar', 7) and not self.rl1_done:
                print('relayout left at step 7:', rlq.cost())
                rlq.drain(); k.wait_lg0(); k("s_barrier")
            if gs == 16:
                for q in queues[:2]: q.drain()
                xb = o.get('e0_burst', 1)
                e0 = [Item(x, at=14*16 + 4) for x in self.epilogue1(ACC[0], 0, 0, xb, hsc[0])]
                if xb: Queue(k, e0, 12).drain()
                e1 = [Item(x, at=14*16 + 4) for x in self.epilogue1(ACC[0] + 28, 0, 256, 0, hsc[0])]
                epi = ([] if xb else e0) + e1
                queues = [Queue(k, epi, 14), Queue(k, []), Queue(k, [])]
                if layer == 0: queues.append(wdq)
                pub = [False, False]; self.ht = {}; self.nxtH = 0
            if epi:
                dl = o.get('ha_pub', 84 if hsc[0] else 50)
                if not pub[0] and e0[-1].tok:
                    pub[0] = gs
                    queues[1].q += self.publish_items(lambda: e0[-1].tok, s(sHFs), ho(0, 0), 14*gs + dl)
                    t1_ = 14*gs + dl + o.get('ha_gap', 40)
                    queues[2].q += self.poll_items(vP7, s(sHFp), ho(0, 0), t1_, t1_ + o.get('ha_rtt', 28))
                    queues[2].q += [Item(fn=self.ldH, at=t1_ + o.get('ha_rtt', 28) + 4*n) for n in range(7)]
                if not pub[1] and e1[-1].tok:
                    pub[1] = gs
                    queues[1].q += self.publish_items(lambda: e1[-1].tok, s(sHFs), ho(0, 1), 14*gs + o.get('ha_pub1', 70 if hsc[0] else 40))
                    queues[2].q += [Item(fn=self.ldH, at=o.get('ha_more_at', 410) + 4*n) for n in range(o.get('ha_more', 7))]
            if gs in (2, 4, 8, 10, 12, 14, 20, 24, 28): self.stamp(f'g1_{layer}_{gs}')
            fixed = [[] for _ in range(14)]
            if gs + 1 < 32:
                for Tt in range(7): fixed[2*(Tt // 2)].append(('W', gs+1, Tt))
            slot = 6
            while nxtA < 32 and self.aiss[nxtA] <= gs and slot <= 10 and (nxtA < 16 or gs >= firstB):
                fixed[slot].append(('A', nxtA, 0)); fixed[slot+2].append(('A', nxtA, 1)); nxtA += 1; slot += 4
            k.wait(self.at[(gs, 1)], self.wt[(gs, 6)])
            for i in range(14):
                Tt, mt = divmod(i, 2)
                d = ACC[ps] + 28*mt + 4*Tt
                k(f"v_mfma_f32_16x16x32_bf16 {v(d,4)}, {v(WF + 28*(gs&1) + 4*Tt, 4)}, {self.afrag(gs, mt)}, {'0' if st == 0 else v(d,4)}")
                for it in fixed[i]:
                    if it[0] == 'W': self.rdW(it[1], it[2])
                    else: self.ldA(it[1], it[2])
                cap = 2 - len(fixed[i]) - (1 if i == 13 else 0)
                for q in (queues[::-1] if ps else queues): cap = q.fill(cap, 14*gs + i)
            if gs == 15: self.stamp(f'g1a{layer}'); self.late = layer == 1
        print('layer', layer, 'left after G1B:', [q.cost() for q in queues], 'stores done in steps', pub, 'h loads out', self.nxtH)
        queues[0].drain()
        if not pub[1]: queues[1].q += self.publish_items(lambda: e1[-1].tok, s(sHFs), ho(0, 1), 0)
        if layer == 0: wdq.drain(); self.wd_last = wd[-1].tok
        self.stamp(f'g1b{layer}')
        b0 = [Item(x) for x in self.epilogue1(ACC[1], 1, 0, 1, hsc[1])]
        b1 = [Item(x) for x in self.epilogue1(ACC[1] + 28, 1, 256, 1, hsc[1])]
        q = Queue(k, b0 + b1, 12)
        total = q.cost()
        side = [x for x in queues[2].q if x.fn != self.ldH]
        pubq = list(queues[1].q)
        ev = [(o.get('epi_pub', 0), lambda: Queue(k, pubq).drain()), (o.get('epi_lead', 10), lambda: Queue(k, side).drain())]
        gap = o.get('epi_gap', 20); t = o.get('epi_lead', 10)
        for n in range(self.nxtH, 14):
            ev.append((t, self.ldH)); t += gap
        box = []
        self.hA1_issue = lambda: box.append(self.poll_issue(vP7, s(sHFp), ho(0, 1)))
        if 'ha1_slot' not in o: ev.append((o.get('ha1_pi', 60), self.hA1_issue))
        ev.sort(key=lambda x: x[0])
        while len(q):
            while ev and total - q.cost() >= ev[0][0]: ev.pop(0)[1]()
            if q.fill(3) == 3: q.emit(q.q[0])
        for _, f in ev: f()
        self.hA1_box = box
        self.hB_tok = [b0[-1].tok, b1[-1].tok]
        self.hsc = hsc
        self.stamp(f'epiB{layer}')

    def g2_order(self):
        return [(half, U, mt) for half in range(2) for mt in range(2) for U in range(14)]
    def hreg(self, n):
        if n < 14: return ACC[0] + 4*n
        if n < 28: return WF + 4*(n - 14)
        if n < 42: return ACC[1] + 4*(n - 28)
        return ACC[0] + 4*(n - 42)
    def ldH(self, _=0):
        n = self.nxtH; self.nxtH += 1
        half, U, mt = self.g2_order()[n]
        self.ht[n] = self.k(f"buffer_load_dwordx4 {v(self.hreg(n),4)}, {v(vHld[half])}, {s(RW,4)}, {k4(U>>1)} offen offset:{(U&1)*2048 + mt*256} sc1{' nt' if self.o.get('hld_nt') and self.cur_layer else ''}")

    def red_write(self, A2):
        return [f"ds_write_b128 {v(vRw)}, {v(A2 + 16*mt + 4*nt, 4)} offset:{4352*mt + 64*nt}" for mt in range(2) for nt in range(4)]
    def red_read(self, P):
        return [f"ds_read_b128 {v(P + 8*w + 4*hf, 4)}, {v(vRr)} offset:{8704*w + 16*hf}" for w in range(4) for hf in range(2)]
    def red_sum(self, P, half, layer, X3, pk):
        L = []
        def add(d, x, y):
            if pk: L.extend(f"v_pk_add_f32 {v(d+e,2)}, {v(x+e,2)}, {v(y+e,2)}" for e in (0, 2, 4, 6))
            else: L.extend(f"v_add_f32 {v(d+e)}, {v(x+e)}, {v(y+e)}" for e in range(8))
        add(P, P, P+8); add(P+16, P+16, P+24)
        if layer == 1:
            L += self.unpack(P+8, X3); add(P, P, P+8)
        add(P, P, P+16)
        L += [f"v_cvt_pk_bf16_f32 {v(P+8+e)}, {v(P+2*e)}, {v(P+2*e+1)}" for e in range(4)]
        if layer == 0: L.append(f"buffer_store_dwordx4 {v(P+8,4)}, {v(vF2)}, {s(RW,4)}, {k4(half)} offen")
        else: L.append(f"buffer_store_dwordx4 {v(P+8,4)}, {v(vO)}, {s(RO,4)}, {s(sFH) if half else 0} offen{'' if half and self.o.get('ostb') else self.o.get('ost', ' sc1')}")
        return L

    def gemm2(self, layer):
        k = self.k; o = self.o
        lo = 1024*layer
        AC2 = [AR, WF]
        X3 = [TMP, TMP + 4]
        order = self.g2_order()
        LA = o.get('g2la', 20)
        xt = {}
        def ldX(h): xt[h] = k(f"buffer_load_dwordx4 {v(X3[h],4)}, {v(vF2)}, {s(RW,4)}, {k4(h)} offen sc1")
        ho = lambda half, mt: 2048*layer + 1024*half + 512*mt
        sl = self.hsc[1]
        gate = [14]
        def opened(n): return Item(fn=lambda: gate.__setitem__(0, n), cost=0)
        p0, p1 = o.get('hb_pub0', 21 if sl else 4), o.get('hb_pub1', 50 if sl else 20)
        g_, r_ = o.get('hb_gap', 28), o.get('hb_rtt', 25)
        side = Queue(k, self.publish_items(lambda: self.hB_tok[0], s(sHFs), ho(1, 0), p0)
                     + self.publish_items(lambda: self.hB_tok[1], s(sHFs), ho(1, 1), p1))
        side2 = Queue(k, ([Item(fn=self.hA1_issue, at=o['ha1_slot'])] if 'ha1_slot' in o else [])
                      + [Item(fn=f, at=o.get('ha1_pc', 0)) for f in self.poll_steps(lambda: self.hA1_box[0])] + [opened(28)]
                      + self.poll_items(vP7, s(sHFp), ho(1, 0), p0 + g_, p0 + g_ + r_) + [opened(42)]
                      + self.poll_items(vP7, s(sHFp), ho(1, 1), max(p1 + g_, p0 + g_ + r_ + 2), max(p1 + g_, p0 + g_ + r_ + 2) + r_) + [opened(56)])
        if layer == 0: k.wait(self.wd_last)
        fbox = []; seenB = False; wB = self.red_write(AC2[1]); doneB = 0
        def next_load():
            self.ldH()
            if layer == 1 and self.nxtH == 34: ldX(0)
            if layer == 1 and self.nxtH == 56:
                ldX(1)
                if o.get('wbl2', 0): self.writeback()
        for n in range(56):
            half, U, mt = order[n]
            if n == 28:
                self.stamp(f'g2a{layer}')
                side.drain()
                t = 4*28
                sp = o.get('ra_sp', 2)
                L = [Item(x, at=t + 3 + sp*i) for i, x in enumerate(self.red_write(AC2[0]))]
                L += [Item(fn=lambda: k.wait_lg0(), at=t + 8*sp + 3), Item(fn=lambda: k("s_barrier"))]
                L += [Item(x) for x in self.red_read(AR)]
                L += [Item(fn=lambda: k.wait_lg0(), at=t + 8*sp + o.get('ra_rd', 14)), Item(fn=lambda: k("s_barrier"))]
                if layer == 1: L += [Item(fn=lambda: k.wait(xt[0]))]
                L += [Item(x) for x in self.red_sum(AR, 0, layer, X3[0], 0)]
                fA = L[-1]
                if layer == 0:
                    L += self.publish_items(lambda: fA.tok, s(sFFs), 0, t + o.get('fa_pub', 66))
                    L += [Item(x, at=t + 60) for x in self.unpack(ACC[1] + 24, YS[0]) + self.ag_addr(ACC[1] + 52)]
                    L.append(Item(fn=lambda: fbox.append(self.poll_issue(vP7, s(sFFp), 0)), at=t + o.get('fa_pi', 86)))
                    if o.get('fa_in', 1):
                        L += [Item(fn=f, at=t + o.get('fa_pc', 104)) for f in self.poll_steps(lambda: fbox[0])]
                        fldi = Item(f"buffer_load_dwordx4 {v(ACC[1],4)}, {v(vFr)}, {s(RW,4)}, {s(sFR[0])} offen sc1"); L.append(fldi)
                if o.get('nored') and layer == 1: L = []
                side = Queue(k, L)
                last0 = max(i for i in range(28, 56) if order[i][2] == 0)
                late = Queue(k, [Item(x, at=4*(last0 + 1) + 3 + sp*i) for i, x in enumerate(wB[:4])])
            if n in (8, 16, 22, 36, 44, 50): self.stamp(f'g2_{layer}_{n}')
            for m in range(n, n + 2 - n % 2):
                while m not in self.ht:
                    while self.nxtH >= gate[0]:
                        if gate[0] > 14: side.drain() if n < 28 else None
                        side2.emit(side2.q[0])
                    next_load()
            if n % 2 == 0: k.wait(self.ht[n + 1])
            for nt in range(4):
                d = AC2[half] + 16*mt + 4*nt
                k(f"v_mfma_f32_16x16x32_bf16 {v(d,4)}, {a((4*U+nt)*4,4)}, {v(self.hreg(n),4)}, {'0' if U == 0 else v(d,4)}")
                cap = 2 - (1 if (nt == 3 and n % 2) else 0)
                if (nt == 0 or (nt == 2 and self.nxtH < n + 1 + o.get('g2min', 9))) and self.nxtH < min(gate[0], n + 1 + LA) and (self.nxtH < 42 or self.nxtH - 42 < n):
                    next_load(); cap -= 1
                cap = side2.fill(cap, 4*n + nt)
                cap = side.fill(cap, 4*n + nt)
                if n >= 28 and not any('ds_' in (x.text or '') or (x.fn and x.at <= t + 8*sp + 40) for x in side.q):
                    late.fill(cap, 4*n + nt)
        print('layer', layer, 'left after G2B:', side.cost(), late.cost())
        side.drain()
        wB = [x.text for x in late.q] + wB[4:]
        self.stamp(f'g2b{layer}')
        R = ACC[1]
        if layer == 0 and not o.get('fa_in', 1):
            self.poll_check(fbox[0])
            fld = k(f"buffer_load_dwordx4 {v(R,4)}, {v(vFr)}, {s(RW,4)}, {s(sFR[0])} offen sc1")
        elif layer == 0: fld = fldi.tok
        for x in wB: k(x)
        if layer == 0:
            k.wait(fld)
            self.stamp('fA_in')
            sts, rest = self.rowop(0, R, True)
            self.stamp('rowA')
            if o.get('apub_first', 2): self.run(rest)
            if o.get('apub_first', 2) == 1: self.publish(sts, s(sAFs), 1024)
        if not (layer == 0 and o.get('ag', 1)): k.wait_lg0(); k("s_barrier")
        for x in self.red_read(ACC[0]): k(x)
        if layer == 0 and o.get('apub_first', 2) == 2: self.publish(sts, s(sAFs), 1024)
        k.wait_lg0()
        if layer == 1: k.wait(xt[1])
        if layer == 0 and not o.get('apub_first', 2): self.publish(sts, s(sAFs), 1024)
        if layer == 0: self.a_poll = self.poll_issue(vP31, s(sAFp), 1024)
        self.fB = self.run(self.red_sum(ACC[0], 1, layer, X3[1], 1))[-1].tok
        self.stamp(f'fB_st{layer}')
        if layer == 0:
            self.gemm1_start(1)
            if not o.get('apub_first', 2): self.run(rest)

    def writeback(self):
        k = self.k
        a_, b_ = k.label(), k.label()
        k(f"s_or_b32 {s(T[2])}, {s(sJ)}, {s(sW)}\ns_cmp_lg_u32 {s(T[2])}, 0\ns_cbranch_scc1 {a_}")
        k("buffer_wbl2 sc1")
        k(f"s_branch {b_}"); k.place(a_)
        k.ins.append(I(f"buffer_load_dword {v(vPT)}, {v(vL0)}, {s(RW,4)}, 0 offen"))
        k.place(b_)

    def rowop(self, h, R, split=False):
        L = self.unpack(R + 8, R)
        L += [f"v_pk_add_f32 {v(XS[h]+e,2)}, {v(XS[h]+e,2)}, {v(R+8+e,2)}" for e in (0, 2, 4, 6)]
        L += self.stats([XS[h]], [36], R + 16)
        L += self.affine(R + 8, XS[h], 36, R + 20)
        if h == 1 and self.o.get('agb', 0) == 0:
            its = self.run(L + self.gate_norm([h], {h: R + 8}, 1, R + 24, R + 54), 16)
            return [x.tok for x in its if 'store' in x.text][-1]
        G = self.gate_norm([h], {h: R + 8}, 1, R + 24)
        rest = []
        if split: G = G[8:]
        if self.o.get('ag', 1):
            self.run(L + G[:-5], 16)
            tok = self.a_out([h], R, 1, lambda: self.run(G[-5:]))[0]
            return (tok, []) if split else tok
        if split: G, rest = G[:-5], G[-5:]
        its = self.run(L + G, 16)
        tok = [x.tok for x in its if 'store' in x.text][-1]
        return (tok, rest) if split else tok

    def build(self):
        k = self.k; o = self.o
        self.prologue()
        self.front_addr()
        if o.get('hpos', 1): self.h_load()
        self.touch_first()
        self.touch_global_flags()
        self.w1_addr()
        self.w1_dma(o.get('n0', 2))
        self.wd_job_addr()
        if o.get('qpos', 1) == 2: self.q_load(False)
        self.phase0()
        self.w1_dma(o.get('n1', 1))
        self.conv()
        if o.get('joint', 1): self.y_joint()
        else: self.y_in()
        for layer in range(2):
            self.gemm1(layer)
            self.gemm2(layer)
        if o.get('stamps'):
            self.stamp('end')
            k(f"""s_lshl_b32 {s(T[0])}, s2, 2
                  s_add_u32 {s(T[0])}, {s(T[0])}, {s(sW)}
                  s_lshl_b32 {s(T[0])}, {s(T[0])}, 8
                  s_add_u32 {s(T[0])}, {s(T[0])}, {WS_DBG}
                  v_lshrrev_b32 v5, 2, {v(vL16)}
                  buffer_store_dword {v(vST[0])}, v5, {s(RW,4)}, {s(T[0])} offen
                  s_add_u32 {s(T[0])}, {s(T[0])}, 0x40000
                  buffer_store_dword {v(vST[1])}, v5, {s(RW,4)}, {s(T[0])} offen""")
        if o.get('delay'):
            k(f"""s_mov_b32 {s(T[0])}, {o['delay']}
                  s_memrealtime {s(T[2],2)}
                  s_waitcnt lgkmcnt(0)""")
            k.place("L_DELAY")
            k(f"""s_memrealtime {s(T[4],2)}
                  s_waitcnt lgkmcnt(0)
                  s_sub_u32 {s(T[4])}, {s(T[4])}, {s(T[2])}
                  s_cmp_lt_u32 {s(T[4])}, {s(T[0])}
                  s_cbranch_scc1 L_DELAY""")
        if o.get('diag'):
            self.stamp('end')
            k(f"""v_sub_u32 v5, {v(vST[1])}, {v(vST[0])}
                  s_nop 1
                  v_readfirstlane_b32 {s(T[0])}, v5
                  s_mul_i32 {s(T[0])}, {s(T[0])}, 8
                  s_memrealtime {s(T[2],2)}
                  s_waitcnt lgkmcnt(0)""")
            k.place("L_DIAG")
            k(f"""s_memrealtime {s(T[4],2)}
                  s_waitcnt lgkmcnt(0)
                  s_sub_u32 {s(T[4])}, {s(T[4])}, {s(T[2])}
                  s_cmp_lt_u32 {s(T[4])}, {s(T[0])}
                  s_cbranch_scc1 L_DIAG""")
        k.place("L_END")
        k("s_endpgm")
        body = k.text()
        for t in self.tail:
            body += "".join((x + "\n") if x.endswith(':') else ("    " + x + "\n") for x in t)
        body += "L_LAST:\n"
        return body

def file_text(opt):
    g = Gen(opt)
    body = g.build()
    ref = open(os.path.join(os.path.dirname(os.path.abspath(__file__)), '..', 'cdna_kernels', NAME + '.s.ref')).read()
    head = ref[:ref.index('; Override launch geometry')]
    txt = head + f"""; @launch grid=(256,1,1) block=(256,1,1) lds={LDS_SIZE}
;
; One persistent launch, 256 workgroups of 4 waves, one per CU (generated by a script of my own).
; Workgroup b: group x = b & 7, member j = b >> 3.
;   1. kv = shortconv(k) * v for a 64-step x 64-channel tile, handed over transposed inside the group.
;   2. long causal conv of 2 channels as block-Toeplitz MFMAs (exact products, fp32 sums), plus kv * D.
;      y does not depend on the residual stream, so it is computed once and used by both layers.
;   3. each wave owns two rows (x, y in registers): x += LN(x) * y ; a = LN(x).
;   4. GEMM1: 256 rows x 56 hidden units per workgroup, gate/up weights resident in LDS; SwiGLU.
;   5. GEMM2: 64 x 64 tile per workgroup, w_down slice resident in accumulator registers, K split over waves.
;   Steps 3-5 run twice, in two row halves that hide each other's hand-off latency.
; Hand-offs use flag words in d_ws that carry a per-launch tag derived from d_ws word 0.
; Inside a group they go through one L2 when all 32 members report the same die id; otherwise every
; hand-off takes the device-scope release/acquire path, so any placement gives the same result.
.amdgcn_target "amdgcn-amd-amdhsa--gfx950"
.text
.globl {NAME}_kernel
.p2align 8
.type {NAME}_kernel,@function
{NAME}_kernel:
{body}.section .rodata,"a"
.p2align 6
.amdhsa_kernel {NAME}_kernel
  .amdhsa_next_free_vgpr 512
  .amdhsa_next_free_sgpr 102
  .amdhsa_accum_offset 256
  .amdhsa_group_segment_fixed_size 0
  .amdhsa_kernarg_size 104
  .amdhsa_user_sgpr_count 2
  .amdhsa_user_sgpr_kernarg_segment_ptr 1
  .amdhsa_system_sgpr_workgroup_id_x 1
.end_amdhsa_kernel
"""
    return txt, g

if __name__ == '__main__':
    import json
    opt = {}; out = None
    for x in sys.argv[1:]:
        if '=' in x:
            kk, vv = x.split('=')
            opt[kk] = vv.split(',') if kk in ('only', 'diag') else (' ' + vv.replace('+', ' ') if kk in ('ost', 'wdm', 'x3m') else int(vv, 0))
        else: out = x
    txt, g = file_text(opt)
    open(out, 'w').write(txt)
    json.dump(g.stamps, open(out + '.stamps.json', 'w'))
    print('instructions', len(g.k.ins), 'nops added', g.k.nops_added, 'stamps', len(g.stamps))
```

```python
import sys, os
sys.path.insert(0, os.path.dirname(os.path.abspath(__file__)))
from dsl import *

NAME = 'interleave_layers__ssm_conv_h3__swiglu_ffn__prompt'

WS_XCCF = 0x1000
WS_KVF  = 0x10000
WS_AF   = 0x11000
WS_HF   = 0x19000
WS_FF   = 0x21000
WS_YF   = 0x40000
JFS = int(os.environ.get('JFS', '4'))
JF_BLK = (448*JFS + 8191)//8192
WS_JF   = 0x40000 - 8192*JF_BLK
WS_KVT  = 0x100000
WS_A    = WS_KVT
WS_YP   = 0x300000
WS_H    = 0x700000
WS_WDT  = 0xE00000
WS_DBG  = 0x1000000
WS_SIZE = 0x1100000
H_X, H_HALF, H_RB = 917504, 458752, 114688

LDS_SIZE = 163840
SCR   = 114688
L_K   = SCR
L_V   = L_K + 9216
L_H   = L_V + 8192
H_CP  = 4096 + 128
H_E   = lambda ch: L_H + ch * 2 * H_CP + 64
H_O   = lambda ch: L_H + ch * 2 * H_CP + H_CP + 128
L_U   = L_H + 4 * H_CP + 128
U_S   = 4608
assert L_U + 2 * U_S <= LDS_SIZE
L_CRED = 57344
L_YT  = L_U
L_JOB = 114688 - 16384
L_RED = SCR
L_AG  = LDS_SIZE - 4352
L_AG2 = SCR

sX, sJ, sW, sN, sEXP, sSPIN, sXCC, sMODE = 4, 5, 6, 7, 8, 9, 10, 11
T = list(range(12, 24))
sC2 = 24
sHALF = 26
sW1S, sW1L = 27, 3
sD = 28
sDP = 34
RK, RV, RH, RQ, RG, RU, RD, RO, RW, RS = 44, 48, 52, 56, 60, 64, 68, 72, 76, 80
sK4 = 83
def k4(i): return '0' if i == 0 else s(sK4 + i)
sHH = 91
sAFp, sAFs, sHFp, sHFs, sFFp, sFFs = 94, 95, 96, 97, 98, 99
sFR = [100, 101]
sFH = 55
sAG = [56, 57]
sAD = 58
sROT = [0, 1, 34, 35, 54, 80, 81]
sDEL = [82, 83]
sST = (32, 92)
sKVFp, sKVs, sUm0, sYst, sYFs, sYFp, sYld, sJF, sJL, sJFp = 44, 45, 46, 47, 48, 49, 50, 51, 52, 53

vL, vL16, vL0, vNON, vPT = 1, 2, 3, 4, 5
vAld, vHld = [6, 7], [8, 9]
vHm, vHt, vAst, vF2, vO, vRw, vRr, vP31, vP7, vW1 = 10, 11, 12, 13, 14, 15, 16, 17, 18, 19
vST = (20, 21)
vFr = 0
vWd = [230, 231]
ACC = [22, 78]
WF, AR, TMP = 134, 190, 222
YS, XS = [232, 236], [240, 248]
LOG2E = 1.4426950408889634

def f32(x):
    import struct
    return '0x%08x' % struct.unpack('<I', struct.pack('<f', x))[0]

def ag_off(layer, h):
    return L_AG - L_AG2 if h == 0 else (0 if layer == 0 else L_AG - L_AG2 - 4352)

def flist(c):
    if c < 4: return [4*c + e for e in range(4)] + [16 + 4*c + e for e in range(4)]
    q = c - 4; X = [44, 46, 54][q]
    return [32 + 4*q + e for e in range(4)] + [48 + 2*q, 49 + 2*q, X, X + 1]

class Gen:
    def __init__(self, opt):
        self.o = opt
        self.k = K()
        self.tail = []
        self.stamps = []
        self.w1_next = 0
        self.late = False
        self.w1_tok = {}

    def stamp(self, name):
        self.k.ins.append(I(f"; ---- {name}"))
        dg = self.o.get('diag')
        if dg and name in dg:
            k = self.k
            k(f"s_memrealtime {s(sST[0],2)}"); k.wait_lg0()
            k(f"v_mov_b32 {v(vST[dg.index(name)])}, {s(sST[0])}")
        if not self.o.get('stamps'): return
        only = self.o.get('only')
        if only and name not in only: return
        k = self.k; n = len(self.stamps)
        k(f"s_memrealtime {s(sST[0],2)}\ns_memtime {s(sST[1],2)}"); k.wait_lg0()
        if self.o.get('spinstat') and n >= 2: k(f"s_sub_u32 {s(sST[1])}, 0, {s(sSPIN)}")
        k(f"v_writelane_b32 {v(vST[0])}, {s(sST[0])}, {n}\nv_writelane_b32 {v(vST[1])}, {s(sST[1])}, {n}")
        self.stamps.append(name)

    def srd(self, base, size):
        self.k(f"s_mov_b32 {s(base+2)}, {size}\ns_mov_b32 {s(base+3)}, 0x20000")

    def poll_issue(self, vaddr, soff, off=0, vt=vPT):
        txt = f"buffer_load_dword {v(vt)}, {v(vaddr)}, {s(RW,4)}, {soff} offen offset:{off} sc1"
        return (self.k(txt), txt, vt)

    def poll_steps(self, get, local=True):
        k = self.k
        slow, back, ok = k.label(), k.label(), k.label()
        def s1(): k.wait(get()[0])
        def s2(): k(f"v_cmp_ne_u32 vcc, {s(sEXP if local else sN)}, {v(get()[2])}")
        def s3():
            if self.o.get('nopoll') and self.late: return
            k(f"s_cbranch_vccnz {slow}"); k.place(back)
            _, txt, vt = get()
            nap = self.o.get('nap_l', 0) if local else self.o.get('nap_g', 0)
            t = [f"{slow}:"] + ([f"s_sleep {nap}"] if nap else []) + [txt, "s_waitcnt vmcnt(0)", f"v_cmp_ne_u32 vcc, {s(sN)}, {v(vt)}", f"s_cbranch_vccz {ok}",
                 f"s_sub_u32 {s(sSPIN)}, {s(sSPIN)}, 1", f"s_cbranch_scc0 {slow}", "s_branch L_END", f"{ok}:"]
            if local: t += [f"s_cmp_eq_u32 {s(sMODE)}, 0", f"s_cbranch_scc1 {back}", "buffer_inv sc1", "s_waitcnt vmcnt(0)"]
            self.tail.append(t + [f"s_branch {back}"])
        return [s1, s2, s3]

    def poll_check(self, h, local=True):
        for f in self.poll_steps(lambda: h, local): f()
    def poll(self, vaddr, soff, off=0, local=True):
        self.poll_check(self.poll_issue(vaddr, soff, off), local)
    def poll_items(self, vaddr, soff, off, at_issue, at_check):
        box = []
        it = [Item(fn=lambda: box.append(self.poll_issue(vaddr, soff, off)), at=at_issue)]
        return it + [Item(fn=f, at=at_check) for f in self.poll_steps(lambda: box[0])]

    def flag_store(self, soff, off=0, local=True):
        k = self.k
        txt = f"buffer_store_dword {v(vNON)}, {v(vL0)}, {s(RW,4)}, {soff} offen offset:{off}"
        if not local: return k(txt + " sc1")
        slow, back = k.label(), k.label()
        k(f"s_cmp_lg_u32 {s(sMODE)}, 0\ns_cbranch_scc1 {slow}")
        r = k(txt); k.place(back)
        self.tail.append([f"{slow}:", "s_waitcnt vmcnt(0)", "buffer_wbl2 sc1", "s_waitcnt vmcnt(0)", txt + " sc1", f"s_branch {back}"])
        return r
    def publish(self, tok, soff, off=0, local=True):
        self.k.wait(tok)
        return self.flag_store(soff, off, local)
    def publish_items(self, get, soff, off, at):
        return [Item(fn=lambda: self.k.wait(get()), at=at), Item(fn=lambda: self.flag_store(soff, off), cost=2, at=at)]

    def dma(self, vaddr, srd, soff, m0, extra=''):
        self.k(m0)
        return self.k(f"buffer_load_dwordx4 {v(vaddr)}, {s(srd,4)}, {soff} offen {extra} lds".replace('  ', ' '))

    def prologue(self):
        k = self.k
        k("s_cmp_ge_u32 s2, 256\ns_cbranch_scc1 L_END")
        if self.o.get('stamps'): k(f"v_mov_b32 {v(vST[0])}, 0\nv_mov_b32 {v(vST[1])}, 0")
        self.stamp('entry')
        for r, off in ((RK, 8), (RV, 16), (RW, 96), (RH, 32), (RS, 24), (RQ, 0), (RG, 56), (RU, 64), (RD, 72), (RO, 80)):
            k(f"s_load_dwordx2 {s(r,2)}, s[0:1], {off}")
        k(f"s_load_dwordx2 {s(sDP,2)}, s[0:1], 40")
        k(f"s_lshr_b32 {s(sJ)}, s2, 3")
        self.code_prefetch()
        k(f"""s_and_b32 {s(sX)}, s2, 7
              v_lshrrev_b32 v5, 6, v0
              v_and_b32 {v(vL)}, 63, v0
              v_readfirstlane_b32 {s(sW)}, v5
              v_lshlrev_b32 {v(vL16)}, 4, {v(vL)}""")
        for r, size in ((RK, 2097152), (RV, 2097152), (RW, WS_SIZE), (RH, 2097152), (RS, 4096)): self.srd(r, size)

        k(f"""v_lshrrev_b32 v24, 3, {v(vL)}
              v_and_b32 v25, 7, {v(vL)}
              v_and_b32 v26, 2, v24
              v_xor_b32 v25, v25, v26
              s_and_b32 {s(T[0])}, {s(sW)}, 1
              s_lshl_b32 {s(T[0])}, {s(T[0])}, 2
              v_xor_b32 v25, {s(T[0])}, v25
              v_lshlrev_b32 v25, 4, v25
              v_lshl_add_u32 v25, v24, 10, v25
              s_lshl_b32 {s(T[0])}, {s(sJ)}, 16
              s_lshl_b32 {s(T[1])}, {s(sW)}, 14
              s_lshl_b32 {s(T[2])}, {s(sX)}, 7
              s_add_u32 {s(T[0])}, {s(T[0])}, {s(T[1])}
              s_add_u32 {s(T[0])}, {s(T[0])}, {s(T[2])}
              v_add_u32 v25, {s(T[0])}, v25
              v_xor_b32 v26, 64, v25
              v_subrev_u32 v26, 8192, v26
              s_lshl_b32 {s(T[1])}, {s(sW)}, 11
              s_add_u32 {s(T[2])}, {s(T[1])}, {L_K + 1024}
              s_add_u32 {s(T[3])}, {s(T[1])}, {L_V}
              s_movk_i32 {s(T[4])}, 8192
              v_and_b32 v27, 15, {v(vL)}
              s_lshl_b32 {s(T[0])}, {s(sX)}, 6
              s_lshl_b32 {s(T[1])}, {s(sW)}, 4
              s_add_u32 {s(T[1])}, {s(T[0])}, {s(T[1])}
              v_add_u32 v27, {s(T[1])}, v27
              v_lshlrev_b32 v28, 3, v27
              s_lshl_b32 {s(T[1])}, {s(sJ)}, 1
              s_add_u32 {s(T[0])}, {s(T[0])}, {s(T[1])}
              s_lshl_b32 {s(T[5])}, {s(T[0])}, 1
              s_lshl_b32 {s(T[6])}, {s(T[0])}, 12
              s_add_u32 {s(T[7])}, {s(T[6])}, 4096
              v_lshlrev_b32 v29, 4, v0""")
        k.wait_lg0()
        self.stamp('start')
        k(f"s_load_dword {s(sN)}, {s(RW,2)}, 0")
        k(f"s_load_dword {s(sD)}, {s(sDP,2)}, {s(T[5])}")
        self.dma(25, RK, '0', f"s_mov_b32 m0, {s(T[2])}")
        self.dma(25, RV, '0', f"s_mov_b32 m0, {s(T[3])}")
        self.dma(25, RK, s(T[4]), f"s_add_u32 m0, {s(T[2])}, 1024")
        self.dma(25, RV, s(T[4]), f"s_add_u32 m0, {s(T[3])}, 1024")
        skip = k.label()
        k(f"s_cmp_lg_u32 {s(sW)}, 0\ns_cbranch_scc1 {skip}\ns_mov_b32 m0, {L_K}\ns_nop 0")
        k.ins.append(I(f"buffer_load_dwordx4 v26, {s(RK,4)}, 0 offen lds"))
        k.place(skip)
        self.sh_tok = k(f"buffer_load_dwordx2 v[30:31], v28, {s(RS,4)}, 0 offen")
        if not self.o.get('hpos', 1): self.h_load()
        k(f"""s_getreg_b32 {s(sXCC)}, hwreg(HW_REG_XCC_ID, 0, 4)
              v_cmp_eq_u32 vcc, 0, {v(vL)}
              v_mov_b32 v5, 0x80000000
              s_lshl_b32 {s(T[1])}, {s(sX)}, 5
              s_add_u32 {s(T[1])}, {s(T[1])}, {s(sJ)}
              s_mul_i32 {s(T[1])}, {s(T[1])}, {self.o.get('xs', 4)}
              s_add_u32 {s(T[1])}, {s(T[1])}, {WS_XCCF}
              s_cmp_eq_u32 {s(sW)}, 2
              s_cselect_b32 {s(T[1])}, {s(T[1])}, 0x40000000
              v_cndmask_b32 {v(vL0)}, v5, 0, vcc""")
        k.wait_lg0()
        k(f"""s_mul_i32 {s(sN)}, {s(sN)}, 1664525
              s_add_u32 {s(sN)}, {s(sN)}, 1013904223
              s_xor_b32 {s(T[0])}, {s(sN)}, {s(sXCC)}
              v_mov_b32 v5, {s(T[0])}
              v_mov_b32 {v(vNON)}, {s(sN)}""")
        k(f"buffer_store_dword v5, {v(vL0)}, {s(RW,4)}, {s(T[1])} offen sc1")
        for r, size in ((RQ, 2097152), (RG, 1835008), (RU, 1835008), (RD, 1835008), (RO, 2097152)): self.srd(r, size)
        k(f"""s_lshr_b32 {s(sD+2)}, {s(sD)}, 16
              s_and_b32 {s(sD+3)}, {s(sD)}, 0xffff0000
              s_lshl_b32 {s(sD+1)}, {s(sD)}, 16
              s_and_b32 {s(sD)}, {s(sD)}, 0xffff
              s_mov_b32 {s(sC2)}, {f32(LOG2E*LOG2E)}
              s_mov_b32 {s(sC2+1)}, {f32(LOG2E*LOG2E)}
              s_mov_b32 {s(sSPIN)}, {self.o.get('spin', 400000)}
              s_mov_b32 {s(sHALF)}, 0x20000
              s_mov_b32 {s(sHH)}, {H_HALF}
              v_and_b32 {v(vP31)}, 31, {v(vL)}
              v_lshlrev_b32 {v(vP31)}, 2, {v(vP31)}
              v_and_b32 {v(vP7)}, 7, {v(vL)}
              v_lshlrev_b32 {v(vP7)}, 2, {v(vP7)}""")
        for i in range(1, 8): k(f"s_movk_i32 {s(sK4+i)}, {4096*i}")

    def h_load(self):
        k = self.k
        k(f"buffer_load_dwordx4 v[32:35], v29, {s(RH,4)}, {s(T[6])} offen")
        k(f"buffer_load_dwordx4 v[40:43], v29, {s(RH,4)}, {s(T[7])} offen")
        k(f"buffer_load_dwordx4 v[36:39], v29, {s(RH,4)}, {s(T[6])} offen offset:2")
        self.h_tok = k(f"buffer_load_dwordx4 v[44:47], v29, {s(RH,4)}, {s(T[7])} offen offset:2")

    def code_prefetch(self):
        if not self.o.get('cpf', 1): return
        k = self.k
        k(f"s_getpc_b64 {s(T[2],2)}")
        k.place("L_PC")
        k(f"""s_mul_i32 {s(T[4])}, {s(sJ)}, ((L_LAST-L_PC+4095)/4096)*128
              v_min_u32 v5, (L_LAST-L_PC+4095)/4096-1, v0
              v_lshl_add_u32 v5, v5, 7, {s(T[4])}
              v_min_u32 v5, L_LAST-L_PC-4, v5
              global_load_dword v219, v5, {s(T[2],2)}""")

    def tlb_touch(self):
        if not self.o.get('tlb', 0): return
        k = self.k
        k(f"v_and_b32 v5, 15, {v(vL)}\nv_lshlrev_b32 v5, 20, v5")
        k(f"buffer_load_dword v200, v5, {s(RW,4)}, 0 offen offset:512")
        k(f"buffer_load_dword v201, v5, {s(RO,4)}, 0 offen")
        k(f"buffer_load_dword v196, v5, {s(RG,4)}, 0 offen")
        k(f"buffer_load_dword v197, v5, {s(RU,4)}, 0 offen")
        k(f"buffer_load_dword v198, v5, {s(RQ,4)}, 0 offen")

    def touch_first(self):
        k = self.k
        if self.o.get('tch_kv', 1):
            k(f"v_and_b32 v5, 15, {v(vL)}\nv_lshlrev_b32 v5, 7, v5")
            k(f"buffer_load_dword v220, v5, {s(RW,4)}, {s(sKVs)} offen sc1")
        if self.o.get('tch_fl', 1):
            k(f"""s_lshl_b32 {s(T[0])}, {s(sX)}, 12
                  s_add_u32 {s(T[0])}, {s(T[0])}, {WS_AF}
                  v_lshl_add_u32 v22, {v(vL)}, 7, {s(T[0])}
                  v_cmp_lt_u32 vcc, 15, {v(vL)}
                  v_add_u32 v5, {0x8000 - 16*128}, v22
                  s_lshl_b32 {s(T[0])}, {s(sX)}, 9
                  v_cndmask_b32 v22, v22, v5, vcc
                  v_cmp_lt_u32 vcc, 47, {v(vL)}
                  v_add_u32 v5, {0x8000 - 32*128}, v22
                  s_add_u32 {s(T[0])}, {s(T[0])}, {WS_KVF}
                  v_cndmask_b32 v22, v22, v5, vcc
                  v_cmp_lt_u32 vcc, 55, {v(vL)}
                  v_and_b32 v5, 3, {v(vL)}
                  v_lshl_add_u32 v5, v5, 7, {s(T[0])}
                  s_cmp_eq_u32 {s(sW)}, 3
                  s_cselect_b32 {s(T[0])}, 0, 0x40000000
                  v_cndmask_b32 v5, v22, v5, vcc
                  buffer_load_dword v221, v5, {s(RW,4)}, {s(T[0])} offen sc1""")
    def touch_global_flags(self):
        if not self.o.get('tch_g', 2): return
        k = self.k
        k(f"""v_lshlrev_b32 v5, 7, {v(vL)}
              s_lshl_b32 {s(T[1])}, {s(sX)}, {2 if self.o.get('tch_g', 2) == 2 else 8}
              s_and_b32 {s(T[1])}, {s(T[1])}, 0x1c
              s_or_b32 {s(T[1])}, {s(T[1])}, {s(sW)}
              s_cmp_eq_u32 {s(T[1])}, 1
              s_cselect_b32 {s(T[0])}, {s(sJ)}, 31
              s_lshl_b32 {s(T[1])}, {s(T[0])}, 13
              s_cmp_lt_u32 {s(T[0])}, {JF_BLK + self.o.get('yfs', 4)//4}
              s_cselect_b32 {s(T[0])}, {s(T[1])}, 0x40000000
              s_add_u32 {s(T[0])}, {s(T[0])}, {WS_JF}
              buffer_load_dword v202, v5, {s(RW,4)}, {s(T[0])} offen sc1""")
    def touch_h_addr(self):
        self.k(f"""s_lshl_b32 {s(T[0])}, {s(sJ)}, 2
                  s_add_u32 {s(T[0])}, {s(T[0])}, {s(sW)}
                  s_mul_i32 {s(T[0])}, {s(T[0])}, 7168
                  s_mul_i32 {s(T[1])}, {s(sX)}, {H_X}
                  s_add_u32 {s(T[0])}, {s(T[0])}, {s(T[1])}
                  s_add_u32 {s(T[0])}, {s(T[0])}, {WS_H}
                  v_min_u32 v227, 55, {v(vL)}
                  v_lshl_add_u32 v227, v227, 7, {s(T[0])}""")
    def touch_h_text(self): return f"buffer_load_dword v228, v227, {s(RW,4)}, 0 offen sc1"
    def touch_f(self):
        k = self.k
        k(f"""v_and_b32 v5, 7, {v(vL)}
              v_lshlrev_b32 v5, 7, v5
              v_bfe_u32 v22, {v(vL)}, 3, 1
              v_lshl_add_u32 v5, v22, 17, v5
              buffer_load_dword v199, v5, {s(RW,4)}, {s(sFR[0])} offen sc1""")

    def q_load(self, issue=True):
        k = self.k
        k(f"""s_lshl_b32 {s(T[0])}, {s(sX)}, 7
              s_lshl_b32 {s(T[1])}, {s(sJ)}, 2
              s_add_u32 {s(T[0])}, {s(T[0])}, {s(T[1])}
              s_add_u32 {s(T[0])}, {s(T[0])}, {s(sW)}
              s_lshl_b32 {s(T[0])}, {s(T[0])}, 10
              s_mov_b32 {s(T[10])}, {s(T[0])}
              s_add_u32 {s(T[11])}, {s(T[0])}, 0x100000""")
        if issue: self.q_issue()
    def q_issue(self):
        k = self.k
        k(f"buffer_load_dwordx4 v[204:207], {v(vL16)}, {s(RQ,4)}, {s(T[10])} offen")
        self.q_tok = k(f"buffer_load_dwordx4 v[208:211], {v(vL16)}, {s(RQ,4)}, {s(T[11])} offen")

    def persistent(self):
        k = self.k; AG = self.o.get('ag', 1)
        k(f"""s_lshl_b32 {s(T[0])}, {s(sJ)}, 2
              s_add_u32 {s(T[0])}, {s(T[0])}, {s(sW)}
              s_lshl_b32 {s(T[8])}, {s(sX)}, 18
              s_lshl_b32 {s(T[9])}, {s(sX)}, 12
              s_lshr_b32 {s(T[10])}, {s(sJ)}, 3
              s_and_b32 {s(T[11])}, {s(sJ)}, 7
              s_lshl_b32 {s(T[1])}, {s(T[0])}, 2
              s_add_u32 {s(T[1])}, {s(T[1])}, {s(T[9])}
              s_add_u32 {s(sAFs)}, {s(T[1])}, {WS_AF}
              s_lshl_b32 {s(T[1])}, {s(sW)}, 7
              s_add_u32 {s(T[1])}, {s(T[1])}, {s(T[9])}
              s_add_u32 {s(sAFp)}, {s(T[1])}, {WS_AF}
              s_lshl_b32 {s(T[2])}, {s(sJ)}, 2
              s_add_u32 {s(T[1])}, {s(T[1])}, {s(T[2])}
              s_add_u32 {s(sHFs)}, {s(T[1])}, {WS_HF}
              s_lshl_b32 {s(T[1])}, {s(T[10])}, 7
              s_lshl_b32 {s(T[2])}, {s(sW)}, 5
              s_add_u32 {s(T[1])}, {s(T[1])}, {s(T[2])}
              s_add_u32 {s(T[1])}, {s(T[1])}, {s(T[9])}
              s_add_u32 {s(sHFp)}, {s(T[1])}, {WS_HF}
              s_lshl_b32 {s(T[2])}, {s(T[11])}, 2
              s_add_u32 {s(T[1])}, {s(T[1])}, {s(T[2])}
              s_add_u32 {s(sFFs)}, {s(T[1])}, {WS_FF}
              s_lshr_b32 {s(T[1])}, {s(sJ)}, 1
              s_lshl_b32 {s(T[1])}, {s(T[1])}, 5
              s_add_u32 {s(T[1])}, {s(T[1])}, {s(T[9])}
              s_add_u32 {s(sFFp)}, {s(T[1])}, {WS_FF}
              s_lshr_b32 {s(T[1])}, {s(T[0])}, 5
              s_lshl_b32 {s(T[1])}, {s(T[1])}, 15
              s_bfe_u32 {s(T[2])}, {s(T[0])}, 0x10004
              s_lshl_b32 {s(T[2])}, {s(T[2])}, 10
              s_and_b32 {s(T[3])}, {s(T[0])}, {12 if AG else 15}
              s_lshl_b32 {s(T[3])}, {s(T[3])}, 4
              s_add_u32 {s(T[1])}, {s(T[1])}, {s(T[2])}
              s_add_u32 {s(T[1])}, {s(T[1])}, {s(T[3])}
              s_add_u32 {s(T[1])}, {s(T[1])}, {s(T[8])}
              s_lshl_b32 {s(T[2])}, {s(sW)}, 13
              s_add_u32 {s(T[2])}, {s(T[2])}, {WS_A}
              s_add_u32 {s(T[1])}, {s(T[1])}, {s(T[2]) if AG else WS_A}
              v_lshrrev_b32 v5, {4 if AG else 2}, {v(vL)}
              v_lshlrev_b32 v5, 11, v5
              v_bfe_u32 {v(vAst)}, {v(vL)}, {2 if AG else 0}, 2
              v_lshl_add_u32 {v(vAst)}, {v(vAst)}, 8, v5
              v_and_b32 v5, {3 if AG else 0}, {v(vL)}
              v_lshl_add_u32 {v(vAst)}, v5, 4, {v(vAst)}
              v_add_u32 {v(vAst)}, {s(T[1])}, {v(vAst)}
              s_lshl_b32 {s(T[1])}, {s(sW)}, 15
              s_add_u32 {s(T[1])}, {s(T[1])}, {s(T[8])}
              s_add_u32 {s(T[1])}, {s(T[1])}, {WS_A}
              v_add_u32 {v(vAld[0])}, {s(T[1])}, {v(vL16)}
              v_add_u32 {v(vAld[1])}, 0x20000, {v(vAld[0])}
              v_add_u32 {v(vW1)}, 57344, {v(vL16)}
              v_lshrrev_b32 v5, 4, {v(vL)}
              v_and_b32 v23, 15, {v(vL)}
              v_lshlrev_b32 v22, 9, v5
              v_lshl_add_u32 v22, v23, 4, v22
              s_mul_i32 {s(T[4])}, {s(sX)}, {H_X}
              s_add_u32 {s(T[4])}, {s(T[4])}, {WS_H}
              s_mul_i32 {s(T[1])}, {s(sW)}, {H_RB}
              s_mul_i32 {s(T[2])}, {s(sJ)}, 3584
              s_add_u32 {s(T[1])}, {s(T[1])}, {s(T[2])}
              s_add_u32 {s(T[1])}, {s(T[1])}, {s(T[4])}
              v_add_u32 {v(vHm)}, {s(T[1])}, v22
              s_mul_i32 {s(T[1])}, {s(T[10])}, {H_RB}
              s_mul_i32 {s(T[2])}, {s(sW)}, 28672
              s_add_u32 {s(T[1])}, {s(T[1])}, {s(T[2])}
              s_add_u32 {s(T[1])}, {s(T[1])}, {s(T[4])}
              v_add_u32 {v(vHld[0])}, {s(T[1])}, v22
              v_add_u32 {v(vHld[1])}, {H_HALF}, {v(vHld[0])}
              v_cmp_gt_u32 vcc, 48, {v(vL)}
              v_add_u32 {v(vHt)}, 2048, {v(vHm)}
              v_mov_b32 v22, 0x80000000
              v_mul_u32_u24 {v(vRw)}, 272, v23
              v_cndmask_b32 {v(vHt)}, v22, {v(vHt)}, vcc
              v_lshl_add_u32 {v(vRw)}, v5, 4, {v(vRw)}
              s_mul_i32 {s(T[1])}, {s(sW)}, 8704
              s_add_u32 {s(T[1])}, {s(T[1])}, {L_RED}
              v_add_u32 {v(vRw)}, {s(T[1])}, {v(vRw)}
              v_lshrrev_b32 v5, 3, {v(vL)}
              v_mul_u32_u24 {v(vRr)}, 272, v5
              v_lshl_add_u32 {v(vRr)}, {v(vP7)}, 3, {v(vRr)}
              s_mul_i32 {s(T[1])}, {s(sW)}, {8*272}
              s_add_u32 {s(T[1])}, {s(T[1])}, {L_RED}
              v_add_u32 {v(vRr)}, {s(T[1])}, {v(vRr)}
              s_lshl_b32 {s(T[1])}, {s(T[10])}, 5
              s_lshl_b32 {s(T[2])}, {s(sW)}, 3
              s_add_u32 {s(T[1])}, {s(T[1])}, {s(T[2])}
              v_add_u32 v5, {s(T[1])}, v5
              s_lshl_b32 {s(T[2])}, {s(T[11])}, 7
              s_lshl_b32 {s(T[1])}, {s(sX)}, 17
              s_add_u32 {s(T[2])}, {s(T[2])}, {s(T[1])}
              v_lshl_add_u32 v22, {v(vP7)}, 2, {s(T[2])}
              v_lshl_add_u32 {v(vO)}, v5, 10, v22
              s_lshr_b32 {s(T[1])}, {s(T[11])}, 2
              s_lshl_b32 {s(T[1])}, {s(T[1])}, 13
              s_and_b32 {s(T[2])}, {s(T[11])}, 3
              s_lshl_b32 {s(T[2])}, {s(T[2])}, 7
              s_add_u32 {s(T[1])}, {s(T[1])}, {s(T[2])}
              s_lshl_b32 {s(T[2])}, {s(sX)}, 9
              s_add_u32 {s(T[1])}, {s(T[1])}, {s(T[2])}
              s_add_u32 {s(T[1])}, {s(T[1])}, {WS_YP}
              v_lshl_add_u32 {v(vF2)}, {v(vP7)}, 2, {s(T[1])}
              v_lshl_add_u32 {v(vF2)}, v5, 14, {v(vF2)}
              s_mov_b32 {s(sFH)}, 0x100000
              s_lshl_b32 {s(T[1])}, {s(T[0])}, 14
              s_add_u32 {s(T[1])}, {s(T[1])}, {s(T[2])}
              s_add_u32 {s(sFR[0])}, {s(T[1])}, {WS_YP}
              s_add_u32 {s(sFR[1])}, {s(T[1])}, {WS_YP + 4096}
              v_lshrrev_b32 v5, 5, {v(vL)}
              v_lshlrev_b32 v5, 13, v5
              v_lshl_add_u32 {v(vFr)}, {v(vP31)}, 2, v5""")

    W1V = 212
    def w1_addr(self):
        k = self.k; vb = self.W1V; rot = self.o.get('rot', 1)
        k(f"""s_mul_i32 {s(T[0])}, {s(sJ)}, 112
              s_movk_i32 {s(T[1])}, 9363
              s_movk_i32 {s(T[2])}, {3584 - 7*16}
              s_mul_i32 {s(sW1S)}, {s(sW)}, 229376
              s_mul_i32 {s(sW1L)}, {s(sW)}, 14336
              s_and_b32 {s(T[3])}, {s(sX)}, {6 if rot else 0}
              s_and_b32 {s(T[4])}, {s(sX)}, {1 if rot else 0}
              s_cselect_b32 {s(T[5])}, {s(RU)}, {s(RG)}
              s_cselect_b32 {s(T[6])}, {s(RU+1)}, {s(RG+1)}
              s_cselect_b32 {s(RU)}, {s(RG)}, {s(RU)}
              s_cselect_b32 {s(RU+1)}, {s(RG+1)}, {s(RU+1)}
              s_cselect_b32 {s(T[4])}, 7168, 0
              s_lshl_b32 {s(sDEL[0])}, {s(T[4])}, 1
              s_sub_u32 {s(sDEL[0])}, 7168, {s(sDEL[0])}
              s_mov_b32 {s(RG)}, {s(T[5])}
              s_mov_b32 {s(RG+1)}, {s(T[6])}
              s_add_u32 {s(sDEL[1])}, {s(sDEL[0])}, 57344
              s_add_u32 {s(T[4])}, {s(T[4])}, {s(sW1L)}""")
        for i in range(7):
            k(f"""s_add_u32 {s(T[5])}, {s(T[3])}, {i}
                  s_sub_u32 {s(T[6])}, {s(T[5])}, 7
                  s_cselect_b32 {s(T[5])}, {s(T[5])}, {s(T[6])}
                  s_lshl_b32 {s(T[6])}, {s(T[5])}, 10
                  s_add_u32 {s(sROT[i])}, {s(T[6])}, {s(T[4])}
                  v_lshl_add_u32 v5, {s(T[5])}, 6, {v(vL)}
                  v_mul_u32_u24 {v(vb+i)}, {s(T[1])}, v5
                  v_lshrrev_b32 {v(vb+i)}, 16, {v(vb+i)}
                  v_mul_u32_u24 {v(vb+i)}, {s(T[2])}, {v(vb+i)}
                  v_lshl_add_u32 {v(vb+i)}, v5, 4, {v(vb+i)}
                  v_add_u32 {v(vb+i)}, {s(T[0])}, {v(vb+i)}""")

    def w1_dma_text(self, n):
        ck, mat, i = n // 14, (n % 14) // 7, n % 7
        L = []
        if n == 14: L.append(f"s_add_u32 {s(sW1S)}, {s(sW1S)}, {4*229376}")
        L.append(f"s_add_u32 m0, {s(sROT[i])}, {s(sDEL[ck]) if mat else ck*57344}")
        L.append(f"buffer_load_dwordx4 {v(self.W1V+i)}, {s(RU if mat else RG,4)}, {s(sW1S)} offen lds")
        return L
    def w1_dma(self, cnt):
        for _ in range(cnt):
            if self.w1_next >= 28: return
            n = self.w1_next; self.w1_next += 1
            for x in self.w1_dma_text(n): self.w1_tok[n] = self.k(x)

    RL = 222
    def w1_relayout_addr(self):
        k = self.k; r = self.RL
        k(f"""v_lshrrev_b32 v5, 4, {v(vL)}
              v_bfe_u32 {v(r)}, {v(vL)}, 2, 2
              v_lshl_add_u32 {v(r)}, v5, 3, {v(r)}
              v_mul_u32_u24 {v(r)}, 112, {v(r)}
              v_add_u32 {v(r)}, {s(sW1L)}, {v(r)}
              v_and_b32 {v(r+2)}, 3, {v(vL)}
              v_bfe_u32 {v(r+3)}, {v(vL)}, 1, 1
              v_mul_u32_u24 {v(r+3)}, 7168, {v(r+3)}
              v_and_b32 v22, 1, {v(vL)}
              v_lshl_add_u32 {v(r+3)}, v22, 3, {v(r+3)}
              v_add_u32 {v(r+1)}, {v(r)}, {v(r+3)}
              v_lshl_add_u32 {v(r)}, {v(r+2)}, 3, {v(r)}
              v_add_u32 {v(r+2)}, {s(sW1L)}, {v(vL16)}
              v_bfe_u32 {v(r+3)}, {v(vL)}, 1, 2
              v_lshlrev_b32 {v(r+3)}, 2, {v(r+3)}
              v_bfe_u32 v23, {v(vL)}, 3, 1
              v_lshl_add_u32 {v(r+3)}, v23, 1, {v(r+3)}
              v_add_u32 {v(r+3)}, {v(r+3)}, v22
              v_lshl_add_u32 {v(r+3)}, v5, 4, {v(r+3)}
              v_lshlrev_b32 {v(r+3)}, 4, {v(r+3)}
              v_add_u32 {v(r+3)}, {s(sW1L)}, {v(r+3)}""")
    def w1_relayout_items(self, ck, vtemp=False):
        k = self.k; r = self.RL
        R, a = (ACC[1], v) if vtemp else (128, globals()['a'])
        L = [Item(fn=lambda: k.wait(self.w1_tok[14*ck + 13]))]
        if ck == 1: L += [Item(f"v_add_u32 {v(r+i)}, 57344, {v(r+i)}") for i in range(4)]
        for sl in range(2):
            for Tt in range(7):
                for hf in range(2):
                    d = R + (sl*7 + Tt)*4 + 2*hf
                    o = (32*sl + 4*hf)*112
                    if Tt < 6: L.append(Item(f"ds_read_b64_tr_b16 {a(d,2)}, {v(r)} offset:{o + (Tt&1)*7168 + 32*(Tt>>1)}"))
                    else: L.append(Item(f"ds_read_b64_tr_b16 {a(d,2)}, {v(r+1)} offset:{o + 96}"))
        last = L[-1]
        L.append(Item(fn=lambda: k.wait(last.tok)))
        for n in range(14): L.append(Item(f"ds_write_b128 {v(r+3 if n % 7 == 6 else r+2)}, {a(R + n*4, 4)} offset:{n*1024}"))
        return L
    def w1_relayout(self, ck): Queue(self.k, self.w1_relayout_items(ck)).drain()

    JV = 190
    def wd_job_addr(self):
        k = self.k; r = self.JV
        k(f"""s_lshl_b32 {s(T[0])}, s2, 1
              s_lshr_b32 {s(T[1])}, {s(sW)}, 1
              s_add_u32 {s(T[0])}, {s(T[0])}, {s(T[1])}
              s_mul_i32 {s(T[1])}, {s(T[0])}, 4682
              s_lshr_b32 {s(T[1])}, {s(T[1])}, 16
              s_mul_i32 {s(T[2])}, {s(T[1])}, 14
              s_sub_u32 {s(T[2])}, {s(T[0])}, {s(T[2])}
              s_and_b32 {s(T[3])}, {s(T[1])}, 3
              s_lshr_b32 {s(T[1])}, {s(T[1])}, 2
              s_lshl_b32 {s(T[1])}, {s(T[1])}, 7
              s_mul_i32 {s(T[3])}, {s(T[3])}, {8*57344}
              s_add_u32 {s(T[1])}, {s(T[1])}, {s(T[3])}
              s_cmp_lt_u32 s2, 224
              s_cselect_b32 {s(T[3])}, {s(sW)}, 0
              s_bitcmp1_b32 {s(T[3])}, 0
              s_cselect_b32 {s(T[3])}, 0, 0x80000000
              s_mul_i32 {s(T[4])}, {s(T[0])}, {JFS}
              s_add_u32 {s(T[4])}, {s(T[4])}, {WS_JF}
              s_lshr_b32 {s(sJF)}, {s(T[3])}, 1
              s_or_b32 {s(sJF)}, {s(sJF)}, {s(T[4])}
              s_lshl_b32 {s(T[0])}, {s(T[0])}, 12
              s_add_u32 {s(T[0])}, {s(T[0])}, {WS_WDT}
              s_or_b32 {s(T[0])}, {s(T[0])}, {s(T[3])}
              s_or_b32 {s(T[1])}, {s(T[1])}, {s(T[3])}
              v_add_u32 {v(r+5)}, {s(T[0])}, {v(vL16)}
              v_lshrrev_b32 v5, 3, {v(vL)}
              v_and_b32 v22, 3, v5
              v_lshlrev_b32 v22, 3, v22
              v_cmp_gt_u32 vcc, 4, v5
              v_lshl_add_u32 v23, {v(vP7)}, 2, {s(T[1])}
              s_lshl_b32 {s(T[2])}, {s(T[2])}, 2""")
        for g in range(4):
            k(f"""s_add_u32 {s(T[0])}, {s(T[2])}, {g}
                  s_mul_i32 {s(T[1])}, {s(T[0])}, 9363
                  s_lshr_b32 {s(T[1])}, {s(T[1])}, 16
                  s_mul_i32 {s(T[3])}, {s(T[1])}, 7
                  s_sub_u32 {s(T[0])}, {s(T[0])}, {s(T[3])}
                  s_mul_i32 {s(T[1])}, {s(T[1])}, 56
                  s_mul_i32 {s(T[3])}, {s(T[0])}, 0x04040404
                  s_add_u32 {s(T[4])}, {s(T[3])}, 0x13121110
                  s_add_u32 {s(T[3])}, {s(T[3])}, 0x03020100
                  s_cmp_ge_u32 {s(T[0])}, 4
                  s_cselect_b32 {s(T[3])}, {s(T[4])}, {s(T[3])}
                  s_cselect_b32 {s(T[4])}, {sum(x << (8*e) for e, x in enumerate(flist(4)[4:]))}, {s(T[4])}
                  s_cmp_eq_u32 {s(T[0])}, 5
                  s_cselect_b32 {s(T[4])}, {sum(x << (8*e) for e, x in enumerate(flist(5)[4:]))}, {s(T[4])}
                  s_cmp_eq_u32 {s(T[0])}, 6
                  s_cselect_b32 {s(T[4])}, {sum(x << (8*e) for e, x in enumerate(flist(6)[4:]))}, {s(T[4])}
                  v_mov_b32 v5, {s(T[3])}
                  v_mov_b32 {v(r+g)}, {s(T[4])}
                  v_cndmask_b32 v5, {v(r+g)}, v5, vcc
                  v_bfe_u32 v5, v5, v22, 8
                  v_add_u32 v5, {s(T[1])}, v5
                  v_lshl_add_u32 {v(r+g)}, v5, 10, v23""")
        k(f"""s_lshl_b32 {s(sJL)}, {s(sW)}, 12
              s_add_u32 {s(sJL)}, {s(sJL)}, {L_JOB}
              v_lshrrev_b32 v5, 4, {v(vL)}
              v_lshlrev_b32 {v(r+4)}, 10, v5
              v_bfe_u32 v5, {v(vL)}, 2, 2
              v_lshl_add_u32 {v(r+4)}, v5, 7, {v(r+4)}
              v_and_b32 v5, 3, {v(vL)}
              v_lshl_add_u32 {v(r+4)}, v5, 3, {v(r+4)}
              v_add_u32 {v(r+4)}, {s(sJL)}, {v(r+4)}""")
    def wd_job_issue(self):
        for g in range(4): self.job_tok = self.dma(self.JV+g, RD, '0', f"s_add_u32 m0, {s(sJL)}, {1024*g}")
    def wd_job_finish(self):
        k = self.k; r = self.JV
        k.wait(self.job_tok)
        t = {}
        for nt in range(4):
            for hf in range(2): t[nt] = k(f"ds_read_b64_tr_b16 {a(128 + 4*nt + 2*hf, 2)}, {v(r+4)} offset:{hf*512 + nt*32}")
        for nt in range(4):
            k.wait(t[nt])
            self.job_st = k(f"buffer_store_dwordx4 {a(128 + 4*nt, 4)}, {v(r+5)}, {s(RW,4)}, 0 offen offset:{1024*nt} sc1")
    WDV = 226
    def wd_addr(self):
        self.k(f"""s_and_b32 {s(T[0])}, {s(sJ)}, 7
                   s_lshl_b32 {s(T[0])}, {s(T[0])}, 2
                   s_add_u32 {s(T[0])}, {s(T[0])}, {s(sW)}
                   s_mul_i32 {s(sJFp)}, {s(T[0])}, {14*JFS}
                   s_add_u32 {s(sJFp)}, {s(sJFp)}, {WS_JF}
                   s_mul_i32 {s(T[0])}, {s(T[0])}, {14*4096}
                   s_add_u32 {s(T[0])}, {s(T[0])}, {WS_WDT}
                   v_add_u32 {v(vWd[0])}, {s(T[0])}, {v(vL16)}
                   v_add_u32 {v(vWd[1])}, 32768, {v(vWd[0])}
                   v_min_u32 v226, 13, {v(vL)}
                   v_mul_u32_u24 v226, {JFS}, v226""")
    def wd_touch_text(self, i):
        return f"buffer_load_dword {v(228+i)}, v227, {s(RW,4)}, {k4(i)} offen offset:{3072*i} sc1"
    def wd_text(self, n):
        U, nt = divmod(n, 4)
        return f"buffer_load_dwordx4 {a(4*n, 4)}, {v(vWd[U >> 3])}, {s(RW,4)}, {k4(U & 7)} offen offset:{1024*nt}{self.o.get('wdm', ' sc1')}"

    def phase0(self):
        k = self.k
        k(f"""v_lshrrev_b32 v5, 4, {v(vL)}
              v_bfe_u32 v48, {v(vL)}, 2, 2
              v_lshl_add_u32 v49, v5, 4, v48
              v_lshlrev_b32 v49, 7, v49
              v_bfe_u32 v50, {v(vL)}, 1, 1
              s_lshl_b32 {s(T[0])}, {s(sW)}, 1
              v_add_u32 v50, {s(T[0])}, v50
              v_and_b32 v48, 2, v48
              v_xor_b32 v50, v50, v48
              v_and_b32 v48, 1, v5
              v_lshlrev_b32 v48, 2, v48
              v_xor_b32 v50, v50, v48
              v_lshl_add_u32 v49, v50, 4, v49
              v_and_b32 v48, 1, {v(vL)}
              v_lshl_add_u32 v49, v48, 3, v49
              v_add_u32 v49, {L_K}, v49
              v_xor_b32 v50, 64, v49
              v_lshlrev_b32 v51, 12, v27
              v_lshl_add_u32 v51, v5, 5, v51
              s_lshl_b32 {s(T[6])}, {s(sJ)}, 7
              s_add_u32 {s(T[6])}, {s(T[6])}, {WS_KVT}
              v_mul_u32_u24 v52, {self.o.get('xs', 4)//4}, {v(vP31)}
              s_mul_i32 {s(T[7])}, {s(sX)}, {32*self.o.get('xs', 4)}
              s_add_u32 {s(T[7])}, {s(T[7])}, {WS_XCCF}
              s_lshl_b32 {s(T[0])}, {s(sX)}, 9
              s_lshl_b32 {s(T[1])}, {s(sW)}, 7
              s_lshl_b32 {s(T[2])}, {s(sJ)}, 2
              s_add_u32 {s(T[1])}, {s(T[1])}, {s(T[2])}
              s_add_u32 {s(T[0])}, {s(T[0])}, {WS_KVF}
              s_add_u32 {s(T[5])}, {s(T[1])}, {s(T[0])}
              s_xor_b32 {s(T[0])}, {s(sN)}, {s(sXCC)}
              s_mov_b32 {s(sMODE)}, 0
              s_mov_b32 {s(sEXP)}, {s(sN)}""")
        k.wait(self.sh_tok)
        k("s_barrier")
        self.stamp('kv_in')
        xh = k(f"buffer_load_dword v53, v52, {s(RW,4)}, {s(T[7])} offen sc1")
        KR, VR, KS, O, VU, P = 56, 68, 78, 88, 104, 120
        k(f"ds_read_b64_tr_b16 {v(KR,2)}, v50 offset:512")
        for i in range(4): k(f"ds_read_b64_tr_b16 {v(KR+2+2*i,2)}, v49 offset:{1024 + 512*i}")
        for i in range(4): lastv = k(f"ds_read_b64_tr_b16 {v(VR+2*i,2)}, v49 offset:{L_V - L_K + 512*i}")
        k("v_alignbit_b32 v54, v30, v30, 16\nv_alignbit_b32 v55, v31, v31, 16")
        k.wait(('lg', lastv[1] - 4))
        for aa in range(-1, 8): k(f"v_alignbit_b32 {v(KS+1+aa)}, {v(KR+2+aa)}, {v(KR+1+aa)}, 16")
        for aa in range(8):
            k(f"v_dot2_f32_bf16 {v(O+2*aa)}, {v(KS+aa)}, v55, 0")
            k(f"v_dot2_f32_bf16 {v(O+2*aa+1)}, {v(KR+1+aa)}, v55, 0")
        for aa in range(8):
            k(f"v_dot2_f32_bf16 {v(O+2*aa)}, {v(KS+1+aa)}, v54, {v(O+2*aa)}")
            k(f"v_dot2_f32_bf16 {v(O+2*aa+1)}, {v(KR+2+aa)}, v54, {v(O+2*aa+1)}")
        k.wait(lastv)
        for g in range(2):
            for aa in range(4*g, 4*g+4):
                k(f"v_lshlrev_b32 {v(VU+2*aa)}, 16, {v(VR+aa)}")
                k(f"v_and_b32 {v(VU+2*aa+1)}, 0xffff0000, {v(VR+aa)}")
            for aa in range(4*g, 4*g+4): k(f"v_pk_mul_f32 {v(O+2*aa,2)}, {v(O+2*aa,2)}, {v(VU+2*aa,2)}")
            for e in range(4): k(f"v_cvt_pk_bf16_f32 {v(P+4*g+e)}, {v(O+8*g+7-2*e)}, {v(O+8*g+6-2*e)}")
            st = k(f"buffer_store_dwordx4 {v(P+4*g,4)}, v51, {s(RW,4)}, {s(T[6])} offen offset:{16*g}")
        self.stamp('kv_st')
        self.toeplitz_write()
        slow, back, done = k.label(), k.label(), k.label()
        k.wait(xh)
        k(f"v_cmp_ne_u32 vcc, {s(T[0])}, v53\ns_cbranch_vccnz {slow}")
        k.place(back)
        self.tail.append([f"{slow}:",
            f"buffer_load_dword v53, v52, {s(RW,4)}, {s(T[7])} offen sc1", "s_waitcnt vmcnt(0)",
            f"v_xor_b32 v54, {s(sN)}, v53", "v_cmp_lt_u32 vcc, 15, v54", f"s_cbranch_vccz {done}",
            f"s_sub_u32 {s(sSPIN)}, {s(sSPIN)}, 1", f"s_cbranch_scc0 {slow}", "s_branch L_END",
            f"{done}:", f"v_cmp_ne_u32 vcc, {s(T[0])}, v53", f"s_cbranch_vccz {back}",
            f"s_mov_b32 {s(sMODE)}, 1", f"s_not_b32 {s(sEXP)}, {s(sN)}", f"s_branch {back}"])
        if not self.o.get('fake_kv'): self.publish(st, s(T[5]))
        self.stamp('kv_pub')

    def toeplitz_write(self):
        k = self.k
        k.wait(self.h_tok)
        k(f"v_add_u32 v48, {SCR}, v29")
        for ch in range(2):
            k(f"ds_write_b128 v48, {v(32+8*ch,4)} offset:{H_E(ch) - SCR}")
            k(f"ds_write_b128 v48, {v(36+8*ch,4)} offset:{H_O(ch) - SCR}")
        skip = k.label()
        k(f"s_cmp_lg_u32 {s(sW)}, 0\ns_cbranch_scc1 {skip}")
        k(f"""v_readfirstlane_b32 {s(T[1])}, v32
              v_readfirstlane_b32 {s(T[2])}, v40
              v_cmp_eq_u32 vcc, 28, {v(vP7)}
              v_add_u32 v49, {SCR}, {v(vP7)}
              s_lshl_b32 {s(T[1])}, {s(T[1])}, 16
              s_lshl_b32 {s(T[2])}, {s(T[2])}, 16
              v_mov_b32 v50, 0
              v_mov_b32 v51, 0
              v_mov_b32 v54, {s(T[1])}
              v_mov_b32 v55, {s(T[2])}
              v_cndmask_b32 v54, v50, v54, vcc
              v_cndmask_b32 v55, v50, v55, vcc
              ds_write_b32 v49, v50 offset:{H_E(0) - 32 - SCR}
              ds_write_b32 v49, v50 offset:{H_E(1) - 32 - SCR}
              ds_write_b32 v49, v54 offset:{H_O(0) - 32 - SCR}
              ds_write_b32 v49, v55 offset:{H_O(1) - 32 - SCR}
              v_lshlrev_b32 v49, 3, {v(vL)}
              v_add_u32 v49, {L_U}, v49
              ds_write_b64 v49, v[50:51]
              ds_write_b64 v49, v[50:51] offset:{U_S}""")
        k.place(skip)

    YA = 146
    def front_addr(self):
        k = self.k; o = self.o; Y = self.YA; yfs = o.get('yfs', 4)
        k(f"""v_and_b32 v24, 15, {v(vL)}
              v_lshrrev_b32 v25, 4, {v(vL)}
              v_lshlrev_b32 v5, 3, v25
              v_sub_u32 v26, v24, v5
              v_add_u32 v26, 9, v26
              v_and_b32 v5, 1, v26
              v_sub_u32 v26, v26, v5
              v_lshlrev_b32 v26, 1, v26
              v_mul_u32_u24 v5, {H_O(0) - H_E(0)}, v5
              v_add_u32 v26, v26, v5
              s_lshr_b32 {s(T[0])}, {s(sW)}, 1
              s_mul_i32 {s(T[2])}, {s(T[0])}, {H_E(1) - H_E(0)}
              s_and_b32 {s(T[1])}, {s(sW)}, 1
              s_lshl_b32 {s(T[3])}, {s(T[1])}, 8
              s_add_u32 {s(T[2])}, {s(T[2])}, {s(T[3])}
              s_add_u32 {s(T[2])}, {s(T[2])}, {H_E(0)}
              v_add_u32 v152, {s(T[2])}, v26
              s_mul_i32 {s(T[4])}, {s(T[0])}, {U_S}
              s_add_u32 {s(T[4])}, {s(T[4])}, {L_U + 512}
              s_lshl_b32 {s(T[2])}, {s(T[1])}, 11
              s_add_u32 {s(sUm0)}, {s(T[4])}, {s(T[2])}
              s_sub_u32 {s(T[4])}, {s(T[4])}, {s(T[3])}
              s_sub_u32 {s(T[4])}, {s(T[4])}, 224
              v_lshlrev_b32 v140, 5, v24
              v_lshl_add_u32 v140, v25, 4, v140
              v_add_u32 v140, {s(T[4])}, v140
              s_lshl_b32 {s(T[0])}, {s(sX)}, 9
              s_lshr_b32 {s(T[1])}, {s(sJ)}, 3
              s_lshl_b32 {s(T[1])}, {s(T[1])}, 7
              s_add_u32 {s(T[1])}, {s(T[0])}, {s(T[1])}
              s_add_u32 {s(sKVFp)}, {s(T[1])}, {WS_KVF}
              s_lshl_b32 {s(T[1])}, {s(sJ)}, 4
              s_add_u32 {s(T[0])}, {s(T[0])}, {s(T[1])}
              s_add_u32 {s(sYld)}, {s(T[0])}, {WS_YP}
              s_lshl_b32 {s(T[0])}, {s(sX)}, 18
              s_lshl_b32 {s(T[1])}, {s(sJ)}, 13
              s_add_u32 {s(T[0])}, {s(T[0])}, {s(T[1])}
              s_lshl_b32 {s(T[2])}, {s(sW)}, 11
              s_add_u32 {s(T[1])}, {s(T[0])}, {s(T[2])}
              s_add_u32 {s(sKVs)}, {s(T[1])}, {WS_KVT}
              s_lshl_b32 {s(T[2])}, {s(sW)}, 10
              s_add_u32 {s(T[1])}, {s(T[0])}, {s(T[2])}
              s_add_u32 {s(sYst)}, {s(T[1])}, {WS_YP}
              v_lshlrev_b32 v141, 5, v24
              v_lshrrev_b32 v5, 1, v25
              v_lshl_add_u32 v141, v5, 4, v141
              v_and_b32 v5, 1, v25
              v_xor_b32 v5, 1, v5
              v_lshl_add_u32 v141, v5, 3, v141
              s_lshl_b32 {s(T[0])}, {s(sW)}, 9
              s_add_u32 {s(T[1])}, {s(T[0])}, {L_U + 512}
              v_add_u32 v141, {s(T[1])}, v141
              s_add_u32 {s(T[1])}, {s(T[2])}, {L_YT}
              v_add_u32 {v(Y+3)}, {s(T[1])}, {v(vL16)}
              s_lshl_b32 {s(T[0])}, {s(sW)}, 12
              s_add_u32 {s(T[0])}, {s(T[0])}, {L_CRED}
              v_add_u32 v142, {s(T[0])}, {v(vL16)}
              s_add_u32 {s(T[0])}, {s(T[2])}, {L_CRED}
              v_add_u32 v143, {s(T[0])}, {v(vL16)}
              v_lshlrev_b32 v144, 6, v24
              v_lshl_add_u32 v144, v25, 4, v144
              v_add_u32 v145, 4096, v144
              s_lshl_b32 {s(T[0])}, {s(sX)}, 5
              s_add_u32 {s(T[0])}, {s(T[0])}, {s(sJ)}
              s_lshl_b32 {s(T[0])}, {s(T[0])}, 2
              s_add_u32 {s(T[0])}, {s(T[0])}, {s(T[2])}
              s_mul_i32 {s(T[0])}, {s(T[0])}, {yfs//4}
              s_add_u32 {s(sYFs)}, {s(T[0])}, {WS_YF}
              v_lshlrev_b32 {v(Y+2)}, 2, v0
              v_mul_u32_u24 {v(Y)}, {yfs}, v0
              s_lshr_b32 {s(T[0])}, {s(sX)}, 1
              s_mul_i32 {s(T[0])}, {s(T[0])}, {256*yfs}
              s_add_u32 {s(sYFp)}, {s(T[0])}, {WS_YF}
              v_lshlrev_b32 {v(Y+1)}, 13, v0
              v_add_u32 {v(Y+2)}, {L_YT}, {v(Y+2)}""")
        for p in range(1, 8): k(f"v_add_u32 {v(152+p)}, {512*p}, v152")

    def conv_finish(self, h, C, pk):
        KV, P = 32, 160 + 16*h
        W = [f"ds_write_b128 v142, {v(C + 16*h + 4*c, 4)} offset:{16384*h + 1024*c}" for c in range(4)]
        R = [f"ds_read_b64 {v(KV + 4*h + 2*ch, 2)}, v141 offset:{2048*h + ch*U_S}" for ch in range(2)]
        R2 = [f"ds_read_b128 {v(P + 4*w, 4)}, v143 offset:{16384*h + 4096*w}" for w in range(4)]
        L = []
        for ch in range(2):
            if pk: L += [f"v_pk_add_f32 {v(P+8*ch+e,2)}, {v(P+8*ch+e,2)}, {v(P+8*ch+4+e,2)}" for e in (0, 2)]
            else: L += [f"v_add_f32 {v(P+8*ch+e)}, {v(P+8*ch+e)}, {v(P+8*ch+4+e)}" for e in range(4)]
        D = [f"v_dot2_f32_bf16 {v(P+8*ch+e)}, {v(KV+4*h+2*ch+(1-(e>>1)))}, {s(sD+2*ch+(1-(e&1)))}, {v(P+8*ch+e)}" for e in range(4) for ch in range(2)]
        E = [f"v_cvt_pk_bf16_f32 {v(P+4+e)}, {v(P+e)}, {v(P+8+e)}" for e in range(4)]
        E.append(f"buffer_store_dwordx4 {v(P+4,4)}, {v(144+h)}, {s(RW,4)}, {s(sYst)} offen sc1")
        return W, R, R2, L, D, E

    def conv(self):
        k = self.k; o = self.o; Y = self.YA
        def tz(rr, p):
            d = (rr*8 + p)*4
            return [f"ds_read2_b32 {a(d,2)}, {v(152+p)} offset0:{16*rr} offset1:{16*rr+1}",
                    f"ds_read2_b32 {a(d+2,2)}, {v(152+p)} offset0:{16*rr+2} offset1:{16*rr+3}"]
        first = [x for rr in range(4) for p in range(4) for x in tz(rr, p)]
        second = [x for rr in range(4) for p in range(4, 8) for x in tz(rr, p)]
        k.wait_lg0()
        k("s_barrier")
        if o.get('b1', 1): self.w1_dma(o.get('n1', 1))
        n0 = o.get('toep0', 20)
        if not o.get('fake_kv'): ph = self.poll_issue(vP31, s(sKVFp))
        for x in first[:n0]: k(x)
        self.stamp('toep')
        if not o.get('fake_kv'): self.poll_check(ph)
        self.stamp('kv_seen')
        k(f"s_mov_b32 m0, {s(sUm0)}")
        k(f"buffer_load_dwordx4 {v(vL16)}, {s(RW,4)}, {s(sKVs)} offen sc1 lds")
        tok = k(f"buffer_load_dwordx4 {v(vL16)}, {s(RW,4)}, {s(sKVs)} offen offset:1024 sc1 lds")
        for x in first[n0:]: k(x)
        k.wait(tok)
        k("s_barrier")
        self.stamp('u_in')
        B, C = 64, 96
        uses = [(0, rr, q) for rr in range(4) for q in range(4)] + [(1, rr, q) for rr in range(4) for q in range(8)]
        bt = {}
        def rdB(i):
            part, rr, q = uses[i]
            bt[i] = k(f"ds_read_b128 {v(B + 4*(i % 8), 4)}, v140 offset:{512*q + 64*(3-rr)}")
        for i in range(8): rdB(i)
        pre = []
        if o.get('jpos', 0) == 0: self.wd_job_issue()
        if not o.get('joint', 1): self.q_load()
        tq = Queue(k, [Item(x) for x in second]); tits = list(tq.q)
        n2 = o.get('n2', 11); dq = []
        for i in range(n2):
            if self.w1_next >= 14: break
            n = self.w1_next; self.w1_next += 1
            for x in self.w1_dma_text(n): dq.append(Item(x, at=o.get('n2at', 2) + i*(o.get('n2span', 130) // n2), tag=n))
        dits = list(dq)
        if o.get('qpos', 1) == 2:
            dq.append(Item(fn=self.q_issue, cost=2, at=o.get('q_at', 30))); dq.sort(key=lambda x: x.at)
        dq = Queue(k, dq)
        side = Queue(k, []); ybox = []
        m = 0; started = set()
        for i, (part, rr, q) in enumerate(uses):
            need = []
            if part == 1 and q == 0:
                while any(x.tok is None for x in tits[:8*rr + 8]): tq.emit(tq.q[0])
                need = [tits[8*rr + 7].tok]
            if part == 1 and rr == 0 and q == 0:
                W, R, R2, L, D, E = self.conv_finish(0, C, False)
                its = [Item(x, cost=2, at=m + 3 + 2*n) for n, x in enumerate(W)] + [Item(x) for x in R]
                its += [Item(fn=lambda: k.wait_lg0(), at=m + 16), Item(fn=lambda: k("s_barrier"))]
                its += [Item(x) for x in R2]; lastr = its[-1]
                its += [Item(fn=lambda: k.wait(lastr.tok), at=m + 26)] + [Item(x) for x in L]
                its += [Item(fn=lambda: [k(x) for x in D], cost=2)] + [Item(x) for x in E]
                ysA = its[-1]
                if not o.get('joint', 1): its += [Item(fn=lambda: k.wait(ysA.tok), at=o.get('ya_pub', 118)), Item(fn=lambda: self.flag_store(s(sYFs), 0, False))]
                side = Queue(k, its)
            if i % 2 == 0: k.wait(bt[i + 1], *need)
            ps = range(4 - q) if part == 0 else range(max(0, 4 - q), 8 - q)
            for n, p in enumerate(ps):
                c = C + 4*(p + q)
                src = v(c, 4) if (p + q) in started else '0'
                started.add(p + q)
                k(f"v_mfma_f32_16x16x32_bf16 {v(c,4)}, {a((rr*8+p)*4,4)}, {v(B + 4*(i % 8),4)}, {src}")
                m += 1
                cap = 2
                if n == len(ps) - 1: cap -= (1 if i + 8 < len(uses) else 0) + (i % 2)
                cap = side.fill(cap, m)
                cap = dq.fill(cap, m)
                tq.fill(min(cap, 1))
            if i + 8 < len(uses): rdB(i + 8)
        print('conv left:', side.cost(), dq.cost())
        dq.drain()
        for x in dits: self.w1_tok[x.tag] = x.tok
        self.stamp('conv_mfma')
        W, R, R2, L, D, E = self.conv_finish(1, C, True)
        for x in R + W: k(x)
        side.drain()
        k.wait_lg0()
        k("s_barrier")
        for x in R2: k(x)
        if not o.get('joint', 1): pa = self.poll_issue(Y, s(sYFp))
        k.wait_lg0()
        self.ysB = self.run(L + D + E)[-1].tok
        self.stamp('y_st')
        if not o.get('joint', 1):
            self.poll_check(pa, False)
            self.stamp('y_seen')

    def y_joint(self):
        k = self.k; o = self.o; Y = self.YA
        self.wd_job_finish()
        self.persistent()
        if not o.get('fake_y'):
            self.publish(self.ysB, s(sYFs), local=False)
            self.stamp('y_pub')
            if not o.get('jlate', 0): self.publish(self.job_st, s(sJF), local=False)
        k("s_barrier")
        done0 = self.w1_next >= 14
        if o.get('qpos', 1) == 1: self.q_load()
        self.w1_dma(o.get('n3', 4))
        self.w1_relayout_addr()
        self.wd_addr()
        k(f"s_add_u32 {s(T[8])}, {s(sYld)}, 4096")
        if o.get('qpos', 1) >= 2 and not o.get('qlate'): self.q_stats()
        if o.get('jlate', 0): self.publish(self.job_st, s(sJF), local=False)
        if done0: self.w1_relayout(0)
        if o.get('qpos', 1) == 1 and not o.get('qlate'): self.q_stats()
        k(f"s_mul_i32 {s(sAG[0])}, {s(sW)}, 1088\ns_add_u32 {s(sAG[0])}, {s(sAG[0])}, {L_AG2}\ns_lshl_b32 {s(sAG[1])}, {s(sW)}, 8\ns_add_u32 {s(sAG[1])}, {s(sAG[1])}, {L_AG2}")
        self.run(self.ag_addr(100))
        if o.get('agb', 1) == 0:
            k(f"""s_lshl_b32 {s(T[0])}, {s(sJ)}, 2
                  s_add_u32 {s(T[0])}, {s(T[0])}, {s(sW)}
                  s_lshr_b32 {s(T[1])}, {s(T[0])}, 5
                  s_lshl_b32 {s(T[1])}, {s(T[1])}, 15
                  s_bfe_u32 {s(T[2])}, {s(T[0])}, 0x10004
                  s_lshl_b32 {s(T[2])}, {s(T[2])}, 10
                  s_and_b32 {s(T[0])}, {s(T[0])}, 15
                  s_lshl_b32 {s(T[0])}, {s(T[0])}, 4
                  s_add_u32 {s(T[1])}, {s(T[1])}, {s(T[2])}
                  s_add_u32 {s(T[1])}, {s(T[1])}, {s(T[0])}
                  s_lshl_b32 {s(T[0])}, {s(sX)}, 18
                  s_add_u32 {s(T[1])}, {s(T[1])}, {s(T[0])}
                  s_add_u32 {s(sAD)}, {s(T[1])}, {WS_A + 0x20000}""")
        self.stamp('rl0')
        if not o.get('fake_y'): self.poll(Y, s(sYFp), local=False)
        else: self.publish(self.job_st, s(sJF), local=False)
        self.stamp('y_seen')
        t0 = k(f"buffer_load_dwordx4 v[32:35], {v(Y+1)}, {s(RW,4)}, {s(sYld)} offen sc1")
        t1 = k(f"buffer_load_dwordx4 v[36:39], {v(Y+1)}, {s(RW,4)}, {s(T[8])} offen sc1")
        if o.get('jlate', 0) < 2: pj = self.poll_issue(226, s(sJFp), 0, 229)
        if o.get('b4', 1): k("s_barrier")
        self.w1_dma(o.get('n4', 6))
        if o.get('tch_h', 0) == 1: k(self.touch_h_text())
        if not done0 and self.w1_next >= 14: self.w1_relayout(0); done0 = True
        if o.get('qlate'): self.q_stats()
        k.wait(t0)
        for e in range(4): k(f"ds_write_b32 {v(Y+2)}, {v(32+e)} offset:{1024*e}")
        k.wait(t1)
        for e in range(4): k(f"ds_write_b32 {v(Y+2)}, {v(36+e)} offset:{1024*(4+e)}")
        k.wait_lg0()
        k("s_barrier")
        for h in range(2): k(f"ds_read_b128 {v(YS[h],4)}, {v(Y+3)} offset:{4096*h}")
        k.wait_lg0()
        self.stamp('y_in')
        its = self.run(self.gate_norm([0, 1], self.N0, 0, 56))
        sts = self.a_out([0, 1], 56, 0) if o.get('ag', 1) else [x.tok for x in its if 'store' in x.text]
        self.stamp('a_st')
        if o.get('jlate', 0) < 2: self.poll_check(pj, False)
        if done0: self.gemm1_start(0)
        self.publish(sts[0], s(sAFs), 0)
        self.publish(sts[1], s(sAFs), 512)
        k(f"s_or_b32 {s(T[0])}, s2, {s(sW)}\ns_cmp_eq_u32 {s(T[0])}, 0\ns_cselect_b32 {s(T[0])}, 0, 0x40000000")
        k(f"buffer_store_dword {v(vNON)}, {v(vL0)}, {s(RW,4)}, {s(T[0])} offen sc1")
        self.stamp('a_pub')
        self.rl1_done = bool(o.get('rl1_front', 0)); self.rowb_done = True
        self.wd0 = o.get('wd0', 0)
        for n in range(self.wd0): k(self.wd_text(n))
        if o.get('b5', 1): k("s_barrier")
        self.w1_dma(28 if self.rl1_done else o.get('n5', 4))
        if self.w1_next < 28:
            for i in range(7): k(f"v_mov_b32 {v(126+i)}, {v(self.W1V+i)}")
            self.W1V = 126
        if not done0: self.w1_relayout(0)
        if self.rl1_done: self.w1_relayout(1)
        if self.rl1_done or not done0: k.wait_lg0(); k("s_barrier")
        if not done0: self.gemm1_start(0)

    def stats(self, rows, out, t0, scale=None):
        L = []; n = len(rows)
        for i, x in enumerate(rows):
            b = t0 + 6*i
            L += [f"v_pk_add_f32 {v(b,2)}, {v(x,2)}, {v(x+2,2)}", f"v_pk_mul_f32 {v(b+2,2)}, {v(x,2)}, {v(x,2)}",
                  f"v_pk_add_f32 {v(b+4,2)}, {v(x+4,2)}, {v(x+6,2)}"]
            L += [f"v_pk_fma_f32 {v(b+2,2)}, {v(x+e,2)}, {v(x+e,2)}, {v(b+2,2)}" for e in (2, 4, 6)]
            L += [f"v_pk_add_f32 {v(b,2)}, {v(b,2)}, {v(b+4,2)}", f"v_add_f32 {v(b+2)}, {v(b+2)}, {v(b+3)}", f"v_add_f32 {v(b)}, {v(b)}, {v(b+1)}"]
        for ctl in ("row_ror:8 row_mask:0xf", "row_ror:4 row_mask:0xf", "row_ror:2 row_mask:0xf", "row_ror:1 row_mask:0xf",
                    "row_bcast:15 row_mask:0xa", "row_bcast:31 row_mask:0xc"):
            for i in range(n):
                for e in (2, 0):
                    r = t0 + 6*i + e
                    L.append(f"v_add_f32_dpp {v(r)}, {v(r)}, {v(r)} {ctl} bank_mask:0xf")
        for i in range(n):
            b = t0 + 6*i
            L += [f"v_mul_f32 {v(b)}, 0x3b000000, {v(b)}", f"v_mul_f32 {v(b+2)}, 0x3b000000, {v(b+2)}",
                  f"v_fma_f32 {v(b+2)}, -{v(b)}, {v(b)}, {v(b+2)}", f"v_max_f32 {v(b+2)}, 0, {v(b+2)}",
                  f"v_add_f32 {v(b+2)}, 0x3727c5ac, {v(b+2)}", f"v_rsq_f32 {v(b+2)}, {v(b+2)}"]
            if scale: L.append(f"v_mul_f32 {v(b+2)}, {f32(scale)}, {v(b+2)}")
            L += [f"v_mul_f32_e64 {v(b)}, -{v(b)}, {v(b+2)}", f"v_readlane_b32 {s(out[i])}, {v(b+2)}, 63",
                  f"v_readlane_b32 {s(out[i]+2)}, {v(b)}, 63", f"v_mov_b32 {v(b+4)}, {s(out[i]+2)}"]
        return L
    def unpack(self, dst, src):
        L = []
        for e in range(4): L += [f"v_lshlrev_b32 {v(dst+2*e)}, 16, {v(src+e)}", f"v_and_b32 {v(dst+2*e+1)}, 0xffff0000, {v(src+e)}"]
        return L
    def affine(self, dst, x, sp, vb):
        return [f"v_pk_fma_f32 {v(dst+e,2)}, {v(x+e,2)}, {s(sp,2)}, {v(vb,2)} op_sel_hi:[1,0,0]" for e in (0, 2, 4, 6)]
    def run(self, L, look=12):
        its = [Item(x) for x in L]
        Queue(self.k, its, look).drain()
        return its

    def gate_norm(self, halves, nrm, layer, R, direct=None):
        L = []; sp = [36, 40]
        t0 = R + 16*len(halves)
        for i, h in enumerate(halves):
            L += self.unpack(R + 16*i, YS[h])
            L += [f"v_pk_fma_f32 {v(XS[h]+e,2)}, {v(nrm[h]+e,2)}, {v(R+16*i+e,2)}, {v(XS[h]+e,2)}" for e in (0, 2, 4, 6)]
        L += self.stats([XS[h] for h in halves], sp[:len(halves)], t0, LOG2E)
        for i, h in enumerate(halves):
            b = R + 16*i
            L += self.affine(b, XS[h], sp[i], t0 + 6*i + 4)
            L += [f"v_cvt_pk_bf16_f32 {v(b+8+e)}, {v(b+2*e)}, {v(b+2*e+1)}" for e in range(4)]
            if direct: L.append(f"buffer_store_dwordx4 {v(b+8,4)}, {v(direct)}, {s(RW,4)}, {s(sAD)} offen")
            elif self.o.get('ag', 1): L.append(f"ds_write_b128 {v(self.agw)}, {v(b+8,4)} offset:{ag_off(layer, h)}")
            else: L.append(f"buffer_store_dwordx4 {v(b+8,4)}, {v(vAst)}, {s(RW,4)}, {s(sHALF) if h else 0} offen")
            if layer == 1:
                L += [f"v_cvt_pk_bf16_f32 {v(b+12+e)}, {v(XS[h]+2*e)}, {v(XS[h]+2*e+1)}" for e in range(4)]
                L.append(f"buffer_store_dwordx4 {v(b+12,4)}, {v(vFr)}, {s(RW,4)}, {s(sFR[h])} offen{self.o.get('x3m', '')}")
        return L

    def ag_addr(self, r):
        if not self.o.get('ag', 1): return []
        self.agw, self.agr = r, r + 1
        return [f"v_bfe_u32 {v(r+1)}, {v(vL16)}, 4, 2", f"v_mul_u32_u24 {v(r+1)}, 1088, {v(r+1)}", f"v_lshrrev_b32 {v(r)}, 6, {v(vL16)}",
                f"v_lshl_add_u32 {v(r+1)}, {v(r)}, 4, {v(r+1)}", f"v_add_u32 {v(r+1)}, {s(sAG[1])}, {v(r+1)}", f"v_add_u32 {v(r)}, {s(sAG[0])}, {v(vL16)}"]
    def a_out(self, halves, R, layer, between=None):
        k = self.k
        if between: between()
        k.wait_lg0(); k("s_barrier")
        t = [k(f"ds_read_b128 {v(R + 4*i, 4)}, {v(self.agr)} offset:{ag_off(layer, h)}") for i, h in enumerate(halves)]
        out = []
        for i, h in enumerate(halves):
            k.wait(t[i])
            out.append(k(f"buffer_store_dwordx4 {v(R + 4*i, 4)}, {v(vAst)}, {s(RW,4)}, {s(sHALF) if h else 0} offen"))
        return out

    N0 = [40, 118]
    def q_stats(self):
        k = self.k
        k.wait(self.q_tok)
        L = []
        for h in range(2): L += self.unpack(XS[h], 204 + 4*h)
        L += self.stats(XS, [36, 40], 128)
        for h in range(2): L += self.affine(self.N0[h], XS[h], [36, 40][h], 128 + 6*h + 4)
        self.run(L)

    def y_row(self, h, t, raw):
        k = self.k; Y = self.YA
        k.wait(t)
        for e in range(4): k(f"ds_write_b32 {v(Y+2)}, {v(raw+e)} offset:{4096*h + 1024*e}")
        k.wait_lg0()
        k("s_barrier")
        k(f"ds_read_b128 {v(YS[h],4)}, {v(Y+3)} offset:{4096*h}")
        k.wait_lg0()

    def y_in(self):
        k = self.k; o = self.o; Y = self.YA
        t0 = k(f"buffer_load_dwordx4 v[32:35], {v(Y+1)}, {s(RW,4)}, {s(sYld)} offen sc1")
        k(f"s_add_u32 {s(sYFs)}, {s(sYFs)}, {1024*o.get('yfs', 4)}\ns_add_u32 {s(sYFp)}, {s(sYFp)}, {1024*o.get('yfs', 4)}\ns_add_u32 {s(sYld)}, {s(sYld)}, 4096")
        self.publish(self.ysB, s(sYFs), local=False)
        self.stamp('y_pub')
        if o.get('jpos', 0) == 0: self.wd_job_finish()
        self.q_stats()
        self.persistent()
        k("s_barrier")
        self.w1_dma(o.get('n4', 6))
        self.y_row(0, t0, 32)
        self.stamp('y_in')
        its = self.run(self.gate_norm([0], self.N0, 0, 56))
        st = [x.tok for x in its if 'store' in x.text][0]
        self.stamp('a_st')
        for i in range(4): k(f"v_mov_b32 {v(110+i)}, {v(Y+i)}")
        self.YA = 110
        if self.w1_next + o.get('n5', 28) < 28:
            for i in range(7): k(f"v_mov_b32 {v(126+i)}, {v(self.W1V+i)}")
            self.W1V = 126
        self.w1_relayout_addr()
        self.publish(st, s(sAFs), 0)
        self.flag_store(s(sJF), 0, False)
        k(f"s_or_b32 {s(T[0])}, s2, {s(sW)}\ns_cmp_eq_u32 {s(T[0])}, 0\ns_cselect_b32 {s(T[0])}, 0, 0x40000000")
        k(f"buffer_store_dword {v(vNON)}, {v(vL0)}, {s(RW,4)}, {s(T[0])} offen sc1")
        self.stamp('a_pub')
        self.w1_dma(o.get('n5', 28))
        self.w1_relayout(0)
        self.wd_addr()
        self.rl1_done = bool(o.get('rl1_front', 1))
        if self.rl1_done:
            if o.get('rowb_front', 1): self.row_b0()
            self.w1_relayout(1)
        k.wait_lg0(); k("s_barrier")
        self.stamp('w1')
        self.gemm1_start(0)

    def row_b0(self, h0=None):
        k = self.k; Y = self.YA
        if h0 is None:
            self.poll(Y, s(sYFp), local=False)
            h0 = k(f"buffer_load_dwordx4 v[106:109], {v(Y+1)}, {s(RW,4)}, {s(sYld)} offen sc1")
        self.y_row(1, h0, 106)
        its = self.run(self.gate_norm([1], self.N0, 0, ACC[1]))
        self.aB_tok = [x.tok for x in its if 'store' in x.text][0]
        self.rowb_done = True
        if self.o.get('rowb_front', 1) and self.rl1_done: self.publish(self.aB_tok, s(sAFs), 512)

    def epilogue1(self, B, half, off, pk, sc=''):
        L = []; so = s(sHH) if half else '0'
        if not sc and self.o.get('hst_nt'): sc = ' nt'
        def grp(g, u, n, outs, t):
            for e in range(n): L.append(f"v_exp_f32_e64 {v(t+e)}, -{v(g+e)}")
            if pk:
                for e in range(0, n, 2): L.append(f"v_pk_mul_f32 {v(u+e,2)}, {v(g+e,2)}, {v(u+e,2)}")
                for e in range(0, n, 2): L.append(f"v_pk_fma_f32 {v(t+e,2)}, {v(t+e,2)}, {s(sC2,2)}, {s(sC2,2)}")
            else:
                for e in range(n): L.append(f"v_mul_f32 {v(u+e)}, {v(g+e)}, {v(u+e)}")
                for e in range(n): L.append(f"v_fma_f32 {v(t+e)}, {v(t+e)}, {s(sC2)}, {s(sC2)}")
            for e in range(n): L.append(f"v_rcp_f32 {v(t+e)}, {v(t+e)}")
            if pk:
                for e in range(0, n, 2): L.append(f"v_pk_mul_f32 {v(u+e,2)}, {v(u+e,2)}, {v(t+e,2)}")
            else:
                for e in range(n): L.append(f"v_mul_f32 {v(u+e)}, {v(u+e)}, {v(t+e)}")
            for e in range(0, n, 2): L.append(f"v_cvt_pk_bf16_f32 {v(outs[e//2])}, {v(u+e)}, {v(u+e+1)}")
        grp(B, B+4, 4, [B, B+1], TMP)
        grp(B+8, B+12, 4, [B+2, B+3], TMP+4)
        L.append(f"buffer_store_dwordx4 {v(B,4)}, {v(vHm)}, {s(RW,4)}, {so} offen offset:{off}{sc}")
        grp(B+16, B+20, 4, [B+8, B+9], TMP)
        grp(B+24, B+26, 2, [B+10], TMP+4)
        Z, C, A_ = B+4, B+5, B+6
        L += [f"v_mov_b32 {v(C)}, {v(B+8)}", f"v_mov_b32 {v(A_)}, {v(B+9)}", f"v_mov_b32 {v(Z)}, {v(B+10)}",
              f"v_permlane32_swap_b32 {v(A_)}, {v(B+11)}", f"v_permlane32_swap_b32 {v(C)}, {v(Z)}",
              f"v_permlane16_swap_b32 {v(Z)}, {v(B+11)}",
              f"buffer_store_dwordx4 {v(B+8,4)}, {v(vHt)}, {s(RW,4)}, {so} offen offset:{off}{sc}"]
        return L

    def a_plan(self, layer):
        n = self.o.get('ring0', 8) if layer == 0 else self.o.get('ring1', 6)
        ring = ([('v', AR + 8*i) for i in range(4)] + [('a', 224 + 8*i) for i in range(4)])[:n]
        reg = {gs: ring[gs % n] for gs in range(32)}
        issue = {}
        for gs in range(32):
            prev = [p for p in range(gs) if reg[p] == reg[gs]]
            issue[gs] = prev[-1] + 1 if prev else -1
        return reg, issue

    def gemm1_start(self, layer):
        k = self.k
        self.wt, self.at = {}, {}
        self.areg, self.aiss = self.a_plan(layer)
        for Tt in range(7): self.rdW(0, Tt)
    def rdW(self, gs, Tt):
        st = gs % 16
        base, o = (vL16, st*7168) if st < 8 else (vW1, (st-8)*7168)
        self.wt[(gs, Tt)] = self.k(f"ds_read_b128 {v(WF + 28*(gs&1) + 4*Tt, 4)}, {v(base)} offset:{o + 1024*Tt}")
    def afrag(self, gs, mt):
        kind, b = self.areg[gs]
        return (v if kind == 'v' else a)(b + 4*mt, 4)
    def ldA(self, gs, mt):
        st = gs % 16
        self.at[(gs, mt)] = self.k(f"buffer_load_dwordx4 {self.afrag(gs, mt)}, {v(vAld[gs // 16])}, {s(RW,4)}, {k4(st>>1)} offen offset:{((st&1)*2+mt)*1024} sc1")

    def gemm1(self, layer):
        k = self.k; o = self.o
        lo = 1024*layer
        if layer: self.poll_check(self.a_poll)
        else: self.poll(vP31, s(sAFp), lo)
        self.stamp(f'a_seen{layer}')
        todo = sorted(range(32), key=lambda g: g)
        nxtA = 0
        while self.aiss[nxtA] < 0 and nxtA < o.get('a_init', 5):
            for mt in range(2): self.ldA(nxtA, mt)
            nxtA += 1
        w1q = []
        if layer == 0:
            if o.get('w1_spread', 1):
                n0 = self.w1_next
                for n in range(n0, 28):
                    for x in self.w1_dma_text(n): w1q.append(Item(x, at=int(14*o.get('w1_spread', 1)*(n - n0)/(28 - n0)), tag=n))
                self.w1_next = 28
            else: self.w1_dma(28)
        firstB = max(min(self.aiss[g] for g in range(16, 32)), o.get('firstB', 13) if layer else 0)
        queues = []
        if layer == 0:
            burst = None
            if getattr(self, 'rowb_done', False):
                queues.append(Queue(k, self.poll_items(vP31, s(sAFp), lo + 512, 14*2, 14*(firstB - 2))))
            else:
                burst = o.get('rowb0_at', 3); box = []
                its = [Item(fn=lambda: box.append(self.poll_issue(self.YA, s(sYFp))))] + [Item(fn=f, at=14*(burst - 2)) for f in self.poll_steps(lambda: box[0], False)]
                fld = Item(f"buffer_load_dwordx4 v[106:109], {v(self.YA+1)}, {s(RW,4)}, {s(sYld)} offen sc1"); its.append(fld)
                queues.append(Queue(k, its))
                firstB = max(firstB, o.get('firstB0', 12))
            rl = self.w1_relayout_items(1) if not self.rl1_done else []
            nr = nw = 0
            for x in rl:
                x.at = 14*o.get('rl1_at', 4)
                if o.get('rl_pace', 1) and x.text:
                    if 'ds_read' in x.text: x.at = o.get('rl_r0', 0) + nr*o.get('rl_rs', 10)//10; nr += 1
                    elif 'ds_write' in x.text: x.at = o.get('rl_w0', 34) + nw*o.get('rl_ws', 4); nw += 1; x.cost = 2
                    else: x.at = 0
                elif o.get('rl_pace', 1): x.at = 0 if nr == 0 else o.get('rl_w0', 34) - 2
            if w1q:
                def note():
                    for x in w1q: self.w1_tok[x.tag] = x.tok
                rl = w1q + [Item(fn=note, cost=0)] + rl
            rlq = Queue(k, rl); queues.append(rlq)
            t0 = o.get('wd_t0', 1); t1 = o.get('wd_t1', 30)
            wd = [Item(self.wd_text(n), at=int(14*(t0 + (t1 - t0)*n/56))) for n in range(getattr(self, 'wd0', 0), o.get('wd_n', 56))]
            jb = []
            pj = [Item(fn=lambda: jb.append(self.poll_issue(226, s(sJFp), 0, 229)))] + [Item(fn=f, at=14*t0 - 4) for f in self.poll_steps(lambda: jb[0], False)]
            if o.get('joint', 1) and o.get('jlate', 0) < 2: pj = []
            if o.get('tch_h', 0) == 2: pj = [Item(self.touch_h_text(), at=14*o.get('tch_at', 0))]
            wdq = Queue(k, pj + wd, 1); queues.append(wdq)
        else:
            box = []
            s0 = o.get('rowb_at', 7)
            its = self.publish_items(lambda: self.fB, s(sFFs), 512, o.get('fb_pub', 4)) + self.poll_items(vP7, s(sFFp), 512, 14*s0 - o.get('fb_pi', 54), 14*s0 - o.get('fb_pc', 32))
            fld = Item(f"buffer_load_dwordx4 {v(ACC[1],4)}, {v(vFr)}, {s(RW,4)}, {s(sFR[1])} offen sc1"); its.append(fld)
            r = ACC[1] + 54
            if o.get('agb', 1) == 0:
                its += [Item(x) for x in (f"v_lshrrev_b32 {v(r)}, 6, {v(vL16)}", f"v_lshlrev_b32 {v(r)}, 11, {v(r)}", f"v_bfe_u32 {v(r+1)}, {v(vL16)}, 4, 2",
                                          f"v_lshl_add_u32 {v(r)}, {v(r+1)}, 8, {v(r)}")]
            queues.append(Queue(k, its))
            burst = s0
        epi = None; hbox = []
        ho = lambda half, mt: 2048*layer + 1024*half + 512*mt
        hsc = [' sc1' if o.get('hsc', 15) >> (2*layer + h) & 1 else '' for h in range(2)]
        self.cur_layer = layer
        for gs in range(32):
            ps, st = divmod(gs, 16)
            if gs == burst:
                queues[0].drain(); k.wait(fld.tok)
                self.stamp('rowB_go')
                if layer: sts = self.rowop(1, ACC[1])
                else: self.row_b0(fld.tok); sts = self.aB_tok
                if o.get('xdirty'):
                    k(f"s_lshl_b32 {s(T[0])}, s2, 2\ns_add_u32 {s(T[0])}, {s(T[0])}, {s(sW)}\ns_lshl_b32 {s(T[0])}, {s(T[0])}, 12\ns_add_u32 {s(T[0])}, {s(T[0])}, 0x1100000")
                    for n in range(o['xdirty']): k(f"buffer_store_dwordx4 v[78:81], {v(vL16)}, {s(RW,4)}, {s(T[0])} offen offset:{1024*n}")
                self.stamp('rowB')
                queues[:1] = [Queue(k, self.publish_items(lambda: sts, s(sAFs), lo + 512, 14*gs + o.get('ab_pub', 36))
                                + self.poll_items(vP31, s(sAFp), lo + 512, 14*(firstB - 2) - 4, 14*firstB - 4))]
            if gs == firstB: queues[0].drain()
            if layer == 0 and gs == o.get('rl1_bar', 7) and not self.rl1_done:
                print('relayout left at step 7:', rlq.cost())
                rlq.drain(); k.wait_lg0(); k("s_barrier")
            if gs == 16:
                for q in queues[:2]: q.drain()
                xb = o.get('e0_burst', 1)
                e0 = [Item(x, at=14*16 + 4) for x in self.epilogue1(ACC[0], 0, 0, xb, hsc[0])]
                if xb: Queue(k, e0, 12).drain()
                e1 = [Item(x, at=14*16 + 4) for x in self.epilogue1(ACC[0] + 28, 0, 256, 0, hsc[0])]
                epi = ([] if xb else e0) + e1
                queues = [Queue(k, epi, 14), Queue(k, []), Queue(k, [])]
                if layer == 0: queues.append(wdq)
                pub = [False, False]; self.ht = {}; self.nxtH = 0
            if epi:
                dl = o.get('ha_pub', 84 if hsc[0] else 50)
                if not pub[0] and e0[-1].tok:
                    pub[0] = gs
                    queues[1].q += self.publish_items(lambda: e0[-1].tok, s(sHFs), ho(0, 0), 14*gs + dl)
                    t1_ = 14*gs + dl + o.get('ha_gap', 40)
                    queues[2].q += self.poll_items(vP7, s(sHFp), ho(0, 0), t1_, t1_ + o.get('ha_rtt', 28))
                    queues[2].q += [Item(fn=self.ldH, at=t1_ + o.get('ha_rtt', 28) + 4*n) for n in range(7)]
                if not pub[1] and e1[-1].tok:
                    pub[1] = gs
                    queues[1].q += self.publish_items(lambda: e1[-1].tok, s(sHFs), ho(0, 1), 14*gs + o.get('ha_pub1', 70 if hsc[0] else 40))
                    queues[2].q += [Item(fn=self.ldH, at=o.get('ha_more_at', 410) + 4*n) for n in range(o.get('ha_more', 7))]
            if gs in (2, 4, 8, 10, 12, 14, 20, 24, 28): self.stamp(f'g1_{layer}_{gs}')
            fixed = [[] for _ in range(14)]
            if gs + 1 < 32:
                for Tt in range(7): fixed[2*(Tt // 2)].append(('W', gs+1, Tt))
            slot = 6
            while nxtA < 32 and self.aiss[nxtA] <= gs and slot <= 10 and (nxtA < 16 or gs >= firstB):
                fixed[slot].append(('A', nxtA, 0)); fixed[slot+2].append(('A', nxtA, 1)); nxtA += 1; slot += 4
            k.wait(self.at[(gs, 1)], self.wt[(gs, 6)])
            for i in range(14):
                Tt, mt = divmod(i, 2)
                d = ACC[ps] + 28*mt + 4*Tt
                k(f"v_mfma_f32_16x16x32_bf16 {v(d,4)}, {v(WF + 28*(gs&1) + 4*Tt, 4)}, {self.afrag(gs, mt)}, {'0' if st == 0 else v(d,4)}")
                for it in fixed[i]:
                    if it[0] == 'W': self.rdW(it[1], it[2])
                    else: self.ldA(it[1], it[2])
                cap = 2 - len(fixed[i]) - (1 if i == 13 else 0)
                for q in (queues[::-1] if ps else queues): cap = q.fill(cap, 14*gs + i)
            if gs == 15: self.stamp(f'g1a{layer}'); self.late = layer == 1
        print('layer', layer, 'left after G1B:', [q.cost() for q in queues], 'stores done in steps', pub, 'h loads out', self.nxtH)
        queues[0].drain()
        if not pub[1]: queues[1].q += self.publish_items(lambda: e1[-1].tok, s(sHFs), ho(0, 1), 0)
        if layer == 0: wdq.drain(); self.wd_last = wd[-1].tok
        self.stamp(f'g1b{layer}')
        b0 = [Item(x) for x in self.epilogue1(ACC[1], 1, 0, 1, hsc[1])]
        b1 = [Item(x) for x in self.epilogue1(ACC[1] + 28, 1, 256, 1, hsc[1])]
        q = Queue(k, b0 + b1, 12)
        total = q.cost()
        side = [x for x in queues[2].q if x.fn != self.ldH]
        pubq = list(queues[1].q)
        ev = [(o.get('epi_pub', 0), lambda: Queue(k, pubq).drain()), (o.get('epi_lead', 10), lambda: Queue(k, side).drain())]
        gap = o.get('epi_gap', 20); t = o.get('epi_lead', 10)
        for n in range(self.nxtH, 14):
            ev.append((t, self.ldH)); t += gap
        box = []
        self.hA1_issue = lambda: box.append(self.poll_issue(vP7, s(sHFp), ho(0, 1)))
        if 'ha1_slot' not in o: ev.append((o.get('ha1_pi', 60), self.hA1_issue))
        ev.sort(key=lambda x: x[0])
        while len(q):
            while ev and total - q.cost() >= ev[0][0]: ev.pop(0)[1]()
            if q.fill(3) == 3: q.emit(q.q[0])
        for _, f in ev: f()
        self.hA1_box = box
        self.hB_tok = [b0[-1].tok, b1[-1].tok]
        self.hsc = hsc
        self.stamp(f'epiB{layer}')

    def g2_order(self):
        return [(half, U, mt) for half in range(2) for mt in range(2) for U in range(14)]
    def hreg(self, n):
        if n < 14: return ACC[0] + 4*n
        if n < 28: return WF + 4*(n - 14)
        if n < 42: return ACC[1] + 4*(n - 28)
        return ACC[0] + 4*(n - 42)
    def ldH(self, _=0):
        n = self.nxtH; self.nxtH += 1
        half, U, mt = self.g2_order()[n]
        self.ht[n] = self.k(f"buffer_load_dwordx4 {v(self.hreg(n),4)}, {v(vHld[half])}, {s(RW,4)}, {k4(U>>1)} offen offset:{(U&1)*2048 + mt*256} sc1{' nt' if self.o.get('hld_nt') and self.cur_layer else ''}")

    def red_write(self, A2):
        return [f"ds_write_b128 {v(vRw)}, {v(A2 + 16*mt + 4*nt, 4)} offset:{4352*mt + 64*nt}" for mt in range(2) for nt in range(4)]
    def red_read(self, P):
        return [f"ds_read_b128 {v(P + 8*w + 4*hf, 4)}, {v(vRr)} offset:{8704*w + 16*hf}" for w in range(4) for hf in range(2)]
    def red_sum(self, P, half, layer, X3, pk):
        L = []
        def add(d, x, y):
            if pk: L.extend(f"v_pk_add_f32 {v(d+e,2)}, {v(x+e,2)}, {v(y+e,2)}" for e in (0, 2, 4, 6))
            else: L.extend(f"v_add_f32 {v(d+e)}, {v(x+e)}, {v(y+e)}" for e in range(8))
        add(P, P, P+8); add(P+16, P+16, P+24)
        if layer == 1:
            L += self.unpack(P+8, X3); add(P, P, P+8)
        add(P, P, P+16)
        L += [f"v_cvt_pk_bf16_f32 {v(P+8+e)}, {v(P+2*e)}, {v(P+2*e+1)}" for e in range(4)]
        if layer == 0: L.append(f"buffer_store_dwordx4 {v(P+8,4)}, {v(vF2)}, {s(RW,4)}, {k4(half)} offen")
        else: L.append(f"buffer_store_dwordx4 {v(P+8,4)}, {v(vO)}, {s(RO,4)}, {s(sFH) if half else 0} offen{'' if half and self.o.get('ostb') else self.o.get('ost', ' sc1')}")
        return L

    def gemm2(self, layer):
        k = self.k; o = self.o
        lo = 1024*layer
        AC2 = [AR, WF]
        X3 = [TMP, TMP + 4]
        order = self.g2_order()
        LA = o.get('g2la', 20)
        xt = {}
        def ldX(h): xt[h] = k(f"buffer_load_dwordx4 {v(X3[h],4)}, {v(vF2)}, {s(RW,4)}, {k4(h)} offen sc1")
        ho = lambda half, mt: 2048*layer + 1024*half + 512*mt
        sl = self.hsc[1]
        gate = [14]
        def opened(n): return Item(fn=lambda: gate.__setitem__(0, n), cost=0)
        p0, p1 = o.get('hb_pub0', 21 if sl else 4), o.get('hb_pub1', 50 if sl else 20)
        g_, r_ = o.get('hb_gap', 28), o.get('hb_rtt', 25)
        side = Queue(k, self.publish_items(lambda: self.hB_tok[0], s(sHFs), ho(1, 0), p0)
                     + self.publish_items(lambda: self.hB_tok[1], s(sHFs), ho(1, 1), p1))
        side2 = Queue(k, ([Item(fn=self.hA1_issue, at=o['ha1_slot'])] if 'ha1_slot' in o else [])
                      + [Item(fn=f, at=o.get('ha1_pc', 0)) for f in self.poll_steps(lambda: self.hA1_box[0])] + [opened(28)]
                      + self.poll_items(vP7, s(sHFp), ho(1, 0), p0 + g_, p0 + g_ + r_) + [opened(42)]
                      + self.poll_items(vP7, s(sHFp), ho(1, 1), max(p1 + g_, p0 + g_ + r_ + 2), max(p1 + g_, p0 + g_ + r_ + 2) + r_) + [opened(56)])
        if layer == 0: k.wait(self.wd_last)
        fbox = []; seenB = False; wB = self.red_write(AC2[1]); doneB = 0
        def next_load():
            self.ldH()
            if layer == 1 and self.nxtH == 34: ldX(0)
            if layer == 1 and self.nxtH == 56:
                ldX(1)
                if o.get('wbl2', 0): self.writeback()
        for n in range(56):
            half, U, mt = order[n]
            if n == 28:
                self.stamp(f'g2a{layer}')
                side.drain()
                t = 4*28
                sp = o.get('ra_sp', 2)
                L = [Item(x, at=t + 3 + sp*i) for i, x in enumerate(self.red_write(AC2[0]))]
                L += [Item(fn=lambda: k.wait_lg0(), at=t + 8*sp + 3), Item(fn=lambda: k("s_barrier"))]
                L += [Item(x) for x in self.red_read(AR)]
                L += [Item(fn=lambda: k.wait_lg0(), at=t + 8*sp + o.get('ra_rd', 14)), Item(fn=lambda: k("s_barrier"))]
                if layer == 1: L += [Item(fn=lambda: k.wait(xt[0]))]
                L += [Item(x) for x in self.red_sum(AR, 0, layer, X3[0], 0)]
                fA = L[-1]
                if layer == 0:
                    L += self.publish_items(lambda: fA.tok, s(sFFs), 0, t + o.get('fa_pub', 66))
                    L += [Item(x, at=t + 60) for x in self.unpack(ACC[1] + 24, YS[0]) + self.ag_addr(ACC[1] + 52)]
                    L.append(Item(fn=lambda: fbox.append(self.poll_issue(vP7, s(sFFp), 0)), at=t + o.get('fa_pi', 86)))
                    if o.get('fa_in', 1):
                        L += [Item(fn=f, at=t + o.get('fa_pc', 104)) for f in self.poll_steps(lambda: fbox[0])]
                        fldi = Item(f"buffer_load_dwordx4 {v(ACC[1],4)}, {v(vFr)}, {s(RW,4)}, {s(sFR[0])} offen sc1"); L.append(fldi)
                if o.get('nored') and layer == 1: L = []
                side = Queue(k, L)
                last0 = max(i for i in range(28, 56) if order[i][2] == 0)
                late = Queue(k, [Item(x, at=4*(last0 + 1) + 3 + sp*i) for i, x in enumerate(wB[:4])])
            if n in (8, 16, 22, 36, 44, 50): self.stamp(f'g2_{layer}_{n}')
            for m in range(n, n + 2 - n % 2):
                while m not in self.ht:
                    while self.nxtH >= gate[0]:
                        if gate[0] > 14: side.drain() if n < 28 else None
                        side2.emit(side2.q[0])
                    next_load()
            if n % 2 == 0: k.wait(self.ht[n + 1])
            for nt in range(4):
                d = AC2[half] + 16*mt + 4*nt
                k(f"v_mfma_f32_16x16x32_bf16 {v(d,4)}, {a((4*U+nt)*4,4)}, {v(self.hreg(n),4)}, {'0' if U == 0 else v(d,4)}")
                cap = 2 - (1 if (nt == 3 and n % 2) else 0)
                if (nt == 0 or (nt == 2 and self.nxtH < n + 1 + o.get('g2min', 9))) and self.nxtH < min(gate[0], n + 1 + LA) and (self.nxtH < 42 or self.nxtH - 42 < n):
                    next_load(); cap -= 1
                cap = side2.fill(cap, 4*n + nt)
                cap = side.fill(cap, 4*n + nt)
                if n >= 28 and not any('ds_' in (x.text or '') or (x.fn and x.at <= t + 8*sp + 40) for x in side.q):
                    late.fill(cap, 4*n + nt)
        print('layer', layer, 'left after G2B:', side.cost(), late.cost())
        side.drain()
        wB = [x.text for x in late.q] + wB[4:]
        self.stamp(f'g2b{layer}')
        R = ACC[1]
        if layer == 0 and not o.get('fa_in', 1):
            self.poll_check(fbox[0])
            fld = k(f"buffer_load_dwordx4 {v(R,4)}, {v(vFr)}, {s(RW,4)}, {s(sFR[0])} offen sc1")
        elif layer == 0: fld = fldi.tok
        for x in wB: k(x)
        if layer == 0:
            k.wait(fld)
            self.stamp('fA_in')
            sts, rest = self.rowop(0, R, True)
            self.stamp('rowA')
            if o.get('apub_first', 2): self.run(rest)
            if o.get('apub_first', 2) == 1: self.publish(sts, s(sAFs), 1024)
        if not (layer == 0 and o.get('ag', 1)): k.wait_lg0(); k("s_barrier")
        for x in self.red_read(ACC[0]): k(x)
        if layer == 0 and o.get('apub_first', 2) == 2: self.publish(sts, s(sAFs), 1024)
        k.wait_lg0()
        if layer == 1: k.wait(xt[1])
        if layer == 0 and not o.get('apub_first', 2): self.publish(sts, s(sAFs), 1024)
        if layer == 0: self.a_poll = self.poll_issue(vP31, s(sAFp), 1024)
        self.fB = self.run(self.red_sum(ACC[0], 1, layer, X3[1], 1))[-1].tok
        self.stamp(f'fB_st{layer}')
        if layer == 0:
            self.gemm1_start(1)
            if not o.get('apub_first', 2): self.run(rest)

    def writeback(self):
        k = self.k
        a_, b_ = k.label(), k.label()
        k(f"s_or_b32 {s(T[2])}, {s(sJ)}, {s(sW)}\ns_cmp_lg_u32 {s(T[2])}, 0\ns_cbranch_scc1 {a_}")
        k("buffer_wbl2 sc1")
        k(f"s_branch {b_}"); k.place(a_)
        k.ins.append(I(f"buffer_load_dword {v(vPT)}, {v(vL0)}, {s(RW,4)}, 0 offen"))
        k.place(b_)

    def rowop(self, h, R, split=False):
        L = self.unpack(R + 8, R)
        L += [f"v_pk_add_f32 {v(XS[h]+e,2)}, {v(XS[h]+e,2)}, {v(R+8+e,2)}" for e in (0, 2, 4, 6)]
        L += self.stats([XS[h]], [36], R + 16)
        L += self.affine(R + 8, XS[h], 36, R + 20)
        if h == 1 and self.o.get('agb', 1) == 0:
            its = self.run(L + self.gate_norm([h], {h: R + 8}, 1, R + 24, R + 54), 16)
            return [x.tok for x in its if 'store' in x.text][-1]
        G = self.gate_norm([h], {h: R + 8}, 1, R + 24)
        rest = []
        if split: G = G[8:]
        if self.o.get('ag', 1):
            self.run(L + G[:-5], 16)
            tok = self.a_out([h], R, 1, lambda: self.run(G[-5:]))[0]
            return (tok, []) if split else tok
        if split: G, rest = G[:-5], G[-5:]
        its = self.run(L + G, 16)
        tok = [x.tok for x in its if 'store' in x.text][-1]
        return (tok, rest) if split else tok

    def build(self):
        k = self.k; o = self.o
        self.prologue()
        self.front_addr()
        if o.get('hpos', 1): self.h_load()
        self.touch_first()
        self.touch_global_flags()
        if o.get('qpos', 1) == 3: self.q_load()
        self.w1_addr()
        self.w1_dma(o.get('n0', 2))
        self.wd_job_addr()
        if o.get('qpos', 1) == 2: self.q_load(False)
        self.phase0()
        if o.get('qpos', 1) == 4: self.q_load()
        if not o.get('b1', 1): self.w1_dma(o.get('n1', 1))
        self.conv()
        if o.get('joint', 1): self.y_joint()
        else: self.y_in()
        for layer in range(2):
            self.gemm1(layer)
            self.gemm2(layer)
        if o.get('stamps'):
            self.stamp('end')
            k(f"""s_lshl_b32 {s(T[0])}, s2, 2
                  s_add_u32 {s(T[0])}, {s(T[0])}, {s(sW)}
                  s_lshl_b32 {s(T[0])}, {s(T[0])}, 8
                  s_add_u32 {s(T[0])}, {s(T[0])}, {WS_DBG}
                  v_lshrrev_b32 v5, 2, {v(vL16)}
                  buffer_store_dword {v(vST[0])}, v5, {s(RW,4)}, {s(T[0])} offen
                  s_add_u32 {s(T[0])}, {s(T[0])}, 0x40000
                  buffer_store_dword {v(vST[1])}, v5, {s(RW,4)}, {s(T[0])} offen""")
        if o.get('delay'):
            k(f"""s_mov_b32 {s(T[0])}, {o['delay']}
                  s_memrealtime {s(T[2],2)}
                  s_waitcnt lgkmcnt(0)""")
            k.place("L_DELAY")
            k(f"""s_memrealtime {s(T[4],2)}
                  s_waitcnt lgkmcnt(0)
                  s_sub_u32 {s(T[4])}, {s(T[4])}, {s(T[2])}
                  s_cmp_lt_u32 {s(T[4])}, {s(T[0])}
                  s_cbranch_scc1 L_DELAY""")
        if o.get('diag'):
            self.stamp('end')
            k(f"""v_sub_u32 v5, {v(vST[1])}, {v(vST[0])}
                  s_nop 1
                  v_readfirstlane_b32 {s(T[0])}, v5
                  s_mul_i32 {s(T[0])}, {s(T[0])}, 8
                  s_memrealtime {s(T[2],2)}
                  s_waitcnt lgkmcnt(0)""")
            k.place("L_DIAG")
            k(f"""s_memrealtime {s(T[4],2)}
                  s_waitcnt lgkmcnt(0)
                  s_sub_u32 {s(T[4])}, {s(T[4])}, {s(T[2])}
                  s_cmp_lt_u32 {s(T[4])}, {s(T[0])}
                  s_cbranch_scc1 L_DIAG""")
        k.place("L_END")
        k("s_endpgm")
        body = k.text()
        for t in self.tail:
            body += "".join((x + "\n") if x.endswith(':') else ("    " + x + "\n") for x in t)
        body += "L_LAST:\n"
        return body

def file_text(opt):
    g = Gen(opt)
    body = g.build()
    ref = open(os.path.join(os.path.dirname(os.path.abspath(__file__)), '..', 'cdna_kernels', NAME + '.s.ref')).read()
    head = ref[:ref.index('; Override launch geometry')]
    txt = head + f"""; @launch grid=(256,1,1) block=(256,1,1) lds={LDS_SIZE}
;
; One persistent launch, 256 workgroups of 4 waves, one per CU (generated by a script of my own).
; Workgroup b: group x = b & 7, member j = b >> 3.
;   1. kv = shortconv(k) * v for a 64-step x 64-channel tile, handed over transposed inside the group.
;   2. long causal conv of 2 channels as block-Toeplitz MFMAs (exact products, fp32 sums), plus kv * D.
;      y does not depend on the residual stream, so it is computed once and used by both layers.
;   3. each wave owns two rows (x, y in registers): x += LN(x) * y ; a = LN(x).
;   4. GEMM1: 256 rows x 56 hidden units per workgroup, gate/up weights resident in LDS; SwiGLU.
;   5. GEMM2: 64 x 64 tile per workgroup, w_down slice resident in accumulator registers, K split over waves.
;   Steps 3-5 run twice, in two row halves that hide each other's hand-off latency.
; Hand-offs use flag words in d_ws that carry a per-launch tag derived from d_ws word 0.
; Inside a group they go through one L2 when all 32 members report the same die id; otherwise every
; hand-off takes the device-scope release/acquire path, so any placement gives the same result.
.amdgcn_target "amdgcn-amd-amdhsa--gfx950"
.text
.globl {NAME}_kernel
.p2align 8
.type {NAME}_kernel,@function
{NAME}_kernel:
{body}.section .rodata,"a"
.p2align 6
.amdhsa_kernel {NAME}_kernel
  .amdhsa_next_free_vgpr 512
  .amdhsa_next_free_sgpr 102
  .amdhsa_accum_offset 256
  .amdhsa_group_segment_fixed_size 0
  .amdhsa_kernarg_size 104
  .amdhsa_user_sgpr_count 2
  .amdhsa_user_sgpr_kernarg_segment_ptr 1
  .amdhsa_system_sgpr_workgroup_id_x 1
.end_amdhsa_kernel
"""
    return txt, g

if __name__ == '__main__':
    import json
    opt = {}; out = None
    for x in sys.argv[1:]:
        if '=' in x:
            kk, vv = x.split('=')
            opt[kk] = vv.split(',') if kk in ('only', 'diag') else (' ' + vv.replace('+', ' ') if kk in ('ost', 'wdm', 'x3m') else int(vv, 0))
        else: out = x
    txt, g = file_text(opt)
    open(out, 'w').write(txt)
    json.dump(g.stamps, open(out + '.stamps.json', 'w'))
    print('instructions', len(g.k.ins), 'nops added', g.k.nops_added, 'stamps', len(g.stamps))
```

```python
import sys, os
sys.path.insert(0, os.path.dirname(os.path.abspath(__file__)))
from dsl import *

NAME = 'interleave_layers__ssm_conv_h3__swiglu_ffn__prompt'

WS_XCCF = 0x1000
WS_KVF  = 0x10000
WS_AF   = 0x11000
WS_HF   = 0x19000
WS_FF   = 0x21000
WS_YF   = 0x40000
JFS = int(os.environ.get('JFS', '4'))
JF_BLK = (448*JFS + 8191)//8192
WS_JF   = 0x40000 - 8192*JF_BLK
WS_KVT  = 0x100000
WS_A    = WS_KVT
WS_YP   = 0x300000
WS_H    = 0x700000
WS_WDT  = 0xE00000
WS_DBG  = 0x1000000
WS_SIZE = 0x1100000
H_X, H_HALF, H_RB = 917504, 458752, 114688

LDS_SIZE = 163840
SCR   = 114688
L_K   = SCR
L_V   = L_K + 9216
L_H   = L_V + 8192
H_CP  = 4096 + 128
H_E   = lambda ch: L_H + ch * 2 * H_CP + 64
H_O   = lambda ch: L_H + ch * 2 * H_CP + H_CP + 128
L_U   = L_H + 4 * H_CP + 128
U_S   = 4608
assert L_U + 2 * U_S <= LDS_SIZE
L_CRED = 57344
L_YT  = L_U
L_JOB = 114688 - 16384
L_RED = SCR
L_AG  = LDS_SIZE - 4352
L_AG2 = SCR

sX, sJ, sW, sN, sEXP, sSPIN, sXCC, sMODE = 4, 5, 6, 7, 8, 9, 10, 11
T = list(range(12, 24))
sC2 = 24
sHALF = 26
sW1S, sW1L = 27, 3
sD = 28
sDP = 34
RK, RV, RH, RQ, RG, RU, RD, RO, RW, RS = 44, 48, 52, 56, 60, 64, 68, 72, 76, 80
sK4 = 83
def k4(i): return '0' if i == 0 else s(sK4 + i)
sHH = 91
sAFp, sAFs, sHFp, sHFs, sFFp, sFFs = 94, 95, 96, 97, 98, 99
sFR = [100, 101]
sFH = 55
sAG = [56, 57]
sAD = 58
sHK = [60, 61, 62, 63, 64, 65, 66, 67, 68, 69, 70, 71, 44, 45]
sWK = 46
sROT = [0, 1, 34, 35, 54, 80, 81]
sDEL = [82, 83]
sST = (32, 92)
sKVFp, sKVs, sUm0, sYst, sYFs, sYFp, sYld, sJF, sJL, sJFp = 44, 45, 46, 47, 48, 49, 50, 51, 52, 53

vL, vL16, vL0, vNON, vPT = 1, 2, 3, 4, 5
vAld, vHld = [6, 7], [8, 9]
vHm, vHt, vAst, vF2, vO, vRw, vRr, vP31, vP7, vW1 = 10, 11, 12, 13, 14, 15, 16, 17, 18, 19
vST = (20, 21)
vFr = 0
vWd = [230, 231]
ACC = [22, 78]
WF, AR, TMP = 134, 190, 222
YS, XS = [232, 236], [240, 248]
LOG2E = 1.4426950408889634

def f32(x):
    import struct
    return '0x%08x' % struct.unpack('<I', struct.pack('<f', x))[0]

def ag_off(layer, h):
    return L_AG - L_AG2 if h == 0 else (0 if layer == 0 else L_AG - L_AG2 - 4352)

def flist(c):
    if c < 4: return [4*c + e for e in range(4)] + [16 + 4*c + e for e in range(4)]
    q = c - 4; X = [44, 46, 54][q]
    return [32 + 4*q + e for e in range(4)] + [48 + 2*q, 49 + 2*q, X, X + 1]

class Gen:
    def __init__(self, opt):
        self.o = opt
        self.k = K()
        self.tail = []
        self.stamps = []
        self.w1_next = 0
        self.late = False
        self.w1_tok = {}

    def stamp(self, name):
        self.k.ins.append(I(f"; ---- {name}"))
        dg = self.o.get('diag')
        if dg and name in dg:
            k = self.k
            k(f"s_memrealtime {s(sST[0],2)}"); k.wait_lg0()
            k(f"v_mov_b32 {v(vST[dg.index(name)])}, {s(sST[0])}")
        if not self.o.get('stamps'): return
        only = self.o.get('only')
        if only and name not in only: return
        k = self.k; n = len(self.stamps)
        k(f"s_memrealtime {s(sST[0],2)}\ns_memtime {s(sST[1],2)}"); k.wait_lg0()
        if self.o.get('spinstat') and n >= 2: k(f"s_sub_u32 {s(sST[1])}, 0, {s(sSPIN)}")
        k(f"v_writelane_b32 {v(vST[0])}, {s(sST[0])}, {n}\nv_writelane_b32 {v(vST[1])}, {s(sST[1])}, {n}")
        self.stamps.append(name)

    def srd(self, base, size):
        self.k(f"s_mov_b32 {s(base+2)}, {size}\ns_mov_b32 {s(base+3)}, 0x20000")

    def poll_issue(self, vaddr, soff, off=0, vt=vPT):
        txt = f"buffer_load_dword {v(vt)}, {v(vaddr)}, {s(RW,4)}, {soff} offen offset:{off} sc1"
        return (self.k(txt), txt, vt)

    def poll_steps(self, get, local=True):
        k = self.k
        slow, back, ok = k.label(), k.label(), k.label()
        def s1(): k.wait(get()[0])
        def s2(): k(f"v_cmp_ne_u32 vcc, {s(sEXP if local else sN)}, {v(get()[2])}")
        def s3():
            if self.o.get('nopoll') and self.late: return
            k(f"s_cbranch_vccnz {slow}"); k.place(back)
            _, txt, vt = get()
            nap = self.o.get('nap_l', 0) if local else self.o.get('nap_g', 0)
            t = [f"{slow}:"] + ([f"s_sleep {nap}"] if nap else []) + [txt, "s_waitcnt vmcnt(0)", f"v_cmp_ne_u32 vcc, {s(sN)}, {v(vt)}", f"s_cbranch_vccz {ok}",
                 f"s_sub_u32 {s(sSPIN)}, {s(sSPIN)}, 1", f"s_cbranch_scc0 {slow}", "s_branch L_END", f"{ok}:"]
            if local: t += [f"s_cmp_eq_u32 {s(sMODE)}, 0", f"s_cbranch_scc1 {back}", "buffer_inv sc1", "s_waitcnt vmcnt(0)"]
            self.tail.append(t + [f"s_branch {back}"])
        return [s1, s2, s3]

    def poll_check(self, h, local=True):
        for f in self.poll_steps(lambda: h, local): f()
    def poll(self, vaddr, soff, off=0, local=True):
        self.poll_check(self.poll_issue(vaddr, soff, off), local)
    def poll_items(self, vaddr, soff, off, at_issue, at_check):
        box = []
        it = [Item(fn=lambda: box.append(self.poll_issue(vaddr, soff, off)), at=at_issue)]
        return it + [Item(fn=f, at=at_check) for f in self.poll_steps(lambda: box[0])]

    def flag_store(self, soff, off=0, local=True):
        k = self.k
        txt = f"buffer_store_dword {v(vNON)}, {v(vL0)}, {s(RW,4)}, {soff} offen offset:{off}"
        if not local: return k(txt + " sc1")
        slow, back = k.label(), k.label()
        k(f"s_cmp_lg_u32 {s(sMODE)}, 0\ns_cbranch_scc1 {slow}")
        r = k(txt); k.place(back)
        self.tail.append([f"{slow}:", "s_waitcnt vmcnt(0)", "buffer_wbl2 sc1", "s_waitcnt vmcnt(0)", txt + " sc1", f"s_branch {back}"])
        return r
    def publish(self, tok, soff, off=0, local=True):
        self.k.wait(tok)
        return self.flag_store(soff, off, local)
    def publish_items(self, get, soff, off, at):
        return [Item(fn=lambda: self.k.wait(get()), at=at), Item(fn=lambda: self.flag_store(soff, off), cost=2, at=at)]

    def dma(self, vaddr, srd, soff, m0, extra=''):
        self.k(m0)
        return self.k(f"buffer_load_dwordx4 {v(vaddr)}, {s(srd,4)}, {soff} offen {extra} lds".replace('  ', ' '))

    def prologue(self):
        k = self.k
        k("s_cmp_ge_u32 s2, 256\ns_cbranch_scc1 L_END")
        if self.o.get('stamps'): k(f"v_mov_b32 {v(vST[0])}, 0\nv_mov_b32 {v(vST[1])}, 0")
        self.stamp('entry')
        for r, off in ((RK, 8), (RV, 16), (RW, 96), (RH, 32), (RS, 24), (RQ, 0), (RG, 56), (RU, 64), (RD, 72), (RO, 80)):
            k(f"s_load_dwordx2 {s(r,2)}, s[0:1], {off}")
        k(f"s_load_dwordx2 {s(sDP,2)}, s[0:1], 40")
        k(f"s_lshr_b32 {s(sJ)}, s2, 3")
        self.code_prefetch()
        k(f"""s_and_b32 {s(sX)}, s2, 7
              v_lshrrev_b32 v5, 6, v0
              v_and_b32 {v(vL)}, 63, v0
              v_readfirstlane_b32 {s(sW)}, v5
              v_lshlrev_b32 {v(vL16)}, 4, {v(vL)}""")
        for r, size in ((RK, 2097152), (RV, 2097152), (RW, WS_SIZE), (RH, 2097152), (RS, 4096)): self.srd(r, size)

        k(f"""v_lshrrev_b32 v24, 3, {v(vL)}
              v_and_b32 v25, 7, {v(vL)}
              v_and_b32 v26, 2, v24
              v_xor_b32 v25, v25, v26
              s_and_b32 {s(T[0])}, {s(sW)}, 1
              s_lshl_b32 {s(T[0])}, {s(T[0])}, 2
              v_xor_b32 v25, {s(T[0])}, v25
              v_lshlrev_b32 v25, 4, v25
              v_lshl_add_u32 v25, v24, 10, v25
              s_lshl_b32 {s(T[0])}, {s(sJ)}, 16
              s_lshl_b32 {s(T[1])}, {s(sW)}, 14
              s_lshl_b32 {s(T[2])}, {s(sX)}, 7
              s_add_u32 {s(T[0])}, {s(T[0])}, {s(T[1])}
              s_add_u32 {s(T[0])}, {s(T[0])}, {s(T[2])}
              v_add_u32 v25, {s(T[0])}, v25
              v_xor_b32 v26, 64, v25
              v_subrev_u32 v26, 8192, v26
              s_lshl_b32 {s(T[1])}, {s(sW)}, 11
              s_add_u32 {s(T[2])}, {s(T[1])}, {L_K + 1024}
              s_add_u32 {s(T[3])}, {s(T[1])}, {L_V}
              s_movk_i32 {s(T[4])}, 8192
              v_and_b32 v27, 15, {v(vL)}
              s_lshl_b32 {s(T[0])}, {s(sX)}, 6
              s_lshl_b32 {s(T[1])}, {s(sW)}, 4
              s_add_u32 {s(T[1])}, {s(T[0])}, {s(T[1])}
              v_add_u32 v27, {s(T[1])}, v27
              v_lshlrev_b32 v28, 3, v27
              s_lshl_b32 {s(T[1])}, {s(sJ)}, 1
              s_add_u32 {s(T[0])}, {s(T[0])}, {s(T[1])}
              s_lshl_b32 {s(T[5])}, {s(T[0])}, 1
              s_lshl_b32 {s(T[6])}, {s(T[0])}, 12
              s_add_u32 {s(T[7])}, {s(T[6])}, 4096
              v_lshlrev_b32 v29, 4, v0""")
        k.wait_lg0()
        self.stamp('start')
        k(f"s_load_dword {s(sN)}, {s(RW,2)}, 0")
        k(f"s_load_dword {s(sD)}, {s(sDP,2)}, {s(T[5])}")
        self.dma(25, RK, '0', f"s_mov_b32 m0, {s(T[2])}")
        self.dma(25, RV, '0', f"s_mov_b32 m0, {s(T[3])}")
        self.dma(25, RK, s(T[4]), f"s_add_u32 m0, {s(T[2])}, 1024")
        self.dma(25, RV, s(T[4]), f"s_add_u32 m0, {s(T[3])}, 1024")
        skip = k.label()
        k(f"s_cmp_lg_u32 {s(sW)}, 0\ns_cbranch_scc1 {skip}\ns_mov_b32 m0, {L_K}\ns_nop 0")
        k.ins.append(I(f"buffer_load_dwordx4 v26, {s(RK,4)}, 0 offen lds"))
        k.place(skip)
        self.sh_tok = k(f"buffer_load_dwordx2 v[30:31], v28, {s(RS,4)}, 0 offen")
        if not self.o.get('hpos', 1): self.h_load()
        k(f"""s_getreg_b32 {s(sXCC)}, hwreg(HW_REG_XCC_ID, 0, 4)
              v_cmp_eq_u32 vcc, 0, {v(vL)}
              v_mov_b32 v5, 0x80000000
              s_lshl_b32 {s(T[1])}, {s(sX)}, 5
              s_add_u32 {s(T[1])}, {s(T[1])}, {s(sJ)}
              s_mul_i32 {s(T[1])}, {s(T[1])}, {self.o.get('xs', 4)}
              s_add_u32 {s(T[1])}, {s(T[1])}, {WS_XCCF}
              s_cmp_eq_u32 {s(sW)}, 2
              s_cselect_b32 {s(T[1])}, {s(T[1])}, 0x40000000
              v_cndmask_b32 {v(vL0)}, v5, 0, vcc""")
        k.wait_lg0()
        k(f"""s_mul_i32 {s(sN)}, {s(sN)}, 1664525
              s_add_u32 {s(sN)}, {s(sN)}, 1013904223
              s_xor_b32 {s(T[0])}, {s(sN)}, {s(sXCC)}
              v_mov_b32 v5, {s(T[0])}
              v_mov_b32 {v(vNON)}, {s(sN)}""")
        k(f"buffer_store_dword v5, {v(vL0)}, {s(RW,4)}, {s(T[1])} offen sc1")
        for r, size in ((RQ, 2097152), (RG, 1835008), (RU, 1835008), (RD, 1835008), (RO, 2097152)): self.srd(r, size)
        k(f"""s_lshr_b32 {s(sD+2)}, {s(sD)}, 16
              s_and_b32 {s(sD+3)}, {s(sD)}, 0xffff0000
              s_lshl_b32 {s(sD+1)}, {s(sD)}, 16
              s_and_b32 {s(sD)}, {s(sD)}, 0xffff
              s_mov_b32 {s(sC2)}, {f32(LOG2E*LOG2E)}
              s_mov_b32 {s(sC2+1)}, {f32(LOG2E*LOG2E)}
              s_mov_b32 {s(sSPIN)}, {self.o.get('spin', 400000)}
              s_mov_b32 {s(sHALF)}, 0x20000
              s_mov_b32 {s(sHH)}, {H_HALF}
              v_and_b32 {v(vP31)}, 31, {v(vL)}
              v_lshlrev_b32 {v(vP31)}, 2, {v(vP31)}
              v_and_b32 {v(vP7)}, 7, {v(vL)}
              v_lshlrev_b32 {v(vP7)}, 2, {v(vP7)}""")
        for i in range(1, 8): k(f"s_movk_i32 {s(sK4+i)}, {4096*i}")

    def h_load(self):
        k = self.k
        k(f"buffer_load_dwordx4 v[32:35], v29, {s(RH,4)}, {s(T[6])} offen")
        k(f"buffer_load_dwordx4 v[40:43], v29, {s(RH,4)}, {s(T[7])} offen")
        k(f"buffer_load_dwordx4 v[36:39], v29, {s(RH,4)}, {s(T[6])} offen offset:2")
        self.h_tok = k(f"buffer_load_dwordx4 v[44:47], v29, {s(RH,4)}, {s(T[7])} offen offset:2")

    def code_prefetch(self):
        if not self.o.get('cpf', 1): return
        k = self.k
        k(f"s_getpc_b64 {s(T[2],2)}")
        k.place("L_PC")
        k(f"""s_mul_i32 {s(T[4])}, {s(sJ)}, ((L_LAST-L_PC+4095)/4096)*128
              v_min_u32 v5, (L_LAST-L_PC+4095)/4096-1, v0
              v_lshl_add_u32 v5, v5, 7, {s(T[4])}
              v_min_u32 v5, L_LAST-L_PC-4, v5
              global_load_dword v219, v5, {s(T[2],2)}""")

    def tlb_touch(self):
        if not self.o.get('tlb', 0): return
        k = self.k
        k(f"v_and_b32 v5, 15, {v(vL)}\nv_lshlrev_b32 v5, 20, v5")
        k(f"buffer_load_dword v200, v5, {s(RW,4)}, 0 offen offset:512")
        k(f"buffer_load_dword v201, v5, {s(RO,4)}, 0 offen")
        k(f"buffer_load_dword v196, v5, {s(RG,4)}, 0 offen")
        k(f"buffer_load_dword v197, v5, {s(RU,4)}, 0 offen")
        k(f"buffer_load_dword v198, v5, {s(RQ,4)}, 0 offen")

    def touch_first(self):
        k = self.k
        if self.o.get('tch_kv', 1):
            k(f"v_and_b32 v5, 15, {v(vL)}\nv_lshlrev_b32 v5, 7, v5")
            k(f"buffer_load_dword v220, v5, {s(RW,4)}, {s(sKVs)} offen sc1")
        if self.o.get('tch_fl', 1):
            k(f"""s_lshl_b32 {s(T[0])}, {s(sX)}, 12
                  s_add_u32 {s(T[0])}, {s(T[0])}, {WS_AF}
                  v_lshl_add_u32 v22, {v(vL)}, 7, {s(T[0])}
                  v_cmp_lt_u32 vcc, 15, {v(vL)}
                  v_add_u32 v5, {0x8000 - 16*128}, v22
                  s_lshl_b32 {s(T[0])}, {s(sX)}, 9
                  v_cndmask_b32 v22, v22, v5, vcc
                  v_cmp_lt_u32 vcc, 47, {v(vL)}
                  v_add_u32 v5, {0x8000 - 32*128}, v22
                  s_add_u32 {s(T[0])}, {s(T[0])}, {WS_KVF}
                  v_cndmask_b32 v22, v22, v5, vcc
                  v_cmp_lt_u32 vcc, 55, {v(vL)}
                  v_and_b32 v5, 3, {v(vL)}
                  v_lshl_add_u32 v5, v5, 7, {s(T[0])}
                  s_cmp_eq_u32 {s(sW)}, 3
                  s_cselect_b32 {s(T[0])}, 0, 0x40000000
                  v_cndmask_b32 v5, v22, v5, vcc
                  buffer_load_dword v221, v5, {s(RW,4)}, {s(T[0])} offen sc1""")
    def touch_global_flags(self):
        if not self.o.get('tch_g', 2): return
        k = self.k
        k(f"""v_lshlrev_b32 v5, 7, {v(vL)}
              s_lshl_b32 {s(T[1])}, {s(sX)}, {2 if self.o.get('tch_g', 2) == 2 else 8}
              s_and_b32 {s(T[1])}, {s(T[1])}, 0x1c
              s_or_b32 {s(T[1])}, {s(T[1])}, {s(sW)}
              s_cmp_eq_u32 {s(T[1])}, 1
              s_cselect_b32 {s(T[0])}, {s(sJ)}, 31
              s_lshl_b32 {s(T[1])}, {s(T[0])}, 13
              s_cmp_lt_u32 {s(T[0])}, {JF_BLK + self.o.get('yfs', 4)//4}
              s_cselect_b32 {s(T[0])}, {s(T[1])}, 0x40000000
              s_add_u32 {s(T[0])}, {s(T[0])}, {WS_JF}
              buffer_load_dword v202, v5, {s(RW,4)}, {s(T[0])} offen sc1""")
    def touch_h_addr(self):
        self.k(f"""s_lshl_b32 {s(T[0])}, {s(sJ)}, 2
                  s_add_u32 {s(T[0])}, {s(T[0])}, {s(sW)}
                  s_mul_i32 {s(T[0])}, {s(T[0])}, 7168
                  s_mul_i32 {s(T[1])}, {s(sX)}, {H_X}
                  s_add_u32 {s(T[0])}, {s(T[0])}, {s(T[1])}
                  s_add_u32 {s(T[0])}, {s(T[0])}, {WS_H}
                  v_min_u32 v227, 55, {v(vL)}
                  v_lshl_add_u32 v227, v227, 7, {s(T[0])}""")
    def touch_h_text(self): return f"buffer_load_dword v228, v227, {s(RW,4)}, 0 offen sc1"
    def touch_f(self):
        k = self.k
        k(f"""v_and_b32 v5, 7, {v(vL)}
              v_lshlrev_b32 v5, 7, v5
              v_bfe_u32 v22, {v(vL)}, 3, 1
              v_lshl_add_u32 v5, v22, 17, v5
              buffer_load_dword v199, v5, {s(RW,4)}, {s(sFR[0])} offen sc1""")

    def q_load(self, issue=True):
        k = self.k
        k(f"""s_lshl_b32 {s(T[0])}, {s(sX)}, 7
              s_lshl_b32 {s(T[1])}, {s(sJ)}, 2
              s_add_u32 {s(T[0])}, {s(T[0])}, {s(T[1])}
              s_add_u32 {s(T[0])}, {s(T[0])}, {s(sW)}
              s_lshl_b32 {s(T[0])}, {s(T[0])}, 10
              s_mov_b32 {s(T[10])}, {s(T[0])}
              s_add_u32 {s(T[11])}, {s(T[0])}, 0x100000""")
        if issue: self.q_issue()
    def q_issue(self):
        k = self.k
        k(f"buffer_load_dwordx4 v[204:207], {v(vL16)}, {s(RQ,4)}, {s(T[10])} offen")
        self.q_tok = k(f"buffer_load_dwordx4 v[208:211], {v(vL16)}, {s(RQ,4)}, {s(T[11])} offen")

    def persistent(self):
        k = self.k; AG = self.o.get('ag', 1)
        k(f"""s_lshl_b32 {s(T[0])}, {s(sJ)}, 2
              s_add_u32 {s(T[0])}, {s(T[0])}, {s(sW)}
              s_lshl_b32 {s(T[8])}, {s(sX)}, 18
              s_lshl_b32 {s(T[9])}, {s(sX)}, 12
              s_lshr_b32 {s(T[10])}, {s(sJ)}, 3
              s_and_b32 {s(T[11])}, {s(sJ)}, 7
              s_lshl_b32 {s(T[1])}, {s(T[0])}, 2
              s_add_u32 {s(T[1])}, {s(T[1])}, {s(T[9])}
              s_add_u32 {s(sAFs)}, {s(T[1])}, {WS_AF}
              s_lshl_b32 {s(T[1])}, {s(sW)}, 7
              s_add_u32 {s(T[1])}, {s(T[1])}, {s(T[9])}
              s_add_u32 {s(sAFp)}, {s(T[1])}, {WS_AF}
              s_lshl_b32 {s(T[2])}, {s(sJ)}, 2
              s_add_u32 {s(T[1])}, {s(T[1])}, {s(T[2])}
              s_add_u32 {s(sHFs)}, {s(T[1])}, {WS_HF}
              s_lshl_b32 {s(T[1])}, {s(T[10])}, 7
              s_lshl_b32 {s(T[2])}, {s(sW)}, 5
              s_add_u32 {s(T[1])}, {s(T[1])}, {s(T[2])}
              s_add_u32 {s(T[1])}, {s(T[1])}, {s(T[9])}
              s_add_u32 {s(sHFp)}, {s(T[1])}, {WS_HF}
              s_lshl_b32 {s(T[2])}, {s(T[11])}, 2
              s_add_u32 {s(T[1])}, {s(T[1])}, {s(T[2])}
              s_add_u32 {s(sFFs)}, {s(T[1])}, {WS_FF}
              s_lshr_b32 {s(T[1])}, {s(sJ)}, 1
              s_lshl_b32 {s(T[1])}, {s(T[1])}, 5
              s_add_u32 {s(T[1])}, {s(T[1])}, {s(T[9])}
              s_add_u32 {s(sFFp)}, {s(T[1])}, {WS_FF}
              s_lshr_b32 {s(T[1])}, {s(T[0])}, 5
              s_lshl_b32 {s(T[1])}, {s(T[1])}, 15
              s_bfe_u32 {s(T[2])}, {s(T[0])}, 0x10004
              s_lshl_b32 {s(T[2])}, {s(T[2])}, 10
              s_and_b32 {s(T[3])}, {s(T[0])}, {12 if AG else 15}
              s_lshl_b32 {s(T[3])}, {s(T[3])}, 4
              s_add_u32 {s(T[1])}, {s(T[1])}, {s(T[2])}
              s_add_u32 {s(T[1])}, {s(T[1])}, {s(T[3])}
              s_add_u32 {s(T[1])}, {s(T[1])}, {s(T[8])}
              s_lshl_b32 {s(T[2])}, {s(sW)}, 13
              s_add_u32 {s(T[2])}, {s(T[2])}, {WS_A}
              s_add_u32 {s(T[1])}, {s(T[1])}, {s(T[2]) if AG else WS_A}
              v_lshrrev_b32 v5, {4 if AG else 2}, {v(vL)}
              v_lshlrev_b32 v5, 11, v5
              v_bfe_u32 {v(vAst)}, {v(vL)}, {2 if AG else 0}, 2
              v_lshl_add_u32 {v(vAst)}, {v(vAst)}, 8, v5
              v_and_b32 v5, {3 if AG else 0}, {v(vL)}
              v_lshl_add_u32 {v(vAst)}, v5, 4, {v(vAst)}
              v_add_u32 {v(vAst)}, {s(T[1])}, {v(vAst)}
              s_lshl_b32 {s(T[1])}, {s(sW)}, 15
              s_add_u32 {s(T[1])}, {s(T[1])}, {s(T[8])}
              s_add_u32 {s(T[1])}, {s(T[1])}, {WS_A}
              v_add_u32 {v(vAld[0])}, {s(T[1])}, {v(vL16)}
              v_add_u32 {v(vAld[1])}, 0x20000, {v(vAld[0])}
              v_add_u32 {v(vW1)}, 57344, {v(vL16)}
              v_lshrrev_b32 v5, 4, {v(vL)}
              v_and_b32 v23, 15, {v(vL)}
              v_lshlrev_b32 v22, 9, v5
              v_lshl_add_u32 v22, v23, 4, v22
              s_mul_i32 {s(T[4])}, {s(sX)}, {H_X}
              s_add_u32 {s(T[4])}, {s(T[4])}, {WS_H}
              s_mul_i32 {s(T[1])}, {s(sW)}, {H_RB}
              s_mul_i32 {s(T[2])}, {s(sJ)}, 3584
              s_add_u32 {s(T[1])}, {s(T[1])}, {s(T[2])}
              s_add_u32 {s(T[1])}, {s(T[1])}, {s(T[4])}
              v_add_u32 {v(vHm)}, {s(T[1])}, v22
              s_mul_i32 {s(T[1])}, {s(T[10])}, {H_RB}
              s_mul_i32 {s(T[2])}, {s(sW)}, 28672
              s_add_u32 {s(T[1])}, {s(T[1])}, {s(T[2])}
              s_add_u32 {s(T[1])}, {s(T[1])}, {s(T[4])}
              v_add_u32 {v(vHld[0])}, {s(T[1])}, v22
              v_add_u32 {v(vHld[1])}, {H_HALF}, {v(vHld[0])}
              v_cmp_gt_u32 vcc, 48, {v(vL)}
              v_add_u32 {v(vHt)}, 2048, {v(vHm)}
              v_mov_b32 v22, 0x80000000
              v_mul_u32_u24 {v(vRw)}, 272, v23
              v_cndmask_b32 {v(vHt)}, v22, {v(vHt)}, vcc
              v_lshl_add_u32 {v(vRw)}, v5, 4, {v(vRw)}
              s_mul_i32 {s(T[1])}, {s(sW)}, 8704
              s_add_u32 {s(T[1])}, {s(T[1])}, {L_RED}
              v_add_u32 {v(vRw)}, {s(T[1])}, {v(vRw)}
              v_lshrrev_b32 v5, 3, {v(vL)}
              v_mul_u32_u24 {v(vRr)}, 272, v5
              v_lshl_add_u32 {v(vRr)}, {v(vP7)}, 3, {v(vRr)}
              s_mul_i32 {s(T[1])}, {s(sW)}, {8*272}
              s_add_u32 {s(T[1])}, {s(T[1])}, {L_RED}
              v_add_u32 {v(vRr)}, {s(T[1])}, {v(vRr)}
              s_lshl_b32 {s(T[1])}, {s(T[10])}, 5
              s_lshl_b32 {s(T[2])}, {s(sW)}, 3
              s_add_u32 {s(T[1])}, {s(T[1])}, {s(T[2])}
              v_add_u32 v5, {s(T[1])}, v5
              s_lshl_b32 {s(T[2])}, {s(T[11])}, 7
              s_lshl_b32 {s(T[1])}, {s(sX)}, 17
              s_add_u32 {s(T[2])}, {s(T[2])}, {s(T[1])}
              v_lshl_add_u32 v22, {v(vP7)}, 2, {s(T[2])}
              v_lshl_add_u32 {v(vO)}, v5, 10, v22
              s_lshr_b32 {s(T[1])}, {s(T[11])}, 2
              s_lshl_b32 {s(T[1])}, {s(T[1])}, 13
              s_and_b32 {s(T[2])}, {s(T[11])}, 3
              s_lshl_b32 {s(T[2])}, {s(T[2])}, 7
              s_add_u32 {s(T[1])}, {s(T[1])}, {s(T[2])}
              s_lshl_b32 {s(T[2])}, {s(sX)}, 9
              s_add_u32 {s(T[1])}, {s(T[1])}, {s(T[2])}
              s_add_u32 {s(T[1])}, {s(T[1])}, {WS_YP}
              v_lshl_add_u32 {v(vF2)}, {v(vP7)}, 2, {s(T[1])}
              v_lshl_add_u32 {v(vF2)}, v5, 14, {v(vF2)}
              s_mov_b32 {s(sFH)}, 0x100000
              s_lshl_b32 {s(T[1])}, {s(T[0])}, 14
              s_add_u32 {s(T[1])}, {s(T[1])}, {s(T[2])}
              s_add_u32 {s(sFR[0])}, {s(T[1])}, {WS_YP}
              s_add_u32 {s(sFR[1])}, {s(T[1])}, {WS_YP + 4096}
              v_lshrrev_b32 v5, 5, {v(vL)}
              v_lshlrev_b32 v5, 13, v5
              v_lshl_add_u32 {v(vFr)}, {v(vP31)}, 2, v5""")

    W1V = 212
    def w1_addr(self):
        k = self.k; vb = self.W1V; rot = self.o.get('rot', 1)
        k(f"""s_mul_i32 {s(T[0])}, {s(sJ)}, 112
              s_movk_i32 {s(T[1])}, 9363
              s_movk_i32 {s(T[2])}, {3584 - 7*16}
              s_mul_i32 {s(sW1S)}, {s(sW)}, 229376
              s_mul_i32 {s(sW1L)}, {s(sW)}, 14336
              s_and_b32 {s(T[3])}, {s(sX)}, {6 if rot else 0}
              s_and_b32 {s(T[4])}, {s(sX)}, {1 if rot else 0}
              s_cselect_b32 {s(T[5])}, {s(RU)}, {s(RG)}
              s_cselect_b32 {s(T[6])}, {s(RU+1)}, {s(RG+1)}
              s_cselect_b32 {s(RU)}, {s(RG)}, {s(RU)}
              s_cselect_b32 {s(RU+1)}, {s(RG+1)}, {s(RU+1)}
              s_cselect_b32 {s(T[4])}, 7168, 0
              s_lshl_b32 {s(sDEL[0])}, {s(T[4])}, 1
              s_sub_u32 {s(sDEL[0])}, 7168, {s(sDEL[0])}
              s_mov_b32 {s(RG)}, {s(T[5])}
              s_mov_b32 {s(RG+1)}, {s(T[6])}
              s_add_u32 {s(sDEL[1])}, {s(sDEL[0])}, 57344
              s_add_u32 {s(T[4])}, {s(T[4])}, {s(sW1L)}""")
        for i in range(7):
            k(f"""s_add_u32 {s(T[5])}, {s(T[3])}, {i}
                  s_sub_u32 {s(T[6])}, {s(T[5])}, 7
                  s_cselect_b32 {s(T[5])}, {s(T[5])}, {s(T[6])}
                  s_lshl_b32 {s(T[6])}, {s(T[5])}, 10
                  s_add_u32 {s(sROT[i])}, {s(T[6])}, {s(T[4])}
                  v_lshl_add_u32 v5, {s(T[5])}, 6, {v(vL)}
                  v_mul_u32_u24 {v(vb+i)}, {s(T[1])}, v5
                  v_lshrrev_b32 {v(vb+i)}, 16, {v(vb+i)}
                  v_mul_u32_u24 {v(vb+i)}, {s(T[2])}, {v(vb+i)}
                  v_lshl_add_u32 {v(vb+i)}, v5, 4, {v(vb+i)}
                  v_add_u32 {v(vb+i)}, {s(T[0])}, {v(vb+i)}""")

    def w1_dma_text(self, n):
        ck, mat, i = n // 14, (n % 14) // 7, n % 7
        L = []
        if n == 14: L.append(f"s_add_u32 {s(sW1S)}, {s(sW1S)}, {4*229376}")
        L.append(f"s_add_u32 m0, {s(sROT[i])}, {s(sDEL[ck]) if mat else ck*57344}")
        L.append(f"buffer_load_dwordx4 {v(self.W1V+i)}, {s(RU if mat else RG,4)}, {s(sW1S)} offen lds")
        return L
    def w1_dma(self, cnt):
        for _ in range(cnt):
            if self.w1_next >= 28: return
            n = self.w1_next; self.w1_next += 1
            for x in self.w1_dma_text(n): self.w1_tok[n] = self.k(x)

    RL = 222
    def w1_relayout_addr(self):
        k = self.k; r = self.RL
        k(f"""v_lshrrev_b32 v5, 4, {v(vL)}
              v_bfe_u32 {v(r)}, {v(vL)}, 2, 2
              v_lshl_add_u32 {v(r)}, v5, 3, {v(r)}
              v_mul_u32_u24 {v(r)}, 112, {v(r)}
              v_add_u32 {v(r)}, {s(sW1L)}, {v(r)}
              v_and_b32 {v(r+2)}, 3, {v(vL)}
              v_bfe_u32 {v(r+3)}, {v(vL)}, 1, 1
              v_mul_u32_u24 {v(r+3)}, 7168, {v(r+3)}
              v_and_b32 v22, 1, {v(vL)}
              v_lshl_add_u32 {v(r+3)}, v22, 3, {v(r+3)}
              v_add_u32 {v(r+1)}, {v(r)}, {v(r+3)}
              v_lshl_add_u32 {v(r)}, {v(r+2)}, 3, {v(r)}
              v_add_u32 {v(r+2)}, {s(sW1L)}, {v(vL16)}
              v_bfe_u32 {v(r+3)}, {v(vL)}, 1, 2
              v_lshlrev_b32 {v(r+3)}, 2, {v(r+3)}
              v_bfe_u32 v23, {v(vL)}, 3, 1
              v_lshl_add_u32 {v(r+3)}, v23, 1, {v(r+3)}
              v_add_u32 {v(r+3)}, {v(r+3)}, v22
              v_lshl_add_u32 {v(r+3)}, v5, 4, {v(r+3)}
              v_lshlrev_b32 {v(r+3)}, 4, {v(r+3)}
              v_add_u32 {v(r+3)}, {s(sW1L)}, {v(r+3)}""")
    def w1_relayout_items(self, ck, vtemp=False):
        k = self.k; r = self.RL
        R, a = (ACC[1], v) if vtemp else (128, globals()['a'])
        L = [Item(fn=lambda: k.wait(self.w1_tok[14*ck + 13]))]
        if ck == 1: L += [Item(f"v_add_u32 {v(r+i)}, 57344, {v(r+i)}") for i in range(4)]
        for sl in range(2):
            for Tt in range(7):
                for hf in range(2):
                    d = R + (sl*7 + Tt)*4 + 2*hf
                    o = (32*sl + 4*hf)*112
                    if Tt < 6: L.append(Item(f"ds_read_b64_tr_b16 {a(d,2)}, {v(r)} offset:{o + (Tt&1)*7168 + 32*(Tt>>1)}"))
                    else: L.append(Item(f"ds_read_b64_tr_b16 {a(d,2)}, {v(r+1)} offset:{o + 96}"))
        last = L[-1]
        L.append(Item(fn=lambda: k.wait(last.tok)))
        for n in range(14): L.append(Item(f"ds_write_b128 {v(r+3 if n % 7 == 6 else r+2)}, {a(R + n*4, 4)} offset:{n*1024}"))
        return L
    def w1_relayout(self, ck): Queue(self.k, self.w1_relayout_items(ck)).drain()

    JV = 190
    def wd_job_addr(self):
        k = self.k; r = self.JV
        k(f"""s_lshl_b32 {s(T[0])}, s2, 1
              s_lshr_b32 {s(T[1])}, {s(sW)}, 1
              s_add_u32 {s(T[0])}, {s(T[0])}, {s(T[1])}
              s_mul_i32 {s(T[1])}, {s(T[0])}, 4682
              s_lshr_b32 {s(T[1])}, {s(T[1])}, 16
              s_mul_i32 {s(T[2])}, {s(T[1])}, 14
              s_sub_u32 {s(T[2])}, {s(T[0])}, {s(T[2])}
              s_and_b32 {s(T[3])}, {s(T[1])}, 3
              s_lshr_b32 {s(T[1])}, {s(T[1])}, 2
              s_lshl_b32 {s(T[1])}, {s(T[1])}, 7
              s_mul_i32 {s(T[3])}, {s(T[3])}, {8*57344}
              s_add_u32 {s(T[1])}, {s(T[1])}, {s(T[3])}
              s_cmp_lt_u32 s2, 224
              s_cselect_b32 {s(T[3])}, {s(sW)}, 0
              s_bitcmp1_b32 {s(T[3])}, 0
              s_cselect_b32 {s(T[3])}, 0, 0x80000000
              s_mul_i32 {s(T[4])}, {s(T[0])}, {JFS}
              s_add_u32 {s(T[4])}, {s(T[4])}, {WS_JF}
              s_lshr_b32 {s(sJF)}, {s(T[3])}, 1
              s_or_b32 {s(sJF)}, {s(sJF)}, {s(T[4])}
              s_lshl_b32 {s(T[0])}, {s(T[0])}, 12
              s_add_u32 {s(T[0])}, {s(T[0])}, {WS_WDT}
              s_or_b32 {s(T[0])}, {s(T[0])}, {s(T[3])}
              s_or_b32 {s(T[1])}, {s(T[1])}, {s(T[3])}
              v_add_u32 {v(r+5)}, {s(T[0])}, {v(vL16)}
              v_lshrrev_b32 v5, 3, {v(vL)}
              v_and_b32 v22, 3, v5
              v_lshlrev_b32 v22, 3, v22
              v_cmp_gt_u32 vcc, 4, v5
              v_lshl_add_u32 v23, {v(vP7)}, 2, {s(T[1])}
              s_lshl_b32 {s(T[2])}, {s(T[2])}, 2""")
        for g in range(4):
            k(f"""s_add_u32 {s(T[0])}, {s(T[2])}, {g}
                  s_mul_i32 {s(T[1])}, {s(T[0])}, 9363
                  s_lshr_b32 {s(T[1])}, {s(T[1])}, 16
                  s_mul_i32 {s(T[3])}, {s(T[1])}, 7
                  s_sub_u32 {s(T[0])}, {s(T[0])}, {s(T[3])}
                  s_mul_i32 {s(T[1])}, {s(T[1])}, 56
                  s_mul_i32 {s(T[3])}, {s(T[0])}, 0x04040404
                  s_add_u32 {s(T[4])}, {s(T[3])}, 0x13121110
                  s_add_u32 {s(T[3])}, {s(T[3])}, 0x03020100
                  s_cmp_ge_u32 {s(T[0])}, 4
                  s_cselect_b32 {s(T[3])}, {s(T[4])}, {s(T[3])}
                  s_cselect_b32 {s(T[4])}, {sum(x << (8*e) for e, x in enumerate(flist(4)[4:]))}, {s(T[4])}
                  s_cmp_eq_u32 {s(T[0])}, 5
                  s_cselect_b32 {s(T[4])}, {sum(x << (8*e) for e, x in enumerate(flist(5)[4:]))}, {s(T[4])}
                  s_cmp_eq_u32 {s(T[0])}, 6
                  s_cselect_b32 {s(T[4])}, {sum(x << (8*e) for e, x in enumerate(flist(6)[4:]))}, {s(T[4])}
                  v_mov_b32 v5, {s(T[3])}
                  v_mov_b32 {v(r+g)}, {s(T[4])}
                  v_cndmask_b32 v5, {v(r+g)}, v5, vcc
                  v_bfe_u32 v5, v5, v22, 8
                  v_add_u32 v5, {s(T[1])}, v5
                  v_lshl_add_u32 {v(r+g)}, v5, 10, v23""")
        k(f"""s_lshl_b32 {s(sJL)}, {s(sW)}, 12
              s_add_u32 {s(sJL)}, {s(sJL)}, {L_JOB}
              v_lshrrev_b32 v5, 4, {v(vL)}
              v_lshlrev_b32 {v(r+4)}, 10, v5
              v_bfe_u32 v5, {v(vL)}, 2, 2
              v_lshl_add_u32 {v(r+4)}, v5, 7, {v(r+4)}
              v_and_b32 v5, 3, {v(vL)}
              v_lshl_add_u32 {v(r+4)}, v5, 3, {v(r+4)}
              v_add_u32 {v(r+4)}, {s(sJL)}, {v(r+4)}""")
    def wd_job_issue(self):
        for g in range(4): self.job_tok = self.dma(self.JV+g, RD, '0', f"s_add_u32 m0, {s(sJL)}, {1024*g}")
    def wd_job_finish(self):
        k = self.k; r = self.JV
        k.wait(self.job_tok)
        t = {}
        for nt in range(4):
            for hf in range(2): t[nt] = k(f"ds_read_b64_tr_b16 {a(128 + 4*nt + 2*hf, 2)}, {v(r+4)} offset:{hf*512 + nt*32}")
        for nt in range(4):
            k.wait(t[nt])
            self.job_st = k(f"buffer_store_dwordx4 {a(128 + 4*nt, 4)}, {v(r+5)}, {s(RW,4)}, 0 offen offset:{1024*nt} sc1")
    WDV = 226
    def wd_addr(self):
        self.k(f"""s_and_b32 {s(T[0])}, {s(sJ)}, 7
                   s_lshl_b32 {s(T[0])}, {s(T[0])}, 2
                   s_add_u32 {s(T[0])}, {s(T[0])}, {s(sW)}
                   s_mul_i32 {s(sJFp)}, {s(T[0])}, {14*JFS}
                   s_add_u32 {s(sJFp)}, {s(sJFp)}, {WS_JF}
                   s_mul_i32 {s(T[0])}, {s(T[0])}, {14*4096}
                   s_add_u32 {s(T[0])}, {s(T[0])}, {WS_WDT}
                   v_add_u32 {v(vWd[0])}, {s(T[0])}, {v(vL16)}
                   v_add_u32 {v(vWd[1])}, 32768, {v(vWd[0])}
                   v_min_u32 v226, 13, {v(vL)}
                   v_mul_u32_u24 v226, {JFS}, v226""")
    def wd_touch_text(self, i):
        return f"buffer_load_dword {v(228+i)}, v227, {s(RW,4)}, {k4(i)} offen offset:{3072*i} sc1"
    def k_order(self):
        k = self.k
        k(f"""s_and_b32 {s(T[0])}, {s(sJ)}, 7
              s_lshr_b32 {s(T[1])}, {s(sJ)}, 3
              s_mul_i32 {s(T[0])}, {s(T[0])}, {self.o.get('rot_n', 2)}
              s_mul_i32 {s(T[1])}, {s(T[1])}, {self.o.get('rot_r', 4)}
              s_add_u32 {s(T[0])}, {s(T[0])}, {s(T[1])}
              s_mul_i32 {s(T[1])}, {s(T[0])}, 4682
              s_lshr_b32 {s(T[1])}, {s(T[1])}, 16
              s_mul_i32 {s(T[1])}, {s(T[1])}, 14
              s_sub_u32 {s(T[0])}, {s(T[0])}, {s(T[1])}
              s_lshl_b32 {s(sHK[0])}, {s(T[0])}, 11""")
        for U in range(1, 14):
            k(f"""s_add_u32 {s(sHK[U])}, {s(sHK[U-1])}, 2048
                  s_cmp_eq_u32 {s(sHK[U])}, {14*2048}
                  s_cselect_b32 {s(sHK[U])}, 0, {s(sHK[U])}""")
    def wd_items(self, n, at):
        if not self.o.get('krot', 0): return [Item(self.wd_text(n), at=at)]
        U, nt = divmod(n, 4)
        L = [Item(f"s_lshl_b32 {s(sWK)}, {s(sHK[U])}, 1", at=at)] if nt == 0 else []
        return L + [Item(f"buffer_load_dwordx4 {a(4*n, 4)}, {v(vWd[0])}, {s(RW,4)}, {s(sWK)} offen offset:{1024*nt} sc1", at=at)]
    def wd_text(self, n):
        U, nt = divmod(n, 4)
        return f"buffer_load_dwordx4 {a(4*n, 4)}, {v(vWd[U >> 3])}, {s(RW,4)}, {k4(U & 7)} offen offset:{1024*nt}{self.o.get('wdm', ' sc1')}"

    def phase0(self):
        k = self.k
        k(f"""v_lshrrev_b32 v5, 4, {v(vL)}
              v_bfe_u32 v48, {v(vL)}, 2, 2
              v_lshl_add_u32 v49, v5, 4, v48
              v_lshlrev_b32 v49, 7, v49
              v_bfe_u32 v50, {v(vL)}, 1, 1
              s_lshl_b32 {s(T[0])}, {s(sW)}, 1
              v_add_u32 v50, {s(T[0])}, v50
              v_and_b32 v48, 2, v48
              v_xor_b32 v50, v50, v48
              v_and_b32 v48, 1, v5
              v_lshlrev_b32 v48, 2, v48
              v_xor_b32 v50, v50, v48
              v_lshl_add_u32 v49, v50, 4, v49
              v_and_b32 v48, 1, {v(vL)}
              v_lshl_add_u32 v49, v48, 3, v49
              v_add_u32 v49, {L_K}, v49
              v_xor_b32 v50, 64, v49
              v_lshlrev_b32 v51, 12, v27
              v_lshl_add_u32 v51, v5, 5, v51
              s_lshl_b32 {s(T[6])}, {s(sJ)}, 7
              s_add_u32 {s(T[6])}, {s(T[6])}, {WS_KVT}
              v_mul_u32_u24 v52, {self.o.get('xs', 4)//4}, {v(vP31)}
              s_mul_i32 {s(T[7])}, {s(sX)}, {32*self.o.get('xs', 4)}
              s_add_u32 {s(T[7])}, {s(T[7])}, {WS_XCCF}
              s_lshl_b32 {s(T[0])}, {s(sX)}, 9
              s_lshl_b32 {s(T[1])}, {s(sW)}, 7
              s_lshl_b32 {s(T[2])}, {s(sJ)}, 2
              s_add_u32 {s(T[1])}, {s(T[1])}, {s(T[2])}
              s_add_u32 {s(T[0])}, {s(T[0])}, {WS_KVF}
              s_add_u32 {s(T[5])}, {s(T[1])}, {s(T[0])}
              s_xor_b32 {s(T[0])}, {s(sN)}, {s(sXCC)}
              s_mov_b32 {s(sMODE)}, 0
              s_mov_b32 {s(sEXP)}, {s(sN)}""")
        xtxt = f"buffer_load_dword v53, v52, {s(RW,4)}, {s(T[7])} offen sc1"
        if self.o.get('xearly', 0): xh = k(xtxt)
        k.wait(self.sh_tok)
        k("s_barrier")
        self.stamp('kv_in')
        if not self.o.get('xearly', 0): xh = k(xtxt)
        KR, VR, KS, O, VU, P = 56, 68, 78, 88, 104, 120
        k(f"ds_read_b64_tr_b16 {v(KR,2)}, v50 offset:512")
        for i in range(4): k(f"ds_read_b64_tr_b16 {v(KR+2+2*i,2)}, v49 offset:{1024 + 512*i}")
        for i in range(4): lastv = k(f"ds_read_b64_tr_b16 {v(VR+2*i,2)}, v49 offset:{L_V - L_K + 512*i}")
        k("v_alignbit_b32 v54, v30, v30, 16\nv_alignbit_b32 v55, v31, v31, 16")
        k.wait(('lg', lastv[1] - 4))
        for aa in range(-1, 8): k(f"v_alignbit_b32 {v(KS+1+aa)}, {v(KR+2+aa)}, {v(KR+1+aa)}, 16")
        for aa in range(8):
            k(f"v_dot2_f32_bf16 {v(O+2*aa)}, {v(KS+aa)}, v55, 0")
            k(f"v_dot2_f32_bf16 {v(O+2*aa+1)}, {v(KR+1+aa)}, v55, 0")
        for aa in range(8):
            k(f"v_dot2_f32_bf16 {v(O+2*aa)}, {v(KS+1+aa)}, v54, {v(O+2*aa)}")
            k(f"v_dot2_f32_bf16 {v(O+2*aa+1)}, {v(KR+2+aa)}, v54, {v(O+2*aa+1)}")
        k.wait(lastv)
        for g in range(2):
            for aa in range(4*g, 4*g+4):
                k(f"v_lshlrev_b32 {v(VU+2*aa)}, 16, {v(VR+aa)}")
                k(f"v_and_b32 {v(VU+2*aa+1)}, 0xffff0000, {v(VR+aa)}")
            for aa in range(4*g, 4*g+4): k(f"v_pk_mul_f32 {v(O+2*aa,2)}, {v(O+2*aa,2)}, {v(VU+2*aa,2)}")
            for e in range(4): k(f"v_cvt_pk_bf16_f32 {v(P+4*g+e)}, {v(O+8*g+7-2*e)}, {v(O+8*g+6-2*e)}")
            st = k(f"buffer_store_dwordx4 {v(P+4*g,4)}, v51, {s(RW,4)}, {s(T[6])} offen offset:{16*g}")
        self.stamp('kv_st')
        self.toeplitz_write()
        slow, back, done = k.label(), k.label(), k.label()
        k.wait(xh)
        k(f"v_cmp_ne_u32 vcc, {s(T[0])}, v53\ns_cbranch_vccnz {slow}")
        k.place(back)
        self.tail.append([f"{slow}:",
            f"buffer_load_dword v53, v52, {s(RW,4)}, {s(T[7])} offen sc1", "s_waitcnt vmcnt(0)",
            f"v_xor_b32 v54, {s(sN)}, v53", "v_cmp_lt_u32 vcc, 15, v54", f"s_cbranch_vccz {done}",
            f"s_sub_u32 {s(sSPIN)}, {s(sSPIN)}, 1", f"s_cbranch_scc0 {slow}", "s_branch L_END",
            f"{done}:", f"v_cmp_ne_u32 vcc, {s(T[0])}, v53", f"s_cbranch_vccz {back}",
            f"s_mov_b32 {s(sMODE)}, 1", f"s_not_b32 {s(sEXP)}, {s(sN)}", f"s_branch {back}"])
        if not self.o.get('fake_kv'): self.publish(st, s(T[5]))
        self.stamp('kv_pub')

    def toeplitz_write(self):
        k = self.k
        k.wait(self.h_tok)
        k(f"v_add_u32 v48, {SCR}, v29")
        for ch in range(2):
            k(f"ds_write_b128 v48, {v(32+8*ch,4)} offset:{H_E(ch) - SCR}")
            k(f"ds_write_b128 v48, {v(36+8*ch,4)} offset:{H_O(ch) - SCR}")
        skip = k.label()
        k(f"s_cmp_lg_u32 {s(sW)}, 0\ns_cbranch_scc1 {skip}")
        k(f"""v_readfirstlane_b32 {s(T[1])}, v32
              v_readfirstlane_b32 {s(T[2])}, v40
              v_cmp_eq_u32 vcc, 28, {v(vP7)}
              v_add_u32 v49, {SCR}, {v(vP7)}
              s_lshl_b32 {s(T[1])}, {s(T[1])}, 16
              s_lshl_b32 {s(T[2])}, {s(T[2])}, 16
              v_mov_b32 v50, 0
              v_mov_b32 v51, 0
              v_mov_b32 v54, {s(T[1])}
              v_mov_b32 v55, {s(T[2])}
              v_cndmask_b32 v54, v50, v54, vcc
              v_cndmask_b32 v55, v50, v55, vcc
              ds_write_b32 v49, v50 offset:{H_E(0) - 32 - SCR}
              ds_write_b32 v49, v50 offset:{H_E(1) - 32 - SCR}
              ds_write_b32 v49, v54 offset:{H_O(0) - 32 - SCR}
              ds_write_b32 v49, v55 offset:{H_O(1) - 32 - SCR}
              v_lshlrev_b32 v49, 3, {v(vL)}
              v_add_u32 v49, {L_U}, v49
              ds_write_b64 v49, v[50:51]
              ds_write_b64 v49, v[50:51] offset:{U_S}""")
        k.place(skip)

    YA = 146
    def front_addr(self):
        k = self.k; o = self.o; Y = self.YA; yfs = o.get('yfs', 4)
        k(f"""v_and_b32 v24, 15, {v(vL)}
              v_lshrrev_b32 v25, 4, {v(vL)}
              v_lshlrev_b32 v5, 3, v25
              v_sub_u32 v26, v24, v5
              v_add_u32 v26, 9, v26
              v_and_b32 v5, 1, v26
              v_sub_u32 v26, v26, v5
              v_lshlrev_b32 v26, 1, v26
              v_mul_u32_u24 v5, {H_O(0) - H_E(0)}, v5
              v_add_u32 v26, v26, v5
              s_lshr_b32 {s(T[0])}, {s(sW)}, 1
              s_mul_i32 {s(T[2])}, {s(T[0])}, {H_E(1) - H_E(0)}
              s_and_b32 {s(T[1])}, {s(sW)}, 1
              s_lshl_b32 {s(T[3])}, {s(T[1])}, 8
              s_add_u32 {s(T[2])}, {s(T[2])}, {s(T[3])}
              s_add_u32 {s(T[2])}, {s(T[2])}, {H_E(0)}
              v_add_u32 v152, {s(T[2])}, v26
              s_mul_i32 {s(T[4])}, {s(T[0])}, {U_S}
              s_add_u32 {s(T[4])}, {s(T[4])}, {L_U + 512}
              s_lshl_b32 {s(T[2])}, {s(T[1])}, 11
              s_add_u32 {s(sUm0)}, {s(T[4])}, {s(T[2])}
              s_sub_u32 {s(T[4])}, {s(T[4])}, {s(T[3])}
              s_sub_u32 {s(T[4])}, {s(T[4])}, 224
              v_lshlrev_b32 v140, 5, v24
              v_lshl_add_u32 v140, v25, 4, v140
              v_add_u32 v140, {s(T[4])}, v140
              s_lshl_b32 {s(T[0])}, {s(sX)}, 9
              s_lshr_b32 {s(T[1])}, {s(sJ)}, 3
              s_lshl_b32 {s(T[1])}, {s(T[1])}, 7
              s_add_u32 {s(T[1])}, {s(T[0])}, {s(T[1])}
              s_add_u32 {s(sKVFp)}, {s(T[1])}, {WS_KVF}
              s_lshl_b32 {s(T[1])}, {s(sJ)}, 4
              s_add_u32 {s(T[0])}, {s(T[0])}, {s(T[1])}
              s_add_u32 {s(sYld)}, {s(T[0])}, {WS_YP}
              s_lshl_b32 {s(T[0])}, {s(sX)}, 18
              s_lshl_b32 {s(T[1])}, {s(sJ)}, 13
              s_add_u32 {s(T[0])}, {s(T[0])}, {s(T[1])}
              s_lshl_b32 {s(T[2])}, {s(sW)}, 11
              s_add_u32 {s(T[1])}, {s(T[0])}, {s(T[2])}
              s_add_u32 {s(sKVs)}, {s(T[1])}, {WS_KVT}
              s_lshl_b32 {s(T[2])}, {s(sW)}, 10
              s_add_u32 {s(T[1])}, {s(T[0])}, {s(T[2])}
              s_add_u32 {s(sYst)}, {s(T[1])}, {WS_YP}
              v_lshlrev_b32 v141, 5, v24
              v_lshrrev_b32 v5, 1, v25
              v_lshl_add_u32 v141, v5, 4, v141
              v_and_b32 v5, 1, v25
              v_xor_b32 v5, 1, v5
              v_lshl_add_u32 v141, v5, 3, v141
              s_lshl_b32 {s(T[0])}, {s(sW)}, 9
              s_add_u32 {s(T[1])}, {s(T[0])}, {L_U + 512}
              v_add_u32 v141, {s(T[1])}, v141
              s_add_u32 {s(T[1])}, {s(T[2])}, {L_YT}
              v_add_u32 {v(Y+3)}, {s(T[1])}, {v(vL16)}
              s_lshl_b32 {s(T[0])}, {s(sW)}, 12
              s_add_u32 {s(T[0])}, {s(T[0])}, {L_CRED}
              v_add_u32 v142, {s(T[0])}, {v(vL16)}
              s_add_u32 {s(T[0])}, {s(T[2])}, {L_CRED}
              v_add_u32 v143, {s(T[0])}, {v(vL16)}
              v_lshlrev_b32 v144, 6, v24
              v_lshl_add_u32 v144, v25, 4, v144
              v_add_u32 v145, 4096, v144
              s_lshl_b32 {s(T[0])}, {s(sX)}, 5
              s_add_u32 {s(T[0])}, {s(T[0])}, {s(sJ)}
              s_lshl_b32 {s(T[0])}, {s(T[0])}, 2
              s_add_u32 {s(T[0])}, {s(T[0])}, {s(T[2])}
              s_mul_i32 {s(T[0])}, {s(T[0])}, {yfs//4}
              s_add_u32 {s(sYFs)}, {s(T[0])}, {WS_YF}
              v_lshlrev_b32 {v(Y+2)}, 2, v0
              v_mul_u32_u24 {v(Y)}, {yfs}, v0
              s_lshr_b32 {s(T[0])}, {s(sX)}, 1
              s_mul_i32 {s(T[0])}, {s(T[0])}, {256*yfs}
              s_add_u32 {s(sYFp)}, {s(T[0])}, {WS_YF}
              v_lshlrev_b32 {v(Y+1)}, 13, v0
              v_add_u32 {v(Y+2)}, {L_YT}, {v(Y+2)}""")
        for p in range(1, 8): k(f"v_add_u32 {v(152+p)}, {512*p}, v152")

    def conv_finish(self, h, C, pk):
        KV, P = 32, 160 + 16*h
        W = [f"ds_write_b128 v142, {v(C + 16*h + 4*c, 4)} offset:{16384*h + 1024*c}" for c in range(4)]
        R = [f"ds_read_b64 {v(KV + 4*h + 2*ch, 2)}, v141 offset:{2048*h + ch*U_S}" for ch in range(2)]
        R2 = [f"ds_read_b128 {v(P + 4*w, 4)}, v143 offset:{16384*h + 4096*w}" for w in range(4)]
        L = []
        for ch in range(2):
            if pk: L += [f"v_pk_add_f32 {v(P+8*ch+e,2)}, {v(P+8*ch+e,2)}, {v(P+8*ch+4+e,2)}" for e in (0, 2)]
            else: L += [f"v_add_f32 {v(P+8*ch+e)}, {v(P+8*ch+e)}, {v(P+8*ch+4+e)}" for e in range(4)]
        D = [f"v_dot2_f32_bf16 {v(P+8*ch+e)}, {v(KV+4*h+2*ch+(1-(e>>1)))}, {s(sD+2*ch+(1-(e&1)))}, {v(P+8*ch+e)}" for e in range(4) for ch in range(2)]
        E = [f"v_cvt_pk_bf16_f32 {v(P+4+e)}, {v(P+e)}, {v(P+8+e)}" for e in range(4)]
        E.append(f"buffer_store_dwordx4 {v(P+4,4)}, {v(144+h)}, {s(RW,4)}, {s(sYst)} offen sc1")
        return W, R, R2, L, D, E

    def conv(self):
        k = self.k; o = self.o; Y = self.YA
        def tz(rr, p):
            d = (rr*8 + p)*4
            return [f"ds_read2_b32 {a(d,2)}, {v(152+p)} offset0:{16*rr} offset1:{16*rr+1}",
                    f"ds_read2_b32 {a(d+2,2)}, {v(152+p)} offset0:{16*rr+2} offset1:{16*rr+3}"]
        first = [x for rr in range(4) for p in range(4) for x in tz(rr, p)]
        second = [x for rr in range(4) for p in range(4, 8) for x in tz(rr, p)]
        k.wait_lg0()
        k("s_barrier")
        if o.get('b1', 1): self.w1_dma(o.get('n1', 1))
        n0 = o.get('toep0', 20)
        if not o.get('fake_kv'): ph = self.poll_issue(vP31, s(sKVFp))
        for x in first[:n0]: k(x)
        self.stamp('toep')
        if not o.get('fake_kv'): self.poll_check(ph)
        self.stamp('kv_seen')
        k(f"s_mov_b32 m0, {s(sUm0)}")
        k(f"buffer_load_dwordx4 {v(vL16)}, {s(RW,4)}, {s(sKVs)} offen sc1 lds")
        tok = k(f"buffer_load_dwordx4 {v(vL16)}, {s(RW,4)}, {s(sKVs)} offen offset:1024 sc1 lds")
        for x in first[n0:]: k(x)
        k.wait(tok)
        k("s_barrier")
        self.stamp('u_in')
        B, C = 64, 96
        uses = [(0, rr, q) for rr in range(4) for q in range(4)] + [(1, rr, q) for rr in range(4) for q in range(8)]
        bt = {}
        def rdB(i):
            part, rr, q = uses[i]
            bt[i] = k(f"ds_read_b128 {v(B + 4*(i % 8), 4)}, v140 offset:{512*q + 64*(3-rr)}")
        for i in range(8): rdB(i)
        pre = []
        if o.get('jpos', 0) == 0: self.wd_job_issue()
        if not o.get('joint', 1): self.q_load()
        tq = Queue(k, [Item(x) for x in second]); tits = list(tq.q)
        n2 = o.get('n2', 11); dq = []
        for i in range(n2):
            if self.w1_next >= 14: break
            n = self.w1_next; self.w1_next += 1
            for x in self.w1_dma_text(n): dq.append(Item(x, at=o.get('n2at', 2) + i*(o.get('n2span', 130) // n2), tag=n))
        dits = list(dq)
        if o.get('qpos', 1) == 2:
            dq.append(Item(fn=self.q_issue, cost=2, at=o.get('q_at', 30))); dq.sort(key=lambda x: x.at)
        dq = Queue(k, dq)
        side = Queue(k, []); ybox = []
        m = 0; started = set()
        for i, (part, rr, q) in enumerate(uses):
            need = []
            if part == 1 and q == 0:
                while any(x.tok is None for x in tits[:8*rr + 8]): tq.emit(tq.q[0])
                need = [tits[8*rr + 7].tok]
            if part == 1 and rr == 0 and q == 0:
                W, R, R2, L, D, E = self.conv_finish(0, C, False)
                its = [Item(x, cost=2, at=m + 3 + 2*n) for n, x in enumerate(W)] + [Item(x) for x in R]
                its += [Item(fn=lambda: k.wait_lg0(), at=m + 16), Item(fn=lambda: k("s_barrier"))]
                its += [Item(x) for x in R2]; lastr = its[-1]
                its += [Item(fn=lambda: k.wait(lastr.tok), at=m + 26)] + [Item(x) for x in L]
                its += [Item(fn=lambda: [k(x) for x in D], cost=2)] + [Item(x) for x in E]
                ysA = its[-1]
                if not o.get('joint', 1): its += [Item(fn=lambda: k.wait(ysA.tok), at=o.get('ya_pub', 118)), Item(fn=lambda: self.flag_store(s(sYFs), 0, False))]
                side = Queue(k, its)
            if i % 2 == 0: k.wait(bt[i + 1], *need)
            ps = range(4 - q) if part == 0 else range(max(0, 4 - q), 8 - q)
            for n, p in enumerate(ps):
                c = C + 4*(p + q)
                src = v(c, 4) if (p + q) in started else '0'
                started.add(p + q)
                k(f"v_mfma_f32_16x16x32_bf16 {v(c,4)}, {a((rr*8+p)*4,4)}, {v(B + 4*(i % 8),4)}, {src}")
                m += 1
                cap = 2
                if n == len(ps) - 1: cap -= (1 if i + 8 < len(uses) else 0) + (i % 2)
                cap = side.fill(cap, m)
                cap = dq.fill(cap, m)
                tq.fill(min(cap, 1))
            if i + 8 < len(uses): rdB(i + 8)
        print('conv left:', side.cost(), dq.cost())
        dq.drain()
        for x in dits: self.w1_tok[x.tag] = x.tok
        self.stamp('conv_mfma')
        W, R, R2, L, D, E = self.conv_finish(1, C, True)
        for x in R + W: k(x)
        self.w1_dma(min(o.get('n2a', 0), 14 - self.w1_next))
        side.drain()
        k.wait_lg0()
        k("s_barrier")
        for x in R2: k(x)
        self.w1_dma(min(o.get('n2b', 0), 14 - self.w1_next))
        if not o.get('joint', 1): pa = self.poll_issue(Y, s(sYFp))
        k.wait_lg0()
        self.ysB = self.run(L + D + E)[-1].tok
        self.stamp('y_st')
        if not o.get('joint', 1):
            self.poll_check(pa, False)
            self.stamp('y_seen')

    def y_joint(self):
        k = self.k; o = self.o; Y = self.YA
        self.wd_job_finish()
        self.persistent()
        if not o.get('fake_y'):
            self.publish(self.ysB, s(sYFs), local=False)
            self.stamp('y_pub')
            if not o.get('jlate', 0): self.publish(self.job_st, s(sJF), local=False)
        k("s_barrier")
        done0 = self.w1_next >= 14
        if o.get('qpos', 1) == 1: self.q_load()
        self.w1_dma(o.get('n3', 4))
        self.w1_relayout_addr()
        self.wd_addr()
        k(f"s_add_u32 {s(T[8])}, {s(sYld)}, 4096")
        if o.get('qpos', 1) >= 2 and not o.get('qlate'): self.q_stats()
        if o.get('jlate', 0): self.publish(self.job_st, s(sJF), local=False)
        if done0: self.w1_relayout(0)
        if o.get('qpos', 1) == 1 and not o.get('qlate'): self.q_stats()
        k(f"s_mul_i32 {s(sAG[0])}, {s(sW)}, 1088\ns_add_u32 {s(sAG[0])}, {s(sAG[0])}, {L_AG2}\ns_lshl_b32 {s(sAG[1])}, {s(sW)}, 8\ns_add_u32 {s(sAG[1])}, {s(sAG[1])}, {L_AG2}")
        self.run(self.ag_addr(100))
        if o.get('agb', 1) == 0:
            k(f"""s_lshl_b32 {s(T[0])}, {s(sJ)}, 2
                  s_add_u32 {s(T[0])}, {s(T[0])}, {s(sW)}
                  s_lshr_b32 {s(T[1])}, {s(T[0])}, 5
                  s_lshl_b32 {s(T[1])}, {s(T[1])}, 15
                  s_bfe_u32 {s(T[2])}, {s(T[0])}, 0x10004
                  s_lshl_b32 {s(T[2])}, {s(T[2])}, 10
                  s_and_b32 {s(T[0])}, {s(T[0])}, 15
                  s_lshl_b32 {s(T[0])}, {s(T[0])}, 4
                  s_add_u32 {s(T[1])}, {s(T[1])}, {s(T[2])}
                  s_add_u32 {s(T[1])}, {s(T[1])}, {s(T[0])}
                  s_lshl_b32 {s(T[0])}, {s(sX)}, 18
                  s_add_u32 {s(T[1])}, {s(T[1])}, {s(T[0])}
                  s_add_u32 {s(sAD)}, {s(T[1])}, {WS_A + 0x20000}""")
        self.stamp('rl0')
        if not o.get('fake_y'): self.poll(Y, s(sYFp), local=False)
        else: self.publish(self.job_st, s(sJF), local=False)
        self.stamp('y_seen')
        t0 = k(f"buffer_load_dwordx4 v[32:35], {v(Y+1)}, {s(RW,4)}, {s(sYld)} offen sc1")
        t1 = k(f"buffer_load_dwordx4 v[36:39], {v(Y+1)}, {s(RW,4)}, {s(T[8])} offen sc1")
        if o.get('jlate', 0) < 2: pj = self.poll_issue(226, s(sJFp), 0, 229)
        if o.get('b4', 1): k("s_barrier")
        self.w1_dma(o.get('n4', 6))
        if o.get('tch_h', 0) == 1: k(self.touch_h_text())
        if not done0 and self.w1_next >= 14: self.w1_relayout(0); done0 = True
        if o.get('qlate'): self.q_stats()
        k.wait(t0)
        for e in range(4): k(f"ds_write_b32 {v(Y+2)}, {v(32+e)} offset:{1024*e}")
        k.wait(t1)
        for e in range(4): k(f"ds_write_b32 {v(Y+2)}, {v(36+e)} offset:{1024*(4+e)}")
        k.wait_lg0()
        k("s_barrier")
        for h in range(2): k(f"ds_read_b128 {v(YS[h],4)}, {v(Y+3)} offset:{4096*h}")
        k.wait_lg0()
        self.stamp('y_in')
        its = self.run(self.gate_norm([0, 1], self.N0, 0, 56))
        sts = self.a_out([0, 1], 56, 0) if o.get('ag', 1) else [x.tok for x in its if 'store' in x.text]
        self.stamp('a_st')
        if o.get('jlate', 0) < 2: self.poll_check(pj, False)
        if done0: self.gemm1_start(0)
        self.publish(sts[0], s(sAFs), 0)
        self.publish(sts[1], s(sAFs), 512)
        k(f"s_or_b32 {s(T[0])}, s2, {s(sW)}\ns_cmp_eq_u32 {s(T[0])}, 0\ns_cselect_b32 {s(T[0])}, 0, 0x40000000")
        k(f"buffer_store_dword {v(vNON)}, {v(vL0)}, {s(RW,4)}, {s(T[0])} offen sc1")
        self.stamp('a_pub')
        self.rl1_done = bool(o.get('rl1_front', 0)); self.rowb_done = True
        self.wd0 = o.get('wd0', 0)
        for n in range(self.wd0): k(self.wd_text(n))
        if o.get('b5', 1): k("s_barrier")
        self.w1_dma(28 if self.rl1_done else o.get('n5', 4))
        if self.w1_next < 28:
            for i in range(7): k(f"v_mov_b32 {v(126+i)}, {v(self.W1V+i)}")
            self.W1V = 126
        if o.get('krot', 0):
            assert self.w1_next == 28
            self.k_order()
        if not done0: self.w1_relayout(0)
        if self.rl1_done: self.w1_relayout(1)
        if self.rl1_done or not done0: k.wait_lg0(); k("s_barrier")
        if not done0: self.gemm1_start(0)

    def stats(self, rows, out, t0, scale=None):
        L = []; n = len(rows)
        for i, x in enumerate(rows):
            b = t0 + 6*i
            L += [f"v_pk_add_f32 {v(b,2)}, {v(x,2)}, {v(x+2,2)}", f"v_pk_mul_f32 {v(b+2,2)}, {v(x,2)}, {v(x,2)}",
                  f"v_pk_add_f32 {v(b+4,2)}, {v(x+4,2)}, {v(x+6,2)}"]
            L += [f"v_pk_fma_f32 {v(b+2,2)}, {v(x+e,2)}, {v(x+e,2)}, {v(b+2,2)}" for e in (2, 4, 6)]
            L += [f"v_pk_add_f32 {v(b,2)}, {v(b,2)}, {v(b+4,2)}", f"v_add_f32 {v(b+2)}, {v(b+2)}, {v(b+3)}", f"v_add_f32 {v(b)}, {v(b)}, {v(b+1)}"]
        for ctl in ("row_ror:8 row_mask:0xf", "row_ror:4 row_mask:0xf", "row_ror:2 row_mask:0xf", "row_ror:1 row_mask:0xf",
                    "row_bcast:15 row_mask:0xa", "row_bcast:31 row_mask:0xc"):
            for i in range(n):
                for e in (2, 0):
                    r = t0 + 6*i + e
                    L.append(f"v_add_f32_dpp {v(r)}, {v(r)}, {v(r)} {ctl} bank_mask:0xf")
        for i in range(n):
            b = t0 + 6*i
            L += [f"v_mul_f32 {v(b)}, 0x3b000000, {v(b)}", f"v_mul_f32 {v(b+2)}, 0x3b000000, {v(b+2)}",
                  f"v_fma_f32 {v(b+2)}, -{v(b)}, {v(b)}, {v(b+2)}", f"v_max_f32 {v(b+2)}, 0, {v(b+2)}",
                  f"v_add_f32 {v(b+2)}, 0x3727c5ac, {v(b+2)}", f"v_rsq_f32 {v(b+2)}, {v(b+2)}"]
            if scale: L.append(f"v_mul_f32 {v(b+2)}, {f32(scale)}, {v(b+2)}")
            L += [f"v_mul_f32_e64 {v(b)}, -{v(b)}, {v(b+2)}", f"v_readlane_b32 {s(out[i])}, {v(b+2)}, 63",
                  f"v_readlane_b32 {s(out[i]+2)}, {v(b)}, 63", f"v_mov_b32 {v(b+4)}, {s(out[i]+2)}"]
        return L
    def unpack(self, dst, src):
        L = []
        for e in range(4): L += [f"v_lshlrev_b32 {v(dst+2*e)}, 16, {v(src+e)}", f"v_and_b32 {v(dst+2*e+1)}, 0xffff0000, {v(src+e)}"]
        return L
    def affine(self, dst, x, sp, vb):
        return [f"v_pk_fma_f32 {v(dst+e,2)}, {v(x+e,2)}, {s(sp,2)}, {v(vb,2)} op_sel_hi:[1,0,0]" for e in (0, 2, 4, 6)]
    def run(self, L, look=12):
        its = [Item(x) for x in L]
        Queue(self.k, its, look).drain()
        return its

    def gate_norm(self, halves, nrm, layer, R, direct=None):
        L = []; sp = [36, 40]
        t0 = R + 16*len(halves)
        for i, h in enumerate(halves):
            L += self.unpack(R + 16*i, YS[h])
            L += [f"v_pk_fma_f32 {v(XS[h]+e,2)}, {v(nrm[h]+e,2)}, {v(R+16*i+e,2)}, {v(XS[h]+e,2)}" for e in (0, 2, 4, 6)]
        L += self.stats([XS[h] for h in halves], sp[:len(halves)], t0, LOG2E)
        for i, h in enumerate(halves):
            b = R + 16*i
            L += self.affine(b, XS[h], sp[i], t0 + 6*i + 4)
            L += [f"v_cvt_pk_bf16_f32 {v(b+8+e)}, {v(b+2*e)}, {v(b+2*e+1)}" for e in range(4)]
            if direct: L.append(f"buffer_store_dwordx4 {v(b+8,4)}, {v(direct)}, {s(RW,4)}, {s(sAD)} offen")
            elif self.o.get('ag', 1): L.append(f"ds_write_b128 {v(self.agw)}, {v(b+8,4)} offset:{ag_off(layer, h)}")
            else: L.append(f"buffer_store_dwordx4 {v(b+8,4)}, {v(vAst)}, {s(RW,4)}, {s(sHALF) if h else 0} offen")
            if layer == 1:
                L += [f"v_cvt_pk_bf16_f32 {v(b+12+e)}, {v(XS[h]+2*e)}, {v(XS[h]+2*e+1)}" for e in range(4)]
                L.append(f"buffer_store_dwordx4 {v(b+12,4)}, {v(vFr)}, {s(RW,4)}, {s(sFR[h])} offen{self.o.get('x3m', '')}")
        return L

    def ag_addr(self, r):
        if not self.o.get('ag', 1): return []
        self.agw, self.agr = r, r + 1
        return [f"v_bfe_u32 {v(r+1)}, {v(vL16)}, 4, 2", f"v_mul_u32_u24 {v(r+1)}, 1088, {v(r+1)}", f"v_lshrrev_b32 {v(r)}, 6, {v(vL16)}",
                f"v_lshl_add_u32 {v(r+1)}, {v(r)}, 4, {v(r+1)}", f"v_add_u32 {v(r+1)}, {s(sAG[1])}, {v(r+1)}", f"v_add_u32 {v(r)}, {s(sAG[0])}, {v(vL16)}"]
    def a_out(self, halves, R, layer, between=None):
        k = self.k
        if between: between()
        k.wait_lg0(); k("s_barrier")
        t = [k(f"ds_read_b128 {v(R + 4*i, 4)}, {v(self.agr)} offset:{ag_off(layer, h)}") for i, h in enumerate(halves)]
        out = []
        for i, h in enumerate(halves):
            k.wait(t[i])
            out.append(k(f"buffer_store_dwordx4 {v(R + 4*i, 4)}, {v(vAst)}, {s(RW,4)}, {s(sHALF) if h else 0} offen"))
        return out

    N0 = [40, 118]
    def q_stats(self):
        k = self.k
        k.wait(self.q_tok)
        L = []
        for h in range(2): L += self.unpack(XS[h], 204 + 4*h)
        L += self.stats(XS, [36, 40], 128)
        for h in range(2): L += self.affine(self.N0[h], XS[h], [36, 40][h], 128 + 6*h + 4)
        self.run(L)

    def y_row(self, h, t, raw):
        k = self.k; Y = self.YA
        k.wait(t)
        for e in range(4): k(f"ds_write_b32 {v(Y+2)}, {v(raw+e)} offset:{4096*h + 1024*e}")
        k.wait_lg0()
        k("s_barrier")
        k(f"ds_read_b128 {v(YS[h],4)}, {v(Y+3)} offset:{4096*h}")
        k.wait_lg0()

    def y_in(self):
        k = self.k; o = self.o; Y = self.YA
        t0 = k(f"buffer_load_dwordx4 v[32:35], {v(Y+1)}, {s(RW,4)}, {s(sYld)} offen sc1")
        k(f"s_add_u32 {s(sYFs)}, {s(sYFs)}, {1024*o.get('yfs', 4)}\ns_add_u32 {s(sYFp)}, {s(sYFp)}, {1024*o.get('yfs', 4)}\ns_add_u32 {s(sYld)}, {s(sYld)}, 4096")
        self.publish(self.ysB, s(sYFs), local=False)
        self.stamp('y_pub')
        if o.get('jpos', 0) == 0: self.wd_job_finish()
        self.q_stats()
        self.persistent()
        k("s_barrier")
        self.w1_dma(o.get('n4', 6))
        self.y_row(0, t0, 32)
        self.stamp('y_in')
        its = self.run(self.gate_norm([0], self.N0, 0, 56))
        st = [x.tok for x in its if 'store' in x.text][0]
        self.stamp('a_st')
        for i in range(4): k(f"v_mov_b32 {v(110+i)}, {v(Y+i)}")
        self.YA = 110
        if self.w1_next + o.get('n5', 28) < 28:
            for i in range(7): k(f"v_mov_b32 {v(126+i)}, {v(self.W1V+i)}")
            self.W1V = 126
        self.w1_relayout_addr()
        self.publish(st, s(sAFs), 0)
        self.flag_store(s(sJF), 0, False)
        k(f"s_or_b32 {s(T[0])}, s2, {s(sW)}\ns_cmp_eq_u32 {s(T[0])}, 0\ns_cselect_b32 {s(T[0])}, 0, 0x40000000")
        k(f"buffer_store_dword {v(vNON)}, {v(vL0)}, {s(RW,4)}, {s(T[0])} offen sc1")
        self.stamp('a_pub')
        self.w1_dma(o.get('n5', 28))
        self.w1_relayout(0)
        self.wd_addr()
        self.rl1_done = bool(o.get('rl1_front', 1))
        if self.rl1_done:
            if o.get('rowb_front', 1): self.row_b0()
            self.w1_relayout(1)
        k.wait_lg0(); k("s_barrier")
        self.stamp('w1')
        self.gemm1_start(0)

    def row_b0(self, h0=None):
        k = self.k; Y = self.YA
        if h0 is None:
            self.poll(Y, s(sYFp), local=False)
            h0 = k(f"buffer_load_dwordx4 v[106:109], {v(Y+1)}, {s(RW,4)}, {s(sYld)} offen sc1")
        self.y_row(1, h0, 106)
        its = self.run(self.gate_norm([1], self.N0, 0, ACC[1]))
        self.aB_tok = [x.tok for x in its if 'store' in x.text][0]
        self.rowb_done = True
        if self.o.get('rowb_front', 1) and self.rl1_done: self.publish(self.aB_tok, s(sAFs), 512)

    def epilogue1(self, B, half, off, pk, sc=''):
        L = []; so = s(sHH) if half else '0'
        if not sc and self.o.get('hst_nt'): sc = ' nt'
        def grp(g, u, n, outs, t):
            for e in range(n): L.append(f"v_exp_f32_e64 {v(t+e)}, -{v(g+e)}")
            if pk:
                for e in range(0, n, 2): L.append(f"v_pk_mul_f32 {v(u+e,2)}, {v(g+e,2)}, {v(u+e,2)}")
                for e in range(0, n, 2): L.append(f"v_pk_fma_f32 {v(t+e,2)}, {v(t+e,2)}, {s(sC2,2)}, {s(sC2,2)}")
            else:
                for e in range(n): L.append(f"v_mul_f32 {v(u+e)}, {v(g+e)}, {v(u+e)}")
                for e in range(n): L.append(f"v_fma_f32 {v(t+e)}, {v(t+e)}, {s(sC2)}, {s(sC2)}")
            for e in range(n): L.append(f"v_rcp_f32 {v(t+e)}, {v(t+e)}")
            if pk:
                for e in range(0, n, 2): L.append(f"v_pk_mul_f32 {v(u+e,2)}, {v(u+e,2)}, {v(t+e,2)}")
            else:
                for e in range(n): L.append(f"v_mul_f32 {v(u+e)}, {v(u+e)}, {v(t+e)}")
            for e in range(0, n, 2): L.append(f"v_cvt_pk_bf16_f32 {v(outs[e//2])}, {v(u+e)}, {v(u+e+1)}")
        grp(B, B+4, 4, [B, B+1], TMP)
        grp(B+8, B+12, 4, [B+2, B+3], TMP+4)
        L.append(f"buffer_store_dwordx4 {v(B,4)}, {v(vHm)}, {s(RW,4)}, {so} offen offset:{off}{sc}")
        grp(B+16, B+20, 4, [B+8, B+9], TMP)
        grp(B+24, B+26, 2, [B+10], TMP+4)
        Z, C, A_ = B+4, B+5, B+6
        L += [f"v_mov_b32 {v(C)}, {v(B+8)}", f"v_mov_b32 {v(A_)}, {v(B+9)}", f"v_mov_b32 {v(Z)}, {v(B+10)}",
              f"v_permlane32_swap_b32 {v(A_)}, {v(B+11)}", f"v_permlane32_swap_b32 {v(C)}, {v(Z)}",
              f"v_permlane16_swap_b32 {v(Z)}, {v(B+11)}",
              f"buffer_store_dwordx4 {v(B+8,4)}, {v(vHt)}, {s(RW,4)}, {so} offen offset:{off}{sc}"]
        return L

    def a_plan(self, layer):
        n = self.o.get('ring0', 8) if layer == 0 else self.o.get('ring1', 6)
        ring = ([('v', AR + 8*i) for i in range(4)] + [('a', 224 + 8*i) for i in range(4)])[:n]
        reg = {gs: ring[gs % n] for gs in range(32)}
        issue = {}
        for gs in range(32):
            prev = [p for p in range(gs) if reg[p] == reg[gs]]
            issue[gs] = prev[-1] + 1 if prev else -1
        return reg, issue

    def gemm1_start(self, layer):
        k = self.k
        self.wt, self.at = {}, {}
        self.areg, self.aiss = self.a_plan(layer)
        for Tt in range(7): self.rdW(0, Tt)
    def rdW(self, gs, Tt):
        st = gs % 16
        base, o = (vL16, st*7168) if st < 8 else (vW1, (st-8)*7168)
        self.wt[(gs, Tt)] = self.k(f"ds_read_b128 {v(WF + 28*(gs&1) + 4*Tt, 4)}, {v(base)} offset:{o + 1024*Tt}")
    def afrag(self, gs, mt):
        kind, b = self.areg[gs]
        return (v if kind == 'v' else a)(b + 4*mt, 4)
    def ldA(self, gs, mt):
        st = gs % 16
        self.at[(gs, mt)] = self.k(f"buffer_load_dwordx4 {self.afrag(gs, mt)}, {v(vAld[gs // 16])}, {s(RW,4)}, {k4(st>>1)} offen offset:{((st&1)*2+mt)*1024} sc1")

    def gemm1(self, layer):
        k = self.k; o = self.o
        lo = 1024*layer
        if layer: self.poll_check(self.a_poll)
        else: self.poll(vP31, s(sAFp), lo)
        self.stamp(f'a_seen{layer}')
        todo = sorted(range(32), key=lambda g: g)
        nxtA = 0
        while self.aiss[nxtA] < 0 and nxtA < o.get('a_init', 5):
            for mt in range(2): self.ldA(nxtA, mt)
            nxtA += 1
        w1q = []
        if layer == 0:
            if o.get('w1_spread', 1):
                n0 = self.w1_next
                for n in range(n0, 28):
                    for x in self.w1_dma_text(n): w1q.append(Item(x, at=int(14*o.get('w1_spread', 1)*(n - n0)/(28 - n0)), tag=n))
                self.w1_next = 28
            else: self.w1_dma(28)
        firstB = max(min(self.aiss[g] for g in range(16, 32)), o.get('firstB', 13) if layer else 0)
        queues = []
        if layer == 0:
            burst = None
            if getattr(self, 'rowb_done', False):
                queues.append(Queue(k, self.poll_items(vP31, s(sAFp), lo + 512, 14*2, 14*(firstB - 2))))
            else:
                burst = o.get('rowb0_at', 3); box = []
                its = [Item(fn=lambda: box.append(self.poll_issue(self.YA, s(sYFp))))] + [Item(fn=f, at=14*(burst - 2)) for f in self.poll_steps(lambda: box[0], False)]
                fld = Item(f"buffer_load_dwordx4 v[106:109], {v(self.YA+1)}, {s(RW,4)}, {s(sYld)} offen sc1"); its.append(fld)
                queues.append(Queue(k, its))
                firstB = max(firstB, o.get('firstB0', 12))
            rl = self.w1_relayout_items(1) if not self.rl1_done else []
            nr = nw = 0
            for x in rl:
                x.at = 14*o.get('rl1_at', 4)
                if o.get('rl_pace', 1) and x.text:
                    if 'ds_read' in x.text: x.at = o.get('rl_r0', 0) + nr*o.get('rl_rs', 10)//10; nr += 1
                    elif 'ds_write' in x.text: x.at = o.get('rl_w0', 34) + nw*o.get('rl_ws', 4); nw += 1; x.cost = 2
                    else: x.at = 0
                elif o.get('rl_pace', 1): x.at = 0 if nr == 0 else o.get('rl_w0', 34) - 2
            if w1q:
                def note():
                    for x in w1q: self.w1_tok[x.tag] = x.tok
                rl = w1q + [Item(fn=note, cost=0)] + rl
            rlq = Queue(k, rl); queues.append(rlq)
            t0 = o.get('wd_t0', 1); t1 = o.get('wd_t1', 30)
            wd = [x for n in range(getattr(self, 'wd0', 0), o.get('wd_n', 56)) for x in self.wd_items(n, int(14*(t0 + (t1 - t0)*n/56)))]
            jb = []
            pj = [Item(fn=lambda: jb.append(self.poll_issue(226, s(sJFp), 0, 229)))] + [Item(fn=f, at=14*t0 - 4) for f in self.poll_steps(lambda: jb[0], False)]
            if o.get('joint', 1) and o.get('jlate', 0) < 2: pj = []
            if o.get('tch_h', 0) == 2: pj = [Item(self.touch_h_text(), at=14*o.get('tch_at', 0))]
            wdq = Queue(k, pj + wd, 1); queues.append(wdq)
        else:
            box = []
            s0 = o.get('rowb_at', 7)
            its = self.publish_items(lambda: self.fB, s(sFFs), 512, o.get('fb_pub', 4)) + self.poll_items(vP7, s(sFFp), 512, 14*s0 - o.get('fb_pi', 54), 14*s0 - o.get('fb_pc', 32))
            fld = Item(f"buffer_load_dwordx4 {v(ACC[1],4)}, {v(vFr)}, {s(RW,4)}, {s(sFR[1])} offen sc1"); its.append(fld)
            r = ACC[1] + 54
            if o.get('agb', 1) == 0:
                its += [Item(x) for x in (f"v_lshrrev_b32 {v(r)}, 6, {v(vL16)}", f"v_lshlrev_b32 {v(r)}, 11, {v(r)}", f"v_bfe_u32 {v(r+1)}, {v(vL16)}, 4, 2",
                                          f"v_lshl_add_u32 {v(r)}, {v(r+1)}, 8, {v(r)}")]
            queues.append(Queue(k, its))
            burst = s0
        epi = None; hbox = []
        ho = lambda half, mt: 2048*layer + 1024*half + 512*mt
        hsc = [' sc1' if o.get('hsc', 15) >> (2*layer + h) & 1 else '' for h in range(2)]
        self.cur_layer = layer
        for gs in range(32):
            ps, st = divmod(gs, 16)
            if gs == burst:
                queues[0].drain(); k.wait(fld.tok)
                self.stamp('rowB_go')
                if layer: sts = self.rowop(1, ACC[1])
                else: self.row_b0(fld.tok); sts = self.aB_tok
                if o.get('xdirty'):
                    k(f"s_lshl_b32 {s(T[0])}, s2, 2\ns_add_u32 {s(T[0])}, {s(T[0])}, {s(sW)}\ns_lshl_b32 {s(T[0])}, {s(T[0])}, 12\ns_add_u32 {s(T[0])}, {s(T[0])}, 0x1100000")
                    for n in range(o['xdirty']): k(f"buffer_store_dwordx4 v[78:81], {v(vL16)}, {s(RW,4)}, {s(T[0])} offen offset:{1024*n}")
                self.stamp('rowB')
                queues[:1] = [Queue(k, self.publish_items(lambda: sts, s(sAFs), lo + 512, 14*gs + o.get('ab_pub', 36))
                                + self.poll_items(vP31, s(sAFp), lo + 512, 14*(firstB - 2) - 4, 14*firstB - 4))]
            if gs == firstB: queues[0].drain()
            if layer == 0 and gs == o.get('rl1_bar', 7) and not self.rl1_done:
                print('relayout left at step 7:', rlq.cost())
                rlq.drain(); k.wait_lg0(); k("s_barrier")
            if gs == 16:
                for q in queues[:2]: q.drain()
                xb = o.get('e0_burst', 1)
                e0 = [Item(x, at=14*16 + 4) for x in self.epilogue1(ACC[0], 0, 0, xb, hsc[0])]
                if xb: Queue(k, e0, 12).drain()
                e1 = [Item(x, at=14*16 + 4) for x in self.epilogue1(ACC[0] + 28, 0, 256, 0, hsc[0])]
                epi = ([] if xb else e0) + e1
                queues = [Queue(k, epi, 14), Queue(k, []), Queue(k, [])]
                if layer == 0: queues.append(wdq)
                pub = [False, False]; self.ht = {}; self.nxtH = 0
            if epi:
                dl = o.get('ha_pub', 84 if hsc[0] else 50)
                if not pub[0] and e0[-1].tok:
                    pub[0] = gs
                    queues[1].q += self.publish_items(lambda: e0[-1].tok, s(sHFs), ho(0, 0), 14*gs + dl)
                    t1_ = 14*gs + dl + o.get('ha_gap', 40)
                    queues[2].q += self.poll_items(vP7, s(sHFp), ho(0, 0), t1_, t1_ + o.get('ha_rtt', 28))
                    queues[2].q += [Item(fn=self.ldH, at=t1_ + o.get('ha_rtt', 28) + 4*n) for n in range(7)]
                if not pub[1] and e1[-1].tok:
                    pub[1] = gs
                    queues[1].q += self.publish_items(lambda: e1[-1].tok, s(sHFs), ho(0, 1), 14*gs + o.get('ha_pub1', 70 if hsc[0] else 40))
                    queues[2].q += [Item(fn=self.ldH, at=o.get('ha_more_at', 410) + 4*n) for n in range(o.get('ha_more', 7))]
            if gs in (2, 4, 8, 10, 12, 14, 20, 24, 28): self.stamp(f'g1_{layer}_{gs}')
            fixed = [[] for _ in range(14)]
            if gs + 1 < 32:
                for Tt in range(7): fixed[2*(Tt // 2)].append(('W', gs+1, Tt))
            slot = 6
            while nxtA < 32 and self.aiss[nxtA] <= gs and slot <= 10 and (nxtA < 16 or gs >= firstB):
                fixed[slot].append(('A', nxtA, 0)); fixed[slot+2].append(('A', nxtA, 1)); nxtA += 1; slot += 4
            k.wait(self.at[(gs, 1)], self.wt[(gs, 6)])
            for i in range(14):
                Tt, mt = divmod(i, 2)
                d = ACC[ps] + 28*mt + 4*Tt
                k(f"v_mfma_f32_16x16x32_bf16 {v(d,4)}, {v(WF + 28*(gs&1) + 4*Tt, 4)}, {self.afrag(gs, mt)}, {'0' if st == 0 else v(d,4)}")
                for it in fixed[i]:
                    if it[0] == 'W': self.rdW(it[1], it[2])
                    else: self.ldA(it[1], it[2])
                cap = 2 - len(fixed[i]) - (1 if i == 13 else 0)
                for q in (queues[::-1] if ps else queues): cap = q.fill(cap, 14*gs + i)
            if gs == 15: self.stamp(f'g1a{layer}'); self.late = layer == 1
        print('layer', layer, 'left after G1B:', [q.cost() for q in queues], 'stores done in steps', pub, 'h loads out', self.nxtH)
        queues[0].drain()
        if not pub[1]: queues[1].q += self.publish_items(lambda: e1[-1].tok, s(sHFs), ho(0, 1), 0)
        if layer == 0: wdq.drain(); self.wd_last = wd[-1].tok
        self.stamp(f'g1b{layer}')
        b0 = [Item(x) for x in self.epilogue1(ACC[1], 1, 0, 1, hsc[1])]
        b1 = [Item(x) for x in self.epilogue1(ACC[1] + 28, 1, 256, 1, hsc[1])]
        q = Queue(k, b0 + b1, 12)
        total = q.cost()
        side = [x for x in queues[2].q if x.fn != self.ldH]
        pubq = list(queues[1].q)
        ev = [(o.get('epi_pub', 0), lambda: Queue(k, pubq).drain()), (o.get('epi_lead', 10), lambda: Queue(k, side).drain())]
        gap = o.get('epi_gap', 20); t = o.get('epi_lead', 10)
        for n in range(self.nxtH, 14):
            ev.append((t, self.ldH)); t += gap
        box = []
        self.hA1_issue = lambda: box.append(self.poll_issue(vP7, s(sHFp), ho(0, 1)))
        if 'ha1_slot' not in o: ev.append((o.get('ha1_pi', 60), self.hA1_issue))
        ev.sort(key=lambda x: x[0])
        while len(q):
            while ev and total - q.cost() >= ev[0][0]: ev.pop(0)[1]()
            if q.fill(3) == 3: q.emit(q.q[0])
        for _, f in ev: f()
        self.hA1_box = box
        self.hB_tok = [b0[-1].tok, b1[-1].tok]
        self.hsc = hsc
        self.stamp(f'epiB{layer}')

    def g2_order(self):
        return [(half, U, mt) for half in range(2) for mt in range(2) for U in range(14)]
    def hreg(self, n):
        if n < 14: return ACC[0] + 4*n
        if n < 28: return WF + 4*(n - 14)
        if n < 42: return ACC[1] + 4*(n - 28)
        return ACC[0] + 4*(n - 42)
    def ldH(self, _=0):
        n = self.nxtH; self.nxtH += 1
        half, U, mt = self.g2_order()[n]
        self.ht[n] = self.k(f"buffer_load_dwordx4 {v(self.hreg(n),4)}, {v(vHld[half])}, {s(RW,4)}, {s(sHK[U]) if self.o.get('krot', 0) else k4(U>>1)} offen offset:{(0 if self.o.get('krot', 0) else (U&1)*2048) + mt*256} sc1{' nt' if self.o.get('hld_nt') and self.cur_layer else ''}")

    def red_write(self, A2):
        return [f"ds_write_b128 {v(vRw)}, {v(A2 + 16*mt + 4*nt, 4)} offset:{4352*mt + 64*nt}" for mt in range(2) for nt in range(4)]
    def red_read(self, P):
        return [f"ds_read_b128 {v(P + 8*w + 4*hf, 4)}, {v(vRr)} offset:{8704*w + 16*hf}" for w in range(4) for hf in range(2)]
    def red_sum(self, P, half, layer, X3, pk):
        L = []
        def add(d, x, y):
            if pk: L.extend(f"v_pk_add_f32 {v(d+e,2)}, {v(x+e,2)}, {v(y+e,2)}" for e in (0, 2, 4, 6))
            else: L.extend(f"v_add_f32 {v(d+e)}, {v(x+e)}, {v(y+e)}" for e in range(8))
        add(P, P, P+8); add(P+16, P+16, P+24)
        if layer == 1:
            L += self.unpack(P+8, X3); add(P, P, P+8)
        add(P, P, P+16)
        L += [f"v_cvt_pk_bf16_f32 {v(P+8+e)}, {v(P+2*e)}, {v(P+2*e+1)}" for e in range(4)]
        if layer == 0: L.append(f"buffer_store_dwordx4 {v(P+8,4)}, {v(vF2)}, {s(RW,4)}, {k4(half)} offen")
        else: L.append(f"buffer_store_dwordx4 {v(P+8,4)}, {v(vO)}, {s(RO,4)}, {s(sFH) if half else 0} offen{'' if half and self.o.get('ostb') else self.o.get('ost', ' sc1')}")
        return L

    def gemm2(self, layer):
        k = self.k; o = self.o
        lo = 1024*layer
        AC2 = [AR, WF]
        X3 = [TMP, TMP + 4]
        order = self.g2_order()
        LA = o.get('g2la', 20)
        xt = {}
        def ldX(h): xt[h] = k(f"buffer_load_dwordx4 {v(X3[h],4)}, {v(vF2)}, {s(RW,4)}, {k4(h)} offen sc1")
        ho = lambda half, mt: 2048*layer + 1024*half + 512*mt
        sl = self.hsc[1]
        gate = [14]
        def opened(n): return Item(fn=lambda: gate.__setitem__(0, n), cost=0)
        p0, p1 = o.get('hb_pub0', 21 if sl else 4), o.get('hb_pub1', 50 if sl else 20)
        g_, r_ = o.get('hb_gap', 28), o.get('hb_rtt', 25)
        side = Queue(k, self.publish_items(lambda: self.hB_tok[0], s(sHFs), ho(1, 0), p0)
                     + self.publish_items(lambda: self.hB_tok[1], s(sHFs), ho(1, 1), p1))
        side2 = Queue(k, ([Item(fn=self.hA1_issue, at=o['ha1_slot'])] if 'ha1_slot' in o else [])
                      + [Item(fn=f, at=o.get('ha1_pc', 0)) for f in self.poll_steps(lambda: self.hA1_box[0])] + [opened(28)]
                      + self.poll_items(vP7, s(sHFp), ho(1, 0), p0 + g_, p0 + g_ + r_) + [opened(42)]
                      + self.poll_items(vP7, s(sHFp), ho(1, 1), max(p1 + g_, p0 + g_ + r_ + 2), max(p1 + g_, p0 + g_ + r_ + 2) + r_) + [opened(56)])
        if layer == 0: k.wait(self.wd_last)
        fbox = []; seenB = False; wB = self.red_write(AC2[1]); doneB = 0
        def next_load():
            self.ldH()
            if layer == 1 and self.nxtH == 34: ldX(0)
            if layer == 1 and self.nxtH == 56:
                ldX(1)
                if o.get('wbl2', 0): self.writeback()
        for n in range(56):
            half, U, mt = order[n]
            if n == 28:
                self.stamp(f'g2a{layer}')
                side.drain()
                t = 4*28
                sp = o.get('ra_sp', 2)
                L = [Item(x, at=t + 3 + sp*i) for i, x in enumerate(self.red_write(AC2[0]))]
                L += [Item(fn=lambda: k.wait_lg0(), at=t + 8*sp + 3), Item(fn=lambda: k("s_barrier"))]
                L += [Item(x) for x in self.red_read(AR)]
                L += [Item(fn=lambda: k.wait_lg0(), at=t + 8*sp + o.get('ra_rd', 14)), Item(fn=lambda: k("s_barrier"))]
                if layer == 1: L += [Item(fn=lambda: k.wait(xt[0]))]
                L += [Item(x) for x in self.red_sum(AR, 0, layer, X3[0], 0)]
                fA = L[-1]
                if layer == 0:
                    L += self.publish_items(lambda: fA.tok, s(sFFs), 0, t + o.get('fa_pub', 66))
                    L += [Item(x, at=t + 60) for x in self.unpack(ACC[1] + 24, YS[0]) + self.ag_addr(ACC[1] + 52)]
                    L.append(Item(fn=lambda: fbox.append(self.poll_issue(vP7, s(sFFp), 0)), at=t + o.get('fa_pi', 86)))
                    if o.get('fa_in', 1):
                        L += [Item(fn=f, at=t + o.get('fa_pc', 104)) for f in self.poll_steps(lambda: fbox[0])]
                        fldi = Item(f"buffer_load_dwordx4 {v(ACC[1],4)}, {v(vFr)}, {s(RW,4)}, {s(sFR[0])} offen sc1"); L.append(fldi)
                if o.get('nored') and layer == 1: L = []
                side = Queue(k, L)
                last0 = max(i for i in range(28, 56) if order[i][2] == 0)
                late = Queue(k, [Item(x, at=4*(last0 + 1) + 3 + sp*i) for i, x in enumerate(wB[:4])])
            if n in (8, 16, 22, 36, 44, 50): self.stamp(f'g2_{layer}_{n}')
            for m in range(n, n + 2 - n % 2):
                while m not in self.ht:
                    while self.nxtH >= gate[0]:
                        if gate[0] > 14: side.drain() if n < 28 else None
                        side2.emit(side2.q[0])
                    next_load()
            if n % 2 == 0: k.wait(self.ht[n + 1])
            for nt in range(4):
                d = AC2[half] + 16*mt + 4*nt
                k(f"v_mfma_f32_16x16x32_bf16 {v(d,4)}, {a((4*U+nt)*4,4)}, {v(self.hreg(n),4)}, {'0' if U == 0 else v(d,4)}")
                cap = 2 - (1 if (nt == 3 and n % 2) else 0)
                if (nt == 0 or (nt == 2 and self.nxtH < n + 1 + o.get('g2min', 9))) and self.nxtH < min(gate[0], n + 1 + LA) and (self.nxtH < 42 or self.nxtH - 42 < n):
                    next_load(); cap -= 1
                cap = side2.fill(cap, 4*n + nt)
                cap = side.fill(cap, 4*n + nt)
                if n >= 28 and not any('ds_' in (x.text or '') or (x.fn and x.at <= t + 8*sp + 40) for x in side.q):
                    late.fill(cap, 4*n + nt)
        print('layer', layer, 'left after G2B:', side.cost(), late.cost())
        side.drain()
        wB = [x.text for x in late.q] + wB[4:]
        self.stamp(f'g2b{layer}')
        R = ACC[1]
        if layer == 0 and not o.get('fa_in', 1):
            self.poll_check(fbox[0])
            fld = k(f"buffer_load_dwordx4 {v(R,4)}, {v(vFr)}, {s(RW,4)}, {s(sFR[0])} offen sc1")
        elif layer == 0: fld = fldi.tok
        for x in wB: k(x)
        if layer == 0:
            k.wait(fld)
            self.stamp('fA_in')
            sts, rest = self.rowop(0, R, True)
            self.stamp('rowA')
            if o.get('apub_first', 2): self.run(rest)
            if o.get('apub_first', 2) == 1: self.publish(sts, s(sAFs), 1024)
        if not (layer == 0 and o.get('ag', 1)): k.wait_lg0(); k("s_barrier")
        for x in self.red_read(ACC[0]): k(x)
        if layer == 0 and o.get('apub_first', 2) == 2: self.publish(sts, s(sAFs), 1024)
        k.wait_lg0()
        if layer == 1: k.wait(xt[1])
        if layer == 0 and not o.get('apub_first', 2): self.publish(sts, s(sAFs), 1024)
        if layer == 0: self.a_poll = self.poll_issue(vP31, s(sAFp), 1024)
        self.fB = self.run(self.red_sum(ACC[0], 1, layer, X3[1], 1))[-1].tok
        self.stamp(f'fB_st{layer}')
        if layer == 0:
            self.gemm1_start(1)
            if not o.get('apub_first', 2): self.run(rest)

    def writeback(self):
        k = self.k
        a_, b_ = k.label(), k.label()
        k(f"s_or_b32 {s(T[2])}, {s(sJ)}, {s(sW)}\ns_cmp_lg_u32 {s(T[2])}, 0\ns_cbranch_scc1 {a_}")
        k("buffer_wbl2 sc1")
        k(f"s_branch {b_}"); k.place(a_)
        k.ins.append(I(f"buffer_load_dword {v(vPT)}, {v(vL0)}, {s(RW,4)}, 0 offen"))
        k.place(b_)

    def rowop(self, h, R, split=False):
        L = self.unpack(R + 8, R)
        L += [f"v_pk_add_f32 {v(XS[h]+e,2)}, {v(XS[h]+e,2)}, {v(R+8+e,2)}" for e in (0, 2, 4, 6)]
        L += self.stats([XS[h]], [36], R + 16)
        L += self.affine(R + 8, XS[h], 36, R + 20)
        if h == 1 and self.o.get('agb', 1) == 0:
            its = self.run(L + self.gate_norm([h], {h: R + 8}, 1, R + 24, R + 54), 16)
            return [x.tok for x in its if 'store' in x.text][-1]
        G = self.gate_norm([h], {h: R + 8}, 1, R + 24)
        rest = []
        if split: G = G[8:]
        if self.o.get('ag', 1):
            self.run(L + G[:-5], 16)
            tok = self.a_out([h], R, 1, lambda: self.run(G[-5:]))[0]
            return (tok, []) if split else tok
        if split: G, rest = G[:-5], G[-5:]
        its = self.run(L + G, 16)
        tok = [x.tok for x in its if 'store' in x.text][-1]
        return (tok, rest) if split else tok

    def build(self):
        k = self.k; o = self.o
        self.prologue()
        self.front_addr()
        if o.get('hpos', 1): self.h_load()
        self.touch_first()
        self.touch_global_flags()
        if o.get('qpos', 1) == 3: self.q_load()
        self.w1_addr()
        self.w1_dma(o.get('n0', 2))
        self.wd_job_addr()
        if o.get('qpos', 1) == 2: self.q_load(False)
        self.phase0()
        if o.get('qpos', 1) == 4: self.q_load()
        if not o.get('b1', 1): self.w1_dma(o.get('n1', 1))
        self.conv()
        if o.get('joint', 1): self.y_joint()
        else: self.y_in()
        for layer in range(2):
            self.gemm1(layer)
            self.gemm2(layer)
        if o.get('stamps'):
            self.stamp('end')
            k(f"""s_lshl_b32 {s(T[0])}, s2, 2
                  s_add_u32 {s(T[0])}, {s(T[0])}, {s(sW)}
                  s_lshl_b32 {s(T[0])}, {s(T[0])}, 8
                  s_add_u32 {s(T[0])}, {s(T[0])}, {WS_DBG}
                  v_lshrrev_b32 v5, 2, {v(vL16)}
                  buffer_store_dword {v(vST[0])}, v5, {s(RW,4)}, {s(T[0])} offen
                  s_add_u32 {s(T[0])}, {s(T[0])}, 0x40000
                  buffer_store_dword {v(vST[1])}, v5, {s(RW,4)}, {s(T[0])} offen""")
        if o.get('delay'):
            k(f"""s_mov_b32 {s(T[0])}, {o['delay']}
                  s_memrealtime {s(T[2],2)}
                  s_waitcnt lgkmcnt(0)""")
            k.place("L_DELAY")
            k(f"""s_memrealtime {s(T[4],2)}
                  s_waitcnt lgkmcnt(0)
                  s_sub_u32 {s(T[4])}, {s(T[4])}, {s(T[2])}
                  s_cmp_lt_u32 {s(T[4])}, {s(T[0])}
                  s_cbranch_scc1 L_DELAY""")
        if o.get('diag'):
            self.stamp('end')
            k(f"""v_sub_u32 v5, {v(vST[1])}, {v(vST[0])}
                  s_nop 1
                  v_readfirstlane_b32 {s(T[0])}, v5
                  s_mul_i32 {s(T[0])}, {s(T[0])}, 8
                  s_memrealtime {s(T[2],2)}
                  s_waitcnt lgkmcnt(0)""")
            k.place("L_DIAG")
            k(f"""s_memrealtime {s(T[4],2)}
                  s_waitcnt lgkmcnt(0)
                  s_sub_u32 {s(T[4])}, {s(T[4])}, {s(T[2])}
                  s_cmp_lt_u32 {s(T[4])}, {s(T[0])}
                  s_cbranch_scc1 L_DIAG""")
        k.place("L_END")
        k("s_endpgm")
        body = k.text()
        for t in self.tail:
            body += "".join((x + "\n") if x.endswith(':') else ("    " + x + "\n") for x in t)
        body += "L_LAST:\n"
        return body

def file_text(opt):
    g = Gen(opt)
    body = g.build()
    ref = open(os.path.join(os.path.dirname(os.path.abspath(__file__)), '..', 'cdna_kernels', NAME + '.s.ref')).read()
    head = ref[:ref.index('; Override launch geometry')]
    txt = head + f"""; @launch grid=(256,1,1) block=(256,1,1) lds={LDS_SIZE}
;
; One persistent launch, 256 workgroups of 4 waves, one per CU (generated by a script of my own).
; Workgroup b: group x = b & 7, member j = b >> 3.
;   1. kv = shortconv(k) * v for a 64-step x 64-channel tile, handed over transposed inside the group.
;   2. long causal conv of 2 channels as block-Toeplitz MFMAs (exact products, fp32 sums), plus kv * D.
;      y does not depend on the residual stream, so it is computed once and used by both layers.
;   3. each wave owns two rows (x, y in registers): x += LN(x) * y ; a = LN(x).
;   4. GEMM1: 256 rows x 56 hidden units per workgroup, gate/up weights resident in LDS; SwiGLU.
;   5. GEMM2: 64 x 64 tile per workgroup, w_down slice resident in accumulator registers, K split over waves.
;   Steps 3-5 run twice, in two row halves that hide each other's hand-off latency.
; Hand-offs use flag words in d_ws that carry a per-launch tag derived from d_ws word 0.
; Inside a group they go through one L2 when all 32 members report the same die id; otherwise every
; hand-off takes the device-scope release/acquire path, so any placement gives the same result.
.amdgcn_target "amdgcn-amd-amdhsa--gfx950"
.text
.globl {NAME}_kernel
.p2align 8
.type {NAME}_kernel,@function
{NAME}_kernel:
{body}.section .rodata,"a"
.p2align 6
.amdhsa_kernel {NAME}_kernel
  .amdhsa_next_free_vgpr 512
  .amdhsa_next_free_sgpr 102
  .amdhsa_accum_offset 256
  .amdhsa_group_segment_fixed_size 0
  .amdhsa_kernarg_size 104
  .amdhsa_user_sgpr_count 2
  .amdhsa_user_sgpr_kernarg_segment_ptr 1
  .amdhsa_system_sgpr_workgroup_id_x 1
.end_amdhsa_kernel
"""
    return txt, g

if __name__ == '__main__':
    import json
    opt = {}; out = None
    for x in sys.argv[1:]:
        if '=' in x:
            kk, vv = x.split('=')
            opt[kk] = vv.split(',') if kk in ('only', 'diag') else (' ' + vv.replace('+', ' ') if kk in ('ost', 'wdm', 'x3m') else int(vv, 0))
        else: out = x
    txt, g = file_text(opt)
    open(out, 'w').write(txt)
    json.dump(g.stamps, open(out + '.stamps.json', 'w'))
    print('instructions', len(g.k.ins), 'nops added', g.k.nops_added, 'stamps', len(g.stamps))
```
